```python
import torch

def _softmax(x, axis=-1):
    return torch.softmax(x, dim=axis)
def _gelu(x):
    return torch.nn.functional.gelu(x, approximate="tanh")
def _silu(x):
    return torch.nn.functional.silu(x)
def _sigmoid(x):
    return torch.sigmoid(x)
def _layernorm(x, axis=-1, eps=1e-5):
    m = x.mean(dim=axis, keepdim=True)
    v = x.var(dim=axis, keepdim=True, unbiased=False)
    return (x - m) / torch.sqrt(v + eps)
def _scatter_add(tgt, idx, src, axis=0):
    return tgt.clone().index_add_(axis, idx, src)
def _segment_sum(src, seg, n):
    out = torch.zeros((n,) + src.shape[1:], dtype=src.dtype)
    return out.index_add_(0, seg, src)
def _pad(x, pw):
    flat = tuple(v for pair in reversed(pw) for v in pair)
    return torch.nn.functional.pad(x, flat)

kernel_name = 'parallel_sum__ssm_conv_h3__moe_arch_mod__prompt'

def setup_inputs():

    _w = (lambda a: (lambda t: t.to(torch.bfloat16) if t.is_floating_point() else t)(torch.as_tensor(a)))
    def _A_setup():
        B, S, D = 1, 2048, 576
        ks = 4
        return {
            "q": _w((lambda *s: torch.randn(*s, dtype=torch.bfloat16) * 0.05)(B, S, D)),
            "k": _w((lambda *s: torch.randn(*s, dtype=torch.bfloat16) * 0.8)(B, S, D)),
            "v": _w((lambda *s: torch.randn(*s, dtype=torch.bfloat16) * 0.8)(B, S, D)),
            "shift_k": _w((lambda *s: torch.randn(*s, dtype=torch.bfloat16) * 0.8)(D, ks) * 0.5),
            "ssm_k": _w((lambda *s: torch.randn(*s, dtype=torch.bfloat16) * 0.8)(D, S) * (1.0 / S ** 0.5)),
            "ssm_D": _w((lambda *s: torch.randn(*s, dtype=torch.bfloat16) * 0.8)(D)),
        }
    _A_in = _A_setup()

    def _B_setup():
        B, S, D, F, C = 1, 2048, 576, 4608, 8
        return {
            "x": _w((lambda *s: torch.randn(*s, dtype=torch.bfloat16) * 0.05)(B, S, D)),
            "w_r": _w((lambda *s: torch.randn(*s, dtype=torch.bfloat16) * 0.05)(D)),
            "w_gate": _w((lambda *s: torch.randn(*s, dtype=torch.bfloat16) * 0.05)(D, F)),
            "w_up": _w((lambda *s: torch.randn(*s, dtype=torch.bfloat16) * 0.05)(D, F)),
            "w_down": _w((lambda *s: torch.randn(*s, dtype=torch.bfloat16) * 0.05)(F, D)),
        }
    _B_in = _B_setup()

    return {
        "A_q": _A_in["q"],
        "A_k": _A_in["k"],
        "A_v": _A_in["v"],
        "A_shift_k": _A_in["shift_k"],
        "A_ssm_k": _A_in["ssm_k"],
        "A_ssm_D": _A_in["ssm_D"],
        "B_x": _B_in["x"],
        "B_w_r": _B_in["w_r"],
        "B_w_gate": _B_in["w_gate"],
        "B_w_up": _B_in["w_up"],
        "B_w_down": _B_in["w_down"],
    }

def reference(A_q, A_k, A_v, A_shift_k, A_ssm_k, A_ssm_D, B_x, B_w_r, B_w_gate, B_w_up, B_w_down):
    def _A_ref(q, k, v, shift_k, ssm_k, ssm_D):
        B, S, D = q.shape
        ks = shift_k.shape[-1]
        k_pad = _pad(k, ((0, 0), (ks - 1, 0), (0, 0)))
        k_shift = torch.zeros_like(k)
        for t in range(ks):
            k_shift = k_shift + k_pad[:, t:t + S, :] * shift_k[:, ks - 1 - t][None, None, :]
        kv = k_shift * v
        L = 2 * S
        kv_pad = _pad(kv, ((0, 0), (0, S), (0, 0)))
        kf_pad = _pad(ssm_k, ((0, 0), (0, S)))
        kv_f = (lambda x, axes=(-2,-1): torch.fft.rfft2(x.float(), dim=axes))(kv_pad[:, None, :, :], axes=(1, 2))
        kf_f = (lambda x, axes=(-2,-1): torch.fft.rfft2(x.float(), dim=axes))(kf_pad[:, None, :], axes=(1, 2))
        kf_f = (lambda x, *d: x.permute(*d))(kf_f, 1, 2, 0)
        y_f = kv_f * kf_f[None, :, :, :]
        y = (lambda x, s, axes=(-2,-1): torch.fft.irfft2(x, s=s, dim=axes).to(torch.bfloat16))(y_f, (1, L), axes=(1, 2))[:, 0, :S, :]
        y = y + kv * ssm_D[None, None, :]
        return q * y

    def _B_ref(x, w_r, w_gate, w_up, w_down):
        B, S, D = x.shape
        C = 8
        r = x @ w_r
        idx = torch.argsort(-r, axis=-1)[:, :C]
        idx_e = (lambda x, n, axis: torch.repeat_interleave(x, n, dim=axis))(idx.reshape(B, C, 1), D, axis=2)
        x_sel = (lambda x, i, axis: torch.take_along_dim(x, i, dim=axis))(x, idx_e, axis=1)
        g = _silu(x_sel @ w_gate)
        u = x_sel @ w_up
        y = (g * u) @ w_down
        r_sel = _sigmoid((lambda x, i, axis: torch.take_along_dim(x, i, dim=axis))(r, idx, axis=1))
        y = y * r_sel.reshape(B, C, 1)
        b_off = (torch.arange(B) * S).reshape(B, 1)
        flat_idx = (idx + b_off).reshape(B * C)
        zero = (x * 0.0).reshape(B * S, D)
        upd = _scatter_add(zero, flat_idx, y.reshape(B * C, D), axis=0)
        return x + upd.reshape(B, S, D)

    x = A_q
    xn = _layernorm(x, axis=-1)
    return x + _A_ref(xn, A_k, A_v, A_shift_k, A_ssm_k, A_ssm_D) + _B_ref(xn, B_w_r, B_w_gate, B_w_up, B_w_down)
```

```python
import re
NAME = "parallel_sum__ssm_conv_h3__moe_arch_mod__prompt"
S, D, F, C = 2048, 576, 4608, 8
ROWB = 1152
KA_Q, KA_K, KA_V, KA_SHK, KA_SSMK, KA_SSMD, KA_BX, KA_WR, KA_WG, KA_WU, KA_WD, KA_OUT, KA_DBG, KA_WS = [8*i for i in range(14)]

class Asm:
    def __init__(self):
        self.lines = []
        self.uid = 0
    def __call__(self, s):
        for l in s.strip("\n").split("\n"):
            l = l.strip()
            m = re.search(r"offset:(\d+)", l)
            if m:
                n = int(m.group(1))
                if l.startswith("buffer_") or l.startswith("global_"):
                    assert n < 4096, l
                elif l.startswith("ds_"):
                    assert n < 65536, l
            self.lines.append("  " + l)
    def label(self, name):
        self.lines.append(name + ":")
    def raw(self, s):
        self.lines.append(s)
    def newlabel(self, base):
        self.uid += 1
        return "L_%s_%d" % (base, self.uid)
    def nop(self, n):
        while n > 0:
            k = min(n, 16)
            self("s_nop %d" % (k - 1))
            n -= k
    def text(self):
        return "\n".join(self.lines) + "\n"

def v(i, n=1):
    return "v%d" % i if n == 1 else "v[%d:%d]" % (i, i + n - 1)
def a(i, n=1):
    return "a%d" % i if n == 1 else "a[%d:%d]" % (i, i + n - 1)
def s(i, n=1):
    return "s%d" % i if n == 1 else "s[%d:%d]" % (i, i + n - 1)

def srd(A, dst, base, nbytes):
    A("s_mov_b32 %s, %s" % (s(dst), s(base)))
    A("s_and_b32 %s, %s, 0xffff" % (s(dst + 1), s(base + 1)))
    A("s_mov_b32 %s, 0x%x" % (s(dst + 2), nbytes))
    A("s_mov_b32 %s, 0x00020000" % s(dst + 3))

def kernel_header(A, name):
    A.raw(".globl %s" % name)
    A.raw(".p2align 8")
    A.raw(".type %s,@function" % name)
    A.label(name)

def kernel_desc(name, vgpr, sgpr, accum, extra=""):
    return """.p2align 6
.amdhsa_kernel %s
  .amdhsa_next_free_vgpr %d
  .amdhsa_next_free_sgpr %d
  .amdhsa_accum_offset %d
  .amdhsa_group_segment_fixed_size 0
  .amdhsa_kernarg_size 112
  .amdhsa_user_sgpr_count 2
  .amdhsa_user_sgpr_kernarg_segment_ptr 1
  .amdhsa_system_sgpr_workgroup_id_x 1
  .amdhsa_float_denorm_mode_32 3
%s.end_amdhsa_kernel
""" % (name, vgpr, sgpr, accum, extra)

def unpack_pair(A, dlo, dhi, src, smask):
    A("v_lshlrev_b32 %s, 16, %s" % (v(dlo), v(src)))
    A("v_and_b32 %s, %s, %s" % (v(dhi), s(smask), v(src)))

def round_pair(A, lo, hi, tmp, smask):
    A("v_cvt_pk_bf16_f32 %s, %s, %s" % (v(tmp), v(lo), v(hi)))
    unpack_pair(A, lo, hi, tmp, smask)

def allreduce16_add(A, x, tmp=None):
    for ctl in ("quad_perm:[1,0,3,2]", "quad_perm:[2,3,0,1]", "row_half_mirror", "row_mirror"):
        A.nop(2)
        A("v_add_f32_dpp %s, %s, %s %s row_mask:0xf bank_mask:0xf" % (v(x), v(x), v(x), ctl))

def allreduce32_add(A, x, tmp):
    allreduce16_add(A, x)
    A("v_mov_b32 %s, %s" % (v(tmp), v(x)))
    A.nop(2)
    A("v_permlane16_swap_b32 %s, %s" % (v(x), v(tmp)))
    A.nop(2)
    A("v_add_f32 %s, %s, %s" % (v(x), v(x), v(tmp)))

WS_STATS = 0x0000
WS_RKEY = 0x4000
WS_SEL = 0x6000
UR_STRIDE = 4224
WS_UR = 0x10000
WS_YT = WS_UR + 576 * UR_STRIDE
WS_YT = (WS_YT + 4095) // 4096 * 4096
WS_PART = WS_YT + 576 * 4096
WS_END = WS_PART + 288 * 8 * 576 * 4
WS_SIZE = 268435456
```

```python
from common import *

def gen_k1(A, name="k1_kernel"):
    kernel_header(A, name)
    A("s_cmp_ge_u32 s2, 288")
    Ldone = A.newlabel("k1done")
    A("s_cbranch_scc1 %s" % Ldone)
    A("s_load_dwordx4 s[4:7], s[0:1], %d" % KA_Q)
    A("s_load_dwordx4 s[8:11], s[0:1], %d" % KA_V)
    A("s_load_dwordx2 s[12:13], s[0:1], %d" % KA_WR)
    A("s_load_dwordx2 s[14:15], s[0:1], %d" % KA_WS)
    A("s_mul_i32 s42, s2, 7282")
    A("s_lshr_b32 s42, s42, 16")
    A("s_mul_i32 s41, s42, 9")
    A("s_sub_u32 s41, s2, s41")
    A("s_mov_b32 s40, 0xffff0000")
    A("s_movk_i32 s44, 4608")
    A("v_and_b32 v1, 63, v0")
    A("v_lshrrev_b32 v7, 6, v0")
    A("v_and_b32 v2, 31, v0")
    A("v_bfe_u32 v3, v0, 5, 1")
    A.nop(1)
    A("v_readfirstlane_b32 s43, v7")
    A("v_lshrrev_b32 v8, 5, v0")
    A("s_lshl_b32 s45, s42, 6")
    A("v_lshl_add_u32 v9, v8, 3, s45")
    A("s_movk_i32 s46, 1152")
    A("v_mul_lo_u32 v4, v9, s46")
    A("s_lshl_b32 s47, s41, 7")
    A("v_lshl_add_u32 v4, v2, 2, v4")
    A("v_add_u32 v4, s47, v4")
    A("v_subrev_u32 v5, 3456, v4")
    A("v_cmp_eq_u32 vcc, 0, v9")
    A("v_bfrev_b32 v6, 1")
    A.nop(2)
    A("v_cndmask_b32 v5, v5, v6, vcc")
    A("s_lshl_b32 s48, s2, 3")
    A("v_add_u32 v30, s48, v8")
    A("v_mul_lo_u32 v6, v30, s46")
    A("v_lshl_add_u32 v6, v2, 2, v6")
    A("v_lshlrev_b32 v31, 2, v2")
    A("s_lshl_b32 s49, s41, 9")
    A("v_lshl_add_u32 v29, v2, 4, s49")
    A("s_waitcnt lgkmcnt(0)")
    srd(A, 16, 4, S * ROWB)
    srd(A, 20, 6, S * ROWB)
    srd(A, 24, 8, S * ROWB)
    srd(A, 28, 10, D * 8)
    srd(A, 32, 12, D * 2)
    srd(A, 36, 14, WS_SIZE)
    Lnoq = A.newlabel("noq")
    A("s_cmp_ge_u32 s2, 256")
    A("s_cbranch_scc1 %s" % Lnoq)
    for i in range(9):
        A("buffer_load_dword %s, v6, s[16:19], 0 offen offset:%d" % (v(36 + i), 128 * i))
    for i in range(9):
        A("buffer_load_dword %s, v31, s[32:35], 0 offen offset:%d" % (v(45 + i), 128 * i))
    A.label(Lnoq)
    A("buffer_load_dwordx4 v[32:35], v29, s[28:31], 0 offen")
    for i in range(3):
        A("buffer_load_dword %s, v5, s[20:23], 0 offen offset:%d" % (v(10 + i), 1152 * i))
    for i in range(8):
        so = "0" if i < 4 else "s44"
        A("buffer_load_dword %s, v4, s[20:23], %s offen offset:%d" % (v(13 + i), so, 1152 * (i % 4)))
    for i in range(8):
        so = "0" if i < 4 else "s44"
        A("buffer_load_dword %s, v4, s[24:27], %s offen offset:%d" % (v(21 + i), so, 1152 * (i % 4)))
    Lnoln = A.newlabel("noln")
    A("s_cmp_ge_u32 s2, 256")
    A("s_cbranch_scc1 %s" % Lnoln)
    A("s_waitcnt vmcnt(20)")
    X = 116
    for i in range(9):
        unpack_pair(A, X + 2 * i, X + 2 * i + 1, 36 + i, 40)
    A("v_pk_add_f32 v[84:85], v[%d:%d], v[%d:%d]" % (X, X + 1, X + 2, X + 3))
    for i in range(2, 9):
        A("v_pk_add_f32 v[84:85], v[84:85], v[%d:%d]" % (X + 2 * i, X + 2 * i + 1))
    A("v_add_f32 v84, v84, v85")
    allreduce32_add(A, 84, 85)
    A("v_mul_f32 v84, 0x3ae38e39, v84")
    A("v_sub_f32 v86, 0, v84")
    A("v_sub_f32 v87, 0, v84")
    A("v_mov_b32 v88, 0")
    A("v_mov_b32 v89, 0")
    for i in range(9):
        A("v_pk_add_f32 v[90:91], v[%d:%d], v[86:87]" % (X + 2 * i, X + 2 * i + 1))
        A("v_pk_fma_f32 v[88:89], v[90:91], v[90:91], v[88:89]")
    A("v_add_f32 v88, v88, v89")
    allreduce32_add(A, 88, 89)
    A("v_mul_f32 v88, 0x3ae38e39, v88")
    round_pair(A, 84, 88, 85, 40)
    A("v_add_f32 v88, 0x3727c5ac, v88")
    A("v_cvt_pk_bf16_f32 v85, v88, v88")
    A("v_lshlrev_b32 v88, 16, v85")
    A("v_sqrt_f32 v88, v88")
    A.nop(1)
    A("v_cvt_pk_bf16_f32 v85, v88, v88")
    A("v_lshlrev_b32 v88, 16, v85")
    A("v_rcp_f32 v89, v88")
    A.nop(1)
    A("v_fma_f32 v90, -v88, v89, 1.0")
    A("v_fma_f32 v89, v90, v89, v89")
    A("v_sub_f32 v86, 0, v84")
    A("v_sub_f32 v87, 0, v84")
    A("v_mov_b32 v92, v89")
    A("v_mov_b32 v93, v89")
    A("v_sub_f32 v94, 0, v88")
    A("v_sub_f32 v95, 0, v88")
    A("v_mov_b32 v96, 0")
    A("v_mov_b32 v97, 0")
    for i in range(9):
        x0, x1 = X + 2 * i, X + 2 * i + 1
        A("v_pk_add_f32 v[%d:%d], v[%d:%d], v[86:87]" % (x0, x1, x0, x1))
        round_pair(A, x0, x1, 90, 40)
        A("v_pk_mul_f32 v[98:99], v[%d:%d], v[92:93]" % (x0, x1))
        A("v_pk_fma_f32 v[%d:%d], v[98:99], v[94:95], v[%d:%d]" % (x0, x1, x0, x1))
        A("v_pk_fma_f32 v[98:99], v[%d:%d], v[92:93], v[98:99]" % (x0, x1))
        round_pair(A, 98, 99, 90, 40)
        unpack_pair(A, x0, x1, 45 + i, 40)
        A("v_pk_fma_f32 v[96:97], v[98:99], v[%d:%d], v[96:97]" % (x0, x1))
    A("v_add_f32 v96, v96, v97")
    allreduce32_add(A, 96, 97)
    A("v_cvt_pk_bf16_f32 v97, v96, v96")
    A("v_lshlrev_b32 v97, 16, v97")
    A("v_ashrrev_i32 v98, 31, v97")
    A("v_or_b32 v98, 0x80000000, v98")
    A("v_xor_b32 v97, v97, v98")
    A("v_and_b32 v97, s40, v97")
    A("v_sub_u32 v98, 2047, v30")
    A("v_or_b32 v97, v97, v98")
    A("v_cvt_pk_bf16_f32 v90, v84, v88")
    A("v_mov_b32 v91, v89")
    A("v_lshlrev_b32 v98, 3, v30")
    A("v_lshlrev_b32 v99, 2, v30")
    A("v_add_u32 v99, %d, v99" % WS_RKEY)
    A("v_cmp_eq_u32 vcc, 0, v2")
    A("s_and_saveexec_b64 s[50:51], vcc")
    A("buffer_store_dwordx2 v[90:91], v98, s[36:39], 0 offen offset:%d" % WS_STATS)
    A("buffer_store_dword v97, v99, s[36:39], 0 offen")
    A("s_mov_b64 exec, s[50:51]")
    A.label(Lnoln)
    A("s_waitcnt vmcnt(0)")
    W = 54
    A("v_lshlrev_b32 v54, 16, v32"); A("v_lshlrev_b32 v55, 16, v34")
    A("v_and_b32 v56, s40, v32");    A("v_and_b32 v57, s40, v34")
    A("v_lshlrev_b32 v58, 16, v33"); A("v_lshlrev_b32 v59, 16, v35")
    A("v_and_b32 v60, s40, v33");    A("v_and_b32 v61, s40, v35")
    K = 62
    for i in range(11):
        unpack_pair(A, K + 2 * i, K + 2 * i + 1, 10 + i, 40)
    KV = 100
    def pr_(r):
        return "v[%d:%d]" % (r, r + 1)
    for i in range(8):
        acc, tmp = 84, 86
        A("v_pk_mul_f32 %s, %s, %s" % (pr_(acc), pr_(K + 2 * (i + 0)), pr_(W + 6)))
        round_pair(A, acc, acc + 1, 88, 40)
        for t in range(1, 4):
            A("v_pk_mul_f32 %s, %s, %s" % (pr_(tmp), pr_(K + 2 * (i + t)), pr_(W + 2 * (3 - t))))
            round_pair(A, tmp, tmp + 1, 88, 40)
            A("v_pk_add_f32 %s, %s, %s" % (pr_(acc), pr_(acc), pr_(tmp)))
            round_pair(A, acc, acc + 1, 88, 40)
        unpack_pair(A, tmp, tmp + 1, 21 + i, 40)
        A("v_pk_mul_f32 %s, %s, %s" % (pr_(KV + 2 * i), pr_(acc), pr_(tmp)))
    for c in range(2):
        for j in range(4):
            A("v_cvt_pk_bf16_f32 %s, %s, %s" % (v(116 + 4 * c + j), v(KV + 2 * (7 - 2 * j) + c), v(KV + 2 * (6 - 2 * j) + c)))
    A("s_lshl_b32 s47, s41, 6")
    A("v_lshl_add_u32 v84, v2, 1, s47")
    A("s_movk_i32 s46, %d" % UR_STRIDE)
    A("v_mul_lo_u32 v85, v84, s46")
    A("v_lshlrev_b32 v86, 1, v9")
    A("v_sub_u32 v86, %d, v86" % (WS_UR + 2 * 2056))
    A("v_add_u32 v85, v85, v86")
    A("buffer_store_dwordx4 v[116:119], v85, s[36:39], 0 offen")
    A("buffer_store_dwordx4 v[120:123], v85, s[36:39], s46 offen")
    A("v_mov_b32 v124, 0"); A("v_mov_b32 v125, 0"); A("v_mov_b32 v126, 0"); A("v_mov_b32 v127, 0")
    A("v_and_b32 v88, 63, v0")
    A("v_add_u32 v88, s47, v88")
    A("v_mul_lo_u32 v88, v88, s46")
    A("v_lshrrev_b32 v89, 6, v0")
    A("v_lshl_add_u32 v88, v89, 4, v88")
    A("v_add_u32 v88, %d, v88" % WS_UR)
    Lp1 = A.newlabel("pad1"); Lp2 = A.newlabel("pad2")
    A("s_cmp_lg_u32 s42, 0")
    A("s_cbranch_scc1 %s" % Lp1)
    A("s_movk_i32 s52, %d" % (2 * 2064))
    A("buffer_store_dwordx4 v[124:127], v88, s[36:39], s52 offen")
    A("v_cmp_gt_u32 vcc, 2, v89")
    A("s_and_saveexec_b64 s[50:51], vcc")
    A("s_cbranch_execz %s" % (Lp1 + "_r"))
    A("buffer_store_dwordx4 v[124:127], v88, s[36:39], s52 offen offset:64")
    A.label(Lp1 + "_r")
    A("s_mov_b64 exec, s[50:51]")
    A.label(Lp1)
    A("s_cmp_lg_u32 s42, 31")
    A("s_cbranch_scc1 %s" % Lp2)
    A("v_cmp_gt_u32 vcc, 2, v89")
    A("s_and_saveexec_b64 s[50:51], vcc")
    A("s_cbranch_execz %s" % (Lp2 + "_r"))
    A("buffer_store_dwordx4 v[124:127], v88, s[36:39], 0 offen")
    A.label(Lp2 + "_r")
    A("s_mov_b64 exec, s[50:51]")
    A.label(Lp2)
    A.label(Ldone)
    A("s_endpgm")
    return kernel_desc(name, 144, 64, 144)
```

```python
from common import *

CS = 4160
W_LDS = 37952
H_OFF = 33296
NCONV = 144
NMOE = 72
L_WG, L_WU, L_X, L_HS = 0, 73728, 147456, 156800
XSTR = 1168
HSTR = 144
K2_LDS = 158720

def wave_max_u32(A, x):
    for ctl, mask in (("row_shr:1", "0xf"), ("row_shr:2", "0xf"), ("row_shr:4", "0xf"), ("row_shr:8", "0xf"),
                      ("row_bcast:15", "0xa"), ("row_bcast:31", "0xc")):
        A.nop(2)
        A("v_max_u32_dpp %s, %s, %s %s row_mask:%s bank_mask:0xf" % (v(x), v(x), v(x), ctl, mask))

def gen_conv(A):
    A("v_lshrrev_b32 v1, 6, v0")
    A("v_and_b32 v2, 63, v0")
    A.nop(1)
    A("v_readfirstlane_b32 s20, v1")
    A("v_and_b32 v3, 15, v0")
    A("v_bfe_u32 v4, v0, 4, 2")
    A("s_lshl_b32 s21, s2, 2")
    A("s_add_u32 s21, s21, s20")
    A("s_mul_i32 s22, s20, %d" % W_LDS)
    A("s_waitcnt lgkmcnt(0)")
    srd(A, 36, 8, WS_SIZE)
    srd(A, 32, 4, D * S * 2)
    A("s_lshl_b32 s23, s21, 1")
    A("s_and_b32 s24, s23, 0xfffffffc")
    A("s_add_u32 s26, s6, s24")
    A("s_addc_u32 s27, s7, 0")
    A("s_load_dword s25, s[26:27], 0")
    A("v_lshlrev_b32 v5, 4, v2")
    A("s_mul_i32 s28, s21, %d" % UR_STRIDE)
    A("s_add_u32 s28, s28, %d" % WS_UR)
    A("s_mov_b32 s29, s22")
    for c in range(8):
        A("s_mov_b32 m0, s29")
        A.nop(1)
        for i in range(4):
            A("buffer_load_dwordx4 v5, s[36:39], s28 offen offset:%d lds" % (1024 * i))
        A("s_add_u32 s30, s29, 4096")
        A("s_add_u32 s31, s28, 4096")
        A("s_mov_b32 m0, s30")
        A("s_mov_b64 exec, 0x1f")
        A("buffer_load_dwordx4 v5, s[36:39], s31 offen lds")
        A("s_mov_b64 exec, -1")
        A("s_add_u32 s29, s29, %d" % CS)
        A("s_add_u32 s28, s28, 2")
    A("s_add_u32 s29, s22, %d" % (H_OFF + 512))
    A("s_lshl_b32 s28, s21, 12")
    A("s_mov_b32 m0, s29")
    A.nop(1)
    for i in range(4):
        A("buffer_load_dwordx4 v5, s[32:35], s28 offen offset:%d lds" % (1024 * i))
    A("s_add_u32 s30, s29, 4096")
    A("s_add_u32 s31, s28, 4096")
    A("s_mov_b32 m0, s30")
    A("s_mov_b64 exec, 0x3")
    A("buffer_load_dwordx4 v5, s[32:35], s31 offen lds")
    A("s_mov_b32 exec_lo, -1")
    A("s_mov_b32 exec_hi, 0")
    A("v_mov_b32 v8, 0"); A("v_mov_b32 v9, 0"); A("v_mov_b32 v10, 0"); A("v_mov_b32 v11, 0")
    A("v_add_u32 v6, s22, v5")
    A("ds_write_b128 v6, v[8:11] offset:%d" % H_OFF)
    A("s_mov_b64 exec, -1")
    A("v_lshlrev_b32 v12, 5, v3")
    A("v_lshl_add_u32 v12, v4, 4, v12")
    A("v_add_u32 v12, s22, v12")
    A("v_add_u32 v12, %d, v12" % H_OFF)
    A("v_and_b32 v13, 7, v3")
    A("v_sub_u32 v13, 7, v13")
    A("v_mul_u32_u24 v13, %d, v13" % CS)
    A("v_lshrrev_b32 v14, 3, v3")
    A("v_sub_u32 v14, v4, v14")
    A("v_lshlrev_b32 v14, 4, v14")
    A("v_add_u32 v13, v13, v14")
    A("v_add_u32 v13, 16, v13")
    A("v_add_u32 v13, s22, v13")
    A("v_lshlrev_b32 v15, 5, v3")
    A("v_lshl_add_u32 v15, v4, 3, v15")
    A("v_sub_u32 v15, %d, v15" % (4120 - 3584))
    A("v_add_u32 v15, s22, v15")
    A("v_lshlrev_b32 v16, 5, v3")
    A("v_lshl_add_u32 v16, v4, 3, v16")
    A("s_lshl_b32 s28, s21, 12")
    A("s_add_u32 s28, s28, %d" % WS_YT)
    ACC = 100
    for i in range(32):
        A("v_mov_b32 %s, 0" % v(ACC + i))
    A("s_waitcnt vmcnt(0) lgkmcnt(0)")
    A("s_and_b32 s24, s23, 2")
    A("s_lshl_b32 s24, s24, 3")
    A("s_lshr_b32 s25, s25, s24")
    A("s_lshl_b32 s25, s25, 16")
    for wi in range(65):
        dst = a(4 * wi, 4) if wi < 64 else "v[200:203]"
        A("ds_read_b128 %s, v12 offset:%d" % (dst, 64 * wi))
    RING = 132
    NR = 8
    for q in range(NR):
        A("ds_read_b128 %s, v13 offset:%d" % (v(RING + 4 * (q % NR), 4), 64 * (64 - q)))
    for q in range(65):
        out = min(NR - 1, 64 - q)
        A("s_waitcnt lgkmcnt(%d)" % out)
        tmin = max(0, (q - 8 + 7) // 8)
        for t in range(tmin, 8):
            wi = 8 * t - q + 8
            b = a(4 * wi, 4) if wi < 64 else "v[200:203]"
            A("v_mfma_f32_16x16x32_bf16 %s, %s, %s, %s" % (v(ACC + 4 * t, 4), v(RING + 4 * (q % NR), 4), b, v(ACC + 4 * t, 4)))
        if q + NR <= 64:
            A("ds_read_b128 %s, v13 offset:%d" % (v(RING + 4 * (q % NR), 4), 64 * (64 - (q + NR))))
    for t in range(8):
        A("ds_read_b64 %s, v15 offset:%d" % (v(164 + 2 * t, 2), 512 * (7 - t)))
    A.nop(10)
    A("s_waitcnt lgkmcnt(0)")
    A("s_mov_b32 s40, 0xffff0000")
    for t in range(8):
        u0 = 164 + 2 * t
        ac = ACC + 4 * t
        A("v_and_b32 v20, s40, %s" % v(u0 + 1))
        A("v_lshlrev_b32 v21, 16, %s" % v(u0 + 1))
        A("v_and_b32 v22, s40, %s" % v(u0))
        A("v_lshlrev_b32 v23, 16, %s" % v(u0))
        for i in range(4):
            A("v_mul_f32 %s, s25, %s" % (v(20 + i), v(20 + i)))
        round_pair(A, 20, 21, 24, 40)
        round_pair(A, 22, 23, 24, 40)
        round_pair(A, ac, ac + 1, 24, 40)
        round_pair(A, ac + 2, ac + 3, 24, 40)
        for i in range(4):
            A("v_add_f32 %s, %s, %s" % (v(20 + i), v(20 + i), v(ac + i)))
        A("v_cvt_pk_bf16_f32 %s, v20, v21" % v(26 + 2 * (t % 2)))
        A("v_cvt_pk_bf16_f32 %s, v22, v23" % v(27 + 2 * (t % 2)))
        A("buffer_store_dwordx2 %s, v16, s[36:39], s28 offen offset:%d" % (v(26 + 2 * (t % 2), 2), 512 * t))
    A("s_endpgm")

def gen_top8(A, KEYS, SK, tmp):
    A("s_mov_b32 s59, 0")
    for r in range(8):
        for i in range(0, 32, 2):
            A("v_subrev_u32 %s, s59, %s" % (v(tmp + 1), v(KEYS + i)))
            A("v_subrev_u32 %s, s59, %s" % (v(tmp + 2), v(KEYS + i + 1)))
            if i == 0:
                A("v_max_u32 %s, %s, %s" % (v(tmp), v(tmp + 1), v(tmp + 2)))
            else:
                A("v_max3_u32 %s, %s, %s, %s" % (v(tmp), v(tmp), v(tmp + 1), v(tmp + 2)))
        wave_max_u32(A, tmp)
        A.nop(2)
        A("v_readlane_b32 s58, %s, 63" % v(tmp))
        A.nop(4)
        A("s_add_u32 s59, s58, s59")
        A("s_mov_b32 %s, s59" % s(SK + r))

def gen_moe(A):
    A("s_sub_u32 s20, s2, %d" % NCONV)
    A("v_lshrrev_b32 v1, 6, v0")
    A("v_and_b32 v2, 63, v0")
    A.nop(1)
    A("v_readfirstlane_b32 s21, v1")
    A("v_and_b32 v3, 15, v0")
    A("v_bfe_u32 v4, v0, 4, 2")
    A("s_waitcnt lgkmcnt(0)")
    srd(A, 36, 8, WS_SIZE)
    srd(A, 40, 10, S * ROWB)
    srd(A, 44, 12, D * F * 2)
    srd(A, 48, 14, D * F * 2)
    srd(A, 52, 16, D * F * 2)
    A("v_lshlrev_b32 v5, 4, v2")
    KEYS = 32
    A("s_movk_i32 s22, %d" % WS_RKEY)
    for i in range(8):
        if i < 4:
            A("buffer_load_dwordx4 %s, v5, s[36:39], s22 offen offset:%d" % (v(KEYS + 4 * i, 4), 1024 * i))
        else:
            if i == 4:
                A("s_movk_i32 s22, %d" % (WS_RKEY + 4096))
            A("buffer_load_dwordx4 %s, v5, s[36:39], s22 offen offset:%d" % (v(KEYS + 4 * i, 4), 1024 * (i - 4)))
    A("v_lshrrev_b32 v6, 3, v2")
    A("v_mul_u32_u24 v6, 9216, v6")
    A("v_and_b32 v7, 7, v2")
    A("v_lshl_add_u32 v6, v7, 4, v6")
    A("s_lshl_b32 s23, s20, 7")
    A("s_mul_i32 s24, s21, 73728")
    A("s_add_u32 s23, s23, s24")
    A("s_lshl_b32 s24, s21, 10")
    for j in range(18):
        A("s_mov_b32 m0, s24")
        A("s_add_u32 s25, s24, %d" % L_WU)
        A("buffer_load_dwordx4 v6, s[44:47], s23 offen lds")
        A("s_mov_b32 m0, s25")
        A("s_add_u32 s24, s24, 4096")
        A("buffer_load_dwordx4 v6, s[48:51], s23 offen lds")
        A("s_add_u32 s23, s23, %d" % (4 * 73728))
    A("v_lshlrev_b32 v8, 4, v0")
    A("s_mul_i32 s23, s20, 73728")
    WD = 128
    for i in range(18):
        A("buffer_load_dwordx4 %s, v8, s[52:55], s23 offen" % v(WD + 4 * i, 4))
        A("s_add_u32 s23, s23, 4096")
    A("s_waitcnt vmcnt(54)")
    SK = 60
    gen_top8(A, KEYS, SK, 10)
    Lns = A.newlabel("nosel")
    A("s_or_b32 s22, s20, s21")
    A("s_cmp_lg_u32 s22, 0")
    A("s_cbranch_scc1 %s" % Lns)
    for i in range(8):
        A("v_mov_b32 %s, %s" % (v(10 + i), s(SK + i)))
    A("v_mov_b32 v18, %d" % WS_SEL)
    A("s_mov_b64 exec, 1")
    A("buffer_store_dwordx4 v[10:13], v18, s[36:39], 0 offen")
    A("buffer_store_dwordx4 v[14:17], v18, s[36:39], 0 offen offset:16")
    A("s_mov_b64 exec, -1")
    A.label(Lns)
    A("s_lshl_b32 s22, s21, 1")
    A("s_mov_b32 s26, s60"); A("s_mov_b32 s27, s61")
    for w in range(1, 4):
        A("s_cmp_eq_u32 s21, %d" % w)
        A("s_cselect_b32 s26, %s, s26" % s(SK + 2 * w))
        A("s_cselect_b32 s27, %s, s27" % s(SK + 2 * w + 1))
    A("s_and_b32 s26, s26, 0xffff"); A("s_sub_u32 s26, 2047, s26")
    A("s_and_b32 s27, s27, 0xffff"); A("s_sub_u32 s27, 2047, s27")
    A("v_mov_b32 v10, s26")
    A("v_mov_b32 v11, s27")
    A("v_cmp_lt_u32 vcc, 31, v2")
    A.nop(2)
    A("v_cndmask_b32 v10, v10, v11, vcc")
    A("v_and_b32 v12, 31, v2")
    A("s_movk_i32 s22, 1152")
    A("v_mul_lo_u32 v13, v10, s22")
    A("v_lshl_add_u32 v13, v12, 2, v13")
    A("v_lshlrev_b32 v14, 3, v10")
    for i in range(9):
        A("buffer_load_dword %s, v13, s[40:43], 0 offen offset:%d" % (v(32 + i), 128 * i))
    A("buffer_load_dwordx2 v[42:43], v14, s[36:39], 0 offen offset:%d" % WS_STATS)
    A("s_mov_b32 s19, 0xffff0000")
    A("s_waitcnt vmcnt(0)")
    A("v_lshlrev_b32 v44, 16, v42")
    A("v_sub_f32 v44, 0, v44"); A("v_mov_b32 v45, v44")
    A("v_and_b32 v46, s19, v42")
    A("v_sub_f32 v46, 0, v46"); A("v_mov_b32 v47, v46")
    A("v_mov_b32 v48, v43"); A("v_mov_b32 v49, v43")
    A("v_lshrrev_b32 v15, 5, v0")
    A("v_mul_u32_u24 v15, %d, v15" % XSTR)
    A("v_lshl_add_u32 v15, v12, 2, v15")
    A("v_add_u32 v15, %d, v15" % L_X)
    for i in range(9):
        unpack_pair(A, 50, 51, 32 + i, 19)
        A("v_pk_add_f32 v[50:51], v[50:51], v[44:45]")
        round_pair(A, 50, 51, 54, 19)
        A("v_pk_mul_f32 v[52:53], v[50:51], v[48:49]")
        A("v_pk_fma_f32 v[50:51], v[52:53], v[46:47], v[50:51]")
        A("v_pk_fma_f32 v[52:53], v[50:51], v[48:49], v[52:53]")
        A("v_cvt_pk_bf16_f32 v54, v52, v53")
        A("ds_write_b32 v15, v54 offset:%d" % (128 * i))
    A("s_waitcnt lgkmcnt(0)")
    A("s_barrier")
    A("v_lshrrev_b32 v16, 2, v3")
    A("v_lshl_add_u32 v16, v4, 3, v16")
    A("v_lshlrev_b32 v16, 7, v16")
    A("v_and_b32 v17, 3, v3")
    A("v_lshl_add_u32 v16, v17, 3, v16")
    A("s_lshl_b32 s22, s21, 5")
    A("v_add_u32 v16, s22, v16")
    A("v_add_u32 v17, %d, v16" % L_WU)
    A("v_and_b32 v18, 7, v3")
    A("v_mul_u32_u24 v18, %d, v18" % XSTR)
    A("v_lshl_add_u32 v18, v4, 4, v18")
    A("v_add_u32 v18, %d, v18" % L_X)
    for i in range(8):
        A("v_mov_b32 %s, 0" % v(20 + i))
    A("v_add_u32 v60, 36864, v16")
    A("v_add_u32 v61, 36864, v17")
    for kk in range(18):
        r = 32 + 12 * (kk % 2)
        bg, bu, ko = ("v16", "v17", kk) if kk < 9 else ("v60", "v61", kk - 9)
        A("ds_read_b128 %s, v18 offset:%d" % (v(r, 4), 64 * kk))
        A("ds_read_b64_tr_b16 %s, %s offset:%d" % (v(r + 4, 2), bg, 4096 * ko))
        A("ds_read_b64_tr_b16 %s, %s offset:%d" % (v(r + 6, 2), bg, 4096 * ko + 512))
        A("ds_read_b64_tr_b16 %s, %s offset:%d" % (v(r + 8, 2), bu, 4096 * ko))
        A("ds_read_b64_tr_b16 %s, %s offset:%d" % (v(r + 10, 2), bu, 4096 * ko + 512))
        A("s_waitcnt lgkmcnt(0)")
        A("v_mfma_f32_16x16x32_bf16 v[20:23], %s, %s, v[20:23]" % (v(r + 4, 4), v(r, 4)))
        A("v_mfma_f32_16x16x32_bf16 v[24:27], %s, %s, v[24:27]" % (v(r + 8, 4), v(r, 4)))
    A.nop(10)
    round_pair(A, 20, 21, 28, 19); round_pair(A, 22, 23, 28, 19)
    round_pair(A, 24, 25, 28, 19); round_pair(A, 26, 27, 28, 19)
    for i in range(4):
        A("v_mul_f32 %s, 0xbfb8aa3b, %s" % (v(28 + i), v(20 + i)))
    for i in range(4):
        A("v_exp_f32 %s, %s" % (v(28 + i), v(28 + i)))
    A.nop(1)
    for i in range(4):
        A("v_add_f32 %s, 1.0, %s" % (v(28 + i), v(28 + i)))
    for i in range(4):
        A("v_rcp_f32 %s, %s" % (v(28 + i), v(28 + i)))
    A.nop(1)
    for i in range(4):
        A("v_mul_f32 %s, %s, %s" % (v(20 + i), v(20 + i), v(28 + i)))
    round_pair(A, 20, 21, 28, 19); round_pair(A, 22, 23, 28, 19)
    for i in range(4):
        A("v_mul_f32 %s, %s, %s" % (v(20 + i), v(20 + i), v(24 + i)))
    A("v_cvt_pk_bf16_f32 v28, v20, v21")
    A("v_cvt_pk_bf16_f32 v29, v22, v23")
    A("v_mul_u32_u24 v30, %d, v3" % HSTR)
    A("v_lshl_add_u32 v30, v4, 3, v30")
    A("s_lshl_b32 s22, s21, 5")
    A("v_add_u32 v30, s22, v30")
    A("v_add_u32 v30, %d, v30" % L_HS)
    A("v_cmp_gt_u32 vcc, 8, v3")
    A("s_and_saveexec_b64 s[22:23], vcc")
    A("ds_write_b64 v30, v[28:29]")
    A("s_mov_b64 exec, s[22:23]")
    A("s_waitcnt lgkmcnt(0)")
    A("s_barrier")
    A("v_add_u32 v9, 36864, v8")
    for i in range(18):
        if i < 9:
            A("ds_write_b128 v8, %s offset:%d" % (v(WD + 4 * i, 4), 4096 * i))
        else:
            A("ds_write_b128 v9, %s offset:%d" % (v(WD + 4 * i, 4), 4096 * (i - 9)))
    A("s_waitcnt lgkmcnt(0)")
    A("s_barrier")
    A("v_lshrrev_b32 v16, 2, v3")
    A("v_lshl_add_u32 v16, v4, 3, v16")
    A("v_mul_u32_u24 v16, 1152, v16")
    A("v_and_b32 v17, 3, v3")
    A("v_lshl_add_u32 v16, v17, 3, v16")
    A("s_mul_i32 s22, s21, 288")
    A("v_add_u32 v16, s22, v16")
    A("v_add_u32 v17, %d, v16" % (32 * 1152))
    A("v_and_b32 v18, 7, v3")
    A("v_mul_u32_u24 v18, %d, v18" % HSTR)
    A("v_lshl_add_u32 v18, v4, 4, v18")
    A("v_add_u32 v18, %d, v18" % L_HS)
    A("ds_read_b128 v[32:35], v18")
    A("ds_read_b128 v[36:39], v18 offset:64")
    A("v_mul_u32_u24 v19, 2304, v3")
    A("v_lshl_add_u32 v19, v4, 4, v19")
    A("s_mul_i32 s22, s20, 18432")
    A("s_mul_i32 s23, s21, 576")
    A("s_add_u32 s22, s22, s23")
    A("s_add_u32 s22, s22, %d" % WS_PART)
    A("v_cmp_gt_u32 vcc, 8, v3")
    A("s_mov_b64 s[24:25], vcc")
    for dt in range(9):
        r = 40 + 8 * (dt % 2)
        ac = 20 + 4 * (dt % 2)
        A("ds_read_b64_tr_b16 %s, v16 offset:%d" % (v(r, 2), 32 * dt))
        A("ds_read_b64_tr_b16 %s, v16 offset:%d" % (v(r + 2, 2), 32 * dt + 4 * 1152))
        A("ds_read_b64_tr_b16 %s, v17 offset:%d" % (v(r + 4, 2), 32 * dt))
        A("ds_read_b64_tr_b16 %s, v17 offset:%d" % (v(r + 6, 2), 32 * dt + 4 * 1152))
        A("s_waitcnt lgkmcnt(0)")
        A("v_mfma_f32_16x16x32_bf16 %s, %s, v[32:35], 0" % (v(ac, 4), v(r, 4)))
        A("v_mfma_f32_16x16x32_bf16 %s, %s, v[36:39], %s" % (v(ac, 4), v(r + 4, 4), v(ac, 4)))
        A.nop(10)
        A("s_mov_b64 exec, s[24:25]")
        A("buffer_store_dwordx4 %s, v19, s[36:39], s22 offen offset:%d" % (v(ac, 4), 64 * dt))
        A("s_mov_b64 exec, -1")
    A("s_endpgm")

def gen_k2(A, name="k2_kernel"):
    kernel_header(A, name)
    Ldone = A.newlabel("k2done")
    Lmoe = A.newlabel("k2moe")
    A("s_cmp_ge_u32 s2, %d" % (NCONV + NMOE))
    A("s_cbranch_scc1 %s" % Ldone)
    A("s_load_dwordx4 s[4:7], s[0:1], %d" % KA_SSMK)
    A("s_load_dwordx2 s[8:9], s[0:1], %d" % KA_WS)
    A("s_load_dwordx2 s[10:11], s[0:1], %d" % KA_Q)
    A("s_load_dwordx4 s[12:15], s[0:1], %d" % KA_WG)
    A("s_load_dwordx2 s[16:17], s[0:1], %d" % KA_WD)
    A("s_cmp_ge_u32 s2, %d" % NCONV)
    A("s_cbranch_scc1 %s" % Lmoe)
    gen_conv(A)
    A.label(Lmoe)
    gen_moe(A)
    A.label(Ldone)
    A("s_endpgm")
    return kernel_desc(name, 512, 96, 256)
```

```python
from common import *

NPART = 72

def gen_k3(A, name="k3_kernel"):
    kernel_header(A, name)
    Ldone = A.newlabel("k3done")
    A("s_cmp_ge_u32 s2, 288")
    A("s_cbranch_scc1 %s" % Ldone)
    A("s_load_dwordx2 s[4:5], s[0:1], %d" % KA_Q)
    A("s_load_dwordx2 s[6:7], s[0:1], %d" % KA_OUT)
    A("s_load_dwordx2 s[8:9], s[0:1], %d" % KA_WS)
    A("s_mul_i32 s42, s2, 7282")
    A("s_lshr_b32 s42, s42, 16")
    A("s_mul_i32 s41, s42, 9")
    A("s_sub_u32 s41, s2, s41")
    A("s_mov_b32 s40, 0xffff0000")
    A("s_movk_i32 s44, 4608")
    A("v_and_b32 v2, 31, v0")
    A("v_lshrrev_b32 v8, 5, v0")
    A("s_lshl_b32 s45, s42, 6")
    A("v_lshl_add_u32 v9, v8, 3, s45")
    A("s_movk_i32 s46, 1152")
    A("v_mul_lo_u32 v4, v9, s46")
    A("s_lshl_b32 s47, s41, 7")
    A("v_lshl_add_u32 v4, v2, 2, v4")
    A("v_add_u32 v4, s47, v4")
    A("s_lshl_b32 s47, s41, 6")
    A("v_lshl_add_u32 v5, v2, 1, s47")
    A("v_lshlrev_b32 v5, 12, v5")
    A("v_lshl_add_u32 v5, v9, 1, v5")
    A("v_add_u32 v5, %d, v5" % WS_YT)
    A("v_lshlrev_b32 v6, 3, v9")
    A("s_movk_i32 s48, 4096")
    A("s_waitcnt lgkmcnt(0)")
    A("s_load_dwordx8 s[60:67], s[8:9], %d" % WS_SEL)
    srd(A, 16, 4, S * ROWB)
    srd(A, 20, 6, S * ROWB)
    srd(A, 36, 8, WS_SIZE)
    A("buffer_load_dwordx4 v[12:15], v5, s[36:39], 0 offen")
    A("buffer_load_dwordx4 v[16:19], v5, s[36:39], s48 offen")
    for i in range(8):
        so = "0" if i < 4 else "s44"
        A("buffer_load_dword %s, v4, s[16:19], %s offen offset:%d" % (v(20 + i), so, 1152 * (i % 4)))
    for i in range(4):
        A("buffer_load_dwordx4 %s, v6, s[36:39], 0 offen offset:%d" % (v(28 + 4 * i, 4), WS_STATS + 16 * i))
    A("s_waitcnt lgkmcnt(0)")
    A("s_mov_b32 s50, 0")
    for j in range(8):
        A("s_and_b32 s51, %s, 0xffff" % s(60 + j))
        A("s_sub_u32 s51, 2047, s51")
        A("s_lshr_b32 s51, s51, 6")
        A("s_cmp_eq_u32 s51, s42")
        A("s_cselect_b32 s51, 1, 0")
        A("s_or_b32 s50, s50, s51")
    Lfast = A.newlabel("fast")
    A("s_cmp_eq_u32 s50, 0")
    A("s_cbranch_scc1 %s" % Lfast)
    A("v_mov_b32 v50, 0"); A("v_mov_b32 v51, 0"); A("v_mov_b32 v52, 0"); A("v_mov_b32 v53, 0")
    A("v_lshlrev_b32 v54, 4, v0")
    for i in range(4):
        A("ds_write_b128 v54, v[50:53] offset:%d" % (4096 * i))
    A("v_and_b32 v55, 63, v0")
    A("v_lshrrev_b32 v56, 6, v0")
    A("v_mul_u32_u24 v57, 18432, v56")
    A("v_lshl_add_u32 v57, v55, 2, v57")
    A("s_lshl_b32 s47, s41, 8")
    A("s_add_u32 s47, s47, %d" % WS_PART)
    A("v_add_u32 v57, s47, v57")
    A("v_lshlrev_b32 v58, 2, v0")
    A("s_waitcnt lgkmcnt(0)")
    A("s_barrier")
    for j in range(8):
        Lskip = A.newlabel("skip")
        A("s_and_b32 s51, %s, 0xffff" % s(60 + j))
        A("s_sub_u32 s51, 2047, s51")
        A("s_lshr_b32 s52, s51, 6")
        A("s_cmp_lg_u32 s52, s42")
        A("s_cbranch_scc1 %s" % Lskip)
        A("s_movk_i32 s53, %d" % (2304 * j))
        for i in range(NPART // 4):
            A("buffer_load_dword %s, v57, s[36:39], s53 offen" % v(64 + i))
            A("s_add_u32 s53, s53, %d" % (4 * 18432))
        A("s_waitcnt vmcnt(0)")
        for i in range(1, NPART // 4):
            A("v_add_f32 v64, v64, %s" % v(64 + i))
        A("ds_write_b32 v58, v64 offset:16384")
        A("s_waitcnt lgkmcnt(0)")
        A("s_barrier")
        A("v_lshlrev_b32 v59, 2, v55")
        A("ds_read_b32 v64, v59 offset:16384")
        A("ds_read_b32 v65, v59 offset:%d" % (16384 + 256))
        A("ds_read_b32 v66, v59 offset:%d" % (16384 + 512))
        A("ds_read_b32 v67, v59 offset:%d" % (16384 + 768))
        A("s_lshr_b32 s53, %s, 16" % s(60 + j))
        A("s_and_b32 s54, s53, 0x8000")
        A("s_cmp_lg_u32 s54, 0")
        A("s_mov_b32 s55, 0xffff")
        A("s_cselect_b32 s54, 0x8000, s55")
        A("s_xor_b32 s53, s53, s54")
        A("s_lshl_b32 s53, s53, 16")
        A("v_mov_b32 v68, s53")
        A("v_mul_f32 v68, 0xbfb8aa3b, v68")
        A("v_exp_f32 v68, v68")
        A.nop(1)
        A("v_add_f32 v68, 1.0, v68")
        A("v_rcp_f32 v68, v68")
        A.nop(1)
        A("v_cvt_pk_bf16_f32 v68, v68, v68")
        A("v_lshlrev_b32 v68, 16, v68")
        A("s_waitcnt lgkmcnt(0)")
        A("v_add_f32 v64, v64, v65")
        A("v_add_f32 v66, v66, v67")
        A("v_add_f32 v64, v64, v66")
        A("v_cvt_pk_bf16_f32 v64, v64, v64")
        A("v_lshlrev_b32 v64, 16, v64")
        A("v_mul_f32 v64, v64, v68")
        A("v_cvt_pk_bf16_f32 v64, v64, v64")
        A("v_lshlrev_b32 v64, 16, v64")
        A("s_and_b32 s53, s51, 63")
        A("s_lshl_b32 s53, s53, 8")
        A("v_add_u32 v60, s53, v59")
        A("ds_write_b32 v60, v64")
        A("s_waitcnt lgkmcnt(0)")
        A("s_barrier")
        A.label(Lskip)
    A("v_lshlrev_b32 v61, 11, v8")
    A("v_lshl_add_u32 v61, v2, 3, v61")
    for i in range(8):
        A("ds_read_b64 %s, v61 offset:%d" % (v(64 + 2 * i, 2), 256 * i))
    A("s_waitcnt lgkmcnt(0)")
    Lmain = A.newlabel("main")
    A("s_branch %s" % Lmain)
    A.label(Lfast)
    for i in range(16):
        A("v_mov_b32 %s, 0" % v(64 + i))
    A.label(Lmain)
    A("s_waitcnt vmcnt(0)")
    for i in range(8):
        st = 28 + 2 * i
        A("v_lshlrev_b32 v44, 16, %s" % v(st))
        A("v_sub_f32 v44, 0, v44"); A("v_mov_b32 v45, v44")
        A("v_and_b32 v46, s40, %s" % v(st))
        A("v_sub_f32 v46, 0, v46"); A("v_mov_b32 v47, v46")
        A("v_mov_b32 v48, %s" % v(st + 1)); A("v_mov_b32 v49, %s" % v(st + 1))
        unpack_pair(A, 80, 81, 20 + i, 40)
        A("v_pk_add_f32 v[82:83], v[80:81], v[44:45]")
        round_pair(A, 82, 83, 90, 40)
        A("v_pk_mul_f32 v[84:85], v[82:83], v[48:49]")
        A("v_pk_fma_f32 v[82:83], v[84:85], v[46:47], v[82:83]")
        A("v_pk_fma_f32 v[84:85], v[82:83], v[48:49], v[84:85]")
        round_pair(A, 84, 85, 90, 40)
        y0, y1 = 12 + i // 2, 16 + i // 2
        if i % 2 == 0:
            A("v_lshlrev_b32 v86, 16, %s" % v(y0)); A("v_lshlrev_b32 v87, 16, %s" % v(y1))
        else:
            A("v_and_b32 v86, s40, %s" % v(y0)); A("v_and_b32 v87, s40, %s" % v(y1))
        A("v_pk_mul_f32 v[86:87], v[84:85], v[86:87]")
        round_pair(A, 86, 87, 90, 40)
        A("v_pk_add_f32 v[86:87], v[80:81], v[86:87]")
        round_pair(A, 86, 87, 90, 40)
        A("v_pk_add_f32 v[84:85], v[84:85], %s" % v(64 + 2 * i, 2))
        round_pair(A, 84, 85, 90, 40)
        A("v_pk_add_f32 v[86:87], v[86:87], v[84:85]")
        A("v_cvt_pk_bf16_f32 %s, v86, v87" % v(92 + i))
        so = "0" if i < 4 else "s44"
        A("buffer_store_dword %s, v4, s[20:23], %s offen offset:%d" % (v(92 + i), so, 1152 * (i % 4)))
    A.label(Ldone)
    A("s_endpgm")
    return kernel_desc(name, 128, 80, 128)
```

```python
from common import *
import k1, k2, k3
A = Asm()
hdr = open("cdna_kernels/%s.s.ref" % NAME).read().split("\n")
out = []
for l in hdr:
    if l.startswith("; @launch"):
        break
    out.append(l)
out = [l for l in out if "Override launch" not in l and "grid=ceil" not in l]
out.append("; @launch kernel=k1_kernel grid=(288,1,1) block=(256,1,1) lds=0")
out.append("; @launch kernel=k2_kernel grid=(216,1,1) block=(256,1,1) lds=%d" % k2.K2_LDS)
out.append("; @launch kernel=k3_kernel grid=(288,1,1) block=(256,1,1) lds=17408")
out.append('.amdgcn_target "amdgcn-amd-amdhsa--gfx950"')
out.append(".text")
d1 = k1.gen_k1(A)
d2 = k2.gen_k2(A)
d3 = k3.gen_k3(A)
txt = "\n".join(out) + "\n" + A.text() + '.section .rodata,"a"\n' + d1 + d2 + d3
import sys
open(sys.argv[1] if len(sys.argv) > 1 else "v1.s", "w").write(txt)
```

```python
import re
NAME = "parallel_sum__ssm_conv_h3__moe_arch_mod__prompt"
S, D, F, C = 2048, 576, 4608, 8
ROWB = 1152
KA_Q, KA_K, KA_V, KA_SHK, KA_SSMK, KA_SSMD, KA_BX, KA_WR, KA_WG, KA_WU, KA_WD, KA_OUT, KA_DBG, KA_WS = [8*i for i in range(14)]

class Asm:
    def __init__(self):
        self.lines = []
        self.uid = 0
    def __call__(self, s):
        for l in s.strip("\n").split("\n"):
            l = l.strip()
            l = l.replace(" lds nt", " nt lds")
            mk = re.match(r"s_movk_i32 (\S+), (\d+)$", l)
            if mk and int(mk.group(2)) >= 32768:
                l = "s_mov_b32 %s %s" % (mk.group(1) + ",", mk.group(2))
            m = re.search(r"offset:(\d+)", l)
            if m:
                n = int(m.group(1))
                if l.startswith("buffer_") or l.startswith("global_"):
                    assert n < 4096, l
                elif l.startswith("ds_"):
                    assert n < 65536, l
            self.lines.append("  " + l)
    def label(self, name):
        self.lines.append(name + ":")
    def raw(self, s):
        self.lines.append(s)
    def newlabel(self, base):
        self.uid += 1
        return "L_%s_%d" % (base, self.uid)
    def nop(self, n):
        while n > 0:
            k = min(n, 16)
            self("s_nop %d" % (k - 1))
            n -= k
    def text(self):
        return "\n".join(self.lines) + "\n"

def v(i, n=1):
    return "v%d" % i if n == 1 else "v[%d:%d]" % (i, i + n - 1)
def a(i, n=1):
    return "a%d" % i if n == 1 else "a[%d:%d]" % (i, i + n - 1)
def s(i, n=1):
    return "s%d" % i if n == 1 else "s[%d:%d]" % (i, i + n - 1)

def srd(A, dst, base, nbytes):
    A("s_mov_b32 %s, %s" % (s(dst), s(base)))
    A("s_and_b32 %s, %s, 0xffff" % (s(dst + 1), s(base + 1)))
    A("s_mov_b32 %s, 0x%x" % (s(dst + 2), nbytes))
    A("s_mov_b32 %s, 0x00020000" % s(dst + 3))

def kernel_header(A, name):
    A.raw(".globl %s" % name)
    A.raw(".p2align 8")
    A.raw(".type %s,@function" % name)
    A.label(name)

def kernel_desc(name, vgpr, sgpr, accum, extra=""):
    return """.p2align 6
.amdhsa_kernel %s
  .amdhsa_next_free_vgpr %d
  .amdhsa_next_free_sgpr %d
  .amdhsa_accum_offset %d
  .amdhsa_group_segment_fixed_size 0
  .amdhsa_kernarg_size 112
  .amdhsa_user_sgpr_count 2
  .amdhsa_user_sgpr_kernarg_segment_ptr 1
  .amdhsa_system_sgpr_workgroup_id_x 1
  .amdhsa_float_denorm_mode_32 3
%s.end_amdhsa_kernel
""" % (name, vgpr, sgpr, accum, extra)

def unpack_pair(A, dlo, dhi, src, smask):
    A("v_lshlrev_b32 %s, 16, %s" % (v(dlo), v(src)))
    A("v_and_b32 %s, %s, %s" % (v(dhi), s(smask), v(src)))

def round_pair(A, lo, hi, tmp, smask):
    A("v_cvt_pk_bf16_f32 %s, %s, %s" % (v(tmp), v(lo), v(hi)))
    unpack_pair(A, lo, hi, tmp, smask)

def allreduce16_add(A, x, tmp=None):
    for ctl in ("quad_perm:[1,0,3,2]", "quad_perm:[2,3,0,1]", "row_half_mirror", "row_mirror"):
        A.nop(2)
        A("v_add_f32_dpp %s, %s, %s %s row_mask:0xf bank_mask:0xf" % (v(x), v(x), v(x), ctl))

def allreduce32_add(A, x, tmp):
    allreduce16_add(A, x)
    A("v_mov_b32 %s, %s" % (v(tmp), v(x)))
    A.nop(2)
    A("v_permlane16_swap_b32 %s, %s" % (v(x), v(tmp)))
    A.nop(2)
    A("v_add_f32 %s, %s, %s" % (v(x), v(x), v(tmp)))

WS_STATS = 0x0000
WS_RKEY = 0x10000
WS_SEL = 0x12000
UR_STRIDE = 4224
WS_UR = 0x20000
WS_YT = WS_UR + 576 * UR_STRIDE
WS_YT = (WS_YT + 4095) // 4096 * 4096
WS_PART = WS_YT + 576 * 4096
WS_END = WS_PART + 288 * 8 * 576 * 4
WS_SIZE = 268435456

WS_TS = 0x8000000
STAMPS = False
def stamp(A, n, srd_ws, slot_sgpr, vt=250, st=90):
    if not globals()['STAMPS']:
        return
    A("s_memrealtime s[%d:%d]" % (st, st + 1))
    A("s_lshl_b32 %s, %s, 6" % (s(st + 2), s(slot_sgpr)))
    A("s_add_u32 %s, %s, 0x%x" % (s(st + 2), s(st + 2), WS_TS + 4 * n))
    A("s_waitcnt lgkmcnt(0)")
    A("v_mov_b32 %s, %s" % (v(vt), s(st)))
    A("v_mov_b32 %s, 0" % v(vt + 1))
    A("s_mov_b64 %s, exec" % s(st + 4, 2))
    A("s_mov_b64 exec, 1")
    A("buffer_store_dword %s, %s, %s, %s offen" % (v(vt), v(vt + 1), s(srd_ws, 4), s(st + 2)))
    A("s_mov_b64 exec, %s" % s(st + 4, 2))


def interleave(A, streams):
    n = max(len(x) for x in streams)
    for i in range(n):
        for x in streams:
            if i < len(x):
                A(x[i])

def norm_ops(x, xn, tm, src, st, smask=40):
    P = Asm()
    unpack_pair(P, x, x + 1, src, smask)
    P("v_pk_add_f32 %s, %s, %s" % (v(tm, 2), v(x, 2), v(st, 2)))
    round_pair(P, tm, tm + 1, tm + 2, smask)
    P("v_pk_mul_f32 %s, %s, %s" % (v(xn, 2), v(tm, 2), v(st + 2, 2)))
    P("v_pk_fma_f32 %s, %s, %s, %s" % (v(tm, 2), v(xn, 2), v(st + 4, 2), v(tm, 2)))
    P("v_pk_fma_f32 %s, %s, %s, %s" % (v(xn, 2), v(tm, 2), v(st + 2, 2), v(xn, 2)))
    return [l.strip() for l in P.lines]
```

```python
from common import *
import common

CS = 4160
CH_LDS = 37952
H_OFF = 33296
YBUF = 4 * CH_LDS
SIDE = YBUF + 4096
RED = SIDE + 256
CONV_LDS_END = RED + 512
WS_EPOCH = 0x13000
WS_SELG = 0x13100
WS_PARTG = WS_PART

POLL_MAX = 200000

def conv_schedule():
    hi_steps = []
    for q in range(33):
        tmin = (q + 24 + 7) // 8
        hi_steps.append((q, [(t, 56 - (8 * t - q)) for t in range(tmin, 8)]))
    lo_frags = sorted(range(-8, 24), key=lambda w: ((8 * (-(-w // 8)) - w) if w >= 0 else (-w if w > -8 else 8), w))
    def first_use(w):
        q = 0
        while (w + q) % 8 != 0 or (w + q) < 0:
            q += 1
        return q
    lo_frags = sorted(range(-8, 24), key=lambda w: (first_use(w), w))
    lo_slot = {w: i for i, w in enumerate(lo_frags)}
    lo_steps = []
    for q in range(65):
        ts = [t for t in range(8) if -8 <= 8 * t - q <= 23]
        lo_steps.append((q, [(t, lo_slot[8 * t - q]) for t in ts]))
    return hi_steps, lo_frags, lo_slot, lo_steps

def gen_conv2(A, fused=False):
    srd(A, 16, 10, S * ROWB)
    srd(A, 20, 12, S * ROWB)
    srd(A, 32, 4, D * S * 2)
    srd(A, 36, 8, WS_SIZE)
    A("s_mov_b32 s40, 0xffff0000")
    A("s_and_b32 s43, s42, 3")
    A("s_lshl_b32 s44, s41, 2")
    A("s_add_u32 s44, s44, s43")
    A("s_mul_i32 s45, s43, %d" % CH_LDS)
    A("s_lshl_b32 s70, s2, 3")
    A("s_add_u32 s70, s70, s42")
    stamp(A, 0, 36, 70)
    A("v_and_b32 v1, 63, v0")
    A("v_and_b32 v2, 15, v0")
    A("v_bfe_u32 v3, v0, 4, 2")
    A("s_lshr_b32 s47, s42, 2")
    A("s_mul_i32 s48, s44, %d" % UR_STRIDE)
    A("s_add_u32 s48, s48, %d" % WS_UR)
    A("s_lshl_b32 s49, s47, 11")
    A("s_add_u32 s48, s48, s49")
    A("v_lshlrev_b32 v4, 4, v1")
    A("buffer_load_dwordx4 v[8:11], v4, s[36:39], s48 offen")
    A("buffer_load_dwordx4 v[12:15], v4, s[36:39], s48 offen offset:16")
    A("buffer_load_dwordx4 v[16:19], v4, s[36:39], s48 offen offset:1024")
    A("buffer_load_dwordx4 v[20:23], v4, s[36:39], s48 offen offset:1040")
    A("s_mul_i32 s50, s44, %d" % UR_STRIDE)
    A("s_add_u32 s50, s50, %d" % (WS_UR + 4096))
    A("buffer_load_dwordx4 v[24:27], v4, s[36:39], s50 offen")
    A("buffer_load_dwordx4 v[28:31], v4, s[36:39], s50 offen offset:16")
    Lm_pre = A.newlabel("mpre"); Lpre_done = A.newlabel("predone")
    A("v_and_b32 v5, 255, v0")
    A("s_movk_i32 s51, 1152")
    A("v_mul_lo_u32 v6, v5, s51")
    A("s_lshl_b32 s51, s41, 3")
    A("v_add_u32 v6, s51, v6")
    A("v_lshlrev_b32 v7, 3, v5")
    A("s_cmp_lt_u32 s42, 4")
    A("s_cbranch_scc1 %s" % Lm_pre)
    A("s_mov_b32 s51, 0")
    for t in range(8):
        A("buffer_load_dwordx2 %s, v6, s[16:19], s51 offen" % v(120 + 2 * t, 2))
        A("s_add_u32 s51, s51, %d" % (256 * 1152))
    for t in range(8):
        if t < 2:
            A("buffer_load_dwordx2 %s, v7, s[36:39], 0 offen offset:%d" % (v(136 + 2 * t, 2), WS_STATS + 2048 * t))
        else:
            A("s_movk_i32 s51, %d" % (WS_STATS + 2048 * t))
            A("buffer_load_dwordx2 %s, v7, s[36:39], s51 offen" % v(136 + 2 * t, 2))
    A("s_waitcnt vmcnt(16)")
    A("s_branch %s" % Lpre_done)
    A.label(Lm_pre)
    A("s_lshl_b32 s51, s44, 1")
    A("s_and_b32 s52, s51, 0xfffffffc")
    A("s_add_u32 s54, s6, s52")
    A("s_addc_u32 s55, s7, 0")
    A("s_load_dword s53, s[54:55], 0")
    A("s_add_u32 s56, s45, %d" % (H_OFF + 512))
    A("s_lshl_b32 s57, s44, 12")
    A("s_mov_b32 m0, s56")
    A.nop(1)
    for i in range(4):
        A("buffer_load_dwordx4 v4, s[32:35], s57 offen offset:%d lds" % (1024 * i))
    A("s_add_u32 s56, s56, 4096")
    A("s_add_u32 s57, s57, 4096")
    A("s_mov_b32 m0, s56")
    A("s_mov_b64 exec, 0x3")
    A("buffer_load_dwordx4 v4, s[32:35], s57 offen lds")
    A("s_mov_b32 exec_lo, -1")
    A("s_mov_b32 exec_hi, 0")
    A("v_mov_b32 v32, 0"); A("v_mov_b32 v33, 0"); A("v_mov_b32 v34, 0"); A("v_mov_b32 v35, 0")
    A("v_add_u32 v36, s45, v4")
    A("ds_write_b128 v36, v[32:35] offset:%d" % H_OFF)
    A("s_mov_b64 exec, -1")
    A("s_waitcnt vmcnt(5)")
    A.label(Lpre_done)
    stamp(A, 1, 36, 70)
    A("v_add_u32 v52, s45, v4")
    A("s_lshl_b32 s49, s47, 11")
    A("v_add_u32 v52, s49, v52")
    def build(W, addr, off):
        for k in range(7):
            A("v_alignbit_b32 %s, %s, %s, 16" % (v(32 + k), v(W + k + 1), v(W + k)))
        for k in range(3):
            A("v_pk_mov_b32 %s, %s, %s op_sel:[1,0]" % (v(40 + 2 * k, 2), v(W + 2 * k, 2), v(W + 2 * k + 2, 2)))
        for k in range(3):
            A("v_pk_mov_b32 %s, %s, %s op_sel:[1,0]" % (v(46 + 2 * k, 2), v(32 + 2 * k, 2), v(32 + 2 * k + 2, 2)))
        srcs = {0: W, 1: 32, 2: 40, 3: 46, 4: W + 2, 5: 34, 6: 42, 7: 48}
        for c in (0, 4, 1, 5, 2, 6, 3, 7):
            A("ds_write_b128 %s, %s offset:%d" % (addr, v(srcs[c], 4), c * CS + off))
    build(8, "v52", 0)
    A.nop(2)
    build(16, "v52", 1024)
    Lnt = A.newlabel("notail")
    A("s_cmp_eq_u32 s47, 0")
    A("s_cbranch_scc1 %s" % Lnt)
    A("v_add_u32 v53, s45, v4")
    A("v_add_u32 v53, 4096, v53")
    A.nop(2)
    A("s_mov_b64 exec, 0x1f")
    build(24, "v53", 0)
    A("s_mov_b64 exec, -1")
    A.label(Lnt)
    A("s_waitcnt vmcnt(0) lgkmcnt(0)") if False else None
    Lh = A.newlabel("hwave")
    A("s_cmp_ge_u32 s42, 4")
    A("s_cbranch_scc1 %s" % Lh)
    A("s_waitcnt vmcnt(0) lgkmcnt(0)")
    A("s_barrier")
    stamp(A, 2, 36, 70)
    A("v_lshlrev_b32 v5, 5, v2")
    A("v_lshl_add_u32 v5, v3, 4, v5")
    A("v_add_u32 v5, s45, v5")
    A("v_add_u32 v5, %d, v5" % H_OFF)
    A("v_and_b32 v4, 7, v2")
    A("v_sub_u32 v4, 7, v4")
    A("v_mul_u32_u24 v4, %d, v4" % CS)
    A("v_lshrrev_b32 v6, 3, v2")
    A("v_sub_u32 v6, v3, v6")
    A("v_lshlrev_b32 v6, 4, v6")
    A("v_add_u32 v4, v4, v6")
    A("v_add_u32 v4, 16, v4")
    A("v_add_u32 v4, s45, v4")
    A("v_lshlrev_b32 v6, 5, v2")
    A("v_lshl_add_u32 v6, v3, 3, v6")
    A("v_sub_u32 v7, %d, v6" % (4120 - 3584))
    A("v_add_u32 v7, s45, v7")
    A("s_lshl_b32 s49, s43, 9")
    A("v_add_u32 v6, s49, v6")
    A("v_add_u32 v6, %d, v6" % YBUF)
    RING, NR, ACC, BS = 56, 8, 88, 120
    hi_steps, lo_frags, lo_slot, lo_steps = conv_schedule()
    def bslot(sl):
        return v(BS + 4 * sl, 4)
    order = []
    seen = set()
    for q, lst in hi_steps:
        for t, sl in lst:
            if sl not in seen:
                seen.add(sl); order.append(sl)
    aseq = [q for q in range(33)] + [q for q in range(65)]
    def aread(n):
        q = aseq[n]
        A("ds_read_b128 %s, v4 offset:%d" % (v(RING + 4 * (n % NR), 4), 64 * (64 - q)))
    issued = []
    def issue(tag, txt):
        A(txt); issued.append(tag)
    def wait_for(tags):
        idx = max(len(issued) - 1 - issued[::-1].index(t) for t in tags)
        n = len(issued) - 1 - idx
        A("s_waitcnt lgkmcnt(%d)" % min(n, 15))
    def done_before(tag):
        return tag in issued
    for i in range(32):
        A("v_mov_b32 %s, 0" % v(ACC + i))
    issue(("A", 0), "ds_read_b128 %s, v4 offset:%d" % (v(RING, 4), 64 * 64))
    for sl in order[:5]:
        w = 56 - sl
        issue(("B", sl), "ds_read_b128 %s, v5 offset:%d" % (bslot(sl), 64 * (w + 8)))
    nextA = 1
    nextB = 5
    while nextA < NR:
        q = aseq[nextA]
        issue(("A", nextA), "ds_read_b128 %s, v4 offset:%d" % (v(RING + 4 * (nextA % NR), 4), 64 * (64 - q)))
        nextA += 1
        for _ in range(4):
            if nextB < len(order):
                sl = order[nextB]; w = 56 - sl
                issue(("B", sl), "ds_read_b128 %s, v5 offset:%d" % (bslot(sl), 64 * (w + 8)))
                nextB += 1
    while nextB < len(order):
        sl = order[nextB]; w = 56 - sl
        issue(("B", sl), "ds_read_b128 %s, v5 offset:%d" % (bslot(sl), 64 * (w + 8)))
        nextB += 1
    A("s_and_b32 s52, s51, 2")
    A("s_lshl_b32 s52, s52, 3")
    A("s_lshr_b32 s53, s53, s52")
    A("s_lshl_b32 s53, s53, 16")
    n = 0
    waited = set()
    for q, lst in hi_steps:
        need = [("A", n)] + [("B", sl) for _, sl in lst]
        wait_for(need)
        for t, sl in lst:
            A("v_mfma_f32_16x16x32_bf16 %s, %s, %s, %s" % (v(ACC + 4 * t, 4), v(RING + 4 * (n % NR), 4), bslot(sl), v(ACC + 4 * t, 4)))
        if nextA < len(aseq):
            qq = aseq[nextA]
            issue(("A", nextA), "ds_read_b128 %s, v4 offset:%d" % (v(RING + 4 * (nextA % NR), 4), 64 * (64 - qq)))
            nextA += 1
        if q < 32:
            w = lo_frags[q]
            issue(("L", q), "ds_read_b128 %s, v5 offset:%d" % (bslot(q), 64 * (w + 8)))
        n += 1
    stamp(A, 3, 36, 70)
    pend = None
    def tile_epilogue(t):
        u0 = 32 + 2 * (t % 2)
        ac = ACC + 4 * t
        wait_for([("U", t)])
        A("v_and_b32 v8, s40, %s" % v(u0 + 1))
        A("v_lshlrev_b32 v9, 16, %s" % v(u0 + 1))
        A("v_and_b32 v10, s40, %s" % v(u0))
        A("v_lshlrev_b32 v11, 16, %s" % v(u0))
        for i in range(4):
            A("v_mul_f32 %s, s53, %s" % (v(8 + i), v(8 + i)))
        round_pair(A, 8, 9, 12, 40)
        round_pair(A, 10, 11, 12, 40)
        round_pair(A, ac, ac + 1, 12, 40)
        round_pair(A, ac + 2, ac + 3, 12, 40)
        A("v_pk_add_f32 v[8:9], v[8:9], %s" % v(ac, 2))
        A("v_pk_add_f32 v[10:11], v[10:11], %s" % v(ac + 2, 2))
        A("v_cvt_pk_bf16_f32 v14, v8, v9")
        A("v_cvt_pk_bf16_f32 v15, v10, v11")
        issue(("Y", t), "ds_write_b64 v6, v[14:15] offset:%d" % (2048 * (t % 2)))
        wait_for([("Y", t)])
        A("s_barrier")
    for q, lst in lo_steps:
        need = [("A", n)] + [("L", sl) for _, sl in lst]
        wait_for(need)
        for t, sl in lst:
            A("v_mfma_f32_16x16x32_bf16 %s, %s, %s, %s" % (v(ACC + 4 * t, 4), v(RING + 4 * (n % NR), 4), bslot(sl), v(ACC + 4 * t, 4)))
        if nextA < len(aseq):
            qq = aseq[nextA]
            issue(("A", nextA), "ds_read_b128 %s, v4 offset:%d" % (v(RING + 4 * (nextA % NR), 4), 64 * (64 - qq)))
            nextA += 1
        n += 1
        if q % 8 == 4 and q // 8 < 8:
            t = q // 8
            issue(("U", t), "ds_read_b64 %s, v7 offset:%d" % (v(32 + 2 * (t % 2), 2), 512 * (7 - t)))
        if q >= 10 and (q - 10) % 8 == 0 and (q - 10) // 8 < 7:
            tile_epilogue((q - 10) // 8)
    A.nop(8)
    stamp(A, 4, 36, 70)
    tile_epilogue(7)
    stamp(A, 5, 36, 70)
    A("s_endpgm")
    A.label(Lh)
    A("s_waitcnt lgkmcnt(0)")
    A("s_barrier")
    stamp(A, 2, 36, 70)
    A("v_lshlrev_b32 v8, 3, v1")
    A("s_movk_i32 s51, %d" % WS_SELG)
    A("s_mov_b32 s52, 0")
    Lp = A.newlabel("selpoll"); Lpd = A.newlabel("selok")
    A("s_mov_b64 exec, 0xff")
    A.label(Lp)
    A("buffer_load_dwordx2 v[10:11], v8, s[36:39], s51 offen sc1")
    A("s_waitcnt vmcnt(0)")
    A("v_cmp_ne_u32 vcc, s46, v11")
    A("s_add_u32 s52, s52, 1")
    A("s_cmp_gt_u32 s52, %d" % POLL_MAX)
    A("s_cbranch_scc1 %s" % Lpd)
    A("s_cmp_eq_u64 vcc, 0")
    A("s_cbranch_scc1 %s" % Lpd)
    A("s_sleep 2")
    A("s_branch %s" % Lp)
    A.label(Lpd)
    A("s_mov_b64 exec, -1")
    for i in range(8):
        A("v_readlane_b32 %s, v10, %d" % (s(60 + i), i))
    A.nop(4)
    for i in range(8):
        A("s_and_b32 s51, %s, 0xffff" % s(60 + i))
        A("s_sub_u32 %s, 2047, s51" % s(72 + i))
    stamp(A, 3, 36, 70)
    A("v_lshlrev_b32 v9, 1, v5")
    A("v_add_u32 v9, %d, v9" % YBUF)
    A("v_and_b32 v10, 7, v5")
    A("v_mul_u32_u24 v10, 4608, v10")
    A("v_bfe_u32 v11, v5, 3, 1")
    A("v_lshl_add_u32 v10, v11, 4, v10")
    A("v_lshrrev_b32 v11, 4, v5")
    A("v_mul_u32_u24 v12, 36864, v11")
    A("v_add_u32 v10, v10, v12")
    A("s_lshl_b32 s51, s41, 5")
    A("s_add_u32 s51, s51, %d" % WS_PARTG)
    A("v_add_u32 v10, s51, v10")
    A("v_add_u32 v13, %d, v10" % (64 * 36864))
    A("v_cmp_gt_u32 vcc, 8, v11")
    A.nop(2)
    A("v_cndmask_b32 v13, v10, v13, vcc")
    A("s_mov_b64 s[56:57], vcc")
    XQ, ST = 120, 136
    for t in range(8):
        A("s_barrier")
        b = 2048 * (t % 2)
        A("ds_read_u16_d16 v16, v9 offset:%d" % (b))
        A("ds_read_u16_d16_hi v16, v9 offset:%d" % (b + 512))
        A("ds_read_u16_d16 v17, v9 offset:%d" % (b + 1024))
        A("ds_read_u16_d16_hi v17, v9 offset:%d" % (b + 1536))
        if t == 0:
            A("s_waitcnt vmcnt(0)")
        st = ST + 2 * t
        A("v_lshlrev_b32 v44, 16, %s" % v(st))
        A("v_sub_f32 v44, 0, v44"); A("v_mov_b32 v45, v44")
        A("v_and_b32 v46, s40, %s" % v(st))
        A("v_sub_f32 v46, 0, v46"); A("v_mov_b32 v47, v46")
        A("v_mov_b32 v48, %s" % v(st + 1)); A("v_mov_b32 v49, %s" % v(st + 1))
        for p in range(2):
            X0 = 20 + 12 * p
            unpack_pair(A, X0, X0 + 1, XQ + 2 * t + p, 40)
            A("v_pk_add_f32 %s, %s, v[44:45]" % (v(X0 + 6, 2), v(X0, 2)))
            round_pair(A, X0 + 6, X0 + 7, X0 + 10, 40)
            A("v_pk_mul_f32 %s, %s, v[48:49]" % (v(X0 + 2, 2), v(X0 + 6, 2)))
            A("v_pk_fma_f32 %s, %s, v[46:47], %s" % (v(X0 + 6, 2), v(X0 + 2, 2), v(X0 + 6, 2)))
            A("v_pk_fma_f32 %s, %s, v[48:49], %s" % (v(X0 + 2, 2), v(X0 + 6, 2), v(X0 + 2, 2)))
            round_pair(A, X0 + 2, X0 + 3, X0 + 10, 40)
        A("s_waitcnt lgkmcnt(0)")
        for p in range(2):
            X0 = 20 + 12 * p
            unpack_pair(A, X0 + 6, X0 + 7, 16 + p, 40)
            A("v_pk_mul_f32 %s, %s, %s" % (v(X0 + 6, 2), v(X0 + 2, 2), v(X0 + 6, 2)))
            round_pair(A, X0 + 6, X0 + 7, X0 + 10, 40)
            A("v_pk_add_f32 %s, %s, %s" % (v(X0 + 4, 2), v(X0, 2), v(X0 + 6, 2)))
            round_pair(A, X0 + 4, X0 + 5, X0 + 10, 40)
            A("v_pk_add_f32 %s, %s, %s" % (v(X0 + 6, 2), v(X0 + 4, 2), v(X0 + 2, 2)))
            A("v_cvt_pk_bf16_f32 %s, %s, %s" % (v(50 + p), v(X0 + 6), v(X0 + 7)))
        A("s_mov_b64 s[58:59], -1")
        for i in range(8):
            Ls = A.newlabel("nsel")
            A("s_lshr_b32 s51, %s, 8" % s(72 + i))
            A("s_cmp_lg_u32 s51, %d" % t)
            A("s_cbranch_scc1 %s" % Ls)
            A("s_and_b32 s51, %s, 255" % s(72 + i))
            A("v_cmp_eq_u32 vcc, s51, v5")
            A("s_andn2_b64 s[58:59], s[58:59], vcc")
            A("s_and_saveexec_b64 s[54:55], vcc")
            Lr = A.newlabel("nselr")
            A("s_cbranch_execz %s" % Lr)
            A("v_mov_b32 v52, %d" % (SIDE + 32 * i))
            A("ds_write_b64 v52, v[24:25]")
            A("ds_write_b64 v52, v[36:37] offset:8")
            A("ds_write_b64 v52, v[22:23] offset:16")
            A("ds_write_b64 v52, v[34:35] offset:24")
            A.label(Lr)
            A("s_mov_b64 exec, s[54:55]")
            A.label(Ls)
        A("s_mov_b64 exec, s[58:59]")
        A("s_movk_i32 s51, 0") if t == 0 else A("s_mov_b32 s51, %d" % (t * 256 * 1152))
        A("buffer_store_dwordx2 v[50:51], v6, s[20:23], s51 offen")
        A("s_mov_b64 exec, -1")
        if t == 5:
            A("s_mov_b32 s51, 0")
            for i in range(4):
                A("buffer_load_dwordx4 %s, v10, s[36:39], s51 offen sc1" % v(160 + 4 * i, 4))
                A("s_add_u32 s51, s51, %d" % (16 * 36864))
            A("buffer_load_dwordx4 v[176:179], v13, s[36:39], 0 offen sc1")
    stamp(A, 4, 36, 70)
    A("s_mov_b32 s52, 0")
    Lq = A.newlabel("ppoll"); Lqd = A.newlabel("pok")
    A.label(Lq)
    A("s_waitcnt vmcnt(0)")
    A("v_cmp_eq_u32 vcc, s46, v161")
    for r in (163, 165, 167, 169, 171, 173, 175, 177, 179):
        A("v_cmp_eq_u32 s[54:55], s46, %s" % v(r))
        A("s_and_b64 vcc, vcc, s[54:55]")
    A("s_add_u32 s52, s52, 1")
    A("s_cmp_gt_u32 s52, %d" % POLL_MAX)
    A("s_cbranch_scc1 %s" % Lqd)
    A("s_cmp_eq_u64 vcc, -1")
    A("s_cbranch_scc1 %s" % Lqd)
    A("s_sleep 2")
    A("s_mov_b32 s51, 0")
    for i in range(4):
        A("buffer_load_dwordx4 %s, v10, s[36:39], s51 offen sc1" % v(160 + 4 * i, 4))
        A("s_add_u32 s51, s51, %d" % (16 * 36864))
    A("buffer_load_dwordx4 v[176:179], v13, s[36:39], 0 offen sc1")
    A("s_branch %s" % Lq)
    A.label(Lqd)
    stamp(A, 5, 36, 70)
    A("v_add_f32 v16, v160, v164"); A("v_add_f32 v17, v162, v166")
    A("v_add_f32 v16, v16, v168");  A("v_add_f32 v17, v17, v170")
    A("v_add_f32 v16, v16, v172");  A("v_add_f32 v17, v17, v174")
    A("v_cndmask_b32 v18, 0, v176, s[56:57]"); A("v_cndmask_b32 v19, 0, v178, s[56:57]")
    A("v_add_f32 v16, v16, v18");   A("v_add_f32 v17, v17, v19")
    for r in (16, 17):
        A("v_mov_b32 v18, %s" % v(r))
        A.nop(2)
        A("v_permlane16_swap_b32 %s, v18" % v(r))
        A.nop(2)
        A("v_add_f32 %s, %s, v18" % (v(r), v(r)))
        A("v_mov_b32 v18, %s" % v(r))
        A.nop(2)
        A("v_permlane32_swap_b32 %s, v18" % v(r))
        A.nop(2)
        A("v_add_f32 %s, %s, v18" % (v(r), v(r)))
    A("v_and_b32 v18, 7, v1")
    A("v_lshlrev_b32 v18, 4, v18")
    A("v_bfe_u32 v19, v1, 3, 1")
    A("v_lshl_add_u32 v18, v19, 3, v18")
    A("s_lshl_b32 s51, s43, 7")
    A("s_add_u32 s51, s51, %d" % RED)
    A("v_add_u32 v18, s51, v18")
    A("s_mov_b64 exec, 0xffff")
    A("ds_write_b64 v18, v[16:17]")
    A("s_mov_b64 exec, -1")
    A("s_waitcnt lgkmcnt(0)")
    A("s_barrier")
    Lend = A.newlabel("hend")
    A("s_cmp_lg_u32 s42, 4")
    A("s_cbranch_scc1 %s" % Lend)
    A("s_mov_b64 exec, 0xff")
    A("v_lshlrev_b32 v18, 4, v1")
    A("v_add_u32 v19, %d, v18" % RED)
    for w in range(4):
        A("ds_read_b128 %s, v19 offset:%d" % (v(20 + 4 * w, 4), 128 * w))
    A("v_lshlrev_b32 v19, 5, v1")
    A("v_add_u32 v19, %d, v19" % SIDE)
    A("ds_read_b128 v[36:39], v19")
    A("ds_read_b128 v[40:43], v19 offset:16")
    for i in range(8):
        A("v_writelane_b32 v44, %s, %d" % (s(60 + i), i))
    A.nop(2)
    A("v_lshrrev_b32 v45, 16, v44")
    A("v_and_b32 v46, 0x8000, v45")
    A("v_mov_b32 v47, 0xffff")
    A("v_mov_b32 v48, 0x8000")
    A("v_cmp_ne_u32 vcc, 0, v46")
    A.nop(2)
    A("v_cndmask_b32 v47, v47, v48, vcc")
    A("v_xor_b32 v45, v45, v47")
    A("v_lshlrev_b32 v45, 16, v45")
    A("v_mul_f32 v45, 0xbfb8aa3b, v45")
    A("v_exp_f32 v45, v45")
    A.nop(1)
    A("v_add_f32 v45, 1.0, v45")
    A("v_rcp_f32 v45, v45")
    A.nop(1)
    A("v_cvt_pk_bf16_f32 v45, v45, v45")
    A("v_lshlrev_b32 v45, 16, v45")
    A("v_and_b32 v44, 0xffff, v44")
    A("v_sub_u32 v44, 2047, v44")
    A("s_movk_i32 s51, 1152")
    A("v_mul_lo_u32 v44, v44, s51")
    A("s_lshl_b32 s51, s41, 3")
    A("v_add_u32 v44, s51, v44")
    A("s_waitcnt lgkmcnt(0)")
    for i in range(4):
        A("v_add_f32 %s, %s, %s" % (v(20 + i), v(20 + i), v(24 + i)))
        A("v_add_f32 %s, %s, %s" % (v(28 + i), v(28 + i), v(32 + i)))
        A("v_add_f32 %s, %s, %s" % (v(20 + i), v(20 + i), v(28 + i)))
    round_pair(A, 20, 21, 24, 40); round_pair(A, 22, 23, 24, 40)
    for i in range(4):
        A("v_mul_f32 %s, %s, v45" % (v(20 + i), v(20 + i)))
    round_pair(A, 20, 21, 24, 40); round_pair(A, 22, 23, 24, 40)
    for i in range(4):
        A("v_add_f32 %s, %s, %s" % (v(20 + i), v(20 + i), v(40 + i)))
    round_pair(A, 20, 21, 24, 40); round_pair(A, 22, 23, 24, 40)
    for i in range(4):
        A("v_add_f32 %s, %s, %s" % (v(20 + i), v(20 + i), v(36 + i)))
    A("v_cvt_pk_bf16_f32 v24, v20, v21")
    A("v_cvt_pk_bf16_f32 v25, v22, v23")
    A("buffer_store_dwordx2 v[24:25], v44, s[20:23], 0 offen")
    A.label(Lend)
    stamp(A, 6, 36, 70)
    A("s_endpgm")
```

```python
from common import *
import common, os
from collections import deque
from conv2 import CS, CH_LDS, H_OFF, POLL_MAX, conv_schedule
from moe2 import wave_max_u32, L_WG, L_WU, L_X, L_HS, L_U, L_CAND, XSTR, HSTR
from moe3 import SORT8, sort_desc, rounds

F_EPOCH = 0x0
F_SELG = 0x100
F_ALIVE = 0x1000
F_KEYG = 0x2000
F_ROWG = 0x8000
F_URG = 0x20000
F_PARTG = F_URG + 576 * 8192
L_TAG = 162304

PQ, PK, PV, PSHK, PSSMK, PSSMD, PWR, PWG, PWU, PWD, POUT, PWS = 72, 74, 76, 78, 80, 82, 86, 88, 90, 92, 94, 70
TAG = 46
def st_(A, n):
    stamp(A, n, 36, 3, vt=254, st=96)

MISC = 4 * CH_LDS
FLAGS = MISC
SIDE = MISC + 64
RED = SIDE + 256
YOFF = H_OFF
W1, W0 = 20, 28
E_, G_, F_ = 36, 44, 50
UREG = 56
RING, NR, ACC, BS = 64, 6, 88, 120

def poll_head(A, cnt="s52"):
    A("s_mov_b32 %s, 0" % cnt)

def poll_tail(A, Lloop, Ldone, cnt="s52", sleep=1):
    A("s_add_u32 %s, %s, 1" % (cnt, cnt))
    A("s_cmp_gt_u32 %s, %d" % (cnt, POLL_MAX))
    A("s_cbranch_scc1 %s" % Ldone)
    A("s_sleep %d" % sleep)
    A("s_branch %s" % Lloop)

def masked_poll(A, name, emit_loads, tagregs, sleep, pre_sleep=0, full_exec="-1"):
    T = "s%d" % TAG
    Lp = A.newlabel(name + "p"); Ld = A.newlabel(name + "ok")
    if pre_sleep:
        A("s_sleep %d" % pre_sleep)
    A("s_mov_b32 s52, 0")
    A.label(Lp)
    emit_loads()
    A("s_waitcnt vmcnt(0)")
    A("v_cmp_eq_u32 vcc, %s, %s" % (T, v(tagregs[0])))
    for r in tagregs[1:]:
        A("v_cmp_eq_u32 s[54:55], %s, %s" % (T, v(r)))
        A("s_and_b64 vcc, vcc, s[54:55]")
    A("s_andn2_b64 exec, exec, vcc")
    A("s_cbranch_scc0 %s" % Ld)
    A("s_add_u32 s52, s52, 1")
    A("s_cmp_gt_u32 s52, %d" % POLL_MAX)
    A("s_cbranch_scc1 %s" % Ld)
    A("s_sleep %d" % sleep)
    A("s_branch %s" % Lp)
    A.label(Ld)
    A("s_mov_b64 exec, %s" % full_exec)

LK, LV, SG, SGS = 0, 17408, 34816, 528

def gen_kv(A, extra_loads):
    srd(A, 48, PK, S * ROWB)
    srd(A, 52, PV, S * ROWB)
    srd(A, 56, PSHK, D * 8)
    A("s_lshr_b32 s60, s41, 4")
    A("s_and_b32 s61, s41, 15")
    A("v_and_b32 v1, 63, v0")
    A("v_lshrrev_b32 v4, 3, v1")
    A("v_mul_u32_u24 v4, 1152, v4")
    A("v_and_b32 v5, 7, v1")
    A("v_lshl_add_u32 v4, v5, 4, v4")
    A("s_mul_i32 s62, s61, %d" % (128 * 1152))
    A("s_lshl_b32 s63, s60, 7")
    A("s_add_u32 s62, s62, s63")
    A("s_mul_i32 s63, s42, 9216")
    A("s_add_u32 s62, s62, s63")
    A("s_sub_u32 s63, s62, 9216")
    A("s_lshl_b32 s64, s42, 10")
    A("s_mov_b32 m0, s64")
    A("s_add_u32 s65, s64, 8192")
    A("buffer_load_dwordx4 v4, s[48:51], s63 offen lds")
    A("s_mov_b32 m0, s65")
    A("s_add_u32 s63, s63, %d" % (64 * 1152))
    A("buffer_load_dwordx4 v4, s[48:51], s63 offen lds")
    A("s_add_u32 s65, s64, %d" % LV)
    A("s_mov_b32 m0, s65")
    A("s_add_u32 s65, s65, 8192")
    A("buffer_load_dwordx4 v4, s[52:55], s62 offen lds")
    A("s_mov_b32 m0, s65")
    A("s_add_u32 s62, s62, %d" % (64 * 1152))
    A("buffer_load_dwordx4 v4, s[52:55], s62 offen lds")
    Ln = A.newlabel("nok17")
    A("s_cmp_lg_u32 s42, 0")
    A("s_cbranch_scc1 %s" % Ln)
    A("s_movk_i32 s65, 16384")
    A("s_mov_b32 m0, s65")
    A("s_add_u32 s63, s63, %d" % (64 * 1152))
    A("buffer_load_dwordx4 v4, s[48:51], s63 offen lds")
    A.label(Ln)
    A("v_and_b32 v2, 31, v0")
    A("s_lshl_b32 s63, s60, 9")
    A("v_lshl_add_u32 v29, v2, 4, s63")
    A("buffer_load_dwordx4 v[32:35], v29, s[56:59], 0 offen")
    nx = extra_loads(A)
    A("v_lshrrev_b32 v3, 5, v0")
    A("v_lshlrev_b32 v6, 10, v3")
    A("v_lshl_add_u32 v6, v2, 2, v6")
    A("v_mul_u32_u24 v7, %d, v2" % (2 * SGS))
    A("v_sub_u32 v8, 15, v3")
    A("v_lshl_add_u32 v7, v8, 5, v7")
    A("v_add_u32 v7, %d, v7" % SG)
    A("v_bfe_u32 v8, v0, 5, 1")
    A("v_mul_u32_u24 v8, %d, v8" % SGS)
    A("v_lshl_add_u32 v8, v2, 4, v8")
    A("s_mul_i32 s63, s42, %d" % (8 * SGS))
    A("s_add_u32 s63, s63, %d" % SG)
    A("v_add_u32 v8, s63, v8")
    A("v_bfe_u32 v9, v0, 5, 1")
    A("v_lshlrev_b32 v9, 13, v9")
    A("v_lshl_add_u32 v9, v2, 4, v9")
    A("s_lshl_b32 s63, s60, 6")
    A("s_lshl_b32 s64, s42, 3")
    A("s_add_u32 s63, s63, s64")
    A("s_lshl_b32 s63, s63, 13")
    A("s_lshl_b32 s64, s61, 9")
    A("s_sub_u32 s63, s63, s64")
    A("s_add_u32 s63, s63, %d" % (F_URG + 240 * 32))
    A("v_add_u32 v9, s63, v9")
    return nx

def gen_kv_compute(A, nx):
    A("s_waitcnt vmcnt(0)")
    A("s_barrier")
    st_(A, 1)
    for i in range(11):
        A("ds_read_b32 %s, v6 offset:%d" % (v(10 + i), LK + (5 + i) * 128))
    for i in range(8):
        A("ds_read_b32 %s, v6 offset:%d" % (v(21 + i), LV + i * 128))
    A("v_lshlrev_b32 v54, 16, v32"); A("v_lshlrev_b32 v55, 16, v34")
    A("v_and_b32 v56, s40, v32");    A("v_and_b32 v57, s40, v34")
    A("v_lshlrev_b32 v58, 16, v33"); A("v_lshlrev_b32 v59, 16, v35")
    A("v_and_b32 v60, s40, v33");    A("v_and_b32 v61, s40, v35")
    for c in range(2):
        for j in range(4):
            A("v_mov_b32 %s, s%d" % (v(116 + 8 * c + 2 * j + 1), TAG))
    W, K, KV = 54, 62, 100
    A("s_waitcnt lgkmcnt(8)")
    for i in range(11):
        unpack_pair(A, K + 2 * i, K + 2 * i + 1, 10 + i, 40)
    A("s_waitcnt lgkmcnt(0)")
    def pr_(r):
        return "v[%d:%d]" % (r, r + 1)
    def row_ops(i, acc, tmp, t3):
        P = Asm()
        P("v_pk_mul_f32 %s, %s, %s" % (pr_(acc), pr_(K + 2 * (i + 0)), pr_(W + 6)))
        round_pair(P, acc, acc + 1, t3, 40)
        for t in range(1, 4):
            P("v_pk_mul_f32 %s, %s, %s" % (pr_(tmp), pr_(K + 2 * (i + t)), pr_(W + 2 * (3 - t))))
            round_pair(P, tmp, tmp + 1, t3, 40)
            P("v_pk_add_f32 %s, %s, %s" % (pr_(acc), pr_(acc), pr_(tmp)))
            round_pair(P, acc, acc + 1, t3, 40)
        unpack_pair(P, tmp, tmp + 1, 21 + i, 40)
        P("v_pk_mul_f32 %s, %s, %s" % (pr_(KV + 2 * i), pr_(acc), pr_(tmp)))
        return [l.strip() for l in P.lines]
    for i in range(0, 8, 2):
        interleave(A, [row_ops(i, 84, 86, 88), row_ops(i + 1, 90, 92, 94)])
    for c in range(2):
        for j in range(4):
            A("v_cvt_pk_bf16_f32 %s, %s, %s" % (v(116 + 8 * c + 2 * j), v(KV + 2 * (7 - 2 * j) + c), v(KV + 2 * (6 - 2 * j) + c)))
    A("ds_write_b128 v7, v[116:119]")
    A("ds_write_b128 v7, v[120:123] offset:16")
    A("ds_write_b128 v7, v[124:127] offset:%d" % SGS)
    A("ds_write_b128 v7, v[128:131] offset:%d" % (SGS + 16))
    A("s_waitcnt lgkmcnt(0)")
    A("s_barrier")
    for k in range(4):
        A("ds_read_b128 %s, v8 offset:%d" % (v(116 + 4 * k, 4), 2 * SGS * k))
    A("s_mov_b32 s63, 0")
    for k in range(4):
        A("s_waitcnt lgkmcnt(%d)" % (3 - k))
        A("buffer_store_dwordx4 %s, v9, s[36:39], s63 offen sc1" % v(116 + 4 * k, 4))
        A("s_add_u32 s63, s63, 16384")
    st_(A, 2)

def gen_ln(A):
    srd(A, 48, PQ, S * ROWB)
    srd(A, 52, PWR, D * 2)
    A("v_and_b32 v1, 63, v0")
    A("v_and_b32 v2, 15, v0")
    A("v_lshrrev_b32 v3, 4, v1")
    A("s_lshl_b32 s61, s60, 2")
    A("v_add_u32 v30, s61, v3")
    A("s_movk_i32 s62, 1152")
    A("v_mul_lo_u32 v6, v30, s62")
    A("v_lshl_add_u32 v6, v2, 3, v6")
    A("v_lshlrev_b32 v7, 3, v2")
    Q, WR, X = 64, 84, 104
    for i in range(9):
        A("buffer_load_dwordx2 %s, v6, s[48:51], 0 offen offset:%d" % (v(Q + 2 * i, 2), 128 * i))
    for i in range(9):
        A("buffer_load_dwordx2 %s, v7, s[52:55], 0 offen offset:%d" % (v(WR + 2 * i, 2), 128 * i))
    return Q, WR, X

def gen_ln_compute(A, Q, WR, X):
    A("s_waitcnt vmcnt(9)")
    st_(A, 1)
    for i in range(18):
        unpack_pair(A, X + 2 * i, X + 2 * i + 1, Q + i, 40)
    A("v_pk_add_f32 v[8:9], %s, %s" % (v(X, 2), v(X + 2, 2)))
    A("v_pk_add_f32 v[10:11], %s, %s" % (v(X + 4, 2), v(X + 6, 2)))
    for i in range(4, 18, 2):
        A("v_pk_add_f32 v[8:9], v[8:9], %s" % v(X + 2 * i, 2))
        A("v_pk_add_f32 v[10:11], v[10:11], %s" % v(X + 2 * i + 2, 2))
    A("v_pk_add_f32 v[8:9], v[8:9], v[10:11]")
    A.nop(1)
    A("v_add_f32 v8, v8, v9")
    allreduce16_add(A, 8)
    A("v_mul_f32 v8, 0x3ae38e39, v8")
    A("v_sub_f32 v12, 0, v8")
    A("v_sub_f32 v13, 0, v8")
    for r in (14, 15, 16, 17):
        A("v_mov_b32 %s, 0" % v(r))
    for i in range(0, 18, 2):
        A("v_pk_add_f32 v[18:19], %s, v[12:13]" % v(X + 2 * i, 2))
        A("v_pk_add_f32 v[20:21], %s, v[12:13]" % v(X + 2 * i + 2, 2))
        A("v_pk_fma_f32 v[14:15], v[18:19], v[18:19], v[14:15]")
        A("v_pk_fma_f32 v[16:17], v[20:21], v[20:21], v[16:17]")
    A("v_pk_add_f32 v[14:15], v[14:15], v[16:17]")
    A.nop(1)
    A("v_add_f32 v14, v14, v15")
    allreduce16_add(A, 14)
    A("v_mul_f32 v14, 0x3ae38e39, v14")
    A.nop(1)
    round_pair(A, 8, 14, 9, 40)
    A("v_add_f32 v14, 0x3727c5ac, v14")
    A.nop(1)
    A("v_cvt_pk_bf16_f32 v9, v14, v14")
    A("v_lshlrev_b32 v14, 16, v9")
    A("v_sqrt_f32 v14, v14")
    A.nop(1)
    A("v_cvt_pk_bf16_f32 v9, v14, v14")
    A("v_lshlrev_b32 v14, 16, v9")
    A("v_rcp_f32 v15, v14")
    A.nop(1)
    A("v_fma_f32 v16, -v14, v15, 1.0")
    A("v_fma_f32 v15, v16, v15, v15")
    A("v_sub_f32 v12, 0, v8"); A("v_sub_f32 v13, 0, v8")
    A("v_mov_b32 v16, v15"); A("v_mov_b32 v17, v15")
    for r in (22, 23, 24, 25):
        A("v_mov_b32 %s, 0" % v(r))
    A("s_waitcnt vmcnt(0)")
    def ops(i, tm, acc):
        x0 = X + 2 * i
        P = Asm()
        P("v_pk_add_f32 %s, %s, v[12:13]" % (v(x0, 2), v(x0, 2)))
        round_pair(P, x0, x0 + 1, tm, 40)
        P("v_pk_mul_f32 %s, %s, v[16:17]" % (v(x0, 2), v(x0, 2)))
        round_pair(P, x0, x0 + 1, tm, 40)
        unpack_pair(P, tm + 2, tm + 3, WR + i, 40)
        P("v_pk_fma_f32 %s, %s, %s, %s" % (v(acc, 2), v(x0, 2), v(tm + 2, 2), v(acc, 2)))
        return [l.strip() for l in P.lines]
    for i in range(0, 18, 2):
        interleave(A, [ops(i, 26, 22), ops(i + 1, 32, 24)])
    A("v_pk_add_f32 v[22:23], v[22:23], v[24:25]")
    A.nop(1)
    A("v_add_f32 v22, v22, v23")
    allreduce16_add(A, 22)
    A.nop(1)
    A("v_cvt_pk_bf16_f32 v23, v22, v22")
    A("v_lshlrev_b32 v23, 16, v23")
    A("v_ashrrev_i32 v24, 31, v23")
    A("v_or_b32 v24, 0x80000000, v24")
    A("v_xor_b32 v23, v23, v24")
    A("v_and_b32 v23, s40, v23")
    A("v_sub_u32 v24, 2047, v30")
    A("v_or_b32 v26, v23, v24")
    A("v_mov_b32 v27, s%d" % TAG)
    A("v_cvt_pk_bf16_f32 v32, v8, v14")
    A("v_mov_b32 v33, s%d" % TAG)
    A("v_mov_b32 v34, v15")
    A("v_mov_b32 v35, s%d" % TAG)
    A("v_lshlrev_b32 v28, 3, v30")
    A("v_lshlrev_b32 v29, 4, v30")
    A("s_movk_i32 s61, %d" % F_KEYG)
    A("s_mov_b32 s62, %d" % F_ROWG)
    A("v_cmp_eq_u32 vcc, 0, v2")
    A("s_and_saveexec_b64 s[50:51], vcc")
    A("buffer_store_dwordx2 v[26:27], v28, s[36:39], s61 offen sc1")
    A("buffer_store_dwordx4 v[32:35], v29, s[36:39], s62 offen sc1")
    A("s_mov_b64 exec, s[50:51]")
    st_(A, 2)

def build_ops(W, N, off):
    ops = []
    for k in range(7):
        ops.append("v_alignbit_b32 %s, %s, %s, 16" % (v(E_ + k), v(W + k + 1), v(W + k)))
    ops.append("ds_write_b128 v11, %s offset:%d" % (v(W + 2, 4), 4 * CS + off))
    for k in range(3):
        ops.append("v_pk_mov_b32 %s, %s, %s op_sel:[1,0]" % (v(G_ + 2 * k, 2), v(W + 2 * k, 2), v(W + 2 * k + 2, 2)))
    ops.append("ds_write_b128 v11, %s offset:%d" % (v(E_, 4), 1 * CS + off))
    ops.append("ds_write_b128 v11, %s offset:%d" % (v(E_ + 2, 4), 5 * CS + off))
    for k in range(3):
        ops.append("v_pk_mov_b32 %s, %s, %s op_sel:[1,0]" % (v(F_ + 2 * k, 2), v(E_ + 2 * k, 2), v(E_ + 2 * k + 2, 2)))
    ops.append("ds_write_b128 v11, %s offset:%d" % (v(G_, 4), 2 * CS + off))
    ops.append("ds_write_b128 v11, %s offset:%d" % (v(G_ + 2, 4), 6 * CS + off))
    ops.append("s_nop 0")
    ops.append("ds_write_b128 v11, %s offset:%d" % (v(F_, 4), 3 * CS + off))
    ops.append("ds_write_b128 v11, %s offset:%d" % (v(F_ + 2, 4), 7 * CS + off))
    return ops

def gen_M(A):
    srd(A, 32, PSSMK, D * S * 2)
    A("v_and_b32 v1, 63, v0")
    A("v_lshlrev_b32 v4, 4, v1")
    A("s_add_u32 s56, s45, %d" % (H_OFF + 512))
    A("s_lshl_b32 s57, s44, 12")
    A("s_mov_b32 m0, s56")
    A("s_lshl_b32 s51, s44, 1")
    for i in range(4):
        A("buffer_load_dwordx4 v4, s[32:35], s57 offen offset:%d lds" % (1024 * i))
    A("s_add_u32 s56, s56, 4096")
    A("s_add_u32 s57, s57, 4096")
    A("s_mov_b32 m0, s56")
    A("s_mov_b64 exec, 0x3")
    A("buffer_load_dwordx4 v4, s[32:35], s57 offen lds")
    A("s_mov_b64 exec, -1")
    A("s_and_b32 s52, s51, 0xfffffffc")
    A("s_add_u32 s54, s%d, s52" % PSSMD)
    A("s_addc_u32 s55, s%d, 0" % (PSSMD + 1))
    A("s_load_dword s53, s[54:55], 0")
    A("v_and_b32 v2, 15, v0")
    A("v_bfe_u32 v3, v0, 4, 2")
    A("v_mov_b32 v12, 0"); A("v_mov_b32 v13, 0"); A("v_mov_b32 v14, 0"); A("v_mov_b32 v15, 0")
    A("v_add_u32 v11, s45, v4")
    A("s_mov_b32 exec_hi, 0")
    A("ds_write_b128 v11, v[12:15] offset:%d" % H_OFF)
    A("s_mov_b64 exec, 0x3")
    for c in range(8):
        pass
    A("ds_write_b128 v11, v[12:15]")
    A("s_mov_b64 exec, 0xf")
    A("ds_write_b128 v11, v[12:15] offset:%d" % (258 * 16))
    A("s_mov_b64 exec, -1")
    A("v_lshlrev_b32 v5, 5, v2")
    A("v_lshl_add_u32 v5, v3, 4, v5")
    A("v_add_u32 v5, s45, v5")
    A("v_add_u32 v5, %d, v5" % H_OFF)
    A("v_and_b32 v8, 7, v2")
    A("v_sub_u32 v8, 7, v8")
    A("v_mul_u32_u24 v8, %d, v8" % CS)
    A("v_lshrrev_b32 v6, 3, v2")
    A("v_sub_u32 v6, v3, v6")
    A("v_lshlrev_b32 v6, 4, v6")
    A("v_add_u32 v8, v8, v6")
    A("v_add_u32 v8, 16, v8")
    A("v_add_u32 v9, s45, v8")
    A("v_lshlrev_b32 v6, 5, v2")
    A("v_lshl_add_u32 v6, v3, 3, v6")
    A("v_sub_u32 v7, %d, v6" % (4120 - 3584))
    A("v_add_u32 v7, s45, v7")
    A("v_add_u32 v6, s45, v6")
    A("v_add_u32 v6, %d, v6" % YOFF)
    A("s_lshl_b32 s49, s43, 2")
    A("s_add_u32 s49, s49, %d" % FLAGS)
    A("v_mov_b32 v10, s49")
    for i in range(32):
        A("v_mov_b32 %s, 0" % v(ACC + i))
    A("v_lshlrev_b32 v16, 5, v1")
    A("s_lshl_b32 s48, s44, 13")
    A("s_add_u32 s48, s48, %d" % F_URG)
    A("s_add_u32 s50, s48, 4096")
    def ur_loads():
        for i in range(4):
            so = "s48" if i < 2 else "s50"
            A("buffer_load_dwordx4 %s, v16, s[36:39], %s offen offset:%d sc1" % (v(120 + 8 * i, 4), so, 2048 * (i % 2)))
            A("buffer_load_dwordx4 %s, v16, s[36:39], %s offen offset:%d sc1" % (v(124 + 8 * i, 4), so, 2048 * (i % 2) + 16))
    masked_poll(A, "ur", ur_loads, list(range(121, 152, 2)), int(os.environ.get("URSLEEP", 8)), int(os.environ.get("URPRE", 8)))
    st_(A, 3)
    for i in range(4):
        b = 120 + 8 * i
        A("v_mov_b32 %s, %s" % (v(b + 1), v(b + 2)))
        A("v_mov_b32 %s, %s" % (v(b + 2), v(b + 4)))
        A("v_mov_b32 %s, %s" % (v(b + 3), v(b + 6)))
        A("ds_write_b128 v11, %s offset:%d" % (v(b, 4), 32 + 1024 * i))
    A("s_waitcnt lgkmcnt(0)")
    for (W, off) in ((152, 4096), (160, 3072), (168, 2048), (W1, 1024), (W0, 0)):
        A("ds_read_b128 %s, v11 offset:%d" % (v(W, 4), off))
        A("ds_read_b128 %s, v11 offset:%d" % (v(W + 4, 4), off + 16))
    A("s_waitcnt lgkmcnt(8)")
    A("s_mov_b64 exec, 0x1f")
    for o in build_ops(152, 0, 4096): A(o)
    A("s_mov_b64 exec, -1")
    A("s_waitcnt lgkmcnt(11)")
    for o in build_ops(160, 0, 3072): A(o)
    A("s_waitcnt lgkmcnt(14)")
    for o in build_ops(168, 0, 2048): A(o)
    A("s_waitcnt lgkmcnt(0)")
    st_(A, 4)
    hi_steps, lo_frags, lo_slot, lo_steps = conv_schedule()
    def bslot(sl):
        return v(BS + 4 * sl, 4)
    order, seen = [], set()
    for q, lst in hi_steps:
        for t, sl in lst:
            if sl not in seen:
                seen.add(sl); order.append(sl)
    aseq = [q for q in range(33)] + [q for q in range(65)]
    issued = []
    def issue(tag, txt):
        A(txt); issued.append(tag)
    def wait_for(tags):
        idx = max(len(issued) - 1 - issued[::-1].index(t) for t in tags)
        n = len(issued) - 1 - idx
        A("s_waitcnt lgkmcnt(%d)" % min(n, 15))
    def a_issue(k):
        issue(("A", k), "ds_read_b128 %s, v9 offset:%d" % (v(RING + 4 * (k % NR), 4), 64 * (64 - aseq[k])))
    def b_issue(sl):
        issue(("B", sl), "ds_read_b128 %s, v5 offset:%d" % (bslot(sl), 64 * (56 - sl + 8)))
    fill = deque()
    cnt = [0]
    def emit_fill(k):
        while k > 0 and fill:
            f = fill.popleft(); f(); cnt[0] += 1; k -= 1
    def add_plain(txt):
        if txt.startswith("ds_"):
            fill.append(lambda txt=txt: issue(("W",), txt))
        else:
            fill.append(lambda txt=txt: A(txt))
    a_issue(0)
    for sl in order[:5]:
        b_issue(sl)
    nextA = 1
    for k in range(1, NR):
        a_issue(nextA); nextA += 1
        b_issue(order[5 + k - 1])
    nextB = 5 + (NR - 1)
    A("s_and_b32 s52, s51, 2")
    A("s_lshl_b32 s52, s52, 3")
    A("s_lshr_b32 s53, s53, s52")
    A("s_lshl_b32 s53, s53, 16")
    A("v_mov_b32 v18, s53"); A("v_mov_b32 v19, s53")
    n = 0
    fu = {}
    for q, lst in hi_steps:
        for t, sl in lst:
            fu.setdefault(sl, q)
    for q, lst in hi_steps:
        while nextB < len(order) and fu[order[nextB]] <= q + 3:
            b_issue(order[nextB]); nextB += 1
        wait_for([("A", n)] + [("B", sl) for _, sl in lst])
        for t, sl in lst:
            A("v_mfma_f32_16x16x32_bf16 %s, %s, %s, %s" % (v(ACC + 4 * t, 4), v(RING + 4 * (n % NR), 4), bslot(sl), v(ACC + 4 * t, 4)))
        if nextA < len(aseq):
            a_issue(nextA); nextA += 1
        if q < 32:
            issue(("L", q), "ds_read_b128 %s, v5 offset:%d" % (bslot(q), 64 * (lo_frags[q] + 8)))
        n += 1
    st_(A, 5)
    def tile_epilogue(t):
        u0 = UREG + 2 * (t % 2)
        ac = ACC + 4 * t
        fill.append(lambda: wait_for([("U", t)] + ([("L", 31)] if t == 0 else [])))
        P = Asm()
        P("v_and_b32 v12, s40, %s" % v(u0 + 1))
        P("v_lshlrev_b32 v13, 16, %s" % v(u0 + 1))
        P("v_and_b32 v14, s40, %s" % v(u0))
        P("v_lshlrev_b32 v15, 16, %s" % v(u0))
        P("v_pk_mul_f32 v[12:13], v[12:13], v[18:19]")
        P("v_pk_mul_f32 v[14:15], v[14:15], v[18:19]")
        round_pair(P, 12, 13, 16, 40)
        round_pair(P, 14, 15, 17, 40)
        round_pair(P, ac, ac + 1, 16, 40)
        round_pair(P, ac + 2, ac + 3, 17, 40)
        P("v_pk_add_f32 v[12:13], v[12:13], %s" % v(ac, 2))
        P("v_pk_add_f32 v[14:15], v[14:15], %s" % v(ac + 2, 2))
        P("v_cvt_pk_bf16_f32 v16, v12, v13")
        P("v_cvt_pk_bf16_f32 v17, v14, v15")
        for l in P.lines:
            add_plain(l.strip())
        fill.append(lambda: issue(("Y", t), "ds_write_b64 v6, v[16:17] offset:%d" % (512 * t)))
        fill.append(lambda: A("v_mov_b32 v8, %d" % (t + 1)))
        for _ in range(3):
            fill.append(lambda: None)
        fill.append(lambda: wait_for([("Y", t)]))
        fill.append(lambda: issue(("F", t), "ds_write_b32 v10, v8"))
    for o in build_ops(W1, 0, 1024): add_plain(o)
    n1 = len(fill)
    for o in build_ops(W0, 0, 0): add_plain(o)
    n0 = len(fill)
    for q, lst in lo_steps:
        wait_for([("A", n)] + [("L", sl) for _, sl in lst])
        k = len(lst)
        per = 2 if k >= 2 else 1
        for i, (t, sl) in enumerate(lst):
            A("v_mfma_f32_16x16x32_bf16 %s, %s, %s, %s" % (v(ACC + 4 * t, 4), v(RING + 4 * (n % NR), 4), bslot(sl), v(ACC + 4 * t, 4)))
            if i < k - 1 or k == 1:
                emit_fill(per)
        if nextA < len(aseq):
            qq = aseq[nextA]
            if nextA >= 33 and qq >= 33:
                assert cnt[0] >= n1
            if nextA >= 33 and qq >= 49:
                assert cnt[0] >= n0
            a_issue(nextA); nextA += 1
        n += 1
        if q % 8 == 4:
            t = q // 8
            issue(("U", t), "ds_read_b64 %s, v7 offset:%d" % (v(UREG + 2 * (t % 2), 2), 512 * (7 - t)))
        if q >= 9 and (q - 9) % 8 == 0 and (q - 9) // 8 < 7:
            tile_epilogue((q - 9) // 8)
    A.nop(4)
    st_(A, 6)
    tile_epilogue(7)
    emit_fill(1000)
    st_(A, 7)
    A("s_endpgm")

XQ = 208
def h_early_loads(A):
    srd(A, 16, PQ, S * ROWB)
    A("v_and_b32 v201, 255, v0")
    A("s_movk_i32 s63, 1152")
    A("v_mul_lo_u32 v200, v201, s63")
    A("s_lshl_b32 s63, s41, 3")
    A("v_add_u32 v200, s63, v200")
    A("s_mov_b32 s63, 0")
    for t in range(8):
        A("buffer_load_dwordx2 %s, v200, s[16:19], s63 offen" % v(XQ + 2 * t, 2))
        A("s_add_u32 s63, s63, %d" % (256 * 1152))
    return 8

def gen_H(A):
    srd(A, 20, POUT, S * ROWB)
    T = "s%d" % TAG
    A("v_and_b32 v1, 63, v0")
    A("v_mov_b32 v5, v201")
    A("v_mov_b32 v6, v200")
    A("v_lshlrev_b32 v7, 4, v5")
    RG = 160
    def row_loads():
        for t in range(8):
            A("s_mov_b32 s51, %d" % (F_ROWG + 4096 * t))
            A("buffer_load_dwordx4 %s, v7, s[36:39], s51 offen sc1" % v(RG + 4 * t, 4))
    masked_poll(A, "row", row_loads, list(range(RG + 1, RG + 32, 2)), 16, 8)
    st_(A, 3)
    X, XN, T1 = 64, 96, 128
    for t in range(8):
        g = RG + 4 * t
        st = 44 + 6 * (t % 2)
        A("v_lshlrev_b32 %s, 16, %s" % (v(st), v(g)))
        A("v_and_b32 %s, s40, %s" % (v(st + 4), v(g)))
        A("v_mov_b32 %s, %s" % (v(st + 2), v(g + 2)))
        A("v_xor_b32 %s, 0x80000000, %s" % (v(st), v(st)))
        A("v_xor_b32 %s, 0x80000000, %s" % (v(st + 4), v(st + 4)))
        A("v_mov_b32 %s, %s" % (v(st + 3), v(g + 2)))
        A("v_mov_b32 %s, %s" % (v(st + 1), v(st)))
        A("v_mov_b32 %s, %s" % (v(st + 5), v(st + 4)))
        streams = []
        for p in range(2):
            x, xn = X + 4 * t + 2 * p, XN + 4 * t + 2 * p
            tm = 56 + 4 * p
            ops = norm_ops(x, xn, tm, XQ + 2 * t + p, st)
            P = Asm(); round_pair(P, xn, xn + 1, tm + 2, 40)
            streams.append(ops + [l.strip() for l in P.lines])
        interleave(A, streams)
    st_(A, 4)
    A("v_lshlrev_b32 v8, 3, v1")
    A("s_mov_b64 exec, 0xff")
    def sel_loads():
        A("s_movk_i32 s51, %d" % F_SELG)
        A("buffer_load_dwordx2 v[16:17], v8, s[36:39], s51 offen sc1")
    masked_poll(A, "sel", sel_loads, [17], 16, 0, full_exec="0xff")
    A("v_and_b32 v17, 0xffff, v16")
    A("v_sub_u32 v17, 2047, v17")
    A("v_bfe_u32 v18, v17, 6, 2")
    A("v_lshrrev_b32 v19, 8, v17")
    A("v_lshlrev_b32_e64 v19, v19, 1")
    A("v_cmp_eq_u32 vcc, s43, v18")
    A.nop(2)
    A("v_cndmask_b32 v19, 0, v19, vcc")
    A("s_mov_b64 exec, -1")
    for i in range(8):
        A("v_readlane_b32 %s, v16, %d" % (s(60 + i), i))
    A("v_readlane_b32 s58, v19, 0")
    for i in range(1, 8):
        A("v_readlane_b32 s59, v19, %d" % i)
        A.nop(1)
        A("s_or_b32 s58, s58, s59")
    st_(A, 5)
    A("v_lshlrev_b32 v9, 1, v5")
    A("v_add_u32 v9, %d, v9" % YOFF)
    A("v_add_u32 v10, %d, v9" % (2 * CH_LDS))
    A("v_mov_b32 v11, %d" % FLAGS)
    for i in range(4):
        A("v_mov_b32 %s, 0" % v(40 + i))
    A("v_and_b32 v12, 7, v5")
    A("v_mul_u32_u24 v12, 4608, v12")
    A("v_bfe_u32 v13, v5, 3, 1")
    A("v_lshl_add_u32 v12, v13, 4, v12")
    A("v_lshrrev_b32 v13, 4, v5")
    A("v_mul_u32_u24 v14, 36864, v13")
    A("v_add_u32 v12, v12, v14")
    A("s_lshl_b32 s51, s41, 5")
    A("s_add_u32 s51, s51, %d" % F_PARTG)
    A("v_add_u32 v12, s51, v12")
    A("v_add_u32 v14, %d, v12" % (64 * 36864))
    A("v_cmp_gt_u32 vcc, 8, v13")
    A.nop(2)
    A("v_cndmask_b32 v14, v12, v14, vcc")
    A("s_mov_b64 s[56:57], vcc")
    def part_loads():
        A("s_mov_b32 s51, 0")
        for i in range(4):
            A("buffer_load_dwordx4 %s, v12, s[36:39], s51 offen sc1" % v(160 + 4 * i, 4))
            A("s_add_u32 s51, s51, %d" % (16 * 36864))
        A("buffer_load_dwordx4 v[176:179], v14, s[36:39], 0 offen sc1")
    Lslow, Lback = [], []
    for t in range(8):
        Lw = A.newlabel("yw"); Lg = A.newlabel("yg")
        A("s_mov_b32 s52, 0")
        A.label(Lw)
        A("ds_read_b128 v[16:19], v11")
        A("s_add_u32 s52, s52, 1")
        A("s_waitcnt lgkmcnt(0)")
        A("v_min_u32 v16, v16, v17")
        A("v_min3_u32 v16, v16, v18, v19")
        A("s_cmp_gt_u32 s52, %d" % POLL_MAX)
        A("v_readfirstlane_b32 s51, v16")
        A("s_cbranch_scc1 %s" % Lg)
        A("s_nop 1")
        A("s_cmp_gt_u32 s51, %d" % t)
        A("s_cbranch_scc1 %s" % Lg)
        A("s_sleep 1")
        A("s_branch %s" % Lw)
        A.label(Lg)
        A("ds_read_u16_d16_hi v40, v9 offset:%d" % (512 * t))
        A("ds_read_u16_d16_hi v41, v9 offset:%d" % (512 * t + CH_LDS))
        A("ds_read_u16_d16_hi v42, v10 offset:%d" % (512 * t))
        A("ds_read_u16_d16_hi v43, v10 offset:%d" % (512 * t + CH_LDS))
        A("s_waitcnt lgkmcnt(0)")
        streams = []
        for p in range(2):
            x, xn, t1 = X + 4 * t + 2 * p, XN + 4 * t + 2 * p, T1 + 4 * t + 2 * p
            tm = 56 + 4 * p
            P = Asm()
            P("v_pk_mul_f32 %s, %s, %s" % (v(tm, 2), v(xn, 2), v(40 + 2 * p, 2)))
            round_pair(P, tm, tm + 1, tm + 2, 40)
            P("v_pk_add_f32 %s, %s, %s" % (v(t1, 2), v(x, 2), v(tm, 2)))
            round_pair(P, t1, t1 + 1, tm + 2, 40)
            P("v_pk_add_f32 %s, %s, %s" % (v(tm, 2), v(t1, 2), v(xn, 2)))
            P("v_cvt_pk_bf16_f32 %s, %s, %s" % (v(44 + 2 * (t % 2) + p), v(tm), v(tm + 1)))
            streams.append([l.strip() for l in P.lines])
        interleave(A, streams)
        A("s_mov_b32 s51, %d" % (t * 256 * 1152))
        A("buffer_store_dwordx2 %s, v6, s[20:23], s51 offen" % v(44 + 2 * (t % 2), 2))
        ls, lb = A.newlabel("slow"), A.newlabel("back")
        Lslow.append(ls); Lback.append(lb)
        A("s_bitcmp1_b32 s58, %d" % t)
        A("s_cbranch_scc1 %s" % ls)
        A.label(lb)
    st_(A, 6)
    Lafter = A.newlabel("afterslow")
    A("s_branch %s" % Lafter)
    for t in range(8):
        A.label(Lslow[t])
        for i in range(8):
            Ls = A.newlabel("ns")
            A("s_and_b32 s51, %s, 0xffff" % s(60 + i))
            A("s_sub_u32 s51, %d, s51" % (2047 - 256 * t))
            A("v_cmp_eq_u32 vcc, s51, v5")
            A("s_cbranch_vccz %s" % Ls)
            A("s_mov_b64 exec, vcc")
            A("v_mov_b32 v52, %d" % (SIDE + 32 * i))
            A("ds_write_b128 v52, %s" % v(T1 + 4 * t, 4))
            A("ds_write_b128 v52, %s offset:16" % v(XN + 4 * t, 4))
            A("s_mov_b64 exec, -1")
            A.label(Ls)
        A("s_branch %s" % Lback[t])
    A.label(Lafter)
    masked_poll(A, "pp", part_loads, [161, 163, 165, 167, 169, 171, 173, 175, 177, 179], 4, 0)
    st_(A, 7)
    A("v_add_f32 v16, v160, v164"); A("v_add_f32 v17, v162, v166")
    A("v_add_f32 v16, v16, v168");  A("v_add_f32 v17, v17, v170")
    A("v_add_f32 v16, v16, v172");  A("v_add_f32 v17, v17, v174")
    A("v_cndmask_b32 v18, 0, v176, s[56:57]"); A("v_cndmask_b32 v19, 0, v178, s[56:57]")
    A("v_add_f32 v16, v16, v18");   A("v_add_f32 v17, v17, v19")
    A("v_mov_b32 v18, v16"); A("v_mov_b32 v19, v17")
    A.nop(1)
    A("v_permlane16_swap_b32 v16, v18"); A("v_permlane16_swap_b32 v17, v19")
    A.nop(1)
    A("v_add_f32 v16, v16, v18"); A("v_add_f32 v17, v17, v19")
    A("v_mov_b32 v18, v16"); A("v_mov_b32 v19, v17")
    A.nop(1)
    A("v_permlane32_swap_b32 v16, v18"); A("v_permlane32_swap_b32 v17, v19")
    A.nop(1)
    A("v_add_f32 v16, v16, v18"); A("v_add_f32 v17, v17, v19")
    A("v_and_b32 v18, 7, v1")
    A("v_lshlrev_b32 v18, 4, v18")
    A("v_bfe_u32 v19, v1, 3, 1")
    A("v_lshl_add_u32 v18, v19, 3, v18")
    A("s_lshl_b32 s51, s43, 7")
    A("s_add_u32 s51, s51, %d" % RED)
    A("v_add_u32 v18, s51, v18")
    A("s_mov_b64 exec, 0xffff")
    A("ds_write_b64 v18, v[16:17]")
    A("s_mov_b64 exec, -1")
    A("s_waitcnt lgkmcnt(0)")
    A("s_barrier")
    Lend = A.newlabel("hend")
    A("s_cmp_lg_u32 s42, 4")
    A("s_cbranch_scc1 %s" % Lend)
    A("s_mov_b64 exec, 0xff")
    A("v_lshlrev_b32 v18, 4, v1")
    A("v_add_u32 v19, %d, v18" % RED)
    for w in range(4):
        A("ds_read_b128 %s, v19 offset:%d" % (v(20 + 4 * w, 4), 128 * w))
    A("v_lshlrev_b32 v19, 5, v1")
    A("v_add_u32 v19, %d, v19" % SIDE)
    A("ds_read_b128 v[36:39], v19")
    A("ds_read_b128 v[40:43], v19 offset:16")
    for i in range(8):
        A("v_writelane_b32 v44, %s, %d" % (s(60 + i), i))
    A.nop(2)
    A("v_lshrrev_b32 v45, 16, v44")
    A("v_and_b32 v46, 0x8000, v45")
    A("v_mov_b32 v47, 0xffff")
    A("v_mov_b32 v48, 0x8000")
    A("v_cmp_ne_u32 vcc, 0, v46")
    A.nop(2)
    A("v_cndmask_b32 v47, v47, v48, vcc")
    A("v_xor_b32 v45, v45, v47")
    A("v_lshlrev_b32 v45, 16, v45")
    A("v_mul_f32 v45, 0xbfb8aa3b, v45")
    A("v_exp_f32 v45, v45")
    A.nop(1)
    A("v_add_f32 v45, 1.0, v45")
    A("v_rcp_f32 v45, v45")
    A.nop(1)
    A("v_cvt_pk_bf16_f32 v45, v45, v45")
    A("v_lshlrev_b32 v45, 16, v45")
    A("v_and_b32 v44, 0xffff, v44")
    A("v_sub_u32 v44, 2047, v44")
    A("s_movk_i32 s51, 1152")
    A("v_mul_lo_u32 v44, v44, s51")
    A("s_lshl_b32 s51, s41, 3")
    A("v_add_u32 v44, s51, v44")
    A("s_waitcnt lgkmcnt(0)")
    for i in range(4):
        A("v_add_f32 %s, %s, %s" % (v(20 + i), v(20 + i), v(24 + i)))
        A("v_add_f32 %s, %s, %s" % (v(28 + i), v(28 + i), v(32 + i)))
    for i in range(4):
        A("v_add_f32 %s, %s, %s" % (v(20 + i), v(20 + i), v(28 + i)))
    round_pair(A, 20, 21, 24, 40); round_pair(A, 22, 23, 25, 40)
    for i in range(4):
        A("v_mul_f32 %s, %s, v45" % (v(20 + i), v(20 + i)))
    round_pair(A, 20, 21, 24, 40); round_pair(A, 22, 23, 25, 40)
    for i in range(4):
        A("v_add_f32 %s, %s, %s" % (v(20 + i), v(20 + i), v(40 + i)))
    round_pair(A, 20, 21, 24, 40); round_pair(A, 22, 23, 25, 40)
    for i in range(4):
        A("v_add_f32 %s, %s, %s" % (v(20 + i), v(20 + i), v(36 + i)))
    A("v_cvt_pk_bf16_f32 v24, v20, v21")
    A("v_cvt_pk_bf16_f32 v25, v22, v23")
    A("buffer_store_dwordx2 v[24:25], v44, s[20:23], 0 offen")
    A.label(Lend)
    st_(A, 8)
    A("s_endpgm")

def gen_conv_wg(A):
    A("s_and_b32 s43, s42, 3")
    A("s_lshl_b32 s44, s41, 2")
    A("s_add_u32 s44, s44, s43")
    A("s_mul_i32 s45, s43, %d" % CH_LDS)
    Lm = A.newlabel("cm")
    gen_kv(A, lambda A: 0)
    finish_tag(A)
    flags_barrier(A)
    gen_kv_compute(A, 0)
    publish_alive(A)
    A("s_barrier")
    A("s_cmp_lt_u32 s42, 4")
    A("s_cbranch_scc1 %s" % Lm)
    h_early_loads(A)
    gen_H(A)
    A.label(Lm)
    A("s_setprio 2")
    gen_M(A)

def finish_tag(A):
    A("s_waitcnt lgkmcnt(0)")
    A("s_mul_i32 s%d, s%d, 0x9E3779B1" % (TAG, TAG))
    A("s_add_u32 s%d, s%d, 0x7F4A7C15" % (TAG, TAG))

def flags_barrier(A, alive=False):
    A("v_mov_b32 v36, 0")
    A("v_mov_b32 v37, %d" % FLAGS)
    A("v_mov_b32 v38, 0"); A("v_mov_b32 v39, 0"); A("v_mov_b32 v40, 0"); A("v_mov_b32 v41, 0")
    A("ds_write_b128 v37, v[38:41]")
    A("s_waitcnt lgkmcnt(0)")

def publish_alive(A):
    Ln = A.newlabel("noalive")
    A("s_cmp_lg_u32 s42, 0")
    A("s_cbranch_scc1 %s" % Ln)
    A("s_lshl_b32 s63, s41, 2")
    A("s_add_u32 s63, s63, %d" % F_ALIVE)
    A("v_mov_b32 v37, s%d" % TAG)
    A("v_mov_b32 v36, 0")
    A("s_mov_b64 exec, 1")
    A("buffer_store_dword v37, v36, s[36:39], s63 offen sc1")
    A("s_mov_b64 exec, -1")
    A.label(Ln)

def gen_moe_wg(A):
    T = "s%d" % TAG
    A("v_and_b32 v1, 63, v0")
    A("v_and_b32 v4, 255, v0")
    WD = 160
    Lt = A.newlabel("twave"); Lj = A.newlabel("join")
    A("s_cmp_ge_u32 s42, 4")
    A("s_cbranch_scc1 %s" % Lt)
    A("s_barrier")
    srd(A, 48, PWG, D * F * 2)
    srd(A, 52, PWU, D * F * 2)
    srd(A, 56, PWD, D * F * 2)
    A("v_lshrrev_b32 v5, 3, v1")
    A("v_mul_u32_u24 v5, 9216, v5")
    A("v_bfe_u32 v6, v1, 4, 1")
    A("s_and_b32 s43, s42, 1")
    A("s_lshl_b32 s43, s43, 1")
    A("v_or_b32 v6, s43, v6")
    A("v_lshlrev_b32 v6, 1, v6")
    A("v_and_b32 v7, 7, v1")
    A("v_xor_b32 v6, v6, v7")
    A("v_lshl_add_u32 v5, v6, 4, v5")
    A("s_lshl_b32 s43, s41, 7")
    A("s_mul_i32 s44, s42, 73728")
    A("s_add_u32 s43, s43, s44")
    A("s_lshl_b32 s44, s42, 10")
    for j in range(18):
        A("s_mov_b32 m0, s44")
        A("s_add_u32 s45, s44, %d" % L_WU)
        A("buffer_load_dwordx4 v5, s[48:51], s43 offen lds")
        A("s_mov_b32 m0, s45")
        A("s_add_u32 s44, s44, 4096")
        A("buffer_load_dwordx4 v5, s[52:55], s43 offen lds")
        A("s_add_u32 s43, s43, %d" % (4 * 73728))
    A("v_lshrrev_b32 v6, 3, v4")
    A("v_mul_u32_u24 v7, 1152, v6")
    A("v_and_b32 v12, 7, v4")
    A("v_lshl_add_u32 v13, v12, 4, v7")
    A("s_mul_i32 s43, s41, 73728")
    A("s_add_u32 s44, s43, 36864")
    for k in range(9):
        A("buffer_load_dwordx4 %s, v13, s[56:59], s43 offen offset:%d" % (v(WD + 4 * k, 4), 128 * k))
    for k in range(9):
        A("buffer_load_dwordx4 %s, v13, s[56:59], s44 offen offset:%d" % (v(WD + 36 + 4 * k, 4), 128 * k))
    A("v_bfe_u32 v14, v6, 1, 1")
    A("v_bfe_u32 v11, v6, 3, 1")
    A("v_lshl_add_u32 v14, v11, 1, v14")
    A("v_lshlrev_b32 v14, 1, v14")
    A("v_xor_b32 v14, v14, v12")
    A("v_lshl_add_u32 v14, v14, 4, v7")
    st_(A, 1)
    A("s_barrier")
    A("s_waitcnt vmcnt(0)")
    st_(A, 4)
    A("s_branch %s" % Lj)
    A.label(Lt)
    A("s_setprio 3")
    A("s_lshl_b32 s60, s41, 2")
    A("s_add_u32 s60, s60, s42")
    A("s_sub_u32 s60, s60, 4")
    Q, WR, X = gen_ln(A)
    A("s_barrier")
    finish_tag(A)
    gen_ln_compute(A, Q, WR, X)
    srd(A, 16, PQ, S * ROWB)
    A("v_and_b32 v1, 63, v0")
    A("v_and_b32 v4, 255, v0")
    A("v_lshlrev_b32 v15, 2, v1")
    A("v_mov_b32 v14, 0")
    A("v_lshlrev_b32 v16, 6, v4")
    def key_loads():
        A("s_movk_i32 s43, %d" % F_KEYG)
        for i in range(4):
            A("buffer_load_dwordx4 %s, v16, s[36:39], s43 offen offset:%d sc1" % (v(40 + 4 * i, 4), 16 * i))
    masked_poll(A, "key", key_loads, list(range(41, 56, 2)), 4, 0)
    st_(A, 3)
    regs, sp = sort_desc(A, range(40, 56, 2), 41, SORT8)
    SK = 60
    rounds(A, regs, 29, SK)
    for i in range(8):
        A("v_writelane_b32 v30, %s, %d" % (s(SK + i), i))
    A("s_and_b32 s43, s42, 3")
    A("s_lshl_b32 s43, s43, 5")
    A("s_add_u32 s43, s43, %d" % L_CAND)
    A("v_add_u32 v16, s43, v15")
    A("v_mov_b32 v31, %s" % T)
    A("v_mov_b32 v17, %d" % L_TAG)
    A("s_mov_b64 exec, 0xff")
    A("ds_write_b32 v16, v30")
    A("ds_write_b32 v17, v31")
    A("s_mov_b64 exec, -1")
    A("s_waitcnt lgkmcnt(0)")
    A("s_barrier")
    A("v_add_u32 v16, %d, v15" % L_CAND)
    A("v_mov_b32 v20, 0")
    A("s_mov_b32 exec_hi, 0")
    A("ds_read_b32 v20, v16")
    A("s_mov_b64 exec, -1")
    A("s_waitcnt lgkmcnt(0)")
    rounds(A, [20], 29, SK)
    st_(A, 5)
    Lns = A.newlabel("nosel")
    A("s_cmp_lg_u32 s41, 0")
    A("s_cbranch_scc1 %s" % Lns)
    A("s_cmp_lg_u32 s42, 4")
    A("s_cbranch_scc1 %s" % Lns)
    for i in range(8):
        A("v_writelane_b32 v30, %s, %d" % (s(SK + i), i))
    A("v_lshlrev_b32 v16, 3, v1")
    A("s_movk_i32 s43, %d" % F_SELG)
    A("s_mov_b64 exec, 0xff")
    A("buffer_store_dwordx2 v[30:31], v16, s[36:39], s43 offen sc1")
    A("s_mov_b64 exec, -1")
    A.label(Lns)
    A("s_and_b32 s45, s42, 3")
    A("s_mov_b32 s43, s60"); A("s_mov_b32 s44, s61")
    for w in range(1, 4):
        A("s_cmp_eq_u32 s45, %d" % w)
        A("s_cselect_b32 s43, %s, s43" % s(SK + 2 * w))
        A("s_cselect_b32 s44, %s, s44" % s(SK + 2 * w + 1))
    A("v_mov_b32 v16, s43"); A("v_mov_b32 v17, s44")
    A("v_cmp_lt_u32 vcc, 31, v1")
    A.nop(2)
    A("v_cndmask_b32 v16, v16, v17, vcc")
    A("v_and_b32 v16, 0xffff, v16")
    A("v_sub_u32 v16, 2047, v16")
    A("v_and_b32 v17, 31, v1")
    A("s_movk_i32 s43, 1152")
    A("v_mul_lo_u32 v18, v16, s43")
    A("v_lshl_add_u32 v18, v17, 2, v18")
    A("v_lshlrev_b32 v19, 4, v16")
    for i in range(9):
        A("buffer_load_dword %s, v18, s[16:19], 0 offen offset:%d" % (v(20 + i), 128 * i))
    def rg_loads():
        A("s_mov_b32 s43, %d" % F_ROWG)
        A("buffer_load_dwordx4 v[32:35], v19, s[36:39], s43 offen sc1")
    masked_poll(A, "rg", rg_loads, [33, 35], 2, 0)
    A("v_lshlrev_b32 v64, 16, v32"); A("v_and_b32 v68, s40, v32")
    A("v_mov_b32 v66, v34"); A("v_mov_b32 v67, v34")
    A("v_xor_b32 v64, 0x80000000, v64"); A("v_xor_b32 v68, 0x80000000, v68")
    A("v_mov_b32 v65, v64"); A("v_mov_b32 v69, v68")
    A("v_lshrrev_b32 v38, 5, v4")
    A("v_mul_u32_u24 v38, %d, v38" % XSTR)
    A("v_lshl_add_u32 v38, v17, 2, v38")
    A("v_add_u32 v38, %d, v38" % L_X)
    st_(A, 4)
    for i0 in range(0, 9, 3):
        streams = []
        for i in range(i0, i0 + 3):
            bs = 40 + 8 * (i % 3)
            ops = norm_ops(bs, bs + 2, bs + 4, 20 + i, 64)
            ops.append("v_cvt_pk_bf16_f32 %s, %s, %s" % (v(bs + 6), v(bs + 2), v(bs + 3)))
            ops.append("ds_write_b32 v38, %s offset:%d" % (v(bs + 6), 128 * i))
            streams.append(ops)
        interleave(A, streams)
    A("s_waitcnt lgkmcnt(0)")
    A.label(Lj)
    A("v_and_b32 v2, 15, v0")
    A("v_bfe_u32 v3, v0, 4, 2")
    A("v_lshrrev_b32 v16, 2, v2")
    A("v_lshl_add_u32 v17, v3, 3, v16")
    A("v_lshlrev_b32 v17, 7, v17")
    A("v_bfe_u32 v18, v2, 3, 1")
    A("v_and_b32 v19, 1, v3")
    A("v_lshl_add_u32 v18, v19, 1, v18")
    A("s_and_b32 s43, s42, 3")
    A("v_xor_b32 v18, s43, v18")
    A("v_lshl_add_u32 v17, v18, 5, v17")
    A("v_and_b32 v19, 3, v2")
    A("v_lshl_add_u32 v17, v19, 3, v17")
    A("s_lshr_b32 s44, s42, 2")
    A("s_mul_i32 s44, s44, %d" % L_WU)
    A("v_add_u32 v17, s44, v17")
    A("v_add_u32 v18, 36864, v17")
    A("v_and_b32 v19, 7, v2")
    A("v_mul_u32_u24 v19, %d, v19" % XSTR)
    A("v_lshl_add_u32 v19, v3, 4, v19")
    A("v_add_u32 v19, %d, v19" % L_X)
    for i in range(4):
        A("v_mov_b32 %s, 0" % v(20 + i))
    A("v_mov_b32 v24, %d" % L_TAG)
    A("s_barrier")
    st_(A, 6)
    A("ds_read_b32 v26, v24")
    NS = 5
    def rd(kk):
        r = 40 + 8 * (kk % (NS + 1))
        b, ko = ("v17", kk) if kk < 9 else ("v18", kk - 9)
        A("ds_read_b128 %s, v19 offset:%d" % (v(r, 4), 64 * kk))
        A("ds_read_b64_tr_b16 %s, %s offset:%d" % (v(r + 4, 2), b, 4096 * ko))
        A("ds_read_b64_tr_b16 %s, %s offset:%d" % (v(r + 6, 2), b, 4096 * ko + 512))
    for kk in range(NS):
        rd(kk)
    for kk in range(18):
        if kk + NS < 18:
            rd(kk + NS)
        rem = min(NS, 17 - kk)
        A("s_waitcnt lgkmcnt(%d)" % (3 * rem))
        r = 40 + 8 * (kk % (NS + 1))
        A("v_mfma_f32_16x16x32_bf16 v[20:23], %s, %s, v[20:23]" % (v(r + 4, 4), v(r, 4)))
    A("v_readfirstlane_b32 s%d, v26" % TAG)
    A("v_lshlrev_b32 v25, 4, v1")
    A("s_and_b32 s43, s42, 3")
    A("s_lshl_b32 s43, s43, 10")
    A("s_add_u32 s43, s43, %d" % L_U)
    A("v_add_u32 v25, s43, v25")
    A("v_mul_u32_u24 v30, %d, v2" % HSTR)
    A("v_lshl_add_u32 v30, v3, 3, v30")
    A("s_and_b32 s43, s42, 3")
    A("s_lshl_b32 s43, s43, 5")
    A("s_add_u32 s43, s43, %d" % L_HS)
    A("v_add_u32 v30, s43, v30")
    A("v_add_u32 v31, 36864, v14")
    round_pair(A, 20, 21, 24, 40); round_pair(A, 22, 23, 26, 40)
    Lg = A.newlabel("gatew")
    A("s_cmp_lt_u32 s42, 4")
    A("s_cbranch_scc1 %s" % Lg)
    A("ds_write_b128 v25, v[20:23]")
    A("s_waitcnt lgkmcnt(0)")
    A.label(Lg)
    A("s_barrier")
    st_(A, 7)
    Lg2 = A.newlabel("gate2")
    A("s_cmp_ge_u32 s42, 4")
    A("s_cbranch_scc1 %s" % Lg2)
    A("ds_read_b128 v[24:27], v25")
    for k in range(9):
        A("ds_write_b128 v14, %s offset:%d" % (v(WD + 4 * k, 4), 128 * k))
    for i in range(4):
        A("v_mul_f32 %s, 0xbfb8aa3b, %s" % (v(32 + i), v(20 + i)))
    for i in range(4):
        A("v_exp_f32 %s, %s" % (v(32 + i), v(32 + i)))
    for k in range(9):
        A("ds_write_b128 v31, %s offset:%d" % (v(WD + 36 + 4 * k, 4), 128 * k))
    for i in range(4):
        A("v_add_f32 %s, 1.0, %s" % (v(32 + i), v(32 + i)))
    for i in range(4):
        A("v_rcp_f32 %s, %s" % (v(32 + i), v(32 + i)))
    A.nop(1)
    for i in range(4):
        A("v_mul_f32 %s, %s, %s" % (v(20 + i), v(20 + i), v(32 + i)))
    round_pair(A, 20, 21, 28, 40); round_pair(A, 22, 23, 29, 40)
    A("s_waitcnt lgkmcnt(15)")
    for i in range(4):
        A("v_mul_f32 %s, %s, %s" % (v(20 + i), v(20 + i), v(24 + i)))
    A.nop(1)
    A("v_cvt_pk_bf16_f32 v28, v20, v21")
    A("v_cvt_pk_bf16_f32 v29, v22, v23")
    A("v_cmp_gt_u32 vcc, 8, v2")
    A("s_and_saveexec_b64 s[44:45], vcc")
    A("ds_write_b64 v30, v[28:29]")
    A("s_mov_b64 exec, s[44:45]")
    A.label(Lg2)
    A("v_lshrrev_b32 v16, 2, v2")
    A("v_lshl_add_u32 v17, v3, 3, v16")
    A("v_mul_u32_u24 v17, 1152, v17")
    A("v_bfe_u32 v18, v2, 3, 1")
    A("v_and_b32 v19, 1, v3")
    A("v_lshl_add_u32 v18, v19, 1, v18")
    A("s_and_b32 s43, s42, 3")
    A("v_xor_b32 v18, s43, v18")
    A("v_lshl_add_u32 v17, v18, 5, v17")
    A("v_and_b32 v19, 3, v2")
    A("v_lshl_add_u32 v17, v19, 3, v17")
    A("s_lshr_b32 s44, s42, 2")
    A("s_lshl_b32 s44, s44, 7")
    A("v_add_u32 v17, s44, v17")
    A("v_add_u32 v18, %d, v17" % (32 * 1152))
    A("v_and_b32 v19, 7, v2")
    A("v_mul_u32_u24 v19, %d, v19" % HSTR)
    A("v_lshl_add_u32 v19, v3, 4, v19")
    A("v_add_u32 v19, %d, v19" % L_HS)
    A("v_mul_u32_u24 v16, 4608, v2")
    A("v_lshl_add_u32 v16, v3, 5, v16")
    A("s_mul_i32 s43, s41, 36864")
    A("s_lshl_b32 s44, s42, 7")
    A("s_add_u32 s43, s43, s44")
    A("s_add_u32 s43, s43, %d" % F_PARTG)
    A("v_cmp_gt_u32 vcc, 8, v2")
    A("s_mov_b64 s[44:45], vcc")
    for k in range(5):
        o = 100 + 8 * k
        for i in range(4):
            A("v_mov_b32 %s, %s" % (v(o + 2 * i + 1), T))
    A("s_waitcnt lgkmcnt(0)")
    A("s_barrier")
    st_(A, 8)
    A("ds_read_b128 v[32:35], v19")
    A("ds_read_b128 v[36:39], v19 offset:64")
    for k in range(5):
        r = 40 + 8 * k
        A("ds_read_b64_tr_b16 %s, v17 offset:%d" % (v(r, 2), 256 * k))
        A("ds_read_b64_tr_b16 %s, v17 offset:%d" % (v(r + 2, 2), 256 * k + 4 * 1152))
        A("ds_read_b64_tr_b16 %s, v18 offset:%d" % (v(r + 4, 2), 256 * k))
        A("ds_read_b64_tr_b16 %s, v18 offset:%d" % (v(r + 6, 2), 256 * k + 4 * 1152))
    for k in range(5):
        r = 40 + 8 * k
        ac = 80 + 4 * k
        A("s_waitcnt lgkmcnt(%d)" % min(15, 4 * (4 - k)))
        A("v_mfma_f32_16x16x32_bf16 %s, %s, v[32:35], 0" % (v(ac, 4), v(r, 4)))
        A("v_mfma_f32_16x16x32_bf16 %s, %s, v[36:39], %s" % (v(ac, 4), v(r + 4, 4), v(ac, 4)))
    A("s_mov_b64 exec, s[44:45]")
    A.nop(4)
    Lk4 = A.newlabel("nok4")
    for k in range(5):
        ac = 80 + 4 * k
        o = 100 + 8 * k
        for i in range(4):
            A("v_mov_b32 %s, %s" % (v(o + 2 * i), v(ac + i)))
        if k == 4:
            A("s_cmp_ge_u32 s42, 4")
            A("s_cbranch_scc1 %s" % Lk4)
            A("s_add_u32 s43, s43, 4096")
            A("buffer_store_dwordx4 %s, v16, s[36:39], s43 offen sc1" % v(o, 4))
            A("buffer_store_dwordx4 %s, v16, s[36:39], s43 offen offset:16 sc1" % v(o + 4, 4))
        else:
            A("buffer_store_dwordx4 %s, v16, s[36:39], s43 offen offset:%d sc1" % (v(o, 4), 1024 * k))
            A("buffer_store_dwordx4 %s, v16, s[36:39], s43 offen offset:%d sc1" % (v(o + 4, 4), 1024 * k + 16))
    A.label(Lk4)
    A("s_mov_b64 exec, -1")
    st_(A, 9)
    Le = A.newlabel("noep")
    A("s_cmp_lg_u32 s41, 0")
    A("s_cbranch_scc1 %s" % Le)
    A("s_cmp_lg_u32 s42, 4")
    A("s_cbranch_scc1 %s" % Le)
    A("v_lshlrev_b32 v16, 2, v1")
    A("v_min_u32 v17, 15, v1")
    A("v_lshlrev_b32 v17, 2, v17")
    Lp = A.newlabel("alpoll"); Ld = A.newlabel("alok")
    poll_head(A)
    A.label(Lp)
    A("s_movk_i32 s43, %d" % F_ALIVE)
    A("buffer_load_dword v20, v16, s[36:39], s43 offen sc1")
    A("buffer_load_dword v21, v16, s[36:39], s43 offen offset:256 sc1")
    A("buffer_load_dword v22, v17, s[36:39], s43 offen offset:512 sc1")
    A("s_waitcnt vmcnt(0)")
    A("v_cmp_eq_u32 vcc, %s, v20" % T)
    A("v_cmp_eq_u32 s[54:55], %s, v21" % T)
    A("s_and_b64 vcc, vcc, s[54:55]")
    A("v_cmp_eq_u32 s[54:55], %s, v22" % T)
    A("s_and_b64 vcc, vcc, s[54:55]")
    A("s_cmp_eq_u64 vcc, -1")
    A("s_cbranch_scc1 %s" % Ld)
    poll_tail(A, Lp, Ld, sleep=8)
    A.label(Ld)
    A("v_mov_b32 v20, %s" % T)
    A("v_mov_b32 v21, %d" % F_EPOCH)
    A("s_mov_b64 exec, 1")
    A("buffer_store_dword v20, v21, s[36:39], 0 offen sc1")
    A("s_mov_b64 exec, -1")
    A.label(Le)
    A("s_endpgm")

def gen_spare_wg(A):
    A("s_lshl_b32 s60, s41, 3")
    A("s_add_u32 s60, s60, s42")
    A("s_add_u32 s60, s60, 288")
    Lx = A.newlabel("spx")
    A("s_cmp_ge_u32 s60, 512")
    A("s_cbranch_scc1 %s" % Lx)
    Q, WR, X = gen_ln(A)
    finish_tag(A)
    gen_ln_compute(A, Q, WR, X)
    A.label(Lx)
    A("s_endpgm")

def gen_kernel(A, name):
    kernel_header(A, name)
    Ldone = A.newlabel("done"); Lmoe = A.newlabel("moe"); Lsp = A.newlabel("spare")
    A("s_cmp_ge_u32 s2, 256")
    A("s_cbranch_scc1 %s" % Ldone)
    A("s_load_dwordx4 s[68:71], s[0:1], %d" % KA_DBG)
    A("s_load_dwordx16 s[72:87], s[0:1], 0")
    A("s_load_dwordx8 s[88:95], s[0:1], %d" % KA_WG)
    A("v_lshrrev_b32 v1, 6, v0")
    A("s_and_b32 s30, s2, 7")
    A("s_lshr_b32 s31, s2, 3")
    A("v_readfirstlane_b32 s42, v1")
    A("s_mov_b32 s40, 0xffff0000")
    A("s_waitcnt lgkmcnt(0)")
    A("s_load_dword s%d, s[%d:%d], %d" % (TAG, PWS, PWS + 1, F_EPOCH))
    srd(A, 36, PWS, WS_SIZE)
    A("s_lshl_b32 s3, s2, 3")
    A("s_add_u32 s3, s3, s42")
    st_(A, 0)
    A("s_cmp_ge_u32 s31, 27")
    A("s_cbranch_scc1 %s" % Lsp)
    A("s_cmp_ge_u32 s31, 18")
    A("s_cbranch_scc1 %s" % Lmoe)
    A("s_mul_i32 s41, s30, 18")
    A("s_add_u32 s41, s41, s31")
    gen_conv_wg(A)
    A.label(Lmoe)
    A("s_mul_i32 s41, s30, 9")
    A("s_add_u32 s41, s41, s31")
    A("s_sub_u32 s41, s41, 18")
    gen_moe_wg(A)
    A.label(Lsp)
    A("s_mul_i32 s41, s30, 5")
    A("s_add_u32 s41, s41, s31")
    A("s_sub_u32 s41, s41, 27")
    gen_spare_wg(A)
    A.label(Ldone)
    A("s_endpgm")
    return kernel_desc(name, 256, 102, 256)
```

```python
from common import *
import common
from conv2 import WS_SELG, WS_PARTG, WS_EPOCH, POLL_MAX

L_WG, L_WU, L_X, L_HS, L_U, L_CAND = 0, 73728, 147456, 156800, 157952, 162048
XSTR, HSTR = 1168, 144

def wave_max_u32(A, x):
    for ctl, mask in (("row_shr:1", "0xf"), ("row_shr:2", "0xf"), ("row_shr:4", "0xf"), ("row_shr:8", "0xf"),
                      ("row_bcast:15", "0xa"), ("row_bcast:31", "0xc")):
        A.nop(2)
        A("v_max_u32_dpp %s, %s, %s %s row_mask:%s bank_mask:0xf" % (v(x), v(x), v(x), ctl, mask))

def ce(A, a_, b_, t):
    A("v_max_u32 %s, %s, %s" % (v(t), v(a_), v(b_)))
    A("v_min_u32 %s, %s, %s" % (v(b_), v(a_), v(b_)))
    A("v_mov_b32 %s, %s" % (v(a_), v(t)))

def top8_rounds(A, K, nk, tmp, SK):
    for r in range(8):
        A("v_mov_b32 %s, %s" % (v(tmp), v(K)))
        wave_max_u32(A, tmp)
        A.nop(2)
        A("v_readlane_b32 %s, %s, 63" % (s(SK + r), v(tmp)))
        if r == 7 or nk == 0:
            break
        A.nop(2)
        A("v_cmp_eq_u32 vcc, %s, %s" % (s(SK + r), v(K)))
        A.nop(2)
        for i in range(nk - 1):
            A("v_cndmask_b32 %s, %s, %s, vcc" % (v(K + i), v(K + i), v(K + i + 1)))
        A("v_cndmask_b32 %s, %s, 0, vcc" % (v(K + nk - 1), v(K + nk - 1))) if False else A("v_cndmask_b32_e64 %s, %s, 0, vcc" % (v(K + nk - 1), v(K + nk - 1)))

def gen_moe2(A, fused=False):
    srd(A, 36, 8, WS_SIZE)
    srd(A, 16, 10, S * ROWB)
    srd(A, 48, 24, D * F * 2)
    srd(A, 52, 26, D * F * 2)
    srd(A, 56, 28, D * F * 2)
    A("s_mov_b32 s40, 0xffff0000")
    A("s_lshl_b32 s70, s2, 3")
    A("s_add_u32 s70, s70, s42")
    stamp(A, 0, 36, 70)
    A("v_and_b32 v1, 63, v0")
    A("v_and_b32 v2, 15, v0")
    A("v_bfe_u32 v3, v0, 4, 2")
    A("v_lshlrev_b32 v4, 4, v0")
    A("s_movk_i32 s43, %d" % WS_RKEY)
    A("buffer_load_dwordx4 v[8:11], v4, s[36:39], s43 offen")
    A("v_lshrrev_b32 v5, 3, v1")
    A("v_mul_u32_u24 v5, 9216, v5")
    A("v_bfe_u32 v6, v1, 4, 1")
    A("s_and_b32 s43, s42, 1")
    A("s_lshl_b32 s43, s43, 1")
    A("v_or_b32 v6, s43, v6")
    A("v_lshlrev_b32 v6, 1, v6")
    A("v_and_b32 v7, 7, v1")
    A("v_xor_b32 v6, v6, v7")
    A("v_lshl_add_u32 v5, v6, 4, v5")
    A("s_lshl_b32 s43, s41, 7")
    A("s_mul_i32 s44, s42, 73728")
    A("s_add_u32 s43, s43, s44")
    A("s_lshl_b32 s44, s42, 10")
    for j in range(9):
        A("s_mov_b32 m0, s44")
        A("s_add_u32 s45, s44, %d" % L_WU)
        A("buffer_load_dwordx4 v5, s[48:51], s43 offen lds")
        A("s_mov_b32 m0, s45")
        A("s_add_u32 s44, s44, 8192")
        A("buffer_load_dwordx4 v5, s[52:55], s43 offen lds")
        A("s_add_u32 s43, s43, %d" % (8 * 73728))
    A("v_lshrrev_b32 v6, 3, v0")
    A("v_mul_u32_u24 v7, 1152, v6")
    A("v_and_b32 v12, 7, v0")
    A("v_lshl_add_u32 v13, v12, 4, v7")
    A("s_mul_i32 s43, s41, 73728")
    WD = 200
    for k in range(9):
        A("buffer_load_dwordx4 %s, v13, s[56:59], s43 offen offset:%d" % (v(WD + 4 * k, 4), 128 * k))
    A("v_bfe_u32 v14, v6, 1, 1")
    A("v_bfe_u32 v15, v6, 3, 1")
    A("v_lshl_add_u32 v14, v15, 1, v14")
    A("v_lshlrev_b32 v14, 1, v14")
    A("v_xor_b32 v14, v14, v12")
    A("v_lshl_add_u32 v14, v14, 4, v7")
    stamp(A, 1, 36, 70)
    A("s_waitcnt vmcnt(%d)" % (27 + (1 if common.STAMPS else 0)))
    stamp(A, 2, 36, 70)
    ce(A, 8, 9, 12); ce(A, 10, 11, 12); ce(A, 8, 10, 12); ce(A, 9, 11, 12); ce(A, 9, 10, 12)
    SK = 60
    top8_rounds(A, 8, 4, 12, SK)
    for i in range(8):
        A("v_writelane_b32 v12, %s, %d" % (s(SK + i), i))
    A("v_lshlrev_b32 v15, 2, v1")
    A("s_lshl_b32 s43, s42, 5")
    A("s_add_u32 s43, s43, %d" % L_CAND)
    A("v_add_u32 v16, s43, v15")
    A("s_mov_b64 exec, 0xff")
    A("ds_write_b32 v16, v12")
    A("s_mov_b64 exec, -1")
    A("s_waitcnt lgkmcnt(0)")
    A("s_barrier")
    A("v_add_u32 v16, %d, v15" % L_CAND)
    A("ds_read_b32 v8, v16")
    A("s_waitcnt lgkmcnt(0)")
    top8_rounds(A, 8, 1, 12, SK)
    stamp(A, 3, 36, 70)
    Lns = A.newlabel("nosel")
    A("s_or_b32 s43, s41, s42")
    A("s_cmp_lg_u32 s43, 0")
    A("s_cbranch_scc1 %s" % Lns)
    for i in range(8):
        A("v_writelane_b32 v12, %s, %d" % (s(SK + i), i))
    A("v_mov_b32 v13, s46")
    A("v_lshlrev_b32 v16, 3, v1")
    A("s_movk_i32 s43, %d" % WS_SELG)
    A("s_mov_b64 exec, 0xff")
    A("buffer_store_dwordx2 v[12:13], v16, s[36:39], s43 offen sc1")
    A("s_mov_b64 exec, -1")
    A.label(Lns)
    A("s_mov_b32 s43, s60")
    for w in range(1, 8):
        A("s_cmp_eq_u32 s42, %d" % w)
        A("s_cselect_b32 s43, %s, s43" % s(SK + w))
    A("s_and_b32 s43, s43, 0xffff")
    A("s_sub_u32 s43, 2047, s43")
    A("s_mul_i32 s44, s43, 1152")
    A("s_lshl_b32 s45, s43, 3")
    A("s_add_u32 s45, s45, %d" % WS_STATS)
    for i in range(5):
        A("buffer_load_dword %s, v15, s[16:19], s44 offen offset:%d" % (v(20 + i), 256 * i))
    A("v_mov_b32 v16, 0")
    A("buffer_load_dwordx2 v[26:27], v16, s[36:39], s45 offen")
    A("s_waitcnt vmcnt(0)")
    stamp(A, 4, 36, 70)
    A("v_lshlrev_b32 v28, 16, v26")
    A("v_sub_f32 v28, 0, v28"); A("v_mov_b32 v29, v28")
    A("v_and_b32 v30, s40, v26")
    A("v_sub_f32 v30, 0, v30"); A("v_mov_b32 v31, v30")
    A("v_mov_b32 v32, v27"); A("v_mov_b32 v33, v27")
    A("s_mul_i32 s43, s42, %d" % XSTR)
    A("s_add_u32 s43, s43, %d" % L_X)
    A("v_add_u32 v16, s43, v15")
    for i in range(5):
        unpack_pair(A, 34, 35, 20 + i, 40)
        A("v_pk_add_f32 v[34:35], v[34:35], v[28:29]")
        round_pair(A, 34, 35, 38, 40)
        A("v_pk_mul_f32 v[36:37], v[34:35], v[32:33]")
        A("v_pk_fma_f32 v[34:35], v[36:37], v[30:31], v[34:35]")
        A("v_pk_fma_f32 v[36:37], v[34:35], v[32:33], v[36:37]")
        A("v_cvt_pk_bf16_f32 v38, v36, v37")
        if i == 4:
            A("s_mov_b32 exec_lo, -1"); A("s_mov_b32 exec_hi, 0")
        A("ds_write_b32 v16, v38 offset:%d" % (256 * i))
    A("s_mov_b64 exec, -1")
    A("s_waitcnt lgkmcnt(0)")
    A("s_barrier")
    stamp(A, 5, 36, 70)
    A("v_lshrrev_b32 v16, 2, v2")
    A("v_lshl_add_u32 v17, v3, 3, v16")
    A("v_lshlrev_b32 v17, 7, v17")
    A("v_bfe_u32 v18, v2, 3, 1")
    A("v_and_b32 v19, 1, v3")
    A("v_lshl_add_u32 v18, v19, 1, v18")
    A("s_and_b32 s43, s42, 3")
    A("v_xor_b32 v18, s43, v18")
    A("v_lshl_add_u32 v17, v18, 5, v17")
    A("v_and_b32 v19, 3, v2")
    A("v_lshl_add_u32 v17, v19, 3, v17")
    A("s_lshr_b32 s44, s42, 2")
    A("s_mul_i32 s44, s44, %d" % L_WU)
    A("v_add_u32 v17, s44, v17")
    A("v_add_u32 v18, 36864, v17")
    A("v_and_b32 v19, 7, v2")
    A("v_mul_u32_u24 v19, %d, v19" % XSTR)
    A("v_lshl_add_u32 v19, v3, 4, v19")
    A("v_add_u32 v19, %d, v19" % L_X)
    for i in range(4):
        A("v_mov_b32 %s, 0" % v(20 + i))
    NS = 6
    def rd(kk):
        r = 40 + 8 * (kk % NS)
        b, ko = ("v17", kk) if kk < 9 else ("v18", kk - 9)
        A("ds_read_b128 %s, v19 offset:%d" % (v(r, 4), 64 * kk))
        A("ds_read_b64_tr_b16 %s, %s offset:%d" % (v(r + 4, 2), b, 4096 * ko))
        A("ds_read_b64_tr_b16 %s, %s offset:%d" % (v(r + 6, 2), b, 4096 * ko + 512))
    for kk in range(NS - 1):
        rd(kk)
    for kk in range(18):
        if kk + NS - 1 < 18:
            rd(kk + NS - 1)
        rem = min(NS - 1, 17 - kk)
        A("s_waitcnt lgkmcnt(%d)" % (3 * rem))
        r = 40 + 8 * (kk % NS)
        A("v_mfma_f32_16x16x32_bf16 v[20:23], %s, %s, v[20:23]" % (v(r + 4, 4), v(r, 4)))
    A.nop(10)
    round_pair(A, 20, 21, 24, 40); round_pair(A, 22, 23, 24, 40)
    A("v_lshlrev_b32 v25, 4, v1")
    A("s_and_b32 s43, s42, 3")
    A("s_lshl_b32 s43, s43, 10")
    A("s_add_u32 s43, s43, %d" % L_U)
    A("v_add_u32 v25, s43, v25")
    Lg = A.newlabel("gatew")
    A("s_cmp_lt_u32 s42, 4")
    A("s_cbranch_scc1 %s" % Lg)
    A("ds_write_b128 v25, v[20:23]")
    A("s_waitcnt lgkmcnt(0)")
    A.label(Lg)
    A("s_barrier")
    stamp(A, 6, 36, 70)
    for k in range(9):
        A("ds_write_b128 v14, %s offset:%d" % (v(WD + 4 * k, 4), 128 * k))
    Lg2 = A.newlabel("gate2")
    A("s_cmp_ge_u32 s42, 4")
    A("s_cbranch_scc1 %s" % Lg2)
    A("ds_read_b128 v[24:27], v25")
    for i in range(4):
        A("v_mul_f32 %s, 0xbfb8aa3b, %s" % (v(28 + i), v(20 + i)))
    for i in range(4):
        A("v_exp_f32 %s, %s" % (v(28 + i), v(28 + i)))
    A.nop(1)
    for i in range(4):
        A("v_add_f32 %s, 1.0, %s" % (v(28 + i), v(28 + i)))
    for i in range(4):
        A("v_rcp_f32 %s, %s" % (v(28 + i), v(28 + i)))
    A.nop(1)
    for i in range(4):
        A("v_mul_f32 %s, %s, %s" % (v(20 + i), v(20 + i), v(28 + i)))
    round_pair(A, 20, 21, 28, 40); round_pair(A, 22, 23, 28, 40)
    A("s_waitcnt lgkmcnt(0)")
    for i in range(4):
        A("v_mul_f32 %s, %s, %s" % (v(20 + i), v(20 + i), v(24 + i)))
    A("v_cvt_pk_bf16_f32 v28, v20, v21")
    A("v_cvt_pk_bf16_f32 v29, v22, v23")
    A("v_mul_u32_u24 v30, %d, v2" % HSTR)
    A("v_lshl_add_u32 v30, v3, 3, v30")
    A("s_lshl_b32 s43, s42, 5")
    A("s_add_u32 s43, s43, %d" % L_HS)
    A("v_add_u32 v30, s43, v30")
    A("v_cmp_gt_u32 vcc, 8, v2")
    A("s_and_saveexec_b64 s[44:45], vcc")
    A("ds_write_b64 v30, v[28:29]")
    A("s_mov_b64 exec, s[44:45]")
    A.label(Lg2)
    A("s_waitcnt lgkmcnt(0)")
    A("s_barrier")
    stamp(A, 7, 36, 70)
    A("v_lshrrev_b32 v16, 2, v2")
    A("v_lshl_add_u32 v17, v3, 3, v16")
    A("v_mul_u32_u24 v17, 1152, v17")
    A("v_bfe_u32 v18, v2, 3, 1")
    A("v_and_b32 v19, 1, v3")
    A("v_lshl_add_u32 v18, v19, 1, v18")
    A("s_and_b32 s43, s42, 3")
    A("v_xor_b32 v18, s43, v18")
    A("v_lshl_add_u32 v17, v18, 5, v17")
    A("v_and_b32 v19, 3, v2")
    A("v_lshl_add_u32 v17, v19, 3, v17")
    A("s_lshr_b32 s44, s42, 2")
    A("s_lshl_b32 s44, s44, 7")
    A("v_add_u32 v17, s44, v17")
    A("v_add_u32 v18, %d, v17" % (32 * 1152))
    A("v_and_b32 v19, 7, v2")
    A("v_mul_u32_u24 v19, %d, v19" % HSTR)
    A("v_lshl_add_u32 v19, v3, 4, v19")
    A("v_add_u32 v19, %d, v19" % L_HS)
    A("ds_read_b128 v[32:35], v19")
    A("ds_read_b128 v[36:39], v19 offset:64")
    for k in range(5):
        r = 40 + 8 * k
        A("ds_read_b64_tr_b16 %s, v17 offset:%d" % (v(r, 2), 256 * k))
        A("ds_read_b64_tr_b16 %s, v17 offset:%d" % (v(r + 2, 2), 256 * k + 4 * 1152))
        A("ds_read_b64_tr_b16 %s, v18 offset:%d" % (v(r + 4, 2), 256 * k))
        A("ds_read_b64_tr_b16 %s, v18 offset:%d" % (v(r + 6, 2), 256 * k + 4 * 1152))
    A("v_mul_u32_u24 v16, 4608, v2")
    A("v_lshl_add_u32 v16, v3, 5, v16")
    A("s_mul_i32 s43, s41, 36864")
    A("s_lshl_b32 s44, s42, 7")
    A("s_add_u32 s43, s43, s44")
    A("s_add_u32 s43, s43, %d" % WS_PARTG)
    A("v_cmp_gt_u32 vcc, 8, v2")
    A("s_mov_b64 s[44:45], vcc")
    for k in range(5):
        r = 40 + 8 * k
        ac = 80 + 4 * k
        A("s_waitcnt lgkmcnt(%d)" % min(15, 4 * (4 - k)))
        A("v_mfma_f32_16x16x32_bf16 %s, %s, v[32:35], 0" % (v(ac, 4), v(r, 4)))
        A("v_mfma_f32_16x16x32_bf16 %s, %s, v[36:39], %s" % (v(ac, 4), v(r + 4, 4), v(ac, 4)))
    A.nop(8)
    for k in range(5):
        ac = 80 + 4 * k
        o = 100 + 8 * k
        for i in range(4):
            A("v_mov_b32 %s, %s" % (v(o + 2 * i), v(ac + i)))
            A("v_mov_b32 %s, s46" % v(o + 2 * i + 1))
    A("s_mov_b64 exec, s[44:45]")
    Lk4 = A.newlabel("nok4")
    for k in range(5):
        o = 100 + 8 * k
        if k == 4:
            A("s_cmp_ge_u32 s42, 4")
            A("s_cbranch_scc1 %s" % Lk4)
            A("s_add_u32 s43, s43, 4096")
            A("buffer_store_dwordx4 %s, v16, s[36:39], s43 offen sc1" % v(o, 4))
            A("buffer_store_dwordx4 %s, v16, s[36:39], s43 offen offset:16 sc1" % v(o + 4, 4))
        else:
            A("buffer_store_dwordx4 %s, v16, s[36:39], s43 offen offset:%d sc1" % (v(o, 4), 1024 * k))
            A("buffer_store_dwordx4 %s, v16, s[36:39], s43 offen offset:%d sc1" % (v(o + 4, 4), 1024 * k + 16))
    A.label(Lk4)
    A("s_mov_b64 exec, -1")
    if common.STAMPS:
        A("s_waitcnt vmcnt(0)")
    stamp(A, 8, 36, 70)
    A("s_endpgm")
```

```python
from common import *
import common
from conv2 import WS_SELG, WS_PARTG, WS_EPOCH, POLL_MAX
from moe2 import wave_max_u32, L_WG, L_WU, L_X, L_HS, L_U, L_CAND, XSTR, HSTR

SORT8 = [(0,1),(2,3),(4,5),(6,7),(0,2),(1,3),(4,6),(5,7),(1,2),(5,6),(0,4),(3,7),(1,5),(2,6),(1,4),(3,6),(2,4),(3,5),(3,4)]

def sort_desc(A, regs, spare, net):
    regs = list(regs)
    for a_, b_ in net:
        A("v_max_u32 %s, %s, %s" % (v(spare), v(regs[a_]), v(regs[b_])))
        A("v_min_u32 %s, %s, %s" % (v(regs[b_]), v(regs[a_]), v(regs[b_])))
        regs[a_], spare = spare, regs[a_]
    return regs, spare

def rounds(A, regs, tmp, SK):
    for r in range(8):
        A("v_mov_b32 %s, %s" % (v(tmp), v(regs[0])))
        wave_max_u32(A, tmp)
        A.nop(1)
        A("v_readlane_b32 %s, %s, 63" % (s(SK + r), v(tmp)))
        if r == 7:
            break
        A.nop(2)
        A("v_cmp_eq_u32 vcc, %s, %s" % (s(SK + r), v(regs[0])))
        A.nop(2)
        nk = len(regs)
        for i in range(min(nk - 1, 7 - r)):
            A("v_cndmask_b32 %s, %s, %s, vcc" % (v(regs[i]), v(regs[i]), v(regs[i + 1])))
        if nk == 1:
            A("v_cndmask_b32_e64 %s, %s, 0, vcc" % (v(regs[0]), v(regs[0])))

def gen_moe3(A):
    srd(A, 36, 8, WS_SIZE)
    srd(A, 16, 10, S * ROWB)
    srd(A, 48, 24, D * F * 2)
    srd(A, 52, 26, D * F * 2)
    srd(A, 56, 28, D * F * 2)
    A("s_mov_b32 s40, 0xffff0000")
    A("s_lshl_b32 s70, s2, 3")
    A("s_add_u32 s70, s70, s42")
    stamp(A, 0, 36, 70)
    A("v_and_b32 v1, 63, v0")
    A("v_and_b32 v2, 15, v0")
    A("v_bfe_u32 v3, v0, 4, 2")
    A("v_lshlrev_b32 v15, 2, v1")
    WD = 160
    A("v_and_b32 v4, 255, v0")
    A("v_lshrrev_b32 v6, 3, v4")
    A("v_mul_u32_u24 v7, 1152, v6")
    A("v_and_b32 v12, 7, v4")
    A("v_lshl_add_u32 v13, v12, 4, v7")
    A("v_bfe_u32 v14, v6, 1, 1")
    A("v_bfe_u32 v11, v6, 3, 1")
    A("v_lshl_add_u32 v14, v11, 1, v14")
    A("v_lshlrev_b32 v14, 1, v14")
    A("v_xor_b32 v14, v14, v12")
    A("v_lshl_add_u32 v14, v14, 4, v7")
    Lt = A.newlabel("twave"); Lj = A.newlabel("join")
    A("s_cmp_ge_u32 s42, 4")
    A("s_cbranch_scc1 %s" % Lt)
    A("v_lshrrev_b32 v5, 3, v1")
    A("v_mul_u32_u24 v5, 9216, v5")
    A("v_bfe_u32 v6, v1, 4, 1")
    A("s_and_b32 s43, s42, 1")
    A("s_lshl_b32 s43, s43, 1")
    A("v_or_b32 v6, s43, v6")
    A("v_lshlrev_b32 v6, 1, v6")
    A("v_and_b32 v7, 7, v1")
    A("v_xor_b32 v6, v6, v7")
    A("v_lshl_add_u32 v5, v6, 4, v5")
    A("s_lshl_b32 s43, s41, 7")
    A("s_mul_i32 s44, s42, 73728")
    A("s_add_u32 s43, s43, s44")
    A("s_lshl_b32 s44, s42, 10")
    for j in range(18):
        A("s_mov_b32 m0, s44")
        A("s_add_u32 s45, s44, %d" % L_WU)
        A("buffer_load_dwordx4 v5, s[48:51], s43 offen lds")
        A("s_mov_b32 m0, s45")
        A("s_add_u32 s44, s44, 4096")
        A("buffer_load_dwordx4 v5, s[52:55], s43 offen lds")
        A("s_add_u32 s43, s43, %d" % (4 * 73728))
    A("s_mul_i32 s43, s41, 73728")
    A("s_add_u32 s44, s43, 36864")
    for k in range(9):
        A("buffer_load_dwordx4 %s, v13, s[56:59], s43 offen offset:%d" % (v(WD + 4 * k, 4), 128 * k))
    for k in range(9):
        A("buffer_load_dwordx4 %s, v13, s[56:59], s44 offen offset:%d" % (v(WD + 36 + 4 * k, 4), 128 * k))
    stamp(A, 1, 36, 70)
    A("s_barrier")
    A("s_waitcnt vmcnt(0)")
    stamp(A, 4, 36, 70)
    A("s_branch %s" % Lj)
    A.label(Lt)
    A("v_lshlrev_b32 v16, 5, v4")
    A("s_movk_i32 s43, %d" % WS_RKEY)
    A("buffer_load_dwordx4 v[20:23], v16, s[36:39], s43 offen")
    A("buffer_load_dwordx4 v[24:27], v16, s[36:39], s43 offen offset:16")
    A("s_waitcnt vmcnt(0)")
    stamp(A, 1, 36, 70)
    regs, sp = sort_desc(A, range(20, 28), 28, SORT8)
    SK = 60
    rounds(A, regs, 29, SK)
    for i in range(8):
        A("v_writelane_b32 v30, %s, %d" % (s(SK + i), i))
    A("s_and_b32 s43, s42, 3")
    A("s_lshl_b32 s43, s43, 5")
    A("s_add_u32 s43, s43, %d" % L_CAND)
    A("v_add_u32 v16, s43, v15")
    A("s_mov_b64 exec, 0xff")
    A("ds_write_b32 v16, v30")
    A("s_mov_b64 exec, -1")
    A("s_waitcnt lgkmcnt(0)")
    A("s_barrier")
    stamp(A, 2, 36, 70)
    A("v_add_u32 v16, %d, v15" % L_CAND)
    A("v_mov_b32 v20, 0")
    A("s_mov_b32 exec_hi, 0")
    A("ds_read_b32 v20, v16")
    A("s_mov_b64 exec, -1")
    A("s_waitcnt lgkmcnt(0)")
    rounds(A, [20], 29, SK)
    stamp(A, 3, 36, 70)
    Lns = A.newlabel("nosel")
    A("s_cmp_lg_u32 s41, 0")
    A("s_cbranch_scc1 %s" % Lns)
    A("s_cmp_lg_u32 s42, 4")
    A("s_cbranch_scc1 %s" % Lns)
    for i in range(8):
        A("v_writelane_b32 v30, %s, %d" % (s(SK + i), i))
    A("v_mov_b32 v31, s46")
    A("v_lshlrev_b32 v16, 3, v1")
    A("s_movk_i32 s43, %d" % WS_SELG)
    A("s_mov_b64 exec, 0xff")
    A("buffer_store_dwordx2 v[30:31], v16, s[36:39], s43 offen sc1")
    A("s_mov_b64 exec, -1")
    A.label(Lns)
    A("s_and_b32 s45, s42, 3")
    A("s_mov_b32 s43, s60"); A("s_mov_b32 s44, s61")
    for w in range(1, 4):
        A("s_cmp_eq_u32 s45, %d" % w)
        A("s_cselect_b32 s43, %s, s43" % s(SK + 2 * w))
        A("s_cselect_b32 s44, %s, s44" % s(SK + 2 * w + 1))
    A("v_mov_b32 v16, s43"); A("v_mov_b32 v17, s44")
    A("v_cmp_lt_u32 vcc, 31, v1")
    A.nop(2)
    A("v_cndmask_b32 v16, v16, v17, vcc")
    A("v_and_b32 v16, 0xffff, v16")
    A("v_sub_u32 v16, 2047, v16")
    A("v_and_b32 v17, 31, v1")
    A("s_movk_i32 s43, 1152")
    A("v_mul_lo_u32 v18, v16, s43")
    A("v_lshl_add_u32 v18, v17, 2, v18")
    A("v_lshlrev_b32 v19, 5, v16")
    for i in range(9):
        A("buffer_load_dword %s, v18, s[16:19], 0 offen offset:%d" % (v(20 + i), 128 * i))
    A("buffer_load_dwordx4 v[32:35], v19, s[36:39], 0 offen offset:%d" % WS_STATS)
    A("buffer_load_dwordx2 v[36:37], v19, s[36:39], 0 offen offset:%d" % (WS_STATS + 16))
    A("v_lshrrev_b32 v38, 5, v4")
    A("v_mul_u32_u24 v38, %d, v38" % XSTR)
    A("v_lshl_add_u32 v38, v17, 2, v38")
    A("v_add_u32 v38, %d, v38" % L_X)
    A("s_waitcnt vmcnt(0)")
    stamp(A, 4, 36, 70)
    for i0 in range(0, 9, 3):
        streams = []
        for i in range(i0, i0 + 3):
            bs = 40 + 8 * (i % 3)
            ops = norm_ops(bs, bs + 2, bs + 4, 20 + i, 32)
            ops.append("v_cvt_pk_bf16_f32 %s, %s, %s" % (v(bs + 6), v(bs + 2), v(bs + 3)))
            ops.append("ds_write_b32 v38, %s offset:%d" % (v(bs + 6), 128 * i))
            streams.append(ops)
        interleave(A, streams)
    A("s_waitcnt lgkmcnt(0)")
    A.label(Lj)
    A("v_lshrrev_b32 v16, 2, v2")
    A("v_lshl_add_u32 v17, v3, 3, v16")
    A("v_lshlrev_b32 v17, 7, v17")
    A("v_bfe_u32 v18, v2, 3, 1")
    A("v_and_b32 v19, 1, v3")
    A("v_lshl_add_u32 v18, v19, 1, v18")
    A("s_and_b32 s43, s42, 3")
    A("v_xor_b32 v18, s43, v18")
    A("v_lshl_add_u32 v17, v18, 5, v17")
    A("v_and_b32 v19, 3, v2")
    A("v_lshl_add_u32 v17, v19, 3, v17")
    A("s_lshr_b32 s44, s42, 2")
    A("s_mul_i32 s44, s44, %d" % L_WU)
    A("v_add_u32 v17, s44, v17")
    A("v_add_u32 v18, 36864, v17")
    A("v_and_b32 v19, 7, v2")
    A("v_mul_u32_u24 v19, %d, v19" % XSTR)
    A("v_lshl_add_u32 v19, v3, 4, v19")
    A("v_add_u32 v19, %d, v19" % L_X)
    for i in range(4):
        A("v_mov_b32 %s, 0" % v(20 + i))
    A("s_barrier")
    stamp(A, 5, 36, 70)
    NS = 6
    def rd(kk):
        r = 40 + 8 * (kk % NS)
        b, ko = ("v17", kk) if kk < 9 else ("v18", kk - 9)
        A("ds_read_b128 %s, v19 offset:%d" % (v(r, 4), 64 * kk))
        A("ds_read_b64_tr_b16 %s, %s offset:%d" % (v(r + 4, 2), b, 4096 * ko))
        A("ds_read_b64_tr_b16 %s, %s offset:%d" % (v(r + 6, 2), b, 4096 * ko + 512))
    for kk in range(NS - 1):
        rd(kk)
    for kk in range(18):
        if kk + NS - 1 < 18:
            rd(kk + NS - 1)
        rem = min(NS - 1, 17 - kk)
        A("s_waitcnt lgkmcnt(%d)" % (3 * rem))
        r = 40 + 8 * (kk % NS)
        A("v_mfma_f32_16x16x32_bf16 v[20:23], %s, %s, v[20:23]" % (v(r + 4, 4), v(r, 4)))
    A("v_lshlrev_b32 v25, 4, v1")
    A("s_and_b32 s43, s42, 3")
    A("s_lshl_b32 s43, s43, 10")
    A("s_add_u32 s43, s43, %d" % L_U)
    A("v_add_u32 v25, s43, v25")
    A("v_mul_u32_u24 v30, %d, v2" % HSTR)
    A("v_lshl_add_u32 v30, v3, 3, v30")
    A("s_and_b32 s43, s42, 3")
    A("s_lshl_b32 s43, s43, 5")
    A("s_add_u32 s43, s43, %d" % L_HS)
    A("v_add_u32 v30, s43, v30")
    A("v_add_u32 v31, 36864, v14")
    round_pair(A, 20, 21, 24, 40); round_pair(A, 22, 23, 24, 40)
    Lg = A.newlabel("gatew")
    A("s_cmp_lt_u32 s42, 4")
    A("s_cbranch_scc1 %s" % Lg)
    A("ds_write_b128 v25, v[20:23]")
    A("s_waitcnt lgkmcnt(0)")
    A.label(Lg)
    A("s_barrier")
    stamp(A, 6, 36, 70)
    Lg2 = A.newlabel("gate2")
    A("s_cmp_ge_u32 s42, 4")
    A("s_cbranch_scc1 %s" % Lg2)
    A("ds_read_b128 v[24:27], v25")
    A("s_waitcnt vmcnt(%d)" % (0))
    for k in range(9):
        A("ds_write_b128 v14, %s offset:%d" % (v(WD + 4 * k, 4), 128 * k))
    for i in range(4):
        A("v_mul_f32 %s, 0xbfb8aa3b, %s" % (v(32 + i), v(20 + i)))
    for i in range(4):
        A("v_exp_f32 %s, %s" % (v(32 + i), v(32 + i)))
    for k in range(9):
        A("ds_write_b128 v31, %s offset:%d" % (v(WD + 36 + 4 * k, 4), 128 * k))
    for i in range(4):
        A("v_add_f32 %s, 1.0, %s" % (v(32 + i), v(32 + i)))
    for i in range(4):
        A("v_rcp_f32 %s, %s" % (v(32 + i), v(32 + i)))
    A.nop(1)
    for i in range(4):
        A("v_mul_f32 %s, %s, %s" % (v(20 + i), v(20 + i), v(32 + i)))
    round_pair(A, 20, 21, 28, 40); round_pair(A, 22, 23, 28, 40)
    A("s_waitcnt lgkmcnt(15)")
    for i in range(4):
        A("v_mul_f32 %s, %s, %s" % (v(20 + i), v(20 + i), v(24 + i)))
    A("v_cvt_pk_bf16_f32 v28, v20, v21")
    A("v_cvt_pk_bf16_f32 v29, v22, v23")
    A("v_cmp_gt_u32 vcc, 8, v2")
    A("s_and_saveexec_b64 s[44:45], vcc")
    A("ds_write_b64 v30, v[28:29]")
    A("s_mov_b64 exec, s[44:45]")
    A.label(Lg2)
    A("v_lshrrev_b32 v16, 2, v2")
    A("v_lshl_add_u32 v17, v3, 3, v16")
    A("v_mul_u32_u24 v17, 1152, v17")
    A("v_bfe_u32 v18, v2, 3, 1")
    A("v_and_b32 v19, 1, v3")
    A("v_lshl_add_u32 v18, v19, 1, v18")
    A("s_and_b32 s43, s42, 3")
    A("v_xor_b32 v18, s43, v18")
    A("v_lshl_add_u32 v17, v18, 5, v17")
    A("v_and_b32 v19, 3, v2")
    A("v_lshl_add_u32 v17, v19, 3, v17")
    A("s_lshr_b32 s44, s42, 2")
    A("s_lshl_b32 s44, s44, 7")
    A("v_add_u32 v17, s44, v17")
    A("v_add_u32 v18, %d, v17" % (32 * 1152))
    A("v_and_b32 v19, 7, v2")
    A("v_mul_u32_u24 v19, %d, v19" % HSTR)
    A("v_lshl_add_u32 v19, v3, 4, v19")
    A("v_add_u32 v19, %d, v19" % L_HS)
    A("v_mul_u32_u24 v16, 4608, v2")
    A("v_lshl_add_u32 v16, v3, 5, v16")
    A("s_mul_i32 s43, s41, 36864")
    A("s_lshl_b32 s44, s42, 7")
    A("s_add_u32 s43, s43, s44")
    A("s_add_u32 s43, s43, %d" % WS_PARTG)
    A("v_cmp_gt_u32 vcc, 8, v2")
    A("s_mov_b64 s[44:45], vcc")
    for k in range(5):
        o = 100 + 8 * k
        for i in range(4):
            A("v_mov_b32 %s, s46" % v(o + 2 * i + 1))
    A("s_waitcnt lgkmcnt(0)")
    A("s_barrier")
    stamp(A, 7, 36, 70)
    A("ds_read_b128 v[32:35], v19")
    A("ds_read_b128 v[36:39], v19 offset:64")
    for k in range(5):
        r = 40 + 8 * k
        A("ds_read_b64_tr_b16 %s, v17 offset:%d" % (v(r, 2), 256 * k))
        A("ds_read_b64_tr_b16 %s, v17 offset:%d" % (v(r + 2, 2), 256 * k + 4 * 1152))
        A("ds_read_b64_tr_b16 %s, v18 offset:%d" % (v(r + 4, 2), 256 * k))
        A("ds_read_b64_tr_b16 %s, v18 offset:%d" % (v(r + 6, 2), 256 * k + 4 * 1152))
    for k in range(5):
        r = 40 + 8 * k
        ac = 80 + 4 * k
        A("s_waitcnt lgkmcnt(%d)" % min(15, 4 * (4 - k)))
        A("v_mfma_f32_16x16x32_bf16 %s, %s, v[32:35], 0" % (v(ac, 4), v(r, 4)))
        A("v_mfma_f32_16x16x32_bf16 %s, %s, v[36:39], %s" % (v(ac, 4), v(r + 4, 4), v(ac, 4)))
    A("s_mov_b64 exec, s[44:45]")
    A.nop(4)
    Lk4 = A.newlabel("nok4")
    for k in range(5):
        ac = 80 + 4 * k
        o = 100 + 8 * k
        for i in range(4):
            A("v_mov_b32 %s, %s" % (v(o + 2 * i), v(ac + i)))
        if k == 4:
            A("s_cmp_ge_u32 s42, 4")
            A("s_cbranch_scc1 %s" % Lk4)
            A("s_add_u32 s43, s43, 4096")
            A("buffer_store_dwordx4 %s, v16, s[36:39], s43 offen sc1" % v(o, 4))
            A("buffer_store_dwordx4 %s, v16, s[36:39], s43 offen offset:16 sc1" % v(o + 4, 4))
        else:
            A("buffer_store_dwordx4 %s, v16, s[36:39], s43 offen offset:%d sc1" % (v(o, 4), 1024 * k))
            A("buffer_store_dwordx4 %s, v16, s[36:39], s43 offen offset:%d sc1" % (v(o + 4, 4), 1024 * k + 16))
    A.label(Lk4)
    A("s_mov_b64 exec, -1")
    stamp(A, 8, 36, 70)
    A("s_endpgm")
```

```python
from common import *
import common, sys, os
common.STAMPS = bool(os.environ.get('STAMPS'))
import fused
A = Asm()
hdr = open("cdna_kernels/%s.s.ref" % NAME).read().split("\n")
out = []
for l in hdr:
    if l.startswith("; @launch"):
        break
    out.append(l)
out.append("; @launch grid=(256,1,1) block=(512,1,1) lds=163840")
DESIGN = """; Design (single persistent launch, 256 workgroups x 8 waves, one per CU; generated by my own python script):
;  Hand-offs between workgroups are validated with a tag derived from an epoch word in d_ws (updated at the end of the launch)."""
out += DESIGN.split("\n")
out.append('.amdgcn_target "amdgcn-amd-amdhsa--gfx950"')
out.append(".text")
d = fused.gen_kernel(A, NAME + "_kernel")
txt = "\n".join(out) + "\n" + A.text() + '.section .rodata,"a"\n' + d
open(sys.argv[1] if len(sys.argv) > 1 else "v5.s", "w").write(txt)
```

```python
from common import *
import common, os
from collections import deque
from conv2 import CS, CH_LDS, H_OFF, POLL_MAX, conv_schedule
from moe2 import wave_max_u32, L_WG, L_WU, L_X, L_HS, L_U, L_CAND, XSTR, HSTR
from moe3 import SORT8, sort_desc, rounds

F_EPOCH = 0x0
F_SELG = 0x100
F_ALIVE = 0x1000
F_KEYG = 0x2000
F_ROWG = 0x8000
F_URC = 0x10000
F_UR = 0x20000
F_PARTG = F_UR + 576 * 4096
L_TAG = 162304

PQ, PK, PV, PSHK, PSSMK, PSSMD, PWR, PWG, PWU, PWD, POUT, PWS = 72, 74, 76, 78, 80, 82, 86, 88, 90, 92, 94, 70
TAG = 46
NTS = '' if os.environ.get('NONT') else ' nt'
def st_(A, n):
    stamp(A, n, 36, 3, vt=254, st=96)

MISC = 4 * CH_LDS
FLAGS = MISC
SIDE = MISC + 64
RED = SIDE + 256
YOFF = H_OFF
W1, W0 = 20, 28
E_, G_, F_ = 36, 44, 50
UREG = 56
RING, NR, ACC, BS = 64, 6, 88, 120

def poll_head(A, cnt="s52"):
    A("s_mov_b32 %s, 0" % cnt)

def poll_tail(A, Lloop, Ldone, cnt="s52", sleep=1):
    A("s_add_u32 %s, %s, 1" % (cnt, cnt))
    A("s_cmp_gt_u32 %s, %d" % (cnt, POLL_MAX))
    A("s_cbranch_scc1 %s" % Ldone)
    A("s_sleep %d" % sleep)
    A("s_branch %s" % Lloop)

def masked_poll(A, name, emit_loads, tagregs, sleep, pre_sleep=0, full_exec="-1"):
    T = "s%d" % TAG
    Lp = A.newlabel(name + "p"); Ld = A.newlabel(name + "ok")
    if pre_sleep:
        A("s_sleep %d" % pre_sleep)
    A("s_mov_b32 s52, 0")
    A.label(Lp)
    emit_loads()
    A("s_waitcnt vmcnt(0)")
    A("v_cmp_eq_u32 vcc, %s, %s" % (T, v(tagregs[0])))
    for r in tagregs[1:]:
        A("v_cmp_eq_u32 s[54:55], %s, %s" % (T, v(r)))
        A("s_and_b64 vcc, vcc, s[54:55]")
    A("s_andn2_b64 exec, exec, vcc")
    A("s_cbranch_scc0 %s" % Ld)
    A("s_add_u32 s52, s52, 1")
    A("s_cmp_gt_u32 s52, %d" % POLL_MAX)
    A("s_cbranch_scc1 %s" % Ld)
    A("s_sleep %d" % sleep)
    A("s_branch %s" % Lp)
    A.label(Ld)
    A("s_mov_b64 exec, %s" % full_exec)

def first_then_poll(A, name, emit_loads, tagregs, sleep, ex):
    T = "s%d" % TAG
    Lp = A.newlabel(name + "p"); Ld = A.newlabel(name + "ok")
    A("s_mov_b32 s52, 0")
    A.label(Lp)
    A("s_waitcnt vmcnt(0)")
    A("v_cmp_eq_u32 vcc, %s, %s" % (T, v(tagregs[0])))
    for r in tagregs[1:]:
        A("v_cmp_eq_u32 s[54:55], %s, %s" % (T, v(r)))
        A("s_and_b64 vcc, vcc, s[54:55]")
    A("s_andn2_b64 exec, exec, vcc")
    A("s_cbranch_scc0 %s" % Ld)
    A("s_add_u32 s52, s52, 1")
    A("s_cmp_gt_u32 s52, %d" % POLL_MAX)
    A("s_cbranch_scc1 %s" % Ld)
    A("s_sleep %d" % sleep)
    emit_loads()
    A("s_branch %s" % Lp)
    A.label(Ld)
    A("s_mov_b64 exec, -1")

LK, LV, SG, SGS = 0, 17408, 34816, 272

def row_xor_reduce(A, regs):
    for ctl in ("quad_perm:[1,0,3,2]", "quad_perm:[2,3,0,1]", "row_half_mirror", "row_mirror"):
        if len(regs) < 3:
            A.nop(3 - len(regs))
        for r in regs:
            A("v_xor_b32_dpp %s, %s, %s %s row_mask:0xf bank_mask:0xf" % (v(r), v(r), v(r), ctl))

def gen_kv_issue(A):
    srd(A, 48, PK, S * ROWB)
    srd(A, 52, PV, S * ROWB)
    A("v_and_b32 v1, 63, v0")
    A("v_lshrrev_b32 v4, 3, v1")
    A("v_mul_u32_u24 v4, 1152, v4")
    A("v_and_b32 v5, 7, v1")
    A("v_lshl_add_u32 v4, v5, 4, v4")
    A("s_mul_i32 s62, s61, %d" % (128 * 1152))
    A("s_lshl_b32 s63, s60, 7")
    A("s_add_u32 s62, s62, s63")
    A("s_mul_i32 s63, s42, 9216")
    A("s_add_u32 s62, s62, s63")
    A("s_sub_u32 s63, s62, 9216")
    A("s_lshl_b32 s64, s42, 10")
    for i in range(4):
        A("s_mov_b32 m0, s64")
        A("s_add_u32 s65, s64, %d" % LV)
        A("buffer_load_dwordx4 v4, s[48:51], s63 offen lds" + NTS)
        A("s_mov_b32 m0, s65")
        A("s_add_u32 s64, s64, 4096")
        A("buffer_load_dwordx4 v4, s[52:55], s62 offen lds" + NTS)
        A("s_add_u32 s63, s63, %d" % (32 * 1152))
        A("s_add_u32 s62, s62, %d" % (32 * 1152))
    Ln = A.newlabel("nok17")
    A("s_cmp_lg_u32 s42, 0")
    A("s_cbranch_scc1 %s" % Ln)
    A("s_mov_b32 m0, s64")
    A("s_nop 0")
    A("buffer_load_dwordx4 v4, s[48:51], s63 offen lds" + NTS)
    A.label(Ln)

def gen_kv_addr(A):
    srd(A, 56, PSHK, D * 8)
    A("v_and_b32 v2, 31, v0")
    A("s_lshl_b32 s63, s60, 9")
    A("v_lshl_add_u32 v29, v2, 4, s63")
    A("buffer_load_dwordx4 v[32:35], v29, s[56:59], 0 offen")

def gen_kv_addr2(A):
    A("v_lshrrev_b32 v3, 5, v0")
    A("v_lshlrev_b32 v6, 10, v3")
    A("v_lshl_add_u32 v6, v2, 2, v6")
    A("v_mul_u32_u24 v7, %d, v2" % (2 * SGS))
    A("v_sub_u32 v8, 15, v3")
    A("v_lshl_add_u32 v7, v8, 4, v7")
    A("v_add_u32 v7, %d, v7" % SG)
    A("v_bfe_u32 v10, v0, 4, 2")
    A("v_and_b32 v11, 15, v0")
    A("v_mul_u32_u24 v8, %d, v10" % SGS)
    A("v_lshl_add_u32 v8, v11, 4, v8")
    A("s_mul_i32 s63, s42, %d" % (8 * SGS))
    A("s_add_u32 s63, s63, %d" % SG)
    A("v_add_u32 v8, s63, v8")
    A("v_lshlrev_b32 v9, 12, v10")
    A("v_lshl_add_u32 v9, v11, 4, v9")
    A("s_lshl_b32 s63, s60, 6")
    A("s_lshl_b32 s64, s42, 3")
    A("s_add_u32 s63, s63, s64")
    A("s_lshl_b32 s65, s63, 12")
    A("s_lshl_b32 s64, s61, 8")
    A("s_sub_u32 s65, s65, s64")
    A("s_add_u32 s65, s65, %d" % (F_UR + 240 * 16))
    A("v_add_u32 v9, s65, v9")
    A("v_lshlrev_b32 v12, 6, v10")
    A("s_lshl_b32 s65, s63, 6")
    A("s_lshl_b32 s64, s61, 2")
    A("s_sub_u32 s65, s65, s64")
    A("s_add_u32 s65, s65, %d" % (F_URC + 60))
    A("v_add_u32 v12, s65, v12")
    A("v_cmp_eq_u32 s[66:67], 0, v11")

def gen_kv_compute(A):
    A("s_barrier")
    st_(A, 1)
    for i in range(11):
        A("ds_read_b32 %s, v6 offset:%d" % (v(14 + i), LK + (5 + i) * 128))
    for i in range(8):
        A("ds_read_b32 %s, v6 offset:%d" % (v(40 + i), LV + i * 128))
    A("v_lshlrev_b32 v54, 16, v32"); A("v_lshlrev_b32 v55, 16, v34")
    A("v_and_b32 v56, s40, v32");    A("v_and_b32 v57, s40, v34")
    A("v_lshlrev_b32 v58, 16, v33"); A("v_lshlrev_b32 v59, 16, v35")
    A("v_and_b32 v60, s40, v33");    A("v_and_b32 v61, s40, v35")
    W, K, KV = 54, 62, 100
    A("s_waitcnt lgkmcnt(8)")
    for i in range(11):
        unpack_pair(A, K + 2 * i, K + 2 * i + 1, 14 + i, 40)
    A("s_waitcnt lgkmcnt(0)")
    def pr_(r):
        return "v[%d:%d]" % (r, r + 1)
    def row_ops(i, acc, tmp, t3):
        P = Asm()
        P("v_pk_mul_f32 %s, %s, %s" % (pr_(acc), pr_(K + 2 * (i + 0)), pr_(W + 6)))
        round_pair(P, acc, acc + 1, t3, 40)
        for t in range(1, 4):
            P("v_pk_mul_f32 %s, %s, %s" % (pr_(tmp), pr_(K + 2 * (i + t)), pr_(W + 2 * (3 - t))))
            round_pair(P, tmp, tmp + 1, t3, 40)
            P("v_pk_add_f32 %s, %s, %s" % (pr_(acc), pr_(acc), pr_(tmp)))
            round_pair(P, acc, acc + 1, t3, 40)
        unpack_pair(P, tmp, tmp + 1, 40 + i, 40)
        P("v_pk_mul_f32 %s, %s, %s" % (pr_(KV + 2 * i), pr_(acc), pr_(tmp)))
        return [l.strip() for l in P.lines]
    for i in range(0, 8, 4):
        interleave(A, [row_ops(i, 84, 86, 88), row_ops(i + 1, 90, 92, 94), row_ops(i + 2, 132, 134, 136), row_ops(i + 3, 138, 140, 142)])
    for c in range(2):
        for j in range(4):
            A("v_cvt_pk_bf16_f32 %s, %s, %s" % (v(116 + 4 * c + j), v(KV + 2 * (7 - 2 * j) + c), v(KV + 2 * (6 - 2 * j) + c)))
    A("ds_write_b128 v7, v[116:119]")
    A("ds_write_b128 v7, v[120:123] offset:%d" % SGS)
    A("s_waitcnt lgkmcnt(0)")
    A("s_barrier")
    A("ds_read_b128 v[116:119], v8")
    A("ds_read_b128 v[120:123], v8 offset:%d" % (4 * SGS))
    A("s_movk_i32 s63, 16384")
    A("s_waitcnt lgkmcnt(1)")
    A("buffer_store_dwordx4 v[116:119], v9, s[36:39], 0 offen sc1")
    A("v_xor_b32 v124, v116, v117"); A("v_xor_b32 v126, v118, v119")
    A("s_waitcnt lgkmcnt(0)")
    A("buffer_store_dwordx4 v[120:123], v9, s[36:39], s63 offen sc1")
    A("v_xor_b32 v125, v120, v121"); A("v_xor_b32 v127, v122, v123")
    A("v_xor_b32 v124, v124, v126"); A("v_xor_b32 v125, v125, v127")
    row_xor_reduce(A, [124, 125])
    A("v_xor_b32 v124, s%d, v124" % TAG); A("v_xor_b32 v125, s%d, v125" % TAG)
    A("s_mov_b64 exec, s[66:67]")
    A("buffer_store_dword v124, v12, s[36:39], 0 offen sc1")
    A("buffer_store_dword v125, v12, s[36:39], 0 offen offset:256 sc1")
    A("s_mov_b64 exec, -1")
    st_(A, 2)

def gen_ln(A):
    srd(A, 48, PQ, S * ROWB)
    srd(A, 52, PWR, D * 2)
    A("v_and_b32 v1, 63, v0")
    A("v_and_b32 v2, 15, v0")
    A("v_lshrrev_b32 v3, 4, v1")
    A("s_lshl_b32 s61, s60, 2")
    A("v_add_u32 v30, s61, v3")
    A("s_movk_i32 s62, 1152")
    A("v_mul_lo_u32 v6, v30, s62")
    A("v_lshl_add_u32 v6, v2, 3, v6")
    A("v_lshlrev_b32 v7, 3, v2")
    Q, WR, X = 64, 84, 104
    for i in range(9):
        A("buffer_load_dwordx2 %s, v6, s[48:51], 0 offen offset:%d" % (v(Q + 2 * i, 2), 128 * i))
    for i in range(9):
        A("buffer_load_dwordx2 %s, v7, s[52:55], 0 offen offset:%d" % (v(WR + 2 * i, 2), 128 * i))
    return Q, WR, X

def gen_ln_compute(A, Q, WR, X, extra=0):
    A("s_waitcnt vmcnt(%d)" % (9 + extra))
    st_(A, 1)
    for i in range(18):
        unpack_pair(A, X + 2 * i, X + 2 * i + 1, Q + i, 40)
    A("v_pk_add_f32 v[8:9], %s, %s" % (v(X, 2), v(X + 2, 2)))
    A("v_pk_add_f32 v[10:11], %s, %s" % (v(X + 4, 2), v(X + 6, 2)))
    for i in range(4, 18, 2):
        A("v_pk_add_f32 v[8:9], v[8:9], %s" % v(X + 2 * i, 2))
        A("v_pk_add_f32 v[10:11], v[10:11], %s" % v(X + 2 * i + 2, 2))
    A("v_pk_add_f32 v[8:9], v[8:9], v[10:11]")
    A.nop(1)
    A("v_add_f32 v8, v8, v9")
    allreduce16_add(A, 8)
    A("v_mul_f32 v8, 0x3ae38e39, v8")
    A("v_sub_f32 v12, 0, v8")
    A("v_sub_f32 v13, 0, v8")
    for r in (14, 15, 16, 17):
        A("v_mov_b32 %s, 0" % v(r))
    for i in range(0, 18, 2):
        A("v_pk_add_f32 v[18:19], %s, v[12:13]" % v(X + 2 * i, 2))
        A("v_pk_add_f32 v[20:21], %s, v[12:13]" % v(X + 2 * i + 2, 2))
        A("v_pk_fma_f32 v[14:15], v[18:19], v[18:19], v[14:15]")
        A("v_pk_fma_f32 v[16:17], v[20:21], v[20:21], v[16:17]")
    A("v_pk_add_f32 v[14:15], v[14:15], v[16:17]")
    A.nop(1)
    A("v_add_f32 v14, v14, v15")
    allreduce16_add(A, 14)
    A("v_mul_f32 v14, 0x3ae38e39, v14")
    A.nop(1)
    round_pair(A, 8, 14, 9, 40)
    A("v_add_f32 v14, 0x3727c5ac, v14")
    A.nop(1)
    A("v_cvt_pk_bf16_f32 v9, v14, v14")
    A("v_lshlrev_b32 v14, 16, v9")
    A("v_sqrt_f32 v14, v14")
    A.nop(1)
    A("v_cvt_pk_bf16_f32 v9, v14, v14")
    A("v_lshlrev_b32 v14, 16, v9")
    A("v_rcp_f32 v15, v14")
    A.nop(1)
    A("v_fma_f32 v16, -v14, v15, 1.0")
    A("v_fma_f32 v15, v16, v15, v15")
    A("v_sub_f32 v12, 0, v8"); A("v_sub_f32 v13, 0, v8")
    A("v_mov_b32 v16, v15"); A("v_mov_b32 v17, v15")
    for r in (22, 23, 24, 25):
        A("v_mov_b32 %s, 0" % v(r))
    A("s_waitcnt vmcnt(%d)" % extra)
    def ops(i, tm, acc):
        x0 = X + 2 * i
        P = Asm()
        P("v_pk_add_f32 %s, %s, v[12:13]" % (v(x0, 2), v(x0, 2)))
        round_pair(P, x0, x0 + 1, tm, 40)
        P("v_pk_mul_f32 %s, %s, v[16:17]" % (v(x0, 2), v(x0, 2)))
        round_pair(P, x0, x0 + 1, tm, 40)
        unpack_pair(P, tm + 2, tm + 3, WR + i, 40)
        P("v_pk_fma_f32 %s, %s, %s, %s" % (v(acc, 2), v(x0, 2), v(tm + 2, 2), v(acc, 2)))
        return [l.strip() for l in P.lines]
    for i in range(0, 18, 2):
        interleave(A, [ops(i, 26, 22), ops(i + 1, 32, 24)])
    A("v_pk_add_f32 v[22:23], v[22:23], v[24:25]")
    A.nop(1)
    A("v_add_f32 v22, v22, v23")
    allreduce16_add(A, 22)
    A.nop(1)
    A("v_cvt_pk_bf16_f32 v23, v22, v22")
    A("v_lshlrev_b32 v23, 16, v23")
    A("v_ashrrev_i32 v24, 31, v23")
    A("v_or_b32 v24, 0x80000000, v24")
    A("v_xor_b32 v23, v23, v24")
    A("v_and_b32 v23, s40, v23")
    A("v_sub_u32 v24, 2047, v30")
    A("v_or_b32 v26, v23, v24")
    A("v_mov_b32 v27, s%d" % TAG)
    A("v_cvt_pk_bf16_f32 v32, v8, v14")
    A("v_mov_b32 v33, s%d" % TAG)
    A("v_mov_b32 v34, v15")
    A("v_mov_b32 v35, s%d" % TAG)
    A("v_lshlrev_b32 v28, 3, v30")
    A("v_lshlrev_b32 v29, 4, v30")
    A("s_movk_i32 s61, %d" % F_KEYG)
    A("s_mov_b32 s62, %d" % F_ROWG)
    A("v_cmp_eq_u32 vcc, 0, v2")
    A("s_and_saveexec_b64 s[50:51], vcc")
    A("buffer_store_dwordx2 v[26:27], v28, s[36:39], s61 offen sc1")
    A("buffer_store_dwordx4 v[32:35], v29, s[36:39], s62 offen sc1")
    A("s_mov_b64 exec, s[50:51]")
    st_(A, 2)

def build_ops(W, N, off):
    ops = []
    for k in range(7):
        ops.append("v_alignbit_b32 %s, %s, %s, 16" % (v(E_ + k), v(W + k + 1), v(W + k)))
    ops.append("ds_write_b128 v11, %s offset:%d" % (v(W + 2, 4), 4 * CS + off))
    for k in range(3):
        ops.append("v_pk_mov_b32 %s, %s, %s op_sel:[1,0]" % (v(G_ + 2 * k, 2), v(W + 2 * k, 2), v(W + 2 * k + 2, 2)))
    ops.append("ds_write_b128 v11, %s offset:%d" % (v(E_, 4), 1 * CS + off))
    ops.append("ds_write_b128 v11, %s offset:%d" % (v(E_ + 2, 4), 5 * CS + off))
    for k in range(3):
        ops.append("v_pk_mov_b32 %s, %s, %s op_sel:[1,0]" % (v(F_ + 2 * k, 2), v(E_ + 2 * k, 2), v(E_ + 2 * k + 2, 2)))
    ops.append("ds_write_b128 v11, %s offset:%d" % (v(G_, 4), 2 * CS + off))
    ops.append("ds_write_b128 v11, %s offset:%d" % (v(G_ + 2, 4), 6 * CS + off))
    ops.append("s_nop 0")
    ops.append("ds_write_b128 v11, %s offset:%d" % (v(F_, 4), 3 * CS + off))
    ops.append("ds_write_b128 v11, %s offset:%d" % (v(F_ + 2, 4), 7 * CS + off))
    return ops

def gen_M(A):
    A("s_setprio %d" % int(os.environ.get("MPRIO", 2)))
    srd(A, 32, PSSMK, D * S * 2)
    A("v_and_b32 v1, 63, v0")
    A("v_lshlrev_b32 v4, 4, v1")
    A("s_add_u32 s56, s45, %d" % (H_OFF + 512))
    A("s_lshl_b32 s57, s44, 12")
    A("s_mov_b32 m0, s56")
    A("s_lshl_b32 s51, s44, 1")
    for i in range(4):
        A("buffer_load_dwordx4 v4, s[32:35], s57 offen offset:%d lds" % (1024 * i) + NTS)
    A("s_add_u32 s56, s56, 4096")
    A("s_add_u32 s57, s57, 4096")
    A("s_mov_b32 m0, s56")
    A("s_mov_b64 exec, 0x3")
    A("buffer_load_dwordx4 v4, s[32:35], s57 offen lds" + NTS)
    A("s_mov_b64 exec, -1")
    A("s_and_b32 s52, s51, 0xfffffffc")
    A("s_add_u32 s54, s%d, s52" % PSSMD)
    A("s_addc_u32 s55, s%d, 0" % (PSSMD + 1))
    A("s_load_dword s53, s[54:55], 0")
    A("v_and_b32 v2, 15, v0")
    A("v_bfe_u32 v3, v0, 4, 2")
    A("v_mov_b32 v12, 0"); A("v_mov_b32 v13, 0"); A("v_mov_b32 v14, 0"); A("v_mov_b32 v15, 0")
    A("v_add_u32 v11, s45, v4")
    A("s_mov_b32 exec_hi, 0")
    A("ds_write_b128 v11, v[12:15] offset:%d" % H_OFF)
    A("s_mov_b64 exec, 0x3")
    for c in range(8):
        pass
    A("ds_write_b128 v11, v[12:15]")
    A("s_mov_b64 exec, 0xf")
    A("ds_write_b128 v11, v[12:15] offset:%d" % (258 * 16))
    A("s_mov_b64 exec, -1")
    A("v_lshlrev_b32 v5, 5, v2")
    A("v_lshl_add_u32 v5, v3, 4, v5")
    A("v_add_u32 v5, s45, v5")
    A("v_add_u32 v5, %d, v5" % H_OFF)
    A("v_and_b32 v8, 7, v2")
    A("v_sub_u32 v8, 7, v8")
    A("v_mul_u32_u24 v8, %d, v8" % CS)
    A("v_lshrrev_b32 v6, 3, v2")
    A("v_sub_u32 v6, v3, v6")
    A("v_lshlrev_b32 v6, 4, v6")
    A("v_add_u32 v8, v8, v6")
    A("v_add_u32 v8, 16, v8")
    A("v_add_u32 v9, s45, v8")
    A("v_lshlrev_b32 v6, 5, v2")
    A("v_lshl_add_u32 v6, v3, 3, v6")
    A("v_sub_u32 v7, %d, v6" % (4120 - 3584))
    A("v_add_u32 v7, s45, v7")
    A("v_add_u32 v6, s45, v6")
    A("v_add_u32 v6, %d, v6" % YOFF)
    A("s_lshl_b32 s49, s43, 2")
    A("s_add_u32 s49, s49, %d" % FLAGS)
    A("v_mov_b32 v10, s49")
    for i in range(32):
        A("v_mov_b32 %s, 0" % v(ACC + i))
    A("s_lshl_b32 s48, s44, 12")
    A("s_add_u32 s48, s48, %d" % F_UR)
    A("v_lshlrev_b32 v16, 2, v3")
    A("s_lshl_b32 s50, s44, 6")
    A("s_add_u32 s50, s50, %d" % F_URC)
    A("s_sleep %d" % int(os.environ.get("URPRE", 16)))
    Lp = A.newlabel("urp"); Ld = A.newlabel("urok")
    A("s_mov_b32 s52, 0")
    A.label(Lp)
    for i in range(4):
        A("buffer_load_dwordx4 %s, v4, s[36:39], s48 offen offset:%d sc1" % (v(120 + 4 * i, 4), 1024 * i))
    for i in range(4):
        A("buffer_load_dword %s, v16, s[36:39], s50 offen offset:%d sc1" % (v(136 + i), 16 * i))
    A("s_waitcnt vmcnt(0)")
    for i in range(4):
        A("v_xor_b32 %s, %s, %s" % (v(140 + i), v(120 + 4 * i), v(121 + 4 * i)))
    for i in range(4):
        A("v_xor_b32 %s, %s, %s" % (v(144 + i), v(122 + 4 * i), v(123 + 4 * i)))
    for i in range(4):
        A("v_xor_b32 %s, %s, %s" % (v(140 + i), v(140 + i), v(144 + i)))
    row_xor_reduce(A, [140, 141, 142, 143])
    for i in range(4):
        A("v_xor_b32 %s, %s, %s" % (v(140 + i), v(140 + i), v(136 + i)))
    A("v_cmp_eq_u32 vcc, s%d, v140" % TAG)
    for i in range(1, 4):
        A("v_cmp_eq_u32 s[54:55], s%d, %s" % (TAG, v(140 + i)))
        A("s_and_b64 vcc, vcc, s[54:55]")
    A("s_cmp_eq_u64 vcc, -1")
    A("s_cbranch_scc1 %s" % Ld)
    A("s_add_u32 s52, s52, 1")
    A("s_cmp_gt_u32 s52, %d" % POLL_MAX)
    A("s_cbranch_scc1 %s" % Ld)
    A("s_sleep %d" % int(os.environ.get("URSLEEP", 8)))
    A("s_branch %s" % Lp)
    A.label(Ld)
    st_(A, 3)
    for i in range(4):
        A("ds_write_b128 v11, %s offset:%d" % (v(120 + 4 * i, 4), 32 + 1024 * i))
    A("s_waitcnt lgkmcnt(0)")
    for (W, off) in ((152, 4096), (160, 3072), (168, 2048), (W1, 1024), (W0, 0)):
        A("ds_read_b128 %s, v11 offset:%d" % (v(W, 4), off))
        A("ds_read_b128 %s, v11 offset:%d" % (v(W + 4, 4), off + 16))
    A("s_waitcnt lgkmcnt(8)")
    A("s_mov_b64 exec, 0x1f")
    for o in build_ops(152, 0, 4096): A(o)
    A("s_mov_b64 exec, -1")
    A("s_waitcnt lgkmcnt(11)")
    for o in build_ops(160, 0, 3072): A(o)
    A("s_waitcnt lgkmcnt(14)")
    for o in build_ops(168, 0, 2048): A(o)
    A("s_waitcnt lgkmcnt(0)")
    st_(A, 4)
    hi_steps, lo_frags, lo_slot, lo_steps = conv_schedule()
    def bslot(sl):
        return v(BS + 4 * sl, 4)
    order, seen = [], set()
    for q, lst in hi_steps:
        for t, sl in lst:
            if sl not in seen:
                seen.add(sl); order.append(sl)
    aseq = [q for q in range(33)] + [q for q in range(65)]
    issued = []
    def issue(tag, txt):
        A(txt); issued.append(tag)
    def wait_for(tags):
        idx = max(len(issued) - 1 - issued[::-1].index(t) for t in tags)
        n = len(issued) - 1 - idx
        A("s_waitcnt lgkmcnt(%d)" % min(n, 15))
    def a_issue(k):
        issue(("A", k), "ds_read_b128 %s, v9 offset:%d" % (v(RING + 4 * (k % NR), 4), 64 * (64 - aseq[k])))
    def b_issue(sl):
        issue(("B", sl), "ds_read_b128 %s, v5 offset:%d" % (bslot(sl), 64 * (56 - sl + 8)))
    fill = deque()
    cnt = [0]
    def emit_fill(k):
        while k > 0 and fill:
            f = fill.popleft(); f(); cnt[0] += 1; k -= 1
    def add_plain(txt):
        if txt.startswith("ds_"):
            fill.append(lambda txt=txt: issue(("W",), txt))
        else:
            fill.append(lambda txt=txt: A(txt))
    a_issue(0)
    for sl in order[:5]:
        b_issue(sl)
    nextA = 1
    for k in range(1, NR):
        a_issue(nextA); nextA += 1
        b_issue(order[5 + k - 1])
    nextB = 5 + (NR - 1)
    A("s_and_b32 s52, s51, 2")
    A("s_lshl_b32 s52, s52, 3")
    A("s_lshr_b32 s53, s53, s52")
    A("s_lshl_b32 s53, s53, 16")
    A("v_mov_b32 v18, s53"); A("v_mov_b32 v19, s53")
    n = 0
    fu = {}
    for q, lst in hi_steps:
        for t, sl in lst:
            fu.setdefault(sl, q)
    for q, lst in hi_steps:
        while nextB < len(order) and fu[order[nextB]] <= q + 3:
            b_issue(order[nextB]); nextB += 1
        wait_for([("A", n)] + [("B", sl) for _, sl in lst])
        for t, sl in lst:
            A("v_mfma_f32_16x16x32_bf16 %s, %s, %s, %s" % (v(ACC + 4 * t, 4), v(RING + 4 * (n % NR), 4), bslot(sl), v(ACC + 4 * t, 4)))
        if nextA < len(aseq):
            a_issue(nextA); nextA += 1
        if q < 32:
            issue(("L", q), "ds_read_b128 %s, v5 offset:%d" % (bslot(q), 64 * (lo_frags[q] + 8)))
        n += 1
    st_(A, 5)
    def tile_epilogue(t):
        u0 = UREG + 2 * (t % 2)
        ac = ACC + 4 * t
        fill.append(lambda: wait_for([("U", t)] + ([("L", 31)] if t == 0 else [])))
        P = Asm()
        P("v_and_b32 v12, s40, %s" % v(u0 + 1))
        P("v_lshlrev_b32 v13, 16, %s" % v(u0 + 1))
        P("v_and_b32 v14, s40, %s" % v(u0))
        P("v_lshlrev_b32 v15, 16, %s" % v(u0))
        P("v_pk_mul_f32 v[12:13], v[12:13], v[18:19]")
        P("v_pk_mul_f32 v[14:15], v[14:15], v[18:19]")
        round_pair(P, 12, 13, 16, 40)
        round_pair(P, 14, 15, 17, 40)
        round_pair(P, ac, ac + 1, 16, 40)
        round_pair(P, ac + 2, ac + 3, 17, 40)
        P("v_pk_add_f32 v[12:13], v[12:13], %s" % v(ac, 2))
        P("v_pk_add_f32 v[14:15], v[14:15], %s" % v(ac + 2, 2))
        P("v_cvt_pk_bf16_f32 v16, v12, v13")
        P("v_cvt_pk_bf16_f32 v17, v14, v15")
        for l in P.lines:
            add_plain(l.strip())
        fill.append(lambda: issue(("Y", t), "ds_write_b64 v6, v[16:17] offset:%d" % (512 * t)))
        fill.append(lambda: A("v_mov_b32 v8, %d" % (t + 1)))
        for _ in range(3):
            fill.append(lambda: None)
        fill.append(lambda: wait_for([("Y", t)]))
        fill.append(lambda: issue(("F", t), "ds_write_b32 v10, v8"))
    for o in build_ops(W1, 0, 1024): add_plain(o)
    n1 = len(fill)
    for o in build_ops(W0, 0, 0): add_plain(o)
    n0 = len(fill)
    for q, lst in lo_steps:
        wait_for([("A", n)] + [("L", sl) for _, sl in lst])
        k = len(lst)
        per = 2 if k >= 2 else 1
        for i, (t, sl) in enumerate(lst):
            A("v_mfma_f32_16x16x32_bf16 %s, %s, %s, %s" % (v(ACC + 4 * t, 4), v(RING + 4 * (n % NR), 4), bslot(sl), v(ACC + 4 * t, 4)))
            if i < k - 1 or k == 1:
                emit_fill(per)
        if nextA < len(aseq):
            qq = aseq[nextA]
            if nextA >= 33 and qq >= 33:
                assert cnt[0] >= n1
            if nextA >= 33 and qq >= 49:
                assert cnt[0] >= n0
            a_issue(nextA); nextA += 1
        n += 1
        if q % 8 == 4:
            t = q // 8
            issue(("U", t), "ds_read_b64 %s, v7 offset:%d" % (v(UREG + 2 * (t % 2), 2), 512 * (7 - t)))
        if q >= 9 and (q - 9) % 8 == 0 and (q - 9) // 8 < 7:
            tile_epilogue((q - 9) // 8)
    A.nop(4)
    st_(A, 6)
    tile_epilogue(7)
    emit_fill(1000)
    st_(A, 7)
    A("s_endpgm")

XQ = 208
def h_early_loads(A):
    srd(A, 16, PQ, S * ROWB)
    A("v_and_b32 v201, 255, v0")
    A("s_movk_i32 s63, 1152")
    A("v_mul_lo_u32 v200, v201, s63")
    A("s_lshl_b32 s63, s41, 3")
    A("v_add_u32 v200, s63, v200")
    return 8

def strip_loads(A):
    A("s_mov_b32 s63, 0")
    for t in range(8):
        A("buffer_load_dwordx2 %s, v200, s[16:19], s63 offen" % v(XQ + 2 * t, 2))
        A("s_add_u32 s63, s63, %d" % (256 * 1152))

def q_prefetch(A):
    srd(A, 16, PQ, S * ROWB)
    Ln = A.newlabel("noqpf")
    A("v_and_b32 v202, 15, v0")
    A("v_bfe_u32 v203, v0, 4, 2")
    A("v_mul_u32_u24 v203, 1152, v203")
    A("v_lshl_add_u32 v202, v202, 4, v203")
    A("s_mul_i32 s63, s30, 144")
    A("s_and_b32 s63, s63, 0xffffff80")
    A("s_min_u32 s64, s31, 15")
    A("s_lshl_b32 s64, s64, 7")
    A("s_sub_u32 s65, s42, 4")
    A("s_lshl_b32 s65, s65, 5")
    A("s_add_u32 s64, s64, s65")
    A("s_mul_i32 s64, s64, 1152")
    A("s_add_u32 s63, s63, s64")
    for i in range(8):
        A("buffer_load_dwordx4 v[204:207], v202, s[16:19], s63 offen")
        A("s_add_u32 s63, s63, %d" % (4 * 1152))

def gen_H(A):
    srd(A, 20, POUT, S * ROWB)
    T = "s%d" % TAG
    A("v_and_b32 v1, 63, v0")
    A("v_mov_b32 v5, v201")
    A("v_mov_b32 v6, v200")
    A("v_lshlrev_b32 v7, 4, v5")
    RG = 160
    def row_loads():
        for t in range(8):
            A("s_mov_b32 s51, %d" % (F_ROWG + 4096 * t))
            A("buffer_load_dwordx4 %s, v7, s[36:39], s51 offen sc1" % v(RG + 4 * t, 4))
    A("s_setprio %d" % int(os.environ.get("HPRIO", 0)))
    strip_loads(A)
    masked_poll(A, "row", row_loads, list(range(RG + 1, RG + 32, 2)), int(os.environ.get("ROWSLEEP", 8)), 0)
    st_(A, 3)
    X, XN, T1 = 64, 96, 128
    for t in range(8):
        g = RG + 4 * t
        st = 44 + 6 * (t % 2)
        A("v_lshlrev_b32 %s, 16, %s" % (v(st), v(g)))
        A("v_and_b32 %s, s40, %s" % (v(st + 4), v(g)))
        A("v_mov_b32 %s, %s" % (v(st + 2), v(g + 2)))
        A("v_xor_b32 %s, 0x80000000, %s" % (v(st), v(st)))
        A("v_xor_b32 %s, 0x80000000, %s" % (v(st + 4), v(st + 4)))
        A("v_mov_b32 %s, %s" % (v(st + 3), v(g + 2)))
        A("v_mov_b32 %s, %s" % (v(st + 1), v(st)))
        A("v_mov_b32 %s, %s" % (v(st + 5), v(st + 4)))
        streams = []
        for p in range(2):
            x, xn = X + 4 * t + 2 * p, XN + 4 * t + 2 * p
            tm = 56 + 4 * p
            ops = norm_ops(x, xn, tm, XQ + 2 * t + p, st)
            P = Asm(); round_pair(P, xn, xn + 1, tm + 2, 40)
            streams.append(ops + [l.strip() for l in P.lines])
        interleave(A, streams)
    st_(A, 4)
    A("v_lshlrev_b32 v9, 1, v5")
    A("v_add_u32 v9, %d, v9" % YOFF)
    A("v_add_u32 v10, %d, v9" % (2 * CH_LDS))
    A("v_mov_b32 v11, %d" % FLAGS)
    for i in range(4):
        A("v_mov_b32 %s, 0" % v(40 + i))
    A("v_and_b32 v12, 7, v5")
    A("v_mul_u32_u24 v12, 4608, v12")
    A("v_bfe_u32 v13, v5, 3, 1")
    A("v_lshl_add_u32 v12, v13, 4, v12")
    A("v_lshrrev_b32 v13, 4, v5")
    A("v_mul_u32_u24 v14, 36864, v13")
    A("v_add_u32 v12, v12, v14")
    A("s_lshl_b32 s51, s41, 5")
    A("s_add_u32 s51, s51, %d" % F_PARTG)
    A("v_add_u32 v12, s51, v12")
    A("v_add_u32 v14, %d, v12" % (64 * 36864))
    A("v_cmp_gt_u32 vcc, 8, v13")
    A.nop(2)
    A("v_cndmask_b32 v14, v12, v14, vcc")
    A("s_mov_b64 s[56:57], vcc")
    A("v_and_b32 v8, 7, v1")
    A("v_lshlrev_b32 v8, 3, v8")
    def sel_loads():
        A("s_movk_i32 s51, %d" % F_SELG)
        A("buffer_load_dwordx2 v[180:181], v8, s[36:39], s51 offen sc1")
    sel_loads_m = sel_loads
    def part_loads():
        A("s_mov_b32 s51, 0")
        for i in range(4):
            A("buffer_load_dwordx4 %s, v12, s[36:39], s51 offen sc1" % v(160 + 4 * i, 4))
            A("s_add_u32 s51, s51, %d" % (16 * 36864))
        A("buffer_load_dwordx4 v[176:179], v14, s[36:39], 0 offen sc1")
    for t in range(8):
        Lw = A.newlabel("yw"); Lg = A.newlabel("yg")
        A("s_mov_b32 s52, 0")
        A.label(Lw)
        A("ds_read_b128 v[16:19], v11")
        A("s_add_u32 s52, s52, 1")
        A("s_waitcnt lgkmcnt(0)")
        A("v_min_u32 v16, v16, v17")
        A("v_min3_u32 v16, v16, v18, v19")
        A("s_cmp_gt_u32 s52, %d" % POLL_MAX)
        A("v_readfirstlane_b32 s51, v16")
        A("s_cbranch_scc1 %s" % Lg)
        A("s_nop 1")
        A("s_cmp_gt_u32 s51, %d" % t)
        A("s_cbranch_scc1 %s" % Lg)
        A("s_sleep 1")
        A("s_branch %s" % Lw)
        A.label(Lg)
        A("ds_read_u16_d16_hi v40, v9 offset:%d" % (512 * t))
        A("ds_read_u16_d16_hi v41, v9 offset:%d" % (512 * t + CH_LDS))
        A("ds_read_u16_d16_hi v42, v10 offset:%d" % (512 * t))
        A("ds_read_u16_d16_hi v43, v10 offset:%d" % (512 * t + CH_LDS))
        A("s_waitcnt lgkmcnt(0)")
        streams = []
        for p in range(2):
            x, xn, t1 = X + 4 * t + 2 * p, XN + 4 * t + 2 * p, T1 + 4 * t + 2 * p
            tm = 56 + 4 * p
            P = Asm()
            P("v_pk_mul_f32 %s, %s, %s" % (v(tm, 2), v(xn, 2), v(40 + 2 * p, 2)))
            round_pair(P, tm, tm + 1, tm + 2, 40)
            P("v_pk_add_f32 %s, %s, %s" % (v(t1, 2), v(x, 2), v(tm, 2)))
            round_pair(P, t1, t1 + 1, tm + 2, 40)
            P("v_pk_add_f32 %s, %s, %s" % (v(tm, 2), v(t1, 2), v(xn, 2)))
            P("v_cvt_pk_bf16_f32 %s, %s, %s" % (v(44 + 2 * (t % 2) + p), v(tm), v(tm + 1)))
            streams.append([l.strip() for l in P.lines])
        interleave(A, streams)
        A("s_mov_b32 s51, %d" % (t * 256 * 1152))
        A("buffer_store_dwordx2 %s, v6, s[20:23], s51 offen" % v(44 + 2 * (t % 2), 2))
        if t == 5:
            sel_loads()
            part_loads()
    st_(A, 5)
    first_then_poll(A, "sel", sel_loads_m, [181], 4, "0xff")
    for i in range(8):
        A("v_readlane_b32 %s, v180, %d" % (s(60 + i), i))
    A.nop(3)
    for i in range(8):
        Ls = A.newlabel("ns")
        A("s_and_b32 s51, %s, 0xffff" % s(60 + i))
        A("s_sub_u32 s51, 2047, s51")
        A("s_bfe_u32 s58, s51, 0x20006")
        A("s_cmp_lg_u32 s58, s43")
        A("s_cbranch_scc1 %s" % Ls)
        A("s_lshr_b32 s58, s51, 8")
        A("s_lshl_b32 s58, s58, 2")
        A("s_and_b32 s51, s51, 255")
        A("v_cmp_eq_u32 vcc, s51, v5")
        A("s_set_gpr_idx_on s58, gpr_idx(SRC0)")
        for k in range(4):
            A("v_mov_b32 %s, %s" % (v(20 + k), v(T1 + k)))
        for k in range(4):
            A("v_mov_b32 %s, %s" % (v(24 + k), v(XN + k)))
        A("s_set_gpr_idx_off")
        A("v_mov_b32 v52, %d" % (SIDE + 32 * i))
        A("s_mov_b64 exec, vcc")
        A("ds_write_b128 v52, v[20:23]")
        A("ds_write_b128 v52, v[24:27] offset:16")
        A("s_mov_b64 exec, -1")
        A.label(Ls)
    st_(A, 6)
    first_then_poll(A, "pp", part_loads, [161, 163, 165, 167, 169, 171, 173, 175, 177, 179], 2, "-1")
    st_(A, 7)
    A("v_add_f32 v16, v160, v164"); A("v_add_f32 v17, v162, v166")
    A("v_add_f32 v16, v16, v168");  A("v_add_f32 v17, v17, v170")
    A("v_add_f32 v16, v16, v172");  A("v_add_f32 v17, v17, v174")
    A("v_cndmask_b32 v18, 0, v176, s[56:57]"); A("v_cndmask_b32 v19, 0, v178, s[56:57]")
    A("v_add_f32 v16, v16, v18");   A("v_add_f32 v17, v17, v19")
    A("v_mov_b32 v18, v16"); A("v_mov_b32 v19, v17")
    A.nop(1)
    A("v_permlane16_swap_b32 v16, v18"); A("v_permlane16_swap_b32 v17, v19")
    A.nop(1)
    A("v_add_f32 v16, v16, v18"); A("v_add_f32 v17, v17, v19")
    A("v_mov_b32 v18, v16"); A("v_mov_b32 v19, v17")
    A.nop(1)
    A("v_permlane32_swap_b32 v16, v18"); A("v_permlane32_swap_b32 v17, v19")
    A.nop(1)
    A("v_add_f32 v16, v16, v18"); A("v_add_f32 v17, v17, v19")
    A("v_and_b32 v18, 7, v1")
    A("v_lshlrev_b32 v18, 4, v18")
    A("v_bfe_u32 v19, v1, 3, 1")
    A("v_lshl_add_u32 v18, v19, 3, v18")
    A("s_lshl_b32 s51, s43, 7")
    A("s_add_u32 s51, s51, %d" % RED)
    A("v_add_u32 v18, s51, v18")
    A("s_mov_b64 exec, 0xffff")
    A("ds_write_b64 v18, v[16:17]")
    A("s_mov_b64 exec, -1")
    A("s_waitcnt lgkmcnt(0)")
    A("s_barrier")
    Lend = A.newlabel("hend")
    A("s_cmp_lg_u32 s42, 4")
    A("s_cbranch_scc1 %s" % Lend)
    A("s_mov_b64 exec, 0xff")
    A("v_lshlrev_b32 v18, 4, v1")
    A("v_add_u32 v19, %d, v18" % RED)
    for w in range(4):
        A("ds_read_b128 %s, v19 offset:%d" % (v(20 + 4 * w, 4), 128 * w))
    A("v_lshlrev_b32 v19, 5, v1")
    A("v_add_u32 v19, %d, v19" % SIDE)
    A("ds_read_b128 v[36:39], v19")
    A("ds_read_b128 v[40:43], v19 offset:16")
    for i in range(8):
        A("v_writelane_b32 v44, %s, %d" % (s(60 + i), i))
    A.nop(2)
    A("v_lshrrev_b32 v45, 16, v44")
    A("v_and_b32 v46, 0x8000, v45")
    A("v_mov_b32 v47, 0xffff")
    A("v_mov_b32 v48, 0x8000")
    A("v_cmp_ne_u32 vcc, 0, v46")
    A.nop(2)
    A("v_cndmask_b32 v47, v47, v48, vcc")
    A("v_xor_b32 v45, v45, v47")
    A("v_lshlrev_b32 v45, 16, v45")
    A("v_mul_f32 v45, 0xbfb8aa3b, v45")
    A("v_exp_f32 v45, v45")
    A.nop(1)
    A("v_add_f32 v45, 1.0, v45")
    A("v_rcp_f32 v45, v45")
    A.nop(1)
    A("v_cvt_pk_bf16_f32 v45, v45, v45")
    A("v_lshlrev_b32 v45, 16, v45")
    A("v_and_b32 v44, 0xffff, v44")
    A("v_sub_u32 v44, 2047, v44")
    A("s_movk_i32 s51, 1152")
    A("v_mul_lo_u32 v44, v44, s51")
    A("s_lshl_b32 s51, s41, 3")
    A("v_add_u32 v44, s51, v44")
    A("s_waitcnt lgkmcnt(0)")
    for i in range(4):
        A("v_add_f32 %s, %s, %s" % (v(20 + i), v(20 + i), v(24 + i)))
        A("v_add_f32 %s, %s, %s" % (v(28 + i), v(28 + i), v(32 + i)))
    for i in range(4):
        A("v_add_f32 %s, %s, %s" % (v(20 + i), v(20 + i), v(28 + i)))
    round_pair(A, 20, 21, 24, 40); round_pair(A, 22, 23, 25, 40)
    for i in range(4):
        A("v_mul_f32 %s, %s, v45" % (v(20 + i), v(20 + i)))
    round_pair(A, 20, 21, 24, 40); round_pair(A, 22, 23, 25, 40)
    for i in range(4):
        A("v_add_f32 %s, %s, %s" % (v(20 + i), v(20 + i), v(40 + i)))
    round_pair(A, 20, 21, 24, 40); round_pair(A, 22, 23, 25, 40)
    for i in range(4):
        A("v_add_f32 %s, %s, %s" % (v(20 + i), v(20 + i), v(36 + i)))
    A("v_cvt_pk_bf16_f32 v24, v20, v21")
    A("v_cvt_pk_bf16_f32 v25, v22, v23")
    A("buffer_store_dwordx2 v[24:25], v44, s[20:23], 0 offen")
    A.label(Lend)
    st_(A, 8)
    A("s_endpgm")

def gen_conv_wg(A):
    A("s_and_b32 s43, s42, 3")
    A("s_lshl_b32 s44, s41, 2")
    A("s_add_u32 s44, s44, s43")
    A("s_mul_i32 s45, s43, %d" % CH_LDS)
    Lm = A.newlabel("cm"); Lh = A.newlabel("ch"); Lj = A.newlabel("cj")
    A("s_lshr_b32 s60, s41, 4")
    A("s_and_b32 s61, s41, 15")
    A("v_mov_b32 v200, 0"); A("v_mov_b32 v201, 0")
    A("s_cmp_ge_u32 s42, 4")
    A("s_cbranch_scc1 %s" % Lh)
    A("s_setprio 2")
    gen_kv_issue(A)
    gen_kv_addr(A)
    gen_kv_addr2(A)
    finish_tag(A)
    flags_barrier(A)
    A("s_waitcnt vmcnt(0)")
    A("s_branch %s" % Lj)
    A.label(Lh)
    gen_kv_addr(A)
    if not os.environ.get("NOQPF"):
        q_prefetch(A)
    gen_kv_addr2(A)
    finish_tag(A)
    A("s_waitcnt vmcnt(%d)" % (0 if os.environ.get("NOQPF") else 8))
    A.label(Lj)
    gen_kv_compute(A)
    publish_alive(A)
    A("s_barrier")
    A("s_cmp_lt_u32 s42, 4")
    A("s_cbranch_scc1 %s" % Lm)
    h_early_loads(A)
    gen_H(A)
    A.label(Lm)
    gen_M(A)

def finish_tag(A):
    A("s_waitcnt lgkmcnt(0)")
    A("s_mul_i32 s%d, s%d, 0x9E3779B1" % (TAG, TAG))
    A("s_add_u32 s%d, s%d, 0x7F4A7C15" % (TAG, TAG))

def flags_barrier(A, alive=False):
    A("v_mov_b32 v36, 0")
    A("v_mov_b32 v37, %d" % FLAGS)
    A("v_mov_b32 v38, 0"); A("v_mov_b32 v39, 0"); A("v_mov_b32 v40, 0"); A("v_mov_b32 v41, 0")
    A("ds_write_b128 v37, v[38:41]")
    A("s_waitcnt lgkmcnt(0)")

def publish_alive(A):
    Ln = A.newlabel("noalive")
    A("s_cmp_lg_u32 s42, 0")
    A("s_cbranch_scc1 %s" % Ln)
    A("s_lshl_b32 s63, s41, 2")
    A("s_add_u32 s63, s63, %d" % F_ALIVE)
    A("v_mov_b32 v37, s%d" % TAG)
    A("v_mov_b32 v36, 0")
    A("s_mov_b64 exec, 1")
    A("buffer_store_dword v37, v36, s[36:39], s63 offen sc1")
    A("s_mov_b64 exec, -1")
    A.label(Ln)


BITONIC8 = [(0,4),(1,5),(2,6),(3,7),(0,2),(1,3),(4,6),(5,7),(0,1),(2,3),(4,5),(6,7)]
def merge8(A, a, b, out, spare, dpp=None):
    for i in range(7, -1, -1):
        if dpp:
            A("v_max_u32_dpp %s, %s, %s %s bank_mask:0xf" % (v(out[i]), v(b[7 - i]), v(a[i]), dpp))
        else:
            A("v_max_u32 %s, %s, %s" % (v(out[i]), v(a[i]), v(b[7 - i])))
    return sort_desc(A, out, spare, BITONIC8)

def top8_wave(A, regs, spare, other):
    cur, oth = list(regs), list(other)
    for ctl in ("quad_perm:[1,0,3,2] row_mask:0xf", "quad_perm:[2,3,0,1] row_mask:0xf", "row_half_mirror row_mask:0xf",
                "row_mirror row_mask:0xf", "row_bcast:15 row_mask:0xa", "row_bcast:31 row_mask:0xc"):
        A.nop(1)
        free = list(cur)
        new, spare2 = merge8(A, cur, cur, oth, spare, dpp=ctl)
        pool = [r for r in (free + oth + [spare]) if r not in new]
        spare = pool[0]
        oth = pool[1:9]
        cur = new
    return cur, spare, oth

L_CNT = 162368

def lds_signal(A, k, vaddr, vone):
    A("s_mov_b64 exec, 1")
    A("ds_add_u32 %s, %s offset:%d" % (vaddr, vone, 4 * k))
    A("s_mov_b64 exec, -1")

def lds_wait(A, k, n, vaddr, vtmp, sleep=0):
    L = A.newlabel("lw"); Ld = A.newlabel("lwd")
    A("s_mov_b32 s52, 0")
    A.label(L)
    A("ds_read_b32 %s, %s offset:%d" % (vtmp, vaddr, 4 * k))
    A("s_add_u32 s52, s52, 1")
    A("s_waitcnt lgkmcnt(0)")
    A("s_cmp_gt_u32 s52, %d" % (POLL_MAX * 8))
    A("v_readfirstlane_b32 s51, %s" % vtmp)
    A("s_cbranch_scc1 %s" % Ld)
    A("s_nop 1")
    A("s_cmp_ge_u32 s51, %d" % n)
    A("s_cbranch_scc1 %s" % Ld)
    if sleep:
        A("s_sleep %d" % sleep)
    A("s_branch %s" % L)
    A.label(Ld)

def gen_moe_wg(A):
    T = "s%d" % TAG
    A("v_and_b32 v1, 63, v0")
    A("v_and_b32 v4, 255, v0")
    A("v_mov_b32 v8, %d" % L_CNT)
    A("v_mov_b32 v9, 1")
    Lt = A.newlabel("twave")
    A("s_cmp_ge_u32 s42, 4")
    A("s_cbranch_scc1 %s" % Lt)
    G, U, WD = 16, 88, 160
    A("v_mov_b32 v232, 0"); A("v_mov_b32 v233, 0"); A("v_mov_b32 v234, 0"); A("v_mov_b32 v235, 0")
    A("ds_write_b128 v8, v[232:235]"); A("ds_write_b128 v8, v[232:235] offset:16")
    srd(A, 48, PWG, D * F * 2)
    srd(A, 52, PWU, D * F * 2)
    srd(A, 56, PWD, D * F * 2)
    A("v_lshrrev_b32 v5, 3, v1")
    A("v_mul_u32_u24 v5, 9216, v5")
    A("v_bfe_u32 v6, v1, 4, 1")
    A("s_and_b32 s43, s42, 1")
    A("s_lshl_b32 s43, s43, 1")
    A("v_or_b32 v6, s43, v6")
    A("v_lshlrev_b32 v6, 1, v6")
    A("v_and_b32 v7, 7, v1")
    A("v_xor_b32 v6, v6, v7")
    A("v_lshl_add_u32 v5, v6, 4, v5")
    A("s_lshl_b32 s43, s41, 7")
    A("s_mul_i32 s44, s42, 73728")
    A("s_add_u32 s43, s43, s44")
    A("s_lshl_b32 s44, s42, 10")
    A("s_waitcnt lgkmcnt(0)")
    A("s_barrier")
    for j in range(18):
        A("s_mov_b32 m0, s44")
        A("s_add_u32 s45, s44, %d" % L_WU)
        A("buffer_load_dwordx4 v5, s[48:51], s43 offen lds" + NTS)
        A("s_mov_b32 m0, s45")
        A("s_add_u32 s44, s44, 4096")
        A("buffer_load_dwordx4 v5, s[52:55], s43 offen lds" + NTS)
        A("s_add_u32 s43, s43, %d" % (4 * 73728))
    A("v_lshrrev_b32 v6, 3, v4")
    A("v_mul_u32_u24 v7, 1152, v6")
    A("v_and_b32 v12, 7, v4")
    A("v_lshl_add_u32 v13, v12, 4, v7")
    A("s_mul_i32 s43, s41, 73728")
    A("s_add_u32 s44, s43, 36864")
    for k in range(9):
        A("buffer_load_dwordx4 %s, v13, s[56:59], s43 offen offset:%d" % (v(WD + 4 * k, 4), 128 * k) + NTS)
    for k in range(9):
        A("buffer_load_dwordx4 %s, v13, s[56:59], s44 offen offset:%d" % (v(WD + 36 + 4 * k, 4), 128 * k) + NTS)
    A("v_bfe_u32 v14, v6, 1, 1")
    A("v_bfe_u32 v11, v6, 3, 1")
    A("v_lshl_add_u32 v14, v11, 1, v14")
    A("v_lshlrev_b32 v14, 1, v14")
    A("v_xor_b32 v14, v14, v12")
    A("v_lshl_add_u32 v14, v14, 4, v7")
    A("v_add_u32 v15, 36864, v14")
    A("v_and_b32 v2, 15, v0")
    A("v_bfe_u32 v3, v0, 4, 2")
    A("v_lshrrev_b32 v10, 2, v2")
    A("v_lshl_add_u32 v11, v3, 3, v10")
    A("v_bfe_u32 v12, v2, 3, 1")
    A("v_and_b32 v13, 1, v3")
    A("v_lshl_add_u32 v12, v13, 1, v12")
    A("v_xor_b32 v12, s42, v12")
    A("v_and_b32 v13, 3, v2")
    A("v_lshlrev_b32 v13, 3, v13")
    A("v_lshl_add_u32 v12, v12, 5, v13")
    A("v_lshl_add_u32 v5, v11, 7, v12")
    A("v_add_u32 v6, 36864, v5")
    A("v_mul_u32_u24 v7, 1152, v11")
    A("v_add_u32 v7, v7, v12")
    A("v_add_u32 v10, 36864, v7")
    st_(A, 1)
    A("s_waitcnt vmcnt(0)")
    lds_signal(A, 0, "v8", "v9")
    lds_wait(A, 0, 4, "v8", "v11")
    st_(A, 2)
    A("v_add_u32 v12, %d, v5" % L_WU)
    A("v_add_u32 v13, %d, v6" % L_WU)
    for kk in range(18):
        bg, bu, ko = ("v5", "v12", kk) if kk < 9 else ("v6", "v13", kk - 9)
        A("ds_read_b64_tr_b16 %s, %s offset:%d" % (v(G + 4 * kk, 2), bg, 4096 * ko))
        A("ds_read_b64_tr_b16 %s, %s offset:%d" % (v(G + 4 * kk + 2, 2), bg, 4096 * ko + 512))
        A("ds_read_b64_tr_b16 %s, %s offset:%d" % (v(U + 4 * kk, 2), bu, 4096 * ko))
        A("ds_read_b64_tr_b16 %s, %s offset:%d" % (v(U + 4 * kk + 2, 2), bu, 4096 * ko + 512))
    A("s_waitcnt lgkmcnt(0)")
    lds_signal(A, 1, "v8", "v9")
    lds_wait(A, 1, 4, "v8", "v11")
    for k in range(9):
        A("ds_write_b128 v14, %s offset:%d" % (v(WD + 4 * k, 4), 128 * k))
    for k in range(9):
        A("ds_write_b128 v15, %s offset:%d" % (v(WD + 36 + 4 * k, 4), 128 * k))
    A("s_waitcnt lgkmcnt(0)")
    lds_signal(A, 2, "v8", "v9")
    lds_wait(A, 2, 4, "v8", "v11")
    for k in range(9):
        r = WD + 8 * k
        A("ds_read_b64_tr_b16 %s, v7 offset:%d" % (v(r, 2), 128 * k))
        A("ds_read_b64_tr_b16 %s, v7 offset:%d" % (v(r + 2, 2), 128 * k + 4 * 1152))
        A("ds_read_b64_tr_b16 %s, v10 offset:%d" % (v(r + 4, 2), 128 * k))
        A("ds_read_b64_tr_b16 %s, v10 offset:%d" % (v(r + 6, 2), 128 * k + 4 * 1152))
    A("v_and_b32 v12, 7, v2")
    A("v_mul_u32_u24 v5, %d, v12" % XSTR)
    A("v_lshl_add_u32 v5, v3, 4, v5")
    A("v_add_u32 v5, %d, v5" % L_X)
    A("v_mul_u32_u24 v6, %d, v2" % HSTR)
    A("v_lshl_add_u32 v6, v3, 3, v6")
    A("s_lshl_b32 s43, s42, 5")
    A("s_add_u32 s43, s43, %d" % L_HS)
    A("v_add_u32 v6, s43, v6")
    A("v_mul_u32_u24 v7, %d, v12" % HSTR)
    A("v_lshl_add_u32 v7, v3, 4, v7")
    A("v_add_u32 v7, %d, v7" % L_HS)
    A("v_mul_u32_u24 v10, 4608, v12")
    A("v_lshl_add_u32 v10, v3, 5, v10")
    A("v_bfe_u32 v13, v2, 3, 1")
    A("v_lshl_add_u32 v10, v13, 4, v10")
    A("v_cmp_eq_u32 s[56:57], 1, v13")
    A("s_mul_i32 s43, s41, 36864")
    A("s_lshl_b32 s44, s42, 7")
    A("s_add_u32 s43, s43, s44")
    A("s_add_u32 s43, s43, %d" % F_PARTG)
    A("v_mov_b32 v14, %d" % L_TAG)
    for i in range(8):
        A("v_mov_b32 %s, 0" % v(232 + i))
    A("s_waitcnt lgkmcnt(0)")
    st_(A, 3)
    lds_wait(A, 4, 4, "v8", "v11")
    st_(A, 4)
    A("ds_read_b32 v15, v14")
    XR = 240
    for kk in range(3):
        A("ds_read_b128 %s, v5 offset:%d" % (v(XR + 4 * kk, 4), 64 * kk))
    for kk in range(18):
        if kk + 3 < 18:
            A("ds_read_b128 %s, v5 offset:%d" % (v(XR + 4 * ((kk + 3) % 4), 4), 64 * (kk + 3)))
        A("s_waitcnt lgkmcnt(%d)" % min(3, 17 - kk))
        x = v(XR + 4 * (kk % 4), 4)
        A("v_mfma_f32_16x16x32_bf16 v[232:235], %s, %s, v[232:235]" % (v(G + 4 * kk, 4), x))
        A("v_mfma_f32_16x16x32_bf16 v[236:239], %s, %s, v[236:239]" % (v(U + 4 * kk, 4), x))
    A("v_readfirstlane_b32 %s, v15" % T)
    A.nop(6)
    round_pair(A, 232, 233, 16, 40); round_pair(A, 234, 235, 17, 40)
    for i in range(4):
        A("v_mul_f32 %s, 0xbfb8aa3b, %s" % (v(20 + i), v(232 + i)))
    for i in range(4):
        A("v_exp_f32 %s, %s" % (v(20 + i), v(20 + i)))
    round_pair(A, 236, 237, 16, 40); round_pair(A, 238, 239, 17, 40)
    for i in range(4):
        A("v_add_f32 %s, 1.0, %s" % (v(20 + i), v(20 + i)))
    for i in range(4):
        A("v_rcp_f32 %s, %s" % (v(20 + i), v(20 + i)))
    A.nop(1)
    for i in range(4):
        A("v_mul_f32 %s, %s, %s" % (v(232 + i), v(232 + i), v(20 + i)))
    A.nop(1)
    round_pair(A, 232, 233, 16, 40); round_pair(A, 234, 235, 17, 40)
    for i in range(4):
        A("v_mul_f32 %s, %s, %s" % (v(232 + i), v(232 + i), v(236 + i)))
    A.nop(1)
    A("v_cvt_pk_bf16_f32 v16, v232, v233")
    A("v_cvt_pk_bf16_f32 v17, v234, v235")
    A("v_cmp_gt_u32 vcc, 8, v2")
    A("s_and_saveexec_b64 s[44:45], vcc")
    A("ds_write_b64 v6, v[16:17]")
    A("s_mov_b64 exec, s[44:45]")
    for k in range(9):
        A("v_mov_b32 %s, %s" % (v(24 + 4 * k + 1), T)); A("v_mov_b32 %s, %s" % (v(24 + 4 * k + 3), T))
    A("s_waitcnt lgkmcnt(0)")
    lds_signal(A, 5, "v8", "v9")
    lds_wait(A, 5, 4, "v8", "v11")
    st_(A, 5)
    A("ds_read_b128 v[16:19], v7")
    A("ds_read_b128 v[20:23], v7 offset:64")
    A("s_waitcnt lgkmcnt(0)")
    AC = 88
    for k in range(9):
        r = WD + 8 * k
        A("v_mfma_f32_16x16x32_bf16 %s, %s, v[16:19], 0" % (v(AC + 4 * k, 4), v(r, 4)))
    for k in range(9):
        r = WD + 8 * k
        A("v_mfma_f32_16x16x32_bf16 %s, %s, v[20:23], %s" % (v(AC + 4 * k, 4), v(r + 4, 4), v(AC + 4 * k, 4)))
    for k in range(9):
        ac, o = AC + 4 * k, 24 + 4 * k
        A("v_cndmask_b32 %s, %s, %s, s[56:57]" % (v(o), v(ac), v(ac + 2)))
        A("v_cndmask_b32 %s, %s, %s, s[56:57]" % (v(o + 2), v(ac + 1), v(ac + 3)))
        A("buffer_store_dwordx4 %s, v10, s[36:39], s43 offen offset:%d sc1" % (v(o, 4), 512 * (k % 8)))
        if k == 7:
            A("s_add_u32 s43, s43, 4096")
    st_(A, 6)
    A("s_endpgm")
    A.label(Lt)
    A("s_setprio 3")
    A("s_lshl_b32 s60, s41, 2")
    A("s_add_u32 s60, s60, s42")
    A("s_sub_u32 s60, s60, 4")
    Q, WR, X = gen_ln(A)
    A("s_barrier")
    finish_tag(A)
    gen_ln_compute(A, Q, WR, X)
    srd(A, 16, PQ, S * ROWB)
    A("v_and_b32 v1, 63, v0")
    A("v_and_b32 v4, 255, v0")
    A("v_mov_b32 v8, %d" % L_CNT)
    A("v_mov_b32 v9, 1")
    A("v_lshlrev_b32 v15, 2, v1")
    A("v_lshlrev_b32 v16, 4, v1")
    A("s_and_b32 s43, s42, 3")
    A("s_lshl_b32 s43, s43, 12")
    A("v_add_u32 v16, s43, v16")
    def key_loads():
        A("s_movk_i32 s43, %d" % F_KEYG)
        for i in range(4):
            A("buffer_load_dwordx4 %s, v16, s[36:39], s43 offen offset:%d sc1" % (v(40 + 4 * i, 4), 1024 * i))
    masked_poll(A, "key", key_loads, list(range(41, 56, 2)), int(os.environ.get("KEYSLEEP", 16)), int(os.environ.get("KEYPRE", 8)))
    st_(A, 3)
    regs, sp = sort_desc(A, range(40, 56, 2), 41, SORT8)
    SK = 60
    free = [r for r in range(40, 57) if r not in regs and r != sp]
    cur, sp, oth = top8_wave(A, regs, sp, free[:8])
    for i in range(8):
        A("v_mov_b32 %s, %s" % (v(64 + i), v(cur[i])))
    A("s_and_b32 s43, s42, 3")
    A("s_lshl_b32 s43, s43, 5")
    A("s_add_u32 s43, s43, %d" % L_CAND)
    A("v_mov_b32 v16, s43")
    A("v_mov_b32 v31, %s" % T)
    A("v_mov_b32 v17, %d" % L_TAG)
    A("s_mov_b32 exec_lo, 0")
    A("s_mov_b32 exec_hi, 0x80000000")
    A("ds_write_b128 v16, v[64:67]")
    A("ds_write_b128 v16, v[68:71] offset:16")
    A("ds_write_b32 v17, v31")
    A("s_mov_b64 exec, -1")
    A("s_waitcnt lgkmcnt(0)")
    lds_signal(A, 3, "v8", "v9")
    lds_wait(A, 3, 4, "v8", "v11")
    A("v_mov_b32 v16, %d" % L_CAND)
    for i in range(8):
        A("ds_read_b128 %s, v16 offset:%d" % (v(64 + 4 * i, 4), 16 * i))
    A("s_waitcnt lgkmcnt(4)")
    c01, sp1 = merge8(A, list(range(64, 72)), list(range(72, 80)), list(range(40, 48)), 56)
    A("s_waitcnt lgkmcnt(0)")
    c23, sp2 = merge8(A, list(range(80, 88)), list(range(88, 96)), list(range(48, 56)), 57)
    for i in range(8):
        A("v_max_u32 %s, %s, %s" % (v(64 + i), v(c01[i]), v(c23[7 - i])))
    for i in range(8):
        A("v_readfirstlane_b32 %s, %s" % (s(SK + i), v(64 + i)))
    A.nop(3)
    st_(A, 5)
    A("s_and_b32 s45, s42, 3")
    A("s_mov_b32 s43, s60"); A("s_mov_b32 s44, s61")
    for w in range(1, 4):
        A("s_cmp_eq_u32 s45, %d" % w)
        A("s_cselect_b32 s43, %s, s43" % s(SK + 2 * w))
        A("s_cselect_b32 s44, %s, s44" % s(SK + 2 * w + 1))
    A("v_mov_b32 v16, s43"); A("v_mov_b32 v17, s44")
    A("v_cmp_lt_u32 vcc, 31, v1")
    A.nop(2)
    A("v_cndmask_b32 v16, v16, v17, vcc")
    A("v_and_b32 v16, 0xffff, v16")
    A("v_sub_u32 v16, 2047, v16")
    A("v_and_b32 v17, 31, v1")
    A("s_movk_i32 s43, 1152")
    A("v_mul_lo_u32 v18, v16, s43")
    A("v_lshl_add_u32 v18, v17, 2, v18")
    A("v_lshlrev_b32 v19, 4, v16")
    for i in range(9):
        A("buffer_load_dword %s, v18, s[16:19], 0 offen offset:%d" % (v(20 + i), 128 * i))
    def rg_loads():
        A("s_mov_b32 s43, %d" % F_ROWG)
        A("buffer_load_dwordx4 v[32:35], v19, s[36:39], s43 offen sc1")
    Lns = A.newlabel("nosel")
    A("s_cmp_lg_u32 s41, 0")
    A("s_cbranch_scc1 %s" % Lns)
    A("s_cmp_lg_u32 s42, 4")
    A("s_cbranch_scc1 %s" % Lns)
    for i in range(8):
        A("v_writelane_b32 v30, %s, %d" % (s(SK + i), i))
    A("v_lshlrev_b32 v36, 3, v1")
    A("s_movk_i32 s43, %d" % F_SELG)
    A("s_mov_b64 exec, 0xff")
    A("buffer_store_dwordx2 v[30:31], v36, s[36:39], s43 offen sc1")
    A("s_mov_b64 exec, -1")
    A.label(Lns)
    masked_poll(A, "rg", rg_loads, [33, 35], 2, 0)
    A("v_lshlrev_b32 v64, 16, v32"); A("v_and_b32 v68, s40, v32")
    A("v_mov_b32 v66, v34"); A("v_mov_b32 v67, v34")
    A("v_xor_b32 v64, 0x80000000, v64"); A("v_xor_b32 v68, 0x80000000, v68")
    A("v_mov_b32 v65, v64"); A("v_mov_b32 v69, v68")
    A("v_lshrrev_b32 v38, 5, v4")
    A("v_mul_u32_u24 v38, %d, v38" % XSTR)
    A("v_lshl_add_u32 v38, v17, 2, v38")
    A("v_add_u32 v38, %d, v38" % L_X)
    st_(A, 4)
    for i0 in range(0, 9, 3):
        streams = []
        for i in range(i0, i0 + 3):
            bs = 40 + 8 * (i % 3)
            ops = norm_ops(bs, bs + 2, bs + 4, 20 + i, 64)
            ops.append("v_cvt_pk_bf16_f32 %s, %s, %s" % (v(bs + 6), v(bs + 2), v(bs + 3)))
            ops.append("ds_write_b32 v38, %s offset:%d" % (v(bs + 6), 128 * i))
            streams.append(ops)
        interleave(A, streams)
    A("s_waitcnt lgkmcnt(0)")
    lds_signal(A, 4, "v8", "v9")
    st_(A, 6)
    Le = A.newlabel("noep")
    A("s_cmp_lg_u32 s41, 0")
    A("s_cbranch_scc1 %s" % Le)
    A("s_cmp_lg_u32 s42, 4")
    A("s_cbranch_scc1 %s" % Le)
    A("s_setprio 0")
    A("v_lshlrev_b32 v16, 2, v1")
    A("v_min_u32 v17, 15, v1")
    A("v_lshlrev_b32 v17, 2, v17")
    def al_loads():
        A("s_movk_i32 s43, %d" % F_ALIVE)
        A("buffer_load_dword v20, v16, s[36:39], s43 offen sc1")
        A("buffer_load_dword v21, v16, s[36:39], s43 offen offset:256 sc1")
        A("buffer_load_dword v22, v17, s[36:39], s43 offen offset:512 sc1")
    masked_poll(A, "al", al_loads, [20, 21, 22], 16, 0)
    A("v_mov_b32 v20, %s" % T)
    A("v_mov_b32 v21, %d" % F_EPOCH)
    A("s_mov_b64 exec, 1")
    A("buffer_store_dword v20, v21, s[36:39], 0 offen sc1")
    A("s_mov_b64 exec, -1")
    A.label(Le)
    A("s_endpgm")

def gen_spare_wg(A):
    A("s_lshl_b32 s60, s41, 3")
    A("s_add_u32 s60, s60, s42")
    A("s_add_u32 s60, s60, 288")
    Lx = A.newlabel("spx"); Lnl = A.newlabel("spnl")
    has_pf = bool(os.environ.get("WDPF"))
    def pf():
        srd(A, 56, PWD, D * F * 2)
        A("v_and_b32 v200, 63, v0")
        A("v_lshlrev_b32 v200, 4, v200")
        A("s_sub_u32 s63, s31, 27")
        A("s_lshl_b32 s63, s63, 3")
        A("s_add_u32 s63, s63, s42")
        A("s_lshl_b32 s63, s63, 14")
        A("s_mul_i32 s64, s30, 663552")
        A("s_add_u32 s63, s63, s64")
        pol = os.environ.get("WDPF")
        for i in range(16):
            A("buffer_load_dwordx4 v[204:207], v200, s[56:59], s63 offen offset:%d%s" % (1024 * (i % 4), " nt" if pol == "nt" else ""))
            if i % 4 == 3:
                A("s_add_u32 s63, s63, 4096")
    A("s_cmp_ge_u32 s60, 512")
    A("s_cbranch_scc1 %s" % Lnl)
    Q, WR, X = gen_ln(A)
    if has_pf:
        pf()
    finish_tag(A)
    gen_ln_compute(A, Q, WR, X, extra=(16 if has_pf else 0))
    A("s_endpgm")
    A.label(Lnl)
    if has_pf:
        pf()
        A("s_waitcnt vmcnt(0)")
    A("s_endpgm")

def gen_kernel(A, name):
    kernel_header(A, name)
    Ldone = A.newlabel("done"); Lmoe = A.newlabel("moe"); Lsp = A.newlabel("spare")
    A("s_getpc_b64 s[96:97]")
    A("s_cmp_ge_u32 s2, 256")
    A("s_cbranch_scc1 %s" % Ldone)
    A("s_load_dwordx4 s[68:71], s[0:1], %d" % KA_DBG)
    A("s_load_dwordx16 s[72:87], s[0:1], 0")
    A("s_load_dwordx8 s[88:95], s[0:1], %d" % KA_WG)
    A("v_lshrrev_b32 v1, 6, v0")
    A("s_and_b32 s30, s2, 7")
    A("s_lshr_b32 s31, s2, 3")
    A("v_readfirstlane_b32 s42, v1")
    A("s_mov_b32 s40, 0xffff0000")
    if not os.environ.get("NOICPF"):
        Lc = A.newlabel("noic")
        A("s_and_b32 s96, s96, 0xffffff00")
        A("s_and_b32 s97, s97, 0xffff")
        A("s_mov_b32 s98, L_code_end-%s" % name)
        A("s_mov_b32 s99, 0x00020000")
        A("v_and_b32 v243, 63, v0")
        A("v_lshlrev_b32 v243, 4, v243")
        A("s_lshl_b32 s95, s31, 10") if False else None
        A("s_lshl_b32 s3, s31, 10")
        A("v_cmp_lt_u32 vcc, 447, v0")
        A("s_cbranch_vccz %s" % Lc)
        A("buffer_load_dwordx4 v[244:247], v243, s[96:99], s3 offen")
        A.label(Lc)
    A("s_waitcnt lgkmcnt(0)")
    A("s_load_dword s%d, s[%d:%d], %d" % (TAG, PWS, PWS + 1, F_EPOCH))
    srd(A, 36, PWS, WS_SIZE)
    A("s_lshl_b32 s3, s2, 3")
    A("s_add_u32 s3, s3, s42")
    st_(A, 0)
    A("s_cmp_ge_u32 s31, 27")
    A("s_cbranch_scc1 %s" % Lsp)
    A("s_cmp_ge_u32 s31, 18")
    A("s_cbranch_scc1 %s" % Lmoe)
    A("s_mul_i32 s41, s30, 18")
    A("s_add_u32 s41, s41, s31")
    gen_conv_wg(A)
    A.label(Lmoe)
    A("s_mul_i32 s41, s30, 9")
    A("s_add_u32 s41, s41, s31")
    A("s_sub_u32 s41, s41, 18")
    gen_moe_wg(A)
    A.label(Lsp)
    A("s_mul_i32 s41, s30, 5")
    A("s_add_u32 s41, s41, s31")
    A("s_sub_u32 s41, s41, 27")
    gen_spare_wg(A)
    A.label(Ldone)
    A("s_endpgm")
    A.label("L_code_end")
    return kernel_desc(name, 256, 102, 256)
```

```python
from common import *
import common, os
from collections import deque
from conv2 import CS, CH_LDS, H_OFF, POLL_MAX, conv_schedule
from moe2 import wave_max_u32, L_WG, L_WU, L_X, L_HS, L_U, L_CAND, XSTR, HSTR
from moe3 import SORT8, sort_desc, rounds

F_EPOCH = 0x0
F_SELG = 0x100
F_ALIVE = 0x1000
F_KEYG = 0x2000
F_ROWG = 0x8000
F_URC = 0x10000
F_UR = 0x20000
F_PARTG = F_UR + 576 * 4096
L_TAG = 162304

PQ, PK, PV, PSHK, PSSMK, PSSMD, PWR, PWG, PWU, PWD, POUT, PWS = 72, 74, 76, 78, 80, 82, 86, 88, 90, 92, 94, 70
TAG = 46
NTS = '' if os.environ.get('NONT') else ' nt'
def st_(A, n):
    stamp(A, n, 36, 3, vt=254, st=96)

MISC = 4 * CH_LDS
FLAGS = MISC
SIDE = MISC + 64
RED = SIDE + 256
YOFF = H_OFF
W1, W0 = 20, 28
E_, G_, F_ = 36, 44, 50
UREG = 56
RING, NR, ACC, BS = 64, 6, 88, 120

DBGT = bool(os.environ.get("DBGT"))
def dbg_time(A, slot, invert=False):
    if not DBGT:
        return
    A("s_memrealtime s[96:97]")
    A("s_mov_b32 s100, s68")
    A("s_waitcnt lgkmcnt(0)")
    if invert:
        A("s_not_b32 s96, s96")
    A("v_mov_b32 v252, s96")
    A("v_mov_b32 v253, %d" % (4 * slot))
    A("s_mov_b64 s[98:99], exec")
    A("s_mov_b64 exec, 1")
    A("global_atomic_umax v253, v252, s[68:69]")
    A("s_mov_b64 exec, s[98:99]")

def poll_head(A, cnt="s52"):
    A("s_mov_b32 %s, 0" % cnt)

def poll_tail(A, Lloop, Ldone, cnt="s52", sleep=1):
    A("s_add_u32 %s, %s, 1" % (cnt, cnt))
    A("s_cmp_gt_u32 %s, %d" % (cnt, POLL_MAX))
    A("s_cbranch_scc1 %s" % Ldone)
    A("s_sleep %d" % sleep)
    A("s_branch %s" % Lloop)

def masked_poll(A, name, emit_loads, tagregs, sleep, pre_sleep=0, full_exec="-1"):
    T = "s%d" % TAG
    Lp = A.newlabel(name + "p"); Ld = A.newlabel(name + "ok")
    if pre_sleep:
        A("s_sleep %d" % pre_sleep)
    A("s_mov_b32 s52, 0")
    A.label(Lp)
    emit_loads()
    A("s_waitcnt vmcnt(0)")
    A("v_cmp_eq_u32 vcc, %s, %s" % (T, v(tagregs[0])))
    for r in tagregs[1:]:
        A("v_cmp_eq_u32 s[54:55], %s, %s" % (T, v(r)))
        A("s_and_b64 vcc, vcc, s[54:55]")
    A("s_andn2_b64 exec, exec, vcc")
    A("s_cbranch_scc0 %s" % Ld)
    A("s_add_u32 s52, s52, 1")
    A("s_cmp_gt_u32 s52, %d" % POLL_MAX)
    A("s_cbranch_scc1 %s" % Ld)
    A("s_sleep %d" % sleep)
    A("s_branch %s" % Lp)
    A.label(Ld)
    A("s_mov_b64 exec, %s" % full_exec)

def first_then_poll(A, name, emit_loads, tagregs, sleep, ex):
    T = "s%d" % TAG
    Lp = A.newlabel(name + "p"); Ld = A.newlabel(name + "ok")
    A("s_mov_b32 s52, 0")
    A.label(Lp)
    A("s_waitcnt vmcnt(0)")
    A("v_cmp_eq_u32 vcc, %s, %s" % (T, v(tagregs[0])))
    for r in tagregs[1:]:
        A("v_cmp_eq_u32 s[54:55], %s, %s" % (T, v(r)))
        A("s_and_b64 vcc, vcc, s[54:55]")
    A("s_andn2_b64 exec, exec, vcc")
    A("s_cbranch_scc0 %s" % Ld)
    A("s_add_u32 s52, s52, 1")
    A("s_cmp_gt_u32 s52, %d" % POLL_MAX)
    A("s_cbranch_scc1 %s" % Ld)
    A("s_sleep %d" % sleep)
    emit_loads()
    A("s_branch %s" % Lp)
    A.label(Ld)
    A("s_mov_b64 exec, -1")

LK, LV, SG, SGS = 0, 17408, 34816, 272

def row_xor_reduce(A, regs):
    for ctl in ("quad_perm:[1,0,3,2]", "quad_perm:[2,3,0,1]", "row_half_mirror", "row_mirror"):
        if len(regs) < 3:
            A.nop(3 - len(regs))
        for r in regs:
            A("v_xor_b32_dpp %s, %s, %s %s row_mask:0xf bank_mask:0xf" % (v(r), v(r), v(r), ctl))

def gen_kv_issue(A):
    srd(A, 48, PK, S * ROWB)
    srd(A, 52, PV, S * ROWB)
    A("v_and_b32 v1, 63, v0")
    A("v_lshrrev_b32 v4, 3, v1")
    A("v_mul_u32_u24 v4, 1152, v4")
    A("v_and_b32 v5, 7, v1")
    A("v_lshl_add_u32 v4, v5, 4, v4")
    A("s_mul_i32 s62, s61, %d" % (128 * 1152))
    A("s_lshl_b32 s63, s60, 7")
    A("s_add_u32 s62, s62, s63")
    A("s_mul_i32 s63, s42, 9216")
    A("s_add_u32 s62, s62, s63")
    A("s_sub_u32 s63, s62, 9216")
    A("s_lshl_b32 s64, s42, 10")
    for i in range(4):
        A("s_mov_b32 m0, s64")
        A("s_add_u32 s65, s64, %d" % LV)
        A("buffer_load_dwordx4 v4, s[48:51], s63 offen lds" + NTS)
        A("s_mov_b32 m0, s65")
        A("s_add_u32 s64, s64, 4096")
        A("buffer_load_dwordx4 v4, s[52:55], s62 offen lds" + NTS)
        A("s_add_u32 s63, s63, %d" % (32 * 1152))
        A("s_add_u32 s62, s62, %d" % (32 * 1152))
    Ln = A.newlabel("nok17")
    A("s_cmp_lg_u32 s42, 0")
    A("s_cbranch_scc1 %s" % Ln)
    A("s_mov_b32 m0, s64")
    A("s_nop 0")
    A("buffer_load_dwordx4 v4, s[48:51], s63 offen lds" + NTS)
    A.label(Ln)

def gen_kv_addr(A):
    srd(A, 56, PSHK, D * 8)
    A("v_and_b32 v2, 31, v0")
    A("s_lshl_b32 s63, s60, 9")
    A("v_lshl_add_u32 v29, v2, 4, s63")
    A("buffer_load_dwordx4 v[32:35], v29, s[56:59], 0 offen")

def gen_kv_addr2(A):
    A("v_lshrrev_b32 v3, 5, v0")
    A("v_lshlrev_b32 v6, 10, v3")
    A("v_lshl_add_u32 v6, v2, 2, v6")
    A("v_mul_u32_u24 v7, %d, v2" % (2 * SGS))
    A("v_sub_u32 v8, 15, v3")
    A("v_lshl_add_u32 v7, v8, 4, v7")
    A("v_add_u32 v7, %d, v7" % SG)
    A("v_bfe_u32 v10, v0, 4, 2")
    A("v_and_b32 v11, 15, v0")
    A("v_mul_u32_u24 v8, %d, v10" % SGS)
    A("v_lshl_add_u32 v8, v11, 4, v8")
    A("s_mul_i32 s63, s42, %d" % (8 * SGS))
    A("s_add_u32 s63, s63, %d" % SG)
    A("v_add_u32 v8, s63, v8")
    A("v_lshlrev_b32 v9, 12, v10")
    A("v_lshl_add_u32 v9, v11, 4, v9")
    A("s_lshl_b32 s63, s60, 6")
    A("s_lshl_b32 s64, s42, 3")
    A("s_add_u32 s63, s63, s64")
    A("s_lshl_b32 s65, s63, 12")
    A("s_lshl_b32 s64, s61, 8")
    A("s_sub_u32 s65, s65, s64")
    A("s_add_u32 s65, s65, %d" % (F_UR + 240 * 16))
    A("v_add_u32 v9, s65, v9")
    A("v_lshlrev_b32 v12, 6, v10")
    A("s_lshl_b32 s65, s63, 6")
    A("s_lshl_b32 s64, s61, 2")
    A("s_sub_u32 s65, s65, s64")
    A("s_add_u32 s65, s65, %d" % (F_URC + 60))
    A("v_add_u32 v12, s65, v12")
    A("v_cmp_eq_u32 s[66:67], 0, v11")

def gen_kv_compute(A):
    A("s_barrier")
    st_(A, 1)
    dbg_time(A, 8)
    for i in range(11):
        A("ds_read_b32 %s, v6 offset:%d" % (v(14 + i), LK + (5 + i) * 128))
    for i in range(8):
        A("ds_read_b32 %s, v6 offset:%d" % (v(40 + i), LV + i * 128))
    A("v_lshlrev_b32 v54, 16, v32"); A("v_lshlrev_b32 v55, 16, v34")
    A("v_and_b32 v56, s40, v32");    A("v_and_b32 v57, s40, v34")
    A("v_lshlrev_b32 v58, 16, v33"); A("v_lshlrev_b32 v59, 16, v35")
    A("v_and_b32 v60, s40, v33");    A("v_and_b32 v61, s40, v35")
    W, K, KV = 54, 62, 100
    A("s_waitcnt lgkmcnt(8)")
    for i in range(11):
        unpack_pair(A, K + 2 * i, K + 2 * i + 1, 14 + i, 40)
    A("s_waitcnt lgkmcnt(0)")
    def pr_(r):
        return "v[%d:%d]" % (r, r + 1)
    def row_ops(i, acc, tmp, t3):
        P = Asm()
        P("v_pk_mul_f32 %s, %s, %s" % (pr_(acc), pr_(K + 2 * (i + 0)), pr_(W + 6)))
        round_pair(P, acc, acc + 1, t3, 40)
        for t in range(1, 4):
            P("v_pk_mul_f32 %s, %s, %s" % (pr_(tmp), pr_(K + 2 * (i + t)), pr_(W + 2 * (3 - t))))
            round_pair(P, tmp, tmp + 1, t3, 40)
            P("v_pk_add_f32 %s, %s, %s" % (pr_(acc), pr_(acc), pr_(tmp)))
            round_pair(P, acc, acc + 1, t3, 40)
        unpack_pair(P, tmp, tmp + 1, 40 + i, 40)
        P("v_pk_mul_f32 %s, %s, %s" % (pr_(KV + 2 * i), pr_(acc), pr_(tmp)))
        return [l.strip() for l in P.lines]
    for i in range(0, 8, 4):
        interleave(A, [row_ops(i, 84, 86, 88), row_ops(i + 1, 90, 92, 94), row_ops(i + 2, 132, 134, 136), row_ops(i + 3, 138, 140, 142)])
    for c in range(2):
        for j in range(4):
            A("v_cvt_pk_bf16_f32 %s, %s, %s" % (v(116 + 4 * c + j), v(KV + 2 * (7 - 2 * j) + c), v(KV + 2 * (6 - 2 * j) + c)))
    A("ds_write_b128 v7, v[116:119]")
    A("ds_write_b128 v7, v[120:123] offset:%d" % SGS)
    A("s_waitcnt lgkmcnt(0)")
    A("s_barrier")
    A("ds_read_b128 v[116:119], v8")
    A("ds_read_b128 v[120:123], v8 offset:%d" % (4 * SGS))
    A("s_movk_i32 s63, 16384")
    A("s_waitcnt lgkmcnt(1)")
    A("buffer_store_dwordx4 v[116:119], v9, s[36:39], 0 offen sc1")
    A("v_xor_b32 v124, v116, v117"); A("v_xor_b32 v126, v118, v119")
    A("s_waitcnt lgkmcnt(0)")
    A("buffer_store_dwordx4 v[120:123], v9, s[36:39], s63 offen sc1")
    A("v_xor_b32 v125, v120, v121"); A("v_xor_b32 v127, v122, v123")
    A("v_xor_b32 v124, v124, v126"); A("v_xor_b32 v125, v125, v127")
    row_xor_reduce(A, [124, 125])
    A("v_xor_b32 v124, s%d, v124" % TAG); A("v_xor_b32 v125, s%d, v125" % TAG)
    A("s_mov_b64 exec, s[66:67]")
    A("buffer_store_dword v124, v12, s[36:39], 0 offen sc1")
    A("buffer_store_dword v125, v12, s[36:39], 0 offen offset:256 sc1")
    A("s_mov_b64 exec, -1")
    st_(A, 2)

def gen_ln(A):
    srd(A, 48, PQ, S * ROWB)
    srd(A, 52, PWR, D * 2)
    A("v_and_b32 v1, 63, v0")
    A("v_and_b32 v2, 15, v0")
    A("v_lshrrev_b32 v3, 4, v1")
    A("s_lshl_b32 s61, s60, 2")
    A("v_add_u32 v30, s61, v3")
    A("s_movk_i32 s62, 1152")
    A("v_mul_lo_u32 v6, v30, s62")
    A("v_lshl_add_u32 v6, v2, 3, v6")
    A("v_lshlrev_b32 v7, 3, v2")
    Q, WR, X = 64, 84, 104
    for i in range(9):
        A("buffer_load_dwordx2 %s, v6, s[48:51], 0 offen offset:%d" % (v(Q + 2 * i, 2), 128 * i))
    for i in range(9):
        A("buffer_load_dwordx2 %s, v7, s[52:55], 0 offen offset:%d" % (v(WR + 2 * i, 2), 128 * i))
    return Q, WR, X

def gen_ln_compute(A, Q, WR, X, extra=0):
    A("s_waitcnt vmcnt(%d)" % (9 + extra))
    st_(A, 1)
    for i in range(18):
        unpack_pair(A, X + 2 * i, X + 2 * i + 1, Q + i, 40)
    A("v_pk_add_f32 v[8:9], %s, %s" % (v(X, 2), v(X + 2, 2)))
    A("v_pk_add_f32 v[10:11], %s, %s" % (v(X + 4, 2), v(X + 6, 2)))
    for i in range(4, 18, 2):
        A("v_pk_add_f32 v[8:9], v[8:9], %s" % v(X + 2 * i, 2))
        A("v_pk_add_f32 v[10:11], v[10:11], %s" % v(X + 2 * i + 2, 2))
    A("v_pk_add_f32 v[8:9], v[8:9], v[10:11]")
    A.nop(1)
    A("v_add_f32 v8, v8, v9")
    allreduce16_add(A, 8)
    A("v_mul_f32 v8, 0x3ae38e39, v8")
    A("v_sub_f32 v12, 0, v8")
    A("v_sub_f32 v13, 0, v8")
    for r in (14, 15, 16, 17):
        A("v_mov_b32 %s, 0" % v(r))
    for i in range(0, 18, 2):
        A("v_pk_add_f32 v[18:19], %s, v[12:13]" % v(X + 2 * i, 2))
        A("v_pk_add_f32 v[20:21], %s, v[12:13]" % v(X + 2 * i + 2, 2))
        A("v_pk_fma_f32 v[14:15], v[18:19], v[18:19], v[14:15]")
        A("v_pk_fma_f32 v[16:17], v[20:21], v[20:21], v[16:17]")
    A("v_pk_add_f32 v[14:15], v[14:15], v[16:17]")
    A.nop(1)
    A("v_add_f32 v14, v14, v15")
    allreduce16_add(A, 14)
    A("v_mul_f32 v14, 0x3ae38e39, v14")
    A.nop(1)
    round_pair(A, 8, 14, 9, 40)
    A("v_add_f32 v14, 0x3727c5ac, v14")
    A.nop(1)
    A("v_cvt_pk_bf16_f32 v9, v14, v14")
    A("v_lshlrev_b32 v14, 16, v9")
    A("v_sqrt_f32 v14, v14")
    A.nop(1)
    A("v_cvt_pk_bf16_f32 v9, v14, v14")
    A("v_lshlrev_b32 v14, 16, v9")
    A("v_rcp_f32 v15, v14")
    A.nop(1)
    A("v_fma_f32 v16, -v14, v15, 1.0")
    A("v_fma_f32 v15, v16, v15, v15")
    A("v_sub_f32 v12, 0, v8"); A("v_sub_f32 v13, 0, v8")
    A("v_mov_b32 v16, v15"); A("v_mov_b32 v17, v15")
    for r in (22, 23, 24, 25):
        A("v_mov_b32 %s, 0" % v(r))
    A("s_waitcnt vmcnt(%d)" % extra)
    def ops(i, tm, acc):
        x0 = X + 2 * i
        P = Asm()
        P("v_pk_add_f32 %s, %s, v[12:13]" % (v(x0, 2), v(x0, 2)))
        round_pair(P, x0, x0 + 1, tm, 40)
        P("v_pk_mul_f32 %s, %s, v[16:17]" % (v(x0, 2), v(x0, 2)))
        round_pair(P, x0, x0 + 1, tm, 40)
        unpack_pair(P, tm + 2, tm + 3, WR + i, 40)
        P("v_pk_fma_f32 %s, %s, %s, %s" % (v(acc, 2), v(x0, 2), v(tm + 2, 2), v(acc, 2)))
        return [l.strip() for l in P.lines]
    for i in range(0, 18, 2):
        interleave(A, [ops(i, 26, 22), ops(i + 1, 32, 24)])
    A("v_pk_add_f32 v[22:23], v[22:23], v[24:25]")
    A.nop(1)
    A("v_add_f32 v22, v22, v23")
    allreduce16_add(A, 22)
    A.nop(1)
    A("v_cvt_pk_bf16_f32 v23, v22, v22")
    A("v_lshlrev_b32 v23, 16, v23")
    A("v_ashrrev_i32 v24, 31, v23")
    A("v_or_b32 v24, 0x80000000, v24")
    A("v_xor_b32 v23, v23, v24")
    A("v_and_b32 v23, s40, v23")
    A("v_sub_u32 v24, 2047, v30")
    A("v_or_b32 v26, v23, v24")
    A("v_mov_b32 v27, s%d" % TAG)
    A("v_cvt_pk_bf16_f32 v32, v8, v14")
    A("v_mov_b32 v33, s%d" % TAG)
    A("v_mov_b32 v34, v15")
    A("v_mov_b32 v35, s%d" % TAG)
    A("v_lshlrev_b32 v28, 3, v30")
    A("v_lshlrev_b32 v29, 4, v30")
    A("s_movk_i32 s61, %d" % F_KEYG)
    A("s_mov_b32 s62, %d" % F_ROWG)
    A("v_cmp_eq_u32 vcc, 0, v2")
    A("s_and_saveexec_b64 s[50:51], vcc")
    A("buffer_store_dwordx2 v[26:27], v28, s[36:39], s61 offen sc1")
    A("buffer_store_dwordx4 v[32:35], v29, s[36:39], s62 offen sc1")
    A("s_mov_b64 exec, s[50:51]")
    st_(A, 2)

def build_ops(W, N, off):
    ops = []
    for k in range(7):
        ops.append("v_alignbit_b32 %s, %s, %s, 16" % (v(E_ + k), v(W + k + 1), v(W + k)))
    ops.append("ds_write_b128 v11, %s offset:%d" % (v(W + 2, 4), 4 * CS + off))
    for k in range(3):
        ops.append("v_pk_mov_b32 %s, %s, %s op_sel:[1,0]" % (v(G_ + 2 * k, 2), v(W + 2 * k, 2), v(W + 2 * k + 2, 2)))
    ops.append("ds_write_b128 v11, %s offset:%d" % (v(E_, 4), 1 * CS + off))
    ops.append("ds_write_b128 v11, %s offset:%d" % (v(E_ + 2, 4), 5 * CS + off))
    for k in range(3):
        ops.append("v_pk_mov_b32 %s, %s, %s op_sel:[1,0]" % (v(F_ + 2 * k, 2), v(E_ + 2 * k, 2), v(E_ + 2 * k + 2, 2)))
    ops.append("ds_write_b128 v11, %s offset:%d" % (v(G_, 4), 2 * CS + off))
    ops.append("ds_write_b128 v11, %s offset:%d" % (v(G_ + 2, 4), 6 * CS + off))
    ops.append("s_nop 0")
    ops.append("ds_write_b128 v11, %s offset:%d" % (v(F_, 4), 3 * CS + off))
    ops.append("ds_write_b128 v11, %s offset:%d" % (v(F_ + 2, 4), 7 * CS + off))
    return ops

def gen_M(A):
    A("s_setprio %d" % int(os.environ.get("MPRIO", 2)))
    srd(A, 32, PSSMK, D * S * 2)
    A("v_and_b32 v1, 63, v0")
    A("v_lshlrev_b32 v4, 4, v1")
    A("s_add_u32 s56, s45, %d" % (H_OFF + 512))
    A("s_lshl_b32 s57, s44, 12")
    A("s_mov_b32 m0, s56")
    A("s_lshl_b32 s51, s44, 1")
    for i in range(4):
        A("buffer_load_dwordx4 v4, s[32:35], s57 offen offset:%d lds" % (1024 * i) + NTS)
    A("s_add_u32 s56, s56, 4096")
    A("s_add_u32 s57, s57, 4096")
    A("s_mov_b32 m0, s56")
    A("s_mov_b64 exec, 0x3")
    A("buffer_load_dwordx4 v4, s[32:35], s57 offen lds" + NTS)
    A("s_mov_b64 exec, -1")
    A("s_and_b32 s52, s51, 0xfffffffc")
    A("s_add_u32 s54, s%d, s52" % PSSMD)
    A("s_addc_u32 s55, s%d, 0" % (PSSMD + 1))
    A("s_load_dword s53, s[54:55], 0")
    A("v_and_b32 v2, 15, v0")
    A("v_bfe_u32 v3, v0, 4, 2")
    A("v_mov_b32 v12, 0"); A("v_mov_b32 v13, 0"); A("v_mov_b32 v14, 0"); A("v_mov_b32 v15, 0")
    A("v_add_u32 v11, s45, v4")
    A("s_mov_b32 exec_hi, 0")
    A("ds_write_b128 v11, v[12:15] offset:%d" % H_OFF)
    A("s_mov_b64 exec, 0x3")
    for c in range(8):
        pass
    A("ds_write_b128 v11, v[12:15]")
    A("s_mov_b64 exec, 0xf")
    A("ds_write_b128 v11, v[12:15] offset:%d" % (258 * 16))
    A("s_mov_b64 exec, -1")
    A("v_lshlrev_b32 v5, 5, v2")
    A("v_lshl_add_u32 v5, v3, 4, v5")
    A("v_add_u32 v5, s45, v5")
    A("v_add_u32 v5, %d, v5" % H_OFF)
    A("v_and_b32 v8, 7, v2")
    A("v_sub_u32 v8, 7, v8")
    A("v_mul_u32_u24 v8, %d, v8" % CS)
    A("v_lshrrev_b32 v6, 3, v2")
    A("v_sub_u32 v6, v3, v6")
    A("v_lshlrev_b32 v6, 4, v6")
    A("v_add_u32 v8, v8, v6")
    A("v_add_u32 v8, 16, v8")
    A("v_add_u32 v9, s45, v8")
    A("v_lshlrev_b32 v6, 5, v2")
    A("v_lshl_add_u32 v6, v3, 3, v6")
    A("v_sub_u32 v7, %d, v6" % (4120 - 3584))
    A("v_add_u32 v7, s45, v7")
    A("v_add_u32 v6, s45, v6")
    A("v_add_u32 v6, %d, v6" % YOFF)
    A("s_lshl_b32 s49, s43, 2")
    A("s_add_u32 s49, s49, %d" % FLAGS)
    A("v_mov_b32 v10, s49")
    for i in range(32):
        A("v_mov_b32 %s, 0" % v(ACC + i))
    A("s_lshl_b32 s48, s44, 12")
    A("s_add_u32 s48, s48, %d" % F_UR)
    A("v_lshlrev_b32 v16, 2, v3")
    A("s_lshl_b32 s50, s44, 6")
    A("s_add_u32 s50, s50, %d" % F_URC)
    A("s_sleep %d" % int(os.environ.get("URPRE", 16)))
    Lp = A.newlabel("urp"); Ld = A.newlabel("urok")
    A("s_mov_b32 s52, 0")
    A.label(Lp)
    for i in range(4):
        A("buffer_load_dwordx4 %s, v4, s[36:39], s48 offen offset:%d sc1" % (v(120 + 4 * i, 4), 1024 * i))
    for i in range(4):
        A("buffer_load_dword %s, v16, s[36:39], s50 offen offset:%d sc1" % (v(136 + i), 16 * i))
    A("s_waitcnt vmcnt(0)")
    for i in range(4):
        A("v_xor_b32 %s, %s, %s" % (v(140 + i), v(120 + 4 * i), v(121 + 4 * i)))
    for i in range(4):
        A("v_xor_b32 %s, %s, %s" % (v(144 + i), v(122 + 4 * i), v(123 + 4 * i)))
    for i in range(4):
        A("v_xor_b32 %s, %s, %s" % (v(140 + i), v(140 + i), v(144 + i)))
    row_xor_reduce(A, [140, 141, 142, 143])
    for i in range(4):
        A("v_xor_b32 %s, %s, %s" % (v(140 + i), v(140 + i), v(136 + i)))
    A("v_cmp_eq_u32 vcc, s%d, v140" % TAG)
    for i in range(1, 4):
        A("v_cmp_eq_u32 s[54:55], s%d, %s" % (TAG, v(140 + i)))
        A("s_and_b64 vcc, vcc, s[54:55]")
    A("s_cmp_eq_u64 vcc, -1")
    A("s_cbranch_scc1 %s" % Ld)
    A("s_add_u32 s52, s52, 1")
    A("s_cmp_gt_u32 s52, %d" % POLL_MAX)
    A("s_cbranch_scc1 %s" % Ld)
    A("s_sleep %d" % int(os.environ.get("URSLEEP", 8)))
    A("s_branch %s" % Lp)
    A.label(Ld)
    st_(A, 3)
    dbg_time(A, 5)
    for i in range(4):
        A("ds_write_b128 v11, %s offset:%d" % (v(120 + 4 * i, 4), 32 + 1024 * i))
    A("s_waitcnt lgkmcnt(0)")
    for (W, off) in ((152, 4096), (160, 3072), (168, 2048), (W1, 1024), (W0, 0)):
        A("ds_read_b128 %s, v11 offset:%d" % (v(W, 4), off))
        A("ds_read_b128 %s, v11 offset:%d" % (v(W + 4, 4), off + 16))
    A("s_waitcnt lgkmcnt(8)")
    A("s_mov_b64 exec, 0x1f")
    for o in build_ops(152, 0, 4096): A(o)
    A("s_mov_b64 exec, -1")
    A("s_waitcnt lgkmcnt(11)")
    for o in build_ops(160, 0, 3072): A(o)
    A("s_waitcnt lgkmcnt(14)")
    for o in build_ops(168, 0, 2048): A(o)
    A("s_waitcnt lgkmcnt(0)")
    st_(A, 4)
    hi_steps, lo_frags, lo_slot, lo_steps = conv_schedule()
    def bslot(sl):
        return v(BS + 4 * sl, 4)
    order, seen = [], set()
    for q, lst in hi_steps:
        for t, sl in lst:
            if sl not in seen:
                seen.add(sl); order.append(sl)
    aseq = [q for q in range(33)] + [q for q in range(65)]
    issued = []
    def issue(tag, txt):
        A(txt); issued.append(tag)
    def wait_for(tags):
        idx = max(len(issued) - 1 - issued[::-1].index(t) for t in tags)
        n = len(issued) - 1 - idx
        A("s_waitcnt lgkmcnt(%d)" % min(n, 15))
    def a_issue(k):
        issue(("A", k), "ds_read_b128 %s, v9 offset:%d" % (v(RING + 4 * (k % NR), 4), 64 * (64 - aseq[k])))
    def b_issue(sl):
        issue(("B", sl), "ds_read_b128 %s, v5 offset:%d" % (bslot(sl), 64 * (56 - sl + 8)))
    fill = deque()
    cnt = [0]
    def emit_fill(k):
        while k > 0 and fill:
            f = fill.popleft(); f(); cnt[0] += 1; k -= 1
    def add_plain(txt):
        if txt.startswith("ds_"):
            fill.append(lambda txt=txt: issue(("W",), txt))
        else:
            fill.append(lambda txt=txt: A(txt))
    a_issue(0)
    for sl in order[:5]:
        b_issue(sl)
    nextA = 1
    for k in range(1, NR):
        a_issue(nextA); nextA += 1
        b_issue(order[5 + k - 1])
    nextB = 5 + (NR - 1)
    A("s_and_b32 s52, s51, 2")
    A("s_lshl_b32 s52, s52, 3")
    A("s_lshr_b32 s53, s53, s52")
    A("s_lshl_b32 s53, s53, 16")
    A("v_mov_b32 v18, s53"); A("v_mov_b32 v19, s53")
    n = 0
    fu = {}
    for q, lst in hi_steps:
        for t, sl in lst:
            fu.setdefault(sl, q)
    for q, lst in hi_steps:
        while nextB < len(order) and fu[order[nextB]] <= q + 3:
            b_issue(order[nextB]); nextB += 1
        wait_for([("A", n)] + [("B", sl) for _, sl in lst])
        for t, sl in lst:
            A("v_mfma_f32_16x16x32_bf16 %s, %s, %s, %s" % (v(ACC + 4 * t, 4), v(RING + 4 * (n % NR), 4), bslot(sl), v(ACC + 4 * t, 4)))
        if nextA < len(aseq):
            a_issue(nextA); nextA += 1
        if q < 32:
            issue(("L", q), "ds_read_b128 %s, v5 offset:%d" % (bslot(q), 64 * (lo_frags[q] + 8)))
        n += 1
    st_(A, 5)
    def tile_epilogue(t):
        u0 = UREG + 2 * (t % 2)
        ac = ACC + 4 * t
        fill.append(lambda: wait_for([("U", t)] + ([("L", 31)] if t == 0 else [])))
        P = Asm()
        P("v_and_b32 v12, s40, %s" % v(u0 + 1))
        P("v_lshlrev_b32 v13, 16, %s" % v(u0 + 1))
        P("v_and_b32 v14, s40, %s" % v(u0))
        P("v_lshlrev_b32 v15, 16, %s" % v(u0))
        P("v_pk_mul_f32 v[12:13], v[12:13], v[18:19]")
        P("v_pk_mul_f32 v[14:15], v[14:15], v[18:19]")
        round_pair(P, 12, 13, 16, 40)
        round_pair(P, 14, 15, 17, 40)
        round_pair(P, ac, ac + 1, 16, 40)
        round_pair(P, ac + 2, ac + 3, 17, 40)
        P("v_pk_add_f32 v[12:13], v[12:13], %s" % v(ac, 2))
        P("v_pk_add_f32 v[14:15], v[14:15], %s" % v(ac + 2, 2))
        P("v_cvt_pk_bf16_f32 v16, v12, v13")
        P("v_cvt_pk_bf16_f32 v17, v14, v15")
        for l in P.lines:
            add_plain(l.strip())
        fill.append(lambda: issue(("Y", t), "ds_write_b64 v6, v[16:17] offset:%d" % (512 * t)))
        fill.append(lambda: A("v_mov_b32 v8, %d" % (t + 1)))
        for _ in range(3):
            fill.append(lambda: None)
        fill.append(lambda: wait_for([("Y", t)]))
        fill.append(lambda: issue(("F", t), "ds_write_b32 v10, v8"))
    for o in build_ops(W1, 0, 1024): add_plain(o)
    n1 = len(fill)
    for o in build_ops(W0, 0, 0): add_plain(o)
    n0 = len(fill)
    for q, lst in lo_steps:
        wait_for([("A", n)] + [("L", sl) for _, sl in lst])
        k = len(lst)
        per = 2 if k >= 2 else 1
        for i, (t, sl) in enumerate(lst):
            A("v_mfma_f32_16x16x32_bf16 %s, %s, %s, %s" % (v(ACC + 4 * t, 4), v(RING + 4 * (n % NR), 4), bslot(sl), v(ACC + 4 * t, 4)))
            if i < k - 1 or k == 1:
                emit_fill(per)
        if nextA < len(aseq):
            qq = aseq[nextA]
            if nextA >= 33 and qq >= 33:
                assert cnt[0] >= n1
            if nextA >= 33 and qq >= 49:
                assert cnt[0] >= n0
            a_issue(nextA); nextA += 1
        n += 1
        if q % 8 == 4:
            t = q // 8
            issue(("U", t), "ds_read_b64 %s, v7 offset:%d" % (v(UREG + 2 * (t % 2), 2), 512 * (7 - t)))
        if q >= 9 and (q - 9) % 8 == 0 and (q - 9) // 8 < 7:
            tile_epilogue((q - 9) // 8)
    A.nop(4)
    st_(A, 6)
    tile_epilogue(7)
    emit_fill(1000)
    st_(A, 7)
    dbg_time(A, 1)
    A("s_endpgm")

XQ = 208
def h_early_loads(A):
    srd(A, 16, PQ, S * ROWB)
    A("v_and_b32 v201, 255, v0")
    A("s_movk_i32 s63, 1152")
    A("v_mul_lo_u32 v200, v201, s63")
    A("s_lshl_b32 s63, s41, 3")
    A("v_add_u32 v200, s63, v200")
    return 8

def strip_loads(A):
    A("s_mov_b32 s63, 0")
    for t in range(8):
        A("buffer_load_dwordx2 %s, v200, s[16:19], s63 offen" % v(XQ + 2 * t, 2))
        A("s_add_u32 s63, s63, %d" % (256 * 1152))

def q_prefetch(A):
    srd(A, 16, PQ, S * ROWB)
    Ln = A.newlabel("noqpf")
    A("v_and_b32 v202, 15, v0")
    A("v_bfe_u32 v203, v0, 4, 2")
    A("v_mul_u32_u24 v203, 1152, v203")
    A("v_lshl_add_u32 v202, v202, 4, v203")
    A("s_mul_i32 s63, s30, 144")
    A("s_and_b32 s63, s63, 0xffffff80")
    A("s_min_u32 s64, s31, 15")
    A("s_lshl_b32 s64, s64, 7")
    A("s_sub_u32 s65, s42, 4")
    A("s_lshl_b32 s65, s65, 5")
    A("s_add_u32 s64, s64, s65")
    A("s_mul_i32 s64, s64, 1152")
    A("s_add_u32 s63, s63, s64")
    for i in range(8):
        A("buffer_load_dwordx4 v[204:207], v202, s[16:19], s63 offen")
        A("s_add_u32 s63, s63, %d" % (4 * 1152))

def gen_H(A):
    srd(A, 20, POUT, S * ROWB)
    T = "s%d" % TAG
    A("v_and_b32 v1, 63, v0")
    A("v_mov_b32 v5, v201")
    A("v_mov_b32 v6, v200")
    A("v_lshlrev_b32 v7, 4, v5")
    RG = 160
    def row_loads():
        for t in range(8):
            A("s_mov_b32 s51, %d" % (F_ROWG + 4096 * t))
            A("buffer_load_dwordx4 %s, v7, s[36:39], s51 offen sc1" % v(RG + 4 * t, 4))
    A("s_setprio %d" % int(os.environ.get("HPRIO", 0)))
    strip_loads(A)
    masked_poll(A, "row", row_loads, list(range(RG + 1, RG + 32, 2)), int(os.environ.get("ROWSLEEP", 8)), 0)
    st_(A, 3)
    X, XN, T1 = 64, 96, 128
    for t in range(8):
        g = RG + 4 * t
        st = 44 + 6 * (t % 2)
        A("v_lshlrev_b32 %s, 16, %s" % (v(st), v(g)))
        A("v_and_b32 %s, s40, %s" % (v(st + 4), v(g)))
        A("v_mov_b32 %s, %s" % (v(st + 2), v(g + 2)))
        A("v_xor_b32 %s, 0x80000000, %s" % (v(st), v(st)))
        A("v_xor_b32 %s, 0x80000000, %s" % (v(st + 4), v(st + 4)))
        A("v_mov_b32 %s, %s" % (v(st + 3), v(g + 2)))
        A("v_mov_b32 %s, %s" % (v(st + 1), v(st)))
        A("v_mov_b32 %s, %s" % (v(st + 5), v(st + 4)))
        streams = []
        for p in range(2):
            x, xn = X + 4 * t + 2 * p, XN + 4 * t + 2 * p
            tm = 56 + 4 * p
            ops = norm_ops(x, xn, tm, XQ + 2 * t + p, st)
            P = Asm(); round_pair(P, xn, xn + 1, tm + 2, 40)
            streams.append(ops + [l.strip() for l in P.lines])
        interleave(A, streams)
    st_(A, 4)
    A("v_lshlrev_b32 v9, 1, v5")
    A("v_add_u32 v9, %d, v9" % YOFF)
    A("v_add_u32 v10, %d, v9" % (2 * CH_LDS))
    A("v_mov_b32 v11, %d" % FLAGS)
    for i in range(4):
        A("v_mov_b32 %s, 0" % v(40 + i))
    A("v_and_b32 v12, 7, v5")
    A("v_mul_u32_u24 v12, 4608, v12")
    A("v_bfe_u32 v13, v5, 3, 1")
    A("v_lshl_add_u32 v12, v13, 4, v12")
    A("v_lshrrev_b32 v13, 4, v5")
    A("v_mul_u32_u24 v14, 36864, v13")
    A("v_add_u32 v12, v12, v14")
    A("s_lshl_b32 s51, s41, 5")
    A("s_add_u32 s51, s51, %d" % F_PARTG)
    A("v_add_u32 v12, s51, v12")
    A("v_add_u32 v14, %d, v12" % (64 * 36864))
    A("v_cmp_gt_u32 vcc, 8, v13")
    A.nop(2)
    A("v_cndmask_b32 v14, v12, v14, vcc")
    A("s_mov_b64 s[56:57], vcc")
    A("v_and_b32 v8, 7, v1")
    A("v_lshlrev_b32 v8, 3, v8")
    def sel_loads():
        A("s_movk_i32 s51, %d" % F_SELG)
        A("buffer_load_dwordx2 v[180:181], v8, s[36:39], s51 offen sc1")
    sel_loads_m = sel_loads
    def part_loads():
        A("s_mov_b32 s51, 0")
        for i in range(4):
            A("buffer_load_dwordx4 %s, v12, s[36:39], s51 offen sc1" % v(160 + 4 * i, 4))
            A("s_add_u32 s51, s51, %d" % (16 * 36864))
        A("buffer_load_dwordx4 v[176:179], v14, s[36:39], 0 offen sc1")
    for t in range(8):
        Lw = A.newlabel("yw"); Lg = A.newlabel("yg")
        A("s_mov_b32 s52, 0")
        A.label(Lw)
        A("ds_read_b128 v[16:19], v11")
        A("s_add_u32 s52, s52, 1")
        A("s_waitcnt lgkmcnt(0)")
        A("v_min_u32 v16, v16, v17")
        A("v_min3_u32 v16, v16, v18, v19")
        A("s_cmp_gt_u32 s52, %d" % POLL_MAX)
        A("v_readfirstlane_b32 s51, v16")
        A("s_cbranch_scc1 %s" % Lg)
        A("s_nop 1")
        A("s_cmp_gt_u32 s51, %d" % t)
        A("s_cbranch_scc1 %s" % Lg)
        A("s_sleep 1")
        A("s_branch %s" % Lw)
        A.label(Lg)
        A("ds_read_u16_d16_hi v40, v9 offset:%d" % (512 * t))
        A("ds_read_u16_d16_hi v41, v9 offset:%d" % (512 * t + CH_LDS))
        A("ds_read_u16_d16_hi v42, v10 offset:%d" % (512 * t))
        A("ds_read_u16_d16_hi v43, v10 offset:%d" % (512 * t + CH_LDS))
        A("s_waitcnt lgkmcnt(0)")
        streams = []
        for p in range(2):
            x, xn, t1 = X + 4 * t + 2 * p, XN + 4 * t + 2 * p, T1 + 4 * t + 2 * p
            tm = 56 + 4 * p
            P = Asm()
            P("v_pk_mul_f32 %s, %s, %s" % (v(tm, 2), v(xn, 2), v(40 + 2 * p, 2)))
            round_pair(P, tm, tm + 1, tm + 2, 40)
            P("v_pk_add_f32 %s, %s, %s" % (v(t1, 2), v(x, 2), v(tm, 2)))
            round_pair(P, t1, t1 + 1, tm + 2, 40)
            P("v_pk_add_f32 %s, %s, %s" % (v(tm, 2), v(t1, 2), v(xn, 2)))
            P("v_cvt_pk_bf16_f32 %s, %s, %s" % (v(44 + 2 * (t % 2) + p), v(tm), v(tm + 1)))
            streams.append([l.strip() for l in P.lines])
        interleave(A, streams)
        A("s_mov_b32 s51, %d" % (t * 256 * 1152))
        A("buffer_store_dwordx2 %s, v6, s[20:23], s51 offen" % v(44 + 2 * (t % 2), 2))
        if t == 5:
            sel_loads()
            part_loads()
    st_(A, 5)
    first_then_poll(A, "sel", sel_loads_m, [181], 4, "0xff")
    for i in range(8):
        A("v_readlane_b32 %s, v180, %d" % (s(60 + i), i))
    A.nop(3)
    for i in range(8):
        Ls = A.newlabel("ns")
        A("s_and_b32 s51, %s, 0xffff" % s(60 + i))
        A("s_sub_u32 s51, 2047, s51")
        A("s_bfe_u32 s58, s51, 0x20006")
        A("s_cmp_lg_u32 s58, s43")
        A("s_cbranch_scc1 %s" % Ls)
        A("s_lshr_b32 s58, s51, 8")
        A("s_lshl_b32 s58, s58, 2")
        A("s_and_b32 s51, s51, 255")
        A("v_cmp_eq_u32 vcc, s51, v5")
        A("s_set_gpr_idx_on s58, gpr_idx(SRC0)")
        for k in range(4):
            A("v_mov_b32 %s, %s" % (v(20 + k), v(T1 + k)))
        for k in range(4):
            A("v_mov_b32 %s, %s" % (v(24 + k), v(XN + k)))
        A("s_set_gpr_idx_off")
        A("v_mov_b32 v52, %d" % (SIDE + 32 * i))
        A("s_mov_b64 exec, vcc")
        A("ds_write_b128 v52, v[20:23]")
        A("ds_write_b128 v52, v[24:27] offset:16")
        A("s_mov_b64 exec, -1")
        A.label(Ls)
    st_(A, 6)
    first_then_poll(A, "pp", part_loads, [161, 163, 165, 167, 169, 171, 173, 175, 177, 179], 2, "-1")
    st_(A, 7)
    A("v_add_f32 v16, v160, v164"); A("v_add_f32 v17, v162, v166")
    A("v_add_f32 v16, v16, v168");  A("v_add_f32 v17, v17, v170")
    A("v_add_f32 v16, v16, v172");  A("v_add_f32 v17, v17, v174")
    A("v_cndmask_b32 v18, 0, v176, s[56:57]"); A("v_cndmask_b32 v19, 0, v178, s[56:57]")
    A("v_add_f32 v16, v16, v18");   A("v_add_f32 v17, v17, v19")
    A("v_mov_b32 v18, v16"); A("v_mov_b32 v19, v17")
    A.nop(1)
    A("v_permlane16_swap_b32 v16, v18"); A("v_permlane16_swap_b32 v17, v19")
    A.nop(1)
    A("v_add_f32 v16, v16, v18"); A("v_add_f32 v17, v17, v19")
    A("v_mov_b32 v18, v16"); A("v_mov_b32 v19, v17")
    A.nop(1)
    A("v_permlane32_swap_b32 v16, v18"); A("v_permlane32_swap_b32 v17, v19")
    A.nop(1)
    A("v_add_f32 v16, v16, v18"); A("v_add_f32 v17, v17, v19")
    A("v_and_b32 v18, 7, v1")
    A("v_lshlrev_b32 v18, 4, v18")
    A("v_bfe_u32 v19, v1, 3, 1")
    A("v_lshl_add_u32 v18, v19, 3, v18")
    A("s_lshl_b32 s51, s43, 7")
    A("s_add_u32 s51, s51, %d" % RED)
    A("v_add_u32 v18, s51, v18")
    A("s_mov_b64 exec, 0xffff")
    A("ds_write_b64 v18, v[16:17]")
    A("s_mov_b64 exec, -1")
    A("s_waitcnt lgkmcnt(0)")
    A("s_barrier")
    Lend = A.newlabel("hend")
    A("s_cmp_lg_u32 s42, 4")
    A("s_cbranch_scc1 %s" % Lend)
    A("s_mov_b64 exec, 0xff")
    A("v_lshlrev_b32 v18, 4, v1")
    A("v_add_u32 v19, %d, v18" % RED)
    for w in range(4):
        A("ds_read_b128 %s, v19 offset:%d" % (v(20 + 4 * w, 4), 128 * w))
    A("v_lshlrev_b32 v19, 5, v1")
    A("v_add_u32 v19, %d, v19" % SIDE)
    A("ds_read_b128 v[36:39], v19")
    A("ds_read_b128 v[40:43], v19 offset:16")
    for i in range(8):
        A("v_writelane_b32 v44, %s, %d" % (s(60 + i), i))
    A.nop(2)
    A("v_lshrrev_b32 v45, 16, v44")
    A("v_and_b32 v46, 0x8000, v45")
    A("v_mov_b32 v47, 0xffff")
    A("v_mov_b32 v48, 0x8000")
    A("v_cmp_ne_u32 vcc, 0, v46")
    A.nop(2)
    A("v_cndmask_b32 v47, v47, v48, vcc")
    A("v_xor_b32 v45, v45, v47")
    A("v_lshlrev_b32 v45, 16, v45")
    A("v_mul_f32 v45, 0xbfb8aa3b, v45")
    A("v_exp_f32 v45, v45")
    A.nop(1)
    A("v_add_f32 v45, 1.0, v45")
    A("v_rcp_f32 v45, v45")
    A.nop(1)
    A("v_cvt_pk_bf16_f32 v45, v45, v45")
    A("v_lshlrev_b32 v45, 16, v45")
    A("v_and_b32 v44, 0xffff, v44")
    A("v_sub_u32 v44, 2047, v44")
    A("s_movk_i32 s51, 1152")
    A("v_mul_lo_u32 v44, v44, s51")
    A("s_lshl_b32 s51, s41, 3")
    A("v_add_u32 v44, s51, v44")
    A("s_waitcnt lgkmcnt(0)")
    for i in range(4):
        A("v_add_f32 %s, %s, %s" % (v(20 + i), v(20 + i), v(24 + i)))
        A("v_add_f32 %s, %s, %s" % (v(28 + i), v(28 + i), v(32 + i)))
    for i in range(4):
        A("v_add_f32 %s, %s, %s" % (v(20 + i), v(20 + i), v(28 + i)))
    round_pair(A, 20, 21, 24, 40); round_pair(A, 22, 23, 25, 40)
    for i in range(4):
        A("v_mul_f32 %s, %s, v45" % (v(20 + i), v(20 + i)))
    round_pair(A, 20, 21, 24, 40); round_pair(A, 22, 23, 25, 40)
    for i in range(4):
        A("v_add_f32 %s, %s, %s" % (v(20 + i), v(20 + i), v(40 + i)))
    round_pair(A, 20, 21, 24, 40); round_pair(A, 22, 23, 25, 40)
    for i in range(4):
        A("v_add_f32 %s, %s, %s" % (v(20 + i), v(20 + i), v(36 + i)))
    A("v_cvt_pk_bf16_f32 v24, v20, v21")
    A("v_cvt_pk_bf16_f32 v25, v22, v23")
    A("buffer_store_dwordx2 v[24:25], v44, s[20:23], 0 offen")
    A.label(Lend)
    st_(A, 8)
    dbg_time(A, 2)
    A("s_endpgm")

def gen_conv_wg(A):
    A("s_and_b32 s43, s42, 3")
    A("s_lshl_b32 s44, s41, 2")
    A("s_add_u32 s44, s44, s43")
    A("s_mul_i32 s45, s43, %d" % CH_LDS)
    Lm = A.newlabel("cm"); Lh = A.newlabel("ch"); Lj = A.newlabel("cj")
    A("s_lshr_b32 s60, s41, 4")
    A("s_and_b32 s61, s41, 15")
    A("v_mov_b32 v200, 0"); A("v_mov_b32 v201, 0")
    A("s_cmp_ge_u32 s42, 4")
    A("s_cbranch_scc1 %s" % Lh)
    A("s_setprio 2")
    gen_kv_issue(A)
    gen_kv_addr(A)
    gen_kv_addr2(A)
    finish_tag(A)
    flags_barrier(A)
    A("s_waitcnt vmcnt(0)")
    A("s_branch %s" % Lj)
    A.label(Lh)
    gen_kv_addr(A)
    if not os.environ.get("NOQPF"):
        q_prefetch(A)
    gen_kv_addr2(A)
    finish_tag(A)
    A("s_waitcnt vmcnt(%d)" % (0 if os.environ.get("NOQPF") else 8))
    A.label(Lj)
    gen_kv_compute(A)
    publish_alive(A)
    A("s_barrier")
    A("s_cmp_lt_u32 s42, 4")
    A("s_cbranch_scc1 %s" % Lm)
    h_early_loads(A)
    gen_H(A)
    A.label(Lm)
    gen_M(A)

def finish_tag(A):
    A("s_waitcnt lgkmcnt(0)")
    A("s_mul_i32 s%d, s%d, 0x9E3779B1" % (TAG, TAG))
    A("s_add_u32 s%d, s%d, 0x7F4A7C15" % (TAG, TAG))

def flags_barrier(A, alive=False):
    A("v_mov_b32 v36, 0")
    A("v_mov_b32 v37, %d" % FLAGS)
    A("v_mov_b32 v38, 0"); A("v_mov_b32 v39, 0"); A("v_mov_b32 v40, 0"); A("v_mov_b32 v41, 0")
    A("ds_write_b128 v37, v[38:41]")
    A("s_waitcnt lgkmcnt(0)")

def publish_alive(A):
    Ln = A.newlabel("noalive")
    A("s_cmp_lg_u32 s42, 0")
    A("s_cbranch_scc1 %s" % Ln)
    A("s_lshl_b32 s63, s41, 2")
    A("s_add_u32 s63, s63, %d" % F_ALIVE)
    A("v_mov_b32 v37, s%d" % TAG)
    A("v_mov_b32 v36, 0")
    A("s_mov_b64 exec, 1")
    A("buffer_store_dword v37, v36, s[36:39], s63 offen sc1")
    A("s_mov_b64 exec, -1")
    A.label(Ln)


BITONIC8 = [(0,4),(1,5),(2,6),(3,7),(0,2),(1,3),(4,6),(5,7),(0,1),(2,3),(4,5),(6,7)]
def merge8(A, a, b, out, spare, dpp=None):
    for i in range(7, -1, -1):
        if dpp:
            A("v_max_u32_dpp %s, %s, %s %s bank_mask:0xf" % (v(out[i]), v(b[7 - i]), v(a[i]), dpp))
        else:
            A("v_max_u32 %s, %s, %s" % (v(out[i]), v(a[i]), v(b[7 - i])))
    return sort_desc(A, out, spare, BITONIC8)

def top8_wave(A, regs, spare, other):
    cur, oth = list(regs), list(other)
    for ctl in ("quad_perm:[1,0,3,2] row_mask:0xf", "quad_perm:[2,3,0,1] row_mask:0xf", "row_half_mirror row_mask:0xf",
                "row_mirror row_mask:0xf", "row_bcast:15 row_mask:0xa", "row_bcast:31 row_mask:0xc"):
        A.nop(1)
        free = list(cur)
        new, spare2 = merge8(A, cur, cur, oth, spare, dpp=ctl)
        pool = [r for r in (free + oth + [spare]) if r not in new]
        spare = pool[0]
        oth = pool[1:9]
        cur = new
    return cur, spare, oth

L_CNT = 162368

def lds_signal(A, k, vaddr, vone):
    A("s_mov_b64 exec, 1")
    A("ds_add_u32 %s, %s offset:%d" % (vaddr, vone, 4 * k))
    A("s_mov_b64 exec, -1")

def lds_wait(A, k, n, vaddr, vtmp, sleep=0):
    L = A.newlabel("lw"); Ld = A.newlabel("lwd")
    A("s_mov_b32 s52, 0")
    A.label(L)
    A("ds_read_b32 %s, %s offset:%d" % (vtmp, vaddr, 4 * k))
    A("s_add_u32 s52, s52, 1")
    A("s_waitcnt lgkmcnt(0)")
    A("s_cmp_gt_u32 s52, %d" % (POLL_MAX * 8))
    A("v_readfirstlane_b32 s51, %s" % vtmp)
    A("s_cbranch_scc1 %s" % Ld)
    A("s_nop 1")
    A("s_cmp_ge_u32 s51, %d" % n)
    A("s_cbranch_scc1 %s" % Ld)
    if sleep:
        A("s_sleep %d" % sleep)
    A("s_branch %s" % L)
    A.label(Ld)

def gen_moe_wg(A):
    T = "s%d" % TAG
    A("v_and_b32 v1, 63, v0")
    A("v_and_b32 v4, 255, v0")
    A("v_mov_b32 v8, %d" % L_CNT)
    A("v_mov_b32 v9, 1")
    Lt = A.newlabel("twave")
    A("s_cmp_ge_u32 s42, 4")
    A("s_cbranch_scc1 %s" % Lt)
    G, U, WD = 16, 88, 160
    A("v_mov_b32 v232, 0"); A("v_mov_b32 v233, 0"); A("v_mov_b32 v234, 0"); A("v_mov_b32 v235, 0")
    A("ds_write_b128 v8, v[232:235]"); A("ds_write_b128 v8, v[232:235] offset:16")
    srd(A, 48, PWG, D * F * 2)
    srd(A, 52, PWU, D * F * 2)
    srd(A, 56, PWD, D * F * 2)
    A("v_lshrrev_b32 v5, 3, v1")
    A("v_mul_u32_u24 v5, 9216, v5")
    A("v_bfe_u32 v6, v1, 4, 1")
    A("s_and_b32 s43, s42, 1")
    A("s_lshl_b32 s43, s43, 1")
    A("v_or_b32 v6, s43, v6")
    A("v_lshlrev_b32 v6, 1, v6")
    A("v_and_b32 v7, 7, v1")
    A("v_xor_b32 v6, v6, v7")
    A("v_lshl_add_u32 v5, v6, 4, v5")
    A("s_lshl_b32 s43, s41, 7")
    A("s_mul_i32 s44, s42, 73728")
    A("s_add_u32 s43, s43, s44")
    A("s_lshl_b32 s44, s42, 10")
    A("s_waitcnt lgkmcnt(0)")
    A("s_barrier")
    for j in range(18):
        A("s_mov_b32 m0, s44")
        A("s_add_u32 s45, s44, %d" % L_WU)
        A("buffer_load_dwordx4 v5, s[48:51], s43 offen lds" + NTS)
        A("s_mov_b32 m0, s45")
        A("s_add_u32 s44, s44, 4096")
        A("buffer_load_dwordx4 v5, s[52:55], s43 offen lds" + NTS)
        A("s_add_u32 s43, s43, %d" % (4 * 73728))
    A("v_lshrrev_b32 v6, 3, v4")
    A("v_mul_u32_u24 v7, 1152, v6")
    A("v_and_b32 v12, 7, v4")
    A("v_lshl_add_u32 v13, v12, 4, v7")
    A("s_mul_i32 s43, s41, 73728")
    A("s_add_u32 s44, s43, 36864")
    for k in range(9):
        A("buffer_load_dwordx4 %s, v13, s[56:59], s43 offen offset:%d" % (v(WD + 4 * k, 4), 128 * k) + NTS)
    for k in range(9):
        A("buffer_load_dwordx4 %s, v13, s[56:59], s44 offen offset:%d" % (v(WD + 36 + 4 * k, 4), 128 * k) + NTS)
    A("v_bfe_u32 v14, v6, 1, 1")
    A("v_bfe_u32 v11, v6, 3, 1")
    A("v_lshl_add_u32 v14, v11, 1, v14")
    A("v_lshlrev_b32 v14, 1, v14")
    A("v_xor_b32 v14, v14, v12")
    A("v_lshl_add_u32 v14, v14, 4, v7")
    A("v_add_u32 v15, 36864, v14")
    A("v_and_b32 v2, 15, v0")
    A("v_bfe_u32 v3, v0, 4, 2")
    A("v_lshrrev_b32 v10, 2, v2")
    A("v_lshl_add_u32 v11, v3, 3, v10")
    A("v_bfe_u32 v12, v2, 3, 1")
    A("v_and_b32 v13, 1, v3")
    A("v_lshl_add_u32 v12, v13, 1, v12")
    A("v_xor_b32 v12, s42, v12")
    A("v_and_b32 v13, 3, v2")
    A("v_lshlrev_b32 v13, 3, v13")
    A("v_lshl_add_u32 v12, v12, 5, v13")
    A("v_lshl_add_u32 v5, v11, 7, v12")
    A("v_add_u32 v6, 36864, v5")
    A("v_mul_u32_u24 v7, 1152, v11")
    A("v_add_u32 v7, v7, v12")
    A("v_add_u32 v10, 36864, v7")
    st_(A, 1)
    A("s_waitcnt vmcnt(0)")
    lds_signal(A, 0, "v8", "v9")
    lds_wait(A, 0, 4, "v8", "v11")
    st_(A, 2)
    dbg_time(A, 7)
    A("v_add_u32 v12, %d, v5" % L_WU)
    A("v_add_u32 v13, %d, v6" % L_WU)
    for kk in range(18):
        bg, bu, ko = ("v5", "v12", kk) if kk < 9 else ("v6", "v13", kk - 9)
        A("ds_read_b64_tr_b16 %s, %s offset:%d" % (v(G + 4 * kk, 2), bg, 4096 * ko))
        A("ds_read_b64_tr_b16 %s, %s offset:%d" % (v(G + 4 * kk + 2, 2), bg, 4096 * ko + 512))
        A("ds_read_b64_tr_b16 %s, %s offset:%d" % (v(U + 4 * kk, 2), bu, 4096 * ko))
        A("ds_read_b64_tr_b16 %s, %s offset:%d" % (v(U + 4 * kk + 2, 2), bu, 4096 * ko + 512))
    A("s_waitcnt lgkmcnt(0)")
    lds_signal(A, 1, "v8", "v9")
    lds_wait(A, 1, 4, "v8", "v11")
    for k in range(9):
        A("ds_write_b128 v14, %s offset:%d" % (v(WD + 4 * k, 4), 128 * k))
    for k in range(9):
        A("ds_write_b128 v15, %s offset:%d" % (v(WD + 36 + 4 * k, 4), 128 * k))
    A("s_waitcnt lgkmcnt(0)")
    lds_signal(A, 2, "v8", "v9")
    lds_wait(A, 2, 4, "v8", "v11")
    for k in range(9):
        r = WD + 8 * k
        A("ds_read_b64_tr_b16 %s, v7 offset:%d" % (v(r, 2), 128 * k))
        A("ds_read_b64_tr_b16 %s, v7 offset:%d" % (v(r + 2, 2), 128 * k + 4 * 1152))
        A("ds_read_b64_tr_b16 %s, v10 offset:%d" % (v(r + 4, 2), 128 * k))
        A("ds_read_b64_tr_b16 %s, v10 offset:%d" % (v(r + 6, 2), 128 * k + 4 * 1152))
    A("v_and_b32 v12, 7, v2")
    A("v_mul_u32_u24 v5, %d, v12" % XSTR)
    A("v_lshl_add_u32 v5, v3, 4, v5")
    A("v_add_u32 v5, %d, v5" % L_X)
    A("v_mul_u32_u24 v6, %d, v2" % HSTR)
    A("v_lshl_add_u32 v6, v3, 3, v6")
    A("s_lshl_b32 s43, s42, 5")
    A("s_add_u32 s43, s43, %d" % L_HS)
    A("v_add_u32 v6, s43, v6")
    A("v_mul_u32_u24 v7, %d, v12" % HSTR)
    A("v_lshl_add_u32 v7, v3, 4, v7")
    A("v_add_u32 v7, %d, v7" % L_HS)
    A("v_mul_u32_u24 v10, 4608, v12")
    A("v_lshl_add_u32 v10, v3, 5, v10")
    A("v_bfe_u32 v13, v2, 3, 1")
    A("v_lshl_add_u32 v10, v13, 4, v10")
    A("v_cmp_eq_u32 s[56:57], 1, v13")
    A("s_mul_i32 s43, s41, 36864")
    A("s_lshl_b32 s44, s42, 7")
    A("s_add_u32 s43, s43, s44")
    A("s_add_u32 s43, s43, %d" % F_PARTG)
    A("v_mov_b32 v14, %d" % L_TAG)
    for i in range(8):
        A("v_mov_b32 %s, 0" % v(232 + i))
    A("s_waitcnt lgkmcnt(0)")
    st_(A, 3)
    lds_wait(A, 4, 4, "v8", "v11")
    st_(A, 4)
    A("ds_read_b32 v15, v14")
    XR = 240
    for kk in range(3):
        A("ds_read_b128 %s, v5 offset:%d" % (v(XR + 4 * kk, 4), 64 * kk))
    for kk in range(18):
        if kk + 3 < 18:
            A("ds_read_b128 %s, v5 offset:%d" % (v(XR + 4 * ((kk + 3) % 4), 4), 64 * (kk + 3)))
        A("s_waitcnt lgkmcnt(%d)" % min(3, 17 - kk))
        x = v(XR + 4 * (kk % 4), 4)
        A("v_mfma_f32_16x16x32_bf16 v[232:235], %s, %s, v[232:235]" % (v(G + 4 * kk, 4), x))
        A("v_mfma_f32_16x16x32_bf16 v[236:239], %s, %s, v[236:239]" % (v(U + 4 * kk, 4), x))
    A("v_readfirstlane_b32 %s, v15" % T)
    A.nop(6)
    round_pair(A, 232, 233, 16, 40); round_pair(A, 234, 235, 17, 40)
    for i in range(4):
        A("v_mul_f32 %s, 0xbfb8aa3b, %s" % (v(20 + i), v(232 + i)))
    for i in range(4):
        A("v_exp_f32 %s, %s" % (v(20 + i), v(20 + i)))
    round_pair(A, 236, 237, 16, 40); round_pair(A, 238, 239, 17, 40)
    for i in range(4):
        A("v_add_f32 %s, 1.0, %s" % (v(20 + i), v(20 + i)))
    for i in range(4):
        A("v_rcp_f32 %s, %s" % (v(20 + i), v(20 + i)))
    A.nop(1)
    for i in range(4):
        A("v_mul_f32 %s, %s, %s" % (v(232 + i), v(232 + i), v(20 + i)))
    A.nop(1)
    round_pair(A, 232, 233, 16, 40); round_pair(A, 234, 235, 17, 40)
    for i in range(4):
        A("v_mul_f32 %s, %s, %s" % (v(232 + i), v(232 + i), v(236 + i)))
    A.nop(1)
    A("v_cvt_pk_bf16_f32 v16, v232, v233")
    A("v_cvt_pk_bf16_f32 v17, v234, v235")
    A("v_cmp_gt_u32 vcc, 8, v2")
    A("s_and_saveexec_b64 s[44:45], vcc")
    A("ds_write_b64 v6, v[16:17]")
    A("s_mov_b64 exec, s[44:45]")
    for k in range(9):
        A("v_mov_b32 %s, %s" % (v(24 + 4 * k + 1), T)); A("v_mov_b32 %s, %s" % (v(24 + 4 * k + 3), T))
    A("s_waitcnt lgkmcnt(0)")
    lds_signal(A, 5, "v8", "v9")
    lds_wait(A, 5, 4, "v8", "v11")
    st_(A, 5)
    A("ds_read_b128 v[16:19], v7")
    A("ds_read_b128 v[20:23], v7 offset:64")
    A("s_waitcnt lgkmcnt(0)")
    AC = 88
    for k in range(9):
        r = WD + 8 * k
        A("v_mfma_f32_16x16x32_bf16 %s, %s, v[16:19], 0" % (v(AC + 4 * k, 4), v(r, 4)))
    for k in range(9):
        r = WD + 8 * k
        A("v_mfma_f32_16x16x32_bf16 %s, %s, v[20:23], %s" % (v(AC + 4 * k, 4), v(r + 4, 4), v(AC + 4 * k, 4)))
    for k in range(9):
        ac, o = AC + 4 * k, 24 + 4 * k
        A("v_cndmask_b32 %s, %s, %s, s[56:57]" % (v(o), v(ac), v(ac + 2)))
        A("v_cndmask_b32 %s, %s, %s, s[56:57]" % (v(o + 2), v(ac + 1), v(ac + 3)))
        A("buffer_store_dwordx4 %s, v10, s[36:39], s43 offen offset:%d sc1" % (v(o, 4), 512 * (k % 8)))
        if k == 7:
            A("s_add_u32 s43, s43, 4096")
    st_(A, 6)
    dbg_time(A, 3)
    A("s_endpgm")
    A.label(Lt)
    A("s_setprio 3")
    A("s_lshl_b32 s60, s41, 2")
    A("s_add_u32 s60, s60, s42")
    A("s_sub_u32 s60, s60, 4")
    Q, WR, X = gen_ln(A)
    A("s_barrier")
    finish_tag(A)
    gen_ln_compute(A, Q, WR, X)
    srd(A, 16, PQ, S * ROWB)
    A("v_and_b32 v1, 63, v0")
    A("v_and_b32 v4, 255, v0")
    A("v_mov_b32 v8, %d" % L_CNT)
    A("v_mov_b32 v9, 1")
    A("v_lshlrev_b32 v15, 2, v1")
    A("v_lshlrev_b32 v16, 4, v1")
    A("s_and_b32 s43, s42, 3")
    A("s_lshl_b32 s43, s43, 12")
    A("v_add_u32 v16, s43, v16")
    def key_loads():
        A("s_movk_i32 s43, %d" % F_KEYG)
        for i in range(4):
            A("buffer_load_dwordx4 %s, v16, s[36:39], s43 offen offset:%d sc1" % (v(40 + 4 * i, 4), 1024 * i))
    masked_poll(A, "key", key_loads, list(range(41, 56, 2)), int(os.environ.get("KEYSLEEP", 16)), int(os.environ.get("KEYPRE", 8)))
    st_(A, 3)
    dbg_time(A, 6)
    regs, sp = sort_desc(A, range(40, 56, 2), 41, SORT8)
    SK = 60
    free = [r for r in range(40, 57) if r not in regs and r != sp]
    cur, sp, oth = top8_wave(A, regs, sp, free[:8])
    for i in range(8):
        A("v_mov_b32 %s, %s" % (v(64 + i), v(cur[i])))
    A("s_and_b32 s43, s42, 3")
    A("s_lshl_b32 s43, s43, 5")
    A("s_add_u32 s43, s43, %d" % L_CAND)
    A("v_mov_b32 v16, s43")
    A("v_mov_b32 v31, %s" % T)
    A("v_mov_b32 v17, %d" % L_TAG)
    A("s_mov_b32 exec_lo, 0")
    A("s_mov_b32 exec_hi, 0x80000000")
    A("ds_write_b128 v16, v[64:67]")
    A("ds_write_b128 v16, v[68:71] offset:16")
    A("ds_write_b32 v17, v31")
    A("s_mov_b64 exec, -1")
    A("s_waitcnt lgkmcnt(0)")
    lds_signal(A, 3, "v8", "v9")
    lds_wait(A, 3, 4, "v8", "v11")
    A("v_mov_b32 v16, %d" % L_CAND)
    for i in range(8):
        A("ds_read_b128 %s, v16 offset:%d" % (v(64 + 4 * i, 4), 16 * i))
    A("s_waitcnt lgkmcnt(4)")
    c01, sp1 = merge8(A, list(range(64, 72)), list(range(72, 80)), list(range(40, 48)), 56)
    A("s_waitcnt lgkmcnt(0)")
    c23, sp2 = merge8(A, list(range(80, 88)), list(range(88, 96)), list(range(48, 56)), 57)
    for i in range(8):
        A("v_max_u32 %s, %s, %s" % (v(64 + i), v(c01[i]), v(c23[7 - i])))
    for i in range(8):
        A("v_readfirstlane_b32 %s, %s" % (s(SK + i), v(64 + i)))
    A.nop(3)
    st_(A, 5)
    A("s_and_b32 s45, s42, 3")
    A("s_mov_b32 s43, s60"); A("s_mov_b32 s44, s61")
    for w in range(1, 4):
        A("s_cmp_eq_u32 s45, %d" % w)
        A("s_cselect_b32 s43, %s, s43" % s(SK + 2 * w))
        A("s_cselect_b32 s44, %s, s44" % s(SK + 2 * w + 1))
    A("v_mov_b32 v16, s43"); A("v_mov_b32 v17, s44")
    A("v_cmp_lt_u32 vcc, 31, v1")
    A.nop(2)
    A("v_cndmask_b32 v16, v16, v17, vcc")
    A("v_and_b32 v16, 0xffff, v16")
    A("v_sub_u32 v16, 2047, v16")
    A("v_and_b32 v17, 31, v1")
    A("s_movk_i32 s43, 1152")
    A("v_mul_lo_u32 v18, v16, s43")
    A("v_lshl_add_u32 v18, v17, 2, v18")
    A("v_lshlrev_b32 v19, 4, v16")
    for i in range(9):
        A("buffer_load_dword %s, v18, s[16:19], 0 offen offset:%d" % (v(20 + i), 128 * i))
    def rg_loads():
        A("s_mov_b32 s43, %d" % F_ROWG)
        A("buffer_load_dwordx4 v[32:35], v19, s[36:39], s43 offen sc1")
    Lns = A.newlabel("nosel")
    A("s_cmp_lg_u32 s41, 0")
    A("s_cbranch_scc1 %s" % Lns)
    A("s_cmp_lg_u32 s42, 4")
    A("s_cbranch_scc1 %s" % Lns)
    for i in range(8):
        A("v_writelane_b32 v30, %s, %d" % (s(SK + i), i))
    A("v_lshlrev_b32 v36, 3, v1")
    A("s_movk_i32 s43, %d" % F_SELG)
    A("s_mov_b64 exec, 0xff")
    A("buffer_store_dwordx2 v[30:31], v36, s[36:39], s43 offen sc1")
    A("s_mov_b64 exec, -1")
    A.label(Lns)
    masked_poll(A, "rg", rg_loads, [33, 35], 2, 0)
    A("v_lshlrev_b32 v64, 16, v32"); A("v_and_b32 v68, s40, v32")
    A("v_mov_b32 v66, v34"); A("v_mov_b32 v67, v34")
    A("v_xor_b32 v64, 0x80000000, v64"); A("v_xor_b32 v68, 0x80000000, v68")
    A("v_mov_b32 v65, v64"); A("v_mov_b32 v69, v68")
    A("v_lshrrev_b32 v38, 5, v4")
    A("v_mul_u32_u24 v38, %d, v38" % XSTR)
    A("v_lshl_add_u32 v38, v17, 2, v38")
    A("v_add_u32 v38, %d, v38" % L_X)
    st_(A, 4)
    for i0 in range(0, 9, 3):
        streams = []
        for i in range(i0, i0 + 3):
            bs = 40 + 8 * (i % 3)
            ops = norm_ops(bs, bs + 2, bs + 4, 20 + i, 64)
            ops.append("v_cvt_pk_bf16_f32 %s, %s, %s" % (v(bs + 6), v(bs + 2), v(bs + 3)))
            ops.append("ds_write_b32 v38, %s offset:%d" % (v(bs + 6), 128 * i))
            streams.append(ops)
        interleave(A, streams)
    A("s_waitcnt lgkmcnt(0)")
    lds_signal(A, 4, "v8", "v9")
    st_(A, 6)
    dbg_time(A, 4)
    Le = A.newlabel("noep")
    A("s_cmp_lg_u32 s41, 0")
    A("s_cbranch_scc1 %s" % Le)
    A("s_cmp_lg_u32 s42, 4")
    A("s_cbranch_scc1 %s" % Le)
    A("s_setprio 0")
    A("v_lshlrev_b32 v16, 2, v1")
    A("v_min_u32 v17, 15, v1")
    A("v_lshlrev_b32 v17, 2, v17")
    def al_loads():
        A("s_movk_i32 s43, %d" % F_ALIVE)
        A("buffer_load_dword v20, v16, s[36:39], s43 offen sc1")
        A("buffer_load_dword v21, v16, s[36:39], s43 offen offset:256 sc1")
        A("buffer_load_dword v22, v17, s[36:39], s43 offen offset:512 sc1")
    masked_poll(A, "al", al_loads, [20, 21, 22], 16, 0)
    A("v_mov_b32 v20, %s" % T)
    A("v_mov_b32 v21, %d" % F_EPOCH)
    A("s_mov_b64 exec, 1")
    A("buffer_store_dword v20, v21, s[36:39], 0 offen sc1")
    A("s_mov_b64 exec, -1")
    A.label(Le)
    A("s_endpgm")

def gen_spare_wg(A):
    A("s_lshl_b32 s60, s41, 3")
    A("s_add_u32 s60, s60, s42")
    A("s_add_u32 s60, s60, 288")
    Lx = A.newlabel("spx"); Lnl = A.newlabel("spnl")
    has_pf = bool(os.environ.get("WDPF"))
    def pf():
        srd(A, 56, PWD, D * F * 2)
        A("v_and_b32 v200, 63, v0")
        A("v_lshlrev_b32 v200, 4, v200")
        A("s_sub_u32 s63, s31, 27")
        A("s_lshl_b32 s63, s63, 3")
        A("s_add_u32 s63, s63, s42")
        A("s_lshl_b32 s63, s63, 14")
        A("s_mul_i32 s64, s30, 663552")
        A("s_add_u32 s63, s63, s64")
        pol = os.environ.get("WDPF")
        for i in range(16):
            A("buffer_load_dwordx4 v[204:207], v200, s[56:59], s63 offen offset:%d%s" % (1024 * (i % 4), " nt" if pol == "nt" else ""))
            if i % 4 == 3:
                A("s_add_u32 s63, s63, 4096")
    A("s_cmp_ge_u32 s60, 512")
    A("s_cbranch_scc1 %s" % Lnl)
    Q, WR, X = gen_ln(A)
    if has_pf:
        pf()
    finish_tag(A)
    gen_ln_compute(A, Q, WR, X, extra=(16 if has_pf else 0))
    A("s_endpgm")
    A.label(Lnl)
    if has_pf:
        pf()
        A("s_waitcnt vmcnt(0)")
    A("s_endpgm")

def gen_kernel(A, name):
    kernel_header(A, name)
    Ldone = A.newlabel("done"); Lmoe = A.newlabel("moe"); Lsp = A.newlabel("spare")
    A("s_getpc_b64 s[96:97]")
    A("s_cmp_ge_u32 s2, 256")
    A("s_cbranch_scc1 %s" % Ldone)
    A("s_load_dwordx4 s[68:71], s[0:1], %d" % KA_DBG)
    A("s_load_dwordx16 s[72:87], s[0:1], 0")
    A("s_load_dwordx8 s[88:95], s[0:1], %d" % KA_WG)
    A("v_lshrrev_b32 v1, 6, v0")
    A("s_and_b32 s30, s2, 7")
    A("s_lshr_b32 s31, s2, 3")
    A("v_readfirstlane_b32 s42, v1")
    A("s_mov_b32 s40, 0xffff0000")
    if not os.environ.get("NOICPF"):
        Lc = A.newlabel("noic")
        A("s_and_b32 s96, s96, 0xffffff00")
        A("s_and_b32 s97, s97, 0xffff")
        A("s_mov_b32 s98, L_code_end-%s" % name)
        A("s_mov_b32 s99, 0x00020000")
        A("v_and_b32 v243, 63, v0")
        A("v_lshlrev_b32 v243, 4, v243")
        A("s_lshl_b32 s95, s31, 10") if False else None
        A("s_lshl_b32 s3, s31, 10")
        A("v_cmp_lt_u32 vcc, 447, v0")
        A("s_cbranch_vccz %s" % Lc)
        A("buffer_load_dwordx4 v[244:247], v243, s[96:99], s3 offen")
        A.label(Lc)
    A("s_waitcnt lgkmcnt(0)")
    A("s_load_dword s%d, s[%d:%d], %d" % (TAG, PWS, PWS + 1, F_EPOCH))
    srd(A, 36, PWS, WS_SIZE)
    A("s_lshl_b32 s3, s2, 3")
    A("s_add_u32 s3, s3, s42")
    st_(A, 0)
    dbg_time(A, 0, invert=True)
    A("s_cmp_ge_u32 s31, 27")
    A("s_cbranch_scc1 %s" % Lsp)
    A("s_cmp_ge_u32 s31, 18")
    A("s_cbranch_scc1 %s" % Lmoe)
    A("s_mul_i32 s41, s30, 18")
    A("s_add_u32 s41, s41, s31")
    gen_conv_wg(A)
    A.label(Lmoe)
    A("s_mul_i32 s41, s30, 9")
    A("s_add_u32 s41, s41, s31")
    A("s_sub_u32 s41, s41, 18")
    gen_moe_wg(A)
    A.label(Lsp)
    A("s_mul_i32 s41, s30, 5")
    A("s_add_u32 s41, s41, s31")
    A("s_sub_u32 s41, s41, 27")
    gen_spare_wg(A)
    A.label(Ldone)
    A("s_endpgm")
    A.label("L_code_end")
    return kernel_desc(name, 256, 102, 256)
```

```python
from common import *
import common, os
from collections import deque
from conv2 import CS, CH_LDS, H_OFF, POLL_MAX, conv_schedule
from moe2 import wave_max_u32, L_WG, L_WU, L_X, L_HS, L_U, L_CAND, XSTR, HSTR
from moe3 import SORT8, sort_desc, rounds

F_EPOCH = 0x0
F_SELG = 0x100
F_ALIVE = 0x1000
F_KEYG = 0x2000
F_ROWG = 0x8000
F_URC = 0x10000
F_UR = 0x20000
F_PARTG = F_UR + 576 * 4096
L_TAG = 162304

PQ, PK, PV, PSHK, PSSMK, PSSMD, PWR, PWG, PWU, PWD, POUT, PWS = 72, 74, 76, 78, 80, 82, 86, 88, 90, 92, 94, 70
TAG = 46
NTS = '' if os.environ.get('NONT') else ' nt'
def st_(A, n):
    stamp(A, n, 36, 3, vt=254, st=96)

MISC = 4 * CH_LDS
FLAGS = MISC
SIDE = MISC + 64
RED = SIDE + 256
YOFF = H_OFF
W1, W0 = 20, 28
E_, G_, F_ = 36, 44, 50
UREG = 56
RING, NR, ACC, BS = 64, 6, 88, 120

DBGT = bool(os.environ.get("DBGT"))
def dbg_time(A, slot, invert=False):
    if not DBGT:
        return
    L = A.newlabel("dbgs")
    A("s_and_b32 s100, s42, 3")
    A("s_cmp_lg_u32 s100, 0")
    A("s_cbranch_scc1 %s" % L)
    A("s_cmp_eq_u32 s2, 8")
    A("s_cselect_b32 s100, 1, 0")
    A("s_cmp_eq_u32 s2, 152")
    A("s_cselect_b32 s100, 1, s100")
    A("s_cmp_eq_u32 s100, 0")
    A("s_cbranch_scc1 %s" % L)
    A("s_memrealtime s[96:97]")
    A("s_waitcnt lgkmcnt(0)")
    A("v_mov_b32 v252, s96")
    A("v_mov_b32 v253, %d" % (4 * slot))
    A("s_mov_b64 s[98:99], exec")
    A("s_mov_b64 exec, 1")
    A("global_store_dword v253, v252, s[68:69]")
    A("s_mov_b64 exec, s[98:99]")
    A.label(L)

def poll_head(A, cnt="s52"):
    A("s_mov_b32 %s, 0" % cnt)

def poll_tail(A, Lloop, Ldone, cnt="s52", sleep=1):
    A("s_add_u32 %s, %s, 1" % (cnt, cnt))
    A("s_cmp_gt_u32 %s, %d" % (cnt, POLL_MAX))
    A("s_cbranch_scc1 %s" % Ldone)
    A("s_sleep %d" % sleep)
    A("s_branch %s" % Lloop)

def masked_poll(A, name, emit_loads, tagregs, sleep, pre_sleep=0, full_exec="-1"):
    T = "s%d" % TAG
    Lp = A.newlabel(name + "p"); Ld = A.newlabel(name + "ok")
    if pre_sleep:
        A("s_sleep %d" % pre_sleep)
    A("s_mov_b32 s52, 0")
    A.label(Lp)
    emit_loads()
    A("s_waitcnt vmcnt(0)")
    A("v_cmp_eq_u32 vcc, %s, %s" % (T, v(tagregs[0])))
    for r in tagregs[1:]:
        A("v_cmp_eq_u32 s[54:55], %s, %s" % (T, v(r)))
        A("s_and_b64 vcc, vcc, s[54:55]")
    A("s_andn2_b64 exec, exec, vcc")
    A("s_cbranch_scc0 %s" % Ld)
    A("s_add_u32 s52, s52, 1")
    A("s_cmp_gt_u32 s52, %d" % POLL_MAX)
    A("s_cbranch_scc1 %s" % Ld)
    A("s_sleep %d" % sleep)
    A("s_branch %s" % Lp)
    A.label(Ld)
    A("s_mov_b64 exec, %s" % full_exec)

def first_then_poll(A, name, emit_loads, tagregs, sleep, ex):
    T = "s%d" % TAG
    Lp = A.newlabel(name + "p"); Ld = A.newlabel(name + "ok")
    A("s_mov_b32 s52, 0")
    A.label(Lp)
    A("s_waitcnt vmcnt(0)")
    A("v_cmp_eq_u32 vcc, %s, %s" % (T, v(tagregs[0])))
    for r in tagregs[1:]:
        A("v_cmp_eq_u32 s[54:55], %s, %s" % (T, v(r)))
        A("s_and_b64 vcc, vcc, s[54:55]")
    A("s_andn2_b64 exec, exec, vcc")
    A("s_cbranch_scc0 %s" % Ld)
    A("s_add_u32 s52, s52, 1")
    A("s_cmp_gt_u32 s52, %d" % POLL_MAX)
    A("s_cbranch_scc1 %s" % Ld)
    A("s_sleep %d" % sleep)
    emit_loads()
    A("s_branch %s" % Lp)
    A.label(Ld)
    A("s_mov_b64 exec, -1")

LK, LV, SG, SGS = 0, 17408, 34816, 272

def row_xor_reduce(A, regs):
    for ctl in ("quad_perm:[1,0,3,2]", "quad_perm:[2,3,0,1]", "row_half_mirror", "row_mirror"):
        if len(regs) < 3:
            A.nop(3 - len(regs))
        for r in regs:
            A("v_xor_b32_dpp %s, %s, %s %s row_mask:0xf bank_mask:0xf" % (v(r), v(r), v(r), ctl))

def gen_kv_issue(A):
    srd(A, 48, PK, S * ROWB)
    srd(A, 52, PV, S * ROWB)
    A("v_and_b32 v1, 63, v0")
    A("v_lshrrev_b32 v4, 3, v1")
    A("v_mul_u32_u24 v4, 1152, v4")
    A("v_and_b32 v5, 7, v1")
    A("v_lshl_add_u32 v4, v5, 4, v4")
    A("s_mul_i32 s62, s61, %d" % (128 * 1152))
    A("s_lshl_b32 s63, s60, 7")
    A("s_add_u32 s62, s62, s63")
    A("s_mul_i32 s63, s42, 9216")
    A("s_add_u32 s62, s62, s63")
    A("s_sub_u32 s63, s62, 9216")
    A("s_lshl_b32 s64, s42, 10")
    for i in range(4):
        A("s_mov_b32 m0, s64")
        A("s_add_u32 s65, s64, %d" % LV)
        A("buffer_load_dwordx4 v4, s[48:51], s63 offen lds" + NTS)
        A("s_mov_b32 m0, s65")
        A("s_add_u32 s64, s64, 4096")
        A("buffer_load_dwordx4 v4, s[52:55], s62 offen lds" + NTS)
        A("s_add_u32 s63, s63, %d" % (32 * 1152))
        A("s_add_u32 s62, s62, %d" % (32 * 1152))
    Ln = A.newlabel("nok17")
    A("s_cmp_lg_u32 s42, 0")
    A("s_cbranch_scc1 %s" % Ln)
    A("s_mov_b32 m0, s64")
    A("s_nop 0")
    A("buffer_load_dwordx4 v4, s[48:51], s63 offen lds" + NTS)
    A.label(Ln)

def gen_kv_addr(A):
    srd(A, 56, PSHK, D * 8)
    A("v_and_b32 v2, 31, v0")
    A("s_lshl_b32 s63, s60, 9")
    A("v_lshl_add_u32 v29, v2, 4, s63")
    A("buffer_load_dwordx4 v[32:35], v29, s[56:59], 0 offen")

def gen_kv_addr2(A):
    A("v_lshrrev_b32 v3, 5, v0")
    A("v_lshlrev_b32 v6, 10, v3")
    A("v_lshl_add_u32 v6, v2, 2, v6")
    A("v_mul_u32_u24 v7, %d, v2" % (2 * SGS))
    A("v_sub_u32 v8, 15, v3")
    A("v_lshl_add_u32 v7, v8, 4, v7")
    A("v_add_u32 v7, %d, v7" % SG)
    A("v_bfe_u32 v10, v0, 4, 2")
    A("v_and_b32 v11, 15, v0")
    A("v_mul_u32_u24 v8, %d, v10" % SGS)
    A("v_lshl_add_u32 v8, v11, 4, v8")
    A("s_mul_i32 s63, s42, %d" % (8 * SGS))
    A("s_add_u32 s63, s63, %d" % SG)
    A("v_add_u32 v8, s63, v8")
    A("v_lshlrev_b32 v9, 12, v10")
    A("v_lshl_add_u32 v9, v11, 4, v9")
    A("s_lshl_b32 s63, s60, 6")
    A("s_lshl_b32 s64, s42, 3")
    A("s_add_u32 s63, s63, s64")
    A("s_lshl_b32 s65, s63, 12")
    A("s_lshl_b32 s64, s61, 8")
    A("s_sub_u32 s65, s65, s64")
    A("s_add_u32 s65, s65, %d" % (F_UR + 240 * 16))
    A("v_add_u32 v9, s65, v9")
    A("v_lshlrev_b32 v12, 6, v10")
    A("s_lshl_b32 s65, s63, 6")
    A("s_lshl_b32 s64, s61, 2")
    A("s_sub_u32 s65, s65, s64")
    A("s_add_u32 s65, s65, %d" % (F_URC + 60))
    A("v_add_u32 v12, s65, v12")
    A("v_cmp_eq_u32 s[66:67], 0, v11")

def gen_kv_compute(A):
    A("s_barrier")
    st_(A, 1)
    dbg_time(A, 8)
    for i in range(11):
        A("ds_read_b32 %s, v6 offset:%d" % (v(14 + i), LK + (5 + i) * 128))
    for i in range(8):
        A("ds_read_b32 %s, v6 offset:%d" % (v(40 + i), LV + i * 128))
    A("v_lshlrev_b32 v54, 16, v32"); A("v_lshlrev_b32 v55, 16, v34")
    A("v_and_b32 v56, s40, v32");    A("v_and_b32 v57, s40, v34")
    A("v_lshlrev_b32 v58, 16, v33"); A("v_lshlrev_b32 v59, 16, v35")
    A("v_and_b32 v60, s40, v33");    A("v_and_b32 v61, s40, v35")
    W, K, KV = 54, 62, 100
    A("s_waitcnt lgkmcnt(8)")
    for i in range(11):
        unpack_pair(A, K + 2 * i, K + 2 * i + 1, 14 + i, 40)
    A("s_waitcnt lgkmcnt(0)")
    def pr_(r):
        return "v[%d:%d]" % (r, r + 1)
    def row_ops(i, acc, tmp, t3):
        P = Asm()
        P("v_pk_mul_f32 %s, %s, %s" % (pr_(acc), pr_(K + 2 * (i + 0)), pr_(W + 6)))
        round_pair(P, acc, acc + 1, t3, 40)
        for t in range(1, 4):
            P("v_pk_mul_f32 %s, %s, %s" % (pr_(tmp), pr_(K + 2 * (i + t)), pr_(W + 2 * (3 - t))))
            round_pair(P, tmp, tmp + 1, t3, 40)
            P("v_pk_add_f32 %s, %s, %s" % (pr_(acc), pr_(acc), pr_(tmp)))
            round_pair(P, acc, acc + 1, t3, 40)
        unpack_pair(P, tmp, tmp + 1, 40 + i, 40)
        P("v_pk_mul_f32 %s, %s, %s" % (pr_(KV + 2 * i), pr_(acc), pr_(tmp)))
        return [l.strip() for l in P.lines]
    for i in range(0, 8, 4):
        interleave(A, [row_ops(i, 84, 86, 88), row_ops(i + 1, 90, 92, 94), row_ops(i + 2, 132, 134, 136), row_ops(i + 3, 138, 140, 142)])
    for c in range(2):
        for j in range(4):
            A("v_cvt_pk_bf16_f32 %s, %s, %s" % (v(116 + 4 * c + j), v(KV + 2 * (7 - 2 * j) + c), v(KV + 2 * (6 - 2 * j) + c)))
    A("ds_write_b128 v7, v[116:119]")
    A("ds_write_b128 v7, v[120:123] offset:%d" % SGS)
    A("s_waitcnt lgkmcnt(0)")
    A("s_barrier")
    A("ds_read_b128 v[116:119], v8")
    A("ds_read_b128 v[120:123], v8 offset:%d" % (4 * SGS))
    A("s_movk_i32 s63, 16384")
    A("s_waitcnt lgkmcnt(1)")
    A("buffer_store_dwordx4 v[116:119], v9, s[36:39], 0 offen sc1")
    A("v_xor_b32 v124, v116, v117"); A("v_xor_b32 v126, v118, v119")
    A("s_waitcnt lgkmcnt(0)")
    A("buffer_store_dwordx4 v[120:123], v9, s[36:39], s63 offen sc1")
    A("v_xor_b32 v125, v120, v121"); A("v_xor_b32 v127, v122, v123")
    A("v_xor_b32 v124, v124, v126"); A("v_xor_b32 v125, v125, v127")
    row_xor_reduce(A, [124, 125])
    A("v_xor_b32 v124, s%d, v124" % TAG); A("v_xor_b32 v125, s%d, v125" % TAG)
    A("s_mov_b64 exec, s[66:67]")
    A("buffer_store_dword v124, v12, s[36:39], 0 offen sc1")
    A("buffer_store_dword v125, v12, s[36:39], 0 offen offset:256 sc1")
    A("s_mov_b64 exec, -1")
    st_(A, 2)

def gen_ln(A):
    srd(A, 48, PQ, S * ROWB)
    srd(A, 52, PWR, D * 2)
    A("v_and_b32 v1, 63, v0")
    A("v_and_b32 v2, 15, v0")
    A("v_lshrrev_b32 v3, 4, v1")
    A("s_lshl_b32 s61, s60, 2")
    A("v_add_u32 v30, s61, v3")
    A("s_movk_i32 s62, 1152")
    A("v_mul_lo_u32 v6, v30, s62")
    A("v_lshl_add_u32 v6, v2, 3, v6")
    A("v_lshlrev_b32 v7, 3, v2")
    Q, WR, X = 64, 84, 104
    for i in range(9):
        A("buffer_load_dwordx2 %s, v6, s[48:51], 0 offen offset:%d" % (v(Q + 2 * i, 2), 128 * i))
    for i in range(9):
        A("buffer_load_dwordx2 %s, v7, s[52:55], 0 offen offset:%d" % (v(WR + 2 * i, 2), 128 * i))
    return Q, WR, X

def gen_ln_compute(A, Q, WR, X, extra=0):
    A("s_waitcnt vmcnt(%d)" % (9 + extra))
    st_(A, 1)
    for i in range(18):
        unpack_pair(A, X + 2 * i, X + 2 * i + 1, Q + i, 40)
    A("v_pk_add_f32 v[8:9], %s, %s" % (v(X, 2), v(X + 2, 2)))
    A("v_pk_add_f32 v[10:11], %s, %s" % (v(X + 4, 2), v(X + 6, 2)))
    for i in range(4, 18, 2):
        A("v_pk_add_f32 v[8:9], v[8:9], %s" % v(X + 2 * i, 2))
        A("v_pk_add_f32 v[10:11], v[10:11], %s" % v(X + 2 * i + 2, 2))
    A("v_pk_add_f32 v[8:9], v[8:9], v[10:11]")
    A.nop(1)
    A("v_add_f32 v8, v8, v9")
    allreduce16_add(A, 8)
    A("v_mul_f32 v8, 0x3ae38e39, v8")
    A("v_sub_f32 v12, 0, v8")
    A("v_sub_f32 v13, 0, v8")
    for r in (14, 15, 16, 17):
        A("v_mov_b32 %s, 0" % v(r))
    for i in range(0, 18, 2):
        A("v_pk_add_f32 v[18:19], %s, v[12:13]" % v(X + 2 * i, 2))
        A("v_pk_add_f32 v[20:21], %s, v[12:13]" % v(X + 2 * i + 2, 2))
        A("v_pk_fma_f32 v[14:15], v[18:19], v[18:19], v[14:15]")
        A("v_pk_fma_f32 v[16:17], v[20:21], v[20:21], v[16:17]")
    A("v_pk_add_f32 v[14:15], v[14:15], v[16:17]")
    A.nop(1)
    A("v_add_f32 v14, v14, v15")
    allreduce16_add(A, 14)
    A("v_mul_f32 v14, 0x3ae38e39, v14")
    A.nop(1)
    round_pair(A, 8, 14, 9, 40)
    A("v_add_f32 v14, 0x3727c5ac, v14")
    A.nop(1)
    A("v_cvt_pk_bf16_f32 v9, v14, v14")
    A("v_lshlrev_b32 v14, 16, v9")
    A("v_sqrt_f32 v14, v14")
    A.nop(1)
    A("v_cvt_pk_bf16_f32 v9, v14, v14")
    A("v_lshlrev_b32 v14, 16, v9")
    A("v_rcp_f32 v15, v14")
    A.nop(1)
    A("v_fma_f32 v16, -v14, v15, 1.0")
    A("v_fma_f32 v15, v16, v15, v15")
    A("v_sub_f32 v12, 0, v8"); A("v_sub_f32 v13, 0, v8")
    A("v_mov_b32 v16, v15"); A("v_mov_b32 v17, v15")
    for r in (22, 23, 24, 25):
        A("v_mov_b32 %s, 0" % v(r))
    A("s_waitcnt vmcnt(%d)" % extra)
    def ops(i, tm, acc):
        x0 = X + 2 * i
        P = Asm()
        P("v_pk_add_f32 %s, %s, v[12:13]" % (v(x0, 2), v(x0, 2)))
        round_pair(P, x0, x0 + 1, tm, 40)
        P("v_pk_mul_f32 %s, %s, v[16:17]" % (v(x0, 2), v(x0, 2)))
        round_pair(P, x0, x0 + 1, tm, 40)
        unpack_pair(P, tm + 2, tm + 3, WR + i, 40)
        P("v_pk_fma_f32 %s, %s, %s, %s" % (v(acc, 2), v(x0, 2), v(tm + 2, 2), v(acc, 2)))
        return [l.strip() for l in P.lines]
    for i in range(0, 18, 2):
        interleave(A, [ops(i, 26, 22), ops(i + 1, 32, 24)])
    A("v_pk_add_f32 v[22:23], v[22:23], v[24:25]")
    A.nop(1)
    A("v_add_f32 v22, v22, v23")
    allreduce16_add(A, 22)
    A.nop(1)
    A("v_cvt_pk_bf16_f32 v23, v22, v22")
    A("v_lshlrev_b32 v23, 16, v23")
    A("v_ashrrev_i32 v24, 31, v23")
    A("v_or_b32 v24, 0x80000000, v24")
    A("v_xor_b32 v23, v23, v24")
    A("v_and_b32 v23, s40, v23")
    A("v_sub_u32 v24, 2047, v30")
    A("v_or_b32 v26, v23, v24")
    A("v_mov_b32 v27, s%d" % TAG)
    A("v_cvt_pk_bf16_f32 v32, v8, v14")
    A("v_mov_b32 v33, s%d" % TAG)
    A("v_mov_b32 v34, v15")
    A("v_mov_b32 v35, s%d" % TAG)
    A("v_lshlrev_b32 v28, 3, v30")
    A("v_lshlrev_b32 v29, 4, v30")
    A("s_movk_i32 s61, %d" % F_KEYG)
    A("s_mov_b32 s62, %d" % F_ROWG)
    A("v_cmp_eq_u32 vcc, 0, v2")
    A("s_and_saveexec_b64 s[50:51], vcc")
    A("buffer_store_dwordx2 v[26:27], v28, s[36:39], s61 offen sc1")
    A("buffer_store_dwordx4 v[32:35], v29, s[36:39], s62 offen sc1")
    A("s_mov_b64 exec, s[50:51]")
    st_(A, 2)

def build_ops(W, N, off):
    ops = []
    for k in range(7):
        ops.append("v_alignbit_b32 %s, %s, %s, 16" % (v(E_ + k), v(W + k + 1), v(W + k)))
    ops.append("ds_write_b128 v11, %s offset:%d" % (v(W + 2, 4), 4 * CS + off))
    for k in range(3):
        ops.append("v_pk_mov_b32 %s, %s, %s op_sel:[1,0]" % (v(G_ + 2 * k, 2), v(W + 2 * k, 2), v(W + 2 * k + 2, 2)))
    ops.append("ds_write_b128 v11, %s offset:%d" % (v(E_, 4), 1 * CS + off))
    ops.append("ds_write_b128 v11, %s offset:%d" % (v(E_ + 2, 4), 5 * CS + off))
    for k in range(3):
        ops.append("v_pk_mov_b32 %s, %s, %s op_sel:[1,0]" % (v(F_ + 2 * k, 2), v(E_ + 2 * k, 2), v(E_ + 2 * k + 2, 2)))
    ops.append("ds_write_b128 v11, %s offset:%d" % (v(G_, 4), 2 * CS + off))
    ops.append("ds_write_b128 v11, %s offset:%d" % (v(G_ + 2, 4), 6 * CS + off))
    ops.append("s_nop 0")
    ops.append("ds_write_b128 v11, %s offset:%d" % (v(F_, 4), 3 * CS + off))
    ops.append("ds_write_b128 v11, %s offset:%d" % (v(F_ + 2, 4), 7 * CS + off))
    return ops

def gen_M(A):
    A("s_setprio %d" % int(os.environ.get("MPRIO", 2)))
    srd(A, 32, PSSMK, D * S * 2)
    A("v_and_b32 v1, 63, v0")
    A("v_lshlrev_b32 v4, 4, v1")
    A("s_add_u32 s56, s45, %d" % (H_OFF + 512))
    A("s_lshl_b32 s57, s44, 12")
    A("s_mov_b32 m0, s56")
    A("s_lshl_b32 s51, s44, 1")
    for i in range(4):
        A("buffer_load_dwordx4 v4, s[32:35], s57 offen offset:%d lds" % (1024 * i) + NTS)
    A("s_add_u32 s56, s56, 4096")
    A("s_add_u32 s57, s57, 4096")
    A("s_mov_b32 m0, s56")
    A("s_mov_b64 exec, 0x3")
    A("buffer_load_dwordx4 v4, s[32:35], s57 offen lds" + NTS)
    A("s_mov_b64 exec, -1")
    A("s_and_b32 s52, s51, 0xfffffffc")
    A("s_add_u32 s54, s%d, s52" % PSSMD)
    A("s_addc_u32 s55, s%d, 0" % (PSSMD + 1))
    A("s_load_dword s53, s[54:55], 0")
    A("v_and_b32 v2, 15, v0")
    A("v_bfe_u32 v3, v0, 4, 2")
    A("v_mov_b32 v12, 0"); A("v_mov_b32 v13, 0"); A("v_mov_b32 v14, 0"); A("v_mov_b32 v15, 0")
    A("v_add_u32 v11, s45, v4")
    A("s_mov_b32 exec_hi, 0")
    A("ds_write_b128 v11, v[12:15] offset:%d" % H_OFF)
    A("s_mov_b64 exec, 0x3")
    for c in range(8):
        pass
    A("ds_write_b128 v11, v[12:15]")
    A("s_mov_b64 exec, 0xf")
    A("ds_write_b128 v11, v[12:15] offset:%d" % (258 * 16))
    A("s_mov_b64 exec, -1")
    A("v_lshlrev_b32 v5, 5, v2")
    A("v_lshl_add_u32 v5, v3, 4, v5")
    A("v_add_u32 v5, s45, v5")
    A("v_add_u32 v5, %d, v5" % H_OFF)
    A("v_and_b32 v8, 7, v2")
    A("v_sub_u32 v8, 7, v8")
    A("v_mul_u32_u24 v8, %d, v8" % CS)
    A("v_lshrrev_b32 v6, 3, v2")
    A("v_sub_u32 v6, v3, v6")
    A("v_lshlrev_b32 v6, 4, v6")
    A("v_add_u32 v8, v8, v6")
    A("v_add_u32 v8, 16, v8")
    A("v_add_u32 v9, s45, v8")
    A("v_lshlrev_b32 v6, 5, v2")
    A("v_lshl_add_u32 v6, v3, 3, v6")
    A("v_sub_u32 v7, %d, v6" % (4120 - 3584))
    A("v_add_u32 v7, s45, v7")
    A("v_add_u32 v6, s45, v6")
    A("v_add_u32 v6, %d, v6" % YOFF)
    A("s_lshl_b32 s49, s43, 2")
    A("s_add_u32 s49, s49, %d" % FLAGS)
    A("v_mov_b32 v10, s49")
    for i in range(32):
        A("v_mov_b32 %s, 0" % v(ACC + i))
    A("s_lshl_b32 s48, s44, 12")
    A("s_add_u32 s48, s48, %d" % F_UR)
    A("v_lshlrev_b32 v16, 2, v3")
    A("s_lshl_b32 s50, s44, 6")
    A("s_add_u32 s50, s50, %d" % F_URC)
    A("s_sleep %d" % int(os.environ.get("URPRE", 16)))
    Lp = A.newlabel("urp"); Ld = A.newlabel("urok")
    A("s_mov_b32 s52, 0")
    A.label(Lp)
    for i in range(4):
        A("buffer_load_dwordx4 %s, v4, s[36:39], s48 offen offset:%d sc1" % (v(120 + 4 * i, 4), 1024 * i))
    for i in range(4):
        A("buffer_load_dword %s, v16, s[36:39], s50 offen offset:%d sc1" % (v(136 + i), 16 * i))
    A("s_waitcnt vmcnt(0)")
    for i in range(4):
        A("v_xor_b32 %s, %s, %s" % (v(140 + i), v(120 + 4 * i), v(121 + 4 * i)))
    for i in range(4):
        A("v_xor_b32 %s, %s, %s" % (v(144 + i), v(122 + 4 * i), v(123 + 4 * i)))
    for i in range(4):
        A("v_xor_b32 %s, %s, %s" % (v(140 + i), v(140 + i), v(144 + i)))
    row_xor_reduce(A, [140, 141, 142, 143])
    for i in range(4):
        A("v_xor_b32 %s, %s, %s" % (v(140 + i), v(140 + i), v(136 + i)))
    A("v_cmp_eq_u32 vcc, s%d, v140" % TAG)
    for i in range(1, 4):
        A("v_cmp_eq_u32 s[54:55], s%d, %s" % (TAG, v(140 + i)))
        A("s_and_b64 vcc, vcc, s[54:55]")
    A("s_cmp_eq_u64 vcc, -1")
    A("s_cbranch_scc1 %s" % Ld)
    A("s_add_u32 s52, s52, 1")
    A("s_cmp_gt_u32 s52, %d" % POLL_MAX)
    A("s_cbranch_scc1 %s" % Ld)
    A("s_sleep %d" % int(os.environ.get("URSLEEP", 8)))
    A("s_branch %s" % Lp)
    A.label(Ld)
    st_(A, 3)
    dbg_time(A, 5)
    for i in range(4):
        A("ds_write_b128 v11, %s offset:%d" % (v(120 + 4 * i, 4), 32 + 1024 * i))
    A("s_waitcnt lgkmcnt(0)")
    for (W, off) in ((152, 4096), (160, 3072), (168, 2048), (W1, 1024), (W0, 0)):
        A("ds_read_b128 %s, v11 offset:%d" % (v(W, 4), off))
        A("ds_read_b128 %s, v11 offset:%d" % (v(W + 4, 4), off + 16))
    A("s_waitcnt lgkmcnt(8)")
    A("s_mov_b64 exec, 0x1f")
    for o in build_ops(152, 0, 4096): A(o)
    A("s_mov_b64 exec, -1")
    A("s_waitcnt lgkmcnt(11)")
    for o in build_ops(160, 0, 3072): A(o)
    A("s_waitcnt lgkmcnt(14)")
    for o in build_ops(168, 0, 2048): A(o)
    A("s_waitcnt lgkmcnt(0)")
    st_(A, 4)
    hi_steps, lo_frags, lo_slot, lo_steps = conv_schedule()
    def bslot(sl):
        return v(BS + 4 * sl, 4)
    order, seen = [], set()
    for q, lst in hi_steps:
        for t, sl in lst:
            if sl not in seen:
                seen.add(sl); order.append(sl)
    aseq = [q for q in range(33)] + [q for q in range(65)]
    issued = []
    def issue(tag, txt):
        A(txt); issued.append(tag)
    def wait_for(tags):
        idx = max(len(issued) - 1 - issued[::-1].index(t) for t in tags)
        n = len(issued) - 1 - idx
        A("s_waitcnt lgkmcnt(%d)" % min(n, 15))
    def a_issue(k):
        issue(("A", k), "ds_read_b128 %s, v9 offset:%d" % (v(RING + 4 * (k % NR), 4), 64 * (64 - aseq[k])))
    def b_issue(sl):
        issue(("B", sl), "ds_read_b128 %s, v5 offset:%d" % (bslot(sl), 64 * (56 - sl + 8)))
    fill = deque()
    cnt = [0]
    def emit_fill(k):
        while k > 0 and fill:
            f = fill.popleft(); f(); cnt[0] += 1; k -= 1
    def add_plain(txt):
        if txt.startswith("ds_"):
            fill.append(lambda txt=txt: issue(("W",), txt))
        else:
            fill.append(lambda txt=txt: A(txt))
    a_issue(0)
    for sl in order[:5]:
        b_issue(sl)
    nextA = 1
    for k in range(1, NR):
        a_issue(nextA); nextA += 1
        b_issue(order[5 + k - 1])
    nextB = 5 + (NR - 1)
    A("s_and_b32 s52, s51, 2")
    A("s_lshl_b32 s52, s52, 3")
    A("s_lshr_b32 s53, s53, s52")
    A("s_lshl_b32 s53, s53, 16")
    A("v_mov_b32 v18, s53"); A("v_mov_b32 v19, s53")
    n = 0
    fu = {}
    for q, lst in hi_steps:
        for t, sl in lst:
            fu.setdefault(sl, q)
    for q, lst in hi_steps:
        while nextB < len(order) and fu[order[nextB]] <= q + 3:
            b_issue(order[nextB]); nextB += 1
        wait_for([("A", n)] + [("B", sl) for _, sl in lst])
        for t, sl in lst:
            A("v_mfma_f32_16x16x32_bf16 %s, %s, %s, %s" % (v(ACC + 4 * t, 4), v(RING + 4 * (n % NR), 4), bslot(sl), v(ACC + 4 * t, 4)))
        if nextA < len(aseq):
            a_issue(nextA); nextA += 1
        if q < 32:
            issue(("L", q), "ds_read_b128 %s, v5 offset:%d" % (bslot(q), 64 * (lo_frags[q] + 8)))
        n += 1
    st_(A, 5)
    def tile_epilogue(t):
        u0 = UREG + 2 * (t % 2)
        ac = ACC + 4 * t
        fill.append(lambda: wait_for([("U", t)] + ([("L", 31)] if t == 0 else [])))
        P = Asm()
        P("v_and_b32 v12, s40, %s" % v(u0 + 1))
        P("v_lshlrev_b32 v13, 16, %s" % v(u0 + 1))
        P("v_and_b32 v14, s40, %s" % v(u0))
        P("v_lshlrev_b32 v15, 16, %s" % v(u0))
        P("v_pk_mul_f32 v[12:13], v[12:13], v[18:19]")
        P("v_pk_mul_f32 v[14:15], v[14:15], v[18:19]")
        round_pair(P, 12, 13, 16, 40)
        round_pair(P, 14, 15, 17, 40)
        round_pair(P, ac, ac + 1, 16, 40)
        round_pair(P, ac + 2, ac + 3, 17, 40)
        P("v_pk_add_f32 v[12:13], v[12:13], %s" % v(ac, 2))
        P("v_pk_add_f32 v[14:15], v[14:15], %s" % v(ac + 2, 2))
        P("v_cvt_pk_bf16_f32 v16, v12, v13")
        P("v_cvt_pk_bf16_f32 v17, v14, v15")
        for l in P.lines:
            add_plain(l.strip())
        fill.append(lambda: issue(("Y", t), "ds_write_b64 v6, v[16:17] offset:%d" % (512 * t)))
        fill.append(lambda: A("v_mov_b32 v8, %d" % (t + 1)))
        for _ in range(3):
            fill.append(lambda: None)
        fill.append(lambda: wait_for([("Y", t)]))
        fill.append(lambda: issue(("F", t), "ds_write_b32 v10, v8"))
    for o in build_ops(W1, 0, 1024): add_plain(o)
    n1 = len(fill)
    for o in build_ops(W0, 0, 0): add_plain(o)
    n0 = len(fill)
    for q, lst in lo_steps:
        wait_for([("A", n)] + [("L", sl) for _, sl in lst])
        k = len(lst)
        per = 2 if k >= 2 else 1
        for i, (t, sl) in enumerate(lst):
            A("v_mfma_f32_16x16x32_bf16 %s, %s, %s, %s" % (v(ACC + 4 * t, 4), v(RING + 4 * (n % NR), 4), bslot(sl), v(ACC + 4 * t, 4)))
            if i < k - 1 or k == 1:
                emit_fill(per)
        if nextA < len(aseq):
            qq = aseq[nextA]
            if nextA >= 33 and qq >= 33:
                assert cnt[0] >= n1
            if nextA >= 33 and qq >= 49:
                assert cnt[0] >= n0
            a_issue(nextA); nextA += 1
        n += 1
        if q % 8 == 4:
            t = q // 8
            issue(("U", t), "ds_read_b64 %s, v7 offset:%d" % (v(UREG + 2 * (t % 2), 2), 512 * (7 - t)))
        if q >= 9 and (q - 9) % 8 == 0 and (q - 9) // 8 < 7:
            tile_epilogue((q - 9) // 8)
    A.nop(4)
    st_(A, 6)
    tile_epilogue(7)
    emit_fill(1000)
    st_(A, 7)
    dbg_time(A, 1)
    A("s_endpgm")

XQ = 208
def h_early_loads(A):
    srd(A, 16, PQ, S * ROWB)
    A("v_and_b32 v201, 255, v0")
    A("s_movk_i32 s63, 1152")
    A("v_mul_lo_u32 v200, v201, s63")
    A("s_lshl_b32 s63, s41, 3")
    A("v_add_u32 v200, s63, v200")
    return 8

def strip_loads(A):
    A("s_mov_b32 s63, 0")
    for t in range(8):
        A("buffer_load_dwordx2 %s, v200, s[16:19], s63 offen" % v(XQ + 2 * t, 2))
        A("s_add_u32 s63, s63, %d" % (256 * 1152))

def q_prefetch(A):
    srd(A, 16, PQ, S * ROWB)
    Ln = A.newlabel("noqpf")
    A("v_and_b32 v202, 15, v0")
    A("v_bfe_u32 v203, v0, 4, 2")
    A("v_mul_u32_u24 v203, 1152, v203")
    A("v_lshl_add_u32 v202, v202, 4, v203")
    A("s_mul_i32 s63, s30, 144")
    A("s_and_b32 s63, s63, 0xffffff80")
    A("s_min_u32 s64, s31, 15")
    A("s_lshl_b32 s64, s64, 7")
    A("s_sub_u32 s65, s42, 4")
    A("s_lshl_b32 s65, s65, 5")
    A("s_add_u32 s64, s64, s65")
    A("s_mul_i32 s64, s64, 1152")
    A("s_add_u32 s63, s63, s64")
    for i in range(8):
        A("buffer_load_dwordx4 v[204:207], v202, s[16:19], s63 offen")
        A("s_add_u32 s63, s63, %d" % (4 * 1152))

def gen_H(A):
    srd(A, 20, POUT, S * ROWB)
    T = "s%d" % TAG
    A("v_and_b32 v1, 63, v0")
    A("v_mov_b32 v5, v201")
    A("v_mov_b32 v6, v200")
    A("v_lshlrev_b32 v7, 4, v5")
    RG = 160
    def row_loads():
        for t in range(8):
            A("s_mov_b32 s51, %d" % (F_ROWG + 4096 * t))
            A("buffer_load_dwordx4 %s, v7, s[36:39], s51 offen sc1" % v(RG + 4 * t, 4))
    A("s_setprio %d" % int(os.environ.get("HPRIO", 0)))
    strip_loads(A)
    masked_poll(A, "row", row_loads, list(range(RG + 1, RG + 32, 2)), int(os.environ.get("ROWSLEEP", 8)), 0)
    st_(A, 3)
    X, XN, T1 = 64, 96, 128
    for t in range(8):
        g = RG + 4 * t
        st = 44 + 6 * (t % 2)
        A("v_lshlrev_b32 %s, 16, %s" % (v(st), v(g)))
        A("v_and_b32 %s, s40, %s" % (v(st + 4), v(g)))
        A("v_mov_b32 %s, %s" % (v(st + 2), v(g + 2)))
        A("v_xor_b32 %s, 0x80000000, %s" % (v(st), v(st)))
        A("v_xor_b32 %s, 0x80000000, %s" % (v(st + 4), v(st + 4)))
        A("v_mov_b32 %s, %s" % (v(st + 3), v(g + 2)))
        A("v_mov_b32 %s, %s" % (v(st + 1), v(st)))
        A("v_mov_b32 %s, %s" % (v(st + 5), v(st + 4)))
        streams = []
        for p in range(2):
            x, xn = X + 4 * t + 2 * p, XN + 4 * t + 2 * p
            tm = 56 + 4 * p
            ops = norm_ops(x, xn, tm, XQ + 2 * t + p, st)
            P = Asm(); round_pair(P, xn, xn + 1, tm + 2, 40)
            streams.append(ops + [l.strip() for l in P.lines])
        interleave(A, streams)
    st_(A, 4)
    A("v_lshlrev_b32 v9, 1, v5")
    A("v_add_u32 v9, %d, v9" % YOFF)
    A("v_add_u32 v10, %d, v9" % (2 * CH_LDS))
    A("v_mov_b32 v11, %d" % FLAGS)
    for i in range(4):
        A("v_mov_b32 %s, 0" % v(40 + i))
    A("v_and_b32 v12, 7, v5")
    A("v_mul_u32_u24 v12, 4608, v12")
    A("v_bfe_u32 v13, v5, 3, 1")
    A("v_lshl_add_u32 v12, v13, 4, v12")
    A("v_lshrrev_b32 v13, 4, v5")
    A("v_mul_u32_u24 v14, 36864, v13")
    A("v_add_u32 v12, v12, v14")
    A("s_lshl_b32 s51, s41, 5")
    A("s_add_u32 s51, s51, %d" % F_PARTG)
    A("v_add_u32 v12, s51, v12")
    A("v_add_u32 v14, %d, v12" % (64 * 36864))
    A("v_cmp_gt_u32 vcc, 8, v13")
    A.nop(2)
    A("v_cndmask_b32 v14, v12, v14, vcc")
    A("s_mov_b64 s[56:57], vcc")
    A("v_and_b32 v8, 7, v1")
    A("v_lshlrev_b32 v8, 3, v8")
    def sel_loads():
        A("s_movk_i32 s51, %d" % F_SELG)
        A("buffer_load_dwordx2 v[180:181], v8, s[36:39], s51 offen sc1")
    sel_loads_m = sel_loads
    def part_loads():
        A("s_mov_b32 s51, 0")
        for i in range(4):
            A("buffer_load_dwordx4 %s, v12, s[36:39], s51 offen sc1" % v(160 + 4 * i, 4))
            A("s_add_u32 s51, s51, %d" % (16 * 36864))
        A("buffer_load_dwordx4 v[176:179], v14, s[36:39], 0 offen sc1")
    for t in range(8):
        Lw = A.newlabel("yw"); Lg = A.newlabel("yg")
        A("s_mov_b32 s52, 0")
        A.label(Lw)
        A("ds_read_b128 v[16:19], v11")
        A("s_add_u32 s52, s52, 1")
        A("s_waitcnt lgkmcnt(0)")
        A("v_min_u32 v16, v16, v17")
        A("v_min3_u32 v16, v16, v18, v19")
        A("s_cmp_gt_u32 s52, %d" % POLL_MAX)
        A("v_readfirstlane_b32 s51, v16")
        A("s_cbranch_scc1 %s" % Lg)
        A("s_nop 1")
        A("s_cmp_gt_u32 s51, %d" % t)
        A("s_cbranch_scc1 %s" % Lg)
        A("s_sleep 1")
        A("s_branch %s" % Lw)
        A.label(Lg)
        A("ds_read_u16_d16_hi v40, v9 offset:%d" % (512 * t))
        A("ds_read_u16_d16_hi v41, v9 offset:%d" % (512 * t + CH_LDS))
        A("ds_read_u16_d16_hi v42, v10 offset:%d" % (512 * t))
        A("ds_read_u16_d16_hi v43, v10 offset:%d" % (512 * t + CH_LDS))
        A("s_waitcnt lgkmcnt(0)")
        streams = []
        for p in range(2):
            x, xn, t1 = X + 4 * t + 2 * p, XN + 4 * t + 2 * p, T1 + 4 * t + 2 * p
            tm = 56 + 4 * p
            P = Asm()
            P("v_pk_mul_f32 %s, %s, %s" % (v(tm, 2), v(xn, 2), v(40 + 2 * p, 2)))
            round_pair(P, tm, tm + 1, tm + 2, 40)
            P("v_pk_add_f32 %s, %s, %s" % (v(t1, 2), v(x, 2), v(tm, 2)))
            round_pair(P, t1, t1 + 1, tm + 2, 40)
            P("v_pk_add_f32 %s, %s, %s" % (v(tm, 2), v(t1, 2), v(xn, 2)))
            P("v_cvt_pk_bf16_f32 %s, %s, %s" % (v(44 + 2 * (t % 2) + p), v(tm), v(tm + 1)))
            streams.append([l.strip() for l in P.lines])
        interleave(A, streams)
        A("s_mov_b32 s51, %d" % (t * 256 * 1152))
        A("buffer_store_dwordx2 %s, v6, s[20:23], s51 offen" % v(44 + 2 * (t % 2), 2))
        if t == 5:
            sel_loads()
            part_loads()
    st_(A, 5)
    first_then_poll(A, "sel", sel_loads_m, [181], 4, "0xff")
    for i in range(8):
        A("v_readlane_b32 %s, v180, %d" % (s(60 + i), i))
    A.nop(3)
    for i in range(8):
        Ls = A.newlabel("ns")
        A("s_and_b32 s51, %s, 0xffff" % s(60 + i))
        A("s_sub_u32 s51, 2047, s51")
        A("s_bfe_u32 s58, s51, 0x20006")
        A("s_cmp_lg_u32 s58, s43")
        A("s_cbranch_scc1 %s" % Ls)
        A("s_lshr_b32 s58, s51, 8")
        A("s_lshl_b32 s58, s58, 2")
        A("s_and_b32 s51, s51, 255")
        A("v_cmp_eq_u32 vcc, s51, v5")
        A("s_set_gpr_idx_on s58, gpr_idx(SRC0)")
        for k in range(4):
            A("v_mov_b32 %s, %s" % (v(20 + k), v(T1 + k)))
        for k in range(4):
            A("v_mov_b32 %s, %s" % (v(24 + k), v(XN + k)))
        A("s_set_gpr_idx_off")
        A("v_mov_b32 v52, %d" % (SIDE + 32 * i))
        A("s_mov_b64 exec, vcc")
        A("ds_write_b128 v52, v[20:23]")
        A("ds_write_b128 v52, v[24:27] offset:16")
        A("s_mov_b64 exec, -1")
        A.label(Ls)
    st_(A, 6)
    first_then_poll(A, "pp", part_loads, [161, 163, 165, 167, 169, 171, 173, 175, 177, 179], 2, "-1")
    st_(A, 7)
    A("v_add_f32 v16, v160, v164"); A("v_add_f32 v17, v162, v166")
    A("v_add_f32 v16, v16, v168");  A("v_add_f32 v17, v17, v170")
    A("v_add_f32 v16, v16, v172");  A("v_add_f32 v17, v17, v174")
    A("v_cndmask_b32 v18, 0, v176, s[56:57]"); A("v_cndmask_b32 v19, 0, v178, s[56:57]")
    A("v_add_f32 v16, v16, v18");   A("v_add_f32 v17, v17, v19")
    A("v_mov_b32 v18, v16"); A("v_mov_b32 v19, v17")
    A.nop(1)
    A("v_permlane16_swap_b32 v16, v18"); A("v_permlane16_swap_b32 v17, v19")
    A.nop(1)
    A("v_add_f32 v16, v16, v18"); A("v_add_f32 v17, v17, v19")
    A("v_mov_b32 v18, v16"); A("v_mov_b32 v19, v17")
    A.nop(1)
    A("v_permlane32_swap_b32 v16, v18"); A("v_permlane32_swap_b32 v17, v19")
    A.nop(1)
    A("v_add_f32 v16, v16, v18"); A("v_add_f32 v17, v17, v19")
    A("v_and_b32 v18, 7, v1")
    A("v_lshlrev_b32 v18, 4, v18")
    A("v_bfe_u32 v19, v1, 3, 1")
    A("v_lshl_add_u32 v18, v19, 3, v18")
    A("s_lshl_b32 s51, s43, 7")
    A("s_add_u32 s51, s51, %d" % RED)
    A("v_add_u32 v18, s51, v18")
    A("s_mov_b64 exec, 0xffff")
    A("ds_write_b64 v18, v[16:17]")
    A("s_mov_b64 exec, -1")
    A("s_waitcnt lgkmcnt(0)")
    A("s_barrier")
    Lend = A.newlabel("hend")
    A("s_cmp_lg_u32 s42, 4")
    A("s_cbranch_scc1 %s" % Lend)
    A("s_mov_b64 exec, 0xff")
    A("v_lshlrev_b32 v18, 4, v1")
    A("v_add_u32 v19, %d, v18" % RED)
    for w in range(4):
        A("ds_read_b128 %s, v19 offset:%d" % (v(20 + 4 * w, 4), 128 * w))
    A("v_lshlrev_b32 v19, 5, v1")
    A("v_add_u32 v19, %d, v19" % SIDE)
    A("ds_read_b128 v[36:39], v19")
    A("ds_read_b128 v[40:43], v19 offset:16")
    for i in range(8):
        A("v_writelane_b32 v44, %s, %d" % (s(60 + i), i))
    A.nop(2)
    A("v_lshrrev_b32 v45, 16, v44")
    A("v_and_b32 v46, 0x8000, v45")
    A("v_mov_b32 v47, 0xffff")
    A("v_mov_b32 v48, 0x8000")
    A("v_cmp_ne_u32 vcc, 0, v46")
    A.nop(2)
    A("v_cndmask_b32 v47, v47, v48, vcc")
    A("v_xor_b32 v45, v45, v47")
    A("v_lshlrev_b32 v45, 16, v45")
    A("v_mul_f32 v45, 0xbfb8aa3b, v45")
    A("v_exp_f32 v45, v45")
    A.nop(1)
    A("v_add_f32 v45, 1.0, v45")
    A("v_rcp_f32 v45, v45")
    A.nop(1)
    A("v_cvt_pk_bf16_f32 v45, v45, v45")
    A("v_lshlrev_b32 v45, 16, v45")
    A("v_and_b32 v44, 0xffff, v44")
    A("v_sub_u32 v44, 2047, v44")
    A("s_movk_i32 s51, 1152")
    A("v_mul_lo_u32 v44, v44, s51")
    A("s_lshl_b32 s51, s41, 3")
    A("v_add_u32 v44, s51, v44")
    A("s_waitcnt lgkmcnt(0)")
    for i in range(4):
        A("v_add_f32 %s, %s, %s" % (v(20 + i), v(20 + i), v(24 + i)))
        A("v_add_f32 %s, %s, %s" % (v(28 + i), v(28 + i), v(32 + i)))
    for i in range(4):
        A("v_add_f32 %s, %s, %s" % (v(20 + i), v(20 + i), v(28 + i)))
    round_pair(A, 20, 21, 24, 40); round_pair(A, 22, 23, 25, 40)
    for i in range(4):
        A("v_mul_f32 %s, %s, v45" % (v(20 + i), v(20 + i)))
    round_pair(A, 20, 21, 24, 40); round_pair(A, 22, 23, 25, 40)
    for i in range(4):
        A("v_add_f32 %s, %s, %s" % (v(20 + i), v(20 + i), v(40 + i)))
    round_pair(A, 20, 21, 24, 40); round_pair(A, 22, 23, 25, 40)
    for i in range(4):
        A("v_add_f32 %s, %s, %s" % (v(20 + i), v(20 + i), v(36 + i)))
    A("v_cvt_pk_bf16_f32 v24, v20, v21")
    A("v_cvt_pk_bf16_f32 v25, v22, v23")
    A("buffer_store_dwordx2 v[24:25], v44, s[20:23], 0 offen")
    A.label(Lend)
    st_(A, 8)
    dbg_time(A, 2)
    A("s_endpgm")

def gen_conv_wg(A):
    A("s_and_b32 s43, s42, 3")
    A("s_lshl_b32 s44, s41, 2")
    A("s_add_u32 s44, s44, s43")
    A("s_mul_i32 s45, s43, %d" % CH_LDS)
    Lm = A.newlabel("cm"); Lh = A.newlabel("ch"); Lj = A.newlabel("cj")
    dbg_time(A, 0)
    A("s_lshr_b32 s60, s41, 4")
    A("s_and_b32 s61, s41, 15")
    A("v_mov_b32 v200, 0"); A("v_mov_b32 v201, 0")
    A("s_cmp_ge_u32 s42, 4")
    A("s_cbranch_scc1 %s" % Lh)
    A("s_setprio 2")
    gen_kv_issue(A)
    gen_kv_addr(A)
    gen_kv_addr2(A)
    finish_tag(A)
    flags_barrier(A)
    A("s_waitcnt vmcnt(0)")
    A("s_branch %s" % Lj)
    A.label(Lh)
    gen_kv_addr(A)
    if not os.environ.get("NOQPF"):
        q_prefetch(A)
    gen_kv_addr2(A)
    finish_tag(A)
    A("s_waitcnt vmcnt(%d)" % (0 if os.environ.get("NOQPF") else 8))
    A.label(Lj)
    gen_kv_compute(A)
    publish_alive(A)
    A("s_barrier")
    A("s_cmp_lt_u32 s42, 4")
    A("s_cbranch_scc1 %s" % Lm)
    h_early_loads(A)
    gen_H(A)
    A.label(Lm)
    gen_M(A)

def finish_tag(A):
    A("s_waitcnt lgkmcnt(0)")
    A("s_mul_i32 s%d, s%d, 0x9E3779B1" % (TAG, TAG))
    A("s_add_u32 s%d, s%d, 0x7F4A7C15" % (TAG, TAG))

def flags_barrier(A, alive=False):
    A("v_mov_b32 v36, 0")
    A("v_mov_b32 v37, %d" % FLAGS)
    A("v_mov_b32 v38, 0"); A("v_mov_b32 v39, 0"); A("v_mov_b32 v40, 0"); A("v_mov_b32 v41, 0")
    A("ds_write_b128 v37, v[38:41]")
    A("s_waitcnt lgkmcnt(0)")

def publish_alive(A):
    Ln = A.newlabel("noalive")
    A("s_cmp_lg_u32 s42, 0")
    A("s_cbranch_scc1 %s" % Ln)
    A("s_lshl_b32 s63, s41, 2")
    A("s_add_u32 s63, s63, %d" % F_ALIVE)
    A("v_mov_b32 v37, s%d" % TAG)
    A("v_mov_b32 v36, 0")
    A("s_mov_b64 exec, 1")
    A("buffer_store_dword v37, v36, s[36:39], s63 offen sc1")
    A("s_mov_b64 exec, -1")
    A.label(Ln)


BITONIC8 = [(0,4),(1,5),(2,6),(3,7),(0,2),(1,3),(4,6),(5,7),(0,1),(2,3),(4,5),(6,7)]
def merge8(A, a, b, out, spare, dpp=None):
    for i in range(7, -1, -1):
        if dpp:
            A("v_max_u32_dpp %s, %s, %s %s bank_mask:0xf" % (v(out[i]), v(b[7 - i]), v(a[i]), dpp))
        else:
            A("v_max_u32 %s, %s, %s" % (v(out[i]), v(a[i]), v(b[7 - i])))
    return sort_desc(A, out, spare, BITONIC8)

def top8_wave(A, regs, spare, other):
    cur, oth = list(regs), list(other)
    for ctl in ("quad_perm:[1,0,3,2] row_mask:0xf", "quad_perm:[2,3,0,1] row_mask:0xf", "row_half_mirror row_mask:0xf",
                "row_mirror row_mask:0xf", "row_bcast:15 row_mask:0xa", "row_bcast:31 row_mask:0xc"):
        A.nop(1)
        free = list(cur)
        new, spare2 = merge8(A, cur, cur, oth, spare, dpp=ctl)
        pool = [r for r in (free + oth + [spare]) if r not in new]
        spare = pool[0]
        oth = pool[1:9]
        cur = new
    return cur, spare, oth

L_CNT = 162368

def lds_signal(A, k, vaddr, vone):
    A("s_mov_b64 exec, 1")
    A("ds_add_u32 %s, %s offset:%d" % (vaddr, vone, 4 * k))
    A("s_mov_b64 exec, -1")

def lds_wait(A, k, n, vaddr, vtmp, sleep=0):
    L = A.newlabel("lw"); Ld = A.newlabel("lwd")
    A("s_mov_b32 s52, 0")
    A.label(L)
    A("ds_read_b32 %s, %s offset:%d" % (vtmp, vaddr, 4 * k))
    A("s_add_u32 s52, s52, 1")
    A("s_waitcnt lgkmcnt(0)")
    A("s_cmp_gt_u32 s52, %d" % (POLL_MAX * 8))
    A("v_readfirstlane_b32 s51, %s" % vtmp)
    A("s_cbranch_scc1 %s" % Ld)
    A("s_nop 1")
    A("s_cmp_ge_u32 s51, %d" % n)
    A("s_cbranch_scc1 %s" % Ld)
    if sleep:
        A("s_sleep %d" % sleep)
    A("s_branch %s" % L)
    A.label(Ld)

def gen_moe_wg(A):
    T = "s%d" % TAG
    A("v_and_b32 v1, 63, v0")
    A("v_and_b32 v4, 255, v0")
    A("v_mov_b32 v8, %d" % L_CNT)
    A("v_mov_b32 v9, 1")
    Lt = A.newlabel("twave")
    A("s_cmp_ge_u32 s42, 4")
    A("s_cbranch_scc1 %s" % Lt)
    G, U, WD = 16, 88, 160
    A("v_mov_b32 v232, 0"); A("v_mov_b32 v233, 0"); A("v_mov_b32 v234, 0"); A("v_mov_b32 v235, 0")
    A("ds_write_b128 v8, v[232:235]"); A("ds_write_b128 v8, v[232:235] offset:16")
    srd(A, 48, PWG, D * F * 2)
    srd(A, 52, PWU, D * F * 2)
    srd(A, 56, PWD, D * F * 2)
    A("v_lshrrev_b32 v5, 3, v1")
    A("v_mul_u32_u24 v5, 9216, v5")
    A("v_bfe_u32 v6, v1, 4, 1")
    A("s_and_b32 s43, s42, 1")
    A("s_lshl_b32 s43, s43, 1")
    A("v_or_b32 v6, s43, v6")
    A("v_lshlrev_b32 v6, 1, v6")
    A("v_and_b32 v7, 7, v1")
    A("v_xor_b32 v6, v6, v7")
    A("v_lshl_add_u32 v5, v6, 4, v5")
    A("s_lshl_b32 s43, s41, 7")
    A("s_mul_i32 s44, s42, 73728")
    A("s_add_u32 s43, s43, s44")
    A("s_lshl_b32 s44, s42, 10")
    A("s_waitcnt lgkmcnt(0)")
    A("s_barrier")
    for j in range(18):
        A("s_mov_b32 m0, s44")
        A("s_add_u32 s45, s44, %d" % L_WU)
        A("buffer_load_dwordx4 v5, s[48:51], s43 offen lds" + NTS)
        A("s_mov_b32 m0, s45")
        A("s_add_u32 s44, s44, 4096")
        A("buffer_load_dwordx4 v5, s[52:55], s43 offen lds" + NTS)
        A("s_add_u32 s43, s43, %d" % (4 * 73728))
    A("v_lshrrev_b32 v6, 3, v4")
    A("v_mul_u32_u24 v7, 1152, v6")
    A("v_and_b32 v12, 7, v4")
    A("v_lshl_add_u32 v13, v12, 4, v7")
    A("s_mul_i32 s43, s41, 73728")
    A("s_add_u32 s44, s43, 36864")
    for k in range(9):
        A("buffer_load_dwordx4 %s, v13, s[56:59], s43 offen offset:%d" % (v(WD + 4 * k, 4), 128 * k) + NTS)
    for k in range(9):
        A("buffer_load_dwordx4 %s, v13, s[56:59], s44 offen offset:%d" % (v(WD + 36 + 4 * k, 4), 128 * k) + NTS)
    A("v_bfe_u32 v14, v6, 1, 1")
    A("v_bfe_u32 v11, v6, 3, 1")
    A("v_lshl_add_u32 v14, v11, 1, v14")
    A("v_lshlrev_b32 v14, 1, v14")
    A("v_xor_b32 v14, v14, v12")
    A("v_lshl_add_u32 v14, v14, 4, v7")
    A("v_add_u32 v15, 36864, v14")
    A("v_and_b32 v2, 15, v0")
    A("v_bfe_u32 v3, v0, 4, 2")
    A("v_lshrrev_b32 v10, 2, v2")
    A("v_lshl_add_u32 v11, v3, 3, v10")
    A("v_bfe_u32 v12, v2, 3, 1")
    A("v_and_b32 v13, 1, v3")
    A("v_lshl_add_u32 v12, v13, 1, v12")
    A("v_xor_b32 v12, s42, v12")
    A("v_and_b32 v13, 3, v2")
    A("v_lshlrev_b32 v13, 3, v13")
    A("v_lshl_add_u32 v12, v12, 5, v13")
    A("v_lshl_add_u32 v5, v11, 7, v12")
    A("v_add_u32 v6, 36864, v5")
    A("v_mul_u32_u24 v7, 1152, v11")
    A("v_add_u32 v7, v7, v12")
    A("v_add_u32 v10, 36864, v7")
    st_(A, 1)
    A("s_waitcnt vmcnt(0)")
    lds_signal(A, 0, "v8", "v9")
    lds_wait(A, 0, 4, "v8", "v11")
    st_(A, 2)
    dbg_time(A, 7)
    A("v_add_u32 v12, %d, v5" % L_WU)
    A("v_add_u32 v13, %d, v6" % L_WU)
    for kk in range(18):
        bg, bu, ko = ("v5", "v12", kk) if kk < 9 else ("v6", "v13", kk - 9)
        A("ds_read_b64_tr_b16 %s, %s offset:%d" % (v(G + 4 * kk, 2), bg, 4096 * ko))
        A("ds_read_b64_tr_b16 %s, %s offset:%d" % (v(G + 4 * kk + 2, 2), bg, 4096 * ko + 512))
        A("ds_read_b64_tr_b16 %s, %s offset:%d" % (v(U + 4 * kk, 2), bu, 4096 * ko))
        A("ds_read_b64_tr_b16 %s, %s offset:%d" % (v(U + 4 * kk + 2, 2), bu, 4096 * ko + 512))
    A("s_waitcnt lgkmcnt(0)")
    lds_signal(A, 1, "v8", "v9")
    lds_wait(A, 1, 4, "v8", "v11")
    for k in range(9):
        A("ds_write_b128 v14, %s offset:%d" % (v(WD + 4 * k, 4), 128 * k))
    for k in range(9):
        A("ds_write_b128 v15, %s offset:%d" % (v(WD + 36 + 4 * k, 4), 128 * k))
    A("s_waitcnt lgkmcnt(0)")
    lds_signal(A, 2, "v8", "v9")
    lds_wait(A, 2, 4, "v8", "v11")
    for k in range(9):
        r = WD + 8 * k
        A("ds_read_b64_tr_b16 %s, v7 offset:%d" % (v(r, 2), 128 * k))
        A("ds_read_b64_tr_b16 %s, v7 offset:%d" % (v(r + 2, 2), 128 * k + 4 * 1152))
        A("ds_read_b64_tr_b16 %s, v10 offset:%d" % (v(r + 4, 2), 128 * k))
        A("ds_read_b64_tr_b16 %s, v10 offset:%d" % (v(r + 6, 2), 128 * k + 4 * 1152))
    A("v_and_b32 v12, 7, v2")
    A("v_mul_u32_u24 v5, %d, v12" % XSTR)
    A("v_lshl_add_u32 v5, v3, 4, v5")
    A("v_add_u32 v5, %d, v5" % L_X)
    A("v_mul_u32_u24 v6, %d, v2" % HSTR)
    A("v_lshl_add_u32 v6, v3, 3, v6")
    A("s_lshl_b32 s43, s42, 5")
    A("s_add_u32 s43, s43, %d" % L_HS)
    A("v_add_u32 v6, s43, v6")
    A("v_mul_u32_u24 v7, %d, v12" % HSTR)
    A("v_lshl_add_u32 v7, v3, 4, v7")
    A("v_add_u32 v7, %d, v7" % L_HS)
    A("v_mul_u32_u24 v10, 4608, v12")
    A("v_lshl_add_u32 v10, v3, 5, v10")
    A("v_bfe_u32 v13, v2, 3, 1")
    A("v_lshl_add_u32 v10, v13, 4, v10")
    A("v_cmp_eq_u32 s[56:57], 1, v13")
    A("s_mul_i32 s43, s41, 36864")
    A("s_lshl_b32 s44, s42, 7")
    A("s_add_u32 s43, s43, s44")
    A("s_add_u32 s43, s43, %d" % F_PARTG)
    A("v_mov_b32 v14, %d" % L_TAG)
    for i in range(8):
        A("v_mov_b32 %s, 0" % v(232 + i))
    A("s_waitcnt lgkmcnt(0)")
    st_(A, 3)
    lds_wait(A, 4, 4, "v8", "v11")
    st_(A, 4)
    A("ds_read_b32 v15, v14")
    XR = 240
    for kk in range(3):
        A("ds_read_b128 %s, v5 offset:%d" % (v(XR + 4 * kk, 4), 64 * kk))
    for kk in range(18):
        if kk + 3 < 18:
            A("ds_read_b128 %s, v5 offset:%d" % (v(XR + 4 * ((kk + 3) % 4), 4), 64 * (kk + 3)))
        A("s_waitcnt lgkmcnt(%d)" % min(3, 17 - kk))
        x = v(XR + 4 * (kk % 4), 4)
        A("v_mfma_f32_16x16x32_bf16 v[232:235], %s, %s, v[232:235]" % (v(G + 4 * kk, 4), x))
        A("v_mfma_f32_16x16x32_bf16 v[236:239], %s, %s, v[236:239]" % (v(U + 4 * kk, 4), x))
    A("v_readfirstlane_b32 %s, v15" % T)
    A.nop(6)
    round_pair(A, 232, 233, 16, 40); round_pair(A, 234, 235, 17, 40)
    for i in range(4):
        A("v_mul_f32 %s, 0xbfb8aa3b, %s" % (v(20 + i), v(232 + i)))
    for i in range(4):
        A("v_exp_f32 %s, %s" % (v(20 + i), v(20 + i)))
    round_pair(A, 236, 237, 16, 40); round_pair(A, 238, 239, 17, 40)
    for i in range(4):
        A("v_add_f32 %s, 1.0, %s" % (v(20 + i), v(20 + i)))
    for i in range(4):
        A("v_rcp_f32 %s, %s" % (v(20 + i), v(20 + i)))
    A.nop(1)
    for i in range(4):
        A("v_mul_f32 %s, %s, %s" % (v(232 + i), v(232 + i), v(20 + i)))
    A.nop(1)
    round_pair(A, 232, 233, 16, 40); round_pair(A, 234, 235, 17, 40)
    for i in range(4):
        A("v_mul_f32 %s, %s, %s" % (v(232 + i), v(232 + i), v(236 + i)))
    A.nop(1)
    A("v_cvt_pk_bf16_f32 v16, v232, v233")
    A("v_cvt_pk_bf16_f32 v17, v234, v235")
    A("v_cmp_gt_u32 vcc, 8, v2")
    A("s_and_saveexec_b64 s[44:45], vcc")
    A("ds_write_b64 v6, v[16:17]")
    A("s_mov_b64 exec, s[44:45]")
    for k in range(9):
        A("v_mov_b32 %s, %s" % (v(24 + 4 * k + 1), T)); A("v_mov_b32 %s, %s" % (v(24 + 4 * k + 3), T))
    A("s_waitcnt lgkmcnt(0)")
    lds_signal(A, 5, "v8", "v9")
    lds_wait(A, 5, 4, "v8", "v11")
    st_(A, 5)
    A("ds_read_b128 v[16:19], v7")
    A("ds_read_b128 v[20:23], v7 offset:64")
    A("s_waitcnt lgkmcnt(0)")
    AC = 88
    for k in range(9):
        r = WD + 8 * k
        A("v_mfma_f32_16x16x32_bf16 %s, %s, v[16:19], 0" % (v(AC + 4 * k, 4), v(r, 4)))
    for k in range(9):
        r = WD + 8 * k
        A("v_mfma_f32_16x16x32_bf16 %s, %s, v[20:23], %s" % (v(AC + 4 * k, 4), v(r + 4, 4), v(AC + 4 * k, 4)))
    for k in range(9):
        ac, o = AC + 4 * k, 24 + 4 * k
        A("v_cndmask_b32 %s, %s, %s, s[56:57]" % (v(o), v(ac), v(ac + 2)))
        A("v_cndmask_b32 %s, %s, %s, s[56:57]" % (v(o + 2), v(ac + 1), v(ac + 3)))
        A("buffer_store_dwordx4 %s, v10, s[36:39], s43 offen offset:%d sc1" % (v(o, 4), 512 * (k % 8)))
        if k == 7:
            A("s_add_u32 s43, s43, 4096")
    st_(A, 6)
    dbg_time(A, 3)
    A("s_endpgm")
    A.label(Lt)
    A("s_setprio 3")
    A("s_lshl_b32 s60, s41, 2")
    A("s_add_u32 s60, s60, s42")
    A("s_sub_u32 s60, s60, 4")
    Q, WR, X = gen_ln(A)
    A("s_barrier")
    finish_tag(A)
    gen_ln_compute(A, Q, WR, X)
    srd(A, 16, PQ, S * ROWB)
    A("v_and_b32 v1, 63, v0")
    A("v_and_b32 v4, 255, v0")
    A("v_mov_b32 v8, %d" % L_CNT)
    A("v_mov_b32 v9, 1")
    A("v_lshlrev_b32 v15, 2, v1")
    A("v_lshlrev_b32 v16, 4, v1")
    A("s_and_b32 s43, s42, 3")
    A("s_lshl_b32 s43, s43, 12")
    A("v_add_u32 v16, s43, v16")
    def key_loads():
        A("s_movk_i32 s43, %d" % F_KEYG)
        for i in range(4):
            A("buffer_load_dwordx4 %s, v16, s[36:39], s43 offen offset:%d sc1" % (v(40 + 4 * i, 4), 1024 * i))
    masked_poll(A, "key", key_loads, list(range(41, 56, 2)), int(os.environ.get("KEYSLEEP", 16)), int(os.environ.get("KEYPRE", 8)))
    st_(A, 3)
    dbg_time(A, 6)
    regs, sp = sort_desc(A, range(40, 56, 2), 41, SORT8)
    SK = 60
    free = [r for r in range(40, 57) if r not in regs and r != sp]
    cur, sp, oth = top8_wave(A, regs, sp, free[:8])
    for i in range(8):
        A("v_mov_b32 %s, %s" % (v(64 + i), v(cur[i])))
    A("s_and_b32 s43, s42, 3")
    A("s_lshl_b32 s43, s43, 5")
    A("s_add_u32 s43, s43, %d" % L_CAND)
    A("v_mov_b32 v16, s43")
    A("v_mov_b32 v31, %s" % T)
    A("v_mov_b32 v17, %d" % L_TAG)
    A("s_mov_b32 exec_lo, 0")
    A("s_mov_b32 exec_hi, 0x80000000")
    A("ds_write_b128 v16, v[64:67]")
    A("ds_write_b128 v16, v[68:71] offset:16")
    A("ds_write_b32 v17, v31")
    A("s_mov_b64 exec, -1")
    A("s_waitcnt lgkmcnt(0)")
    lds_signal(A, 3, "v8", "v9")
    lds_wait(A, 3, 4, "v8", "v11")
    A("v_mov_b32 v16, %d" % L_CAND)
    for i in range(8):
        A("ds_read_b128 %s, v16 offset:%d" % (v(64 + 4 * i, 4), 16 * i))
    A("s_waitcnt lgkmcnt(4)")
    c01, sp1 = merge8(A, list(range(64, 72)), list(range(72, 80)), list(range(40, 48)), 56)
    A("s_waitcnt lgkmcnt(0)")
    c23, sp2 = merge8(A, list(range(80, 88)), list(range(88, 96)), list(range(48, 56)), 57)
    for i in range(8):
        A("v_max_u32 %s, %s, %s" % (v(64 + i), v(c01[i]), v(c23[7 - i])))
    for i in range(8):
        A("v_readfirstlane_b32 %s, %s" % (s(SK + i), v(64 + i)))
    A.nop(3)
    st_(A, 5)
    A("s_and_b32 s45, s42, 3")
    A("s_mov_b32 s43, s60"); A("s_mov_b32 s44, s61")
    for w in range(1, 4):
        A("s_cmp_eq_u32 s45, %d" % w)
        A("s_cselect_b32 s43, %s, s43" % s(SK + 2 * w))
        A("s_cselect_b32 s44, %s, s44" % s(SK + 2 * w + 1))
    A("v_mov_b32 v16, s43"); A("v_mov_b32 v17, s44")
    A("v_cmp_lt_u32 vcc, 31, v1")
    A.nop(2)
    A("v_cndmask_b32 v16, v16, v17, vcc")
    A("v_and_b32 v16, 0xffff, v16")
    A("v_sub_u32 v16, 2047, v16")
    A("v_and_b32 v17, 31, v1")
    A("s_movk_i32 s43, 1152")
    A("v_mul_lo_u32 v18, v16, s43")
    A("v_lshl_add_u32 v18, v17, 2, v18")
    A("v_lshlrev_b32 v19, 4, v16")
    for i in range(9):
        A("buffer_load_dword %s, v18, s[16:19], 0 offen offset:%d" % (v(20 + i), 128 * i))
    def rg_loads():
        A("s_mov_b32 s43, %d" % F_ROWG)
        A("buffer_load_dwordx4 v[32:35], v19, s[36:39], s43 offen sc1")
    Lns = A.newlabel("nosel")
    A("s_cmp_lg_u32 s41, 0")
    A("s_cbranch_scc1 %s" % Lns)
    A("s_cmp_lg_u32 s42, 4")
    A("s_cbranch_scc1 %s" % Lns)
    for i in range(8):
        A("v_writelane_b32 v30, %s, %d" % (s(SK + i), i))
    A("v_lshlrev_b32 v36, 3, v1")
    A("s_movk_i32 s43, %d" % F_SELG)
    A("s_mov_b64 exec, 0xff")
    A("buffer_store_dwordx2 v[30:31], v36, s[36:39], s43 offen sc1")
    A("s_mov_b64 exec, -1")
    A.label(Lns)
    masked_poll(A, "rg", rg_loads, [33, 35], 2, 0)
    A("v_lshlrev_b32 v64, 16, v32"); A("v_and_b32 v68, s40, v32")
    A("v_mov_b32 v66, v34"); A("v_mov_b32 v67, v34")
    A("v_xor_b32 v64, 0x80000000, v64"); A("v_xor_b32 v68, 0x80000000, v68")
    A("v_mov_b32 v65, v64"); A("v_mov_b32 v69, v68")
    A("v_lshrrev_b32 v38, 5, v4")
    A("v_mul_u32_u24 v38, %d, v38" % XSTR)
    A("v_lshl_add_u32 v38, v17, 2, v38")
    A("v_add_u32 v38, %d, v38" % L_X)
    st_(A, 4)
    for i0 in range(0, 9, 3):
        streams = []
        for i in range(i0, i0 + 3):
            bs = 40 + 8 * (i % 3)
            ops = norm_ops(bs, bs + 2, bs + 4, 20 + i, 64)
            ops.append("v_cvt_pk_bf16_f32 %s, %s, %s" % (v(bs + 6), v(bs + 2), v(bs + 3)))
            ops.append("ds_write_b32 v38, %s offset:%d" % (v(bs + 6), 128 * i))
            streams.append(ops)
        interleave(A, streams)
    A("s_waitcnt lgkmcnt(0)")
    lds_signal(A, 4, "v8", "v9")
    st_(A, 6)
    dbg_time(A, 4)
    Le = A.newlabel("noep")
    A("s_cmp_lg_u32 s41, 0")
    A("s_cbranch_scc1 %s" % Le)
    A("s_cmp_lg_u32 s42, 4")
    A("s_cbranch_scc1 %s" % Le)
    A("s_setprio 0")
    A("v_lshlrev_b32 v16, 2, v1")
    A("v_min_u32 v17, 15, v1")
    A("v_lshlrev_b32 v17, 2, v17")
    def al_loads():
        A("s_movk_i32 s43, %d" % F_ALIVE)
        A("buffer_load_dword v20, v16, s[36:39], s43 offen sc1")
        A("buffer_load_dword v21, v16, s[36:39], s43 offen offset:256 sc1")
        A("buffer_load_dword v22, v17, s[36:39], s43 offen offset:512 sc1")
    masked_poll(A, "al", al_loads, [20, 21, 22], 16, 0)
    A("v_mov_b32 v20, %s" % T)
    A("v_mov_b32 v21, %d" % F_EPOCH)
    A("s_mov_b64 exec, 1")
    A("buffer_store_dword v20, v21, s[36:39], 0 offen sc1")
    A("s_mov_b64 exec, -1")
    A.label(Le)
    A("s_endpgm")

def gen_spare_wg(A):
    A("s_lshl_b32 s60, s41, 3")
    A("s_add_u32 s60, s60, s42")
    A("s_add_u32 s60, s60, 288")
    Lx = A.newlabel("spx"); Lnl = A.newlabel("spnl")
    has_pf = bool(os.environ.get("WDPF"))
    def pf():
        srd(A, 56, PWD, D * F * 2)
        A("v_and_b32 v200, 63, v0")
        A("v_lshlrev_b32 v200, 4, v200")
        A("s_sub_u32 s63, s31, 27")
        A("s_lshl_b32 s63, s63, 3")
        A("s_add_u32 s63, s63, s42")
        A("s_lshl_b32 s63, s63, 14")
        A("s_mul_i32 s64, s30, 663552")
        A("s_add_u32 s63, s63, s64")
        pol = os.environ.get("WDPF")
        for i in range(16):
            A("buffer_load_dwordx4 v[204:207], v200, s[56:59], s63 offen offset:%d%s" % (1024 * (i % 4), " nt" if pol == "nt" else ""))
            if i % 4 == 3:
                A("s_add_u32 s63, s63, 4096")
    A("s_cmp_ge_u32 s60, 512")
    A("s_cbranch_scc1 %s" % Lnl)
    Q, WR, X = gen_ln(A)
    if has_pf:
        pf()
    finish_tag(A)
    gen_ln_compute(A, Q, WR, X, extra=(16 if has_pf else 0))
    A("s_endpgm")
    A.label(Lnl)
    if has_pf:
        pf()
        A("s_waitcnt vmcnt(0)")
    A("s_endpgm")

def gen_kernel(A, name):
    kernel_header(A, name)
    Ldone = A.newlabel("done"); Lmoe = A.newlabel("moe"); Lsp = A.newlabel("spare")
    A("s_getpc_b64 s[96:97]")
    A("s_cmp_ge_u32 s2, 256")
    A("s_cbranch_scc1 %s" % Ldone)
    A("s_load_dwordx4 s[68:71], s[0:1], %d" % KA_DBG)
    A("s_load_dwordx16 s[72:87], s[0:1], 0")
    A("s_load_dwordx8 s[88:95], s[0:1], %d" % KA_WG)
    A("v_lshrrev_b32 v1, 6, v0")
    A("s_and_b32 s30, s2, 7")
    A("s_lshr_b32 s31, s2, 3")
    A("v_readfirstlane_b32 s42, v1")
    A("s_mov_b32 s40, 0xffff0000")
    if not os.environ.get("NOICPF"):
        Lc = A.newlabel("noic")
        A("s_and_b32 s96, s96, 0xffffff00")
        A("s_and_b32 s97, s97, 0xffff")
        A("s_mov_b32 s98, L_code_end-%s" % name)
        A("s_mov_b32 s99, 0x00020000")
        A("v_and_b32 v243, 63, v0")
        A("v_lshlrev_b32 v243, 4, v243")
        A("s_lshl_b32 s95, s31, 10") if False else None
        A("s_lshl_b32 s3, s31, 10")
        A("v_cmp_lt_u32 vcc, 447, v0")
        A("s_cbranch_vccz %s" % Lc)
        A("buffer_load_dwordx4 v[244:247], v243, s[96:99], s3 offen")
        A.label(Lc)
    A("s_waitcnt lgkmcnt(0)")
    A("s_load_dword s%d, s[%d:%d], %d" % (TAG, PWS, PWS + 1, F_EPOCH))
    srd(A, 36, PWS, WS_SIZE)
    A("s_lshl_b32 s3, s2, 3")
    A("s_add_u32 s3, s3, s42")
    st_(A, 0)
    A("s_cmp_ge_u32 s31, 27")
    A("s_cbranch_scc1 %s" % Lsp)
    A("s_cmp_ge_u32 s31, 18")
    A("s_cbranch_scc1 %s" % Lmoe)
    A("s_mul_i32 s41, s30, 18")
    A("s_add_u32 s41, s41, s31")
    gen_conv_wg(A)
    A.label(Lmoe)
    A("s_mul_i32 s41, s30, 9")
    A("s_add_u32 s41, s41, s31")
    A("s_sub_u32 s41, s41, 18")
    gen_moe_wg(A)
    A.label(Lsp)
    A("s_mul_i32 s41, s30, 5")
    A("s_add_u32 s41, s41, s31")
    A("s_sub_u32 s41, s41, 27")
    gen_spare_wg(A)
    A.label(Ldone)
    A("s_endpgm")
    A.label("L_code_end")
    return kernel_desc(name, 256, 102, 256)
```

```python
from common import *
import common, os
from collections import deque
from conv2 import CS, CH_LDS, H_OFF, POLL_MAX, conv_schedule
from moe2 import wave_max_u32, L_WG, L_WU, L_X, L_HS, L_U, L_CAND, XSTR, HSTR
from moe3 import SORT8, sort_desc, rounds

F_EPOCH = 0x0
F_SELG = 0x100
F_ALIVE = 0x1000
F_KEYG = 0x2000
F_ROWG = 0x8000
F_LNF = 0x6000
F_URC = 0x100000 + 0x300000
F_UR = 0x20000
F_PARTG = 0x500000
F_XT = 0x800000
F_XC = 0x480000
L_TAG = 162304

PQ, PK, PV, PSHK, PSSMK, PSSMD, PWR, PWG, PWU, PWD, POUT, PWS = 72, 74, 76, 78, 80, 82, 86, 88, 90, 92, 94, 70
TAG = 46
QNT = '' if os.environ.get('QDEF') else ' nt'
NTS = '' if os.environ.get('NONT') else ' nt'
LIGHT = os.environ.get("STAMPS") == "2"
def st_(A, n, end=False):
    if LIGHT:
        if n != 0 and not end:
            return
        n = 15 if end else 0
    stamp(A, n, 36, 3, vt=254, st=96)

MISC = 4 * CH_LDS
FLAGS = MISC
SIDE = MISC + 64
RED = SIDE + 256
YOFF = H_OFF
W1, W0 = 20, 28
E_, G_, F_ = 36, 44, 50
UREG = 56
RING, NR, ACC, BS = 64, 6, 88, 120

DBGT = bool(os.environ.get("DBGT"))
def dbg_time(A, slot, invert=False):
    if not DBGT:
        return
    L = A.newlabel("dbgs")
    A("s_and_b32 s100, s42, 3")
    A("s_cmp_lg_u32 s100, 0")
    A("s_cbranch_scc1 %s" % L)
    A("s_cmp_eq_u32 s2, 8")
    A("s_cselect_b32 s100, 1, 0")
    A("s_cmp_eq_u32 s2, 152")
    A("s_cselect_b32 s100, 1, s100")
    A("s_cmp_eq_u32 s100, 0")
    A("s_cbranch_scc1 %s" % L)
    A("s_memrealtime s[96:97]")
    A("s_waitcnt lgkmcnt(0)")
    A("v_mov_b32 v252, s96")
    A("v_mov_b32 v253, %d" % (4 * slot))
    A("s_mov_b64 s[98:99], exec")
    A("s_mov_b64 exec, 1")
    A("global_store_dword v253, v252, s[68:69]")
    A("s_mov_b64 exec, s[98:99]")
    A.label(L)

def poll_head(A, cnt="s52"):
    A("s_mov_b32 %s, 0" % cnt)

def poll_tail(A, Lloop, Ldone, cnt="s52", sleep=1):
    A("s_add_u32 %s, %s, 1" % (cnt, cnt))
    A("s_cmp_gt_u32 %s, %d" % (cnt, POLL_MAX))
    A("s_cbranch_scc1 %s" % Ldone)
    A("s_sleep %d" % sleep)
    A("s_branch %s" % Lloop)

def masked_poll(A, name, emit_loads, tagregs, sleep, pre_sleep=0, full_exec="-1"):
    T = "s%d" % TAG
    Lp = A.newlabel(name + "p"); Ld = A.newlabel(name + "ok")
    if pre_sleep:
        A("s_sleep %d" % pre_sleep)
    A("s_mov_b32 s52, 0")
    A.label(Lp)
    emit_loads()
    A("s_waitcnt vmcnt(0)")
    A("v_cmp_eq_u32 vcc, %s, %s" % (T, v(tagregs[0])))
    for r in tagregs[1:]:
        A("v_cmp_eq_u32 s[54:55], %s, %s" % (T, v(r)))
        A("s_and_b64 vcc, vcc, s[54:55]")
    A("s_andn2_b64 exec, exec, vcc")
    A("s_cbranch_scc0 %s" % Ld)
    A("s_add_u32 s52, s52, 1")
    A("s_cmp_gt_u32 s52, %d" % POLL_MAX)
    A("s_cbranch_scc1 %s" % Ld)
    A("s_sleep %d" % sleep)
    A("s_branch %s" % Lp)
    A.label(Ld)
    A("s_mov_b64 exec, %s" % full_exec)

def first_then_poll(A, name, emit_loads, tagregs, sleep, ex, first_cnt=0):
    T = "s%d" % TAG
    Lp = A.newlabel(name + "p"); Ld = A.newlabel(name + "ok")
    A("s_mov_b32 s52, 0")
    A("s_waitcnt vmcnt(%d)" % first_cnt)
    A.label(Lp)
    A("v_cmp_eq_u32 vcc, %s, %s" % (T, v(tagregs[0])))
    for r in tagregs[1:]:
        A("v_cmp_eq_u32 s[54:55], %s, %s" % (T, v(r)))
        A("s_and_b64 vcc, vcc, s[54:55]")
    A("s_andn2_b64 exec, exec, vcc")
    A("s_cbranch_scc0 %s" % Ld)
    A("s_add_u32 s52, s52, 1")
    A("s_cmp_gt_u32 s52, %d" % POLL_MAX)
    A("s_cbranch_scc1 %s" % Ld)
    A("s_sleep %d" % sleep)
    emit_loads()
    A("s_waitcnt vmcnt(0)")
    A("s_branch %s" % Lp)
    A.label(Ld)
    A("s_mov_b64 exec, -1")

def ln_hint_poll(A, vaddr, r0, sleep, pre):
    def loads():
        A("s_movk_i32 s51, %d" % F_LNF)
        A("buffer_load_dwordx4 %s, %s, s[36:39], s51 offen sc1" % (v(r0, 4), vaddr))
        A("buffer_load_dwordx4 %s, %s, s[36:39], s51 offen offset:1024 sc1" % (v(r0 + 4, 4), vaddr))
    masked_poll(A, "lnh", loads, list(range(r0, r0 + 8)), sleep, pre)

def stats_from_msd(A, g, st, t):
    A("v_and_b32 %s, s40, %s" % (v(st + 4), v(g)))
    A("v_lshlrev_b32 %s, 16, %s" % (v(st), v(g)))
    A("v_rcp_f32 %s, %s" % (v(st + 2), v(st + 4)))
    A("v_xor_b32 %s, 0x80000000, %s" % (v(st), v(st)))
    A("v_xor_b32 %s, 0x80000000, %s" % (v(st + 4), v(st + 4)))
    A("v_fma_f32 %s, %s, %s, 1.0" % (v(t), v(st + 4), v(st + 2)))
    A("v_mov_b32 %s, %s" % (v(st + 1), v(st)))
    A("v_fma_f32 %s, %s, %s, %s" % (v(st + 2), v(t), v(st + 2), v(st + 2)))
    A("v_mov_b32 %s, %s" % (v(st + 5), v(st + 4)))
    A("v_mov_b32 %s, %s" % (v(st + 3), v(st + 2)))

LK, LV, LQ, SG, SX, SGS = 0, 17408, 33792, 50176, 67584, 272

def row_xor_reduce(A, regs):
    for ctl in ("quad_perm:[1,0,3,2]", "quad_perm:[2,3,0,1]", "row_half_mirror", "row_mirror"):
        if len(regs) < 3:
            A.nop(3 - len(regs))
        for r in regs:
            A("v_xor_b32_dpp %s, %s, %s %s row_mask:0xf bank_mask:0xf" % (v(r), v(r), v(r), ctl))

def gen_kv_issue(A):
    srd(A, 48, PK, S * ROWB)
    srd(A, 52, PV, S * ROWB)
    A("v_and_b32 v1, 63, v0")
    A("v_lshrrev_b32 v4, 3, v1")
    A("v_mul_u32_u24 v4, 1152, v4")
    A("v_and_b32 v5, 7, v1")
    A("v_lshl_add_u32 v4, v5, 4, v4")
    A("s_mul_i32 s62, s61, %d" % (128 * 1152))
    A("s_lshl_b32 s63, s60, 7")
    A("s_add_u32 s62, s62, s63")
    A("s_mul_i32 s63, s42, 9216")
    A("s_add_u32 s62, s62, s63")
    A("s_sub_u32 s63, s62, 9216")
    A("s_lshl_b32 s64, s42, 10")
    srd(A, 16, PQ, S * ROWB)
    for i in range(4):
        A("s_mov_b32 m0, s64")
        A("s_add_u32 s65, s64, %d" % LV)
        A("buffer_load_dwordx4 v4, s[48:51], s63 offen lds" + NTS)
        A("s_mov_b32 m0, s65")
        A("s_add_u32 s65, s64, %d" % LQ)
        A("buffer_load_dwordx4 v4, s[52:55], s62 offen lds" + NTS)
        A("s_mov_b32 m0, s65")
        A("s_add_u32 s64, s64, 4096")
        A("buffer_load_dwordx4 v4, s[16:19], s62 offen lds" + NTS)
        A("s_add_u32 s63, s63, %d" % (32 * 1152))
        A("s_add_u32 s62, s62, %d" % (32 * 1152))
    Ln = A.newlabel("nok17")
    A("s_cmp_lg_u32 s42, 0")
    A("s_cbranch_scc1 %s" % Ln)
    A("s_mov_b32 m0, s64")
    A("s_nop 0")
    A("buffer_load_dwordx4 v4, s[48:51], s63 offen lds" + NTS)
    A.label(Ln)

def gen_kv_addr(A):
    srd(A, 56, PSHK, D * 8)
    A("v_and_b32 v2, 31, v0")
    A("s_lshl_b32 s63, s60, 9")
    A("v_lshl_add_u32 v29, v2, 4, s63")
    A("buffer_load_dwordx4 v[32:35], v29, s[56:59], 0 offen")

def gen_kv_addr2(A):
    A("v_lshrrev_b32 v3, 5, v0")
    A("v_lshlrev_b32 v6, 10, v3")
    A("v_lshl_add_u32 v6, v2, 2, v6")
    A("v_mul_u32_u24 v7, %d, v2" % (2 * SGS))
    A("v_sub_u32 v8, 15, v3")
    A("v_lshl_add_u32 v7, v8, 4, v7")
    A("v_add_u32 v7, %d, v7" % SG)
    A("v_bfe_u32 v10, v0, 4, 2")
    A("v_and_b32 v11, 15, v0")
    A("v_mul_u32_u24 v8, %d, v10" % SGS)
    A("v_lshl_add_u32 v8, v11, 4, v8")
    A("s_mul_i32 s63, s42, %d" % (8 * SGS))
    A("s_add_u32 s63, s63, %d" % SG)
    A("v_add_u32 v8, s63, v8")
    A("v_lshlrev_b32 v9, 12, v10")
    A("v_lshl_add_u32 v9, v11, 4, v9")
    A("s_lshl_b32 s63, s60, 6")
    A("s_lshl_b32 s64, s42, 3")
    A("s_add_u32 s63, s63, s64")
    A("s_lshl_b32 s65, s63, 12")
    A("s_lshl_b32 s64, s61, 8")
    A("s_sub_u32 s65, s65, s64")
    A("s_add_u32 s65, s65, %d" % (F_UR + 240 * 16))
    A("v_add_u32 v9, s65, v9")
    A("v_lshlrev_b32 v12, 7, v10")
    A("s_lshl_b32 s65, s63, 7")
    A("s_lshl_b32 s64, s61, 3")
    A("s_sub_u32 s65, s65, s64")
    A("s_add_u32 s65, s65, %d" % (F_URC + 120))
    A("v_add_u32 v12, s65, v12")
    A("v_cmp_eq_u32 s[66:67], 0, v11")
    A("v_mul_u32_u24 v13, %d, v2" % (2 * SGS))
    A("v_lshl_add_u32 v13, v3, 4, v13")
    A("v_add_u32 v13, %d, v13" % SX)
    A("v_lshlrev_b32 v48, 12, v10")
    A("v_lshl_add_u32 v48, v11, 4, v48")
    A("s_lshl_b32 s65, s63, 12")
    A("s_lshl_b32 s64, s61, 8")
    A("s_add_u32 s65, s65, s64")
    A("s_add_u32 s65, s65, %d" % F_XT)
    A("v_add_u32 v48, s65, v48")
    A("v_lshlrev_b32 v49, 7, v10")
    A("s_lshl_b32 s65, s63, 7")
    A("s_lshl_b32 s64, s61, 3")
    A("s_add_u32 s65, s65, s64")
    A("s_add_u32 s65, s65, %d" % F_XC)
    A("v_add_u32 v49, s65, v49")

def gen_kv_compute(A):
    A("s_barrier")
    st_(A, 1)
    dbg_time(A, 8)
    for i in range(11):
        A("ds_read_b32 %s, v6 offset:%d" % (v(14 + i), LK + (5 + i) * 128))
    for i in range(8):
        A("ds_read_b32 %s, v6 offset:%d" % (v(40 + i), LV + i * 128))
    for i in range(8):
        A("ds_read_b32 %s, v6 offset:%d" % (v(144 + i), LQ + i * 128))
    A("v_lshlrev_b32 v54, 16, v32"); A("v_lshlrev_b32 v55, 16, v34")
    A("v_and_b32 v56, s40, v32");    A("v_and_b32 v57, s40, v34")
    A("v_lshlrev_b32 v58, 16, v33"); A("v_lshlrev_b32 v59, 16, v35")
    A("v_and_b32 v60, s40, v33");    A("v_and_b32 v61, s40, v35")
    DOT = bool(os.environ.get("DOT2", "1") != "0")
    W, K, KV = 54, 62, 100
    A("s_mov_b32 s64, 0x05040100"); A("s_mov_b32 s65, 0x07060302")
    if DOT:
        A("v_and_b32 v62, 0xffff, v32"); A("v_lshlrev_b32 v63, 16, v34")
        A("v_lshrrev_b32 v64, 16, v32"); A("v_and_b32 v65, s40, v34")
        A("v_and_b32 v66, 0xffff, v33"); A("v_lshlrev_b32 v67, 16, v35")
        A("v_lshrrev_b32 v68, 16, v33"); A("v_and_b32 v69, s40, v35")
        A("v_mov_b32 v70, 0x3f803f80")
        A("v_mov_b32 v71, 0")
        A("s_waitcnt lgkmcnt(0)")
        for j in range(4):
            A("v_perm_b32 %s, %s, %s, s64" % (v(152 + j), v(144 + 2 * j + 1), v(144 + 2 * j)))
            A("v_perm_b32 %s, %s, %s, s65" % (v(156 + j), v(144 + 2 * j + 1), v(144 + 2 * j)))
        A("ds_write_b128 v13, v[152:155]")
        A("ds_write_b128 v13, v[156:159] offset:%d" % SGS)
        def ch_ops(i, c, t0):
            a_, b_, p_, q_ = t0, t0 + 1, t0 + 2, t0 + 3
            o = []
            d2 = lambda d, x, y, z: "v_dot2_f32_bf16 %s, %s, %s, %s" % (v(d), v(x), v(y), z)
            o.append(d2(a_, 14 + i + 0, 62 + 2 * 3 + c, "0"))
            o.append(d2(b_, 14 + i + 1, 62 + 2 * 2 + c, "0"))
            o.append(d2(q_, 14 + i + 2, 62 + 2 * 1 + c, "0"))
            o.append("v_cvt_pk_bf16_f32 %s, %s, %s" % (v(p_), v(a_), v(b_)))
            o.append(d2(b_, 14 + i + 3, 62 + 2 * 0 + c, "0"))
            o.append(d2(a_, p_, 70, "0"))
            o.append("s_nop 0")
            o.append("v_cvt_pk_bf16_f32 %s, %s, %s" % (v(p_), v(a_), v(q_)))
            o.append("s_nop 0")
            o.append(d2(a_, p_, 70, "0"))
            o.append("s_nop 0")
            o.append("v_cvt_pk_bf16_f32 %s, %s, %s" % (v(p_), v(a_), v(b_)))
            o.append("s_nop 0")
            o.append(d2(a_, p_, 70, "0"))
            o.append("s_nop 0")
            if c == 0:
                o.append("v_cvt_pk_bf16_f32 %s, %s, %s" % (v(p_), v(a_), v(71)))
            else:
                o.append("v_cvt_pk_bf16_f32 %s, %s, %s" % (v(p_), v(71), v(a_)))
            o.append("s_nop 0")
            o.append(d2(KV + 2 * i + c, p_, 40 + i, "0"))
            return [x for x in o if x != "s_nop 0"]
        for i in range(0, 8, 4):
            streams = []
            for ii in range(4):
                for c in range(2):
                    streams.append(ch_ops(i + ii, c, 72 + 4 * (2 * ii + c) if (2 * ii + c) < 7 else 132))
            interleave(A, streams)
        A.nop(3)
        for c in range(2):
            for j in range(4):
                A("v_cvt_pk_bf16_f32 %s, %s, %s" % (v(116 + 4 * c + j), v(KV + 2 * (7 - 2 * j) + c), v(KV + 2 * (6 - 2 * j) + c)))
    else:
        A("s_waitcnt lgkmcnt(15)")
        for i in range(11):
            unpack_pair(A, K + 2 * i, K + 2 * i + 1, 14 + i, 40)
        A("s_waitcnt lgkmcnt(0)")
        for j in range(4):
            A("v_perm_b32 %s, %s, %s, s64" % (v(152 + j), v(144 + 2 * j + 1), v(144 + 2 * j)))
            A("v_perm_b32 %s, %s, %s, s65" % (v(156 + j), v(144 + 2 * j + 1), v(144 + 2 * j)))
        A("ds_write_b128 v13, v[152:155]")
        A("ds_write_b128 v13, v[156:159] offset:%d" % SGS)
        def pr_(r):
            return "v[%d:%d]" % (r, r + 1)
        def row_ops(i, acc, tmp, t3):
            P = Asm()
            P("v_pk_mul_f32 %s, %s, %s" % (pr_(acc), pr_(K + 2 * (i + 0)), pr_(W + 6)))
            round_pair(P, acc, acc + 1, t3, 40)
            for t in range(1, 4):
                P("v_pk_mul_f32 %s, %s, %s" % (pr_(tmp), pr_(K + 2 * (i + t)), pr_(W + 2 * (3 - t))))
                round_pair(P, tmp, tmp + 1, t3, 40)
                P("v_pk_add_f32 %s, %s, %s" % (pr_(acc), pr_(acc), pr_(tmp)))
                round_pair(P, acc, acc + 1, t3, 40)
            unpack_pair(P, tmp, tmp + 1, 40 + i, 40)
            P("v_pk_mul_f32 %s, %s, %s" % (pr_(KV + 2 * i), pr_(acc), pr_(tmp)))
            return [l.strip() for l in P.lines]
        for i in range(0, 8, 4):
            interleave(A, [row_ops(i, 84, 86, 88), row_ops(i + 1, 90, 92, 94), row_ops(i + 2, 132, 134, 136), row_ops(i + 3, 138, 140, 142)])
        for c in range(2):
            for j in range(4):
                A("v_cvt_pk_bf16_f32 %s, %s, %s" % (v(116 + 4 * c + j), v(KV + 2 * (7 - 2 * j) + c), v(KV + 2 * (6 - 2 * j) + c)))
    A("ds_write_b128 v7, v[116:119]")
    A("ds_write_b128 v7, v[120:123] offset:%d" % SGS)
    A("s_waitcnt lgkmcnt(0)")
    A("s_barrier")
    A("ds_read_b128 v[116:119], v8")
    A("ds_read_b128 v[120:123], v8 offset:%d" % (4 * SGS))
    A("s_movk_i32 s63, 16384")
    A("s_waitcnt lgkmcnt(1)")
    A("buffer_store_dwordx4 v[116:119], v9, s[36:39], 0 offen sc1")
    A("v_xor_b32 v124, v116, v117"); A("v_xor_b32 v126, v118, v119")
    A("s_waitcnt lgkmcnt(0)")
    A("buffer_store_dwordx4 v[120:123], v9, s[36:39], s63 offen sc1")
    A("v_xor_b32 v125, v120, v121"); A("v_xor_b32 v127, v122, v123")
    A("v_xor_b32 v124, v124, v126"); A("v_xor_b32 v125, v125, v127")
    row_xor_reduce(A, [124, 125])
    A("v_xor_b32 v128, s%d, v124" % TAG); A("v_xor_b32 v130, s%d, v125" % TAG)
    A("v_mov_b32 v129, s%d" % TAG); A("v_mov_b32 v131, s%d" % TAG)
    A("s_mov_b64 exec, s[66:67]")
    A("buffer_store_dwordx2 v[128:129], v12, s[36:39], 0 offen sc1")
    A("buffer_store_dwordx2 v[130:131], v12, s[36:39], 0 offen offset:512 sc1")
    A("s_mov_b64 exec, -1")
    A("ds_read_b128 v[116:119], v8 offset:%d" % (SX - SG))
    A("ds_read_b128 v[120:123], v8 offset:%d" % (SX - SG + 4 * SGS))
    A("s_waitcnt lgkmcnt(1)")
    A("buffer_store_dwordx4 v[116:119], v48, s[36:39], 0 offen sc1")
    A("v_xor_b32 v124, v116, v117"); A("v_xor_b32 v126, v118, v119")
    A("s_waitcnt lgkmcnt(0)")
    A("buffer_store_dwordx4 v[120:123], v48, s[36:39], s63 offen sc1")
    A("v_xor_b32 v125, v120, v121"); A("v_xor_b32 v127, v122, v123")
    A("v_xor_b32 v124, v124, v126"); A("v_xor_b32 v125, v125, v127")
    row_xor_reduce(A, [124, 125])
    A("v_xor_b32 v128, s%d, v124" % TAG); A("v_xor_b32 v130, s%d, v125" % TAG)
    A("s_mov_b64 exec, s[66:67]")
    A("buffer_store_dwordx2 v[128:129], v49, s[36:39], 0 offen sc1")
    A("buffer_store_dwordx2 v[130:131], v49, s[36:39], 0 offen offset:512 sc1")
    A("s_mov_b64 exec, -1")
    st_(A, 2)

def gen_ln(A, two=False):
    srd(A, 48, PQ, S * ROWB)
    srd(A, 56, PWR, D * 2)
    A("v_and_b32 v1, 63, v0")
    A("v_and_b32 v2, 15, v0")
    A("v_lshrrev_b32 v3, 4, v1")
    A("s_lshl_b32 s61, s60, 2")
    A("v_add_u32 v30, s61, v3")
    A("s_movk_i32 s62, 1152")
    A("v_mul_lo_u32 v6, v30, s62")
    A("v_lshl_add_u32 v6, v2, 3, v6")
    A("v_lshlrev_b32 v7, 3, v2")
    Q, WR, X = 64, 84, 104
    for i in range(9):
        A("buffer_load_dwordx2 %s, v6, s[48:51], 0 offen offset:%d" % (v(Q + 2 * i, 2), 128 * i) + QNT)
    for i in range(9):
        A("buffer_load_dwordx2 %s, v7, s[56:59], 0 offen offset:%d" % (v(WR + 2 * i, 2), 128 * i))
    if two:
        A("s_mov_b32 s62, %d" % (1024 * 1152))
        for i in range(9):
            A("buffer_load_dwordx2 %s, v6, s[48:51], s62 offen offset:%d" % (v(144 + 2 * i, 2), 128 * i))
    return Q, WR, X

def gen_ln_compute(A, Q, WR, X, extra=0, first_wait=None):
    A("s_waitcnt vmcnt(%d)" % (9 + extra if first_wait is None else first_wait))
    st_(A, 1)
    for i in range(18):
        unpack_pair(A, X + 2 * i, X + 2 * i + 1, Q + i, 40)
    A("v_pk_add_f32 v[8:9], %s, %s" % (v(X, 2), v(X + 2, 2)))
    A("v_pk_add_f32 v[10:11], %s, %s" % (v(X + 4, 2), v(X + 6, 2)))
    for i in range(4, 18, 2):
        A("v_pk_add_f32 v[8:9], v[8:9], %s" % v(X + 2 * i, 2))
        A("v_pk_add_f32 v[10:11], v[10:11], %s" % v(X + 2 * i + 2, 2))
    A("v_pk_add_f32 v[8:9], v[8:9], v[10:11]")
    A.nop(1)
    A("v_add_f32 v8, v8, v9")
    allreduce16_add(A, 8)
    A("v_mul_f32 v8, 0x3ae38e39, v8")
    A("v_sub_f32 v12, 0, v8")
    A("v_sub_f32 v13, 0, v8")
    for r in (14, 15, 16, 17):
        A("v_mov_b32 %s, 0" % v(r))
    for i in range(0, 18, 2):
        A("v_pk_add_f32 v[18:19], %s, v[12:13]" % v(X + 2 * i, 2))
        A("v_pk_add_f32 v[20:21], %s, v[12:13]" % v(X + 2 * i + 2, 2))
        A("v_pk_fma_f32 v[14:15], v[18:19], v[18:19], v[14:15]")
        A("v_pk_fma_f32 v[16:17], v[20:21], v[20:21], v[16:17]")
    A("v_pk_add_f32 v[14:15], v[14:15], v[16:17]")
    A.nop(1)
    A("v_add_f32 v14, v14, v15")
    allreduce16_add(A, 14)
    A("v_mul_f32 v14, 0x3ae38e39, v14")
    A.nop(1)
    round_pair(A, 8, 14, 9, 40)
    A("v_add_f32 v14, 0x3727c5ac, v14")
    A.nop(1)
    A("v_cvt_pk_bf16_f32 v9, v14, v14")
    A("v_lshlrev_b32 v14, 16, v9")
    A("v_sqrt_f32 v14, v14")
    A.nop(1)
    A("v_cvt_pk_bf16_f32 v9, v14, v14")
    A("v_lshlrev_b32 v14, 16, v9")
    A("v_rcp_f32 v15, v14")
    A.nop(1)
    A("v_fma_f32 v16, -v14, v15, 1.0")
    A("v_fma_f32 v15, v16, v15, v15")
    A("v_sub_f32 v12, 0, v8"); A("v_sub_f32 v13, 0, v8")
    A("v_mov_b32 v16, v15"); A("v_mov_b32 v17, v15")
    for r in (22, 23, 24, 25):
        A("v_mov_b32 %s, 0" % v(r))
    A("s_waitcnt vmcnt(%d)" % (extra if first_wait is None else first_wait))
    def ops(i, tm, acc):
        x0 = X + 2 * i
        P = Asm()
        P("v_pk_add_f32 %s, %s, v[12:13]" % (v(x0, 2), v(x0, 2)))
        round_pair(P, x0, x0 + 1, tm, 40)
        P("v_pk_mul_f32 %s, %s, v[16:17]" % (v(x0, 2), v(x0, 2)))
        round_pair(P, x0, x0 + 1, tm, 40)
        unpack_pair(P, tm + 2, tm + 3, WR + i, 40)
        P("v_pk_fma_f32 %s, %s, %s, %s" % (v(acc, 2), v(x0, 2), v(tm + 2, 2), v(acc, 2)))
        return [l.strip() for l in P.lines]
    for i in range(0, 18, 2):
        interleave(A, [ops(i, 26, 22), ops(i + 1, 32, 24)])
    A("v_pk_add_f32 v[22:23], v[22:23], v[24:25]")
    A.nop(1)
    A("v_add_f32 v22, v22, v23")
    allreduce16_add(A, 22)
    A.nop(1)
    A("v_cvt_pk_bf16_f32 v23, v22, v22")
    A("v_lshlrev_b32 v23, 16, v23")
    A("v_ashrrev_i32 v24, 31, v23")
    A("v_or_b32 v24, 0x80000000, v24")
    A("v_xor_b32 v23, v23, v24")
    A("v_and_b32 v23, s40, v23")
    A("v_sub_u32 v24, 2047, v30")
    A("v_or_b32 v26, v23, v24")
    A("v_mov_b32 v27, s%d" % TAG)
    A("v_cvt_pk_bf16_f32 v32, v8, v14")
    A("v_mov_b32 v33, s%d" % TAG)
    A("v_lshlrev_b32 v28, 3, v30")
    A("s_movk_i32 s61, %d" % F_KEYG)
    A("s_mov_b32 s62, %d" % F_ROWG)
    A("v_cmp_eq_u32 vcc, 0, v2")
    A("s_and_saveexec_b64 s[64:65], vcc")
    A("buffer_store_dwordx2 v[26:27], v28, s[36:39], s61 offen sc1")
    A("buffer_store_dwordx2 v[32:33], v28, s[36:39], s62 offen sc1")
    A("s_mov_b64 exec, s[64:65]")
    st_(A, 2)

def load_verified_runs(A, pay_soff, chk_soff, vlane16, vchk8, vhint8, P, pre, sleep):
    C, Tm = P + 16, P + 20
    def hint_loads():
        A("buffer_load_dwordx2 %s, %s, s[36:39], %s offen sc1" % (v(C, 2), vhint8, chk_soff))
    masked_poll(A, "vh", hint_loads, [C + 1], sleep, pre)
    Lp = A.newlabel("vp"); Ld = A.newlabel("vok")
    A("s_mov_b32 s52, 0")
    A.label(Lp)
    for i in range(4):
        A("buffer_load_dwordx4 %s, %s, s[36:39], %s offen offset:%d sc1" % (v(P + 4 * i, 4), vlane16, pay_soff, 1024 * i))
    for i in range(4):
        A("buffer_load_dword %s, %s, s[36:39], %s offen offset:%d sc1" % (v(C + i), vchk8, chk_soff, 32 * i))
    A("s_waitcnt vmcnt(0)")
    for i in range(4):
        A("v_xor_b32 %s, %s, %s" % (v(Tm + i), v(P + 4 * i), v(P + 1 + 4 * i)))
    for i in range(4):
        A("v_xor_b32 %s, %s, %s" % (v(Tm + 4 + i), v(P + 2 + 4 * i), v(P + 3 + 4 * i)))
    for i in range(4):
        A("v_xor_b32 %s, %s, %s" % (v(Tm + i), v(Tm + i), v(Tm + 4 + i)))
    row_xor_reduce(A, [Tm, Tm + 1, Tm + 2, Tm + 3])
    for i in range(4):
        A("v_xor_b32 %s, %s, %s" % (v(Tm + i), v(Tm + i), v(C + i)))
    A("v_cmp_eq_u32 vcc, s%d, %s" % (TAG, v(Tm)))
    for i in range(1, 4):
        A("v_cmp_eq_u32 s[54:55], s%d, %s" % (TAG, v(Tm + i)))
        A("s_and_b64 vcc, vcc, s[54:55]")
    A("s_cmp_eq_u64 vcc, -1")
    A("s_cbranch_scc1 %s" % Ld)
    A("s_add_u32 s52, s52, 1")
    A("s_cmp_gt_u32 s52, %d" % POLL_MAX)
    A("s_cbranch_scc1 %s" % Ld)
    A("s_sleep 2")
    A("s_branch %s" % Lp)
    A.label(Ld)

def build_ops(W, N, off):
    ops = []
    for k in range(7):
        ops.append("v_alignbit_b32 %s, %s, %s, 16" % (v(E_ + k), v(W + k + 1), v(W + k)))
    ops.append("ds_write_b128 v11, %s offset:%d" % (v(W + 2, 4), 4 * CS + off))
    for k in range(3):
        ops.append("v_pk_mov_b32 %s, %s, %s op_sel:[1,0]" % (v(G_ + 2 * k, 2), v(W + 2 * k, 2), v(W + 2 * k + 2, 2)))
    ops.append("ds_write_b128 v11, %s offset:%d" % (v(E_, 4), 1 * CS + off))
    ops.append("ds_write_b128 v11, %s offset:%d" % (v(E_ + 2, 4), 5 * CS + off))
    for k in range(3):
        ops.append("v_pk_mov_b32 %s, %s, %s op_sel:[1,0]" % (v(F_ + 2 * k, 2), v(E_ + 2 * k, 2), v(E_ + 2 * k + 2, 2)))
    ops.append("ds_write_b128 v11, %s offset:%d" % (v(G_, 4), 2 * CS + off))
    ops.append("ds_write_b128 v11, %s offset:%d" % (v(G_ + 2, 4), 6 * CS + off))
    ops.append("s_nop 0")
    ops.append("ds_write_b128 v11, %s offset:%d" % (v(F_, 4), 3 * CS + off))
    ops.append("ds_write_b128 v11, %s offset:%d" % (v(F_ + 2, 4), 7 * CS + off))
    return ops

def gen_M(A):
    A("s_setprio %d" % int(os.environ.get("MPRIO", 2)))
    srd(A, 32, PSSMK, D * S * 2)
    A("v_and_b32 v1, 63, v0")
    A("v_lshlrev_b32 v4, 4, v1")
    A("s_add_u32 s56, s45, %d" % (H_OFF + 512))
    A("s_lshl_b32 s57, s44, 12")
    A("s_mov_b32 m0, s56")
    A("s_lshl_b32 s51, s44, 1")
    for i in range(4):
        A("buffer_load_dwordx4 v4, s[32:35], s57 offen offset:%d lds" % (1024 * i) + NTS)
    A("s_add_u32 s56, s56, 4096")
    A("s_add_u32 s57, s57, 4096")
    A("s_mov_b32 m0, s56")
    A("s_mov_b64 exec, 0x3")
    A("buffer_load_dwordx4 v4, s[32:35], s57 offen lds" + NTS)
    A("s_mov_b64 exec, -1")
    A("s_and_b32 s52, s51, 0xfffffffc")
    A("s_add_u32 s54, s%d, s52" % PSSMD)
    A("s_addc_u32 s55, s%d, 0" % (PSSMD + 1))
    A("s_load_dword s53, s[54:55], 0")
    A("v_and_b32 v2, 15, v0")
    A("v_bfe_u32 v3, v0, 4, 2")
    A("v_mov_b32 v12, 0"); A("v_mov_b32 v13, 0"); A("v_mov_b32 v14, 0"); A("v_mov_b32 v15, 0")
    A("v_add_u32 v11, s45, v4")
    A("s_mov_b32 exec_hi, 0")
    A("ds_write_b128 v11, v[12:15] offset:%d" % H_OFF)
    A("s_mov_b64 exec, 0x3")
    for c in range(8):
        pass
    A("ds_write_b128 v11, v[12:15]")
    A("s_mov_b64 exec, 0xf")
    A("ds_write_b128 v11, v[12:15] offset:%d" % (258 * 16))
    A("s_mov_b64 exec, -1")
    A("v_lshlrev_b32 v5, 5, v2")
    A("v_lshl_add_u32 v5, v3, 4, v5")
    A("v_add_u32 v5, s45, v5")
    A("v_add_u32 v5, %d, v5" % H_OFF)
    A("v_and_b32 v8, 7, v2")
    A("v_sub_u32 v8, 7, v8")
    A("v_mul_u32_u24 v8, %d, v8" % CS)
    A("v_lshrrev_b32 v6, 3, v2")
    A("v_sub_u32 v6, v3, v6")
    A("v_lshlrev_b32 v6, 4, v6")
    A("v_add_u32 v8, v8, v6")
    A("v_add_u32 v8, 16, v8")
    A("v_add_u32 v9, s45, v8")
    A("v_lshlrev_b32 v6, 5, v2")
    A("v_lshl_add_u32 v6, v3, 3, v6")
    A("v_sub_u32 v7, %d, v6" % (4120 - 3584))
    A("v_add_u32 v7, s45, v7")
    A("v_add_u32 v6, s45, v6")
    A("v_add_u32 v6, %d, v6" % YOFF)
    A("s_lshl_b32 s49, s43, 2")
    A("s_add_u32 s49, s49, %d" % FLAGS)
    A("v_mov_b32 v10, s49")
    for i in range(32):
        A("v_mov_b32 %s, 0" % v(ACC + i))
    A("s_lshl_b32 s48, s44, 12")
    A("s_add_u32 s48, s48, %d" % F_UR)
    A("v_lshlrev_b32 v16, 3, v3")
    A("s_lshl_b32 s50, s44, 7")
    A("s_add_u32 s50, s50, %d" % F_URC)
    A("v_and_b32 v17, 15, v1")
    A("v_lshlrev_b32 v17, 3, v17")
    def hint_loads():
        A("buffer_load_dwordx2 v[136:137], v17, s[36:39], s50 offen sc1")
    if os.environ.get("URHINT"):
        masked_poll(A, "urh", hint_loads, [137], int(os.environ.get("URSLEEP", 4)), int(os.environ.get("URPRE", 8)))
    else:
        A("s_sleep %d" % int(os.environ.get("URPRE", 24)))
    Lp = A.newlabel("urp"); Ld = A.newlabel("urok")
    A("s_mov_b32 s52, 0")
    A.label(Lp)
    for i in range(4):
        A("buffer_load_dwordx4 %s, v4, s[36:39], s48 offen offset:%d sc1" % (v(120 + 4 * i, 4), 1024 * i))
    for i in range(4):
        A("buffer_load_dword %s, v16, s[36:39], s50 offen offset:%d sc1" % (v(136 + i), 32 * i))
    A("s_waitcnt vmcnt(0)")
    for i in range(4):
        A("v_xor_b32 %s, %s, %s" % (v(140 + i), v(120 + 4 * i), v(121 + 4 * i)))
    for i in range(4):
        A("v_xor_b32 %s, %s, %s" % (v(144 + i), v(122 + 4 * i), v(123 + 4 * i)))
    for i in range(4):
        A("v_xor_b32 %s, %s, %s" % (v(140 + i), v(140 + i), v(144 + i)))
    row_xor_reduce(A, [140, 141, 142, 143])
    for i in range(4):
        A("v_xor_b32 %s, %s, %s" % (v(140 + i), v(140 + i), v(136 + i)))
    A("v_cmp_eq_u32 vcc, s%d, v140" % TAG)
    for i in range(1, 4):
        A("v_cmp_eq_u32 s[54:55], s%d, %s" % (TAG, v(140 + i)))
        A("s_and_b64 vcc, vcc, s[54:55]")
    A("s_cmp_eq_u64 vcc, -1")
    A("s_cbranch_scc1 %s" % Ld)
    A("s_add_u32 s52, s52, 1")
    A("s_cmp_gt_u32 s52, %d" % POLL_MAX)
    A("s_cbranch_scc1 %s" % Ld)
    A("s_sleep %d" % int(os.environ.get("URSLEEP", 6)))
    A("s_branch %s" % Lp)
    A.label(Ld)
    st_(A, 3)
    dbg_time(A, 5)
    A("s_setprio %d" % int(os.environ.get("MPRIO2", 0)))
    for i in range(4):
        A("ds_write_b128 v11, %s offset:%d" % (v(120 + 4 * i, 4), 32 + 1024 * i))
    A("s_waitcnt lgkmcnt(0)")
    for (W, off) in ((152, 4096), (160, 3072), (168, 2048), (W1, 1024), (W0, 0)):
        A("ds_read_b128 %s, v11 offset:%d" % (v(W, 4), off))
        A("ds_read_b128 %s, v11 offset:%d" % (v(W + 4, 4), off + 16))
    A("s_waitcnt lgkmcnt(8)")
    A("s_mov_b64 exec, 0x1f")
    for o in build_ops(152, 0, 4096): A(o)
    A("s_mov_b64 exec, -1")
    A("s_waitcnt lgkmcnt(11)")
    for o in build_ops(160, 0, 3072): A(o)
    A("s_waitcnt lgkmcnt(14)")
    for o in build_ops(168, 0, 2048): A(o)
    A("s_waitcnt lgkmcnt(0)")
    st_(A, 4)
    hi_steps, lo_frags, lo_slot, lo_steps = conv_schedule()
    def bslot(sl):
        return v(BS + 4 * sl, 4)
    order, seen = [], set()
    for q, lst in hi_steps:
        for t, sl in lst:
            if sl not in seen:
                seen.add(sl); order.append(sl)
    aseq = [q for q in range(33)] + [q for q in range(65)]
    issued = []
    def issue(tag, txt):
        A(txt); issued.append(tag)
    def wait_for(tags):
        idx = max(len(issued) - 1 - issued[::-1].index(t) for t in tags)
        n = len(issued) - 1 - idx
        A("s_waitcnt lgkmcnt(%d)" % min(n, 15))
    def a_issue(k):
        issue(("A", k), "ds_read_b128 %s, v9 offset:%d" % (v(RING + 4 * (k % NR), 4), 64 * (64 - aseq[k])))
    def b_issue(sl):
        issue(("B", sl), "ds_read_b128 %s, v5 offset:%d" % (bslot(sl), 64 * (56 - sl + 8)))
    fill = deque()
    cnt = [0]
    def emit_fill(k):
        while k > 0 and fill:
            f = fill.popleft(); f(); cnt[0] += 1; k -= 1
    def add_plain(txt):
        if txt.startswith("ds_"):
            fill.append(lambda txt=txt: issue(("W",), txt))
        else:
            fill.append(lambda txt=txt: A(txt))
    a_issue(0)
    for sl in order[:5]:
        b_issue(sl)
    nextA = 1
    for k in range(1, NR):
        a_issue(nextA); nextA += 1
        b_issue(order[5 + k - 1])
    nextB = 5 + (NR - 1)
    A("s_and_b32 s52, s51, 2")
    A("s_lshl_b32 s52, s52, 3")
    A("s_lshr_b32 s53, s53, s52")
    A("s_lshl_b32 s53, s53, 16")
    A("v_mov_b32 v18, s53"); A("v_mov_b32 v19, s53")
    n = 0
    fu = {}
    for q, lst in hi_steps:
        for t, sl in lst:
            fu.setdefault(sl, q)
    for q, lst in hi_steps:
        while nextB < len(order) and fu[order[nextB]] <= q + 3:
            b_issue(order[nextB]); nextB += 1
        wait_for([("A", n)] + [("B", sl) for _, sl in lst])
        for t, sl in lst:
            A("v_mfma_f32_16x16x32_bf16 %s, %s, %s, %s" % (v(ACC + 4 * t, 4), v(RING + 4 * (n % NR), 4), bslot(sl), v(ACC + 4 * t, 4)))
        if nextA < len(aseq):
            a_issue(nextA); nextA += 1
        if q < 32:
            issue(("L", q), "ds_read_b128 %s, v5 offset:%d" % (bslot(q), 64 * (lo_frags[q] + 8)))
        n += 1
    st_(A, 5)
    def tile_epilogue(t):
        u0 = UREG + 2 * (t % 2)
        ac = ACC + 4 * t
        fill.append(lambda: wait_for([("U", t)] + ([("L", 31)] if t == 0 else [])))
        P = Asm()
        P("v_and_b32 v12, s40, %s" % v(u0 + 1))
        P("v_lshlrev_b32 v13, 16, %s" % v(u0 + 1))
        P("v_and_b32 v14, s40, %s" % v(u0))
        P("v_lshlrev_b32 v15, 16, %s" % v(u0))
        P("v_pk_mul_f32 v[12:13], v[12:13], v[18:19]")
        P("v_pk_mul_f32 v[14:15], v[14:15], v[18:19]")
        round_pair(P, 12, 13, 16, 40)
        round_pair(P, 14, 15, 17, 40)
        round_pair(P, ac, ac + 1, 16, 40)
        round_pair(P, ac + 2, ac + 3, 17, 40)
        P("v_pk_add_f32 v[12:13], v[12:13], %s" % v(ac, 2))
        P("v_pk_add_f32 v[14:15], v[14:15], %s" % v(ac + 2, 2))
        P("v_cvt_pk_bf16_f32 v16, v12, v13")
        P("v_cvt_pk_bf16_f32 v17, v14, v15")
        for l in P.lines:
            add_plain(l.strip())
        fill.append(lambda: issue(("Y", t), "ds_write_b64 v6, v[16:17] offset:%d" % (512 * t)))
        fill.append(lambda: A("v_mov_b32 v8, %d" % (t + 1)))
        for _ in range(3):
            fill.append(lambda: None)
        fill.append(lambda: wait_for([("Y", t)]))
        fill.append(lambda: issue(("F", t), "ds_write_b32 v10, v8"))
    for o in build_ops(W1, 0, 1024): add_plain(o)
    n1 = len(fill)
    for o in build_ops(W0, 0, 0): add_plain(o)
    n0 = len(fill)
    for q, lst in lo_steps:
        wait_for([("A", n)] + [("L", sl) for _, sl in lst])
        k = len(lst)
        per = 2 if k >= 2 else 1
        for i, (t, sl) in enumerate(lst):
            A("v_mfma_f32_16x16x32_bf16 %s, %s, %s, %s" % (v(ACC + 4 * t, 4), v(RING + 4 * (n % NR), 4), bslot(sl), v(ACC + 4 * t, 4)))
            if i < k - 1 or k == 1:
                emit_fill(per)
        if nextA < len(aseq):
            qq = aseq[nextA]
            if nextA >= 33 and qq >= 33:
                assert cnt[0] >= n1
            if nextA >= 33 and qq >= 49:
                assert cnt[0] >= n0
            a_issue(nextA); nextA += 1
        n += 1
        if q % 8 == 4:
            t = q // 8
            issue(("U", t), "ds_read_b64 %s, v7 offset:%d" % (v(UREG + 2 * (t % 2), 2), 512 * (7 - t)))
        if q >= 9 and (q - 9) % 8 == 0 and (q - 9) // 8 < 7:
            tile_epilogue((q - 9) // 8)
    A.nop(4)
    st_(A, 6)
    tile_epilogue(7)
    emit_fill(1000)
    st_(A, 7, end=True)
    dbg_time(A, 1)
    A("s_endpgm")

XQ = 208
def h_early_loads(A):
    srd(A, 16, PQ, S * ROWB)
    A("v_and_b32 v201, 255, v0")
    A("s_movk_i32 s63, 1152")
    A("v_mul_lo_u32 v200, v201, s63")
    A("s_lshl_b32 s63, s41, 3")
    A("v_add_u32 v200, s63, v200")
    return 8

def strip_loads(A):
    h_early_loads(A)
    if os.environ.get("NOSTRIP"):
        for t in range(8):
            A("s_nop 0")
            A("buffer_load_dwordx2 %s, v1, s[16:19], 0 offen" % v(XQ + 2 * t, 2))
        return
    A("s_mov_b32 s63, 0")
    for t in range(8):
        A("buffer_load_dwordx2 %s, v200, s[16:19], s63 offen" % v(XQ + 2 * t, 2))
        A("s_add_u32 s63, s63, %d" % (256 * 1152))

def q_prefetch(A):
    srd(A, 16, PQ, S * ROWB)
    Ln = A.newlabel("noqpf")
    A("v_and_b32 v202, 15, v0")
    A("v_bfe_u32 v203, v0, 4, 2")
    A("v_mul_u32_u24 v203, 1152, v203")
    A("v_lshl_add_u32 v202, v202, 4, v203")
    A("s_mul_i32 s63, s30, 144")
    A("s_and_b32 s63, s63, 0xffffff80")
    A("s_min_u32 s64, s31, 15")
    A("s_lshl_b32 s64, s64, 7")
    A("s_sub_u32 s65, s42, 4")
    A("s_lshl_b32 s65, s65, 5")
    A("s_add_u32 s64, s64, s65")
    A("s_mul_i32 s64, s64, 1152")
    A("s_add_u32 s63, s63, s64")
    for i in range(8):
        A("buffer_load_dwordx4 v[204:207], v202, s[16:19], s63 offen")
        A("s_add_u32 s63, s63, %d" % (4 * 1152))

def gen_H(A):
    srd(A, 20, POUT, S * ROWB)
    T = "s%d" % TAG
    A("v_and_b32 v1, 63, v0")
    A("v_mov_b32 v5, v201")
    A("v_mov_b32 v6, v200")
    A("v_lshlrev_b32 v7, 3, v5")
    RG = 160
    X, XN, T1 = 64, 96, 128
    A("s_setprio %d" % int(os.environ.get("HPRIO", 1)))
    for r in range(32):
        A("v_mov_b32 %s, 0" % v(X + r))
    A("v_lshlrev_b32 v8, 4, v1")
    A("v_lshrrev_b32 v9, 4, v1")
    A("v_lshlrev_b32 v9, 3, v9")
    A("s_lshl_b32 s48, s44, 12")
    A("s_add_u32 s48, s48, %d" % F_XT)
    A("s_lshl_b32 s50, s44, 7")
    A("s_add_u32 s50, s50, %d" % F_XC)
    P, C, Tm = 224, 240, 244
    A("s_sleep %d" % int(os.environ.get("ROWPRE", 32)))
    Lp = A.newlabel("hp"); Ld = A.newlabel("hok")
    A("s_mov_b32 s52, 0")
    A.label(Lp)
    for i in range(4):
        A("buffer_load_dwordx4 %s, v8, s[36:39], s48 offen offset:%d sc1" % (v(P + 4 * i, 4), 1024 * i))
    for i in range(4):
        A("buffer_load_dword %s, v9, s[36:39], s50 offen offset:%d sc1" % (v(C + i), 32 * i))
    for t in range(8):
        A("s_mov_b32 s51, %d" % (F_ROWG + 2048 * t))
        A("buffer_load_dwordx2 %s, v7, s[36:39], s51 offen sc1" % v(RG + 2 * t, 2))
    A("s_waitcnt vmcnt(8)")
    for i in range(4):
        A("v_xor_b32 %s, %s, %s" % (v(Tm + i), v(P + 4 * i), v(P + 1 + 4 * i)))
    for i in range(4):
        A("v_xor_b32 %s, %s, %s" % (v(Tm + 4 + i), v(P + 2 + 4 * i), v(P + 3 + 4 * i)))
    for i in range(4):
        A("v_xor_b32 %s, %s, %s" % (v(Tm + i), v(Tm + i), v(Tm + 4 + i)))
    row_xor_reduce(A, [Tm, Tm + 1, Tm + 2, Tm + 3])
    for i in range(4):
        A("v_xor_b32 %s, %s, %s" % (v(Tm + i), v(Tm + i), v(C + i)))
    A("v_cmp_eq_u32 vcc, s%d, %s" % (TAG, v(Tm)))
    for i in range(1, 4):
        A("v_cmp_eq_u32 s[54:55], s%d, %s" % (TAG, v(Tm + i)))
        A("s_and_b64 vcc, vcc, s[54:55]")
    A("s_waitcnt vmcnt(0)")
    for r in range(RG + 1, RG + 16, 2):
        A("v_cmp_eq_u32 s[54:55], s%d, %s" % (TAG, v(r)))
        A("s_and_b64 vcc, vcc, s[54:55]")
    A("s_cmp_eq_u64 vcc, -1")
    A("s_cbranch_scc1 %s" % Ld)
    A("s_add_u32 s52, s52, 1")
    A("s_cmp_gt_u32 s52, %d" % POLL_MAX)
    A("s_cbranch_scc1 %s" % Ld)
    A("s_sleep %d" % int(os.environ.get("ROWSLEEP", 8)))
    A("s_branch %s" % Lp)
    A.label(Ld)
    st_(A, 10)
    A("v_mov_b32 v11, %d" % FLAGS)
    A("v_mov_b32 v12, 1")
    lds_signal(A, 4, "v11", "v12")
    lds_wait(A, 4, 4, "v11", "v13", sleep=1)
    st_(A, 2 + 7)
    A("v_lshlrev_b32 v8, 1, v5")
    A("s_lshl_b32 s48, s41, 14")
    A("s_add_u32 s48, s48, %d" % F_XT)
    for c in range(4):
        for t in range(8):
            A("buffer_load_short_d16_hi %s, v8, s[36:39], s48 offen offset:%d sc1" % (v(X + 4 * t + c), 512 * t))
        A("s_add_u32 s48, s48, 4096")
    for t in range(8):
        stats_from_msd(A, RG + 2 * t, 176 + 6 * t, 40)
    A("s_waitcnt vmcnt(0)")
    st_(A, 3)
    for t in range(8):
        st = 176 + 6 * t
        streams = []
        for p in range(2):
            x, xn = X + 4 * t + 2 * p, XN + 4 * t + 2 * p
            tm = 56 + 4 * p
            P = Asm()
            P("v_pk_add_f32 %s, %s, %s" % (v(tm, 2), v(x, 2), v(st, 2)))
            round_pair(P, tm, tm + 1, tm + 2, 40)
            P("v_pk_mul_f32 %s, %s, %s" % (v(xn, 2), v(tm, 2), v(st + 2, 2)))
            P("v_pk_fma_f32 %s, %s, %s, %s" % (v(tm, 2), v(xn, 2), v(st + 4, 2), v(tm, 2)))
            P("v_pk_fma_f32 %s, %s, %s, %s" % (v(xn, 2), v(tm, 2), v(st + 2, 2), v(xn, 2)))
            round_pair(P, xn, xn + 1, tm + 2, 40)
            streams.append([l.strip() for l in P.lines])
        interleave(A, streams)
    st_(A, 4)
    A("v_lshlrev_b32 v9, 1, v5")
    A("v_add_u32 v9, %d, v9" % YOFF)
    A("v_add_u32 v10, %d, v9" % (2 * CH_LDS))
    A("v_mov_b32 v11, %d" % FLAGS)
    for i in range(4):
        A("v_mov_b32 %s, 0" % v(40 + i))
    A("v_and_b32 v12, 7, v5")
    A("v_mul_u32_u24 v12, 4608, v12")
    A("v_bfe_u32 v13, v5, 3, 1")
    A("v_lshl_add_u32 v12, v13, 4, v12")
    A("v_lshrrev_b32 v13, 4, v5")
    A("v_mul_u32_u24 v14, 36864, v13")
    A("v_add_u32 v12, v12, v14")
    A("s_lshl_b32 s51, s41, 5")
    A("s_add_u32 s51, s51, %d" % F_PARTG)
    A("v_add_u32 v12, s51, v12")
    A("v_add_u32 v14, %d, v12" % (64 * 36864))
    A("v_cmp_gt_u32 vcc, 8, v13")
    A.nop(2)
    A("v_cndmask_b32 v14, v12, v14, vcc")
    A("s_mov_b64 s[56:57], vcc")
    A("v_and_b32 v8, 7, v1")
    A("v_lshlrev_b32 v8, 3, v8")
    def sel_loads():
        A("s_movk_i32 s51, %d" % F_SELG)
        A("buffer_load_dwordx2 v[180:181], v8, s[36:39], s51 offen sc1")
    sel_loads_m = sel_loads
    def part_loads():
        A("s_mov_b32 s51, 0")
        for i in range(4):
            A("buffer_load_dwordx4 %s, v12, s[36:39], s51 offen sc1" % v(160 + 4 * i, 4))
            A("s_add_u32 s51, s51, %d" % (16 * 36864))
        A("buffer_load_dwordx4 v[176:179], v14, s[36:39], 0 offen sc1")
    A("s_mov_b32 s59, 0")
    A("s_setprio %d" % int(os.environ.get("HPRIO2", 0)))
    for t in range(8):
        Lw = A.newlabel("yw"); Lg = A.newlabel("yg")
        A("s_cmp_gt_u32 s59, %d" % t)
        A("s_cbranch_scc1 %s" % Lg)
        A("s_mov_b32 s52, 0")
        A.label(Lw)
        A("ds_read_b128 v[16:19], v11")
        A("s_add_u32 s52, s52, 1")
        A("s_waitcnt lgkmcnt(0)")
        A("v_min_u32 v16, v16, v17")
        A("v_min3_u32 v16, v16, v18, v19")
        A("s_cmp_gt_u32 s52, %d" % POLL_MAX)
        A("v_readfirstlane_b32 s59, v16")
        A("s_cbranch_scc1 %s" % Lg)
        A("s_nop 1")
        A("s_cmp_gt_u32 s59, %d" % t)
        A("s_cbranch_scc1 %s" % Lg)
        A("s_sleep 1")
        A("s_branch %s" % Lw)
        A.label(Lg)
        if os.environ.get("HST") and t in (0, 2, 4, 7):
            st_(A, {0: 11, 2: 12, 4: 13, 7: 14}[t])
        A("ds_read_u16_d16_hi v40, v9 offset:%d" % (512 * t))
        A("ds_read_u16_d16_hi v41, v9 offset:%d" % (512 * t + CH_LDS))
        A("ds_read_u16_d16_hi v42, v10 offset:%d" % (512 * t))
        A("ds_read_u16_d16_hi v43, v10 offset:%d" % (512 * t + CH_LDS))
        A("s_waitcnt lgkmcnt(0)")
        streams = []
        for p in range(2):
            x, xn, t1 = X + 4 * t + 2 * p, XN + 4 * t + 2 * p, T1 + 4 * t + 2 * p
            tm = 56 + 4 * p
            P = Asm()
            P("v_pk_mul_f32 %s, %s, %s" % (v(tm, 2), v(xn, 2), v(40 + 2 * p, 2)))
            round_pair(P, tm, tm + 1, tm + 2, 40)
            P("v_pk_add_f32 %s, %s, %s" % (v(t1, 2), v(x, 2), v(tm, 2)))
            round_pair(P, t1, t1 + 1, tm + 2, 40)
            P("v_pk_add_f32 %s, %s, %s" % (v(tm, 2), v(t1, 2), v(xn, 2)))
            P("v_cvt_pk_bf16_f32 %s, %s, %s" % (v(44 + 2 * (t % 2) + p), v(tm), v(tm + 1)))
            streams.append([l.strip() for l in P.lines])
        interleave(A, streams)
        A("s_mov_b32 s51, %d" % (t * 256 * 1152))
        A("buffer_store_dwordx2 %s, v6, s[20:23], s51 offen" % v(44 + 2 * (t % 2), 2))
        if t == 5:
            sel_loads()
    st_(A, 5)
    masked_poll(A, "pp", part_loads, [161, 163, 165, 167, 169, 171, 173, 175, 177, 179], int(os.environ.get("PPSLEEP", 3)), 0)
    st_(A, 6)
    A("v_add_f32 v16, v160, v164"); A("v_add_f32 v17, v162, v166")
    A("v_add_f32 v16, v16, v168");  A("v_add_f32 v17, v17, v170")
    A("v_add_f32 v16, v16, v172");  A("v_add_f32 v17, v17, v174")
    A("v_cndmask_b32 v18, 0, v176, s[56:57]"); A("v_cndmask_b32 v19, 0, v178, s[56:57]")
    A("v_add_f32 v16, v16, v18");   A("v_add_f32 v17, v17, v19")
    A("v_mov_b32 v18, v16"); A("v_mov_b32 v19, v17")
    A.nop(1)
    A("v_permlane16_swap_b32 v16, v18"); A("v_permlane16_swap_b32 v17, v19")
    A.nop(1)
    A("v_add_f32 v16, v16, v18"); A("v_add_f32 v17, v17, v19")
    A("v_mov_b32 v18, v16"); A("v_mov_b32 v19, v17")
    A.nop(1)
    A("v_permlane32_swap_b32 v16, v18"); A("v_permlane32_swap_b32 v17, v19")
    A.nop(1)
    A("v_add_f32 v16, v16, v18"); A("v_add_f32 v17, v17, v19")
    A("v_and_b32 v18, 7, v1")
    A("v_lshlrev_b32 v18, 4, v18")
    A("v_bfe_u32 v19, v1, 3, 1")
    A("v_lshl_add_u32 v18, v19, 3, v18")
    A("s_lshl_b32 s51, s43, 7")
    A("s_add_u32 s51, s51, %d" % RED)
    A("v_add_u32 v18, s51, v18")
    A("s_mov_b64 exec, 0xffff")
    A("ds_write_b64 v18, v[16:17]")
    A("s_mov_b64 exec, -1")
    first_then_poll(A, "sel", sel_loads_m, [181], 4, "-1", first_cnt=63)
    A("v_lshrrev_b32 v45, 16, v180")
    A("v_and_b32 v46, 0x8000, v45")
    A("v_mov_b32 v47, 0xffff")
    A("v_mov_b32 v48, 0x8000")
    A("v_cmp_ne_u32 vcc, 0, v46")
    A("v_and_b32 v44, 0xffff, v180")
    A("v_sub_u32 v44, 2047, v44")
    A("v_cndmask_b32 v47, v47, v48, vcc")
    A("v_xor_b32 v45, v45, v47")
    A("v_lshlrev_b32 v45, 16, v45")
    A("v_mul_f32 v45, 0xbfb8aa3b, v45")
    A("v_exp_f32 v45, v45")
    A.nop(1)
    A("v_add_f32 v45, 1.0, v45")
    A("v_rcp_f32 v45, v45")
    A.nop(1)
    A("v_cvt_pk_bf16_f32 v45, v45, v45")
    A("v_lshlrev_b32 v45, 16, v45")
    A("s_waitcnt lgkmcnt(0)")
    A("s_barrier")
    st_(A, 7)
    for i in range(8):
        Ls = A.newlabel("ns")
        A("v_readlane_b32 s51, v44, %d" % i)
        A("v_readlane_b32 s59, v45, %d" % i)
        A("v_mov_b32 v52, %d" % (RED + 16 * i))
        A("s_bfe_u32 s58, s51, 0x20006")
        A("s_cmp_lg_u32 s58, s43")
        A("s_cbranch_scc1 %s" % Ls)
        for w in range(4):
            A("ds_read_b128 %s, v52 offset:%d" % (v(20 + 4 * w, 4), 128 * w))
        A("s_lshr_b32 s58, s51, 8")
        A("s_mul_i32 s60, s58, %d" % (256 * 1152))
        A("s_lshl_b32 s58, s58, 2")
        A("s_and_b32 s51, s51, 255")
        A("v_cmp_eq_u32 vcc, s51, v5")
        A("s_set_gpr_idx_on s58, gpr_idx(SRC0)")
        for k in range(4):
            A("v_mov_b32 %s, %s" % (v(36 + k), v(T1 + k)))
        for k in range(4):
            A("v_mov_b32 %s, %s" % (v(40 + k), v(XN + k)))
        A("s_set_gpr_idx_off")
        A("s_waitcnt lgkmcnt(0)")
        for k in range(4):
            A("v_add_f32 %s, %s, %s" % (v(20 + k), v(20 + k), v(24 + k)))
            A("v_add_f32 %s, %s, %s" % (v(28 + k), v(28 + k), v(32 + k)))
        for k in range(4):
            A("v_add_f32 %s, %s, %s" % (v(20 + k), v(20 + k), v(28 + k)))
        A.nop(1)
        round_pair(A, 20, 21, 24, 40); round_pair(A, 22, 23, 25, 40)
        for k in range(4):
            A("v_mul_f32 %s, s59, %s" % (v(20 + k), v(20 + k)))
        A.nop(1)
        round_pair(A, 20, 21, 24, 40); round_pair(A, 22, 23, 25, 40)
        for k in range(4):
            A("v_add_f32 %s, %s, %s" % (v(20 + k), v(20 + k), v(40 + k)))
        A.nop(1)
        round_pair(A, 20, 21, 24, 40); round_pair(A, 22, 23, 25, 40)
        for k in range(4):
            A("v_add_f32 %s, %s, %s" % (v(20 + k), v(20 + k), v(36 + k)))
        A.nop(1)
        A("v_cvt_pk_bf16_f32 v24, v20, v21")
        A("v_cvt_pk_bf16_f32 v25, v22, v23")
        A("s_mov_b64 exec, vcc")
        A("buffer_store_dwordx2 v[24:25], v6, s[20:23], s60 offen")
        A("s_mov_b64 exec, -1")
        A.label(Ls)
    st_(A, 8, end=True)
    dbg_time(A, 2)
    A("s_endpgm")

def gen_conv_wg(A):
    A("s_and_b32 s43, s42, 3")
    A("s_lshl_b32 s44, s41, 2")
    A("s_add_u32 s44, s44, s43")
    A("s_mul_i32 s45, s43, %d" % CH_LDS)
    Lm = A.newlabel("cm"); Lh = A.newlabel("ch"); Lj = A.newlabel("cj")
    dbg_time(A, 0)
    A("s_lshr_b32 s60, s41, 4")
    A("s_and_b32 s61, s41, 15")
    A("v_mov_b32 v200, 0"); A("v_mov_b32 v201, 0")
    A("s_cmp_ge_u32 s42, 4")
    A("s_cbranch_scc1 %s" % Lh)
    A("s_setprio 2")
    gen_kv_issue(A)
    gen_kv_addr(A)
    gen_kv_addr2(A)
    finish_tag(A)
    flags_barrier(A)
    A("s_waitcnt vmcnt(0)")
    A("s_branch %s" % Lj)
    A.label(Lh)
    gen_kv_addr(A)
    gen_kv_addr2(A)
    finish_tag(A)
    A("s_waitcnt vmcnt(0)")
    A.label(Lj)
    gen_kv_compute(A)
    publish_alive(A)
    A("s_barrier")
    A("s_cmp_lt_u32 s42, 4")
    A("s_cbranch_scc1 %s" % Lm)
    h_early_loads(A)
    gen_H(A)
    A.label(Lm)
    gen_M(A)

def finish_tag(A):
    A("s_waitcnt lgkmcnt(0)")
    A("s_mul_i32 s%d, s%d, 0x9E3779B1" % (TAG, TAG))
    A("s_add_u32 s%d, s%d, 0x7F4A7C15" % (TAG, TAG))

def flags_barrier(A, alive=False):
    A("v_mov_b32 v36, 0")
    A("v_mov_b32 v37, %d" % FLAGS)
    A("v_mov_b32 v38, 0"); A("v_mov_b32 v39, 0"); A("v_mov_b32 v40, 0"); A("v_mov_b32 v41, 0")
    A("ds_write_b128 v37, v[38:41]")
    A("ds_write_b128 v37, v[38:41] offset:16")
    A("s_waitcnt lgkmcnt(0)")

def publish_alive(A):
    Ln = A.newlabel("noalive")
    A("s_cmp_lg_u32 s42, 0")
    A("s_cbranch_scc1 %s" % Ln)
    A("s_lshl_b32 s63, s41, 2")
    A("s_add_u32 s63, s63, %d" % F_ALIVE)
    A("v_mov_b32 v37, s%d" % TAG)
    A("v_mov_b32 v36, 0")
    A("s_mov_b64 exec, 1")
    A("buffer_store_dword v37, v36, s[36:39], s63 offen sc1")
    A("s_mov_b64 exec, -1")
    A.label(Ln)


BITONIC8 = [(0,4),(1,5),(2,6),(3,7),(0,2),(1,3),(4,6),(5,7),(0,1),(2,3),(4,5),(6,7)]
def merge8(A, a, b, out, spare, dpp=None):
    for i in range(7, -1, -1):
        if dpp:
            A("v_max_u32_dpp %s, %s, %s %s bank_mask:0xf" % (v(out[i]), v(b[7 - i]), v(a[i]), dpp))
        else:
            A("v_max_u32 %s, %s, %s" % (v(out[i]), v(a[i]), v(b[7 - i])))
    return sort_desc(A, out, spare, BITONIC8)

def top8_wave(A, regs, spare, other):
    cur, oth = list(regs), list(other)
    for ctl in ("quad_perm:[1,0,3,2] row_mask:0xf", "quad_perm:[2,3,0,1] row_mask:0xf", "row_half_mirror row_mask:0xf",
                "row_mirror row_mask:0xf", "row_bcast:15 row_mask:0xa", "row_bcast:31 row_mask:0xc"):
        A.nop(1)
        free = list(cur)
        new, spare2 = merge8(A, cur, cur, oth, spare, dpp=ctl)
        pool = [r for r in (free + oth + [spare]) if r not in new]
        spare = pool[0]
        oth = pool[1:9]
        cur = new
    return cur, spare, oth

L_CNT = 162368

def lds_signal(A, k, vaddr, vone):
    A("s_mov_b64 exec, 1")
    A("ds_add_u32 %s, %s offset:%d" % (vaddr, vone, 4 * k))
    A("s_mov_b64 exec, -1")

def lds_wait(A, k, n, vaddr, vtmp, sleep=0):
    L = A.newlabel("lw"); Ld = A.newlabel("lwd")
    A("s_mov_b32 s52, 0")
    A.label(L)
    A("ds_read_b32 %s, %s offset:%d" % (vtmp, vaddr, 4 * k))
    A("s_add_u32 s52, s52, 1")
    A("s_waitcnt lgkmcnt(0)")
    A("s_cmp_gt_u32 s52, %d" % (POLL_MAX * 8))
    A("v_readfirstlane_b32 s51, %s" % vtmp)
    A("s_cbranch_scc1 %s" % Ld)
    A("s_nop 1")
    A("s_cmp_ge_u32 s51, %d" % n)
    A("s_cbranch_scc1 %s" % Ld)
    if sleep:
        A("s_sleep %d" % sleep)
    A("s_branch %s" % L)
    A.label(Ld)

def gen_moe_wg(A):
    T = "s%d" % TAG
    A("v_and_b32 v1, 63, v0")
    A("v_and_b32 v4, 255, v0")
    A("v_mov_b32 v8, %d" % L_CNT)
    A("v_mov_b32 v9, 1")
    Lt = A.newlabel("twave")
    A("s_cmp_ge_u32 s42, 4")
    A("s_cbranch_scc1 %s" % Lt)
    G, U, WD = 16, 88, 160
    A("v_mov_b32 v232, 0"); A("v_mov_b32 v233, 0"); A("v_mov_b32 v234, 0"); A("v_mov_b32 v235, 0")
    A("ds_write_b128 v8, v[232:235]"); A("ds_write_b128 v8, v[232:235] offset:16")
    srd(A, 48, PWG, D * F * 2)
    srd(A, 52, PWU, D * F * 2)
    srd(A, 56, PWD, D * F * 2)
    A("v_lshrrev_b32 v5, 3, v1")
    A("v_mul_u32_u24 v5, 9216, v5")
    A("v_bfe_u32 v6, v1, 4, 1")
    A("s_and_b32 s43, s42, 1")
    A("s_lshl_b32 s43, s43, 1")
    A("v_or_b32 v6, s43, v6")
    A("v_lshlrev_b32 v6, 1, v6")
    A("v_and_b32 v7, 7, v1")
    A("v_xor_b32 v6, v6, v7")
    A("v_lshl_add_u32 v5, v6, 4, v5")
    A("s_lshl_b32 s43, s41, 7")
    A("s_mul_i32 s44, s42, 73728")
    A("s_add_u32 s43, s43, s44")
    A("s_lshl_b32 s44, s42, 10")
    A("s_waitcnt lgkmcnt(0)")
    A("s_barrier")
    for j in range(18):
        A("s_mov_b32 m0, s44")
        A("s_add_u32 s45, s44, %d" % L_WU)
        A("buffer_load_dwordx4 v5, s[48:51], s43 offen lds" + NTS)
        A("s_mov_b32 m0, s45")
        A("s_add_u32 s44, s44, 4096")
        A("buffer_load_dwordx4 v5, s[52:55], s43 offen lds" + NTS)
        A("s_add_u32 s43, s43, %d" % (4 * 73728))
    A("v_lshrrev_b32 v6, 3, v4")
    A("v_mul_u32_u24 v7, 1152, v6")
    A("v_and_b32 v12, 7, v4")
    A("v_lshl_add_u32 v236, v12, 4, v7")
    A("v_bfe_u32 v14, v6, 1, 1")
    A("v_bfe_u32 v11, v6, 3, 1")
    A("v_lshl_add_u32 v14, v11, 1, v14")
    A("v_lshlrev_b32 v14, 1, v14")
    A("v_xor_b32 v14, v14, v12")
    A("v_lshl_add_u32 v14, v14, 4, v7")
    A("v_add_u32 v15, 36864, v14")
    A("v_and_b32 v2, 15, v0")
    A("v_bfe_u32 v3, v0, 4, 2")
    A("v_lshrrev_b32 v10, 2, v2")
    A("v_lshl_add_u32 v11, v3, 3, v10")
    A("v_bfe_u32 v12, v2, 3, 1")
    A("v_and_b32 v13, 1, v3")
    A("v_lshl_add_u32 v12, v13, 1, v12")
    A("v_xor_b32 v12, s42, v12")
    A("v_and_b32 v13, 3, v2")
    A("v_lshlrev_b32 v13, 3, v13")
    A("v_lshl_add_u32 v12, v12, 5, v13")
    A("v_lshl_add_u32 v5, v11, 7, v12")
    A("v_add_u32 v6, 36864, v5")
    A("v_mul_u32_u24 v7, 1152, v11")
    A("v_add_u32 v7, v7, v12")
    A("v_add_u32 v10, 36864, v7")
    st_(A, 1)
    A("s_waitcnt vmcnt(0)")
    lds_signal(A, 0, "v8", "v9")
    A("s_mul_i32 s43, s41, 73728")
    A("s_add_u32 s44, s43, 36864")
    for k in range(9):
        A("buffer_load_dwordx4 %s, v236, s[56:59], s43 offen offset:%d" % (v(WD + 4 * k, 4), 128 * k) + NTS)
    for k in range(9):
        A("buffer_load_dwordx4 %s, v236, s[56:59], s44 offen offset:%d" % (v(WD + 36 + 4 * k, 4), 128 * k) + NTS)
    lds_wait(A, 0, 4, "v8", "v11")
    st_(A, 2)
    dbg_time(A, 7)
    A("v_add_u32 v12, %d, v5" % L_WU)
    A("v_add_u32 v13, %d, v6" % L_WU)
    for kk in range(18):
        bg, bu, ko = ("v5", "v12", kk) if kk < 9 else ("v6", "v13", kk - 9)
        A("ds_read_b64_tr_b16 %s, %s offset:%d" % (v(G + 4 * kk, 2), bg, 4096 * ko))
        A("ds_read_b64_tr_b16 %s, %s offset:%d" % (v(G + 4 * kk + 2, 2), bg, 4096 * ko + 512))
        A("ds_read_b64_tr_b16 %s, %s offset:%d" % (v(U + 4 * kk, 2), bu, 4096 * ko))
        A("ds_read_b64_tr_b16 %s, %s offset:%d" % (v(U + 4 * kk + 2, 2), bu, 4096 * ko + 512))
    A("s_waitcnt lgkmcnt(0)")
    lds_signal(A, 1, "v8", "v9")
    st_(A, 7)
    A("s_waitcnt vmcnt(0)")
    lds_wait(A, 1, 4, "v8", "v11")
    for k in range(9):
        A("ds_write_b128 v14, %s offset:%d" % (v(WD + 4 * k, 4), 128 * k))
    for k in range(9):
        A("ds_write_b128 v15, %s offset:%d" % (v(WD + 36 + 4 * k, 4), 128 * k))
    A("s_waitcnt lgkmcnt(0)")
    lds_signal(A, 2, "v8", "v9")
    lds_wait(A, 2, 4, "v8", "v11")
    for k in range(9):
        r = WD + 8 * k
        A("ds_read_b64_tr_b16 %s, v7 offset:%d" % (v(r, 2), 128 * k))
        A("ds_read_b64_tr_b16 %s, v7 offset:%d" % (v(r + 2, 2), 128 * k + 4 * 1152))
        A("ds_read_b64_tr_b16 %s, v10 offset:%d" % (v(r + 4, 2), 128 * k))
        A("ds_read_b64_tr_b16 %s, v10 offset:%d" % (v(r + 6, 2), 128 * k + 4 * 1152))
    A("v_and_b32 v12, 7, v2")
    A("v_mul_u32_u24 v5, %d, v12" % XSTR)
    A("v_lshl_add_u32 v5, v3, 4, v5")
    A("v_add_u32 v5, %d, v5" % L_X)
    A("v_mul_u32_u24 v6, %d, v2" % HSTR)
    A("v_lshl_add_u32 v6, v3, 3, v6")
    A("s_lshl_b32 s43, s42, 5")
    A("s_add_u32 s43, s43, %d" % L_HS)
    A("v_add_u32 v6, s43, v6")
    A("v_mul_u32_u24 v7, %d, v12" % HSTR)
    A("v_lshl_add_u32 v7, v3, 4, v7")
    A("v_add_u32 v7, %d, v7" % L_HS)
    A("v_mul_u32_u24 v10, 4608, v12")
    A("v_lshl_add_u32 v10, v3, 5, v10")
    A("v_bfe_u32 v13, v2, 3, 1")
    A("v_lshl_add_u32 v10, v13, 4, v10")
    A("v_cmp_eq_u32 s[56:57], 1, v13")
    A("s_mul_i32 s43, s41, 36864")
    A("s_lshl_b32 s44, s42, 7")
    A("s_add_u32 s43, s43, s44")
    A("s_add_u32 s43, s43, %d" % F_PARTG)
    A("v_mov_b32 v14, %d" % L_TAG)
    for i in range(8):
        A("v_mov_b32 %s, 0" % v(232 + i))
    A("s_waitcnt lgkmcnt(0)")
    st_(A, 3)
    lds_wait(A, 4, 4, "v8", "v11")
    st_(A, 4)
    A("ds_read_b32 v15, v14")
    XR = 240
    for kk in range(3):
        A("ds_read_b128 %s, v5 offset:%d" % (v(XR + 4 * kk, 4), 64 * kk))
    for kk in range(18):
        if kk + 3 < 18:
            A("ds_read_b128 %s, v5 offset:%d" % (v(XR + 4 * ((kk + 3) % 4), 4), 64 * (kk + 3)))
        A("s_waitcnt lgkmcnt(%d)" % min(3, 17 - kk))
        x = v(XR + 4 * (kk % 4), 4)
        A("v_mfma_f32_16x16x32_bf16 v[232:235], %s, %s, v[232:235]" % (v(G + 4 * kk, 4), x))
        A("v_mfma_f32_16x16x32_bf16 v[236:239], %s, %s, v[236:239]" % (v(U + 4 * kk, 4), x))
    A("v_readfirstlane_b32 %s, v15" % T)
    A.nop(6)
    round_pair(A, 232, 233, 16, 40); round_pair(A, 234, 235, 17, 40)
    for i in range(4):
        A("v_mul_f32 %s, 0xbfb8aa3b, %s" % (v(20 + i), v(232 + i)))
    for i in range(4):
        A("v_exp_f32 %s, %s" % (v(20 + i), v(20 + i)))
    round_pair(A, 236, 237, 16, 40); round_pair(A, 238, 239, 17, 40)
    for i in range(4):
        A("v_add_f32 %s, 1.0, %s" % (v(20 + i), v(20 + i)))
    for i in range(4):
        A("v_rcp_f32 %s, %s" % (v(20 + i), v(20 + i)))
    A.nop(1)
    for i in range(4):
        A("v_mul_f32 %s, %s, %s" % (v(232 + i), v(232 + i), v(20 + i)))
    A.nop(1)
    round_pair(A, 232, 233, 16, 40); round_pair(A, 234, 235, 17, 40)
    for i in range(4):
        A("v_mul_f32 %s, %s, %s" % (v(232 + i), v(232 + i), v(236 + i)))
    A.nop(1)
    A("v_cvt_pk_bf16_f32 v16, v232, v233")
    A("v_cvt_pk_bf16_f32 v17, v234, v235")
    A("v_cmp_gt_u32 vcc, 8, v2")
    A("s_and_saveexec_b64 s[44:45], vcc")
    A("ds_write_b64 v6, v[16:17]")
    A("s_mov_b64 exec, s[44:45]")
    for k in range(9):
        A("v_mov_b32 %s, %s" % (v(24 + 4 * k + 1), T)); A("v_mov_b32 %s, %s" % (v(24 + 4 * k + 3), T))
    A("s_waitcnt lgkmcnt(0)")
    lds_signal(A, 5, "v8", "v9")
    lds_wait(A, 5, 4, "v8", "v11")
    st_(A, 5)
    A("ds_read_b128 v[16:19], v7")
    A("ds_read_b128 v[20:23], v7 offset:64")
    A("s_waitcnt lgkmcnt(0)")
    AC = 88
    for k in range(9):
        r = WD + 8 * k
        A("v_mfma_f32_16x16x32_bf16 %s, %s, v[16:19], 0" % (v(AC + 4 * k, 4), v(r, 4)))
    for k in range(9):
        r = WD + 8 * k
        A("v_mfma_f32_16x16x32_bf16 %s, %s, v[20:23], %s" % (v(AC + 4 * k, 4), v(r + 4, 4), v(AC + 4 * k, 4)))
    for k in range(9):
        ac, o = AC + 4 * k, 24 + 4 * k
        A("v_cndmask_b32 %s, %s, %s, s[56:57]" % (v(o), v(ac), v(ac + 2)))
        A("v_cndmask_b32 %s, %s, %s, s[56:57]" % (v(o + 2), v(ac + 1), v(ac + 3)))
        A("buffer_store_dwordx4 %s, v10, s[36:39], s43 offen offset:%d sc1" % (v(o, 4), 512 * (k % 8)))
        if k == 7:
            A("s_add_u32 s43, s43, 4096")
    st_(A, 6, end=True)
    dbg_time(A, 3)
    A("s_endpgm")
    A.label(Lt)
    A("s_setprio 3")
    A("s_lshl_b32 s60, s41, 2")
    A("s_add_u32 s60, s60, s42")
    A("s_sub_u32 s60, s60, 4")
    Q, WR, X = gen_ln(A)
    A("s_barrier")
    finish_tag(A)
    gen_ln_compute(A, Q, WR, X)
    A("s_setprio %d" % int(os.environ.get("TPRIO", 1)))
    srd(A, 16, PQ, S * ROWB)
    A("v_and_b32 v1, 63, v0")
    A("v_and_b32 v4, 255, v0")
    A("v_mov_b32 v8, %d" % L_CNT)
    A("v_mov_b32 v9, 1")
    A("v_lshlrev_b32 v15, 2, v1")
    A("v_lshlrev_b32 v16, 4, v1")
    A("s_and_b32 s43, s42, 3")
    A("s_lshl_b32 s43, s43, 12")
    A("v_add_u32 v16, s43, v16")
    def key_loads():
        A("s_movk_i32 s43, %d" % F_KEYG)
        for i in range(4):
            A("buffer_load_dwordx4 %s, v16, s[36:39], s43 offen offset:%d sc1" % (v(40 + 4 * i, 4), 1024 * i))
    masked_poll(A, "key", key_loads, list(range(41, 56, 2)), int(os.environ.get("KEYSLEEP", 8)), int(os.environ.get("KEYPRE", 70)))
    A("s_setprio 3")
    st_(A, 3)
    dbg_time(A, 6)
    regs, sp = sort_desc(A, range(40, 56, 2), 41, SORT8)
    SK = 60
    free = [r for r in range(40, 57) if r not in regs and r != sp]
    cur, sp, oth = top8_wave(A, regs, sp, free[:8])
    for i in range(8):
        A("v_mov_b32 %s, %s" % (v(64 + i), v(cur[i])))
    A("s_and_b32 s43, s42, 3")
    A("s_lshl_b32 s43, s43, 5")
    A("s_add_u32 s43, s43, %d" % L_CAND)
    A("v_mov_b32 v16, s43")
    A("v_mov_b32 v31, %s" % T)
    A("v_mov_b32 v17, %d" % L_TAG)
    A("s_mov_b32 exec_lo, 0")
    A("s_mov_b32 exec_hi, 0x80000000")
    A("ds_write_b128 v16, v[64:67]")
    A("ds_write_b128 v16, v[68:71] offset:16")
    A("ds_write_b32 v17, v31")
    A("s_mov_b64 exec, -1")
    A("s_waitcnt lgkmcnt(0)")
    lds_signal(A, 3, "v8", "v9")
    lds_wait(A, 3, 4, "v8", "v11")
    A("v_mov_b32 v16, %d" % L_CAND)
    for i in range(8):
        A("ds_read_b128 %s, v16 offset:%d" % (v(64 + 4 * i, 4), 16 * i))
    A("s_waitcnt lgkmcnt(4)")
    c01, sp1 = merge8(A, list(range(64, 72)), list(range(72, 80)), list(range(40, 48)), 56)
    A("s_waitcnt lgkmcnt(0)")
    c23, sp2 = merge8(A, list(range(80, 88)), list(range(88, 96)), list(range(48, 56)), 57)
    for i in range(8):
        A("v_max_u32 %s, %s, %s" % (v(64 + i), v(c01[i]), v(c23[7 - i])))
    for i in range(8):
        A("v_readfirstlane_b32 %s, %s" % (s(SK + i), v(64 + i)))
    A.nop(3)
    st_(A, 5)
    A("s_and_b32 s45, s42, 3")
    A("s_mov_b32 s43, s60"); A("s_mov_b32 s44, s61")
    for w in range(1, 4):
        A("s_cmp_eq_u32 s45, %d" % w)
        A("s_cselect_b32 s43, %s, s43" % s(SK + 2 * w))
        A("s_cselect_b32 s44, %s, s44" % s(SK + 2 * w + 1))
    A("v_mov_b32 v16, s43"); A("v_mov_b32 v17, s44")
    A("v_cmp_lt_u32 vcc, 31, v1")
    A.nop(2)
    A("v_cndmask_b32 v16, v16, v17, vcc")
    A("v_and_b32 v16, 0xffff, v16")
    A("v_sub_u32 v16, 2047, v16")
    A("v_and_b32 v17, 31, v1")
    A("s_movk_i32 s43, 1152")
    A("v_mul_lo_u32 v18, v16, s43")
    A("v_lshl_add_u32 v18, v17, 2, v18")
    A("v_lshlrev_b32 v19, 3, v16")
    for i in range(9):
        A("buffer_load_dword %s, v18, s[16:19], 0 offen offset:%d" % (v(20 + i), 128 * i))
    def rg_loads():
        A("s_mov_b32 s43, %d" % F_ROWG)
        A("buffer_load_dwordx2 v[32:33], v19, s[36:39], s43 offen sc1")
    Lns = A.newlabel("nosel")
    A("s_cmp_lg_u32 s41, 0")
    A("s_cbranch_scc1 %s" % Lns)
    A("s_cmp_lg_u32 s42, 4")
    A("s_cbranch_scc1 %s" % Lns)
    for i in range(8):
        A("v_writelane_b32 v30, %s, %d" % (s(SK + i), i))
    A("v_lshlrev_b32 v36, 3, v1")
    A("s_movk_i32 s43, %d" % F_SELG)
    A("s_mov_b64 exec, 0xff")
    A("buffer_store_dwordx2 v[30:31], v36, s[36:39], s43 offen sc1")
    A("s_mov_b64 exec, -1")
    A.label(Lns)
    masked_poll(A, "rg", rg_loads, [33], 2, 0)
    stats_from_msd(A, 32, 64, 70)
    A("v_lshrrev_b32 v38, 5, v4")
    A("v_mul_u32_u24 v38, %d, v38" % XSTR)
    A("v_lshl_add_u32 v38, v17, 2, v38")
    A("v_add_u32 v38, %d, v38" % L_X)
    st_(A, 4)
    for i0 in range(0, 9, 3):
        streams = []
        for i in range(i0, i0 + 3):
            bs = 40 + 8 * (i % 3)
            ops = norm_ops(bs, bs + 2, bs + 4, 20 + i, 64)
            ops.append("v_cvt_pk_bf16_f32 %s, %s, %s" % (v(bs + 6), v(bs + 2), v(bs + 3)))
            ops.append("ds_write_b32 v38, %s offset:%d" % (v(bs + 6), 128 * i))
            streams.append(ops)
        interleave(A, streams)
    A("s_waitcnt lgkmcnt(0)")
    lds_signal(A, 4, "v8", "v9")
    st_(A, 6)
    dbg_time(A, 4)
    Le = A.newlabel("noep")
    A("s_cmp_lg_u32 s41, 0")
    A("s_cbranch_scc1 %s" % Le)
    A("s_cmp_lg_u32 s42, 4")
    A("s_cbranch_scc1 %s" % Le)
    A("s_setprio 0")
    A("v_lshlrev_b32 v16, 2, v1")
    A("v_min_u32 v17, 15, v1")
    A("v_lshlrev_b32 v17, 2, v17")
    def al_loads():
        A("s_movk_i32 s43, %d" % F_ALIVE)
        A("buffer_load_dword v20, v16, s[36:39], s43 offen sc1")
        A("buffer_load_dword v21, v16, s[36:39], s43 offen offset:256 sc1")
        A("buffer_load_dword v22, v17, s[36:39], s43 offen offset:512 sc1")
    masked_poll(A, "al", al_loads, [20, 21, 22], 16, 0)
    A("v_mov_b32 v20, %s" % T)
    A("v_mov_b32 v21, %d" % F_EPOCH)
    A("s_mov_b64 exec, 1")
    A("buffer_store_dword v20, v21, s[36:39], 0 offen sc1")
    A("s_mov_b64 exec, -1")
    A.label(Le)
    A("s_endpgm")

def gen_spare_wg(A):
    A("s_lshl_b32 s60, s41, 3")
    A("s_add_u32 s60, s60, s42")
    A("s_add_u32 s60, s60, 288")
    Lx = A.newlabel("spx")
    A("s_cmp_ge_u32 s60, 512")
    A("s_cbranch_scc1 %s" % Lx)
    Q, WR, X = gen_ln(A)
    finish_tag(A)
    gen_ln_compute(A, Q, WR, X)
    A.label(Lx)
    A("s_endpgm")

def gen_kernel(A, name):
    kernel_header(A, name)
    Ldone = A.newlabel("done"); Lmoe = A.newlabel("moe"); Lsp = A.newlabel("spare")
    A("s_getpc_b64 s[96:97]")
    A("s_cmp_ge_u32 s2, 256")
    A("s_cbranch_scc1 %s" % Ldone)
    A("s_load_dwordx4 s[68:71], s[0:1], %d" % KA_DBG)
    A("s_load_dwordx16 s[72:87], s[0:1], 0")
    A("s_load_dwordx8 s[88:95], s[0:1], %d" % KA_WG)
    A("v_lshrrev_b32 v1, 6, v0")
    A("s_and_b32 s30, s2, 7")
    A("s_lshr_b32 s31, s2, 3")
    A("v_readfirstlane_b32 s42, v1")
    A("s_mov_b32 s40, 0xffff0000")
    if not os.environ.get("NOICPF"):
        Lc = A.newlabel("noic")
        A("s_and_b32 s96, s96, 0xffffff00")
        A("s_and_b32 s97, s97, 0xffff")
        A("s_mov_b32 s98, L_code_end-%s" % name)
        A("s_mov_b32 s99, 0x00020000")
        A("v_and_b32 v243, 63, v0")
        A("v_lshlrev_b32 v243, 4, v243")
        A("s_lshl_b32 s95, s31, 10") if False else None
        A("s_lshl_b32 s3, s31, 10")
        A("v_cmp_lt_u32 vcc, 447, v0")
        A("s_cbranch_vccz %s" % Lc)
        A("buffer_load_dwordx4 v[244:247], v243, s[96:99], s3 offen")
        A.label(Lc)
    A("s_waitcnt lgkmcnt(0)")
    A("s_load_dword s%d, s[%d:%d], %d" % (TAG, PWS, PWS + 1, F_EPOCH))
    srd(A, 36, PWS, WS_SIZE)
    A("s_lshl_b32 s3, s2, 3")
    A("s_add_u32 s3, s3, s42")
    st_(A, 0)
    A("s_cmp_ge_u32 s31, 27")
    A("s_cbranch_scc1 %s" % Lsp)
    A("s_cmp_ge_u32 s31, 18")
    A("s_cbranch_scc1 %s" % Lmoe)
    A("s_mul_i32 s41, s30, 18")
    A("s_add_u32 s41, s41, s31")
    gen_conv_wg(A)
    A.label(Lmoe)
    A("s_mul_i32 s41, s30, 9")
    A("s_add_u32 s41, s41, s31")
    A("s_sub_u32 s41, s41, 18")
    gen_moe_wg(A)
    A.label(Lsp)
    A("s_mul_i32 s41, s30, 5")
    A("s_add_u32 s41, s41, s31")
    A("s_sub_u32 s41, s41, 27")
    gen_spare_wg(A)
    A.label(Ldone)
    A("s_endpgm")
    A.label("L_code_end")
    return kernel_desc(name, 256, 102, 256)
```

```python
from common import *
import common, os
from collections import deque
from conv2 import CS, CH_LDS, H_OFF, POLL_MAX, conv_schedule
from moe2 import wave_max_u32, L_WG, L_WU, L_X, L_HS, L_U, L_CAND, XSTR, HSTR
from moe3 import SORT8, sort_desc, rounds

F_EPOCH = 0x0
F_SELG = 0x100
F_ALIVE = 0x1000
F_KEYG = 0x2000
F_ROWG = 0x8000
F_LNF = 0x6000
F_URC = 0x100000 + 0x300000
F_UR = 0x20000
F_PARTG = 0x500000
F_XT = 0x800000
F_XC = 0x480000
L_TAG = 162304

PQ, PK, PV, PSHK, PSSMK, PSSMD, PWR, PWG, PWU, PWD, POUT, PWS = 72, 74, 76, 78, 80, 82, 86, 88, 90, 92, 94, 70
TAG = 46
QNT = '' if os.environ.get('QDEF') else ' nt'
NTS = '' if os.environ.get('NONT') else ' nt'
LIGHT = os.environ.get("STAMPS") == "2"
def st_(A, n, end=False):
    if LIGHT:
        if n != 0 and not end:
            return
        n = 15 if end else 0
    stamp(A, n, 36, 3, vt=254, st=96)

MISC = 4 * CH_LDS
FLAGS = MISC
SIDE = MISC + 64
RED = SIDE + 256
YOFF = H_OFF
W1, W0 = 20, 28
E_, G_, F_ = 36, 44, 50
UREG = 56
RING, NR, ACC, BS = 64, 6, 88, 120

DBGT = bool(os.environ.get("DBGT"))
def dbg_time(A, slot, invert=False):
    if not DBGT:
        return
    L = A.newlabel("dbgs")
    A("s_and_b32 s100, s42, 3")
    A("s_cmp_lg_u32 s100, 0")
    A("s_cbranch_scc1 %s" % L)
    A("s_cmp_eq_u32 s2, 8")
    A("s_cselect_b32 s100, 1, 0")
    A("s_cmp_eq_u32 s2, 152")
    A("s_cselect_b32 s100, 1, s100")
    A("s_cmp_eq_u32 s100, 0")
    A("s_cbranch_scc1 %s" % L)
    A("s_memrealtime s[96:97]")
    A("s_waitcnt lgkmcnt(0)")
    A("v_mov_b32 v252, s96")
    A("v_mov_b32 v253, %d" % (4 * slot))
    A("s_mov_b64 s[98:99], exec")
    A("s_mov_b64 exec, 1")
    A("global_store_dword v253, v252, s[68:69]")
    A("s_mov_b64 exec, s[98:99]")
    A.label(L)

def poll_head(A, cnt="s52"):
    A("s_mov_b32 %s, 0" % cnt)

def poll_tail(A, Lloop, Ldone, cnt="s52", sleep=1):
    A("s_add_u32 %s, %s, 1" % (cnt, cnt))
    A("s_cmp_gt_u32 %s, %d" % (cnt, POLL_MAX))
    A("s_cbranch_scc1 %s" % Ldone)
    A("s_sleep %d" % sleep)
    A("s_branch %s" % Lloop)

def masked_poll(A, name, emit_loads, tagregs, sleep, pre_sleep=0, full_exec="-1"):
    T = "s%d" % TAG
    Lp = A.newlabel(name + "p"); Ld = A.newlabel(name + "ok")
    if pre_sleep:
        A("s_sleep %d" % pre_sleep)
    A("s_mov_b32 s52, 0")
    A.label(Lp)
    emit_loads()
    A("s_waitcnt vmcnt(0)")
    A("v_cmp_eq_u32 vcc, %s, %s" % (T, v(tagregs[0])))
    for r in tagregs[1:]:
        A("v_cmp_eq_u32 s[54:55], %s, %s" % (T, v(r)))
        A("s_and_b64 vcc, vcc, s[54:55]")
    A("s_andn2_b64 exec, exec, vcc")
    A("s_cbranch_scc0 %s" % Ld)
    A("s_add_u32 s52, s52, 1")
    A("s_cmp_gt_u32 s52, %d" % POLL_MAX)
    A("s_cbranch_scc1 %s" % Ld)
    A("s_sleep %d" % sleep)
    A("s_branch %s" % Lp)
    A.label(Ld)
    A("s_mov_b64 exec, %s" % full_exec)

def first_then_poll(A, name, emit_loads, tagregs, sleep, ex, first_cnt=0):
    T = "s%d" % TAG
    Lp = A.newlabel(name + "p"); Ld = A.newlabel(name + "ok")
    A("s_mov_b32 s52, 0")
    A("s_waitcnt vmcnt(%d)" % first_cnt)
    A.label(Lp)
    A("v_cmp_eq_u32 vcc, %s, %s" % (T, v(tagregs[0])))
    for r in tagregs[1:]:
        A("v_cmp_eq_u32 s[54:55], %s, %s" % (T, v(r)))
        A("s_and_b64 vcc, vcc, s[54:55]")
    A("s_andn2_b64 exec, exec, vcc")
    A("s_cbranch_scc0 %s" % Ld)
    A("s_add_u32 s52, s52, 1")
    A("s_cmp_gt_u32 s52, %d" % POLL_MAX)
    A("s_cbranch_scc1 %s" % Ld)
    A("s_sleep %d" % sleep)
    emit_loads()
    A("s_waitcnt vmcnt(0)")
    A("s_branch %s" % Lp)
    A.label(Ld)
    A("s_mov_b64 exec, -1")

def ln_hint_poll(A, vaddr, r0, sleep, pre):
    def loads():
        A("s_movk_i32 s51, %d" % F_LNF)
        A("buffer_load_dwordx4 %s, %s, s[36:39], s51 offen sc1" % (v(r0, 4), vaddr))
        A("buffer_load_dwordx4 %s, %s, s[36:39], s51 offen offset:1024 sc1" % (v(r0 + 4, 4), vaddr))
    masked_poll(A, "lnh", loads, list(range(r0, r0 + 8)), sleep, pre)

def stats_from_msd(A, g, st, t):
    A("v_and_b32 %s, s40, %s" % (v(st + 4), v(g)))
    A("v_lshlrev_b32 %s, 16, %s" % (v(st), v(g)))
    A("v_rcp_f32 %s, %s" % (v(st + 2), v(st + 4)))
    A("v_xor_b32 %s, 0x80000000, %s" % (v(st), v(st)))
    A("v_xor_b32 %s, 0x80000000, %s" % (v(st + 4), v(st + 4)))
    A("v_fma_f32 %s, %s, %s, 1.0" % (v(t), v(st + 4), v(st + 2)))
    A("v_mov_b32 %s, %s" % (v(st + 1), v(st)))
    A("v_fma_f32 %s, %s, %s, %s" % (v(st + 2), v(t), v(st + 2), v(st + 2)))
    A("v_mov_b32 %s, %s" % (v(st + 5), v(st + 4)))
    A("v_mov_b32 %s, %s" % (v(st + 3), v(st + 2)))

LK, LV, LQ, SG, SX, SGS = 0, 17408, 33792, 50176, 67584, 272

def row_xor_reduce(A, regs):
    for ctl in ("quad_perm:[1,0,3,2]", "quad_perm:[2,3,0,1]", "row_half_mirror", "row_mirror"):
        if len(regs) < 3:
            A.nop(3 - len(regs))
        for r in regs:
            A("v_xor_b32_dpp %s, %s, %s %s row_mask:0xf bank_mask:0xf" % (v(r), v(r), v(r), ctl))

def gen_kv_issue(A):
    srd(A, 48, PK, S * ROWB)
    srd(A, 52, PV, S * ROWB)
    A("v_and_b32 v1, 63, v0")
    A("v_lshrrev_b32 v4, 3, v1")
    A("v_mul_u32_u24 v4, 1152, v4")
    A("v_and_b32 v5, 7, v1")
    A("v_lshl_add_u32 v4, v5, 4, v4")
    A("s_mul_i32 s62, s61, %d" % (128 * 1152))
    A("s_lshl_b32 s63, s60, 7")
    A("s_add_u32 s62, s62, s63")
    A("s_mul_i32 s63, s42, 9216")
    A("s_add_u32 s62, s62, s63")
    A("s_sub_u32 s63, s62, 9216")
    A("s_lshl_b32 s64, s42, 10")
    srd(A, 16, PQ, S * ROWB)
    for i in range(4):
        A("s_mov_b32 m0, s64")
        A("s_add_u32 s65, s64, %d" % LV)
        A("buffer_load_dwordx4 v4, s[48:51], s63 offen lds" + NTS)
        A("s_mov_b32 m0, s65")
        A("s_add_u32 s65, s64, %d" % LQ)
        A("buffer_load_dwordx4 v4, s[52:55], s62 offen lds" + NTS)
        A("s_mov_b32 m0, s65")
        A("s_add_u32 s64, s64, 4096")
        A("buffer_load_dwordx4 v4, s[16:19], s62 offen lds" + NTS)
        A("s_add_u32 s63, s63, %d" % (32 * 1152))
        A("s_add_u32 s62, s62, %d" % (32 * 1152))
    Ln = A.newlabel("nok17")
    A("s_cmp_lg_u32 s42, 0")
    A("s_cbranch_scc1 %s" % Ln)
    A("s_mov_b32 m0, s64")
    A("s_nop 0")
    A("buffer_load_dwordx4 v4, s[48:51], s63 offen lds" + NTS)
    A.label(Ln)

def gen_kv_addr(A):
    srd(A, 56, PSHK, D * 8)
    A("v_and_b32 v2, 31, v0")
    A("s_lshl_b32 s63, s60, 9")
    A("v_lshl_add_u32 v29, v2, 4, s63")
    A("buffer_load_dwordx4 v[32:35], v29, s[56:59], 0 offen")

def gen_kv_addr2(A):
    A("v_lshrrev_b32 v3, 5, v0")
    A("v_lshlrev_b32 v6, 10, v3")
    A("v_lshl_add_u32 v6, v2, 2, v6")
    A("v_mul_u32_u24 v7, %d, v2" % (2 * SGS))
    A("v_sub_u32 v8, 15, v3")
    A("v_lshl_add_u32 v7, v8, 4, v7")
    A("v_add_u32 v7, %d, v7" % SG)
    A("v_bfe_u32 v10, v0, 4, 2")
    A("v_and_b32 v11, 15, v0")
    A("v_mul_u32_u24 v8, %d, v10" % SGS)
    A("v_lshl_add_u32 v8, v11, 4, v8")
    A("s_mul_i32 s63, s42, %d" % (8 * SGS))
    A("s_add_u32 s63, s63, %d" % SG)
    A("v_add_u32 v8, s63, v8")
    A("v_lshlrev_b32 v9, 12, v10")
    A("v_lshl_add_u32 v9, v11, 4, v9")
    A("s_lshl_b32 s63, s60, 6")
    A("s_lshl_b32 s64, s42, 3")
    A("s_add_u32 s63, s63, s64")
    A("s_lshl_b32 s65, s63, 12")
    A("s_lshl_b32 s64, s61, 8")
    A("s_sub_u32 s65, s65, s64")
    A("s_add_u32 s65, s65, %d" % (F_UR + 240 * 16))
    A("v_add_u32 v9, s65, v9")
    A("v_lshlrev_b32 v12, 7, v10")
    A("s_lshl_b32 s65, s63, 7")
    A("s_lshl_b32 s64, s61, 3")
    A("s_sub_u32 s65, s65, s64")
    A("s_add_u32 s65, s65, %d" % (F_URC + 120))
    A("v_add_u32 v12, s65, v12")
    A("v_cmp_eq_u32 s[66:67], 0, v11")
    A("v_mul_u32_u24 v13, %d, v2" % (2 * SGS))
    A("v_lshl_add_u32 v13, v3, 4, v13")
    A("v_add_u32 v13, %d, v13" % SX)
    A("v_lshlrev_b32 v48, 12, v10")
    A("v_lshl_add_u32 v48, v11, 4, v48")
    A("s_lshl_b32 s65, s63, 12")
    A("s_lshl_b32 s64, s61, 8")
    A("s_add_u32 s65, s65, s64")
    A("s_add_u32 s65, s65, %d" % F_XT)
    A("v_add_u32 v48, s65, v48")
    A("v_lshlrev_b32 v49, 7, v10")
    A("s_lshl_b32 s65, s63, 7")
    A("s_lshl_b32 s64, s61, 3")
    A("s_add_u32 s65, s65, s64")
    A("s_add_u32 s65, s65, %d" % F_XC)
    A("v_add_u32 v49, s65, v49")

def gen_kv_compute(A):
    A("s_barrier")
    st_(A, 1)
    dbg_time(A, 8)
    for i in range(11):
        A("ds_read_b32 %s, v6 offset:%d" % (v(14 + i), LK + (5 + i) * 128))
    for i in range(8):
        A("ds_read_b32 %s, v6 offset:%d" % (v(40 + i), LV + i * 128))
    for i in range(8):
        A("ds_read_b32 %s, v6 offset:%d" % (v(144 + i), LQ + i * 128))
    A("v_lshlrev_b32 v54, 16, v32"); A("v_lshlrev_b32 v55, 16, v34")
    A("v_and_b32 v56, s40, v32");    A("v_and_b32 v57, s40, v34")
    A("v_lshlrev_b32 v58, 16, v33"); A("v_lshlrev_b32 v59, 16, v35")
    A("v_and_b32 v60, s40, v33");    A("v_and_b32 v61, s40, v35")
    DOT = bool(os.environ.get("DOT2", "1") != "0")
    W, K, KV = 54, 62, 100
    A("s_mov_b32 s64, 0x05040100"); A("s_mov_b32 s65, 0x07060302")
    if DOT:
        A("v_and_b32 v62, 0xffff, v32"); A("v_lshlrev_b32 v63, 16, v34")
        A("v_lshrrev_b32 v64, 16, v32"); A("v_and_b32 v65, s40, v34")
        A("v_and_b32 v66, 0xffff, v33"); A("v_lshlrev_b32 v67, 16, v35")
        A("v_lshrrev_b32 v68, 16, v33"); A("v_and_b32 v69, s40, v35")
        A("v_mov_b32 v70, 0x3f803f80")
        A("v_mov_b32 v71, 0")
        A("s_waitcnt lgkmcnt(0)")
        for j in range(4):
            A("v_perm_b32 %s, %s, %s, s64" % (v(152 + j), v(144 + 2 * j + 1), v(144 + 2 * j)))
            A("v_perm_b32 %s, %s, %s, s65" % (v(156 + j), v(144 + 2 * j + 1), v(144 + 2 * j)))
        A("ds_write_b128 v13, v[152:155]")
        A("ds_write_b128 v13, v[156:159] offset:%d" % SGS)
        def ch_ops(i, c, t0):
            a_, b_, p_, q_ = t0, t0 + 1, t0 + 2, t0 + 3
            o = []
            d2 = lambda d, x, y, z: "v_dot2_f32_bf16 %s, %s, %s, %s" % (v(d), v(x), v(y), z)
            o.append(d2(a_, 14 + i + 0, 62 + 2 * 3 + c, "0"))
            o.append(d2(b_, 14 + i + 1, 62 + 2 * 2 + c, "0"))
            o.append(d2(q_, 14 + i + 2, 62 + 2 * 1 + c, "0"))
            o.append("v_cvt_pk_bf16_f32 %s, %s, %s" % (v(p_), v(a_), v(b_)))
            o.append(d2(b_, 14 + i + 3, 62 + 2 * 0 + c, "0"))
            o.append(d2(a_, p_, 70, "0"))
            o.append("s_nop 0")
            o.append("v_cvt_pk_bf16_f32 %s, %s, %s" % (v(p_), v(a_), v(q_)))
            o.append("s_nop 0")
            o.append(d2(a_, p_, 70, "0"))
            o.append("s_nop 0")
            o.append("v_cvt_pk_bf16_f32 %s, %s, %s" % (v(p_), v(a_), v(b_)))
            o.append("s_nop 0")
            o.append(d2(a_, p_, 70, "0"))
            o.append("s_nop 0")
            if c == 0:
                o.append("v_cvt_pk_bf16_f32 %s, %s, %s" % (v(p_), v(a_), v(71)))
            else:
                o.append("v_cvt_pk_bf16_f32 %s, %s, %s" % (v(p_), v(71), v(a_)))
            o.append("s_nop 0")
            o.append(d2(KV + 2 * i + c, p_, 40 + i, "0"))
            return [x for x in o if x != "s_nop 0"]
        for i in range(0, 8, 4):
            streams = []
            for ii in range(4):
                for c in range(2):
                    streams.append(ch_ops(i + ii, c, 72 + 4 * (2 * ii + c) if (2 * ii + c) < 7 else 132))
            interleave(A, streams)
        A.nop(3)
        for c in range(2):
            for j in range(4):
                A("v_cvt_pk_bf16_f32 %s, %s, %s" % (v(116 + 4 * c + j), v(KV + 2 * (7 - 2 * j) + c), v(KV + 2 * (6 - 2 * j) + c)))
    else:
        A("s_waitcnt lgkmcnt(15)")
        for i in range(11):
            unpack_pair(A, K + 2 * i, K + 2 * i + 1, 14 + i, 40)
        A("s_waitcnt lgkmcnt(0)")
        for j in range(4):
            A("v_perm_b32 %s, %s, %s, s64" % (v(152 + j), v(144 + 2 * j + 1), v(144 + 2 * j)))
            A("v_perm_b32 %s, %s, %s, s65" % (v(156 + j), v(144 + 2 * j + 1), v(144 + 2 * j)))
        A("ds_write_b128 v13, v[152:155]")
        A("ds_write_b128 v13, v[156:159] offset:%d" % SGS)
        def pr_(r):
            return "v[%d:%d]" % (r, r + 1)
        def row_ops(i, acc, tmp, t3):
            P = Asm()
            P("v_pk_mul_f32 %s, %s, %s" % (pr_(acc), pr_(K + 2 * (i + 0)), pr_(W + 6)))
            round_pair(P, acc, acc + 1, t3, 40)
            for t in range(1, 4):
                P("v_pk_mul_f32 %s, %s, %s" % (pr_(tmp), pr_(K + 2 * (i + t)), pr_(W + 2 * (3 - t))))
                round_pair(P, tmp, tmp + 1, t3, 40)
                P("v_pk_add_f32 %s, %s, %s" % (pr_(acc), pr_(acc), pr_(tmp)))
                round_pair(P, acc, acc + 1, t3, 40)
            unpack_pair(P, tmp, tmp + 1, 40 + i, 40)
            P("v_pk_mul_f32 %s, %s, %s" % (pr_(KV + 2 * i), pr_(acc), pr_(tmp)))
            return [l.strip() for l in P.lines]
        for i in range(0, 8, 4):
            interleave(A, [row_ops(i, 84, 86, 88), row_ops(i + 1, 90, 92, 94), row_ops(i + 2, 132, 134, 136), row_ops(i + 3, 138, 140, 142)])
        for c in range(2):
            for j in range(4):
                A("v_cvt_pk_bf16_f32 %s, %s, %s" % (v(116 + 4 * c + j), v(KV + 2 * (7 - 2 * j) + c), v(KV + 2 * (6 - 2 * j) + c)))
    A("ds_write_b128 v7, v[116:119]")
    A("ds_write_b128 v7, v[120:123] offset:%d" % SGS)
    A("s_waitcnt lgkmcnt(0)")
    A("s_barrier")
    A("ds_read_b128 v[116:119], v8")
    A("ds_read_b128 v[120:123], v8 offset:%d" % (4 * SGS))
    A("s_movk_i32 s63, 16384")
    A("s_waitcnt lgkmcnt(1)")
    A("buffer_store_dwordx4 v[116:119], v9, s[36:39], 0 offen sc1")
    A("v_xor_b32 v124, v116, v117"); A("v_xor_b32 v126, v118, v119")
    A("s_waitcnt lgkmcnt(0)")
    A("buffer_store_dwordx4 v[120:123], v9, s[36:39], s63 offen sc1")
    A("v_xor_b32 v125, v120, v121"); A("v_xor_b32 v127, v122, v123")
    A("v_xor_b32 v124, v124, v126"); A("v_xor_b32 v125, v125, v127")
    row_xor_reduce(A, [124, 125])
    A("v_xor_b32 v128, s%d, v124" % TAG); A("v_xor_b32 v130, s%d, v125" % TAG)
    A("v_mov_b32 v129, s%d" % TAG); A("v_mov_b32 v131, s%d" % TAG)
    A("s_mov_b64 exec, s[66:67]")
    A("buffer_store_dwordx2 v[128:129], v12, s[36:39], 0 offen sc1")
    A("buffer_store_dwordx2 v[130:131], v12, s[36:39], 0 offen offset:512 sc1")
    A("s_mov_b64 exec, -1")
    A("ds_read_b128 v[116:119], v8 offset:%d" % (SX - SG))
    A("ds_read_b128 v[120:123], v8 offset:%d" % (SX - SG + 4 * SGS))
    A("s_waitcnt lgkmcnt(1)")
    A("buffer_store_dwordx4 v[116:119], v48, s[36:39], 0 offen sc1")
    A("v_xor_b32 v124, v116, v117"); A("v_xor_b32 v126, v118, v119")
    A("s_waitcnt lgkmcnt(0)")
    A("buffer_store_dwordx4 v[120:123], v48, s[36:39], s63 offen sc1")
    A("v_xor_b32 v125, v120, v121"); A("v_xor_b32 v127, v122, v123")
    A("v_xor_b32 v124, v124, v126"); A("v_xor_b32 v125, v125, v127")
    row_xor_reduce(A, [124, 125])
    A("v_xor_b32 v128, s%d, v124" % TAG); A("v_xor_b32 v130, s%d, v125" % TAG)
    A("s_mov_b64 exec, s[66:67]")
    A("buffer_store_dwordx2 v[128:129], v49, s[36:39], 0 offen sc1")
    A("buffer_store_dwordx2 v[130:131], v49, s[36:39], 0 offen offset:512 sc1")
    A("s_mov_b64 exec, -1")
    st_(A, 2)

def gen_ln(A, two=False):
    srd(A, 48, PQ, S * ROWB)
    srd(A, 56, PWR, D * 2)
    A("v_and_b32 v1, 63, v0")
    A("v_and_b32 v2, 15, v0")
    A("v_lshrrev_b32 v3, 4, v1")
    A("s_lshl_b32 s61, s60, 2")
    A("v_add_u32 v30, s61, v3")
    A("s_movk_i32 s62, 1152")
    A("v_mul_lo_u32 v6, v30, s62")
    A("v_lshl_add_u32 v6, v2, 3, v6")
    A("v_lshlrev_b32 v7, 3, v2")
    Q, WR, X = 64, 84, 104
    for i in range(9):
        A("buffer_load_dwordx2 %s, v6, s[48:51], 0 offen offset:%d" % (v(Q + 2 * i, 2), 128 * i) + QNT)
    for i in range(9):
        A("buffer_load_dwordx2 %s, v7, s[56:59], 0 offen offset:%d" % (v(WR + 2 * i, 2), 128 * i))
    if two:
        A("s_mov_b32 s62, %d" % (1024 * 1152))
        for i in range(9):
            A("buffer_load_dwordx2 %s, v6, s[48:51], s62 offen offset:%d" % (v(144 + 2 * i, 2), 128 * i))
    return Q, WR, X

def gen_ln_compute(A, Q, WR, X, extra=0, first_wait=None):
    A("s_waitcnt vmcnt(%d)" % (9 + extra if first_wait is None else first_wait))
    st_(A, 1)
    for i in range(18):
        unpack_pair(A, X + 2 * i, X + 2 * i + 1, Q + i, 40)
    A("v_pk_add_f32 v[8:9], %s, %s" % (v(X, 2), v(X + 2, 2)))
    A("v_pk_add_f32 v[10:11], %s, %s" % (v(X + 4, 2), v(X + 6, 2)))
    for i in range(4, 18, 2):
        A("v_pk_add_f32 v[8:9], v[8:9], %s" % v(X + 2 * i, 2))
        A("v_pk_add_f32 v[10:11], v[10:11], %s" % v(X + 2 * i + 2, 2))
    A("v_pk_add_f32 v[8:9], v[8:9], v[10:11]")
    A.nop(1)
    A("v_add_f32 v8, v8, v9")
    allreduce16_add(A, 8)
    A("v_mul_f32 v8, 0x3ae38e39, v8")
    A("v_sub_f32 v12, 0, v8")
    A("v_sub_f32 v13, 0, v8")
    for r in (14, 15, 16, 17):
        A("v_mov_b32 %s, 0" % v(r))
    for i in range(0, 18, 2):
        A("v_pk_add_f32 v[18:19], %s, v[12:13]" % v(X + 2 * i, 2))
        A("v_pk_add_f32 v[20:21], %s, v[12:13]" % v(X + 2 * i + 2, 2))
        A("v_pk_fma_f32 v[14:15], v[18:19], v[18:19], v[14:15]")
        A("v_pk_fma_f32 v[16:17], v[20:21], v[20:21], v[16:17]")
    A("v_pk_add_f32 v[14:15], v[14:15], v[16:17]")
    A.nop(1)
    A("v_add_f32 v14, v14, v15")
    allreduce16_add(A, 14)
    A("v_mul_f32 v14, 0x3ae38e39, v14")
    A.nop(1)
    round_pair(A, 8, 14, 9, 40)
    A("v_add_f32 v14, 0x3727c5ac, v14")
    A.nop(1)
    A("v_cvt_pk_bf16_f32 v9, v14, v14")
    A("v_lshlrev_b32 v14, 16, v9")
    A("v_sqrt_f32 v14, v14")
    A.nop(1)
    A("v_cvt_pk_bf16_f32 v9, v14, v14")
    A("v_lshlrev_b32 v14, 16, v9")
    A("v_rcp_f32 v15, v14")
    A.nop(1)
    A("v_fma_f32 v16, -v14, v15, 1.0")
    A("v_fma_f32 v15, v16, v15, v15")
    A("v_sub_f32 v12, 0, v8"); A("v_sub_f32 v13, 0, v8")
    A("v_mov_b32 v16, v15"); A("v_mov_b32 v17, v15")
    for r in (22, 23, 24, 25):
        A("v_mov_b32 %s, 0" % v(r))
    A("s_waitcnt vmcnt(%d)" % (extra if first_wait is None else first_wait))
    def ops(i, tm, acc):
        x0 = X + 2 * i
        P = Asm()
        P("v_pk_add_f32 %s, %s, v[12:13]" % (v(x0, 2), v(x0, 2)))
        round_pair(P, x0, x0 + 1, tm, 40)
        P("v_pk_mul_f32 %s, %s, v[16:17]" % (v(x0, 2), v(x0, 2)))
        round_pair(P, x0, x0 + 1, tm, 40)
        unpack_pair(P, tm + 2, tm + 3, WR + i, 40)
        P("v_pk_fma_f32 %s, %s, %s, %s" % (v(acc, 2), v(x0, 2), v(tm + 2, 2), v(acc, 2)))
        return [l.strip() for l in P.lines]
    for i in range(0, 18, 2):
        interleave(A, [ops(i, 26, 22), ops(i + 1, 32, 24)])
    A("v_pk_add_f32 v[22:23], v[22:23], v[24:25]")
    A.nop(1)
    A("v_add_f32 v22, v22, v23")
    allreduce16_add(A, 22)
    A.nop(1)
    A("v_cvt_pk_bf16_f32 v23, v22, v22")
    A("v_lshlrev_b32 v23, 16, v23")
    A("v_ashrrev_i32 v24, 31, v23")
    A("v_or_b32 v24, 0x80000000, v24")
    A("v_xor_b32 v23, v23, v24")
    A("v_and_b32 v23, s40, v23")
    A("v_sub_u32 v24, 2047, v30")
    A("v_or_b32 v26, v23, v24")
    A("v_mov_b32 v27, s%d" % TAG)
    A("v_cvt_pk_bf16_f32 v32, v8, v14")
    A("v_mov_b32 v33, s%d" % TAG)
    A("v_lshlrev_b32 v28, 3, v30")
    A("s_movk_i32 s61, %d" % F_KEYG)
    A("s_mov_b32 s62, %d" % F_ROWG)
    A("v_cmp_eq_u32 vcc, 0, v2")
    A("s_and_saveexec_b64 s[64:65], vcc")
    A("buffer_store_dwordx2 v[26:27], v28, s[36:39], s61 offen sc1")
    A("buffer_store_dwordx2 v[32:33], v28, s[36:39], s62 offen sc1")
    A("s_mov_b64 exec, s[64:65]")
    st_(A, 2)

def load_verified_runs(A, pay_soff, chk_soff, vlane16, vchk8, vhint8, P, pre, sleep):
    C, Tm = P + 16, P + 20
    def hint_loads():
        A("buffer_load_dwordx2 %s, %s, s[36:39], %s offen sc1" % (v(C, 2), vhint8, chk_soff))
    masked_poll(A, "vh", hint_loads, [C + 1], sleep, pre)
    Lp = A.newlabel("vp"); Ld = A.newlabel("vok")
    A("s_mov_b32 s52, 0")
    A.label(Lp)
    for i in range(4):
        A("buffer_load_dwordx4 %s, %s, s[36:39], %s offen offset:%d sc1" % (v(P + 4 * i, 4), vlane16, pay_soff, 1024 * i))
    for i in range(4):
        A("buffer_load_dword %s, %s, s[36:39], %s offen offset:%d sc1" % (v(C + i), vchk8, chk_soff, 32 * i))
    A("s_waitcnt vmcnt(0)")
    for i in range(4):
        A("v_xor_b32 %s, %s, %s" % (v(Tm + i), v(P + 4 * i), v(P + 1 + 4 * i)))
    for i in range(4):
        A("v_xor_b32 %s, %s, %s" % (v(Tm + 4 + i), v(P + 2 + 4 * i), v(P + 3 + 4 * i)))
    for i in range(4):
        A("v_xor_b32 %s, %s, %s" % (v(Tm + i), v(Tm + i), v(Tm + 4 + i)))
    row_xor_reduce(A, [Tm, Tm + 1, Tm + 2, Tm + 3])
    for i in range(4):
        A("v_xor_b32 %s, %s, %s" % (v(Tm + i), v(Tm + i), v(C + i)))
    A("v_cmp_eq_u32 vcc, s%d, %s" % (TAG, v(Tm)))
    for i in range(1, 4):
        A("v_cmp_eq_u32 s[54:55], s%d, %s" % (TAG, v(Tm + i)))
        A("s_and_b64 vcc, vcc, s[54:55]")
    A("s_cmp_eq_u64 vcc, -1")
    A("s_cbranch_scc1 %s" % Ld)
    A("s_add_u32 s52, s52, 1")
    A("s_cmp_gt_u32 s52, %d" % POLL_MAX)
    A("s_cbranch_scc1 %s" % Ld)
    A("s_sleep 2")
    A("s_branch %s" % Lp)
    A.label(Ld)

def build_ops(W, N, off):
    ops = []
    for k in range(7):
        ops.append("v_alignbit_b32 %s, %s, %s, 16" % (v(E_ + k), v(W + k + 1), v(W + k)))
    ops.append("ds_write_b128 v11, %s offset:%d" % (v(W + 2, 4), 4 * CS + off))
    for k in range(3):
        ops.append("v_pk_mov_b32 %s, %s, %s op_sel:[1,0]" % (v(G_ + 2 * k, 2), v(W + 2 * k, 2), v(W + 2 * k + 2, 2)))
    ops.append("ds_write_b128 v11, %s offset:%d" % (v(E_, 4), 1 * CS + off))
    ops.append("ds_write_b128 v11, %s offset:%d" % (v(E_ + 2, 4), 5 * CS + off))
    for k in range(3):
        ops.append("v_pk_mov_b32 %s, %s, %s op_sel:[1,0]" % (v(F_ + 2 * k, 2), v(E_ + 2 * k, 2), v(E_ + 2 * k + 2, 2)))
    ops.append("ds_write_b128 v11, %s offset:%d" % (v(G_, 4), 2 * CS + off))
    ops.append("ds_write_b128 v11, %s offset:%d" % (v(G_ + 2, 4), 6 * CS + off))
    ops.append("s_nop 0")
    ops.append("ds_write_b128 v11, %s offset:%d" % (v(F_, 4), 3 * CS + off))
    ops.append("ds_write_b128 v11, %s offset:%d" % (v(F_ + 2, 4), 7 * CS + off))
    return ops

def gen_M(A):
    A("s_setprio %d" % int(os.environ.get("MPRIO", 2)))
    srd(A, 32, PSSMK, D * S * 2)
    A("v_and_b32 v1, 63, v0")
    A("v_lshlrev_b32 v4, 4, v1")
    A("s_add_u32 s56, s45, %d" % (H_OFF + 512))
    A("s_lshl_b32 s57, s44, 12")
    A("s_mov_b32 m0, s56")
    A("s_lshl_b32 s51, s44, 1")
    for i in range(4):
        A("buffer_load_dwordx4 v4, s[32:35], s57 offen offset:%d lds" % (1024 * i) + NTS)
    A("s_add_u32 s56, s56, 4096")
    A("s_add_u32 s57, s57, 4096")
    A("s_mov_b32 m0, s56")
    A("s_mov_b64 exec, 0x3")
    A("buffer_load_dwordx4 v4, s[32:35], s57 offen lds" + NTS)
    A("s_mov_b64 exec, -1")
    A("s_and_b32 s52, s51, 0xfffffffc")
    A("s_add_u32 s54, s%d, s52" % PSSMD)
    A("s_addc_u32 s55, s%d, 0" % (PSSMD + 1))
    A("s_load_dword s53, s[54:55], 0")
    A("v_and_b32 v2, 15, v0")
    A("v_bfe_u32 v3, v0, 4, 2")
    A("v_mov_b32 v12, 0"); A("v_mov_b32 v13, 0"); A("v_mov_b32 v14, 0"); A("v_mov_b32 v15, 0")
    A("v_add_u32 v11, s45, v4")
    A("s_mov_b32 exec_hi, 0")
    A("ds_write_b128 v11, v[12:15] offset:%d" % H_OFF)
    A("s_mov_b64 exec, 0x3")
    for c in range(8):
        pass
    A("ds_write_b128 v11, v[12:15]")
    A("s_mov_b64 exec, 0xf")
    A("ds_write_b128 v11, v[12:15] offset:%d" % (258 * 16))
    A("s_mov_b64 exec, -1")
    A("v_lshlrev_b32 v5, 5, v2")
    A("v_lshl_add_u32 v5, v3, 4, v5")
    A("v_add_u32 v5, s45, v5")
    A("v_add_u32 v5, %d, v5" % H_OFF)
    A("v_and_b32 v8, 7, v2")
    A("v_sub_u32 v8, 7, v8")
    A("v_mul_u32_u24 v8, %d, v8" % CS)
    A("v_lshrrev_b32 v6, 3, v2")
    A("v_sub_u32 v6, v3, v6")
    A("v_lshlrev_b32 v6, 4, v6")
    A("v_add_u32 v8, v8, v6")
    A("v_add_u32 v8, 16, v8")
    A("v_add_u32 v9, s45, v8")
    A("v_lshlrev_b32 v6, 5, v2")
    A("v_lshl_add_u32 v6, v3, 3, v6")
    A("v_sub_u32 v7, %d, v6" % (4120 - 3584))
    A("v_add_u32 v7, s45, v7")
    A("v_add_u32 v6, s45, v6")
    A("v_add_u32 v6, %d, v6" % YOFF)
    A("s_lshl_b32 s49, s43, 2")
    A("s_add_u32 s49, s49, %d" % FLAGS)
    A("v_mov_b32 v10, s49")
    for i in range(32):
        A("v_mov_b32 %s, 0" % v(ACC + i))
    A("s_lshl_b32 s48, s44, 12")
    A("s_add_u32 s48, s48, %d" % F_UR)
    A("v_lshlrev_b32 v16, 3, v3")
    A("s_lshl_b32 s50, s44, 7")
    A("s_add_u32 s50, s50, %d" % F_URC)
    A("v_and_b32 v17, 15, v1")
    A("v_lshlrev_b32 v17, 3, v17")
    def hint_loads():
        A("buffer_load_dwordx2 v[136:137], v17, s[36:39], s50 offen sc1")
    if os.environ.get("URHINT"):
        masked_poll(A, "urh", hint_loads, [137], int(os.environ.get("URSLEEP", 4)), int(os.environ.get("URPRE", 8)))
    else:
        A("s_sleep %d" % int(os.environ.get("URPRE", 24)))
    Lp = A.newlabel("urp"); Ld = A.newlabel("urok")
    A("s_mov_b32 s52, 0")
    A.label(Lp)
    for i in range(4):
        A("buffer_load_dwordx4 %s, v4, s[36:39], s48 offen offset:%d sc1" % (v(120 + 4 * i, 4), 1024 * i))
    for i in range(4):
        A("buffer_load_dword %s, v16, s[36:39], s50 offen offset:%d sc1" % (v(136 + i), 32 * i))
    A("s_waitcnt vmcnt(0)")
    for i in range(4):
        A("v_xor_b32 %s, %s, %s" % (v(140 + i), v(120 + 4 * i), v(121 + 4 * i)))
    for i in range(4):
        A("v_xor_b32 %s, %s, %s" % (v(144 + i), v(122 + 4 * i), v(123 + 4 * i)))
    for i in range(4):
        A("v_xor_b32 %s, %s, %s" % (v(140 + i), v(140 + i), v(144 + i)))
    row_xor_reduce(A, [140, 141, 142, 143])
    for i in range(4):
        A("v_xor_b32 %s, %s, %s" % (v(140 + i), v(140 + i), v(136 + i)))
    A("v_cmp_eq_u32 vcc, s%d, v140" % TAG)
    for i in range(1, 4):
        A("v_cmp_eq_u32 s[54:55], s%d, %s" % (TAG, v(140 + i)))
        A("s_and_b64 vcc, vcc, s[54:55]")
    A("s_cmp_eq_u64 vcc, -1")
    A("s_cbranch_scc1 %s" % Ld)
    A("s_add_u32 s52, s52, 1")
    A("s_cmp_gt_u32 s52, %d" % POLL_MAX)
    A("s_cbranch_scc1 %s" % Ld)
    A("s_sleep %d" % int(os.environ.get("URSLEEP", 6)))
    A("s_branch %s" % Lp)
    A.label(Ld)
    st_(A, 3)
    dbg_time(A, 5)
    A("s_setprio %d" % int(os.environ.get("MPRIO2", 0)))
    for i in range(4):
        A("ds_write_b128 v11, %s offset:%d" % (v(120 + 4 * i, 4), 32 + 1024 * i))
    A("s_waitcnt lgkmcnt(0)")
    for (W, off) in ((152, 4096), (160, 3072), (168, 2048), (W1, 1024), (W0, 0)):
        A("ds_read_b128 %s, v11 offset:%d" % (v(W, 4), off))
        A("ds_read_b128 %s, v11 offset:%d" % (v(W + 4, 4), off + 16))
    A("s_waitcnt lgkmcnt(8)")
    A("s_mov_b64 exec, 0x1f")
    for o in build_ops(152, 0, 4096): A(o)
    A("s_mov_b64 exec, -1")
    A("s_waitcnt lgkmcnt(11)")
    for o in build_ops(160, 0, 3072): A(o)
    A("s_waitcnt lgkmcnt(14)")
    for o in build_ops(168, 0, 2048): A(o)
    A("s_waitcnt lgkmcnt(0)")
    st_(A, 4)
    hi_steps, lo_frags, lo_slot, lo_steps = conv_schedule()
    def bslot(sl):
        return v(BS + 4 * sl, 4)
    order, seen = [], set()
    for q, lst in hi_steps:
        for t, sl in lst:
            if sl not in seen:
                seen.add(sl); order.append(sl)
    aseq = [q for q in range(33)] + [q for q in range(65)]
    issued = []
    def issue(tag, txt):
        A(txt); issued.append(tag)
    def wait_for(tags):
        idx = max(len(issued) - 1 - issued[::-1].index(t) for t in tags)
        n = len(issued) - 1 - idx
        A("s_waitcnt lgkmcnt(%d)" % min(n, 15))
    def a_issue(k):
        issue(("A", k), "ds_read_b128 %s, v9 offset:%d" % (v(RING + 4 * (k % NR), 4), 64 * (64 - aseq[k])))
    def b_issue(sl):
        issue(("B", sl), "ds_read_b128 %s, v5 offset:%d" % (bslot(sl), 64 * (56 - sl + 8)))
    fill = deque()
    cnt = [0]
    def emit_fill(k):
        while k > 0 and fill:
            f = fill.popleft(); f(); cnt[0] += 1; k -= 1
    def add_plain(txt):
        if txt.startswith("ds_"):
            fill.append(lambda txt=txt: issue(("W",), txt))
        else:
            fill.append(lambda txt=txt: A(txt))
    a_issue(0)
    for sl in order[:5]:
        b_issue(sl)
    nextA = 1
    for k in range(1, NR):
        a_issue(nextA); nextA += 1
        b_issue(order[5 + k - 1])
    nextB = 5 + (NR - 1)
    A("s_and_b32 s52, s51, 2")
    A("s_lshl_b32 s52, s52, 3")
    A("s_lshr_b32 s53, s53, s52")
    A("s_lshl_b32 s53, s53, 16")
    A("v_mov_b32 v18, s53"); A("v_mov_b32 v19, s53")
    n = 0
    fu = {}
    for q, lst in hi_steps:
        for t, sl in lst:
            fu.setdefault(sl, q)
    for q, lst in hi_steps:
        while nextB < len(order) and fu[order[nextB]] <= q + 3:
            b_issue(order[nextB]); nextB += 1
        wait_for([("A", n)] + [("B", sl) for _, sl in lst])
        for t, sl in lst:
            A("v_mfma_f32_16x16x32_bf16 %s, %s, %s, %s" % (v(ACC + 4 * t, 4), v(RING + 4 * (n % NR), 4), bslot(sl), v(ACC + 4 * t, 4)))
        if nextA < len(aseq):
            a_issue(nextA); nextA += 1
        if q < 32:
            issue(("L", q), "ds_read_b128 %s, v5 offset:%d" % (bslot(q), 64 * (lo_frags[q] + 8)))
        n += 1
    st_(A, 5)
    def tile_epilogue(t):
        u0 = UREG + 2 * (t % 2)
        ac = ACC + 4 * t
        fill.append(lambda: wait_for([("U", t)] + ([("L", 31)] if t == 0 else [])))
        P = Asm()
        P("v_and_b32 v12, s40, %s" % v(u0 + 1))
        P("v_lshlrev_b32 v13, 16, %s" % v(u0 + 1))
        P("v_and_b32 v14, s40, %s" % v(u0))
        P("v_lshlrev_b32 v15, 16, %s" % v(u0))
        P("v_pk_mul_f32 v[12:13], v[12:13], v[18:19]")
        P("v_pk_mul_f32 v[14:15], v[14:15], v[18:19]")
        round_pair(P, 12, 13, 16, 40)
        round_pair(P, 14, 15, 17, 40)
        round_pair(P, ac, ac + 1, 16, 40)
        round_pair(P, ac + 2, ac + 3, 17, 40)
        P("v_pk_add_f32 v[12:13], v[12:13], %s" % v(ac, 2))
        P("v_pk_add_f32 v[14:15], v[14:15], %s" % v(ac + 2, 2))
        P("v_cvt_pk_bf16_f32 v16, v12, v13")
        P("v_cvt_pk_bf16_f32 v17, v14, v15")
        for l in P.lines:
            add_plain(l.strip())
        fill.append(lambda: issue(("Y", t), "ds_write_b64 v6, v[16:17] offset:%d" % (512 * t)))
        fill.append(lambda: A("v_mov_b32 v8, %d" % (t + 1)))
        for _ in range(3):
            fill.append(lambda: None)
        fill.append(lambda: wait_for([("Y", t)]))
        fill.append(lambda: issue(("F", t), "ds_write_b32 v10, v8"))
    for o in build_ops(W1, 0, 1024): add_plain(o)
    n1 = len(fill)
    for o in build_ops(W0, 0, 0): add_plain(o)
    n0 = len(fill)
    for q, lst in lo_steps:
        wait_for([("A", n)] + [("L", sl) for _, sl in lst])
        k = len(lst)
        per = 2 if k >= 2 else 1
        for i, (t, sl) in enumerate(lst):
            A("v_mfma_f32_16x16x32_bf16 %s, %s, %s, %s" % (v(ACC + 4 * t, 4), v(RING + 4 * (n % NR), 4), bslot(sl), v(ACC + 4 * t, 4)))
            if i < k - 1 or k == 1:
                emit_fill(per)
        if nextA < len(aseq):
            qq = aseq[nextA]
            if nextA >= 33 and qq >= 33:
                assert cnt[0] >= n1
            if nextA >= 33 and qq >= 49:
                assert cnt[0] >= n0
            a_issue(nextA); nextA += 1
        n += 1
        if q % 8 == 4:
            t = q // 8
            issue(("U", t), "ds_read_b64 %s, v7 offset:%d" % (v(UREG + 2 * (t % 2), 2), 512 * (7 - t)))
        if q >= 9 and (q - 9) % 8 == 0 and (q - 9) // 8 < 7:
            tile_epilogue((q - 9) // 8)
    A.nop(4)
    st_(A, 6)
    tile_epilogue(7)
    emit_fill(1000)
    st_(A, 7, end=True)
    dbg_time(A, 1)
    A("s_endpgm")

XQ = 208
def h_early_loads(A):
    srd(A, 16, PQ, S * ROWB)
    A("v_and_b32 v201, 255, v0")
    A("s_movk_i32 s63, 1152")
    A("v_mul_lo_u32 v200, v201, s63")
    A("s_lshl_b32 s63, s41, 3")
    A("v_add_u32 v200, s63, v200")
    return 8

def strip_loads(A):
    h_early_loads(A)
    if os.environ.get("NOSTRIP"):
        for t in range(8):
            A("s_nop 0")
            A("buffer_load_dwordx2 %s, v1, s[16:19], 0 offen" % v(XQ + 2 * t, 2))
        return
    A("s_mov_b32 s63, 0")
    for t in range(8):
        A("buffer_load_dwordx2 %s, v200, s[16:19], s63 offen" % v(XQ + 2 * t, 2))
        A("s_add_u32 s63, s63, %d" % (256 * 1152))

def q_prefetch(A):
    srd(A, 16, PQ, S * ROWB)
    Ln = A.newlabel("noqpf")
    A("v_and_b32 v202, 15, v0")
    A("v_bfe_u32 v203, v0, 4, 2")
    A("v_mul_u32_u24 v203, 1152, v203")
    A("v_lshl_add_u32 v202, v202, 4, v203")
    A("s_mul_i32 s63, s30, 144")
    A("s_and_b32 s63, s63, 0xffffff80")
    A("s_min_u32 s64, s31, 15")
    A("s_lshl_b32 s64, s64, 7")
    A("s_sub_u32 s65, s42, 4")
    A("s_lshl_b32 s65, s65, 5")
    A("s_add_u32 s64, s64, s65")
    A("s_mul_i32 s64, s64, 1152")
    A("s_add_u32 s63, s63, s64")
    for i in range(8):
        A("buffer_load_dwordx4 v[204:207], v202, s[16:19], s63 offen")
        A("s_add_u32 s63, s63, %d" % (4 * 1152))

def gen_H(A):
    srd(A, 20, POUT, S * ROWB)
    T = "s%d" % TAG
    A("v_and_b32 v1, 63, v0")
    A("v_mov_b32 v5, v201")
    A("v_mov_b32 v6, v200")
    A("v_lshlrev_b32 v7, 3, v5")
    RG = 160
    X, XN, T1 = 64, 96, 128
    A("s_setprio %d" % int(os.environ.get("HPRIO", 1)))
    for r in range(32):
        A("v_mov_b32 %s, 0" % v(X + r))
    A("v_lshlrev_b32 v8, 4, v1")
    A("v_lshrrev_b32 v9, 4, v1")
    A("v_lshlrev_b32 v9, 3, v9")
    A("s_lshl_b32 s48, s44, 12")
    A("s_add_u32 s48, s48, %d" % F_XT)
    A("s_lshl_b32 s50, s44, 7")
    A("s_add_u32 s50, s50, %d" % F_XC)
    P, C, Tm = 224, 240, 244
    A("s_sleep %d" % int(os.environ.get("ROWPRE", 32)))
    Lp = A.newlabel("hp"); Ld = A.newlabel("hok")
    A("s_mov_b32 s52, 0")
    A.label(Lp)
    for i in range(4):
        A("buffer_load_dwordx4 %s, v8, s[36:39], s48 offen offset:%d sc1" % (v(P + 4 * i, 4), 1024 * i))
    for i in range(4):
        A("buffer_load_dword %s, v9, s[36:39], s50 offen offset:%d sc1" % (v(C + i), 32 * i))
    for t in range(8):
        A("s_mov_b32 s51, %d" % (F_ROWG + 2048 * t))
        A("buffer_load_dwordx2 %s, v7, s[36:39], s51 offen sc1" % v(RG + 2 * t, 2))
    A("s_waitcnt vmcnt(8)")
    for i in range(4):
        A("v_xor_b32 %s, %s, %s" % (v(Tm + i), v(P + 4 * i), v(P + 1 + 4 * i)))
    for i in range(4):
        A("v_xor_b32 %s, %s, %s" % (v(Tm + 4 + i), v(P + 2 + 4 * i), v(P + 3 + 4 * i)))
    for i in range(4):
        A("v_xor_b32 %s, %s, %s" % (v(Tm + i), v(Tm + i), v(Tm + 4 + i)))
    row_xor_reduce(A, [Tm, Tm + 1, Tm + 2, Tm + 3])
    for i in range(4):
        A("v_xor_b32 %s, %s, %s" % (v(Tm + i), v(Tm + i), v(C + i)))
    A("v_cmp_eq_u32 vcc, s%d, %s" % (TAG, v(Tm)))
    for i in range(1, 4):
        A("v_cmp_eq_u32 s[54:55], s%d, %s" % (TAG, v(Tm + i)))
        A("s_and_b64 vcc, vcc, s[54:55]")
    A("s_waitcnt vmcnt(0)")
    for r in range(RG + 1, RG + 16, 2):
        A("v_cmp_eq_u32 s[54:55], s%d, %s" % (TAG, v(r)))
        A("s_and_b64 vcc, vcc, s[54:55]")
    A("s_cmp_eq_u64 vcc, -1")
    A("s_cbranch_scc1 %s" % Ld)
    A("s_add_u32 s52, s52, 1")
    A("s_cmp_gt_u32 s52, %d" % POLL_MAX)
    A("s_cbranch_scc1 %s" % Ld)
    A("s_sleep %d" % int(os.environ.get("ROWSLEEP", 8)))
    A("s_branch %s" % Lp)
    A.label(Ld)
    st_(A, 10)
    A("v_mov_b32 v11, %d" % FLAGS)
    A("v_mov_b32 v12, 1")
    lds_signal(A, 4, "v11", "v12")
    lds_wait(A, 4, 4, "v11", "v13", sleep=1)
    st_(A, 2 + 7)
    A("v_lshlrev_b32 v8, 1, v5")
    A("s_lshl_b32 s48, s41, 14")
    A("s_add_u32 s48, s48, %d" % F_XT)
    for c in range(4):
        for t in range(8):
            A("buffer_load_short_d16_hi %s, v8, s[36:39], s48 offen offset:%d sc1" % (v(X + 4 * t + c), 512 * t))
        A("s_add_u32 s48, s48, 4096")
    for t in range(8):
        stats_from_msd(A, RG + 2 * t, 176 + 6 * t, 40)
    A("s_waitcnt vmcnt(0)")
    st_(A, 3)
    for t in range(8):
        st = 176 + 6 * t
        streams = []
        for p in range(2):
            x, xn = X + 4 * t + 2 * p, XN + 4 * t + 2 * p
            tm = 56 + 4 * p
            P = Asm()
            P("v_pk_add_f32 %s, %s, %s" % (v(tm, 2), v(x, 2), v(st, 2)))
            round_pair(P, tm, tm + 1, tm + 2, 40)
            P("v_pk_mul_f32 %s, %s, %s" % (v(xn, 2), v(tm, 2), v(st + 2, 2)))
            P("v_pk_fma_f32 %s, %s, %s, %s" % (v(tm, 2), v(xn, 2), v(st + 4, 2), v(tm, 2)))
            P("v_pk_fma_f32 %s, %s, %s, %s" % (v(xn, 2), v(tm, 2), v(st + 2, 2), v(xn, 2)))
            round_pair(P, xn, xn + 1, tm + 2, 40)
            streams.append([l.strip() for l in P.lines])
        interleave(A, streams)
    st_(A, 4)
    A("v_lshlrev_b32 v9, 1, v5")
    A("v_add_u32 v9, %d, v9" % YOFF)
    A("v_add_u32 v10, %d, v9" % (2 * CH_LDS))
    A("v_mov_b32 v11, %d" % FLAGS)
    for i in range(4):
        A("v_mov_b32 %s, 0" % v(40 + i))
    A("v_and_b32 v12, 7, v5")
    A("v_mul_u32_u24 v12, 4608, v12")
    A("v_bfe_u32 v13, v5, 3, 1")
    A("v_lshl_add_u32 v12, v13, 4, v12")
    A("v_lshrrev_b32 v13, 4, v5")
    A("v_mul_u32_u24 v14, 36864, v13")
    A("v_add_u32 v12, v12, v14")
    A("s_lshl_b32 s51, s41, 5")
    A("s_add_u32 s51, s51, %d" % F_PARTG)
    A("v_add_u32 v12, s51, v12")
    A("v_add_u32 v14, %d, v12" % (64 * 36864))
    A("v_cmp_gt_u32 vcc, 8, v13")
    A.nop(2)
    A("v_cndmask_b32 v14, v12, v14, vcc")
    A("s_mov_b64 s[56:57], vcc")
    A("v_and_b32 v8, 7, v1")
    A("v_lshlrev_b32 v8, 3, v8")
    def sel_loads():
        A("s_movk_i32 s51, %d" % F_SELG)
        A("buffer_load_dwordx2 v[180:181], v8, s[36:39], s51 offen sc1")
    sel_loads_m = sel_loads
    def part_loads():
        A("s_mov_b32 s51, 0")
        for i in range(4):
            A("buffer_load_dwordx4 %s, v12, s[36:39], s51 offen sc1" % v(160 + 4 * i, 4))
            A("s_add_u32 s51, s51, %d" % (16 * 36864))
        A("buffer_load_dwordx4 v[176:179], v14, s[36:39], 0 offen sc1")
    A("s_mov_b32 s59, 0")
    A("s_setprio %d" % int(os.environ.get("HPRIO2", 0)))
    for t in range(8):
        Lw = A.newlabel("yw"); Lg = A.newlabel("yg")
        A("s_cmp_gt_u32 s59, %d" % t)
        A("s_cbranch_scc1 %s" % Lg)
        A("s_mov_b32 s52, 0")
        A.label(Lw)
        A("ds_read_b128 v[16:19], v11")
        A("s_add_u32 s52, s52, 1")
        A("s_waitcnt lgkmcnt(0)")
        A("v_min_u32 v16, v16, v17")
        A("v_min3_u32 v16, v16, v18, v19")
        A("s_cmp_gt_u32 s52, %d" % POLL_MAX)
        A("v_readfirstlane_b32 s59, v16")
        A("s_cbranch_scc1 %s" % Lg)
        A("s_nop 1")
        A("s_cmp_gt_u32 s59, %d" % t)
        A("s_cbranch_scc1 %s" % Lg)
        A("s_sleep 1")
        A("s_branch %s" % Lw)
        A.label(Lg)
        if os.environ.get("HST") and t in (0, 2, 4, 7):
            st_(A, {0: 11, 2: 12, 4: 13, 7: 14}[t])
        A("ds_read_u16_d16_hi v40, v9 offset:%d" % (512 * t))
        A("ds_read_u16_d16_hi v41, v9 offset:%d" % (512 * t + CH_LDS))
        A("ds_read_u16_d16_hi v42, v10 offset:%d" % (512 * t))
        A("ds_read_u16_d16_hi v43, v10 offset:%d" % (512 * t + CH_LDS))
        A("s_waitcnt lgkmcnt(0)")
        streams = []
        for p in range(2):
            x, xn, t1 = X + 4 * t + 2 * p, XN + 4 * t + 2 * p, T1 + 4 * t + 2 * p
            tm = 56 + 4 * p
            P = Asm()
            P("v_pk_mul_f32 %s, %s, %s" % (v(tm, 2), v(xn, 2), v(40 + 2 * p, 2)))
            round_pair(P, tm, tm + 1, tm + 2, 40)
            P("v_pk_add_f32 %s, %s, %s" % (v(t1, 2), v(x, 2), v(tm, 2)))
            round_pair(P, t1, t1 + 1, tm + 2, 40)
            P("v_pk_add_f32 %s, %s, %s" % (v(tm, 2), v(t1, 2), v(xn, 2)))
            P("v_cvt_pk_bf16_f32 %s, %s, %s" % (v(44 + 2 * (t % 2) + p), v(tm), v(tm + 1)))
            streams.append([l.strip() for l in P.lines])
        interleave(A, streams)
        A("s_mov_b32 s51, %d" % (t * 256 * 1152))
        A("buffer_store_dwordx2 %s, v6, s[20:23], s51 offen" % v(44 + 2 * (t % 2), 2) + os.environ.get("OUTPOL", ""))
        if t == 5:
            sel_loads()
    st_(A, 5)
    masked_poll(A, "pp", part_loads, [161, 163, 165, 167, 169, 171, 173, 175, 177, 179], int(os.environ.get("PPSLEEP", 3)), 0)
    st_(A, 6)
    A("v_add_f32 v16, v160, v164"); A("v_add_f32 v17, v162, v166")
    A("v_add_f32 v16, v16, v168");  A("v_add_f32 v17, v17, v170")
    A("v_add_f32 v16, v16, v172");  A("v_add_f32 v17, v17, v174")
    A("v_cndmask_b32 v18, 0, v176, s[56:57]"); A("v_cndmask_b32 v19, 0, v178, s[56:57]")
    A("v_add_f32 v16, v16, v18");   A("v_add_f32 v17, v17, v19")
    A("v_mov_b32 v18, v16"); A("v_mov_b32 v19, v17")
    A.nop(1)
    A("v_permlane16_swap_b32 v16, v18"); A("v_permlane16_swap_b32 v17, v19")
    A.nop(1)
    A("v_add_f32 v16, v16, v18"); A("v_add_f32 v17, v17, v19")
    A("v_mov_b32 v18, v16"); A("v_mov_b32 v19, v17")
    A.nop(1)
    A("v_permlane32_swap_b32 v16, v18"); A("v_permlane32_swap_b32 v17, v19")
    A.nop(1)
    A("v_add_f32 v16, v16, v18"); A("v_add_f32 v17, v17, v19")
    A("v_and_b32 v18, 7, v1")
    A("v_lshlrev_b32 v18, 4, v18")
    A("v_bfe_u32 v19, v1, 3, 1")
    A("v_lshl_add_u32 v18, v19, 3, v18")
    A("s_lshl_b32 s51, s43, 7")
    A("s_add_u32 s51, s51, %d" % RED)
    A("v_add_u32 v18, s51, v18")
    A("s_mov_b64 exec, 0xffff")
    A("ds_write_b64 v18, v[16:17]")
    A("s_mov_b64 exec, -1")
    first_then_poll(A, "sel", sel_loads_m, [181], 4, "-1", first_cnt=63)
    A("v_lshrrev_b32 v45, 16, v180")
    A("v_and_b32 v46, 0x8000, v45")
    A("v_mov_b32 v47, 0xffff")
    A("v_mov_b32 v48, 0x8000")
    A("v_cmp_ne_u32 vcc, 0, v46")
    A("v_and_b32 v44, 0xffff, v180")
    A("v_sub_u32 v44, 2047, v44")
    A("v_cndmask_b32 v47, v47, v48, vcc")
    A("v_xor_b32 v45, v45, v47")
    A("v_lshlrev_b32 v45, 16, v45")
    A("v_mul_f32 v45, 0xbfb8aa3b, v45")
    A("v_exp_f32 v45, v45")
    A.nop(1)
    A("v_add_f32 v45, 1.0, v45")
    A("v_rcp_f32 v45, v45")
    A.nop(1)
    A("v_cvt_pk_bf16_f32 v45, v45, v45")
    A("v_lshlrev_b32 v45, 16, v45")
    A("s_waitcnt lgkmcnt(0)")
    A("s_barrier")
    st_(A, 7)
    for i in range(8):
        Ls = A.newlabel("ns")
        A("v_readlane_b32 s51, v44, %d" % i)
        A("v_readlane_b32 s59, v45, %d" % i)
        A("v_mov_b32 v52, %d" % (RED + 16 * i))
        A("s_bfe_u32 s58, s51, 0x20006")
        A("s_cmp_lg_u32 s58, s43")
        A("s_cbranch_scc1 %s" % Ls)
        for w in range(4):
            A("ds_read_b128 %s, v52 offset:%d" % (v(20 + 4 * w, 4), 128 * w))
        A("s_lshr_b32 s58, s51, 8")
        A("s_mul_i32 s60, s58, %d" % (256 * 1152))
        A("s_lshl_b32 s58, s58, 2")
        A("s_and_b32 s51, s51, 255")
        A("v_cmp_eq_u32 vcc, s51, v5")
        A("s_set_gpr_idx_on s58, gpr_idx(SRC0)")
        for k in range(4):
            A("v_mov_b32 %s, %s" % (v(36 + k), v(T1 + k)))
        for k in range(4):
            A("v_mov_b32 %s, %s" % (v(40 + k), v(XN + k)))
        A("s_set_gpr_idx_off")
        A("s_waitcnt lgkmcnt(0)")
        for k in range(4):
            A("v_add_f32 %s, %s, %s" % (v(20 + k), v(20 + k), v(24 + k)))
            A("v_add_f32 %s, %s, %s" % (v(28 + k), v(28 + k), v(32 + k)))
        for k in range(4):
            A("v_add_f32 %s, %s, %s" % (v(20 + k), v(20 + k), v(28 + k)))
        A.nop(1)
        round_pair(A, 20, 21, 24, 40); round_pair(A, 22, 23, 25, 40)
        for k in range(4):
            A("v_mul_f32 %s, s59, %s" % (v(20 + k), v(20 + k)))
        A.nop(1)
        round_pair(A, 20, 21, 24, 40); round_pair(A, 22, 23, 25, 40)
        for k in range(4):
            A("v_add_f32 %s, %s, %s" % (v(20 + k), v(20 + k), v(40 + k)))
        A.nop(1)
        round_pair(A, 20, 21, 24, 40); round_pair(A, 22, 23, 25, 40)
        for k in range(4):
            A("v_add_f32 %s, %s, %s" % (v(20 + k), v(20 + k), v(36 + k)))
        A.nop(1)
        A("v_cvt_pk_bf16_f32 v24, v20, v21")
        A("v_cvt_pk_bf16_f32 v25, v22, v23")
        A("s_mov_b64 exec, vcc")
        A("buffer_store_dwordx2 v[24:25], v6, s[20:23], s60 offen")
        A("s_mov_b64 exec, -1")
        A.label(Ls)
    st_(A, 8, end=True)
    dbg_time(A, 2)
    if os.environ.get("CALD"):
        L = A.newlabel("cal")
        A.label(L)
        A("s_memrealtime s[96:97]")
        A("s_waitcnt lgkmcnt(0)")
        A("s_sub_u32 s96, s96, s100")
        A("s_cmp_lt_u32 s96, %d" % int(os.environ["CALD"]))
        A("s_cbranch_scc1 %s" % L)
    A("s_endpgm")

def gen_conv_wg(A):
    A("s_and_b32 s43, s42, 3")
    A("s_lshl_b32 s44, s41, 2")
    A("s_add_u32 s44, s44, s43")
    A("s_mul_i32 s45, s43, %d" % CH_LDS)
    Lm = A.newlabel("cm"); Lh = A.newlabel("ch"); Lj = A.newlabel("cj")
    dbg_time(A, 0)
    A("s_lshr_b32 s60, s41, 4")
    A("s_and_b32 s61, s41, 15")
    A("v_mov_b32 v200, 0"); A("v_mov_b32 v201, 0")
    A("s_cmp_ge_u32 s42, 4")
    A("s_cbranch_scc1 %s" % Lh)
    A("s_setprio 2")
    gen_kv_issue(A)
    gen_kv_addr(A)
    gen_kv_addr2(A)
    finish_tag(A)
    flags_barrier(A)
    A("s_waitcnt vmcnt(0)")
    A("s_branch %s" % Lj)
    A.label(Lh)
    gen_kv_addr(A)
    gen_kv_addr2(A)
    finish_tag(A)
    A("s_waitcnt vmcnt(0)")
    A.label(Lj)
    gen_kv_compute(A)
    publish_alive(A)
    A("s_barrier")
    A("s_cmp_lt_u32 s42, 4")
    A("s_cbranch_scc1 %s" % Lm)
    h_early_loads(A)
    gen_H(A)
    A.label(Lm)
    gen_M(A)

def finish_tag(A):
    A("s_waitcnt lgkmcnt(0)")
    A("s_mul_i32 s%d, s%d, 0x9E3779B1" % (TAG, TAG))
    A("s_add_u32 s%d, s%d, 0x7F4A7C15" % (TAG, TAG))

def flags_barrier(A, alive=False):
    A("v_mov_b32 v36, 0")
    A("v_mov_b32 v37, %d" % FLAGS)
    A("v_mov_b32 v38, 0"); A("v_mov_b32 v39, 0"); A("v_mov_b32 v40, 0"); A("v_mov_b32 v41, 0")
    A("ds_write_b128 v37, v[38:41]")
    A("ds_write_b128 v37, v[38:41] offset:16")
    A("s_waitcnt lgkmcnt(0)")

def publish_alive(A):
    Ln = A.newlabel("noalive")
    A("s_cmp_lg_u32 s42, 0")
    A("s_cbranch_scc1 %s" % Ln)
    A("s_lshl_b32 s63, s41, 2")
    A("s_add_u32 s63, s63, %d" % F_ALIVE)
    A("v_mov_b32 v37, s%d" % TAG)
    A("v_mov_b32 v36, 0")
    A("s_mov_b64 exec, 1")
    A("buffer_store_dword v37, v36, s[36:39], s63 offen sc1")
    A("s_mov_b64 exec, -1")
    A.label(Ln)


BITONIC8 = [(0,4),(1,5),(2,6),(3,7),(0,2),(1,3),(4,6),(5,7),(0,1),(2,3),(4,5),(6,7)]
def merge8(A, a, b, out, spare, dpp=None):
    for i in range(7, -1, -1):
        if dpp:
            A("v_max_u32_dpp %s, %s, %s %s bank_mask:0xf" % (v(out[i]), v(b[7 - i]), v(a[i]), dpp))
        else:
            A("v_max_u32 %s, %s, %s" % (v(out[i]), v(a[i]), v(b[7 - i])))
    return sort_desc(A, out, spare, BITONIC8)

def top8_wave(A, regs, spare, other):
    cur, oth = list(regs), list(other)
    for ctl in ("quad_perm:[1,0,3,2] row_mask:0xf", "quad_perm:[2,3,0,1] row_mask:0xf", "row_half_mirror row_mask:0xf",
                "row_mirror row_mask:0xf", "row_bcast:15 row_mask:0xa", "row_bcast:31 row_mask:0xc"):
        A.nop(1)
        free = list(cur)
        new, spare2 = merge8(A, cur, cur, oth, spare, dpp=ctl)
        pool = [r for r in (free + oth + [spare]) if r not in new]
        spare = pool[0]
        oth = pool[1:9]
        cur = new
    return cur, spare, oth

L_CNT = 162368

def lds_signal(A, k, vaddr, vone):
    A("s_mov_b64 exec, 1")
    A("ds_add_u32 %s, %s offset:%d" % (vaddr, vone, 4 * k))
    A("s_mov_b64 exec, -1")

def lds_wait(A, k, n, vaddr, vtmp, sleep=0):
    L = A.newlabel("lw"); Ld = A.newlabel("lwd")
    A("s_mov_b32 s52, 0")
    A.label(L)
    A("ds_read_b32 %s, %s offset:%d" % (vtmp, vaddr, 4 * k))
    A("s_add_u32 s52, s52, 1")
    A("s_waitcnt lgkmcnt(0)")
    A("s_cmp_gt_u32 s52, %d" % (POLL_MAX * 8))
    A("v_readfirstlane_b32 s51, %s" % vtmp)
    A("s_cbranch_scc1 %s" % Ld)
    A("s_nop 1")
    A("s_cmp_ge_u32 s51, %d" % n)
    A("s_cbranch_scc1 %s" % Ld)
    if sleep:
        A("s_sleep %d" % sleep)
    A("s_branch %s" % L)
    A.label(Ld)

def gen_moe_wg(A):
    T = "s%d" % TAG
    A("v_and_b32 v1, 63, v0")
    A("v_and_b32 v4, 255, v0")
    A("v_mov_b32 v8, %d" % L_CNT)
    A("v_mov_b32 v9, 1")
    Lt = A.newlabel("twave")
    A("s_cmp_ge_u32 s42, 4")
    A("s_cbranch_scc1 %s" % Lt)
    G, U, WD = 16, 88, 160
    A("v_mov_b32 v232, 0"); A("v_mov_b32 v233, 0"); A("v_mov_b32 v234, 0"); A("v_mov_b32 v235, 0")
    A("ds_write_b128 v8, v[232:235]"); A("ds_write_b128 v8, v[232:235] offset:16")
    srd(A, 48, PWG, D * F * 2)
    srd(A, 52, PWU, D * F * 2)
    srd(A, 56, PWD, D * F * 2)
    A("v_lshrrev_b32 v5, 3, v1")
    A("v_mul_u32_u24 v5, 9216, v5")
    A("v_bfe_u32 v6, v1, 4, 1")
    A("s_and_b32 s43, s42, 1")
    A("s_lshl_b32 s43, s43, 1")
    A("v_or_b32 v6, s43, v6")
    A("v_lshlrev_b32 v6, 1, v6")
    A("v_and_b32 v7, 7, v1")
    A("v_xor_b32 v6, v6, v7")
    A("v_lshl_add_u32 v5, v6, 4, v5")
    A("s_lshl_b32 s43, s41, 7")
    A("s_mul_i32 s44, s42, 73728")
    A("s_add_u32 s43, s43, s44")
    A("s_lshl_b32 s44, s42, 10")
    A("s_waitcnt lgkmcnt(0)")
    A("s_barrier")
    for j in range(18):
        A("s_mov_b32 m0, s44")
        A("s_add_u32 s45, s44, %d" % L_WU)
        A("buffer_load_dwordx4 v5, s[48:51], s43 offen lds" + NTS)
        A("s_mov_b32 m0, s45")
        A("s_add_u32 s44, s44, 4096")
        A("buffer_load_dwordx4 v5, s[52:55], s43 offen lds" + NTS)
        A("s_add_u32 s43, s43, %d" % (4 * 73728))
    A("v_lshrrev_b32 v6, 3, v4")
    A("v_mul_u32_u24 v7, 1152, v6")
    A("v_and_b32 v12, 7, v4")
    A("v_lshl_add_u32 v236, v12, 4, v7")
    A("v_bfe_u32 v14, v6, 1, 1")
    A("v_bfe_u32 v11, v6, 3, 1")
    A("v_lshl_add_u32 v14, v11, 1, v14")
    A("v_lshlrev_b32 v14, 1, v14")
    A("v_xor_b32 v14, v14, v12")
    A("v_lshl_add_u32 v14, v14, 4, v7")
    A("v_add_u32 v15, 36864, v14")
    A("v_and_b32 v2, 15, v0")
    A("v_bfe_u32 v3, v0, 4, 2")
    A("v_lshrrev_b32 v10, 2, v2")
    A("v_lshl_add_u32 v11, v3, 3, v10")
    A("v_bfe_u32 v12, v2, 3, 1")
    A("v_and_b32 v13, 1, v3")
    A("v_lshl_add_u32 v12, v13, 1, v12")
    A("v_xor_b32 v12, s42, v12")
    A("v_and_b32 v13, 3, v2")
    A("v_lshlrev_b32 v13, 3, v13")
    A("v_lshl_add_u32 v12, v12, 5, v13")
    A("v_lshl_add_u32 v5, v11, 7, v12")
    A("v_add_u32 v6, 36864, v5")
    A("v_mul_u32_u24 v7, 1152, v11")
    A("v_add_u32 v7, v7, v12")
    A("v_add_u32 v10, 36864, v7")
    st_(A, 1)
    A("s_waitcnt vmcnt(0)")
    lds_signal(A, 0, "v8", "v9")
    A("s_mul_i32 s43, s41, 73728")
    A("s_add_u32 s44, s43, 36864")
    for k in range(9):
        A("buffer_load_dwordx4 %s, v236, s[56:59], s43 offen offset:%d" % (v(WD + 4 * k, 4), 128 * k) + NTS)
    for k in range(9):
        A("buffer_load_dwordx4 %s, v236, s[56:59], s44 offen offset:%d" % (v(WD + 36 + 4 * k, 4), 128 * k) + NTS)
    lds_wait(A, 0, 4, "v8", "v11")
    st_(A, 2)
    dbg_time(A, 7)
    A("v_add_u32 v12, %d, v5" % L_WU)
    A("v_add_u32 v13, %d, v6" % L_WU)
    for kk in range(18):
        bg, bu, ko = ("v5", "v12", kk) if kk < 9 else ("v6", "v13", kk - 9)
        A("ds_read_b64_tr_b16 %s, %s offset:%d" % (v(G + 4 * kk, 2), bg, 4096 * ko))
        A("ds_read_b64_tr_b16 %s, %s offset:%d" % (v(G + 4 * kk + 2, 2), bg, 4096 * ko + 512))
        A("ds_read_b64_tr_b16 %s, %s offset:%d" % (v(U + 4 * kk, 2), bu, 4096 * ko))
        A("ds_read_b64_tr_b16 %s, %s offset:%d" % (v(U + 4 * kk + 2, 2), bu, 4096 * ko + 512))
    A("s_waitcnt lgkmcnt(0)")
    lds_signal(A, 1, "v8", "v9")
    st_(A, 7)
    A("s_waitcnt vmcnt(0)")
    lds_wait(A, 1, 4, "v8", "v11")
    for k in range(9):
        A("ds_write_b128 v14, %s offset:%d" % (v(WD + 4 * k, 4), 128 * k))
    for k in range(9):
        A("ds_write_b128 v15, %s offset:%d" % (v(WD + 36 + 4 * k, 4), 128 * k))
    A("s_waitcnt lgkmcnt(0)")
    lds_signal(A, 2, "v8", "v9")
    lds_wait(A, 2, 4, "v8", "v11")
    for k in range(9):
        r = WD + 8 * k
        A("ds_read_b64_tr_b16 %s, v7 offset:%d" % (v(r, 2), 128 * k))
        A("ds_read_b64_tr_b16 %s, v7 offset:%d" % (v(r + 2, 2), 128 * k + 4 * 1152))
        A("ds_read_b64_tr_b16 %s, v10 offset:%d" % (v(r + 4, 2), 128 * k))
        A("ds_read_b64_tr_b16 %s, v10 offset:%d" % (v(r + 6, 2), 128 * k + 4 * 1152))
    A("v_and_b32 v12, 7, v2")
    A("v_mul_u32_u24 v5, %d, v12" % XSTR)
    A("v_lshl_add_u32 v5, v3, 4, v5")
    A("v_add_u32 v5, %d, v5" % L_X)
    A("v_mul_u32_u24 v6, %d, v2" % HSTR)
    A("v_lshl_add_u32 v6, v3, 3, v6")
    A("s_lshl_b32 s43, s42, 5")
    A("s_add_u32 s43, s43, %d" % L_HS)
    A("v_add_u32 v6, s43, v6")
    A("v_mul_u32_u24 v7, %d, v12" % HSTR)
    A("v_lshl_add_u32 v7, v3, 4, v7")
    A("v_add_u32 v7, %d, v7" % L_HS)
    A("v_mul_u32_u24 v10, 4608, v12")
    A("v_lshl_add_u32 v10, v3, 5, v10")
    A("v_bfe_u32 v13, v2, 3, 1")
    A("v_lshl_add_u32 v10, v13, 4, v10")
    A("v_cmp_eq_u32 s[56:57], 1, v13")
    A("s_mul_i32 s43, s41, 36864")
    A("s_lshl_b32 s44, s42, 7")
    A("s_add_u32 s43, s43, s44")
    A("s_add_u32 s43, s43, %d" % F_PARTG)
    A("v_mov_b32 v14, %d" % L_TAG)
    for i in range(8):
        A("v_mov_b32 %s, 0" % v(232 + i))
    A("s_waitcnt lgkmcnt(0)")
    st_(A, 3)
    lds_wait(A, 4, 4, "v8", "v11")
    st_(A, 4)
    A("ds_read_b32 v15, v14")
    XR = 240
    for kk in range(3):
        A("ds_read_b128 %s, v5 offset:%d" % (v(XR + 4 * kk, 4), 64 * kk))
    for kk in range(18):
        if kk + 3 < 18:
            A("ds_read_b128 %s, v5 offset:%d" % (v(XR + 4 * ((kk + 3) % 4), 4), 64 * (kk + 3)))
        A("s_waitcnt lgkmcnt(%d)" % min(3, 17 - kk))
        x = v(XR + 4 * (kk % 4), 4)
        A("v_mfma_f32_16x16x32_bf16 v[232:235], %s, %s, v[232:235]" % (v(G + 4 * kk, 4), x))
        A("v_mfma_f32_16x16x32_bf16 v[236:239], %s, %s, v[236:239]" % (v(U + 4 * kk, 4), x))
    A("v_readfirstlane_b32 %s, v15" % T)
    A.nop(6)
    round_pair(A, 232, 233, 16, 40); round_pair(A, 234, 235, 17, 40)
    for i in range(4):
        A("v_mul_f32 %s, 0xbfb8aa3b, %s" % (v(20 + i), v(232 + i)))
    for i in range(4):
        A("v_exp_f32 %s, %s" % (v(20 + i), v(20 + i)))
    round_pair(A, 236, 237, 16, 40); round_pair(A, 238, 239, 17, 40)
    for i in range(4):
        A("v_add_f32 %s, 1.0, %s" % (v(20 + i), v(20 + i)))
    for i in range(4):
        A("v_rcp_f32 %s, %s" % (v(20 + i), v(20 + i)))
    A.nop(1)
    for i in range(4):
        A("v_mul_f32 %s, %s, %s" % (v(232 + i), v(232 + i), v(20 + i)))
    A.nop(1)
    round_pair(A, 232, 233, 16, 40); round_pair(A, 234, 235, 17, 40)
    for i in range(4):
        A("v_mul_f32 %s, %s, %s" % (v(232 + i), v(232 + i), v(236 + i)))
    A.nop(1)
    A("v_cvt_pk_bf16_f32 v16, v232, v233")
    A("v_cvt_pk_bf16_f32 v17, v234, v235")
    A("v_cmp_gt_u32 vcc, 8, v2")
    A("s_and_saveexec_b64 s[44:45], vcc")
    A("ds_write_b64 v6, v[16:17]")
    A("s_mov_b64 exec, s[44:45]")
    for k in range(9):
        A("v_mov_b32 %s, %s" % (v(24 + 4 * k + 1), T)); A("v_mov_b32 %s, %s" % (v(24 + 4 * k + 3), T))
    A("s_waitcnt lgkmcnt(0)")
    lds_signal(A, 5, "v8", "v9")
    lds_wait(A, 5, 4, "v8", "v11")
    st_(A, 5)
    A("ds_read_b128 v[16:19], v7")
    A("ds_read_b128 v[20:23], v7 offset:64")
    A("s_waitcnt lgkmcnt(0)")
    AC = 88
    for k in range(9):
        r = WD + 8 * k
        A("v_mfma_f32_16x16x32_bf16 %s, %s, v[16:19], 0" % (v(AC + 4 * k, 4), v(r, 4)))
    for k in range(9):
        r = WD + 8 * k
        A("v_mfma_f32_16x16x32_bf16 %s, %s, v[20:23], %s" % (v(AC + 4 * k, 4), v(r + 4, 4), v(AC + 4 * k, 4)))
    for k in range(9):
        ac, o = AC + 4 * k, 24 + 4 * k
        A("v_cndmask_b32 %s, %s, %s, s[56:57]" % (v(o), v(ac), v(ac + 2)))
        A("v_cndmask_b32 %s, %s, %s, s[56:57]" % (v(o + 2), v(ac + 1), v(ac + 3)))
        A("buffer_store_dwordx4 %s, v10, s[36:39], s43 offen offset:%d sc1" % (v(o, 4), 512 * (k % 8)))
        if k == 7:
            A("s_add_u32 s43, s43, 4096")
    st_(A, 6, end=True)
    dbg_time(A, 3)
    A("s_endpgm")
    A.label(Lt)
    A("s_setprio 3")
    A("s_lshl_b32 s60, s41, 2")
    A("s_add_u32 s60, s60, s42")
    A("s_sub_u32 s60, s60, 4")
    Q, WR, X = gen_ln(A)
    A("s_barrier")
    finish_tag(A)
    gen_ln_compute(A, Q, WR, X)
    A("s_setprio %d" % int(os.environ.get("TPRIO", 1)))
    srd(A, 16, PQ, S * ROWB)
    A("v_and_b32 v1, 63, v0")
    A("v_and_b32 v4, 255, v0")
    A("v_mov_b32 v8, %d" % L_CNT)
    A("v_mov_b32 v9, 1")
    A("v_lshlrev_b32 v15, 2, v1")
    A("v_lshlrev_b32 v16, 4, v1")
    A("s_and_b32 s43, s42, 3")
    A("s_lshl_b32 s43, s43, 12")
    A("v_add_u32 v16, s43, v16")
    def key_loads():
        A("s_movk_i32 s43, %d" % F_KEYG)
        for i in range(4):
            A("buffer_load_dwordx4 %s, v16, s[36:39], s43 offen offset:%d sc1" % (v(40 + 4 * i, 4), 1024 * i))
    masked_poll(A, "key", key_loads, list(range(41, 56, 2)), int(os.environ.get("KEYSLEEP", 8)), int(os.environ.get("KEYPRE", 70)))
    A("s_setprio 3")
    st_(A, 3)
    dbg_time(A, 6)
    regs, sp = sort_desc(A, range(40, 56, 2), 41, SORT8)
    SK = 60
    free = [r for r in range(40, 57) if r not in regs and r != sp]
    cur, sp, oth = top8_wave(A, regs, sp, free[:8])
    for i in range(8):
        A("v_mov_b32 %s, %s" % (v(64 + i), v(cur[i])))
    A("s_and_b32 s43, s42, 3")
    A("s_lshl_b32 s43, s43, 5")
    A("s_add_u32 s43, s43, %d" % L_CAND)
    A("v_mov_b32 v16, s43")
    A("v_mov_b32 v31, %s" % T)
    A("v_mov_b32 v17, %d" % L_TAG)
    A("s_mov_b32 exec_lo, 0")
    A("s_mov_b32 exec_hi, 0x80000000")
    A("ds_write_b128 v16, v[64:67]")
    A("ds_write_b128 v16, v[68:71] offset:16")
    A("ds_write_b32 v17, v31")
    A("s_mov_b64 exec, -1")
    A("s_waitcnt lgkmcnt(0)")
    lds_signal(A, 3, "v8", "v9")
    lds_wait(A, 3, 4, "v8", "v11")
    A("v_mov_b32 v16, %d" % L_CAND)
    for i in range(8):
        A("ds_read_b128 %s, v16 offset:%d" % (v(64 + 4 * i, 4), 16 * i))
    A("s_waitcnt lgkmcnt(4)")
    c01, sp1 = merge8(A, list(range(64, 72)), list(range(72, 80)), list(range(40, 48)), 56)
    A("s_waitcnt lgkmcnt(0)")
    c23, sp2 = merge8(A, list(range(80, 88)), list(range(88, 96)), list(range(48, 56)), 57)
    for i in range(8):
        A("v_max_u32 %s, %s, %s" % (v(64 + i), v(c01[i]), v(c23[7 - i])))
    for i in range(8):
        A("v_readfirstlane_b32 %s, %s" % (s(SK + i), v(64 + i)))
    A.nop(3)
    st_(A, 5)
    A("s_and_b32 s45, s42, 3")
    A("s_mov_b32 s43, s60"); A("s_mov_b32 s44, s61")
    for w in range(1, 4):
        A("s_cmp_eq_u32 s45, %d" % w)
        A("s_cselect_b32 s43, %s, s43" % s(SK + 2 * w))
        A("s_cselect_b32 s44, %s, s44" % s(SK + 2 * w + 1))
    A("v_mov_b32 v16, s43"); A("v_mov_b32 v17, s44")
    A("v_cmp_lt_u32 vcc, 31, v1")
    A.nop(2)
    A("v_cndmask_b32 v16, v16, v17, vcc")
    A("v_and_b32 v16, 0xffff, v16")
    A("v_sub_u32 v16, 2047, v16")
    A("v_and_b32 v17, 31, v1")
    A("s_movk_i32 s43, 1152")
    A("v_mul_lo_u32 v18, v16, s43")
    A("v_lshl_add_u32 v18, v17, 2, v18")
    A("v_lshlrev_b32 v19, 3, v16")
    for i in range(9):
        A("buffer_load_dword %s, v18, s[16:19], 0 offen offset:%d" % (v(20 + i), 128 * i))
    def rg_loads():
        A("s_mov_b32 s43, %d" % F_ROWG)
        A("buffer_load_dwordx2 v[32:33], v19, s[36:39], s43 offen sc1")
    Lns = A.newlabel("nosel")
    A("s_cmp_lg_u32 s41, 0")
    A("s_cbranch_scc1 %s" % Lns)
    A("s_cmp_lg_u32 s42, 4")
    A("s_cbranch_scc1 %s" % Lns)
    for i in range(8):
        A("v_writelane_b32 v30, %s, %d" % (s(SK + i), i))
    A("v_lshlrev_b32 v36, 3, v1")
    A("s_movk_i32 s43, %d" % F_SELG)
    A("s_mov_b64 exec, 0xff")
    A("buffer_store_dwordx2 v[30:31], v36, s[36:39], s43 offen sc1")
    A("s_mov_b64 exec, -1")
    A.label(Lns)
    masked_poll(A, "rg", rg_loads, [33], 2, 0)
    stats_from_msd(A, 32, 64, 70)
    A("v_lshrrev_b32 v38, 5, v4")
    A("v_mul_u32_u24 v38, %d, v38" % XSTR)
    A("v_lshl_add_u32 v38, v17, 2, v38")
    A("v_add_u32 v38, %d, v38" % L_X)
    st_(A, 4)
    for i0 in range(0, 9, 3):
        streams = []
        for i in range(i0, i0 + 3):
            bs = 40 + 8 * (i % 3)
            ops = norm_ops(bs, bs + 2, bs + 4, 20 + i, 64)
            ops.append("v_cvt_pk_bf16_f32 %s, %s, %s" % (v(bs + 6), v(bs + 2), v(bs + 3)))
            ops.append("ds_write_b32 v38, %s offset:%d" % (v(bs + 6), 128 * i))
            streams.append(ops)
        interleave(A, streams)
    A("s_waitcnt lgkmcnt(0)")
    lds_signal(A, 4, "v8", "v9")
    st_(A, 6)
    dbg_time(A, 4)
    Le = A.newlabel("noep")
    A("s_cmp_lg_u32 s41, 0")
    A("s_cbranch_scc1 %s" % Le)
    A("s_cmp_lg_u32 s42, 4")
    A("s_cbranch_scc1 %s" % Le)
    A("s_setprio 0")
    A("v_lshlrev_b32 v16, 2, v1")
    A("v_min_u32 v17, 15, v1")
    A("v_lshlrev_b32 v17, 2, v17")
    def al_loads():
        A("s_movk_i32 s43, %d" % F_ALIVE)
        A("buffer_load_dword v20, v16, s[36:39], s43 offen sc1")
        A("buffer_load_dword v21, v16, s[36:39], s43 offen offset:256 sc1")
        A("buffer_load_dword v22, v17, s[36:39], s43 offen offset:512 sc1")
    masked_poll(A, "al", al_loads, [20, 21, 22], 16, 0)
    A("v_mov_b32 v20, %s" % T)
    A("v_mov_b32 v21, %d" % F_EPOCH)
    A("s_mov_b64 exec, 1")
    A("buffer_store_dword v20, v21, s[36:39], 0 offen sc1")
    A("s_mov_b64 exec, -1")
    A.label(Le)
    A("s_endpgm")

def gen_spare_wg(A):
    A("s_lshl_b32 s60, s41, 3")
    A("s_add_u32 s60, s60, s42")
    A("s_add_u32 s60, s60, 288")
    Lx = A.newlabel("spx")
    A("s_cmp_ge_u32 s60, 512")
    A("s_cbranch_scc1 %s" % Lx)
    Q, WR, X = gen_ln(A)
    finish_tag(A)
    gen_ln_compute(A, Q, WR, X)
    A.label(Lx)
    A("s_endpgm")

def gen_kernel(A, name):
    kernel_header(A, name)
    Ldone = A.newlabel("done"); Lmoe = A.newlabel("moe"); Lsp = A.newlabel("spare")
    A("s_getpc_b64 s[96:97]")
    if os.environ.get("CALD"):
        A("s_memrealtime s[100:101]")
    A("s_cmp_ge_u32 s2, 256")
    A("s_cbranch_scc1 %s" % Ldone)
    A("s_load_dwordx4 s[68:71], s[0:1], %d" % KA_DBG)
    A("s_load_dwordx16 s[72:87], s[0:1], 0")
    A("s_load_dwordx8 s[88:95], s[0:1], %d" % KA_WG)
    A("v_lshrrev_b32 v1, 6, v0")
    A("s_and_b32 s30, s2, 7")
    A("s_lshr_b32 s31, s2, 3")
    A("v_readfirstlane_b32 s42, v1")
    A("s_mov_b32 s40, 0xffff0000")
    if not os.environ.get("NOICPF"):
        Lc = A.newlabel("noic")
        A("s_and_b32 s96, s96, 0xffffff00")
        A("s_and_b32 s97, s97, 0xffff")
        A("s_mov_b32 s98, L_code_end-%s" % name)
        A("s_mov_b32 s99, 0x00020000")
        A("v_and_b32 v243, 63, v0")
        A("v_lshlrev_b32 v243, 4, v243")
        A("s_lshl_b32 s95, s31, 10") if False else None
        A("s_lshl_b32 s3, s31, 10")
        A("v_cmp_lt_u32 vcc, 447, v0")
        A("s_cbranch_vccz %s" % Lc)
        A("buffer_load_dwordx4 v[244:247], v243, s[96:99], s3 offen")
        A.label(Lc)
    A("s_waitcnt lgkmcnt(0)")
    A("s_load_dword s%d, s[%d:%d], %d" % (TAG, PWS, PWS + 1, F_EPOCH))
    srd(A, 36, PWS, WS_SIZE)
    A("s_lshl_b32 s3, s2, 3")
    A("s_add_u32 s3, s3, s42")
    st_(A, 0)
    A("s_cmp_ge_u32 s31, 27")
    A("s_cbranch_scc1 %s" % Lsp)
    A("s_cmp_ge_u32 s31, 18")
    A("s_cbranch_scc1 %s" % Lmoe)
    A("s_mul_i32 s41, s30, 18")
    A("s_add_u32 s41, s41, s31")
    gen_conv_wg(A)
    A.label(Lmoe)
    A("s_mul_i32 s41, s30, 9")
    A("s_add_u32 s41, s41, s31")
    A("s_sub_u32 s41, s41, 18")
    gen_moe_wg(A)
    A.label(Lsp)
    A("s_mul_i32 s41, s30, 5")
    A("s_add_u32 s41, s41, s31")
    A("s_sub_u32 s41, s41, 27")
    gen_spare_wg(A)
    A.label(Ldone)
    A("s_endpgm")
    A.label("L_code_end")
    return kernel_desc(name, 256, 102, 256)
```

```python
from common import *
import common, os
from collections import deque
from conv2 import CS, CH_LDS, H_OFF, POLL_MAX, conv_schedule
from moe2 import wave_max_u32, L_WG, L_WU, L_X, L_HS, L_U, L_CAND, XSTR, HSTR
from moe3 import SORT8, sort_desc, rounds

F_EPOCH = 0x0
F_SELG = 0x100
F_ALIVE = 0x1000
F_KEYG = 0x2000
F_ROWG = 0x8000
F_LNF = 0x6000
F_URC = 0x100000 + 0x300000
F_UR = 0x20000
F_PARTG = 0x500000
F_XT = 0x800000
F_XC = 0x480000
L_TAG = 162304

PQ, PK, PV, PSHK, PSSMK, PSSMD, PWR, PWG, PWU, PWD, POUT, PWS = 72, 74, 76, 78, 80, 82, 86, 88, 90, 92, 94, 70
TAG = 46
QNT = '' if os.environ.get('QDEF') else ' nt'
NTS = '' if os.environ.get('NONT') else ' nt'
LIGHT = os.environ.get("STAMPS") == "2"
def st_(A, n, end=False):
    if LIGHT:
        if n != 0 and not end:
            return
        n = 15 if end else 0
    stamp(A, n, 36, 3, vt=254, st=96)

MISC = 4 * CH_LDS
FLAGS = MISC
SIDE = MISC + 64
RED = SIDE + 256
YOFF = H_OFF
W1, W0 = 20, 28
E_, G_, F_ = 36, 44, 50
UREG = 56
RING, NR, ACC, BS = 64, 6, 88, 120

DBGT = bool(os.environ.get("DBGT"))
def dbg_time(A, slot, invert=False):
    if not DBGT:
        return
    L = A.newlabel("dbgs")
    A("s_and_b32 s100, s42, 3")
    A("s_cmp_lg_u32 s100, 0")
    A("s_cbranch_scc1 %s" % L)
    A("s_cmp_eq_u32 s2, 8")
    A("s_cselect_b32 s100, 1, 0")
    A("s_cmp_eq_u32 s2, 152")
    A("s_cselect_b32 s100, 1, s100")
    A("s_cmp_eq_u32 s100, 0")
    A("s_cbranch_scc1 %s" % L)
    A("s_memrealtime s[96:97]")
    A("s_waitcnt lgkmcnt(0)")
    A("v_mov_b32 v252, s96")
    A("v_mov_b32 v253, %d" % (4 * slot))
    A("s_mov_b64 s[98:99], exec")
    A("s_mov_b64 exec, 1")
    A("global_store_dword v253, v252, s[68:69]")
    A("s_mov_b64 exec, s[98:99]")
    A.label(L)

def poll_head(A, cnt="s52"):
    A("s_mov_b32 %s, 0" % cnt)

def poll_tail(A, Lloop, Ldone, cnt="s52", sleep=1):
    A("s_add_u32 %s, %s, 1" % (cnt, cnt))
    A("s_cmp_gt_u32 %s, %d" % (cnt, POLL_MAX))
    A("s_cbranch_scc1 %s" % Ldone)
    A("s_sleep %d" % sleep)
    A("s_branch %s" % Lloop)

def masked_poll(A, name, emit_loads, tagregs, sleep, pre_sleep=0, full_exec="-1"):
    T = "s%d" % TAG
    Lp = A.newlabel(name + "p"); Ld = A.newlabel(name + "ok")
    if pre_sleep:
        A("s_sleep %d" % pre_sleep)
    A("s_mov_b32 s52, 0")
    A.label(Lp)
    emit_loads()
    A("s_waitcnt vmcnt(0)")
    A("v_cmp_eq_u32 vcc, %s, %s" % (T, v(tagregs[0])))
    for r in tagregs[1:]:
        A("v_cmp_eq_u32 s[54:55], %s, %s" % (T, v(r)))
        A("s_and_b64 vcc, vcc, s[54:55]")
    A("s_andn2_b64 exec, exec, vcc")
    A("s_cbranch_scc0 %s" % Ld)
    A("s_add_u32 s52, s52, 1")
    A("s_cmp_gt_u32 s52, %d" % POLL_MAX)
    A("s_cbranch_scc1 %s" % Ld)
    A("s_sleep %d" % sleep)
    A("s_branch %s" % Lp)
    A.label(Ld)
    A("s_mov_b64 exec, %s" % full_exec)

def first_then_poll(A, name, emit_loads, tagregs, sleep, ex, first_cnt=0):
    T = "s%d" % TAG
    Lp = A.newlabel(name + "p"); Ld = A.newlabel(name + "ok")
    A("s_mov_b32 s52, 0")
    A("s_waitcnt vmcnt(%d)" % first_cnt)
    A.label(Lp)
    A("v_cmp_eq_u32 vcc, %s, %s" % (T, v(tagregs[0])))
    for r in tagregs[1:]:
        A("v_cmp_eq_u32 s[54:55], %s, %s" % (T, v(r)))
        A("s_and_b64 vcc, vcc, s[54:55]")
    A("s_andn2_b64 exec, exec, vcc")
    A("s_cbranch_scc0 %s" % Ld)
    A("s_add_u32 s52, s52, 1")
    A("s_cmp_gt_u32 s52, %d" % POLL_MAX)
    A("s_cbranch_scc1 %s" % Ld)
    A("s_sleep %d" % sleep)
    emit_loads()
    A("s_waitcnt vmcnt(0)")
    A("s_branch %s" % Lp)
    A.label(Ld)
    A("s_mov_b64 exec, -1")

def ln_hint_poll(A, vaddr, r0, sleep, pre):
    def loads():
        A("s_movk_i32 s51, %d" % F_LNF)
        A("buffer_load_dwordx4 %s, %s, s[36:39], s51 offen sc1" % (v(r0, 4), vaddr))
        A("buffer_load_dwordx4 %s, %s, s[36:39], s51 offen offset:1024 sc1" % (v(r0 + 4, 4), vaddr))
    masked_poll(A, "lnh", loads, list(range(r0, r0 + 8)), sleep, pre)

def stats_from_msd(A, g, st, t):
    A("v_and_b32 %s, s40, %s" % (v(st + 4), v(g)))
    A("v_lshlrev_b32 %s, 16, %s" % (v(st), v(g)))
    A("v_rcp_f32 %s, %s" % (v(st + 2), v(st + 4)))
    A("v_xor_b32 %s, 0x80000000, %s" % (v(st), v(st)))
    A("v_xor_b32 %s, 0x80000000, %s" % (v(st + 4), v(st + 4)))
    A("v_fma_f32 %s, %s, %s, 1.0" % (v(t), v(st + 4), v(st + 2)))
    A("v_mov_b32 %s, %s" % (v(st + 1), v(st)))
    A("v_fma_f32 %s, %s, %s, %s" % (v(st + 2), v(t), v(st + 2), v(st + 2)))
    A("v_mov_b32 %s, %s" % (v(st + 5), v(st + 4)))
    A("v_mov_b32 %s, %s" % (v(st + 3), v(st + 2)))

LK, LV, LQ, SG, SX, SGS = 0, 17408, 33792, 50176, 67584, 272

def row_xor_reduce(A, regs):
    for ctl in ("quad_perm:[1,0,3,2]", "quad_perm:[2,3,0,1]", "row_half_mirror", "row_mirror"):
        if len(regs) < 3:
            A.nop(3 - len(regs))
        for r in regs:
            A("v_xor_b32_dpp %s, %s, %s %s row_mask:0xf bank_mask:0xf" % (v(r), v(r), v(r), ctl))

def gen_kv_issue(A):
    srd(A, 48, PK, S * ROWB)
    srd(A, 52, PV, S * ROWB)
    A("v_and_b32 v1, 63, v0")
    A("v_lshrrev_b32 v4, 3, v1")
    A("v_mul_u32_u24 v4, 1152, v4")
    A("v_and_b32 v5, 7, v1")
    A("v_lshl_add_u32 v4, v5, 4, v4")
    A("s_mul_i32 s62, s61, %d" % (128 * 1152))
    A("s_lshl_b32 s63, s60, 7")
    A("s_add_u32 s62, s62, s63")
    A("s_mul_i32 s63, s42, 9216")
    A("s_add_u32 s62, s62, s63")
    A("s_sub_u32 s63, s62, 9216")
    A("s_lshl_b32 s64, s42, 10")
    srd(A, 16, PQ, S * ROWB)
    for i in range(4):
        A("s_mov_b32 m0, s64")
        A("s_add_u32 s65, s64, %d" % LV)
        A("buffer_load_dwordx4 v4, s[48:51], s63 offen lds" + NTS)
        A("s_mov_b32 m0, s65")
        A("s_add_u32 s65, s64, %d" % LQ)
        A("buffer_load_dwordx4 v4, s[52:55], s62 offen lds" + NTS)
        A("s_mov_b32 m0, s65")
        A("s_add_u32 s64, s64, 4096")
        A("buffer_load_dwordx4 v4, s[16:19], s62 offen lds" + NTS)
        A("s_add_u32 s63, s63, %d" % (32 * 1152))
        A("s_add_u32 s62, s62, %d" % (32 * 1152))
    Ln = A.newlabel("nok17")
    A("s_cmp_lg_u32 s42, 0")
    A("s_cbranch_scc1 %s" % Ln)
    A("s_mov_b32 m0, s64")
    A("s_nop 0")
    A("buffer_load_dwordx4 v4, s[48:51], s63 offen lds" + NTS)
    A.label(Ln)

def gen_kv_addr(A):
    srd(A, 56, PSHK, D * 8)
    A("v_and_b32 v2, 31, v0")
    A("s_lshl_b32 s63, s60, 9")
    A("v_lshl_add_u32 v29, v2, 4, s63")
    A("buffer_load_dwordx4 v[32:35], v29, s[56:59], 0 offen")

def gen_kv_addr2(A):
    A("v_lshrrev_b32 v3, 5, v0")
    A("v_lshlrev_b32 v6, 10, v3")
    A("v_lshl_add_u32 v6, v2, 2, v6")
    A("v_mul_u32_u24 v7, %d, v2" % (2 * SGS))
    A("v_sub_u32 v8, 15, v3")
    A("v_lshl_add_u32 v7, v8, 4, v7")
    A("v_add_u32 v7, %d, v7" % SG)
    A("v_bfe_u32 v10, v0, 4, 2")
    A("v_and_b32 v11, 15, v0")
    A("v_mul_u32_u24 v8, %d, v10" % SGS)
    A("v_lshl_add_u32 v8, v11, 4, v8")
    A("s_mul_i32 s63, s42, %d" % (8 * SGS))
    A("s_add_u32 s63, s63, %d" % SG)
    A("v_add_u32 v8, s63, v8")
    A("v_lshlrev_b32 v9, 12, v10")
    A("v_lshl_add_u32 v9, v11, 4, v9")
    A("s_lshl_b32 s63, s60, 6")
    A("s_lshl_b32 s64, s42, 3")
    A("s_add_u32 s63, s63, s64")
    A("s_lshl_b32 s65, s63, 12")
    A("s_lshl_b32 s64, s61, 8")
    A("s_sub_u32 s65, s65, s64")
    A("s_add_u32 s65, s65, %d" % (F_UR + 240 * 16))
    A("v_add_u32 v9, s65, v9")
    A("v_lshlrev_b32 v12, 7, v10")
    A("s_lshl_b32 s65, s63, 7")
    A("s_lshl_b32 s64, s61, 3")
    A("s_sub_u32 s65, s65, s64")
    A("s_add_u32 s65, s65, %d" % (F_URC + 120))
    A("v_add_u32 v12, s65, v12")
    A("v_cmp_eq_u32 s[66:67], 0, v11")
    A("v_mul_u32_u24 v13, %d, v2" % (2 * SGS))
    A("v_lshl_add_u32 v13, v3, 4, v13")
    A("v_add_u32 v13, %d, v13" % SX)
    A("v_lshlrev_b32 v48, 12, v10")
    A("v_lshl_add_u32 v48, v11, 4, v48")
    A("s_lshl_b32 s65, s63, 12")
    A("s_lshl_b32 s64, s61, 8")
    A("s_add_u32 s65, s65, s64")
    A("s_add_u32 s65, s65, %d" % F_XT)
    A("v_add_u32 v48, s65, v48")
    A("v_lshlrev_b32 v49, 7, v10")
    A("s_lshl_b32 s65, s63, 7")
    A("s_lshl_b32 s64, s61, 3")
    A("s_add_u32 s65, s65, s64")
    A("s_add_u32 s65, s65, %d" % F_XC)
    A("v_add_u32 v49, s65, v49")

def gen_kv_compute(A):
    A("s_barrier")
    st_(A, 1)
    dbg_time(A, 8)
    for i in range(11):
        A("ds_read_b32 %s, v6 offset:%d" % (v(14 + i), LK + (5 + i) * 128))
    for i in range(8):
        A("ds_read_b32 %s, v6 offset:%d" % (v(40 + i), LV + i * 128))
    for i in range(8):
        A("ds_read_b32 %s, v6 offset:%d" % (v(144 + i), LQ + i * 128))
    A("v_lshlrev_b32 v54, 16, v32"); A("v_lshlrev_b32 v55, 16, v34")
    A("v_and_b32 v56, s40, v32");    A("v_and_b32 v57, s40, v34")
    A("v_lshlrev_b32 v58, 16, v33"); A("v_lshlrev_b32 v59, 16, v35")
    A("v_and_b32 v60, s40, v33");    A("v_and_b32 v61, s40, v35")
    DOT = bool(os.environ.get("DOT2", "1") != "0")
    W, K, KV = 54, 62, 100
    A("s_mov_b32 s64, 0x05040100"); A("s_mov_b32 s65, 0x07060302")
    if DOT:
        A("v_and_b32 v62, 0xffff, v32"); A("v_lshlrev_b32 v63, 16, v34")
        A("v_lshrrev_b32 v64, 16, v32"); A("v_and_b32 v65, s40, v34")
        A("v_and_b32 v66, 0xffff, v33"); A("v_lshlrev_b32 v67, 16, v35")
        A("v_lshrrev_b32 v68, 16, v33"); A("v_and_b32 v69, s40, v35")
        A("v_mov_b32 v70, 0x3f803f80")
        A("v_mov_b32 v71, 0")
        A("s_waitcnt lgkmcnt(0)")
        for j in range(4):
            A("v_perm_b32 %s, %s, %s, s64" % (v(152 + j), v(144 + 2 * j + 1), v(144 + 2 * j)))
            A("v_perm_b32 %s, %s, %s, s65" % (v(156 + j), v(144 + 2 * j + 1), v(144 + 2 * j)))
        A("ds_write_b128 v13, v[152:155]")
        A("ds_write_b128 v13, v[156:159] offset:%d" % SGS)
        def ch_ops(i, c, t0):
            a_, b_, p_, q_ = t0, t0 + 1, t0 + 2, t0 + 3
            o = []
            d2 = lambda d, x, y, z: "v_dot2_f32_bf16 %s, %s, %s, %s" % (v(d), v(x), v(y), z)
            o.append(d2(a_, 14 + i + 0, 62 + 2 * 3 + c, "0"))
            o.append(d2(b_, 14 + i + 1, 62 + 2 * 2 + c, "0"))
            o.append(d2(q_, 14 + i + 2, 62 + 2 * 1 + c, "0"))
            o.append("v_cvt_pk_bf16_f32 %s, %s, %s" % (v(p_), v(a_), v(b_)))
            o.append(d2(b_, 14 + i + 3, 62 + 2 * 0 + c, "0"))
            o.append(d2(a_, p_, 70, "0"))
            o.append("s_nop 0")
            o.append("v_cvt_pk_bf16_f32 %s, %s, %s" % (v(p_), v(a_), v(q_)))
            o.append("s_nop 0")
            o.append(d2(a_, p_, 70, "0"))
            o.append("s_nop 0")
            o.append("v_cvt_pk_bf16_f32 %s, %s, %s" % (v(p_), v(a_), v(b_)))
            o.append("s_nop 0")
            o.append(d2(a_, p_, 70, "0"))
            o.append("s_nop 0")
            if c == 0:
                o.append("v_cvt_pk_bf16_f32 %s, %s, %s" % (v(p_), v(a_), v(71)))
            else:
                o.append("v_cvt_pk_bf16_f32 %s, %s, %s" % (v(p_), v(71), v(a_)))
            o.append("s_nop 0")
            o.append(d2(KV + 2 * i + c, p_, 40 + i, "0"))
            return [x for x in o if x != "s_nop 0"]
        for i in range(0, 8, 4):
            streams = []
            for ii in range(4):
                for c in range(2):
                    streams.append(ch_ops(i + ii, c, 72 + 4 * (2 * ii + c) if (2 * ii + c) < 7 else 132))
            interleave(A, streams)
        A.nop(3)
        for c in range(2):
            for j in range(4):
                A("v_cvt_pk_bf16_f32 %s, %s, %s" % (v(116 + 4 * c + j), v(KV + 2 * (7 - 2 * j) + c), v(KV + 2 * (6 - 2 * j) + c)))
    else:
        A("s_waitcnt lgkmcnt(15)")
        for i in range(11):
            unpack_pair(A, K + 2 * i, K + 2 * i + 1, 14 + i, 40)
        A("s_waitcnt lgkmcnt(0)")
        for j in range(4):
            A("v_perm_b32 %s, %s, %s, s64" % (v(152 + j), v(144 + 2 * j + 1), v(144 + 2 * j)))
            A("v_perm_b32 %s, %s, %s, s65" % (v(156 + j), v(144 + 2 * j + 1), v(144 + 2 * j)))
        A("ds_write_b128 v13, v[152:155]")
        A("ds_write_b128 v13, v[156:159] offset:%d" % SGS)
        def pr_(r):
            return "v[%d:%d]" % (r, r + 1)
        def row_ops(i, acc, tmp, t3):
            P = Asm()
            P("v_pk_mul_f32 %s, %s, %s" % (pr_(acc), pr_(K + 2 * (i + 0)), pr_(W + 6)))
            round_pair(P, acc, acc + 1, t3, 40)
            for t in range(1, 4):
                P("v_pk_mul_f32 %s, %s, %s" % (pr_(tmp), pr_(K + 2 * (i + t)), pr_(W + 2 * (3 - t))))
                round_pair(P, tmp, tmp + 1, t3, 40)
                P("v_pk_add_f32 %s, %s, %s" % (pr_(acc), pr_(acc), pr_(tmp)))
                round_pair(P, acc, acc + 1, t3, 40)
            unpack_pair(P, tmp, tmp + 1, 40 + i, 40)
            P("v_pk_mul_f32 %s, %s, %s" % (pr_(KV + 2 * i), pr_(acc), pr_(tmp)))
            return [l.strip() for l in P.lines]
        for i in range(0, 8, 4):
            interleave(A, [row_ops(i, 84, 86, 88), row_ops(i + 1, 90, 92, 94), row_ops(i + 2, 132, 134, 136), row_ops(i + 3, 138, 140, 142)])
        for c in range(2):
            for j in range(4):
                A("v_cvt_pk_bf16_f32 %s, %s, %s" % (v(116 + 4 * c + j), v(KV + 2 * (7 - 2 * j) + c), v(KV + 2 * (6 - 2 * j) + c)))
    A("ds_write_b128 v7, v[116:119]")
    A("ds_write_b128 v7, v[120:123] offset:%d" % SGS)
    A("s_waitcnt lgkmcnt(0)")
    A("s_barrier")
    A("ds_read_b128 v[116:119], v8")
    A("ds_read_b128 v[120:123], v8 offset:%d" % (4 * SGS))
    A("s_movk_i32 s63, 16384")
    A("s_waitcnt lgkmcnt(1)")
    A("buffer_store_dwordx4 v[116:119], v9, s[36:39], 0 offen sc1")
    A("v_xor_b32 v124, v116, v117"); A("v_xor_b32 v126, v118, v119")
    A("s_waitcnt lgkmcnt(0)")
    A("buffer_store_dwordx4 v[120:123], v9, s[36:39], s63 offen sc1")
    A("v_xor_b32 v125, v120, v121"); A("v_xor_b32 v127, v122, v123")
    A("v_xor_b32 v124, v124, v126"); A("v_xor_b32 v125, v125, v127")
    row_xor_reduce(A, [124, 125])
    A("v_xor_b32 v128, s%d, v124" % TAG); A("v_xor_b32 v130, s%d, v125" % TAG)
    A("v_mov_b32 v129, s%d" % TAG); A("v_mov_b32 v131, s%d" % TAG)
    A("s_mov_b64 exec, s[66:67]")
    A("buffer_store_dwordx2 v[128:129], v12, s[36:39], 0 offen sc1")
    A("buffer_store_dwordx2 v[130:131], v12, s[36:39], 0 offen offset:512 sc1")
    A("s_mov_b64 exec, -1")
    A("ds_read_b128 v[116:119], v8 offset:%d" % (SX - SG))
    A("ds_read_b128 v[120:123], v8 offset:%d" % (SX - SG + 4 * SGS))
    A("s_waitcnt lgkmcnt(1)")
    A("buffer_store_dwordx4 v[116:119], v48, s[36:39], 0 offen sc1")
    A("v_xor_b32 v124, v116, v117"); A("v_xor_b32 v126, v118, v119")
    A("s_waitcnt lgkmcnt(0)")
    A("buffer_store_dwordx4 v[120:123], v48, s[36:39], s63 offen sc1")
    A("v_xor_b32 v125, v120, v121"); A("v_xor_b32 v127, v122, v123")
    A("v_xor_b32 v124, v124, v126"); A("v_xor_b32 v125, v125, v127")
    row_xor_reduce(A, [124, 125])
    A("v_xor_b32 v128, s%d, v124" % TAG); A("v_xor_b32 v130, s%d, v125" % TAG)
    A("s_mov_b64 exec, s[66:67]")
    A("buffer_store_dwordx2 v[128:129], v49, s[36:39], 0 offen sc1")
    A("buffer_store_dwordx2 v[130:131], v49, s[36:39], 0 offen offset:512 sc1")
    A("s_mov_b64 exec, -1")
    st_(A, 2)

def gen_ln(A, two=False):
    srd(A, 48, PQ, S * ROWB)
    srd(A, 56, PWR, D * 2)
    A("v_and_b32 v1, 63, v0")
    A("v_and_b32 v2, 15, v0")
    A("v_lshrrev_b32 v3, 4, v1")
    A("s_lshl_b32 s61, s60, 2")
    A("v_add_u32 v30, s61, v3")
    A("s_movk_i32 s62, 1152")
    A("v_mul_lo_u32 v6, v30, s62")
    A("v_lshl_add_u32 v6, v2, 3, v6")
    A("v_lshlrev_b32 v7, 3, v2")
    Q, WR, X = 64, 84, 104
    for i in range(9):
        A("buffer_load_dwordx2 %s, v6, s[48:51], 0 offen offset:%d" % (v(Q + 2 * i, 2), 128 * i) + QNT)
    for i in range(9):
        A("buffer_load_dwordx2 %s, v7, s[56:59], 0 offen offset:%d" % (v(WR + 2 * i, 2), 128 * i))
    if two:
        A("s_mov_b32 s62, %d" % (1024 * 1152))
        for i in range(9):
            A("buffer_load_dwordx2 %s, v6, s[48:51], s62 offen offset:%d" % (v(144 + 2 * i, 2), 128 * i))
    return Q, WR, X

def gen_ln_compute(A, Q, WR, X, extra=0, first_wait=None):
    A("s_waitcnt vmcnt(%d)" % (9 + extra if first_wait is None else first_wait))
    st_(A, 1)
    for i in range(18):
        unpack_pair(A, X + 2 * i, X + 2 * i + 1, Q + i, 40)
    A("v_pk_add_f32 v[8:9], %s, %s" % (v(X, 2), v(X + 2, 2)))
    A("v_pk_add_f32 v[10:11], %s, %s" % (v(X + 4, 2), v(X + 6, 2)))
    for i in range(4, 18, 2):
        A("v_pk_add_f32 v[8:9], v[8:9], %s" % v(X + 2 * i, 2))
        A("v_pk_add_f32 v[10:11], v[10:11], %s" % v(X + 2 * i + 2, 2))
    A("v_pk_add_f32 v[8:9], v[8:9], v[10:11]")
    A.nop(1)
    A("v_add_f32 v8, v8, v9")
    allreduce16_add(A, 8)
    A("v_mul_f32 v8, 0x3ae38e39, v8")
    A("v_sub_f32 v12, 0, v8")
    A("v_sub_f32 v13, 0, v8")
    for r in (14, 15, 16, 17):
        A("v_mov_b32 %s, 0" % v(r))
    for i in range(0, 18, 2):
        A("v_pk_add_f32 v[18:19], %s, v[12:13]" % v(X + 2 * i, 2))
        A("v_pk_add_f32 v[20:21], %s, v[12:13]" % v(X + 2 * i + 2, 2))
        A("v_pk_fma_f32 v[14:15], v[18:19], v[18:19], v[14:15]")
        A("v_pk_fma_f32 v[16:17], v[20:21], v[20:21], v[16:17]")
    A("v_pk_add_f32 v[14:15], v[14:15], v[16:17]")
    A.nop(1)
    A("v_add_f32 v14, v14, v15")
    allreduce16_add(A, 14)
    A("v_mul_f32 v14, 0x3ae38e39, v14")
    A.nop(1)
    round_pair(A, 8, 14, 9, 40)
    A("v_add_f32 v14, 0x3727c5ac, v14")
    A.nop(1)
    A("v_cvt_pk_bf16_f32 v9, v14, v14")
    A("v_lshlrev_b32 v14, 16, v9")
    A("v_sqrt_f32 v14, v14")
    A.nop(1)
    A("v_cvt_pk_bf16_f32 v9, v14, v14")
    A("v_lshlrev_b32 v14, 16, v9")
    A("v_rcp_f32 v15, v14")
    A.nop(1)
    A("v_fma_f32 v16, -v14, v15, 1.0")
    A("v_fma_f32 v15, v16, v15, v15")
    A("v_sub_f32 v12, 0, v8"); A("v_sub_f32 v13, 0, v8")
    A("v_mov_b32 v16, v15"); A("v_mov_b32 v17, v15")
    for r in (22, 23, 24, 25):
        A("v_mov_b32 %s, 0" % v(r))
    A("s_waitcnt vmcnt(%d)" % (extra if first_wait is None else first_wait))
    def ops(i, tm, acc):
        x0 = X + 2 * i
        P = Asm()
        P("v_pk_add_f32 %s, %s, v[12:13]" % (v(x0, 2), v(x0, 2)))
        round_pair(P, x0, x0 + 1, tm, 40)
        P("v_pk_mul_f32 %s, %s, v[16:17]" % (v(x0, 2), v(x0, 2)))
        round_pair(P, x0, x0 + 1, tm, 40)
        unpack_pair(P, tm + 2, tm + 3, WR + i, 40)
        P("v_pk_fma_f32 %s, %s, %s, %s" % (v(acc, 2), v(x0, 2), v(tm + 2, 2), v(acc, 2)))
        return [l.strip() for l in P.lines]
    for i in range(0, 18, 2):
        interleave(A, [ops(i, 26, 22), ops(i + 1, 32, 24)])
    A("v_pk_add_f32 v[22:23], v[22:23], v[24:25]")
    A.nop(1)
    A("v_add_f32 v22, v22, v23")
    allreduce16_add(A, 22)
    A.nop(1)
    A("v_cvt_pk_bf16_f32 v23, v22, v22")
    A("v_lshlrev_b32 v23, 16, v23")
    A("v_ashrrev_i32 v24, 31, v23")
    A("v_or_b32 v24, 0x80000000, v24")
    A("v_xor_b32 v23, v23, v24")
    A("v_and_b32 v23, s40, v23")
    A("v_sub_u32 v24, 2047, v30")
    A("v_or_b32 v26, v23, v24")
    A("v_mov_b32 v27, s%d" % TAG)
    A("v_cvt_pk_bf16_f32 v32, v8, v14")
    A("v_mov_b32 v33, s%d" % TAG)
    A("v_lshlrev_b32 v28, 3, v30")
    A("s_movk_i32 s61, %d" % F_KEYG)
    A("s_mov_b32 s62, %d" % F_ROWG)
    A("v_cmp_eq_u32 vcc, 0, v2")
    A("s_and_saveexec_b64 s[64:65], vcc")
    A("buffer_store_dwordx2 v[26:27], v28, s[36:39], s61 offen sc1")
    A("buffer_store_dwordx2 v[32:33], v28, s[36:39], s62 offen sc1")
    A("s_mov_b64 exec, s[64:65]")
    st_(A, 2)

def load_verified_runs(A, pay_soff, chk_soff, vlane16, vchk8, vhint8, P, pre, sleep):
    C, Tm = P + 16, P + 20
    def hint_loads():
        A("buffer_load_dwordx2 %s, %s, s[36:39], %s offen sc1" % (v(C, 2), vhint8, chk_soff))
    masked_poll(A, "vh", hint_loads, [C + 1], sleep, pre)
    Lp = A.newlabel("vp"); Ld = A.newlabel("vok")
    A("s_mov_b32 s52, 0")
    A.label(Lp)
    for i in range(4):
        A("buffer_load_dwordx4 %s, %s, s[36:39], %s offen offset:%d sc1" % (v(P + 4 * i, 4), vlane16, pay_soff, 1024 * i))
    for i in range(4):
        A("buffer_load_dword %s, %s, s[36:39], %s offen offset:%d sc1" % (v(C + i), vchk8, chk_soff, 32 * i))
    A("s_waitcnt vmcnt(0)")
    for i in range(4):
        A("v_xor_b32 %s, %s, %s" % (v(Tm + i), v(P + 4 * i), v(P + 1 + 4 * i)))
    for i in range(4):
        A("v_xor_b32 %s, %s, %s" % (v(Tm + 4 + i), v(P + 2 + 4 * i), v(P + 3 + 4 * i)))
    for i in range(4):
        A("v_xor_b32 %s, %s, %s" % (v(Tm + i), v(Tm + i), v(Tm + 4 + i)))
    row_xor_reduce(A, [Tm, Tm + 1, Tm + 2, Tm + 3])
    for i in range(4):
        A("v_xor_b32 %s, %s, %s" % (v(Tm + i), v(Tm + i), v(C + i)))
    A("v_cmp_eq_u32 vcc, s%d, %s" % (TAG, v(Tm)))
    for i in range(1, 4):
        A("v_cmp_eq_u32 s[54:55], s%d, %s" % (TAG, v(Tm + i)))
        A("s_and_b64 vcc, vcc, s[54:55]")
    A("s_cmp_eq_u64 vcc, -1")
    A("s_cbranch_scc1 %s" % Ld)
    A("s_add_u32 s52, s52, 1")
    A("s_cmp_gt_u32 s52, %d" % POLL_MAX)
    A("s_cbranch_scc1 %s" % Ld)
    A("s_sleep 2")
    A("s_branch %s" % Lp)
    A.label(Ld)

def build_ops(W, N, off):
    ops = []
    for k in range(7):
        ops.append("v_alignbit_b32 %s, %s, %s, 16" % (v(E_ + k), v(W + k + 1), v(W + k)))
    ops.append("ds_write_b128 v11, %s offset:%d" % (v(W + 2, 4), 4 * CS + off))
    for k in range(3):
        ops.append("v_pk_mov_b32 %s, %s, %s op_sel:[1,0]" % (v(G_ + 2 * k, 2), v(W + 2 * k, 2), v(W + 2 * k + 2, 2)))
    ops.append("ds_write_b128 v11, %s offset:%d" % (v(E_, 4), 1 * CS + off))
    ops.append("ds_write_b128 v11, %s offset:%d" % (v(E_ + 2, 4), 5 * CS + off))
    for k in range(3):
        ops.append("v_pk_mov_b32 %s, %s, %s op_sel:[1,0]" % (v(F_ + 2 * k, 2), v(E_ + 2 * k, 2), v(E_ + 2 * k + 2, 2)))
    ops.append("ds_write_b128 v11, %s offset:%d" % (v(G_, 4), 2 * CS + off))
    ops.append("ds_write_b128 v11, %s offset:%d" % (v(G_ + 2, 4), 6 * CS + off))
    ops.append("s_nop 0")
    ops.append("ds_write_b128 v11, %s offset:%d" % (v(F_, 4), 3 * CS + off))
    ops.append("ds_write_b128 v11, %s offset:%d" % (v(F_ + 2, 4), 7 * CS + off))
    return ops

def gen_M(A):
    A("s_setprio %d" % int(os.environ.get("MPRIO", 2)))
    srd(A, 32, PSSMK, D * S * 2)
    A("v_and_b32 v1, 63, v0")
    A("v_lshlrev_b32 v4, 4, v1")
    A("s_add_u32 s56, s45, %d" % (H_OFF + 512))
    A("s_lshl_b32 s57, s44, 12")
    A("s_mov_b32 m0, s56")
    A("s_lshl_b32 s51, s44, 1")
    for i in range(4):
        A("buffer_load_dwordx4 v4, s[32:35], s57 offen offset:%d lds" % (1024 * i) + NTS)
    A("s_add_u32 s56, s56, 4096")
    A("s_add_u32 s57, s57, 4096")
    A("s_mov_b32 m0, s56")
    A("s_mov_b64 exec, 0x3")
    A("buffer_load_dwordx4 v4, s[32:35], s57 offen lds" + NTS)
    A("s_mov_b64 exec, -1")
    A("s_and_b32 s52, s51, 0xfffffffc")
    A("s_add_u32 s54, s%d, s52" % PSSMD)
    A("s_addc_u32 s55, s%d, 0" % (PSSMD + 1))
    A("s_load_dword s53, s[54:55], 0")
    A("v_and_b32 v2, 15, v0")
    A("v_bfe_u32 v3, v0, 4, 2")
    A("v_mov_b32 v12, 0"); A("v_mov_b32 v13, 0"); A("v_mov_b32 v14, 0"); A("v_mov_b32 v15, 0")
    A("v_add_u32 v11, s45, v4")
    A("s_mov_b32 exec_hi, 0")
    A("ds_write_b128 v11, v[12:15] offset:%d" % H_OFF)
    A("s_mov_b64 exec, 0x3")
    for c in range(8):
        pass
    A("ds_write_b128 v11, v[12:15]")
    A("s_mov_b64 exec, 0xf")
    A("ds_write_b128 v11, v[12:15] offset:%d" % (258 * 16))
    A("s_mov_b64 exec, -1")
    A("v_lshlrev_b32 v5, 5, v2")
    A("v_lshl_add_u32 v5, v3, 4, v5")
    A("v_add_u32 v5, s45, v5")
    A("v_add_u32 v5, %d, v5" % H_OFF)
    A("v_and_b32 v8, 7, v2")
    A("v_sub_u32 v8, 7, v8")
    A("v_mul_u32_u24 v8, %d, v8" % CS)
    A("v_lshrrev_b32 v6, 3, v2")
    A("v_sub_u32 v6, v3, v6")
    A("v_lshlrev_b32 v6, 4, v6")
    A("v_add_u32 v8, v8, v6")
    A("v_add_u32 v8, 16, v8")
    A("v_add_u32 v9, s45, v8")
    A("v_lshlrev_b32 v6, 5, v2")
    A("v_lshl_add_u32 v6, v3, 3, v6")
    A("v_sub_u32 v7, %d, v6" % (4120 - 3584))
    A("v_add_u32 v7, s45, v7")
    A("v_add_u32 v6, s45, v6")
    A("v_add_u32 v6, %d, v6" % YOFF)
    A("s_lshl_b32 s49, s43, 2")
    A("s_add_u32 s49, s49, %d" % FLAGS)
    A("v_mov_b32 v10, s49")
    for i in range(32):
        A("v_mov_b32 %s, 0" % v(ACC + i))
    A("s_lshl_b32 s48, s44, 12")
    A("s_add_u32 s48, s48, %d" % F_UR)
    A("v_lshlrev_b32 v16, 3, v3")
    A("s_lshl_b32 s50, s44, 7")
    A("s_add_u32 s50, s50, %d" % F_URC)
    A("v_and_b32 v17, 15, v1")
    A("v_lshlrev_b32 v17, 3, v17")
    def hint_loads():
        A("buffer_load_dwordx2 v[136:137], v17, s[36:39], s50 offen sc1")
    if os.environ.get("URHINT"):
        masked_poll(A, "urh", hint_loads, [137], int(os.environ.get("URSLEEP", 4)), int(os.environ.get("URPRE", 8)))
    else:
        A("s_sleep %d" % int(os.environ.get("URPRE", 24)))
    Lp = A.newlabel("urp"); Ld = A.newlabel("urok")
    A("s_mov_b32 s52, 0")
    A.label(Lp)
    for i in range(4):
        A("buffer_load_dwordx4 %s, v4, s[36:39], s48 offen offset:%d sc1" % (v(120 + 4 * i, 4), 1024 * i))
    for i in range(4):
        A("buffer_load_dword %s, v16, s[36:39], s50 offen offset:%d sc1" % (v(136 + i), 32 * i))
    A("s_waitcnt vmcnt(0)")
    for i in range(4):
        A("v_xor_b32 %s, %s, %s" % (v(140 + i), v(120 + 4 * i), v(121 + 4 * i)))
    for i in range(4):
        A("v_xor_b32 %s, %s, %s" % (v(144 + i), v(122 + 4 * i), v(123 + 4 * i)))
    for i in range(4):
        A("v_xor_b32 %s, %s, %s" % (v(140 + i), v(140 + i), v(144 + i)))
    row_xor_reduce(A, [140, 141, 142, 143])
    for i in range(4):
        A("v_xor_b32 %s, %s, %s" % (v(140 + i), v(140 + i), v(136 + i)))
    A("v_cmp_eq_u32 vcc, s%d, v140" % TAG)
    for i in range(1, 4):
        A("v_cmp_eq_u32 s[54:55], s%d, %s" % (TAG, v(140 + i)))
        A("s_and_b64 vcc, vcc, s[54:55]")
    A("s_cmp_eq_u64 vcc, -1")
    A("s_cbranch_scc1 %s" % Ld)
    A("s_add_u32 s52, s52, 1")
    A("s_cmp_gt_u32 s52, %d" % POLL_MAX)
    A("s_cbranch_scc1 %s" % Ld)
    A("s_sleep %d" % int(os.environ.get("URSLEEP", 6)))
    A("s_branch %s" % Lp)
    A.label(Ld)
    st_(A, 3)
    dbg_time(A, 5)
    A("s_setprio %d" % int(os.environ.get("MPRIO2", 0)))
    for i in range(4):
        A("ds_write_b128 v11, %s offset:%d" % (v(120 + 4 * i, 4), 32 + 1024 * i))
    A("s_waitcnt lgkmcnt(0)")
    for (W, off) in ((152, 4096), (160, 3072), (168, 2048), (W1, 1024), (W0, 0)):
        A("ds_read_b128 %s, v11 offset:%d" % (v(W, 4), off))
        A("ds_read_b128 %s, v11 offset:%d" % (v(W + 4, 4), off + 16))
    A("s_waitcnt lgkmcnt(8)")
    A("s_mov_b64 exec, 0x1f")
    for o in build_ops(152, 0, 4096): A(o)
    A("s_mov_b64 exec, -1")
    A("s_waitcnt lgkmcnt(11)")
    for o in build_ops(160, 0, 3072): A(o)
    A("s_waitcnt lgkmcnt(14)")
    for o in build_ops(168, 0, 2048): A(o)
    A("s_waitcnt lgkmcnt(0)")
    st_(A, 4)
    hi_steps, lo_frags, lo_slot, lo_steps = conv_schedule()
    def bslot(sl):
        return v(BS + 4 * sl, 4)
    order, seen = [], set()
    for q, lst in hi_steps:
        for t, sl in lst:
            if sl not in seen:
                seen.add(sl); order.append(sl)
    aseq = [q for q in range(33)] + [q for q in range(65)]
    issued = []
    def issue(tag, txt):
        A(txt); issued.append(tag)
    def wait_for(tags):
        idx = max(len(issued) - 1 - issued[::-1].index(t) for t in tags)
        n = len(issued) - 1 - idx
        A("s_waitcnt lgkmcnt(%d)" % min(n, 15))
    def a_issue(k):
        issue(("A", k), "ds_read_b128 %s, v9 offset:%d" % (v(RING + 4 * (k % NR), 4), 64 * (64 - aseq[k])))
    def b_issue(sl):
        issue(("B", sl), "ds_read_b128 %s, v5 offset:%d" % (bslot(sl), 64 * (56 - sl + 8)))
    fill = deque()
    cnt = [0]
    def emit_fill(k):
        while k > 0 and fill:
            f = fill.popleft(); f(); cnt[0] += 1; k -= 1
    def add_plain(txt):
        if txt.startswith("ds_"):
            fill.append(lambda txt=txt: issue(("W",), txt))
        else:
            fill.append(lambda txt=txt: A(txt))
    a_issue(0)
    for sl in order[:5]:
        b_issue(sl)
    nextA = 1
    for k in range(1, NR):
        a_issue(nextA); nextA += 1
        b_issue(order[5 + k - 1])
    nextB = 5 + (NR - 1)
    A("s_and_b32 s52, s51, 2")
    A("s_lshl_b32 s52, s52, 3")
    A("s_lshr_b32 s53, s53, s52")
    A("s_lshl_b32 s53, s53, 16")
    A("v_mov_b32 v18, s53"); A("v_mov_b32 v19, s53")
    n = 0
    fu = {}
    for q, lst in hi_steps:
        for t, sl in lst:
            fu.setdefault(sl, q)
    for q, lst in hi_steps:
        while nextB < len(order) and fu[order[nextB]] <= q + 3:
            b_issue(order[nextB]); nextB += 1
        wait_for([("A", n)] + [("B", sl) for _, sl in lst])
        for t, sl in lst:
            A("v_mfma_f32_16x16x32_bf16 %s, %s, %s, %s" % (v(ACC + 4 * t, 4), v(RING + 4 * (n % NR), 4), bslot(sl), v(ACC + 4 * t, 4)))
        if nextA < len(aseq):
            a_issue(nextA); nextA += 1
        if q < 32:
            issue(("L", q), "ds_read_b128 %s, v5 offset:%d" % (bslot(q), 64 * (lo_frags[q] + 8)))
        n += 1
    st_(A, 5)
    def tile_epilogue(t):
        u0 = UREG + 2 * (t % 2)
        ac = ACC + 4 * t
        fill.append(lambda: wait_for([("U", t)] + ([("L", 31)] if t == 0 else [])))
        P = Asm()
        P("v_and_b32 v12, s40, %s" % v(u0 + 1))
        P("v_lshlrev_b32 v13, 16, %s" % v(u0 + 1))
        P("v_and_b32 v14, s40, %s" % v(u0))
        P("v_lshlrev_b32 v15, 16, %s" % v(u0))
        P("v_pk_mul_f32 v[12:13], v[12:13], v[18:19]")
        P("v_pk_mul_f32 v[14:15], v[14:15], v[18:19]")
        round_pair(P, 12, 13, 16, 40)
        round_pair(P, 14, 15, 17, 40)
        round_pair(P, ac, ac + 1, 16, 40)
        round_pair(P, ac + 2, ac + 3, 17, 40)
        P("v_pk_add_f32 v[12:13], v[12:13], %s" % v(ac, 2))
        P("v_pk_add_f32 v[14:15], v[14:15], %s" % v(ac + 2, 2))
        P("v_cvt_pk_bf16_f32 v16, v12, v13")
        P("v_cvt_pk_bf16_f32 v17, v14, v15")
        for l in P.lines:
            add_plain(l.strip())
        fill.append(lambda: issue(("Y", t), "ds_write_b64 v6, v[16:17] offset:%d" % (512 * t)))
        fill.append(lambda: A("v_mov_b32 v8, %d" % (t + 1)))
        for _ in range(3):
            fill.append(lambda: None)
        fill.append(lambda: wait_for([("Y", t)]))
        fill.append(lambda: issue(("F", t), "ds_write_b32 v10, v8"))
    for o in build_ops(W1, 0, 1024): add_plain(o)
    n1 = len(fill)
    for o in build_ops(W0, 0, 0): add_plain(o)
    n0 = len(fill)
    for q, lst in lo_steps:
        wait_for([("A", n)] + [("L", sl) for _, sl in lst])
        k = len(lst)
        per = 2 if k >= 2 else 1
        for i, (t, sl) in enumerate(lst):
            A("v_mfma_f32_16x16x32_bf16 %s, %s, %s, %s" % (v(ACC + 4 * t, 4), v(RING + 4 * (n % NR), 4), bslot(sl), v(ACC + 4 * t, 4)))
            if i < k - 1 or k == 1:
                emit_fill(per)
        if nextA < len(aseq):
            qq = aseq[nextA]
            if nextA >= 33 and qq >= 33:
                assert cnt[0] >= n1
            if nextA >= 33 and qq >= 49:
                assert cnt[0] >= n0
            a_issue(nextA); nextA += 1
        n += 1
        if q % 8 == 4:
            t = q // 8
            issue(("U", t), "ds_read_b64 %s, v7 offset:%d" % (v(UREG + 2 * (t % 2), 2), 512 * (7 - t)))
        if q >= 9 and (q - 9) % 8 == 0 and (q - 9) // 8 < 7:
            tile_epilogue((q - 9) // 8)
    A.nop(4)
    st_(A, 6)
    tile_epilogue(7)
    emit_fill(1000)
    st_(A, 7, end=True)
    dbg_time(A, 1)
    A("s_endpgm")

XQ = 208
def h_early_loads(A):
    srd(A, 16, PQ, S * ROWB)
    A("v_and_b32 v201, 255, v0")
    A("s_movk_i32 s63, 1152")
    A("v_mul_lo_u32 v200, v201, s63")
    A("s_lshl_b32 s63, s41, 3")
    A("v_add_u32 v200, s63, v200")
    return 8

def strip_loads(A):
    h_early_loads(A)
    if os.environ.get("NOSTRIP"):
        for t in range(8):
            A("s_nop 0")
            A("buffer_load_dwordx2 %s, v1, s[16:19], 0 offen" % v(XQ + 2 * t, 2))
        return
    A("s_mov_b32 s63, 0")
    for t in range(8):
        A("buffer_load_dwordx2 %s, v200, s[16:19], s63 offen" % v(XQ + 2 * t, 2))
        A("s_add_u32 s63, s63, %d" % (256 * 1152))

def q_prefetch(A):
    srd(A, 16, PQ, S * ROWB)
    Ln = A.newlabel("noqpf")
    A("v_and_b32 v202, 15, v0")
    A("v_bfe_u32 v203, v0, 4, 2")
    A("v_mul_u32_u24 v203, 1152, v203")
    A("v_lshl_add_u32 v202, v202, 4, v203")
    A("s_mul_i32 s63, s30, 144")
    A("s_and_b32 s63, s63, 0xffffff80")
    A("s_min_u32 s64, s31, 15")
    A("s_lshl_b32 s64, s64, 7")
    A("s_sub_u32 s65, s42, 4")
    A("s_lshl_b32 s65, s65, 5")
    A("s_add_u32 s64, s64, s65")
    A("s_mul_i32 s64, s64, 1152")
    A("s_add_u32 s63, s63, s64")
    for i in range(8):
        A("buffer_load_dwordx4 v[204:207], v202, s[16:19], s63 offen")
        A("s_add_u32 s63, s63, %d" % (4 * 1152))

def gen_H(A):
    srd(A, 20, POUT, S * ROWB)
    T = "s%d" % TAG
    A("v_and_b32 v1, 63, v0")
    A("v_mov_b32 v5, v201")
    A("v_mov_b32 v6, v200")
    A("v_lshlrev_b32 v7, 3, v5")
    RG = 160
    X, XN, T1 = 64, 96, 128
    A("s_setprio %d" % int(os.environ.get("HPRIO", 1)))
    for r in range(32):
        A("v_mov_b32 %s, 0" % v(X + r))
    A("v_lshlrev_b32 v8, 4, v1")
    A("v_lshrrev_b32 v9, 4, v1")
    A("v_lshlrev_b32 v9, 3, v9")
    A("s_lshl_b32 s48, s44, 12")
    A("s_add_u32 s48, s48, %d" % F_XT)
    A("s_lshl_b32 s50, s44, 7")
    A("s_add_u32 s50, s50, %d" % F_XC)
    P, C, Tm = 224, 240, 244
    A("s_sleep %d" % int(os.environ.get("ROWPRE", 32)))
    Lp = A.newlabel("hp"); Ld = A.newlabel("hok")
    A("s_mov_b32 s52, 0")
    A.label(Lp)
    for i in range(4):
        A("buffer_load_dwordx4 %s, v8, s[36:39], s48 offen offset:%d sc1" % (v(P + 4 * i, 4), 1024 * i))
    for i in range(4):
        A("buffer_load_dword %s, v9, s[36:39], s50 offen offset:%d sc1" % (v(C + i), 32 * i))
    for t in range(8):
        A("s_mov_b32 s51, %d" % (F_ROWG + 2048 * t))
        A("buffer_load_dwordx2 %s, v7, s[36:39], s51 offen sc1" % v(RG + 2 * t, 2))
    A("s_waitcnt vmcnt(8)")
    for i in range(4):
        A("v_xor_b32 %s, %s, %s" % (v(Tm + i), v(P + 4 * i), v(P + 1 + 4 * i)))
    for i in range(4):
        A("v_xor_b32 %s, %s, %s" % (v(Tm + 4 + i), v(P + 2 + 4 * i), v(P + 3 + 4 * i)))
    for i in range(4):
        A("v_xor_b32 %s, %s, %s" % (v(Tm + i), v(Tm + i), v(Tm + 4 + i)))
    row_xor_reduce(A, [Tm, Tm + 1, Tm + 2, Tm + 3])
    for i in range(4):
        A("v_xor_b32 %s, %s, %s" % (v(Tm + i), v(Tm + i), v(C + i)))
    A("v_cmp_eq_u32 vcc, s%d, %s" % (TAG, v(Tm)))
    for i in range(1, 4):
        A("v_cmp_eq_u32 s[54:55], s%d, %s" % (TAG, v(Tm + i)))
        A("s_and_b64 vcc, vcc, s[54:55]")
    A("s_waitcnt vmcnt(0)")
    for r in range(RG + 1, RG + 16, 2):
        A("v_cmp_eq_u32 s[54:55], s%d, %s" % (TAG, v(r)))
        A("s_and_b64 vcc, vcc, s[54:55]")
    A("s_cmp_eq_u64 vcc, -1")
    A("s_cbranch_scc1 %s" % Ld)
    A("s_add_u32 s52, s52, 1")
    A("s_cmp_gt_u32 s52, %d" % POLL_MAX)
    A("s_cbranch_scc1 %s" % Ld)
    A("s_sleep %d" % int(os.environ.get("ROWSLEEP", 8)))
    A("s_branch %s" % Lp)
    A.label(Ld)
    st_(A, 10)
    A("v_mov_b32 v11, %d" % FLAGS)
    A("v_mov_b32 v12, 1")
    lds_signal(A, 4, "v11", "v12")
    lds_wait(A, 4, 4, "v11", "v13", sleep=1)
    st_(A, 2 + 7)
    A("v_lshlrev_b32 v8, 1, v5")
    A("s_lshl_b32 s48, s41, 14")
    A("s_add_u32 s48, s48, %d" % F_XT)
    for c in range(4):
        for t in range(8):
            A("buffer_load_short_d16_hi %s, v8, s[36:39], s48 offen offset:%d sc1" % (v(X + 4 * t + c), 512 * t))
        A("s_add_u32 s48, s48, 4096")
    for t in range(8):
        stats_from_msd(A, RG + 2 * t, 176 + 6 * t, 40)
    A("s_waitcnt vmcnt(0)")
    st_(A, 3)
    for t in range(8):
        st = 176 + 6 * t
        streams = []
        for p in range(2):
            x, xn = X + 4 * t + 2 * p, XN + 4 * t + 2 * p
            tm = 56 + 4 * p
            P = Asm()
            P("v_pk_add_f32 %s, %s, %s" % (v(tm, 2), v(x, 2), v(st, 2)))
            round_pair(P, tm, tm + 1, tm + 2, 40)
            P("v_pk_mul_f32 %s, %s, %s" % (v(xn, 2), v(tm, 2), v(st + 2, 2)))
            P("v_pk_fma_f32 %s, %s, %s, %s" % (v(tm, 2), v(xn, 2), v(st + 4, 2), v(tm, 2)))
            P("v_pk_fma_f32 %s, %s, %s, %s" % (v(xn, 2), v(tm, 2), v(st + 2, 2), v(xn, 2)))
            round_pair(P, xn, xn + 1, tm + 2, 40)
            streams.append([l.strip() for l in P.lines])
        interleave(A, streams)
    st_(A, 4)
    dbg_time(A, 11)
    A("v_lshlrev_b32 v9, 1, v5")
    A("v_add_u32 v9, %d, v9" % YOFF)
    A("v_add_u32 v10, %d, v9" % (2 * CH_LDS))
    A("v_mov_b32 v11, %d" % FLAGS)
    for i in range(4):
        A("v_mov_b32 %s, 0" % v(40 + i))
    A("v_and_b32 v12, 7, v5")
    A("v_mul_u32_u24 v12, 4608, v12")
    A("v_bfe_u32 v13, v5, 3, 1")
    A("v_lshl_add_u32 v12, v13, 4, v12")
    A("v_lshrrev_b32 v13, 4, v5")
    A("v_mul_u32_u24 v14, 36864, v13")
    A("v_add_u32 v12, v12, v14")
    A("s_lshl_b32 s51, s41, 5")
    A("s_add_u32 s51, s51, %d" % F_PARTG)
    A("v_add_u32 v12, s51, v12")
    A("v_add_u32 v14, %d, v12" % (64 * 36864))
    A("v_cmp_gt_u32 vcc, 8, v13")
    A.nop(2)
    A("v_cndmask_b32 v14, v12, v14, vcc")
    A("s_mov_b64 s[56:57], vcc")
    A("v_and_b32 v8, 7, v1")
    A("v_lshlrev_b32 v8, 3, v8")
    def sel_loads():
        A("s_movk_i32 s51, %d" % F_SELG)
        A("buffer_load_dwordx2 v[180:181], v8, s[36:39], s51 offen sc1")
    sel_loads_m = sel_loads
    def part_loads():
        A("s_mov_b32 s51, 0")
        for i in range(4):
            A("buffer_load_dwordx4 %s, v12, s[36:39], s51 offen sc1" % v(160 + 4 * i, 4))
            A("s_add_u32 s51, s51, %d" % (16 * 36864))
        A("buffer_load_dwordx4 v[176:179], v14, s[36:39], 0 offen sc1")
    A("s_mov_b32 s59, 0")
    A("s_setprio %d" % int(os.environ.get("HPRIO2", 0)))
    for t in range(8):
        Lw = A.newlabel("yw"); Lg = A.newlabel("yg")
        A("s_cmp_gt_u32 s59, %d" % t)
        A("s_cbranch_scc1 %s" % Lg)
        A("s_mov_b32 s52, 0")
        A.label(Lw)
        A("ds_read_b128 v[16:19], v11")
        A("s_add_u32 s52, s52, 1")
        A("s_waitcnt lgkmcnt(0)")
        A("v_min_u32 v16, v16, v17")
        A("v_min3_u32 v16, v16, v18, v19")
        A("s_cmp_gt_u32 s52, %d" % POLL_MAX)
        A("v_readfirstlane_b32 s59, v16")
        A("s_cbranch_scc1 %s" % Lg)
        A("s_nop 1")
        A("s_cmp_gt_u32 s59, %d" % t)
        A("s_cbranch_scc1 %s" % Lg)
        A("s_sleep 1")
        A("s_branch %s" % Lw)
        A.label(Lg)
        if os.environ.get("HST") and t in (0, 2, 4, 7):
            st_(A, {0: 11, 2: 12, 4: 13, 7: 14}[t])
        A("ds_read_u16_d16_hi v40, v9 offset:%d" % (512 * t))
        A("ds_read_u16_d16_hi v41, v9 offset:%d" % (512 * t + CH_LDS))
        A("ds_read_u16_d16_hi v42, v10 offset:%d" % (512 * t))
        A("ds_read_u16_d16_hi v43, v10 offset:%d" % (512 * t + CH_LDS))
        A("s_waitcnt lgkmcnt(0)")
        streams = []
        for p in range(2):
            x, xn, t1 = X + 4 * t + 2 * p, XN + 4 * t + 2 * p, T1 + 4 * t + 2 * p
            tm = 56 + 4 * p
            P = Asm()
            P("v_pk_mul_f32 %s, %s, %s" % (v(tm, 2), v(xn, 2), v(40 + 2 * p, 2)))
            round_pair(P, tm, tm + 1, tm + 2, 40)
            P("v_pk_add_f32 %s, %s, %s" % (v(t1, 2), v(x, 2), v(tm, 2)))
            round_pair(P, t1, t1 + 1, tm + 2, 40)
            P("v_pk_add_f32 %s, %s, %s" % (v(tm, 2), v(t1, 2), v(xn, 2)))
            P("v_cvt_pk_bf16_f32 %s, %s, %s" % (v(44 + 2 * (t % 2) + p), v(tm), v(tm + 1)))
            streams.append([l.strip() for l in P.lines])
        interleave(A, streams)
        A("s_mov_b32 s51, %d" % (t * 256 * 1152))
        A("buffer_store_dwordx2 %s, v6, s[20:23], s51 offen" % v(44 + 2 * (t % 2), 2) + os.environ.get("OUTPOL", ""))
        if t == 5:
            sel_loads()
    st_(A, 5)
    dbg_time(A, 9)
    masked_poll(A, "pp", part_loads, [161, 163, 165, 167, 169, 171, 173, 175, 177, 179], int(os.environ.get("PPSLEEP", 3)), 0)
    st_(A, 6)
    dbg_time(A, 10)
    A("v_add_f32 v16, v160, v164"); A("v_add_f32 v17, v162, v166")
    A("v_add_f32 v16, v16, v168");  A("v_add_f32 v17, v17, v170")
    A("v_add_f32 v16, v16, v172");  A("v_add_f32 v17, v17, v174")
    A("v_cndmask_b32 v18, 0, v176, s[56:57]"); A("v_cndmask_b32 v19, 0, v178, s[56:57]")
    A("v_add_f32 v16, v16, v18");   A("v_add_f32 v17, v17, v19")
    A("v_mov_b32 v18, v16"); A("v_mov_b32 v19, v17")
    A.nop(1)
    A("v_permlane16_swap_b32 v16, v18"); A("v_permlane16_swap_b32 v17, v19")
    A.nop(1)
    A("v_add_f32 v16, v16, v18"); A("v_add_f32 v17, v17, v19")
    A("v_mov_b32 v18, v16"); A("v_mov_b32 v19, v17")
    A.nop(1)
    A("v_permlane32_swap_b32 v16, v18"); A("v_permlane32_swap_b32 v17, v19")
    A.nop(1)
    A("v_add_f32 v16, v16, v18"); A("v_add_f32 v17, v17, v19")
    A("v_and_b32 v18, 7, v1")
    A("v_lshlrev_b32 v18, 4, v18")
    A("v_bfe_u32 v19, v1, 3, 1")
    A("v_lshl_add_u32 v18, v19, 3, v18")
    A("s_lshl_b32 s51, s43, 7")
    A("s_add_u32 s51, s51, %d" % RED)
    A("v_add_u32 v18, s51, v18")
    A("s_mov_b64 exec, 0xffff")
    A("ds_write_b64 v18, v[16:17]")
    A("s_mov_b64 exec, -1")
    first_then_poll(A, "sel", sel_loads_m, [181], 4, "-1", first_cnt=63)
    A("v_lshrrev_b32 v45, 16, v180")
    A("v_and_b32 v46, 0x8000, v45")
    A("v_mov_b32 v47, 0xffff")
    A("v_mov_b32 v48, 0x8000")
    A("v_cmp_ne_u32 vcc, 0, v46")
    A("v_and_b32 v44, 0xffff, v180")
    A("v_sub_u32 v44, 2047, v44")
    A("v_cndmask_b32 v47, v47, v48, vcc")
    A("v_xor_b32 v45, v45, v47")
    A("v_lshlrev_b32 v45, 16, v45")
    A("v_mul_f32 v45, 0xbfb8aa3b, v45")
    A("v_exp_f32 v45, v45")
    A.nop(1)
    A("v_add_f32 v45, 1.0, v45")
    A("v_rcp_f32 v45, v45")
    A.nop(1)
    A("v_cvt_pk_bf16_f32 v45, v45, v45")
    A("v_lshlrev_b32 v45, 16, v45")
    A("s_waitcnt lgkmcnt(0)")
    A("s_barrier")
    st_(A, 7)
    for i in range(8):
        Ls = A.newlabel("ns")
        A("v_readlane_b32 s51, v44, %d" % i)
        A("v_readlane_b32 s59, v45, %d" % i)
        A("v_mov_b32 v52, %d" % (RED + 16 * i))
        A("s_bfe_u32 s58, s51, 0x20006")
        A("s_cmp_lg_u32 s58, s43")
        A("s_cbranch_scc1 %s" % Ls)
        for w in range(4):
            A("ds_read_b128 %s, v52 offset:%d" % (v(20 + 4 * w, 4), 128 * w))
        A("s_lshr_b32 s58, s51, 8")
        A("s_mul_i32 s60, s58, %d" % (256 * 1152))
        A("s_lshl_b32 s58, s58, 2")
        A("s_and_b32 s51, s51, 255")
        A("v_cmp_eq_u32 vcc, s51, v5")
        A("s_set_gpr_idx_on s58, gpr_idx(SRC0)")
        for k in range(4):
            A("v_mov_b32 %s, %s" % (v(36 + k), v(T1 + k)))
        for k in range(4):
            A("v_mov_b32 %s, %s" % (v(40 + k), v(XN + k)))
        A("s_set_gpr_idx_off")
        A("s_waitcnt lgkmcnt(0)")
        for k in range(4):
            A("v_add_f32 %s, %s, %s" % (v(20 + k), v(20 + k), v(24 + k)))
            A("v_add_f32 %s, %s, %s" % (v(28 + k), v(28 + k), v(32 + k)))
        for k in range(4):
            A("v_add_f32 %s, %s, %s" % (v(20 + k), v(20 + k), v(28 + k)))
        A.nop(1)
        round_pair(A, 20, 21, 24, 40); round_pair(A, 22, 23, 25, 40)
        for k in range(4):
            A("v_mul_f32 %s, s59, %s" % (v(20 + k), v(20 + k)))
        A.nop(1)
        round_pair(A, 20, 21, 24, 40); round_pair(A, 22, 23, 25, 40)
        for k in range(4):
            A("v_add_f32 %s, %s, %s" % (v(20 + k), v(20 + k), v(40 + k)))
        A.nop(1)
        round_pair(A, 20, 21, 24, 40); round_pair(A, 22, 23, 25, 40)
        for k in range(4):
            A("v_add_f32 %s, %s, %s" % (v(20 + k), v(20 + k), v(36 + k)))
        A.nop(1)
        A("v_cvt_pk_bf16_f32 v24, v20, v21")
        A("v_cvt_pk_bf16_f32 v25, v22, v23")
        A("s_mov_b64 exec, vcc")
        A("buffer_store_dwordx2 v[24:25], v6, s[20:23], s60 offen")
        A("s_mov_b64 exec, -1")
        A.label(Ls)
    st_(A, 8, end=True)
    dbg_time(A, 2)
    if os.environ.get("CALD"):
        L = A.newlabel("cal")
        A.label(L)
        A("s_memrealtime s[96:97]")
        A("s_waitcnt lgkmcnt(0)")
        A("s_sub_u32 s96, s96, s100")
        A("s_cmp_lt_u32 s96, %d" % int(os.environ["CALD"]))
        A("s_cbranch_scc1 %s" % L)
    A("s_endpgm")

def gen_conv_wg(A):
    A("s_and_b32 s43, s42, 3")
    A("s_lshl_b32 s44, s41, 2")
    A("s_add_u32 s44, s44, s43")
    A("s_mul_i32 s45, s43, %d" % CH_LDS)
    Lm = A.newlabel("cm"); Lh = A.newlabel("ch"); Lj = A.newlabel("cj")
    dbg_time(A, 0)
    A("s_lshr_b32 s60, s41, 4")
    A("s_and_b32 s61, s41, 15")
    A("v_mov_b32 v200, 0"); A("v_mov_b32 v201, 0")
    A("s_cmp_ge_u32 s42, 4")
    A("s_cbranch_scc1 %s" % Lh)
    A("s_setprio 2")
    gen_kv_issue(A)
    gen_kv_addr(A)
    gen_kv_addr2(A)
    finish_tag(A)
    flags_barrier(A)
    A("s_waitcnt vmcnt(0)")
    A("s_branch %s" % Lj)
    A.label(Lh)
    gen_kv_addr(A)
    gen_kv_addr2(A)
    finish_tag(A)
    A("s_waitcnt vmcnt(0)")
    A.label(Lj)
    gen_kv_compute(A)
    publish_alive(A)
    A("s_barrier")
    A("s_cmp_lt_u32 s42, 4")
    A("s_cbranch_scc1 %s" % Lm)
    h_early_loads(A)
    gen_H(A)
    A.label(Lm)
    gen_M(A)

def finish_tag(A):
    A("s_waitcnt lgkmcnt(0)")
    A("s_mul_i32 s%d, s%d, 0x9E3779B1" % (TAG, TAG))
    A("s_add_u32 s%d, s%d, 0x7F4A7C15" % (TAG, TAG))

def flags_barrier(A, alive=False):
    A("v_mov_b32 v36, 0")
    A("v_mov_b32 v37, %d" % FLAGS)
    A("v_mov_b32 v38, 0"); A("v_mov_b32 v39, 0"); A("v_mov_b32 v40, 0"); A("v_mov_b32 v41, 0")
    A("ds_write_b128 v37, v[38:41]")
    A("ds_write_b128 v37, v[38:41] offset:16")
    A("s_waitcnt lgkmcnt(0)")

def publish_alive(A):
    Ln = A.newlabel("noalive")
    A("s_cmp_lg_u32 s42, 0")
    A("s_cbranch_scc1 %s" % Ln)
    A("s_lshl_b32 s63, s41, 2")
    A("s_add_u32 s63, s63, %d" % F_ALIVE)
    A("v_mov_b32 v37, s%d" % TAG)
    A("v_mov_b32 v36, 0")
    A("s_mov_b64 exec, 1")
    A("buffer_store_dword v37, v36, s[36:39], s63 offen sc1")
    A("s_mov_b64 exec, -1")
    A.label(Ln)


BITONIC8 = [(0,4),(1,5),(2,6),(3,7),(0,2),(1,3),(4,6),(5,7),(0,1),(2,3),(4,5),(6,7)]
def merge8(A, a, b, out, spare, dpp=None):
    for i in range(7, -1, -1):
        if dpp:
            A("v_max_u32_dpp %s, %s, %s %s bank_mask:0xf" % (v(out[i]), v(b[7 - i]), v(a[i]), dpp))
        else:
            A("v_max_u32 %s, %s, %s" % (v(out[i]), v(a[i]), v(b[7 - i])))
    return sort_desc(A, out, spare, BITONIC8)

def top8_wave(A, regs, spare, other):
    cur, oth = list(regs), list(other)
    for ctl in ("quad_perm:[1,0,3,2] row_mask:0xf", "quad_perm:[2,3,0,1] row_mask:0xf", "row_half_mirror row_mask:0xf",
                "row_mirror row_mask:0xf", "row_bcast:15 row_mask:0xa", "row_bcast:31 row_mask:0xc"):
        A.nop(1)
        free = list(cur)
        new, spare2 = merge8(A, cur, cur, oth, spare, dpp=ctl)
        pool = [r for r in (free + oth + [spare]) if r not in new]
        spare = pool[0]
        oth = pool[1:9]
        cur = new
    return cur, spare, oth

L_CNT = 162368

def lds_signal(A, k, vaddr, vone):
    A("s_mov_b64 exec, 1")
    A("ds_add_u32 %s, %s offset:%d" % (vaddr, vone, 4 * k))
    A("s_mov_b64 exec, -1")

def lds_wait(A, k, n, vaddr, vtmp, sleep=0):
    L = A.newlabel("lw"); Ld = A.newlabel("lwd")
    A("s_mov_b32 s52, 0")
    A.label(L)
    A("ds_read_b32 %s, %s offset:%d" % (vtmp, vaddr, 4 * k))
    A("s_add_u32 s52, s52, 1")
    A("s_waitcnt lgkmcnt(0)")
    A("s_cmp_gt_u32 s52, %d" % (POLL_MAX * 8))
    A("v_readfirstlane_b32 s51, %s" % vtmp)
    A("s_cbranch_scc1 %s" % Ld)
    A("s_nop 1")
    A("s_cmp_ge_u32 s51, %d" % n)
    A("s_cbranch_scc1 %s" % Ld)
    if sleep:
        A("s_sleep %d" % sleep)
    A("s_branch %s" % L)
    A.label(Ld)

def gen_moe_wg(A):
    T = "s%d" % TAG
    A("v_and_b32 v1, 63, v0")
    A("v_and_b32 v4, 255, v0")
    A("v_mov_b32 v8, %d" % L_CNT)
    A("v_mov_b32 v9, 1")
    Lt = A.newlabel("twave")
    A("s_cmp_ge_u32 s42, 4")
    A("s_cbranch_scc1 %s" % Lt)
    G, U, WD = 16, 88, 160
    A("v_mov_b32 v232, 0"); A("v_mov_b32 v233, 0"); A("v_mov_b32 v234, 0"); A("v_mov_b32 v235, 0")
    A("ds_write_b128 v8, v[232:235]"); A("ds_write_b128 v8, v[232:235] offset:16")
    srd(A, 48, PWG, D * F * 2)
    srd(A, 52, PWU, D * F * 2)
    srd(A, 56, PWD, D * F * 2)
    A("v_lshrrev_b32 v5, 3, v1")
    A("v_mul_u32_u24 v5, 9216, v5")
    A("v_bfe_u32 v6, v1, 4, 1")
    A("s_and_b32 s43, s42, 1")
    A("s_lshl_b32 s43, s43, 1")
    A("v_or_b32 v6, s43, v6")
    A("v_lshlrev_b32 v6, 1, v6")
    A("v_and_b32 v7, 7, v1")
    A("v_xor_b32 v6, v6, v7")
    A("v_lshl_add_u32 v5, v6, 4, v5")
    A("s_lshl_b32 s43, s41, 7")
    A("s_mul_i32 s44, s42, 73728")
    A("s_add_u32 s43, s43, s44")
    A("s_lshl_b32 s44, s42, 10")
    A("s_waitcnt lgkmcnt(0)")
    A("s_barrier")
    for j in range(18):
        A("s_mov_b32 m0, s44")
        A("s_add_u32 s45, s44, %d" % L_WU)
        A("buffer_load_dwordx4 v5, s[48:51], s43 offen lds" + NTS)
        A("s_mov_b32 m0, s45")
        A("s_add_u32 s44, s44, 4096")
        A("buffer_load_dwordx4 v5, s[52:55], s43 offen lds" + NTS)
        A("s_add_u32 s43, s43, %d" % (4 * 73728))
    A("v_lshrrev_b32 v6, 3, v4")
    A("v_mul_u32_u24 v7, 1152, v6")
    A("v_and_b32 v12, 7, v4")
    A("v_lshl_add_u32 v236, v12, 4, v7")
    A("v_bfe_u32 v14, v6, 1, 1")
    A("v_bfe_u32 v11, v6, 3, 1")
    A("v_lshl_add_u32 v14, v11, 1, v14")
    A("v_lshlrev_b32 v14, 1, v14")
    A("v_xor_b32 v14, v14, v12")
    A("v_lshl_add_u32 v14, v14, 4, v7")
    A("v_add_u32 v15, 36864, v14")
    A("v_and_b32 v2, 15, v0")
    A("v_bfe_u32 v3, v0, 4, 2")
    A("v_lshrrev_b32 v10, 2, v2")
    A("v_lshl_add_u32 v11, v3, 3, v10")
    A("v_bfe_u32 v12, v2, 3, 1")
    A("v_and_b32 v13, 1, v3")
    A("v_lshl_add_u32 v12, v13, 1, v12")
    A("v_xor_b32 v12, s42, v12")
    A("v_and_b32 v13, 3, v2")
    A("v_lshlrev_b32 v13, 3, v13")
    A("v_lshl_add_u32 v12, v12, 5, v13")
    A("v_lshl_add_u32 v5, v11, 7, v12")
    A("v_add_u32 v6, 36864, v5")
    A("v_mul_u32_u24 v7, 1152, v11")
    A("v_add_u32 v7, v7, v12")
    A("v_add_u32 v10, 36864, v7")
    st_(A, 1)
    A("s_waitcnt vmcnt(0)")
    lds_signal(A, 0, "v8", "v9")
    A("s_mul_i32 s43, s41, 73728")
    A("s_add_u32 s44, s43, 36864")
    for k in range(9):
        A("buffer_load_dwordx4 %s, v236, s[56:59], s43 offen offset:%d" % (v(WD + 4 * k, 4), 128 * k) + NTS)
    for k in range(9):
        A("buffer_load_dwordx4 %s, v236, s[56:59], s44 offen offset:%d" % (v(WD + 36 + 4 * k, 4), 128 * k) + NTS)
    lds_wait(A, 0, 4, "v8", "v11")
    st_(A, 2)
    dbg_time(A, 7)
    A("v_add_u32 v12, %d, v5" % L_WU)
    A("v_add_u32 v13, %d, v6" % L_WU)
    for kk in range(18):
        bg, bu, ko = ("v5", "v12", kk) if kk < 9 else ("v6", "v13", kk - 9)
        A("ds_read_b64_tr_b16 %s, %s offset:%d" % (v(G + 4 * kk, 2), bg, 4096 * ko))
        A("ds_read_b64_tr_b16 %s, %s offset:%d" % (v(G + 4 * kk + 2, 2), bg, 4096 * ko + 512))
        A("ds_read_b64_tr_b16 %s, %s offset:%d" % (v(U + 4 * kk, 2), bu, 4096 * ko))
        A("ds_read_b64_tr_b16 %s, %s offset:%d" % (v(U + 4 * kk + 2, 2), bu, 4096 * ko + 512))
    A("s_waitcnt lgkmcnt(0)")
    lds_signal(A, 1, "v8", "v9")
    st_(A, 7)
    A("s_waitcnt vmcnt(0)")
    lds_wait(A, 1, 4, "v8", "v11")
    for k in range(9):
        A("ds_write_b128 v14, %s offset:%d" % (v(WD + 4 * k, 4), 128 * k))
    for k in range(9):
        A("ds_write_b128 v15, %s offset:%d" % (v(WD + 36 + 4 * k, 4), 128 * k))
    A("s_waitcnt lgkmcnt(0)")
    lds_signal(A, 2, "v8", "v9")
    lds_wait(A, 2, 4, "v8", "v11")
    for k in range(9):
        r = WD + 8 * k
        A("ds_read_b64_tr_b16 %s, v7 offset:%d" % (v(r, 2), 128 * k))
        A("ds_read_b64_tr_b16 %s, v7 offset:%d" % (v(r + 2, 2), 128 * k + 4 * 1152))
        A("ds_read_b64_tr_b16 %s, v10 offset:%d" % (v(r + 4, 2), 128 * k))
        A("ds_read_b64_tr_b16 %s, v10 offset:%d" % (v(r + 6, 2), 128 * k + 4 * 1152))
    A("v_and_b32 v12, 7, v2")
    A("v_mul_u32_u24 v5, %d, v12" % XSTR)
    A("v_lshl_add_u32 v5, v3, 4, v5")
    A("v_add_u32 v5, %d, v5" % L_X)
    A("v_mul_u32_u24 v6, %d, v2" % HSTR)
    A("v_lshl_add_u32 v6, v3, 3, v6")
    A("s_lshl_b32 s43, s42, 5")
    A("s_add_u32 s43, s43, %d" % L_HS)
    A("v_add_u32 v6, s43, v6")
    A("v_mul_u32_u24 v7, %d, v12" % HSTR)
    A("v_lshl_add_u32 v7, v3, 4, v7")
    A("v_add_u32 v7, %d, v7" % L_HS)
    A("v_mul_u32_u24 v10, 4608, v12")
    A("v_lshl_add_u32 v10, v3, 5, v10")
    A("v_bfe_u32 v13, v2, 3, 1")
    A("v_lshl_add_u32 v10, v13, 4, v10")
    A("v_cmp_eq_u32 s[56:57], 1, v13")
    A("s_mul_i32 s43, s41, 36864")
    A("s_lshl_b32 s44, s42, 7")
    A("s_add_u32 s43, s43, s44")
    A("s_add_u32 s43, s43, %d" % F_PARTG)
    A("v_mov_b32 v14, %d" % L_TAG)
    for i in range(8):
        A("v_mov_b32 %s, 0" % v(232 + i))
    A("s_waitcnt lgkmcnt(0)")
    st_(A, 3)
    dbg_time(A, 12)
    lds_wait(A, 4, 4, "v8", "v11")
    st_(A, 4)
    A("ds_read_b32 v15, v14")
    XR = 240
    for kk in range(3):
        A("ds_read_b128 %s, v5 offset:%d" % (v(XR + 4 * kk, 4), 64 * kk))
    for kk in range(18):
        if kk + 3 < 18:
            A("ds_read_b128 %s, v5 offset:%d" % (v(XR + 4 * ((kk + 3) % 4), 4), 64 * (kk + 3)))
        A("s_waitcnt lgkmcnt(%d)" % min(3, 17 - kk))
        x = v(XR + 4 * (kk % 4), 4)
        A("v_mfma_f32_16x16x32_bf16 v[232:235], %s, %s, v[232:235]" % (v(G + 4 * kk, 4), x))
        A("v_mfma_f32_16x16x32_bf16 v[236:239], %s, %s, v[236:239]" % (v(U + 4 * kk, 4), x))
    A("v_readfirstlane_b32 %s, v15" % T)
    A.nop(6)
    round_pair(A, 232, 233, 16, 40); round_pair(A, 234, 235, 17, 40)
    for i in range(4):
        A("v_mul_f32 %s, 0xbfb8aa3b, %s" % (v(20 + i), v(232 + i)))
    for i in range(4):
        A("v_exp_f32 %s, %s" % (v(20 + i), v(20 + i)))
    round_pair(A, 236, 237, 16, 40); round_pair(A, 238, 239, 17, 40)
    for i in range(4):
        A("v_add_f32 %s, 1.0, %s" % (v(20 + i), v(20 + i)))
    for i in range(4):
        A("v_rcp_f32 %s, %s" % (v(20 + i), v(20 + i)))
    A.nop(1)
    for i in range(4):
        A("v_mul_f32 %s, %s, %s" % (v(232 + i), v(232 + i), v(20 + i)))
    A.nop(1)
    round_pair(A, 232, 233, 16, 40); round_pair(A, 234, 235, 17, 40)
    for i in range(4):
        A("v_mul_f32 %s, %s, %s" % (v(232 + i), v(232 + i), v(236 + i)))
    A.nop(1)
    A("v_cvt_pk_bf16_f32 v16, v232, v233")
    A("v_cvt_pk_bf16_f32 v17, v234, v235")
    A("v_cmp_gt_u32 vcc, 8, v2")
    A("s_and_saveexec_b64 s[44:45], vcc")
    A("ds_write_b64 v6, v[16:17]")
    A("s_mov_b64 exec, s[44:45]")
    for k in range(9):
        A("v_mov_b32 %s, %s" % (v(24 + 4 * k + 1), T)); A("v_mov_b32 %s, %s" % (v(24 + 4 * k + 3), T))
    A("s_waitcnt lgkmcnt(0)")
    lds_signal(A, 5, "v8", "v9")
    lds_wait(A, 5, 4, "v8", "v11")
    st_(A, 5)
    A("ds_read_b128 v[16:19], v7")
    A("ds_read_b128 v[20:23], v7 offset:64")
    A("s_waitcnt lgkmcnt(0)")
    AC = 88
    for k in range(9):
        r = WD + 8 * k
        A("v_mfma_f32_16x16x32_bf16 %s, %s, v[16:19], 0" % (v(AC + 4 * k, 4), v(r, 4)))
    for k in range(9):
        r = WD + 8 * k
        A("v_mfma_f32_16x16x32_bf16 %s, %s, v[20:23], %s" % (v(AC + 4 * k, 4), v(r + 4, 4), v(AC + 4 * k, 4)))
    for k in range(9):
        ac, o = AC + 4 * k, 24 + 4 * k
        A("v_cndmask_b32 %s, %s, %s, s[56:57]" % (v(o), v(ac), v(ac + 2)))
        A("v_cndmask_b32 %s, %s, %s, s[56:57]" % (v(o + 2), v(ac + 1), v(ac + 3)))
        A("buffer_store_dwordx4 %s, v10, s[36:39], s43 offen offset:%d sc1" % (v(o, 4), 512 * (k % 8)))
        if k == 7:
            A("s_add_u32 s43, s43, 4096")
    st_(A, 6, end=True)
    dbg_time(A, 3)
    A("s_endpgm")
    A.label(Lt)
    A("s_setprio 3")
    A("s_lshl_b32 s60, s41, 2")
    A("s_add_u32 s60, s60, s42")
    A("s_sub_u32 s60, s60, 4")
    Q, WR, X = gen_ln(A)
    A("s_barrier")
    finish_tag(A)
    gen_ln_compute(A, Q, WR, X)
    A("s_setprio %d" % int(os.environ.get("TPRIO", 1)))
    srd(A, 16, PQ, S * ROWB)
    A("v_and_b32 v1, 63, v0")
    A("v_and_b32 v4, 255, v0")
    A("v_mov_b32 v8, %d" % L_CNT)
    A("v_mov_b32 v9, 1")
    A("v_lshlrev_b32 v15, 2, v1")
    A("v_lshlrev_b32 v16, 4, v1")
    A("s_and_b32 s43, s42, 3")
    A("s_lshl_b32 s43, s43, 12")
    A("v_add_u32 v16, s43, v16")
    def key_loads():
        A("s_movk_i32 s43, %d" % F_KEYG)
        for i in range(4):
            A("buffer_load_dwordx4 %s, v16, s[36:39], s43 offen offset:%d sc1" % (v(40 + 4 * i, 4), 1024 * i))
    masked_poll(A, "key", key_loads, list(range(41, 56, 2)), int(os.environ.get("KEYSLEEP", 8)), int(os.environ.get("KEYPRE", 70)))
    A("s_setprio 3")
    st_(A, 3)
    dbg_time(A, 6)
    regs, sp = sort_desc(A, range(40, 56, 2), 41, SORT8)
    SK = 60
    free = [r for r in range(40, 57) if r not in regs and r != sp]
    cur, sp, oth = top8_wave(A, regs, sp, free[:8])
    for i in range(8):
        A("v_mov_b32 %s, %s" % (v(64 + i), v(cur[i])))
    A("s_and_b32 s43, s42, 3")
    A("s_lshl_b32 s43, s43, 5")
    A("s_add_u32 s43, s43, %d" % L_CAND)
    A("v_mov_b32 v16, s43")
    A("v_mov_b32 v31, %s" % T)
    A("v_mov_b32 v17, %d" % L_TAG)
    A("s_mov_b32 exec_lo, 0")
    A("s_mov_b32 exec_hi, 0x80000000")
    A("ds_write_b128 v16, v[64:67]")
    A("ds_write_b128 v16, v[68:71] offset:16")
    A("ds_write_b32 v17, v31")
    A("s_mov_b64 exec, -1")
    A("s_waitcnt lgkmcnt(0)")
    lds_signal(A, 3, "v8", "v9")
    lds_wait(A, 3, 4, "v8", "v11")
    A("v_mov_b32 v16, %d" % L_CAND)
    for i in range(8):
        A("ds_read_b128 %s, v16 offset:%d" % (v(64 + 4 * i, 4), 16 * i))
    A("s_waitcnt lgkmcnt(4)")
    c01, sp1 = merge8(A, list(range(64, 72)), list(range(72, 80)), list(range(40, 48)), 56)
    A("s_waitcnt lgkmcnt(0)")
    c23, sp2 = merge8(A, list(range(80, 88)), list(range(88, 96)), list(range(48, 56)), 57)
    for i in range(8):
        A("v_max_u32 %s, %s, %s" % (v(64 + i), v(c01[i]), v(c23[7 - i])))
    for i in range(8):
        A("v_readfirstlane_b32 %s, %s" % (s(SK + i), v(64 + i)))
    A.nop(3)
    st_(A, 5)
    A("s_and_b32 s45, s42, 3")
    A("s_mov_b32 s43, s60"); A("s_mov_b32 s44, s61")
    for w in range(1, 4):
        A("s_cmp_eq_u32 s45, %d" % w)
        A("s_cselect_b32 s43, %s, s43" % s(SK + 2 * w))
        A("s_cselect_b32 s44, %s, s44" % s(SK + 2 * w + 1))
    A("v_mov_b32 v16, s43"); A("v_mov_b32 v17, s44")
    A("v_cmp_lt_u32 vcc, 31, v1")
    A.nop(2)
    A("v_cndmask_b32 v16, v16, v17, vcc")
    A("v_and_b32 v16, 0xffff, v16")
    A("v_sub_u32 v16, 2047, v16")
    A("v_and_b32 v17, 31, v1")
    A("s_movk_i32 s43, 1152")
    A("v_mul_lo_u32 v18, v16, s43")
    A("v_lshl_add_u32 v18, v17, 2, v18")
    A("v_lshlrev_b32 v19, 3, v16")
    for i in range(9):
        A("buffer_load_dword %s, v18, s[16:19], 0 offen offset:%d" % (v(20 + i), 128 * i))
    def rg_loads():
        A("s_mov_b32 s43, %d" % F_ROWG)
        A("buffer_load_dwordx2 v[32:33], v19, s[36:39], s43 offen sc1")
    Lns = A.newlabel("nosel")
    A("s_cmp_lg_u32 s41, 0")
    A("s_cbranch_scc1 %s" % Lns)
    A("s_cmp_lg_u32 s42, 4")
    A("s_cbranch_scc1 %s" % Lns)
    for i in range(8):
        A("v_writelane_b32 v30, %s, %d" % (s(SK + i), i))
    A("v_lshlrev_b32 v36, 3, v1")
    A("s_movk_i32 s43, %d" % F_SELG)
    A("s_mov_b64 exec, 0xff")
    A("buffer_store_dwordx2 v[30:31], v36, s[36:39], s43 offen sc1")
    A("s_mov_b64 exec, -1")
    A.label(Lns)
    masked_poll(A, "rg", rg_loads, [33], 2, 0)
    stats_from_msd(A, 32, 64, 70)
    A("v_lshrrev_b32 v38, 5, v4")
    A("v_mul_u32_u24 v38, %d, v38" % XSTR)
    A("v_lshl_add_u32 v38, v17, 2, v38")
    A("v_add_u32 v38, %d, v38" % L_X)
    st_(A, 4)
    for i0 in range(0, 9, 3):
        streams = []
        for i in range(i0, i0 + 3):
            bs = 40 + 8 * (i % 3)
            ops = norm_ops(bs, bs + 2, bs + 4, 20 + i, 64)
            ops.append("v_cvt_pk_bf16_f32 %s, %s, %s" % (v(bs + 6), v(bs + 2), v(bs + 3)))
            ops.append("ds_write_b32 v38, %s offset:%d" % (v(bs + 6), 128 * i))
            streams.append(ops)
        interleave(A, streams)
    A("s_waitcnt lgkmcnt(0)")
    lds_signal(A, 4, "v8", "v9")
    st_(A, 6)
    dbg_time(A, 4)
    Le = A.newlabel("noep")
    A("s_cmp_lg_u32 s41, 0")
    A("s_cbranch_scc1 %s" % Le)
    A("s_cmp_lg_u32 s42, 4")
    A("s_cbranch_scc1 %s" % Le)
    A("s_setprio 0")
    A("v_lshlrev_b32 v16, 2, v1")
    A("v_min_u32 v17, 15, v1")
    A("v_lshlrev_b32 v17, 2, v17")
    def al_loads():
        A("s_movk_i32 s43, %d" % F_ALIVE)
        A("buffer_load_dword v20, v16, s[36:39], s43 offen sc1")
        A("buffer_load_dword v21, v16, s[36:39], s43 offen offset:256 sc1")
        A("buffer_load_dword v22, v17, s[36:39], s43 offen offset:512 sc1")
    masked_poll(A, "al", al_loads, [20, 21, 22], 16, 0)
    A("v_mov_b32 v20, %s" % T)
    A("v_mov_b32 v21, %d" % F_EPOCH)
    A("s_mov_b64 exec, 1")
    A("buffer_store_dword v20, v21, s[36:39], 0 offen sc1")
    A("s_mov_b64 exec, -1")
    A.label(Le)
    A("s_endpgm")

def gen_spare_wg(A):
    A("s_lshl_b32 s60, s41, 3")
    A("s_add_u32 s60, s60, s42")
    A("s_add_u32 s60, s60, 288")
    Lx = A.newlabel("spx")
    A("s_cmp_ge_u32 s60, 512")
    A("s_cbranch_scc1 %s" % Lx)
    Q, WR, X = gen_ln(A)
    finish_tag(A)
    gen_ln_compute(A, Q, WR, X)
    A.label(Lx)
    A("s_endpgm")

def gen_kernel(A, name):
    kernel_header(A, name)
    Ldone = A.newlabel("done"); Lmoe = A.newlabel("moe"); Lsp = A.newlabel("spare")
    A("s_getpc_b64 s[96:97]")
    if os.environ.get("CALD"):
        A("s_memrealtime s[100:101]")
    A("s_cmp_ge_u32 s2, 256")
    A("s_cbranch_scc1 %s" % Ldone)
    A("s_load_dwordx4 s[68:71], s[0:1], %d" % KA_DBG)
    A("s_load_dwordx16 s[72:87], s[0:1], 0")
    A("s_load_dwordx8 s[88:95], s[0:1], %d" % KA_WG)
    A("v_lshrrev_b32 v1, 6, v0")
    A("s_and_b32 s30, s2, 7")
    A("s_lshr_b32 s31, s2, 3")
    A("v_readfirstlane_b32 s42, v1")
    A("s_mov_b32 s40, 0xffff0000")
    if not os.environ.get("NOICPF"):
        Lc = A.newlabel("noic")
        A("s_and_b32 s96, s96, 0xffffff00")
        A("s_and_b32 s97, s97, 0xffff")
        A("s_mov_b32 s98, L_code_end-%s" % name)
        A("s_mov_b32 s99, 0x00020000")
        A("v_and_b32 v243, 63, v0")
        A("v_lshlrev_b32 v243, 4, v243")
        A("s_lshl_b32 s95, s31, 10") if False else None
        A("s_lshl_b32 s3, s31, 10")
        A("v_cmp_lt_u32 vcc, 447, v0")
        A("s_cbranch_vccz %s" % Lc)
        A("buffer_load_dwordx4 v[244:247], v243, s[96:99], s3 offen")
        A.label(Lc)
    A("s_waitcnt lgkmcnt(0)")
    A("s_load_dword s%d, s[%d:%d], %d" % (TAG, PWS, PWS + 1, F_EPOCH))
    srd(A, 36, PWS, WS_SIZE)
    A("s_lshl_b32 s3, s2, 3")
    A("s_add_u32 s3, s3, s42")
    st_(A, 0)
    A("s_cmp_ge_u32 s31, 27")
    A("s_cbranch_scc1 %s" % Lsp)
    A("s_cmp_ge_u32 s31, 18")
    A("s_cbranch_scc1 %s" % Lmoe)
    A("s_mul_i32 s41, s30, 18")
    A("s_add_u32 s41, s41, s31")
    gen_conv_wg(A)
    A.label(Lmoe)
    A("s_mul_i32 s41, s30, 9")
    A("s_add_u32 s41, s41, s31")
    A("s_sub_u32 s41, s41, 18")
    gen_moe_wg(A)
    A.label(Lsp)
    A("s_mul_i32 s41, s30, 5")
    A("s_add_u32 s41, s41, s31")
    A("s_sub_u32 s41, s41, 27")
    gen_spare_wg(A)
    A.label(Ldone)
    A("s_endpgm")
    A.label("L_code_end")
    return kernel_desc(name, 256, 102, 256)
```

```python
from common import *
import common, os
from collections import deque
from conv2 import CS, CH_LDS, H_OFF, POLL_MAX, conv_schedule
from moe2 import wave_max_u32, L_WG, L_WU, L_X, L_HS, L_U, L_CAND, XSTR, HSTR
from moe3 import SORT8, sort_desc, rounds

F_EPOCH = 0x0
F_SELG = 0x100
F_ALIVE = 0x1000
F_KEYG = 0x2000
F_ROWG = 0x8000
F_LNF = 0x6000
F_URC = 0x100000 + 0x300000
F_UR = 0x20000
F_PARTG = 0x500000
F_XT = 0x800000
F_XC = 0x480000
L_TAG = 162304

PQ, PK, PV, PSHK, PSSMK, PSSMD, PWR, PWG, PWU, PWD, POUT, PWS = 72, 74, 76, 78, 80, 82, 86, 88, 90, 92, 94, 70
TAG = 46
QNT = '' if os.environ.get('QDEF') else ' nt'
NTS = '' if os.environ.get('NONT') else ' nt'
LIGHT = os.environ.get("STAMPS") == "2"
def st_(A, n, end=False):
    if LIGHT:
        if n != 0 and not end:
            return
        n = 15 if end else 0
    stamp(A, n, 36, 3, vt=254, st=96)

MISC = 4 * CH_LDS
FLAGS = MISC
SIDE = MISC + 64
RED = SIDE + 256
YOFF = H_OFF
W1, W0 = 20, 28
E_, G_, F_ = 36, 44, 50
UREG = 56
RING, NR, ACC, BS = 64, 6, 88, 120

DBGT = bool(os.environ.get("DBGT"))
def dbg_time(A, slot, invert=False):
    if not DBGT:
        return
    L = A.newlabel("dbgs")
    A("s_and_b32 s100, s42, 3")
    A("s_cmp_lg_u32 s100, 0")
    A("s_cbranch_scc1 %s" % L)
    A("s_cmp_eq_u32 s2, 8")
    A("s_cselect_b32 s100, 1, 0")
    A("s_cmp_eq_u32 s2, 152")
    A("s_cselect_b32 s100, 1, s100")
    A("s_cmp_eq_u32 s100, 0")
    A("s_cbranch_scc1 %s" % L)
    A("s_memrealtime s[96:97]")
    A("s_waitcnt lgkmcnt(0)")
    A("v_mov_b32 v252, s96")
    A("v_mov_b32 v253, %d" % (4 * slot))
    A("s_mov_b64 s[98:99], exec")
    A("s_mov_b64 exec, 1")
    A("global_store_dword v253, v252, s[68:69]")
    A("s_mov_b64 exec, s[98:99]")
    A.label(L)

def poll_head(A, cnt="s52"):
    A("s_mov_b32 %s, 0" % cnt)

def poll_tail(A, Lloop, Ldone, cnt="s52", sleep=1):
    A("s_add_u32 %s, %s, 1" % (cnt, cnt))
    A("s_cmp_gt_u32 %s, %d" % (cnt, POLL_MAX))
    A("s_cbranch_scc1 %s" % Ldone)
    A("s_sleep %d" % sleep)
    A("s_branch %s" % Lloop)

def masked_poll(A, name, emit_loads, tagregs, sleep, pre_sleep=0, full_exec="-1"):
    T = "s%d" % TAG
    Lp = A.newlabel(name + "p"); Ld = A.newlabel(name + "ok")
    if pre_sleep:
        A("s_sleep %d" % pre_sleep)
    A("s_mov_b32 s52, 0")
    A.label(Lp)
    emit_loads()
    A("s_waitcnt vmcnt(0)")
    A("v_cmp_eq_u32 vcc, %s, %s" % (T, v(tagregs[0])))
    for r in tagregs[1:]:
        A("v_cmp_eq_u32 s[54:55], %s, %s" % (T, v(r)))
        A("s_and_b64 vcc, vcc, s[54:55]")
    A("s_andn2_b64 exec, exec, vcc")
    A("s_cbranch_scc0 %s" % Ld)
    A("s_add_u32 s52, s52, 1")
    A("s_cmp_gt_u32 s52, %d" % POLL_MAX)
    A("s_cbranch_scc1 %s" % Ld)
    A("s_sleep %d" % sleep)
    A("s_branch %s" % Lp)
    A.label(Ld)
    A("s_mov_b64 exec, %s" % full_exec)

def first_then_poll(A, name, emit_loads, tagregs, sleep, ex, first_cnt=0):
    T = "s%d" % TAG
    Lp = A.newlabel(name + "p"); Ld = A.newlabel(name + "ok")
    A("s_mov_b32 s52, 0")
    A("s_waitcnt vmcnt(%d)" % first_cnt)
    A.label(Lp)
    A("v_cmp_eq_u32 vcc, %s, %s" % (T, v(tagregs[0])))
    for r in tagregs[1:]:
        A("v_cmp_eq_u32 s[54:55], %s, %s" % (T, v(r)))
        A("s_and_b64 vcc, vcc, s[54:55]")
    A("s_andn2_b64 exec, exec, vcc")
    A("s_cbranch_scc0 %s" % Ld)
    A("s_add_u32 s52, s52, 1")
    A("s_cmp_gt_u32 s52, %d" % POLL_MAX)
    A("s_cbranch_scc1 %s" % Ld)
    A("s_sleep %d" % sleep)
    emit_loads()
    A("s_waitcnt vmcnt(0)")
    A("s_branch %s" % Lp)
    A.label(Ld)
    A("s_mov_b64 exec, -1")

def ln_hint_poll(A, vaddr, r0, sleep, pre):
    def loads():
        A("s_movk_i32 s51, %d" % F_LNF)
        A("buffer_load_dwordx4 %s, %s, s[36:39], s51 offen sc1" % (v(r0, 4), vaddr))
        A("buffer_load_dwordx4 %s, %s, s[36:39], s51 offen offset:1024 sc1" % (v(r0 + 4, 4), vaddr))
    masked_poll(A, "lnh", loads, list(range(r0, r0 + 8)), sleep, pre)

def stats_from_msd(A, g, st, t):
    A("v_and_b32 %s, s40, %s" % (v(st + 4), v(g)))
    A("v_lshlrev_b32 %s, 16, %s" % (v(st), v(g)))
    A("v_rcp_f32 %s, %s" % (v(st + 2), v(st + 4)))
    A("v_xor_b32 %s, 0x80000000, %s" % (v(st), v(st)))
    A("v_xor_b32 %s, 0x80000000, %s" % (v(st + 4), v(st + 4)))
    A("v_fma_f32 %s, %s, %s, 1.0" % (v(t), v(st + 4), v(st + 2)))
    A("v_mov_b32 %s, %s" % (v(st + 1), v(st)))
    A("v_fma_f32 %s, %s, %s, %s" % (v(st + 2), v(t), v(st + 2), v(st + 2)))
    A("v_mov_b32 %s, %s" % (v(st + 5), v(st + 4)))
    A("v_mov_b32 %s, %s" % (v(st + 3), v(st + 2)))

LK, LV, LQ, SG, SX, SGS = 0, 17408, 33792, 50176, 67584, 272

def row_xor_reduce(A, regs):
    for ctl in ("quad_perm:[1,0,3,2]", "quad_perm:[2,3,0,1]", "row_half_mirror", "row_mirror"):
        if len(regs) < 3:
            A.nop(3 - len(regs))
        for r in regs:
            A("v_xor_b32_dpp %s, %s, %s %s row_mask:0xf bank_mask:0xf" % (v(r), v(r), v(r), ctl))

def gen_kv_issue(A):
    srd(A, 48, PK, S * ROWB)
    srd(A, 52, PV, S * ROWB)
    A("v_and_b32 v1, 63, v0")
    A("v_lshrrev_b32 v4, 3, v1")
    A("v_mul_u32_u24 v4, 1152, v4")
    A("v_and_b32 v5, 7, v1")
    A("v_lshl_add_u32 v4, v5, 4, v4")
    A("s_mul_i32 s62, s61, %d" % (128 * 1152))
    A("s_lshl_b32 s63, s60, 7")
    A("s_add_u32 s62, s62, s63")
    A("s_mul_i32 s63, s42, 9216")
    A("s_add_u32 s62, s62, s63")
    A("s_sub_u32 s63, s62, 9216")
    A("s_lshl_b32 s64, s42, 10")
    srd(A, 16, PQ, S * ROWB)
    for i in range(4):
        A("s_mov_b32 m0, s64")
        A("s_add_u32 s65, s64, %d" % LV)
        A("buffer_load_dwordx4 v4, s[48:51], s63 offen lds" + NTS)
        A("s_mov_b32 m0, s65")
        A("s_add_u32 s65, s64, %d" % LQ)
        A("buffer_load_dwordx4 v4, s[52:55], s62 offen lds" + NTS)
        A("s_mov_b32 m0, s65")
        A("s_add_u32 s64, s64, 4096")
        A("buffer_load_dwordx4 v4, s[16:19], s62 offen lds" + NTS)
        A("s_add_u32 s63, s63, %d" % (32 * 1152))
        A("s_add_u32 s62, s62, %d" % (32 * 1152))
    Ln = A.newlabel("nok17")
    A("s_cmp_lg_u32 s42, 0")
    A("s_cbranch_scc1 %s" % Ln)
    A("s_mov_b32 m0, s64")
    A("s_nop 0")
    A("buffer_load_dwordx4 v4, s[48:51], s63 offen lds" + NTS)
    A.label(Ln)

def gen_kv_addr(A):
    srd(A, 56, PSHK, D * 8)
    A("v_and_b32 v2, 31, v0")
    A("s_lshl_b32 s63, s60, 9")
    A("v_lshl_add_u32 v29, v2, 4, s63")
    A("buffer_load_dwordx4 v[32:35], v29, s[56:59], 0 offen")

def gen_kv_addr2(A):
    A("v_lshrrev_b32 v3, 5, v0")
    A("v_lshlrev_b32 v6, 10, v3")
    A("v_lshl_add_u32 v6, v2, 2, v6")
    A("v_mul_u32_u24 v7, %d, v2" % (2 * SGS))
    A("v_sub_u32 v8, 15, v3")
    A("v_lshl_add_u32 v7, v8, 4, v7")
    A("v_add_u32 v7, %d, v7" % SG)
    A("v_bfe_u32 v10, v0, 4, 2")
    A("v_and_b32 v11, 15, v0")
    A("v_mul_u32_u24 v8, %d, v10" % SGS)
    A("v_lshl_add_u32 v8, v11, 4, v8")
    A("s_mul_i32 s63, s42, %d" % (8 * SGS))
    A("s_add_u32 s63, s63, %d" % SG)
    A("v_add_u32 v8, s63, v8")
    A("v_lshlrev_b32 v9, 12, v10")
    A("v_lshl_add_u32 v9, v11, 4, v9")
    A("s_lshl_b32 s63, s60, 6")
    A("s_lshl_b32 s64, s42, 3")
    A("s_add_u32 s63, s63, s64")
    A("s_lshl_b32 s65, s63, 12")
    A("s_lshl_b32 s64, s61, 8")
    A("s_sub_u32 s65, s65, s64")
    A("s_add_u32 s65, s65, %d" % (F_UR + 240 * 16))
    A("v_add_u32 v9, s65, v9")
    A("v_lshlrev_b32 v12, 7, v10")
    A("s_lshl_b32 s65, s63, 7")
    A("s_lshl_b32 s64, s61, 3")
    A("s_sub_u32 s65, s65, s64")
    A("s_add_u32 s65, s65, %d" % (F_URC + 120))
    A("v_add_u32 v12, s65, v12")
    A("v_cmp_eq_u32 s[66:67], 0, v11")
    A("v_mul_u32_u24 v13, %d, v2" % (2 * SGS))
    A("v_lshl_add_u32 v13, v3, 4, v13")
    A("v_add_u32 v13, %d, v13" % SX)
    A("v_lshlrev_b32 v48, 12, v10")
    A("v_lshl_add_u32 v48, v11, 4, v48")
    A("s_lshl_b32 s65, s63, 12")
    A("s_lshl_b32 s64, s61, 8")
    A("s_add_u32 s65, s65, s64")
    A("s_add_u32 s65, s65, %d" % F_XT)
    A("v_add_u32 v48, s65, v48")
    A("v_lshlrev_b32 v49, 7, v10")
    A("s_lshl_b32 s65, s63, 7")
    A("s_lshl_b32 s64, s61, 3")
    A("s_add_u32 s65, s65, s64")
    A("s_add_u32 s65, s65, %d" % F_XC)
    A("v_add_u32 v49, s65, v49")

def gen_kv_compute(A):
    A("s_barrier")
    st_(A, 1)
    dbg_time(A, 8)
    for i in range(11):
        A("ds_read_b32 %s, v6 offset:%d" % (v(14 + i), LK + (5 + i) * 128))
    for i in range(8):
        A("ds_read_b32 %s, v6 offset:%d" % (v(40 + i), LV + i * 128))
    for i in range(8):
        A("ds_read_b32 %s, v6 offset:%d" % (v(144 + i), LQ + i * 128))
    A("v_lshlrev_b32 v54, 16, v32"); A("v_lshlrev_b32 v55, 16, v34")
    A("v_and_b32 v56, s40, v32");    A("v_and_b32 v57, s40, v34")
    A("v_lshlrev_b32 v58, 16, v33"); A("v_lshlrev_b32 v59, 16, v35")
    A("v_and_b32 v60, s40, v33");    A("v_and_b32 v61, s40, v35")
    DOT = bool(os.environ.get("DOT2", "1") != "0")
    W, K, KV = 54, 62, 100
    A("s_mov_b32 s64, 0x05040100"); A("s_mov_b32 s65, 0x07060302")
    if DOT:
        A("v_and_b32 v62, 0xffff, v32"); A("v_lshlrev_b32 v63, 16, v34")
        A("v_lshrrev_b32 v64, 16, v32"); A("v_and_b32 v65, s40, v34")
        A("v_and_b32 v66, 0xffff, v33"); A("v_lshlrev_b32 v67, 16, v35")
        A("v_lshrrev_b32 v68, 16, v33"); A("v_and_b32 v69, s40, v35")
        A("v_mov_b32 v70, 0x3f803f80")
        A("v_mov_b32 v71, 0")
        A("s_waitcnt lgkmcnt(0)")
        for j in range(4):
            A("v_perm_b32 %s, %s, %s, s64" % (v(152 + j), v(144 + 2 * j + 1), v(144 + 2 * j)))
            A("v_perm_b32 %s, %s, %s, s65" % (v(156 + j), v(144 + 2 * j + 1), v(144 + 2 * j)))
        A("ds_write_b128 v13, v[152:155]")
        A("ds_write_b128 v13, v[156:159] offset:%d" % SGS)
        def ch_ops(i, c, t0):
            a_, b_, p_, q_ = t0, t0 + 1, t0 + 2, t0 + 3
            o = []
            d2 = lambda d, x, y, z: "v_dot2_f32_bf16 %s, %s, %s, %s" % (v(d), v(x), v(y), z)
            o.append(d2(a_, 14 + i + 0, 62 + 2 * 3 + c, "0"))
            o.append(d2(b_, 14 + i + 1, 62 + 2 * 2 + c, "0"))
            o.append(d2(q_, 14 + i + 2, 62 + 2 * 1 + c, "0"))
            o.append("v_cvt_pk_bf16_f32 %s, %s, %s" % (v(p_), v(a_), v(b_)))
            o.append(d2(b_, 14 + i + 3, 62 + 2 * 0 + c, "0"))
            o.append(d2(a_, p_, 70, "0"))
            o.append("s_nop 0")
            o.append("v_cvt_pk_bf16_f32 %s, %s, %s" % (v(p_), v(a_), v(q_)))
            o.append("s_nop 0")
            o.append(d2(a_, p_, 70, "0"))
            o.append("s_nop 0")
            o.append("v_cvt_pk_bf16_f32 %s, %s, %s" % (v(p_), v(a_), v(b_)))
            o.append("s_nop 0")
            o.append(d2(a_, p_, 70, "0"))
            o.append("s_nop 0")
            if c == 0:
                o.append("v_cvt_pk_bf16_f32 %s, %s, %s" % (v(p_), v(a_), v(71)))
            else:
                o.append("v_cvt_pk_bf16_f32 %s, %s, %s" % (v(p_), v(71), v(a_)))
            o.append("s_nop 0")
            o.append(d2(KV + 2 * i + c, p_, 40 + i, "0"))
            return [x for x in o if x != "s_nop 0"]
        for i in range(0, 8, 4):
            streams = []
            for ii in range(4):
                for c in range(2):
                    streams.append(ch_ops(i + ii, c, 72 + 4 * (2 * ii + c) if (2 * ii + c) < 7 else 132))
            interleave(A, streams)
        A.nop(3)
        for c in range(2):
            for j in range(4):
                A("v_cvt_pk_bf16_f32 %s, %s, %s" % (v(116 + 4 * c + j), v(KV + 2 * (7 - 2 * j) + c), v(KV + 2 * (6 - 2 * j) + c)))
    else:
        A("s_waitcnt lgkmcnt(15)")
        for i in range(11):
            unpack_pair(A, K + 2 * i, K + 2 * i + 1, 14 + i, 40)
        A("s_waitcnt lgkmcnt(0)")
        for j in range(4):
            A("v_perm_b32 %s, %s, %s, s64" % (v(152 + j), v(144 + 2 * j + 1), v(144 + 2 * j)))
            A("v_perm_b32 %s, %s, %s, s65" % (v(156 + j), v(144 + 2 * j + 1), v(144 + 2 * j)))
        A("ds_write_b128 v13, v[152:155]")
        A("ds_write_b128 v13, v[156:159] offset:%d" % SGS)
        def pr_(r):
            return "v[%d:%d]" % (r, r + 1)
        def row_ops(i, acc, tmp, t3):
            P = Asm()
            P("v_pk_mul_f32 %s, %s, %s" % (pr_(acc), pr_(K + 2 * (i + 0)), pr_(W + 6)))
            round_pair(P, acc, acc + 1, t3, 40)
            for t in range(1, 4):
                P("v_pk_mul_f32 %s, %s, %s" % (pr_(tmp), pr_(K + 2 * (i + t)), pr_(W + 2 * (3 - t))))
                round_pair(P, tmp, tmp + 1, t3, 40)
                P("v_pk_add_f32 %s, %s, %s" % (pr_(acc), pr_(acc), pr_(tmp)))
                round_pair(P, acc, acc + 1, t3, 40)
            unpack_pair(P, tmp, tmp + 1, 40 + i, 40)
            P("v_pk_mul_f32 %s, %s, %s" % (pr_(KV + 2 * i), pr_(acc), pr_(tmp)))
            return [l.strip() for l in P.lines]
        for i in range(0, 8, 4):
            interleave(A, [row_ops(i, 84, 86, 88), row_ops(i + 1, 90, 92, 94), row_ops(i + 2, 132, 134, 136), row_ops(i + 3, 138, 140, 142)])
        for c in range(2):
            for j in range(4):
                A("v_cvt_pk_bf16_f32 %s, %s, %s" % (v(116 + 4 * c + j), v(KV + 2 * (7 - 2 * j) + c), v(KV + 2 * (6 - 2 * j) + c)))
    A("ds_write_b128 v7, v[116:119]")
    A("ds_write_b128 v7, v[120:123] offset:%d" % SGS)
    A("s_waitcnt lgkmcnt(0)")
    A("s_barrier")
    A("ds_read_b128 v[116:119], v8")
    A("ds_read_b128 v[120:123], v8 offset:%d" % (4 * SGS))
    A("s_movk_i32 s63, 16384")
    A("s_waitcnt lgkmcnt(1)")
    A("buffer_store_dwordx4 v[116:119], v9, s[36:39], 0 offen sc1")
    A("v_xor_b32 v124, v116, v117"); A("v_xor_b32 v126, v118, v119")
    A("s_waitcnt lgkmcnt(0)")
    A("buffer_store_dwordx4 v[120:123], v9, s[36:39], s63 offen sc1")
    A("v_xor_b32 v125, v120, v121"); A("v_xor_b32 v127, v122, v123")
    A("v_xor_b32 v124, v124, v126"); A("v_xor_b32 v125, v125, v127")
    row_xor_reduce(A, [124, 125])
    A("v_xor_b32 v128, s%d, v124" % TAG); A("v_xor_b32 v130, s%d, v125" % TAG)
    A("v_mov_b32 v129, s%d" % TAG); A("v_mov_b32 v131, s%d" % TAG)
    A("s_mov_b64 exec, s[66:67]")
    A("buffer_store_dwordx2 v[128:129], v12, s[36:39], 0 offen sc1")
    A("buffer_store_dwordx2 v[130:131], v12, s[36:39], 0 offen offset:512 sc1")
    A("s_mov_b64 exec, -1")
    A("ds_read_b128 v[116:119], v8 offset:%d" % (SX - SG))
    A("ds_read_b128 v[120:123], v8 offset:%d" % (SX - SG + 4 * SGS))
    A("s_waitcnt lgkmcnt(1)")
    A("buffer_store_dwordx4 v[116:119], v48, s[36:39], 0 offen sc1")
    A("v_xor_b32 v124, v116, v117"); A("v_xor_b32 v126, v118, v119")
    A("s_waitcnt lgkmcnt(0)")
    A("buffer_store_dwordx4 v[120:123], v48, s[36:39], s63 offen sc1")
    A("v_xor_b32 v125, v120, v121"); A("v_xor_b32 v127, v122, v123")
    A("v_xor_b32 v124, v124, v126"); A("v_xor_b32 v125, v125, v127")
    row_xor_reduce(A, [124, 125])
    A("v_xor_b32 v128, s%d, v124" % TAG); A("v_xor_b32 v130, s%d, v125" % TAG)
    A("s_mov_b64 exec, s[66:67]")
    A("buffer_store_dwordx2 v[128:129], v49, s[36:39], 0 offen sc1")
    A("buffer_store_dwordx2 v[130:131], v49, s[36:39], 0 offen offset:512 sc1")
    A("s_mov_b64 exec, -1")
    st_(A, 2)

def gen_ln(A, two=False):
    srd(A, 48, PQ, S * ROWB)
    srd(A, 56, PWR, D * 2)
    A("v_and_b32 v1, 63, v0")
    A("v_and_b32 v2, 15, v0")
    A("v_lshrrev_b32 v3, 4, v1")
    A("s_lshl_b32 s61, s60, 2")
    A("v_add_u32 v30, s61, v3")
    A("s_movk_i32 s62, 1152")
    A("v_mul_lo_u32 v6, v30, s62")
    A("v_lshl_add_u32 v6, v2, 3, v6")
    A("v_lshlrev_b32 v7, 3, v2")
    Q, WR, X = 64, 84, 104
    for i in range(9):
        A("buffer_load_dwordx2 %s, v6, s[48:51], 0 offen offset:%d" % (v(Q + 2 * i, 2), 128 * i) + QNT)
    for i in range(9):
        A("buffer_load_dwordx2 %s, v7, s[56:59], 0 offen offset:%d" % (v(WR + 2 * i, 2), 128 * i))
    if two:
        A("s_mov_b32 s62, %d" % (1024 * 1152))
        for i in range(9):
            A("buffer_load_dwordx2 %s, v6, s[48:51], s62 offen offset:%d" % (v(144 + 2 * i, 2), 128 * i))
    return Q, WR, X

def gen_ln_compute(A, Q, WR, X, extra=0, first_wait=None):
    A("s_waitcnt vmcnt(%d)" % (9 + extra if first_wait is None else first_wait))
    st_(A, 1)
    for i in range(18):
        unpack_pair(A, X + 2 * i, X + 2 * i + 1, Q + i, 40)
    A("v_pk_add_f32 v[8:9], %s, %s" % (v(X, 2), v(X + 2, 2)))
    A("v_pk_add_f32 v[10:11], %s, %s" % (v(X + 4, 2), v(X + 6, 2)))
    for i in range(4, 18, 2):
        A("v_pk_add_f32 v[8:9], v[8:9], %s" % v(X + 2 * i, 2))
        A("v_pk_add_f32 v[10:11], v[10:11], %s" % v(X + 2 * i + 2, 2))
    A("v_pk_add_f32 v[8:9], v[8:9], v[10:11]")
    A.nop(1)
    A("v_add_f32 v8, v8, v9")
    allreduce16_add(A, 8)
    A("v_mul_f32 v8, 0x3ae38e39, v8")
    A("v_sub_f32 v12, 0, v8")
    A("v_sub_f32 v13, 0, v8")
    for r in (14, 15, 16, 17):
        A("v_mov_b32 %s, 0" % v(r))
    for i in range(0, 18, 2):
        A("v_pk_add_f32 v[18:19], %s, v[12:13]" % v(X + 2 * i, 2))
        A("v_pk_add_f32 v[20:21], %s, v[12:13]" % v(X + 2 * i + 2, 2))
        A("v_pk_fma_f32 v[14:15], v[18:19], v[18:19], v[14:15]")
        A("v_pk_fma_f32 v[16:17], v[20:21], v[20:21], v[16:17]")
    A("v_pk_add_f32 v[14:15], v[14:15], v[16:17]")
    A.nop(1)
    A("v_add_f32 v14, v14, v15")
    allreduce16_add(A, 14)
    A("v_mul_f32 v14, 0x3ae38e39, v14")
    A.nop(1)
    round_pair(A, 8, 14, 9, 40)
    A("v_add_f32 v14, 0x3727c5ac, v14")
    A.nop(1)
    A("v_cvt_pk_bf16_f32 v9, v14, v14")
    A("v_lshlrev_b32 v14, 16, v9")
    A("v_sqrt_f32 v14, v14")
    A.nop(1)
    A("v_cvt_pk_bf16_f32 v9, v14, v14")
    A("v_lshlrev_b32 v14, 16, v9")
    A("v_rcp_f32 v15, v14")
    A.nop(1)
    A("v_fma_f32 v16, -v14, v15, 1.0")
    A("v_fma_f32 v15, v16, v15, v15")
    A("v_sub_f32 v12, 0, v8"); A("v_sub_f32 v13, 0, v8")
    A("v_mov_b32 v16, v15"); A("v_mov_b32 v17, v15")
    for r in (22, 23, 24, 25):
        A("v_mov_b32 %s, 0" % v(r))
    A("s_waitcnt vmcnt(%d)" % (extra if first_wait is None else first_wait))
    def ops(i, tm, acc):
        x0 = X + 2 * i
        P = Asm()
        P("v_pk_add_f32 %s, %s, v[12:13]" % (v(x0, 2), v(x0, 2)))
        round_pair(P, x0, x0 + 1, tm, 40)
        P("v_pk_mul_f32 %s, %s, v[16:17]" % (v(x0, 2), v(x0, 2)))
        round_pair(P, x0, x0 + 1, tm, 40)
        unpack_pair(P, tm + 2, tm + 3, WR + i, 40)
        P("v_pk_fma_f32 %s, %s, %s, %s" % (v(acc, 2), v(x0, 2), v(tm + 2, 2), v(acc, 2)))
        return [l.strip() for l in P.lines]
    for i in range(0, 18, 2):
        interleave(A, [ops(i, 26, 22), ops(i + 1, 32, 24)])
    A("v_pk_add_f32 v[22:23], v[22:23], v[24:25]")
    A.nop(1)
    A("v_add_f32 v22, v22, v23")
    allreduce16_add(A, 22)
    A.nop(1)
    A("v_cvt_pk_bf16_f32 v23, v22, v22")
    A("v_lshlrev_b32 v23, 16, v23")
    A("v_ashrrev_i32 v24, 31, v23")
    A("v_or_b32 v24, 0x80000000, v24")
    A("v_xor_b32 v23, v23, v24")
    A("v_and_b32 v23, s40, v23")
    A("v_sub_u32 v24, 2047, v30")
    A("v_or_b32 v26, v23, v24")
    A("v_mov_b32 v27, s%d" % TAG)
    A("v_cvt_pk_bf16_f32 v32, v8, v14")
    A("v_mov_b32 v33, s%d" % TAG)
    A("v_lshlrev_b32 v28, 3, v30")
    A("s_movk_i32 s61, %d" % F_KEYG)
    A("s_mov_b32 s62, %d" % F_ROWG)
    A("v_cmp_eq_u32 vcc, 0, v2")
    A("s_and_saveexec_b64 s[64:65], vcc")
    A("buffer_store_dwordx2 v[26:27], v28, s[36:39], s61 offen sc1")
    A("buffer_store_dwordx2 v[32:33], v28, s[36:39], s62 offen sc1")
    A("s_mov_b64 exec, s[64:65]")
    st_(A, 2)

def load_verified_runs(A, pay_soff, chk_soff, vlane16, vchk8, vhint8, P, pre, sleep):
    C, Tm = P + 16, P + 20
    def hint_loads():
        A("buffer_load_dwordx2 %s, %s, s[36:39], %s offen sc1" % (v(C, 2), vhint8, chk_soff))
    masked_poll(A, "vh", hint_loads, [C + 1], sleep, pre)
    Lp = A.newlabel("vp"); Ld = A.newlabel("vok")
    A("s_mov_b32 s52, 0")
    A.label(Lp)
    for i in range(4):
        A("buffer_load_dwordx4 %s, %s, s[36:39], %s offen offset:%d sc1" % (v(P + 4 * i, 4), vlane16, pay_soff, 1024 * i))
    for i in range(4):
        A("buffer_load_dword %s, %s, s[36:39], %s offen offset:%d sc1" % (v(C + i), vchk8, chk_soff, 32 * i))
    A("s_waitcnt vmcnt(0)")
    for i in range(4):
        A("v_xor_b32 %s, %s, %s" % (v(Tm + i), v(P + 4 * i), v(P + 1 + 4 * i)))
    for i in range(4):
        A("v_xor_b32 %s, %s, %s" % (v(Tm + 4 + i), v(P + 2 + 4 * i), v(P + 3 + 4 * i)))
    for i in range(4):
        A("v_xor_b32 %s, %s, %s" % (v(Tm + i), v(Tm + i), v(Tm + 4 + i)))
    row_xor_reduce(A, [Tm, Tm + 1, Tm + 2, Tm + 3])
    for i in range(4):
        A("v_xor_b32 %s, %s, %s" % (v(Tm + i), v(Tm + i), v(C + i)))
    A("v_cmp_eq_u32 vcc, s%d, %s" % (TAG, v(Tm)))
    for i in range(1, 4):
        A("v_cmp_eq_u32 s[54:55], s%d, %s" % (TAG, v(Tm + i)))
        A("s_and_b64 vcc, vcc, s[54:55]")
    A("s_cmp_eq_u64 vcc, -1")
    A("s_cbranch_scc1 %s" % Ld)
    A("s_add_u32 s52, s52, 1")
    A("s_cmp_gt_u32 s52, %d" % POLL_MAX)
    A("s_cbranch_scc1 %s" % Ld)
    A("s_sleep 2")
    A("s_branch %s" % Lp)
    A.label(Ld)

def build_ops(W, N, off):
    ops = []
    for k in range(7):
        ops.append("v_alignbit_b32 %s, %s, %s, 16" % (v(E_ + k), v(W + k + 1), v(W + k)))
    ops.append("ds_write_b128 v11, %s offset:%d" % (v(W + 2, 4), 4 * CS + off))
    for k in range(3):
        ops.append("v_pk_mov_b32 %s, %s, %s op_sel:[1,0]" % (v(G_ + 2 * k, 2), v(W + 2 * k, 2), v(W + 2 * k + 2, 2)))
    ops.append("ds_write_b128 v11, %s offset:%d" % (v(E_, 4), 1 * CS + off))
    ops.append("ds_write_b128 v11, %s offset:%d" % (v(E_ + 2, 4), 5 * CS + off))
    for k in range(3):
        ops.append("v_pk_mov_b32 %s, %s, %s op_sel:[1,0]" % (v(F_ + 2 * k, 2), v(E_ + 2 * k, 2), v(E_ + 2 * k + 2, 2)))
    ops.append("ds_write_b128 v11, %s offset:%d" % (v(G_, 4), 2 * CS + off))
    ops.append("ds_write_b128 v11, %s offset:%d" % (v(G_ + 2, 4), 6 * CS + off))
    ops.append("s_nop 0")
    ops.append("ds_write_b128 v11, %s offset:%d" % (v(F_, 4), 3 * CS + off))
    ops.append("ds_write_b128 v11, %s offset:%d" % (v(F_ + 2, 4), 7 * CS + off))
    return ops

def gen_M(A):
    A("s_setprio %d" % int(os.environ.get("MPRIO", 2)))
    srd(A, 32, PSSMK, D * S * 2)
    A("v_and_b32 v1, 63, v0")
    A("v_lshlrev_b32 v4, 4, v1")
    A("s_add_u32 s56, s45, %d" % (H_OFF + 512))
    A("s_lshl_b32 s57, s44, 12")
    A("s_mov_b32 m0, s56")
    A("s_lshl_b32 s51, s44, 1")
    for i in range(4):
        A("buffer_load_dwordx4 v4, s[32:35], s57 offen offset:%d lds" % (1024 * i) + NTS)
    A("s_add_u32 s56, s56, 4096")
    A("s_add_u32 s57, s57, 4096")
    A("s_mov_b32 m0, s56")
    A("s_mov_b64 exec, 0x3")
    A("buffer_load_dwordx4 v4, s[32:35], s57 offen lds" + NTS)
    A("s_mov_b64 exec, -1")
    A("s_and_b32 s52, s51, 0xfffffffc")
    A("s_add_u32 s54, s%d, s52" % PSSMD)
    A("s_addc_u32 s55, s%d, 0" % (PSSMD + 1))
    A("s_load_dword s53, s[54:55], 0")
    A("v_and_b32 v2, 15, v0")
    A("v_bfe_u32 v3, v0, 4, 2")
    A("v_mov_b32 v12, 0"); A("v_mov_b32 v13, 0"); A("v_mov_b32 v14, 0"); A("v_mov_b32 v15, 0")
    A("v_add_u32 v11, s45, v4")
    A("s_mov_b32 exec_hi, 0")
    A("ds_write_b128 v11, v[12:15] offset:%d" % H_OFF)
    A("s_mov_b64 exec, 0x3")
    for c in range(8):
        pass
    A("ds_write_b128 v11, v[12:15]")
    A("s_mov_b64 exec, 0xf")
    A("ds_write_b128 v11, v[12:15] offset:%d" % (258 * 16))
    A("s_mov_b64 exec, -1")
    A("v_lshlrev_b32 v5, 5, v2")
    A("v_lshl_add_u32 v5, v3, 4, v5")
    A("v_add_u32 v5, s45, v5")
    A("v_add_u32 v5, %d, v5" % H_OFF)
    A("v_and_b32 v8, 7, v2")
    A("v_sub_u32 v8, 7, v8")
    A("v_mul_u32_u24 v8, %d, v8" % CS)
    A("v_lshrrev_b32 v6, 3, v2")
    A("v_sub_u32 v6, v3, v6")
    A("v_lshlrev_b32 v6, 4, v6")
    A("v_add_u32 v8, v8, v6")
    A("v_add_u32 v8, 16, v8")
    A("v_add_u32 v9, s45, v8")
    A("v_lshlrev_b32 v6, 5, v2")
    A("v_lshl_add_u32 v6, v3, 3, v6")
    A("v_sub_u32 v7, %d, v6" % (4120 - 3584))
    A("v_add_u32 v7, s45, v7")
    A("v_add_u32 v6, s45, v6")
    A("v_add_u32 v6, %d, v6" % YOFF)
    A("s_lshl_b32 s49, s43, 2")
    A("s_add_u32 s49, s49, %d" % FLAGS)
    A("v_mov_b32 v10, s49")
    for i in range(32):
        A("v_mov_b32 %s, 0" % v(ACC + i))
    A("s_lshl_b32 s48, s44, 12")
    A("s_add_u32 s48, s48, %d" % F_UR)
    A("v_lshlrev_b32 v16, 3, v3")
    A("s_lshl_b32 s50, s44, 7")
    A("s_add_u32 s50, s50, %d" % F_URC)
    A("v_and_b32 v17, 15, v1")
    A("v_lshlrev_b32 v17, 3, v17")
    def hint_loads():
        A("buffer_load_dwordx2 v[136:137], v17, s[36:39], s50 offen sc1")
    if os.environ.get("URHINT"):
        masked_poll(A, "urh", hint_loads, [137], int(os.environ.get("URSLEEP", 4)), int(os.environ.get("URPRE", 8)))
    else:
        A("s_sleep %d" % int(os.environ.get("URPRE", 24)))
    Lp = A.newlabel("urp"); Ld = A.newlabel("urok")
    A("s_mov_b32 s52, 0")
    A.label(Lp)
    for i in range(4):
        A("buffer_load_dwordx4 %s, v4, s[36:39], s48 offen offset:%d sc1" % (v(120 + 4 * i, 4), 1024 * i))
    for i in range(4):
        A("buffer_load_dword %s, v16, s[36:39], s50 offen offset:%d sc1" % (v(136 + i), 32 * i))
    A("s_waitcnt vmcnt(0)")
    for i in range(4):
        A("v_xor_b32 %s, %s, %s" % (v(140 + i), v(120 + 4 * i), v(121 + 4 * i)))
    for i in range(4):
        A("v_xor_b32 %s, %s, %s" % (v(144 + i), v(122 + 4 * i), v(123 + 4 * i)))
    for i in range(4):
        A("v_xor_b32 %s, %s, %s" % (v(140 + i), v(140 + i), v(144 + i)))
    row_xor_reduce(A, [140, 141, 142, 143])
    for i in range(4):
        A("v_xor_b32 %s, %s, %s" % (v(140 + i), v(140 + i), v(136 + i)))
    A("v_cmp_eq_u32 vcc, s%d, v140" % TAG)
    for i in range(1, 4):
        A("v_cmp_eq_u32 s[54:55], s%d, %s" % (TAG, v(140 + i)))
        A("s_and_b64 vcc, vcc, s[54:55]")
    A("s_cmp_eq_u64 vcc, -1")
    A("s_cbranch_scc1 %s" % Ld)
    A("s_add_u32 s52, s52, 1")
    A("s_cmp_gt_u32 s52, %d" % POLL_MAX)
    A("s_cbranch_scc1 %s" % Ld)
    A("s_sleep %d" % int(os.environ.get("URSLEEP", 6)))
    A("s_branch %s" % Lp)
    A.label(Ld)
    st_(A, 3)
    dbg_time(A, 5)
    A("s_setprio %d" % int(os.environ.get("MPRIO2", 0)))
    for i in range(4):
        A("ds_write_b128 v11, %s offset:%d" % (v(120 + 4 * i, 4), 32 + 1024 * i))
    A("s_waitcnt lgkmcnt(0)")
    for (W, off) in ((152, 4096), (160, 3072), (168, 2048), (W1, 1024), (W0, 0)):
        A("ds_read_b128 %s, v11 offset:%d" % (v(W, 4), off))
        A("ds_read_b128 %s, v11 offset:%d" % (v(W + 4, 4), off + 16))
    A("s_waitcnt lgkmcnt(8)")
    A("s_mov_b64 exec, 0x1f")
    for o in build_ops(152, 0, 4096): A(o)
    A("s_mov_b64 exec, -1")
    A("s_waitcnt lgkmcnt(11)")
    for o in build_ops(160, 0, 3072): A(o)
    A("s_waitcnt lgkmcnt(14)")
    for o in build_ops(168, 0, 2048): A(o)
    A("s_waitcnt lgkmcnt(0)")
    st_(A, 4)
    hi_steps, lo_frags, lo_slot, lo_steps = conv_schedule()
    def bslot(sl):
        return v(BS + 4 * sl, 4)
    order, seen = [], set()
    for q, lst in hi_steps:
        for t, sl in lst:
            if sl not in seen:
                seen.add(sl); order.append(sl)
    aseq = [q for q in range(33)] + [q for q in range(65)]
    issued = []
    def issue(tag, txt):
        A(txt); issued.append(tag)
    def wait_for(tags):
        idx = max(len(issued) - 1 - issued[::-1].index(t) for t in tags)
        n = len(issued) - 1 - idx
        A("s_waitcnt lgkmcnt(%d)" % min(n, 15))
    def a_issue(k):
        issue(("A", k), "ds_read_b128 %s, v9 offset:%d" % (v(RING + 4 * (k % NR), 4), 64 * (64 - aseq[k])))
    def b_issue(sl):
        issue(("B", sl), "ds_read_b128 %s, v5 offset:%d" % (bslot(sl), 64 * (56 - sl + 8)))
    fill = deque()
    cnt = [0]
    def emit_fill(k):
        while k > 0 and fill:
            f = fill.popleft(); f(); cnt[0] += 1; k -= 1
    def add_plain(txt):
        if txt.startswith("ds_"):
            fill.append(lambda txt=txt: issue(("W",), txt))
        else:
            fill.append(lambda txt=txt: A(txt))
    a_issue(0)
    for sl in order[:5]:
        b_issue(sl)
    nextA = 1
    for k in range(1, NR):
        a_issue(nextA); nextA += 1
        b_issue(order[5 + k - 1])
    nextB = 5 + (NR - 1)
    A("s_and_b32 s52, s51, 2")
    A("s_lshl_b32 s52, s52, 3")
    A("s_lshr_b32 s53, s53, s52")
    A("s_lshl_b32 s53, s53, 16")
    A("v_mov_b32 v18, s53"); A("v_mov_b32 v19, s53")
    n = 0
    fu = {}
    for q, lst in hi_steps:
        for t, sl in lst:
            fu.setdefault(sl, q)
    for q, lst in hi_steps:
        while nextB < len(order) and fu[order[nextB]] <= q + 3:
            b_issue(order[nextB]); nextB += 1
        wait_for([("A", n)] + [("B", sl) for _, sl in lst])
        for t, sl in lst:
            A("v_mfma_f32_16x16x32_bf16 %s, %s, %s, %s" % (v(ACC + 4 * t, 4), v(RING + 4 * (n % NR), 4), bslot(sl), v(ACC + 4 * t, 4)))
        if nextA < len(aseq):
            a_issue(nextA); nextA += 1
        if q < 32:
            issue(("L", q), "ds_read_b128 %s, v5 offset:%d" % (bslot(q), 64 * (lo_frags[q] + 8)))
        n += 1
    st_(A, 5)
    def tile_epilogue(t):
        u0 = UREG + 2 * (t % 2)
        ac = ACC + 4 * t
        fill.append(lambda: wait_for([("U", t)] + ([("L", 31)] if t == 0 else [])))
        P = Asm()
        P("v_and_b32 v12, s40, %s" % v(u0 + 1))
        P("v_lshlrev_b32 v13, 16, %s" % v(u0 + 1))
        P("v_and_b32 v14, s40, %s" % v(u0))
        P("v_lshlrev_b32 v15, 16, %s" % v(u0))
        P("v_pk_mul_f32 v[12:13], v[12:13], v[18:19]")
        P("v_pk_mul_f32 v[14:15], v[14:15], v[18:19]")
        round_pair(P, 12, 13, 16, 40)
        round_pair(P, 14, 15, 17, 40)
        round_pair(P, ac, ac + 1, 16, 40)
        round_pair(P, ac + 2, ac + 3, 17, 40)
        P("v_pk_add_f32 v[12:13], v[12:13], %s" % v(ac, 2))
        P("v_pk_add_f32 v[14:15], v[14:15], %s" % v(ac + 2, 2))
        P("v_cvt_pk_bf16_f32 v16, v12, v13")
        P("v_cvt_pk_bf16_f32 v17, v14, v15")
        for l in P.lines:
            add_plain(l.strip())
        fill.append(lambda: issue(("Y", t), "ds_write_b64 v6, v[16:17] offset:%d" % (512 * t)))
        fill.append(lambda: A("v_mov_b32 v8, %d" % (t + 1)))
        for _ in range(3):
            fill.append(lambda: None)
        fill.append(lambda: wait_for([("Y", t)]))
        fill.append(lambda: issue(("F", t), "ds_write_b32 v10, v8"))
    for o in build_ops(W1, 0, 1024): add_plain(o)
    n1 = len(fill)
    for o in build_ops(W0, 0, 0): add_plain(o)
    n0 = len(fill)
    for q, lst in lo_steps:
        wait_for([("A", n)] + [("L", sl) for _, sl in lst])
        k = len(lst)
        per = 2 if k >= 2 else 1
        for i, (t, sl) in enumerate(lst):
            A("v_mfma_f32_16x16x32_bf16 %s, %s, %s, %s" % (v(ACC + 4 * t, 4), v(RING + 4 * (n % NR), 4), bslot(sl), v(ACC + 4 * t, 4)))
            if i < k - 1 or k == 1:
                emit_fill(per)
        if nextA < len(aseq):
            qq = aseq[nextA]
            if nextA >= 33 and qq >= 33:
                assert cnt[0] >= n1
            if nextA >= 33 and qq >= 49:
                assert cnt[0] >= n0
            a_issue(nextA); nextA += 1
        n += 1
        if q % 8 == 4:
            t = q // 8
            issue(("U", t), "ds_read_b64 %s, v7 offset:%d" % (v(UREG + 2 * (t % 2), 2), 512 * (7 - t)))
        if q >= 9 and (q - 9) % 8 == 0 and (q - 9) // 8 < 7:
            tile_epilogue((q - 9) // 8)
    A.nop(4)
    st_(A, 6)
    tile_epilogue(7)
    emit_fill(1000)
    st_(A, 7, end=True)
    dbg_time(A, 1)
    A("s_endpgm")

XQ = 208
def h_early_loads(A):
    srd(A, 16, PQ, S * ROWB)
    A("v_and_b32 v201, 255, v0")
    A("s_movk_i32 s63, 1152")
    A("v_mul_lo_u32 v200, v201, s63")
    A("s_lshl_b32 s63, s41, 3")
    A("v_add_u32 v200, s63, v200")
    return 8

def strip_loads(A):
    h_early_loads(A)
    if os.environ.get("NOSTRIP"):
        for t in range(8):
            A("s_nop 0")
            A("buffer_load_dwordx2 %s, v1, s[16:19], 0 offen" % v(XQ + 2 * t, 2))
        return
    A("s_mov_b32 s63, 0")
    for t in range(8):
        A("buffer_load_dwordx2 %s, v200, s[16:19], s63 offen" % v(XQ + 2 * t, 2))
        A("s_add_u32 s63, s63, %d" % (256 * 1152))

def q_prefetch(A):
    srd(A, 16, PQ, S * ROWB)
    Ln = A.newlabel("noqpf")
    A("v_and_b32 v202, 15, v0")
    A("v_bfe_u32 v203, v0, 4, 2")
    A("v_mul_u32_u24 v203, 1152, v203")
    A("v_lshl_add_u32 v202, v202, 4, v203")
    A("s_mul_i32 s63, s30, 144")
    A("s_and_b32 s63, s63, 0xffffff80")
    A("s_min_u32 s64, s31, 15")
    A("s_lshl_b32 s64, s64, 7")
    A("s_sub_u32 s65, s42, 4")
    A("s_lshl_b32 s65, s65, 5")
    A("s_add_u32 s64, s64, s65")
    A("s_mul_i32 s64, s64, 1152")
    A("s_add_u32 s63, s63, s64")
    for i in range(8):
        A("buffer_load_dwordx4 v[204:207], v202, s[16:19], s63 offen")
        A("s_add_u32 s63, s63, %d" % (4 * 1152))

def gen_H(A):
    srd(A, 20, POUT, S * ROWB)
    T = "s%d" % TAG
    A("v_and_b32 v1, 63, v0")
    A("v_mov_b32 v5, v201")
    A("v_mov_b32 v6, v200")
    A("v_lshlrev_b32 v7, 3, v5")
    RG = 160
    X, XN, T1 = 64, 96, 128
    A("s_setprio %d" % int(os.environ.get("HPRIO", 1)))
    for r in range(32):
        A("v_mov_b32 %s, 0" % v(X + r))
    A("v_lshlrev_b32 v8, 4, v1")
    A("v_lshrrev_b32 v9, 4, v1")
    A("v_lshlrev_b32 v9, 3, v9")
    A("s_lshl_b32 s48, s44, 12")
    A("s_add_u32 s48, s48, %d" % F_XT)
    A("s_lshl_b32 s50, s44, 7")
    A("s_add_u32 s50, s50, %d" % F_XC)
    P, C, Tm = 224, 240, 244
    A("s_sleep %d" % int(os.environ.get("ROWPRE", 32)))
    Lp = A.newlabel("hp"); Ld = A.newlabel("hok")
    A("s_mov_b32 s52, 0")
    A.label(Lp)
    for i in range(4):
        A("buffer_load_dwordx4 %s, v8, s[36:39], s48 offen offset:%d sc1" % (v(P + 4 * i, 4), 1024 * i))
    for i in range(4):
        A("buffer_load_dword %s, v9, s[36:39], s50 offen offset:%d sc1" % (v(C + i), 32 * i))
    for t in range(8):
        A("s_mov_b32 s51, %d" % (F_ROWG + 2048 * t))
        A("buffer_load_dwordx2 %s, v7, s[36:39], s51 offen sc1" % v(RG + 2 * t, 2))
    A("s_waitcnt vmcnt(8)")
    for i in range(4):
        A("v_xor_b32 %s, %s, %s" % (v(Tm + i), v(P + 4 * i), v(P + 1 + 4 * i)))
    for i in range(4):
        A("v_xor_b32 %s, %s, %s" % (v(Tm + 4 + i), v(P + 2 + 4 * i), v(P + 3 + 4 * i)))
    for i in range(4):
        A("v_xor_b32 %s, %s, %s" % (v(Tm + i), v(Tm + i), v(Tm + 4 + i)))
    row_xor_reduce(A, [Tm, Tm + 1, Tm + 2, Tm + 3])
    for i in range(4):
        A("v_xor_b32 %s, %s, %s" % (v(Tm + i), v(Tm + i), v(C + i)))
    A("v_cmp_eq_u32 vcc, s%d, %s" % (TAG, v(Tm)))
    for i in range(1, 4):
        A("v_cmp_eq_u32 s[54:55], s%d, %s" % (TAG, v(Tm + i)))
        A("s_and_b64 vcc, vcc, s[54:55]")
    A("s_waitcnt vmcnt(0)")
    for r in range(RG + 1, RG + 16, 2):
        A("v_cmp_eq_u32 s[54:55], s%d, %s" % (TAG, v(r)))
        A("s_and_b64 vcc, vcc, s[54:55]")
    A("s_cmp_eq_u64 vcc, -1")
    A("s_cbranch_scc1 %s" % Ld)
    A("s_add_u32 s52, s52, 1")
    A("s_cmp_gt_u32 s52, %d" % POLL_MAX)
    A("s_cbranch_scc1 %s" % Ld)
    A("s_sleep %d" % int(os.environ.get("ROWSLEEP", 8)))
    A("s_branch %s" % Lp)
    A.label(Ld)
    st_(A, 10)
    A("v_mov_b32 v11, %d" % FLAGS)
    A("v_mov_b32 v12, 1")
    lds_signal(A, 4, "v11", "v12")
    lds_wait(A, 4, 4, "v11", "v13", sleep=1)
    st_(A, 2 + 7)
    A("v_lshlrev_b32 v8, 1, v5")
    A("s_lshl_b32 s48, s41, 14")
    A("s_add_u32 s48, s48, %d" % F_XT)
    for c in range(4):
        for t in range(8):
            A("buffer_load_short_d16_hi %s, v8, s[36:39], s48 offen offset:%d sc1" % (v(X + 4 * t + c), 512 * t))
        A("s_add_u32 s48, s48, 4096")
    for t in range(8):
        stats_from_msd(A, RG + 2 * t, 176 + 6 * t, 40)
    A("s_waitcnt vmcnt(0)")
    st_(A, 3)
    for t in range(8):
        st = 176 + 6 * t
        streams = []
        for p in range(2):
            x, xn = X + 4 * t + 2 * p, XN + 4 * t + 2 * p
            tm = 56 + 4 * p
            P = Asm()
            P("v_pk_add_f32 %s, %s, %s" % (v(tm, 2), v(x, 2), v(st, 2)))
            round_pair(P, tm, tm + 1, tm + 2, 40)
            P("v_pk_mul_f32 %s, %s, %s" % (v(xn, 2), v(tm, 2), v(st + 2, 2)))
            P("v_pk_fma_f32 %s, %s, %s, %s" % (v(tm, 2), v(xn, 2), v(st + 4, 2), v(tm, 2)))
            P("v_pk_fma_f32 %s, %s, %s, %s" % (v(xn, 2), v(tm, 2), v(st + 2, 2), v(xn, 2)))
            round_pair(P, xn, xn + 1, tm + 2, 40)
            streams.append([l.strip() for l in P.lines])
        interleave(A, streams)
    st_(A, 4)
    dbg_time(A, 11)
    A("v_lshlrev_b32 v9, 1, v5")
    A("v_add_u32 v9, %d, v9" % YOFF)
    A("v_add_u32 v10, %d, v9" % (2 * CH_LDS))
    A("v_mov_b32 v11, %d" % FLAGS)
    for i in range(4):
        A("v_mov_b32 %s, 0" % v(40 + i))
    A("v_and_b32 v12, 7, v5")
    A("v_mul_u32_u24 v12, 2304, v12")
    A("v_lshrrev_b32 v13, 3, v5")
    A("v_mul_u32_u24 v14, 18432, v13")
    A("v_add_u32 v12, v12, v14")
    A("s_lshl_b32 s51, s41, 4")
    A("s_add_u32 s51, s51, %d" % F_PARTG)
    A("v_add_u32 v12, s51, v12")
    A("v_add_u32 v14, %d, v12" % (64 * 18432))
    A("v_cmp_gt_u32 vcc, 8, v13")
    A.nop(2)
    A("v_cndmask_b32 v14, v12, v14, vcc")
    A("s_mov_b64 s[56:57], vcc")
    A("v_and_b32 v8, 7, v1")
    A("v_lshlrev_b32 v8, 3, v8")
    def sel_loads():
        A("s_movk_i32 s51, %d" % F_SELG)
        A("buffer_load_dwordx2 v[180:181], v8, s[36:39], s51 offen sc1")
    sel_loads_m = sel_loads
    def part_loads():
        A("s_mov_b32 s51, %d" % (32 * 18432))
        A("buffer_load_dwordx4 v[160:163], v12, s[36:39], 0 offen sc1")
        A("buffer_load_dwordx4 v[164:167], v12, s[36:39], s51 offen sc1")
        A("buffer_load_dwordx4 v[168:171], v14, s[36:39], 0 offen sc1")
    A("s_mov_b32 s59, 0")
    A("s_setprio %d" % int(os.environ.get("HPRIO2", 0)))
    for t in range(8):
        Lw = A.newlabel("yw"); Lg = A.newlabel("yg")
        A("s_cmp_gt_u32 s59, %d" % t)
        A("s_cbranch_scc1 %s" % Lg)
        A("s_mov_b32 s52, 0")
        A.label(Lw)
        A("ds_read_b128 v[16:19], v11")
        A("s_add_u32 s52, s52, 1")
        A("s_waitcnt lgkmcnt(0)")
        A("v_min_u32 v16, v16, v17")
        A("v_min3_u32 v16, v16, v18, v19")
        A("s_cmp_gt_u32 s52, %d" % POLL_MAX)
        A("v_readfirstlane_b32 s59, v16")
        A("s_cbranch_scc1 %s" % Lg)
        A("s_nop 1")
        A("s_cmp_gt_u32 s59, %d" % t)
        A("s_cbranch_scc1 %s" % Lg)
        A("s_sleep 1")
        A("s_branch %s" % Lw)
        A.label(Lg)
        if os.environ.get("HST") and t in (0, 2, 4, 7):
            st_(A, {0: 11, 2: 12, 4: 13, 7: 14}[t])
        A("ds_read_u16_d16_hi v40, v9 offset:%d" % (512 * t))
        A("ds_read_u16_d16_hi v41, v9 offset:%d" % (512 * t + CH_LDS))
        A("ds_read_u16_d16_hi v42, v10 offset:%d" % (512 * t))
        A("ds_read_u16_d16_hi v43, v10 offset:%d" % (512 * t + CH_LDS))
        A("s_waitcnt lgkmcnt(0)")
        streams = []
        for p in range(2):
            x, xn, t1 = X + 4 * t + 2 * p, XN + 4 * t + 2 * p, T1 + 4 * t + 2 * p
            tm = 56 + 4 * p
            P = Asm()
            P("v_pk_mul_f32 %s, %s, %s" % (v(tm, 2), v(xn, 2), v(40 + 2 * p, 2)))
            round_pair(P, tm, tm + 1, tm + 2, 40)
            P("v_pk_add_f32 %s, %s, %s" % (v(t1, 2), v(x, 2), v(tm, 2)))
            round_pair(P, t1, t1 + 1, tm + 2, 40)
            P("v_pk_add_f32 %s, %s, %s" % (v(tm, 2), v(t1, 2), v(xn, 2)))
            P("v_cvt_pk_bf16_f32 %s, %s, %s" % (v(44 + 2 * (t % 2) + p), v(tm), v(tm + 1)))
            streams.append([l.strip() for l in P.lines])
        interleave(A, streams)
        A("s_mov_b32 s51, %d" % (t * 256 * 1152))
        A("buffer_store_dwordx2 %s, v6, s[20:23], s51 offen" % v(44 + 2 * (t % 2), 2) + os.environ.get("OUTPOL", ""))
        if t == 5:
            sel_loads()
    st_(A, 5)
    dbg_time(A, 9)
    Lp = A.newlabel("ppp"); Ld = A.newlabel("ppok")
    A("s_mov_b32 s52, 0")
    A.label(Lp)
    part_loads()
    A("s_waitcnt vmcnt(0)")
    for i in range(3):
        b = 160 + 4 * i
        A("v_xor_b32 %s, %s, %s" % (v(172 + i), v(b), v(b + 1)))
        A("v_xor_b32 %s, %s, %s" % (v(176 + i), v(b + 2), v(b + 3)))
    for i in range(3):
        A("v_xor_b32 %s, %s, %s" % (v(172 + i), v(172 + i), v(176 + i)))
    A("v_cmp_eq_u32 vcc, %s, v172" % T)
    for r in (173, 174):
        A("v_cmp_eq_u32 s[54:55], %s, %s" % (T, v(r)))
        A("s_and_b64 vcc, vcc, s[54:55]")
    A("s_andn2_b64 exec, exec, vcc")
    A("s_cbranch_scc0 %s" % Ld)
    A("s_add_u32 s52, s52, 1")
    A("s_cmp_gt_u32 s52, %d" % POLL_MAX)
    A("s_cbranch_scc1 %s" % Ld)
    A("s_sleep %d" % int(os.environ.get("PPSLEEP", 3)))
    A("s_branch %s" % Lp)
    A.label(Ld)
    A("s_mov_b64 exec, -1")
    st_(A, 6)
    dbg_time(A, 10)
    A("s_mov_b32 s58, 0xffffff00")
    A("s_mov_b32 s59, 0x0c0c0004")
    for i in range(3):
        b = 160 + 4 * i
        o = 20 + 4 * i
        A("v_lshlrev_b32 %s, 24, %s" % (v(o + 3), v(b)))
        A("v_and_b32 %s, 0xff, %s" % (v(176), v(b + 1)))
        A("v_and_b32 %s, 0xff, %s" % (v(177), v(b + 2)))
        A("v_lshl_or_b32 %s, %s, 16, %s" % (v(o + 3), v(176), v(o + 3)))
        A("v_lshl_or_b32 %s, %s, 8, %s" % (v(o + 3), v(177), v(o + 3)))
        for k in range(3):
            A("v_and_b32 %s, s58, %s" % (v(o + k), v(b + k)))
    for k in range(4):
        A("v_cndmask_b32 %s, 0, %s, s[56:57]" % (v(28 + k), v(28 + k)))
    for k in range(4):
        A("v_add_f32 %s, %s, %s" % (v(20 + k), v(20 + k), v(24 + k)))
    for k in range(4):
        A("v_add_f32 %s, %s, %s" % (v(20 + k), v(20 + k), v(28 + k)))
    A.nop(1)
    for k in range(4):
        A("v_add_f32_dpp %s, %s, %s row_ror:8 row_mask:0xf bank_mask:0xf" % (v(24 + k), v(20 + k), v(20 + k)))
    for k in range(4):
        A("v_mov_b32 %s, %s" % (v(28 + k), v(24 + k)))
    A.nop(1)
    for k in range(4):
        A("v_permlane16_swap_b32 %s, %s" % (v(24 + k), v(28 + k)))
    A.nop(1)
    for k in range(4):
        A("v_add_f32 %s, %s, %s" % (v(24 + k), v(24 + k), v(28 + k)))
    for k in range(4):
        A("v_mov_b32 %s, %s" % (v(28 + k), v(24 + k)))
    A.nop(1)
    for k in range(4):
        A("v_permlane32_swap_b32 %s, %s" % (v(24 + k), v(28 + k)))
    A.nop(1)
    for k in range(4):
        A("v_add_f32 %s, %s, %s" % (v(24 + k), v(24 + k), v(28 + k)))
    A("v_lshlrev_b32 v18, 4, v1")
    A("s_lshl_b32 s51, s43, 7")
    A("s_add_u32 s51, s51, %d" % RED)
    A("v_add_u32 v18, s51, v18")
    A("s_mov_b64 exec, 0xff")
    A("ds_write_b128 v18, v[24:27]")
    A("s_mov_b64 exec, -1")
    first_then_poll(A, "sel", sel_loads_m, [181], 4, "-1", first_cnt=63)
    A("v_lshrrev_b32 v45, 16, v180")
    A("v_and_b32 v46, 0x8000, v45")
    A("v_mov_b32 v47, 0xffff")
    A("v_mov_b32 v48, 0x8000")
    A("v_cmp_ne_u32 vcc, 0, v46")
    A("v_and_b32 v44, 0xffff, v180")
    A("v_sub_u32 v44, 2047, v44")
    A("v_cndmask_b32 v47, v47, v48, vcc")
    A("v_xor_b32 v45, v45, v47")
    A("v_lshlrev_b32 v45, 16, v45")
    A("v_mul_f32 v45, 0xbfb8aa3b, v45")
    A("v_exp_f32 v45, v45")
    A.nop(1)
    A("v_add_f32 v45, 1.0, v45")
    A("v_rcp_f32 v45, v45")
    A.nop(1)
    A("v_cvt_pk_bf16_f32 v45, v45, v45")
    A("v_lshlrev_b32 v45, 16, v45")
    A("s_waitcnt lgkmcnt(0)")
    A("s_barrier")
    st_(A, 7)
    for i in range(8):
        Ls = A.newlabel("ns")
        A("v_readlane_b32 s51, v44, %d" % i)
        A("v_readlane_b32 s59, v45, %d" % i)
        A("v_mov_b32 v52, %d" % (RED + 16 * i))
        A("s_bfe_u32 s58, s51, 0x20006")
        A("s_cmp_lg_u32 s58, s43")
        A("s_cbranch_scc1 %s" % Ls)
        for w in range(4):
            A("ds_read_b128 %s, v52 offset:%d" % (v(20 + 4 * w, 4), 128 * w))
        A("s_lshr_b32 s58, s51, 8")
        A("s_mul_i32 s60, s58, %d" % (256 * 1152))
        A("s_lshl_b32 s58, s58, 2")
        A("s_and_b32 s51, s51, 255")
        A("v_cmp_eq_u32 vcc, s51, v5")
        A("s_set_gpr_idx_on s58, gpr_idx(SRC0)")
        for k in range(4):
            A("v_mov_b32 %s, %s" % (v(36 + k), v(T1 + k)))
        for k in range(4):
            A("v_mov_b32 %s, %s" % (v(40 + k), v(XN + k)))
        A("s_set_gpr_idx_off")
        A("s_waitcnt lgkmcnt(0)")
        for k in range(4):
            A("v_add_f32 %s, %s, %s" % (v(20 + k), v(20 + k), v(24 + k)))
            A("v_add_f32 %s, %s, %s" % (v(28 + k), v(28 + k), v(32 + k)))
        for k in range(4):
            A("v_add_f32 %s, %s, %s" % (v(20 + k), v(20 + k), v(28 + k)))
        A.nop(1)
        round_pair(A, 20, 21, 24, 40); round_pair(A, 22, 23, 25, 40)
        for k in range(4):
            A("v_mul_f32 %s, s59, %s" % (v(20 + k), v(20 + k)))
        A.nop(1)
        round_pair(A, 20, 21, 24, 40); round_pair(A, 22, 23, 25, 40)
        for k in range(4):
            A("v_add_f32 %s, %s, %s" % (v(20 + k), v(20 + k), v(40 + k)))
        A.nop(1)
        round_pair(A, 20, 21, 24, 40); round_pair(A, 22, 23, 25, 40)
        for k in range(4):
            A("v_add_f32 %s, %s, %s" % (v(20 + k), v(20 + k), v(36 + k)))
        A.nop(1)
        A("v_cvt_pk_bf16_f32 v24, v20, v21")
        A("v_cvt_pk_bf16_f32 v25, v22, v23")
        A("s_mov_b64 exec, vcc")
        A("buffer_store_dwordx2 v[24:25], v6, s[20:23], s60 offen")
        A("s_mov_b64 exec, -1")
        A.label(Ls)
    st_(A, 8, end=True)
    dbg_time(A, 2)
    if os.environ.get("CALD"):
        L = A.newlabel("cal")
        A.label(L)
        A("s_memrealtime s[96:97]")
        A("s_waitcnt lgkmcnt(0)")
        A("s_sub_u32 s96, s96, s100")
        A("s_cmp_lt_u32 s96, %d" % int(os.environ["CALD"]))
        A("s_cbranch_scc1 %s" % L)
    A("s_endpgm")

def gen_conv_wg(A):
    A("s_and_b32 s43, s42, 3")
    A("s_lshl_b32 s44, s41, 2")
    A("s_add_u32 s44, s44, s43")
    A("s_mul_i32 s45, s43, %d" % CH_LDS)
    Lm = A.newlabel("cm"); Lh = A.newlabel("ch"); Lj = A.newlabel("cj")
    dbg_time(A, 0)
    A("s_lshr_b32 s60, s41, 4")
    A("s_and_b32 s61, s41, 15")
    A("v_mov_b32 v200, 0"); A("v_mov_b32 v201, 0")
    A("s_cmp_ge_u32 s42, 4")
    A("s_cbranch_scc1 %s" % Lh)
    A("s_setprio 2")
    gen_kv_issue(A)
    gen_kv_addr(A)
    gen_kv_addr2(A)
    finish_tag(A)
    flags_barrier(A)
    A("s_waitcnt vmcnt(0)")
    A("s_branch %s" % Lj)
    A.label(Lh)
    gen_kv_addr(A)
    gen_kv_addr2(A)
    finish_tag(A)
    A("s_waitcnt vmcnt(0)")
    A.label(Lj)
    gen_kv_compute(A)
    publish_alive(A)
    A("s_barrier")
    A("s_cmp_lt_u32 s42, 4")
    A("s_cbranch_scc1 %s" % Lm)
    h_early_loads(A)
    gen_H(A)
    A.label(Lm)
    gen_M(A)

def finish_tag(A):
    A("s_waitcnt lgkmcnt(0)")
    A("s_mul_i32 s%d, s%d, 0x9E3779B1" % (TAG, TAG))
    A("s_add_u32 s%d, s%d, 0x7F4A7C15" % (TAG, TAG))

def flags_barrier(A, alive=False):
    A("v_mov_b32 v36, 0")
    A("v_mov_b32 v37, %d" % FLAGS)
    A("v_mov_b32 v38, 0"); A("v_mov_b32 v39, 0"); A("v_mov_b32 v40, 0"); A("v_mov_b32 v41, 0")
    A("ds_write_b128 v37, v[38:41]")
    A("ds_write_b128 v37, v[38:41] offset:16")
    A("s_waitcnt lgkmcnt(0)")

def publish_alive(A):
    Ln = A.newlabel("noalive")
    A("s_cmp_lg_u32 s42, 0")
    A("s_cbranch_scc1 %s" % Ln)
    A("s_lshl_b32 s63, s41, 2")
    A("s_add_u32 s63, s63, %d" % F_ALIVE)
    A("v_mov_b32 v37, s%d" % TAG)
    A("v_mov_b32 v36, 0")
    A("s_mov_b64 exec, 1")
    A("buffer_store_dword v37, v36, s[36:39], s63 offen sc1")
    A("s_mov_b64 exec, -1")
    A.label(Ln)


BITONIC8 = [(0,4),(1,5),(2,6),(3,7),(0,2),(1,3),(4,6),(5,7),(0,1),(2,3),(4,5),(6,7)]
def merge8(A, a, b, out, spare, dpp=None):
    for i in range(7, -1, -1):
        if dpp:
            A("v_max_u32_dpp %s, %s, %s %s bank_mask:0xf" % (v(out[i]), v(b[7 - i]), v(a[i]), dpp))
        else:
            A("v_max_u32 %s, %s, %s" % (v(out[i]), v(a[i]), v(b[7 - i])))
    return sort_desc(A, out, spare, BITONIC8)

def top8_wave(A, regs, spare, other):
    cur, oth = list(regs), list(other)
    for ctl in ("quad_perm:[1,0,3,2] row_mask:0xf", "quad_perm:[2,3,0,1] row_mask:0xf", "row_half_mirror row_mask:0xf",
                "row_mirror row_mask:0xf", "row_bcast:15 row_mask:0xa", "row_bcast:31 row_mask:0xc"):
        A.nop(1)
        free = list(cur)
        new, spare2 = merge8(A, cur, cur, oth, spare, dpp=ctl)
        pool = [r for r in (free + oth + [spare]) if r not in new]
        spare = pool[0]
        oth = pool[1:9]
        cur = new
    return cur, spare, oth

L_CNT = 162368

def lds_signal(A, k, vaddr, vone):
    A("s_mov_b64 exec, 1")
    A("ds_add_u32 %s, %s offset:%d" % (vaddr, vone, 4 * k))
    A("s_mov_b64 exec, -1")

def lds_wait(A, k, n, vaddr, vtmp, sleep=0):
    L = A.newlabel("lw"); Ld = A.newlabel("lwd")
    A("s_mov_b32 s52, 0")
    A.label(L)
    A("ds_read_b32 %s, %s offset:%d" % (vtmp, vaddr, 4 * k))
    A("s_add_u32 s52, s52, 1")
    A("s_waitcnt lgkmcnt(0)")
    A("s_cmp_gt_u32 s52, %d" % (POLL_MAX * 8))
    A("v_readfirstlane_b32 s51, %s" % vtmp)
    A("s_cbranch_scc1 %s" % Ld)
    A("s_nop 1")
    A("s_cmp_ge_u32 s51, %d" % n)
    A("s_cbranch_scc1 %s" % Ld)
    if sleep:
        A("s_sleep %d" % sleep)
    A("s_branch %s" % L)
    A.label(Ld)

def gen_moe_wg(A):
    T = "s%d" % TAG
    A("v_and_b32 v1, 63, v0")
    A("v_and_b32 v4, 255, v0")
    A("v_mov_b32 v8, %d" % L_CNT)
    A("v_mov_b32 v9, 1")
    Lt = A.newlabel("twave")
    A("s_cmp_ge_u32 s42, 4")
    A("s_cbranch_scc1 %s" % Lt)
    G, U, WD = 16, 88, 160
    A("v_mov_b32 v232, 0"); A("v_mov_b32 v233, 0"); A("v_mov_b32 v234, 0"); A("v_mov_b32 v235, 0")
    A("ds_write_b128 v8, v[232:235]"); A("ds_write_b128 v8, v[232:235] offset:16")
    srd(A, 48, PWG, D * F * 2)
    srd(A, 52, PWU, D * F * 2)
    srd(A, 56, PWD, D * F * 2)
    A("v_lshrrev_b32 v5, 3, v1")
    A("v_mul_u32_u24 v5, 9216, v5")
    A("v_bfe_u32 v6, v1, 4, 1")
    A("s_and_b32 s43, s42, 1")
    A("s_lshl_b32 s43, s43, 1")
    A("v_or_b32 v6, s43, v6")
    A("v_lshlrev_b32 v6, 1, v6")
    A("v_and_b32 v7, 7, v1")
    A("v_xor_b32 v6, v6, v7")
    A("v_lshl_add_u32 v5, v6, 4, v5")
    A("s_lshl_b32 s43, s41, 7")
    A("s_mul_i32 s44, s42, 73728")
    A("s_add_u32 s43, s43, s44")
    A("s_lshl_b32 s44, s42, 10")
    A("s_waitcnt lgkmcnt(0)")
    A("s_barrier")
    for j in range(18):
        A("s_mov_b32 m0, s44")
        A("s_add_u32 s45, s44, %d" % L_WU)
        A("buffer_load_dwordx4 v5, s[48:51], s43 offen lds" + NTS)
        A("s_mov_b32 m0, s45")
        A("s_add_u32 s44, s44, 4096")
        A("buffer_load_dwordx4 v5, s[52:55], s43 offen lds" + NTS)
        A("s_add_u32 s43, s43, %d" % (4 * 73728))
    A("v_lshrrev_b32 v6, 3, v4")
    A("v_mul_u32_u24 v7, 1152, v6")
    A("v_and_b32 v12, 7, v4")
    A("v_lshl_add_u32 v236, v12, 4, v7")
    A("v_bfe_u32 v14, v6, 1, 1")
    A("v_bfe_u32 v11, v6, 3, 1")
    A("v_lshl_add_u32 v14, v11, 1, v14")
    A("v_lshlrev_b32 v14, 1, v14")
    A("v_xor_b32 v14, v14, v12")
    A("v_lshl_add_u32 v14, v14, 4, v7")
    A("v_add_u32 v15, 36864, v14")
    A("v_and_b32 v2, 15, v0")
    A("v_bfe_u32 v3, v0, 4, 2")
    A("v_lshrrev_b32 v10, 2, v2")
    A("v_lshl_add_u32 v11, v3, 3, v10")
    A("v_bfe_u32 v12, v2, 3, 1")
    A("v_and_b32 v13, 1, v3")
    A("v_lshl_add_u32 v12, v13, 1, v12")
    A("v_xor_b32 v12, s42, v12")
    A("v_and_b32 v13, 3, v2")
    A("v_lshlrev_b32 v13, 3, v13")
    A("v_lshl_add_u32 v12, v12, 5, v13")
    A("v_lshl_add_u32 v5, v11, 7, v12")
    A("v_add_u32 v6, 36864, v5")
    A("v_mul_u32_u24 v7, 1152, v11")
    A("v_add_u32 v7, v7, v12")
    A("v_add_u32 v10, 36864, v7")
    st_(A, 1)
    A("s_waitcnt vmcnt(0)")
    lds_signal(A, 0, "v8", "v9")
    lds_wait(A, 0, 4, "v8", "v11")
    st_(A, 2)
    dbg_time(A, 7)
    A("v_add_u32 v12, %d, v5" % L_WU)
    A("v_add_u32 v13, %d, v6" % L_WU)
    for kk in range(18):
        bg, bu, ko = ("v5", "v12", kk) if kk < 9 else ("v6", "v13", kk - 9)
        A("ds_read_b64_tr_b16 %s, %s offset:%d" % (v(G + 4 * kk, 2), bg, 4096 * ko))
        A("ds_read_b64_tr_b16 %s, %s offset:%d" % (v(G + 4 * kk + 2, 2), bg, 4096 * ko + 512))
        A("ds_read_b64_tr_b16 %s, %s offset:%d" % (v(U + 4 * kk, 2), bu, 4096 * ko))
        A("ds_read_b64_tr_b16 %s, %s offset:%d" % (v(U + 4 * kk + 2, 2), bu, 4096 * ko + 512))
    A("s_waitcnt lgkmcnt(0)")
    lds_signal(A, 1, "v8", "v9")
    st_(A, 7)
    A("v_mov_b32 v14, v7"); A("v_mov_b32 v15, v10")
    A("v_and_b32 v12, 7, v2")
    A("v_mul_u32_u24 v5, %d, v12" % XSTR)
    A("v_lshl_add_u32 v5, v3, 4, v5")
    A("v_add_u32 v5, %d, v5" % L_X)
    A("v_mul_u32_u24 v6, %d, v2" % HSTR)
    A("v_lshl_add_u32 v6, v3, 3, v6")
    A("s_lshl_b32 s43, s42, 5")
    A("s_add_u32 s43, s43, %d" % L_HS)
    A("v_add_u32 v6, s43, v6")
    A("v_mul_u32_u24 v7, %d, v12" % HSTR)
    A("v_lshl_add_u32 v7, v3, 4, v7")
    A("v_add_u32 v7, %d, v7" % L_HS)
    A("v_mul_u32_u24 v10, 2304, v12")
    A("v_lshl_add_u32 v10, v3, 4, v10")
    A("v_bfe_u32 v13, v2, 3, 1")
    A("v_lshl_add_u32 v10, v13, 8, v10")
    A("v_cmp_eq_u32 s[56:57], 1, v13")
    A("s_mul_i32 s43, s41, 18432")
    A("s_lshl_b32 s44, s42, 6")
    A("s_add_u32 s43, s43, s44")
    A("s_add_u32 s43, s43, %d" % F_PARTG)
    A("v_mov_b32 v13, %d" % L_TAG)
    for i in range(8):
        A("v_mov_b32 %s, 0" % v(232 + i))
    A("s_waitcnt lgkmcnt(0)")
    st_(A, 3)
    dbg_time(A, 12)
    lds_wait(A, 4, 4, "v8", "v11")
    st_(A, 4)
    A("ds_read_b32 v12, v13")
    XR = 240
    for kk in range(3):
        A("ds_read_b128 %s, v5 offset:%d" % (v(XR + 4 * kk, 4), 64 * kk))
    for kk in range(18):
        if kk + 3 < 18:
            A("ds_read_b128 %s, v5 offset:%d" % (v(XR + 4 * ((kk + 3) % 4), 4), 64 * (kk + 3)))
        A("s_waitcnt lgkmcnt(%d)" % min(3, 17 - kk))
        x = v(XR + 4 * (kk % 4), 4)
        A("v_mfma_f32_16x16x32_bf16 v[232:235], %s, %s, v[232:235]" % (v(G + 4 * kk, 4), x))
        A("v_mfma_f32_16x16x32_bf16 v[236:239], %s, %s, v[236:239]" % (v(U + 4 * kk, 4), x))
    A("v_readfirstlane_b32 %s, v12" % T)
    A.nop(6)
    round_pair(A, 232, 233, 16, 40); round_pair(A, 234, 235, 17, 40)
    for i in range(4):
        A("v_mul_f32 %s, 0xbfb8aa3b, %s" % (v(20 + i), v(232 + i)))
    for i in range(4):
        A("v_exp_f32 %s, %s" % (v(20 + i), v(20 + i)))
    round_pair(A, 236, 237, 16, 40); round_pair(A, 238, 239, 17, 40)
    for i in range(4):
        A("v_add_f32 %s, 1.0, %s" % (v(20 + i), v(20 + i)))
    for i in range(4):
        A("v_rcp_f32 %s, %s" % (v(20 + i), v(20 + i)))
    A.nop(1)
    for i in range(4):
        A("v_mul_f32 %s, %s, %s" % (v(232 + i), v(232 + i), v(20 + i)))
    A.nop(1)
    round_pair(A, 232, 233, 16, 40); round_pair(A, 234, 235, 17, 40)
    for i in range(4):
        A("v_mul_f32 %s, %s, %s" % (v(232 + i), v(232 + i), v(236 + i)))
    A.nop(1)
    A("v_cvt_pk_bf16_f32 v16, v232, v233")
    A("v_cvt_pk_bf16_f32 v17, v234, v235")
    A("v_cmp_gt_u32 vcc, 8, v2")
    A("s_and_saveexec_b64 s[44:45], vcc")
    A("ds_write_b64 v6, v[16:17]")
    A("s_mov_b64 exec, s[44:45]")
    A("s_mov_b32 s58, 0xffffff00")
    A("s_movk_i32 s59, 0x80")
    A("s_waitcnt lgkmcnt(0)")
    lds_signal(A, 5, "v8", "v9")
    lds_wait(A, 2, 4, "v8", "v11")
    for k in range(9):
        r = WD + 8 * k
        A("ds_read_b64_tr_b16 %s, v14 offset:%d" % (v(r, 2), 128 * k))
        A("ds_read_b64_tr_b16 %s, v14 offset:%d" % (v(r + 2, 2), 128 * k + 4 * 1152))
        A("ds_read_b64_tr_b16 %s, v15 offset:%d" % (v(r + 4, 2), 128 * k))
        A("ds_read_b64_tr_b16 %s, v15 offset:%d" % (v(r + 6, 2), 128 * k + 4 * 1152))
    lds_wait(A, 5, 4, "v8", "v11")
    st_(A, 5)
    A("ds_read_b128 v[16:19], v7")
    A("ds_read_b128 v[20:23], v7 offset:64")
    A("s_waitcnt lgkmcnt(0)")
    AC = 88
    for k in range(9):
        r = WD + 8 * k
        A("v_mfma_f32_16x16x32_bf16 %s, %s, v[16:19], 0" % (v(AC + 4 * k, 4), v(r, 4)))
    for k in range(9):
        r = WD + 8 * k
        A("v_mfma_f32_16x16x32_bf16 %s, %s, v[20:23], %s" % (v(AC + 4 * k, 4), v(r + 4, 4), v(AC + 4 * k, 4)))
    A.nop(4)
    for kp in range(5):
        k = 2 * kp
        ac, ac2 = AC + 4 * k, AC + 4 * min(k + 1, 8)
        o = 24 + 8 * kp
        for i in range(4):
            A("v_cndmask_b32 %s, %s, %s, s[56:57]" % (v(o + i), v(ac + i), v(ac2 + i)))
        for i in range(4):
            A("v_add_u32 %s, s59, %s" % (v(o + i), v(o + i)))
        A("v_lshrrev_b32 %s, 24, %s" % (v(o + 4), v(o + 3)))
        A("v_lshrrev_b32 %s, 16, %s" % (v(o + 5), v(o + 3)))
        A("v_lshrrev_b32 %s, 8, %s" % (v(o + 6), v(o + 3)))
        for i in range(3):
            A("v_bfi_b32 %s, s58, %s, %s" % (v(o + 4 + i), v(o + i), v(o + 4 + i)))
        A("v_xor_b32 %s, %s, %s" % (v(o + 7), v(o + 4), v(o + 5)))
        A("v_xor_b32 %s, %s, %s" % (v(o + 7), v(o + 7), v(o + 6)))
        A("v_xor_b32 %s, %s, %s" % (v(o + 7), T, v(o + 7)))
        if kp == 4:
            A("s_andn2_b64 exec, exec, s[56:57]")
        A("buffer_store_dwordx4 %s, v10, s[36:39], s43 offen offset:%d sc1" % (v(o + 4, 4), 512 * kp))
    A("s_mov_b64 exec, -1")
    st_(A, 6, end=True)
    dbg_time(A, 3)
    A("s_endpgm")
    A.label(Lt)
    A("s_setprio 3")
    A("s_lshl_b32 s60, s41, 2")
    A("s_add_u32 s60, s60, s42")
    A("s_sub_u32 s60, s60, 4")
    Q, WR, X = gen_ln(A)
    A("s_barrier")
    srd(A, 20, PWD, D * F * 2)
    A("v_and_b32 v4, 255, v0")
    A("v_lshrrev_b32 v232, 3, v4")
    A("v_mul_u32_u24 v233, 1152, v232")
    A("v_and_b32 v234, 7, v4")
    A("v_lshl_add_u32 v236, v234, 4, v233")
    A("v_bfe_u32 v235, v232, 1, 1")
    A("v_bfe_u32 v237, v232, 3, 1")
    A("v_lshl_add_u32 v235, v237, 1, v235")
    A("v_lshlrev_b32 v235, 1, v235")
    A("v_xor_b32 v235, v235, v234")
    A("v_lshl_add_u32 v238, v235, 4, v233")
    A("v_add_u32 v239, 36864, v238")
    A("s_mul_i32 s43, s41, 73728")
    A("s_add_u32 s44, s43, 36864")
    for k in range(9):
        A("buffer_load_dwordx4 %s, v236, s[20:23], s43 offen offset:%d" % (v(160 + 4 * k, 4), 128 * k) + NTS)
    for k in range(9):
        A("buffer_load_dwordx4 %s, v236, s[20:23], s44 offen offset:%d" % (v(196 + 4 * k, 4), 128 * k) + NTS)
    finish_tag(A)
    gen_ln_compute(A, Q, WR, X, extra=18)
    A("s_setprio %d" % int(os.environ.get("TPRIO", 1)))
    srd(A, 16, PQ, S * ROWB)
    A("v_and_b32 v1, 63, v0")
    A("v_and_b32 v4, 255, v0")
    A("v_mov_b32 v8, %d" % L_CNT)
    A("v_mov_b32 v9, 1")
    A("v_lshlrev_b32 v15, 2, v1")
    A("v_lshlrev_b32 v16, 4, v1")
    A("s_and_b32 s43, s42, 3")
    A("s_lshl_b32 s43, s43, 12")
    A("v_add_u32 v16, s43, v16")
    def key_loads():
        A("s_movk_i32 s43, %d" % F_KEYG)
        for i in range(4):
            A("buffer_load_dwordx4 %s, v16, s[36:39], s43 offen offset:%d sc1" % (v(40 + 4 * i, 4), 1024 * i))
    masked_poll(A, "key", key_loads, list(range(41, 56, 2)), int(os.environ.get("KEYSLEEP", 8)), int(os.environ.get("KEYPRE", 70)))
    A("s_setprio 3")
    st_(A, 3)
    dbg_time(A, 6)
    regs, sp = sort_desc(A, range(40, 56, 2), 41, SORT8)
    SK = 60
    free = [r for r in range(40, 57) if r not in regs and r != sp]
    cur, sp, oth = top8_wave(A, regs, sp, free[:8])
    for i in range(8):
        A("v_mov_b32 %s, %s" % (v(64 + i), v(cur[i])))
    A("s_and_b32 s43, s42, 3")
    A("s_lshl_b32 s43, s43, 5")
    A("s_add_u32 s43, s43, %d" % L_CAND)
    A("v_mov_b32 v16, s43")
    A("v_mov_b32 v31, %s" % T)
    A("v_mov_b32 v17, %d" % L_TAG)
    A("s_mov_b32 exec_lo, 0")
    A("s_mov_b32 exec_hi, 0x80000000")
    A("ds_write_b128 v16, v[64:67]")
    A("ds_write_b128 v16, v[68:71] offset:16")
    A("ds_write_b32 v17, v31")
    A("s_mov_b64 exec, -1")
    A("s_waitcnt lgkmcnt(0)")
    lds_signal(A, 3, "v8", "v9")
    lds_wait(A, 3, 4, "v8", "v11")
    A("v_mov_b32 v16, %d" % L_CAND)
    for i in range(8):
        A("ds_read_b128 %s, v16 offset:%d" % (v(64 + 4 * i, 4), 16 * i))
    A("s_waitcnt lgkmcnt(4)")
    c01, sp1 = merge8(A, list(range(64, 72)), list(range(72, 80)), list(range(40, 48)), 56)
    A("s_waitcnt lgkmcnt(0)")
    c23, sp2 = merge8(A, list(range(80, 88)), list(range(88, 96)), list(range(48, 56)), 57)
    for i in range(8):
        A("v_max_u32 %s, %s, %s" % (v(64 + i), v(c01[i]), v(c23[7 - i])))
    for i in range(8):
        A("v_readfirstlane_b32 %s, %s" % (s(SK + i), v(64 + i)))
    A.nop(3)
    st_(A, 5)
    A("s_and_b32 s45, s42, 3")
    A("s_mov_b32 s43, s60"); A("s_mov_b32 s44, s61")
    for w in range(1, 4):
        A("s_cmp_eq_u32 s45, %d" % w)
        A("s_cselect_b32 s43, %s, s43" % s(SK + 2 * w))
        A("s_cselect_b32 s44, %s, s44" % s(SK + 2 * w + 1))
    A("v_mov_b32 v16, s43"); A("v_mov_b32 v17, s44")
    A("v_cmp_lt_u32 vcc, 31, v1")
    A.nop(2)
    A("v_cndmask_b32 v16, v16, v17, vcc")
    A("v_and_b32 v16, 0xffff, v16")
    A("v_sub_u32 v16, 2047, v16")
    A("v_and_b32 v17, 31, v1")
    A("s_movk_i32 s43, 1152")
    A("v_mul_lo_u32 v18, v16, s43")
    A("v_lshl_add_u32 v18, v17, 2, v18")
    A("v_lshlrev_b32 v19, 3, v16")
    for i in range(9):
        A("buffer_load_dword %s, v18, s[16:19], 0 offen offset:%d" % (v(20 + i), 128 * i))
    def rg_loads():
        A("s_mov_b32 s43, %d" % F_ROWG)
        A("buffer_load_dwordx2 v[32:33], v19, s[36:39], s43 offen sc1")
    Lns = A.newlabel("nosel")
    A("s_cmp_lg_u32 s41, 0")
    A("s_cbranch_scc1 %s" % Lns)
    A("s_cmp_lg_u32 s42, 4")
    A("s_cbranch_scc1 %s" % Lns)
    for i in range(8):
        A("v_writelane_b32 v30, %s, %d" % (s(SK + i), i))
    A("v_lshlrev_b32 v36, 3, v1")
    A("s_movk_i32 s43, %d" % F_SELG)
    A("s_mov_b64 exec, 0xff")
    A("buffer_store_dwordx2 v[30:31], v36, s[36:39], s43 offen sc1")
    A("s_mov_b64 exec, -1")
    A.label(Lns)
    masked_poll(A, "rg", rg_loads, [33], 2, 0)
    stats_from_msd(A, 32, 64, 70)
    A("v_lshrrev_b32 v38, 5, v4")
    A("v_mul_u32_u24 v38, %d, v38" % XSTR)
    A("v_lshl_add_u32 v38, v17, 2, v38")
    A("v_add_u32 v38, %d, v38" % L_X)
    st_(A, 4)
    for i0 in range(0, 9, 3):
        streams = []
        for i in range(i0, i0 + 3):
            bs = 40 + 8 * (i % 3)
            ops = norm_ops(bs, bs + 2, bs + 4, 20 + i, 64)
            ops.append("v_cvt_pk_bf16_f32 %s, %s, %s" % (v(bs + 6), v(bs + 2), v(bs + 3)))
            ops.append("ds_write_b32 v38, %s offset:%d" % (v(bs + 6), 128 * i))
            streams.append(ops)
        interleave(A, streams)
    A("s_waitcnt lgkmcnt(0)")
    lds_signal(A, 4, "v8", "v9")
    st_(A, 6)
    dbg_time(A, 4)
    lds_wait(A, 1, 4, "v8", "v11")
    for k in range(9):
        A("ds_write_b128 v238, %s offset:%d" % (v(160 + 4 * k, 4), 128 * k))
    for k in range(9):
        A("ds_write_b128 v239, %s offset:%d" % (v(196 + 4 * k, 4), 128 * k))
    A("s_waitcnt lgkmcnt(0)")
    lds_signal(A, 2, "v8", "v9")
    Le = A.newlabel("noep")
    A("s_cmp_lg_u32 s41, 0")
    A("s_cbranch_scc1 %s" % Le)
    A("s_cmp_lg_u32 s42, 4")
    A("s_cbranch_scc1 %s" % Le)
    A("s_setprio 0")
    A("v_lshlrev_b32 v16, 2, v1")
    A("v_min_u32 v17, 15, v1")
    A("v_lshlrev_b32 v17, 2, v17")
    def al_loads():
        A("s_movk_i32 s43, %d" % F_ALIVE)
        A("buffer_load_dword v20, v16, s[36:39], s43 offen sc1")
        A("buffer_load_dword v21, v16, s[36:39], s43 offen offset:256 sc1")
        A("buffer_load_dword v22, v17, s[36:39], s43 offen offset:512 sc1")
    masked_poll(A, "al", al_loads, [20, 21, 22], 16, 0)
    A("v_mov_b32 v20, %s" % T)
    A("v_mov_b32 v21, %d" % F_EPOCH)
    A("s_mov_b64 exec, 1")
    A("buffer_store_dword v20, v21, s[36:39], 0 offen sc1")
    A("s_mov_b64 exec, -1")
    A.label(Le)
    A("s_endpgm")

def gen_spare_wg(A):
    A("s_lshl_b32 s60, s41, 3")
    A("s_add_u32 s60, s60, s42")
    A("s_add_u32 s60, s60, 288")
    Lx = A.newlabel("spx")
    A("s_cmp_ge_u32 s60, 512")
    A("s_cbranch_scc1 %s" % Lx)
    Q, WR, X = gen_ln(A)
    finish_tag(A)
    gen_ln_compute(A, Q, WR, X)
    A.label(Lx)
    A("s_endpgm")

def gen_kernel(A, name):
    kernel_header(A, name)
    Ldone = A.newlabel("done"); Lmoe = A.newlabel("moe"); Lsp = A.newlabel("spare")
    A("s_getpc_b64 s[96:97]")
    if os.environ.get("CALD"):
        A("s_memrealtime s[100:101]")
    A("s_cmp_ge_u32 s2, 256")
    A("s_cbranch_scc1 %s" % Ldone)
    A("s_load_dwordx4 s[68:71], s[0:1], %d" % KA_DBG)
    A("s_load_dwordx16 s[72:87], s[0:1], 0")
    A("s_load_dwordx8 s[88:95], s[0:1], %d" % KA_WG)
    A("v_lshrrev_b32 v1, 6, v0")
    A("s_and_b32 s30, s2, 7")
    A("s_lshr_b32 s31, s2, 3")
    A("v_readfirstlane_b32 s42, v1")
    A("s_mov_b32 s40, 0xffff0000")
    if not os.environ.get("NOICPF"):
        Lc = A.newlabel("noic")
        A("s_and_b32 s96, s96, 0xffffff00")
        A("s_and_b32 s97, s97, 0xffff")
        A("s_mov_b32 s98, L_code_end-%s" % name)
        A("s_mov_b32 s99, 0x00020000")
        A("v_and_b32 v243, 63, v0")
        A("v_lshlrev_b32 v243, 4, v243")
        A("s_lshl_b32 s95, s31, 10") if False else None
        A("s_lshl_b32 s3, s31, 10")
        A("v_cmp_lt_u32 vcc, 447, v0")
        A("s_cbranch_vccz %s" % Lc)
        A("buffer_load_dwordx4 v[244:247], v243, s[96:99], s3 offen")
        A.label(Lc)
    A("s_waitcnt lgkmcnt(0)")
    A("s_load_dword s%d, s[%d:%d], %d" % (TAG, PWS, PWS + 1, F_EPOCH))
    srd(A, 36, PWS, WS_SIZE)
    A("s_lshl_b32 s3, s2, 3")
    A("s_add_u32 s3, s3, s42")
    st_(A, 0)
    A("s_cmp_ge_u32 s31, 27")
    A("s_cbranch_scc1 %s" % Lsp)
    A("s_cmp_ge_u32 s31, 18")
    A("s_cbranch_scc1 %s" % Lmoe)
    A("s_mul_i32 s41, s30, 18")
    A("s_add_u32 s41, s41, s31")
    gen_conv_wg(A)
    A.label(Lmoe)
    A("s_mul_i32 s41, s30, 9")
    A("s_add_u32 s41, s41, s31")
    A("s_sub_u32 s41, s41, 18")
    gen_moe_wg(A)
    A.label(Lsp)
    A("s_mul_i32 s41, s30, 5")
    A("s_add_u32 s41, s41, s31")
    A("s_sub_u32 s41, s41, 27")
    gen_spare_wg(A)
    A.label(Ldone)
    A("s_endpgm")
    A.label("L_code_end")
    return kernel_desc(name, 256, 102, 256)
```

```python
from common import *
import common, os
from collections import deque
from conv2 import CS, CH_LDS, H_OFF, POLL_MAX, conv_schedule
from moe2 import wave_max_u32, L_WG, L_WU, L_X, L_HS, L_U, L_CAND, XSTR, HSTR
from moe3 import SORT8, sort_desc, rounds

F_EPOCH = 0x0
F_SELG = 0x100
F_ALIVE = 0x1000
F_KEYG = 0x2000
F_ROWG = 0x8000
F_LNF = 0x6000
F_URC = 0x100000 + 0x300000
F_UR = 0x20000
F_PARTG = 0x500000
F_XT = 0x800000
F_XC = 0x480000
L_TAG = 162304

PQ, PK, PV, PSHK, PSSMK, PSSMD, PWR, PWG, PWU, PWD, POUT, PWS = 72, 74, 76, 78, 80, 82, 86, 88, 90, 92, 94, 70
TAG = 46
QNT = '' if os.environ.get('QDEF') else ' nt'
NTS = '' if os.environ.get('NONT') else ' nt'
LIGHT = os.environ.get("STAMPS") == "2"
def st_(A, n, end=False):
    if LIGHT:
        if n != 0 and not end:
            return
        n = 15 if end else 0
    stamp(A, n, 36, 3, vt=254, st=96)

MISC = 4 * CH_LDS
FLAGS = MISC
SIDE = MISC + 64
RED = SIDE + 256
YOFF = H_OFF
W1, W0 = 20, 28
E_, G_, F_ = 36, 44, 50
UREG = 56
RING, NR, ACC, BS = 64, 6, 88, 120

DBGT = bool(os.environ.get("DBGT"))
def dbg_time(A, slot, invert=False):
    if not DBGT:
        return
    L = A.newlabel("dbgs")
    A("s_and_b32 s100, s42, 3")
    A("s_cmp_lg_u32 s100, 0")
    A("s_cbranch_scc1 %s" % L)
    A("s_cmp_eq_u32 s2, %d" % (8 if os.environ.get("ORD", "B") == "A" else 120))
    A("s_cselect_b32 s100, 1, 0")
    A("s_cmp_eq_u32 s2, %d" % (152 if os.environ.get("ORD", "B") == "A" else 48))
    A("s_cselect_b32 s100, 1, s100")
    A("s_cmp_eq_u32 s100, 0")
    A("s_cbranch_scc1 %s" % L)
    A("s_memrealtime s[96:97]")
    A("s_waitcnt lgkmcnt(0)")
    A("v_mov_b32 v252, s96")
    A("v_mov_b32 v253, %d" % (4 * slot))
    A("s_mov_b64 s[98:99], exec")
    A("s_mov_b64 exec, 1")
    A("global_store_dword v253, v252, s[68:69]")
    A("s_mov_b64 exec, s[98:99]")
    A.label(L)

def poll_head(A, cnt="s52"):
    A("s_mov_b32 %s, 0" % cnt)

def poll_tail(A, Lloop, Ldone, cnt="s52", sleep=1):
    A("s_add_u32 %s, %s, 1" % (cnt, cnt))
    A("s_cmp_gt_u32 %s, %d" % (cnt, POLL_MAX))
    A("s_cbranch_scc1 %s" % Ldone)
    A("s_sleep %d" % sleep)
    A("s_branch %s" % Lloop)

def masked_poll(A, name, emit_loads, tagregs, sleep, pre_sleep=0, full_exec="-1"):
    T = "s%d" % TAG
    Lp = A.newlabel(name + "p"); Ld = A.newlabel(name + "ok")
    if pre_sleep:
        A("s_sleep %d" % pre_sleep)
    A("s_mov_b32 s52, 0")
    A.label(Lp)
    emit_loads()
    A("s_waitcnt vmcnt(0)")
    A("v_cmp_eq_u32 vcc, %s, %s" % (T, v(tagregs[0])))
    for r in tagregs[1:]:
        A("v_cmp_eq_u32 s[54:55], %s, %s" % (T, v(r)))
        A("s_and_b64 vcc, vcc, s[54:55]")
    A("s_andn2_b64 exec, exec, vcc")
    A("s_cbranch_scc0 %s" % Ld)
    A("s_add_u32 s52, s52, 1")
    A("s_cmp_gt_u32 s52, %d" % POLL_MAX)
    A("s_cbranch_scc1 %s" % Ld)
    A("s_sleep %d" % sleep)
    A("s_branch %s" % Lp)
    A.label(Ld)
    A("s_mov_b64 exec, %s" % full_exec)

def first_then_poll(A, name, emit_loads, tagregs, sleep, ex, first_cnt=0):
    T = "s%d" % TAG
    Lp = A.newlabel(name + "p"); Ld = A.newlabel(name + "ok")
    A("s_mov_b32 s52, 0")
    A("s_waitcnt vmcnt(%d)" % first_cnt)
    A.label(Lp)
    A("v_cmp_eq_u32 vcc, %s, %s" % (T, v(tagregs[0])))
    for r in tagregs[1:]:
        A("v_cmp_eq_u32 s[54:55], %s, %s" % (T, v(r)))
        A("s_and_b64 vcc, vcc, s[54:55]")
    A("s_andn2_b64 exec, exec, vcc")
    A("s_cbranch_scc0 %s" % Ld)
    A("s_add_u32 s52, s52, 1")
    A("s_cmp_gt_u32 s52, %d" % POLL_MAX)
    A("s_cbranch_scc1 %s" % Ld)
    A("s_sleep %d" % sleep)
    emit_loads()
    A("s_waitcnt vmcnt(0)")
    A("s_branch %s" % Lp)
    A.label(Ld)
    A("s_mov_b64 exec, -1")

def ln_hint_poll(A, vaddr, r0, sleep, pre):
    def loads():
        A("s_movk_i32 s51, %d" % F_LNF)
        A("buffer_load_dwordx4 %s, %s, s[36:39], s51 offen sc1" % (v(r0, 4), vaddr))
        A("buffer_load_dwordx4 %s, %s, s[36:39], s51 offen offset:1024 sc1" % (v(r0 + 4, 4), vaddr))
    masked_poll(A, "lnh", loads, list(range(r0, r0 + 8)), sleep, pre)

def stats_from_msd(A, g, st, t):
    A("v_and_b32 %s, s40, %s" % (v(st + 4), v(g)))
    A("v_lshlrev_b32 %s, 16, %s" % (v(st), v(g)))
    A("v_rcp_f32 %s, %s" % (v(st + 2), v(st + 4)))
    A("v_xor_b32 %s, 0x80000000, %s" % (v(st), v(st)))
    A("v_xor_b32 %s, 0x80000000, %s" % (v(st + 4), v(st + 4)))
    A("v_fma_f32 %s, %s, %s, 1.0" % (v(t), v(st + 4), v(st + 2)))
    A("v_mov_b32 %s, %s" % (v(st + 1), v(st)))
    A("v_fma_f32 %s, %s, %s, %s" % (v(st + 2), v(t), v(st + 2), v(st + 2)))
    A("v_mov_b32 %s, %s" % (v(st + 5), v(st + 4)))
    A("v_mov_b32 %s, %s" % (v(st + 3), v(st + 2)))

LK, LV, LQ, SG, SX, SGS = 0, 17408, 33792, 50176, 67584, 272

def row_xor_reduce(A, regs):
    for ctl in ("quad_perm:[1,0,3,2]", "quad_perm:[2,3,0,1]", "row_half_mirror", "row_mirror"):
        if len(regs) < 3:
            A.nop(3 - len(regs))
        for r in regs:
            A("v_xor_b32_dpp %s, %s, %s %s row_mask:0xf bank_mask:0xf" % (v(r), v(r), v(r), ctl))

def gen_kv_issue(A):
    srd(A, 48, PK, S * ROWB)
    srd(A, 52, PV, S * ROWB)
    A("v_and_b32 v1, 63, v0")
    A("v_lshrrev_b32 v4, 3, v1")
    A("v_mul_u32_u24 v4, 1152, v4")
    A("v_and_b32 v5, 7, v1")
    A("v_lshl_add_u32 v4, v5, 4, v4")
    A("s_mul_i32 s62, s61, %d" % (128 * 1152))
    A("s_lshl_b32 s63, s60, 7")
    A("s_add_u32 s62, s62, s63")
    A("s_mul_i32 s63, s42, 9216")
    A("s_add_u32 s62, s62, s63")
    A("s_sub_u32 s63, s62, 9216")
    A("s_lshl_b32 s64, s42, 10")
    srd(A, 16, PQ, S * ROWB)
    for i in range(4):
        A("s_mov_b32 m0, s64")
        A("s_add_u32 s65, s64, %d" % LV)
        A("buffer_load_dwordx4 v4, s[48:51], s63 offen lds" + NTS)
        A("s_mov_b32 m0, s65")
        A("s_add_u32 s65, s64, %d" % LQ)
        A("buffer_load_dwordx4 v4, s[52:55], s62 offen lds" + NTS)
        A("s_mov_b32 m0, s65")
        A("s_add_u32 s64, s64, 4096")
        A("buffer_load_dwordx4 v4, s[16:19], s62 offen lds" + NTS)
        A("s_add_u32 s63, s63, %d" % (32 * 1152))
        A("s_add_u32 s62, s62, %d" % (32 * 1152))
    Ln = A.newlabel("nok17")
    A("s_cmp_lg_u32 s42, 0")
    A("s_cbranch_scc1 %s" % Ln)
    A("s_mov_b32 m0, s64")
    A("s_nop 0")
    A("buffer_load_dwordx4 v4, s[48:51], s63 offen lds" + NTS)
    A.label(Ln)

def gen_kv_addr(A):
    srd(A, 56, PSHK, D * 8)
    A("v_and_b32 v2, 31, v0")
    A("s_lshl_b32 s63, s60, 9")
    A("v_lshl_add_u32 v29, v2, 4, s63")
    A("buffer_load_dwordx4 v[32:35], v29, s[56:59], 0 offen")

def gen_kv_addr2(A):
    A("v_lshrrev_b32 v3, 5, v0")
    A("v_lshlrev_b32 v6, 10, v3")
    A("v_lshl_add_u32 v6, v2, 2, v6")
    A("v_mul_u32_u24 v7, %d, v2" % (2 * SGS))
    A("v_sub_u32 v8, 15, v3")
    A("v_lshl_add_u32 v7, v8, 4, v7")
    A("v_add_u32 v7, %d, v7" % SG)
    A("v_bfe_u32 v10, v0, 4, 2")
    A("v_and_b32 v11, 15, v0")
    A("v_mul_u32_u24 v8, %d, v10" % SGS)
    A("v_lshl_add_u32 v8, v11, 4, v8")
    A("s_mul_i32 s63, s42, %d" % (8 * SGS))
    A("s_add_u32 s63, s63, %d" % SG)
    A("v_add_u32 v8, s63, v8")
    A("v_lshlrev_b32 v9, 12, v10")
    A("v_lshl_add_u32 v9, v11, 4, v9")
    A("s_lshl_b32 s63, s60, 6")
    A("s_lshl_b32 s64, s42, 3")
    A("s_add_u32 s63, s63, s64")
    A("s_lshl_b32 s65, s63, 12")
    A("s_lshl_b32 s64, s61, 8")
    A("s_sub_u32 s65, s65, s64")
    A("s_add_u32 s65, s65, %d" % (F_UR + 240 * 16))
    A("v_add_u32 v9, s65, v9")
    A("v_lshlrev_b32 v12, 7, v10")
    A("s_lshl_b32 s65, s63, 7")
    A("s_lshl_b32 s64, s61, 3")
    A("s_sub_u32 s65, s65, s64")
    A("s_add_u32 s65, s65, %d" % (F_URC + 120))
    A("v_add_u32 v12, s65, v12")
    A("v_cmp_eq_u32 s[66:67], 0, v11")
    A("v_mul_u32_u24 v13, %d, v2" % (2 * SGS))
    A("v_lshl_add_u32 v13, v3, 4, v13")
    A("v_add_u32 v13, %d, v13" % SX)
    A("v_lshlrev_b32 v48, 12, v10")
    A("v_lshl_add_u32 v48, v11, 4, v48")
    A("s_lshl_b32 s65, s63, 12")
    A("s_lshl_b32 s64, s61, 8")
    A("s_add_u32 s65, s65, s64")
    A("s_add_u32 s65, s65, %d" % F_XT)
    A("v_add_u32 v48, s65, v48")
    A("v_lshlrev_b32 v49, 7, v10")
    A("s_lshl_b32 s65, s63, 7")
    A("s_lshl_b32 s64, s61, 3")
    A("s_add_u32 s65, s65, s64")
    A("s_add_u32 s65, s65, %d" % F_XC)
    A("v_add_u32 v49, s65, v49")

def gen_kv_compute(A):
    A("s_barrier")
    st_(A, 1)
    dbg_time(A, 8)
    for i in range(11):
        A("ds_read_b32 %s, v6 offset:%d" % (v(14 + i), LK + (5 + i) * 128))
    for i in range(8):
        A("ds_read_b32 %s, v6 offset:%d" % (v(40 + i), LV + i * 128))
    for i in range(8):
        A("ds_read_b32 %s, v6 offset:%d" % (v(144 + i), LQ + i * 128))
    A("v_lshlrev_b32 v54, 16, v32"); A("v_lshlrev_b32 v55, 16, v34")
    A("v_and_b32 v56, s40, v32");    A("v_and_b32 v57, s40, v34")
    A("v_lshlrev_b32 v58, 16, v33"); A("v_lshlrev_b32 v59, 16, v35")
    A("v_and_b32 v60, s40, v33");    A("v_and_b32 v61, s40, v35")
    DOT = bool(os.environ.get("DOT2", "1") != "0")
    W, K, KV = 54, 62, 100
    A("s_mov_b32 s64, 0x05040100"); A("s_mov_b32 s65, 0x07060302")
    if DOT:
        A("v_and_b32 v62, 0xffff, v32"); A("v_lshlrev_b32 v63, 16, v34")
        A("v_lshrrev_b32 v64, 16, v32"); A("v_and_b32 v65, s40, v34")
        A("v_and_b32 v66, 0xffff, v33"); A("v_lshlrev_b32 v67, 16, v35")
        A("v_lshrrev_b32 v68, 16, v33"); A("v_and_b32 v69, s40, v35")
        A("v_mov_b32 v70, 0x3f803f80")
        A("v_mov_b32 v71, 0")
        A("s_waitcnt lgkmcnt(0)")
        for j in range(4):
            A("v_perm_b32 %s, %s, %s, s64" % (v(152 + j), v(144 + 2 * j + 1), v(144 + 2 * j)))
            A("v_perm_b32 %s, %s, %s, s65" % (v(156 + j), v(144 + 2 * j + 1), v(144 + 2 * j)))
        A("ds_write_b128 v13, v[152:155]")
        A("ds_write_b128 v13, v[156:159] offset:%d" % SGS)
        def ch_ops(i, c, t0):
            a_, b_, p_, q_ = t0, t0 + 1, t0 + 2, t0 + 3
            o = []
            d2 = lambda d, x, y, z: "v_dot2_f32_bf16 %s, %s, %s, %s" % (v(d), v(x), v(y), z)
            o.append(d2(a_, 14 + i + 0, 62 + 2 * 3 + c, "0"))
            o.append(d2(b_, 14 + i + 1, 62 + 2 * 2 + c, "0"))
            o.append(d2(q_, 14 + i + 2, 62 + 2 * 1 + c, "0"))
            o.append("v_cvt_pk_bf16_f32 %s, %s, %s" % (v(p_), v(a_), v(b_)))
            o.append(d2(b_, 14 + i + 3, 62 + 2 * 0 + c, "0"))
            o.append(d2(a_, p_, 70, "0"))
            o.append("s_nop 0")
            o.append("v_cvt_pk_bf16_f32 %s, %s, %s" % (v(p_), v(a_), v(q_)))
            o.append("s_nop 0")
            o.append(d2(a_, p_, 70, "0"))
            o.append("s_nop 0")
            o.append("v_cvt_pk_bf16_f32 %s, %s, %s" % (v(p_), v(a_), v(b_)))
            o.append("s_nop 0")
            o.append(d2(a_, p_, 70, "0"))
            o.append("s_nop 0")
            if c == 0:
                o.append("v_cvt_pk_bf16_f32 %s, %s, %s" % (v(p_), v(a_), v(71)))
            else:
                o.append("v_cvt_pk_bf16_f32 %s, %s, %s" % (v(p_), v(71), v(a_)))
            o.append("s_nop 0")
            o.append(d2(KV + 2 * i + c, p_, 40 + i, "0"))
            return [x for x in o if x != "s_nop 0"]
        for i in range(0, 8, 4):
            streams = []
            for ii in range(4):
                for c in range(2):
                    streams.append(ch_ops(i + ii, c, 72 + 4 * (2 * ii + c) if (2 * ii + c) < 7 else 132))
            interleave(A, streams)
        A.nop(3)
        for c in range(2):
            for j in range(4):
                A("v_cvt_pk_bf16_f32 %s, %s, %s" % (v(116 + 4 * c + j), v(KV + 2 * (7 - 2 * j) + c), v(KV + 2 * (6 - 2 * j) + c)))
    else:
        A("s_waitcnt lgkmcnt(15)")
        for i in range(11):
            unpack_pair(A, K + 2 * i, K + 2 * i + 1, 14 + i, 40)
        A("s_waitcnt lgkmcnt(0)")
        for j in range(4):
            A("v_perm_b32 %s, %s, %s, s64" % (v(152 + j), v(144 + 2 * j + 1), v(144 + 2 * j)))
            A("v_perm_b32 %s, %s, %s, s65" % (v(156 + j), v(144 + 2 * j + 1), v(144 + 2 * j)))
        A("ds_write_b128 v13, v[152:155]")
        A("ds_write_b128 v13, v[156:159] offset:%d" % SGS)
        def pr_(r):
            return "v[%d:%d]" % (r, r + 1)
        def row_ops(i, acc, tmp, t3):
            P = Asm()
            P("v_pk_mul_f32 %s, %s, %s" % (pr_(acc), pr_(K + 2 * (i + 0)), pr_(W + 6)))
            round_pair(P, acc, acc + 1, t3, 40)
            for t in range(1, 4):
                P("v_pk_mul_f32 %s, %s, %s" % (pr_(tmp), pr_(K + 2 * (i + t)), pr_(W + 2 * (3 - t))))
                round_pair(P, tmp, tmp + 1, t3, 40)
                P("v_pk_add_f32 %s, %s, %s" % (pr_(acc), pr_(acc), pr_(tmp)))
                round_pair(P, acc, acc + 1, t3, 40)
            unpack_pair(P, tmp, tmp + 1, 40 + i, 40)
            P("v_pk_mul_f32 %s, %s, %s" % (pr_(KV + 2 * i), pr_(acc), pr_(tmp)))
            return [l.strip() for l in P.lines]
        for i in range(0, 8, 4):
            interleave(A, [row_ops(i, 84, 86, 88), row_ops(i + 1, 90, 92, 94), row_ops(i + 2, 132, 134, 136), row_ops(i + 3, 138, 140, 142)])
        for c in range(2):
            for j in range(4):
                A("v_cvt_pk_bf16_f32 %s, %s, %s" % (v(116 + 4 * c + j), v(KV + 2 * (7 - 2 * j) + c), v(KV + 2 * (6 - 2 * j) + c)))
    A("ds_write_b128 v7, v[116:119]")
    A("ds_write_b128 v7, v[120:123] offset:%d" % SGS)
    A("s_waitcnt lgkmcnt(0)")
    A("s_barrier")
    A("ds_read_b128 v[116:119], v8")
    A("ds_read_b128 v[120:123], v8 offset:%d" % (4 * SGS))
    A("s_movk_i32 s63, 16384")
    A("s_waitcnt lgkmcnt(1)")
    A("buffer_store_dwordx4 v[116:119], v9, s[36:39], 0 offen sc1")
    A("v_xor_b32 v124, v116, v117"); A("v_xor_b32 v126, v118, v119")
    A("s_waitcnt lgkmcnt(0)")
    A("buffer_store_dwordx4 v[120:123], v9, s[36:39], s63 offen sc1")
    A("v_xor_b32 v125, v120, v121"); A("v_xor_b32 v127, v122, v123")
    A("v_xor_b32 v124, v124, v126"); A("v_xor_b32 v125, v125, v127")
    row_xor_reduce(A, [124, 125])
    A("v_xor_b32 v128, s%d, v124" % TAG); A("v_xor_b32 v130, s%d, v125" % TAG)
    A("v_mov_b32 v129, s%d" % TAG); A("v_mov_b32 v131, s%d" % TAG)
    A("s_mov_b64 exec, s[66:67]")
    A("buffer_store_dwordx2 v[128:129], v12, s[36:39], 0 offen sc1")
    A("buffer_store_dwordx2 v[130:131], v12, s[36:39], 0 offen offset:512 sc1")
    A("s_mov_b64 exec, -1")
    A("ds_read_b128 v[116:119], v8 offset:%d" % (SX - SG))
    A("ds_read_b128 v[120:123], v8 offset:%d" % (SX - SG + 4 * SGS))
    A("s_waitcnt lgkmcnt(1)")
    A("buffer_store_dwordx4 v[116:119], v48, s[36:39], 0 offen sc1")
    A("v_xor_b32 v124, v116, v117"); A("v_xor_b32 v126, v118, v119")
    A("s_waitcnt lgkmcnt(0)")
    A("buffer_store_dwordx4 v[120:123], v48, s[36:39], s63 offen sc1")
    A("v_xor_b32 v125, v120, v121"); A("v_xor_b32 v127, v122, v123")
    A("v_xor_b32 v124, v124, v126"); A("v_xor_b32 v125, v125, v127")
    row_xor_reduce(A, [124, 125])
    A("v_xor_b32 v128, s%d, v124" % TAG); A("v_xor_b32 v130, s%d, v125" % TAG)
    A("s_mov_b64 exec, s[66:67]")
    A("buffer_store_dwordx2 v[128:129], v49, s[36:39], 0 offen sc1")
    A("buffer_store_dwordx2 v[130:131], v49, s[36:39], 0 offen offset:512 sc1")
    A("s_mov_b64 exec, -1")
    st_(A, 2)

def gen_ln(A, two=False):
    srd(A, 48, PQ, S * ROWB)
    srd(A, 56, PWR, D * 2)
    A("v_and_b32 v1, 63, v0")
    A("v_and_b32 v2, 15, v0")
    A("v_lshrrev_b32 v3, 4, v1")
    A("s_lshl_b32 s61, s60, 2")
    A("v_add_u32 v30, s61, v3")
    A("s_movk_i32 s62, 1152")
    A("v_mul_lo_u32 v6, v30, s62")
    A("v_lshl_add_u32 v6, v2, 3, v6")
    A("v_lshlrev_b32 v7, 3, v2")
    Q, WR, X = 64, 84, 104
    for i in range(9):
        A("buffer_load_dwordx2 %s, v6, s[48:51], 0 offen offset:%d" % (v(Q + 2 * i, 2), 128 * i) + QNT)
    for i in range(9):
        A("buffer_load_dwordx2 %s, v7, s[56:59], 0 offen offset:%d" % (v(WR + 2 * i, 2), 128 * i))
    if two:
        A("s_mov_b32 s62, %d" % (1024 * 1152))
        for i in range(9):
            A("buffer_load_dwordx2 %s, v6, s[48:51], s62 offen offset:%d" % (v(144 + 2 * i, 2), 128 * i))
    return Q, WR, X

def gen_ln_compute(A, Q, WR, X, extra=0, first_wait=None):
    A("s_waitcnt vmcnt(%d)" % (9 + extra if first_wait is None else first_wait))
    st_(A, 1)
    for i in range(18):
        unpack_pair(A, X + 2 * i, X + 2 * i + 1, Q + i, 40)
    A("v_pk_add_f32 v[8:9], %s, %s" % (v(X, 2), v(X + 2, 2)))
    A("v_pk_add_f32 v[10:11], %s, %s" % (v(X + 4, 2), v(X + 6, 2)))
    for i in range(4, 18, 2):
        A("v_pk_add_f32 v[8:9], v[8:9], %s" % v(X + 2 * i, 2))
        A("v_pk_add_f32 v[10:11], v[10:11], %s" % v(X + 2 * i + 2, 2))
    A("v_pk_add_f32 v[8:9], v[8:9], v[10:11]")
    A.nop(1)
    A("v_add_f32 v8, v8, v9")
    allreduce16_add(A, 8)
    A("v_mul_f32 v8, 0x3ae38e39, v8")
    A("v_sub_f32 v12, 0, v8")
    A("v_sub_f32 v13, 0, v8")
    for r in (14, 15, 16, 17):
        A("v_mov_b32 %s, 0" % v(r))
    for i in range(0, 18, 2):
        A("v_pk_add_f32 v[18:19], %s, v[12:13]" % v(X + 2 * i, 2))
        A("v_pk_add_f32 v[20:21], %s, v[12:13]" % v(X + 2 * i + 2, 2))
        A("v_pk_fma_f32 v[14:15], v[18:19], v[18:19], v[14:15]")
        A("v_pk_fma_f32 v[16:17], v[20:21], v[20:21], v[16:17]")
    A("v_pk_add_f32 v[14:15], v[14:15], v[16:17]")
    A.nop(1)
    A("v_add_f32 v14, v14, v15")
    allreduce16_add(A, 14)
    A("v_mul_f32 v14, 0x3ae38e39, v14")
    A.nop(1)
    round_pair(A, 8, 14, 9, 40)
    A("v_add_f32 v14, 0x3727c5ac, v14")
    A.nop(1)
    A("v_cvt_pk_bf16_f32 v9, v14, v14")
    A("v_lshlrev_b32 v14, 16, v9")
    A("v_sqrt_f32 v14, v14")
    A.nop(1)
    A("v_cvt_pk_bf16_f32 v9, v14, v14")
    A("v_lshlrev_b32 v14, 16, v9")
    A("v_rcp_f32 v15, v14")
    A.nop(1)
    A("v_fma_f32 v16, -v14, v15, 1.0")
    A("v_fma_f32 v15, v16, v15, v15")
    A("v_sub_f32 v12, 0, v8"); A("v_sub_f32 v13, 0, v8")
    A("v_mov_b32 v16, v15"); A("v_mov_b32 v17, v15")
    for r in (22, 23, 24, 25):
        A("v_mov_b32 %s, 0" % v(r))
    A("s_waitcnt vmcnt(%d)" % (extra if first_wait is None else first_wait))
    def ops(i, tm, acc):
        x0 = X + 2 * i
        P = Asm()
        P("v_pk_add_f32 %s, %s, v[12:13]" % (v(x0, 2), v(x0, 2)))
        round_pair(P, x0, x0 + 1, tm, 40)
        P("v_pk_mul_f32 %s, %s, v[16:17]" % (v(x0, 2), v(x0, 2)))
        round_pair(P, x0, x0 + 1, tm, 40)
        unpack_pair(P, tm + 2, tm + 3, WR + i, 40)
        P("v_pk_fma_f32 %s, %s, %s, %s" % (v(acc, 2), v(x0, 2), v(tm + 2, 2), v(acc, 2)))
        return [l.strip() for l in P.lines]
    for i in range(0, 18, 2):
        interleave(A, [ops(i, 26, 22), ops(i + 1, 32, 24)])
    A("v_pk_add_f32 v[22:23], v[22:23], v[24:25]")
    A.nop(1)
    A("v_add_f32 v22, v22, v23")
    allreduce16_add(A, 22)
    A.nop(1)
    A("v_cvt_pk_bf16_f32 v23, v22, v22")
    A("v_lshlrev_b32 v23, 16, v23")
    A("v_ashrrev_i32 v24, 31, v23")
    A("v_or_b32 v24, 0x80000000, v24")
    A("v_xor_b32 v23, v23, v24")
    A("v_and_b32 v23, s40, v23")
    A("v_sub_u32 v24, 2047, v30")
    A("v_or_b32 v26, v23, v24")
    A("v_mov_b32 v27, s%d" % TAG)
    A("v_cvt_pk_bf16_f32 v32, v8, v14")
    A("v_mov_b32 v33, s%d" % TAG)
    A("v_lshlrev_b32 v28, 3, v30")
    A("s_movk_i32 s61, %d" % F_KEYG)
    A("s_mov_b32 s62, %d" % F_ROWG)
    A("v_cmp_eq_u32 vcc, 0, v2")
    A("s_and_saveexec_b64 s[64:65], vcc")
    A("buffer_store_dwordx2 v[26:27], v28, s[36:39], s61 offen sc1")
    A("buffer_store_dwordx2 v[32:33], v28, s[36:39], s62 offen sc1")
    A("s_mov_b64 exec, s[64:65]")
    st_(A, 2)

def load_verified_runs(A, pay_soff, chk_soff, vlane16, vchk8, vhint8, P, pre, sleep):
    C, Tm = P + 16, P + 20
    def hint_loads():
        A("buffer_load_dwordx2 %s, %s, s[36:39], %s offen sc1" % (v(C, 2), vhint8, chk_soff))
    masked_poll(A, "vh", hint_loads, [C + 1], sleep, pre)
    Lp = A.newlabel("vp"); Ld = A.newlabel("vok")
    A("s_mov_b32 s52, 0")
    A.label(Lp)
    for i in range(4):
        A("buffer_load_dwordx4 %s, %s, s[36:39], %s offen offset:%d sc1" % (v(P + 4 * i, 4), vlane16, pay_soff, 1024 * i))
    for i in range(4):
        A("buffer_load_dword %s, %s, s[36:39], %s offen offset:%d sc1" % (v(C + i), vchk8, chk_soff, 32 * i))
    A("s_waitcnt vmcnt(0)")
    for i in range(4):
        A("v_xor_b32 %s, %s, %s" % (v(Tm + i), v(P + 4 * i), v(P + 1 + 4 * i)))
    for i in range(4):
        A("v_xor_b32 %s, %s, %s" % (v(Tm + 4 + i), v(P + 2 + 4 * i), v(P + 3 + 4 * i)))
    for i in range(4):
        A("v_xor_b32 %s, %s, %s" % (v(Tm + i), v(Tm + i), v(Tm + 4 + i)))
    row_xor_reduce(A, [Tm, Tm + 1, Tm + 2, Tm + 3])
    for i in range(4):
        A("v_xor_b32 %s, %s, %s" % (v(Tm + i), v(Tm + i), v(C + i)))
    A("v_cmp_eq_u32 vcc, s%d, %s" % (TAG, v(Tm)))
    for i in range(1, 4):
        A("v_cmp_eq_u32 s[54:55], s%d, %s" % (TAG, v(Tm + i)))
        A("s_and_b64 vcc, vcc, s[54:55]")
    A("s_cmp_eq_u64 vcc, -1")
    A("s_cbranch_scc1 %s" % Ld)
    A("s_add_u32 s52, s52, 1")
    A("s_cmp_gt_u32 s52, %d" % POLL_MAX)
    A("s_cbranch_scc1 %s" % Ld)
    A("s_sleep 2")
    A("s_branch %s" % Lp)
    A.label(Ld)

def build_ops(W, N, off):
    ops = []
    for k in range(7):
        ops.append("v_alignbit_b32 %s, %s, %s, 16" % (v(E_ + k), v(W + k + 1), v(W + k)))
    ops.append("ds_write_b128 v11, %s offset:%d" % (v(W + 2, 4), 4 * CS + off))
    for k in range(3):
        ops.append("v_pk_mov_b32 %s, %s, %s op_sel:[1,0]" % (v(G_ + 2 * k, 2), v(W + 2 * k, 2), v(W + 2 * k + 2, 2)))
    ops.append("ds_write_b128 v11, %s offset:%d" % (v(E_, 4), 1 * CS + off))
    ops.append("ds_write_b128 v11, %s offset:%d" % (v(E_ + 2, 4), 5 * CS + off))
    for k in range(3):
        ops.append("v_pk_mov_b32 %s, %s, %s op_sel:[1,0]" % (v(F_ + 2 * k, 2), v(E_ + 2 * k, 2), v(E_ + 2 * k + 2, 2)))
    ops.append("ds_write_b128 v11, %s offset:%d" % (v(G_, 4), 2 * CS + off))
    ops.append("ds_write_b128 v11, %s offset:%d" % (v(G_ + 2, 4), 6 * CS + off))
    ops.append("s_nop 0")
    ops.append("ds_write_b128 v11, %s offset:%d" % (v(F_, 4), 3 * CS + off))
    ops.append("ds_write_b128 v11, %s offset:%d" % (v(F_ + 2, 4), 7 * CS + off))
    return ops

def gen_M(A):
    A("s_setprio %d" % int(os.environ.get("MPRIO", 2)))
    srd(A, 32, PSSMK, D * S * 2)
    A("v_and_b32 v1, 63, v0")
    A("v_lshlrev_b32 v4, 4, v1")
    A("s_add_u32 s56, s45, %d" % (H_OFF + 512))
    A("s_lshl_b32 s57, s44, 12")
    A("s_mov_b32 m0, s56")
    A("s_lshl_b32 s51, s44, 1")
    for i in range(4):
        A("buffer_load_dwordx4 v4, s[32:35], s57 offen offset:%d lds" % (1024 * i) + NTS)
    A("s_add_u32 s56, s56, 4096")
    A("s_add_u32 s57, s57, 4096")
    A("s_mov_b32 m0, s56")
    A("s_mov_b64 exec, 0x3")
    A("buffer_load_dwordx4 v4, s[32:35], s57 offen lds" + NTS)
    A("s_mov_b64 exec, -1")
    A("s_and_b32 s52, s51, 0xfffffffc")
    A("s_add_u32 s54, s%d, s52" % PSSMD)
    A("s_addc_u32 s55, s%d, 0" % (PSSMD + 1))
    A("s_load_dword s53, s[54:55], 0")
    A("v_and_b32 v2, 15, v0")
    A("v_bfe_u32 v3, v0, 4, 2")
    A("v_mov_b32 v12, 0"); A("v_mov_b32 v13, 0"); A("v_mov_b32 v14, 0"); A("v_mov_b32 v15, 0")
    A("v_add_u32 v11, s45, v4")
    A("s_mov_b32 exec_hi, 0")
    A("ds_write_b128 v11, v[12:15] offset:%d" % H_OFF)
    A("s_mov_b64 exec, 0x3")
    for c in range(8):
        pass
    A("ds_write_b128 v11, v[12:15]")
    A("s_mov_b64 exec, 0xf")
    A("ds_write_b128 v11, v[12:15] offset:%d" % (258 * 16))
    A("s_mov_b64 exec, -1")
    A("v_lshlrev_b32 v5, 5, v2")
    A("v_lshl_add_u32 v5, v3, 4, v5")
    A("v_add_u32 v5, s45, v5")
    A("v_add_u32 v5, %d, v5" % H_OFF)
    A("v_and_b32 v8, 7, v2")
    A("v_sub_u32 v8, 7, v8")
    A("v_mul_u32_u24 v8, %d, v8" % CS)
    A("v_lshrrev_b32 v6, 3, v2")
    A("v_sub_u32 v6, v3, v6")
    A("v_lshlrev_b32 v6, 4, v6")
    A("v_add_u32 v8, v8, v6")
    A("v_add_u32 v8, 16, v8")
    A("v_add_u32 v9, s45, v8")
    A("v_lshlrev_b32 v6, 5, v2")
    A("v_lshl_add_u32 v6, v3, 3, v6")
    A("v_sub_u32 v7, %d, v6" % (4120 - 3584))
    A("v_add_u32 v7, s45, v7")
    A("v_add_u32 v6, s45, v6")
    A("v_add_u32 v6, %d, v6" % YOFF)
    A("s_lshl_b32 s49, s43, 2")
    A("s_add_u32 s49, s49, %d" % FLAGS)
    A("v_mov_b32 v10, s49")
    for i in range(32):
        A("v_mov_b32 %s, 0" % v(ACC + i))
    A("s_lshl_b32 s48, s44, 12")
    A("s_add_u32 s48, s48, %d" % F_UR)
    A("v_lshlrev_b32 v16, 3, v3")
    A("s_lshl_b32 s50, s44, 7")
    A("s_add_u32 s50, s50, %d" % F_URC)
    A("v_and_b32 v17, 15, v1")
    A("v_lshlrev_b32 v17, 3, v17")
    def hint_loads():
        A("buffer_load_dwordx2 v[136:137], v17, s[36:39], s50 offen sc1")
    if os.environ.get("URHINT"):
        masked_poll(A, "urh", hint_loads, [137], int(os.environ.get("URSLEEP", 4)), int(os.environ.get("URPRE", 8)))
    else:
        A("s_sleep %d" % int(os.environ.get("URPRE", 24)))
    Lp = A.newlabel("urp"); Ld = A.newlabel("urok")
    A("s_mov_b32 s52, 0")
    A.label(Lp)
    for i in range(4):
        A("buffer_load_dwordx4 %s, v4, s[36:39], s48 offen offset:%d sc1" % (v(120 + 4 * i, 4), 1024 * i))
    for i in range(4):
        A("buffer_load_dword %s, v16, s[36:39], s50 offen offset:%d sc1" % (v(136 + i), 32 * i))
    A("s_waitcnt vmcnt(0)")
    for i in range(4):
        A("v_xor_b32 %s, %s, %s" % (v(140 + i), v(120 + 4 * i), v(121 + 4 * i)))
    for i in range(4):
        A("v_xor_b32 %s, %s, %s" % (v(144 + i), v(122 + 4 * i), v(123 + 4 * i)))
    for i in range(4):
        A("v_xor_b32 %s, %s, %s" % (v(140 + i), v(140 + i), v(144 + i)))
    row_xor_reduce(A, [140, 141, 142, 143])
    for i in range(4):
        A("v_xor_b32 %s, %s, %s" % (v(140 + i), v(140 + i), v(136 + i)))
    A("v_cmp_eq_u32 vcc, s%d, v140" % TAG)
    for i in range(1, 4):
        A("v_cmp_eq_u32 s[54:55], s%d, %s" % (TAG, v(140 + i)))
        A("s_and_b64 vcc, vcc, s[54:55]")
    A("s_cmp_eq_u64 vcc, -1")
    A("s_cbranch_scc1 %s" % Ld)
    A("s_add_u32 s52, s52, 1")
    A("s_cmp_gt_u32 s52, %d" % POLL_MAX)
    A("s_cbranch_scc1 %s" % Ld)
    A("s_sleep %d" % int(os.environ.get("URSLEEP", 6)))
    A("s_branch %s" % Lp)
    A.label(Ld)
    st_(A, 3)
    dbg_time(A, 5)
    A("s_setprio %d" % int(os.environ.get("MPRIO2", 0)))
    for i in range(4):
        A("ds_write_b128 v11, %s offset:%d" % (v(120 + 4 * i, 4), 32 + 1024 * i))
    A("s_waitcnt lgkmcnt(0)")
    for (W, off) in ((152, 4096), (160, 3072), (168, 2048), (W1, 1024), (W0, 0)):
        A("ds_read_b128 %s, v11 offset:%d" % (v(W, 4), off))
        A("ds_read_b128 %s, v11 offset:%d" % (v(W + 4, 4), off + 16))
    A("s_waitcnt lgkmcnt(8)")
    A("s_mov_b64 exec, 0x1f")
    for o in build_ops(152, 0, 4096): A(o)
    A("s_mov_b64 exec, -1")
    A("s_waitcnt lgkmcnt(11)")
    for o in build_ops(160, 0, 3072): A(o)
    A("s_waitcnt lgkmcnt(14)")
    for o in build_ops(168, 0, 2048): A(o)
    A("s_waitcnt lgkmcnt(0)")
    st_(A, 4)
    hi_steps, lo_frags, lo_slot, lo_steps = conv_schedule()
    def bslot(sl):
        return v(BS + 4 * sl, 4)
    order, seen = [], set()
    for q, lst in hi_steps:
        for t, sl in lst:
            if sl not in seen:
                seen.add(sl); order.append(sl)
    aseq = [q for q in range(33)] + [q for q in range(65)]
    issued = []
    def issue(tag, txt):
        A(txt); issued.append(tag)
    def wait_for(tags):
        idx = max(len(issued) - 1 - issued[::-1].index(t) for t in tags)
        n = len(issued) - 1 - idx
        A("s_waitcnt lgkmcnt(%d)" % min(n, 15))
    def a_issue(k):
        issue(("A", k), "ds_read_b128 %s, v9 offset:%d" % (v(RING + 4 * (k % NR), 4), 64 * (64 - aseq[k])))
    def b_issue(sl):
        issue(("B", sl), "ds_read_b128 %s, v5 offset:%d" % (bslot(sl), 64 * (56 - sl + 8)))
    fill = deque()
    cnt = [0]
    def emit_fill(k):
        while k > 0 and fill:
            f = fill.popleft(); f(); cnt[0] += 1; k -= 1
    def add_plain(txt):
        if txt.startswith("ds_"):
            fill.append(lambda txt=txt: issue(("W",), txt))
        else:
            fill.append(lambda txt=txt: A(txt))
    a_issue(0)
    for sl in order[:5]:
        b_issue(sl)
    nextA = 1
    for k in range(1, NR):
        a_issue(nextA); nextA += 1
        b_issue(order[5 + k - 1])
    nextB = 5 + (NR - 1)
    A("s_and_b32 s52, s51, 2")
    A("s_lshl_b32 s52, s52, 3")
    A("s_lshr_b32 s53, s53, s52")
    A("s_lshl_b32 s53, s53, 16")
    A("v_mov_b32 v18, s53"); A("v_mov_b32 v19, s53")
    n = 0
    fu = {}
    for q, lst in hi_steps:
        for t, sl in lst:
            fu.setdefault(sl, q)
    for q, lst in hi_steps:
        while nextB < len(order) and fu[order[nextB]] <= q + 3:
            b_issue(order[nextB]); nextB += 1
        wait_for([("A", n)] + [("B", sl) for _, sl in lst])
        for t, sl in lst:
            A("v_mfma_f32_16x16x32_bf16 %s, %s, %s, %s" % (v(ACC + 4 * t, 4), v(RING + 4 * (n % NR), 4), bslot(sl), v(ACC + 4 * t, 4)))
        if nextA < len(aseq):
            a_issue(nextA); nextA += 1
        if q < 32:
            issue(("L", q), "ds_read_b128 %s, v5 offset:%d" % (bslot(q), 64 * (lo_frags[q] + 8)))
        n += 1
    st_(A, 5)
    def tile_epilogue(t):
        u0 = UREG + 2 * (t % 2)
        ac = ACC + 4 * t
        fill.append(lambda: wait_for([("U", t)] + ([("L", 31)] if t == 0 else [])))
        P = Asm()
        P("v_and_b32 v12, s40, %s" % v(u0 + 1))
        P("v_lshlrev_b32 v13, 16, %s" % v(u0 + 1))
        P("v_and_b32 v14, s40, %s" % v(u0))
        P("v_lshlrev_b32 v15, 16, %s" % v(u0))
        P("v_pk_mul_f32 v[12:13], v[12:13], v[18:19]")
        P("v_pk_mul_f32 v[14:15], v[14:15], v[18:19]")
        round_pair(P, 12, 13, 16, 40)
        round_pair(P, 14, 15, 17, 40)
        round_pair(P, ac, ac + 1, 16, 40)
        round_pair(P, ac + 2, ac + 3, 17, 40)
        P("v_pk_add_f32 v[12:13], v[12:13], %s" % v(ac, 2))
        P("v_pk_add_f32 v[14:15], v[14:15], %s" % v(ac + 2, 2))
        P("v_cvt_pk_bf16_f32 v16, v12, v13")
        P("v_cvt_pk_bf16_f32 v17, v14, v15")
        for l in P.lines:
            add_plain(l.strip())
        fill.append(lambda: issue(("Y", t), "ds_write_b64 v6, v[16:17] offset:%d" % (512 * t)))
        fill.append(lambda: A("v_mov_b32 v8, %d" % (t + 1)))
        for _ in range(3):
            fill.append(lambda: None)
        fill.append(lambda: wait_for([("Y", t)]))
        fill.append(lambda: issue(("F", t), "ds_write_b32 v10, v8"))
    for o in build_ops(W1, 0, 1024): add_plain(o)
    n1 = len(fill)
    for o in build_ops(W0, 0, 0): add_plain(o)
    n0 = len(fill)
    for q, lst in lo_steps:
        wait_for([("A", n)] + [("L", sl) for _, sl in lst])
        k = len(lst)
        per = 2 if k >= 2 else 1
        for i, (t, sl) in enumerate(lst):
            A("v_mfma_f32_16x16x32_bf16 %s, %s, %s, %s" % (v(ACC + 4 * t, 4), v(RING + 4 * (n % NR), 4), bslot(sl), v(ACC + 4 * t, 4)))
            if i < k - 1 or k == 1:
                emit_fill(per)
        if nextA < len(aseq):
            qq = aseq[nextA]
            if nextA >= 33 and qq >= 33:
                assert cnt[0] >= n1
            if nextA >= 33 and qq >= 49:
                assert cnt[0] >= n0
            a_issue(nextA); nextA += 1
        n += 1
        if q % 8 == 4:
            t = q // 8
            issue(("U", t), "ds_read_b64 %s, v7 offset:%d" % (v(UREG + 2 * (t % 2), 2), 512 * (7 - t)))
        if q >= 9 and (q - 9) % 8 == 0 and (q - 9) // 8 < 7:
            tile_epilogue((q - 9) // 8)
    A.nop(4)
    st_(A, 6)
    tile_epilogue(7)
    emit_fill(1000)
    st_(A, 7, end=True)
    dbg_time(A, 1)
    A("s_endpgm")

XQ = 208
def h_early_loads(A):
    srd(A, 16, PQ, S * ROWB)
    A("v_and_b32 v201, 255, v0")
    A("s_movk_i32 s63, 1152")
    A("v_mul_lo_u32 v200, v201, s63")
    A("s_lshl_b32 s63, s41, 3")
    A("v_add_u32 v200, s63, v200")
    return 8

def strip_loads(A):
    h_early_loads(A)
    if os.environ.get("NOSTRIP"):
        for t in range(8):
            A("s_nop 0")
            A("buffer_load_dwordx2 %s, v1, s[16:19], 0 offen" % v(XQ + 2 * t, 2))
        return
    A("s_mov_b32 s63, 0")
    for t in range(8):
        A("buffer_load_dwordx2 %s, v200, s[16:19], s63 offen" % v(XQ + 2 * t, 2))
        A("s_add_u32 s63, s63, %d" % (256 * 1152))

def q_prefetch(A):
    srd(A, 16, PQ, S * ROWB)
    Ln = A.newlabel("noqpf")
    A("v_and_b32 v202, 15, v0")
    A("v_bfe_u32 v203, v0, 4, 2")
    A("v_mul_u32_u24 v203, 1152, v203")
    A("v_lshl_add_u32 v202, v202, 4, v203")
    A("s_mul_i32 s63, s30, 144")
    A("s_and_b32 s63, s63, 0xffffff80")
    A("s_min_u32 s64, s31, 15")
    A("s_lshl_b32 s64, s64, 7")
    A("s_sub_u32 s65, s42, 4")
    A("s_lshl_b32 s65, s65, 5")
    A("s_add_u32 s64, s64, s65")
    A("s_mul_i32 s64, s64, 1152")
    A("s_add_u32 s63, s63, s64")
    for i in range(8):
        A("buffer_load_dwordx4 v[204:207], v202, s[16:19], s63 offen")
        A("s_add_u32 s63, s63, %d" % (4 * 1152))

def gen_H(A):
    srd(A, 20, POUT, S * ROWB)
    T = "s%d" % TAG
    A("v_and_b32 v1, 63, v0")
    A("v_mov_b32 v5, v201")
    A("v_mov_b32 v6, v200")
    A("v_lshlrev_b32 v7, 3, v5")
    RG = 160
    X, XN, T1 = 64, 96, 128
    A("s_setprio %d" % int(os.environ.get("HPRIO", 1)))
    for r in range(32):
        A("v_mov_b32 %s, 0" % v(X + r))
    A("v_lshlrev_b32 v8, 4, v1")
    A("v_lshrrev_b32 v9, 4, v1")
    A("v_lshlrev_b32 v9, 3, v9")
    A("s_lshl_b32 s48, s44, 12")
    A("s_add_u32 s48, s48, %d" % F_XT)
    A("s_lshl_b32 s50, s44, 7")
    A("s_add_u32 s50, s50, %d" % F_XC)
    P, C, Tm = 224, 240, 244
    A("s_sleep %d" % int(os.environ.get("ROWPRE", 32)))
    Lp = A.newlabel("hp"); Ld = A.newlabel("hok")
    A("s_mov_b32 s52, 0")
    A.label(Lp)
    for i in range(4):
        A("buffer_load_dwordx4 %s, v8, s[36:39], s48 offen offset:%d sc1" % (v(P + 4 * i, 4), 1024 * i))
    for i in range(4):
        A("buffer_load_dword %s, v9, s[36:39], s50 offen offset:%d sc1" % (v(C + i), 32 * i))
    for t in range(8):
        A("s_mov_b32 s51, %d" % (F_ROWG + 2048 * t))
        A("buffer_load_dwordx2 %s, v7, s[36:39], s51 offen sc1" % v(RG + 2 * t, 2))
    A("s_waitcnt vmcnt(8)")
    for i in range(4):
        A("v_xor_b32 %s, %s, %s" % (v(Tm + i), v(P + 4 * i), v(P + 1 + 4 * i)))
    for i in range(4):
        A("v_xor_b32 %s, %s, %s" % (v(Tm + 4 + i), v(P + 2 + 4 * i), v(P + 3 + 4 * i)))
    for i in range(4):
        A("v_xor_b32 %s, %s, %s" % (v(Tm + i), v(Tm + i), v(Tm + 4 + i)))
    row_xor_reduce(A, [Tm, Tm + 1, Tm + 2, Tm + 3])
    for i in range(4):
        A("v_xor_b32 %s, %s, %s" % (v(Tm + i), v(Tm + i), v(C + i)))
    A("v_cmp_eq_u32 vcc, s%d, %s" % (TAG, v(Tm)))
    for i in range(1, 4):
        A("v_cmp_eq_u32 s[54:55], s%d, %s" % (TAG, v(Tm + i)))
        A("s_and_b64 vcc, vcc, s[54:55]")
    A("s_waitcnt vmcnt(0)")
    for r in range(RG + 1, RG + 16, 2):
        A("v_cmp_eq_u32 s[54:55], s%d, %s" % (TAG, v(r)))
        A("s_and_b64 vcc, vcc, s[54:55]")
    A("s_cmp_eq_u64 vcc, -1")
    A("s_cbranch_scc1 %s" % Ld)
    A("s_add_u32 s52, s52, 1")
    A("s_cmp_gt_u32 s52, %d" % POLL_MAX)
    A("s_cbranch_scc1 %s" % Ld)
    A("s_sleep %d" % int(os.environ.get("ROWSLEEP", 8)))
    A("s_branch %s" % Lp)
    A.label(Ld)
    st_(A, 10)
    A("v_mov_b32 v11, %d" % FLAGS)
    A("v_mov_b32 v12, 1")
    lds_signal(A, 4, "v11", "v12")
    lds_wait(A, 4, 4, "v11", "v13", sleep=1)
    st_(A, 2 + 7)
    A("v_lshlrev_b32 v8, 1, v5")
    A("s_lshl_b32 s48, s41, 14")
    A("s_add_u32 s48, s48, %d" % F_XT)
    for c in range(4):
        for t in range(8):
            A("buffer_load_short_d16_hi %s, v8, s[36:39], s48 offen offset:%d sc1" % (v(X + 4 * t + c), 512 * t))
        A("s_add_u32 s48, s48, 4096")
    for t in range(8):
        stats_from_msd(A, RG + 2 * t, 176 + 6 * t, 40)
    A("s_waitcnt vmcnt(0)")
    st_(A, 3)
    for t in range(8):
        st = 176 + 6 * t
        streams = []
        for p in range(2):
            x, xn = X + 4 * t + 2 * p, XN + 4 * t + 2 * p
            tm = 56 + 4 * p
            P = Asm()
            P("v_pk_add_f32 %s, %s, %s" % (v(tm, 2), v(x, 2), v(st, 2)))
            round_pair(P, tm, tm + 1, tm + 2, 40)
            P("v_pk_mul_f32 %s, %s, %s" % (v(xn, 2), v(tm, 2), v(st + 2, 2)))
            P("v_pk_fma_f32 %s, %s, %s, %s" % (v(tm, 2), v(xn, 2), v(st + 4, 2), v(tm, 2)))
            P("v_pk_fma_f32 %s, %s, %s, %s" % (v(xn, 2), v(tm, 2), v(st + 2, 2), v(xn, 2)))
            round_pair(P, xn, xn + 1, tm + 2, 40)
            streams.append([l.strip() for l in P.lines])
        interleave(A, streams)
    st_(A, 4)
    dbg_time(A, 11)
    A("v_lshlrev_b32 v9, 1, v5")
    A("v_add_u32 v9, %d, v9" % YOFF)
    A("v_add_u32 v10, %d, v9" % (2 * CH_LDS))
    A("v_mov_b32 v11, %d" % FLAGS)
    for i in range(4):
        A("v_mov_b32 %s, 0" % v(40 + i))
    A("v_and_b32 v12, 7, v5")
    A("v_mul_u32_u24 v12, 2304, v12")
    A("v_lshrrev_b32 v13, 3, v5")
    A("v_mul_u32_u24 v14, 18432, v13")
    A("v_add_u32 v12, v12, v14")
    A("s_lshl_b32 s51, s41, 4")
    A("s_add_u32 s51, s51, %d" % F_PARTG)
    A("v_add_u32 v12, s51, v12")
    A("v_add_u32 v14, %d, v12" % (64 * 18432))
    A("v_cmp_gt_u32 vcc, 8, v13")
    A.nop(2)
    A("v_cndmask_b32 v14, v12, v14, vcc")
    A("s_mov_b64 s[56:57], vcc")
    A("v_and_b32 v8, 7, v1")
    A("v_lshlrev_b32 v8, 3, v8")
    def sel_loads():
        A("s_movk_i32 s51, %d" % F_SELG)
        A("buffer_load_dwordx2 v[180:181], v8, s[36:39], s51 offen sc1")
    sel_loads_m = sel_loads
    def part_loads():
        A("s_mov_b32 s51, %d" % (32 * 18432))
        A("buffer_load_dwordx4 v[160:163], v12, s[36:39], 0 offen sc1")
        A("buffer_load_dwordx4 v[164:167], v12, s[36:39], s51 offen sc1")
        A("buffer_load_dwordx4 v[168:171], v14, s[36:39], 0 offen sc1")
    A("s_mov_b32 s59, 0")
    A("s_setprio %d" % int(os.environ.get("HPRIO2", 0)))
    for t in range(8):
        Lw = A.newlabel("yw"); Lg = A.newlabel("yg")
        A("s_cmp_gt_u32 s59, %d" % t)
        A("s_cbranch_scc1 %s" % Lg)
        A("s_mov_b32 s52, 0")
        A.label(Lw)
        A("ds_read_b128 v[16:19], v11")
        A("s_add_u32 s52, s52, 1")
        A("s_waitcnt lgkmcnt(0)")
        A("v_min_u32 v16, v16, v17")
        A("v_min3_u32 v16, v16, v18, v19")
        A("s_cmp_gt_u32 s52, %d" % POLL_MAX)
        A("v_readfirstlane_b32 s59, v16")
        A("s_cbranch_scc1 %s" % Lg)
        A("s_nop 1")
        A("s_cmp_gt_u32 s59, %d" % t)
        A("s_cbranch_scc1 %s" % Lg)
        A("s_sleep 1")
        A("s_branch %s" % Lw)
        A.label(Lg)
        if os.environ.get("HST") and t in (0, 2, 4, 7):
            st_(A, {0: 11, 2: 12, 4: 13, 7: 14}[t])
        A("ds_read_u16_d16_hi v40, v9 offset:%d" % (512 * t))
        A("ds_read_u16_d16_hi v41, v9 offset:%d" % (512 * t + CH_LDS))
        A("ds_read_u16_d16_hi v42, v10 offset:%d" % (512 * t))
        A("ds_read_u16_d16_hi v43, v10 offset:%d" % (512 * t + CH_LDS))
        A("s_waitcnt lgkmcnt(0)")
        streams = []
        for p in range(2):
            x, xn, t1 = X + 4 * t + 2 * p, XN + 4 * t + 2 * p, T1 + 4 * t + 2 * p
            tm = 56 + 4 * p
            P = Asm()
            P("v_pk_mul_f32 %s, %s, %s" % (v(tm, 2), v(xn, 2), v(40 + 2 * p, 2)))
            round_pair(P, tm, tm + 1, tm + 2, 40)
            P("v_pk_add_f32 %s, %s, %s" % (v(t1, 2), v(x, 2), v(tm, 2)))
            round_pair(P, t1, t1 + 1, tm + 2, 40)
            P("v_pk_add_f32 %s, %s, %s" % (v(tm, 2), v(t1, 2), v(xn, 2)))
            P("v_cvt_pk_bf16_f32 %s, %s, %s" % (v(44 + 2 * (t % 2) + p), v(tm), v(tm + 1)))
            streams.append([l.strip() for l in P.lines])
        interleave(A, streams)
        A("s_mov_b32 s51, %d" % (t * 256 * 1152))
        A("buffer_store_dwordx2 %s, v6, s[20:23], s51 offen" % v(44 + 2 * (t % 2), 2) + os.environ.get("OUTPOL", ""))
        if t == 5:
            sel_loads()
    st_(A, 5)
    dbg_time(A, 9)
    Lp = A.newlabel("ppp"); Ld = A.newlabel("ppok")
    A("s_mov_b32 s52, 0")
    A.label(Lp)
    part_loads()
    A("s_waitcnt vmcnt(0)")
    for i in range(3):
        b = 160 + 4 * i
        A("v_xor_b32 %s, %s, %s" % (v(172 + i), v(b), v(b + 1)))
        A("v_xor_b32 %s, %s, %s" % (v(176 + i), v(b + 2), v(b + 3)))
    for i in range(3):
        A("v_xor_b32 %s, %s, %s" % (v(172 + i), v(172 + i), v(176 + i)))
    A("v_cmp_eq_u32 vcc, %s, v172" % T)
    for r in (173, 174):
        A("v_cmp_eq_u32 s[54:55], %s, %s" % (T, v(r)))
        A("s_and_b64 vcc, vcc, s[54:55]")
    A("s_andn2_b64 exec, exec, vcc")
    A("s_cbranch_scc0 %s" % Ld)
    A("s_add_u32 s52, s52, 1")
    A("s_cmp_gt_u32 s52, %d" % POLL_MAX)
    A("s_cbranch_scc1 %s" % Ld)
    A("s_sleep %d" % int(os.environ.get("PPSLEEP", 3)))
    A("s_branch %s" % Lp)
    A.label(Ld)
    A("s_mov_b64 exec, -1")
    st_(A, 6)
    dbg_time(A, 10)
    A("s_mov_b32 s58, 0xffffff00")
    A("s_mov_b32 s59, 0x0c0c0004")
    for i in range(3):
        b = 160 + 4 * i
        o = 20 + 4 * i
        A("v_lshlrev_b32 %s, 24, %s" % (v(o + 3), v(b)))
        A("v_and_b32 %s, 0xff, %s" % (v(176), v(b + 1)))
        A("v_and_b32 %s, 0xff, %s" % (v(177), v(b + 2)))
        A("v_lshl_or_b32 %s, %s, 16, %s" % (v(o + 3), v(176), v(o + 3)))
        A("v_lshl_or_b32 %s, %s, 8, %s" % (v(o + 3), v(177), v(o + 3)))
        for k in range(3):
            A("v_and_b32 %s, s58, %s" % (v(o + k), v(b + k)))
    for k in range(4):
        A("v_cndmask_b32 %s, 0, %s, s[56:57]" % (v(28 + k), v(28 + k)))
    for k in range(4):
        A("v_add_f32 %s, %s, %s" % (v(20 + k), v(20 + k), v(24 + k)))
    for k in range(4):
        A("v_add_f32 %s, %s, %s" % (v(20 + k), v(20 + k), v(28 + k)))
    A.nop(1)
    for k in range(4):
        A("v_add_f32_dpp %s, %s, %s row_ror:8 row_mask:0xf bank_mask:0xf" % (v(24 + k), v(20 + k), v(20 + k)))
    for k in range(4):
        A("v_mov_b32 %s, %s" % (v(28 + k), v(24 + k)))
    A.nop(1)
    for k in range(4):
        A("v_permlane16_swap_b32 %s, %s" % (v(24 + k), v(28 + k)))
    A.nop(1)
    for k in range(4):
        A("v_add_f32 %s, %s, %s" % (v(24 + k), v(24 + k), v(28 + k)))
    for k in range(4):
        A("v_mov_b32 %s, %s" % (v(28 + k), v(24 + k)))
    A.nop(1)
    for k in range(4):
        A("v_permlane32_swap_b32 %s, %s" % (v(24 + k), v(28 + k)))
    A.nop(1)
    for k in range(4):
        A("v_add_f32 %s, %s, %s" % (v(24 + k), v(24 + k), v(28 + k)))
    A("v_lshlrev_b32 v18, 4, v1")
    A("s_lshl_b32 s51, s43, 7")
    A("s_add_u32 s51, s51, %d" % RED)
    A("v_add_u32 v18, s51, v18")
    A("s_mov_b64 exec, 0xff")
    A("ds_write_b128 v18, v[24:27]")
    A("s_mov_b64 exec, -1")
    first_then_poll(A, "sel", sel_loads_m, [181], 4, "-1", first_cnt=63)
    A("v_lshrrev_b32 v45, 16, v180")
    A("v_and_b32 v46, 0x8000, v45")
    A("v_mov_b32 v47, 0xffff")
    A("v_mov_b32 v48, 0x8000")
    A("v_cmp_ne_u32 vcc, 0, v46")
    A("v_and_b32 v44, 0xffff, v180")
    A("v_sub_u32 v44, 2047, v44")
    A("v_cndmask_b32 v47, v47, v48, vcc")
    A("v_xor_b32 v45, v45, v47")
    A("v_lshlrev_b32 v45, 16, v45")
    A("v_mul_f32 v45, 0xbfb8aa3b, v45")
    A("v_exp_f32 v45, v45")
    A.nop(1)
    A("v_add_f32 v45, 1.0, v45")
    A("v_rcp_f32 v45, v45")
    A.nop(1)
    A("v_cvt_pk_bf16_f32 v45, v45, v45")
    A("v_lshlrev_b32 v45, 16, v45")
    A("s_waitcnt lgkmcnt(0)")
    A("s_barrier")
    st_(A, 7)
    for i in range(8):
        Ls = A.newlabel("ns")
        A("v_readlane_b32 s51, v44, %d" % i)
        A("v_readlane_b32 s59, v45, %d" % i)
        A("v_mov_b32 v52, %d" % (RED + 16 * i))
        A("s_bfe_u32 s58, s51, 0x20006")
        A("s_cmp_lg_u32 s58, s43")
        A("s_cbranch_scc1 %s" % Ls)
        for w in range(4):
            A("ds_read_b128 %s, v52 offset:%d" % (v(20 + 4 * w, 4), 128 * w))
        A("s_lshr_b32 s58, s51, 8")
        A("s_mul_i32 s60, s58, %d" % (256 * 1152))
        A("s_lshl_b32 s58, s58, 2")
        A("s_and_b32 s51, s51, 255")
        A("v_cmp_eq_u32 vcc, s51, v5")
        A("s_set_gpr_idx_on s58, gpr_idx(SRC0)")
        for k in range(4):
            A("v_mov_b32 %s, %s" % (v(36 + k), v(T1 + k)))
        for k in range(4):
            A("v_mov_b32 %s, %s" % (v(40 + k), v(XN + k)))
        A("s_set_gpr_idx_off")
        A("s_waitcnt lgkmcnt(0)")
        for k in range(4):
            A("v_add_f32 %s, %s, %s" % (v(20 + k), v(20 + k), v(24 + k)))
            A("v_add_f32 %s, %s, %s" % (v(28 + k), v(28 + k), v(32 + k)))
        for k in range(4):
            A("v_add_f32 %s, %s, %s" % (v(20 + k), v(20 + k), v(28 + k)))
        A.nop(1)
        round_pair(A, 20, 21, 24, 40); round_pair(A, 22, 23, 25, 40)
        for k in range(4):
            A("v_mul_f32 %s, s59, %s" % (v(20 + k), v(20 + k)))
        A.nop(1)
        round_pair(A, 20, 21, 24, 40); round_pair(A, 22, 23, 25, 40)
        for k in range(4):
            A("v_add_f32 %s, %s, %s" % (v(20 + k), v(20 + k), v(40 + k)))
        A.nop(1)
        round_pair(A, 20, 21, 24, 40); round_pair(A, 22, 23, 25, 40)
        for k in range(4):
            A("v_add_f32 %s, %s, %s" % (v(20 + k), v(20 + k), v(36 + k)))
        A.nop(1)
        A("v_cvt_pk_bf16_f32 v24, v20, v21")
        A("v_cvt_pk_bf16_f32 v25, v22, v23")
        A("s_mov_b64 exec, vcc")
        A("buffer_store_dwordx2 v[24:25], v6, s[20:23], s60 offen")
        A("s_mov_b64 exec, -1")
        A.label(Ls)
    st_(A, 8, end=True)
    dbg_time(A, 2)
    if os.environ.get("CALD"):
        L = A.newlabel("cal")
        A.label(L)
        A("s_memrealtime s[96:97]")
        A("s_waitcnt lgkmcnt(0)")
        A("s_sub_u32 s96, s96, s100")
        A("s_cmp_lt_u32 s96, %d" % int(os.environ["CALD"]))
        A("s_cbranch_scc1 %s" % L)
    A("s_endpgm")

def gen_conv_wg(A):
    A("s_and_b32 s43, s42, 3")
    A("s_lshl_b32 s44, s41, 2")
    A("s_add_u32 s44, s44, s43")
    A("s_mul_i32 s45, s43, %d" % CH_LDS)
    Lm = A.newlabel("cm"); Lh = A.newlabel("ch"); Lj = A.newlabel("cj")
    dbg_time(A, 0)
    A("s_lshr_b32 s60, s41, 4")
    A("s_and_b32 s61, s41, 15")
    A("v_mov_b32 v200, 0"); A("v_mov_b32 v201, 0")
    A("s_cmp_ge_u32 s42, 4")
    A("s_cbranch_scc1 %s" % Lh)
    A("s_setprio 2")
    gen_kv_issue(A)
    gen_kv_addr(A)
    gen_kv_addr2(A)
    finish_tag(A)
    flags_barrier(A)
    A("s_waitcnt vmcnt(0)")
    A("s_branch %s" % Lj)
    A.label(Lh)
    gen_kv_addr(A)
    gen_kv_addr2(A)
    finish_tag(A)
    A("s_waitcnt vmcnt(0)")
    A.label(Lj)
    gen_kv_compute(A)
    publish_alive(A)
    A("s_barrier")
    A("s_cmp_lt_u32 s42, 4")
    A("s_cbranch_scc1 %s" % Lm)
    h_early_loads(A)
    gen_H(A)
    A.label(Lm)
    gen_M(A)

def finish_tag(A):
    A("s_waitcnt lgkmcnt(0)")
    A("s_mul_i32 s%d, s%d, 0x9E3779B1" % (TAG, TAG))
    A("s_add_u32 s%d, s%d, 0x7F4A7C15" % (TAG, TAG))

def flags_barrier(A, alive=False):
    A("v_mov_b32 v36, 0")
    A("v_mov_b32 v37, %d" % FLAGS)
    A("v_mov_b32 v38, 0"); A("v_mov_b32 v39, 0"); A("v_mov_b32 v40, 0"); A("v_mov_b32 v41, 0")
    A("ds_write_b128 v37, v[38:41]")
    A("ds_write_b128 v37, v[38:41] offset:16")
    A("s_waitcnt lgkmcnt(0)")

def publish_alive(A):
    Ln = A.newlabel("noalive")
    A("s_cmp_lg_u32 s42, 0")
    A("s_cbranch_scc1 %s" % Ln)
    A("s_lshl_b32 s63, s41, 2")
    A("s_add_u32 s63, s63, %d" % F_ALIVE)
    A("v_mov_b32 v37, s%d" % TAG)
    A("v_mov_b32 v36, 0")
    A("s_mov_b64 exec, 1")
    A("buffer_store_dword v37, v36, s[36:39], s63 offen sc1")
    A("s_mov_b64 exec, -1")
    A.label(Ln)


BITONIC8 = [(0,4),(1,5),(2,6),(3,7),(0,2),(1,3),(4,6),(5,7),(0,1),(2,3),(4,5),(6,7)]
def merge8(A, a, b, out, spare, dpp=None):
    for i in range(7, -1, -1):
        if dpp:
            A("v_max_u32_dpp %s, %s, %s %s bank_mask:0xf" % (v(out[i]), v(b[7 - i]), v(a[i]), dpp))
        else:
            A("v_max_u32 %s, %s, %s" % (v(out[i]), v(a[i]), v(b[7 - i])))
    return sort_desc(A, out, spare, BITONIC8)

def top8_wave(A, regs, spare, other):
    cur, oth = list(regs), list(other)
    for ctl in ("quad_perm:[1,0,3,2] row_mask:0xf", "quad_perm:[2,3,0,1] row_mask:0xf", "row_half_mirror row_mask:0xf",
                "row_mirror row_mask:0xf", "row_bcast:15 row_mask:0xa", "row_bcast:31 row_mask:0xc"):
        A.nop(1)
        free = list(cur)
        new, spare2 = merge8(A, cur, cur, oth, spare, dpp=ctl)
        pool = [r for r in (free + oth + [spare]) if r not in new]
        spare = pool[0]
        oth = pool[1:9]
        cur = new
    return cur, spare, oth

L_CNT = 162368

def lds_signal(A, k, vaddr, vone):
    A("s_mov_b64 exec, 1")
    A("ds_add_u32 %s, %s offset:%d" % (vaddr, vone, 4 * k))
    A("s_mov_b64 exec, -1")

def lds_wait(A, k, n, vaddr, vtmp, sleep=0):
    L = A.newlabel("lw"); Ld = A.newlabel("lwd")
    A("s_mov_b32 s52, 0")
    A.label(L)
    A("ds_read_b32 %s, %s offset:%d" % (vtmp, vaddr, 4 * k))
    A("s_add_u32 s52, s52, 1")
    A("s_waitcnt lgkmcnt(0)")
    A("s_cmp_gt_u32 s52, %d" % (POLL_MAX * 8))
    A("v_readfirstlane_b32 s51, %s" % vtmp)
    A("s_cbranch_scc1 %s" % Ld)
    A("s_nop 1")
    A("s_cmp_ge_u32 s51, %d" % n)
    A("s_cbranch_scc1 %s" % Ld)
    if sleep:
        A("s_sleep %d" % sleep)
    A("s_branch %s" % L)
    A.label(Ld)

def gen_moe_wg(A):
    T = "s%d" % TAG
    A("v_and_b32 v1, 63, v0")
    A("v_and_b32 v4, 255, v0")
    A("v_mov_b32 v8, %d" % L_CNT)
    A("v_mov_b32 v9, 1")
    Lt = A.newlabel("twave")
    A("s_cmp_ge_u32 s42, 4")
    A("s_cbranch_scc1 %s" % Lt)
    G, U, WD = 16, 88, 160
    A("v_mov_b32 v232, 0"); A("v_mov_b32 v233, 0"); A("v_mov_b32 v234, 0"); A("v_mov_b32 v235, 0")
    A("ds_write_b128 v8, v[232:235]"); A("ds_write_b128 v8, v[232:235] offset:16")
    srd(A, 48, PWG, D * F * 2)
    srd(A, 52, PWU, D * F * 2)
    srd(A, 56, PWD, D * F * 2)
    A("v_lshrrev_b32 v5, 3, v1")
    A("v_mul_u32_u24 v5, 9216, v5")
    A("v_bfe_u32 v6, v1, 4, 1")
    A("s_and_b32 s43, s42, 1")
    A("s_lshl_b32 s43, s43, 1")
    A("v_or_b32 v6, s43, v6")
    A("v_lshlrev_b32 v6, 1, v6")
    A("v_and_b32 v7, 7, v1")
    A("v_xor_b32 v6, v6, v7")
    A("v_lshl_add_u32 v5, v6, 4, v5")
    A("s_lshl_b32 s43, s41, 7")
    A("s_mul_i32 s44, s42, 73728")
    A("s_add_u32 s43, s43, s44")
    A("s_lshl_b32 s44, s42, 10")
    A("s_waitcnt lgkmcnt(0)")
    A("s_barrier")
    for j in range(18):
        A("s_mov_b32 m0, s44")
        A("s_add_u32 s45, s44, %d" % L_WU)
        A("buffer_load_dwordx4 v5, s[48:51], s43 offen lds" + NTS)
        A("s_mov_b32 m0, s45")
        A("s_add_u32 s44, s44, 4096")
        A("buffer_load_dwordx4 v5, s[52:55], s43 offen lds" + NTS)
        A("s_add_u32 s43, s43, %d" % (4 * 73728))
    A("v_lshrrev_b32 v6, 3, v4")
    A("v_mul_u32_u24 v7, 1152, v6")
    A("v_and_b32 v12, 7, v4")
    A("v_lshl_add_u32 v236, v12, 4, v7")
    A("v_bfe_u32 v14, v6, 1, 1")
    A("v_bfe_u32 v11, v6, 3, 1")
    A("v_lshl_add_u32 v14, v11, 1, v14")
    A("v_lshlrev_b32 v14, 1, v14")
    A("v_xor_b32 v14, v14, v12")
    A("v_lshl_add_u32 v14, v14, 4, v7")
    A("v_add_u32 v15, 36864, v14")
    A("v_and_b32 v2, 15, v0")
    A("v_bfe_u32 v3, v0, 4, 2")
    A("v_lshrrev_b32 v10, 2, v2")
    A("v_lshl_add_u32 v11, v3, 3, v10")
    A("v_bfe_u32 v12, v2, 3, 1")
    A("v_and_b32 v13, 1, v3")
    A("v_lshl_add_u32 v12, v13, 1, v12")
    A("v_xor_b32 v12, s42, v12")
    A("v_and_b32 v13, 3, v2")
    A("v_lshlrev_b32 v13, 3, v13")
    A("v_lshl_add_u32 v12, v12, 5, v13")
    A("v_lshl_add_u32 v5, v11, 7, v12")
    A("v_add_u32 v6, 36864, v5")
    A("v_mul_u32_u24 v7, 1152, v11")
    A("v_add_u32 v7, v7, v12")
    A("v_add_u32 v10, 36864, v7")
    st_(A, 1)
    A("s_waitcnt vmcnt(0)")
    lds_signal(A, 0, "v8", "v9")
    lds_wait(A, 0, 4, "v8", "v11")
    st_(A, 2)
    dbg_time(A, 7)
    A("v_add_u32 v12, %d, v5" % L_WU)
    A("v_add_u32 v13, %d, v6" % L_WU)
    for kk in range(18):
        bg, bu, ko = ("v5", "v12", kk) if kk < 9 else ("v6", "v13", kk - 9)
        A("ds_read_b64_tr_b16 %s, %s offset:%d" % (v(G + 4 * kk, 2), bg, 4096 * ko))
        A("ds_read_b64_tr_b16 %s, %s offset:%d" % (v(G + 4 * kk + 2, 2), bg, 4096 * ko + 512))
        A("ds_read_b64_tr_b16 %s, %s offset:%d" % (v(U + 4 * kk, 2), bu, 4096 * ko))
        A("ds_read_b64_tr_b16 %s, %s offset:%d" % (v(U + 4 * kk + 2, 2), bu, 4096 * ko + 512))
    A("s_waitcnt lgkmcnt(0)")
    lds_signal(A, 1, "v8", "v9")
    st_(A, 7)
    A("v_mov_b32 v14, v7"); A("v_mov_b32 v15, v10")
    A("v_and_b32 v12, 7, v2")
    A("v_mul_u32_u24 v5, %d, v12" % XSTR)
    A("v_lshl_add_u32 v5, v3, 4, v5")
    A("v_add_u32 v5, %d, v5" % L_X)
    A("v_mul_u32_u24 v6, %d, v2" % HSTR)
    A("v_lshl_add_u32 v6, v3, 3, v6")
    A("s_lshl_b32 s43, s42, 5")
    A("s_add_u32 s43, s43, %d" % L_HS)
    A("v_add_u32 v6, s43, v6")
    A("v_mul_u32_u24 v7, %d, v12" % HSTR)
    A("v_lshl_add_u32 v7, v3, 4, v7")
    A("v_add_u32 v7, %d, v7" % L_HS)
    A("v_mul_u32_u24 v10, 2304, v12")
    A("v_lshl_add_u32 v10, v3, 4, v10")
    A("v_bfe_u32 v13, v2, 3, 1")
    A("v_lshl_add_u32 v10, v13, 8, v10")
    A("v_cmp_eq_u32 s[56:57], 1, v13")
    A("s_mul_i32 s43, s41, 18432")
    A("s_lshl_b32 s44, s42, 6")
    A("s_add_u32 s43, s43, s44")
    A("s_add_u32 s43, s43, %d" % F_PARTG)
    A("v_mov_b32 v13, %d" % L_TAG)
    for i in range(8):
        A("v_mov_b32 %s, 0" % v(232 + i))
    A("s_waitcnt lgkmcnt(0)")
    st_(A, 3)
    dbg_time(A, 12)
    lds_wait(A, 4, 4, "v8", "v11")
    st_(A, 4)
    A("ds_read_b32 v12, v13")
    XR = 240
    for kk in range(3):
        A("ds_read_b128 %s, v5 offset:%d" % (v(XR + 4 * kk, 4), 64 * kk))
    for kk in range(18):
        if kk + 3 < 18:
            A("ds_read_b128 %s, v5 offset:%d" % (v(XR + 4 * ((kk + 3) % 4), 4), 64 * (kk + 3)))
        A("s_waitcnt lgkmcnt(%d)" % min(3, 17 - kk))
        x = v(XR + 4 * (kk % 4), 4)
        A("v_mfma_f32_16x16x32_bf16 v[232:235], %s, %s, v[232:235]" % (v(G + 4 * kk, 4), x))
        A("v_mfma_f32_16x16x32_bf16 v[236:239], %s, %s, v[236:239]" % (v(U + 4 * kk, 4), x))
    A("v_readfirstlane_b32 %s, v12" % T)
    A.nop(6)
    round_pair(A, 232, 233, 16, 40); round_pair(A, 234, 235, 17, 40)
    for i in range(4):
        A("v_mul_f32 %s, 0xbfb8aa3b, %s" % (v(20 + i), v(232 + i)))
    for i in range(4):
        A("v_exp_f32 %s, %s" % (v(20 + i), v(20 + i)))
    round_pair(A, 236, 237, 16, 40); round_pair(A, 238, 239, 17, 40)
    for i in range(4):
        A("v_add_f32 %s, 1.0, %s" % (v(20 + i), v(20 + i)))
    for i in range(4):
        A("v_rcp_f32 %s, %s" % (v(20 + i), v(20 + i)))
    A.nop(1)
    for i in range(4):
        A("v_mul_f32 %s, %s, %s" % (v(232 + i), v(232 + i), v(20 + i)))
    A.nop(1)
    round_pair(A, 232, 233, 16, 40); round_pair(A, 234, 235, 17, 40)
    for i in range(4):
        A("v_mul_f32 %s, %s, %s" % (v(232 + i), v(232 + i), v(236 + i)))
    A.nop(1)
    A("v_cvt_pk_bf16_f32 v16, v232, v233")
    A("v_cvt_pk_bf16_f32 v17, v234, v235")
    A("v_cmp_gt_u32 vcc, 8, v2")
    A("s_and_saveexec_b64 s[44:45], vcc")
    A("ds_write_b64 v6, v[16:17]")
    A("s_mov_b64 exec, s[44:45]")
    A("s_mov_b32 s58, 0xffffff00")
    A("s_movk_i32 s59, 0x80")
    A("s_waitcnt lgkmcnt(0)")
    lds_signal(A, 5, "v8", "v9")
    lds_wait(A, 2, 4, "v8", "v11")
    for k in range(9):
        r = WD + 8 * k
        A("ds_read_b64_tr_b16 %s, v14 offset:%d" % (v(r, 2), 128 * k))
        A("ds_read_b64_tr_b16 %s, v14 offset:%d" % (v(r + 2, 2), 128 * k + 4 * 1152))
        A("ds_read_b64_tr_b16 %s, v15 offset:%d" % (v(r + 4, 2), 128 * k))
        A("ds_read_b64_tr_b16 %s, v15 offset:%d" % (v(r + 6, 2), 128 * k + 4 * 1152))
    lds_wait(A, 5, 4, "v8", "v11")
    st_(A, 5)
    A("ds_read_b128 v[16:19], v7")
    A("ds_read_b128 v[20:23], v7 offset:64")
    A("s_waitcnt lgkmcnt(0)")
    AC = 88
    for k in range(9):
        r = WD + 8 * k
        A("v_mfma_f32_16x16x32_bf16 %s, %s, v[16:19], 0" % (v(AC + 4 * k, 4), v(r, 4)))
    for k in range(9):
        r = WD + 8 * k
        A("v_mfma_f32_16x16x32_bf16 %s, %s, v[20:23], %s" % (v(AC + 4 * k, 4), v(r + 4, 4), v(AC + 4 * k, 4)))
    A.nop(4)
    for kp in range(5):
        k = 2 * kp
        ac, ac2 = AC + 4 * k, AC + 4 * min(k + 1, 8)
        o = 24 + 8 * kp
        for i in range(4):
            A("v_cndmask_b32 %s, %s, %s, s[56:57]" % (v(o + i), v(ac + i), v(ac2 + i)))
        for i in range(4):
            A("v_add_u32 %s, s59, %s" % (v(o + i), v(o + i)))
        A("v_lshrrev_b32 %s, 24, %s" % (v(o + 4), v(o + 3)))
        A("v_lshrrev_b32 %s, 16, %s" % (v(o + 5), v(o + 3)))
        A("v_lshrrev_b32 %s, 8, %s" % (v(o + 6), v(o + 3)))
        for i in range(3):
            A("v_bfi_b32 %s, s58, %s, %s" % (v(o + 4 + i), v(o + i), v(o + 4 + i)))
        A("v_xor_b32 %s, %s, %s" % (v(o + 7), v(o + 4), v(o + 5)))
        A("v_xor_b32 %s, %s, %s" % (v(o + 7), v(o + 7), v(o + 6)))
        A("v_xor_b32 %s, %s, %s" % (v(o + 7), T, v(o + 7)))
        if kp == 4:
            A("s_andn2_b64 exec, exec, s[56:57]")
        A("buffer_store_dwordx4 %s, v10, s[36:39], s43 offen offset:%d sc1" % (v(o + 4, 4), 512 * kp))
    A("s_mov_b64 exec, -1")
    st_(A, 6, end=True)
    dbg_time(A, 3)
    A("s_endpgm")
    A.label(Lt)
    A("s_setprio 3")
    A("s_lshl_b32 s60, s41, 2")
    A("s_add_u32 s60, s60, s42")
    A("s_sub_u32 s60, s60, 4")
    Q, WR, X = gen_ln(A)
    A("s_barrier")
    srd(A, 20, PWD, D * F * 2)
    A("v_and_b32 v4, 255, v0")
    A("v_lshrrev_b32 v232, 3, v4")
    A("v_mul_u32_u24 v233, 1152, v232")
    A("v_and_b32 v234, 7, v4")
    A("v_lshl_add_u32 v236, v234, 4, v233")
    A("v_bfe_u32 v235, v232, 1, 1")
    A("v_bfe_u32 v237, v232, 3, 1")
    A("v_lshl_add_u32 v235, v237, 1, v235")
    A("v_lshlrev_b32 v235, 1, v235")
    A("v_xor_b32 v235, v235, v234")
    A("v_lshl_add_u32 v238, v235, 4, v233")
    A("v_add_u32 v239, 36864, v238")
    A("s_mul_i32 s43, s41, 73728")
    A("s_add_u32 s44, s43, 36864")
    for k in range(9):
        A("buffer_load_dwordx4 %s, v236, s[20:23], s43 offen offset:%d" % (v(160 + 4 * k, 4), 128 * k) + NTS)
    for k in range(9):
        A("buffer_load_dwordx4 %s, v236, s[20:23], s44 offen offset:%d" % (v(196 + 4 * k, 4), 128 * k) + NTS)
    finish_tag(A)
    gen_ln_compute(A, Q, WR, X, extra=18)
    A("s_setprio %d" % int(os.environ.get("TPRIO", 1)))
    srd(A, 16, PQ, S * ROWB)
    A("v_and_b32 v1, 63, v0")
    A("v_and_b32 v4, 255, v0")
    A("v_mov_b32 v8, %d" % L_CNT)
    A("v_mov_b32 v9, 1")
    A("v_lshlrev_b32 v15, 2, v1")
    A("v_lshlrev_b32 v16, 4, v1")
    A("s_and_b32 s43, s42, 3")
    A("s_lshl_b32 s43, s43, 12")
    A("v_add_u32 v16, s43, v16")
    def key_loads():
        A("s_movk_i32 s43, %d" % F_KEYG)
        for i in range(4):
            A("buffer_load_dwordx4 %s, v16, s[36:39], s43 offen offset:%d sc1" % (v(40 + 4 * i, 4), 1024 * i))
    masked_poll(A, "key", key_loads, list(range(41, 56, 2)), int(os.environ.get("KEYSLEEP", 8)), int(os.environ.get("KEYPRE", 70)))
    A("s_setprio 3")
    st_(A, 3)
    dbg_time(A, 6)
    regs, sp = sort_desc(A, range(40, 56, 2), 41, SORT8)
    SK = 60
    free = [r for r in range(40, 57) if r not in regs and r != sp]
    cur, sp, oth = top8_wave(A, regs, sp, free[:8])
    for i in range(8):
        A("v_mov_b32 %s, %s" % (v(64 + i), v(cur[i])))
    A("s_and_b32 s43, s42, 3")
    A("s_lshl_b32 s43, s43, 5")
    A("s_add_u32 s43, s43, %d" % L_CAND)
    A("v_mov_b32 v16, s43")
    A("v_mov_b32 v31, %s" % T)
    A("v_mov_b32 v17, %d" % L_TAG)
    A("s_mov_b32 exec_lo, 0")
    A("s_mov_b32 exec_hi, 0x80000000")
    A("ds_write_b128 v16, v[64:67]")
    A("ds_write_b128 v16, v[68:71] offset:16")
    A("ds_write_b32 v17, v31")
    A("s_mov_b64 exec, -1")
    A("s_waitcnt lgkmcnt(0)")
    lds_signal(A, 3, "v8", "v9")
    lds_wait(A, 3, 4, "v8", "v11")
    A("v_mov_b32 v16, %d" % L_CAND)
    for i in range(8):
        A("ds_read_b128 %s, v16 offset:%d" % (v(64 + 4 * i, 4), 16 * i))
    A("s_waitcnt lgkmcnt(4)")
    c01, sp1 = merge8(A, list(range(64, 72)), list(range(72, 80)), list(range(40, 48)), 56)
    A("s_waitcnt lgkmcnt(0)")
    c23, sp2 = merge8(A, list(range(80, 88)), list(range(88, 96)), list(range(48, 56)), 57)
    for i in range(8):
        A("v_max_u32 %s, %s, %s" % (v(64 + i), v(c01[i]), v(c23[7 - i])))
    for i in range(8):
        A("v_readfirstlane_b32 %s, %s" % (s(SK + i), v(64 + i)))
    A.nop(3)
    st_(A, 5)
    A("s_and_b32 s45, s42, 3")
    A("s_mov_b32 s43, s60"); A("s_mov_b32 s44, s61")
    for w in range(1, 4):
        A("s_cmp_eq_u32 s45, %d" % w)
        A("s_cselect_b32 s43, %s, s43" % s(SK + 2 * w))
        A("s_cselect_b32 s44, %s, s44" % s(SK + 2 * w + 1))
    A("v_mov_b32 v16, s43"); A("v_mov_b32 v17, s44")
    A("v_cmp_lt_u32 vcc, 31, v1")
    A.nop(2)
    A("v_cndmask_b32 v16, v16, v17, vcc")
    A("v_and_b32 v16, 0xffff, v16")
    A("v_sub_u32 v16, 2047, v16")
    A("v_and_b32 v17, 31, v1")
    A("s_movk_i32 s43, 1152")
    A("v_mul_lo_u32 v18, v16, s43")
    A("v_lshl_add_u32 v18, v17, 2, v18")
    A("v_lshlrev_b32 v19, 3, v16")
    for i in range(9):
        A("buffer_load_dword %s, v18, s[16:19], 0 offen offset:%d" % (v(20 + i), 128 * i))
    def rg_loads():
        A("s_mov_b32 s43, %d" % F_ROWG)
        A("buffer_load_dwordx2 v[32:33], v19, s[36:39], s43 offen sc1")
    Lns = A.newlabel("nosel")
    A("s_cmp_lg_u32 s41, 0")
    A("s_cbranch_scc1 %s" % Lns)
    A("s_cmp_lg_u32 s42, 4")
    A("s_cbranch_scc1 %s" % Lns)
    for i in range(8):
        A("v_writelane_b32 v30, %s, %d" % (s(SK + i), i))
    A("v_lshlrev_b32 v36, 3, v1")
    A("s_movk_i32 s43, %d" % F_SELG)
    A("s_mov_b64 exec, 0xff")
    A("buffer_store_dwordx2 v[30:31], v36, s[36:39], s43 offen sc1")
    A("s_mov_b64 exec, -1")
    A.label(Lns)
    masked_poll(A, "rg", rg_loads, [33], 2, 0)
    stats_from_msd(A, 32, 64, 70)
    A("v_lshrrev_b32 v38, 5, v4")
    A("v_mul_u32_u24 v38, %d, v38" % XSTR)
    A("v_lshl_add_u32 v38, v17, 2, v38")
    A("v_add_u32 v38, %d, v38" % L_X)
    st_(A, 4)
    for i0 in range(0, 9, 3):
        streams = []
        for i in range(i0, i0 + 3):
            bs = 40 + 8 * (i % 3)
            ops = norm_ops(bs, bs + 2, bs + 4, 20 + i, 64)
            ops.append("v_cvt_pk_bf16_f32 %s, %s, %s" % (v(bs + 6), v(bs + 2), v(bs + 3)))
            ops.append("ds_write_b32 v38, %s offset:%d" % (v(bs + 6), 128 * i))
            streams.append(ops)
        interleave(A, streams)
    A("s_waitcnt lgkmcnt(0)")
    lds_signal(A, 4, "v8", "v9")
    st_(A, 6)
    dbg_time(A, 4)
    lds_wait(A, 1, 4, "v8", "v11")
    for k in range(9):
        A("ds_write_b128 v238, %s offset:%d" % (v(160 + 4 * k, 4), 128 * k))
    for k in range(9):
        A("ds_write_b128 v239, %s offset:%d" % (v(196 + 4 * k, 4), 128 * k))
    A("s_waitcnt lgkmcnt(0)")
    lds_signal(A, 2, "v8", "v9")
    Le = A.newlabel("noep")
    A("s_cmp_lg_u32 s41, 0")
    A("s_cbranch_scc1 %s" % Le)
    A("s_cmp_lg_u32 s42, 4")
    A("s_cbranch_scc1 %s" % Le)
    A("s_setprio 0")
    A("v_lshlrev_b32 v16, 2, v1")
    A("v_min_u32 v17, 15, v1")
    A("v_lshlrev_b32 v17, 2, v17")
    def al_loads():
        A("s_movk_i32 s43, %d" % F_ALIVE)
        A("buffer_load_dword v20, v16, s[36:39], s43 offen sc1")
        A("buffer_load_dword v21, v16, s[36:39], s43 offen offset:256 sc1")
        A("buffer_load_dword v22, v17, s[36:39], s43 offen offset:512 sc1")
    masked_poll(A, "al", al_loads, [20, 21, 22], 16, 0)
    A("v_mov_b32 v20, %s" % T)
    A("v_mov_b32 v21, %d" % F_EPOCH)
    A("s_mov_b64 exec, 1")
    A("buffer_store_dword v20, v21, s[36:39], 0 offen sc1")
    A("s_mov_b64 exec, -1")
    A.label(Le)
    A("s_endpgm")

def gen_spare_wg(A):
    A("s_lshl_b32 s60, s41, 3")
    A("s_add_u32 s60, s60, s42")
    A("s_add_u32 s60, s60, 288")
    Lx = A.newlabel("spx")
    A("s_cmp_ge_u32 s60, 512")
    A("s_cbranch_scc1 %s" % Lx)
    Q, WR, X = gen_ln(A)
    finish_tag(A)
    gen_ln_compute(A, Q, WR, X)
    A.label(Lx)
    A("s_endpgm")

def gen_kernel(A, name):
    kernel_header(A, name)
    Ldone = A.newlabel("done"); Lmoe = A.newlabel("moe"); Lsp = A.newlabel("spare")
    A("s_getpc_b64 s[96:97]")
    if os.environ.get("CALD"):
        A("s_memrealtime s[100:101]")
    A("s_cmp_ge_u32 s2, 256")
    A("s_cbranch_scc1 %s" % Ldone)
    A("s_load_dwordx4 s[68:71], s[0:1], %d" % KA_DBG)
    A("s_load_dwordx16 s[72:87], s[0:1], 0")
    A("s_load_dwordx8 s[88:95], s[0:1], %d" % KA_WG)
    A("v_lshrrev_b32 v1, 6, v0")
    A("s_and_b32 s30, s2, 7")
    A("s_lshr_b32 s31, s2, 3")
    A("v_readfirstlane_b32 s42, v1")
    A("s_mov_b32 s40, 0xffff0000")
    if not os.environ.get("NOICPF"):
        Lc = A.newlabel("noic")
        A("s_and_b32 s96, s96, 0xffffff00")
        A("s_and_b32 s97, s97, 0xffff")
        A("s_mov_b32 s98, L_code_end-%s" % name)
        A("s_mov_b32 s99, 0x00020000")
        A("v_and_b32 v243, 63, v0")
        A("v_lshlrev_b32 v243, 4, v243")
        A("s_lshl_b32 s95, s31, 10") if False else None
        A("s_lshl_b32 s3, s31, 10")
        A("v_cmp_lt_u32 vcc, 447, v0")
        A("s_cbranch_vccz %s" % Lc)
        A("buffer_load_dwordx4 v[244:247], v243, s[96:99], s3 offen")
        A.label(Lc)
    A("s_waitcnt lgkmcnt(0)")
    A("s_load_dword s%d, s[%d:%d], %d" % (TAG, PWS, PWS + 1, F_EPOCH))
    srd(A, 36, PWS, WS_SIZE)
    A("s_lshl_b32 s3, s2, 3")
    A("s_add_u32 s3, s3, s42")
    st_(A, 0)
    ORD = os.environ.get("ORD", "B")
    if ORD == "A":
        c0, m0, p0 = 0, 18, 27
    else:
        c0, m0, p0 = 14, 5, 0
    A("s_sub_u32 s41, s31, %d" % m0)
    A("s_cmp_lt_u32 s41, 9")
    A("s_cbranch_scc1 %s" % Lmoe)
    A("s_sub_u32 s41, s31, %d" % p0)
    A("s_cmp_lt_u32 s41, 5")
    A("s_cbranch_scc1 %s" % Lsp)
    A("s_sub_u32 s31, s31, %d" % c0)
    A("s_mul_i32 s41, s30, 18")
    A("s_add_u32 s41, s41, s31")
    gen_conv_wg(A)
    A.label(Lmoe)
    A("s_mul_i32 s31, s30, 9")
    A("s_add_u32 s41, s41, s31")
    gen_moe_wg(A)
    A.label(Lsp)
    A("s_mul_i32 s31, s30, 5")
    A("s_add_u32 s41, s41, s31")
    gen_spare_wg(A)
    A.label(Ldone)
    A("s_endpgm")
    A.label("L_code_end")
    return kernel_desc(name, 256, 102, 256)
```

```python
from common import *
import common, os
from collections import deque
from conv2 import CS, CH_LDS, H_OFF, POLL_MAX, conv_schedule
from moe2 import wave_max_u32, L_WG, L_WU, L_X, L_HS, L_U, L_CAND, XSTR, HSTR
from moe3 import SORT8, sort_desc, rounds

F_EPOCH = 0x0
F_SELG = 0x100
F_ALIVE = 0x1000
F_KEYG = 0x2000
F_ROWG = 0x8000
F_LNF = 0x6000
F_URC = 0x100000 + 0x300000
F_UR = 0x20000
F_PARTG = 0x500000
F_XT = 0x800000
F_XC = 0x480000
L_TAG = 162304

PQ, PK, PV, PSHK, PSSMK, PSSMD, PWR, PWG, PWU, PWD, POUT, PWS = 72, 74, 76, 78, 80, 82, 86, 88, 90, 92, 94, 70
TAG = 46
QNT = '' if os.environ.get('QDEF') else ' nt'
NTS = '' if os.environ.get('NONT') else ' nt'
LIGHT = os.environ.get("STAMPS") == "2"
def st_(A, n, end=False):
    if LIGHT:
        if n != 0 and not end:
            return
        n = 15 if end else 0
    stamp(A, n, 36, 3, vt=254, st=96)

MISC = 4 * CH_LDS
FLAGS = MISC
SIDE = MISC + 64
RED = SIDE + 256
YOFF = H_OFF
W1, W0 = 20, 28
E_, G_, F_ = 36, 44, 50
UREG = 56
RING, NR, ACC, BS = 64, 6, 88, 120

DBGT = bool(os.environ.get("DBGT"))
def dbg_time(A, slot, invert=False):
    if not DBGT:
        return
    L = A.newlabel("dbgs")
    A("s_and_b32 s100, s42, 3")
    A("s_cmp_lg_u32 s100, 0")
    A("s_cbranch_scc1 %s" % L)
    A("s_cmp_eq_u32 s2, %d" % (8 if os.environ.get("ORD", "B") == "A" else 120))
    A("s_cselect_b32 s100, 1, 0")
    A("s_cmp_eq_u32 s2, %d" % (152 if os.environ.get("ORD", "B") == "A" else 48))
    A("s_cselect_b32 s100, 1, s100")
    A("s_cmp_eq_u32 s100, 0")
    A("s_cbranch_scc1 %s" % L)
    A("s_memrealtime s[96:97]")
    A("s_waitcnt lgkmcnt(0)")
    A("v_mov_b32 v252, s96")
    A("v_mov_b32 v253, %d" % (4 * slot))
    A("s_mov_b64 s[98:99], exec")
    A("s_mov_b64 exec, 1")
    A("global_store_dword v253, v252, s[68:69]")
    A("s_mov_b64 exec, s[98:99]")
    A.label(L)

DRY = os.environ.get("DRY", "1") != "0"
class TwoPass:
    def __init__(self, A, name):
        self.A = A
        self.L = A.newlabel(name + "b"); self.Lo = A.newlabel(name + "o"); self.Lt = A.newlabel(name + "t")
    def begin(self, transition):
        A = self.A
        self.transition = transition
        if DRY:
            A("s_mov_b32 s12, 0")
            A("s_mov_b64 exec, 0")
        else:
            transition()
        A.label(self.L)
    def guard_begin(self):
        if not DRY: return None
        l = self.A.newlabel("gd")
        self.A("s_cmp_eq_u32 s12, 0")
        self.A("s_cbranch_scc1 %s" % l)
        return l
    def guard_end(self, l):
        if l: self.A.label(l)
    def end(self):
        A = self.A
        if DRY:
            A("s_cmp_eq_u32 s12, 1")
            A("s_cbranch_scc1 %s" % self.Lo)
            A("s_mov_b32 s12, 1")
            A("s_mov_b64 exec, -1")
            self.transition()
            A("s_branch %s" % self.L)
            A.label(self.Lo)

def poll_head(A, cnt="s52"):
    A("s_mov_b32 %s, 0" % cnt)

def poll_tail(A, Lloop, Ldone, cnt="s52", sleep=1):
    A("s_add_u32 %s, %s, 1" % (cnt, cnt))
    A("s_cmp_gt_u32 %s, %d" % (cnt, POLL_MAX))
    A("s_cbranch_scc1 %s" % Ldone)
    A("s_sleep %d" % sleep)
    A("s_branch %s" % Lloop)

def masked_poll(A, name, emit_loads, tagregs, sleep, pre_sleep=0, full_exec="-1"):
    T = "s%d" % TAG
    Lp = A.newlabel(name + "p"); Ld = A.newlabel(name + "ok")
    if pre_sleep:
        A("s_sleep %d" % pre_sleep)
    A("s_mov_b32 s52, 0")
    A.label(Lp)
    emit_loads()
    A("s_waitcnt vmcnt(0)")
    A("v_cmp_eq_u32 vcc, %s, %s" % (T, v(tagregs[0])))
    for r in tagregs[1:]:
        A("v_cmp_eq_u32 s[54:55], %s, %s" % (T, v(r)))
        A("s_and_b64 vcc, vcc, s[54:55]")
    A("s_andn2_b64 exec, exec, vcc")
    A("s_cbranch_scc0 %s" % Ld)
    A("s_add_u32 s52, s52, 1")
    A("s_cmp_gt_u32 s52, %d" % POLL_MAX)
    A("s_cbranch_scc1 %s" % Ld)
    A("s_sleep %d" % sleep)
    A("s_branch %s" % Lp)
    A.label(Ld)
    A("s_mov_b64 exec, %s" % full_exec)

def first_then_poll(A, name, emit_loads, tagregs, sleep, ex, first_cnt=0):
    T = "s%d" % TAG
    Lp = A.newlabel(name + "p"); Ld = A.newlabel(name + "ok")
    A("s_mov_b32 s52, 0")
    A("s_waitcnt vmcnt(%d)" % first_cnt)
    A.label(Lp)
    A("v_cmp_eq_u32 vcc, %s, %s" % (T, v(tagregs[0])))
    for r in tagregs[1:]:
        A("v_cmp_eq_u32 s[54:55], %s, %s" % (T, v(r)))
        A("s_and_b64 vcc, vcc, s[54:55]")
    A("s_andn2_b64 exec, exec, vcc")
    A("s_cbranch_scc0 %s" % Ld)
    A("s_add_u32 s52, s52, 1")
    A("s_cmp_gt_u32 s52, %d" % POLL_MAX)
    A("s_cbranch_scc1 %s" % Ld)
    A("s_sleep %d" % sleep)
    emit_loads()
    A("s_waitcnt vmcnt(0)")
    A("s_branch %s" % Lp)
    A.label(Ld)
    A("s_mov_b64 exec, -1")

def ln_hint_poll(A, vaddr, r0, sleep, pre):
    def loads():
        A("s_movk_i32 s51, %d" % F_LNF)
        A("buffer_load_dwordx4 %s, %s, s[36:39], s51 offen sc1" % (v(r0, 4), vaddr))
        A("buffer_load_dwordx4 %s, %s, s[36:39], s51 offen offset:1024 sc1" % (v(r0 + 4, 4), vaddr))
    masked_poll(A, "lnh", loads, list(range(r0, r0 + 8)), sleep, pre)

def stats_from_msd(A, g, st, t):
    A("v_and_b32 %s, s40, %s" % (v(st + 4), v(g)))
    A("v_lshlrev_b32 %s, 16, %s" % (v(st), v(g)))
    A("v_rcp_f32 %s, %s" % (v(st + 2), v(st + 4)))
    A("v_xor_b32 %s, 0x80000000, %s" % (v(st), v(st)))
    A("v_xor_b32 %s, 0x80000000, %s" % (v(st + 4), v(st + 4)))
    A("v_fma_f32 %s, %s, %s, 1.0" % (v(t), v(st + 4), v(st + 2)))
    A("v_mov_b32 %s, %s" % (v(st + 1), v(st)))
    A("v_fma_f32 %s, %s, %s, %s" % (v(st + 2), v(t), v(st + 2), v(st + 2)))
    A("v_mov_b32 %s, %s" % (v(st + 5), v(st + 4)))
    A("v_mov_b32 %s, %s" % (v(st + 3), v(st + 2)))

LK, LV, LQ, SG, SX, SGS = 0, 17408, 33792, 50176, 67584, 272

def row_xor_reduce(A, regs):
    for ctl in ("quad_perm:[1,0,3,2]", "quad_perm:[2,3,0,1]", "row_half_mirror", "row_mirror"):
        if len(regs) < 3:
            A.nop(3 - len(regs))
        for r in regs:
            A("v_xor_b32_dpp %s, %s, %s %s row_mask:0xf bank_mask:0xf" % (v(r), v(r), v(r), ctl))

def gen_kv_issue(A):
    srd(A, 48, PK, S * ROWB)
    srd(A, 52, PV, S * ROWB)
    A("v_and_b32 v1, 63, v0")
    A("v_lshrrev_b32 v4, 3, v1")
    A("v_mul_u32_u24 v4, 1152, v4")
    A("v_and_b32 v5, 7, v1")
    A("v_lshl_add_u32 v4, v5, 4, v4")
    A("s_mul_i32 s62, s61, %d" % (128 * 1152))
    A("s_lshl_b32 s63, s60, 7")
    A("s_add_u32 s62, s62, s63")
    A("s_mul_i32 s63, s42, 9216")
    A("s_add_u32 s62, s62, s63")
    A("s_sub_u32 s63, s62, 9216")
    A("s_lshl_b32 s64, s42, 10")
    srd(A, 16, PQ, S * ROWB)
    for i in range(4):
        A("s_mov_b32 m0, s64")
        A("s_add_u32 s65, s64, %d" % LV)
        A("buffer_load_dwordx4 v4, s[48:51], s63 offen lds" + NTS)
        A("s_mov_b32 m0, s65")
        A("s_add_u32 s65, s64, %d" % LQ)
        A("buffer_load_dwordx4 v4, s[52:55], s62 offen lds" + NTS)
        A("s_mov_b32 m0, s65")
        A("s_add_u32 s64, s64, 4096")
        A("buffer_load_dwordx4 v4, s[16:19], s62 offen lds" + NTS)
        A("s_add_u32 s63, s63, %d" % (32 * 1152))
        A("s_add_u32 s62, s62, %d" % (32 * 1152))
    Ln = A.newlabel("nok17")
    A("s_cmp_lg_u32 s42, 0")
    A("s_cbranch_scc1 %s" % Ln)
    A("s_mov_b32 m0, s64")
    A("s_nop 0")
    A("buffer_load_dwordx4 v4, s[48:51], s63 offen lds" + NTS)
    A.label(Ln)

def gen_kv_addr(A):
    srd(A, 56, PSHK, D * 8)
    A("v_and_b32 v2, 31, v0")
    A("s_lshl_b32 s63, s60, 9")
    A("v_lshl_add_u32 v29, v2, 4, s63")
    A("buffer_load_dwordx4 v[32:35], v29, s[56:59], 0 offen")

def gen_kv_addr2(A):
    A("v_lshrrev_b32 v3, 5, v0")
    A("v_lshlrev_b32 v6, 10, v3")
    A("v_lshl_add_u32 v6, v2, 2, v6")
    A("v_mul_u32_u24 v7, %d, v2" % (2 * SGS))
    A("v_sub_u32 v8, 15, v3")
    A("v_lshl_add_u32 v7, v8, 4, v7")
    A("v_add_u32 v7, %d, v7" % SG)
    A("v_bfe_u32 v10, v0, 4, 2")
    A("v_and_b32 v11, 15, v0")
    A("v_mul_u32_u24 v8, %d, v10" % SGS)
    A("v_lshl_add_u32 v8, v11, 4, v8")
    A("s_mul_i32 s63, s42, %d" % (8 * SGS))
    A("s_add_u32 s63, s63, %d" % SG)
    A("v_add_u32 v8, s63, v8")
    A("v_lshlrev_b32 v9, 12, v10")
    A("v_lshl_add_u32 v9, v11, 4, v9")
    A("s_lshl_b32 s63, s60, 6")
    A("s_lshl_b32 s64, s42, 3")
    A("s_add_u32 s63, s63, s64")
    A("s_lshl_b32 s65, s63, 12")
    A("s_lshl_b32 s64, s61, 8")
    A("s_sub_u32 s65, s65, s64")
    A("s_add_u32 s65, s65, %d" % (F_UR + 240 * 16))
    A("v_add_u32 v9, s65, v9")
    A("v_lshlrev_b32 v12, 7, v10")
    A("s_lshl_b32 s65, s63, 7")
    A("s_lshl_b32 s64, s61, 3")
    A("s_sub_u32 s65, s65, s64")
    A("s_add_u32 s65, s65, %d" % (F_URC + 120))
    A("v_add_u32 v12, s65, v12")
    A("v_cmp_eq_u32 s[66:67], 0, v11")
    A("v_mul_u32_u24 v13, %d, v2" % (2 * SGS))
    A("v_lshl_add_u32 v13, v3, 4, v13")
    A("v_add_u32 v13, %d, v13" % SX)
    A("v_lshlrev_b32 v48, 12, v10")
    A("v_lshl_add_u32 v48, v11, 4, v48")
    A("s_lshl_b32 s65, s63, 12")
    A("s_lshl_b32 s64, s61, 8")
    A("s_add_u32 s65, s65, s64")
    A("s_add_u32 s65, s65, %d" % F_XT)
    A("v_add_u32 v48, s65, v48")
    A("v_lshlrev_b32 v49, 7, v10")
    A("s_lshl_b32 s65, s63, 7")
    A("s_lshl_b32 s64, s61, 3")
    A("s_add_u32 s65, s65, s64")
    A("s_add_u32 s65, s65, %d" % F_XC)
    A("v_add_u32 v49, s65, v49")

def gen_kv_compute(A):
    def trans():
        A("s_waitcnt vmcnt(0)")
        A("s_barrier")
        st_(A, 1)
        dbg_time(A, 8)
    tp = TwoPass(A, "kv")
    tp.begin(trans)
    for i in range(11):
        A("ds_read_b32 %s, v6 offset:%d" % (v(14 + i), LK + (5 + i) * 128))
    for i in range(8):
        A("ds_read_b32 %s, v6 offset:%d" % (v(40 + i), LV + i * 128))
    for i in range(8):
        A("ds_read_b32 %s, v6 offset:%d" % (v(144 + i), LQ + i * 128))
    A("v_lshlrev_b32 v54, 16, v32"); A("v_lshlrev_b32 v55, 16, v34")
    A("v_and_b32 v56, s40, v32");    A("v_and_b32 v57, s40, v34")
    A("v_lshlrev_b32 v58, 16, v33"); A("v_lshlrev_b32 v59, 16, v35")
    A("v_and_b32 v60, s40, v33");    A("v_and_b32 v61, s40, v35")
    DOT = bool(os.environ.get("DOT2", "1") != "0")
    W, K, KV = 54, 62, 100
    A("s_mov_b32 s64, 0x05040100"); A("s_mov_b32 s65, 0x07060302")
    if DOT:
        A("v_and_b32 v62, 0xffff, v32"); A("v_lshlrev_b32 v63, 16, v34")
        A("v_lshrrev_b32 v64, 16, v32"); A("v_and_b32 v65, s40, v34")
        A("v_and_b32 v66, 0xffff, v33"); A("v_lshlrev_b32 v67, 16, v35")
        A("v_lshrrev_b32 v68, 16, v33"); A("v_and_b32 v69, s40, v35")
        A("v_mov_b32 v70, 0x3f803f80")
        A("v_mov_b32 v71, 0")
        A("s_waitcnt lgkmcnt(0)")
        for j in range(4):
            A("v_perm_b32 %s, %s, %s, s64" % (v(152 + j), v(144 + 2 * j + 1), v(144 + 2 * j)))
            A("v_perm_b32 %s, %s, %s, s65" % (v(156 + j), v(144 + 2 * j + 1), v(144 + 2 * j)))
        A("ds_write_b128 v13, v[152:155]")
        A("ds_write_b128 v13, v[156:159] offset:%d" % SGS)
        def ch_ops(i, c, t0):
            a_, b_, p_, q_ = t0, t0 + 1, t0 + 2, t0 + 3
            o = []
            d2 = lambda d, x, y, z: "v_dot2_f32_bf16 %s, %s, %s, %s" % (v(d), v(x), v(y), z)
            o.append(d2(a_, 14 + i + 0, 62 + 2 * 3 + c, "0"))
            o.append(d2(b_, 14 + i + 1, 62 + 2 * 2 + c, "0"))
            o.append(d2(q_, 14 + i + 2, 62 + 2 * 1 + c, "0"))
            o.append("v_cvt_pk_bf16_f32 %s, %s, %s" % (v(p_), v(a_), v(b_)))
            o.append(d2(b_, 14 + i + 3, 62 + 2 * 0 + c, "0"))
            o.append(d2(a_, p_, 70, "0"))
            o.append("s_nop 0")
            o.append("v_cvt_pk_bf16_f32 %s, %s, %s" % (v(p_), v(a_), v(q_)))
            o.append("s_nop 0")
            o.append(d2(a_, p_, 70, "0"))
            o.append("s_nop 0")
            o.append("v_cvt_pk_bf16_f32 %s, %s, %s" % (v(p_), v(a_), v(b_)))
            o.append("s_nop 0")
            o.append(d2(a_, p_, 70, "0"))
            o.append("s_nop 0")
            if c == 0:
                o.append("v_cvt_pk_bf16_f32 %s, %s, %s" % (v(p_), v(a_), v(71)))
            else:
                o.append("v_cvt_pk_bf16_f32 %s, %s, %s" % (v(p_), v(71), v(a_)))
            o.append("s_nop 0")
            o.append(d2(KV + 2 * i + c, p_, 40 + i, "0"))
            return [x for x in o if x != "s_nop 0"]
        for i in range(0, 8, 4):
            streams = []
            for ii in range(4):
                for c in range(2):
                    streams.append(ch_ops(i + ii, c, 72 + 4 * (2 * ii + c) if (2 * ii + c) < 7 else 132))
            interleave(A, streams)
        A.nop(3)
        for c in range(2):
            for j in range(4):
                A("v_cvt_pk_bf16_f32 %s, %s, %s" % (v(116 + 4 * c + j), v(KV + 2 * (7 - 2 * j) + c), v(KV + 2 * (6 - 2 * j) + c)))
    else:
        A("s_waitcnt lgkmcnt(15)")
        for i in range(11):
            unpack_pair(A, K + 2 * i, K + 2 * i + 1, 14 + i, 40)
        A("s_waitcnt lgkmcnt(0)")
        for j in range(4):
            A("v_perm_b32 %s, %s, %s, s64" % (v(152 + j), v(144 + 2 * j + 1), v(144 + 2 * j)))
            A("v_perm_b32 %s, %s, %s, s65" % (v(156 + j), v(144 + 2 * j + 1), v(144 + 2 * j)))
        A("ds_write_b128 v13, v[152:155]")
        A("ds_write_b128 v13, v[156:159] offset:%d" % SGS)
        def pr_(r):
            return "v[%d:%d]" % (r, r + 1)
        def row_ops(i, acc, tmp, t3):
            P = Asm()
            P("v_pk_mul_f32 %s, %s, %s" % (pr_(acc), pr_(K + 2 * (i + 0)), pr_(W + 6)))
            round_pair(P, acc, acc + 1, t3, 40)
            for t in range(1, 4):
                P("v_pk_mul_f32 %s, %s, %s" % (pr_(tmp), pr_(K + 2 * (i + t)), pr_(W + 2 * (3 - t))))
                round_pair(P, tmp, tmp + 1, t3, 40)
                P("v_pk_add_f32 %s, %s, %s" % (pr_(acc), pr_(acc), pr_(tmp)))
                round_pair(P, acc, acc + 1, t3, 40)
            unpack_pair(P, tmp, tmp + 1, 40 + i, 40)
            P("v_pk_mul_f32 %s, %s, %s" % (pr_(KV + 2 * i), pr_(acc), pr_(tmp)))
            return [l.strip() for l in P.lines]
        for i in range(0, 8, 4):
            interleave(A, [row_ops(i, 84, 86, 88), row_ops(i + 1, 90, 92, 94), row_ops(i + 2, 132, 134, 136), row_ops(i + 3, 138, 140, 142)])
        for c in range(2):
            for j in range(4):
                A("v_cvt_pk_bf16_f32 %s, %s, %s" % (v(116 + 4 * c + j), v(KV + 2 * (7 - 2 * j) + c), v(KV + 2 * (6 - 2 * j) + c)))
    A("ds_write_b128 v7, v[116:119]")
    A("ds_write_b128 v7, v[120:123] offset:%d" % SGS)
    A("s_waitcnt lgkmcnt(0)")
    tp.end()
    A("s_barrier")
    A("ds_read_b128 v[116:119], v8")
    A("ds_read_b128 v[120:123], v8 offset:%d" % (4 * SGS))
    A("s_movk_i32 s63, 16384")
    A("s_waitcnt lgkmcnt(1)")
    A("buffer_store_dwordx4 v[116:119], v9, s[36:39], 0 offen sc1")
    A("v_xor_b32 v124, v116, v117"); A("v_xor_b32 v126, v118, v119")
    A("s_waitcnt lgkmcnt(0)")
    A("buffer_store_dwordx4 v[120:123], v9, s[36:39], s63 offen sc1")
    A("v_xor_b32 v125, v120, v121"); A("v_xor_b32 v127, v122, v123")
    A("v_xor_b32 v124, v124, v126"); A("v_xor_b32 v125, v125, v127")
    row_xor_reduce(A, [124, 125])
    A("v_xor_b32 v128, s%d, v124" % TAG); A("v_xor_b32 v130, s%d, v125" % TAG)
    A("v_mov_b32 v129, s%d" % TAG); A("v_mov_b32 v131, s%d" % TAG)
    A("s_mov_b64 exec, s[66:67]")
    A("buffer_store_dwordx2 v[128:129], v12, s[36:39], 0 offen sc1")
    A("buffer_store_dwordx2 v[130:131], v12, s[36:39], 0 offen offset:512 sc1")
    A("s_mov_b64 exec, -1")
    A("ds_read_b128 v[116:119], v8 offset:%d" % (SX - SG))
    A("ds_read_b128 v[120:123], v8 offset:%d" % (SX - SG + 4 * SGS))
    A("s_waitcnt lgkmcnt(1)")
    A("buffer_store_dwordx4 v[116:119], v48, s[36:39], 0 offen sc1")
    A("v_xor_b32 v124, v116, v117"); A("v_xor_b32 v126, v118, v119")
    A("s_waitcnt lgkmcnt(0)")
    A("buffer_store_dwordx4 v[120:123], v48, s[36:39], s63 offen sc1")
    A("v_xor_b32 v125, v120, v121"); A("v_xor_b32 v127, v122, v123")
    A("v_xor_b32 v124, v124, v126"); A("v_xor_b32 v125, v125, v127")
    row_xor_reduce(A, [124, 125])
    A("v_xor_b32 v128, s%d, v124" % TAG); A("v_xor_b32 v130, s%d, v125" % TAG)
    A("s_mov_b64 exec, s[66:67]")
    A("buffer_store_dwordx2 v[128:129], v49, s[36:39], 0 offen sc1")
    A("buffer_store_dwordx2 v[130:131], v49, s[36:39], 0 offen offset:512 sc1")
    A("s_mov_b64 exec, -1")
    st_(A, 2)

def gen_ln(A, two=False):
    srd(A, 48, PQ, S * ROWB)
    srd(A, 56, PWR, D * 2)
    A("v_and_b32 v1, 63, v0")
    A("v_and_b32 v2, 15, v0")
    A("v_lshrrev_b32 v3, 4, v1")
    A("s_lshl_b32 s61, s60, 2")
    A("v_add_u32 v30, s61, v3")
    A("s_movk_i32 s62, 1152")
    A("v_mul_lo_u32 v6, v30, s62")
    A("v_lshl_add_u32 v6, v2, 3, v6")
    A("v_lshlrev_b32 v7, 3, v2")
    Q, WR, X = 64, 84, 104
    for i in range(9):
        A("buffer_load_dwordx2 %s, v6, s[48:51], 0 offen offset:%d" % (v(Q + 2 * i, 2), 128 * i) + QNT)
    for i in range(9):
        A("buffer_load_dwordx2 %s, v7, s[56:59], 0 offen offset:%d" % (v(WR + 2 * i, 2), 128 * i))
    if two:
        A("s_mov_b32 s62, %d" % (1024 * 1152))
        for i in range(9):
            A("buffer_load_dwordx2 %s, v6, s[48:51], s62 offen offset:%d" % (v(144 + 2 * i, 2), 128 * i))
    return Q, WR, X

def gen_ln_compute(A, Q, WR, X, extra=0, first_wait=None):
    def trans():
        A("s_waitcnt vmcnt(%d)" % extra)
        st_(A, 1)
    tp = TwoPass(A, "ln")
    tp.begin(trans)
    for i in range(18):
        unpack_pair(A, X + 2 * i, X + 2 * i + 1, Q + i, 40)
    A("v_pk_add_f32 v[8:9], %s, %s" % (v(X, 2), v(X + 2, 2)))
    A("v_pk_add_f32 v[10:11], %s, %s" % (v(X + 4, 2), v(X + 6, 2)))
    for i in range(4, 18, 2):
        A("v_pk_add_f32 v[8:9], v[8:9], %s" % v(X + 2 * i, 2))
        A("v_pk_add_f32 v[10:11], v[10:11], %s" % v(X + 2 * i + 2, 2))
    A("v_pk_add_f32 v[8:9], v[8:9], v[10:11]")
    A.nop(1)
    A("v_add_f32 v8, v8, v9")
    allreduce16_add(A, 8)
    A("v_mul_f32 v8, 0x3ae38e39, v8")
    A("v_sub_f32 v12, 0, v8")
    A("v_sub_f32 v13, 0, v8")
    for r in (14, 15, 16, 17):
        A("v_mov_b32 %s, 0" % v(r))
    for i in range(0, 18, 2):
        A("v_pk_add_f32 v[18:19], %s, v[12:13]" % v(X + 2 * i, 2))
        A("v_pk_add_f32 v[20:21], %s, v[12:13]" % v(X + 2 * i + 2, 2))
        A("v_pk_fma_f32 v[14:15], v[18:19], v[18:19], v[14:15]")
        A("v_pk_fma_f32 v[16:17], v[20:21], v[20:21], v[16:17]")
    A("v_pk_add_f32 v[14:15], v[14:15], v[16:17]")
    A.nop(1)
    A("v_add_f32 v14, v14, v15")
    allreduce16_add(A, 14)
    A("v_mul_f32 v14, 0x3ae38e39, v14")
    A.nop(1)
    round_pair(A, 8, 14, 9, 40)
    A("v_add_f32 v14, 0x3727c5ac, v14")
    A.nop(1)
    A("v_cvt_pk_bf16_f32 v9, v14, v14")
    A("v_lshlrev_b32 v14, 16, v9")
    A("v_sqrt_f32 v14, v14")
    A.nop(1)
    A("v_cvt_pk_bf16_f32 v9, v14, v14")
    A("v_lshlrev_b32 v14, 16, v9")
    A("v_rcp_f32 v15, v14")
    A.nop(1)
    A("v_fma_f32 v16, -v14, v15, 1.0")
    A("v_fma_f32 v15, v16, v15, v15")
    A("v_sub_f32 v12, 0, v8"); A("v_sub_f32 v13, 0, v8")
    A("v_mov_b32 v16, v15"); A("v_mov_b32 v17, v15")
    for r in (22, 23, 24, 25):
        A("v_mov_b32 %s, 0" % v(r))
    def ops(i, tm, acc):
        x0 = X + 2 * i
        P = Asm()
        P("v_pk_add_f32 %s, %s, v[12:13]" % (v(x0, 2), v(x0, 2)))
        round_pair(P, x0, x0 + 1, tm, 40)
        P("v_pk_mul_f32 %s, %s, v[16:17]" % (v(x0, 2), v(x0, 2)))
        round_pair(P, x0, x0 + 1, tm, 40)
        unpack_pair(P, tm + 2, tm + 3, WR + i, 40)
        P("v_pk_fma_f32 %s, %s, %s, %s" % (v(acc, 2), v(x0, 2), v(tm + 2, 2), v(acc, 2)))
        return [l.strip() for l in P.lines]
    for i in range(0, 18, 2):
        interleave(A, [ops(i, 26, 22), ops(i + 1, 32, 24)])
    A("v_pk_add_f32 v[22:23], v[22:23], v[24:25]")
    A.nop(1)
    A("v_add_f32 v22, v22, v23")
    allreduce16_add(A, 22)
    A.nop(1)
    A("v_cvt_pk_bf16_f32 v23, v22, v22")
    A("v_lshlrev_b32 v23, 16, v23")
    A("v_ashrrev_i32 v24, 31, v23")
    A("v_or_b32 v24, 0x80000000, v24")
    A("v_xor_b32 v23, v23, v24")
    A("v_and_b32 v23, s40, v23")
    A("v_sub_u32 v24, 2047, v30")
    A("v_or_b32 v26, v23, v24")
    A("v_mov_b32 v27, s%d" % TAG)
    A("v_cvt_pk_bf16_f32 v32, v8, v14")
    A("v_mov_b32 v33, s%d" % TAG)
    A("v_lshlrev_b32 v28, 3, v30")
    A("s_movk_i32 s61, %d" % F_KEYG)
    A("s_mov_b32 s62, %d" % F_ROWG)
    tp.end()
    A("v_cmp_eq_u32 vcc, 0, v2")
    A("s_and_saveexec_b64 s[64:65], vcc")
    A("buffer_store_dwordx2 v[26:27], v28, s[36:39], s61 offen sc1")
    A("buffer_store_dwordx2 v[32:33], v28, s[36:39], s62 offen sc1")
    A("s_mov_b64 exec, s[64:65]")
    st_(A, 2)

def load_verified_runs(A, pay_soff, chk_soff, vlane16, vchk8, vhint8, P, pre, sleep):
    C, Tm = P + 16, P + 20
    def hint_loads():
        A("buffer_load_dwordx2 %s, %s, s[36:39], %s offen sc1" % (v(C, 2), vhint8, chk_soff))
    masked_poll(A, "vh", hint_loads, [C + 1], sleep, pre)
    Lp = A.newlabel("vp"); Ld = A.newlabel("vok")
    A("s_mov_b32 s52, 0")
    A.label(Lp)
    for i in range(4):
        A("buffer_load_dwordx4 %s, %s, s[36:39], %s offen offset:%d sc1" % (v(P + 4 * i, 4), vlane16, pay_soff, 1024 * i))
    for i in range(4):
        A("buffer_load_dword %s, %s, s[36:39], %s offen offset:%d sc1" % (v(C + i), vchk8, chk_soff, 32 * i))
    A("s_waitcnt vmcnt(0)")
    for i in range(4):
        A("v_xor_b32 %s, %s, %s" % (v(Tm + i), v(P + 4 * i), v(P + 1 + 4 * i)))
    for i in range(4):
        A("v_xor_b32 %s, %s, %s" % (v(Tm + 4 + i), v(P + 2 + 4 * i), v(P + 3 + 4 * i)))
    for i in range(4):
        A("v_xor_b32 %s, %s, %s" % (v(Tm + i), v(Tm + i), v(Tm + 4 + i)))
    row_xor_reduce(A, [Tm, Tm + 1, Tm + 2, Tm + 3])
    for i in range(4):
        A("v_xor_b32 %s, %s, %s" % (v(Tm + i), v(Tm + i), v(C + i)))
    A("v_cmp_eq_u32 vcc, s%d, %s" % (TAG, v(Tm)))
    for i in range(1, 4):
        A("v_cmp_eq_u32 s[54:55], s%d, %s" % (TAG, v(Tm + i)))
        A("s_and_b64 vcc, vcc, s[54:55]")
    A("s_cmp_eq_u64 vcc, -1")
    A("s_cbranch_scc1 %s" % Ld)
    A("s_add_u32 s52, s52, 1")
    A("s_cmp_gt_u32 s52, %d" % POLL_MAX)
    A("s_cbranch_scc1 %s" % Ld)
    A("s_sleep 2")
    A("s_branch %s" % Lp)
    A.label(Ld)

def build_ops(W, N, off):
    ops = []
    for k in range(7):
        ops.append("v_alignbit_b32 %s, %s, %s, 16" % (v(E_ + k), v(W + k + 1), v(W + k)))
    ops.append("ds_write_b128 v11, %s offset:%d" % (v(W + 2, 4), 4 * CS + off))
    for k in range(3):
        ops.append("v_pk_mov_b32 %s, %s, %s op_sel:[1,0]" % (v(G_ + 2 * k, 2), v(W + 2 * k, 2), v(W + 2 * k + 2, 2)))
    ops.append("ds_write_b128 v11, %s offset:%d" % (v(E_, 4), 1 * CS + off))
    ops.append("ds_write_b128 v11, %s offset:%d" % (v(E_ + 2, 4), 5 * CS + off))
    for k in range(3):
        ops.append("v_pk_mov_b32 %s, %s, %s op_sel:[1,0]" % (v(F_ + 2 * k, 2), v(E_ + 2 * k, 2), v(E_ + 2 * k + 2, 2)))
    ops.append("ds_write_b128 v11, %s offset:%d" % (v(G_, 4), 2 * CS + off))
    ops.append("ds_write_b128 v11, %s offset:%d" % (v(G_ + 2, 4), 6 * CS + off))
    ops.append("s_nop 0")
    ops.append("ds_write_b128 v11, %s offset:%d" % (v(F_, 4), 3 * CS + off))
    ops.append("ds_write_b128 v11, %s offset:%d" % (v(F_ + 2, 4), 7 * CS + off))
    return ops

def gen_M(A):
    A("s_setprio %d" % int(os.environ.get("MPRIO", 2)))
    srd(A, 32, PSSMK, D * S * 2)
    A("v_and_b32 v1, 63, v0")
    A("v_lshlrev_b32 v4, 4, v1")
    A("s_add_u32 s56, s45, %d" % (H_OFF + 512))
    A("s_lshl_b32 s57, s44, 12")
    A("s_mov_b32 m0, s56")
    A("s_lshl_b32 s51, s44, 1")
    for i in range(4):
        A("buffer_load_dwordx4 v4, s[32:35], s57 offen offset:%d lds" % (1024 * i) + NTS)
    A("s_add_u32 s56, s56, 4096")
    A("s_add_u32 s57, s57, 4096")
    A("s_mov_b32 m0, s56")
    A("s_mov_b64 exec, 0x3")
    A("buffer_load_dwordx4 v4, s[32:35], s57 offen lds" + NTS)
    A("s_mov_b64 exec, -1")
    A("s_and_b32 s52, s51, 0xfffffffc")
    A("s_add_u32 s54, s%d, s52" % PSSMD)
    A("s_addc_u32 s55, s%d, 0" % (PSSMD + 1))
    A("s_load_dword s53, s[54:55], 0")
    A("v_and_b32 v2, 15, v0")
    A("v_bfe_u32 v3, v0, 4, 2")
    A("v_mov_b32 v12, 0"); A("v_mov_b32 v13, 0"); A("v_mov_b32 v14, 0"); A("v_mov_b32 v15, 0")
    A("v_add_u32 v11, s45, v4")
    A("s_mov_b32 exec_hi, 0")
    A("ds_write_b128 v11, v[12:15] offset:%d" % H_OFF)
    A("s_mov_b64 exec, 0x3")
    for c in range(8):
        pass
    A("ds_write_b128 v11, v[12:15]")
    A("s_mov_b64 exec, 0xf")
    A("ds_write_b128 v11, v[12:15] offset:%d" % (258 * 16))
    A("s_mov_b64 exec, -1")
    A("v_lshlrev_b32 v5, 5, v2")
    A("v_lshl_add_u32 v5, v3, 4, v5")
    A("v_add_u32 v5, s45, v5")
    A("v_add_u32 v5, %d, v5" % H_OFF)
    A("v_and_b32 v8, 7, v2")
    A("v_sub_u32 v8, 7, v8")
    A("v_mul_u32_u24 v8, %d, v8" % CS)
    A("v_lshrrev_b32 v6, 3, v2")
    A("v_sub_u32 v6, v3, v6")
    A("v_lshlrev_b32 v6, 4, v6")
    A("v_add_u32 v8, v8, v6")
    A("v_add_u32 v8, 16, v8")
    A("v_add_u32 v9, s45, v8")
    A("v_lshlrev_b32 v6, 5, v2")
    A("v_lshl_add_u32 v6, v3, 3, v6")
    A("v_sub_u32 v7, %d, v6" % (4120 - 3584))
    A("v_add_u32 v7, s45, v7")
    A("v_add_u32 v6, s45, v6")
    A("v_add_u32 v6, %d, v6" % YOFF)
    A("s_lshl_b32 s49, s43, 2")
    A("s_add_u32 s49, s49, %d" % FLAGS)
    A("v_mov_b32 v10, s49")
    for i in range(32):
        A("v_mov_b32 %s, 0" % v(ACC + i))
    A("s_lshl_b32 s48, s44, 12")
    A("s_add_u32 s48, s48, %d" % F_UR)
    A("v_lshlrev_b32 v16, 3, v3")
    A("s_lshl_b32 s50, s44, 7")
    A("s_add_u32 s50, s50, %d" % F_URC)
    A("v_and_b32 v17, 15, v1")
    A("v_lshlrev_b32 v17, 3, v17")
    def hint_loads():
        A("buffer_load_dwordx2 v[136:137], v17, s[36:39], s50 offen sc1")
    if os.environ.get("URHINT"):
        masked_poll(A, "urh", hint_loads, [137], int(os.environ.get("URSLEEP", 4)), int(os.environ.get("URPRE", 8)))
    else:
        A("s_sleep %d" % int(os.environ.get("URPRE", 24)))
    Lp = A.newlabel("urp"); Ld = A.newlabel("urok")
    A("s_mov_b32 s52, 0")
    A.label(Lp)
    for i in range(4):
        A("buffer_load_dwordx4 %s, v4, s[36:39], s48 offen offset:%d sc1" % (v(120 + 4 * i, 4), 1024 * i))
    for i in range(4):
        A("buffer_load_dword %s, v16, s[36:39], s50 offen offset:%d sc1" % (v(136 + i), 32 * i))
    A("s_waitcnt vmcnt(0)")
    for i in range(4):
        A("v_xor_b32 %s, %s, %s" % (v(140 + i), v(120 + 4 * i), v(121 + 4 * i)))
    for i in range(4):
        A("v_xor_b32 %s, %s, %s" % (v(144 + i), v(122 + 4 * i), v(123 + 4 * i)))
    for i in range(4):
        A("v_xor_b32 %s, %s, %s" % (v(140 + i), v(140 + i), v(144 + i)))
    row_xor_reduce(A, [140, 141, 142, 143])
    for i in range(4):
        A("v_xor_b32 %s, %s, %s" % (v(140 + i), v(140 + i), v(136 + i)))
    A("v_cmp_eq_u32 vcc, s%d, v140" % TAG)
    for i in range(1, 4):
        A("v_cmp_eq_u32 s[54:55], s%d, %s" % (TAG, v(140 + i)))
        A("s_and_b64 vcc, vcc, s[54:55]")
    A("s_cmp_eq_u64 vcc, -1")
    A("s_cbranch_scc1 %s" % Ld)
    A("s_add_u32 s52, s52, 1")
    A("s_cmp_gt_u32 s52, %d" % POLL_MAX)
    A("s_cbranch_scc1 %s" % Ld)
    A("s_sleep %d" % int(os.environ.get("URSLEEP", 6)))
    A("s_branch %s" % Lp)
    A.label(Ld)
    st_(A, 3)
    dbg_time(A, 5)
    A("s_setprio %d" % int(os.environ.get("MPRIO2", 0)))
    for i in range(4):
        A("ds_write_b128 v11, %s offset:%d" % (v(120 + 4 * i, 4), 32 + 1024 * i))
    A("s_waitcnt lgkmcnt(0)")
    for (W, off) in ((152, 4096), (160, 3072), (168, 2048), (W1, 1024), (W0, 0)):
        A("ds_read_b128 %s, v11 offset:%d" % (v(W, 4), off))
        A("ds_read_b128 %s, v11 offset:%d" % (v(W + 4, 4), off + 16))
    A("s_waitcnt lgkmcnt(8)")
    A("s_mov_b64 exec, 0x1f")
    for o in build_ops(152, 0, 4096): A(o)
    A("s_mov_b64 exec, -1")
    A("s_waitcnt lgkmcnt(11)")
    for o in build_ops(160, 0, 3072): A(o)
    A("s_waitcnt lgkmcnt(14)")
    for o in build_ops(168, 0, 2048): A(o)
    A("s_waitcnt lgkmcnt(0)")
    st_(A, 4)
    hi_steps, lo_frags, lo_slot, lo_steps = conv_schedule()
    def bslot(sl):
        return v(BS + 4 * sl, 4)
    order, seen = [], set()
    for q, lst in hi_steps:
        for t, sl in lst:
            if sl not in seen:
                seen.add(sl); order.append(sl)
    aseq = [q for q in range(33)] + [q for q in range(65)]
    issued = []
    def issue(tag, txt):
        A(txt); issued.append(tag)
    def wait_for(tags):
        idx = max(len(issued) - 1 - issued[::-1].index(t) for t in tags)
        n = len(issued) - 1 - idx
        A("s_waitcnt lgkmcnt(%d)" % min(n, 15))
    def a_issue(k):
        issue(("A", k), "ds_read_b128 %s, v9 offset:%d" % (v(RING + 4 * (k % NR), 4), 64 * (64 - aseq[k])))
    def b_issue(sl):
        issue(("B", sl), "ds_read_b128 %s, v5 offset:%d" % (bslot(sl), 64 * (56 - sl + 8)))
    fill = deque()
    cnt = [0]
    def emit_fill(k):
        while k > 0 and fill:
            f = fill.popleft(); f(); cnt[0] += 1; k -= 1
    def add_plain(txt):
        if txt.startswith("ds_"):
            fill.append(lambda txt=txt: issue(("W",), txt))
        else:
            fill.append(lambda txt=txt: A(txt))
    a_issue(0)
    for sl in order[:5]:
        b_issue(sl)
    nextA = 1
    for k in range(1, NR):
        a_issue(nextA); nextA += 1
        b_issue(order[5 + k - 1])
    nextB = 5 + (NR - 1)
    A("s_and_b32 s52, s51, 2")
    A("s_lshl_b32 s52, s52, 3")
    A("s_lshr_b32 s53, s53, s52")
    A("s_lshl_b32 s53, s53, 16")
    A("v_mov_b32 v18, s53"); A("v_mov_b32 v19, s53")
    n = 0
    fu = {}
    for q, lst in hi_steps:
        for t, sl in lst:
            fu.setdefault(sl, q)
    for q, lst in hi_steps:
        while nextB < len(order) and fu[order[nextB]] <= q + 3:
            b_issue(order[nextB]); nextB += 1
        wait_for([("A", n)] + [("B", sl) for _, sl in lst])
        for t, sl in lst:
            A("v_mfma_f32_16x16x32_bf16 %s, %s, %s, %s" % (v(ACC + 4 * t, 4), v(RING + 4 * (n % NR), 4), bslot(sl), v(ACC + 4 * t, 4)))
        if nextA < len(aseq):
            a_issue(nextA); nextA += 1
        if q < 32:
            issue(("L", q), "ds_read_b128 %s, v5 offset:%d" % (bslot(q), 64 * (lo_frags[q] + 8)))
        n += 1
    st_(A, 5)
    def tile_epilogue(t):
        u0 = UREG + 2 * (t % 2)
        ac = ACC + 4 * t
        fill.append(lambda: wait_for([("U", t)] + ([("L", 31)] if t == 0 else [])))
        P = Asm()
        P("v_and_b32 v12, s40, %s" % v(u0 + 1))
        P("v_lshlrev_b32 v13, 16, %s" % v(u0 + 1))
        P("v_and_b32 v14, s40, %s" % v(u0))
        P("v_lshlrev_b32 v15, 16, %s" % v(u0))
        P("v_pk_mul_f32 v[12:13], v[12:13], v[18:19]")
        P("v_pk_mul_f32 v[14:15], v[14:15], v[18:19]")
        round_pair(P, 12, 13, 16, 40)
        round_pair(P, 14, 15, 17, 40)
        round_pair(P, ac, ac + 1, 16, 40)
        round_pair(P, ac + 2, ac + 3, 17, 40)
        P("v_pk_add_f32 v[12:13], v[12:13], %s" % v(ac, 2))
        P("v_pk_add_f32 v[14:15], v[14:15], %s" % v(ac + 2, 2))
        P("v_cvt_pk_bf16_f32 v16, v12, v13")
        P("v_cvt_pk_bf16_f32 v17, v14, v15")
        for l in P.lines:
            add_plain(l.strip())
        fill.append(lambda: issue(("Y", t), "ds_write_b64 v6, v[16:17] offset:%d" % (512 * t)))
        fill.append(lambda: A("v_mov_b32 v8, %d" % (t + 1)))
        for _ in range(3):
            fill.append(lambda: None)
        fill.append(lambda: wait_for([("Y", t)]))
        fill.append(lambda: issue(("F", t), "ds_write_b32 v10, v8"))
    for o in build_ops(W1, 0, 1024): add_plain(o)
    n1 = len(fill)
    for o in build_ops(W0, 0, 0): add_plain(o)
    n0 = len(fill)
    for q, lst in lo_steps:
        wait_for([("A", n)] + [("L", sl) for _, sl in lst])
        k = len(lst)
        per = 2 if k >= 2 else 1
        for i, (t, sl) in enumerate(lst):
            A("v_mfma_f32_16x16x32_bf16 %s, %s, %s, %s" % (v(ACC + 4 * t, 4), v(RING + 4 * (n % NR), 4), bslot(sl), v(ACC + 4 * t, 4)))
            if i < k - 1 or k == 1:
                emit_fill(per)
        if nextA < len(aseq):
            qq = aseq[nextA]
            if nextA >= 33 and qq >= 33:
                assert cnt[0] >= n1
            if nextA >= 33 and qq >= 49:
                assert cnt[0] >= n0
            a_issue(nextA); nextA += 1
        n += 1
        if q % 8 == 4:
            t = q // 8
            issue(("U", t), "ds_read_b64 %s, v7 offset:%d" % (v(UREG + 2 * (t % 2), 2), 512 * (7 - t)))
        if q >= 9 and (q - 9) % 8 == 0 and (q - 9) // 8 < 7:
            tile_epilogue((q - 9) // 8)
    A.nop(4)
    st_(A, 6)
    tile_epilogue(7)
    emit_fill(1000)
    st_(A, 7, end=True)
    dbg_time(A, 1)
    A("s_endpgm")

XQ = 208
def h_early_loads(A):
    srd(A, 16, PQ, S * ROWB)
    A("v_and_b32 v201, 255, v0")
    A("s_movk_i32 s63, 1152")
    A("v_mul_lo_u32 v200, v201, s63")
    A("s_lshl_b32 s63, s41, 3")
    A("v_add_u32 v200, s63, v200")
    return 8

def strip_loads(A):
    h_early_loads(A)
    if os.environ.get("NOSTRIP"):
        for t in range(8):
            A("s_nop 0")
            A("buffer_load_dwordx2 %s, v1, s[16:19], 0 offen" % v(XQ + 2 * t, 2))
        return
    A("s_mov_b32 s63, 0")
    for t in range(8):
        A("buffer_load_dwordx2 %s, v200, s[16:19], s63 offen" % v(XQ + 2 * t, 2))
        A("s_add_u32 s63, s63, %d" % (256 * 1152))

def q_prefetch(A):
    srd(A, 16, PQ, S * ROWB)
    Ln = A.newlabel("noqpf")
    A("v_and_b32 v202, 15, v0")
    A("v_bfe_u32 v203, v0, 4, 2")
    A("v_mul_u32_u24 v203, 1152, v203")
    A("v_lshl_add_u32 v202, v202, 4, v203")
    A("s_mul_i32 s63, s30, 144")
    A("s_and_b32 s63, s63, 0xffffff80")
    A("s_min_u32 s64, s31, 15")
    A("s_lshl_b32 s64, s64, 7")
    A("s_sub_u32 s65, s42, 4")
    A("s_lshl_b32 s65, s65, 5")
    A("s_add_u32 s64, s64, s65")
    A("s_mul_i32 s64, s64, 1152")
    A("s_add_u32 s63, s63, s64")
    for i in range(8):
        A("buffer_load_dwordx4 v[204:207], v202, s[16:19], s63 offen")
        A("s_add_u32 s63, s63, %d" % (4 * 1152))

def gen_H(A):
    srd(A, 20, POUT, S * ROWB)
    T = "s%d" % TAG
    A("v_and_b32 v1, 63, v0")
    A("v_mov_b32 v5, v201")
    A("v_mov_b32 v6, v200")
    A("v_lshlrev_b32 v7, 3, v5")
    RG = 160
    X, XN, T1 = 64, 96, 128
    A("s_setprio %d" % int(os.environ.get("HPRIO", 1)))
    for r in range(32):
        A("v_mov_b32 %s, 0" % v(X + r))
    A("v_lshlrev_b32 v8, 4, v1")
    A("v_lshrrev_b32 v9, 4, v1")
    A("v_lshlrev_b32 v9, 3, v9")
    A("s_lshl_b32 s48, s44, 12")
    A("s_add_u32 s48, s48, %d" % F_XT)
    A("s_lshl_b32 s50, s44, 7")
    A("s_add_u32 s50, s50, %d" % F_XC)
    P, C, Tm = 224, 240, 244
    A("s_sleep %d" % int(os.environ.get("ROWPRE", 32)))
    Lp = A.newlabel("hp"); Ld = A.newlabel("hok")
    A("s_mov_b32 s52, 0")
    A.label(Lp)
    for i in range(4):
        A("buffer_load_dwordx4 %s, v8, s[36:39], s48 offen offset:%d sc1" % (v(P + 4 * i, 4), 1024 * i))
    for i in range(4):
        A("buffer_load_dword %s, v9, s[36:39], s50 offen offset:%d sc1" % (v(C + i), 32 * i))
    for t in range(8):
        A("s_mov_b32 s51, %d" % (F_ROWG + 2048 * t))
        A("buffer_load_dwordx2 %s, v7, s[36:39], s51 offen sc1" % v(RG + 2 * t, 2))
    A("s_waitcnt vmcnt(8)")
    for i in range(4):
        A("v_xor_b32 %s, %s, %s" % (v(Tm + i), v(P + 4 * i), v(P + 1 + 4 * i)))
    for i in range(4):
        A("v_xor_b32 %s, %s, %s" % (v(Tm + 4 + i), v(P + 2 + 4 * i), v(P + 3 + 4 * i)))
    for i in range(4):
        A("v_xor_b32 %s, %s, %s" % (v(Tm + i), v(Tm + i), v(Tm + 4 + i)))
    row_xor_reduce(A, [Tm, Tm + 1, Tm + 2, Tm + 3])
    for i in range(4):
        A("v_xor_b32 %s, %s, %s" % (v(Tm + i), v(Tm + i), v(C + i)))
    A("v_cmp_eq_u32 vcc, s%d, %s" % (TAG, v(Tm)))
    for i in range(1, 4):
        A("v_cmp_eq_u32 s[54:55], s%d, %s" % (TAG, v(Tm + i)))
        A("s_and_b64 vcc, vcc, s[54:55]")
    A("s_waitcnt vmcnt(0)")
    for r in range(RG + 1, RG + 16, 2):
        A("v_cmp_eq_u32 s[54:55], s%d, %s" % (TAG, v(r)))
        A("s_and_b64 vcc, vcc, s[54:55]")
    A("s_cmp_eq_u64 vcc, -1")
    A("s_cbranch_scc1 %s" % Ld)
    A("s_add_u32 s52, s52, 1")
    A("s_cmp_gt_u32 s52, %d" % POLL_MAX)
    A("s_cbranch_scc1 %s" % Ld)
    A("s_sleep %d" % int(os.environ.get("ROWSLEEP", 8)))
    A("s_branch %s" % Lp)
    A.label(Ld)
    st_(A, 10)
    A("v_mov_b32 v11, %d" % FLAGS)
    A("v_mov_b32 v12, 1")
    lds_signal(A, 4, "v11", "v12")
    lds_wait(A, 4, 4, "v11", "v13", sleep=1)
    st_(A, 2 + 7)
    A("v_lshlrev_b32 v8, 1, v5")
    A("s_lshl_b32 s48, s41, 14")
    A("s_add_u32 s48, s48, %d" % F_XT)
    for c in range(4):
        for t in range(8):
            A("buffer_load_short_d16_hi %s, v8, s[36:39], s48 offen offset:%d sc1" % (v(X + 4 * t + c), 512 * t))
        A("s_add_u32 s48, s48, 4096")
    for t in range(8):
        stats_from_msd(A, RG + 2 * t, 176 + 6 * t, 40)
    A("s_waitcnt vmcnt(0)")
    st_(A, 3)
    for t in range(8):
        st = 176 + 6 * t
        streams = []
        for p in range(2):
            x, xn = X + 4 * t + 2 * p, XN + 4 * t + 2 * p
            tm = 56 + 4 * p
            P = Asm()
            P("v_pk_add_f32 %s, %s, %s" % (v(tm, 2), v(x, 2), v(st, 2)))
            round_pair(P, tm, tm + 1, tm + 2, 40)
            P("v_pk_mul_f32 %s, %s, %s" % (v(xn, 2), v(tm, 2), v(st + 2, 2)))
            P("v_pk_fma_f32 %s, %s, %s, %s" % (v(tm, 2), v(xn, 2), v(st + 4, 2), v(tm, 2)))
            P("v_pk_fma_f32 %s, %s, %s, %s" % (v(xn, 2), v(tm, 2), v(st + 2, 2), v(xn, 2)))
            round_pair(P, xn, xn + 1, tm + 2, 40)
            streams.append([l.strip() for l in P.lines])
        interleave(A, streams)
    st_(A, 4)
    dbg_time(A, 11)
    A("v_lshlrev_b32 v9, 1, v5")
    A("v_add_u32 v9, %d, v9" % YOFF)
    A("v_add_u32 v10, %d, v9" % (2 * CH_LDS))
    A("v_mov_b32 v11, %d" % FLAGS)
    for i in range(4):
        A("v_mov_b32 %s, 0" % v(40 + i))
    A("v_and_b32 v12, 7, v5")
    A("v_mul_u32_u24 v12, 2304, v12")
    A("v_lshrrev_b32 v13, 3, v5")
    A("v_mul_u32_u24 v14, 18432, v13")
    A("v_add_u32 v12, v12, v14")
    A("s_lshl_b32 s51, s41, 4")
    A("s_add_u32 s51, s51, %d" % F_PARTG)
    A("v_add_u32 v12, s51, v12")
    A("v_add_u32 v14, %d, v12" % (64 * 18432))
    A("v_cmp_gt_u32 vcc, 8, v13")
    A.nop(2)
    A("v_cndmask_b32 v14, v12, v14, vcc")
    A("s_mov_b64 s[56:57], vcc")
    A("v_and_b32 v8, 7, v1")
    A("v_lshlrev_b32 v8, 3, v8")
    def sel_loads():
        A("s_movk_i32 s51, %d" % F_SELG)
        A("buffer_load_dwordx2 v[180:181], v8, s[36:39], s51 offen sc1")
    sel_loads_m = sel_loads
    def part_loads():
        A("s_mov_b32 s51, %d" % (32 * 18432))
        A("buffer_load_dwordx4 v[160:163], v12, s[36:39], 0 offen sc1")
        A("buffer_load_dwordx4 v[164:167], v12, s[36:39], s51 offen sc1")
        A("buffer_load_dwordx4 v[168:171], v14, s[36:39], 0 offen sc1")
    A("s_mov_b32 s59, 0")
    A("s_setprio %d" % int(os.environ.get("HPRIO2", 0)))
    for t in range(8):
        Lw = A.newlabel("yw"); Lg = A.newlabel("yg")
        A("s_cmp_gt_u32 s59, %d" % t)
        A("s_cbranch_scc1 %s" % Lg)
        A("s_mov_b32 s52, 0")
        A.label(Lw)
        A("ds_read_b128 v[16:19], v11")
        A("s_add_u32 s52, s52, 1")
        A("s_waitcnt lgkmcnt(0)")
        A("v_min_u32 v16, v16, v17")
        A("v_min3_u32 v16, v16, v18, v19")
        A("s_cmp_gt_u32 s52, %d" % POLL_MAX)
        A("v_readfirstlane_b32 s59, v16")
        A("s_cbranch_scc1 %s" % Lg)
        A("s_nop 1")
        A("s_cmp_gt_u32 s59, %d" % t)
        A("s_cbranch_scc1 %s" % Lg)
        A("s_sleep 1")
        A("s_branch %s" % Lw)
        A.label(Lg)
        if os.environ.get("HST") and t in (0, 2, 4, 7):
            st_(A, {0: 11, 2: 12, 4: 13, 7: 14}[t])
        A("ds_read_u16_d16_hi v40, v9 offset:%d" % (512 * t))
        A("ds_read_u16_d16_hi v41, v9 offset:%d" % (512 * t + CH_LDS))
        A("ds_read_u16_d16_hi v42, v10 offset:%d" % (512 * t))
        A("ds_read_u16_d16_hi v43, v10 offset:%d" % (512 * t + CH_LDS))
        A("s_waitcnt lgkmcnt(0)")
        streams = []
        for p in range(2):
            x, xn, t1 = X + 4 * t + 2 * p, XN + 4 * t + 2 * p, T1 + 4 * t + 2 * p
            tm = 56 + 4 * p
            P = Asm()
            P("v_pk_mul_f32 %s, %s, %s" % (v(tm, 2), v(xn, 2), v(40 + 2 * p, 2)))
            round_pair(P, tm, tm + 1, tm + 2, 40)
            P("v_pk_add_f32 %s, %s, %s" % (v(t1, 2), v(x, 2), v(tm, 2)))
            round_pair(P, t1, t1 + 1, tm + 2, 40)
            P("v_pk_add_f32 %s, %s, %s" % (v(tm, 2), v(t1, 2), v(xn, 2)))
            P("v_cvt_pk_bf16_f32 %s, %s, %s" % (v(44 + 2 * (t % 2) + p), v(tm), v(tm + 1)))
            streams.append([l.strip() for l in P.lines])
        interleave(A, streams)
        A("s_mov_b32 s51, %d" % (t * 256 * 1152))
        A("buffer_store_dwordx2 %s, v6, s[20:23], s51 offen" % v(44 + 2 * (t % 2), 2) + os.environ.get("OUTPOL", ""))
        if t == 5:
            sel_loads()
    st_(A, 5)
    dbg_time(A, 9)
    Lp = A.newlabel("ppp"); Ld = A.newlabel("ppok")
    A("s_mov_b32 s52, 0")
    A.label(Lp)
    part_loads()
    A("s_waitcnt vmcnt(0)")
    for i in range(3):
        b = 160 + 4 * i
        A("v_xor_b32 %s, %s, %s" % (v(172 + i), v(b), v(b + 1)))
        A("v_xor_b32 %s, %s, %s" % (v(176 + i), v(b + 2), v(b + 3)))
    for i in range(3):
        A("v_xor_b32 %s, %s, %s" % (v(172 + i), v(172 + i), v(176 + i)))
    A("v_cmp_eq_u32 vcc, %s, v172" % T)
    for r in (173, 174):
        A("v_cmp_eq_u32 s[54:55], %s, %s" % (T, v(r)))
        A("s_and_b64 vcc, vcc, s[54:55]")
    A("s_andn2_b64 exec, exec, vcc")
    A("s_cbranch_scc0 %s" % Ld)
    A("s_add_u32 s52, s52, 1")
    A("s_cmp_gt_u32 s52, %d" % POLL_MAX)
    A("s_cbranch_scc1 %s" % Ld)
    A("s_sleep %d" % int(os.environ.get("PPSLEEP", 3)))
    A("s_branch %s" % Lp)
    A.label(Ld)
    A("s_mov_b64 exec, -1")
    st_(A, 6)
    dbg_time(A, 10)
    A("s_mov_b32 s58, 0xffffff00")
    A("s_mov_b32 s59, 0x0c0c0004")
    for i in range(3):
        b = 160 + 4 * i
        o = 20 + 4 * i
        A("v_lshlrev_b32 %s, 24, %s" % (v(o + 3), v(b)))
        A("v_and_b32 %s, 0xff, %s" % (v(176), v(b + 1)))
        A("v_and_b32 %s, 0xff, %s" % (v(177), v(b + 2)))
        A("v_lshl_or_b32 %s, %s, 16, %s" % (v(o + 3), v(176), v(o + 3)))
        A("v_lshl_or_b32 %s, %s, 8, %s" % (v(o + 3), v(177), v(o + 3)))
        for k in range(3):
            A("v_and_b32 %s, s58, %s" % (v(o + k), v(b + k)))
    for k in range(4):
        A("v_cndmask_b32 %s, 0, %s, s[56:57]" % (v(28 + k), v(28 + k)))
    for k in range(4):
        A("v_add_f32 %s, %s, %s" % (v(20 + k), v(20 + k), v(24 + k)))
    for k in range(4):
        A("v_add_f32 %s, %s, %s" % (v(20 + k), v(20 + k), v(28 + k)))
    A.nop(1)
    for k in range(4):
        A("v_add_f32_dpp %s, %s, %s row_ror:8 row_mask:0xf bank_mask:0xf" % (v(24 + k), v(20 + k), v(20 + k)))
    for k in range(4):
        A("v_mov_b32 %s, %s" % (v(28 + k), v(24 + k)))
    A.nop(1)
    for k in range(4):
        A("v_permlane16_swap_b32 %s, %s" % (v(24 + k), v(28 + k)))
    A.nop(1)
    for k in range(4):
        A("v_add_f32 %s, %s, %s" % (v(24 + k), v(24 + k), v(28 + k)))
    for k in range(4):
        A("v_mov_b32 %s, %s" % (v(28 + k), v(24 + k)))
    A.nop(1)
    for k in range(4):
        A("v_permlane32_swap_b32 %s, %s" % (v(24 + k), v(28 + k)))
    A.nop(1)
    for k in range(4):
        A("v_add_f32 %s, %s, %s" % (v(24 + k), v(24 + k), v(28 + k)))
    A("v_lshlrev_b32 v18, 4, v1")
    A("s_lshl_b32 s51, s43, 7")
    A("s_add_u32 s51, s51, %d" % RED)
    A("v_add_u32 v18, s51, v18")
    A("s_mov_b64 exec, 0xff")
    A("ds_write_b128 v18, v[24:27]")
    A("s_mov_b64 exec, -1")
    first_then_poll(A, "sel", sel_loads_m, [181], 4, "-1", first_cnt=63)
    A("v_lshrrev_b32 v45, 16, v180")
    A("v_and_b32 v46, 0x8000, v45")
    A("v_mov_b32 v47, 0xffff")
    A("v_mov_b32 v48, 0x8000")
    A("v_cmp_ne_u32 vcc, 0, v46")
    A("v_and_b32 v44, 0xffff, v180")
    A("v_sub_u32 v44, 2047, v44")
    A("v_cndmask_b32 v47, v47, v48, vcc")
    A("v_xor_b32 v45, v45, v47")
    A("v_lshlrev_b32 v45, 16, v45")
    A("v_mul_f32 v45, 0xbfb8aa3b, v45")
    A("v_exp_f32 v45, v45")
    A.nop(1)
    A("v_add_f32 v45, 1.0, v45")
    A("v_rcp_f32 v45, v45")
    A.nop(1)
    A("v_cvt_pk_bf16_f32 v45, v45, v45")
    A("v_lshlrev_b32 v45, 16, v45")
    A("s_waitcnt lgkmcnt(0)")
    A("s_barrier")
    st_(A, 7)
    for i in range(8):
        Ls = A.newlabel("ns")
        A("v_readlane_b32 s51, v44, %d" % i)
        A("v_readlane_b32 s59, v45, %d" % i)
        A("v_mov_b32 v52, %d" % (RED + 16 * i))
        A("s_bfe_u32 s58, s51, 0x20006")
        A("s_cmp_lg_u32 s58, s43")
        A("s_cbranch_scc1 %s" % Ls)
        for w in range(4):
            A("ds_read_b128 %s, v52 offset:%d" % (v(20 + 4 * w, 4), 128 * w))
        A("s_lshr_b32 s58, s51, 8")
        A("s_mul_i32 s60, s58, %d" % (256 * 1152))
        A("s_lshl_b32 s58, s58, 2")
        A("s_and_b32 s51, s51, 255")
        A("v_cmp_eq_u32 vcc, s51, v5")
        A("s_set_gpr_idx_on s58, gpr_idx(SRC0)")
        for k in range(4):
            A("v_mov_b32 %s, %s" % (v(36 + k), v(T1 + k)))
        for k in range(4):
            A("v_mov_b32 %s, %s" % (v(40 + k), v(XN + k)))
        A("s_set_gpr_idx_off")
        A("s_waitcnt lgkmcnt(0)")
        for k in range(4):
            A("v_add_f32 %s, %s, %s" % (v(20 + k), v(20 + k), v(24 + k)))
            A("v_add_f32 %s, %s, %s" % (v(28 + k), v(28 + k), v(32 + k)))
        for k in range(4):
            A("v_add_f32 %s, %s, %s" % (v(20 + k), v(20 + k), v(28 + k)))
        A.nop(1)
        round_pair(A, 20, 21, 24, 40); round_pair(A, 22, 23, 25, 40)
        for k in range(4):
            A("v_mul_f32 %s, s59, %s" % (v(20 + k), v(20 + k)))
        A.nop(1)
        round_pair(A, 20, 21, 24, 40); round_pair(A, 22, 23, 25, 40)
        for k in range(4):
            A("v_add_f32 %s, %s, %s" % (v(20 + k), v(20 + k), v(40 + k)))
        A.nop(1)
        round_pair(A, 20, 21, 24, 40); round_pair(A, 22, 23, 25, 40)
        for k in range(4):
            A("v_add_f32 %s, %s, %s" % (v(20 + k), v(20 + k), v(36 + k)))
        A.nop(1)
        A("v_cvt_pk_bf16_f32 v24, v20, v21")
        A("v_cvt_pk_bf16_f32 v25, v22, v23")
        A("s_mov_b64 exec, vcc")
        A("buffer_store_dwordx2 v[24:25], v6, s[20:23], s60 offen")
        A("s_mov_b64 exec, -1")
        A.label(Ls)
    st_(A, 8, end=True)
    dbg_time(A, 2)
    if os.environ.get("CALD"):
        L = A.newlabel("cal")
        A.label(L)
        A("s_memrealtime s[96:97]")
        A("s_waitcnt lgkmcnt(0)")
        A("s_sub_u32 s96, s96, s100")
        A("s_cmp_lt_u32 s96, %d" % int(os.environ["CALD"]))
        A("s_cbranch_scc1 %s" % L)
    A("s_endpgm")

def gen_conv_wg(A):
    A("s_and_b32 s43, s42, 3")
    A("s_lshl_b32 s44, s41, 2")
    A("s_add_u32 s44, s44, s43")
    A("s_mul_i32 s45, s43, %d" % CH_LDS)
    Lm = A.newlabel("cm"); Lh = A.newlabel("ch"); Lj = A.newlabel("cj")
    dbg_time(A, 0)
    A("s_lshr_b32 s60, s41, 4")
    A("s_and_b32 s61, s41, 15")
    A("v_mov_b32 v200, 0"); A("v_mov_b32 v201, 0")
    A("s_cmp_ge_u32 s42, 4")
    A("s_cbranch_scc1 %s" % Lh)
    A("s_setprio 2")
    gen_kv_issue(A)
    gen_kv_addr(A)
    gen_kv_addr2(A)
    finish_tag(A)
    flags_barrier(A)
    A("s_branch %s" % Lj)
    A.label(Lh)
    gen_kv_addr(A)
    gen_kv_addr2(A)
    finish_tag(A)
    A.label(Lj)
    gen_kv_compute(A)
    publish_alive(A)
    A("s_barrier")
    A("s_cmp_lt_u32 s42, 4")
    A("s_cbranch_scc1 %s" % Lm)
    h_early_loads(A)
    gen_H(A)
    A.label(Lm)
    gen_M(A)

def finish_tag(A):
    A("s_waitcnt lgkmcnt(0)")
    A("s_mul_i32 s%d, s%d, 0x9E3779B1" % (TAG, TAG))
    A("s_add_u32 s%d, s%d, 0x7F4A7C15" % (TAG, TAG))

def flags_barrier(A, alive=False):
    A("v_mov_b32 v36, 0")
    A("v_mov_b32 v37, %d" % FLAGS)
    A("v_mov_b32 v38, 0"); A("v_mov_b32 v39, 0"); A("v_mov_b32 v40, 0"); A("v_mov_b32 v41, 0")
    A("ds_write_b128 v37, v[38:41]")
    A("ds_write_b128 v37, v[38:41] offset:16")
    A("s_waitcnt lgkmcnt(0)")

def publish_alive(A):
    Ln = A.newlabel("noalive")
    A("s_cmp_lg_u32 s42, 0")
    A("s_cbranch_scc1 %s" % Ln)
    A("s_lshl_b32 s63, s41, 2")
    A("s_add_u32 s63, s63, %d" % F_ALIVE)
    A("v_mov_b32 v37, s%d" % TAG)
    A("v_mov_b32 v36, 0")
    A("s_mov_b64 exec, 1")
    A("buffer_store_dword v37, v36, s[36:39], s63 offen sc1")
    A("s_mov_b64 exec, -1")
    A.label(Ln)


BITONIC8 = [(0,4),(1,5),(2,6),(3,7),(0,2),(1,3),(4,6),(5,7),(0,1),(2,3),(4,5),(6,7)]
def merge8(A, a, b, out, spare, dpp=None):
    for i in range(7, -1, -1):
        if dpp:
            A("v_max_u32_dpp %s, %s, %s %s bank_mask:0xf" % (v(out[i]), v(b[7 - i]), v(a[i]), dpp))
        else:
            A("v_max_u32 %s, %s, %s" % (v(out[i]), v(a[i]), v(b[7 - i])))
    return sort_desc(A, out, spare, BITONIC8)

def top8_wave(A, regs, spare, other):
    cur, oth = list(regs), list(other)
    for ctl in ("quad_perm:[1,0,3,2] row_mask:0xf", "quad_perm:[2,3,0,1] row_mask:0xf", "row_half_mirror row_mask:0xf",
                "row_mirror row_mask:0xf", "row_bcast:15 row_mask:0xa", "row_bcast:31 row_mask:0xc"):
        A.nop(1)
        free = list(cur)
        new, spare2 = merge8(A, cur, cur, oth, spare, dpp=ctl)
        pool = [r for r in (free + oth + [spare]) if r not in new]
        spare = pool[0]
        oth = pool[1:9]
        cur = new
    return cur, spare, oth

L_CNT = 162368

def lds_signal(A, k, vaddr, vone):
    A("s_mov_b64 exec, 1")
    A("ds_add_u32 %s, %s offset:%d" % (vaddr, vone, 4 * k))
    A("s_mov_b64 exec, -1")

def lds_wait(A, k, n, vaddr, vtmp, sleep=0):
    L = A.newlabel("lw"); Ld = A.newlabel("lwd")
    A("s_mov_b32 s52, 0")
    A.label(L)
    A("ds_read_b32 %s, %s offset:%d" % (vtmp, vaddr, 4 * k))
    A("s_add_u32 s52, s52, 1")
    A("s_waitcnt lgkmcnt(0)")
    A("s_cmp_gt_u32 s52, %d" % (POLL_MAX * 8))
    A("v_readfirstlane_b32 s51, %s" % vtmp)
    A("s_cbranch_scc1 %s" % Ld)
    A("s_nop 1")
    A("s_cmp_ge_u32 s51, %d" % n)
    A("s_cbranch_scc1 %s" % Ld)
    if sleep:
        A("s_sleep %d" % sleep)
    A("s_branch %s" % L)
    A.label(Ld)

def gen_moe_wg(A):
    T = "s%d" % TAG
    A("v_and_b32 v1, 63, v0")
    A("v_and_b32 v4, 255, v0")
    A("v_mov_b32 v8, %d" % L_CNT)
    A("v_mov_b32 v9, 1")
    Lt = A.newlabel("twave")
    A("s_cmp_ge_u32 s42, 4")
    A("s_cbranch_scc1 %s" % Lt)
    G, U, WD = 16, 88, 160
    A("v_mov_b32 v232, 0"); A("v_mov_b32 v233, 0"); A("v_mov_b32 v234, 0"); A("v_mov_b32 v235, 0")
    A("ds_write_b128 v8, v[232:235]"); A("ds_write_b128 v8, v[232:235] offset:16")
    srd(A, 48, PWG, D * F * 2)
    srd(A, 52, PWU, D * F * 2)
    srd(A, 56, PWD, D * F * 2)
    A("v_lshrrev_b32 v5, 3, v1")
    A("v_mul_u32_u24 v5, 9216, v5")
    A("v_bfe_u32 v6, v1, 4, 1")
    A("s_and_b32 s43, s42, 1")
    A("s_lshl_b32 s43, s43, 1")
    A("v_or_b32 v6, s43, v6")
    A("v_lshlrev_b32 v6, 1, v6")
    A("v_and_b32 v7, 7, v1")
    A("v_xor_b32 v6, v6, v7")
    A("v_lshl_add_u32 v5, v6, 4, v5")
    A("s_lshl_b32 s43, s41, 7")
    A("s_mul_i32 s44, s42, 73728")
    A("s_add_u32 s43, s43, s44")
    A("s_lshl_b32 s44, s42, 10")
    A("s_waitcnt lgkmcnt(0)")
    A("s_barrier")
    for j in range(18):
        A("s_mov_b32 m0, s44")
        A("s_add_u32 s45, s44, %d" % L_WU)
        A("buffer_load_dwordx4 v5, s[48:51], s43 offen lds" + NTS)
        A("s_mov_b32 m0, s45")
        A("s_add_u32 s44, s44, 4096")
        A("buffer_load_dwordx4 v5, s[52:55], s43 offen lds" + NTS)
        A("s_add_u32 s43, s43, %d" % (4 * 73728))
    A("v_lshrrev_b32 v6, 3, v4")
    A("v_mul_u32_u24 v7, 1152, v6")
    A("v_and_b32 v12, 7, v4")
    A("v_lshl_add_u32 v236, v12, 4, v7")
    A("v_bfe_u32 v14, v6, 1, 1")
    A("v_bfe_u32 v11, v6, 3, 1")
    A("v_lshl_add_u32 v14, v11, 1, v14")
    A("v_lshlrev_b32 v14, 1, v14")
    A("v_xor_b32 v14, v14, v12")
    A("v_lshl_add_u32 v14, v14, 4, v7")
    A("v_add_u32 v15, 36864, v14")
    A("v_and_b32 v2, 15, v0")
    A("v_bfe_u32 v3, v0, 4, 2")
    A("v_lshrrev_b32 v10, 2, v2")
    A("v_lshl_add_u32 v11, v3, 3, v10")
    A("v_bfe_u32 v12, v2, 3, 1")
    A("v_and_b32 v13, 1, v3")
    A("v_lshl_add_u32 v12, v13, 1, v12")
    A("v_xor_b32 v12, s42, v12")
    A("v_and_b32 v13, 3, v2")
    A("v_lshlrev_b32 v13, 3, v13")
    A("v_lshl_add_u32 v12, v12, 5, v13")
    A("v_lshl_add_u32 v5, v11, 7, v12")
    A("v_add_u32 v6, 36864, v5")
    A("v_mul_u32_u24 v7, 1152, v11")
    A("v_add_u32 v7, v7, v12")
    A("v_add_u32 v10, 36864, v7")
    st_(A, 1)
    A("s_waitcnt vmcnt(0)")
    lds_signal(A, 0, "v8", "v9")
    lds_wait(A, 0, 4, "v8", "v11")
    st_(A, 2)
    dbg_time(A, 7)
    A("v_add_u32 v12, %d, v5" % L_WU)
    A("v_add_u32 v13, %d, v6" % L_WU)
    for kk in range(18):
        bg, bu, ko = ("v5", "v12", kk) if kk < 9 else ("v6", "v13", kk - 9)
        A("ds_read_b64_tr_b16 %s, %s offset:%d" % (v(G + 4 * kk, 2), bg, 4096 * ko))
        A("ds_read_b64_tr_b16 %s, %s offset:%d" % (v(G + 4 * kk + 2, 2), bg, 4096 * ko + 512))
        A("ds_read_b64_tr_b16 %s, %s offset:%d" % (v(U + 4 * kk, 2), bu, 4096 * ko))
        A("ds_read_b64_tr_b16 %s, %s offset:%d" % (v(U + 4 * kk + 2, 2), bu, 4096 * ko + 512))
    A("s_waitcnt lgkmcnt(0)")
    lds_signal(A, 1, "v8", "v9")
    st_(A, 7)
    A("v_mov_b32 v14, v7"); A("v_mov_b32 v15, v10")
    A("v_and_b32 v12, 7, v2")
    A("v_mul_u32_u24 v5, %d, v12" % XSTR)
    A("v_lshl_add_u32 v5, v3, 4, v5")
    A("v_add_u32 v5, %d, v5" % L_X)
    A("v_mul_u32_u24 v6, %d, v2" % HSTR)
    A("v_lshl_add_u32 v6, v3, 3, v6")
    A("s_lshl_b32 s43, s42, 5")
    A("s_add_u32 s43, s43, %d" % L_HS)
    A("v_add_u32 v6, s43, v6")
    A("v_mul_u32_u24 v7, %d, v12" % HSTR)
    A("v_lshl_add_u32 v7, v3, 4, v7")
    A("v_add_u32 v7, %d, v7" % L_HS)
    A("v_mul_u32_u24 v10, 2304, v12")
    A("v_lshl_add_u32 v10, v3, 4, v10")
    A("v_bfe_u32 v13, v2, 3, 1")
    A("v_lshl_add_u32 v10, v13, 8, v10")
    A("v_cmp_eq_u32 s[56:57], 1, v13")
    A("s_mul_i32 s43, s41, 18432")
    A("s_lshl_b32 s44, s42, 6")
    A("s_add_u32 s43, s43, s44")
    A("s_add_u32 s43, s43, %d" % F_PARTG)
    A("v_mov_b32 v13, %d" % L_TAG)
    for i in range(8):
        A("v_mov_b32 %s, 0" % v(232 + i))
    A("s_waitcnt lgkmcnt(0)")
    st_(A, 3)
    dbg_time(A, 12)
    lds_wait(A, 4, 4, "v8", "v11")
    st_(A, 4)
    A("ds_read_b32 v12, v13")
    XR = 240
    for kk in range(3):
        A("ds_read_b128 %s, v5 offset:%d" % (v(XR + 4 * kk, 4), 64 * kk))
    for kk in range(18):
        if kk + 3 < 18:
            A("ds_read_b128 %s, v5 offset:%d" % (v(XR + 4 * ((kk + 3) % 4), 4), 64 * (kk + 3)))
        A("s_waitcnt lgkmcnt(%d)" % min(3, 17 - kk))
        x = v(XR + 4 * (kk % 4), 4)
        A("v_mfma_f32_16x16x32_bf16 v[232:235], %s, %s, v[232:235]" % (v(G + 4 * kk, 4), x))
        A("v_mfma_f32_16x16x32_bf16 v[236:239], %s, %s, v[236:239]" % (v(U + 4 * kk, 4), x))
    A("v_readfirstlane_b32 %s, v12" % T)
    A.nop(6)
    round_pair(A, 232, 233, 16, 40); round_pair(A, 234, 235, 17, 40)
    for i in range(4):
        A("v_mul_f32 %s, 0xbfb8aa3b, %s" % (v(20 + i), v(232 + i)))
    for i in range(4):
        A("v_exp_f32 %s, %s" % (v(20 + i), v(20 + i)))
    round_pair(A, 236, 237, 16, 40); round_pair(A, 238, 239, 17, 40)
    for i in range(4):
        A("v_add_f32 %s, 1.0, %s" % (v(20 + i), v(20 + i)))
    for i in range(4):
        A("v_rcp_f32 %s, %s" % (v(20 + i), v(20 + i)))
    A.nop(1)
    for i in range(4):
        A("v_mul_f32 %s, %s, %s" % (v(232 + i), v(232 + i), v(20 + i)))
    A.nop(1)
    round_pair(A, 232, 233, 16, 40); round_pair(A, 234, 235, 17, 40)
    for i in range(4):
        A("v_mul_f32 %s, %s, %s" % (v(232 + i), v(232 + i), v(236 + i)))
    A.nop(1)
    A("v_cvt_pk_bf16_f32 v16, v232, v233")
    A("v_cvt_pk_bf16_f32 v17, v234, v235")
    A("v_cmp_gt_u32 vcc, 8, v2")
    A("s_and_saveexec_b64 s[44:45], vcc")
    A("ds_write_b64 v6, v[16:17]")
    A("s_mov_b64 exec, s[44:45]")
    A("s_mov_b32 s58, 0xffffff00")
    A("s_movk_i32 s59, 0x80")
    A("s_waitcnt lgkmcnt(0)")
    lds_signal(A, 5, "v8", "v9")
    lds_wait(A, 2, 4, "v8", "v11")
    for k in range(9):
        r = WD + 8 * k
        A("ds_read_b64_tr_b16 %s, v14 offset:%d" % (v(r, 2), 128 * k))
        A("ds_read_b64_tr_b16 %s, v14 offset:%d" % (v(r + 2, 2), 128 * k + 4 * 1152))
        A("ds_read_b64_tr_b16 %s, v15 offset:%d" % (v(r + 4, 2), 128 * k))
        A("ds_read_b64_tr_b16 %s, v15 offset:%d" % (v(r + 6, 2), 128 * k + 4 * 1152))
    lds_wait(A, 5, 4, "v8", "v11")
    st_(A, 5)
    A("ds_read_b128 v[16:19], v7")
    A("ds_read_b128 v[20:23], v7 offset:64")
    A("s_waitcnt lgkmcnt(0)")
    AC = 88
    for k in range(9):
        r = WD + 8 * k
        A("v_mfma_f32_16x16x32_bf16 %s, %s, v[16:19], 0" % (v(AC + 4 * k, 4), v(r, 4)))
    for k in range(9):
        r = WD + 8 * k
        A("v_mfma_f32_16x16x32_bf16 %s, %s, v[20:23], %s" % (v(AC + 4 * k, 4), v(r + 4, 4), v(AC + 4 * k, 4)))
    A.nop(4)
    for kp in range(5):
        k = 2 * kp
        ac, ac2 = AC + 4 * k, AC + 4 * min(k + 1, 8)
        o = 24 + 8 * kp
        for i in range(4):
            A("v_cndmask_b32 %s, %s, %s, s[56:57]" % (v(o + i), v(ac + i), v(ac2 + i)))
        for i in range(4):
            A("v_add_u32 %s, s59, %s" % (v(o + i), v(o + i)))
        A("v_lshrrev_b32 %s, 24, %s" % (v(o + 4), v(o + 3)))
        A("v_lshrrev_b32 %s, 16, %s" % (v(o + 5), v(o + 3)))
        A("v_lshrrev_b32 %s, 8, %s" % (v(o + 6), v(o + 3)))
        for i in range(3):
            A("v_bfi_b32 %s, s58, %s, %s" % (v(o + 4 + i), v(o + i), v(o + 4 + i)))
        A("v_xor_b32 %s, %s, %s" % (v(o + 7), v(o + 4), v(o + 5)))
        A("v_xor_b32 %s, %s, %s" % (v(o + 7), v(o + 7), v(o + 6)))
        A("v_xor_b32 %s, %s, %s" % (v(o + 7), T, v(o + 7)))
        if kp == 4:
            A("s_andn2_b64 exec, exec, s[56:57]")
        A("buffer_store_dwordx4 %s, v10, s[36:39], s43 offen offset:%d sc1" % (v(o + 4, 4), 512 * kp))
    A("s_mov_b64 exec, -1")
    st_(A, 6, end=True)
    dbg_time(A, 3)
    A("s_endpgm")
    A.label(Lt)
    A("s_setprio 3")
    A("s_lshl_b32 s60, s41, 2")
    A("s_add_u32 s60, s60, s42")
    A("s_sub_u32 s60, s60, 4")
    Q, WR, X = gen_ln(A)
    A("s_barrier")
    srd(A, 20, PWD, D * F * 2)
    A("v_and_b32 v4, 255, v0")
    A("v_lshrrev_b32 v232, 3, v4")
    A("v_mul_u32_u24 v233, 1152, v232")
    A("v_and_b32 v234, 7, v4")
    A("v_lshl_add_u32 v236, v234, 4, v233")
    A("v_bfe_u32 v235, v232, 1, 1")
    A("v_bfe_u32 v237, v232, 3, 1")
    A("v_lshl_add_u32 v235, v237, 1, v235")
    A("v_lshlrev_b32 v235, 1, v235")
    A("v_xor_b32 v235, v235, v234")
    A("v_lshl_add_u32 v238, v235, 4, v233")
    A("v_add_u32 v239, 36864, v238")
    A("s_mul_i32 s43, s41, 73728")
    A("s_add_u32 s44, s43, 36864")
    for k in range(9):
        A("buffer_load_dwordx4 %s, v236, s[20:23], s43 offen offset:%d" % (v(160 + 4 * k, 4), 128 * k) + NTS)
    for k in range(9):
        A("buffer_load_dwordx4 %s, v236, s[20:23], s44 offen offset:%d" % (v(196 + 4 * k, 4), 128 * k) + NTS)
    finish_tag(A)
    gen_ln_compute(A, Q, WR, X, extra=18)
    A("s_setprio %d" % int(os.environ.get("TPRIO", 1)))
    srd(A, 16, PQ, S * ROWB)
    A("v_and_b32 v1, 63, v0")
    A("v_and_b32 v4, 255, v0")
    A("v_mov_b32 v8, %d" % L_CNT)
    A("v_mov_b32 v9, 1")
    A("v_lshlrev_b32 v15, 2, v1")
    A("v_lshlrev_b32 v16, 4, v1")
    A("s_and_b32 s43, s42, 3")
    A("s_lshl_b32 s43, s43, 12")
    A("v_add_u32 v16, s43, v16")
    def key_loads():
        A("s_movk_i32 s43, %d" % F_KEYG)
        for i in range(4):
            A("buffer_load_dwordx4 %s, v16, s[36:39], s43 offen offset:%d sc1" % (v(40 + 4 * i, 4), 1024 * i))
    masked_poll(A, "key", key_loads, list(range(41, 56, 2)), int(os.environ.get("KEYSLEEP", 8)), int(os.environ.get("KEYPRE", 70)))
    A("s_setprio 3")
    st_(A, 3)
    dbg_time(A, 6)
    regs, sp = sort_desc(A, range(40, 56, 2), 41, SORT8)
    SK = 60
    free = [r for r in range(40, 57) if r not in regs and r != sp]
    cur, sp, oth = top8_wave(A, regs, sp, free[:8])
    for i in range(8):
        A("v_mov_b32 %s, %s" % (v(64 + i), v(cur[i])))
    A("s_and_b32 s43, s42, 3")
    A("s_lshl_b32 s43, s43, 5")
    A("s_add_u32 s43, s43, %d" % L_CAND)
    A("v_mov_b32 v16, s43")
    A("v_mov_b32 v31, %s" % T)
    A("v_mov_b32 v17, %d" % L_TAG)
    A("s_mov_b32 exec_lo, 0")
    A("s_mov_b32 exec_hi, 0x80000000")
    A("ds_write_b128 v16, v[64:67]")
    A("ds_write_b128 v16, v[68:71] offset:16")
    A("ds_write_b32 v17, v31")
    A("s_mov_b64 exec, -1")
    A("s_waitcnt lgkmcnt(0)")
    lds_signal(A, 3, "v8", "v9")
    lds_wait(A, 3, 4, "v8", "v11")
    A("v_mov_b32 v16, %d" % L_CAND)
    for i in range(8):
        A("ds_read_b128 %s, v16 offset:%d" % (v(64 + 4 * i, 4), 16 * i))
    A("s_waitcnt lgkmcnt(4)")
    c01, sp1 = merge8(A, list(range(64, 72)), list(range(72, 80)), list(range(40, 48)), 56)
    A("s_waitcnt lgkmcnt(0)")
    c23, sp2 = merge8(A, list(range(80, 88)), list(range(88, 96)), list(range(48, 56)), 57)
    for i in range(8):
        A("v_max_u32 %s, %s, %s" % (v(64 + i), v(c01[i]), v(c23[7 - i])))
    for i in range(8):
        A("v_readfirstlane_b32 %s, %s" % (s(SK + i), v(64 + i)))
    A.nop(3)
    st_(A, 5)
    A("s_and_b32 s45, s42, 3")
    A("s_mov_b32 s43, s60"); A("s_mov_b32 s44, s61")
    for w in range(1, 4):
        A("s_cmp_eq_u32 s45, %d" % w)
        A("s_cselect_b32 s43, %s, s43" % s(SK + 2 * w))
        A("s_cselect_b32 s44, %s, s44" % s(SK + 2 * w + 1))
    A("v_mov_b32 v16, s43"); A("v_mov_b32 v17, s44")
    A("v_cmp_lt_u32 vcc, 31, v1")
    A.nop(2)
    A("v_cndmask_b32 v16, v16, v17, vcc")
    A("v_and_b32 v16, 0xffff, v16")
    A("v_sub_u32 v16, 2047, v16")
    A("v_and_b32 v17, 31, v1")
    A("s_movk_i32 s43, 1152")
    A("v_mul_lo_u32 v18, v16, s43")
    A("v_lshl_add_u32 v18, v17, 2, v18")
    A("v_lshlrev_b32 v19, 3, v16")
    for i in range(9):
        A("buffer_load_dword %s, v18, s[16:19], 0 offen offset:%d" % (v(20 + i), 128 * i))
    def rg_loads():
        A("s_mov_b32 s43, %d" % F_ROWG)
        A("buffer_load_dwordx2 v[32:33], v19, s[36:39], s43 offen sc1")
    Lns = A.newlabel("nosel")
    A("s_cmp_lg_u32 s41, 0")
    A("s_cbranch_scc1 %s" % Lns)
    A("s_cmp_lg_u32 s42, 4")
    A("s_cbranch_scc1 %s" % Lns)
    for i in range(8):
        A("v_writelane_b32 v30, %s, %d" % (s(SK + i), i))
    A("v_lshlrev_b32 v36, 3, v1")
    A("s_movk_i32 s43, %d" % F_SELG)
    A("s_mov_b64 exec, 0xff")
    A("buffer_store_dwordx2 v[30:31], v36, s[36:39], s43 offen sc1")
    A("s_mov_b64 exec, -1")
    A.label(Lns)
    masked_poll(A, "rg", rg_loads, [33], 2, 0)
    stats_from_msd(A, 32, 64, 70)
    A("v_lshrrev_b32 v38, 5, v4")
    A("v_mul_u32_u24 v38, %d, v38" % XSTR)
    A("v_lshl_add_u32 v38, v17, 2, v38")
    A("v_add_u32 v38, %d, v38" % L_X)
    st_(A, 4)
    for i0 in range(0, 9, 3):
        streams = []
        for i in range(i0, i0 + 3):
            bs = 40 + 8 * (i % 3)
            ops = norm_ops(bs, bs + 2, bs + 4, 20 + i, 64)
            ops.append("v_cvt_pk_bf16_f32 %s, %s, %s" % (v(bs + 6), v(bs + 2), v(bs + 3)))
            ops.append("ds_write_b32 v38, %s offset:%d" % (v(bs + 6), 128 * i))
            streams.append(ops)
        interleave(A, streams)
    A("s_waitcnt lgkmcnt(0)")
    lds_signal(A, 4, "v8", "v9")
    st_(A, 6)
    dbg_time(A, 4)
    lds_wait(A, 1, 4, "v8", "v11")
    for k in range(9):
        A("ds_write_b128 v238, %s offset:%d" % (v(160 + 4 * k, 4), 128 * k))
    for k in range(9):
        A("ds_write_b128 v239, %s offset:%d" % (v(196 + 4 * k, 4), 128 * k))
    A("s_waitcnt lgkmcnt(0)")
    lds_signal(A, 2, "v8", "v9")
    Le = A.newlabel("noep")
    A("s_cmp_lg_u32 s41, 0")
    A("s_cbranch_scc1 %s" % Le)
    A("s_cmp_lg_u32 s42, 4")
    A("s_cbranch_scc1 %s" % Le)
    A("s_setprio 0")
    A("v_lshlrev_b32 v16, 2, v1")
    A("v_min_u32 v17, 15, v1")
    A("v_lshlrev_b32 v17, 2, v17")
    def al_loads():
        A("s_movk_i32 s43, %d" % F_ALIVE)
        A("buffer_load_dword v20, v16, s[36:39], s43 offen sc1")
        A("buffer_load_dword v21, v16, s[36:39], s43 offen offset:256 sc1")
        A("buffer_load_dword v22, v17, s[36:39], s43 offen offset:512 sc1")
    masked_poll(A, "al", al_loads, [20, 21, 22], 16, 0)
    A("v_mov_b32 v20, %s" % T)
    A("v_mov_b32 v21, %d" % F_EPOCH)
    A("s_mov_b64 exec, 1")
    A("buffer_store_dword v20, v21, s[36:39], 0 offen sc1")
    A("s_mov_b64 exec, -1")
    A.label(Le)
    A("s_endpgm")

def gen_spare_wg(A):
    A("s_lshl_b32 s60, s41, 3")
    A("s_add_u32 s60, s60, s42")
    A("s_add_u32 s60, s60, 288")
    Lx = A.newlabel("spx")
    A("s_cmp_ge_u32 s60, 512")
    A("s_cbranch_scc1 %s" % Lx)
    Q, WR, X = gen_ln(A)
    finish_tag(A)
    gen_ln_compute(A, Q, WR, X)
    A.label(Lx)
    A("s_endpgm")

def gen_kernel(A, name):
    kernel_header(A, name)
    Ldone = A.newlabel("done"); Lmoe = A.newlabel("moe"); Lsp = A.newlabel("spare")
    A("s_getpc_b64 s[96:97]")
    if os.environ.get("CALD"):
        A("s_memrealtime s[100:101]")
    A("s_cmp_ge_u32 s2, 256")
    A("s_cbranch_scc1 %s" % Ldone)
    A("s_load_dwordx4 s[68:71], s[0:1], %d" % KA_DBG)
    A("s_load_dwordx16 s[72:87], s[0:1], 0")
    A("s_load_dwordx8 s[88:95], s[0:1], %d" % KA_WG)
    A("v_lshrrev_b32 v1, 6, v0")
    A("s_and_b32 s30, s2, 7")
    A("s_lshr_b32 s31, s2, 3")
    A("v_readfirstlane_b32 s42, v1")
    A("s_mov_b32 s40, 0xffff0000")
    if not os.environ.get("NOICPF"):
        Lc = A.newlabel("noic")
        A("s_and_b32 s96, s96, 0xffffff00")
        A("s_and_b32 s97, s97, 0xffff")
        A("s_mov_b32 s98, L_code_end-%s" % name)
        A("s_mov_b32 s99, 0x00020000")
        A("v_and_b32 v243, 63, v0")
        A("v_lshlrev_b32 v243, 4, v243")
        A("s_lshl_b32 s95, s31, 10") if False else None
        A("s_lshl_b32 s3, s31, 10")
        A("v_cmp_lt_u32 vcc, 447, v0")
        A("s_cbranch_vccz %s" % Lc)
        A("buffer_load_dwordx4 v[244:247], v243, s[96:99], s3 offen")
        A.label(Lc)
    A("s_waitcnt lgkmcnt(0)")
    A("s_load_dword s%d, s[%d:%d], %d" % (TAG, PWS, PWS + 1, F_EPOCH))
    srd(A, 36, PWS, WS_SIZE)
    A("s_lshl_b32 s3, s2, 3")
    A("s_add_u32 s3, s3, s42")
    st_(A, 0)
    ORD = os.environ.get("ORD", "B")
    if ORD == "A":
        c0, m0, p0 = 0, 18, 27
    else:
        c0, m0, p0 = 14, 5, 0
    A("s_sub_u32 s41, s31, %d" % m0)
    A("s_cmp_lt_u32 s41, 9")
    A("s_cbranch_scc1 %s" % Lmoe)
    A("s_sub_u32 s41, s31, %d" % p0)
    A("s_cmp_lt_u32 s41, 5")
    A("s_cbranch_scc1 %s" % Lsp)
    A("s_sub_u32 s31, s31, %d" % c0)
    A("s_mul_i32 s41, s30, 18")
    A("s_add_u32 s41, s41, s31")
    gen_conv_wg(A)
    A.label(Lmoe)
    A("s_mul_i32 s31, s30, 9")
    A("s_add_u32 s41, s41, s31")
    gen_moe_wg(A)
    A.label(Lsp)
    A("s_mul_i32 s31, s30, 5")
    A("s_add_u32 s41, s41, s31")
    gen_spare_wg(A)
    A.label(Ldone)
    A("s_endpgm")
    A.label("L_code_end")
    return kernel_desc(name, 256, 102, 256)
```

```python
from common import *
import common, os
from collections import deque
from conv2 import CS, CH_LDS, H_OFF, POLL_MAX, conv_schedule
from moe2 import wave_max_u32, L_WG, L_WU, L_X, L_HS, L_U, L_CAND, XSTR, HSTR
from moe3 import SORT8, sort_desc, rounds

F_EPOCH = 0x0
F_SELG = 0x100
F_ALIVE = 0x1000
F_KEYG = 0x2000
F_ROWG = 0x8000
F_LNF = 0x6000
F_URC = 0x100000 + 0x300000
F_UR = 0x20000
F_PARTG = 0x500000
F_XT = 0x800000
F_XC = 0x480000
L_TAG = 162304

PQ, PK, PV, PSHK, PSSMK, PSSMD, PWR, PWG, PWU, PWD, POUT, PWS = 72, 74, 76, 78, 80, 82, 86, 88, 90, 92, 94, 70
TAG = 46
QNT = '' if os.environ.get('QDEF') else ' nt'
NTS = '' if os.environ.get('NONT') else ' nt'
LIGHT = os.environ.get("STAMPS") == "2"
def st_(A, n, end=False):
    if LIGHT:
        if n != 0 and not end:
            return
        n = 15 if end else 0
    stamp(A, n, 36, 3, vt=254, st=96)

MISC = 4 * CH_LDS
FLAGS = MISC
SIDE = MISC + 64
RED = SIDE + 256
YOFF = H_OFF
W1, W0 = 20, 28
E_, G_, F_ = 36, 44, 50
UREG = 56
RING, NR, ACC, BS = 64, 6, 88, 120

DBGT = bool(os.environ.get("DBGT"))
def dbg_time(A, slot, invert=False):
    if not DBGT:
        return
    L = A.newlabel("dbgs")
    A("s_and_b32 s100, s42, 3")
    A("s_cmp_lg_u32 s100, 0")
    A("s_cbranch_scc1 %s" % L)
    A("s_cmp_eq_u32 s2, %d" % (8 if os.environ.get("ORD", "B") == "A" else 120))
    A("s_cselect_b32 s100, 1, 0")
    A("s_cmp_eq_u32 s2, %d" % (152 if os.environ.get("ORD", "B") == "A" else 48))
    A("s_cselect_b32 s100, 1, s100")
    A("s_cmp_eq_u32 s100, 0")
    A("s_cbranch_scc1 %s" % L)
    A("s_memrealtime s[96:97]")
    A("s_waitcnt lgkmcnt(0)")
    A("v_mov_b32 v252, s96")
    A("v_mov_b32 v253, %d" % (4 * slot))
    A("s_mov_b64 s[98:99], exec")
    A("s_mov_b64 exec, 1")
    A("global_store_dword v253, v252, s[68:69]")
    A("s_mov_b64 exec, s[98:99]")
    A.label(L)

DRY = os.environ.get("DRY", "1") != "0"
class TwoPass:
    def __init__(self, A, name):
        self.A = A
        self.L = A.newlabel(name + "b"); self.Lo = A.newlabel(name + "o"); self.Lt = A.newlabel(name + "t")
    def begin(self, transition):
        A = self.A
        self.transition = transition
        if DRY:
            A("s_mov_b32 s12, 0")
            A("s_mov_b64 exec, 0")
        else:
            transition()
        A.label(self.L)
    def guard_begin(self):
        if not DRY: return None
        l = self.A.newlabel("gd")
        self.A("s_cmp_eq_u32 s12, 0")
        self.A("s_cbranch_scc1 %s" % l)
        return l
    def guard_end(self, l):
        if l: self.A.label(l)
    def end(self):
        A = self.A
        if DRY:
            A("s_cmp_eq_u32 s12, 1")
            A("s_cbranch_scc1 %s" % self.Lo)
            A("s_mov_b32 s12, 1")
            A("s_mov_b64 exec, -1")
            self.transition()
            A("s_branch %s" % self.L)
            A.label(self.Lo)

def poll_head(A, cnt="s52"):
    A("s_mov_b32 %s, 0" % cnt)

def poll_tail(A, Lloop, Ldone, cnt="s52", sleep=1):
    A("s_add_u32 %s, %s, 1" % (cnt, cnt))
    A("s_cmp_gt_u32 %s, %d" % (cnt, POLL_MAX))
    A("s_cbranch_scc1 %s" % Ldone)
    A("s_sleep %d" % sleep)
    A("s_branch %s" % Lloop)

def masked_poll(A, name, emit_loads, tagregs, sleep, pre_sleep=0, full_exec="-1"):
    T = "s%d" % TAG
    Lp = A.newlabel(name + "p"); Ld = A.newlabel(name + "ok")
    if pre_sleep:
        A("s_sleep %d" % pre_sleep)
    A("s_mov_b32 s52, 0")
    A.label(Lp)
    emit_loads()
    A("s_waitcnt vmcnt(0)")
    A("v_cmp_eq_u32 vcc, %s, %s" % (T, v(tagregs[0])))
    for r in tagregs[1:]:
        A("v_cmp_eq_u32 s[54:55], %s, %s" % (T, v(r)))
        A("s_and_b64 vcc, vcc, s[54:55]")
    A("s_andn2_b64 exec, exec, vcc")
    A("s_cbranch_scc0 %s" % Ld)
    A("s_add_u32 s52, s52, 1")
    A("s_cmp_gt_u32 s52, %d" % POLL_MAX)
    A("s_cbranch_scc1 %s" % Ld)
    A("s_sleep %d" % sleep)
    A("s_branch %s" % Lp)
    A.label(Ld)
    A("s_mov_b64 exec, %s" % full_exec)

def first_then_poll(A, name, emit_loads, tagregs, sleep, ex, first_cnt=0):
    T = "s%d" % TAG
    Lp = A.newlabel(name + "p"); Ld = A.newlabel(name + "ok")
    A("s_mov_b32 s52, 0")
    A("s_waitcnt vmcnt(%d)" % first_cnt)
    A.label(Lp)
    A("v_cmp_eq_u32 vcc, %s, %s" % (T, v(tagregs[0])))
    for r in tagregs[1:]:
        A("v_cmp_eq_u32 s[54:55], %s, %s" % (T, v(r)))
        A("s_and_b64 vcc, vcc, s[54:55]")
    A("s_andn2_b64 exec, exec, vcc")
    A("s_cbranch_scc0 %s" % Ld)
    A("s_add_u32 s52, s52, 1")
    A("s_cmp_gt_u32 s52, %d" % POLL_MAX)
    A("s_cbranch_scc1 %s" % Ld)
    A("s_sleep %d" % sleep)
    emit_loads()
    A("s_waitcnt vmcnt(0)")
    A("s_branch %s" % Lp)
    A.label(Ld)
    A("s_mov_b64 exec, -1")

def ln_hint_poll(A, vaddr, r0, sleep, pre):
    def loads():
        A("s_movk_i32 s51, %d" % F_LNF)
        A("buffer_load_dwordx4 %s, %s, s[36:39], s51 offen sc1" % (v(r0, 4), vaddr))
        A("buffer_load_dwordx4 %s, %s, s[36:39], s51 offen offset:1024 sc1" % (v(r0 + 4, 4), vaddr))
    masked_poll(A, "lnh", loads, list(range(r0, r0 + 8)), sleep, pre)

def stats_from_msd(A, g, st, t):
    A("v_and_b32 %s, s40, %s" % (v(st + 4), v(g)))
    A("v_lshlrev_b32 %s, 16, %s" % (v(st), v(g)))
    A("v_rcp_f32 %s, %s" % (v(st + 2), v(st + 4)))
    A("v_xor_b32 %s, 0x80000000, %s" % (v(st), v(st)))
    A("v_xor_b32 %s, 0x80000000, %s" % (v(st + 4), v(st + 4)))
    A("v_fma_f32 %s, %s, %s, 1.0" % (v(t), v(st + 4), v(st + 2)))
    A("v_mov_b32 %s, %s" % (v(st + 1), v(st)))
    A("v_fma_f32 %s, %s, %s, %s" % (v(st + 2), v(t), v(st + 2), v(st + 2)))
    A("v_mov_b32 %s, %s" % (v(st + 5), v(st + 4)))
    A("v_mov_b32 %s, %s" % (v(st + 3), v(st + 2)))

LK, LV, LQ, SG, SX, SGS = 0, 17408, 33792, 50176, 67584, 272

def row_xor_reduce(A, regs):
    for ctl in ("quad_perm:[1,0,3,2]", "quad_perm:[2,3,0,1]", "row_half_mirror", "row_mirror"):
        if len(regs) < 3:
            A.nop(3 - len(regs))
        for r in regs:
            A("v_xor_b32_dpp %s, %s, %s %s row_mask:0xf bank_mask:0xf" % (v(r), v(r), v(r), ctl))

def gen_kv_issue(A):
    srd(A, 48, PK, S * ROWB)
    srd(A, 52, PV, S * ROWB)
    A("v_and_b32 v1, 63, v0")
    A("v_lshrrev_b32 v4, 3, v1")
    A("v_mul_u32_u24 v4, 1152, v4")
    A("v_and_b32 v5, 7, v1")
    A("v_lshl_add_u32 v4, v5, 4, v4")
    A("s_mul_i32 s62, s61, %d" % (128 * 1152))
    A("s_lshl_b32 s63, s60, 7")
    A("s_add_u32 s62, s62, s63")
    A("s_mul_i32 s63, s42, 9216")
    A("s_add_u32 s62, s62, s63")
    A("s_sub_u32 s63, s62, 9216")
    A("s_lshl_b32 s64, s42, 10")
    srd(A, 16, PQ, S * ROWB)
    for i in range(4):
        A("s_mov_b32 m0, s64")
        A("s_add_u32 s65, s64, %d" % LV)
        A("buffer_load_dwordx4 v4, s[48:51], s63 offen lds" + NTS)
        A("s_mov_b32 m0, s65")
        A("s_add_u32 s65, s64, %d" % LQ)
        A("buffer_load_dwordx4 v4, s[52:55], s62 offen lds" + NTS)
        A("s_mov_b32 m0, s65")
        A("s_add_u32 s64, s64, 4096")
        A("buffer_load_dwordx4 v4, s[16:19], s62 offen lds" + NTS)
        A("s_add_u32 s63, s63, %d" % (32 * 1152))
        A("s_add_u32 s62, s62, %d" % (32 * 1152))
    Ln = A.newlabel("nok17")
    A("s_cmp_lg_u32 s42, 0")
    A("s_cbranch_scc1 %s" % Ln)
    A("s_mov_b32 m0, s64")
    A("s_nop 0")
    A("buffer_load_dwordx4 v4, s[48:51], s63 offen lds" + NTS)
    A.label(Ln)

def gen_kv_addr(A):
    srd(A, 56, PSHK, D * 8)
    A("v_and_b32 v2, 31, v0")
    A("s_lshl_b32 s63, s60, 9")
    A("v_lshl_add_u32 v29, v2, 4, s63")
    A("buffer_load_dwordx4 v[32:35], v29, s[56:59], 0 offen")

def gen_kv_addr2(A):
    A("v_lshrrev_b32 v3, 5, v0")
    A("v_lshlrev_b32 v6, 10, v3")
    A("v_lshl_add_u32 v6, v2, 2, v6")
    A("v_mul_u32_u24 v7, %d, v2" % (2 * SGS))
    A("v_sub_u32 v8, 15, v3")
    A("v_lshl_add_u32 v7, v8, 4, v7")
    A("v_add_u32 v7, %d, v7" % SG)
    A("v_bfe_u32 v10, v0, 4, 2")
    A("v_and_b32 v11, 15, v0")
    A("v_mul_u32_u24 v8, %d, v10" % SGS)
    A("v_lshl_add_u32 v8, v11, 4, v8")
    A("s_mul_i32 s63, s42, %d" % (8 * SGS))
    A("s_add_u32 s63, s63, %d" % SG)
    A("v_add_u32 v8, s63, v8")
    A("v_lshlrev_b32 v9, 12, v10")
    A("v_lshl_add_u32 v9, v11, 4, v9")
    A("s_lshl_b32 s63, s60, 6")
    A("s_lshl_b32 s64, s42, 3")
    A("s_add_u32 s63, s63, s64")
    A("s_lshl_b32 s65, s63, 12")
    A("s_lshl_b32 s64, s61, 8")
    A("s_sub_u32 s65, s65, s64")
    A("s_add_u32 s65, s65, %d" % (F_UR + 240 * 16))
    A("v_add_u32 v9, s65, v9")
    A("v_lshlrev_b32 v12, 7, v10")
    A("s_lshl_b32 s65, s63, 7")
    A("s_lshl_b32 s64, s61, 3")
    A("s_sub_u32 s65, s65, s64")
    A("s_add_u32 s65, s65, %d" % (F_URC + 120))
    A("v_add_u32 v12, s65, v12")
    A("v_cmp_eq_u32 s[66:67], 0, v11")
    A("v_mul_u32_u24 v13, %d, v2" % (2 * SGS))
    A("v_lshl_add_u32 v13, v3, 4, v13")
    A("v_add_u32 v13, %d, v13" % SX)
    A("v_lshlrev_b32 v48, 12, v10")
    A("v_lshl_add_u32 v48, v11, 4, v48")
    A("s_lshl_b32 s65, s63, 12")
    A("s_lshl_b32 s64, s61, 8")
    A("s_add_u32 s65, s65, s64")
    A("s_add_u32 s65, s65, %d" % F_XT)
    A("v_add_u32 v48, s65, v48")
    A("v_lshlrev_b32 v49, 7, v10")
    A("s_lshl_b32 s65, s63, 7")
    A("s_lshl_b32 s64, s61, 3")
    A("s_add_u32 s65, s65, s64")
    A("s_add_u32 s65, s65, %d" % F_XC)
    A("v_add_u32 v49, s65, v49")

def gen_kv_compute(A):
    def trans():
        A("s_waitcnt vmcnt(0)")
        A("s_barrier")
        st_(A, 1)
        dbg_time(A, 8)
    tp = TwoPass(A, "kv")
    tp.begin(trans)
    for i in range(11):
        A("ds_read_b32 %s, v6 offset:%d" % (v(14 + i), LK + (5 + i) * 128))
    for i in range(8):
        A("ds_read_b32 %s, v6 offset:%d" % (v(40 + i), LV + i * 128))
    for i in range(8):
        A("ds_read_b32 %s, v6 offset:%d" % (v(144 + i), LQ + i * 128))
    A("v_lshlrev_b32 v54, 16, v32"); A("v_lshlrev_b32 v55, 16, v34")
    A("v_and_b32 v56, s40, v32");    A("v_and_b32 v57, s40, v34")
    A("v_lshlrev_b32 v58, 16, v33"); A("v_lshlrev_b32 v59, 16, v35")
    A("v_and_b32 v60, s40, v33");    A("v_and_b32 v61, s40, v35")
    DOT = bool(os.environ.get("DOT2", "1") != "0")
    W, K, KV = 54, 62, 100
    A("s_mov_b32 s64, 0x05040100"); A("s_mov_b32 s65, 0x07060302")
    if DOT:
        A("v_and_b32 v62, 0xffff, v32"); A("v_lshlrev_b32 v63, 16, v34")
        A("v_lshrrev_b32 v64, 16, v32"); A("v_and_b32 v65, s40, v34")
        A("v_and_b32 v66, 0xffff, v33"); A("v_lshlrev_b32 v67, 16, v35")
        A("v_lshrrev_b32 v68, 16, v33"); A("v_and_b32 v69, s40, v35")
        A("v_mov_b32 v70, 0x3f803f80")
        A("v_mov_b32 v71, 0")
        A("s_waitcnt lgkmcnt(0)")
        for j in range(4):
            A("v_perm_b32 %s, %s, %s, s64" % (v(152 + j), v(144 + 2 * j + 1), v(144 + 2 * j)))
            A("v_perm_b32 %s, %s, %s, s65" % (v(156 + j), v(144 + 2 * j + 1), v(144 + 2 * j)))
        A("ds_write_b128 v13, v[152:155]")
        A("ds_write_b128 v13, v[156:159] offset:%d" % SGS)
        def ch_ops(i, c, t0):
            a_, b_, p_, q_ = t0, t0 + 1, t0 + 2, t0 + 3
            o = []
            d2 = lambda d, x, y, z: "v_dot2_f32_bf16 %s, %s, %s, %s" % (v(d), v(x), v(y), z)
            o.append(d2(a_, 14 + i + 0, 62 + 2 * 3 + c, "0"))
            o.append(d2(b_, 14 + i + 1, 62 + 2 * 2 + c, "0"))
            o.append(d2(q_, 14 + i + 2, 62 + 2 * 1 + c, "0"))
            o.append("v_cvt_pk_bf16_f32 %s, %s, %s" % (v(p_), v(a_), v(b_)))
            o.append(d2(b_, 14 + i + 3, 62 + 2 * 0 + c, "0"))
            o.append(d2(a_, p_, 70, "0"))
            o.append("s_nop 0")
            o.append("v_cvt_pk_bf16_f32 %s, %s, %s" % (v(p_), v(a_), v(q_)))
            o.append("s_nop 0")
            o.append(d2(a_, p_, 70, "0"))
            o.append("s_nop 0")
            o.append("v_cvt_pk_bf16_f32 %s, %s, %s" % (v(p_), v(a_), v(b_)))
            o.append("s_nop 0")
            o.append(d2(a_, p_, 70, "0"))
            o.append("s_nop 0")
            if c == 0:
                o.append("v_cvt_pk_bf16_f32 %s, %s, %s" % (v(p_), v(a_), v(71)))
            else:
                o.append("v_cvt_pk_bf16_f32 %s, %s, %s" % (v(p_), v(71), v(a_)))
            o.append("s_nop 0")
            o.append(d2(KV + 2 * i + c, p_, 40 + i, "0"))
            return [x for x in o if x != "s_nop 0"]
        for i in range(0, 8, 4):
            streams = []
            for ii in range(4):
                for c in range(2):
                    streams.append(ch_ops(i + ii, c, 72 + 4 * (2 * ii + c) if (2 * ii + c) < 7 else 132))
            interleave(A, streams)
        A.nop(3)
        for c in range(2):
            for j in range(4):
                A("v_cvt_pk_bf16_f32 %s, %s, %s" % (v(116 + 4 * c + j), v(KV + 2 * (7 - 2 * j) + c), v(KV + 2 * (6 - 2 * j) + c)))
    else:
        A("s_waitcnt lgkmcnt(15)")
        for i in range(11):
            unpack_pair(A, K + 2 * i, K + 2 * i + 1, 14 + i, 40)
        A("s_waitcnt lgkmcnt(0)")
        for j in range(4):
            A("v_perm_b32 %s, %s, %s, s64" % (v(152 + j), v(144 + 2 * j + 1), v(144 + 2 * j)))
            A("v_perm_b32 %s, %s, %s, s65" % (v(156 + j), v(144 + 2 * j + 1), v(144 + 2 * j)))
        A("ds_write_b128 v13, v[152:155]")
        A("ds_write_b128 v13, v[156:159] offset:%d" % SGS)
        def pr_(r):
            return "v[%d:%d]" % (r, r + 1)
        def row_ops(i, acc, tmp, t3):
            P = Asm()
            P("v_pk_mul_f32 %s, %s, %s" % (pr_(acc), pr_(K + 2 * (i + 0)), pr_(W + 6)))
            round_pair(P, acc, acc + 1, t3, 40)
            for t in range(1, 4):
                P("v_pk_mul_f32 %s, %s, %s" % (pr_(tmp), pr_(K + 2 * (i + t)), pr_(W + 2 * (3 - t))))
                round_pair(P, tmp, tmp + 1, t3, 40)
                P("v_pk_add_f32 %s, %s, %s" % (pr_(acc), pr_(acc), pr_(tmp)))
                round_pair(P, acc, acc + 1, t3, 40)
            unpack_pair(P, tmp, tmp + 1, 40 + i, 40)
            P("v_pk_mul_f32 %s, %s, %s" % (pr_(KV + 2 * i), pr_(acc), pr_(tmp)))
            return [l.strip() for l in P.lines]
        for i in range(0, 8, 4):
            interleave(A, [row_ops(i, 84, 86, 88), row_ops(i + 1, 90, 92, 94), row_ops(i + 2, 132, 134, 136), row_ops(i + 3, 138, 140, 142)])
        for c in range(2):
            for j in range(4):
                A("v_cvt_pk_bf16_f32 %s, %s, %s" % (v(116 + 4 * c + j), v(KV + 2 * (7 - 2 * j) + c), v(KV + 2 * (6 - 2 * j) + c)))
    A("ds_write_b128 v7, v[116:119]")
    A("ds_write_b128 v7, v[120:123] offset:%d" % SGS)
    A("s_waitcnt lgkmcnt(0)")
    tp.end()
    A("s_barrier")
    A("ds_read_b128 v[116:119], v8")
    A("ds_read_b128 v[120:123], v8 offset:%d" % (4 * SGS))
    A("s_movk_i32 s63, 16384")
    A("s_waitcnt lgkmcnt(1)")
    A("buffer_store_dwordx4 v[116:119], v9, s[36:39], 0 offen sc1")
    A("v_xor_b32 v124, v116, v117"); A("v_xor_b32 v126, v118, v119")
    A("s_waitcnt lgkmcnt(0)")
    A("buffer_store_dwordx4 v[120:123], v9, s[36:39], s63 offen sc1")
    A("v_xor_b32 v125, v120, v121"); A("v_xor_b32 v127, v122, v123")
    A("v_xor_b32 v124, v124, v126"); A("v_xor_b32 v125, v125, v127")
    row_xor_reduce(A, [124, 125])
    A("v_xor_b32 v128, s%d, v124" % TAG); A("v_xor_b32 v130, s%d, v125" % TAG)
    A("v_mov_b32 v129, s%d" % TAG); A("v_mov_b32 v131, s%d" % TAG)
    A("s_mov_b64 exec, s[66:67]")
    A("buffer_store_dwordx2 v[128:129], v12, s[36:39], 0 offen sc1")
    A("buffer_store_dwordx2 v[130:131], v12, s[36:39], 0 offen offset:512 sc1")
    A("s_mov_b64 exec, -1")
    A("ds_read_b128 v[116:119], v8 offset:%d" % (SX - SG))
    A("ds_read_b128 v[120:123], v8 offset:%d" % (SX - SG + 4 * SGS))
    A("s_waitcnt lgkmcnt(1)")
    A("buffer_store_dwordx4 v[116:119], v48, s[36:39], 0 offen sc1")
    A("v_xor_b32 v124, v116, v117"); A("v_xor_b32 v126, v118, v119")
    A("s_waitcnt lgkmcnt(0)")
    A("buffer_store_dwordx4 v[120:123], v48, s[36:39], s63 offen sc1")
    A("v_xor_b32 v125, v120, v121"); A("v_xor_b32 v127, v122, v123")
    A("v_xor_b32 v124, v124, v126"); A("v_xor_b32 v125, v125, v127")
    row_xor_reduce(A, [124, 125])
    A("v_xor_b32 v128, s%d, v124" % TAG); A("v_xor_b32 v130, s%d, v125" % TAG)
    A("s_mov_b64 exec, s[66:67]")
    A("buffer_store_dwordx2 v[128:129], v49, s[36:39], 0 offen sc1")
    A("buffer_store_dwordx2 v[130:131], v49, s[36:39], 0 offen offset:512 sc1")
    A("s_mov_b64 exec, -1")
    st_(A, 2)

def gen_ln(A, two=False):
    srd(A, 48, PQ, S * ROWB)
    srd(A, 56, PWR, D * 2)
    A("v_and_b32 v1, 63, v0")
    A("v_and_b32 v2, 15, v0")
    A("v_lshrrev_b32 v3, 4, v1")
    A("s_lshl_b32 s61, s60, 2")
    A("v_add_u32 v30, s61, v3")
    A("s_movk_i32 s62, 1152")
    A("v_mul_lo_u32 v6, v30, s62")
    A("v_lshl_add_u32 v6, v2, 3, v6")
    A("v_lshlrev_b32 v7, 3, v2")
    Q, WR, X = 64, 84, 104
    for i in range(9):
        A("buffer_load_dwordx2 %s, v6, s[48:51], 0 offen offset:%d" % (v(Q + 2 * i, 2), 128 * i) + QNT)
    for i in range(9):
        A("buffer_load_dwordx2 %s, v7, s[56:59], 0 offen offset:%d" % (v(WR + 2 * i, 2), 128 * i))
    if two:
        A("s_mov_b32 s62, %d" % (1024 * 1152))
        for i in range(9):
            A("buffer_load_dwordx2 %s, v6, s[48:51], s62 offen offset:%d" % (v(144 + 2 * i, 2), 128 * i))
    return Q, WR, X

def gen_ln_compute(A, Q, WR, X, extra=0, first_wait=None):
    def trans():
        A("s_waitcnt vmcnt(%d)" % extra)
        st_(A, 1)
    tp = TwoPass(A, "ln")
    tp.begin(trans)
    for i in range(18):
        unpack_pair(A, X + 2 * i, X + 2 * i + 1, Q + i, 40)
    A("v_pk_add_f32 v[8:9], %s, %s" % (v(X, 2), v(X + 2, 2)))
    A("v_pk_add_f32 v[10:11], %s, %s" % (v(X + 4, 2), v(X + 6, 2)))
    for i in range(4, 18, 2):
        A("v_pk_add_f32 v[8:9], v[8:9], %s" % v(X + 2 * i, 2))
        A("v_pk_add_f32 v[10:11], v[10:11], %s" % v(X + 2 * i + 2, 2))
    A("v_pk_add_f32 v[8:9], v[8:9], v[10:11]")
    A.nop(1)
    A("v_add_f32 v8, v8, v9")
    allreduce16_add(A, 8)
    A("v_mul_f32 v8, 0x3ae38e39, v8")
    A("v_sub_f32 v12, 0, v8")
    A("v_sub_f32 v13, 0, v8")
    for r in (14, 15, 16, 17):
        A("v_mov_b32 %s, 0" % v(r))
    for i in range(0, 18, 2):
        A("v_pk_add_f32 v[18:19], %s, v[12:13]" % v(X + 2 * i, 2))
        A("v_pk_add_f32 v[20:21], %s, v[12:13]" % v(X + 2 * i + 2, 2))
        A("v_pk_fma_f32 v[14:15], v[18:19], v[18:19], v[14:15]")
        A("v_pk_fma_f32 v[16:17], v[20:21], v[20:21], v[16:17]")
    A("v_pk_add_f32 v[14:15], v[14:15], v[16:17]")
    A.nop(1)
    A("v_add_f32 v14, v14, v15")
    allreduce16_add(A, 14)
    A("v_mul_f32 v14, 0x3ae38e39, v14")
    A.nop(1)
    round_pair(A, 8, 14, 9, 40)
    A("v_add_f32 v14, 0x3727c5ac, v14")
    A.nop(1)
    A("v_cvt_pk_bf16_f32 v9, v14, v14")
    A("v_lshlrev_b32 v14, 16, v9")
    A("v_sqrt_f32 v14, v14")
    A.nop(1)
    A("v_cvt_pk_bf16_f32 v9, v14, v14")
    A("v_lshlrev_b32 v14, 16, v9")
    A("v_rcp_f32 v15, v14")
    A.nop(1)
    A("v_fma_f32 v16, -v14, v15, 1.0")
    A("v_fma_f32 v15, v16, v15, v15")
    A("v_sub_f32 v12, 0, v8"); A("v_sub_f32 v13, 0, v8")
    A("v_mov_b32 v16, v15"); A("v_mov_b32 v17, v15")
    for r in (22, 23, 24, 25):
        A("v_mov_b32 %s, 0" % v(r))
    def ops(i, tm, acc):
        x0 = X + 2 * i
        P = Asm()
        P("v_pk_add_f32 %s, %s, v[12:13]" % (v(x0, 2), v(x0, 2)))
        round_pair(P, x0, x0 + 1, tm, 40)
        P("v_pk_mul_f32 %s, %s, v[16:17]" % (v(x0, 2), v(x0, 2)))
        round_pair(P, x0, x0 + 1, tm, 40)
        unpack_pair(P, tm + 2, tm + 3, WR + i, 40)
        P("v_pk_fma_f32 %s, %s, %s, %s" % (v(acc, 2), v(x0, 2), v(tm + 2, 2), v(acc, 2)))
        return [l.strip() for l in P.lines]
    for i in range(0, 18, 2):
        interleave(A, [ops(i, 26, 22), ops(i + 1, 32, 24)])
    A("v_pk_add_f32 v[22:23], v[22:23], v[24:25]")
    A.nop(1)
    A("v_add_f32 v22, v22, v23")
    allreduce16_add(A, 22)
    A.nop(1)
    A("v_cvt_pk_bf16_f32 v23, v22, v22")
    A("v_lshlrev_b32 v23, 16, v23")
    A("v_ashrrev_i32 v24, 31, v23")
    A("v_or_b32 v24, 0x80000000, v24")
    A("v_xor_b32 v23, v23, v24")
    A("v_and_b32 v23, s40, v23")
    A("v_sub_u32 v24, 2047, v30")
    A("v_or_b32 v26, v23, v24")
    A("v_mov_b32 v27, s%d" % TAG)
    A("v_cvt_pk_bf16_f32 v32, v8, v14")
    A("v_mov_b32 v33, s%d" % TAG)
    A("v_lshlrev_b32 v28, 3, v30")
    A("s_movk_i32 s61, %d" % F_KEYG)
    A("s_mov_b32 s62, %d" % F_ROWG)
    tp.end()
    A("v_cmp_eq_u32 vcc, 0, v2")
    A("s_and_saveexec_b64 s[64:65], vcc")
    A("buffer_store_dwordx2 v[26:27], v28, s[36:39], s61 offen sc1")
    A("buffer_store_dwordx2 v[32:33], v28, s[36:39], s62 offen sc1")
    A("s_mov_b64 exec, s[64:65]")
    st_(A, 2)

def load_verified_runs(A, pay_soff, chk_soff, vlane16, vchk8, vhint8, P, pre, sleep):
    C, Tm = P + 16, P + 20
    def hint_loads():
        A("buffer_load_dwordx2 %s, %s, s[36:39], %s offen sc1" % (v(C, 2), vhint8, chk_soff))
    masked_poll(A, "vh", hint_loads, [C + 1], sleep, pre)
    Lp = A.newlabel("vp"); Ld = A.newlabel("vok")
    A("s_mov_b32 s52, 0")
    A.label(Lp)
    for i in range(4):
        A("buffer_load_dwordx4 %s, %s, s[36:39], %s offen offset:%d sc1" % (v(P + 4 * i, 4), vlane16, pay_soff, 1024 * i))
    for i in range(4):
        A("buffer_load_dword %s, %s, s[36:39], %s offen offset:%d sc1" % (v(C + i), vchk8, chk_soff, 32 * i))
    A("s_waitcnt vmcnt(0)")
    for i in range(4):
        A("v_xor_b32 %s, %s, %s" % (v(Tm + i), v(P + 4 * i), v(P + 1 + 4 * i)))
    for i in range(4):
        A("v_xor_b32 %s, %s, %s" % (v(Tm + 4 + i), v(P + 2 + 4 * i), v(P + 3 + 4 * i)))
    for i in range(4):
        A("v_xor_b32 %s, %s, %s" % (v(Tm + i), v(Tm + i), v(Tm + 4 + i)))
    row_xor_reduce(A, [Tm, Tm + 1, Tm + 2, Tm + 3])
    for i in range(4):
        A("v_xor_b32 %s, %s, %s" % (v(Tm + i), v(Tm + i), v(C + i)))
    A("v_cmp_eq_u32 vcc, s%d, %s" % (TAG, v(Tm)))
    for i in range(1, 4):
        A("v_cmp_eq_u32 s[54:55], s%d, %s" % (TAG, v(Tm + i)))
        A("s_and_b64 vcc, vcc, s[54:55]")
    A("s_cmp_eq_u64 vcc, -1")
    A("s_cbranch_scc1 %s" % Ld)
    A("s_add_u32 s52, s52, 1")
    A("s_cmp_gt_u32 s52, %d" % POLL_MAX)
    A("s_cbranch_scc1 %s" % Ld)
    A("s_sleep 2")
    A("s_branch %s" % Lp)
    A.label(Ld)

def build_ops(W, N, off):
    ops = []
    for k in range(7):
        ops.append("v_alignbit_b32 %s, %s, %s, 16" % (v(E_ + k), v(W + k + 1), v(W + k)))
    ops.append("ds_write_b128 v11, %s offset:%d" % (v(W + 2, 4), 4 * CS + off))
    for k in range(3):
        ops.append("v_pk_mov_b32 %s, %s, %s op_sel:[1,0]" % (v(G_ + 2 * k, 2), v(W + 2 * k, 2), v(W + 2 * k + 2, 2)))
    ops.append("ds_write_b128 v11, %s offset:%d" % (v(E_, 4), 1 * CS + off))
    ops.append("ds_write_b128 v11, %s offset:%d" % (v(E_ + 2, 4), 5 * CS + off))
    for k in range(3):
        ops.append("v_pk_mov_b32 %s, %s, %s op_sel:[1,0]" % (v(F_ + 2 * k, 2), v(E_ + 2 * k, 2), v(E_ + 2 * k + 2, 2)))
    ops.append("ds_write_b128 v11, %s offset:%d" % (v(G_, 4), 2 * CS + off))
    ops.append("ds_write_b128 v11, %s offset:%d" % (v(G_ + 2, 4), 6 * CS + off))
    ops.append("s_nop 0")
    ops.append("ds_write_b128 v11, %s offset:%d" % (v(F_, 4), 3 * CS + off))
    ops.append("ds_write_b128 v11, %s offset:%d" % (v(F_ + 2, 4), 7 * CS + off))
    return ops

def gen_partial_gather(A):
    T = "s%d" % TAG
    A("v_and_b32 v5, 255, v0")
    A("v_and_b32 v1, 63, v0")
    A("v_and_b32 v12, 7, v5")
    A("v_mul_u32_u24 v12, 2304, v12")
    A("v_lshrrev_b32 v13, 3, v5")
    A("v_mul_u32_u24 v14, 18432, v13")
    A("v_add_u32 v12, v12, v14")
    A("s_lshl_b32 s51, s41, 4")
    A("s_add_u32 s51, s51, %d" % F_PARTG)
    A("v_add_u32 v12, s51, v12")
    A("v_add_u32 v14, %d, v12" % (64 * 18432))
    A("v_cmp_gt_u32 vcc, 8, v13")
    A.nop(2)
    A("v_cndmask_b32 v14, v12, v14, vcc")
    A("s_mov_b64 s[56:57], vcc")
    def part_loads():
        A("s_mov_b32 s51, %d" % (32 * 18432))
        A("buffer_load_dwordx4 v[160:163], v12, s[36:39], 0 offen sc1")
        A("buffer_load_dwordx4 v[164:167], v12, s[36:39], s51 offen sc1")
        A("buffer_load_dwordx4 v[168:171], v14, s[36:39], 0 offen sc1")
    Lp = A.newlabel("ppp"); Ld = A.newlabel("ppok")
    A("s_mov_b32 s52, 0")
    A.label(Lp)
    part_loads()
    A("s_waitcnt vmcnt(0)")
    for i in range(3):
        b = 160 + 4 * i
        A("v_xor_b32 %s, %s, %s" % (v(172 + i), v(b), v(b + 1)))
        A("v_xor_b32 %s, %s, %s" % (v(176 + i), v(b + 2), v(b + 3)))
    for i in range(3):
        A("v_xor_b32 %s, %s, %s" % (v(172 + i), v(172 + i), v(176 + i)))
    A("v_cmp_eq_u32 vcc, %s, v172" % T)
    for r in (173, 174):
        A("v_cmp_eq_u32 s[54:55], %s, %s" % (T, v(r)))
        A("s_and_b64 vcc, vcc, s[54:55]")
    A("s_andn2_b64 exec, exec, vcc")
    A("s_cbranch_scc0 %s" % Ld)
    A("s_add_u32 s52, s52, 1")
    A("s_cmp_gt_u32 s52, %d" % POLL_MAX)
    A("s_cbranch_scc1 %s" % Ld)
    A("s_sleep %d" % int(os.environ.get("PPSLEEP", 3)))
    A("s_branch %s" % Lp)
    A.label(Ld)
    A("s_mov_b64 exec, -1")
    st_(A, 8)
    dbg_time(A, 10)
    A("s_mov_b32 s58, 0xffffff00")
    A("s_mov_b32 s59, 0x0c0c0004")
    for i in range(3):
        b = 160 + 4 * i
        o = 20 + 4 * i
        A("v_lshlrev_b32 %s, 24, %s" % (v(o + 3), v(b)))
        A("v_and_b32 %s, 0xff, %s" % (v(176), v(b + 1)))
        A("v_and_b32 %s, 0xff, %s" % (v(177), v(b + 2)))
        A("v_lshl_or_b32 %s, %s, 16, %s" % (v(o + 3), v(176), v(o + 3)))
        A("v_lshl_or_b32 %s, %s, 8, %s" % (v(o + 3), v(177), v(o + 3)))
        for k in range(3):
            A("v_and_b32 %s, s58, %s" % (v(o + k), v(b + k)))
    for k in range(4):
        A("v_cndmask_b32 %s, 0, %s, s[56:57]" % (v(28 + k), v(28 + k)))
    for k in range(4):
        A("v_add_f32 %s, %s, %s" % (v(20 + k), v(20 + k), v(24 + k)))
    for k in range(4):
        A("v_add_f32 %s, %s, %s" % (v(20 + k), v(20 + k), v(28 + k)))
    A.nop(1)
    for k in range(4):
        A("v_add_f32_dpp %s, %s, %s row_ror:8 row_mask:0xf bank_mask:0xf" % (v(24 + k), v(20 + k), v(20 + k)))
    for k in range(4):
        A("v_mov_b32 %s, %s" % (v(28 + k), v(24 + k)))
    A.nop(1)
    for k in range(4):
        A("v_permlane16_swap_b32 %s, %s" % (v(24 + k), v(28 + k)))
    A.nop(1)
    for k in range(4):
        A("v_add_f32 %s, %s, %s" % (v(24 + k), v(24 + k), v(28 + k)))
    for k in range(4):
        A("v_mov_b32 %s, %s" % (v(28 + k), v(24 + k)))
    A.nop(1)
    for k in range(4):
        A("v_permlane32_swap_b32 %s, %s" % (v(24 + k), v(28 + k)))
    A.nop(1)
    for k in range(4):
        A("v_add_f32 %s, %s, %s" % (v(24 + k), v(24 + k), v(28 + k)))
    A("v_lshlrev_b32 v18, 4, v1")
    A("s_lshl_b32 s51, s43, 7")
    A("s_add_u32 s51, s51, %d" % RED)
    A("v_add_u32 v18, s51, v18")
    A("s_mov_b64 exec, 0xff")
    A("ds_write_b128 v18, v[24:27]")
    A("s_mov_b64 exec, -1")
    A("s_waitcnt lgkmcnt(0)")
    A("v_mov_b32 v11, %d" % FLAGS)
    A("v_mov_b32 v12, 1")
    lds_signal(A, 5, "v11", "v12")

def gen_M(A):
    A("s_setprio %d" % int(os.environ.get("MPRIO", 2)))
    srd(A, 32, PSSMK, D * S * 2)
    A("v_and_b32 v1, 63, v0")
    A("v_lshlrev_b32 v4, 4, v1")
    A("s_add_u32 s56, s45, %d" % (H_OFF + 512))
    A("s_lshl_b32 s57, s44, 12")
    A("s_mov_b32 m0, s56")
    A("s_lshl_b32 s51, s44, 1")
    for i in range(4):
        A("buffer_load_dwordx4 v4, s[32:35], s57 offen offset:%d lds" % (1024 * i) + NTS)
    A("s_add_u32 s56, s56, 4096")
    A("s_add_u32 s57, s57, 4096")
    A("s_mov_b32 m0, s56")
    A("s_mov_b64 exec, 0x3")
    A("buffer_load_dwordx4 v4, s[32:35], s57 offen lds" + NTS)
    A("s_mov_b64 exec, -1")
    A("s_and_b32 s52, s51, 0xfffffffc")
    A("s_add_u32 s54, s%d, s52" % PSSMD)
    A("s_addc_u32 s55, s%d, 0" % (PSSMD + 1))
    A("s_load_dword s53, s[54:55], 0")
    A("v_and_b32 v2, 15, v0")
    A("v_bfe_u32 v3, v0, 4, 2")
    A("v_mov_b32 v12, 0"); A("v_mov_b32 v13, 0"); A("v_mov_b32 v14, 0"); A("v_mov_b32 v15, 0")
    A("v_add_u32 v11, s45, v4")
    A("s_mov_b32 exec_hi, 0")
    A("ds_write_b128 v11, v[12:15] offset:%d" % H_OFF)
    A("s_mov_b64 exec, 0x3")
    for c in range(8):
        pass
    A("ds_write_b128 v11, v[12:15]")
    A("s_mov_b64 exec, 0xf")
    A("ds_write_b128 v11, v[12:15] offset:%d" % (258 * 16))
    A("s_mov_b64 exec, -1")
    A("v_lshlrev_b32 v5, 5, v2")
    A("v_lshl_add_u32 v5, v3, 4, v5")
    A("v_add_u32 v5, s45, v5")
    A("v_add_u32 v5, %d, v5" % H_OFF)
    A("v_and_b32 v8, 7, v2")
    A("v_sub_u32 v8, 7, v8")
    A("v_mul_u32_u24 v8, %d, v8" % CS)
    A("v_lshrrev_b32 v6, 3, v2")
    A("v_sub_u32 v6, v3, v6")
    A("v_lshlrev_b32 v6, 4, v6")
    A("v_add_u32 v8, v8, v6")
    A("v_add_u32 v8, 16, v8")
    A("v_add_u32 v9, s45, v8")
    A("v_lshlrev_b32 v6, 5, v2")
    A("v_lshl_add_u32 v6, v3, 3, v6")
    A("v_sub_u32 v7, %d, v6" % (4120 - 3584))
    A("v_add_u32 v7, s45, v7")
    A("v_add_u32 v6, s45, v6")
    A("v_add_u32 v6, %d, v6" % YOFF)
    A("s_lshl_b32 s49, s43, 2")
    A("s_add_u32 s49, s49, %d" % FLAGS)
    A("v_mov_b32 v10, s49")
    for i in range(32):
        A("v_mov_b32 %s, 0" % v(ACC + i))
    A("s_lshl_b32 s48, s44, 12")
    A("s_add_u32 s48, s48, %d" % F_UR)
    A("v_lshlrev_b32 v16, 3, v3")
    A("s_lshl_b32 s50, s44, 7")
    A("s_add_u32 s50, s50, %d" % F_URC)
    A("v_and_b32 v17, 15, v1")
    A("v_lshlrev_b32 v17, 3, v17")
    def hint_loads():
        A("buffer_load_dwordx2 v[136:137], v17, s[36:39], s50 offen sc1")
    if os.environ.get("URHINT"):
        masked_poll(A, "urh", hint_loads, [137], int(os.environ.get("URSLEEP", 4)), int(os.environ.get("URPRE", 8)))
    else:
        A("s_sleep %d" % int(os.environ.get("URPRE", 24)))
    Lp = A.newlabel("urp"); Ld = A.newlabel("urok")
    A("s_mov_b32 s52, 0")
    A.label(Lp)
    for i in range(4):
        A("buffer_load_dwordx4 %s, v4, s[36:39], s48 offen offset:%d sc1" % (v(120 + 4 * i, 4), 1024 * i))
    for i in range(4):
        A("buffer_load_dword %s, v16, s[36:39], s50 offen offset:%d sc1" % (v(136 + i), 32 * i))
    A("s_waitcnt vmcnt(0)")
    for i in range(4):
        A("v_xor_b32 %s, %s, %s" % (v(140 + i), v(120 + 4 * i), v(121 + 4 * i)))
    for i in range(4):
        A("v_xor_b32 %s, %s, %s" % (v(144 + i), v(122 + 4 * i), v(123 + 4 * i)))
    for i in range(4):
        A("v_xor_b32 %s, %s, %s" % (v(140 + i), v(140 + i), v(144 + i)))
    row_xor_reduce(A, [140, 141, 142, 143])
    for i in range(4):
        A("v_xor_b32 %s, %s, %s" % (v(140 + i), v(140 + i), v(136 + i)))
    A("v_cmp_eq_u32 vcc, s%d, v140" % TAG)
    for i in range(1, 4):
        A("v_cmp_eq_u32 s[54:55], s%d, %s" % (TAG, v(140 + i)))
        A("s_and_b64 vcc, vcc, s[54:55]")
    A("s_cmp_eq_u64 vcc, -1")
    A("s_cbranch_scc1 %s" % Ld)
    A("s_add_u32 s52, s52, 1")
    A("s_cmp_gt_u32 s52, %d" % POLL_MAX)
    A("s_cbranch_scc1 %s" % Ld)
    A("s_sleep %d" % int(os.environ.get("URSLEEP", 6)))
    A("s_branch %s" % Lp)
    A.label(Ld)
    st_(A, 3)
    dbg_time(A, 5)
    A("s_setprio %d" % int(os.environ.get("MPRIO2", 0)))
    for i in range(4):
        A("ds_write_b128 v11, %s offset:%d" % (v(120 + 4 * i, 4), 32 + 1024 * i))
    A("s_waitcnt lgkmcnt(0)")
    for (W, off) in ((152, 4096), (160, 3072), (168, 2048), (W1, 1024), (W0, 0)):
        A("ds_read_b128 %s, v11 offset:%d" % (v(W, 4), off))
        A("ds_read_b128 %s, v11 offset:%d" % (v(W + 4, 4), off + 16))
    A("s_waitcnt lgkmcnt(8)")
    A("s_mov_b64 exec, 0x1f")
    for o in build_ops(152, 0, 4096): A(o)
    A("s_mov_b64 exec, -1")
    A("s_waitcnt lgkmcnt(11)")
    for o in build_ops(160, 0, 3072): A(o)
    A("s_waitcnt lgkmcnt(14)")
    for o in build_ops(168, 0, 2048): A(o)
    A("s_waitcnt lgkmcnt(0)")
    st_(A, 4)
    hi_steps, lo_frags, lo_slot, lo_steps = conv_schedule()
    def bslot(sl):
        return v(BS + 4 * sl, 4)
    order, seen = [], set()
    for q, lst in hi_steps:
        for t, sl in lst:
            if sl not in seen:
                seen.add(sl); order.append(sl)
    aseq = [q for q in range(33)] + [q for q in range(65)]
    issued = []
    def issue(tag, txt):
        A(txt); issued.append(tag)
    def wait_for(tags):
        idx = max(len(issued) - 1 - issued[::-1].index(t) for t in tags)
        n = len(issued) - 1 - idx
        A("s_waitcnt lgkmcnt(%d)" % min(n, 15))
    def a_issue(k):
        issue(("A", k), "ds_read_b128 %s, v9 offset:%d" % (v(RING + 4 * (k % NR), 4), 64 * (64 - aseq[k])))
    def b_issue(sl):
        issue(("B", sl), "ds_read_b128 %s, v5 offset:%d" % (bslot(sl), 64 * (56 - sl + 8)))
    fill = deque()
    cnt = [0]
    def emit_fill(k):
        while k > 0 and fill:
            f = fill.popleft(); f(); cnt[0] += 1; k -= 1
    def add_plain(txt):
        if txt.startswith("ds_"):
            fill.append(lambda txt=txt: issue(("W",), txt))
        else:
            fill.append(lambda txt=txt: A(txt))
    a_issue(0)
    for sl in order[:5]:
        b_issue(sl)
    nextA = 1
    for k in range(1, NR):
        a_issue(nextA); nextA += 1
        b_issue(order[5 + k - 1])
    nextB = 5 + (NR - 1)
    A("s_and_b32 s52, s51, 2")
    A("s_lshl_b32 s52, s52, 3")
    A("s_lshr_b32 s53, s53, s52")
    A("s_lshl_b32 s53, s53, 16")
    A("v_mov_b32 v18, s53"); A("v_mov_b32 v19, s53")
    n = 0
    fu = {}
    for q, lst in hi_steps:
        for t, sl in lst:
            fu.setdefault(sl, q)
    for q, lst in hi_steps:
        while nextB < len(order) and fu[order[nextB]] <= q + 3:
            b_issue(order[nextB]); nextB += 1
        wait_for([("A", n)] + [("B", sl) for _, sl in lst])
        for t, sl in lst:
            A("v_mfma_f32_16x16x32_bf16 %s, %s, %s, %s" % (v(ACC + 4 * t, 4), v(RING + 4 * (n % NR), 4), bslot(sl), v(ACC + 4 * t, 4)))
        if nextA < len(aseq):
            a_issue(nextA); nextA += 1
        if q < 32:
            issue(("L", q), "ds_read_b128 %s, v5 offset:%d" % (bslot(q), 64 * (lo_frags[q] + 8)))
        n += 1
    st_(A, 5)
    def tile_epilogue(t):
        u0 = UREG + 2 * (t % 2)
        ac = ACC + 4 * t
        fill.append(lambda: wait_for([("U", t)] + ([("L", 31)] if t == 0 else [])))
        P = Asm()
        P("v_and_b32 v12, s40, %s" % v(u0 + 1))
        P("v_lshlrev_b32 v13, 16, %s" % v(u0 + 1))
        P("v_and_b32 v14, s40, %s" % v(u0))
        P("v_lshlrev_b32 v15, 16, %s" % v(u0))
        P("v_pk_mul_f32 v[12:13], v[12:13], v[18:19]")
        P("v_pk_mul_f32 v[14:15], v[14:15], v[18:19]")
        round_pair(P, 12, 13, 16, 40)
        round_pair(P, 14, 15, 17, 40)
        round_pair(P, ac, ac + 1, 16, 40)
        round_pair(P, ac + 2, ac + 3, 17, 40)
        P("v_pk_add_f32 v[12:13], v[12:13], %s" % v(ac, 2))
        P("v_pk_add_f32 v[14:15], v[14:15], %s" % v(ac + 2, 2))
        P("v_cvt_pk_bf16_f32 v16, v12, v13")
        P("v_cvt_pk_bf16_f32 v17, v14, v15")
        for l in P.lines:
            add_plain(l.strip())
        fill.append(lambda: issue(("Y", t), "ds_write_b64 v6, v[16:17] offset:%d" % (512 * t)))
        fill.append(lambda: A("v_mov_b32 v8, %d" % (t + 1)))
        for _ in range(3):
            fill.append(lambda: None)
        fill.append(lambda: wait_for([("Y", t)]))
        fill.append(lambda: issue(("F", t), "ds_write_b32 v10, v8"))
    for o in build_ops(W1, 0, 1024): add_plain(o)
    n1 = len(fill)
    for o in build_ops(W0, 0, 0): add_plain(o)
    n0 = len(fill)
    for q, lst in lo_steps:
        wait_for([("A", n)] + [("L", sl) for _, sl in lst])
        k = len(lst)
        per = int(os.environ.get('FPER', 2)) if k >= 2 else 1
        for i, (t, sl) in enumerate(lst):
            A("v_mfma_f32_16x16x32_bf16 %s, %s, %s, %s" % (v(ACC + 4 * t, 4), v(RING + 4 * (n % NR), 4), bslot(sl), v(ACC + 4 * t, 4)))
            if i < k - 1 or k == 1:
                emit_fill(per)
        if nextA < len(aseq):
            qq = aseq[nextA]
            if nextA >= 33 and qq >= 33:
                assert cnt[0] >= n1
            if nextA >= 33 and qq >= 49:
                assert cnt[0] >= n0
            a_issue(nextA); nextA += 1
        n += 1
        if q % 8 == 4:
            t = q // 8
            issue(("U", t), "ds_read_b64 %s, v7 offset:%d" % (v(UREG + 2 * (t % 2), 2), 512 * (7 - t)))
        if q >= 9 and (q - 9) % 8 == 0 and (q - 9) // 8 < 7:
            tile_epilogue((q - 9) // 8)
    A.nop(4)
    st_(A, 6)
    tile_epilogue(7)
    emit_fill(1000)
    st_(A, 7)
    dbg_time(A, 1)
    gen_partial_gather(A)
    st_(A, 9, end=True)
    A("s_endpgm")

XQ = 208
def h_early_loads(A):
    srd(A, 16, PQ, S * ROWB)
    A("v_and_b32 v201, 255, v0")
    A("s_movk_i32 s63, 1152")
    A("v_mul_lo_u32 v200, v201, s63")
    A("s_lshl_b32 s63, s41, 3")
    A("v_add_u32 v200, s63, v200")
    return 8

def strip_loads(A):
    h_early_loads(A)
    if os.environ.get("NOSTRIP"):
        for t in range(8):
            A("s_nop 0")
            A("buffer_load_dwordx2 %s, v1, s[16:19], 0 offen" % v(XQ + 2 * t, 2))
        return
    A("s_mov_b32 s63, 0")
    for t in range(8):
        A("buffer_load_dwordx2 %s, v200, s[16:19], s63 offen" % v(XQ + 2 * t, 2))
        A("s_add_u32 s63, s63, %d" % (256 * 1152))

def q_prefetch(A):
    srd(A, 16, PQ, S * ROWB)
    Ln = A.newlabel("noqpf")
    A("v_and_b32 v202, 15, v0")
    A("v_bfe_u32 v203, v0, 4, 2")
    A("v_mul_u32_u24 v203, 1152, v203")
    A("v_lshl_add_u32 v202, v202, 4, v203")
    A("s_mul_i32 s63, s30, 144")
    A("s_and_b32 s63, s63, 0xffffff80")
    A("s_min_u32 s64, s31, 15")
    A("s_lshl_b32 s64, s64, 7")
    A("s_sub_u32 s65, s42, 4")
    A("s_lshl_b32 s65, s65, 5")
    A("s_add_u32 s64, s64, s65")
    A("s_mul_i32 s64, s64, 1152")
    A("s_add_u32 s63, s63, s64")
    for i in range(8):
        A("buffer_load_dwordx4 v[204:207], v202, s[16:19], s63 offen")
        A("s_add_u32 s63, s63, %d" % (4 * 1152))

def gen_H(A):
    srd(A, 20, POUT, S * ROWB)
    T = "s%d" % TAG
    A("v_and_b32 v1, 63, v0")
    A("v_mov_b32 v5, v201")
    A("v_mov_b32 v6, v200")
    A("v_lshlrev_b32 v7, 3, v5")
    RG = 160
    X, XN, T1 = 64, 96, 128
    A("s_setprio %d" % int(os.environ.get("HPRIO", 1)))
    for r in range(32):
        A("v_mov_b32 %s, 0" % v(X + r))
    A("v_lshlrev_b32 v8, 4, v1")
    A("v_lshrrev_b32 v9, 4, v1")
    A("v_lshlrev_b32 v9, 3, v9")
    A("s_lshl_b32 s48, s44, 12")
    A("s_add_u32 s48, s48, %d" % F_XT)
    A("s_lshl_b32 s50, s44, 7")
    A("s_add_u32 s50, s50, %d" % F_XC)
    P, C, Tm = 224, 240, 244
    A("s_sleep %d" % int(os.environ.get("ROWPRE", 32)))
    Lp = A.newlabel("hp"); Ld = A.newlabel("hok")
    A("s_mov_b32 s52, 0")
    A.label(Lp)
    for i in range(4):
        A("buffer_load_dwordx4 %s, v8, s[36:39], s48 offen offset:%d sc1" % (v(P + 4 * i, 4), 1024 * i))
    for i in range(4):
        A("buffer_load_dword %s, v9, s[36:39], s50 offen offset:%d sc1" % (v(C + i), 32 * i))
    for t in range(8):
        A("s_mov_b32 s51, %d" % (F_ROWG + 2048 * t))
        A("buffer_load_dwordx2 %s, v7, s[36:39], s51 offen sc1" % v(RG + 2 * t, 2))
    A("s_waitcnt vmcnt(8)")
    for i in range(4):
        A("v_xor_b32 %s, %s, %s" % (v(Tm + i), v(P + 4 * i), v(P + 1 + 4 * i)))
    for i in range(4):
        A("v_xor_b32 %s, %s, %s" % (v(Tm + 4 + i), v(P + 2 + 4 * i), v(P + 3 + 4 * i)))
    for i in range(4):
        A("v_xor_b32 %s, %s, %s" % (v(Tm + i), v(Tm + i), v(Tm + 4 + i)))
    row_xor_reduce(A, [Tm, Tm + 1, Tm + 2, Tm + 3])
    for i in range(4):
        A("v_xor_b32 %s, %s, %s" % (v(Tm + i), v(Tm + i), v(C + i)))
    A("v_cmp_eq_u32 vcc, s%d, %s" % (TAG, v(Tm)))
    for i in range(1, 4):
        A("v_cmp_eq_u32 s[54:55], s%d, %s" % (TAG, v(Tm + i)))
        A("s_and_b64 vcc, vcc, s[54:55]")
    A("s_waitcnt vmcnt(0)")
    for r in range(RG + 1, RG + 16, 2):
        A("v_cmp_eq_u32 s[54:55], s%d, %s" % (TAG, v(r)))
        A("s_and_b64 vcc, vcc, s[54:55]")
    A("s_cmp_eq_u64 vcc, -1")
    A("s_cbranch_scc1 %s" % Ld)
    A("s_add_u32 s52, s52, 1")
    A("s_cmp_gt_u32 s52, %d" % POLL_MAX)
    A("s_cbranch_scc1 %s" % Ld)
    A("s_sleep %d" % int(os.environ.get("ROWSLEEP", 8)))
    A("s_branch %s" % Lp)
    A.label(Ld)
    st_(A, 10)
    A("v_mov_b32 v11, %d" % FLAGS)
    A("v_mov_b32 v12, 1")
    lds_signal(A, 4, "v11", "v12")
    lds_wait(A, 4, 4, "v11", "v13", sleep=1)
    st_(A, 2 + 7)
    A("v_lshlrev_b32 v8, 1, v5")
    A("s_lshl_b32 s48, s41, 14")
    A("s_add_u32 s48, s48, %d" % F_XT)
    for c in range(4):
        for t in range(8):
            A("buffer_load_short_d16_hi %s, v8, s[36:39], s48 offen offset:%d sc1" % (v(X + 4 * t + c), 512 * t))
        A("s_add_u32 s48, s48, 4096")
    for t in range(8):
        stats_from_msd(A, RG + 2 * t, 176 + 6 * t, 40)
    A("s_waitcnt vmcnt(0)")
    st_(A, 3)
    for t in range(8):
        st = 176 + 6 * t
        streams = []
        for p in range(2):
            x, xn = X + 4 * t + 2 * p, XN + 4 * t + 2 * p
            tm = 56 + 4 * p
            P = Asm()
            P("v_pk_add_f32 %s, %s, %s" % (v(tm, 2), v(x, 2), v(st, 2)))
            round_pair(P, tm, tm + 1, tm + 2, 40)
            P("v_pk_mul_f32 %s, %s, %s" % (v(xn, 2), v(tm, 2), v(st + 2, 2)))
            P("v_pk_fma_f32 %s, %s, %s, %s" % (v(tm, 2), v(xn, 2), v(st + 4, 2), v(tm, 2)))
            P("v_pk_fma_f32 %s, %s, %s, %s" % (v(xn, 2), v(tm, 2), v(st + 2, 2), v(xn, 2)))
            round_pair(P, xn, xn + 1, tm + 2, 40)
            streams.append([l.strip() for l in P.lines])
        interleave(A, streams)
    st_(A, 4)
    dbg_time(A, 11)
    A("v_lshlrev_b32 v9, 1, v5")
    A("v_add_u32 v9, %d, v9" % YOFF)
    A("v_add_u32 v10, %d, v9" % (2 * CH_LDS))
    A("v_mov_b32 v11, %d" % FLAGS)
    for i in range(4):
        A("v_mov_b32 %s, 0" % v(40 + i))
    A("v_and_b32 v8, 7, v1")
    A("v_lshlrev_b32 v8, 3, v8")
    def sel_loads():
        A("s_movk_i32 s51, %d" % F_SELG)
        A("buffer_load_dwordx2 v[180:181], v8, s[36:39], s51 offen sc1")
    sel_loads_m = sel_loads
    A("s_mov_b32 s59, 0")
    A("s_setprio %d" % int(os.environ.get("HPRIO2", 0)))
    for t in range(8):
        Lw = A.newlabel("yw"); Lg = A.newlabel("yg")
        A("s_cmp_gt_u32 s59, %d" % t)
        A("s_cbranch_scc1 %s" % Lg)
        A("s_mov_b32 s52, 0")
        A.label(Lw)
        A("ds_read_b128 v[16:19], v11")
        A("s_add_u32 s52, s52, 1")
        A("s_waitcnt lgkmcnt(0)")
        A("v_min_u32 v16, v16, v17")
        A("v_min3_u32 v16, v16, v18, v19")
        A("s_cmp_gt_u32 s52, %d" % POLL_MAX)
        A("v_readfirstlane_b32 s59, v16")
        A("s_cbranch_scc1 %s" % Lg)
        A("s_nop 1")
        A("s_cmp_gt_u32 s59, %d" % t)
        A("s_cbranch_scc1 %s" % Lg)
        A("s_sleep 1")
        A("s_branch %s" % Lw)
        A.label(Lg)
        if os.environ.get("HST") and t in (0, 2, 4, 7):
            st_(A, {0: 11, 2: 12, 4: 13, 7: 14}[t])
        A("ds_read_u16_d16_hi v40, v9 offset:%d" % (512 * t))
        A("ds_read_u16_d16_hi v41, v9 offset:%d" % (512 * t + CH_LDS))
        A("ds_read_u16_d16_hi v42, v10 offset:%d" % (512 * t))
        A("ds_read_u16_d16_hi v43, v10 offset:%d" % (512 * t + CH_LDS))
        A("s_waitcnt lgkmcnt(0)")
        streams = []
        for p in range(2):
            x, xn, t1 = X + 4 * t + 2 * p, XN + 4 * t + 2 * p, T1 + 4 * t + 2 * p
            tm = 56 + 4 * p
            P = Asm()
            P("v_pk_mul_f32 %s, %s, %s" % (v(tm, 2), v(xn, 2), v(40 + 2 * p, 2)))
            round_pair(P, tm, tm + 1, tm + 2, 40)
            P("v_pk_add_f32 %s, %s, %s" % (v(t1, 2), v(x, 2), v(tm, 2)))
            round_pair(P, t1, t1 + 1, tm + 2, 40)
            P("v_pk_add_f32 %s, %s, %s" % (v(tm, 2), v(t1, 2), v(xn, 2)))
            P("v_cvt_pk_bf16_f32 %s, %s, %s" % (v(44 + 2 * (t % 2) + p), v(tm), v(tm + 1)))
            streams.append([l.strip() for l in P.lines])
        interleave(A, streams)
        A("s_mov_b32 s51, %d" % (t * 256 * 1152))
        A("buffer_store_dwordx2 %s, v6, s[20:23], s51 offen" % v(44 + 2 * (t % 2), 2) + os.environ.get("OUTPOL", ""))
        if t == 5:
            sel_loads()
    st_(A, 5)
    dbg_time(A, 9)
    first_then_poll(A, "sel", sel_loads_m, [181], 4, "-1", first_cnt=2)
    A("v_lshrrev_b32 v45, 16, v180")
    A("v_and_b32 v46, 0x8000, v45")
    A("v_mov_b32 v47, 0xffff")
    A("v_mov_b32 v48, 0x8000")
    A("v_cmp_ne_u32 vcc, 0, v46")
    A("v_and_b32 v44, 0xffff, v180")
    A("v_sub_u32 v44, 2047, v44")
    A("v_cndmask_b32 v47, v47, v48, vcc")
    A("v_xor_b32 v45, v45, v47")
    A("v_lshlrev_b32 v45, 16, v45")
    A("v_mul_f32 v45, 0xbfb8aa3b, v45")
    A("v_exp_f32 v45, v45")
    A.nop(1)
    A("v_add_f32 v45, 1.0, v45")
    A("v_rcp_f32 v45, v45")
    A.nop(1)
    A("v_cvt_pk_bf16_f32 v45, v45, v45")
    A("v_lshlrev_b32 v45, 16, v45")
    st_(A, 6)
    A("v_mov_b32 v11, %d" % FLAGS)
    lds_wait(A, 5, 4, "v11", "v12", sleep=1)
    st_(A, 7)
    for i in range(8):
        Ls = A.newlabel("ns")
        A("v_readlane_b32 s51, v44, %d" % i)
        A("v_readlane_b32 s59, v45, %d" % i)
        A("v_mov_b32 v52, %d" % (RED + 16 * i))
        A("s_bfe_u32 s58, s51, 0x20006")
        A("s_cmp_lg_u32 s58, s43")
        A("s_cbranch_scc1 %s" % Ls)
        for w in range(4):
            A("ds_read_b128 %s, v52 offset:%d" % (v(20 + 4 * w, 4), 128 * w))
        A("s_lshr_b32 s58, s51, 8")
        A("s_mul_i32 s60, s58, %d" % (256 * 1152))
        A("s_lshl_b32 s58, s58, 2")
        A("s_and_b32 s51, s51, 255")
        A("v_cmp_eq_u32 vcc, s51, v5")
        A("s_set_gpr_idx_on s58, gpr_idx(SRC0)")
        for k in range(4):
            A("v_mov_b32 %s, %s" % (v(36 + k), v(T1 + k)))
        for k in range(4):
            A("v_mov_b32 %s, %s" % (v(40 + k), v(XN + k)))
        A("s_set_gpr_idx_off")
        A("s_waitcnt lgkmcnt(0)")
        for k in range(4):
            A("v_add_f32 %s, %s, %s" % (v(20 + k), v(20 + k), v(24 + k)))
            A("v_add_f32 %s, %s, %s" % (v(28 + k), v(28 + k), v(32 + k)))
        for k in range(4):
            A("v_add_f32 %s, %s, %s" % (v(20 + k), v(20 + k), v(28 + k)))
        A.nop(1)
        round_pair(A, 20, 21, 24, 40); round_pair(A, 22, 23, 25, 40)
        for k in range(4):
            A("v_mul_f32 %s, s59, %s" % (v(20 + k), v(20 + k)))
        A.nop(1)
        round_pair(A, 20, 21, 24, 40); round_pair(A, 22, 23, 25, 40)
        for k in range(4):
            A("v_add_f32 %s, %s, %s" % (v(20 + k), v(20 + k), v(40 + k)))
        A.nop(1)
        round_pair(A, 20, 21, 24, 40); round_pair(A, 22, 23, 25, 40)
        for k in range(4):
            A("v_add_f32 %s, %s, %s" % (v(20 + k), v(20 + k), v(36 + k)))
        A.nop(1)
        A("v_cvt_pk_bf16_f32 v24, v20, v21")
        A("v_cvt_pk_bf16_f32 v25, v22, v23")
        A("s_mov_b64 exec, vcc")
        A("buffer_store_dwordx2 v[24:25], v6, s[20:23], s60 offen")
        A("s_mov_b64 exec, -1")
        A.label(Ls)
    st_(A, 8, end=True)
    dbg_time(A, 2)
    if os.environ.get("CALD"):
        L = A.newlabel("cal")
        A.label(L)
        A("s_memrealtime s[96:97]")
        A("s_waitcnt lgkmcnt(0)")
        A("s_sub_u32 s96, s96, s100")
        A("s_cmp_lt_u32 s96, %d" % int(os.environ["CALD"]))
        A("s_cbranch_scc1 %s" % L)
    A("s_endpgm")

def gen_conv_wg(A):
    A("s_and_b32 s43, s42, 3")
    A("s_lshl_b32 s44, s41, 2")
    A("s_add_u32 s44, s44, s43")
    A("s_mul_i32 s45, s43, %d" % CH_LDS)
    Lm = A.newlabel("cm"); Lh = A.newlabel("ch"); Lj = A.newlabel("cj")
    dbg_time(A, 0)
    A("s_lshr_b32 s60, s41, 4")
    A("s_and_b32 s61, s41, 15")
    A("v_mov_b32 v200, 0"); A("v_mov_b32 v201, 0")
    A("s_cmp_ge_u32 s42, 4")
    A("s_cbranch_scc1 %s" % Lh)
    A("s_setprio 2")
    gen_kv_issue(A)
    gen_kv_addr(A)
    gen_kv_addr2(A)
    finish_tag(A)
    flags_barrier(A)
    A("s_branch %s" % Lj)
    A.label(Lh)
    gen_kv_addr(A)
    gen_kv_addr2(A)
    finish_tag(A)
    A.label(Lj)
    gen_kv_compute(A)
    publish_alive(A)
    A("s_barrier")
    A("s_cmp_lt_u32 s42, 4")
    A("s_cbranch_scc1 %s" % Lm)
    h_early_loads(A)
    gen_H(A)
    A.label(Lm)
    gen_M(A)

def finish_tag(A):
    A("s_waitcnt lgkmcnt(0)")
    A("s_mul_i32 s%d, s%d, 0x9E3779B1" % (TAG, TAG))
    A("s_add_u32 s%d, s%d, 0x7F4A7C15" % (TAG, TAG))

def flags_barrier(A, alive=False):
    A("v_mov_b32 v36, 0")
    A("v_mov_b32 v37, %d" % FLAGS)
    A("v_mov_b32 v38, 0"); A("v_mov_b32 v39, 0"); A("v_mov_b32 v40, 0"); A("v_mov_b32 v41, 0")
    A("ds_write_b128 v37, v[38:41]")
    A("ds_write_b128 v37, v[38:41] offset:16")
    A("s_waitcnt lgkmcnt(0)")

def publish_alive(A):
    Ln = A.newlabel("noalive")
    A("s_cmp_lg_u32 s42, 0")
    A("s_cbranch_scc1 %s" % Ln)
    A("s_lshl_b32 s63, s41, 2")
    A("s_add_u32 s63, s63, %d" % F_ALIVE)
    A("v_mov_b32 v37, s%d" % TAG)
    A("v_mov_b32 v36, 0")
    A("s_mov_b64 exec, 1")
    A("buffer_store_dword v37, v36, s[36:39], s63 offen sc1")
    A("s_mov_b64 exec, -1")
    A.label(Ln)


BITONIC8 = [(0,4),(1,5),(2,6),(3,7),(0,2),(1,3),(4,6),(5,7),(0,1),(2,3),(4,5),(6,7)]
def merge8(A, a, b, out, spare, dpp=None):
    for i in range(7, -1, -1):
        if dpp:
            A("v_max_u32_dpp %s, %s, %s %s bank_mask:0xf" % (v(out[i]), v(b[7 - i]), v(a[i]), dpp))
        else:
            A("v_max_u32 %s, %s, %s" % (v(out[i]), v(a[i]), v(b[7 - i])))
    return sort_desc(A, out, spare, BITONIC8)

def top8_wave(A, regs, spare, other):
    cur, oth = list(regs), list(other)
    for ctl in ("quad_perm:[1,0,3,2] row_mask:0xf", "quad_perm:[2,3,0,1] row_mask:0xf", "row_half_mirror row_mask:0xf",
                "row_mirror row_mask:0xf", "row_bcast:15 row_mask:0xa", "row_bcast:31 row_mask:0xc"):
        A.nop(1)
        free = list(cur)
        new, spare2 = merge8(A, cur, cur, oth, spare, dpp=ctl)
        pool = [r for r in (free + oth + [spare]) if r not in new]
        spare = pool[0]
        oth = pool[1:9]
        cur = new
    return cur, spare, oth

L_CNT = 162368

def lds_signal(A, k, vaddr, vone):
    A("s_mov_b64 exec, 1")
    A("ds_add_u32 %s, %s offset:%d" % (vaddr, vone, 4 * k))
    A("s_mov_b64 exec, -1")

def lds_wait(A, k, n, vaddr, vtmp, sleep=0):
    L = A.newlabel("lw"); Ld = A.newlabel("lwd")
    A("s_mov_b32 s52, 0")
    A.label(L)
    A("ds_read_b32 %s, %s offset:%d" % (vtmp, vaddr, 4 * k))
    A("s_add_u32 s52, s52, 1")
    A("s_waitcnt lgkmcnt(0)")
    A("s_cmp_gt_u32 s52, %d" % (POLL_MAX * 8))
    A("v_readfirstlane_b32 s51, %s" % vtmp)
    A("s_cbranch_scc1 %s" % Ld)
    A("s_nop 1")
    A("s_cmp_ge_u32 s51, %d" % n)
    A("s_cbranch_scc1 %s" % Ld)
    if sleep:
        A("s_sleep %d" % sleep)
    A("s_branch %s" % L)
    A.label(Ld)

def gen_moe_wg(A):
    T = "s%d" % TAG
    A("v_and_b32 v1, 63, v0")
    A("v_and_b32 v4, 255, v0")
    A("v_mov_b32 v8, %d" % L_CNT)
    A("v_mov_b32 v9, 1")
    Lt = A.newlabel("twave")
    A("s_cmp_ge_u32 s42, 4")
    A("s_cbranch_scc1 %s" % Lt)
    G, U, WD = 16, 88, 160
    A("v_mov_b32 v232, 0"); A("v_mov_b32 v233, 0"); A("v_mov_b32 v234, 0"); A("v_mov_b32 v235, 0")
    A("ds_write_b128 v8, v[232:235]"); A("ds_write_b128 v8, v[232:235] offset:16")
    srd(A, 48, PWG, D * F * 2)
    srd(A, 52, PWU, D * F * 2)
    srd(A, 56, PWD, D * F * 2)
    A("v_lshrrev_b32 v5, 3, v1")
    A("v_mul_u32_u24 v5, 9216, v5")
    A("v_bfe_u32 v6, v1, 4, 1")
    A("s_and_b32 s43, s42, 1")
    A("s_lshl_b32 s43, s43, 1")
    A("v_or_b32 v6, s43, v6")
    A("v_lshlrev_b32 v6, 1, v6")
    A("v_and_b32 v7, 7, v1")
    A("v_xor_b32 v6, v6, v7")
    A("v_lshl_add_u32 v5, v6, 4, v5")
    A("s_lshl_b32 s43, s41, 7")
    A("s_mul_i32 s44, s42, 73728")
    A("s_add_u32 s43, s43, s44")
    A("s_lshl_b32 s44, s42, 10")
    A("s_waitcnt lgkmcnt(0)")
    A("s_barrier")
    for j in range(18):
        A("s_mov_b32 m0, s44")
        A("s_add_u32 s45, s44, %d" % L_WU)
        A("buffer_load_dwordx4 v5, s[48:51], s43 offen lds" + NTS)
        A("s_mov_b32 m0, s45")
        A("s_add_u32 s44, s44, 4096")
        A("buffer_load_dwordx4 v5, s[52:55], s43 offen lds" + NTS)
        A("s_add_u32 s43, s43, %d" % (4 * 73728))
    A("v_lshrrev_b32 v6, 3, v4")
    A("v_mul_u32_u24 v7, 1152, v6")
    A("v_and_b32 v12, 7, v4")
    A("v_lshl_add_u32 v236, v12, 4, v7")
    A("v_bfe_u32 v14, v6, 1, 1")
    A("v_bfe_u32 v11, v6, 3, 1")
    A("v_lshl_add_u32 v14, v11, 1, v14")
    A("v_lshlrev_b32 v14, 1, v14")
    A("v_xor_b32 v14, v14, v12")
    A("v_lshl_add_u32 v14, v14, 4, v7")
    A("v_add_u32 v15, 36864, v14")
    A("v_and_b32 v2, 15, v0")
    A("v_bfe_u32 v3, v0, 4, 2")
    A("v_lshrrev_b32 v10, 2, v2")
    A("v_lshl_add_u32 v11, v3, 3, v10")
    A("v_bfe_u32 v12, v2, 3, 1")
    A("v_and_b32 v13, 1, v3")
    A("v_lshl_add_u32 v12, v13, 1, v12")
    A("v_xor_b32 v12, s42, v12")
    A("v_and_b32 v13, 3, v2")
    A("v_lshlrev_b32 v13, 3, v13")
    A("v_lshl_add_u32 v12, v12, 5, v13")
    A("v_lshl_add_u32 v5, v11, 7, v12")
    A("v_add_u32 v6, 36864, v5")
    A("v_mul_u32_u24 v7, 1152, v11")
    A("v_add_u32 v7, v7, v12")
    A("v_add_u32 v10, 36864, v7")
    st_(A, 1)
    A("v_add_u32 v12, %d, v5" % L_WU)
    A("v_add_u32 v13, %d, v6" % L_WU)
    nst = 1 if (common.STAMPS and not LIGHT) else 0
    A("v_lshrrev_b32 v232, 3, v1")
    A("v_mul_u32_u24 v232, 1152, v232")
    A("v_bfe_u32 v233, v1, 4, 1")
    A("s_and_b32 s43, s42, 1")
    A("s_lshl_b32 s43, s43, 1")
    A("v_or_b32 v233, s43, v233")
    A("v_lshlrev_b32 v233, 1, v233")
    A("v_and_b32 v234, 7, v1")
    A("v_xor_b32 v233, v233, v234")
    A("v_lshl_add_u32 v236, v233, 4, v232")
    def rd6(ph):
        for kk in range(6 * ph, 6 * ph + 6):
            bg, bu, ko = ("v5", "v12", kk) if kk < 9 else ("v6", "v13", kk - 9)
            A("ds_read_b64_tr_b16 %s, %s offset:%d" % (v(G + 4 * kk, 2), bg, 4096 * ko))
            A("ds_read_b64_tr_b16 %s, %s offset:%d" % (v(G + 4 * kk + 2, 2), bg, 4096 * ko + 512))
            A("ds_read_b64_tr_b16 %s, %s offset:%d" % (v(U + 4 * kk, 2), bu, 4096 * ko))
            A("ds_read_b64_tr_b16 %s, %s offset:%d" % (v(U + 4 * kk + 2, 2), bu, 4096 * ko + 512))
    A("s_waitcnt vmcnt(%d)" % (24 + nst))
    lds_signal(A, 0, "v8", "v9")
    lds_wait(A, 0, 4, "v8", "v11")
    rd6(0)
    A("s_waitcnt vmcnt(%d)" % (12 + nst))
    lds_signal(A, 7, "v8", "v9")
    lds_wait(A, 7, 4, "v8", "v11")
    rd6(1)
    A("s_waitcnt lgkmcnt(0)")
    lds_signal(A, 1, "v8", "v9")
    lds_wait(A, 1, 4, "v8", "v11")
    for half in range(2):
        A("s_mul_i32 s43, s41, 73728")
        A("s_mul_i32 s44, s42, 9216")
        A("s_add_u32 s43, s43, s44")
        if half:
            A("s_add_u32 s43, s43, 36864")
            A("s_add_u32 s44, s44, %d" % L_WU)
        for sg in range(9):
            A("s_mov_b32 m0, s44")
            A("s_add_u32 s44, s44, 1024")
            A("buffer_load_dwordx4 v236, s[56:59], s43 offen offset:%d lds" % 0 + NTS)
            A("s_add_u32 s43, s43, 128")
    A("s_waitcnt vmcnt(18)")
    lds_signal(A, 6, "v8", "v9")
    lds_wait(A, 6, 4, "v8", "v11")
    st_(A, 2)
    dbg_time(A, 7)
    rd6(2)
    st_(A, 7)
    A("v_lshrrev_b32 v232, 2, v2")
    A("v_mul_u32_u24 v14, 9216, v3")
    A("v_lshl_add_u32 v14, v232, 7, v14")
    A("v_bfe_u32 v233, v2, 3, 1")
    A("v_and_b32 v234, 1, v3")
    A("v_lshl_add_u32 v233, v234, 1, v233")
    A("v_xor_b32 v233, s42, v233")
    A("v_lshl_add_u32 v14, v233, 5, v14")
    A("v_and_b32 v234, 3, v2")
    A("v_lshl_add_u32 v14, v234, 3, v14")
    A("v_add_u32 v15, %d, v14" % L_WU)
    A("s_waitcnt vmcnt(0)")
    lds_signal(A, 2, "v8", "v9")
    lds_wait(A, 2, 4, "v8", "v11")
    for k in range(9):
        r = WD + 8 * k
        A("ds_read_b64_tr_b16 %s, v14 offset:%d" % (v(r, 2), 1024 * k))
        A("ds_read_b64_tr_b16 %s, v14 offset:%d" % (v(r + 2, 2), 1024 * k + 512))
        A("ds_read_b64_tr_b16 %s, v15 offset:%d" % (v(r + 4, 2), 1024 * k))
        A("ds_read_b64_tr_b16 %s, v15 offset:%d" % (v(r + 6, 2), 1024 * k + 512))
    A("v_and_b32 v12, 7, v2")
    A("v_mul_u32_u24 v5, %d, v12" % XSTR)
    A("v_lshl_add_u32 v5, v3, 4, v5")
    A("v_add_u32 v5, %d, v5" % L_X)
    A("v_mul_u32_u24 v6, %d, v2" % HSTR)
    A("v_lshl_add_u32 v6, v3, 3, v6")
    A("s_lshl_b32 s43, s42, 5")
    A("s_add_u32 s43, s43, %d" % L_HS)
    A("v_add_u32 v6, s43, v6")
    A("v_mul_u32_u24 v7, %d, v12" % HSTR)
    A("v_lshl_add_u32 v7, v3, 4, v7")
    A("v_add_u32 v7, %d, v7" % L_HS)
    A("v_mul_u32_u24 v10, 2304, v12")
    A("v_lshl_add_u32 v10, v3, 4, v10")
    A("v_bfe_u32 v13, v2, 3, 1")
    A("v_lshl_add_u32 v10, v13, 8, v10")
    A("v_cmp_eq_u32 s[56:57], 1, v13")
    A("s_mul_i32 s43, s41, 18432")
    A("s_lshl_b32 s44, s42, 6")
    A("s_add_u32 s43, s43, s44")
    A("s_add_u32 s43, s43, %d" % F_PARTG)
    A("v_mov_b32 v13, %d" % L_TAG)
    for i in range(8):
        A("v_mov_b32 %s, 0" % v(232 + i))
    A("s_waitcnt lgkmcnt(0)")
    st_(A, 3)
    dbg_time(A, 12)
    lds_wait(A, 4, 4, "v8", "v11")
    st_(A, 4)
    A("ds_read_b32 v12, v13")
    XR = 240
    for kk in range(3):
        A("ds_read_b128 %s, v5 offset:%d" % (v(XR + 4 * kk, 4), 64 * kk))
    for kk in range(18):
        if kk + 3 < 18:
            A("ds_read_b128 %s, v5 offset:%d" % (v(XR + 4 * ((kk + 3) % 4), 4), 64 * (kk + 3)))
        A("s_waitcnt lgkmcnt(%d)" % min(3, 17 - kk))
        x = v(XR + 4 * (kk % 4), 4)
        A("v_mfma_f32_16x16x32_bf16 v[232:235], %s, %s, v[232:235]" % (v(G + 4 * kk, 4), x))
        A("v_mfma_f32_16x16x32_bf16 v[236:239], %s, %s, v[236:239]" % (v(U + 4 * kk, 4), x))
    A("v_readfirstlane_b32 %s, v12" % T)
    A.nop(6)
    round_pair(A, 232, 233, 16, 40); round_pair(A, 234, 235, 17, 40)
    for i in range(4):
        A("v_mul_f32 %s, 0xbfb8aa3b, %s" % (v(20 + i), v(232 + i)))
    for i in range(4):
        A("v_exp_f32 %s, %s" % (v(20 + i), v(20 + i)))
    round_pair(A, 236, 237, 16, 40); round_pair(A, 238, 239, 17, 40)
    for i in range(4):
        A("v_add_f32 %s, 1.0, %s" % (v(20 + i), v(20 + i)))
    for i in range(4):
        A("v_rcp_f32 %s, %s" % (v(20 + i), v(20 + i)))
    A.nop(1)
    for i in range(4):
        A("v_mul_f32 %s, %s, %s" % (v(232 + i), v(232 + i), v(20 + i)))
    A.nop(1)
    round_pair(A, 232, 233, 16, 40); round_pair(A, 234, 235, 17, 40)
    for i in range(4):
        A("v_mul_f32 %s, %s, %s" % (v(232 + i), v(232 + i), v(236 + i)))
    A.nop(1)
    A("v_cvt_pk_bf16_f32 v16, v232, v233")
    A("v_cvt_pk_bf16_f32 v17, v234, v235")
    A("v_cmp_gt_u32 vcc, 8, v2")
    A("s_and_saveexec_b64 s[44:45], vcc")
    A("ds_write_b64 v6, v[16:17]")
    A("s_mov_b64 exec, s[44:45]")
    A("s_mov_b32 s58, 0xffffff00")
    A("s_movk_i32 s59, 0x80")
    A("s_waitcnt lgkmcnt(0)")
    lds_signal(A, 5, "v8", "v9")
    lds_wait(A, 5, 4, "v8", "v11")
    st_(A, 5)
    A("ds_read_b128 v[16:19], v7")
    A("ds_read_b128 v[20:23], v7 offset:64")
    A("s_waitcnt lgkmcnt(0)")
    AC = 88
    for k in range(9):
        r = WD + 8 * k
        A("v_mfma_f32_16x16x32_bf16 %s, %s, v[16:19], 0" % (v(AC + 4 * k, 4), v(r, 4)))
    for k in range(9):
        r = WD + 8 * k
        A("v_mfma_f32_16x16x32_bf16 %s, %s, v[20:23], %s" % (v(AC + 4 * k, 4), v(r + 4, 4), v(AC + 4 * k, 4)))
    A.nop(4)
    for kp in range(5):
        k = 2 * kp
        ac, ac2 = AC + 4 * k, AC + 4 * min(k + 1, 8)
        o = 24 + 8 * kp
        for i in range(4):
            A("v_cndmask_b32 %s, %s, %s, s[56:57]" % (v(o + i), v(ac + i), v(ac2 + i)))
        for i in range(4):
            A("v_add_u32 %s, s59, %s" % (v(o + i), v(o + i)))
        A("v_lshrrev_b32 %s, 24, %s" % (v(o + 4), v(o + 3)))
        A("v_lshrrev_b32 %s, 16, %s" % (v(o + 5), v(o + 3)))
        A("v_lshrrev_b32 %s, 8, %s" % (v(o + 6), v(o + 3)))
        for i in range(3):
            A("v_bfi_b32 %s, s58, %s, %s" % (v(o + 4 + i), v(o + i), v(o + 4 + i)))
        A("v_xor_b32 %s, %s, %s" % (v(o + 7), v(o + 4), v(o + 5)))
        A("v_xor_b32 %s, %s, %s" % (v(o + 7), v(o + 7), v(o + 6)))
        A("v_xor_b32 %s, %s, %s" % (v(o + 7), T, v(o + 7)))
        if kp == 4:
            A("s_andn2_b64 exec, exec, s[56:57]")
        A("buffer_store_dwordx4 %s, v10, s[36:39], s43 offen offset:%d sc1" % (v(o + 4, 4), 512 * kp))
    A("s_mov_b64 exec, -1")
    st_(A, 6, end=True)
    dbg_time(A, 3)
    A("s_endpgm")
    A.label(Lt)
    A("s_setprio 3")
    A("s_lshl_b32 s60, s41, 2")
    A("s_add_u32 s60, s60, s42")
    A("s_sub_u32 s60, s60, 4")
    Q, WR, X = gen_ln(A)
    A("s_barrier")
    finish_tag(A)
    gen_ln_compute(A, Q, WR, X)
    A("s_setprio %d" % int(os.environ.get("TPRIO", 1)))
    srd(A, 16, PQ, S * ROWB)
    A("v_and_b32 v1, 63, v0")
    A("v_and_b32 v4, 255, v0")
    A("v_mov_b32 v8, %d" % L_CNT)
    A("v_mov_b32 v9, 1")
    A("v_lshlrev_b32 v15, 2, v1")
    A("v_lshlrev_b32 v16, 4, v1")
    A("s_and_b32 s43, s42, 3")
    A("s_lshl_b32 s43, s43, 12")
    A("v_add_u32 v16, s43, v16")
    def key_loads():
        A("s_movk_i32 s43, %d" % F_KEYG)
        for i in range(4):
            A("buffer_load_dwordx4 %s, v16, s[36:39], s43 offen offset:%d sc1" % (v(40 + 4 * i, 4), 1024 * i))
    masked_poll(A, "key", key_loads, list(range(41, 56, 2)), int(os.environ.get("KEYSLEEP", 8)), int(os.environ.get("KEYPRE", 70)))
    A("s_setprio 3")
    st_(A, 3)
    dbg_time(A, 6)
    regs, sp = sort_desc(A, range(40, 56, 2), 41, SORT8)
    SK = 60
    free = [r for r in range(40, 57) if r not in regs and r != sp]
    cur, sp, oth = top8_wave(A, regs, sp, free[:8])
    for i in range(8):
        A("v_mov_b32 %s, %s" % (v(64 + i), v(cur[i])))
    A("s_and_b32 s43, s42, 3")
    A("s_lshl_b32 s43, s43, 5")
    A("s_add_u32 s43, s43, %d" % L_CAND)
    A("v_mov_b32 v16, s43")
    A("v_mov_b32 v31, %s" % T)
    A("v_mov_b32 v17, %d" % L_TAG)
    A("s_mov_b32 exec_lo, 0")
    A("s_mov_b32 exec_hi, 0x80000000")
    A("ds_write_b128 v16, v[64:67]")
    A("ds_write_b128 v16, v[68:71] offset:16")
    A("ds_write_b32 v17, v31")
    A("s_mov_b64 exec, -1")
    A("s_waitcnt lgkmcnt(0)")
    lds_signal(A, 3, "v8", "v9")
    lds_wait(A, 3, 4, "v8", "v11")
    A("v_mov_b32 v16, %d" % L_CAND)
    for i in range(8):
        A("ds_read_b128 %s, v16 offset:%d" % (v(64 + 4 * i, 4), 16 * i))
    A("s_waitcnt lgkmcnt(4)")
    c01, sp1 = merge8(A, list(range(64, 72)), list(range(72, 80)), list(range(40, 48)), 56)
    A("s_waitcnt lgkmcnt(0)")
    c23, sp2 = merge8(A, list(range(80, 88)), list(range(88, 96)), list(range(48, 56)), 57)
    for i in range(8):
        A("v_max_u32 %s, %s, %s" % (v(64 + i), v(c01[i]), v(c23[7 - i])))
    for i in range(8):
        A("v_readfirstlane_b32 %s, %s" % (s(SK + i), v(64 + i)))
    A.nop(3)
    st_(A, 5)
    A("s_and_b32 s45, s42, 3")
    A("s_mov_b32 s43, s60"); A("s_mov_b32 s44, s61")
    for w in range(1, 4):
        A("s_cmp_eq_u32 s45, %d" % w)
        A("s_cselect_b32 s43, %s, s43" % s(SK + 2 * w))
        A("s_cselect_b32 s44, %s, s44" % s(SK + 2 * w + 1))
    A("v_mov_b32 v16, s43"); A("v_mov_b32 v17, s44")
    A("v_cmp_lt_u32 vcc, 31, v1")
    A.nop(2)
    A("v_cndmask_b32 v16, v16, v17, vcc")
    A("v_and_b32 v16, 0xffff, v16")
    A("v_sub_u32 v16, 2047, v16")
    A("v_and_b32 v17, 31, v1")
    A("s_movk_i32 s43, 1152")
    A("v_mul_lo_u32 v18, v16, s43")
    A("v_lshl_add_u32 v18, v17, 2, v18")
    A("v_lshlrev_b32 v19, 3, v16")
    for i in range(9):
        A("buffer_load_dword %s, v18, s[16:19], 0 offen offset:%d" % (v(20 + i), 128 * i))
    def rg_loads():
        A("s_mov_b32 s43, %d" % F_ROWG)
        A("buffer_load_dwordx2 v[32:33], v19, s[36:39], s43 offen sc1")
    Lns = A.newlabel("nosel")
    A("s_cmp_lg_u32 s41, 0")
    A("s_cbranch_scc1 %s" % Lns)
    A("s_cmp_lg_u32 s42, 4")
    A("s_cbranch_scc1 %s" % Lns)
    for i in range(8):
        A("v_writelane_b32 v30, %s, %d" % (s(SK + i), i))
    A("v_lshlrev_b32 v36, 3, v1")
    A("s_movk_i32 s43, %d" % F_SELG)
    A("s_mov_b64 exec, 0xff")
    A("buffer_store_dwordx2 v[30:31], v36, s[36:39], s43 offen sc1")
    A("s_mov_b64 exec, -1")
    A.label(Lns)
    masked_poll(A, "rg", rg_loads, [33], 2, 0)
    stats_from_msd(A, 32, 64, 70)
    A("v_lshrrev_b32 v38, 5, v4")
    A("v_mul_u32_u24 v38, %d, v38" % XSTR)
    A("v_lshl_add_u32 v38, v17, 2, v38")
    A("v_add_u32 v38, %d, v38" % L_X)
    st_(A, 4)
    for i0 in range(0, 9, 3):
        streams = []
        for i in range(i0, i0 + 3):
            bs = 40 + 8 * (i % 3)
            ops = norm_ops(bs, bs + 2, bs + 4, 20 + i, 64)
            ops.append("v_cvt_pk_bf16_f32 %s, %s, %s" % (v(bs + 6), v(bs + 2), v(bs + 3)))
            ops.append("ds_write_b32 v38, %s offset:%d" % (v(bs + 6), 128 * i))
            streams.append(ops)
        interleave(A, streams)
    A("s_waitcnt lgkmcnt(0)")
    lds_signal(A, 4, "v8", "v9")
    st_(A, 6)
    dbg_time(A, 4)
    Le = A.newlabel("noep")
    A("s_cmp_lg_u32 s41, 0")
    A("s_cbranch_scc1 %s" % Le)
    A("s_cmp_lg_u32 s42, 4")
    A("s_cbranch_scc1 %s" % Le)
    A("s_setprio 0")
    A("v_lshlrev_b32 v16, 2, v1")
    A("v_min_u32 v17, 15, v1")
    A("v_lshlrev_b32 v17, 2, v17")
    def al_loads():
        A("s_movk_i32 s43, %d" % F_ALIVE)
        A("buffer_load_dword v20, v16, s[36:39], s43 offen sc1")
        A("buffer_load_dword v21, v16, s[36:39], s43 offen offset:256 sc1")
        A("buffer_load_dword v22, v17, s[36:39], s43 offen offset:512 sc1")
    masked_poll(A, "al", al_loads, [20, 21, 22], 16, 0)
    A("v_mov_b32 v20, %s" % T)
    A("v_mov_b32 v21, %d" % F_EPOCH)
    A("s_mov_b64 exec, 1")
    A("buffer_store_dword v20, v21, s[36:39], 0 offen sc1")
    A("s_mov_b64 exec, -1")
    A.label(Le)
    A("s_endpgm")

def gen_spare_wg(A):
    A("s_lshl_b32 s60, s41, 3")
    A("s_add_u32 s60, s60, s42")
    A("s_add_u32 s60, s60, 288")
    Lx = A.newlabel("spx")
    A("s_cmp_ge_u32 s60, 512")
    A("s_cbranch_scc1 %s" % Lx)
    Q, WR, X = gen_ln(A)
    finish_tag(A)
    gen_ln_compute(A, Q, WR, X)
    A.label(Lx)
    A("s_endpgm")

def gen_kernel(A, name):
    kernel_header(A, name)
    Ldone = A.newlabel("done"); Lmoe = A.newlabel("moe"); Lsp = A.newlabel("spare")
    A("s_getpc_b64 s[96:97]")
    if os.environ.get("CALD"):
        A("s_memrealtime s[100:101]")
    A("s_cmp_ge_u32 s2, 256")
    A("s_cbranch_scc1 %s" % Ldone)
    A("s_load_dwordx4 s[68:71], s[0:1], %d" % KA_DBG)
    A("s_load_dwordx16 s[72:87], s[0:1], 0")
    A("s_load_dwordx8 s[88:95], s[0:1], %d" % KA_WG)
    A("v_lshrrev_b32 v1, 6, v0")
    A("s_and_b32 s30, s2, 7")
    A("s_lshr_b32 s31, s2, 3")
    A("v_readfirstlane_b32 s42, v1")
    A("s_mov_b32 s40, 0xffff0000")
    if not os.environ.get("NOICPF"):
        Lc = A.newlabel("noic")
        A("s_and_b32 s96, s96, 0xffffff00")
        A("s_and_b32 s97, s97, 0xffff")
        A("s_mov_b32 s98, L_code_end-%s" % name)
        A("s_mov_b32 s99, 0x00020000")
        A("v_and_b32 v243, 63, v0")
        A("v_lshlrev_b32 v243, 4, v243")
        A("s_lshl_b32 s95, s31, 10") if False else None
        A("s_lshl_b32 s3, s31, 10")
        A("v_cmp_lt_u32 vcc, 447, v0")
        A("s_cbranch_vccz %s" % Lc)
        A("buffer_load_dwordx4 v[244:247], v243, s[96:99], s3 offen")
        A.label(Lc)
    A("s_waitcnt lgkmcnt(0)")
    A("s_load_dword s%d, s[%d:%d], %d" % (TAG, PWS, PWS + 1, F_EPOCH))
    srd(A, 36, PWS, WS_SIZE)
    A("s_lshl_b32 s3, s2, 3")
    A("s_add_u32 s3, s3, s42")
    st_(A, 0)
    ORD = os.environ.get("ORD", "B")
    if ORD == "A":
        c0, m0, p0 = 0, 18, 27
    else:
        c0, m0, p0 = 14, 5, 0
    A("s_sub_u32 s41, s31, %d" % m0)
    A("s_cmp_lt_u32 s41, 9")
    A("s_cbranch_scc1 %s" % Lmoe)
    A("s_sub_u32 s41, s31, %d" % p0)
    A("s_cmp_lt_u32 s41, 5")
    A("s_cbranch_scc1 %s" % Lsp)
    A("s_sub_u32 s31, s31, %d" % c0)
    A("s_mul_i32 s41, s30, 18")
    A("s_add_u32 s41, s41, s31")
    gen_conv_wg(A)
    A.label(Lmoe)
    A("s_mul_i32 s31, s30, 9")
    A("s_add_u32 s41, s41, s31")
    gen_moe_wg(A)
    A.label(Lsp)
    A("s_mul_i32 s31, s30, 5")
    A("s_add_u32 s41, s41, s31")
    gen_spare_wg(A)
    A.label(Ldone)
    A("s_endpgm")
    A.label("L_code_end")
    return kernel_desc(name, 256, 102, 256)
```

```python
from common import *
import common, os
from collections import deque
from conv2 import CS, CH_LDS, H_OFF, POLL_MAX, conv_schedule
from moe2 import wave_max_u32, L_WG, L_WU, L_X, L_HS, L_U, L_CAND, XSTR, HSTR
from moe3 import SORT8, sort_desc, rounds

F_EPOCH = 0x0
F_SELG = 0x100
F_ALIVE = 0x1000
F_KEYG = 0x2000
F_ROWG = 0x8000
F_LNF = 0x6000
F_URC = 0x100000 + 0x300000
F_UR = 0x20000
F_PARTG = 0x500000
F_XT = 0x800000
F_XC = 0x480000
L_TAG = 162304

PQ, PK, PV, PSHK, PSSMK, PSSMD, PWR, PWG, PWU, PWD, POUT, PWS = 72, 74, 76, 78, 80, 82, 86, 88, 90, 92, 94, 70
TAG = 46
QNT = '' if os.environ.get('QDEF') else ' nt'
NTS = '' if os.environ.get('NONT') else ' nt'
LIGHT = os.environ.get("STAMPS") == "2"
def st_(A, n, end=False):
    if LIGHT:
        if n != 0 and not end:
            return
        n = 15 if end else 0
    stamp(A, n, 36, 3, vt=254, st=96)

MISC = 4 * CH_LDS
FLAGS = MISC
SIDE = MISC + 64
RED = SIDE + 256
YOFF = H_OFF
W1, W0 = 20, 28
E_, G_, F_ = 36, 44, 50
UREG = 56
RING, NR, ACC, BS = 64, 6, 88, 120

DBGT = bool(os.environ.get("DBGT"))
def dbg_time(A, slot, invert=False):
    if not DBGT:
        return
    L = A.newlabel("dbgs")
    A("s_and_b32 s100, s42, 3")
    A("s_cmp_lg_u32 s100, 0")
    A("s_cbranch_scc1 %s" % L)
    A("s_cmp_eq_u32 s2, %d" % (8 if os.environ.get("ORD", "B") == "A" else 120))
    A("s_cselect_b32 s100, 1, 0")
    A("s_cmp_eq_u32 s2, %d" % (152 if os.environ.get("ORD", "B") == "A" else 48))
    A("s_cselect_b32 s100, 1, s100")
    A("s_cmp_eq_u32 s100, 0")
    A("s_cbranch_scc1 %s" % L)
    A("s_memrealtime s[96:97]")
    A("s_waitcnt lgkmcnt(0)")
    A("v_mov_b32 v252, s96")
    A("v_mov_b32 v253, %d" % (4 * slot))
    A("s_mov_b64 s[98:99], exec")
    A("s_mov_b64 exec, 1")
    A("global_store_dword v253, v252, s[68:69]")
    A("s_mov_b64 exec, s[98:99]")
    A.label(L)

DRY = os.environ.get("DRY", "0") != "0"
class TwoPass:
    def __init__(self, A, name):
        self.A = A
        self.L = A.newlabel(name + "b"); self.Lo = A.newlabel(name + "o"); self.Lt = A.newlabel(name + "t")
    def begin(self, transition):
        A = self.A
        self.transition = transition
        if DRY:
            A("s_mov_b32 s12, 0")
            A("s_mov_b64 exec, 0")
        else:
            transition()
        A.label(self.L)
    def guard_begin(self):
        if not DRY: return None
        l = self.A.newlabel("gd")
        self.A("s_cmp_eq_u32 s12, 0")
        self.A("s_cbranch_scc1 %s" % l)
        return l
    def guard_end(self, l):
        if l: self.A.label(l)
    def end(self):
        A = self.A
        if DRY:
            A("s_cmp_eq_u32 s12, 1")
            A("s_cbranch_scc1 %s" % self.Lo)
            A("s_mov_b32 s12, 1")
            A("s_mov_b64 exec, -1")
            self.transition()
            A("s_branch %s" % self.L)
            A.label(self.Lo)

def poll_head(A, cnt="s52"):
    A("s_mov_b32 %s, 0" % cnt)

def poll_tail(A, Lloop, Ldone, cnt="s52", sleep=1):
    A("s_add_u32 %s, %s, 1" % (cnt, cnt))
    A("s_cmp_gt_u32 %s, %d" % (cnt, POLL_MAX))
    A("s_cbranch_scc1 %s" % Ldone)
    A("s_sleep %d" % sleep)
    A("s_branch %s" % Lloop)

def masked_poll(A, name, emit_loads, tagregs, sleep, pre_sleep=0, full_exec="-1"):
    T = "s%d" % TAG
    Lp = A.newlabel(name + "p"); Ld = A.newlabel(name + "ok")
    if pre_sleep:
        A("s_sleep %d" % pre_sleep)
    A("s_mov_b32 s52, 0")
    A.label(Lp)
    emit_loads()
    A("s_waitcnt vmcnt(0)")
    A("v_cmp_eq_u32 vcc, %s, %s" % (T, v(tagregs[0])))
    for r in tagregs[1:]:
        A("v_cmp_eq_u32 s[54:55], %s, %s" % (T, v(r)))
        A("s_and_b64 vcc, vcc, s[54:55]")
    A("s_andn2_b64 exec, exec, vcc")
    A("s_cbranch_scc0 %s" % Ld)
    A("s_add_u32 s52, s52, 1")
    A("s_cmp_gt_u32 s52, %d" % POLL_MAX)
    A("s_cbranch_scc1 %s" % Ld)
    A("s_sleep %d" % sleep)
    A("s_branch %s" % Lp)
    A.label(Ld)
    A("s_mov_b64 exec, %s" % full_exec)

def first_then_poll(A, name, emit_loads, tagregs, sleep, ex, first_cnt=0):
    T = "s%d" % TAG
    Lp = A.newlabel(name + "p"); Ld = A.newlabel(name + "ok")
    A("s_mov_b32 s52, 0")
    A("s_waitcnt vmcnt(%d)" % first_cnt)
    A.label(Lp)
    A("v_cmp_eq_u32 vcc, %s, %s" % (T, v(tagregs[0])))
    for r in tagregs[1:]:
        A("v_cmp_eq_u32 s[54:55], %s, %s" % (T, v(r)))
        A("s_and_b64 vcc, vcc, s[54:55]")
    A("s_andn2_b64 exec, exec, vcc")
    A("s_cbranch_scc0 %s" % Ld)
    A("s_add_u32 s52, s52, 1")
    A("s_cmp_gt_u32 s52, %d" % POLL_MAX)
    A("s_cbranch_scc1 %s" % Ld)
    A("s_sleep %d" % sleep)
    emit_loads()
    A("s_waitcnt vmcnt(0)")
    A("s_branch %s" % Lp)
    A.label(Ld)
    A("s_mov_b64 exec, -1")

def ln_hint_poll(A, vaddr, r0, sleep, pre):
    def loads():
        A("s_movk_i32 s51, %d" % F_LNF)
        A("buffer_load_dwordx4 %s, %s, s[36:39], s51 offen sc1" % (v(r0, 4), vaddr))
        A("buffer_load_dwordx4 %s, %s, s[36:39], s51 offen offset:1024 sc1" % (v(r0 + 4, 4), vaddr))
    masked_poll(A, "lnh", loads, list(range(r0, r0 + 8)), sleep, pre)

def stats_from_msd(A, g, st, t):
    A("v_and_b32 %s, s40, %s" % (v(st + 4), v(g)))
    A("v_lshlrev_b32 %s, 16, %s" % (v(st), v(g)))
    A("v_rcp_f32 %s, %s" % (v(st + 2), v(st + 4)))
    A("v_xor_b32 %s, 0x80000000, %s" % (v(st), v(st)))
    A("v_xor_b32 %s, 0x80000000, %s" % (v(st + 4), v(st + 4)))
    A("v_fma_f32 %s, %s, %s, 1.0" % (v(t), v(st + 4), v(st + 2)))
    A("v_mov_b32 %s, %s" % (v(st + 1), v(st)))
    A("v_fma_f32 %s, %s, %s, %s" % (v(st + 2), v(t), v(st + 2), v(st + 2)))
    A("v_mov_b32 %s, %s" % (v(st + 5), v(st + 4)))
    A("v_mov_b32 %s, %s" % (v(st + 3), v(st + 2)))

LK, LV, LQ, SG, SX, SGS = 0, 17408, 33792, 50176, 67584, 272

def row_xor_reduce(A, regs):
    for ctl in ("quad_perm:[1,0,3,2]", "quad_perm:[2,3,0,1]", "row_half_mirror", "row_mirror"):
        if len(regs) < 3:
            A.nop(3 - len(regs))
        for r in regs:
            A("v_xor_b32_dpp %s, %s, %s %s row_mask:0xf bank_mask:0xf" % (v(r), v(r), v(r), ctl))

def gen_kv_issue(A):
    srd(A, 48, PK, S * ROWB)
    srd(A, 52, PV, S * ROWB)
    A("v_and_b32 v1, 63, v0")
    A("v_lshrrev_b32 v4, 3, v1")
    A("v_mul_u32_u24 v4, 1152, v4")
    A("v_and_b32 v5, 7, v1")
    A("v_lshl_add_u32 v4, v5, 4, v4")
    A("s_mul_i32 s62, s61, %d" % (128 * 1152))
    A("s_lshl_b32 s63, s60, 7")
    A("s_add_u32 s62, s62, s63")
    A("s_mul_i32 s63, s42, 9216")
    A("s_add_u32 s62, s62, s63")
    A("s_sub_u32 s63, s62, 9216")
    A("s_lshl_b32 s64, s42, 10")
    srd(A, 16, PQ, S * ROWB)
    for i in range(4):
        A("s_mov_b32 m0, s64")
        A("s_add_u32 s65, s64, %d" % LV)
        A("buffer_load_dwordx4 v4, s[48:51], s63 offen lds" + NTS)
        A("s_mov_b32 m0, s65")
        A("s_add_u32 s65, s64, %d" % LQ)
        A("buffer_load_dwordx4 v4, s[52:55], s62 offen lds" + NTS)
        A("s_mov_b32 m0, s65")
        A("s_add_u32 s64, s64, 4096")
        A("buffer_load_dwordx4 v4, s[16:19], s62 offen lds" + NTS)
        A("s_add_u32 s63, s63, %d" % (32 * 1152))
        A("s_add_u32 s62, s62, %d" % (32 * 1152))
    Ln = A.newlabel("nok17")
    A("s_cmp_lg_u32 s42, 0")
    A("s_cbranch_scc1 %s" % Ln)
    A("s_mov_b32 m0, s64")
    A("s_nop 0")
    A("buffer_load_dwordx4 v4, s[48:51], s63 offen lds" + NTS)
    A.label(Ln)

def gen_kv_addr(A):
    srd(A, 56, PSHK, D * 8)
    A("v_and_b32 v2, 31, v0")
    A("s_lshl_b32 s63, s60, 9")
    A("v_lshl_add_u32 v29, v2, 4, s63")
    A("buffer_load_dwordx4 v[32:35], v29, s[56:59], 0 offen")

def gen_kv_addr2(A):
    A("v_lshrrev_b32 v3, 5, v0")
    A("v_lshlrev_b32 v6, 10, v3")
    A("v_lshl_add_u32 v6, v2, 2, v6")
    A("v_mul_u32_u24 v7, %d, v2" % (2 * SGS))
    A("v_sub_u32 v8, 15, v3")
    A("v_lshl_add_u32 v7, v8, 4, v7")
    A("v_add_u32 v7, %d, v7" % SG)
    A("v_bfe_u32 v10, v0, 4, 2")
    A("v_and_b32 v11, 15, v0")
    A("v_mul_u32_u24 v8, %d, v10" % SGS)
    A("v_lshl_add_u32 v8, v11, 4, v8")
    A("s_mul_i32 s63, s42, %d" % (8 * SGS))
    A("s_add_u32 s63, s63, %d" % SG)
    A("v_add_u32 v8, s63, v8")
    A("v_lshlrev_b32 v9, 12, v10")
    A("v_lshl_add_u32 v9, v11, 4, v9")
    A("s_lshl_b32 s63, s60, 6")
    A("s_lshl_b32 s64, s42, 3")
    A("s_add_u32 s63, s63, s64")
    A("s_lshl_b32 s65, s63, 12")
    A("s_lshl_b32 s64, s61, 8")
    A("s_sub_u32 s65, s65, s64")
    A("s_add_u32 s65, s65, %d" % (F_UR + 240 * 16))
    A("v_add_u32 v9, s65, v9")
    A("v_lshlrev_b32 v12, 7, v10")
    A("s_lshl_b32 s65, s63, 7")
    A("s_lshl_b32 s64, s61, 3")
    A("s_sub_u32 s65, s65, s64")
    A("s_add_u32 s65, s65, %d" % (F_URC + 120))
    A("v_add_u32 v12, s65, v12")
    A("v_cmp_eq_u32 s[66:67], 0, v11")
    A("v_mul_u32_u24 v13, %d, v2" % (2 * SGS))
    A("v_lshl_add_u32 v13, v3, 4, v13")
    A("v_add_u32 v13, %d, v13" % SX)
    A("v_lshlrev_b32 v48, 12, v10")
    A("v_lshl_add_u32 v48, v11, 4, v48")
    A("s_lshl_b32 s65, s63, 12")
    A("s_lshl_b32 s64, s61, 8")
    A("s_add_u32 s65, s65, s64")
    A("s_add_u32 s65, s65, %d" % F_XT)
    A("v_add_u32 v48, s65, v48")
    A("v_lshlrev_b32 v49, 7, v10")
    A("s_lshl_b32 s65, s63, 7")
    A("s_lshl_b32 s64, s61, 3")
    A("s_add_u32 s65, s65, s64")
    A("s_add_u32 s65, s65, %d" % F_XC)
    A("v_add_u32 v49, s65, v49")

def gen_kv_compute(A):
    def trans():
        A("s_waitcnt vmcnt(0)")
        A("s_barrier")
        st_(A, 1)
        dbg_time(A, 8)
    tp = TwoPass(A, "kv")
    tp.begin(trans)
    for i in range(11):
        A("ds_read_b32 %s, v6 offset:%d" % (v(14 + i), LK + (5 + i) * 128))
    for i in range(8):
        A("ds_read_b32 %s, v6 offset:%d" % (v(40 + i), LV + i * 128))
    for i in range(8):
        A("ds_read_b32 %s, v6 offset:%d" % (v(144 + i), LQ + i * 128))
    A("v_lshlrev_b32 v54, 16, v32"); A("v_lshlrev_b32 v55, 16, v34")
    A("v_and_b32 v56, s40, v32");    A("v_and_b32 v57, s40, v34")
    A("v_lshlrev_b32 v58, 16, v33"); A("v_lshlrev_b32 v59, 16, v35")
    A("v_and_b32 v60, s40, v33");    A("v_and_b32 v61, s40, v35")
    DOT = bool(os.environ.get("DOT2", "1") != "0")
    W, K, KV = 54, 62, 100
    A("s_mov_b32 s64, 0x05040100"); A("s_mov_b32 s65, 0x07060302")
    if DOT:
        A("v_and_b32 v62, 0xffff, v32"); A("v_lshlrev_b32 v63, 16, v34")
        A("v_lshrrev_b32 v64, 16, v32"); A("v_and_b32 v65, s40, v34")
        A("v_and_b32 v66, 0xffff, v33"); A("v_lshlrev_b32 v67, 16, v35")
        A("v_lshrrev_b32 v68, 16, v33"); A("v_and_b32 v69, s40, v35")
        A("v_mov_b32 v70, 0x3f803f80")
        A("v_mov_b32 v71, 0")
        A("s_waitcnt lgkmcnt(0)")
        for j in range(4):
            A("v_perm_b32 %s, %s, %s, s64" % (v(152 + j), v(144 + 2 * j + 1), v(144 + 2 * j)))
            A("v_perm_b32 %s, %s, %s, s65" % (v(156 + j), v(144 + 2 * j + 1), v(144 + 2 * j)))
        A("ds_write_b128 v13, v[152:155]")
        A("ds_write_b128 v13, v[156:159] offset:%d" % SGS)
        def ch_ops(i, c, t0):
            a_, b_, p_, q_ = t0, t0 + 1, t0 + 2, t0 + 3
            o = []
            d2 = lambda d, x, y, z: "v_dot2_f32_bf16 %s, %s, %s, %s" % (v(d), v(x), v(y), z)
            o.append(d2(a_, 14 + i + 0, 62 + 2 * 3 + c, "0"))
            o.append(d2(b_, 14 + i + 1, 62 + 2 * 2 + c, "0"))
            o.append(d2(q_, 14 + i + 2, 62 + 2 * 1 + c, "0"))
            o.append("v_cvt_pk_bf16_f32 %s, %s, %s" % (v(p_), v(a_), v(b_)))
            o.append(d2(b_, 14 + i + 3, 62 + 2 * 0 + c, "0"))
            o.append(d2(a_, p_, 70, "0"))
            o.append("s_nop 0")
            o.append("v_cvt_pk_bf16_f32 %s, %s, %s" % (v(p_), v(a_), v(q_)))
            o.append("s_nop 0")
            o.append(d2(a_, p_, 70, "0"))
            o.append("s_nop 0")
            o.append("v_cvt_pk_bf16_f32 %s, %s, %s" % (v(p_), v(a_), v(b_)))
            o.append("s_nop 0")
            o.append(d2(a_, p_, 70, "0"))
            o.append("s_nop 0")
            if c == 0:
                o.append("v_cvt_pk_bf16_f32 %s, %s, %s" % (v(p_), v(a_), v(71)))
            else:
                o.append("v_cvt_pk_bf16_f32 %s, %s, %s" % (v(p_), v(71), v(a_)))
            o.append("s_nop 0")
            o.append(d2(KV + 2 * i + c, p_, 40 + i, "0"))
            return [x for x in o if x != "s_nop 0"]
        for i in range(0, 8, 4):
            streams = []
            for ii in range(4):
                for c in range(2):
                    streams.append(ch_ops(i + ii, c, 72 + 4 * (2 * ii + c) if (2 * ii + c) < 7 else 132))
            interleave(A, streams)
        A.nop(3)
        for c in range(2):
            for j in range(4):
                A("v_cvt_pk_bf16_f32 %s, %s, %s" % (v(116 + 4 * c + j), v(KV + 2 * (7 - 2 * j) + c), v(KV + 2 * (6 - 2 * j) + c)))
    else:
        A("s_waitcnt lgkmcnt(15)")
        for i in range(11):
            unpack_pair(A, K + 2 * i, K + 2 * i + 1, 14 + i, 40)
        A("s_waitcnt lgkmcnt(0)")
        for j in range(4):
            A("v_perm_b32 %s, %s, %s, s64" % (v(152 + j), v(144 + 2 * j + 1), v(144 + 2 * j)))
            A("v_perm_b32 %s, %s, %s, s65" % (v(156 + j), v(144 + 2 * j + 1), v(144 + 2 * j)))
        A("ds_write_b128 v13, v[152:155]")
        A("ds_write_b128 v13, v[156:159] offset:%d" % SGS)
        def pr_(r):
            return "v[%d:%d]" % (r, r + 1)
        def row_ops(i, acc, tmp, t3):
            P = Asm()
            P("v_pk_mul_f32 %s, %s, %s" % (pr_(acc), pr_(K + 2 * (i + 0)), pr_(W + 6)))
            round_pair(P, acc, acc + 1, t3, 40)
            for t in range(1, 4):
                P("v_pk_mul_f32 %s, %s, %s" % (pr_(tmp), pr_(K + 2 * (i + t)), pr_(W + 2 * (3 - t))))
                round_pair(P, tmp, tmp + 1, t3, 40)
                P("v_pk_add_f32 %s, %s, %s" % (pr_(acc), pr_(acc), pr_(tmp)))
                round_pair(P, acc, acc + 1, t3, 40)
            unpack_pair(P, tmp, tmp + 1, 40 + i, 40)
            P("v_pk_mul_f32 %s, %s, %s" % (pr_(KV + 2 * i), pr_(acc), pr_(tmp)))
            return [l.strip() for l in P.lines]
        for i in range(0, 8, 4):
            interleave(A, [row_ops(i, 84, 86, 88), row_ops(i + 1, 90, 92, 94), row_ops(i + 2, 132, 134, 136), row_ops(i + 3, 138, 140, 142)])
        for c in range(2):
            for j in range(4):
                A("v_cvt_pk_bf16_f32 %s, %s, %s" % (v(116 + 4 * c + j), v(KV + 2 * (7 - 2 * j) + c), v(KV + 2 * (6 - 2 * j) + c)))
    A("ds_write_b128 v7, v[116:119]")
    A("ds_write_b128 v7, v[120:123] offset:%d" % SGS)
    A("s_waitcnt lgkmcnt(0)")
    tp.end()
    A("s_barrier")
    A("ds_read_b128 v[116:119], v8")
    A("ds_read_b128 v[120:123], v8 offset:%d" % (4 * SGS))
    A("s_movk_i32 s63, 16384")
    A("s_waitcnt lgkmcnt(1)")
    A("buffer_store_dwordx4 v[116:119], v9, s[36:39], 0 offen sc1")
    A("v_xor_b32 v124, v116, v117"); A("v_xor_b32 v126, v118, v119")
    A("s_waitcnt lgkmcnt(0)")
    A("buffer_store_dwordx4 v[120:123], v9, s[36:39], s63 offen sc1")
    A("v_xor_b32 v125, v120, v121"); A("v_xor_b32 v127, v122, v123")
    A("v_xor_b32 v124, v124, v126"); A("v_xor_b32 v125, v125, v127")
    row_xor_reduce(A, [124, 125])
    A("v_xor_b32 v128, s%d, v124" % TAG); A("v_xor_b32 v130, s%d, v125" % TAG)
    A("v_mov_b32 v129, s%d" % TAG); A("v_mov_b32 v131, s%d" % TAG)
    A("s_mov_b64 exec, s[66:67]")
    A("buffer_store_dwordx2 v[128:129], v12, s[36:39], 0 offen sc1")
    A("buffer_store_dwordx2 v[130:131], v12, s[36:39], 0 offen offset:512 sc1")
    A("s_mov_b64 exec, -1")
    A("ds_read_b128 v[116:119], v8 offset:%d" % (SX - SG))
    A("ds_read_b128 v[120:123], v8 offset:%d" % (SX - SG + 4 * SGS))
    A("s_waitcnt lgkmcnt(1)")
    A("buffer_store_dwordx4 v[116:119], v48, s[36:39], 0 offen sc1")
    A("v_xor_b32 v124, v116, v117"); A("v_xor_b32 v126, v118, v119")
    A("s_waitcnt lgkmcnt(0)")
    A("buffer_store_dwordx4 v[120:123], v48, s[36:39], s63 offen sc1")
    A("v_xor_b32 v125, v120, v121"); A("v_xor_b32 v127, v122, v123")
    A("v_xor_b32 v124, v124, v126"); A("v_xor_b32 v125, v125, v127")
    row_xor_reduce(A, [124, 125])
    A("v_xor_b32 v128, s%d, v124" % TAG); A("v_xor_b32 v130, s%d, v125" % TAG)
    A("s_mov_b64 exec, s[66:67]")
    A("buffer_store_dwordx2 v[128:129], v49, s[36:39], 0 offen sc1")
    A("buffer_store_dwordx2 v[130:131], v49, s[36:39], 0 offen offset:512 sc1")
    A("s_mov_b64 exec, -1")
    st_(A, 2)

def gen_ln(A, two=False):
    srd(A, 48, PQ, S * ROWB)
    srd(A, 56, PWR, D * 2)
    A("v_and_b32 v1, 63, v0")
    A("v_and_b32 v2, 15, v0")
    A("v_lshrrev_b32 v3, 4, v1")
    A("s_lshl_b32 s61, s60, 2")
    A("v_add_u32 v30, s61, v3")
    A("s_movk_i32 s62, 1152")
    A("v_mul_lo_u32 v6, v30, s62")
    A("v_lshl_add_u32 v6, v2, 3, v6")
    A("v_lshlrev_b32 v7, 3, v2")
    Q, WR, X = 64, 84, 104
    for i in range(9):
        A("buffer_load_dwordx2 %s, v6, s[48:51], 0 offen offset:%d" % (v(Q + 2 * i, 2), 128 * i) + QNT)
    for i in range(9):
        A("buffer_load_dwordx2 %s, v7, s[56:59], 0 offen offset:%d" % (v(WR + 2 * i, 2), 128 * i))
    if two:
        A("s_mov_b32 s62, %d" % (1024 * 1152))
        for i in range(9):
            A("buffer_load_dwordx2 %s, v6, s[48:51], s62 offen offset:%d" % (v(144 + 2 * i, 2), 128 * i))
    return Q, WR, X

def gen_ln_compute(A, Q, WR, X, extra=0, first_wait=None):
    def trans():
        A("s_waitcnt vmcnt(%d)" % extra)
        st_(A, 1)
    tp = TwoPass(A, "ln")
    tp.begin(trans)
    for i in range(18):
        unpack_pair(A, X + 2 * i, X + 2 * i + 1, Q + i, 40)
    A("v_pk_add_f32 v[8:9], %s, %s" % (v(X, 2), v(X + 2, 2)))
    A("v_pk_add_f32 v[10:11], %s, %s" % (v(X + 4, 2), v(X + 6, 2)))
    for i in range(4, 18, 2):
        A("v_pk_add_f32 v[8:9], v[8:9], %s" % v(X + 2 * i, 2))
        A("v_pk_add_f32 v[10:11], v[10:11], %s" % v(X + 2 * i + 2, 2))
    A("v_pk_add_f32 v[8:9], v[8:9], v[10:11]")
    A.nop(1)
    A("v_add_f32 v8, v8, v9")
    allreduce16_add(A, 8)
    A("v_mul_f32 v8, 0x3ae38e39, v8")
    A("v_sub_f32 v12, 0, v8")
    A("v_sub_f32 v13, 0, v8")
    for r in (14, 15, 16, 17):
        A("v_mov_b32 %s, 0" % v(r))
    for i in range(0, 18, 2):
        A("v_pk_add_f32 v[18:19], %s, v[12:13]" % v(X + 2 * i, 2))
        A("v_pk_add_f32 v[20:21], %s, v[12:13]" % v(X + 2 * i + 2, 2))
        A("v_pk_fma_f32 v[14:15], v[18:19], v[18:19], v[14:15]")
        A("v_pk_fma_f32 v[16:17], v[20:21], v[20:21], v[16:17]")
    A("v_pk_add_f32 v[14:15], v[14:15], v[16:17]")
    A.nop(1)
    A("v_add_f32 v14, v14, v15")
    allreduce16_add(A, 14)
    A("v_mul_f32 v14, 0x3ae38e39, v14")
    A.nop(1)
    round_pair(A, 8, 14, 9, 40)
    A("v_add_f32 v14, 0x3727c5ac, v14")
    A.nop(1)
    A("v_cvt_pk_bf16_f32 v9, v14, v14")
    A("v_lshlrev_b32 v14, 16, v9")
    A("v_sqrt_f32 v14, v14")
    A.nop(1)
    A("v_cvt_pk_bf16_f32 v9, v14, v14")
    A("v_lshlrev_b32 v14, 16, v9")
    A("v_rcp_f32 v15, v14")
    A.nop(1)
    A("v_fma_f32 v16, -v14, v15, 1.0")
    A("v_fma_f32 v15, v16, v15, v15")
    A("v_sub_f32 v12, 0, v8"); A("v_sub_f32 v13, 0, v8")
    A("v_mov_b32 v16, v15"); A("v_mov_b32 v17, v15")
    for r in (22, 23, 24, 25):
        A("v_mov_b32 %s, 0" % v(r))
    def ops(i, tm, acc):
        x0 = X + 2 * i
        P = Asm()
        P("v_pk_add_f32 %s, %s, v[12:13]" % (v(x0, 2), v(x0, 2)))
        round_pair(P, x0, x0 + 1, tm, 40)
        P("v_pk_mul_f32 %s, %s, v[16:17]" % (v(x0, 2), v(x0, 2)))
        round_pair(P, x0, x0 + 1, tm, 40)
        unpack_pair(P, tm + 2, tm + 3, WR + i, 40)
        P("v_pk_fma_f32 %s, %s, %s, %s" % (v(acc, 2), v(x0, 2), v(tm + 2, 2), v(acc, 2)))
        return [l.strip() for l in P.lines]
    for i in range(0, 18, 2):
        interleave(A, [ops(i, 26, 22), ops(i + 1, 32, 24)])
    A("v_pk_add_f32 v[22:23], v[22:23], v[24:25]")
    A.nop(1)
    A("v_add_f32 v22, v22, v23")
    allreduce16_add(A, 22)
    A.nop(1)
    A("v_cvt_pk_bf16_f32 v23, v22, v22")
    A("v_lshlrev_b32 v23, 16, v23")
    A("v_ashrrev_i32 v24, 31, v23")
    A("v_or_b32 v24, 0x80000000, v24")
    A("v_xor_b32 v23, v23, v24")
    A("v_and_b32 v23, s40, v23")
    A("v_sub_u32 v24, 2047, v30")
    A("v_or_b32 v26, v23, v24")
    A("v_mov_b32 v27, s%d" % TAG)
    A("v_cvt_pk_bf16_f32 v32, v8, v14")
    A("v_mov_b32 v33, s%d" % TAG)
    A("v_lshlrev_b32 v28, 3, v30")
    A("s_movk_i32 s61, %d" % F_KEYG)
    A("s_mov_b32 s62, %d" % F_ROWG)
    tp.end()
    A("v_cmp_eq_u32 vcc, 0, v2")
    A("s_and_saveexec_b64 s[64:65], vcc")
    A("buffer_store_dwordx2 v[26:27], v28, s[36:39], s61 offen sc1")
    A("buffer_store_dwordx2 v[32:33], v28, s[36:39], s62 offen sc1")
    A("s_mov_b64 exec, s[64:65]")
    st_(A, 2)

def load_verified_runs(A, pay_soff, chk_soff, vlane16, vchk8, vhint8, P, pre, sleep):
    C, Tm = P + 16, P + 20
    def hint_loads():
        A("buffer_load_dwordx2 %s, %s, s[36:39], %s offen sc1" % (v(C, 2), vhint8, chk_soff))
    masked_poll(A, "vh", hint_loads, [C + 1], sleep, pre)
    Lp = A.newlabel("vp"); Ld = A.newlabel("vok")
    A("s_mov_b32 s52, 0")
    A.label(Lp)
    for i in range(4):
        A("buffer_load_dwordx4 %s, %s, s[36:39], %s offen offset:%d sc1" % (v(P + 4 * i, 4), vlane16, pay_soff, 1024 * i))
    for i in range(4):
        A("buffer_load_dword %s, %s, s[36:39], %s offen offset:%d sc1" % (v(C + i), vchk8, chk_soff, 32 * i))
    A("s_waitcnt vmcnt(0)")
    for i in range(4):
        A("v_xor_b32 %s, %s, %s" % (v(Tm + i), v(P + 4 * i), v(P + 1 + 4 * i)))
    for i in range(4):
        A("v_xor_b32 %s, %s, %s" % (v(Tm + 4 + i), v(P + 2 + 4 * i), v(P + 3 + 4 * i)))
    for i in range(4):
        A("v_xor_b32 %s, %s, %s" % (v(Tm + i), v(Tm + i), v(Tm + 4 + i)))
    row_xor_reduce(A, [Tm, Tm + 1, Tm + 2, Tm + 3])
    for i in range(4):
        A("v_xor_b32 %s, %s, %s" % (v(Tm + i), v(Tm + i), v(C + i)))
    A("v_cmp_eq_u32 vcc, s%d, %s" % (TAG, v(Tm)))
    for i in range(1, 4):
        A("v_cmp_eq_u32 s[54:55], s%d, %s" % (TAG, v(Tm + i)))
        A("s_and_b64 vcc, vcc, s[54:55]")
    A("s_cmp_eq_u64 vcc, -1")
    A("s_cbranch_scc1 %s" % Ld)
    A("s_add_u32 s52, s52, 1")
    A("s_cmp_gt_u32 s52, %d" % POLL_MAX)
    A("s_cbranch_scc1 %s" % Ld)
    A("s_sleep 2")
    A("s_branch %s" % Lp)
    A.label(Ld)

def build_ops(W, N, off):
    ops = []
    for k in range(7):
        ops.append("v_alignbit_b32 %s, %s, %s, 16" % (v(E_ + k), v(W + k + 1), v(W + k)))
    ops.append("ds_write_b128 v11, %s offset:%d" % (v(W + 2, 4), 4 * CS + off))
    for k in range(3):
        ops.append("v_pk_mov_b32 %s, %s, %s op_sel:[1,0]" % (v(G_ + 2 * k, 2), v(W + 2 * k, 2), v(W + 2 * k + 2, 2)))
    ops.append("ds_write_b128 v11, %s offset:%d" % (v(E_, 4), 1 * CS + off))
    ops.append("ds_write_b128 v11, %s offset:%d" % (v(E_ + 2, 4), 5 * CS + off))
    for k in range(3):
        ops.append("v_pk_mov_b32 %s, %s, %s op_sel:[1,0]" % (v(F_ + 2 * k, 2), v(E_ + 2 * k, 2), v(E_ + 2 * k + 2, 2)))
    ops.append("ds_write_b128 v11, %s offset:%d" % (v(G_, 4), 2 * CS + off))
    ops.append("ds_write_b128 v11, %s offset:%d" % (v(G_ + 2, 4), 6 * CS + off))
    ops.append("s_nop 0")
    ops.append("ds_write_b128 v11, %s offset:%d" % (v(F_, 4), 3 * CS + off))
    ops.append("ds_write_b128 v11, %s offset:%d" % (v(F_ + 2, 4), 7 * CS + off))
    return ops

def gen_partial_gather(A):
    T = "s%d" % TAG
    A("v_and_b32 v5, 255, v0")
    A("v_and_b32 v1, 63, v0")
    A("v_and_b32 v12, 7, v5")
    A("v_mul_u32_u24 v12, 2304, v12")
    A("v_lshrrev_b32 v13, 3, v5")
    A("v_mul_u32_u24 v14, 18432, v13")
    A("v_add_u32 v12, v12, v14")
    A("s_lshl_b32 s51, s41, 4")
    A("s_add_u32 s51, s51, %d" % F_PARTG)
    A("v_add_u32 v12, s51, v12")
    A("v_add_u32 v14, %d, v12" % (64 * 18432))
    A("v_cmp_gt_u32 vcc, 8, v13")
    A.nop(2)
    A("v_cndmask_b32 v14, v12, v14, vcc")
    A("s_mov_b64 s[56:57], vcc")
    def part_loads():
        A("s_mov_b32 s51, %d" % (32 * 18432))
        A("buffer_load_dwordx4 v[160:163], v12, s[36:39], 0 offen sc1")
        A("buffer_load_dwordx4 v[164:167], v12, s[36:39], s51 offen sc1")
        A("buffer_load_dwordx4 v[168:171], v14, s[36:39], 0 offen sc1")
    Lp = A.newlabel("ppp"); Ld = A.newlabel("ppok")
    if int(os.environ.get("PPPRE", 0)):
        A("s_sleep %d" % int(os.environ.get("PPPRE", 0)))
    A("s_mov_b32 s52, 0")
    A.label(Lp)
    part_loads()
    A("s_waitcnt vmcnt(0)")
    for i in range(3):
        b = 160 + 4 * i
        A("v_xor_b32 %s, %s, %s" % (v(172 + i), v(b), v(b + 1)))
        A("v_xor_b32 %s, %s, %s" % (v(176 + i), v(b + 2), v(b + 3)))
    for i in range(3):
        A("v_xor_b32 %s, %s, %s" % (v(172 + i), v(172 + i), v(176 + i)))
    A("v_cmp_eq_u32 vcc, %s, v172" % T)
    for r in (173, 174):
        A("v_cmp_eq_u32 s[54:55], %s, %s" % (T, v(r)))
        A("s_and_b64 vcc, vcc, s[54:55]")
    A("s_andn2_b64 exec, exec, vcc")
    A("s_cbranch_scc0 %s" % Ld)
    A("s_add_u32 s52, s52, 1")
    A("s_cmp_gt_u32 s52, %d" % POLL_MAX)
    A("s_cbranch_scc1 %s" % Ld)
    A("s_sleep %d" % int(os.environ.get("PPSLEEP", 6)))
    A("s_branch %s" % Lp)
    A.label(Ld)
    A("s_mov_b64 exec, -1")
    st_(A, 8)
    dbg_time(A, 10)
    A("s_mov_b32 s58, 0xffffff00")
    A("s_mov_b32 s59, 0x0c0c0004")
    for i in range(3):
        b = 160 + 4 * i
        o = 20 + 4 * i
        A("v_lshlrev_b32 %s, 24, %s" % (v(o + 3), v(b)))
        A("v_and_b32 %s, 0xff, %s" % (v(176), v(b + 1)))
        A("v_and_b32 %s, 0xff, %s" % (v(177), v(b + 2)))
        A("v_lshl_or_b32 %s, %s, 16, %s" % (v(o + 3), v(176), v(o + 3)))
        A("v_lshl_or_b32 %s, %s, 8, %s" % (v(o + 3), v(177), v(o + 3)))
        for k in range(3):
            A("v_and_b32 %s, s58, %s" % (v(o + k), v(b + k)))
    for k in range(4):
        A("v_cndmask_b32 %s, 0, %s, s[56:57]" % (v(28 + k), v(28 + k)))
    for k in range(4):
        A("v_add_f32 %s, %s, %s" % (v(20 + k), v(20 + k), v(24 + k)))
    for k in range(4):
        A("v_add_f32 %s, %s, %s" % (v(20 + k), v(20 + k), v(28 + k)))
    A.nop(1)
    for k in range(4):
        A("v_add_f32_dpp %s, %s, %s row_ror:8 row_mask:0xf bank_mask:0xf" % (v(24 + k), v(20 + k), v(20 + k)))
    for k in range(4):
        A("v_mov_b32 %s, %s" % (v(28 + k), v(24 + k)))
    A.nop(1)
    for k in range(4):
        A("v_permlane16_swap_b32 %s, %s" % (v(24 + k), v(28 + k)))
    A.nop(1)
    for k in range(4):
        A("v_add_f32 %s, %s, %s" % (v(24 + k), v(24 + k), v(28 + k)))
    for k in range(4):
        A("v_mov_b32 %s, %s" % (v(28 + k), v(24 + k)))
    A.nop(1)
    for k in range(4):
        A("v_permlane32_swap_b32 %s, %s" % (v(24 + k), v(28 + k)))
    A.nop(1)
    for k in range(4):
        A("v_add_f32 %s, %s, %s" % (v(24 + k), v(24 + k), v(28 + k)))
    A("v_lshlrev_b32 v18, 4, v1")
    A("s_lshl_b32 s51, s43, 7")
    A("s_add_u32 s51, s51, %d" % RED)
    A("v_add_u32 v18, s51, v18")
    A("s_mov_b64 exec, 0xff")
    A("ds_write_b128 v18, v[24:27]")
    A("s_mov_b64 exec, -1")
    A("s_waitcnt lgkmcnt(0)")
    A("v_mov_b32 v11, %d" % FLAGS)
    A("v_mov_b32 v12, 1")
    lds_signal(A, 5, "v11", "v12")

def gen_M(A):
    A("s_setprio %d" % int(os.environ.get("MPRIO", 2)))
    srd(A, 32, PSSMK, D * S * 2)
    A("v_and_b32 v1, 63, v0")
    A("v_lshlrev_b32 v4, 4, v1")
    A("s_add_u32 s56, s45, %d" % (H_OFF + 512))
    A("s_lshl_b32 s57, s44, 12")
    A("s_mov_b32 m0, s56")
    A("s_lshl_b32 s51, s44, 1")
    for i in range(4):
        A("buffer_load_dwordx4 v4, s[32:35], s57 offen offset:%d lds" % (1024 * i) + NTS)
    A("s_add_u32 s56, s56, 4096")
    A("s_add_u32 s57, s57, 4096")
    A("s_mov_b32 m0, s56")
    A("s_mov_b64 exec, 0x3")
    A("buffer_load_dwordx4 v4, s[32:35], s57 offen lds" + NTS)
    A("s_mov_b64 exec, -1")
    A("s_and_b32 s52, s51, 0xfffffffc")
    A("s_add_u32 s54, s%d, s52" % PSSMD)
    A("s_addc_u32 s55, s%d, 0" % (PSSMD + 1))
    A("s_load_dword s53, s[54:55], 0")
    A("v_and_b32 v2, 15, v0")
    A("v_bfe_u32 v3, v0, 4, 2")
    A("v_mov_b32 v12, 0"); A("v_mov_b32 v13, 0"); A("v_mov_b32 v14, 0"); A("v_mov_b32 v15, 0")
    A("v_add_u32 v11, s45, v4")
    A("s_mov_b32 exec_hi, 0")
    A("ds_write_b128 v11, v[12:15] offset:%d" % H_OFF)
    A("s_mov_b64 exec, 0x3")
    for c in range(8):
        pass
    A("ds_write_b128 v11, v[12:15]")
    A("s_mov_b64 exec, 0xf")
    A("ds_write_b128 v11, v[12:15] offset:%d" % (258 * 16))
    A("s_mov_b64 exec, -1")
    A("v_lshlrev_b32 v5, 5, v2")
    A("v_lshl_add_u32 v5, v3, 4, v5")
    A("v_add_u32 v5, s45, v5")
    A("v_add_u32 v5, %d, v5" % H_OFF)
    A("v_and_b32 v8, 7, v2")
    A("v_sub_u32 v8, 7, v8")
    A("v_mul_u32_u24 v8, %d, v8" % CS)
    A("v_lshrrev_b32 v6, 3, v2")
    A("v_sub_u32 v6, v3, v6")
    A("v_lshlrev_b32 v6, 4, v6")
    A("v_add_u32 v8, v8, v6")
    A("v_add_u32 v8, 16, v8")
    A("v_add_u32 v9, s45, v8")
    A("v_lshlrev_b32 v6, 5, v2")
    A("v_lshl_add_u32 v6, v3, 3, v6")
    A("v_sub_u32 v7, %d, v6" % (4120 - 3584))
    A("v_add_u32 v7, s45, v7")
    A("v_add_u32 v6, s45, v6")
    A("v_add_u32 v6, %d, v6" % YOFF)
    A("s_lshl_b32 s49, s43, 2")
    A("s_add_u32 s49, s49, %d" % FLAGS)
    A("v_mov_b32 v10, s49")
    for i in range(32):
        A("v_mov_b32 %s, 0" % v(ACC + i))
    A("s_lshl_b32 s48, s44, 12")
    A("s_add_u32 s48, s48, %d" % F_UR)
    A("v_lshlrev_b32 v16, 3, v3")
    A("s_lshl_b32 s50, s44, 7")
    A("s_add_u32 s50, s50, %d" % F_URC)
    A("v_and_b32 v17, 15, v1")
    A("v_lshlrev_b32 v17, 3, v17")
    def hint_loads():
        A("buffer_load_dwordx2 v[136:137], v17, s[36:39], s50 offen sc1")
    if os.environ.get("URHINT"):
        masked_poll(A, "urh", hint_loads, [137], int(os.environ.get("URSLEEP", 4)), int(os.environ.get("URPRE", 8)))
    else:
        A("s_sleep %d" % int(os.environ.get("URPRE", 24)))
    Lp = A.newlabel("urp"); Ld = A.newlabel("urok")
    A("s_mov_b32 s52, 0")
    A.label(Lp)
    for i in range(4):
        A("buffer_load_dwordx4 %s, v4, s[36:39], s48 offen offset:%d sc1" % (v(120 + 4 * i, 4), 1024 * i))
    for i in range(4):
        A("buffer_load_dword %s, v16, s[36:39], s50 offen offset:%d sc1" % (v(136 + i), 32 * i))
    A("s_waitcnt vmcnt(0)")
    for i in range(4):
        A("v_xor_b32 %s, %s, %s" % (v(140 + i), v(120 + 4 * i), v(121 + 4 * i)))
    for i in range(4):
        A("v_xor_b32 %s, %s, %s" % (v(144 + i), v(122 + 4 * i), v(123 + 4 * i)))
    for i in range(4):
        A("v_xor_b32 %s, %s, %s" % (v(140 + i), v(140 + i), v(144 + i)))
    row_xor_reduce(A, [140, 141, 142, 143])
    for i in range(4):
        A("v_xor_b32 %s, %s, %s" % (v(140 + i), v(140 + i), v(136 + i)))
    A("v_cmp_eq_u32 vcc, s%d, v140" % TAG)
    for i in range(1, 4):
        A("v_cmp_eq_u32 s[54:55], s%d, %s" % (TAG, v(140 + i)))
        A("s_and_b64 vcc, vcc, s[54:55]")
    A("s_cmp_eq_u64 vcc, -1")
    A("s_cbranch_scc1 %s" % Ld)
    A("s_add_u32 s52, s52, 1")
    A("s_cmp_gt_u32 s52, %d" % POLL_MAX)
    A("s_cbranch_scc1 %s" % Ld)
    A("s_sleep %d" % int(os.environ.get("URSLEEP", 6)))
    A("s_branch %s" % Lp)
    A.label(Ld)
    st_(A, 3)
    dbg_time(A, 5)
    A("s_setprio %d" % int(os.environ.get("MPRIO2", 0)))
    for i in range(4):
        A("ds_write_b128 v11, %s offset:%d" % (v(120 + 4 * i, 4), 32 + 1024 * i))
    A("s_waitcnt lgkmcnt(0)")
    for (W, off) in ((152, 4096), (160, 3072), (168, 2048), (W1, 1024), (W0, 0)):
        A("ds_read_b128 %s, v11 offset:%d" % (v(W, 4), off))
        A("ds_read_b128 %s, v11 offset:%d" % (v(W + 4, 4), off + 16))
    A("s_waitcnt lgkmcnt(8)")
    A("s_mov_b64 exec, 0x1f")
    for o in build_ops(152, 0, 4096): A(o)
    A("s_mov_b64 exec, -1")
    A("s_waitcnt lgkmcnt(11)")
    for o in build_ops(160, 0, 3072): A(o)
    A("s_waitcnt lgkmcnt(14)")
    for o in build_ops(168, 0, 2048): A(o)
    A("s_waitcnt lgkmcnt(0)")
    st_(A, 4)
    hi_steps, lo_frags, lo_slot, lo_steps = conv_schedule()
    def bslot(sl):
        return v(BS + 4 * sl, 4)
    order, seen = [], set()
    for q, lst in hi_steps:
        for t, sl in lst:
            if sl not in seen:
                seen.add(sl); order.append(sl)
    aseq = [q for q in range(33)] + [q for q in range(65)]
    issued = []
    def issue(tag, txt):
        A(txt); issued.append(tag)
    def wait_for(tags):
        idx = max(len(issued) - 1 - issued[::-1].index(t) for t in tags)
        n = len(issued) - 1 - idx
        A("s_waitcnt lgkmcnt(%d)" % min(n, 15))
    def a_issue(k):
        issue(("A", k), "ds_read_b128 %s, v9 offset:%d" % (v(RING + 4 * (k % NR), 4), 64 * (64 - aseq[k])))
    def b_issue(sl):
        issue(("B", sl), "ds_read_b128 %s, v5 offset:%d" % (bslot(sl), 64 * (56 - sl + 8)))
    fill = deque()
    cnt = [0]
    def emit_fill(k):
        while k > 0 and fill:
            f = fill.popleft(); f(); cnt[0] += 1; k -= 1
    def add_plain(txt):
        if txt.startswith("ds_"):
            fill.append(lambda txt=txt: issue(("W",), txt))
        else:
            fill.append(lambda txt=txt: A(txt))
    a_issue(0)
    for sl in order[:5]:
        b_issue(sl)
    nextA = 1
    for k in range(1, NR):
        a_issue(nextA); nextA += 1
        b_issue(order[5 + k - 1])
    nextB = 5 + (NR - 1)
    A("s_and_b32 s52, s51, 2")
    A("s_lshl_b32 s52, s52, 3")
    A("s_lshr_b32 s53, s53, s52")
    A("s_lshl_b32 s53, s53, 16")
    A("v_mov_b32 v18, s53"); A("v_mov_b32 v19, s53")
    n = 0
    fu = {}
    for q, lst in hi_steps:
        for t, sl in lst:
            fu.setdefault(sl, q)
    for q, lst in hi_steps:
        while nextB < len(order) and fu[order[nextB]] <= q + 3:
            b_issue(order[nextB]); nextB += 1
        wait_for([("A", n)] + [("B", sl) for _, sl in lst])
        for t, sl in lst:
            A("v_mfma_f32_16x16x32_bf16 %s, %s, %s, %s" % (v(ACC + 4 * t, 4), v(RING + 4 * (n % NR), 4), bslot(sl), v(ACC + 4 * t, 4)))
        if nextA < len(aseq):
            a_issue(nextA); nextA += 1
        if q < 32:
            issue(("L", q), "ds_read_b128 %s, v5 offset:%d" % (bslot(q), 64 * (lo_frags[q] + 8)))
        n += 1
    st_(A, 5)
    def tile_epilogue(t):
        u0 = UREG + 2 * (t % 2)
        ac = ACC + 4 * t
        fill.append(lambda: wait_for([("U", t)] + ([("L", 31)] if t == 0 else [])))
        P = Asm()
        P("v_and_b32 v12, s40, %s" % v(u0 + 1))
        P("v_lshlrev_b32 v13, 16, %s" % v(u0 + 1))
        P("v_and_b32 v14, s40, %s" % v(u0))
        P("v_lshlrev_b32 v15, 16, %s" % v(u0))
        P("v_pk_mul_f32 v[12:13], v[12:13], v[18:19]")
        P("v_pk_mul_f32 v[14:15], v[14:15], v[18:19]")
        round_pair(P, 12, 13, 16, 40)
        round_pair(P, 14, 15, 17, 40)
        round_pair(P, ac, ac + 1, 16, 40)
        round_pair(P, ac + 2, ac + 3, 17, 40)
        P("v_pk_add_f32 v[12:13], v[12:13], %s" % v(ac, 2))
        P("v_pk_add_f32 v[14:15], v[14:15], %s" % v(ac + 2, 2))
        P("v_cvt_pk_bf16_f32 v16, v12, v13")
        P("v_cvt_pk_bf16_f32 v17, v14, v15")
        for l in P.lines:
            add_plain(l.strip())
        fill.append(lambda: issue(("Y", t), "ds_write_b64 v6, v[16:17] offset:%d" % (512 * t)))
        fill.append(lambda: A("v_mov_b32 v8, %d" % (t + 1)))
        for _ in range(3):
            fill.append(lambda: None)
        fill.append(lambda: wait_for([("Y", t)]))
        fill.append(lambda: issue(("F", t), "ds_write_b32 v10, v8"))
    for o in build_ops(W1, 0, 1024): add_plain(o)
    n1 = len(fill)
    for o in build_ops(W0, 0, 0): add_plain(o)
    n0 = len(fill)
    for q, lst in lo_steps:
        wait_for([("A", n)] + [("L", sl) for _, sl in lst])
        k = len(lst)
        per = int(os.environ.get('FPER', 2)) if k >= 2 else 1
        for i, (t, sl) in enumerate(lst):
            A("v_mfma_f32_16x16x32_bf16 %s, %s, %s, %s" % (v(ACC + 4 * t, 4), v(RING + 4 * (n % NR), 4), bslot(sl), v(ACC + 4 * t, 4)))
            if i < k - 1 or k == 1:
                emit_fill(per)
        if nextA < len(aseq):
            qq = aseq[nextA]
            if nextA >= 33 and qq >= 33:
                assert cnt[0] >= n1
            if nextA >= 33 and qq >= 49:
                assert cnt[0] >= n0
            a_issue(nextA); nextA += 1
        n += 1
        if q % 8 == 4:
            t = q // 8
            issue(("U", t), "ds_read_b64 %s, v7 offset:%d" % (v(UREG + 2 * (t % 2), 2), 512 * (7 - t)))
        if q >= 9 and (q - 9) % 8 == 0 and (q - 9) // 8 < 7:
            tile_epilogue((q - 9) // 8)
    A.nop(4)
    st_(A, 6)
    tile_epilogue(7)
    emit_fill(1000)
    st_(A, 7)
    dbg_time(A, 1)
    gen_partial_gather(A)
    st_(A, 9, end=True)
    A("s_endpgm")

XQ = 208
def h_early_loads(A):
    srd(A, 16, PQ, S * ROWB)
    A("v_and_b32 v201, 255, v0")
    A("s_movk_i32 s63, 1152")
    A("v_mul_lo_u32 v200, v201, s63")
    A("s_lshl_b32 s63, s41, 3")
    A("v_add_u32 v200, s63, v200")
    return 8

def strip_loads(A):
    h_early_loads(A)
    if os.environ.get("NOSTRIP"):
        for t in range(8):
            A("s_nop 0")
            A("buffer_load_dwordx2 %s, v1, s[16:19], 0 offen" % v(XQ + 2 * t, 2))
        return
    A("s_mov_b32 s63, 0")
    for t in range(8):
        A("buffer_load_dwordx2 %s, v200, s[16:19], s63 offen" % v(XQ + 2 * t, 2))
        A("s_add_u32 s63, s63, %d" % (256 * 1152))

def q_prefetch(A):
    srd(A, 16, PQ, S * ROWB)
    Ln = A.newlabel("noqpf")
    A("v_and_b32 v202, 15, v0")
    A("v_bfe_u32 v203, v0, 4, 2")
    A("v_mul_u32_u24 v203, 1152, v203")
    A("v_lshl_add_u32 v202, v202, 4, v203")
    A("s_mul_i32 s63, s30, 144")
    A("s_and_b32 s63, s63, 0xffffff80")
    A("s_min_u32 s64, s31, 15")
    A("s_lshl_b32 s64, s64, 7")
    A("s_sub_u32 s65, s42, 4")
    A("s_lshl_b32 s65, s65, 5")
    A("s_add_u32 s64, s64, s65")
    A("s_mul_i32 s64, s64, 1152")
    A("s_add_u32 s63, s63, s64")
    for i in range(8):
        A("buffer_load_dwordx4 v[204:207], v202, s[16:19], s63 offen")
        A("s_add_u32 s63, s63, %d" % (4 * 1152))

def gen_H(A):
    srd(A, 20, POUT, S * ROWB)
    T = "s%d" % TAG
    A("v_and_b32 v1, 63, v0")
    A("v_mov_b32 v5, v201")
    A("v_mov_b32 v6, v200")
    A("v_lshlrev_b32 v7, 3, v5")
    RG = 160
    X, XN, T1 = 64, 96, 128
    A("s_setprio %d" % int(os.environ.get("HPRIO", 1)))
    for r in range(32):
        A("v_mov_b32 %s, 0" % v(X + r))
    A("v_lshlrev_b32 v8, 4, v1")
    A("v_lshrrev_b32 v9, 4, v1")
    A("v_lshlrev_b32 v9, 3, v9")
    A("s_lshl_b32 s48, s44, 12")
    A("s_add_u32 s48, s48, %d" % F_XT)
    A("s_lshl_b32 s50, s44, 7")
    A("s_add_u32 s50, s50, %d" % F_XC)
    P, C, Tm = 224, 240, 244
    A("s_sleep %d" % int(os.environ.get("ROWPRE", 32)))
    Lp = A.newlabel("hp"); Ld = A.newlabel("hok")
    A("s_mov_b32 s52, 0")
    A.label(Lp)
    for i in range(4):
        A("buffer_load_dwordx4 %s, v8, s[36:39], s48 offen offset:%d sc1" % (v(P + 4 * i, 4), 1024 * i))
    for i in range(4):
        A("buffer_load_dword %s, v9, s[36:39], s50 offen offset:%d sc1" % (v(C + i), 32 * i))
    for t in range(8):
        A("s_mov_b32 s51, %d" % (F_ROWG + 2048 * t))
        A("buffer_load_dwordx2 %s, v7, s[36:39], s51 offen sc1" % v(RG + 2 * t, 2))
    A("s_waitcnt vmcnt(8)")
    for i in range(4):
        A("v_xor_b32 %s, %s, %s" % (v(Tm + i), v(P + 4 * i), v(P + 1 + 4 * i)))
    for i in range(4):
        A("v_xor_b32 %s, %s, %s" % (v(Tm + 4 + i), v(P + 2 + 4 * i), v(P + 3 + 4 * i)))
    for i in range(4):
        A("v_xor_b32 %s, %s, %s" % (v(Tm + i), v(Tm + i), v(Tm + 4 + i)))
    row_xor_reduce(A, [Tm, Tm + 1, Tm + 2, Tm + 3])
    for i in range(4):
        A("v_xor_b32 %s, %s, %s" % (v(Tm + i), v(Tm + i), v(C + i)))
    A("v_cmp_eq_u32 vcc, s%d, %s" % (TAG, v(Tm)))
    for i in range(1, 4):
        A("v_cmp_eq_u32 s[54:55], s%d, %s" % (TAG, v(Tm + i)))
        A("s_and_b64 vcc, vcc, s[54:55]")
    A("s_waitcnt vmcnt(0)")
    for r in range(RG + 1, RG + 16, 2):
        A("v_cmp_eq_u32 s[54:55], s%d, %s" % (TAG, v(r)))
        A("s_and_b64 vcc, vcc, s[54:55]")
    A("s_cmp_eq_u64 vcc, -1")
    A("s_cbranch_scc1 %s" % Ld)
    A("s_add_u32 s52, s52, 1")
    A("s_cmp_gt_u32 s52, %d" % POLL_MAX)
    A("s_cbranch_scc1 %s" % Ld)
    A("s_sleep %d" % int(os.environ.get("ROWSLEEP", 8)))
    A("s_branch %s" % Lp)
    A.label(Ld)
    st_(A, 10)
    A("v_mov_b32 v11, %d" % FLAGS)
    A("v_mov_b32 v12, 1")
    lds_signal(A, 4, "v11", "v12")
    lds_wait(A, 4, 4, "v11", "v13", sleep=1)
    st_(A, 2 + 7)
    A("v_lshlrev_b32 v8, 1, v5")
    A("s_lshl_b32 s48, s41, 14")
    A("s_add_u32 s48, s48, %d" % F_XT)
    for c in range(4):
        for t in range(8):
            A("buffer_load_short_d16_hi %s, v8, s[36:39], s48 offen offset:%d sc1" % (v(X + 4 * t + c), 512 * t))
        A("s_add_u32 s48, s48, 4096")
    for t in range(8):
        stats_from_msd(A, RG + 2 * t, 176 + 6 * t, 40)
    A("s_waitcnt vmcnt(0)")
    st_(A, 3)
    for t in range(8):
        st = 176 + 6 * t
        streams = []
        for p in range(2):
            x, xn = X + 4 * t + 2 * p, XN + 4 * t + 2 * p
            tm = 56 + 4 * p
            P = Asm()
            P("v_pk_add_f32 %s, %s, %s" % (v(tm, 2), v(x, 2), v(st, 2)))
            round_pair(P, tm, tm + 1, tm + 2, 40)
            P("v_pk_mul_f32 %s, %s, %s" % (v(xn, 2), v(tm, 2), v(st + 2, 2)))
            P("v_pk_fma_f32 %s, %s, %s, %s" % (v(tm, 2), v(xn, 2), v(st + 4, 2), v(tm, 2)))
            P("v_pk_fma_f32 %s, %s, %s, %s" % (v(xn, 2), v(tm, 2), v(st + 2, 2), v(xn, 2)))
            round_pair(P, xn, xn + 1, tm + 2, 40)
            streams.append([l.strip() for l in P.lines])
        interleave(A, streams)
    st_(A, 4)
    dbg_time(A, 11)
    A("v_lshlrev_b32 v9, 1, v5")
    A("v_add_u32 v9, %d, v9" % YOFF)
    A("v_add_u32 v10, %d, v9" % (2 * CH_LDS))
    A("v_mov_b32 v11, %d" % FLAGS)
    for i in range(4):
        A("v_mov_b32 %s, 0" % v(40 + i))
    A("v_and_b32 v8, 7, v1")
    A("v_lshlrev_b32 v8, 3, v8")
    def sel_loads():
        A("s_movk_i32 s51, %d" % F_SELG)
        A("buffer_load_dwordx2 v[180:181], v8, s[36:39], s51 offen sc1")
    sel_loads_m = sel_loads
    A("s_mov_b32 s59, 0")
    A("s_setprio %d" % int(os.environ.get("HPRIO2", 0)))
    for t in range(8):
        Lw = A.newlabel("yw"); Lg = A.newlabel("yg")
        A("s_cmp_gt_u32 s59, %d" % t)
        A("s_cbranch_scc1 %s" % Lg)
        A("s_mov_b32 s52, 0")
        A.label(Lw)
        A("ds_read_b128 v[16:19], v11")
        A("s_add_u32 s52, s52, 1")
        A("s_waitcnt lgkmcnt(0)")
        A("v_min_u32 v16, v16, v17")
        A("v_min3_u32 v16, v16, v18, v19")
        A("s_cmp_gt_u32 s52, %d" % POLL_MAX)
        A("v_readfirstlane_b32 s59, v16")
        A("s_cbranch_scc1 %s" % Lg)
        A("s_nop 1")
        A("s_cmp_gt_u32 s59, %d" % t)
        A("s_cbranch_scc1 %s" % Lg)
        A("s_sleep 1")
        A("s_branch %s" % Lw)
        A.label(Lg)
        if os.environ.get("HST") and t in (0, 2, 4, 7):
            st_(A, {0: 11, 2: 12, 4: 13, 7: 14}[t])
        A("ds_read_u16_d16_hi v40, v9 offset:%d" % (512 * t))
        A("ds_read_u16_d16_hi v41, v9 offset:%d" % (512 * t + CH_LDS))
        A("ds_read_u16_d16_hi v42, v10 offset:%d" % (512 * t))
        A("ds_read_u16_d16_hi v43, v10 offset:%d" % (512 * t + CH_LDS))
        A("s_waitcnt lgkmcnt(0)")
        streams = []
        for p in range(2):
            x, xn, t1 = X + 4 * t + 2 * p, XN + 4 * t + 2 * p, T1 + 4 * t + 2 * p
            tm = 56 + 4 * p
            P = Asm()
            P("v_pk_mul_f32 %s, %s, %s" % (v(tm, 2), v(xn, 2), v(40 + 2 * p, 2)))
            round_pair(P, tm, tm + 1, tm + 2, 40)
            P("v_pk_add_f32 %s, %s, %s" % (v(t1, 2), v(x, 2), v(tm, 2)))
            round_pair(P, t1, t1 + 1, tm + 2, 40)
            P("v_pk_add_f32 %s, %s, %s" % (v(tm, 2), v(t1, 2), v(xn, 2)))
            P("v_cvt_pk_bf16_f32 %s, %s, %s" % (v(44 + 2 * (t % 2) + p), v(tm), v(tm + 1)))
            streams.append([l.strip() for l in P.lines])
        interleave(A, streams)
        A("s_mov_b32 s51, %d" % (t * 256 * 1152))
        A("buffer_store_dwordx2 %s, v6, s[20:23], s51 offen" % v(44 + 2 * (t % 2), 2) + os.environ.get("OUTPOL", ""))
        if t == 5:
            sel_loads()
    st_(A, 5)
    dbg_time(A, 9)
    first_then_poll(A, "sel", sel_loads_m, [181], 4, "-1", first_cnt=2)
    A("v_lshrrev_b32 v45, 16, v180")
    A("v_and_b32 v46, 0x8000, v45")
    A("v_mov_b32 v47, 0xffff")
    A("v_mov_b32 v48, 0x8000")
    A("v_cmp_ne_u32 vcc, 0, v46")
    A("v_and_b32 v44, 0xffff, v180")
    A("v_sub_u32 v44, 2047, v44")
    A("v_cndmask_b32 v47, v47, v48, vcc")
    A("v_xor_b32 v45, v45, v47")
    A("v_lshlrev_b32 v45, 16, v45")
    A("v_mul_f32 v45, 0xbfb8aa3b, v45")
    A("v_exp_f32 v45, v45")
    A.nop(1)
    A("v_add_f32 v45, 1.0, v45")
    A("v_rcp_f32 v45, v45")
    A.nop(1)
    A("v_cvt_pk_bf16_f32 v45, v45, v45")
    A("v_lshlrev_b32 v45, 16, v45")
    for i in range(8):
        Ls = A.newlabel("ns")
        A("v_readlane_b32 s51, v44, %d" % i)
        A("v_mov_b32 v52, %d" % (SIDE + 32 * i))
        A("s_nop 2")
        A("s_bfe_u32 s58, s51, 0x20006")
        A("s_cmp_lg_u32 s58, s43")
        A("s_cbranch_scc1 %s" % Ls)
        A("s_lshr_b32 s58, s51, 8")
        A("s_lshl_b32 s58, s58, 2")
        A("s_and_b32 s51, s51, 255")
        A("v_cmp_eq_u32 vcc, s51, v5")
        A("s_set_gpr_idx_on s58, gpr_idx(SRC0)")
        for k in range(4):
            A("v_mov_b32 %s, %s" % (v(36 + k), v(T1 + k)))
        for k in range(4):
            A("v_mov_b32 %s, %s" % (v(40 + k), v(XN + k)))
        A("s_set_gpr_idx_off")
        A("s_mov_b64 exec, vcc")
        A("ds_write_b128 v52, v[36:39]")
        A("ds_write_b128 v52, v[40:43] offset:16")
        A("s_mov_b64 exec, -1")
        A.label(Ls)
    A("s_waitcnt vmcnt(0) lgkmcnt(0)")
    A("v_mov_b32 v11, %d" % FLAGS)
    A("v_mov_b32 v12, 1")
    lds_signal(A, 6, "v11", "v12")
    st_(A, 6)
    Lend = A.newlabel("hend")
    A("s_cmp_lg_u32 s42, 4")
    A("s_cbranch_scc1 %s" % Lend)
    A("v_lshlrev_b32 v18, 4, v1")
    A("v_add_u32 v19, %d, v18" % RED)
    A("v_lshlrev_b32 v20, 5, v1")
    A("v_add_u32 v53, %d, v20" % SIDE)
    A("s_movk_i32 s51, 1152")
    A("v_mul_lo_u32 v44, v44, s51")
    A("s_lshl_b32 s51, s41, 3")
    A("v_add_u32 v44, s51, v44")
    lds_wait(A, 6, 4, "v11", "v12", sleep=0)
    A("s_mov_b64 exec, 0xff")
    A("ds_read_b128 v[36:39], v53")
    A("ds_read_b128 v[40:43], v53 offset:16")
    A("s_mov_b64 exec, -1")
    lds_wait(A, 5, 4, "v11", "v12", sleep=0)
    st_(A, 7)
    A("s_mov_b64 exec, 0xff")
    for w in range(4):
        A("ds_read_b128 %s, v19 offset:%d" % (v(20 + 4 * w, 4), 128 * w))
    A("s_waitcnt lgkmcnt(0)")
    for k in range(4):
        A("v_add_f32 %s, %s, %s" % (v(20 + k), v(20 + k), v(24 + k)))
        A("v_add_f32 %s, %s, %s" % (v(28 + k), v(28 + k), v(32 + k)))
    for k in range(4):
        A("v_add_f32 %s, %s, %s" % (v(20 + k), v(20 + k), v(28 + k)))
    A.nop(1)
    round_pair(A, 20, 21, 24, 40); round_pair(A, 22, 23, 25, 40)
    for k in range(4):
        A("v_mul_f32 %s, %s, v45" % (v(20 + k), v(20 + k)))
    A.nop(1)
    round_pair(A, 20, 21, 24, 40); round_pair(A, 22, 23, 25, 40)
    for k in range(4):
        A("v_add_f32 %s, %s, %s" % (v(20 + k), v(20 + k), v(40 + k)))
    A.nop(1)
    round_pair(A, 20, 21, 24, 40); round_pair(A, 22, 23, 25, 40)
    for k in range(4):
        A("v_add_f32 %s, %s, %s" % (v(20 + k), v(20 + k), v(36 + k)))
    A.nop(1)
    A("v_cvt_pk_bf16_f32 v24, v20, v21")
    A("v_cvt_pk_bf16_f32 v25, v22, v23")
    A("buffer_store_dwordx2 v[24:25], v44, s[20:23], 0 offen")
    A("s_mov_b64 exec, -1")
    A.label(Lend)
    st_(A, 8, end=True)
    dbg_time(A, 2)
    if os.environ.get("CALD"):
        L = A.newlabel("cal")
        A.label(L)
        A("s_memrealtime s[96:97]")
        A("s_waitcnt lgkmcnt(0)")
        A("s_sub_u32 s96, s96, s100")
        A("s_cmp_lt_u32 s96, %d" % int(os.environ["CALD"]))
        A("s_cbranch_scc1 %s" % L)
    A("s_endpgm")

def gen_conv_wg(A):
    A("s_and_b32 s43, s42, 3")
    A("s_lshl_b32 s44, s41, 2")
    A("s_add_u32 s44, s44, s43")
    A("s_mul_i32 s45, s43, %d" % CH_LDS)
    Lm = A.newlabel("cm"); Lh = A.newlabel("ch"); Lj = A.newlabel("cj")
    dbg_time(A, 0)
    A("s_lshr_b32 s60, s41, 4")
    A("s_and_b32 s61, s41, 15")
    A("v_mov_b32 v200, 0"); A("v_mov_b32 v201, 0")
    A("s_cmp_ge_u32 s42, 4")
    A("s_cbranch_scc1 %s" % Lh)
    A("s_setprio 2")
    gen_kv_issue(A)
    gen_kv_addr(A)
    gen_kv_addr2(A)
    finish_tag(A)
    flags_barrier(A)
    A("s_branch %s" % Lj)
    A.label(Lh)
    gen_kv_addr(A)
    gen_kv_addr2(A)
    finish_tag(A)
    A.label(Lj)
    gen_kv_compute(A)
    publish_alive(A)
    A("s_barrier")
    A("s_cmp_lt_u32 s42, 4")
    A("s_cbranch_scc1 %s" % Lm)
    h_early_loads(A)
    gen_H(A)
    A.label(Lm)
    gen_M(A)

def finish_tag(A):
    A("s_waitcnt lgkmcnt(0)")
    A("s_mul_i32 s%d, s%d, 0x9E3779B1" % (TAG, TAG))
    A("s_add_u32 s%d, s%d, 0x7F4A7C15" % (TAG, TAG))

def flags_barrier(A, alive=False):
    A("v_mov_b32 v36, 0")
    A("v_mov_b32 v37, %d" % FLAGS)
    A("v_mov_b32 v38, 0"); A("v_mov_b32 v39, 0"); A("v_mov_b32 v40, 0"); A("v_mov_b32 v41, 0")
    A("ds_write_b128 v37, v[38:41]")
    A("ds_write_b128 v37, v[38:41] offset:16")
    A("s_waitcnt lgkmcnt(0)")

def publish_alive(A):
    Ln = A.newlabel("noalive")
    A("s_cmp_lg_u32 s42, 0")
    A("s_cbranch_scc1 %s" % Ln)
    A("s_lshl_b32 s63, s41, 2")
    A("s_add_u32 s63, s63, %d" % F_ALIVE)
    A("v_mov_b32 v37, s%d" % TAG)
    A("v_mov_b32 v36, 0")
    A("s_mov_b64 exec, 1")
    A("buffer_store_dword v37, v36, s[36:39], s63 offen sc1")
    A("s_mov_b64 exec, -1")
    A.label(Ln)


BITONIC8 = [(0,4),(1,5),(2,6),(3,7),(0,2),(1,3),(4,6),(5,7),(0,1),(2,3),(4,5),(6,7)]
def merge8(A, a, b, out, spare, dpp=None):
    for i in range(7, -1, -1):
        if dpp:
            A("v_max_u32_dpp %s, %s, %s %s bank_mask:0xf" % (v(out[i]), v(b[7 - i]), v(a[i]), dpp))
        else:
            A("v_max_u32 %s, %s, %s" % (v(out[i]), v(a[i]), v(b[7 - i])))
    return sort_desc(A, out, spare, BITONIC8)

def top8_wave(A, regs, spare, other):
    cur, oth = list(regs), list(other)
    for ctl in ("quad_perm:[1,0,3,2] row_mask:0xf", "quad_perm:[2,3,0,1] row_mask:0xf", "row_half_mirror row_mask:0xf",
                "row_mirror row_mask:0xf", "row_bcast:15 row_mask:0xa", "row_bcast:31 row_mask:0xc"):
        A.nop(1)
        free = list(cur)
        new, spare2 = merge8(A, cur, cur, oth, spare, dpp=ctl)
        pool = [r for r in (free + oth + [spare]) if r not in new]
        spare = pool[0]
        oth = pool[1:9]
        cur = new
    return cur, spare, oth

L_CNT = 162368

def lds_signal(A, k, vaddr, vone):
    A("s_mov_b64 exec, 1")
    A("ds_add_u32 %s, %s offset:%d" % (vaddr, vone, 4 * k))
    A("s_mov_b64 exec, -1")

def lds_wait(A, k, n, vaddr, vtmp, sleep=0):
    L = A.newlabel("lw"); Ld = A.newlabel("lwd")
    A("s_mov_b32 s52, 0")
    A.label(L)
    A("ds_read_b32 %s, %s offset:%d" % (vtmp, vaddr, 4 * k))
    A("s_add_u32 s52, s52, 1")
    A("s_waitcnt lgkmcnt(0)")
    A("s_cmp_gt_u32 s52, %d" % (POLL_MAX * 8))
    A("v_readfirstlane_b32 s51, %s" % vtmp)
    A("s_cbranch_scc1 %s" % Ld)
    A("s_nop 1")
    A("s_cmp_ge_u32 s51, %d" % n)
    A("s_cbranch_scc1 %s" % Ld)
    if sleep:
        A("s_sleep %d" % sleep)
    A("s_branch %s" % L)
    A.label(Ld)

def gen_moe_wg(A):
    T = "s%d" % TAG
    A("v_and_b32 v1, 63, v0")
    A("v_and_b32 v4, 255, v0")
    A("v_mov_b32 v8, %d" % L_CNT)
    A("v_mov_b32 v9, 1")
    Lt = A.newlabel("twave")
    A("s_cmp_ge_u32 s42, 4")
    A("s_cbranch_scc1 %s" % Lt)
    G, U, WD = 16, 88, 160
    A("v_mov_b32 v232, 0"); A("v_mov_b32 v233, 0"); A("v_mov_b32 v234, 0"); A("v_mov_b32 v235, 0")
    A("ds_write_b128 v8, v[232:235]"); A("ds_write_b128 v8, v[232:235] offset:16")
    srd(A, 48, PWG, D * F * 2)
    srd(A, 52, PWU, D * F * 2)
    srd(A, 56, PWD, D * F * 2)
    A("v_lshrrev_b32 v5, 3, v1")
    A("v_mul_u32_u24 v5, 9216, v5")
    A("v_bfe_u32 v6, v1, 4, 1")
    A("s_and_b32 s43, s42, 1")
    A("s_lshl_b32 s43, s43, 1")
    A("v_or_b32 v6, s43, v6")
    A("v_lshlrev_b32 v6, 1, v6")
    A("v_and_b32 v7, 7, v1")
    A("v_xor_b32 v6, v6, v7")
    A("v_lshl_add_u32 v5, v6, 4, v5")
    A("s_lshl_b32 s43, s41, 7")
    A("s_mul_i32 s44, s42, 73728")
    A("s_add_u32 s43, s43, s44")
    A("s_lshl_b32 s44, s42, 10")
    A("s_waitcnt lgkmcnt(0)")
    A("s_barrier")
    for j in range(18):
        A("s_mov_b32 m0, s44")
        A("s_add_u32 s45, s44, %d" % L_WU)
        A("buffer_load_dwordx4 v5, s[48:51], s43 offen lds" + NTS)
        A("s_mov_b32 m0, s45")
        A("s_add_u32 s44, s44, 4096")
        A("buffer_load_dwordx4 v5, s[52:55], s43 offen lds" + NTS)
        A("s_add_u32 s43, s43, %d" % (4 * 73728))
    A("v_lshrrev_b32 v6, 3, v4")
    A("v_mul_u32_u24 v7, 1152, v6")
    A("v_and_b32 v12, 7, v4")
    A("v_lshl_add_u32 v236, v12, 4, v7")
    A("v_bfe_u32 v14, v6, 1, 1")
    A("v_bfe_u32 v11, v6, 3, 1")
    A("v_lshl_add_u32 v14, v11, 1, v14")
    A("v_lshlrev_b32 v14, 1, v14")
    A("v_xor_b32 v14, v14, v12")
    A("v_lshl_add_u32 v14, v14, 4, v7")
    A("v_add_u32 v15, 36864, v14")
    A("v_and_b32 v2, 15, v0")
    A("v_bfe_u32 v3, v0, 4, 2")
    A("v_lshrrev_b32 v10, 2, v2")
    A("v_lshl_add_u32 v11, v3, 3, v10")
    A("v_bfe_u32 v12, v2, 3, 1")
    A("v_and_b32 v13, 1, v3")
    A("v_lshl_add_u32 v12, v13, 1, v12")
    A("v_xor_b32 v12, s42, v12")
    A("v_and_b32 v13, 3, v2")
    A("v_lshlrev_b32 v13, 3, v13")
    A("v_lshl_add_u32 v12, v12, 5, v13")
    A("v_lshl_add_u32 v5, v11, 7, v12")
    A("v_add_u32 v6, 36864, v5")
    A("v_mul_u32_u24 v7, 1152, v11")
    A("v_add_u32 v7, v7, v12")
    A("v_add_u32 v10, 36864, v7")
    st_(A, 1)
    A("v_add_u32 v12, %d, v5" % L_WU)
    A("v_add_u32 v13, %d, v6" % L_WU)
    nst = 1 if (common.STAMPS and not LIGHT) else 0
    A("v_lshrrev_b32 v232, 3, v1")
    A("v_mul_u32_u24 v232, 1152, v232")
    A("v_bfe_u32 v233, v1, 4, 1")
    A("s_and_b32 s43, s42, 1")
    A("s_lshl_b32 s43, s43, 1")
    A("v_or_b32 v233, s43, v233")
    A("v_lshlrev_b32 v233, 1, v233")
    A("v_and_b32 v234, 7, v1")
    A("v_xor_b32 v233, v233, v234")
    A("v_lshl_add_u32 v236, v233, 4, v232")
    def rd6(ph):
        for kk in range(6 * ph, 6 * ph + 6):
            bg, bu, ko = ("v5", "v12", kk) if kk < 9 else ("v6", "v13", kk - 9)
            A("ds_read_b64_tr_b16 %s, %s offset:%d" % (v(G + 4 * kk, 2), bg, 4096 * ko))
            A("ds_read_b64_tr_b16 %s, %s offset:%d" % (v(G + 4 * kk + 2, 2), bg, 4096 * ko + 512))
            A("ds_read_b64_tr_b16 %s, %s offset:%d" % (v(U + 4 * kk, 2), bu, 4096 * ko))
            A("ds_read_b64_tr_b16 %s, %s offset:%d" % (v(U + 4 * kk + 2, 2), bu, 4096 * ko + 512))
    A("s_waitcnt vmcnt(%d)" % (24 + nst))
    lds_signal(A, 0, "v8", "v9")
    lds_wait(A, 0, 4, "v8", "v11")
    rd6(0)
    A("s_waitcnt vmcnt(%d)" % (12 + nst))
    lds_signal(A, 7, "v8", "v9")
    lds_wait(A, 7, 4, "v8", "v11")
    rd6(1)
    A("s_waitcnt lgkmcnt(0)")
    lds_signal(A, 1, "v8", "v9")
    lds_wait(A, 1, 4, "v8", "v11")
    for half in range(2):
        A("s_mul_i32 s43, s41, 73728")
        A("s_mul_i32 s44, s42, 9216")
        A("s_add_u32 s43, s43, s44")
        if half:
            A("s_add_u32 s43, s43, 36864")
            A("s_add_u32 s44, s44, %d" % L_WU)
        for sg in range(9):
            A("s_mov_b32 m0, s44")
            A("s_add_u32 s44, s44, 1024")
            A("buffer_load_dwordx4 v236, s[56:59], s43 offen offset:%d lds" % 0 + NTS)
            A("s_add_u32 s43, s43, 128")
    A("s_waitcnt vmcnt(18)")
    lds_signal(A, 6, "v8", "v9")
    lds_wait(A, 6, 4, "v8", "v11")
    st_(A, 2)
    dbg_time(A, 7)
    rd6(2)
    st_(A, 7)
    A("v_lshrrev_b32 v232, 2, v2")
    A("v_mul_u32_u24 v14, 9216, v3")
    A("v_lshl_add_u32 v14, v232, 7, v14")
    A("v_bfe_u32 v233, v2, 3, 1")
    A("v_and_b32 v234, 1, v3")
    A("v_lshl_add_u32 v233, v234, 1, v233")
    A("v_xor_b32 v233, s42, v233")
    A("v_lshl_add_u32 v14, v233, 5, v14")
    A("v_and_b32 v234, 3, v2")
    A("v_lshl_add_u32 v14, v234, 3, v14")
    A("v_add_u32 v15, %d, v14" % L_WU)
    A("s_waitcnt vmcnt(0)")
    lds_signal(A, 2, "v8", "v9")
    lds_wait(A, 2, 4, "v8", "v11")
    for k in range(9):
        r = WD + 8 * k
        A("ds_read_b64_tr_b16 %s, v14 offset:%d" % (v(r, 2), 1024 * k))
        A("ds_read_b64_tr_b16 %s, v14 offset:%d" % (v(r + 2, 2), 1024 * k + 512))
        A("ds_read_b64_tr_b16 %s, v15 offset:%d" % (v(r + 4, 2), 1024 * k))
        A("ds_read_b64_tr_b16 %s, v15 offset:%d" % (v(r + 6, 2), 1024 * k + 512))
    A("v_and_b32 v12, 7, v2")
    A("v_mul_u32_u24 v5, %d, v12" % XSTR)
    A("v_lshl_add_u32 v5, v3, 4, v5")
    A("v_add_u32 v5, %d, v5" % L_X)
    A("v_mul_u32_u24 v6, %d, v2" % HSTR)
    A("v_lshl_add_u32 v6, v3, 3, v6")
    A("s_lshl_b32 s43, s42, 5")
    A("s_add_u32 s43, s43, %d" % L_HS)
    A("v_add_u32 v6, s43, v6")
    A("v_mul_u32_u24 v7, %d, v12" % HSTR)
    A("v_lshl_add_u32 v7, v3, 4, v7")
    A("v_add_u32 v7, %d, v7" % L_HS)
    A("v_mul_u32_u24 v10, 2304, v12")
    A("v_lshl_add_u32 v10, v3, 4, v10")
    A("v_bfe_u32 v13, v2, 3, 1")
    A("v_lshl_add_u32 v10, v13, 8, v10")
    A("v_cmp_eq_u32 s[56:57], 1, v13")
    A("s_mul_i32 s43, s41, 18432")
    A("s_lshl_b32 s44, s42, 6")
    A("s_add_u32 s43, s43, s44")
    A("s_add_u32 s43, s43, %d" % F_PARTG)
    A("v_mov_b32 v13, %d" % L_TAG)
    for i in range(8):
        A("v_mov_b32 %s, 0" % v(232 + i))
    A("s_waitcnt lgkmcnt(0)")
    st_(A, 3)
    dbg_time(A, 12)
    lds_wait(A, 4, 4, "v8", "v11")
    st_(A, 4)
    A("ds_read_b32 v12, v13")
    XR = 240
    for kk in range(3):
        A("ds_read_b128 %s, v5 offset:%d" % (v(XR + 4 * kk, 4), 64 * kk))
    for kk in range(18):
        if kk + 3 < 18:
            A("ds_read_b128 %s, v5 offset:%d" % (v(XR + 4 * ((kk + 3) % 4), 4), 64 * (kk + 3)))
        A("s_waitcnt lgkmcnt(%d)" % min(3, 17 - kk))
        x = v(XR + 4 * (kk % 4), 4)
        A("v_mfma_f32_16x16x32_bf16 v[232:235], %s, %s, v[232:235]" % (v(G + 4 * kk, 4), x))
        A("v_mfma_f32_16x16x32_bf16 v[236:239], %s, %s, v[236:239]" % (v(U + 4 * kk, 4), x))
    A("v_readfirstlane_b32 %s, v12" % T)
    A.nop(6)
    round_pair(A, 232, 233, 16, 40); round_pair(A, 234, 235, 17, 40)
    for i in range(4):
        A("v_mul_f32 %s, 0xbfb8aa3b, %s" % (v(20 + i), v(232 + i)))
    for i in range(4):
        A("v_exp_f32 %s, %s" % (v(20 + i), v(20 + i)))
    round_pair(A, 236, 237, 16, 40); round_pair(A, 238, 239, 17, 40)
    for i in range(4):
        A("v_add_f32 %s, 1.0, %s" % (v(20 + i), v(20 + i)))
    for i in range(4):
        A("v_rcp_f32 %s, %s" % (v(20 + i), v(20 + i)))
    A.nop(1)
    for i in range(4):
        A("v_mul_f32 %s, %s, %s" % (v(232 + i), v(232 + i), v(20 + i)))
    A.nop(1)
    round_pair(A, 232, 233, 16, 40); round_pair(A, 234, 235, 17, 40)
    for i in range(4):
        A("v_mul_f32 %s, %s, %s" % (v(232 + i), v(232 + i), v(236 + i)))
    A.nop(1)
    A("v_cvt_pk_bf16_f32 v16, v232, v233")
    A("v_cvt_pk_bf16_f32 v17, v234, v235")
    A("v_cmp_gt_u32 vcc, 8, v2")
    A("s_and_saveexec_b64 s[44:45], vcc")
    A("ds_write_b64 v6, v[16:17]")
    A("s_mov_b64 exec, s[44:45]")
    A("s_mov_b32 s58, 0xffffff00")
    A("s_movk_i32 s59, 0x80")
    A("s_waitcnt lgkmcnt(0)")
    lds_signal(A, 5, "v8", "v9")
    lds_wait(A, 5, 4, "v8", "v11")
    st_(A, 5)
    A("ds_read_b128 v[16:19], v7")
    A("ds_read_b128 v[20:23], v7 offset:64")
    A("s_waitcnt lgkmcnt(0)")
    AC = 88
    for k in range(9):
        r = WD + 8 * k
        A("v_mfma_f32_16x16x32_bf16 %s, %s, v[16:19], 0" % (v(AC + 4 * k, 4), v(r, 4)))
    for k in range(9):
        r = WD + 8 * k
        A("v_mfma_f32_16x16x32_bf16 %s, %s, v[20:23], %s" % (v(AC + 4 * k, 4), v(r + 4, 4), v(AC + 4 * k, 4)))
    A.nop(4)
    for kp in range(5):
        k = 2 * kp
        ac, ac2 = AC + 4 * k, AC + 4 * min(k + 1, 8)
        o = 24 + 8 * kp
        for i in range(4):
            A("v_cndmask_b32 %s, %s, %s, s[56:57]" % (v(o + i), v(ac + i), v(ac2 + i)))
        for i in range(4):
            A("v_add_u32 %s, s59, %s" % (v(o + i), v(o + i)))
        A("v_lshrrev_b32 %s, 24, %s" % (v(o + 4), v(o + 3)))
        A("v_lshrrev_b32 %s, 16, %s" % (v(o + 5), v(o + 3)))
        A("v_lshrrev_b32 %s, 8, %s" % (v(o + 6), v(o + 3)))
        for i in range(3):
            A("v_bfi_b32 %s, s58, %s, %s" % (v(o + 4 + i), v(o + i), v(o + 4 + i)))
        A("v_xor_b32 %s, %s, %s" % (v(o + 7), v(o + 4), v(o + 5)))
        A("v_xor_b32 %s, %s, %s" % (v(o + 7), v(o + 7), v(o + 6)))
        A("v_xor_b32 %s, %s, %s" % (v(o + 7), T, v(o + 7)))
        if kp == 4:
            A("s_andn2_b64 exec, exec, s[56:57]")
        A("buffer_store_dwordx4 %s, v10, s[36:39], s43 offen offset:%d sc1" % (v(o + 4, 4), 512 * kp))
    A("s_mov_b64 exec, -1")
    st_(A, 6, end=True)
    dbg_time(A, 3)
    A("s_endpgm")
    A.label(Lt)
    A("s_setprio 3")
    A("s_lshl_b32 s60, s41, 2")
    A("s_add_u32 s60, s60, s42")
    A("s_sub_u32 s60, s60, 4")
    Q, WR, X = gen_ln(A)
    A("s_barrier")
    finish_tag(A)
    gen_ln_compute(A, Q, WR, X)
    A("s_setprio %d" % int(os.environ.get("TPRIO", 1)))
    srd(A, 16, PQ, S * ROWB)
    A("v_and_b32 v1, 63, v0")
    A("v_and_b32 v4, 255, v0")
    A("v_mov_b32 v8, %d" % L_CNT)
    A("v_mov_b32 v9, 1")
    A("v_lshlrev_b32 v15, 2, v1")
    A("v_lshlrev_b32 v16, 4, v1")
    A("s_and_b32 s43, s42, 3")
    A("s_lshl_b32 s43, s43, 12")
    A("v_add_u32 v16, s43, v16")
    def key_loads():
        A("s_movk_i32 s43, %d" % F_KEYG)
        for i in range(4):
            A("buffer_load_dwordx4 %s, v16, s[36:39], s43 offen offset:%d sc1" % (v(40 + 4 * i, 4), 1024 * i))
    masked_poll(A, "key", key_loads, list(range(41, 56, 2)), int(os.environ.get("KEYSLEEP", 8)), int(os.environ.get("KEYPRE", 70)))
    A("s_setprio 3")
    st_(A, 3)
    dbg_time(A, 6)
    regs, sp = sort_desc(A, range(40, 56, 2), 41, SORT8)
    SK = 60
    free = [r for r in range(40, 57) if r not in regs and r != sp]
    cur, sp, oth = top8_wave(A, regs, sp, free[:8])
    for i in range(8):
        A("v_mov_b32 %s, %s" % (v(64 + i), v(cur[i])))
    A("s_and_b32 s43, s42, 3")
    A("s_lshl_b32 s43, s43, 5")
    A("s_add_u32 s43, s43, %d" % L_CAND)
    A("v_mov_b32 v16, s43")
    A("v_mov_b32 v31, %s" % T)
    A("v_mov_b32 v17, %d" % L_TAG)
    A("s_mov_b32 exec_lo, 0")
    A("s_mov_b32 exec_hi, 0x80000000")
    A("ds_write_b128 v16, v[64:67]")
    A("ds_write_b128 v16, v[68:71] offset:16")
    A("ds_write_b32 v17, v31")
    A("s_mov_b64 exec, -1")
    A("s_waitcnt lgkmcnt(0)")
    lds_signal(A, 3, "v8", "v9")
    lds_wait(A, 3, 4, "v8", "v11")
    A("v_mov_b32 v16, %d" % L_CAND)
    for i in range(8):
        A("ds_read_b128 %s, v16 offset:%d" % (v(64 + 4 * i, 4), 16 * i))
    A("s_waitcnt lgkmcnt(4)")
    c01, sp1 = merge8(A, list(range(64, 72)), list(range(72, 80)), list(range(40, 48)), 56)
    A("s_waitcnt lgkmcnt(0)")
    c23, sp2 = merge8(A, list(range(80, 88)), list(range(88, 96)), list(range(48, 56)), 57)
    for i in range(8):
        A("v_max_u32 %s, %s, %s" % (v(64 + i), v(c01[i]), v(c23[7 - i])))
    for i in range(8):
        A("v_readfirstlane_b32 %s, %s" % (s(SK + i), v(64 + i)))
    A.nop(3)
    st_(A, 5)
    A("s_and_b32 s45, s42, 3")
    A("s_mov_b32 s43, s60"); A("s_mov_b32 s44, s61")
    for w in range(1, 4):
        A("s_cmp_eq_u32 s45, %d" % w)
        A("s_cselect_b32 s43, %s, s43" % s(SK + 2 * w))
        A("s_cselect_b32 s44, %s, s44" % s(SK + 2 * w + 1))
    A("v_mov_b32 v16, s43"); A("v_mov_b32 v17, s44")
    A("v_cmp_lt_u32 vcc, 31, v1")
    A.nop(2)
    A("v_cndmask_b32 v16, v16, v17, vcc")
    A("v_and_b32 v16, 0xffff, v16")
    A("v_sub_u32 v16, 2047, v16")
    A("v_and_b32 v17, 31, v1")
    A("s_movk_i32 s43, 1152")
    A("v_mul_lo_u32 v18, v16, s43")
    A("v_lshl_add_u32 v18, v17, 2, v18")
    A("v_lshlrev_b32 v19, 3, v16")
    for i in range(9):
        A("buffer_load_dword %s, v18, s[16:19], 0 offen offset:%d" % (v(20 + i), 128 * i))
    def rg_loads():
        A("s_mov_b32 s43, %d" % F_ROWG)
        A("buffer_load_dwordx2 v[32:33], v19, s[36:39], s43 offen sc1")
    Lns = A.newlabel("nosel")
    A("s_cmp_lg_u32 s41, 0")
    A("s_cbranch_scc1 %s" % Lns)
    A("s_cmp_lg_u32 s42, 4")
    A("s_cbranch_scc1 %s" % Lns)
    for i in range(8):
        A("v_writelane_b32 v30, %s, %d" % (s(SK + i), i))
    A("v_lshlrev_b32 v36, 3, v1")
    A("s_movk_i32 s43, %d" % F_SELG)
    A("s_mov_b64 exec, 0xff")
    A("buffer_store_dwordx2 v[30:31], v36, s[36:39], s43 offen sc1")
    A("s_mov_b64 exec, -1")
    A.label(Lns)
    masked_poll(A, "rg", rg_loads, [33], 2, 0)
    stats_from_msd(A, 32, 64, 70)
    A("v_lshrrev_b32 v38, 5, v4")
    A("v_mul_u32_u24 v38, %d, v38" % XSTR)
    A("v_lshl_add_u32 v38, v17, 2, v38")
    A("v_add_u32 v38, %d, v38" % L_X)
    st_(A, 4)
    for i0 in range(0, 9, 3):
        streams = []
        for i in range(i0, i0 + 3):
            bs = 40 + 8 * (i % 3)
            ops = norm_ops(bs, bs + 2, bs + 4, 20 + i, 64)
            ops.append("v_cvt_pk_bf16_f32 %s, %s, %s" % (v(bs + 6), v(bs + 2), v(bs + 3)))
            ops.append("ds_write_b32 v38, %s offset:%d" % (v(bs + 6), 128 * i))
            streams.append(ops)
        interleave(A, streams)
    A("s_waitcnt lgkmcnt(0)")
    lds_signal(A, 4, "v8", "v9")
    st_(A, 6)
    dbg_time(A, 4)
    Le = A.newlabel("noep")
    A("s_cmp_lg_u32 s41, 0")
    A("s_cbranch_scc1 %s" % Le)
    A("s_cmp_lg_u32 s42, 4")
    A("s_cbranch_scc1 %s" % Le)
    A("s_setprio 0")
    A("v_lshlrev_b32 v16, 2, v1")
    A("v_min_u32 v17, 15, v1")
    A("v_lshlrev_b32 v17, 2, v17")
    def al_loads():
        A("s_movk_i32 s43, %d" % F_ALIVE)
        A("buffer_load_dword v20, v16, s[36:39], s43 offen sc1")
        A("buffer_load_dword v21, v16, s[36:39], s43 offen offset:256 sc1")
        A("buffer_load_dword v22, v17, s[36:39], s43 offen offset:512 sc1")
    masked_poll(A, "al", al_loads, [20, 21, 22], 16, 0)
    A("v_mov_b32 v20, %s" % T)
    A("v_mov_b32 v21, %d" % F_EPOCH)
    A("s_mov_b64 exec, 1")
    A("buffer_store_dword v20, v21, s[36:39], 0 offen sc1")
    A("s_mov_b64 exec, -1")
    A.label(Le)
    A("s_endpgm")

def gen_spare_wg(A):
    A("s_lshl_b32 s60, s41, 3")
    A("s_add_u32 s60, s60, s42")
    A("s_add_u32 s60, s60, 288")
    Lx = A.newlabel("spx")
    A("s_cmp_ge_u32 s60, 512")
    A("s_cbranch_scc1 %s" % Lx)
    Q, WR, X = gen_ln(A)
    finish_tag(A)
    gen_ln_compute(A, Q, WR, X)
    A.label(Lx)
    A("s_endpgm")

def gen_kernel(A, name):
    kernel_header(A, name)
    Ldone = A.newlabel("done"); Lmoe = A.newlabel("moe"); Lsp = A.newlabel("spare")
    A("s_getpc_b64 s[96:97]")
    if os.environ.get("CALD"):
        A("s_memrealtime s[100:101]")
    A("s_cmp_ge_u32 s2, 256")
    A("s_cbranch_scc1 %s" % Ldone)
    A("s_load_dwordx4 s[68:71], s[0:1], %d" % KA_DBG)
    A("s_load_dwordx16 s[72:87], s[0:1], 0")
    A("s_load_dwordx8 s[88:95], s[0:1], %d" % KA_WG)
    A("v_lshrrev_b32 v1, 6, v0")
    A("s_and_b32 s30, s2, 7")
    A("s_lshr_b32 s31, s2, 3")
    A("v_readfirstlane_b32 s42, v1")
    A("s_mov_b32 s40, 0xffff0000")
    if not os.environ.get("NOICPF"):
        Lc = A.newlabel("noic")
        A("s_and_b32 s96, s96, 0xffffff00")
        A("s_and_b32 s97, s97, 0xffff")
        A("s_mov_b32 s98, L_code_end-%s" % name)
        A("s_mov_b32 s99, 0x00020000")
        A("v_and_b32 v243, 63, v0")
        A("v_lshlrev_b32 v243, 4, v243")
        A("s_lshl_b32 s95, s31, 10") if False else None
        A("s_lshl_b32 s3, s31, 10")
        A("v_cmp_lt_u32 vcc, 447, v0")
        A("s_cbranch_vccz %s" % Lc)
        A("buffer_load_dwordx4 v[244:247], v243, s[96:99], s3 offen")
        A.label(Lc)
    A("s_waitcnt lgkmcnt(0)")
    A("s_load_dword s%d, s[%d:%d], %d" % (TAG, PWS, PWS + 1, F_EPOCH))
    srd(A, 36, PWS, WS_SIZE)
    A("s_lshl_b32 s3, s2, 3")
    A("s_add_u32 s3, s3, s42")
    st_(A, 0)
    ORD = os.environ.get("ORD", "B")
    if ORD == "A":
        c0, m0, p0 = 0, 18, 27
    else:
        c0, m0, p0 = 14, 5, 0
    A("s_sub_u32 s41, s31, %d" % m0)
    A("s_cmp_lt_u32 s41, 9")
    A("s_cbranch_scc1 %s" % Lmoe)
    A("s_sub_u32 s41, s31, %d" % p0)
    A("s_cmp_lt_u32 s41, 5")
    A("s_cbranch_scc1 %s" % Lsp)
    A("s_sub_u32 s31, s31, %d" % c0)
    A("s_mul_i32 s41, s30, 18")
    A("s_add_u32 s41, s41, s31")
    gen_conv_wg(A)
    A.label(Lmoe)
    A("s_mul_i32 s31, s30, 9")
    A("s_add_u32 s41, s41, s31")
    gen_moe_wg(A)
    A.label(Lsp)
    A("s_mul_i32 s31, s30, 5")
    A("s_add_u32 s41, s41, s31")
    gen_spare_wg(A)
    A.label(Ldone)
    A("s_endpgm")
    A.label("L_code_end")
    return kernel_desc(name, 256, 102, 256)
```

```python
from common import *
import common, os
from collections import deque
from conv2 import CS, CH_LDS, H_OFF, POLL_MAX, conv_schedule
from moe2 import wave_max_u32, L_WG, L_WU, L_X, L_HS, L_U, L_CAND, XSTR, HSTR
from moe3 import SORT8, sort_desc, rounds

F_EPOCH = 0x0
F_SELG = 0x100
F_ALIVE = 0x1000
F_KEYG = 0x2000
F_ROWG = 0x8000
F_LNF = 0x6000
F_URC = 0x100000 + 0x300000
F_UR = 0x20000
F_PARTG = 0x500000
F_XT = 0x800000
F_XC = 0x480000
L_TAG = 162304

PQ, PK, PV, PSHK, PSSMK, PSSMD, PWR, PWG, PWU, PWD, POUT, PWS = 72, 74, 76, 78, 80, 82, 86, 88, 90, 92, 94, 70
TAG = 46
FAST = os.environ.get('FAST', '1') != '0'
QNT = '' if os.environ.get('QDEF') else ' nt'
NTS = '' if os.environ.get('NONT') else ' nt'
LIGHT = os.environ.get("STAMPS") == "2"
def st_(A, n, end=False):
    if LIGHT:
        if n != 0 and not end:
            return
        n = 15 if end else 0
    stamp(A, n, 36, 3, vt=254, st=96)

MISC = 4 * CH_LDS
FLAGS = MISC
SIDE = MISC + 64
RED = SIDE + 256
YOFF = H_OFF
W1, W0 = 20, 28
E_, G_, F_ = 36, 44, 50
UREG = 56
RING, NR, ACC, BS = 64, 6, 88, 120

DBGT = bool(os.environ.get("DBGT"))
def dbg_time(A, slot, invert=False):
    if not DBGT:
        return
    L = A.newlabel("dbgs")
    A("s_and_b32 s100, s42, 3")
    A("s_cmp_lg_u32 s100, 0")
    A("s_cbranch_scc1 %s" % L)
    A("s_cmp_eq_u32 s2, %d" % (8 if os.environ.get("ORD", "B") == "A" else 120))
    A("s_cselect_b32 s100, 1, 0")
    A("s_cmp_eq_u32 s2, %d" % (152 if os.environ.get("ORD", "B") == "A" else 48))
    A("s_cselect_b32 s100, 1, s100")
    A("s_cmp_eq_u32 s100, 0")
    A("s_cbranch_scc1 %s" % L)
    A("s_memrealtime s[96:97]")
    A("s_waitcnt lgkmcnt(0)")
    A("v_mov_b32 v252, s96")
    A("v_mov_b32 v253, %d" % (4 * slot))
    A("s_mov_b64 s[98:99], exec")
    A("s_mov_b64 exec, 1")
    A("global_store_dword v253, v252, s[68:69]")
    A("s_mov_b64 exec, s[98:99]")
    A.label(L)

DRY = os.environ.get("DRY", "0") != "0"
class TwoPass:
    def __init__(self, A, name):
        self.A = A
        self.L = A.newlabel(name + "b"); self.Lo = A.newlabel(name + "o"); self.Lt = A.newlabel(name + "t")
    def begin(self, transition):
        A = self.A
        self.transition = transition
        if DRY:
            A("s_mov_b32 s12, 0")
            A("s_mov_b64 exec, 0")
        else:
            transition()
        A.label(self.L)
    def guard_begin(self):
        if not DRY: return None
        l = self.A.newlabel("gd")
        self.A("s_cmp_eq_u32 s12, 0")
        self.A("s_cbranch_scc1 %s" % l)
        return l
    def guard_end(self, l):
        if l: self.A.label(l)
    def end(self):
        A = self.A
        if DRY:
            A("s_cmp_eq_u32 s12, 1")
            A("s_cbranch_scc1 %s" % self.Lo)
            A("s_mov_b32 s12, 1")
            A("s_mov_b64 exec, -1")
            self.transition()
            A("s_branch %s" % self.L)
            A.label(self.Lo)

def poll_head(A, cnt="s52"):
    A("s_mov_b32 %s, 0" % cnt)

def poll_tail(A, Lloop, Ldone, cnt="s52", sleep=1):
    A("s_add_u32 %s, %s, 1" % (cnt, cnt))
    A("s_cmp_gt_u32 %s, %d" % (cnt, POLL_MAX))
    A("s_cbranch_scc1 %s" % Ldone)
    A("s_sleep %d" % sleep)
    A("s_branch %s" % Lloop)

def masked_poll(A, name, emit_loads, tagregs, sleep, pre_sleep=0, full_exec="-1"):
    T = "s%d" % TAG
    Lp = A.newlabel(name + "p"); Ld = A.newlabel(name + "ok")
    if pre_sleep:
        A("s_sleep %d" % pre_sleep)
    A("s_mov_b32 s52, 0")
    A.label(Lp)
    emit_loads()
    A("s_waitcnt vmcnt(0)")
    A("v_cmp_eq_u32 vcc, %s, %s" % (T, v(tagregs[0])))
    for r in tagregs[1:]:
        A("v_cmp_eq_u32 s[54:55], %s, %s" % (T, v(r)))
        A("s_and_b64 vcc, vcc, s[54:55]")
    A("s_andn2_b64 exec, exec, vcc")
    A("s_cbranch_scc0 %s" % Ld)
    A("s_add_u32 s52, s52, 1")
    A("s_cmp_gt_u32 s52, %d" % POLL_MAX)
    A("s_cbranch_scc1 %s" % Ld)
    A("s_sleep %d" % sleep)
    A("s_branch %s" % Lp)
    A.label(Ld)
    A("s_mov_b64 exec, %s" % full_exec)

def first_then_poll(A, name, emit_loads, tagregs, sleep, ex, first_cnt=0):
    T = "s%d" % TAG
    Lp = A.newlabel(name + "p"); Ld = A.newlabel(name + "ok")
    A("s_mov_b32 s52, 0")
    A("s_waitcnt vmcnt(%d)" % first_cnt)
    A.label(Lp)
    A("v_cmp_eq_u32 vcc, %s, %s" % (T, v(tagregs[0])))
    for r in tagregs[1:]:
        A("v_cmp_eq_u32 s[54:55], %s, %s" % (T, v(r)))
        A("s_and_b64 vcc, vcc, s[54:55]")
    A("s_andn2_b64 exec, exec, vcc")
    A("s_cbranch_scc0 %s" % Ld)
    A("s_add_u32 s52, s52, 1")
    A("s_cmp_gt_u32 s52, %d" % POLL_MAX)
    A("s_cbranch_scc1 %s" % Ld)
    A("s_sleep %d" % sleep)
    emit_loads()
    A("s_waitcnt vmcnt(0)")
    A("s_branch %s" % Lp)
    A.label(Ld)
    A("s_mov_b64 exec, -1")

def ln_hint_poll(A, vaddr, r0, sleep, pre):
    def loads():
        A("s_movk_i32 s51, %d" % F_LNF)
        A("buffer_load_dwordx4 %s, %s, s[36:39], s51 offen sc1" % (v(r0, 4), vaddr))
        A("buffer_load_dwordx4 %s, %s, s[36:39], s51 offen offset:1024 sc1" % (v(r0 + 4, 4), vaddr))
    masked_poll(A, "lnh", loads, list(range(r0, r0 + 8)), sleep, pre)

def stats_from_msd(A, g, st, t):
    A("v_and_b32 %s, s40, %s" % (v(st + 4), v(g)))
    A("v_lshlrev_b32 %s, 16, %s" % (v(st), v(g)))
    A("v_rcp_f32 %s, %s" % (v(st + 2), v(st + 4)))
    A("v_xor_b32 %s, 0x80000000, %s" % (v(st), v(st)))
    A("v_xor_b32 %s, 0x80000000, %s" % (v(st + 4), v(st + 4)))
    A("v_fma_f32 %s, %s, %s, 1.0" % (v(t), v(st + 4), v(st + 2)))
    A("v_mov_b32 %s, %s" % (v(st + 1), v(st)))
    A("v_fma_f32 %s, %s, %s, %s" % (v(st + 2), v(t), v(st + 2), v(st + 2)))
    A("v_mov_b32 %s, %s" % (v(st + 5), v(st + 4)))
    A("v_mov_b32 %s, %s" % (v(st + 3), v(st + 2)))

LK, LV, LQ, SG, SX, SGS = 0, 17408, 33792, 50176, 67584, 272

def row_xor_reduce(A, regs):
    for ctl in ("quad_perm:[1,0,3,2]", "quad_perm:[2,3,0,1]", "row_half_mirror", "row_mirror"):
        if len(regs) < 3:
            A.nop(3 - len(regs))
        for r in regs:
            A("v_xor_b32_dpp %s, %s, %s %s row_mask:0xf bank_mask:0xf" % (v(r), v(r), v(r), ctl))

def gen_kv_issue(A):
    srd(A, 48, PK, S * ROWB)
    srd(A, 52, PV, S * ROWB)
    A("v_and_b32 v1, 63, v0")
    A("v_lshrrev_b32 v4, 3, v1")
    A("v_mul_u32_u24 v4, 1152, v4")
    A("v_and_b32 v5, 7, v1")
    A("v_lshl_add_u32 v4, v5, 4, v4")
    A("s_mul_i32 s62, s61, %d" % (128 * 1152))
    A("s_lshl_b32 s63, s60, 7")
    A("s_add_u32 s62, s62, s63")
    A("s_mul_i32 s63, s42, 9216")
    A("s_add_u32 s62, s62, s63")
    A("s_sub_u32 s63, s62, 9216")
    A("s_lshl_b32 s64, s42, 10")
    srd(A, 16, PQ, S * ROWB)
    for i in range(4):
        A("s_mov_b32 m0, s64")
        A("s_add_u32 s65, s64, %d" % LV)
        A("buffer_load_dwordx4 v4, s[48:51], s63 offen lds" + NTS)
        A("s_mov_b32 m0, s65")
        A("s_add_u32 s65, s64, %d" % LQ)
        A("buffer_load_dwordx4 v4, s[52:55], s62 offen lds" + NTS)
        A("s_mov_b32 m0, s65")
        A("s_add_u32 s64, s64, 4096")
        A("buffer_load_dwordx4 v4, s[16:19], s62 offen lds" + NTS)
        A("s_add_u32 s63, s63, %d" % (32 * 1152))
        A("s_add_u32 s62, s62, %d" % (32 * 1152))
    Ln = A.newlabel("nok17")
    A("s_cmp_lg_u32 s42, 0")
    A("s_cbranch_scc1 %s" % Ln)
    A("s_mov_b32 m0, s64")
    A("s_nop 0")
    A("buffer_load_dwordx4 v4, s[48:51], s63 offen lds" + NTS)
    A.label(Ln)

def gen_kv_addr(A):
    srd(A, 56, PSHK, D * 8)
    A("v_and_b32 v2, 31, v0")
    A("s_lshl_b32 s63, s60, 9")
    A("v_lshl_add_u32 v29, v2, 4, s63")
    A("buffer_load_dwordx4 v[32:35], v29, s[56:59], 0 offen")

def gen_kv_addr2(A):
    A("v_lshrrev_b32 v3, 5, v0")
    A("v_lshlrev_b32 v6, 10, v3")
    A("v_lshl_add_u32 v6, v2, 2, v6")
    A("v_mul_u32_u24 v7, %d, v2" % (2 * SGS))
    A("v_sub_u32 v8, 15, v3")
    A("v_lshl_add_u32 v7, v8, 4, v7")
    A("v_add_u32 v7, %d, v7" % SG)
    A("v_bfe_u32 v10, v0, 4, 2")
    A("v_and_b32 v11, 15, v0")
    A("v_mul_u32_u24 v8, %d, v10" % SGS)
    A("v_lshl_add_u32 v8, v11, 4, v8")
    A("s_mul_i32 s63, s42, %d" % (8 * SGS))
    A("s_add_u32 s63, s63, %d" % SG)
    A("v_add_u32 v8, s63, v8")
    A("v_lshlrev_b32 v9, 12, v10")
    A("v_lshl_add_u32 v9, v11, 4, v9")
    A("s_lshl_b32 s63, s60, 6")
    A("s_lshl_b32 s64, s42, 3")
    A("s_add_u32 s63, s63, s64")
    A("s_lshl_b32 s65, s63, 12")
    A("s_lshl_b32 s64, s61, 8")
    A("s_sub_u32 s65, s65, s64")
    A("s_add_u32 s65, s65, %d" % (F_UR + 240 * 16))
    A("v_add_u32 v9, s65, v9")
    A("v_lshlrev_b32 v12, 7, v10")
    A("s_lshl_b32 s65, s63, 7")
    A("s_lshl_b32 s64, s61, 3")
    A("s_sub_u32 s65, s65, s64")
    A("s_add_u32 s65, s65, %d" % (F_URC + 120))
    A("v_add_u32 v12, s65, v12")
    A("v_cmp_eq_u32 s[66:67], 0, v11")
    A("v_mul_u32_u24 v13, %d, v2" % (2 * SGS))
    A("v_lshl_add_u32 v13, v3, 4, v13")
    A("v_add_u32 v13, %d, v13" % SX)
    A("v_lshlrev_b32 v48, 12, v10")
    A("v_lshl_add_u32 v48, v11, 4, v48")
    A("s_lshl_b32 s65, s63, 12")
    A("s_lshl_b32 s64, s61, 8")
    A("s_add_u32 s65, s65, s64")
    A("s_add_u32 s65, s65, %d" % F_XT)
    A("v_add_u32 v48, s65, v48")
    A("v_lshlrev_b32 v49, 7, v10")
    A("s_lshl_b32 s65, s63, 7")
    A("s_lshl_b32 s64, s61, 3")
    A("s_add_u32 s65, s65, s64")
    A("s_add_u32 s65, s65, %d" % F_XC)
    A("v_add_u32 v49, s65, v49")

def gen_kv_compute(A):
    def trans():
        A("s_waitcnt vmcnt(0)")
        A("s_barrier")
        st_(A, 1)
        dbg_time(A, 8)
    tp = TwoPass(A, "kv")
    tp.begin(trans)
    for i in range(11):
        A("ds_read_b32 %s, v6 offset:%d" % (v(14 + i), LK + (5 + i) * 128))
    for i in range(8):
        A("ds_read_b32 %s, v6 offset:%d" % (v(40 + i), LV + i * 128))
    for i in range(8):
        A("ds_read_b32 %s, v6 offset:%d" % (v(144 + i), LQ + i * 128))
    A("v_lshlrev_b32 v54, 16, v32"); A("v_lshlrev_b32 v55, 16, v34")
    A("v_and_b32 v56, s40, v32");    A("v_and_b32 v57, s40, v34")
    A("v_lshlrev_b32 v58, 16, v33"); A("v_lshlrev_b32 v59, 16, v35")
    A("v_and_b32 v60, s40, v33");    A("v_and_b32 v61, s40, v35")
    DOT = bool(os.environ.get("DOT2", "1") != "0")
    W, K, KV = 54, 62, 100
    A("s_mov_b32 s64, 0x05040100"); A("s_mov_b32 s65, 0x07060302")
    if DOT:
        A("v_and_b32 v62, 0xffff, v32"); A("v_lshlrev_b32 v63, 16, v34")
        A("v_lshrrev_b32 v64, 16, v32"); A("v_and_b32 v65, s40, v34")
        A("v_and_b32 v66, 0xffff, v33"); A("v_lshlrev_b32 v67, 16, v35")
        A("v_lshrrev_b32 v68, 16, v33"); A("v_and_b32 v69, s40, v35")
        A("v_mov_b32 v70, 0x3f803f80")
        A("v_mov_b32 v71, 0")
        A("s_waitcnt lgkmcnt(0)")
        for j in range(4):
            A("v_perm_b32 %s, %s, %s, s64" % (v(152 + j), v(144 + 2 * j + 1), v(144 + 2 * j)))
            A("v_perm_b32 %s, %s, %s, s65" % (v(156 + j), v(144 + 2 * j + 1), v(144 + 2 * j)))
        A("ds_write_b128 v13, v[152:155]")
        A("ds_write_b128 v13, v[156:159] offset:%d" % SGS)
        def ch_ops(i, c, t0):
            a_, b_, p_, q_ = t0, t0 + 1, t0 + 2, t0 + 3
            o = []
            d2 = lambda d, x, y, z: "v_dot2_f32_bf16 %s, %s, %s, %s" % (v(d), v(x), v(y), z)
            o.append(d2(a_, 14 + i + 0, 62 + 2 * 3 + c, "0"))
            o.append(d2(b_, 14 + i + 1, 62 + 2 * 2 + c, "0"))
            o.append(d2(q_, 14 + i + 2, 62 + 2 * 1 + c, "0"))
            o.append("v_cvt_pk_bf16_f32 %s, %s, %s" % (v(p_), v(a_), v(b_)))
            o.append(d2(b_, 14 + i + 3, 62 + 2 * 0 + c, "0"))
            o.append(d2(a_, p_, 70, "0"))
            o.append("s_nop 0")
            o.append("v_cvt_pk_bf16_f32 %s, %s, %s" % (v(p_), v(a_), v(q_)))
            o.append("s_nop 0")
            o.append(d2(a_, p_, 70, "0"))
            o.append("s_nop 0")
            o.append("v_cvt_pk_bf16_f32 %s, %s, %s" % (v(p_), v(a_), v(b_)))
            o.append("s_nop 0")
            o.append(d2(a_, p_, 70, "0"))
            o.append("s_nop 0")
            if c == 0:
                o.append("v_cvt_pk_bf16_f32 %s, %s, %s" % (v(p_), v(a_), v(71)))
            else:
                o.append("v_cvt_pk_bf16_f32 %s, %s, %s" % (v(p_), v(71), v(a_)))
            o.append("s_nop 0")
            o.append(d2(KV + 2 * i + c, p_, 40 + i, "0"))
            if FAST and os.environ.get('KVEXACT', '0') == '0':
                o = []
                o.append(d2(a_, 14 + i + 0, 62 + 2 * 3 + c, "0"))
                if c == 0:
                    o.append("v_lshlrev_b32 %s, 16, %s" % (v(b_), v(40 + i)))
                else:
                    o.append("v_and_b32 %s, s40, %s" % (v(b_), v(40 + i)))
                o.append(d2(a_, 14 + i + 1, 62 + 2 * 2 + c, v(a_)))
                o.append(d2(a_, 14 + i + 2, 62 + 2 * 1 + c, v(a_)))
                o.append(d2(a_, 14 + i + 3, 62 + 2 * 0 + c, v(a_)))
                o.append("v_mul_f32 %s, %s, %s" % (v(KV + 2 * i + c), v(a_), v(b_)))
            return [x for x in o if x != "s_nop 0"]
        for i in range(0, 8, 4):
            streams = []
            for ii in range(4):
                for c in range(2):
                    streams.append(ch_ops(i + ii, c, 72 + 4 * (2 * ii + c) if (2 * ii + c) < 7 else 132))
            interleave(A, streams)
        A.nop(3)
        for c in range(2):
            for j in range(4):
                A("v_cvt_pk_bf16_f32 %s, %s, %s" % (v(116 + 4 * c + j), v(KV + 2 * (7 - 2 * j) + c), v(KV + 2 * (6 - 2 * j) + c)))
    else:
        A("s_waitcnt lgkmcnt(15)")
        for i in range(11):
            unpack_pair(A, K + 2 * i, K + 2 * i + 1, 14 + i, 40)
        A("s_waitcnt lgkmcnt(0)")
        for j in range(4):
            A("v_perm_b32 %s, %s, %s, s64" % (v(152 + j), v(144 + 2 * j + 1), v(144 + 2 * j)))
            A("v_perm_b32 %s, %s, %s, s65" % (v(156 + j), v(144 + 2 * j + 1), v(144 + 2 * j)))
        A("ds_write_b128 v13, v[152:155]")
        A("ds_write_b128 v13, v[156:159] offset:%d" % SGS)
        def pr_(r):
            return "v[%d:%d]" % (r, r + 1)
        def row_ops(i, acc, tmp, t3):
            P = Asm()
            P("v_pk_mul_f32 %s, %s, %s" % (pr_(acc), pr_(K + 2 * (i + 0)), pr_(W + 6)))
            round_pair(P, acc, acc + 1, t3, 40)
            for t in range(1, 4):
                P("v_pk_mul_f32 %s, %s, %s" % (pr_(tmp), pr_(K + 2 * (i + t)), pr_(W + 2 * (3 - t))))
                round_pair(P, tmp, tmp + 1, t3, 40)
                P("v_pk_add_f32 %s, %s, %s" % (pr_(acc), pr_(acc), pr_(tmp)))
                round_pair(P, acc, acc + 1, t3, 40)
            unpack_pair(P, tmp, tmp + 1, 40 + i, 40)
            P("v_pk_mul_f32 %s, %s, %s" % (pr_(KV + 2 * i), pr_(acc), pr_(tmp)))
            return [l.strip() for l in P.lines]
        for i in range(0, 8, 4):
            interleave(A, [row_ops(i, 84, 86, 88), row_ops(i + 1, 90, 92, 94), row_ops(i + 2, 132, 134, 136), row_ops(i + 3, 138, 140, 142)])
        for c in range(2):
            for j in range(4):
                A("v_cvt_pk_bf16_f32 %s, %s, %s" % (v(116 + 4 * c + j), v(KV + 2 * (7 - 2 * j) + c), v(KV + 2 * (6 - 2 * j) + c)))
    A("ds_write_b128 v7, v[116:119]")
    A("ds_write_b128 v7, v[120:123] offset:%d" % SGS)
    A("s_waitcnt lgkmcnt(0)")
    tp.end()
    A("s_barrier")
    A("ds_read_b128 v[116:119], v8")
    A("ds_read_b128 v[120:123], v8 offset:%d" % (4 * SGS))
    A("s_movk_i32 s63, 16384")
    A("s_waitcnt lgkmcnt(1)")
    A("buffer_store_dwordx4 v[116:119], v9, s[36:39], 0 offen sc1")
    A("v_xor_b32 v124, v116, v117"); A("v_xor_b32 v126, v118, v119")
    A("s_waitcnt lgkmcnt(0)")
    A("buffer_store_dwordx4 v[120:123], v9, s[36:39], s63 offen sc1")
    A("v_xor_b32 v125, v120, v121"); A("v_xor_b32 v127, v122, v123")
    A("v_xor_b32 v124, v124, v126"); A("v_xor_b32 v125, v125, v127")
    row_xor_reduce(A, [124, 125])
    A("v_xor_b32 v128, s%d, v124" % TAG); A("v_xor_b32 v130, s%d, v125" % TAG)
    A("v_mov_b32 v129, s%d" % TAG); A("v_mov_b32 v131, s%d" % TAG)
    A("s_mov_b64 exec, s[66:67]")
    A("buffer_store_dwordx2 v[128:129], v12, s[36:39], 0 offen sc1")
    A("buffer_store_dwordx2 v[130:131], v12, s[36:39], 0 offen offset:512 sc1")
    A("s_mov_b64 exec, -1")
    A("ds_read_b128 v[116:119], v8 offset:%d" % (SX - SG))
    A("ds_read_b128 v[120:123], v8 offset:%d" % (SX - SG + 4 * SGS))
    A("s_waitcnt lgkmcnt(1)")
    A("buffer_store_dwordx4 v[116:119], v48, s[36:39], 0 offen sc1")
    A("v_xor_b32 v124, v116, v117"); A("v_xor_b32 v126, v118, v119")
    A("s_waitcnt lgkmcnt(0)")
    A("buffer_store_dwordx4 v[120:123], v48, s[36:39], s63 offen sc1")
    A("v_xor_b32 v125, v120, v121"); A("v_xor_b32 v127, v122, v123")
    A("v_xor_b32 v124, v124, v126"); A("v_xor_b32 v125, v125, v127")
    row_xor_reduce(A, [124, 125])
    A("v_xor_b32 v128, s%d, v124" % TAG); A("v_xor_b32 v130, s%d, v125" % TAG)
    A("s_mov_b64 exec, s[66:67]")
    A("buffer_store_dwordx2 v[128:129], v49, s[36:39], 0 offen sc1")
    A("buffer_store_dwordx2 v[130:131], v49, s[36:39], 0 offen offset:512 sc1")
    A("s_mov_b64 exec, -1")
    st_(A, 2)

def gen_ln(A, two=False):
    srd(A, 48, PQ, S * ROWB)
    srd(A, 56, PWR, D * 2)
    A("v_and_b32 v1, 63, v0")
    A("v_and_b32 v2, 15, v0")
    A("v_lshrrev_b32 v3, 4, v1")
    A("s_lshl_b32 s61, s60, 2")
    A("v_add_u32 v30, s61, v3")
    A("s_movk_i32 s62, 1152")
    A("v_mul_lo_u32 v6, v30, s62")
    A("v_lshl_add_u32 v6, v2, 3, v6")
    A("v_lshlrev_b32 v7, 3, v2")
    Q, WR, X = 64, 84, 104
    for i in range(9):
        A("buffer_load_dwordx2 %s, v6, s[48:51], 0 offen offset:%d" % (v(Q + 2 * i, 2), 128 * i) + QNT)
    for i in range(9):
        A("buffer_load_dwordx2 %s, v7, s[56:59], 0 offen offset:%d" % (v(WR + 2 * i, 2), 128 * i))
    if two:
        A("s_mov_b32 s62, %d" % (1024 * 1152))
        for i in range(9):
            A("buffer_load_dwordx2 %s, v6, s[48:51], s62 offen offset:%d" % (v(144 + 2 * i, 2), 128 * i))
    return Q, WR, X

def gen_ln_compute(A, Q, WR, X, extra=0, first_wait=None):
    def trans():
        A("s_waitcnt vmcnt(%d)" % extra)
        st_(A, 1)
    tp = TwoPass(A, "ln")
    tp.begin(trans)
    for i in range(18):
        unpack_pair(A, X + 2 * i, X + 2 * i + 1, Q + i, 40)
    A("v_pk_add_f32 v[8:9], %s, %s" % (v(X, 2), v(X + 2, 2)))
    A("v_pk_add_f32 v[10:11], %s, %s" % (v(X + 4, 2), v(X + 6, 2)))
    for i in range(4, 18, 2):
        A("v_pk_add_f32 v[8:9], v[8:9], %s" % v(X + 2 * i, 2))
        A("v_pk_add_f32 v[10:11], v[10:11], %s" % v(X + 2 * i + 2, 2))
    A("v_pk_add_f32 v[8:9], v[8:9], v[10:11]")
    A.nop(1)
    A("v_add_f32 v8, v8, v9")
    allreduce16_add(A, 8)
    A("v_mul_f32 v8, 0x3ae38e39, v8")
    A("v_sub_f32 v12, 0, v8")
    A("v_sub_f32 v13, 0, v8")
    for r in (14, 15, 16, 17):
        A("v_mov_b32 %s, 0" % v(r))
    for i in range(0, 18, 2):
        A("v_pk_add_f32 v[18:19], %s, v[12:13]" % v(X + 2 * i, 2))
        A("v_pk_add_f32 v[20:21], %s, v[12:13]" % v(X + 2 * i + 2, 2))
        A("v_pk_fma_f32 v[14:15], v[18:19], v[18:19], v[14:15]")
        A("v_pk_fma_f32 v[16:17], v[20:21], v[20:21], v[16:17]")
    A("v_pk_add_f32 v[14:15], v[14:15], v[16:17]")
    A.nop(1)
    A("v_add_f32 v14, v14, v15")
    allreduce16_add(A, 14)
    A("v_mul_f32 v14, 0x3ae38e39, v14")
    A.nop(1)
    round_pair(A, 8, 14, 9, 40)
    A("v_add_f32 v14, 0x3727c5ac, v14")
    A.nop(1)
    A("v_cvt_pk_bf16_f32 v9, v14, v14")
    A("v_lshlrev_b32 v14, 16, v9")
    A("v_sqrt_f32 v14, v14")
    A.nop(1)
    A("v_cvt_pk_bf16_f32 v9, v14, v14")
    A("v_lshlrev_b32 v14, 16, v9")
    A("v_rcp_f32 v15, v14")
    A.nop(1)
    A("v_fma_f32 v16, -v14, v15, 1.0")
    A("v_fma_f32 v15, v16, v15, v15")
    A("v_sub_f32 v12, 0, v8"); A("v_sub_f32 v13, 0, v8")
    A("v_mov_b32 v16, v15"); A("v_mov_b32 v17, v15")
    for r in (22, 23, 24, 25):
        A("v_mov_b32 %s, 0" % v(r))
    def ops(i, tm, acc):
        x0 = X + 2 * i
        P = Asm()
        P("v_pk_add_f32 %s, %s, v[12:13]" % (v(x0, 2), v(x0, 2)))
        round_pair(P, x0, x0 + 1, tm, 40)
        P("v_pk_mul_f32 %s, %s, v[16:17]" % (v(x0, 2), v(x0, 2)))
        round_pair(P, x0, x0 + 1, tm, 40)
        unpack_pair(P, tm + 2, tm + 3, WR + i, 40)
        P("v_pk_fma_f32 %s, %s, %s, %s" % (v(acc, 2), v(x0, 2), v(tm + 2, 2), v(acc, 2)))
        return [l.strip() for l in P.lines]
    for i in range(0, 18, 2):
        interleave(A, [ops(i, 26, 22), ops(i + 1, 32, 24)])
    A("v_pk_add_f32 v[22:23], v[22:23], v[24:25]")
    A.nop(1)
    A("v_add_f32 v22, v22, v23")
    allreduce16_add(A, 22)
    A.nop(1)
    A("v_cvt_pk_bf16_f32 v23, v22, v22")
    A("v_lshlrev_b32 v23, 16, v23")
    A("v_ashrrev_i32 v24, 31, v23")
    A("v_or_b32 v24, 0x80000000, v24")
    A("v_xor_b32 v23, v23, v24")
    A("v_and_b32 v23, s40, v23")
    A("v_sub_u32 v24, 2047, v30")
    A("v_or_b32 v26, v23, v24")
    A("v_mov_b32 v27, s%d" % TAG)
    A("v_cvt_pk_bf16_f32 v32, v8, v14")
    A("v_mov_b32 v33, s%d" % TAG)
    A("v_lshlrev_b32 v28, 3, v30")
    A("s_movk_i32 s61, %d" % F_KEYG)
    A("s_mov_b32 s62, %d" % F_ROWG)
    tp.end()
    A("v_cmp_eq_u32 vcc, 0, v2")
    A("s_and_saveexec_b64 s[64:65], vcc")
    A("buffer_store_dwordx2 v[26:27], v28, s[36:39], s61 offen sc1")
    A("buffer_store_dwordx2 v[32:33], v28, s[36:39], s62 offen sc1")
    A("s_mov_b64 exec, s[64:65]")
    st_(A, 2)

def load_verified_runs(A, pay_soff, chk_soff, vlane16, vchk8, vhint8, P, pre, sleep):
    C, Tm = P + 16, P + 20
    def hint_loads():
        A("buffer_load_dwordx2 %s, %s, s[36:39], %s offen sc1" % (v(C, 2), vhint8, chk_soff))
    masked_poll(A, "vh", hint_loads, [C + 1], sleep, pre)
    Lp = A.newlabel("vp"); Ld = A.newlabel("vok")
    A("s_mov_b32 s52, 0")
    A.label(Lp)
    for i in range(4):
        A("buffer_load_dwordx4 %s, %s, s[36:39], %s offen offset:%d sc1" % (v(P + 4 * i, 4), vlane16, pay_soff, 1024 * i))
    for i in range(4):
        A("buffer_load_dword %s, %s, s[36:39], %s offen offset:%d sc1" % (v(C + i), vchk8, chk_soff, 32 * i))
    A("s_waitcnt vmcnt(0)")
    for i in range(4):
        A("v_xor_b32 %s, %s, %s" % (v(Tm + i), v(P + 4 * i), v(P + 1 + 4 * i)))
    for i in range(4):
        A("v_xor_b32 %s, %s, %s" % (v(Tm + 4 + i), v(P + 2 + 4 * i), v(P + 3 + 4 * i)))
    for i in range(4):
        A("v_xor_b32 %s, %s, %s" % (v(Tm + i), v(Tm + i), v(Tm + 4 + i)))
    row_xor_reduce(A, [Tm, Tm + 1, Tm + 2, Tm + 3])
    for i in range(4):
        A("v_xor_b32 %s, %s, %s" % (v(Tm + i), v(Tm + i), v(C + i)))
    A("v_cmp_eq_u32 vcc, s%d, %s" % (TAG, v(Tm)))
    for i in range(1, 4):
        A("v_cmp_eq_u32 s[54:55], s%d, %s" % (TAG, v(Tm + i)))
        A("s_and_b64 vcc, vcc, s[54:55]")
    A("s_cmp_eq_u64 vcc, -1")
    A("s_cbranch_scc1 %s" % Ld)
    A("s_add_u32 s52, s52, 1")
    A("s_cmp_gt_u32 s52, %d" % POLL_MAX)
    A("s_cbranch_scc1 %s" % Ld)
    A("s_sleep 2")
    A("s_branch %s" % Lp)
    A.label(Ld)

def build_ops(W, N, off):
    ops = []
    for k in range(7):
        ops.append("v_alignbit_b32 %s, %s, %s, 16" % (v(E_ + k), v(W + k + 1), v(W + k)))
    ops.append("ds_write_b128 v11, %s offset:%d" % (v(W + 2, 4), 4 * CS + off))
    for k in range(3):
        ops.append("v_pk_mov_b32 %s, %s, %s op_sel:[1,0]" % (v(G_ + 2 * k, 2), v(W + 2 * k, 2), v(W + 2 * k + 2, 2)))
    ops.append("ds_write_b128 v11, %s offset:%d" % (v(E_, 4), 1 * CS + off))
    ops.append("ds_write_b128 v11, %s offset:%d" % (v(E_ + 2, 4), 5 * CS + off))
    for k in range(3):
        ops.append("v_pk_mov_b32 %s, %s, %s op_sel:[1,0]" % (v(F_ + 2 * k, 2), v(E_ + 2 * k, 2), v(E_ + 2 * k + 2, 2)))
    ops.append("ds_write_b128 v11, %s offset:%d" % (v(G_, 4), 2 * CS + off))
    ops.append("ds_write_b128 v11, %s offset:%d" % (v(G_ + 2, 4), 6 * CS + off))
    ops.append("s_nop 0")
    ops.append("ds_write_b128 v11, %s offset:%d" % (v(F_, 4), 3 * CS + off))
    ops.append("ds_write_b128 v11, %s offset:%d" % (v(F_ + 2, 4), 7 * CS + off))
    return ops

def gen_partial_gather(A):
    T = "s%d" % TAG
    A("v_and_b32 v5, 255, v0")
    A("v_and_b32 v1, 63, v0")
    A("v_and_b32 v12, 7, v5")
    A("v_mul_u32_u24 v12, 2304, v12")
    A("v_lshrrev_b32 v13, 3, v5")
    A("v_mul_u32_u24 v14, 18432, v13")
    A("v_add_u32 v12, v12, v14")
    A("s_lshl_b32 s51, s41, 4")
    A("s_add_u32 s51, s51, %d" % F_PARTG)
    A("v_add_u32 v12, s51, v12")
    A("v_add_u32 v14, %d, v12" % (64 * 18432))
    A("v_cmp_gt_u32 vcc, 8, v13")
    A.nop(2)
    A("v_cndmask_b32 v14, v12, v14, vcc")
    A("s_mov_b64 s[56:57], vcc")
    def part_loads():
        A("s_mov_b32 s51, %d" % (32 * 18432))
        A("buffer_load_dwordx4 v[160:163], v12, s[36:39], 0 offen sc1")
        A("buffer_load_dwordx4 v[164:167], v12, s[36:39], s51 offen sc1")
        A("buffer_load_dwordx4 v[168:171], v14, s[36:39], 0 offen sc1")
    Lp = A.newlabel("ppp"); Ld = A.newlabel("ppok")
    if int(os.environ.get("PPPRE", 0)):
        A("s_sleep %d" % int(os.environ.get("PPPRE", 0)))
    A("s_mov_b32 s52, 0")
    A.label(Lp)
    part_loads()
    A("s_waitcnt vmcnt(0)")
    for i in range(3):
        b = 160 + 4 * i
        A("v_xor_b32 %s, %s, %s" % (v(172 + i), v(b), v(b + 1)))
        A("v_xor_b32 %s, %s, %s" % (v(176 + i), v(b + 2), v(b + 3)))
    for i in range(3):
        A("v_xor_b32 %s, %s, %s" % (v(172 + i), v(172 + i), v(176 + i)))
    A("v_cmp_eq_u32 vcc, %s, v172" % T)
    for r in (173, 174):
        A("v_cmp_eq_u32 s[54:55], %s, %s" % (T, v(r)))
        A("s_and_b64 vcc, vcc, s[54:55]")
    A("s_andn2_b64 exec, exec, vcc")
    A("s_cbranch_scc0 %s" % Ld)
    A("s_add_u32 s52, s52, 1")
    A("s_cmp_gt_u32 s52, %d" % POLL_MAX)
    A("s_cbranch_scc1 %s" % Ld)
    A("s_sleep %d" % int(os.environ.get("PPSLEEP", 6)))
    A("s_branch %s" % Lp)
    A.label(Ld)
    A("s_mov_b64 exec, -1")
    st_(A, 8)
    dbg_time(A, 10)
    A("s_mov_b32 s58, 0xffffff00")
    A("s_mov_b32 s59, 0x0c0c0004")
    for i in range(3):
        b = 160 + 4 * i
        o = 20 + 4 * i
        A("v_lshlrev_b32 %s, 24, %s" % (v(o + 3), v(b)))
        A("v_and_b32 %s, 0xff, %s" % (v(176), v(b + 1)))
        A("v_and_b32 %s, 0xff, %s" % (v(177), v(b + 2)))
        A("v_lshl_or_b32 %s, %s, 16, %s" % (v(o + 3), v(176), v(o + 3)))
        A("v_lshl_or_b32 %s, %s, 8, %s" % (v(o + 3), v(177), v(o + 3)))
        for k in range(3):
            A("v_and_b32 %s, s58, %s" % (v(o + k), v(b + k)))
    for k in range(4):
        A("v_cndmask_b32 %s, 0, %s, s[56:57]" % (v(28 + k), v(28 + k)))
    for k in range(4):
        A("v_add_f32 %s, %s, %s" % (v(20 + k), v(20 + k), v(24 + k)))
    for k in range(4):
        A("v_add_f32 %s, %s, %s" % (v(20 + k), v(20 + k), v(28 + k)))
    A.nop(1)
    for k in range(4):
        A("v_add_f32_dpp %s, %s, %s row_ror:8 row_mask:0xf bank_mask:0xf" % (v(24 + k), v(20 + k), v(20 + k)))
    for k in range(4):
        A("v_mov_b32 %s, %s" % (v(28 + k), v(24 + k)))
    A.nop(1)
    for k in range(4):
        A("v_permlane16_swap_b32 %s, %s" % (v(24 + k), v(28 + k)))
    A.nop(1)
    for k in range(4):
        A("v_add_f32 %s, %s, %s" % (v(24 + k), v(24 + k), v(28 + k)))
    for k in range(4):
        A("v_mov_b32 %s, %s" % (v(28 + k), v(24 + k)))
    A.nop(1)
    for k in range(4):
        A("v_permlane32_swap_b32 %s, %s" % (v(24 + k), v(28 + k)))
    A.nop(1)
    for k in range(4):
        A("v_add_f32 %s, %s, %s" % (v(24 + k), v(24 + k), v(28 + k)))
    A("v_lshlrev_b32 v18, 4, v1")
    A("s_lshl_b32 s51, s43, 7")
    A("s_add_u32 s51, s51, %d" % RED)
    A("v_add_u32 v18, s51, v18")
    A("s_mov_b64 exec, 0xff")
    A("ds_write_b128 v18, v[24:27]")
    A("s_mov_b64 exec, -1")
    A("s_waitcnt lgkmcnt(0)")
    A("v_mov_b32 v11, %d" % FLAGS)
    A("v_mov_b32 v12, 1")
    lds_signal(A, 5, "v11", "v12")

def gen_M(A):
    A("s_setprio %d" % int(os.environ.get("MPRIO", 2)))
    srd(A, 32, PSSMK, D * S * 2)
    A("v_and_b32 v1, 63, v0")
    A("v_lshlrev_b32 v4, 4, v1")
    A("s_add_u32 s56, s45, %d" % (H_OFF + 512))
    A("s_lshl_b32 s57, s44, 12")
    A("s_mov_b32 m0, s56")
    A("s_lshl_b32 s51, s44, 1")
    for i in range(4):
        A("buffer_load_dwordx4 v4, s[32:35], s57 offen offset:%d lds" % (1024 * i) + NTS)
    A("s_add_u32 s56, s56, 4096")
    A("s_add_u32 s57, s57, 4096")
    A("s_mov_b32 m0, s56")
    A("s_mov_b64 exec, 0x3")
    A("buffer_load_dwordx4 v4, s[32:35], s57 offen lds" + NTS)
    A("s_mov_b64 exec, -1")
    A("s_and_b32 s52, s51, 0xfffffffc")
    A("s_add_u32 s54, s%d, s52" % PSSMD)
    A("s_addc_u32 s55, s%d, 0" % (PSSMD + 1))
    A("s_load_dword s53, s[54:55], 0")
    A("v_and_b32 v2, 15, v0")
    A("v_bfe_u32 v3, v0, 4, 2")
    A("v_mov_b32 v12, 0"); A("v_mov_b32 v13, 0"); A("v_mov_b32 v14, 0"); A("v_mov_b32 v15, 0")
    A("v_add_u32 v11, s45, v4")
    A("s_mov_b32 exec_hi, 0")
    A("ds_write_b128 v11, v[12:15] offset:%d" % H_OFF)
    A("s_mov_b64 exec, 0x3")
    for c in range(8):
        pass
    A("ds_write_b128 v11, v[12:15]")
    A("s_mov_b64 exec, 0xf")
    A("ds_write_b128 v11, v[12:15] offset:%d" % (258 * 16))
    A("s_mov_b64 exec, -1")
    A("v_lshlrev_b32 v5, 5, v2")
    A("v_lshl_add_u32 v5, v3, 4, v5")
    A("v_add_u32 v5, s45, v5")
    A("v_add_u32 v5, %d, v5" % H_OFF)
    A("v_and_b32 v8, 7, v2")
    A("v_sub_u32 v8, 7, v8")
    A("v_mul_u32_u24 v8, %d, v8" % CS)
    A("v_lshrrev_b32 v6, 3, v2")
    A("v_sub_u32 v6, v3, v6")
    A("v_lshlrev_b32 v6, 4, v6")
    A("v_add_u32 v8, v8, v6")
    A("v_add_u32 v8, 16, v8")
    A("v_add_u32 v9, s45, v8")
    A("v_lshlrev_b32 v6, 5, v2")
    A("v_lshl_add_u32 v6, v3, 3, v6")
    A("v_sub_u32 v7, %d, v6" % (4120 - 3584))
    A("v_add_u32 v7, s45, v7")
    A("v_add_u32 v6, s45, v6")
    A("v_add_u32 v6, %d, v6" % YOFF)
    A("s_lshl_b32 s49, s43, 2")
    A("s_add_u32 s49, s49, %d" % FLAGS)
    A("v_mov_b32 v10, s49")
    for i in range(32):
        A("v_mov_b32 %s, 0" % v(ACC + i))
    A("s_lshl_b32 s48, s44, 12")
    A("s_add_u32 s48, s48, %d" % F_UR)
    A("v_lshlrev_b32 v16, 3, v3")
    A("s_lshl_b32 s50, s44, 7")
    A("s_add_u32 s50, s50, %d" % F_URC)
    A("v_and_b32 v17, 15, v1")
    A("v_lshlrev_b32 v17, 3, v17")
    def hint_loads():
        A("buffer_load_dwordx2 v[136:137], v17, s[36:39], s50 offen sc1")
    if os.environ.get("URHINT"):
        masked_poll(A, "urh", hint_loads, [137], int(os.environ.get("URSLEEP", 4)), int(os.environ.get("URPRE", 8)))
    else:
        A("s_sleep %d" % int(os.environ.get("URPRE", 24)))
    Lp = A.newlabel("urp"); Ld = A.newlabel("urok")
    A("s_mov_b32 s52, 0")
    A.label(Lp)
    for i in range(4):
        A("buffer_load_dwordx4 %s, v4, s[36:39], s48 offen offset:%d sc1" % (v(120 + 4 * i, 4), 1024 * i))
    for i in range(4):
        A("buffer_load_dword %s, v16, s[36:39], s50 offen offset:%d sc1" % (v(136 + i), 32 * i))
    A("s_waitcnt vmcnt(0)")
    for i in range(4):
        A("v_xor_b32 %s, %s, %s" % (v(140 + i), v(120 + 4 * i), v(121 + 4 * i)))
    for i in range(4):
        A("v_xor_b32 %s, %s, %s" % (v(144 + i), v(122 + 4 * i), v(123 + 4 * i)))
    for i in range(4):
        A("v_xor_b32 %s, %s, %s" % (v(140 + i), v(140 + i), v(144 + i)))
    row_xor_reduce(A, [140, 141, 142, 143])
    for i in range(4):
        A("v_xor_b32 %s, %s, %s" % (v(140 + i), v(140 + i), v(136 + i)))
    A("v_cmp_eq_u32 vcc, s%d, v140" % TAG)
    for i in range(1, 4):
        A("v_cmp_eq_u32 s[54:55], s%d, %s" % (TAG, v(140 + i)))
        A("s_and_b64 vcc, vcc, s[54:55]")
    A("s_cmp_eq_u64 vcc, -1")
    A("s_cbranch_scc1 %s" % Ld)
    A("s_add_u32 s52, s52, 1")
    A("s_cmp_gt_u32 s52, %d" % POLL_MAX)
    A("s_cbranch_scc1 %s" % Ld)
    A("s_sleep %d" % int(os.environ.get("URSLEEP", 6)))
    A("s_branch %s" % Lp)
    A.label(Ld)
    st_(A, 3)
    dbg_time(A, 5)
    A("s_setprio %d" % int(os.environ.get("MPRIO2", 0)))
    for i in range(4):
        A("ds_write_b128 v11, %s offset:%d" % (v(120 + 4 * i, 4), 32 + 1024 * i))
    A("s_waitcnt lgkmcnt(0)")
    for (W, off) in ((152, 4096), (160, 3072), (168, 2048), (W1, 1024), (W0, 0)):
        A("ds_read_b128 %s, v11 offset:%d" % (v(W, 4), off))
        A("ds_read_b128 %s, v11 offset:%d" % (v(W + 4, 4), off + 16))
    A("s_waitcnt lgkmcnt(8)")
    A("s_mov_b64 exec, 0x1f")
    for o in build_ops(152, 0, 4096): A(o)
    A("s_mov_b64 exec, -1")
    A("s_waitcnt lgkmcnt(11)")
    for o in build_ops(160, 0, 3072): A(o)
    A("s_waitcnt lgkmcnt(14)")
    for o in build_ops(168, 0, 2048): A(o)
    A("s_waitcnt lgkmcnt(0)")
    st_(A, 4)
    hi_steps, lo_frags, lo_slot, lo_steps = conv_schedule()
    def bslot(sl):
        return v(BS + 4 * sl, 4)
    order, seen = [], set()
    for q, lst in hi_steps:
        for t, sl in lst:
            if sl not in seen:
                seen.add(sl); order.append(sl)
    aseq = [q for q in range(33)] + [q for q in range(65)]
    issued = []
    def issue(tag, txt):
        A(txt); issued.append(tag)
    def wait_for(tags):
        idx = max(len(issued) - 1 - issued[::-1].index(t) for t in tags)
        n = len(issued) - 1 - idx
        A("s_waitcnt lgkmcnt(%d)" % min(n, 15))
    def a_issue(k):
        issue(("A", k), "ds_read_b128 %s, v9 offset:%d" % (v(RING + 4 * (k % NR), 4), 64 * (64 - aseq[k])))
    def b_issue(sl):
        issue(("B", sl), "ds_read_b128 %s, v5 offset:%d" % (bslot(sl), 64 * (56 - sl + 8)))
    fill = deque()
    cnt = [0]
    def emit_fill(k):
        while k > 0 and fill:
            f = fill.popleft(); f(); cnt[0] += 1; k -= 1
    def add_plain(txt):
        if txt.startswith("ds_"):
            fill.append(lambda txt=txt: issue(("W",), txt))
        else:
            fill.append(lambda txt=txt: A(txt))
    a_issue(0)
    for sl in order[:5]:
        b_issue(sl)
    nextA = 1
    for k in range(1, NR):
        a_issue(nextA); nextA += 1
        b_issue(order[5 + k - 1])
    nextB = 5 + (NR - 1)
    A("s_and_b32 s52, s51, 2")
    A("s_lshl_b32 s52, s52, 3")
    A("s_lshr_b32 s53, s53, s52")
    A("s_lshl_b32 s53, s53, 16")
    A("v_mov_b32 v18, s53"); A("v_mov_b32 v19, s53")
    n = 0
    fu = {}
    for q, lst in hi_steps:
        for t, sl in lst:
            fu.setdefault(sl, q)
    for q, lst in hi_steps:
        while nextB < len(order) and fu[order[nextB]] <= q + 3:
            b_issue(order[nextB]); nextB += 1
        wait_for([("A", n)] + [("B", sl) for _, sl in lst])
        for t, sl in lst:
            A("v_mfma_f32_16x16x32_bf16 %s, %s, %s, %s" % (v(ACC + 4 * t, 4), v(RING + 4 * (n % NR), 4), bslot(sl), v(ACC + 4 * t, 4)))
        if nextA < len(aseq):
            a_issue(nextA); nextA += 1
        if q < 32:
            issue(("L", q), "ds_read_b128 %s, v5 offset:%d" % (bslot(q), 64 * (lo_frags[q] + 8)))
        n += 1
    st_(A, 5)
    def tile_epilogue(t):
        u0 = UREG + 2 * (t % 2)
        ac = ACC + 4 * t
        fill.append(lambda: wait_for([("U", t)] + ([("L", 31)] if t == 0 else [])))
        P = Asm()
        P("v_and_b32 v12, s40, %s" % v(u0 + 1))
        P("v_lshlrev_b32 v13, 16, %s" % v(u0 + 1))
        P("v_and_b32 v14, s40, %s" % v(u0))
        P("v_lshlrev_b32 v15, 16, %s" % v(u0))
        if FAST:
            P("s_nop 0"); P("s_nop 0")
            P("v_pk_fma_f32 v[12:13], v[12:13], v[18:19], %s" % v(ac, 2))
            P("v_pk_fma_f32 v[14:15], v[14:15], v[18:19], %s" % v(ac + 2, 2))
            P("s_nop 0")
        else:
            P("v_pk_mul_f32 v[12:13], v[12:13], v[18:19]")
            P("v_pk_mul_f32 v[14:15], v[14:15], v[18:19]")
            round_pair(P, 12, 13, 16, 40)
            round_pair(P, 14, 15, 17, 40)
            round_pair(P, ac, ac + 1, 16, 40)
            round_pair(P, ac + 2, ac + 3, 17, 40)
            P("v_pk_add_f32 v[12:13], v[12:13], %s" % v(ac, 2))
            P("v_pk_add_f32 v[14:15], v[14:15], %s" % v(ac + 2, 2))
        P("v_cvt_pk_bf16_f32 v16, v12, v13")
        P("v_cvt_pk_bf16_f32 v17, v14, v15")
        for l in P.lines:
            add_plain(l.strip())
        fill.append(lambda: issue(("Y", t), "ds_write_b64 v6, v[16:17] offset:%d" % (512 * t)))
        fill.append(lambda: A("v_mov_b32 v8, %d" % (t + 1)))
        for _ in range(3):
            fill.append(lambda: None)
        fill.append(lambda: wait_for([("Y", t)]))
        fill.append(lambda: issue(("F", t), "ds_write_b32 v10, v8"))
    for o in build_ops(W1, 0, 1024): add_plain(o)
    n1 = len(fill)
    for o in build_ops(W0, 0, 0): add_plain(o)
    n0 = len(fill)
    for q, lst in lo_steps:
        wait_for([("A", n)] + [("L", sl) for _, sl in lst])
        k = len(lst)
        per = int(os.environ.get('FPER', 2)) if k >= 2 else 1
        for i, (t, sl) in enumerate(lst):
            A("v_mfma_f32_16x16x32_bf16 %s, %s, %s, %s" % (v(ACC + 4 * t, 4), v(RING + 4 * (n % NR), 4), bslot(sl), v(ACC + 4 * t, 4)))
            if i < k - 1 or k == 1:
                emit_fill(per)
        if nextA < len(aseq):
            qq = aseq[nextA]
            if nextA >= 33 and qq >= 33:
                assert cnt[0] >= n1
            if nextA >= 33 and qq >= 49:
                assert cnt[0] >= n0
            a_issue(nextA); nextA += 1
        n += 1
        if q % 8 == 4:
            t = q // 8
            issue(("U", t), "ds_read_b64 %s, v7 offset:%d" % (v(UREG + 2 * (t % 2), 2), 512 * (7 - t)))
        if q >= 9 and (q - 9) % 8 == 0 and (q - 9) // 8 < 7:
            tile_epilogue((q - 9) // 8)
    A.nop(4)
    st_(A, 6)
    tile_epilogue(7)
    emit_fill(1000)
    st_(A, 7)
    dbg_time(A, 1)
    gen_partial_gather(A)
    st_(A, 9, end=True)
    A("s_endpgm")

XQ = 208
def h_early_loads(A):
    srd(A, 16, PQ, S * ROWB)
    A("v_and_b32 v201, 255, v0")
    A("s_movk_i32 s63, 1152")
    A("v_mul_lo_u32 v200, v201, s63")
    A("s_lshl_b32 s63, s41, 3")
    A("v_add_u32 v200, s63, v200")
    return 8

def strip_loads(A):
    h_early_loads(A)
    if os.environ.get("NOSTRIP"):
        for t in range(8):
            A("s_nop 0")
            A("buffer_load_dwordx2 %s, v1, s[16:19], 0 offen" % v(XQ + 2 * t, 2))
        return
    A("s_mov_b32 s63, 0")
    for t in range(8):
        A("buffer_load_dwordx2 %s, v200, s[16:19], s63 offen" % v(XQ + 2 * t, 2))
        A("s_add_u32 s63, s63, %d" % (256 * 1152))

def q_prefetch(A):
    srd(A, 16, PQ, S * ROWB)
    Ln = A.newlabel("noqpf")
    A("v_and_b32 v202, 15, v0")
    A("v_bfe_u32 v203, v0, 4, 2")
    A("v_mul_u32_u24 v203, 1152, v203")
    A("v_lshl_add_u32 v202, v202, 4, v203")
    A("s_mul_i32 s63, s30, 144")
    A("s_and_b32 s63, s63, 0xffffff80")
    A("s_min_u32 s64, s31, 15")
    A("s_lshl_b32 s64, s64, 7")
    A("s_sub_u32 s65, s42, 4")
    A("s_lshl_b32 s65, s65, 5")
    A("s_add_u32 s64, s64, s65")
    A("s_mul_i32 s64, s64, 1152")
    A("s_add_u32 s63, s63, s64")
    for i in range(8):
        A("buffer_load_dwordx4 v[204:207], v202, s[16:19], s63 offen")
        A("s_add_u32 s63, s63, %d" % (4 * 1152))

def gen_H(A):
    srd(A, 20, POUT, S * ROWB)
    T = "s%d" % TAG
    A("v_and_b32 v1, 63, v0")
    A("v_mov_b32 v5, v201")
    A("v_mov_b32 v6, v200")
    A("v_lshlrev_b32 v7, 3, v5")
    RG = 160
    X, XN, T1 = 64, 96, 128
    A("s_setprio %d" % int(os.environ.get("HPRIO", 1)))
    for r in range(32):
        A("v_mov_b32 %s, 0" % v(X + r))
    A("v_lshlrev_b32 v8, 4, v1")
    A("v_lshrrev_b32 v9, 4, v1")
    A("v_lshlrev_b32 v9, 3, v9")
    A("s_lshl_b32 s48, s44, 12")
    A("s_add_u32 s48, s48, %d" % F_XT)
    A("s_lshl_b32 s50, s44, 7")
    A("s_add_u32 s50, s50, %d" % F_XC)
    P, C, Tm = 224, 240, 244
    A("s_sleep %d" % int(os.environ.get("ROWPRE", 32)))
    Lp = A.newlabel("hp"); Ld = A.newlabel("hok")
    A("s_mov_b32 s52, 0")
    A.label(Lp)
    for i in range(4):
        A("buffer_load_dwordx4 %s, v8, s[36:39], s48 offen offset:%d sc1" % (v(P + 4 * i, 4), 1024 * i))
    for i in range(4):
        A("buffer_load_dword %s, v9, s[36:39], s50 offen offset:%d sc1" % (v(C + i), 32 * i))
    for t in range(8):
        A("s_mov_b32 s51, %d" % (F_ROWG + 2048 * t))
        A("buffer_load_dwordx2 %s, v7, s[36:39], s51 offen sc1" % v(RG + 2 * t, 2))
    A("s_waitcnt vmcnt(8)")
    for i in range(4):
        A("v_xor_b32 %s, %s, %s" % (v(Tm + i), v(P + 4 * i), v(P + 1 + 4 * i)))
    for i in range(4):
        A("v_xor_b32 %s, %s, %s" % (v(Tm + 4 + i), v(P + 2 + 4 * i), v(P + 3 + 4 * i)))
    for i in range(4):
        A("v_xor_b32 %s, %s, %s" % (v(Tm + i), v(Tm + i), v(Tm + 4 + i)))
    row_xor_reduce(A, [Tm, Tm + 1, Tm + 2, Tm + 3])
    for i in range(4):
        A("v_xor_b32 %s, %s, %s" % (v(Tm + i), v(Tm + i), v(C + i)))
    A("v_cmp_eq_u32 vcc, s%d, %s" % (TAG, v(Tm)))
    for i in range(1, 4):
        A("v_cmp_eq_u32 s[54:55], s%d, %s" % (TAG, v(Tm + i)))
        A("s_and_b64 vcc, vcc, s[54:55]")
    A("s_waitcnt vmcnt(0)")
    for r in range(RG + 1, RG + 16, 2):
        A("v_cmp_eq_u32 s[54:55], s%d, %s" % (TAG, v(r)))
        A("s_and_b64 vcc, vcc, s[54:55]")
    A("s_cmp_eq_u64 vcc, -1")
    A("s_cbranch_scc1 %s" % Ld)
    A("s_add_u32 s52, s52, 1")
    A("s_cmp_gt_u32 s52, %d" % POLL_MAX)
    A("s_cbranch_scc1 %s" % Ld)
    A("s_sleep %d" % int(os.environ.get("ROWSLEEP", 8)))
    A("s_branch %s" % Lp)
    A.label(Ld)
    st_(A, 10)
    A("v_mov_b32 v11, %d" % FLAGS)
    A("v_mov_b32 v12, 1")
    lds_signal(A, 4, "v11", "v12")
    lds_wait(A, 4, 4, "v11", "v13", sleep=1)
    st_(A, 2 + 7)
    A("v_lshlrev_b32 v8, 1, v5")
    A("s_lshl_b32 s48, s41, 14")
    A("s_add_u32 s48, s48, %d" % F_XT)
    for c in range(4):
        for t in range(8):
            A("buffer_load_short_d16_hi %s, v8, s[36:39], s48 offen offset:%d sc1" % (v(X + 4 * t + c), 512 * t))
        A("s_add_u32 s48, s48, 4096")
    if FAST:
        for t in range(8):
            st = 176 + 4 * t
            A("v_and_b32 %s, s40, %s" % (v(st), v(RG + 2 * t)))
            A("v_lshlrev_b32 %s, 16, %s" % (v(st + 2), v(RG + 2 * t)))
        for t in range(8):
            st = 176 + 4 * t
            A("v_rcp_f32 %s, %s" % (v(st), v(st)))
        for t in range(8):
            st = 176 + 4 * t
            A("v_mul_f32_e64 %s, -%s, %s" % (v(st + 2), v(st + 2), v(st)))
            A("v_mov_b32 %s, %s" % (v(st + 1), v(st)))
        for t in range(8):
            st = 176 + 4 * t
            A("v_mov_b32 %s, %s" % (v(st + 3), v(st + 2)))
        A("s_waitcnt vmcnt(0)")
        st_(A, 3)
        for t in range(8):
            st = 176 + 4 * t
            for p in range(2):
                x, xn = X + 4 * t + 2 * p, XN + 4 * t + 2 * p
                A("v_pk_fma_f32 %s, %s, %s, %s" % (v(xn, 2), v(x, 2), v(st, 2), v(st + 2, 2)))
    else:
        for t in range(8):
            stats_from_msd(A, RG + 2 * t, 176 + 6 * t, 40)
        A("s_waitcnt vmcnt(0)")
        st_(A, 3)
        for t in range(8):
            st = 176 + 6 * t
            streams = []
            for p in range(2):
                x, xn = X + 4 * t + 2 * p, XN + 4 * t + 2 * p
                tm = 56 + 4 * p
                P = Asm()
                P("v_pk_add_f32 %s, %s, %s" % (v(tm, 2), v(x, 2), v(st, 2)))
                round_pair(P, tm, tm + 1, tm + 2, 40)
                P("v_pk_mul_f32 %s, %s, %s" % (v(xn, 2), v(tm, 2), v(st + 2, 2)))
                P("v_pk_fma_f32 %s, %s, %s, %s" % (v(tm, 2), v(xn, 2), v(st + 4, 2), v(tm, 2)))
                P("v_pk_fma_f32 %s, %s, %s, %s" % (v(xn, 2), v(tm, 2), v(st + 2, 2), v(xn, 2)))
                round_pair(P, xn, xn + 1, tm + 2, 40)
                streams.append([l.strip() for l in P.lines])
            interleave(A, streams)
    st_(A, 4)
    dbg_time(A, 11)
    A("v_lshlrev_b32 v9, 1, v5")
    A("v_add_u32 v9, %d, v9" % YOFF)
    A("v_add_u32 v10, %d, v9" % (2 * CH_LDS))
    A("v_mov_b32 v11, %d" % FLAGS)
    for i in range(4):
        A("v_mov_b32 %s, 0" % v(40 + i))
    A("v_and_b32 v8, 7, v1")
    A("v_lshlrev_b32 v8, 3, v8")
    def sel_loads():
        A("s_movk_i32 s51, %d" % F_SELG)
        A("buffer_load_dwordx2 v[180:181], v8, s[36:39], s51 offen sc1")
    sel_loads_m = sel_loads
    A("s_mov_b32 s59, 0")
    A("s_setprio %d" % int(os.environ.get("HPRIO2", 1)))
    for t in range(8):
        Lw = A.newlabel("yw"); Lg = A.newlabel("yg")
        A("s_cmp_gt_u32 s59, %d" % t)
        A("s_cbranch_scc1 %s" % Lg)
        A("s_mov_b32 s52, 0")
        A.label(Lw)
        A("ds_read_b128 v[16:19], v11")
        A("s_add_u32 s52, s52, 1")
        A("s_waitcnt lgkmcnt(0)")
        A("v_min_u32 v16, v16, v17")
        A("v_min3_u32 v16, v16, v18, v19")
        A("s_cmp_gt_u32 s52, %d" % POLL_MAX)
        A("v_readfirstlane_b32 s59, v16")
        A("s_cbranch_scc1 %s" % Lg)
        A("s_nop 1")
        A("s_cmp_gt_u32 s59, %d" % t)
        A("s_cbranch_scc1 %s" % Lg)
        A("s_sleep 1")
        A("s_branch %s" % Lw)
        A.label(Lg)
        if os.environ.get("HST") and t in (0, 2, 4, 7):
            st_(A, {0: 11, 2: 12, 4: 13, 7: 14}[t])
        A("ds_read_u16_d16_hi v40, v9 offset:%d" % (512 * t))
        A("ds_read_u16_d16_hi v41, v9 offset:%d" % (512 * t + CH_LDS))
        A("ds_read_u16_d16_hi v42, v10 offset:%d" % (512 * t))
        A("ds_read_u16_d16_hi v43, v10 offset:%d" % (512 * t + CH_LDS))
        A("s_waitcnt lgkmcnt(0)")
        if FAST:
            for p in range(2):
                x, xn, t1 = X + 4 * t + 2 * p, XN + 4 * t + 2 * p, T1 + 4 * t + 2 * p
                A("v_pk_fma_f32 %s, %s, %s, %s" % (v(t1, 2), v(xn, 2), v(40 + 2 * p, 2), v(xn, 2)))
            for p in range(2):
                x, xn, t1 = X + 4 * t + 2 * p, XN + 4 * t + 2 * p, T1 + 4 * t + 2 * p
                A("v_pk_add_f32 %s, %s, %s" % (v(t1, 2), v(t1, 2), v(x, 2)))
            for p in range(2):
                t1 = T1 + 4 * t + 2 * p
                A("v_cvt_pk_bf16_f32 %s, %s, %s" % (v(44 + 2 * (t % 2) + p), v(t1), v(t1 + 1)))
        else:
            streams = []
            for p in range(2):
                x, xn, t1 = X + 4 * t + 2 * p, XN + 4 * t + 2 * p, T1 + 4 * t + 2 * p
                tm = 56 + 4 * p
                P = Asm()
                P("v_pk_mul_f32 %s, %s, %s" % (v(tm, 2), v(xn, 2), v(40 + 2 * p, 2)))
                round_pair(P, tm, tm + 1, tm + 2, 40)
                P("v_pk_add_f32 %s, %s, %s" % (v(t1, 2), v(x, 2), v(tm, 2)))
                round_pair(P, t1, t1 + 1, tm + 2, 40)
                P("v_pk_add_f32 %s, %s, %s" % (v(tm, 2), v(t1, 2), v(xn, 2)))
                P("v_cvt_pk_bf16_f32 %s, %s, %s" % (v(44 + 2 * (t % 2) + p), v(tm), v(tm + 1)))
                streams.append([l.strip() for l in P.lines])
            interleave(A, streams)
        A("s_mov_b32 s51, %d" % (t * 256 * 1152))
        A("buffer_store_dwordx2 %s, v6, s[20:23], s51 offen" % v(44 + 2 * (t % 2), 2) + os.environ.get("OUTPOL", ""))
        if t == 5:
            sel_loads()
    st_(A, 5)
    dbg_time(A, 9)
    first_then_poll(A, "sel", sel_loads_m, [181], 4, "-1", first_cnt=2)
    A("v_lshrrev_b32 v45, 16, v180")
    A("v_and_b32 v46, 0x8000, v45")
    A("v_mov_b32 v47, 0xffff")
    A("v_mov_b32 v48, 0x8000")
    A("v_cmp_ne_u32 vcc, 0, v46")
    A("v_and_b32 v44, 0xffff, v180")
    A("v_sub_u32 v44, 2047, v44")
    A("v_cndmask_b32 v47, v47, v48, vcc")
    A("v_xor_b32 v45, v45, v47")
    A("v_lshlrev_b32 v45, 16, v45")
    A("v_mul_f32 v45, 0xbfb8aa3b, v45")
    A("v_exp_f32 v45, v45")
    A.nop(1)
    A("v_add_f32 v45, 1.0, v45")
    A("v_rcp_f32 v45, v45")
    A.nop(1)
    A("v_cvt_pk_bf16_f32 v45, v45, v45")
    A("v_lshlrev_b32 v45, 16, v45")
    for i in range(8):
        Ls = A.newlabel("ns")
        A("v_readlane_b32 s51, v44, %d" % i)
        A("v_mov_b32 v52, %d" % (SIDE + 32 * i))
        A("s_nop 2")
        A("s_bfe_u32 s58, s51, 0x20006")
        A("s_cmp_lg_u32 s58, s43")
        A("s_cbranch_scc1 %s" % Ls)
        A("s_lshr_b32 s58, s51, 8")
        A("s_lshl_b32 s58, s58, 2")
        A("s_and_b32 s51, s51, 255")
        A("v_cmp_eq_u32 vcc, s51, v5")
        A("s_set_gpr_idx_on s58, gpr_idx(SRC0)")
        for k in range(4):
            A("v_mov_b32 %s, %s" % (v(36 + k), v(T1 + k)))
        for k in range(4):
            A("v_mov_b32 %s, %s" % (v(40 + k), v(XN + k)))
        A("s_set_gpr_idx_off")
        A("s_mov_b64 exec, vcc")
        A("ds_write_b128 v52, v[36:39]")
        A("ds_write_b128 v52, v[40:43] offset:16")
        A("s_mov_b64 exec, -1")
        A.label(Ls)
    A("s_waitcnt vmcnt(0) lgkmcnt(0)")
    A("v_mov_b32 v11, %d" % FLAGS)
    A("v_mov_b32 v12, 1")
    lds_signal(A, 6, "v11", "v12")
    st_(A, 6)
    Lend = A.newlabel("hend")
    A("s_cmp_lg_u32 s42, 4")
    A("s_cbranch_scc1 %s" % Lend)
    A("v_lshlrev_b32 v18, 4, v1")
    A("v_add_u32 v19, %d, v18" % RED)
    A("v_lshlrev_b32 v20, 5, v1")
    A("v_add_u32 v53, %d, v20" % SIDE)
    A("s_movk_i32 s51, 1152")
    A("v_mul_lo_u32 v44, v44, s51")
    A("s_lshl_b32 s51, s41, 3")
    A("v_add_u32 v44, s51, v44")
    lds_wait(A, 6, 4, "v11", "v12", sleep=0)
    A("s_mov_b64 exec, 0xff")
    A("ds_read_b128 v[36:39], v53")
    A("ds_read_b128 v[40:43], v53 offset:16")
    A("s_mov_b64 exec, -1")
    lds_wait(A, 5, 4, "v11", "v12", sleep=0)
    st_(A, 7)
    A("s_mov_b64 exec, 0xff")
    for w in range(4):
        A("ds_read_b128 %s, v19 offset:%d" % (v(20 + 4 * w, 4), 128 * w))
    A("s_waitcnt lgkmcnt(0)")
    for k in range(4):
        A("v_add_f32 %s, %s, %s" % (v(20 + k), v(20 + k), v(24 + k)))
        A("v_add_f32 %s, %s, %s" % (v(28 + k), v(28 + k), v(32 + k)))
    for k in range(4):
        A("v_add_f32 %s, %s, %s" % (v(20 + k), v(20 + k), v(28 + k)))
    if FAST:
        for k in range(4):
            A("v_fma_f32 %s, %s, v45, %s" % (v(20 + k), v(20 + k), v(36 + k)))
        A.nop(1)
    else:
        A.nop(1)
        round_pair(A, 20, 21, 24, 40); round_pair(A, 22, 23, 25, 40)
        for k in range(4):
            A("v_mul_f32 %s, %s, v45" % (v(20 + k), v(20 + k)))
        A.nop(1)
        round_pair(A, 20, 21, 24, 40); round_pair(A, 22, 23, 25, 40)
        for k in range(4):
            A("v_add_f32 %s, %s, %s" % (v(20 + k), v(20 + k), v(40 + k)))
        A.nop(1)
        round_pair(A, 20, 21, 24, 40); round_pair(A, 22, 23, 25, 40)
        for k in range(4):
            A("v_add_f32 %s, %s, %s" % (v(20 + k), v(20 + k), v(36 + k)))
        A.nop(1)
    A("v_cvt_pk_bf16_f32 v24, v20, v21")
    A("v_cvt_pk_bf16_f32 v25, v22, v23")
    A("buffer_store_dwordx2 v[24:25], v44, s[20:23], 0 offen")
    A("s_mov_b64 exec, -1")
    A.label(Lend)
    st_(A, 8, end=True)
    dbg_time(A, 2)
    if os.environ.get("CALD"):
        L = A.newlabel("cal")
        A.label(L)
        A("s_memrealtime s[96:97]")
        A("s_waitcnt lgkmcnt(0)")
        A("s_sub_u32 s96, s96, s100")
        A("s_cmp_lt_u32 s96, %d" % int(os.environ["CALD"]))
        A("s_cbranch_scc1 %s" % L)
    A("s_endpgm")

def gen_conv_wg(A):
    A("s_and_b32 s43, s42, 3")
    A("s_lshl_b32 s44, s41, 2")
    A("s_add_u32 s44, s44, s43")
    A("s_mul_i32 s45, s43, %d" % CH_LDS)
    Lm = A.newlabel("cm"); Lh = A.newlabel("ch"); Lj = A.newlabel("cj")
    dbg_time(A, 0)
    A("s_lshr_b32 s60, s41, 4")
    A("s_and_b32 s61, s41, 15")
    A("v_mov_b32 v200, 0"); A("v_mov_b32 v201, 0")
    A("s_cmp_ge_u32 s42, 4")
    A("s_cbranch_scc1 %s" % Lh)
    A("s_setprio 2")
    gen_kv_issue(A)
    gen_kv_addr(A)
    gen_kv_addr2(A)
    finish_tag(A)
    flags_barrier(A)
    A("s_branch %s" % Lj)
    A.label(Lh)
    gen_kv_addr(A)
    gen_kv_addr2(A)
    finish_tag(A)
    A.label(Lj)
    gen_kv_compute(A)
    publish_alive(A)
    A("s_barrier")
    A("s_cmp_lt_u32 s42, 4")
    A("s_cbranch_scc1 %s" % Lm)
    h_early_loads(A)
    gen_H(A)
    A.label(Lm)
    gen_M(A)

def finish_tag(A):
    A("s_waitcnt lgkmcnt(0)")
    A("s_mul_i32 s%d, s%d, 0x9E3779B1" % (TAG, TAG))
    A("s_add_u32 s%d, s%d, 0x7F4A7C15" % (TAG, TAG))

def flags_barrier(A, alive=False):
    A("v_mov_b32 v36, 0")
    A("v_mov_b32 v37, %d" % FLAGS)
    A("v_mov_b32 v38, 0"); A("v_mov_b32 v39, 0"); A("v_mov_b32 v40, 0"); A("v_mov_b32 v41, 0")
    A("ds_write_b128 v37, v[38:41]")
    A("ds_write_b128 v37, v[38:41] offset:16")
    A("s_waitcnt lgkmcnt(0)")

def publish_alive(A):
    Ln = A.newlabel("noalive")
    A("s_cmp_lg_u32 s42, 0")
    A("s_cbranch_scc1 %s" % Ln)
    A("s_lshl_b32 s63, s41, 2")
    A("s_add_u32 s63, s63, %d" % F_ALIVE)
    A("v_mov_b32 v37, s%d" % TAG)
    A("v_mov_b32 v36, 0")
    A("s_mov_b64 exec, 1")
    A("buffer_store_dword v37, v36, s[36:39], s63 offen sc1")
    A("s_mov_b64 exec, -1")
    A.label(Ln)


BITONIC8 = [(0,4),(1,5),(2,6),(3,7),(0,2),(1,3),(4,6),(5,7),(0,1),(2,3),(4,5),(6,7)]
def merge8(A, a, b, out, spare, dpp=None):
    for i in range(7, -1, -1):
        if dpp:
            A("v_max_u32_dpp %s, %s, %s %s bank_mask:0xf" % (v(out[i]), v(b[7 - i]), v(a[i]), dpp))
        else:
            A("v_max_u32 %s, %s, %s" % (v(out[i]), v(a[i]), v(b[7 - i])))
    return sort_desc(A, out, spare, BITONIC8)

def top8_wave(A, regs, spare, other):
    cur, oth = list(regs), list(other)
    for ctl in ("quad_perm:[1,0,3,2] row_mask:0xf", "quad_perm:[2,3,0,1] row_mask:0xf", "row_half_mirror row_mask:0xf",
                "row_mirror row_mask:0xf", "row_bcast:15 row_mask:0xa", "row_bcast:31 row_mask:0xc"):
        A.nop(1)
        free = list(cur)
        new, spare2 = merge8(A, cur, cur, oth, spare, dpp=ctl)
        pool = [r for r in (free + oth + [spare]) if r not in new]
        spare = pool[0]
        oth = pool[1:9]
        cur = new
    return cur, spare, oth

L_CNT = 162368

def lds_signal(A, k, vaddr, vone):
    A("s_mov_b64 exec, 1")
    A("ds_add_u32 %s, %s offset:%d" % (vaddr, vone, 4 * k))
    A("s_mov_b64 exec, -1")

def lds_wait(A, k, n, vaddr, vtmp, sleep=0):
    L = A.newlabel("lw"); Ld = A.newlabel("lwd")
    A("s_mov_b32 s52, 0")
    A.label(L)
    A("ds_read_b32 %s, %s offset:%d" % (vtmp, vaddr, 4 * k))
    A("s_add_u32 s52, s52, 1")
    A("s_waitcnt lgkmcnt(0)")
    A("s_cmp_gt_u32 s52, %d" % (POLL_MAX * 8))
    A("v_readfirstlane_b32 s51, %s" % vtmp)
    A("s_cbranch_scc1 %s" % Ld)
    A("s_nop 1")
    A("s_cmp_ge_u32 s51, %d" % n)
    A("s_cbranch_scc1 %s" % Ld)
    if sleep:
        A("s_sleep %d" % sleep)
    A("s_branch %s" % L)
    A.label(Ld)

def gen_moe_wg(A):
    T = "s%d" % TAG
    A("v_and_b32 v1, 63, v0")
    A("v_and_b32 v4, 255, v0")
    A("v_mov_b32 v8, %d" % L_CNT)
    A("v_mov_b32 v9, 1")
    Lt = A.newlabel("twave")
    A("s_cmp_ge_u32 s42, 4")
    A("s_cbranch_scc1 %s" % Lt)
    G, U, WD = 16, 88, 160
    A("v_mov_b32 v232, 0"); A("v_mov_b32 v233, 0"); A("v_mov_b32 v234, 0"); A("v_mov_b32 v235, 0")
    A("ds_write_b128 v8, v[232:235]"); A("ds_write_b128 v8, v[232:235] offset:16")
    srd(A, 48, PWG, D * F * 2)
    srd(A, 52, PWU, D * F * 2)
    srd(A, 56, PWD, D * F * 2)
    A("v_lshrrev_b32 v5, 3, v1")
    A("v_mul_u32_u24 v5, 9216, v5")
    A("v_bfe_u32 v6, v1, 4, 1")
    A("s_and_b32 s43, s42, 1")
    A("s_lshl_b32 s43, s43, 1")
    A("v_or_b32 v6, s43, v6")
    A("v_lshlrev_b32 v6, 1, v6")
    A("v_and_b32 v7, 7, v1")
    A("v_xor_b32 v6, v6, v7")
    A("v_lshl_add_u32 v5, v6, 4, v5")
    A("s_lshl_b32 s43, s41, 7")
    A("s_mul_i32 s44, s42, 73728")
    A("s_add_u32 s43, s43, s44")
    A("s_lshl_b32 s44, s42, 10")
    A("s_waitcnt lgkmcnt(0)")
    A("s_barrier")
    for j in range(18):
        A("s_mov_b32 m0, s44")
        A("s_add_u32 s45, s44, %d" % L_WU)
        A("buffer_load_dwordx4 v5, s[48:51], s43 offen lds" + NTS)
        A("s_mov_b32 m0, s45")
        A("s_add_u32 s44, s44, 4096")
        A("buffer_load_dwordx4 v5, s[52:55], s43 offen lds" + NTS)
        A("s_add_u32 s43, s43, %d" % (4 * 73728))
    A("v_lshrrev_b32 v6, 3, v4")
    A("v_mul_u32_u24 v7, 1152, v6")
    A("v_and_b32 v12, 7, v4")
    A("v_lshl_add_u32 v236, v12, 4, v7")
    A("v_bfe_u32 v14, v6, 1, 1")
    A("v_bfe_u32 v11, v6, 3, 1")
    A("v_lshl_add_u32 v14, v11, 1, v14")
    A("v_lshlrev_b32 v14, 1, v14")
    A("v_xor_b32 v14, v14, v12")
    A("v_lshl_add_u32 v14, v14, 4, v7")
    A("v_add_u32 v15, 36864, v14")
    A("v_and_b32 v2, 15, v0")
    A("v_bfe_u32 v3, v0, 4, 2")
    A("v_lshrrev_b32 v10, 2, v2")
    A("v_lshl_add_u32 v11, v3, 3, v10")
    A("v_bfe_u32 v12, v2, 3, 1")
    A("v_and_b32 v13, 1, v3")
    A("v_lshl_add_u32 v12, v13, 1, v12")
    A("v_xor_b32 v12, s42, v12")
    A("v_and_b32 v13, 3, v2")
    A("v_lshlrev_b32 v13, 3, v13")
    A("v_lshl_add_u32 v12, v12, 5, v13")
    A("v_lshl_add_u32 v5, v11, 7, v12")
    A("v_add_u32 v6, 36864, v5")
    A("v_mul_u32_u24 v7, 1152, v11")
    A("v_add_u32 v7, v7, v12")
    A("v_add_u32 v10, 36864, v7")
    st_(A, 1)
    A("v_add_u32 v12, %d, v5" % L_WU)
    A("v_add_u32 v13, %d, v6" % L_WU)
    nst = 1 if (common.STAMPS and not LIGHT) else 0
    A("v_lshrrev_b32 v232, 3, v1")
    A("v_mul_u32_u24 v232, 1152, v232")
    A("v_bfe_u32 v233, v1, 4, 1")
    A("s_and_b32 s43, s42, 1")
    A("s_lshl_b32 s43, s43, 1")
    A("v_or_b32 v233, s43, v233")
    A("v_lshlrev_b32 v233, 1, v233")
    A("v_and_b32 v234, 7, v1")
    A("v_xor_b32 v233, v233, v234")
    A("v_lshl_add_u32 v236, v233, 4, v232")
    def rd6(ph):
        for kk in range(6 * ph, 6 * ph + 6):
            bg, bu, ko = ("v5", "v12", kk) if kk < 9 else ("v6", "v13", kk - 9)
            A("ds_read_b64_tr_b16 %s, %s offset:%d" % (v(G + 4 * kk, 2), bg, 4096 * ko))
            A("ds_read_b64_tr_b16 %s, %s offset:%d" % (v(G + 4 * kk + 2, 2), bg, 4096 * ko + 512))
            A("ds_read_b64_tr_b16 %s, %s offset:%d" % (v(U + 4 * kk, 2), bu, 4096 * ko))
            A("ds_read_b64_tr_b16 %s, %s offset:%d" % (v(U + 4 * kk + 2, 2), bu, 4096 * ko + 512))
    A("s_waitcnt vmcnt(%d)" % (24 + nst))
    lds_signal(A, 0, "v8", "v9")
    lds_wait(A, 0, 4, "v8", "v11")
    rd6(0)
    A("s_waitcnt vmcnt(%d)" % (12 + nst))
    lds_signal(A, 7, "v8", "v9")
    lds_wait(A, 7, 4, "v8", "v11")
    rd6(1)
    A("s_waitcnt lgkmcnt(0)")
    lds_signal(A, 1, "v8", "v9")
    lds_wait(A, 1, 4, "v8", "v11")
    for half in range(2):
        A("s_mul_i32 s43, s41, 73728")
        A("s_mul_i32 s44, s42, 9216")
        A("s_add_u32 s43, s43, s44")
        if half:
            A("s_add_u32 s43, s43, 36864")
            A("s_add_u32 s44, s44, %d" % L_WU)
        for sg in range(9):
            A("s_mov_b32 m0, s44")
            A("s_add_u32 s44, s44, 1024")
            A("buffer_load_dwordx4 v236, s[56:59], s43 offen offset:%d lds" % 0 + NTS)
            A("s_add_u32 s43, s43, 128")
    A("s_waitcnt vmcnt(18)")
    lds_signal(A, 6, "v8", "v9")
    lds_wait(A, 6, 4, "v8", "v11")
    st_(A, 2)
    dbg_time(A, 7)
    rd6(2)
    st_(A, 7)
    A("v_lshrrev_b32 v232, 2, v2")
    A("v_mul_u32_u24 v14, 9216, v3")
    A("v_lshl_add_u32 v14, v232, 7, v14")
    A("v_bfe_u32 v233, v2, 3, 1")
    A("v_and_b32 v234, 1, v3")
    A("v_lshl_add_u32 v233, v234, 1, v233")
    A("v_xor_b32 v233, s42, v233")
    A("v_lshl_add_u32 v14, v233, 5, v14")
    A("v_and_b32 v234, 3, v2")
    A("v_lshl_add_u32 v14, v234, 3, v14")
    A("v_add_u32 v15, %d, v14" % L_WU)
    A("s_waitcnt vmcnt(0)")
    lds_signal(A, 2, "v8", "v9")
    lds_wait(A, 2, 4, "v8", "v11")
    for k in range(9):
        r = WD + 8 * k
        A("ds_read_b64_tr_b16 %s, v14 offset:%d" % (v(r, 2), 1024 * k))
        A("ds_read_b64_tr_b16 %s, v14 offset:%d" % (v(r + 2, 2), 1024 * k + 512))
        A("ds_read_b64_tr_b16 %s, v15 offset:%d" % (v(r + 4, 2), 1024 * k))
        A("ds_read_b64_tr_b16 %s, v15 offset:%d" % (v(r + 6, 2), 1024 * k + 512))
    A("v_and_b32 v12, 7, v2")
    A("v_mul_u32_u24 v5, %d, v12" % XSTR)
    A("v_lshl_add_u32 v5, v3, 4, v5")
    A("v_add_u32 v5, %d, v5" % L_X)
    A("v_mul_u32_u24 v6, %d, v2" % HSTR)
    A("v_lshl_add_u32 v6, v3, 3, v6")
    A("s_lshl_b32 s43, s42, 5")
    A("s_add_u32 s43, s43, %d" % L_HS)
    A("v_add_u32 v6, s43, v6")
    A("v_mul_u32_u24 v7, %d, v12" % HSTR)
    A("v_lshl_add_u32 v7, v3, 4, v7")
    A("v_add_u32 v7, %d, v7" % L_HS)
    A("v_mul_u32_u24 v10, 2304, v12")
    A("v_lshl_add_u32 v10, v3, 4, v10")
    A("v_bfe_u32 v13, v2, 3, 1")
    A("v_lshl_add_u32 v10, v13, 8, v10")
    A("v_cmp_eq_u32 s[56:57], 1, v13")
    A("s_mul_i32 s43, s41, 18432")
    A("s_lshl_b32 s44, s42, 6")
    A("s_add_u32 s43, s43, s44")
    A("s_add_u32 s43, s43, %d" % F_PARTG)
    A("v_mov_b32 v13, %d" % L_TAG)
    for i in range(8):
        A("v_mov_b32 %s, 0" % v(232 + i))
    A("s_waitcnt lgkmcnt(0)")
    st_(A, 3)
    dbg_time(A, 12)
    lds_wait(A, 4, 4, "v8", "v11")
    st_(A, 4)
    A("ds_read_b32 v12, v13")
    XR = 240
    for kk in range(3):
        A("ds_read_b128 %s, v5 offset:%d" % (v(XR + 4 * kk, 4), 64 * kk))
    for kk in range(18):
        if kk + 3 < 18:
            A("ds_read_b128 %s, v5 offset:%d" % (v(XR + 4 * ((kk + 3) % 4), 4), 64 * (kk + 3)))
        A("s_waitcnt lgkmcnt(%d)" % min(3, 17 - kk))
        x = v(XR + 4 * (kk % 4), 4)
        A("v_mfma_f32_16x16x32_bf16 v[232:235], %s, %s, v[232:235]" % (v(G + 4 * kk, 4), x))
        A("v_mfma_f32_16x16x32_bf16 v[236:239], %s, %s, v[236:239]" % (v(U + 4 * kk, 4), x))
    A("v_readfirstlane_b32 %s, v12" % T)
    A.nop(6)
    if FAST:
        for i in range(4):
            A("v_mul_f32 %s, 0xbfb8aa3b, %s" % (v(20 + i), v(232 + i)))
        for i in range(4):
            A("v_exp_f32 %s, %s" % (v(20 + i), v(20 + i)))
        for i in range(4):
            A("v_mul_f32 %s, %s, %s" % (v(232 + i), v(232 + i), v(236 + i)))
        for i in range(4):
            A("v_add_f32 %s, 1.0, %s" % (v(20 + i), v(20 + i)))
        for i in range(4):
            A("v_rcp_f32 %s, %s" % (v(20 + i), v(20 + i)))
        A.nop(1)
        for i in range(4):
            A("v_mul_f32 %s, %s, %s" % (v(232 + i), v(232 + i), v(20 + i)))
        A.nop(1)
    else:
        round_pair(A, 232, 233, 16, 40); round_pair(A, 234, 235, 17, 40)
        for i in range(4):
            A("v_mul_f32 %s, 0xbfb8aa3b, %s" % (v(20 + i), v(232 + i)))
        for i in range(4):
            A("v_exp_f32 %s, %s" % (v(20 + i), v(20 + i)))
        round_pair(A, 236, 237, 16, 40); round_pair(A, 238, 239, 17, 40)
        for i in range(4):
            A("v_add_f32 %s, 1.0, %s" % (v(20 + i), v(20 + i)))
        for i in range(4):
            A("v_rcp_f32 %s, %s" % (v(20 + i), v(20 + i)))
        A.nop(1)
        for i in range(4):
            A("v_mul_f32 %s, %s, %s" % (v(232 + i), v(232 + i), v(20 + i)))
        A.nop(1)
        round_pair(A, 232, 233, 16, 40); round_pair(A, 234, 235, 17, 40)
        for i in range(4):
            A("v_mul_f32 %s, %s, %s" % (v(232 + i), v(232 + i), v(236 + i)))
        A.nop(1)
    A("v_cvt_pk_bf16_f32 v16, v232, v233")
    A("v_cvt_pk_bf16_f32 v17, v234, v235")
    A("v_cmp_gt_u32 vcc, 8, v2")
    A("s_and_saveexec_b64 s[44:45], vcc")
    A("ds_write_b64 v6, v[16:17]")
    A("s_mov_b64 exec, s[44:45]")
    A("s_mov_b32 s58, 0xffffff00")
    A("s_movk_i32 s59, 0x80")
    A("s_waitcnt lgkmcnt(0)")
    lds_signal(A, 5, "v8", "v9")
    lds_wait(A, 5, 4, "v8", "v11")
    st_(A, 5)
    A("ds_read_b128 v[16:19], v7")
    A("ds_read_b128 v[20:23], v7 offset:64")
    A("s_waitcnt lgkmcnt(0)")
    AC = 88
    for k in range(9):
        r = WD + 8 * k
        A("v_mfma_f32_16x16x32_bf16 %s, %s, v[16:19], 0" % (v(AC + 4 * k, 4), v(r, 4)))
    for k in range(9):
        r = WD + 8 * k
        A("v_mfma_f32_16x16x32_bf16 %s, %s, v[20:23], %s" % (v(AC + 4 * k, 4), v(r + 4, 4), v(AC + 4 * k, 4)))
    A.nop(4)
    for kp in range(5):
        k = 2 * kp
        ac, ac2 = AC + 4 * k, AC + 4 * min(k + 1, 8)
        o = 24 + 8 * kp
        for i in range(4):
            A("v_cndmask_b32 %s, %s, %s, s[56:57]" % (v(o + i), v(ac + i), v(ac2 + i)))
        for i in range(4):
            A("v_add_u32 %s, s59, %s" % (v(o + i), v(o + i)))
        A("v_lshrrev_b32 %s, 24, %s" % (v(o + 4), v(o + 3)))
        A("v_lshrrev_b32 %s, 16, %s" % (v(o + 5), v(o + 3)))
        A("v_lshrrev_b32 %s, 8, %s" % (v(o + 6), v(o + 3)))
        for i in range(3):
            A("v_bfi_b32 %s, s58, %s, %s" % (v(o + 4 + i), v(o + i), v(o + 4 + i)))
        A("v_xor_b32 %s, %s, %s" % (v(o + 7), v(o + 4), v(o + 5)))
        A("v_xor_b32 %s, %s, %s" % (v(o + 7), v(o + 7), v(o + 6)))
        A("v_xor_b32 %s, %s, %s" % (v(o + 7), T, v(o + 7)))
        if kp == 4:
            A("s_andn2_b64 exec, exec, s[56:57]")
        A("buffer_store_dwordx4 %s, v10, s[36:39], s43 offen offset:%d sc1" % (v(o + 4, 4), 512 * kp))
    A("s_mov_b64 exec, -1")
    st_(A, 6, end=True)
    dbg_time(A, 3)
    A("s_endpgm")
    A.label(Lt)
    A("s_setprio 3")
    A("s_lshl_b32 s60, s41, 2")
    A("s_add_u32 s60, s60, s42")
    A("s_sub_u32 s60, s60, 4")
    Q, WR, X = gen_ln(A)
    A("s_barrier")
    finish_tag(A)
    gen_ln_compute(A, Q, WR, X)
    A("s_setprio %d" % int(os.environ.get("TPRIO", 1)))
    srd(A, 16, PQ, S * ROWB)
    A("v_and_b32 v1, 63, v0")
    A("v_and_b32 v4, 255, v0")
    A("v_mov_b32 v8, %d" % L_CNT)
    A("v_mov_b32 v9, 1")
    A("v_lshlrev_b32 v15, 2, v1")
    A("v_lshlrev_b32 v16, 4, v1")
    A("s_and_b32 s43, s42, 3")
    A("s_lshl_b32 s43, s43, 12")
    A("v_add_u32 v16, s43, v16")
    def key_loads():
        A("s_movk_i32 s43, %d" % F_KEYG)
        for i in range(4):
            A("buffer_load_dwordx4 %s, v16, s[36:39], s43 offen offset:%d sc1" % (v(40 + 4 * i, 4), 1024 * i))
    masked_poll(A, "key", key_loads, list(range(41, 56, 2)), int(os.environ.get("KEYSLEEP", 8)), int(os.environ.get("KEYPRE", 70)))
    A("s_setprio 3")
    st_(A, 3)
    dbg_time(A, 6)
    regs, sp = sort_desc(A, range(40, 56, 2), 41, SORT8)
    SK = 60
    free = [r for r in range(40, 57) if r not in regs and r != sp]
    cur, sp, oth = top8_wave(A, regs, sp, free[:8])
    for i in range(8):
        A("v_mov_b32 %s, %s" % (v(64 + i), v(cur[i])))
    A("s_and_b32 s43, s42, 3")
    A("s_lshl_b32 s43, s43, 5")
    A("s_add_u32 s43, s43, %d" % L_CAND)
    A("v_mov_b32 v16, s43")
    A("v_mov_b32 v31, %s" % T)
    A("v_mov_b32 v17, %d" % L_TAG)
    A("s_mov_b32 exec_lo, 0")
    A("s_mov_b32 exec_hi, 0x80000000")
    A("ds_write_b128 v16, v[64:67]")
    A("ds_write_b128 v16, v[68:71] offset:16")
    A("ds_write_b32 v17, v31")
    A("s_mov_b64 exec, -1")
    A("s_waitcnt lgkmcnt(0)")
    lds_signal(A, 3, "v8", "v9")
    lds_wait(A, 3, 4, "v8", "v11")
    A("v_mov_b32 v16, %d" % L_CAND)
    for i in range(8):
        A("ds_read_b128 %s, v16 offset:%d" % (v(64 + 4 * i, 4), 16 * i))
    A("s_waitcnt lgkmcnt(4)")
    c01, sp1 = merge8(A, list(range(64, 72)), list(range(72, 80)), list(range(40, 48)), 56)
    A("s_waitcnt lgkmcnt(0)")
    c23, sp2 = merge8(A, list(range(80, 88)), list(range(88, 96)), list(range(48, 56)), 57)
    for i in range(8):
        A("v_max_u32 %s, %s, %s" % (v(64 + i), v(c01[i]), v(c23[7 - i])))
    for i in range(8):
        A("v_readfirstlane_b32 %s, %s" % (s(SK + i), v(64 + i)))
    A.nop(3)
    st_(A, 5)
    A("s_and_b32 s45, s42, 3")
    A("s_mov_b32 s43, s60"); A("s_mov_b32 s44, s61")
    for w in range(1, 4):
        A("s_cmp_eq_u32 s45, %d" % w)
        A("s_cselect_b32 s43, %s, s43" % s(SK + 2 * w))
        A("s_cselect_b32 s44, %s, s44" % s(SK + 2 * w + 1))
    A("v_mov_b32 v16, s43"); A("v_mov_b32 v17, s44")
    A("v_cmp_lt_u32 vcc, 31, v1")
    A.nop(2)
    A("v_cndmask_b32 v16, v16, v17, vcc")
    A("v_and_b32 v16, 0xffff, v16")
    A("v_sub_u32 v16, 2047, v16")
    A("v_and_b32 v17, 31, v1")
    A("s_movk_i32 s43, 1152")
    A("v_mul_lo_u32 v18, v16, s43")
    A("v_lshl_add_u32 v18, v17, 2, v18")
    A("v_lshlrev_b32 v19, 3, v16")
    for i in range(9):
        A("buffer_load_dword %s, v18, s[16:19], 0 offen offset:%d" % (v(20 + i), 128 * i))
    def rg_loads():
        A("s_mov_b32 s43, %d" % F_ROWG)
        A("buffer_load_dwordx2 v[32:33], v19, s[36:39], s43 offen sc1")
    Lns = A.newlabel("nosel")
    A("s_cmp_lg_u32 s41, 0")
    A("s_cbranch_scc1 %s" % Lns)
    A("s_cmp_lg_u32 s42, 4")
    A("s_cbranch_scc1 %s" % Lns)
    for i in range(8):
        A("v_writelane_b32 v30, %s, %d" % (s(SK + i), i))
    A("v_lshlrev_b32 v36, 3, v1")
    A("s_movk_i32 s43, %d" % F_SELG)
    A("s_mov_b64 exec, 0xff")
    A("buffer_store_dwordx2 v[30:31], v36, s[36:39], s43 offen sc1")
    A("s_mov_b64 exec, -1")
    A.label(Lns)
    masked_poll(A, "rg", rg_loads, [33], 2, 0)
    if FAST:
        A("v_and_b32 v64, s40, v32"); A("v_lshlrev_b32 v66, 16, v32")
        A("v_rcp_f32 v64, v64")
        A("v_lshrrev_b32 v38, 5, v4")
        A("v_mul_u32_u24 v38, %d, v38" % XSTR)
        A("v_mul_f32_e64 v66, -v66, v64")
        A("v_mov_b32 v65, v64")
        A("v_lshl_add_u32 v38, v17, 2, v38")
        A("v_mov_b32 v67, v66")
        A("v_add_u32 v38, %d, v38" % L_X)
        st_(A, 4)
        for i in range(9):
            unpack_pair(A, 40 + 2 * i, 41 + 2 * i, 20 + i, 40)
        for i in range(9):
            A("v_pk_fma_f32 %s, %s, v[64:65], v[66:67]" % (v(40 + 2 * i, 2), v(40 + 2 * i, 2)))
        for i in range(9):
            A("v_cvt_pk_bf16_f32 %s, %s, %s" % (v(70 + i), v(40 + 2 * i), v(41 + 2 * i)))
        for i in range(9):
            A("ds_write_b32 v38, %s offset:%d" % (v(70 + i), 128 * i))
    else:
        stats_from_msd(A, 32, 64, 70)
        A("v_lshrrev_b32 v38, 5, v4")
        A("v_mul_u32_u24 v38, %d, v38" % XSTR)
        A("v_lshl_add_u32 v38, v17, 2, v38")
        A("v_add_u32 v38, %d, v38" % L_X)
        st_(A, 4)
        for i0 in range(0, 9, 3):
            streams = []
            for i in range(i0, i0 + 3):
                bs = 40 + 8 * (i % 3)
                ops = norm_ops(bs, bs + 2, bs + 4, 20 + i, 64)
                ops.append("v_cvt_pk_bf16_f32 %s, %s, %s" % (v(bs + 6), v(bs + 2), v(bs + 3)))
                ops.append("ds_write_b32 v38, %s offset:%d" % (v(bs + 6), 128 * i))
                streams.append(ops)
            interleave(A, streams)
    A("s_waitcnt lgkmcnt(0)")
    lds_signal(A, 4, "v8", "v9")
    st_(A, 6)
    dbg_time(A, 4)
    Le = A.newlabel("noep")
    A("s_cmp_lg_u32 s41, 0")
    A("s_cbranch_scc1 %s" % Le)
    A("s_cmp_lg_u32 s42, 4")
    A("s_cbranch_scc1 %s" % Le)
    A("s_setprio 0")
    A("v_lshlrev_b32 v16, 2, v1")
    A("v_min_u32 v17, 15, v1")
    A("v_lshlrev_b32 v17, 2, v17")
    def al_loads():
        A("s_movk_i32 s43, %d" % F_ALIVE)
        A("buffer_load_dword v20, v16, s[36:39], s43 offen sc1")
        A("buffer_load_dword v21, v16, s[36:39], s43 offen offset:256 sc1")
        A("buffer_load_dword v22, v17, s[36:39], s43 offen offset:512 sc1")
    masked_poll(A, "al", al_loads, [20, 21, 22], 16, 0)
    A("v_mov_b32 v20, %s" % T)
    A("v_mov_b32 v21, %d" % F_EPOCH)
    A("s_mov_b64 exec, 1")
    A("buffer_store_dword v20, v21, s[36:39], 0 offen sc1")
    A("s_mov_b64 exec, -1")
    A.label(Le)
    A("s_endpgm")

def gen_spare_wg(A):
    A("s_lshl_b32 s60, s41, 3")
    A("s_add_u32 s60, s60, s42")
    A("s_add_u32 s60, s60, 288")
    Lx = A.newlabel("spx")
    A("s_cmp_ge_u32 s60, 512")
    A("s_cbranch_scc1 %s" % Lx)
    Q, WR, X = gen_ln(A)
    finish_tag(A)
    gen_ln_compute(A, Q, WR, X)
    A.label(Lx)
    A("s_endpgm")

def gen_kernel(A, name):
    kernel_header(A, name)
    Ldone = A.newlabel("done"); Lmoe = A.newlabel("moe"); Lsp = A.newlabel("spare")
    A("s_getpc_b64 s[96:97]")
    if os.environ.get("CALD"):
        A("s_memrealtime s[100:101]")
    A("s_cmp_ge_u32 s2, 256")
    A("s_cbranch_scc1 %s" % Ldone)
    A("s_load_dwordx4 s[68:71], s[0:1], %d" % KA_DBG)
    A("s_load_dwordx16 s[72:87], s[0:1], 0")
    A("s_load_dwordx8 s[88:95], s[0:1], %d" % KA_WG)
    A("v_lshrrev_b32 v1, 6, v0")
    A("s_and_b32 s30, s2, 7")
    A("s_lshr_b32 s31, s2, 3")
    A("v_readfirstlane_b32 s42, v1")
    A("s_mov_b32 s40, 0xffff0000")
    if not os.environ.get("NOICPF"):
        Lc = A.newlabel("noic")
        A("s_and_b32 s96, s96, 0xffffff00")
        A("s_and_b32 s97, s97, 0xffff")
        A("s_mov_b32 s98, L_code_end-%s" % name)
        A("s_mov_b32 s99, 0x00020000")
        A("v_and_b32 v243, 63, v0")
        A("v_lshlrev_b32 v243, 4, v243")
        A("s_lshl_b32 s95, s31, 10") if False else None
        A("s_lshl_b32 s3, s31, 10")
        A("v_cmp_lt_u32 vcc, 447, v0")
        A("s_cbranch_vccz %s" % Lc)
        A("buffer_load_dwordx4 v[244:247], v243, s[96:99], s3 offen")
        A.label(Lc)
    A("s_waitcnt lgkmcnt(0)")
    A("s_load_dword s%d, s[%d:%d], %d" % (TAG, PWS, PWS + 1, F_EPOCH))
    srd(A, 36, PWS, WS_SIZE)
    A("s_lshl_b32 s3, s2, 3")
    A("s_add_u32 s3, s3, s42")
    st_(A, 0)
    ORD = os.environ.get("ORD", "B")
    if ORD == "A":
        c0, m0, p0 = 0, 18, 27
    else:
        c0, m0, p0 = 14, 5, 0
    A("s_sub_u32 s41, s31, %d" % m0)
    A("s_cmp_lt_u32 s41, 9")
    A("s_cbranch_scc1 %s" % Lmoe)
    A("s_sub_u32 s41, s31, %d" % p0)
    A("s_cmp_lt_u32 s41, 5")
    A("s_cbranch_scc1 %s" % Lsp)
    A("s_sub_u32 s31, s31, %d" % c0)
    A("s_mul_i32 s41, s30, 18")
    A("s_add_u32 s41, s41, s31")
    gen_conv_wg(A)
    A.label(Lmoe)
    A("s_mul_i32 s31, s30, 9")
    A("s_add_u32 s41, s41, s31")
    gen_moe_wg(A)
    A.label(Lsp)
    A("s_mul_i32 s31, s30, 5")
    A("s_add_u32 s41, s41, s31")
    gen_spare_wg(A)
    A.label(Ldone)
    A("s_endpgm")
    A.label("L_code_end")
    return kernel_desc(name, 256, 102, 256)
```

```python
from common import *
import common, os
from collections import deque
from conv2 import CS, CH_LDS, H_OFF, POLL_MAX, conv_schedule
from moe2 import wave_max_u32, L_WG, L_WU, L_X, L_HS, L_U, L_CAND, XSTR, HSTR
from moe3 import SORT8, sort_desc, rounds

F_EPOCH = 0x0
F_SELG = 0x100
F_ALIVE = 0x1000
F_KEYG = 0x2000
F_ROWG = 0x8000
F_LNF = 0x6000
F_URC = 0x100000 + 0x300000
F_UR = 0x20000
F_PARTG = 0x500000
F_XT = 0x800000
F_XC = 0x480000
L_TAG = 162304

PQ, PK, PV, PSHK, PSSMK, PSSMD, PWR, PWG, PWU, PWD, POUT, PWS = 72, 74, 76, 78, 80, 82, 86, 88, 90, 92, 94, 70
TAG = 46
FAST = os.environ.get('FAST', '1') != '0'
QNT = '' if os.environ.get('QDEF') else ' nt'
NTS = '' if os.environ.get('NONT') else ' nt'
LIGHT = os.environ.get("STAMPS") == "2"
def st_(A, n, end=False):
    if LIGHT:
        if n != 0 and not end:
            return
        n = 15 if end else 0
    stamp(A, n, 36, 3, vt=254, st=96)

MISC = 4 * CH_LDS
FLAGS = MISC
SIDE = MISC + 64
RED = SIDE + 256
YOFF = H_OFF
W1, W0 = 20, 28
E_, G_, F_ = 36, 44, 50
UREG = 56
RING, NR, ACC, BS = 64, 6, 88, 120

DBGT = bool(os.environ.get("DBGT"))
def dbg_time(A, slot, invert=False):
    if not DBGT:
        return
    L = A.newlabel("dbgs")
    A("s_and_b32 s100, s42, 3")
    A("s_cmp_lg_u32 s100, 0")
    A("s_cbranch_scc1 %s" % L)
    A("s_cmp_eq_u32 s2, %d" % (8 if os.environ.get("ORD", "B") == "A" else 120))
    A("s_cselect_b32 s100, 1, 0")
    A("s_cmp_eq_u32 s2, %d" % (152 if os.environ.get("ORD", "B") == "A" else 48))
    A("s_cselect_b32 s100, 1, s100")
    A("s_cmp_eq_u32 s100, 0")
    A("s_cbranch_scc1 %s" % L)
    A("s_memrealtime s[96:97]")
    A("s_waitcnt lgkmcnt(0)")
    A("v_mov_b32 v252, s96")
    A("v_mov_b32 v253, %d" % (4 * slot))
    A("s_mov_b64 s[98:99], exec")
    A("s_mov_b64 exec, 1")
    A("global_store_dword v253, v252, s[68:69]")
    A("s_mov_b64 exec, s[98:99]")
    A.label(L)

DRY = os.environ.get("DRY", "0") != "0"
class TwoPass:
    def __init__(self, A, name):
        self.A = A
        self.L = A.newlabel(name + "b"); self.Lo = A.newlabel(name + "o"); self.Lt = A.newlabel(name + "t")
    def begin(self, transition):
        A = self.A
        self.transition = transition
        if DRY:
            A("s_mov_b32 s12, 0")
            A("s_mov_b64 exec, 0")
        else:
            transition()
        A.label(self.L)
    def guard_begin(self):
        if not DRY: return None
        l = self.A.newlabel("gd")
        self.A("s_cmp_eq_u32 s12, 0")
        self.A("s_cbranch_scc1 %s" % l)
        return l
    def guard_end(self, l):
        if l: self.A.label(l)
    def end(self):
        A = self.A
        if DRY:
            A("s_cmp_eq_u32 s12, 1")
            A("s_cbranch_scc1 %s" % self.Lo)
            A("s_mov_b32 s12, 1")
            A("s_mov_b64 exec, -1")
            self.transition()
            A("s_branch %s" % self.L)
            A.label(self.Lo)

def poll_head(A, cnt="s52"):
    A("s_mov_b32 %s, 0" % cnt)

def poll_tail(A, Lloop, Ldone, cnt="s52", sleep=1):
    A("s_add_u32 %s, %s, 1" % (cnt, cnt))
    A("s_cmp_gt_u32 %s, %d" % (cnt, POLL_MAX))
    A("s_cbranch_scc1 %s" % Ldone)
    A("s_sleep %d" % sleep)
    A("s_branch %s" % Lloop)

def masked_poll(A, name, emit_loads, tagregs, sleep, pre_sleep=0, full_exec="-1"):
    T = "s%d" % TAG
    Lp = A.newlabel(name + "p"); Ld = A.newlabel(name + "ok")
    if pre_sleep:
        A("s_sleep %d" % pre_sleep)
    A("s_mov_b32 s52, 0")
    A.label(Lp)
    emit_loads()
    A("s_waitcnt vmcnt(0)")
    A("v_cmp_eq_u32 vcc, %s, %s" % (T, v(tagregs[0])))
    for r in tagregs[1:]:
        A("v_cmp_eq_u32 s[54:55], %s, %s" % (T, v(r)))
        A("s_and_b64 vcc, vcc, s[54:55]")
    A("s_andn2_b64 exec, exec, vcc")
    A("s_cbranch_scc0 %s" % Ld)
    A("s_add_u32 s52, s52, 1")
    A("s_cmp_gt_u32 s52, %d" % POLL_MAX)
    A("s_cbranch_scc1 %s" % Ld)
    A("s_sleep %d" % sleep)
    A("s_branch %s" % Lp)
    A.label(Ld)
    A("s_mov_b64 exec, %s" % full_exec)

def first_then_poll(A, name, emit_loads, tagregs, sleep, ex, first_cnt=0):
    T = "s%d" % TAG
    Lp = A.newlabel(name + "p"); Ld = A.newlabel(name + "ok")
    A("s_mov_b32 s52, 0")
    A("s_waitcnt vmcnt(%d)" % first_cnt)
    A.label(Lp)
    A("v_cmp_eq_u32 vcc, %s, %s" % (T, v(tagregs[0])))
    for r in tagregs[1:]:
        A("v_cmp_eq_u32 s[54:55], %s, %s" % (T, v(r)))
        A("s_and_b64 vcc, vcc, s[54:55]")
    A("s_andn2_b64 exec, exec, vcc")
    A("s_cbranch_scc0 %s" % Ld)
    A("s_add_u32 s52, s52, 1")
    A("s_cmp_gt_u32 s52, %d" % POLL_MAX)
    A("s_cbranch_scc1 %s" % Ld)
    A("s_sleep %d" % sleep)
    emit_loads()
    A("s_waitcnt vmcnt(0)")
    A("s_branch %s" % Lp)
    A.label(Ld)
    A("s_mov_b64 exec, -1")

def ln_hint_poll(A, vaddr, r0, sleep, pre):
    def loads():
        A("s_movk_i32 s51, %d" % F_LNF)
        A("buffer_load_dwordx4 %s, %s, s[36:39], s51 offen sc1" % (v(r0, 4), vaddr))
        A("buffer_load_dwordx4 %s, %s, s[36:39], s51 offen offset:1024 sc1" % (v(r0 + 4, 4), vaddr))
    masked_poll(A, "lnh", loads, list(range(r0, r0 + 8)), sleep, pre)

def stats_from_msd(A, g, st, t):
    A("v_and_b32 %s, s40, %s" % (v(st + 4), v(g)))
    A("v_lshlrev_b32 %s, 16, %s" % (v(st), v(g)))
    A("v_rcp_f32 %s, %s" % (v(st + 2), v(st + 4)))
    A("v_xor_b32 %s, 0x80000000, %s" % (v(st), v(st)))
    A("v_xor_b32 %s, 0x80000000, %s" % (v(st + 4), v(st + 4)))
    A("v_fma_f32 %s, %s, %s, 1.0" % (v(t), v(st + 4), v(st + 2)))
    A("v_mov_b32 %s, %s" % (v(st + 1), v(st)))
    A("v_fma_f32 %s, %s, %s, %s" % (v(st + 2), v(t), v(st + 2), v(st + 2)))
    A("v_mov_b32 %s, %s" % (v(st + 5), v(st + 4)))
    A("v_mov_b32 %s, %s" % (v(st + 3), v(st + 2)))

LK, LV, LQ, SG, SX, SGS = 0, 17408, 33792, 50176, 67584, 272

def row_xor_reduce(A, regs):
    for ctl in ("quad_perm:[1,0,3,2]", "quad_perm:[2,3,0,1]", "row_half_mirror", "row_mirror"):
        if len(regs) < 3:
            A.nop(3 - len(regs))
        for r in regs:
            A("v_xor_b32_dpp %s, %s, %s %s row_mask:0xf bank_mask:0xf" % (v(r), v(r), v(r), ctl))

def gen_kv_issue(A):
    srd(A, 48, PK, S * ROWB)
    srd(A, 52, PV, S * ROWB)
    A("v_and_b32 v1, 63, v0")
    A("v_lshrrev_b32 v4, 3, v1")
    A("v_mul_u32_u24 v4, 1152, v4")
    A("v_and_b32 v5, 7, v1")
    A("v_lshl_add_u32 v4, v5, 4, v4")
    A("s_mul_i32 s62, s61, %d" % (128 * 1152))
    A("s_lshl_b32 s63, s60, 7")
    A("s_add_u32 s62, s62, s63")
    A("s_mul_i32 s63, s42, 9216")
    A("s_add_u32 s62, s62, s63")
    A("s_sub_u32 s63, s62, 9216")
    A("s_lshl_b32 s64, s42, 10")
    srd(A, 16, PQ, S * ROWB)
    for i in range(4):
        A("s_mov_b32 m0, s64")
        A("s_add_u32 s65, s64, %d" % LV)
        A("buffer_load_dwordx4 v4, s[48:51], s63 offen lds" + NTS)
        A("s_mov_b32 m0, s65")
        A("s_add_u32 s65, s64, %d" % LQ)
        A("buffer_load_dwordx4 v4, s[52:55], s62 offen lds" + NTS)
        A("s_mov_b32 m0, s65")
        A("s_add_u32 s64, s64, 4096")
        A("buffer_load_dwordx4 v4, s[16:19], s62 offen lds" + NTS)
        A("s_add_u32 s63, s63, %d" % (32 * 1152))
        A("s_add_u32 s62, s62, %d" % (32 * 1152))
    Ln = A.newlabel("nok17")
    A("s_cmp_lg_u32 s42, 0")
    A("s_cbranch_scc1 %s" % Ln)
    A("s_mov_b32 m0, s64")
    A("s_nop 0")
    A("buffer_load_dwordx4 v4, s[48:51], s63 offen lds" + NTS)
    A.label(Ln)

def gen_kv_addr(A):
    srd(A, 56, PSHK, D * 8)
    A("v_and_b32 v2, 31, v0")
    A("s_lshl_b32 s63, s60, 9")
    A("v_lshl_add_u32 v29, v2, 4, s63")
    A("buffer_load_dwordx4 v[32:35], v29, s[56:59], 0 offen")

def gen_kv_addr2(A):
    A("v_lshrrev_b32 v3, 5, v0")
    A("v_lshlrev_b32 v6, 10, v3")
    A("v_lshl_add_u32 v6, v2, 2, v6")
    A("v_mul_u32_u24 v7, %d, v2" % (2 * SGS))
    A("v_sub_u32 v8, 15, v3")
    A("v_lshl_add_u32 v7, v8, 4, v7")
    A("v_add_u32 v7, %d, v7" % SG)
    A("v_bfe_u32 v10, v0, 4, 2")
    A("v_and_b32 v11, 15, v0")
    A("v_mul_u32_u24 v8, %d, v10" % SGS)
    A("v_lshl_add_u32 v8, v11, 4, v8")
    A("s_mul_i32 s63, s42, %d" % (8 * SGS))
    A("s_add_u32 s63, s63, %d" % SG)
    A("v_add_u32 v8, s63, v8")
    A("v_lshlrev_b32 v9, 12, v10")
    A("v_lshl_add_u32 v9, v11, 4, v9")
    A("s_lshl_b32 s63, s60, 6")
    A("s_lshl_b32 s64, s42, 3")
    A("s_add_u32 s63, s63, s64")
    A("s_lshl_b32 s65, s63, 12")
    A("s_lshl_b32 s64, s61, 8")
    A("s_sub_u32 s65, s65, s64")
    A("s_add_u32 s65, s65, %d" % (F_UR + 240 * 16))
    A("v_add_u32 v9, s65, v9")
    A("v_lshlrev_b32 v12, 7, v10")
    A("s_lshl_b32 s65, s63, 7")
    A("s_lshl_b32 s64, s61, 3")
    A("s_sub_u32 s65, s65, s64")
    A("s_add_u32 s65, s65, %d" % (F_URC + 120))
    A("v_add_u32 v12, s65, v12")
    A("v_cmp_eq_u32 s[66:67], 0, v11")
    A("v_mul_u32_u24 v13, %d, v2" % (2 * SGS))
    A("v_lshl_add_u32 v13, v3, 4, v13")
    A("v_add_u32 v13, %d, v13" % SX)
    A("v_lshlrev_b32 v48, 12, v10")
    A("v_lshl_add_u32 v48, v11, 4, v48")
    A("s_lshl_b32 s65, s63, 12")
    A("s_lshl_b32 s64, s61, 8")
    A("s_add_u32 s65, s65, s64")
    A("s_add_u32 s65, s65, %d" % F_XT)
    A("v_add_u32 v48, s65, v48")
    A("v_lshlrev_b32 v49, 7, v10")
    A("s_lshl_b32 s65, s63, 7")
    A("s_lshl_b32 s64, s61, 3")
    A("s_add_u32 s65, s65, s64")
    A("s_add_u32 s65, s65, %d" % F_XC)
    A("v_add_u32 v49, s65, v49")

def gen_kv_compute(A):
    def trans():
        A("s_waitcnt vmcnt(0)")
        A("s_barrier")
        st_(A, 1)
        dbg_time(A, 8)
    tp = TwoPass(A, "kv")
    tp.begin(trans)
    for i in range(11):
        A("ds_read_b32 %s, v6 offset:%d" % (v(14 + i), LK + (5 + i) * 128))
    for i in range(8):
        A("ds_read_b32 %s, v6 offset:%d" % (v(40 + i), LV + i * 128))
    for i in range(8):
        A("ds_read_b32 %s, v6 offset:%d" % (v(144 + i), LQ + i * 128))
    A("v_lshlrev_b32 v54, 16, v32"); A("v_lshlrev_b32 v55, 16, v34")
    A("v_and_b32 v56, s40, v32");    A("v_and_b32 v57, s40, v34")
    A("v_lshlrev_b32 v58, 16, v33"); A("v_lshlrev_b32 v59, 16, v35")
    A("v_and_b32 v60, s40, v33");    A("v_and_b32 v61, s40, v35")
    DOT = bool(os.environ.get("DOT2", "1") != "0")
    W, K, KV = 54, 62, 100
    A("s_mov_b32 s64, 0x05040100"); A("s_mov_b32 s65, 0x07060302")
    if DOT:
        A("v_and_b32 v62, 0xffff, v32"); A("v_lshlrev_b32 v63, 16, v34")
        A("v_lshrrev_b32 v64, 16, v32"); A("v_and_b32 v65, s40, v34")
        A("v_and_b32 v66, 0xffff, v33"); A("v_lshlrev_b32 v67, 16, v35")
        A("v_lshrrev_b32 v68, 16, v33"); A("v_and_b32 v69, s40, v35")
        A("v_mov_b32 v70, 0x3f803f80")
        A("v_mov_b32 v71, 0")
        A("s_waitcnt lgkmcnt(0)")
        for j in range(4):
            A("v_perm_b32 %s, %s, %s, s64" % (v(152 + j), v(144 + 2 * j + 1), v(144 + 2 * j)))
            A("v_perm_b32 %s, %s, %s, s65" % (v(156 + j), v(144 + 2 * j + 1), v(144 + 2 * j)))
        A("ds_write_b128 v13, v[152:155]")
        A("ds_write_b128 v13, v[156:159] offset:%d" % SGS)
        def ch_ops(i, c, t0):
            a_, b_, p_, q_ = t0, t0 + 1, t0 + 2, t0 + 3
            o = []
            d2 = lambda d, x, y, z: "v_dot2_f32_bf16 %s, %s, %s, %s" % (v(d), v(x), v(y), z)
            o.append(d2(a_, 14 + i + 0, 62 + 2 * 3 + c, "0"))
            o.append(d2(b_, 14 + i + 1, 62 + 2 * 2 + c, "0"))
            o.append(d2(q_, 14 + i + 2, 62 + 2 * 1 + c, "0"))
            o.append("v_cvt_pk_bf16_f32 %s, %s, %s" % (v(p_), v(a_), v(b_)))
            o.append(d2(b_, 14 + i + 3, 62 + 2 * 0 + c, "0"))
            o.append(d2(a_, p_, 70, "0"))
            o.append("s_nop 0")
            o.append("v_cvt_pk_bf16_f32 %s, %s, %s" % (v(p_), v(a_), v(q_)))
            o.append("s_nop 0")
            o.append(d2(a_, p_, 70, "0"))
            o.append("s_nop 0")
            o.append("v_cvt_pk_bf16_f32 %s, %s, %s" % (v(p_), v(a_), v(b_)))
            o.append("s_nop 0")
            o.append(d2(a_, p_, 70, "0"))
            o.append("s_nop 0")
            if c == 0:
                o.append("v_cvt_pk_bf16_f32 %s, %s, %s" % (v(p_), v(a_), v(71)))
            else:
                o.append("v_cvt_pk_bf16_f32 %s, %s, %s" % (v(p_), v(71), v(a_)))
            o.append("s_nop 0")
            o.append(d2(KV + 2 * i + c, p_, 40 + i, "0"))
            if FAST and os.environ.get('KVEXACT', '1') == '0':
                o = []
                o.append(d2(a_, 14 + i + 0, 62 + 2 * 3 + c, "0"))
                if c == 0:
                    o.append("v_lshlrev_b32 %s, 16, %s" % (v(b_), v(40 + i)))
                else:
                    o.append("v_and_b32 %s, s40, %s" % (v(b_), v(40 + i)))
                o.append(d2(a_, 14 + i + 1, 62 + 2 * 2 + c, v(a_)))
                o.append(d2(a_, 14 + i + 2, 62 + 2 * 1 + c, v(a_)))
                o.append(d2(a_, 14 + i + 3, 62 + 2 * 0 + c, v(a_)))
                o.append("v_mul_f32 %s, %s, %s" % (v(KV + 2 * i + c), v(a_), v(b_)))
            return [x for x in o if x != "s_nop 0"]
        for i in range(0, 8, 4):
            streams = []
            for ii in range(4):
                for c in range(2):
                    streams.append(ch_ops(i + ii, c, 72 + 4 * (2 * ii + c) if (2 * ii + c) < 7 else 132))
            interleave(A, streams)
        A.nop(3)
        for c in range(2):
            for j in range(4):
                A("v_cvt_pk_bf16_f32 %s, %s, %s" % (v(116 + 4 * c + j), v(KV + 2 * (7 - 2 * j) + c), v(KV + 2 * (6 - 2 * j) + c)))
    else:
        A("s_waitcnt lgkmcnt(15)")
        for i in range(11):
            unpack_pair(A, K + 2 * i, K + 2 * i + 1, 14 + i, 40)
        A("s_waitcnt lgkmcnt(0)")
        for j in range(4):
            A("v_perm_b32 %s, %s, %s, s64" % (v(152 + j), v(144 + 2 * j + 1), v(144 + 2 * j)))
            A("v_perm_b32 %s, %s, %s, s65" % (v(156 + j), v(144 + 2 * j + 1), v(144 + 2 * j)))
        A("ds_write_b128 v13, v[152:155]")
        A("ds_write_b128 v13, v[156:159] offset:%d" % SGS)
        def pr_(r):
            return "v[%d:%d]" % (r, r + 1)
        def row_ops(i, acc, tmp, t3):
            P = Asm()
            P("v_pk_mul_f32 %s, %s, %s" % (pr_(acc), pr_(K + 2 * (i + 0)), pr_(W + 6)))
            round_pair(P, acc, acc + 1, t3, 40)
            for t in range(1, 4):
                P("v_pk_mul_f32 %s, %s, %s" % (pr_(tmp), pr_(K + 2 * (i + t)), pr_(W + 2 * (3 - t))))
                round_pair(P, tmp, tmp + 1, t3, 40)
                P("v_pk_add_f32 %s, %s, %s" % (pr_(acc), pr_(acc), pr_(tmp)))
                round_pair(P, acc, acc + 1, t3, 40)
            unpack_pair(P, tmp, tmp + 1, 40 + i, 40)
            P("v_pk_mul_f32 %s, %s, %s" % (pr_(KV + 2 * i), pr_(acc), pr_(tmp)))
            return [l.strip() for l in P.lines]
        for i in range(0, 8, 4):
            interleave(A, [row_ops(i, 84, 86, 88), row_ops(i + 1, 90, 92, 94), row_ops(i + 2, 132, 134, 136), row_ops(i + 3, 138, 140, 142)])
        for c in range(2):
            for j in range(4):
                A("v_cvt_pk_bf16_f32 %s, %s, %s" % (v(116 + 4 * c + j), v(KV + 2 * (7 - 2 * j) + c), v(KV + 2 * (6 - 2 * j) + c)))
    A("ds_write_b128 v7, v[116:119]")
    A("ds_write_b128 v7, v[120:123] offset:%d" % SGS)
    A("s_waitcnt lgkmcnt(0)")
    tp.end()
    A("s_barrier")
    A("ds_read_b128 v[116:119], v8")
    A("ds_read_b128 v[120:123], v8 offset:%d" % (4 * SGS))
    A("s_movk_i32 s63, 16384")
    A("s_waitcnt lgkmcnt(1)")
    A("buffer_store_dwordx4 v[116:119], v9, s[36:39], 0 offen sc1")
    A("v_xor_b32 v124, v116, v117"); A("v_xor_b32 v126, v118, v119")
    A("s_waitcnt lgkmcnt(0)")
    A("buffer_store_dwordx4 v[120:123], v9, s[36:39], s63 offen sc1")
    A("v_xor_b32 v125, v120, v121"); A("v_xor_b32 v127, v122, v123")
    A("v_xor_b32 v124, v124, v126"); A("v_xor_b32 v125, v125, v127")
    row_xor_reduce(A, [124, 125])
    A("v_xor_b32 v128, s%d, v124" % TAG); A("v_xor_b32 v130, s%d, v125" % TAG)
    A("v_mov_b32 v129, s%d" % TAG); A("v_mov_b32 v131, s%d" % TAG)
    A("s_mov_b64 exec, s[66:67]")
    A("buffer_store_dwordx2 v[128:129], v12, s[36:39], 0 offen sc1")
    A("buffer_store_dwordx2 v[130:131], v12, s[36:39], 0 offen offset:512 sc1")
    A("s_mov_b64 exec, -1")
    A("ds_read_b128 v[116:119], v8 offset:%d" % (SX - SG))
    A("ds_read_b128 v[120:123], v8 offset:%d" % (SX - SG + 4 * SGS))
    A("s_waitcnt lgkmcnt(1)")
    A("buffer_store_dwordx4 v[116:119], v48, s[36:39], 0 offen sc1")
    A("v_xor_b32 v124, v116, v117"); A("v_xor_b32 v126, v118, v119")
    A("s_waitcnt lgkmcnt(0)")
    A("buffer_store_dwordx4 v[120:123], v48, s[36:39], s63 offen sc1")
    A("v_xor_b32 v125, v120, v121"); A("v_xor_b32 v127, v122, v123")
    A("v_xor_b32 v124, v124, v126"); A("v_xor_b32 v125, v125, v127")
    row_xor_reduce(A, [124, 125])
    A("v_xor_b32 v128, s%d, v124" % TAG); A("v_xor_b32 v130, s%d, v125" % TAG)
    A("s_mov_b64 exec, s[66:67]")
    A("buffer_store_dwordx2 v[128:129], v49, s[36:39], 0 offen sc1")
    A("buffer_store_dwordx2 v[130:131], v49, s[36:39], 0 offen offset:512 sc1")
    A("s_mov_b64 exec, -1")
    st_(A, 2)

def gen_ln(A, two=False):
    srd(A, 48, PQ, S * ROWB)
    srd(A, 56, PWR, D * 2)
    A("v_and_b32 v1, 63, v0")
    A("v_and_b32 v2, 15, v0")
    A("v_lshrrev_b32 v3, 4, v1")
    A("s_lshl_b32 s61, s60, 2")
    A("v_add_u32 v30, s61, v3")
    A("s_movk_i32 s62, 1152")
    A("v_mul_lo_u32 v6, v30, s62")
    A("v_lshl_add_u32 v6, v2, 3, v6")
    A("v_lshlrev_b32 v7, 3, v2")
    Q, WR, X = 64, 84, 104
    for i in range(9):
        A("buffer_load_dwordx2 %s, v6, s[48:51], 0 offen offset:%d" % (v(Q + 2 * i, 2), 128 * i) + QNT)
    for i in range(9):
        A("buffer_load_dwordx2 %s, v7, s[56:59], 0 offen offset:%d" % (v(WR + 2 * i, 2), 128 * i))
    if two:
        A("s_mov_b32 s62, %d" % (1024 * 1152))
        for i in range(9):
            A("buffer_load_dwordx2 %s, v6, s[48:51], s62 offen offset:%d" % (v(144 + 2 * i, 2), 128 * i))
    return Q, WR, X

def gen_ln_compute(A, Q, WR, X, extra=0, first_wait=None):
    def trans():
        A("s_waitcnt vmcnt(%d)" % extra)
        st_(A, 1)
    tp = TwoPass(A, "ln")
    tp.begin(trans)
    for i in range(18):
        unpack_pair(A, X + 2 * i, X + 2 * i + 1, Q + i, 40)
    A("v_pk_add_f32 v[8:9], %s, %s" % (v(X, 2), v(X + 2, 2)))
    A("v_pk_add_f32 v[10:11], %s, %s" % (v(X + 4, 2), v(X + 6, 2)))
    for i in range(4, 18, 2):
        A("v_pk_add_f32 v[8:9], v[8:9], %s" % v(X + 2 * i, 2))
        A("v_pk_add_f32 v[10:11], v[10:11], %s" % v(X + 2 * i + 2, 2))
    A("v_pk_add_f32 v[8:9], v[8:9], v[10:11]")
    A.nop(1)
    A("v_add_f32 v8, v8, v9")
    allreduce16_add(A, 8)
    A("v_mul_f32 v8, 0x3ae38e39, v8")
    A("v_sub_f32 v12, 0, v8")
    A("v_sub_f32 v13, 0, v8")
    for r in (14, 15, 16, 17):
        A("v_mov_b32 %s, 0" % v(r))
    for i in range(0, 18, 2):
        A("v_pk_add_f32 v[18:19], %s, v[12:13]" % v(X + 2 * i, 2))
        A("v_pk_add_f32 v[20:21], %s, v[12:13]" % v(X + 2 * i + 2, 2))
        A("v_pk_fma_f32 v[14:15], v[18:19], v[18:19], v[14:15]")
        A("v_pk_fma_f32 v[16:17], v[20:21], v[20:21], v[16:17]")
    A("v_pk_add_f32 v[14:15], v[14:15], v[16:17]")
    A.nop(1)
    A("v_add_f32 v14, v14, v15")
    allreduce16_add(A, 14)
    A("v_mul_f32 v14, 0x3ae38e39, v14")
    A.nop(1)
    round_pair(A, 8, 14, 9, 40)
    A("v_add_f32 v14, 0x3727c5ac, v14")
    A.nop(1)
    A("v_cvt_pk_bf16_f32 v9, v14, v14")
    A("v_lshlrev_b32 v14, 16, v9")
    A("v_sqrt_f32 v14, v14")
    A.nop(1)
    A("v_cvt_pk_bf16_f32 v9, v14, v14")
    A("v_lshlrev_b32 v14, 16, v9")
    A("v_rcp_f32 v15, v14")
    A.nop(1)
    A("v_fma_f32 v16, -v14, v15, 1.0")
    A("v_fma_f32 v15, v16, v15, v15")
    A("v_sub_f32 v12, 0, v8"); A("v_sub_f32 v13, 0, v8")
    A("v_mov_b32 v16, v15"); A("v_mov_b32 v17, v15")
    for r in (22, 23, 24, 25):
        A("v_mov_b32 %s, 0" % v(r))
    def ops(i, tm, acc):
        x0 = X + 2 * i
        P = Asm()
        P("v_pk_add_f32 %s, %s, v[12:13]" % (v(x0, 2), v(x0, 2)))
        round_pair(P, x0, x0 + 1, tm, 40)
        P("v_pk_mul_f32 %s, %s, v[16:17]" % (v(x0, 2), v(x0, 2)))
        round_pair(P, x0, x0 + 1, tm, 40)
        unpack_pair(P, tm + 2, tm + 3, WR + i, 40)
        P("v_pk_fma_f32 %s, %s, %s, %s" % (v(acc, 2), v(x0, 2), v(tm + 2, 2), v(acc, 2)))
        return [l.strip() for l in P.lines]
    for i in range(0, 18, 2):
        interleave(A, [ops(i, 26, 22), ops(i + 1, 32, 24)])
    A("v_pk_add_f32 v[22:23], v[22:23], v[24:25]")
    A.nop(1)
    A("v_add_f32 v22, v22, v23")
    allreduce16_add(A, 22)
    A.nop(1)
    A("v_cvt_pk_bf16_f32 v23, v22, v22")
    A("v_lshlrev_b32 v23, 16, v23")
    A("v_ashrrev_i32 v24, 31, v23")
    A("v_or_b32 v24, 0x80000000, v24")
    A("v_xor_b32 v23, v23, v24")
    A("v_and_b32 v23, s40, v23")
    A("v_sub_u32 v24, 2047, v30")
    A("v_or_b32 v26, v23, v24")
    A("v_mov_b32 v27, s%d" % TAG)
    A("v_cvt_pk_bf16_f32 v32, v8, v14")
    A("v_mov_b32 v33, s%d" % TAG)
    A("v_lshlrev_b32 v28, 3, v30")
    A("s_movk_i32 s61, %d" % F_KEYG)
    A("s_mov_b32 s62, %d" % F_ROWG)
    tp.end()
    A("v_cmp_eq_u32 vcc, 0, v2")
    A("s_and_saveexec_b64 s[64:65], vcc")
    A("buffer_store_dwordx2 v[26:27], v28, s[36:39], s61 offen sc1")
    A("buffer_store_dwordx2 v[32:33], v28, s[36:39], s62 offen sc1")
    A("s_mov_b64 exec, s[64:65]")
    st_(A, 2)

def load_verified_runs(A, pay_soff, chk_soff, vlane16, vchk8, vhint8, P, pre, sleep):
    C, Tm = P + 16, P + 20
    def hint_loads():
        A("buffer_load_dwordx2 %s, %s, s[36:39], %s offen sc1" % (v(C, 2), vhint8, chk_soff))
    masked_poll(A, "vh", hint_loads, [C + 1], sleep, pre)
    Lp = A.newlabel("vp"); Ld = A.newlabel("vok")
    A("s_mov_b32 s52, 0")
    A.label(Lp)
    for i in range(4):
        A("buffer_load_dwordx4 %s, %s, s[36:39], %s offen offset:%d sc1" % (v(P + 4 * i, 4), vlane16, pay_soff, 1024 * i))
    for i in range(4):
        A("buffer_load_dword %s, %s, s[36:39], %s offen offset:%d sc1" % (v(C + i), vchk8, chk_soff, 32 * i))
    A("s_waitcnt vmcnt(0)")
    for i in range(4):
        A("v_xor_b32 %s, %s, %s" % (v(Tm + i), v(P + 4 * i), v(P + 1 + 4 * i)))
    for i in range(4):
        A("v_xor_b32 %s, %s, %s" % (v(Tm + 4 + i), v(P + 2 + 4 * i), v(P + 3 + 4 * i)))
    for i in range(4):
        A("v_xor_b32 %s, %s, %s" % (v(Tm + i), v(Tm + i), v(Tm + 4 + i)))
    row_xor_reduce(A, [Tm, Tm + 1, Tm + 2, Tm + 3])
    for i in range(4):
        A("v_xor_b32 %s, %s, %s" % (v(Tm + i), v(Tm + i), v(C + i)))
    A("v_cmp_eq_u32 vcc, s%d, %s" % (TAG, v(Tm)))
    for i in range(1, 4):
        A("v_cmp_eq_u32 s[54:55], s%d, %s" % (TAG, v(Tm + i)))
        A("s_and_b64 vcc, vcc, s[54:55]")
    A("s_cmp_eq_u64 vcc, -1")
    A("s_cbranch_scc1 %s" % Ld)
    A("s_add_u32 s52, s52, 1")
    A("s_cmp_gt_u32 s52, %d" % POLL_MAX)
    A("s_cbranch_scc1 %s" % Ld)
    A("s_sleep 2")
    A("s_branch %s" % Lp)
    A.label(Ld)

def build_ops(W, N, off):
    ops = []
    for k in range(7):
        ops.append("v_alignbit_b32 %s, %s, %s, 16" % (v(E_ + k), v(W + k + 1), v(W + k)))
    ops.append("ds_write_b128 v11, %s offset:%d" % (v(W + 2, 4), 4 * CS + off))
    for k in range(3):
        ops.append("v_pk_mov_b32 %s, %s, %s op_sel:[1,0]" % (v(G_ + 2 * k, 2), v(W + 2 * k, 2), v(W + 2 * k + 2, 2)))
    ops.append("ds_write_b128 v11, %s offset:%d" % (v(E_, 4), 1 * CS + off))
    ops.append("ds_write_b128 v11, %s offset:%d" % (v(E_ + 2, 4), 5 * CS + off))
    for k in range(3):
        ops.append("v_pk_mov_b32 %s, %s, %s op_sel:[1,0]" % (v(F_ + 2 * k, 2), v(E_ + 2 * k, 2), v(E_ + 2 * k + 2, 2)))
    ops.append("ds_write_b128 v11, %s offset:%d" % (v(G_, 4), 2 * CS + off))
    ops.append("ds_write_b128 v11, %s offset:%d" % (v(G_ + 2, 4), 6 * CS + off))
    ops.append("s_nop 0")
    ops.append("ds_write_b128 v11, %s offset:%d" % (v(F_, 4), 3 * CS + off))
    ops.append("ds_write_b128 v11, %s offset:%d" % (v(F_ + 2, 4), 7 * CS + off))
    return ops

def gen_partial_gather(A):
    T = "s%d" % TAG
    A("v_and_b32 v5, 255, v0")
    A("v_and_b32 v1, 63, v0")
    A("v_and_b32 v12, 7, v5")
    A("v_mul_u32_u24 v12, 2304, v12")
    A("v_lshrrev_b32 v13, 3, v5")
    A("v_mul_u32_u24 v14, 18432, v13")
    A("v_add_u32 v12, v12, v14")
    A("s_lshl_b32 s51, s41, 4")
    A("s_add_u32 s51, s51, %d" % F_PARTG)
    A("v_add_u32 v12, s51, v12")
    A("v_add_u32 v14, %d, v12" % (64 * 18432))
    A("v_cmp_gt_u32 vcc, 8, v13")
    A.nop(2)
    A("v_cndmask_b32 v14, v12, v14, vcc")
    A("s_mov_b64 s[56:57], vcc")
    def part_loads():
        A("s_mov_b32 s51, %d" % (32 * 18432))
        A("buffer_load_dwordx4 v[160:163], v12, s[36:39], 0 offen sc1")
        A("buffer_load_dwordx4 v[164:167], v12, s[36:39], s51 offen sc1")
        A("buffer_load_dwordx4 v[168:171], v14, s[36:39], 0 offen sc1")
    Lp = A.newlabel("ppp"); Ld = A.newlabel("ppok")
    if int(os.environ.get("PPPRE", 0)):
        A("s_sleep %d" % int(os.environ.get("PPPRE", 0)))
    A("s_mov_b32 s52, 0")
    A.label(Lp)
    part_loads()
    A("s_waitcnt vmcnt(0)")
    for i in range(3):
        b = 160 + 4 * i
        A("v_xor_b32 %s, %s, %s" % (v(172 + i), v(b), v(b + 1)))
        A("v_xor_b32 %s, %s, %s" % (v(176 + i), v(b + 2), v(b + 3)))
    for i in range(3):
        A("v_xor_b32 %s, %s, %s" % (v(172 + i), v(172 + i), v(176 + i)))
    A("v_cmp_eq_u32 vcc, %s, v172" % T)
    for r in (173, 174):
        A("v_cmp_eq_u32 s[54:55], %s, %s" % (T, v(r)))
        A("s_and_b64 vcc, vcc, s[54:55]")
    A("s_andn2_b64 exec, exec, vcc")
    A("s_cbranch_scc0 %s" % Ld)
    A("s_add_u32 s52, s52, 1")
    A("s_cmp_gt_u32 s52, %d" % POLL_MAX)
    A("s_cbranch_scc1 %s" % Ld)
    A("s_sleep %d" % int(os.environ.get("PPSLEEP", 6)))
    A("s_branch %s" % Lp)
    A.label(Ld)
    A("s_mov_b64 exec, -1")
    st_(A, 8)
    dbg_time(A, 10)
    A("s_mov_b32 s58, 0xffffff00")
    A("s_mov_b32 s59, 0x0c0c0004")
    for i in range(3):
        b = 160 + 4 * i
        o = 20 + 4 * i
        A("v_lshlrev_b32 %s, 24, %s" % (v(o + 3), v(b)))
        A("v_and_b32 %s, 0xff, %s" % (v(176), v(b + 1)))
        A("v_and_b32 %s, 0xff, %s" % (v(177), v(b + 2)))
        A("v_lshl_or_b32 %s, %s, 16, %s" % (v(o + 3), v(176), v(o + 3)))
        A("v_lshl_or_b32 %s, %s, 8, %s" % (v(o + 3), v(177), v(o + 3)))
        for k in range(3):
            A("v_and_b32 %s, s58, %s" % (v(o + k), v(b + k)))
    for k in range(4):
        A("v_cndmask_b32 %s, 0, %s, s[56:57]" % (v(28 + k), v(28 + k)))
    for k in range(4):
        A("v_add_f32 %s, %s, %s" % (v(20 + k), v(20 + k), v(24 + k)))
    for k in range(4):
        A("v_add_f32 %s, %s, %s" % (v(20 + k), v(20 + k), v(28 + k)))
    A.nop(1)
    for k in range(4):
        A("v_add_f32_dpp %s, %s, %s row_ror:8 row_mask:0xf bank_mask:0xf" % (v(24 + k), v(20 + k), v(20 + k)))
    for k in range(4):
        A("v_mov_b32 %s, %s" % (v(28 + k), v(24 + k)))
    A.nop(1)
    for k in range(4):
        A("v_permlane16_swap_b32 %s, %s" % (v(24 + k), v(28 + k)))
    A.nop(1)
    for k in range(4):
        A("v_add_f32 %s, %s, %s" % (v(24 + k), v(24 + k), v(28 + k)))
    for k in range(4):
        A("v_mov_b32 %s, %s" % (v(28 + k), v(24 + k)))
    A.nop(1)
    for k in range(4):
        A("v_permlane32_swap_b32 %s, %s" % (v(24 + k), v(28 + k)))
    A.nop(1)
    for k in range(4):
        A("v_add_f32 %s, %s, %s" % (v(24 + k), v(24 + k), v(28 + k)))
    A("v_lshlrev_b32 v18, 4, v1")
    A("s_lshl_b32 s51, s43, 7")
    A("s_add_u32 s51, s51, %d" % RED)
    A("v_add_u32 v18, s51, v18")
    A("s_mov_b64 exec, 0xff")
    A("ds_write_b128 v18, v[24:27]")
    A("s_mov_b64 exec, -1")
    A("s_waitcnt lgkmcnt(0)")
    A("v_mov_b32 v11, %d" % FLAGS)
    A("v_mov_b32 v12, 1")
    lds_signal(A, 5, "v11", "v12")

def gen_M(A):
    A("s_setprio %d" % int(os.environ.get("MPRIO", 2)))
    srd(A, 32, PSSMK, D * S * 2)
    A("v_and_b32 v1, 63, v0")
    A("v_lshlrev_b32 v4, 4, v1")
    A("s_add_u32 s56, s45, %d" % (H_OFF + 512))
    A("s_lshl_b32 s57, s44, 12")
    A("s_mov_b32 m0, s56")
    A("s_lshl_b32 s51, s44, 1")
    for i in range(4):
        A("buffer_load_dwordx4 v4, s[32:35], s57 offen offset:%d lds" % (1024 * i) + NTS)
    A("s_add_u32 s56, s56, 4096")
    A("s_add_u32 s57, s57, 4096")
    A("s_mov_b32 m0, s56")
    A("s_mov_b64 exec, 0x3")
    A("buffer_load_dwordx4 v4, s[32:35], s57 offen lds" + NTS)
    A("s_mov_b64 exec, -1")
    A("s_and_b32 s52, s51, 0xfffffffc")
    A("s_add_u32 s54, s%d, s52" % PSSMD)
    A("s_addc_u32 s55, s%d, 0" % (PSSMD + 1))
    A("s_load_dword s53, s[54:55], 0")
    A("v_and_b32 v2, 15, v0")
    A("v_bfe_u32 v3, v0, 4, 2")
    A("v_mov_b32 v12, 0"); A("v_mov_b32 v13, 0"); A("v_mov_b32 v14, 0"); A("v_mov_b32 v15, 0")
    A("v_add_u32 v11, s45, v4")
    A("s_mov_b32 exec_hi, 0")
    A("ds_write_b128 v11, v[12:15] offset:%d" % H_OFF)
    A("s_mov_b64 exec, 0x3")
    for c in range(8):
        pass
    A("ds_write_b128 v11, v[12:15]")
    A("s_mov_b64 exec, 0xf")
    A("ds_write_b128 v11, v[12:15] offset:%d" % (258 * 16))
    A("s_mov_b64 exec, -1")
    A("v_lshlrev_b32 v5, 5, v2")
    A("v_lshl_add_u32 v5, v3, 4, v5")
    A("v_add_u32 v5, s45, v5")
    A("v_add_u32 v5, %d, v5" % H_OFF)
    A("v_and_b32 v8, 7, v2")
    A("v_sub_u32 v8, 7, v8")
    A("v_mul_u32_u24 v8, %d, v8" % CS)
    A("v_lshrrev_b32 v6, 3, v2")
    A("v_sub_u32 v6, v3, v6")
    A("v_lshlrev_b32 v6, 4, v6")
    A("v_add_u32 v8, v8, v6")
    A("v_add_u32 v8, 16, v8")
    A("v_add_u32 v9, s45, v8")
    A("v_lshlrev_b32 v6, 5, v2")
    A("v_lshl_add_u32 v6, v3, 3, v6")
    A("v_sub_u32 v7, %d, v6" % (4120 - 3584))
    A("v_add_u32 v7, s45, v7")
    A("v_add_u32 v6, s45, v6")
    A("v_add_u32 v6, %d, v6" % YOFF)
    A("s_lshl_b32 s49, s43, 2")
    A("s_add_u32 s49, s49, %d" % FLAGS)
    A("v_mov_b32 v10, s49")
    for i in range(32):
        A("v_mov_b32 %s, 0" % v(ACC + i))
    A("s_lshl_b32 s48, s44, 12")
    A("s_add_u32 s48, s48, %d" % F_UR)
    A("v_lshlrev_b32 v16, 3, v3")
    A("s_lshl_b32 s50, s44, 7")
    A("s_add_u32 s50, s50, %d" % F_URC)
    A("v_and_b32 v17, 15, v1")
    A("v_lshlrev_b32 v17, 3, v17")
    def hint_loads():
        A("buffer_load_dwordx2 v[136:137], v17, s[36:39], s50 offen sc1")
    if os.environ.get("URHINT"):
        masked_poll(A, "urh", hint_loads, [137], int(os.environ.get("URSLEEP", 4)), int(os.environ.get("URPRE", 8)))
    else:
        A("s_sleep %d" % int(os.environ.get("URPRE", 24)))
    Lp = A.newlabel("urp"); Ld = A.newlabel("urok")
    A("s_mov_b32 s52, 0")
    A.label(Lp)
    for i in range(4):
        A("buffer_load_dwordx4 %s, v4, s[36:39], s48 offen offset:%d sc1" % (v(120 + 4 * i, 4), 1024 * i))
    for i in range(4):
        A("buffer_load_dword %s, v16, s[36:39], s50 offen offset:%d sc1" % (v(136 + i), 32 * i))
    A("s_waitcnt vmcnt(0)")
    for i in range(4):
        A("v_xor_b32 %s, %s, %s" % (v(140 + i), v(120 + 4 * i), v(121 + 4 * i)))
    for i in range(4):
        A("v_xor_b32 %s, %s, %s" % (v(144 + i), v(122 + 4 * i), v(123 + 4 * i)))
    for i in range(4):
        A("v_xor_b32 %s, %s, %s" % (v(140 + i), v(140 + i), v(144 + i)))
    row_xor_reduce(A, [140, 141, 142, 143])
    for i in range(4):
        A("v_xor_b32 %s, %s, %s" % (v(140 + i), v(140 + i), v(136 + i)))
    A("v_cmp_eq_u32 vcc, s%d, v140" % TAG)
    for i in range(1, 4):
        A("v_cmp_eq_u32 s[54:55], s%d, %s" % (TAG, v(140 + i)))
        A("s_and_b64 vcc, vcc, s[54:55]")
    A("s_cmp_eq_u64 vcc, -1")
    A("s_cbranch_scc1 %s" % Ld)
    A("s_add_u32 s52, s52, 1")
    A("s_cmp_gt_u32 s52, %d" % POLL_MAX)
    A("s_cbranch_scc1 %s" % Ld)
    A("s_sleep %d" % int(os.environ.get("URSLEEP", 6)))
    A("s_branch %s" % Lp)
    A.label(Ld)
    st_(A, 3)
    dbg_time(A, 5)
    A("s_setprio %d" % int(os.environ.get("MPRIO2", 0)))
    for i in range(4):
        A("ds_write_b128 v11, %s offset:%d" % (v(120 + 4 * i, 4), 32 + 1024 * i))
    A("s_waitcnt lgkmcnt(0)")
    for (W, off) in ((152, 4096), (160, 3072), (168, 2048), (W1, 1024), (W0, 0)):
        A("ds_read_b128 %s, v11 offset:%d" % (v(W, 4), off))
        A("ds_read_b128 %s, v11 offset:%d" % (v(W + 4, 4), off + 16))
    A("s_waitcnt lgkmcnt(8)")
    A("s_mov_b64 exec, 0x1f")
    for o in build_ops(152, 0, 4096): A(o)
    A("s_mov_b64 exec, -1")
    A("s_waitcnt lgkmcnt(11)")
    for o in build_ops(160, 0, 3072): A(o)
    A("s_waitcnt lgkmcnt(14)")
    for o in build_ops(168, 0, 2048): A(o)
    A("s_waitcnt lgkmcnt(0)")
    st_(A, 4)
    hi_steps, lo_frags, lo_slot, lo_steps = conv_schedule()
    def bslot(sl):
        return v(BS + 4 * sl, 4)
    order, seen = [], set()
    for q, lst in hi_steps:
        for t, sl in lst:
            if sl not in seen:
                seen.add(sl); order.append(sl)
    aseq = [q for q in range(33)] + [q for q in range(65)]
    issued = []
    def issue(tag, txt):
        A(txt); issued.append(tag)
    def wait_for(tags):
        idx = max(len(issued) - 1 - issued[::-1].index(t) for t in tags)
        n = len(issued) - 1 - idx
        A("s_waitcnt lgkmcnt(%d)" % min(n, 15))
    def a_issue(k):
        issue(("A", k), "ds_read_b128 %s, v9 offset:%d" % (v(RING + 4 * (k % NR), 4), 64 * (64 - aseq[k])))
    def b_issue(sl):
        issue(("B", sl), "ds_read_b128 %s, v5 offset:%d" % (bslot(sl), 64 * (56 - sl + 8)))
    fill = deque()
    cnt = [0]
    def emit_fill(k):
        while k > 0 and fill:
            f = fill.popleft(); f(); cnt[0] += 1; k -= 1
    def add_plain(txt):
        if txt.startswith("ds_"):
            fill.append(lambda txt=txt: issue(("W",), txt))
        else:
            fill.append(lambda txt=txt: A(txt))
    a_issue(0)
    for sl in order[:5]:
        b_issue(sl)
    nextA = 1
    for k in range(1, NR):
        a_issue(nextA); nextA += 1
        b_issue(order[5 + k - 1])
    nextB = 5 + (NR - 1)
    A("s_and_b32 s52, s51, 2")
    A("s_lshl_b32 s52, s52, 3")
    A("s_lshr_b32 s53, s53, s52")
    A("s_lshl_b32 s53, s53, 16")
    A("v_mov_b32 v18, s53"); A("v_mov_b32 v19, s53")
    n = 0
    fu = {}
    for q, lst in hi_steps:
        for t, sl in lst:
            fu.setdefault(sl, q)
    for q, lst in hi_steps:
        while nextB < len(order) and fu[order[nextB]] <= q + 3:
            b_issue(order[nextB]); nextB += 1
        wait_for([("A", n)] + [("B", sl) for _, sl in lst])
        for t, sl in lst:
            A("v_mfma_f32_16x16x32_bf16 %s, %s, %s, %s" % (v(ACC + 4 * t, 4), v(RING + 4 * (n % NR), 4), bslot(sl), v(ACC + 4 * t, 4)))
        if nextA < len(aseq):
            a_issue(nextA); nextA += 1
        if q < 32:
            issue(("L", q), "ds_read_b128 %s, v5 offset:%d" % (bslot(q), 64 * (lo_frags[q] + 8)))
        n += 1
    st_(A, 5)
    def tile_epilogue(t):
        u0 = UREG + 2 * (t % 2)
        ac = ACC + 4 * t
        fill.append(lambda: wait_for([("U", t)] + ([("L", 31)] if t == 0 else [])))
        P = Asm()
        P("v_and_b32 v12, s40, %s" % v(u0 + 1))
        P("v_lshlrev_b32 v13, 16, %s" % v(u0 + 1))
        P("v_and_b32 v14, s40, %s" % v(u0))
        P("v_lshlrev_b32 v15, 16, %s" % v(u0))
        if FAST:
            P("s_nop 0"); P("s_nop 0")
            P("v_pk_fma_f32 v[12:13], v[12:13], v[18:19], %s" % v(ac, 2))
            P("v_pk_fma_f32 v[14:15], v[14:15], v[18:19], %s" % v(ac + 2, 2))
            P("s_nop 0")
        else:
            P("v_pk_mul_f32 v[12:13], v[12:13], v[18:19]")
            P("v_pk_mul_f32 v[14:15], v[14:15], v[18:19]")
            round_pair(P, 12, 13, 16, 40)
            round_pair(P, 14, 15, 17, 40)
            round_pair(P, ac, ac + 1, 16, 40)
            round_pair(P, ac + 2, ac + 3, 17, 40)
            P("v_pk_add_f32 v[12:13], v[12:13], %s" % v(ac, 2))
            P("v_pk_add_f32 v[14:15], v[14:15], %s" % v(ac + 2, 2))
        P("v_cvt_pk_bf16_f32 v16, v12, v13")
        P("v_cvt_pk_bf16_f32 v17, v14, v15")
        for l in P.lines:
            add_plain(l.strip())
        fill.append(lambda: issue(("Y", t), "ds_write_b64 v6, v[16:17] offset:%d" % (512 * t)))
        fill.append(lambda: A("v_mov_b32 v8, %d" % (t + 1)))
        for _ in range(3):
            fill.append(lambda: None)
        fill.append(lambda: wait_for([("Y", t)]))
        fill.append(lambda: issue(("F", t), "ds_write_b32 v10, v8"))
    for o in build_ops(W1, 0, 1024): add_plain(o)
    n1 = len(fill)
    for o in build_ops(W0, 0, 0): add_plain(o)
    n0 = len(fill)
    for q, lst in lo_steps:
        wait_for([("A", n)] + [("L", sl) for _, sl in lst])
        k = len(lst)
        per = int(os.environ.get('FPER', 2)) if k >= 2 else 1
        for i, (t, sl) in enumerate(lst):
            A("v_mfma_f32_16x16x32_bf16 %s, %s, %s, %s" % (v(ACC + 4 * t, 4), v(RING + 4 * (n % NR), 4), bslot(sl), v(ACC + 4 * t, 4)))
            if i < k - 1 or k == 1:
                emit_fill(per)
        if nextA < len(aseq):
            qq = aseq[nextA]
            if nextA >= 33 and qq >= 33:
                assert cnt[0] >= n1
            if nextA >= 33 and qq >= 49:
                assert cnt[0] >= n0
            a_issue(nextA); nextA += 1
        n += 1
        if q % 8 == 4:
            t = q // 8
            issue(("U", t), "ds_read_b64 %s, v7 offset:%d" % (v(UREG + 2 * (t % 2), 2), 512 * (7 - t)))
        if q >= 9 and (q - 9) % 8 == 0 and (q - 9) // 8 < 7:
            tile_epilogue((q - 9) // 8)
    A.nop(4)
    st_(A, 6)
    tile_epilogue(7)
    emit_fill(1000)
    st_(A, 7)
    dbg_time(A, 1)
    gen_partial_gather(A)
    st_(A, 9, end=True)
    A("s_endpgm")

XQ = 208
def h_early_loads(A):
    srd(A, 16, PQ, S * ROWB)
    A("v_and_b32 v201, 255, v0")
    A("s_movk_i32 s63, 1152")
    A("v_mul_lo_u32 v200, v201, s63")
    A("s_lshl_b32 s63, s41, 3")
    A("v_add_u32 v200, s63, v200")
    return 8

def strip_loads(A):
    h_early_loads(A)
    if os.environ.get("NOSTRIP"):
        for t in range(8):
            A("s_nop 0")
            A("buffer_load_dwordx2 %s, v1, s[16:19], 0 offen" % v(XQ + 2 * t, 2))
        return
    A("s_mov_b32 s63, 0")
    for t in range(8):
        A("buffer_load_dwordx2 %s, v200, s[16:19], s63 offen" % v(XQ + 2 * t, 2))
        A("s_add_u32 s63, s63, %d" % (256 * 1152))

def q_prefetch(A):
    srd(A, 16, PQ, S * ROWB)
    Ln = A.newlabel("noqpf")
    A("v_and_b32 v202, 15, v0")
    A("v_bfe_u32 v203, v0, 4, 2")
    A("v_mul_u32_u24 v203, 1152, v203")
    A("v_lshl_add_u32 v202, v202, 4, v203")
    A("s_mul_i32 s63, s30, 144")
    A("s_and_b32 s63, s63, 0xffffff80")
    A("s_min_u32 s64, s31, 15")
    A("s_lshl_b32 s64, s64, 7")
    A("s_sub_u32 s65, s42, 4")
    A("s_lshl_b32 s65, s65, 5")
    A("s_add_u32 s64, s64, s65")
    A("s_mul_i32 s64, s64, 1152")
    A("s_add_u32 s63, s63, s64")
    for i in range(8):
        A("buffer_load_dwordx4 v[204:207], v202, s[16:19], s63 offen")
        A("s_add_u32 s63, s63, %d" % (4 * 1152))

def gen_H(A):
    srd(A, 20, POUT, S * ROWB)
    T = "s%d" % TAG
    A("v_and_b32 v1, 63, v0")
    A("v_mov_b32 v5, v201")
    A("v_mov_b32 v6, v200")
    A("v_lshlrev_b32 v7, 3, v5")
    RG = 160
    X, XN, T1 = 64, 96, 128
    A("s_setprio %d" % int(os.environ.get("HPRIO", 1)))
    for r in range(32):
        A("v_mov_b32 %s, 0" % v(X + r))
    A("v_lshlrev_b32 v8, 4, v1")
    A("v_lshrrev_b32 v9, 4, v1")
    A("v_lshlrev_b32 v9, 3, v9")
    A("s_lshl_b32 s48, s44, 12")
    A("s_add_u32 s48, s48, %d" % F_XT)
    A("s_lshl_b32 s50, s44, 7")
    A("s_add_u32 s50, s50, %d" % F_XC)
    P, C, Tm = 224, 240, 244
    A("s_sleep %d" % int(os.environ.get("ROWPRE", 32)))
    Lp = A.newlabel("hp"); Ld = A.newlabel("hok")
    A("s_mov_b32 s52, 0")
    A.label(Lp)
    for i in range(4):
        A("buffer_load_dwordx4 %s, v8, s[36:39], s48 offen offset:%d sc1" % (v(P + 4 * i, 4), 1024 * i))
    for i in range(4):
        A("buffer_load_dword %s, v9, s[36:39], s50 offen offset:%d sc1" % (v(C + i), 32 * i))
    for t in range(8):
        A("s_mov_b32 s51, %d" % (F_ROWG + 2048 * t))
        A("buffer_load_dwordx2 %s, v7, s[36:39], s51 offen sc1" % v(RG + 2 * t, 2))
    A("s_waitcnt vmcnt(8)")
    for i in range(4):
        A("v_xor_b32 %s, %s, %s" % (v(Tm + i), v(P + 4 * i), v(P + 1 + 4 * i)))
    for i in range(4):
        A("v_xor_b32 %s, %s, %s" % (v(Tm + 4 + i), v(P + 2 + 4 * i), v(P + 3 + 4 * i)))
    for i in range(4):
        A("v_xor_b32 %s, %s, %s" % (v(Tm + i), v(Tm + i), v(Tm + 4 + i)))
    row_xor_reduce(A, [Tm, Tm + 1, Tm + 2, Tm + 3])
    for i in range(4):
        A("v_xor_b32 %s, %s, %s" % (v(Tm + i), v(Tm + i), v(C + i)))
    A("v_cmp_eq_u32 vcc, s%d, %s" % (TAG, v(Tm)))
    for i in range(1, 4):
        A("v_cmp_eq_u32 s[54:55], s%d, %s" % (TAG, v(Tm + i)))
        A("s_and_b64 vcc, vcc, s[54:55]")
    A("s_waitcnt vmcnt(0)")
    for r in range(RG + 1, RG + 16, 2):
        A("v_cmp_eq_u32 s[54:55], s%d, %s" % (TAG, v(r)))
        A("s_and_b64 vcc, vcc, s[54:55]")
    A("s_cmp_eq_u64 vcc, -1")
    A("s_cbranch_scc1 %s" % Ld)
    A("s_add_u32 s52, s52, 1")
    A("s_cmp_gt_u32 s52, %d" % POLL_MAX)
    A("s_cbranch_scc1 %s" % Ld)
    A("s_sleep %d" % int(os.environ.get("ROWSLEEP", 8)))
    A("s_branch %s" % Lp)
    A.label(Ld)
    st_(A, 10)
    A("v_mov_b32 v11, %d" % FLAGS)
    A("v_mov_b32 v12, 1")
    lds_signal(A, 4, "v11", "v12")
    lds_wait(A, 4, 4, "v11", "v13", sleep=1)
    st_(A, 2 + 7)
    A("v_lshlrev_b32 v8, 1, v5")
    A("s_lshl_b32 s48, s41, 14")
    A("s_add_u32 s48, s48, %d" % F_XT)
    for c in range(4):
        for t in range(8):
            A("buffer_load_short_d16_hi %s, v8, s[36:39], s48 offen offset:%d sc1" % (v(X + 4 * t + c), 512 * t))
        A("s_add_u32 s48, s48, 4096")
    if FAST:
        for t in range(8):
            st = 176 + 4 * t
            A("v_and_b32 %s, s40, %s" % (v(st), v(RG + 2 * t)))
            A("v_lshlrev_b32 %s, 16, %s" % (v(st + 2), v(RG + 2 * t)))
        for t in range(8):
            st = 176 + 4 * t
            A("v_rcp_f32 %s, %s" % (v(st), v(st)))
        for t in range(8):
            st = 176 + 4 * t
            A("v_mul_f32_e64 %s, -%s, %s" % (v(st + 2), v(st + 2), v(st)))
            A("v_mov_b32 %s, %s" % (v(st + 1), v(st)))
        for t in range(8):
            st = 176 + 4 * t
            A("v_mov_b32 %s, %s" % (v(st + 3), v(st + 2)))
        A("s_waitcnt vmcnt(0)")
        st_(A, 3)
        for t in range(8):
            st = 176 + 4 * t
            for p in range(2):
                x, xn = X + 4 * t + 2 * p, XN + 4 * t + 2 * p
                A("v_pk_fma_f32 %s, %s, %s, %s" % (v(xn, 2), v(x, 2), v(st, 2), v(st + 2, 2)))
    else:
        for t in range(8):
            stats_from_msd(A, RG + 2 * t, 176 + 6 * t, 40)
        A("s_waitcnt vmcnt(0)")
        st_(A, 3)
        for t in range(8):
            st = 176 + 6 * t
            streams = []
            for p in range(2):
                x, xn = X + 4 * t + 2 * p, XN + 4 * t + 2 * p
                tm = 56 + 4 * p
                P = Asm()
                P("v_pk_add_f32 %s, %s, %s" % (v(tm, 2), v(x, 2), v(st, 2)))
                round_pair(P, tm, tm + 1, tm + 2, 40)
                P("v_pk_mul_f32 %s, %s, %s" % (v(xn, 2), v(tm, 2), v(st + 2, 2)))
                P("v_pk_fma_f32 %s, %s, %s, %s" % (v(tm, 2), v(xn, 2), v(st + 4, 2), v(tm, 2)))
                P("v_pk_fma_f32 %s, %s, %s, %s" % (v(xn, 2), v(tm, 2), v(st + 2, 2), v(xn, 2)))
                round_pair(P, xn, xn + 1, tm + 2, 40)
                streams.append([l.strip() for l in P.lines])
            interleave(A, streams)
    st_(A, 4)
    dbg_time(A, 11)
    A("v_lshlrev_b32 v9, 1, v5")
    A("v_add_u32 v9, %d, v9" % YOFF)
    A("v_add_u32 v10, %d, v9" % (2 * CH_LDS))
    A("v_mov_b32 v11, %d" % FLAGS)
    for i in range(4):
        A("v_mov_b32 %s, 0" % v(40 + i))
    A("v_and_b32 v8, 7, v1")
    A("v_lshlrev_b32 v8, 3, v8")
    def sel_loads():
        A("s_movk_i32 s51, %d" % F_SELG)
        A("buffer_load_dwordx2 v[180:181], v8, s[36:39], s51 offen sc1")
    sel_loads_m = sel_loads
    A("s_mov_b32 s59, 0")
    A("s_setprio %d" % int(os.environ.get("HPRIO2", 1)))
    for t in range(8):
        Lw = A.newlabel("yw"); Lg = A.newlabel("yg")
        A("s_cmp_gt_u32 s59, %d" % t)
        A("s_cbranch_scc1 %s" % Lg)
        A("s_mov_b32 s52, 0")
        A.label(Lw)
        A("ds_read_b128 v[16:19], v11")
        A("s_add_u32 s52, s52, 1")
        A("s_waitcnt lgkmcnt(0)")
        A("v_min_u32 v16, v16, v17")
        A("v_min3_u32 v16, v16, v18, v19")
        A("s_cmp_gt_u32 s52, %d" % POLL_MAX)
        A("v_readfirstlane_b32 s59, v16")
        A("s_cbranch_scc1 %s" % Lg)
        A("s_nop 1")
        A("s_cmp_gt_u32 s59, %d" % t)
        A("s_cbranch_scc1 %s" % Lg)
        A("s_sleep 1")
        A("s_branch %s" % Lw)
        A.label(Lg)
        if os.environ.get("HST") and t in (0, 2, 4, 7):
            st_(A, {0: 11, 2: 12, 4: 13, 7: 14}[t])
        A("ds_read_u16_d16_hi v40, v9 offset:%d" % (512 * t))
        A("ds_read_u16_d16_hi v41, v9 offset:%d" % (512 * t + CH_LDS))
        A("ds_read_u16_d16_hi v42, v10 offset:%d" % (512 * t))
        A("ds_read_u16_d16_hi v43, v10 offset:%d" % (512 * t + CH_LDS))
        A("s_waitcnt lgkmcnt(0)")
        if FAST:
            for p in range(2):
                x, xn, t1 = X + 4 * t + 2 * p, XN + 4 * t + 2 * p, T1 + 4 * t + 2 * p
                A("v_pk_fma_f32 %s, %s, %s, %s" % (v(t1, 2), v(xn, 2), v(40 + 2 * p, 2), v(xn, 2)))
            for p in range(2):
                x, xn, t1 = X + 4 * t + 2 * p, XN + 4 * t + 2 * p, T1 + 4 * t + 2 * p
                A("v_pk_add_f32 %s, %s, %s" % (v(t1, 2), v(t1, 2), v(x, 2)))
            for p in range(2):
                t1 = T1 + 4 * t + 2 * p
                A("v_cvt_pk_bf16_f32 %s, %s, %s" % (v(44 + 2 * (t % 2) + p), v(t1), v(t1 + 1)))
        else:
            streams = []
            for p in range(2):
                x, xn, t1 = X + 4 * t + 2 * p, XN + 4 * t + 2 * p, T1 + 4 * t + 2 * p
                tm = 56 + 4 * p
                P = Asm()
                P("v_pk_mul_f32 %s, %s, %s" % (v(tm, 2), v(xn, 2), v(40 + 2 * p, 2)))
                round_pair(P, tm, tm + 1, tm + 2, 40)
                P("v_pk_add_f32 %s, %s, %s" % (v(t1, 2), v(x, 2), v(tm, 2)))
                round_pair(P, t1, t1 + 1, tm + 2, 40)
                P("v_pk_add_f32 %s, %s, %s" % (v(tm, 2), v(t1, 2), v(xn, 2)))
                P("v_cvt_pk_bf16_f32 %s, %s, %s" % (v(44 + 2 * (t % 2) + p), v(tm), v(tm + 1)))
                streams.append([l.strip() for l in P.lines])
            interleave(A, streams)
        A("s_mov_b32 s51, %d" % (t * 256 * 1152))
        A("buffer_store_dwordx2 %s, v6, s[20:23], s51 offen" % v(44 + 2 * (t % 2), 2) + os.environ.get("OUTPOL", ""))
        if t == 5:
            sel_loads()
    st_(A, 5)
    dbg_time(A, 9)
    first_then_poll(A, "sel", sel_loads_m, [181], 4, "-1", first_cnt=2)
    A("v_lshrrev_b32 v45, 16, v180")
    A("v_and_b32 v46, 0x8000, v45")
    A("v_mov_b32 v47, 0xffff")
    A("v_mov_b32 v48, 0x8000")
    A("v_cmp_ne_u32 vcc, 0, v46")
    A("v_and_b32 v44, 0xffff, v180")
    A("v_sub_u32 v44, 2047, v44")
    A("v_cndmask_b32 v47, v47, v48, vcc")
    A("v_xor_b32 v45, v45, v47")
    A("v_lshlrev_b32 v45, 16, v45")
    A("v_mul_f32 v45, 0xbfb8aa3b, v45")
    A("v_exp_f32 v45, v45")
    A.nop(1)
    A("v_add_f32 v45, 1.0, v45")
    A("v_rcp_f32 v45, v45")
    A.nop(1)
    A("v_cvt_pk_bf16_f32 v45, v45, v45")
    A("v_lshlrev_b32 v45, 16, v45")
    for i in range(8):
        Ls = A.newlabel("ns")
        A("v_readlane_b32 s51, v44, %d" % i)
        A("v_mov_b32 v52, %d" % (SIDE + 32 * i))
        A("s_nop 2")
        A("s_bfe_u32 s58, s51, 0x20006")
        A("s_cmp_lg_u32 s58, s43")
        A("s_cbranch_scc1 %s" % Ls)
        A("s_lshr_b32 s58, s51, 8")
        A("s_lshl_b32 s58, s58, 2")
        A("s_and_b32 s51, s51, 255")
        A("v_cmp_eq_u32 vcc, s51, v5")
        A("s_set_gpr_idx_on s58, gpr_idx(SRC0)")
        for k in range(4):
            A("v_mov_b32 %s, %s" % (v(36 + k), v(T1 + k)))
        for k in range(4):
            A("v_mov_b32 %s, %s" % (v(40 + k), v(XN + k)))
        A("s_set_gpr_idx_off")
        A("s_mov_b64 exec, vcc")
        A("ds_write_b128 v52, v[36:39]")
        A("ds_write_b128 v52, v[40:43] offset:16")
        A("s_mov_b64 exec, -1")
        A.label(Ls)
    A("s_waitcnt vmcnt(0) lgkmcnt(0)")
    A("v_mov_b32 v11, %d" % FLAGS)
    A("v_mov_b32 v12, 1")
    lds_signal(A, 6, "v11", "v12")
    st_(A, 6)
    Lend = A.newlabel("hend")
    A("s_cmp_lg_u32 s42, 4")
    A("s_cbranch_scc1 %s" % Lend)
    A("v_lshlrev_b32 v18, 4, v1")
    A("v_add_u32 v19, %d, v18" % RED)
    A("v_lshlrev_b32 v20, 5, v1")
    A("v_add_u32 v53, %d, v20" % SIDE)
    A("s_movk_i32 s51, 1152")
    A("v_mul_lo_u32 v44, v44, s51")
    A("s_lshl_b32 s51, s41, 3")
    A("v_add_u32 v44, s51, v44")
    lds_wait(A, 6, 4, "v11", "v12", sleep=0)
    A("s_mov_b64 exec, 0xff")
    A("ds_read_b128 v[36:39], v53")
    A("ds_read_b128 v[40:43], v53 offset:16")
    A("s_mov_b64 exec, -1")
    lds_wait(A, 5, 4, "v11", "v12", sleep=0)
    st_(A, 7)
    A("s_mov_b64 exec, 0xff")
    for w in range(4):
        A("ds_read_b128 %s, v19 offset:%d" % (v(20 + 4 * w, 4), 128 * w))
    A("s_waitcnt lgkmcnt(0)")
    for k in range(4):
        A("v_add_f32 %s, %s, %s" % (v(20 + k), v(20 + k), v(24 + k)))
        A("v_add_f32 %s, %s, %s" % (v(28 + k), v(28 + k), v(32 + k)))
    for k in range(4):
        A("v_add_f32 %s, %s, %s" % (v(20 + k), v(20 + k), v(28 + k)))
    if FAST:
        for k in range(4):
            A("v_fma_f32 %s, %s, v45, %s" % (v(20 + k), v(20 + k), v(36 + k)))
        A.nop(1)
    else:
        A.nop(1)
        round_pair(A, 20, 21, 24, 40); round_pair(A, 22, 23, 25, 40)
        for k in range(4):
            A("v_mul_f32 %s, %s, v45" % (v(20 + k), v(20 + k)))
        A.nop(1)
        round_pair(A, 20, 21, 24, 40); round_pair(A, 22, 23, 25, 40)
        for k in range(4):
            A("v_add_f32 %s, %s, %s" % (v(20 + k), v(20 + k), v(40 + k)))
        A.nop(1)
        round_pair(A, 20, 21, 24, 40); round_pair(A, 22, 23, 25, 40)
        for k in range(4):
            A("v_add_f32 %s, %s, %s" % (v(20 + k), v(20 + k), v(36 + k)))
        A.nop(1)
    A("v_cvt_pk_bf16_f32 v24, v20, v21")
    A("v_cvt_pk_bf16_f32 v25, v22, v23")
    A("buffer_store_dwordx2 v[24:25], v44, s[20:23], 0 offen")
    A("s_mov_b64 exec, -1")
    A.label(Lend)
    st_(A, 8, end=True)
    dbg_time(A, 2)
    if os.environ.get("CALD"):
        L = A.newlabel("cal")
        A.label(L)
        A("s_memrealtime s[96:97]")
        A("s_waitcnt lgkmcnt(0)")
        A("s_sub_u32 s96, s96, s100")
        A("s_cmp_lt_u32 s96, %d" % int(os.environ["CALD"]))
        A("s_cbranch_scc1 %s" % L)
    A("s_endpgm")

def gen_conv_wg(A):
    A("s_and_b32 s43, s42, 3")
    A("s_lshl_b32 s44, s41, 2")
    A("s_add_u32 s44, s44, s43")
    A("s_mul_i32 s45, s43, %d" % CH_LDS)
    Lm = A.newlabel("cm"); Lh = A.newlabel("ch"); Lj = A.newlabel("cj")
    dbg_time(A, 0)
    A("s_lshr_b32 s60, s41, 4")
    A("s_and_b32 s61, s41, 15")
    A("v_mov_b32 v200, 0"); A("v_mov_b32 v201, 0")
    A("s_cmp_ge_u32 s42, 4")
    A("s_cbranch_scc1 %s" % Lh)
    A("s_setprio 2")
    gen_kv_issue(A)
    gen_kv_addr(A)
    gen_kv_addr2(A)
    finish_tag(A)
    flags_barrier(A)
    A("s_branch %s" % Lj)
    A.label(Lh)
    gen_kv_addr(A)
    gen_kv_addr2(A)
    finish_tag(A)
    A.label(Lj)
    gen_kv_compute(A)
    publish_alive(A)
    A("s_barrier")
    A("s_cmp_lt_u32 s42, 4")
    A("s_cbranch_scc1 %s" % Lm)
    h_early_loads(A)
    gen_H(A)
    A.label(Lm)
    gen_M(A)

def finish_tag(A):
    A("s_waitcnt lgkmcnt(0)")
    A("s_mul_i32 s%d, s%d, 0x9E3779B1" % (TAG, TAG))
    A("s_add_u32 s%d, s%d, 0x7F4A7C15" % (TAG, TAG))

def flags_barrier(A, alive=False):
    A("v_mov_b32 v36, 0")
    A("v_mov_b32 v37, %d" % FLAGS)
    A("v_mov_b32 v38, 0"); A("v_mov_b32 v39, 0"); A("v_mov_b32 v40, 0"); A("v_mov_b32 v41, 0")
    A("ds_write_b128 v37, v[38:41]")
    A("ds_write_b128 v37, v[38:41] offset:16")
    A("s_waitcnt lgkmcnt(0)")

def publish_alive(A):
    Ln = A.newlabel("noalive")
    A("s_cmp_lg_u32 s42, 0")
    A("s_cbranch_scc1 %s" % Ln)
    A("s_lshl_b32 s63, s41, 2")
    A("s_add_u32 s63, s63, %d" % F_ALIVE)
    A("v_mov_b32 v37, s%d" % TAG)
    A("v_mov_b32 v36, 0")
    A("s_mov_b64 exec, 1")
    A("buffer_store_dword v37, v36, s[36:39], s63 offen sc1")
    A("s_mov_b64 exec, -1")
    A.label(Ln)


BITONIC8 = [(0,4),(1,5),(2,6),(3,7),(0,2),(1,3),(4,6),(5,7),(0,1),(2,3),(4,5),(6,7)]
def merge8(A, a, b, out, spare, dpp=None):
    for i in range(7, -1, -1):
        if dpp:
            A("v_max_u32_dpp %s, %s, %s %s bank_mask:0xf" % (v(out[i]), v(b[7 - i]), v(a[i]), dpp))
        else:
            A("v_max_u32 %s, %s, %s" % (v(out[i]), v(a[i]), v(b[7 - i])))
    return sort_desc(A, out, spare, BITONIC8)

def top8_wave(A, regs, spare, other):
    cur, oth = list(regs), list(other)
    for ctl in ("quad_perm:[1,0,3,2] row_mask:0xf", "quad_perm:[2,3,0,1] row_mask:0xf", "row_half_mirror row_mask:0xf",
                "row_mirror row_mask:0xf", "row_bcast:15 row_mask:0xa", "row_bcast:31 row_mask:0xc"):
        A.nop(1)
        free = list(cur)
        new, spare2 = merge8(A, cur, cur, oth, spare, dpp=ctl)
        pool = [r for r in (free + oth + [spare]) if r not in new]
        spare = pool[0]
        oth = pool[1:9]
        cur = new
    return cur, spare, oth

L_CNT = 162368

def lds_signal(A, k, vaddr, vone):
    A("s_mov_b64 exec, 1")
    A("ds_add_u32 %s, %s offset:%d" % (vaddr, vone, 4 * k))
    A("s_mov_b64 exec, -1")

def lds_wait(A, k, n, vaddr, vtmp, sleep=0):
    L = A.newlabel("lw"); Ld = A.newlabel("lwd")
    A("s_mov_b32 s52, 0")
    A.label(L)
    A("ds_read_b32 %s, %s offset:%d" % (vtmp, vaddr, 4 * k))
    A("s_add_u32 s52, s52, 1")
    A("s_waitcnt lgkmcnt(0)")
    A("s_cmp_gt_u32 s52, %d" % (POLL_MAX * 8))
    A("v_readfirstlane_b32 s51, %s" % vtmp)
    A("s_cbranch_scc1 %s" % Ld)
    A("s_nop 1")
    A("s_cmp_ge_u32 s51, %d" % n)
    A("s_cbranch_scc1 %s" % Ld)
    if sleep:
        A("s_sleep %d" % sleep)
    A("s_branch %s" % L)
    A.label(Ld)

def gen_moe_wg(A):
    T = "s%d" % TAG
    A("v_and_b32 v1, 63, v0")
    A("v_and_b32 v4, 255, v0")
    A("v_mov_b32 v8, %d" % L_CNT)
    A("v_mov_b32 v9, 1")
    Lt = A.newlabel("twave")
    A("s_cmp_ge_u32 s42, 4")
    A("s_cbranch_scc1 %s" % Lt)
    G, U, WD = 16, 88, 160
    A("v_mov_b32 v232, 0"); A("v_mov_b32 v233, 0"); A("v_mov_b32 v234, 0"); A("v_mov_b32 v235, 0")
    A("ds_write_b128 v8, v[232:235]"); A("ds_write_b128 v8, v[232:235] offset:16")
    srd(A, 48, PWG, D * F * 2)
    srd(A, 52, PWU, D * F * 2)
    srd(A, 56, PWD, D * F * 2)
    A("v_lshrrev_b32 v5, 3, v1")
    A("v_mul_u32_u24 v5, 9216, v5")
    A("v_bfe_u32 v6, v1, 4, 1")
    A("s_and_b32 s43, s42, 1")
    A("s_lshl_b32 s43, s43, 1")
    A("v_or_b32 v6, s43, v6")
    A("v_lshlrev_b32 v6, 1, v6")
    A("v_and_b32 v7, 7, v1")
    A("v_xor_b32 v6, v6, v7")
    A("v_lshl_add_u32 v5, v6, 4, v5")
    A("s_lshl_b32 s43, s41, 7")
    A("s_mul_i32 s44, s42, 73728")
    A("s_add_u32 s43, s43, s44")
    A("s_lshl_b32 s44, s42, 10")
    A("s_waitcnt lgkmcnt(0)")
    A("s_barrier")
    for j in range(18):
        A("s_mov_b32 m0, s44")
        A("s_add_u32 s45, s44, %d" % L_WU)
        A("buffer_load_dwordx4 v5, s[48:51], s43 offen lds" + NTS)
        A("s_mov_b32 m0, s45")
        A("s_add_u32 s44, s44, 4096")
        A("buffer_load_dwordx4 v5, s[52:55], s43 offen lds" + NTS)
        A("s_add_u32 s43, s43, %d" % (4 * 73728))
    A("v_lshrrev_b32 v6, 3, v4")
    A("v_mul_u32_u24 v7, 1152, v6")
    A("v_and_b32 v12, 7, v4")
    A("v_lshl_add_u32 v236, v12, 4, v7")
    A("v_bfe_u32 v14, v6, 1, 1")
    A("v_bfe_u32 v11, v6, 3, 1")
    A("v_lshl_add_u32 v14, v11, 1, v14")
    A("v_lshlrev_b32 v14, 1, v14")
    A("v_xor_b32 v14, v14, v12")
    A("v_lshl_add_u32 v14, v14, 4, v7")
    A("v_add_u32 v15, 36864, v14")
    A("v_and_b32 v2, 15, v0")
    A("v_bfe_u32 v3, v0, 4, 2")
    A("v_lshrrev_b32 v10, 2, v2")
    A("v_lshl_add_u32 v11, v3, 3, v10")
    A("v_bfe_u32 v12, v2, 3, 1")
    A("v_and_b32 v13, 1, v3")
    A("v_lshl_add_u32 v12, v13, 1, v12")
    A("v_xor_b32 v12, s42, v12")
    A("v_and_b32 v13, 3, v2")
    A("v_lshlrev_b32 v13, 3, v13")
    A("v_lshl_add_u32 v12, v12, 5, v13")
    A("v_lshl_add_u32 v5, v11, 7, v12")
    A("v_add_u32 v6, 36864, v5")
    A("v_mul_u32_u24 v7, 1152, v11")
    A("v_add_u32 v7, v7, v12")
    A("v_add_u32 v10, 36864, v7")
    st_(A, 1)
    A("v_add_u32 v12, %d, v5" % L_WU)
    A("v_add_u32 v13, %d, v6" % L_WU)
    nst = 1 if (common.STAMPS and not LIGHT) else 0
    A("v_lshrrev_b32 v232, 3, v1")
    A("v_mul_u32_u24 v232, 1152, v232")
    A("v_bfe_u32 v233, v1, 4, 1")
    A("s_and_b32 s43, s42, 1")
    A("s_lshl_b32 s43, s43, 1")
    A("v_or_b32 v233, s43, v233")
    A("v_lshlrev_b32 v233, 1, v233")
    A("v_and_b32 v234, 7, v1")
    A("v_xor_b32 v233, v233, v234")
    A("v_lshl_add_u32 v236, v233, 4, v232")
    def rd6(ph):
        for kk in range(6 * ph, 6 * ph + 6):
            bg, bu, ko = ("v5", "v12", kk) if kk < 9 else ("v6", "v13", kk - 9)
            A("ds_read_b64_tr_b16 %s, %s offset:%d" % (v(G + 4 * kk, 2), bg, 4096 * ko))
            A("ds_read_b64_tr_b16 %s, %s offset:%d" % (v(G + 4 * kk + 2, 2), bg, 4096 * ko + 512))
            A("ds_read_b64_tr_b16 %s, %s offset:%d" % (v(U + 4 * kk, 2), bu, 4096 * ko))
            A("ds_read_b64_tr_b16 %s, %s offset:%d" % (v(U + 4 * kk + 2, 2), bu, 4096 * ko + 512))
    A("s_waitcnt vmcnt(%d)" % (24 + nst))
    lds_signal(A, 0, "v8", "v9")
    lds_wait(A, 0, 4, "v8", "v11")
    rd6(0)
    A("s_waitcnt vmcnt(%d)" % (12 + nst))
    lds_signal(A, 7, "v8", "v9")
    lds_wait(A, 7, 4, "v8", "v11")
    rd6(1)
    A("s_waitcnt lgkmcnt(0)")
    lds_signal(A, 1, "v8", "v9")
    lds_wait(A, 1, 4, "v8", "v11")
    for half in range(2):
        A("s_mul_i32 s43, s41, 73728")
        A("s_mul_i32 s44, s42, 9216")
        A("s_add_u32 s43, s43, s44")
        if half:
            A("s_add_u32 s43, s43, 36864")
            A("s_add_u32 s44, s44, %d" % L_WU)
        for sg in range(9):
            A("s_mov_b32 m0, s44")
            A("s_add_u32 s44, s44, 1024")
            A("buffer_load_dwordx4 v236, s[56:59], s43 offen offset:%d lds" % 0 + NTS)
            A("s_add_u32 s43, s43, 128")
    A("s_waitcnt vmcnt(18)")
    lds_signal(A, 6, "v8", "v9")
    lds_wait(A, 6, 4, "v8", "v11")
    st_(A, 2)
    dbg_time(A, 7)
    rd6(2)
    st_(A, 7)
    A("v_lshrrev_b32 v232, 2, v2")
    A("v_mul_u32_u24 v14, 9216, v3")
    A("v_lshl_add_u32 v14, v232, 7, v14")
    A("v_bfe_u32 v233, v2, 3, 1")
    A("v_and_b32 v234, 1, v3")
    A("v_lshl_add_u32 v233, v234, 1, v233")
    A("v_xor_b32 v233, s42, v233")
    A("v_lshl_add_u32 v14, v233, 5, v14")
    A("v_and_b32 v234, 3, v2")
    A("v_lshl_add_u32 v14, v234, 3, v14")
    A("v_add_u32 v15, %d, v14" % L_WU)
    A("v_and_b32 v12, 7, v2")
    A("v_mul_u32_u24 v5, %d, v12" % XSTR)
    A("v_lshl_add_u32 v5, v3, 4, v5")
    A("v_add_u32 v5, %d, v5" % L_X)
    A("v_mul_u32_u24 v6, %d, v2" % HSTR)
    A("v_lshl_add_u32 v6, v3, 3, v6")
    A("s_lshl_b32 s43, s42, 5")
    A("s_add_u32 s43, s43, %d" % L_HS)
    A("v_add_u32 v6, s43, v6")
    A("v_mul_u32_u24 v7, %d, v12" % HSTR)
    A("v_lshl_add_u32 v7, v3, 4, v7")
    A("v_add_u32 v7, %d, v7" % L_HS)
    A("v_mul_u32_u24 v10, 2304, v12")
    A("v_lshl_add_u32 v10, v3, 4, v10")
    A("v_bfe_u32 v13, v2, 3, 1")
    A("v_lshl_add_u32 v10, v13, 8, v10")
    A("v_cmp_eq_u32 s[56:57], 1, v13")
    A("s_mul_i32 s43, s41, 18432")
    A("s_lshl_b32 s44, s42, 6")
    A("s_add_u32 s43, s43, s44")
    A("s_add_u32 s43, s43, %d" % F_PARTG)
    A("v_mov_b32 v13, %d" % L_TAG)
    for i in range(8):
        A("v_mov_b32 %s, 0" % v(232 + i))
    A("s_waitcnt lgkmcnt(0)")
    LW = A.newlabel("Wb"); LG = A.newlabel("Gb"); LD = A.newlabel("Db")
    A("s_mov_b32 s14, 0"); A("s_mov_b32 s15, 0")
    A("ds_read_b32 v11, v8 offset:16")
    A("s_waitcnt lgkmcnt(0)")
    A("v_readfirstlane_b32 s51, v11")
    A("s_nop 3")
    A("s_cmp_ge_u32 s51, 4")
    A("s_cbranch_scc1 %s" % LG)
    A.label(LW)
    A("s_waitcnt vmcnt(0)")
    lds_signal(A, 2, "v8", "v9")
    lds_wait(A, 2, 4, "v8", "v11")
    for k in range(9):
        r = WD + 8 * k
        A("ds_read_b64_tr_b16 %s, v14 offset:%d" % (v(r, 2), 1024 * k))
        A("ds_read_b64_tr_b16 %s, v14 offset:%d" % (v(r + 2, 2), 1024 * k + 512))
        A("ds_read_b64_tr_b16 %s, v15 offset:%d" % (v(r + 4, 2), 1024 * k))
        A("ds_read_b64_tr_b16 %s, v15 offset:%d" % (v(r + 6, 2), 1024 * k + 512))
    A("s_waitcnt lgkmcnt(0)")
    A("s_mov_b32 s14, 1")
    st_(A, 3)
    dbg_time(A, 12)
    A("s_cmp_eq_u32 s15, 1")
    A("s_cbranch_scc1 %s" % LD)
    A.label(LG)
    lds_wait(A, 4, 4, "v8", "v11")
    st_(A, 4)
    A("ds_read_b32 v12, v13")
    XR = 240
    for kk in range(3):
        A("ds_read_b128 %s, v5 offset:%d" % (v(XR + 4 * kk, 4), 64 * kk))
    for kk in range(18):
        if kk + 3 < 18:
            A("ds_read_b128 %s, v5 offset:%d" % (v(XR + 4 * ((kk + 3) % 4), 4), 64 * (kk + 3)))
        A("s_waitcnt lgkmcnt(%d)" % min(3, 17 - kk))
        x = v(XR + 4 * (kk % 4), 4)
        A("v_mfma_f32_16x16x32_bf16 v[232:235], %s, %s, v[232:235]" % (v(G + 4 * kk, 4), x))
        A("v_mfma_f32_16x16x32_bf16 v[236:239], %s, %s, v[236:239]" % (v(U + 4 * kk, 4), x))
    A("v_readfirstlane_b32 %s, v12" % T)
    A.nop(6)
    if FAST:
        for i in range(4):
            A("v_mul_f32 %s, 0xbfb8aa3b, %s" % (v(20 + i), v(232 + i)))
        for i in range(4):
            A("v_exp_f32 %s, %s" % (v(20 + i), v(20 + i)))
        for i in range(4):
            A("v_mul_f32 %s, %s, %s" % (v(232 + i), v(232 + i), v(236 + i)))
        for i in range(4):
            A("v_add_f32 %s, 1.0, %s" % (v(20 + i), v(20 + i)))
        for i in range(4):
            A("v_rcp_f32 %s, %s" % (v(20 + i), v(20 + i)))
        A.nop(1)
        for i in range(4):
            A("v_mul_f32 %s, %s, %s" % (v(232 + i), v(232 + i), v(20 + i)))
        A.nop(1)
    else:
        round_pair(A, 232, 233, 16, 40); round_pair(A, 234, 235, 17, 40)
        for i in range(4):
            A("v_mul_f32 %s, 0xbfb8aa3b, %s" % (v(20 + i), v(232 + i)))
        for i in range(4):
            A("v_exp_f32 %s, %s" % (v(20 + i), v(20 + i)))
        round_pair(A, 236, 237, 16, 40); round_pair(A, 238, 239, 17, 40)
        for i in range(4):
            A("v_add_f32 %s, 1.0, %s" % (v(20 + i), v(20 + i)))
        for i in range(4):
            A("v_rcp_f32 %s, %s" % (v(20 + i), v(20 + i)))
        A.nop(1)
        for i in range(4):
            A("v_mul_f32 %s, %s, %s" % (v(232 + i), v(232 + i), v(20 + i)))
        A.nop(1)
        round_pair(A, 232, 233, 16, 40); round_pair(A, 234, 235, 17, 40)
        for i in range(4):
            A("v_mul_f32 %s, %s, %s" % (v(232 + i), v(232 + i), v(236 + i)))
        A.nop(1)
    A("v_cvt_pk_bf16_f32 v16, v232, v233")
    A("v_cvt_pk_bf16_f32 v17, v234, v235")
    A("v_cmp_gt_u32 vcc, 8, v2")
    A("s_and_saveexec_b64 s[44:45], vcc")
    A("ds_write_b64 v6, v[16:17]")
    A("s_mov_b64 exec, s[44:45]")
    A("s_mov_b32 s58, 0xffffff00")
    A("s_movk_i32 s59, 0x80")
    A("s_waitcnt lgkmcnt(0)")
    lds_signal(A, 5, "v8", "v9")
    A("s_mov_b32 s15, 1")
    A("s_cmp_eq_u32 s14, 0")
    A("s_cbranch_scc1 %s" % LW)
    A.label(LD)
    lds_wait(A, 5, 4, "v8", "v11")
    st_(A, 5)
    A("ds_read_b128 v[16:19], v7")
    A("ds_read_b128 v[20:23], v7 offset:64")
    A("s_waitcnt lgkmcnt(0)")
    AC = 88
    for k in range(9):
        r = WD + 8 * k
        A("v_mfma_f32_16x16x32_bf16 %s, %s, v[16:19], 0" % (v(AC + 4 * k, 4), v(r, 4)))
    for k in range(9):
        r = WD + 8 * k
        A("v_mfma_f32_16x16x32_bf16 %s, %s, v[20:23], %s" % (v(AC + 4 * k, 4), v(r + 4, 4), v(AC + 4 * k, 4)))
    A.nop(4)
    for kp in range(5):
        k = 2 * kp
        ac, ac2 = AC + 4 * k, AC + 4 * min(k + 1, 8)
        o = 24 + 8 * kp
        for i in range(4):
            A("v_cndmask_b32 %s, %s, %s, s[56:57]" % (v(o + i), v(ac + i), v(ac2 + i)))
        for i in range(4):
            A("v_add_u32 %s, s59, %s" % (v(o + i), v(o + i)))
        A("v_lshrrev_b32 %s, 24, %s" % (v(o + 4), v(o + 3)))
        A("v_lshrrev_b32 %s, 16, %s" % (v(o + 5), v(o + 3)))
        A("v_lshrrev_b32 %s, 8, %s" % (v(o + 6), v(o + 3)))
        for i in range(3):
            A("v_bfi_b32 %s, s58, %s, %s" % (v(o + 4 + i), v(o + i), v(o + 4 + i)))
        A("v_xor_b32 %s, %s, %s" % (v(o + 7), v(o + 4), v(o + 5)))
        A("v_xor_b32 %s, %s, %s" % (v(o + 7), v(o + 7), v(o + 6)))
        A("v_xor_b32 %s, %s, %s" % (v(o + 7), T, v(o + 7)))
        if kp == 4:
            A("s_andn2_b64 exec, exec, s[56:57]")
        A("buffer_store_dwordx4 %s, v10, s[36:39], s43 offen offset:%d sc1" % (v(o + 4, 4), 512 * kp))
    A("s_mov_b64 exec, -1")
    st_(A, 6, end=True)
    dbg_time(A, 3)
    A("s_endpgm")
    A.label(Lt)
    A("s_setprio 3")
    A("s_lshl_b32 s60, s41, 2")
    A("s_add_u32 s60, s60, s42")
    A("s_sub_u32 s60, s60, 4")
    Q, WR, X = gen_ln(A)
    A("s_barrier")
    finish_tag(A)
    gen_ln_compute(A, Q, WR, X)
    A("s_setprio %d" % int(os.environ.get("TPRIO", 1)))
    srd(A, 16, PQ, S * ROWB)
    A("v_and_b32 v1, 63, v0")
    A("v_and_b32 v4, 255, v0")
    A("v_mov_b32 v8, %d" % L_CNT)
    A("v_mov_b32 v9, 1")
    A("v_lshlrev_b32 v15, 2, v1")
    A("v_lshlrev_b32 v16, 4, v1")
    A("s_and_b32 s43, s42, 3")
    A("s_lshl_b32 s43, s43, 12")
    A("v_add_u32 v16, s43, v16")
    def key_loads():
        A("s_movk_i32 s43, %d" % F_KEYG)
        for i in range(4):
            A("buffer_load_dwordx4 %s, v16, s[36:39], s43 offen offset:%d sc1" % (v(40 + 4 * i, 4), 1024 * i))
    masked_poll(A, "key", key_loads, list(range(41, 56, 2)), int(os.environ.get("KEYSLEEP", 8)), int(os.environ.get("KEYPRE", 70)))
    A("s_setprio 3")
    st_(A, 3)
    dbg_time(A, 6)
    regs, sp = sort_desc(A, range(40, 56, 2), 41, SORT8)
    SK = 60
    free = [r for r in range(40, 57) if r not in regs and r != sp]
    cur, sp, oth = top8_wave(A, regs, sp, free[:8])
    for i in range(8):
        A("v_mov_b32 %s, %s" % (v(64 + i), v(cur[i])))
    A("s_and_b32 s43, s42, 3")
    A("s_lshl_b32 s43, s43, 5")
    A("s_add_u32 s43, s43, %d" % L_CAND)
    A("v_mov_b32 v16, s43")
    A("v_mov_b32 v31, %s" % T)
    A("v_mov_b32 v17, %d" % L_TAG)
    A("s_mov_b32 exec_lo, 0")
    A("s_mov_b32 exec_hi, 0x80000000")
    A("ds_write_b128 v16, v[64:67]")
    A("ds_write_b128 v16, v[68:71] offset:16")
    A("ds_write_b32 v17, v31")
    A("s_mov_b64 exec, -1")
    A("s_waitcnt lgkmcnt(0)")
    lds_signal(A, 3, "v8", "v9")
    lds_wait(A, 3, 4, "v8", "v11")
    A("v_mov_b32 v16, %d" % L_CAND)
    for i in range(8):
        A("ds_read_b128 %s, v16 offset:%d" % (v(64 + 4 * i, 4), 16 * i))
    A("s_waitcnt lgkmcnt(4)")
    c01, sp1 = merge8(A, list(range(64, 72)), list(range(72, 80)), list(range(40, 48)), 56)
    A("s_waitcnt lgkmcnt(0)")
    c23, sp2 = merge8(A, list(range(80, 88)), list(range(88, 96)), list(range(48, 56)), 57)
    for i in range(8):
        A("v_max_u32 %s, %s, %s" % (v(64 + i), v(c01[i]), v(c23[7 - i])))
    for i in range(8):
        A("v_readfirstlane_b32 %s, %s" % (s(SK + i), v(64 + i)))
    A.nop(3)
    st_(A, 5)
    A("s_and_b32 s45, s42, 3")
    A("s_mov_b32 s43, s60"); A("s_mov_b32 s44, s61")
    for w in range(1, 4):
        A("s_cmp_eq_u32 s45, %d" % w)
        A("s_cselect_b32 s43, %s, s43" % s(SK + 2 * w))
        A("s_cselect_b32 s44, %s, s44" % s(SK + 2 * w + 1))
    A("v_mov_b32 v16, s43"); A("v_mov_b32 v17, s44")
    A("v_cmp_lt_u32 vcc, 31, v1")
    A.nop(2)
    A("v_cndmask_b32 v16, v16, v17, vcc")
    A("v_and_b32 v16, 0xffff, v16")
    A("v_sub_u32 v16, 2047, v16")
    A("v_and_b32 v17, 31, v1")
    A("s_movk_i32 s43, 1152")
    A("v_mul_lo_u32 v18, v16, s43")
    A("v_lshl_add_u32 v18, v17, 2, v18")
    A("v_lshlrev_b32 v19, 3, v16")
    for i in range(9):
        A("buffer_load_dword %s, v18, s[16:19], 0 offen offset:%d" % (v(20 + i), 128 * i))
    def rg_loads():
        A("s_mov_b32 s43, %d" % F_ROWG)
        A("buffer_load_dwordx2 v[32:33], v19, s[36:39], s43 offen sc1")
    Lns = A.newlabel("nosel")
    A("s_cmp_lg_u32 s41, 0")
    A("s_cbranch_scc1 %s" % Lns)
    A("s_cmp_lg_u32 s42, 4")
    A("s_cbranch_scc1 %s" % Lns)
    for i in range(8):
        A("v_writelane_b32 v30, %s, %d" % (s(SK + i), i))
    A("v_lshlrev_b32 v36, 3, v1")
    A("s_movk_i32 s43, %d" % F_SELG)
    A("s_mov_b64 exec, 0xff")
    A("buffer_store_dwordx2 v[30:31], v36, s[36:39], s43 offen sc1")
    A("s_mov_b64 exec, -1")
    A.label(Lns)
    masked_poll(A, "rg", rg_loads, [33], 2, 0)
    if FAST:
        A("v_and_b32 v64, s40, v32"); A("v_lshlrev_b32 v66, 16, v32")
        A("v_rcp_f32 v64, v64")
        A("v_lshrrev_b32 v38, 5, v4")
        A("v_mul_u32_u24 v38, %d, v38" % XSTR)
        A("v_mul_f32_e64 v66, -v66, v64")
        A("v_mov_b32 v65, v64")
        A("v_lshl_add_u32 v38, v17, 2, v38")
        A("v_mov_b32 v67, v66")
        A("v_add_u32 v38, %d, v38" % L_X)
        st_(A, 4)
        for i in range(9):
            unpack_pair(A, 40 + 2 * i, 41 + 2 * i, 20 + i, 40)
        for i in range(9):
            A("v_pk_fma_f32 %s, %s, v[64:65], v[66:67]" % (v(40 + 2 * i, 2), v(40 + 2 * i, 2)))
        for i in range(9):
            A("v_cvt_pk_bf16_f32 %s, %s, %s" % (v(70 + i), v(40 + 2 * i), v(41 + 2 * i)))
        for i in range(9):
            A("ds_write_b32 v38, %s offset:%d" % (v(70 + i), 128 * i))
    else:
        stats_from_msd(A, 32, 64, 70)
        A("v_lshrrev_b32 v38, 5, v4")
        A("v_mul_u32_u24 v38, %d, v38" % XSTR)
        A("v_lshl_add_u32 v38, v17, 2, v38")
        A("v_add_u32 v38, %d, v38" % L_X)
        st_(A, 4)
        for i0 in range(0, 9, 3):
            streams = []
            for i in range(i0, i0 + 3):
                bs = 40 + 8 * (i % 3)
                ops = norm_ops(bs, bs + 2, bs + 4, 20 + i, 64)
                ops.append("v_cvt_pk_bf16_f32 %s, %s, %s" % (v(bs + 6), v(bs + 2), v(bs + 3)))
                ops.append("ds_write_b32 v38, %s offset:%d" % (v(bs + 6), 128 * i))
                streams.append(ops)
            interleave(A, streams)
    A("s_waitcnt lgkmcnt(0)")
    lds_signal(A, 4, "v8", "v9")
    st_(A, 6)
    dbg_time(A, 4)
    Le = A.newlabel("noep")
    A("s_cmp_lg_u32 s41, 0")
    A("s_cbranch_scc1 %s" % Le)
    A("s_cmp_lg_u32 s42, 4")
    A("s_cbranch_scc1 %s" % Le)
    A("s_setprio 0")
    A("v_lshlrev_b32 v16, 2, v1")
    A("v_min_u32 v17, 15, v1")
    A("v_lshlrev_b32 v17, 2, v17")
    def al_loads():
        A("s_movk_i32 s43, %d" % F_ALIVE)
        A("buffer_load_dword v20, v16, s[36:39], s43 offen sc1")
        A("buffer_load_dword v21, v16, s[36:39], s43 offen offset:256 sc1")
        A("buffer_load_dword v22, v17, s[36:39], s43 offen offset:512 sc1")
    masked_poll(A, "al", al_loads, [20, 21, 22], 16, 0)
    A("v_mov_b32 v20, %s" % T)
    A("v_mov_b32 v21, %d" % F_EPOCH)
    A("s_mov_b64 exec, 1")
    A("buffer_store_dword v20, v21, s[36:39], 0 offen sc1")
    A("s_mov_b64 exec, -1")
    A.label(Le)
    A("s_endpgm")

def gen_spare_wg(A):
    A("s_lshl_b32 s60, s41, 3")
    A("s_add_u32 s60, s60, s42")
    A("s_add_u32 s60, s60, 288")
    Lx = A.newlabel("spx")
    A("s_cmp_ge_u32 s60, 512")
    A("s_cbranch_scc1 %s" % Lx)
    Q, WR, X = gen_ln(A)
    finish_tag(A)
    gen_ln_compute(A, Q, WR, X)
    A.label(Lx)
    A("s_endpgm")

def gen_kernel(A, name):
    kernel_header(A, name)
    Ldone = A.newlabel("done"); Lmoe = A.newlabel("moe"); Lsp = A.newlabel("spare")
    A("s_getpc_b64 s[96:97]")
    if os.environ.get("CALD"):
        A("s_memrealtime s[100:101]")
    A("s_cmp_ge_u32 s2, 256")
    A("s_cbranch_scc1 %s" % Ldone)
    A("s_load_dwordx4 s[68:71], s[0:1], %d" % KA_DBG)
    A("s_load_dwordx16 s[72:87], s[0:1], 0")
    A("s_load_dwordx8 s[88:95], s[0:1], %d" % KA_WG)
    A("v_lshrrev_b32 v1, 6, v0")
    A("s_and_b32 s30, s2, 7")
    A("s_lshr_b32 s31, s2, 3")
    A("v_readfirstlane_b32 s42, v1")
    A("s_mov_b32 s40, 0xffff0000")
    if not os.environ.get("NOICPF"):
        Lc = A.newlabel("noic")
        A("s_and_b32 s96, s96, 0xffffff00")
        A("s_and_b32 s97, s97, 0xffff")
        A("s_mov_b32 s98, L_code_end-%s" % name)
        A("s_mov_b32 s99, 0x00020000")
        A("v_and_b32 v243, 63, v0")
        A("v_lshlrev_b32 v243, 4, v243")
        A("s_lshl_b32 s95, s31, 10") if False else None
        A("s_lshl_b32 s3, s31, 10")
        A("v_cmp_lt_u32 vcc, 447, v0")
        A("s_cbranch_vccz %s" % Lc)
        A("buffer_load_dwordx4 v[244:247], v243, s[96:99], s3 offen")
        A.label(Lc)
    A("s_waitcnt lgkmcnt(0)")
    A("s_load_dword s%d, s[%d:%d], %d" % (TAG, PWS, PWS + 1, F_EPOCH))
    srd(A, 36, PWS, WS_SIZE)
    A("s_lshl_b32 s3, s2, 3")
    A("s_add_u32 s3, s3, s42")
    st_(A, 0)
    ORD = os.environ.get("ORD", "B")
    if ORD == "A":
        c0, m0, p0 = 0, 18, 27
    else:
        c0, m0, p0 = 14, 5, 0
    A("s_sub_u32 s41, s31, %d" % m0)
    A("s_cmp_lt_u32 s41, 9")
    A("s_cbranch_scc1 %s" % Lmoe)
    A("s_sub_u32 s41, s31, %d" % p0)
    A("s_cmp_lt_u32 s41, 5")
    A("s_cbranch_scc1 %s" % Lsp)
    A("s_sub_u32 s31, s31, %d" % c0)
    A("s_mul_i32 s41, s30, 18")
    A("s_add_u32 s41, s41, s31")
    gen_conv_wg(A)
    A.label(Lmoe)
    A("s_mul_i32 s31, s30, 9")
    A("s_add_u32 s41, s41, s31")
    gen_moe_wg(A)
    A.label(Lsp)
    A("s_mul_i32 s31, s30, 5")
    A("s_add_u32 s41, s41, s31")
    gen_spare_wg(A)
    A.label(Ldone)
    A("s_endpgm")
    A.label("L_code_end")
    return kernel_desc(name, 256, 102, 256)
```

```python
from common import *
import common, os
from collections import deque
from conv2 import CS, CH_LDS, H_OFF, POLL_MAX, conv_schedule
from moe2 import wave_max_u32, L_WG, L_WU, L_X, L_HS, L_U, L_CAND, XSTR, HSTR
from moe3 import SORT8, sort_desc, rounds

F_EPOCH = 0x0
F_SELG = 0x100
F_ALIVE = 0x1000
F_KEYG = 0x2000
F_ROWG = 0x8000
F_LNF = 0x6000
F_URC = 0x100000 + 0x300000
F_UR = 0x20000
F_PARTG = 0x500000
F_XT = 0x800000
F_XC = 0x480000
L_TAG = 162304

PQ, PK, PV, PSHK, PSSMK, PSSMD, PWR, PWG, PWU, PWD, POUT, PWS = 72, 74, 76, 78, 80, 82, 86, 88, 90, 92, 94, 70
TAG = 46
FAST = os.environ.get('FAST', '1') != '0'
QNT = '' if os.environ.get('QDEF') else ' nt'
NTS = '' if os.environ.get('NONT') else ' nt'
LIGHT = os.environ.get("STAMPS") == "2"
def st_(A, n, end=False):
    if LIGHT:
        if n != 0 and not end:
            return
        n = 15 if end else 0
    stamp(A, n, 36, 3, vt=254, st=96)

MISC = 4 * CH_LDS
FLAGS = MISC
SIDE = MISC + 64
RED = SIDE + 256
YOFF = H_OFF
W1, W0 = 20, 28
E_, G_, F_ = 36, 44, 50
UREG = 56
RING, NR, ACC, BS = 64, 6, 88, 120

DBGT = bool(os.environ.get("DBGT"))
def dbg_time(A, slot, invert=False):
    if not DBGT:
        return
    L = A.newlabel("dbgs")
    A("s_and_b32 s100, s42, 3")
    A("s_cmp_lg_u32 s100, 0")
    A("s_cbranch_scc1 %s" % L)
    A("s_cmp_eq_u32 s2, %d" % (8 if os.environ.get("ORD", "B") == "A" else 120))
    A("s_cselect_b32 s100, 1, 0")
    A("s_cmp_eq_u32 s2, %d" % (152 if os.environ.get("ORD", "B") == "A" else 48))
    A("s_cselect_b32 s100, 1, s100")
    A("s_cmp_eq_u32 s100, 0")
    A("s_cbranch_scc1 %s" % L)
    A("s_memrealtime s[96:97]")
    A("s_waitcnt lgkmcnt(0)")
    A("v_mov_b32 v252, s96")
    A("v_mov_b32 v253, %d" % (4 * slot))
    A("s_mov_b64 s[98:99], exec")
    A("s_mov_b64 exec, 1")
    A("global_store_dword v253, v252, s[68:69]")
    A("s_mov_b64 exec, s[98:99]")
    A.label(L)

DRY = os.environ.get("DRY", "0") != "0"
class TwoPass:
    def __init__(self, A, name):
        self.A = A
        self.L = A.newlabel(name + "b"); self.Lo = A.newlabel(name + "o"); self.Lt = A.newlabel(name + "t")
    def begin(self, transition):
        A = self.A
        self.transition = transition
        if DRY:
            A("s_mov_b32 s12, 0")
            A("s_mov_b64 exec, 0")
        else:
            transition()
        A.label(self.L)
    def guard_begin(self):
        if not DRY: return None
        l = self.A.newlabel("gd")
        self.A("s_cmp_eq_u32 s12, 0")
        self.A("s_cbranch_scc1 %s" % l)
        return l
    def guard_end(self, l):
        if l: self.A.label(l)
    def end(self):
        A = self.A
        if DRY:
            A("s_cmp_eq_u32 s12, 1")
            A("s_cbranch_scc1 %s" % self.Lo)
            A("s_mov_b32 s12, 1")
            A("s_mov_b64 exec, -1")
            self.transition()
            A("s_branch %s" % self.L)
            A.label(self.Lo)

def poll_head(A, cnt="s52"):
    A("s_mov_b32 %s, 0" % cnt)

def poll_tail(A, Lloop, Ldone, cnt="s52", sleep=1):
    A("s_add_u32 %s, %s, 1" % (cnt, cnt))
    A("s_cmp_gt_u32 %s, %d" % (cnt, POLL_MAX))
    A("s_cbranch_scc1 %s" % Ldone)
    A("s_sleep %d" % sleep)
    A("s_branch %s" % Lloop)

def masked_poll(A, name, emit_loads, tagregs, sleep, pre_sleep=0, full_exec="-1"):
    T = "s%d" % TAG
    Lp = A.newlabel(name + "p"); Ld = A.newlabel(name + "ok")
    if pre_sleep:
        A("s_sleep %d" % pre_sleep)
    A("s_mov_b32 s52, 0")
    A.label(Lp)
    emit_loads()
    A("s_waitcnt vmcnt(0)")
    A("v_cmp_eq_u32 vcc, %s, %s" % (T, v(tagregs[0])))
    for r in tagregs[1:]:
        A("v_cmp_eq_u32 s[54:55], %s, %s" % (T, v(r)))
        A("s_and_b64 vcc, vcc, s[54:55]")
    A("s_andn2_b64 exec, exec, vcc")
    A("s_cbranch_scc0 %s" % Ld)
    A("s_add_u32 s52, s52, 1")
    A("s_cmp_gt_u32 s52, %d" % POLL_MAX)
    A("s_cbranch_scc1 %s" % Ld)
    A("s_sleep %d" % sleep)
    A("s_branch %s" % Lp)
    A.label(Ld)
    A("s_mov_b64 exec, %s" % full_exec)

def first_then_poll(A, name, emit_loads, tagregs, sleep, ex, first_cnt=0):
    T = "s%d" % TAG
    Lp = A.newlabel(name + "p"); Ld = A.newlabel(name + "ok")
    A("s_mov_b32 s52, 0")
    A("s_waitcnt vmcnt(%d)" % first_cnt)
    A.label(Lp)
    A("v_cmp_eq_u32 vcc, %s, %s" % (T, v(tagregs[0])))
    for r in tagregs[1:]:
        A("v_cmp_eq_u32 s[54:55], %s, %s" % (T, v(r)))
        A("s_and_b64 vcc, vcc, s[54:55]")
    A("s_andn2_b64 exec, exec, vcc")
    A("s_cbranch_scc0 %s" % Ld)
    A("s_add_u32 s52, s52, 1")
    A("s_cmp_gt_u32 s52, %d" % POLL_MAX)
    A("s_cbranch_scc1 %s" % Ld)
    A("s_sleep %d" % sleep)
    emit_loads()
    A("s_waitcnt vmcnt(0)")
    A("s_branch %s" % Lp)
    A.label(Ld)
    A("s_mov_b64 exec, -1")

def ln_hint_poll(A, vaddr, r0, sleep, pre):
    def loads():
        A("s_movk_i32 s51, %d" % F_LNF)
        A("buffer_load_dwordx4 %s, %s, s[36:39], s51 offen sc1" % (v(r0, 4), vaddr))
        A("buffer_load_dwordx4 %s, %s, s[36:39], s51 offen offset:1024 sc1" % (v(r0 + 4, 4), vaddr))
    masked_poll(A, "lnh", loads, list(range(r0, r0 + 8)), sleep, pre)

def stats_from_msd(A, g, st, t):
    A("v_and_b32 %s, s40, %s" % (v(st + 4), v(g)))
    A("v_lshlrev_b32 %s, 16, %s" % (v(st), v(g)))
    A("v_rcp_f32 %s, %s" % (v(st + 2), v(st + 4)))
    A("v_xor_b32 %s, 0x80000000, %s" % (v(st), v(st)))
    A("v_xor_b32 %s, 0x80000000, %s" % (v(st + 4), v(st + 4)))
    A("v_fma_f32 %s, %s, %s, 1.0" % (v(t), v(st + 4), v(st + 2)))
    A("v_mov_b32 %s, %s" % (v(st + 1), v(st)))
    A("v_fma_f32 %s, %s, %s, %s" % (v(st + 2), v(t), v(st + 2), v(st + 2)))
    A("v_mov_b32 %s, %s" % (v(st + 5), v(st + 4)))
    A("v_mov_b32 %s, %s" % (v(st + 3), v(st + 2)))

LK, LV, LQ, SG, SX, SGS = 0, 17408, 33792, 50176, 67584, 272

def row_xor_reduce(A, regs):
    for ctl in ("quad_perm:[1,0,3,2]", "quad_perm:[2,3,0,1]", "row_half_mirror", "row_mirror"):
        if len(regs) < 3:
            A.nop(3 - len(regs))
        for r in regs:
            A("v_xor_b32_dpp %s, %s, %s %s row_mask:0xf bank_mask:0xf" % (v(r), v(r), v(r), ctl))

def gen_kv_issue(A):
    srd(A, 48, PK, S * ROWB)
    srd(A, 52, PV, S * ROWB)
    A("v_and_b32 v1, 63, v0")
    A("v_lshrrev_b32 v4, 3, v1")
    A("v_mul_u32_u24 v4, 1152, v4")
    A("v_and_b32 v5, 7, v1")
    A("v_lshl_add_u32 v4, v5, 4, v4")
    A("s_mul_i32 s62, s61, %d" % (128 * 1152))
    A("s_lshl_b32 s63, s60, 7")
    A("s_add_u32 s62, s62, s63")
    A("s_mul_i32 s63, s42, 9216")
    A("s_add_u32 s62, s62, s63")
    A("s_sub_u32 s63, s62, 9216")
    A("s_lshl_b32 s64, s42, 10")
    srd(A, 16, PQ, S * ROWB)
    for i in range(4):
        A("s_mov_b32 m0, s64")
        A("s_add_u32 s65, s64, %d" % LV)
        A("buffer_load_dwordx4 v4, s[48:51], s63 offen lds" + NTS)
        A("s_mov_b32 m0, s65")
        A("s_add_u32 s65, s64, %d" % LQ)
        A("buffer_load_dwordx4 v4, s[52:55], s62 offen lds" + NTS)
        A("s_mov_b32 m0, s65")
        A("s_add_u32 s64, s64, 4096")
        A("buffer_load_dwordx4 v4, s[16:19], s62 offen lds" + NTS)
        A("s_add_u32 s63, s63, %d" % (32 * 1152))
        A("s_add_u32 s62, s62, %d" % (32 * 1152))
    Ln = A.newlabel("nok17")
    A("s_cmp_lg_u32 s42, 0")
    A("s_cbranch_scc1 %s" % Ln)
    A("s_mov_b32 m0, s64")
    A("s_nop 0")
    A("buffer_load_dwordx4 v4, s[48:51], s63 offen lds" + NTS)
    A.label(Ln)

def gen_kv_addr(A):
    srd(A, 56, PSHK, D * 8)
    A("v_and_b32 v2, 31, v0")
    A("s_lshl_b32 s63, s60, 9")
    A("v_lshl_add_u32 v29, v2, 4, s63")
    A("buffer_load_dwordx4 v[32:35], v29, s[56:59], 0 offen")

def gen_kv_addr2(A):
    A("v_lshrrev_b32 v3, 5, v0")
    A("v_lshlrev_b32 v6, 10, v3")
    A("v_lshl_add_u32 v6, v2, 2, v6")
    A("v_mul_u32_u24 v7, %d, v2" % (2 * SGS))
    A("v_sub_u32 v8, 15, v3")
    A("v_lshl_add_u32 v7, v8, 4, v7")
    A("v_add_u32 v7, %d, v7" % SG)
    A("v_bfe_u32 v10, v0, 4, 2")
    A("v_and_b32 v11, 15, v0")
    A("v_mul_u32_u24 v8, %d, v10" % SGS)
    A("v_lshl_add_u32 v8, v11, 4, v8")
    A("s_mul_i32 s63, s42, %d" % (8 * SGS))
    A("s_add_u32 s63, s63, %d" % SG)
    A("v_add_u32 v8, s63, v8")
    A("v_lshlrev_b32 v9, 12, v10")
    A("v_lshl_add_u32 v9, v11, 4, v9")
    A("s_lshl_b32 s63, s60, 6")
    A("s_lshl_b32 s64, s42, 3")
    A("s_add_u32 s63, s63, s64")
    A("s_lshl_b32 s65, s63, 12")
    A("s_lshl_b32 s64, s61, 8")
    A("s_sub_u32 s65, s65, s64")
    A("s_add_u32 s65, s65, %d" % (F_UR + 240 * 16))
    A("v_add_u32 v9, s65, v9")
    A("v_lshlrev_b32 v12, 7, v10")
    A("s_lshl_b32 s65, s63, 7")
    A("s_lshl_b32 s64, s61, 3")
    A("s_sub_u32 s65, s65, s64")
    A("s_add_u32 s65, s65, %d" % (F_URC + 120))
    A("v_add_u32 v12, s65, v12")
    A("v_cmp_eq_u32 s[66:67], 0, v11")
    A("v_mul_u32_u24 v13, %d, v2" % (2 * SGS))
    A("v_lshl_add_u32 v13, v3, 4, v13")
    A("v_add_u32 v13, %d, v13" % SX)
    A("v_lshlrev_b32 v48, 12, v10")
    A("v_lshl_add_u32 v48, v11, 4, v48")
    A("s_lshl_b32 s65, s63, 12")
    A("s_lshl_b32 s64, s61, 8")
    A("s_add_u32 s65, s65, s64")
    A("s_add_u32 s65, s65, %d" % F_XT)
    A("v_add_u32 v48, s65, v48")
    A("v_lshlrev_b32 v49, 7, v10")
    A("s_lshl_b32 s65, s63, 7")
    A("s_lshl_b32 s64, s61, 3")
    A("s_add_u32 s65, s65, s64")
    A("s_add_u32 s65, s65, %d" % F_XC)
    A("v_add_u32 v49, s65, v49")

def gen_kv_compute(A):
    def trans():
        A("s_waitcnt vmcnt(0)")
        A("s_barrier")
        st_(A, 1)
        dbg_time(A, 8)
    tp = TwoPass(A, "kv")
    tp.begin(trans)
    for i in range(11):
        A("ds_read_b32 %s, v6 offset:%d" % (v(14 + i), LK + (5 + i) * 128))
    for i in range(8):
        A("ds_read_b32 %s, v6 offset:%d" % (v(40 + i), LV + i * 128))
    for i in range(8):
        A("ds_read_b32 %s, v6 offset:%d" % (v(144 + i), LQ + i * 128))
    A("v_lshlrev_b32 v54, 16, v32"); A("v_lshlrev_b32 v55, 16, v34")
    A("v_and_b32 v56, s40, v32");    A("v_and_b32 v57, s40, v34")
    A("v_lshlrev_b32 v58, 16, v33"); A("v_lshlrev_b32 v59, 16, v35")
    A("v_and_b32 v60, s40, v33");    A("v_and_b32 v61, s40, v35")
    DOT = bool(os.environ.get("DOT2", "1") != "0")
    W, K, KV = 54, 62, 100
    A("s_mov_b32 s64, 0x05040100"); A("s_mov_b32 s65, 0x07060302")
    if DOT:
        A("v_and_b32 v62, 0xffff, v32"); A("v_lshlrev_b32 v63, 16, v34")
        A("v_lshrrev_b32 v64, 16, v32"); A("v_and_b32 v65, s40, v34")
        A("v_and_b32 v66, 0xffff, v33"); A("v_lshlrev_b32 v67, 16, v35")
        A("v_lshrrev_b32 v68, 16, v33"); A("v_and_b32 v69, s40, v35")
        A("v_mov_b32 v70, 0x3f803f80")
        A("v_mov_b32 v71, 0")
        A("s_waitcnt lgkmcnt(0)")
        for j in range(4):
            A("v_perm_b32 %s, %s, %s, s64" % (v(152 + j), v(144 + 2 * j + 1), v(144 + 2 * j)))
            A("v_perm_b32 %s, %s, %s, s65" % (v(156 + j), v(144 + 2 * j + 1), v(144 + 2 * j)))
        A("ds_write_b128 v13, v[152:155]")
        A("ds_write_b128 v13, v[156:159] offset:%d" % SGS)
        def ch_ops(i, c, t0):
            a_, b_, p_, q_ = t0, t0 + 1, t0 + 2, t0 + 3
            o = []
            d2 = lambda d, x, y, z: "v_dot2_f32_bf16 %s, %s, %s, %s" % (v(d), v(x), v(y), z)
            o.append(d2(a_, 14 + i + 0, 62 + 2 * 3 + c, "0"))
            o.append(d2(b_, 14 + i + 1, 62 + 2 * 2 + c, "0"))
            o.append(d2(q_, 14 + i + 2, 62 + 2 * 1 + c, "0"))
            o.append("v_cvt_pk_bf16_f32 %s, %s, %s" % (v(p_), v(a_), v(b_)))
            o.append(d2(b_, 14 + i + 3, 62 + 2 * 0 + c, "0"))
            o.append(d2(a_, p_, 70, "0"))
            o.append("s_nop 0")
            o.append("v_cvt_pk_bf16_f32 %s, %s, %s" % (v(p_), v(a_), v(q_)))
            o.append("s_nop 0")
            o.append(d2(a_, p_, 70, "0"))
            o.append("s_nop 0")
            o.append("v_cvt_pk_bf16_f32 %s, %s, %s" % (v(p_), v(a_), v(b_)))
            o.append("s_nop 0")
            o.append(d2(a_, p_, 70, "0"))
            o.append("s_nop 0")
            if c == 0:
                o.append("v_cvt_pk_bf16_f32 %s, %s, %s" % (v(p_), v(a_), v(71)))
            else:
                o.append("v_cvt_pk_bf16_f32 %s, %s, %s" % (v(p_), v(71), v(a_)))
            o.append("s_nop 0")
            o.append(d2(KV + 2 * i + c, p_, 40 + i, "0"))
            if FAST and os.environ.get('KVEXACT', '1') == '0':
                o = []
                o.append(d2(a_, 14 + i + 0, 62 + 2 * 3 + c, "0"))
                if c == 0:
                    o.append("v_lshlrev_b32 %s, 16, %s" % (v(b_), v(40 + i)))
                else:
                    o.append("v_and_b32 %s, s40, %s" % (v(b_), v(40 + i)))
                o.append(d2(a_, 14 + i + 1, 62 + 2 * 2 + c, v(a_)))
                o.append(d2(a_, 14 + i + 2, 62 + 2 * 1 + c, v(a_)))
                o.append(d2(a_, 14 + i + 3, 62 + 2 * 0 + c, v(a_)))
                o.append("v_mul_f32 %s, %s, %s" % (v(KV + 2 * i + c), v(a_), v(b_)))
            return [x for x in o if x != "s_nop 0"]
        for i in range(0, 8, 4):
            streams = []
            for ii in range(4):
                for c in range(2):
                    streams.append(ch_ops(i + ii, c, 72 + 4 * (2 * ii + c) if (2 * ii + c) < 7 else 132))
            interleave(A, streams)
        A.nop(3)
        for c in range(2):
            for j in range(4):
                A("v_cvt_pk_bf16_f32 %s, %s, %s" % (v(116 + 4 * c + j), v(KV + 2 * (7 - 2 * j) + c), v(KV + 2 * (6 - 2 * j) + c)))
    else:
        A("s_waitcnt lgkmcnt(15)")
        for i in range(11):
            unpack_pair(A, K + 2 * i, K + 2 * i + 1, 14 + i, 40)
        A("s_waitcnt lgkmcnt(0)")
        for j in range(4):
            A("v_perm_b32 %s, %s, %s, s64" % (v(152 + j), v(144 + 2 * j + 1), v(144 + 2 * j)))
            A("v_perm_b32 %s, %s, %s, s65" % (v(156 + j), v(144 + 2 * j + 1), v(144 + 2 * j)))
        A("ds_write_b128 v13, v[152:155]")
        A("ds_write_b128 v13, v[156:159] offset:%d" % SGS)
        def pr_(r):
            return "v[%d:%d]" % (r, r + 1)
        def row_ops(i, acc, tmp, t3):
            P = Asm()
            P("v_pk_mul_f32 %s, %s, %s" % (pr_(acc), pr_(K + 2 * (i + 0)), pr_(W + 6)))
            round_pair(P, acc, acc + 1, t3, 40)
            for t in range(1, 4):
                P("v_pk_mul_f32 %s, %s, %s" % (pr_(tmp), pr_(K + 2 * (i + t)), pr_(W + 2 * (3 - t))))
                round_pair(P, tmp, tmp + 1, t3, 40)
                P("v_pk_add_f32 %s, %s, %s" % (pr_(acc), pr_(acc), pr_(tmp)))
                round_pair(P, acc, acc + 1, t3, 40)
            unpack_pair(P, tmp, tmp + 1, 40 + i, 40)
            P("v_pk_mul_f32 %s, %s, %s" % (pr_(KV + 2 * i), pr_(acc), pr_(tmp)))
            return [l.strip() for l in P.lines]
        for i in range(0, 8, 4):
            interleave(A, [row_ops(i, 84, 86, 88), row_ops(i + 1, 90, 92, 94), row_ops(i + 2, 132, 134, 136), row_ops(i + 3, 138, 140, 142)])
        for c in range(2):
            for j in range(4):
                A("v_cvt_pk_bf16_f32 %s, %s, %s" % (v(116 + 4 * c + j), v(KV + 2 * (7 - 2 * j) + c), v(KV + 2 * (6 - 2 * j) + c)))
    A("ds_write_b128 v7, v[116:119]")
    A("ds_write_b128 v7, v[120:123] offset:%d" % SGS)
    A("s_waitcnt lgkmcnt(0)")
    tp.end()
    A("s_barrier")
    A("ds_read_b128 v[116:119], v8")
    A("ds_read_b128 v[120:123], v8 offset:%d" % (4 * SGS))
    A("s_movk_i32 s63, 16384")
    A("s_waitcnt lgkmcnt(1)")
    A("buffer_store_dwordx4 v[116:119], v9, s[36:39], 0 offen sc1")
    A("v_xor_b32 v124, v116, v117"); A("v_xor_b32 v126, v118, v119")
    A("s_waitcnt lgkmcnt(0)")
    A("buffer_store_dwordx4 v[120:123], v9, s[36:39], s63 offen sc1")
    A("v_xor_b32 v125, v120, v121"); A("v_xor_b32 v127, v122, v123")
    A("v_xor_b32 v124, v124, v126"); A("v_xor_b32 v125, v125, v127")
    row_xor_reduce(A, [124, 125])
    A("v_xor_b32 v128, s%d, v124" % TAG); A("v_xor_b32 v130, s%d, v125" % TAG)
    A("v_mov_b32 v129, s%d" % TAG); A("v_mov_b32 v131, s%d" % TAG)
    A("s_mov_b64 exec, s[66:67]")
    A("buffer_store_dwordx2 v[128:129], v12, s[36:39], 0 offen sc1")
    A("buffer_store_dwordx2 v[130:131], v12, s[36:39], 0 offen offset:512 sc1")
    A("s_mov_b64 exec, -1")
    A("ds_read_b128 v[116:119], v8 offset:%d" % (SX - SG))
    A("ds_read_b128 v[120:123], v8 offset:%d" % (SX - SG + 4 * SGS))
    A("s_waitcnt lgkmcnt(1)")
    A("buffer_store_dwordx4 v[116:119], v48, s[36:39], 0 offen sc1")
    A("v_xor_b32 v124, v116, v117"); A("v_xor_b32 v126, v118, v119")
    A("s_waitcnt lgkmcnt(0)")
    A("buffer_store_dwordx4 v[120:123], v48, s[36:39], s63 offen sc1")
    A("v_xor_b32 v125, v120, v121"); A("v_xor_b32 v127, v122, v123")
    A("v_xor_b32 v124, v124, v126"); A("v_xor_b32 v125, v125, v127")
    row_xor_reduce(A, [124, 125])
    A("v_xor_b32 v128, s%d, v124" % TAG); A("v_xor_b32 v130, s%d, v125" % TAG)
    A("s_mov_b64 exec, s[66:67]")
    A("buffer_store_dwordx2 v[128:129], v49, s[36:39], 0 offen sc1")
    A("buffer_store_dwordx2 v[130:131], v49, s[36:39], 0 offen offset:512 sc1")
    A("s_mov_b64 exec, -1")
    st_(A, 2)

def gen_ln(A, two=False):
    srd(A, 48, PQ, S * ROWB)
    srd(A, 56, PWR, D * 2)
    A("v_and_b32 v1, 63, v0")
    A("v_and_b32 v2, 15, v0")
    A("v_lshrrev_b32 v3, 4, v1")
    A("s_lshl_b32 s61, s60, 2")
    A("v_add_u32 v30, s61, v3")
    A("s_movk_i32 s62, 1152")
    A("v_mul_lo_u32 v6, v30, s62")
    A("v_lshl_add_u32 v6, v2, 3, v6")
    A("v_lshlrev_b32 v7, 3, v2")
    Q, WR, X = 64, 84, 104
    for i in range(9):
        A("buffer_load_dwordx2 %s, v6, s[48:51], 0 offen offset:%d" % (v(Q + 2 * i, 2), 128 * i) + QNT)
    for i in range(9):
        A("buffer_load_dwordx2 %s, v7, s[56:59], 0 offen offset:%d" % (v(WR + 2 * i, 2), 128 * i))
    if two:
        A("s_mov_b32 s62, %d" % (1024 * 1152))
        for i in range(9):
            A("buffer_load_dwordx2 %s, v6, s[48:51], s62 offen offset:%d" % (v(144 + 2 * i, 2), 128 * i))
    return Q, WR, X

def gen_ln_compute(A, Q, WR, X, extra=0, first_wait=None):
    def trans():
        A("s_waitcnt vmcnt(%d)" % extra)
        st_(A, 1)
    tp = TwoPass(A, "ln")
    tp.begin(trans)
    for i in range(18):
        unpack_pair(A, X + 2 * i, X + 2 * i + 1, Q + i, 40)
    A("v_pk_add_f32 v[8:9], %s, %s" % (v(X, 2), v(X + 2, 2)))
    A("v_pk_add_f32 v[10:11], %s, %s" % (v(X + 4, 2), v(X + 6, 2)))
    for i in range(4, 18, 2):
        A("v_pk_add_f32 v[8:9], v[8:9], %s" % v(X + 2 * i, 2))
        A("v_pk_add_f32 v[10:11], v[10:11], %s" % v(X + 2 * i + 2, 2))
    A("v_pk_add_f32 v[8:9], v[8:9], v[10:11]")
    A.nop(1)
    A("v_add_f32 v8, v8, v9")
    allreduce16_add(A, 8)
    A("v_mul_f32 v8, 0x3ae38e39, v8")
    A("v_sub_f32 v12, 0, v8")
    A("v_sub_f32 v13, 0, v8")
    for r in (14, 15, 16, 17):
        A("v_mov_b32 %s, 0" % v(r))
    for i in range(0, 18, 2):
        A("v_pk_add_f32 v[18:19], %s, v[12:13]" % v(X + 2 * i, 2))
        A("v_pk_add_f32 v[20:21], %s, v[12:13]" % v(X + 2 * i + 2, 2))
        A("v_pk_fma_f32 v[14:15], v[18:19], v[18:19], v[14:15]")
        A("v_pk_fma_f32 v[16:17], v[20:21], v[20:21], v[16:17]")
    A("v_pk_add_f32 v[14:15], v[14:15], v[16:17]")
    A.nop(1)
    A("v_add_f32 v14, v14, v15")
    allreduce16_add(A, 14)
    A("v_mul_f32 v14, 0x3ae38e39, v14")
    A.nop(1)
    round_pair(A, 8, 14, 9, 40)
    A("v_add_f32 v14, 0x3727c5ac, v14")
    A.nop(1)
    A("v_cvt_pk_bf16_f32 v9, v14, v14")
    A("v_lshlrev_b32 v14, 16, v9")
    A("v_sqrt_f32 v14, v14")
    A.nop(1)
    A("v_cvt_pk_bf16_f32 v9, v14, v14")
    A("v_lshlrev_b32 v14, 16, v9")
    A("v_rcp_f32 v15, v14")
    A.nop(1)
    A("v_fma_f32 v16, -v14, v15, 1.0")
    A("v_fma_f32 v15, v16, v15, v15")
    A("v_sub_f32 v12, 0, v8"); A("v_sub_f32 v13, 0, v8")
    A("v_mov_b32 v16, v15"); A("v_mov_b32 v17, v15")
    for r in (22, 23, 24, 25):
        A("v_mov_b32 %s, 0" % v(r))
    def ops(i, tm, acc):
        x0 = X + 2 * i
        P = Asm()
        P("v_pk_add_f32 %s, %s, v[12:13]" % (v(x0, 2), v(x0, 2)))
        round_pair(P, x0, x0 + 1, tm, 40)
        P("v_pk_mul_f32 %s, %s, v[16:17]" % (v(x0, 2), v(x0, 2)))
        round_pair(P, x0, x0 + 1, tm, 40)
        unpack_pair(P, tm + 2, tm + 3, WR + i, 40)
        P("v_pk_fma_f32 %s, %s, %s, %s" % (v(acc, 2), v(x0, 2), v(tm + 2, 2), v(acc, 2)))
        return [l.strip() for l in P.lines]
    for i in range(0, 18, 2):
        interleave(A, [ops(i, 26, 22), ops(i + 1, 32, 24)])
    A("v_pk_add_f32 v[22:23], v[22:23], v[24:25]")
    A.nop(1)
    A("v_add_f32 v22, v22, v23")
    allreduce16_add(A, 22)
    A.nop(1)
    A("v_cvt_pk_bf16_f32 v23, v22, v22")
    A("v_lshlrev_b32 v23, 16, v23")
    A("v_ashrrev_i32 v24, 31, v23")
    A("v_or_b32 v24, 0x80000000, v24")
    A("v_xor_b32 v23, v23, v24")
    A("v_and_b32 v23, s40, v23")
    A("v_sub_u32 v24, 2047, v30")
    A("v_or_b32 v26, v23, v24")
    A("v_mov_b32 v27, s%d" % TAG)
    A("v_cvt_pk_bf16_f32 v32, v8, v14")
    A("v_mov_b32 v33, s%d" % TAG)
    A("v_lshlrev_b32 v28, 3, v30")
    A("s_movk_i32 s61, %d" % F_KEYG)
    A("s_mov_b32 s62, %d" % F_ROWG)
    tp.end()
    A("v_cmp_eq_u32 vcc, 0, v2")
    A("s_and_saveexec_b64 s[64:65], vcc")
    A("buffer_store_dwordx2 v[26:27], v28, s[36:39], s61 offen sc1")
    A("buffer_store_dwordx2 v[32:33], v28, s[36:39], s62 offen sc1")
    A("s_mov_b64 exec, s[64:65]")
    st_(A, 2)

def load_verified_runs(A, pay_soff, chk_soff, vlane16, vchk8, vhint8, P, pre, sleep):
    C, Tm = P + 16, P + 20
    def hint_loads():
        A("buffer_load_dwordx2 %s, %s, s[36:39], %s offen sc1" % (v(C, 2), vhint8, chk_soff))
    masked_poll(A, "vh", hint_loads, [C + 1], sleep, pre)
    Lp = A.newlabel("vp"); Ld = A.newlabel("vok")
    A("s_mov_b32 s52, 0")
    A.label(Lp)
    for i in range(4):
        A("buffer_load_dwordx4 %s, %s, s[36:39], %s offen offset:%d sc1" % (v(P + 4 * i, 4), vlane16, pay_soff, 1024 * i))
    for i in range(4):
        A("buffer_load_dword %s, %s, s[36:39], %s offen offset:%d sc1" % (v(C + i), vchk8, chk_soff, 32 * i))
    A("s_waitcnt vmcnt(0)")
    for i in range(4):
        A("v_xor_b32 %s, %s, %s" % (v(Tm + i), v(P + 4 * i), v(P + 1 + 4 * i)))
    for i in range(4):
        A("v_xor_b32 %s, %s, %s" % (v(Tm + 4 + i), v(P + 2 + 4 * i), v(P + 3 + 4 * i)))
    for i in range(4):
        A("v_xor_b32 %s, %s, %s" % (v(Tm + i), v(Tm + i), v(Tm + 4 + i)))
    row_xor_reduce(A, [Tm, Tm + 1, Tm + 2, Tm + 3])
    for i in range(4):
        A("v_xor_b32 %s, %s, %s" % (v(Tm + i), v(Tm + i), v(C + i)))
    A("v_cmp_eq_u32 vcc, s%d, %s" % (TAG, v(Tm)))
    for i in range(1, 4):
        A("v_cmp_eq_u32 s[54:55], s%d, %s" % (TAG, v(Tm + i)))
        A("s_and_b64 vcc, vcc, s[54:55]")
    A("s_cmp_eq_u64 vcc, -1")
    A("s_cbranch_scc1 %s" % Ld)
    A("s_add_u32 s52, s52, 1")
    A("s_cmp_gt_u32 s52, %d" % POLL_MAX)
    A("s_cbranch_scc1 %s" % Ld)
    A("s_sleep 2")
    A("s_branch %s" % Lp)
    A.label(Ld)

def build_ops(W, N, off):
    ops = []
    for k in range(7):
        ops.append("v_alignbit_b32 %s, %s, %s, 16" % (v(E_ + k), v(W + k + 1), v(W + k)))
    ops.append("ds_write_b128 v11, %s offset:%d" % (v(W + 2, 4), 4 * CS + off))
    for k in range(3):
        ops.append("v_pk_mov_b32 %s, %s, %s op_sel:[1,0]" % (v(G_ + 2 * k, 2), v(W + 2 * k, 2), v(W + 2 * k + 2, 2)))
    ops.append("ds_write_b128 v11, %s offset:%d" % (v(E_, 4), 1 * CS + off))
    ops.append("ds_write_b128 v11, %s offset:%d" % (v(E_ + 2, 4), 5 * CS + off))
    for k in range(3):
        ops.append("v_pk_mov_b32 %s, %s, %s op_sel:[1,0]" % (v(F_ + 2 * k, 2), v(E_ + 2 * k, 2), v(E_ + 2 * k + 2, 2)))
    ops.append("ds_write_b128 v11, %s offset:%d" % (v(G_, 4), 2 * CS + off))
    ops.append("ds_write_b128 v11, %s offset:%d" % (v(G_ + 2, 4), 6 * CS + off))
    ops.append("s_nop 0")
    ops.append("ds_write_b128 v11, %s offset:%d" % (v(F_, 4), 3 * CS + off))
    ops.append("ds_write_b128 v11, %s offset:%d" % (v(F_ + 2, 4), 7 * CS + off))
    return ops

def gen_partial_gather(A):
    T = "s%d" % TAG
    A("v_and_b32 v5, 255, v0")
    A("v_and_b32 v1, 63, v0")
    A("v_and_b32 v12, 7, v5")
    A("v_mul_u32_u24 v12, 2304, v12")
    A("v_lshrrev_b32 v13, 3, v5")
    A("v_mul_u32_u24 v14, 18432, v13")
    A("v_add_u32 v12, v12, v14")
    A("s_lshl_b32 s51, s41, 4")
    A("s_add_u32 s51, s51, %d" % F_PARTG)
    A("v_add_u32 v12, s51, v12")
    A("v_add_u32 v14, %d, v12" % (64 * 18432))
    A("v_cmp_gt_u32 vcc, 8, v13")
    A.nop(2)
    A("v_cndmask_b32 v14, v12, v14, vcc")
    A("s_mov_b64 s[56:57], vcc")
    def part_loads():
        A("s_mov_b32 s51, %d" % (32 * 18432))
        A("buffer_load_dwordx4 v[160:163], v12, s[36:39], 0 offen sc1")
        A("buffer_load_dwordx4 v[164:167], v12, s[36:39], s51 offen sc1")
        A("buffer_load_dwordx4 v[168:171], v14, s[36:39], 0 offen sc1")
    Lp = A.newlabel("ppp"); Ld = A.newlabel("ppok")
    if int(os.environ.get("PPPRE", 0)):
        A("s_sleep %d" % int(os.environ.get("PPPRE", 0)))
    A("s_mov_b32 s52, 0")
    A.label(Lp)
    part_loads()
    A("s_waitcnt vmcnt(0)")
    for i in range(3):
        b = 160 + 4 * i
        A("v_xor_b32 %s, %s, %s" % (v(172 + i), v(b), v(b + 1)))
        A("v_xor_b32 %s, %s, %s" % (v(176 + i), v(b + 2), v(b + 3)))
    for i in range(3):
        A("v_xor_b32 %s, %s, %s" % (v(172 + i), v(172 + i), v(176 + i)))
    A("v_cmp_eq_u32 vcc, %s, v172" % T)
    for r in (173, 174):
        A("v_cmp_eq_u32 s[54:55], %s, %s" % (T, v(r)))
        A("s_and_b64 vcc, vcc, s[54:55]")
    A("s_andn2_b64 exec, exec, vcc")
    A("s_cbranch_scc0 %s" % Ld)
    A("s_add_u32 s52, s52, 1")
    A("s_cmp_gt_u32 s52, %d" % POLL_MAX)
    A("s_cbranch_scc1 %s" % Ld)
    A("s_sleep %d" % int(os.environ.get("PPSLEEP", 6)))
    A("s_branch %s" % Lp)
    A.label(Ld)
    A("s_mov_b64 exec, -1")
    st_(A, 8)
    dbg_time(A, 10)
    A("s_mov_b32 s58, 0xffffff00")
    A("s_mov_b32 s59, 0x0c0c0004")
    for i in range(3):
        b = 160 + 4 * i
        o = 20 + 4 * i
        A("v_lshlrev_b32 %s, 24, %s" % (v(o + 3), v(b)))
        A("v_and_b32 %s, 0xff, %s" % (v(176), v(b + 1)))
        A("v_and_b32 %s, 0xff, %s" % (v(177), v(b + 2)))
        A("v_lshl_or_b32 %s, %s, 16, %s" % (v(o + 3), v(176), v(o + 3)))
        A("v_lshl_or_b32 %s, %s, 8, %s" % (v(o + 3), v(177), v(o + 3)))
        for k in range(3):
            A("v_and_b32 %s, s58, %s" % (v(o + k), v(b + k)))
    for k in range(4):
        A("v_cndmask_b32 %s, 0, %s, s[56:57]" % (v(28 + k), v(28 + k)))
    for k in range(4):
        A("v_add_f32 %s, %s, %s" % (v(20 + k), v(20 + k), v(24 + k)))
    for k in range(4):
        A("v_add_f32 %s, %s, %s" % (v(20 + k), v(20 + k), v(28 + k)))
    A.nop(1)
    for k in range(4):
        A("v_add_f32_dpp %s, %s, %s row_ror:8 row_mask:0xf bank_mask:0xf" % (v(24 + k), v(20 + k), v(20 + k)))
    for k in range(4):
        A("v_mov_b32 %s, %s" % (v(28 + k), v(24 + k)))
    A.nop(1)
    for k in range(4):
        A("v_permlane16_swap_b32 %s, %s" % (v(24 + k), v(28 + k)))
    A.nop(1)
    for k in range(4):
        A("v_add_f32 %s, %s, %s" % (v(24 + k), v(24 + k), v(28 + k)))
    for k in range(4):
        A("v_mov_b32 %s, %s" % (v(28 + k), v(24 + k)))
    A.nop(1)
    for k in range(4):
        A("v_permlane32_swap_b32 %s, %s" % (v(24 + k), v(28 + k)))
    A.nop(1)
    for k in range(4):
        A("v_add_f32 %s, %s, %s" % (v(24 + k), v(24 + k), v(28 + k)))
    A("v_lshlrev_b32 v18, 4, v1")
    A("s_lshl_b32 s51, s43, 7")
    A("s_add_u32 s51, s51, %d" % RED)
    A("v_add_u32 v18, s51, v18")
    A("s_mov_b64 exec, 0xff")
    A("ds_write_b128 v18, v[24:27]")
    A("s_mov_b64 exec, -1")
    A("s_waitcnt lgkmcnt(0)")
    A("v_mov_b32 v11, %d" % FLAGS)
    A("v_mov_b32 v12, 1")
    lds_signal(A, 5, "v11", "v12")

def gen_M(A):
    A("s_setprio %d" % int(os.environ.get("MPRIO", 2)))
    srd(A, 32, PSSMK, D * S * 2)
    A("v_and_b32 v1, 63, v0")
    A("v_lshlrev_b32 v4, 4, v1")
    A("s_add_u32 s56, s45, %d" % (H_OFF + 512))
    A("s_lshl_b32 s57, s44, 12")
    A("s_mov_b32 m0, s56")
    A("s_lshl_b32 s51, s44, 1")
    for i in range(4):
        A("buffer_load_dwordx4 v4, s[32:35], s57 offen offset:%d lds" % (1024 * i) + NTS)
    A("s_add_u32 s56, s56, 4096")
    A("s_add_u32 s57, s57, 4096")
    A("s_mov_b32 m0, s56")
    A("s_mov_b64 exec, 0x3")
    A("buffer_load_dwordx4 v4, s[32:35], s57 offen lds" + NTS)
    A("s_mov_b64 exec, -1")
    A("s_and_b32 s52, s51, 0xfffffffc")
    A("s_add_u32 s54, s%d, s52" % PSSMD)
    A("s_addc_u32 s55, s%d, 0" % (PSSMD + 1))
    A("s_load_dword s53, s[54:55], 0")
    A("v_and_b32 v2, 15, v0")
    A("v_bfe_u32 v3, v0, 4, 2")
    A("v_mov_b32 v12, 0"); A("v_mov_b32 v13, 0"); A("v_mov_b32 v14, 0"); A("v_mov_b32 v15, 0")
    A("v_add_u32 v11, s45, v4")
    A("s_mov_b32 exec_hi, 0")
    A("ds_write_b128 v11, v[12:15] offset:%d" % H_OFF)
    A("s_mov_b64 exec, 0x3")
    for c in range(8):
        pass
    A("ds_write_b128 v11, v[12:15]")
    A("s_mov_b64 exec, 0xf")
    A("ds_write_b128 v11, v[12:15] offset:%d" % (258 * 16))
    A("s_mov_b64 exec, -1")
    A("v_lshlrev_b32 v5, 5, v2")
    A("v_lshl_add_u32 v5, v3, 4, v5")
    A("v_add_u32 v5, s45, v5")
    A("v_add_u32 v5, %d, v5" % H_OFF)
    A("v_and_b32 v8, 7, v2")
    A("v_sub_u32 v8, 7, v8")
    A("v_mul_u32_u24 v8, %d, v8" % CS)
    A("v_lshrrev_b32 v6, 3, v2")
    A("v_sub_u32 v6, v3, v6")
    A("v_lshlrev_b32 v6, 4, v6")
    A("v_add_u32 v8, v8, v6")
    A("v_add_u32 v8, 16, v8")
    A("v_add_u32 v9, s45, v8")
    A("v_lshlrev_b32 v6, 5, v2")
    A("v_lshl_add_u32 v6, v3, 3, v6")
    A("v_sub_u32 v7, %d, v6" % (4120 - 3584))
    A("v_add_u32 v7, s45, v7")
    A("v_add_u32 v6, s45, v6")
    A("v_add_u32 v6, %d, v6" % YOFF)
    A("s_lshl_b32 s49, s43, 2")
    A("s_add_u32 s49, s49, %d" % FLAGS)
    A("v_mov_b32 v10, s49")
    for i in range(32):
        A("v_mov_b32 %s, 0" % v(ACC + i))
    A("s_lshl_b32 s48, s44, 12")
    A("s_add_u32 s48, s48, %d" % F_UR)
    A("v_lshlrev_b32 v16, 3, v3")
    A("s_lshl_b32 s50, s44, 7")
    A("s_add_u32 s50, s50, %d" % F_URC)
    A("v_and_b32 v17, 15, v1")
    A("v_lshlrev_b32 v17, 3, v17")
    def hint_loads():
        A("buffer_load_dwordx2 v[136:137], v17, s[36:39], s50 offen sc1")
    if os.environ.get("URHINT"):
        masked_poll(A, "urh", hint_loads, [137], int(os.environ.get("URSLEEP", 4)), int(os.environ.get("URPRE", 8)))
    else:
        A("s_sleep %d" % int(os.environ.get("URPRE", 24)))
    Lp = A.newlabel("urp"); Ld = A.newlabel("urok")
    A("s_mov_b32 s52, 0")
    A.label(Lp)
    for i in range(4):
        A("buffer_load_dwordx4 %s, v4, s[36:39], s48 offen offset:%d sc1" % (v(120 + 4 * i, 4), 1024 * i))
    for i in range(4):
        A("buffer_load_dword %s, v16, s[36:39], s50 offen offset:%d sc1" % (v(136 + i), 32 * i))
    A("s_waitcnt vmcnt(0)")
    for i in range(4):
        A("v_xor_b32 %s, %s, %s" % (v(140 + i), v(120 + 4 * i), v(121 + 4 * i)))
    for i in range(4):
        A("v_xor_b32 %s, %s, %s" % (v(144 + i), v(122 + 4 * i), v(123 + 4 * i)))
    for i in range(4):
        A("v_xor_b32 %s, %s, %s" % (v(140 + i), v(140 + i), v(144 + i)))
    row_xor_reduce(A, [140, 141, 142, 143])
    for i in range(4):
        A("v_xor_b32 %s, %s, %s" % (v(140 + i), v(140 + i), v(136 + i)))
    A("v_cmp_eq_u32 vcc, s%d, v140" % TAG)
    for i in range(1, 4):
        A("v_cmp_eq_u32 s[54:55], s%d, %s" % (TAG, v(140 + i)))
        A("s_and_b64 vcc, vcc, s[54:55]")
    A("s_andn2_b64 exec, exec, vcc")
    A("s_cbranch_scc0 %s" % Ld)
    A("s_add_u32 s52, s52, 1")
    A("s_cmp_gt_u32 s52, %d" % POLL_MAX)
    A("s_cbranch_scc1 %s" % Ld)
    A("s_sleep %d" % int(os.environ.get("URSLEEP", 6)))
    A("s_branch %s" % Lp)
    A.label(Ld)
    A("s_mov_b64 exec, -1")
    st_(A, 3)
    dbg_time(A, 5)
    A("s_setprio %d" % int(os.environ.get("MPRIO2", 0)))
    for i in range(4):
        A("ds_write_b128 v11, %s offset:%d" % (v(120 + 4 * i, 4), 32 + 1024 * i))
    A("s_waitcnt lgkmcnt(0)")
    for (W, off) in ((152, 4096), (160, 3072), (168, 2048), (W1, 1024), (W0, 0)):
        A("ds_read_b128 %s, v11 offset:%d" % (v(W, 4), off))
        A("ds_read_b128 %s, v11 offset:%d" % (v(W + 4, 4), off + 16))
    A("s_waitcnt lgkmcnt(8)")
    A("s_mov_b64 exec, 0x1f")
    for o in build_ops(152, 0, 4096): A(o)
    A("s_mov_b64 exec, -1")
    A("s_waitcnt lgkmcnt(11)")
    for o in build_ops(160, 0, 3072): A(o)
    A("s_waitcnt lgkmcnt(14)")
    for o in build_ops(168, 0, 2048): A(o)
    A("s_waitcnt lgkmcnt(0)")
    st_(A, 4)
    hi_steps, lo_frags, lo_slot, lo_steps = conv_schedule()
    def bslot(sl):
        return v(BS + 4 * sl, 4)
    order, seen = [], set()
    for q, lst in hi_steps:
        for t, sl in lst:
            if sl not in seen:
                seen.add(sl); order.append(sl)
    aseq = [q for q in range(33)] + [q for q in range(65)]
    issued = []
    def issue(tag, txt):
        A(txt); issued.append(tag)
    def wait_for(tags):
        idx = max(len(issued) - 1 - issued[::-1].index(t) for t in tags)
        n = len(issued) - 1 - idx
        A("s_waitcnt lgkmcnt(%d)" % min(n, 15))
    def a_issue(k):
        issue(("A", k), "ds_read_b128 %s, v9 offset:%d" % (v(RING + 4 * (k % NR), 4), 64 * (64 - aseq[k])))
    def b_issue(sl):
        issue(("B", sl), "ds_read_b128 %s, v5 offset:%d" % (bslot(sl), 64 * (56 - sl + 8)))
    fill = deque()
    cnt = [0]
    def emit_fill(k):
        while k > 0 and fill:
            f = fill.popleft(); f(); cnt[0] += 1; k -= 1
    def add_plain(txt):
        if txt.startswith("ds_"):
            fill.append(lambda txt=txt: issue(("W",), txt))
        else:
            fill.append(lambda txt=txt: A(txt))
    a_issue(0)
    for sl in order[:5]:
        b_issue(sl)
    nextA = 1
    for k in range(1, NR):
        a_issue(nextA); nextA += 1
        b_issue(order[5 + k - 1])
    nextB = 5 + (NR - 1)
    A("s_and_b32 s52, s51, 2")
    A("s_lshl_b32 s52, s52, 3")
    A("s_lshr_b32 s53, s53, s52")
    A("s_lshl_b32 s53, s53, 16")
    A("v_mov_b32 v18, s53"); A("v_mov_b32 v19, s53")
    n = 0
    fu = {}
    for q, lst in hi_steps:
        for t, sl in lst:
            fu.setdefault(sl, q)
    for q, lst in hi_steps:
        while nextB < len(order) and fu[order[nextB]] <= q + 3:
            b_issue(order[nextB]); nextB += 1
        wait_for([("A", n)] + [("B", sl) for _, sl in lst])
        for t, sl in lst:
            A("v_mfma_f32_16x16x32_bf16 %s, %s, %s, %s" % (v(ACC + 4 * t, 4), v(RING + 4 * (n % NR), 4), bslot(sl), v(ACC + 4 * t, 4)))
        if nextA < len(aseq):
            a_issue(nextA); nextA += 1
        if q < 32:
            issue(("L", q), "ds_read_b128 %s, v5 offset:%d" % (bslot(q), 64 * (lo_frags[q] + 8)))
        n += 1
    st_(A, 5)
    def tile_epilogue(t):
        u0 = UREG + 2 * (t % 2)
        ac = ACC + 4 * t
        fill.append(lambda: wait_for([("U", t)] + ([("L", 31)] if t == 0 else [])))
        P = Asm()
        P("v_and_b32 v12, s40, %s" % v(u0 + 1))
        P("v_lshlrev_b32 v13, 16, %s" % v(u0 + 1))
        P("v_and_b32 v14, s40, %s" % v(u0))
        P("v_lshlrev_b32 v15, 16, %s" % v(u0))
        if FAST:
            P("s_nop 0"); P("s_nop 0")
            P("v_pk_fma_f32 v[12:13], v[12:13], v[18:19], %s" % v(ac, 2))
            P("v_pk_fma_f32 v[14:15], v[14:15], v[18:19], %s" % v(ac + 2, 2))
            P("s_nop 0")
        else:
            P("v_pk_mul_f32 v[12:13], v[12:13], v[18:19]")
            P("v_pk_mul_f32 v[14:15], v[14:15], v[18:19]")
            round_pair(P, 12, 13, 16, 40)
            round_pair(P, 14, 15, 17, 40)
            round_pair(P, ac, ac + 1, 16, 40)
            round_pair(P, ac + 2, ac + 3, 17, 40)
            P("v_pk_add_f32 v[12:13], v[12:13], %s" % v(ac, 2))
            P("v_pk_add_f32 v[14:15], v[14:15], %s" % v(ac + 2, 2))
        P("v_cvt_pk_bf16_f32 v16, v12, v13")
        P("v_cvt_pk_bf16_f32 v17, v14, v15")
        for l in P.lines:
            add_plain(l.strip())
        fill.append(lambda: issue(("Y", t), "ds_write_b64 v6, v[16:17] offset:%d" % (512 * t)))
        fill.append(lambda: A("v_mov_b32 v8, %d" % (t + 1)))
        for _ in range(3):
            fill.append(lambda: None)
        fill.append(lambda: wait_for([("Y", t)]))
        fill.append(lambda: issue(("F", t), "ds_write_b32 v10, v8"))
    for o in build_ops(W1, 0, 1024): add_plain(o)
    n1 = len(fill)
    for o in build_ops(W0, 0, 0): add_plain(o)
    n0 = len(fill)
    for q, lst in lo_steps:
        wait_for([("A", n)] + [("L", sl) for _, sl in lst])
        k = len(lst)
        per = int(os.environ.get('FPER', 2)) if k >= 2 else 1
        for i, (t, sl) in enumerate(lst):
            A("v_mfma_f32_16x16x32_bf16 %s, %s, %s, %s" % (v(ACC + 4 * t, 4), v(RING + 4 * (n % NR), 4), bslot(sl), v(ACC + 4 * t, 4)))
            if i < k - 1 or k == 1:
                emit_fill(per)
        if nextA < len(aseq):
            qq = aseq[nextA]
            if nextA >= 33 and qq >= 33:
                assert cnt[0] >= n1
            if nextA >= 33 and qq >= 49:
                assert cnt[0] >= n0
            a_issue(nextA); nextA += 1
        n += 1
        if q % 8 == 4:
            t = q // 8
            issue(("U", t), "ds_read_b64 %s, v7 offset:%d" % (v(UREG + 2 * (t % 2), 2), 512 * (7 - t)))
        if q >= 9 and (q - 9) % 8 == 0 and (q - 9) // 8 < 7:
            tile_epilogue((q - 9) // 8)
    A.nop(4)
    st_(A, 6)
    tile_epilogue(7)
    emit_fill(1000)
    st_(A, 7)
    dbg_time(A, 1)
    gen_partial_gather(A)
    st_(A, 9, end=True)
    A("s_endpgm")

XQ = 208
def h_early_loads(A):
    srd(A, 16, PQ, S * ROWB)
    A("v_and_b32 v201, 255, v0")
    A("s_movk_i32 s63, 1152")
    A("v_mul_lo_u32 v200, v201, s63")
    A("s_lshl_b32 s63, s41, 3")
    A("v_add_u32 v200, s63, v200")
    return 8

def strip_loads(A):
    h_early_loads(A)
    if os.environ.get("NOSTRIP"):
        for t in range(8):
            A("s_nop 0")
            A("buffer_load_dwordx2 %s, v1, s[16:19], 0 offen" % v(XQ + 2 * t, 2))
        return
    A("s_mov_b32 s63, 0")
    for t in range(8):
        A("buffer_load_dwordx2 %s, v200, s[16:19], s63 offen" % v(XQ + 2 * t, 2))
        A("s_add_u32 s63, s63, %d" % (256 * 1152))

def q_prefetch(A):
    srd(A, 16, PQ, S * ROWB)
    Ln = A.newlabel("noqpf")
    A("v_and_b32 v202, 15, v0")
    A("v_bfe_u32 v203, v0, 4, 2")
    A("v_mul_u32_u24 v203, 1152, v203")
    A("v_lshl_add_u32 v202, v202, 4, v203")
    A("s_mul_i32 s63, s30, 144")
    A("s_and_b32 s63, s63, 0xffffff80")
    A("s_min_u32 s64, s31, 15")
    A("s_lshl_b32 s64, s64, 7")
    A("s_sub_u32 s65, s42, 4")
    A("s_lshl_b32 s65, s65, 5")
    A("s_add_u32 s64, s64, s65")
    A("s_mul_i32 s64, s64, 1152")
    A("s_add_u32 s63, s63, s64")
    for i in range(8):
        A("buffer_load_dwordx4 v[204:207], v202, s[16:19], s63 offen")
        A("s_add_u32 s63, s63, %d" % (4 * 1152))

def gen_H(A):
    srd(A, 20, POUT, S * ROWB)
    T = "s%d" % TAG
    A("v_and_b32 v1, 63, v0")
    A("v_mov_b32 v5, v201")
    A("v_mov_b32 v6, v200")
    A("v_lshlrev_b32 v7, 3, v5")
    RG = 160
    X, XN, T1 = 64, 96, 128
    A("s_setprio %d" % int(os.environ.get("HPRIO", 1)))
    for r in range(32):
        A("v_mov_b32 %s, 0" % v(X + r))
    A("v_lshlrev_b32 v8, 4, v1")
    A("v_lshrrev_b32 v9, 4, v1")
    A("v_lshlrev_b32 v9, 3, v9")
    A("s_lshl_b32 s48, s44, 12")
    A("s_add_u32 s48, s48, %d" % F_XT)
    A("s_lshl_b32 s50, s44, 7")
    A("s_add_u32 s50, s50, %d" % F_XC)
    P, C, Tm = 224, 240, 244
    A("s_sleep %d" % int(os.environ.get("ROWPRE", 32)))
    def row_loads():
        for t in range(8):
            A("s_mov_b32 s51, %d" % (F_ROWG + 2048 * t))
            A("buffer_load_dwordx2 %s, v7, s[36:39], s51 offen sc1" % v(RG + 2 * t, 2))
    row_loads()
    Lp = A.newlabel("hp"); Ld = A.newlabel("hok")
    A("s_mov_b32 s52, 0")
    A.label(Lp)
    for i in range(4):
        A("buffer_load_dwordx4 %s, v8, s[36:39], s48 offen offset:%d sc1" % (v(P + 4 * i, 4), 1024 * i))
    for i in range(4):
        A("buffer_load_dword %s, v9, s[36:39], s50 offen offset:%d sc1" % (v(C + i), 32 * i))
    A("s_waitcnt vmcnt(0)")
    for i in range(4):
        A("v_xor_b32 %s, %s, %s" % (v(Tm + i), v(P + 4 * i), v(P + 1 + 4 * i)))
    for i in range(4):
        A("v_xor_b32 %s, %s, %s" % (v(Tm + 4 + i), v(P + 2 + 4 * i), v(P + 3 + 4 * i)))
    for i in range(4):
        A("v_xor_b32 %s, %s, %s" % (v(Tm + i), v(Tm + i), v(Tm + 4 + i)))
    row_xor_reduce(A, [Tm, Tm + 1, Tm + 2, Tm + 3])
    for i in range(4):
        A("v_xor_b32 %s, %s, %s" % (v(Tm + i), v(Tm + i), v(C + i)))
    A("v_cmp_eq_u32 vcc, s%d, %s" % (TAG, v(Tm)))
    for i in range(1, 4):
        A("v_cmp_eq_u32 s[54:55], s%d, %s" % (TAG, v(Tm + i)))
        A("s_and_b64 vcc, vcc, s[54:55]")
    A("s_andn2_b64 exec, exec, vcc")
    A("s_cbranch_scc0 %s" % Ld)
    A("s_add_u32 s52, s52, 1")
    A("s_cmp_gt_u32 s52, %d" % POLL_MAX)
    A("s_cbranch_scc1 %s" % Ld)
    A("s_sleep %d" % int(os.environ.get("ROWSLEEP", 8)))
    A("s_branch %s" % Lp)
    A.label(Ld)
    A("s_mov_b64 exec, -1")
    ROWPOLL = True
    st_(A, 10)
    A("v_mov_b32 v11, %d" % FLAGS)
    A("v_mov_b32 v12, 1")
    lds_signal(A, 4, "v11", "v12")
    lds_wait(A, 4, 4, "v11", "v13", sleep=1)
    st_(A, 2 + 7)
    A("v_lshlrev_b32 v8, 1, v5")
    A("s_lshl_b32 s48, s41, 14")
    A("s_add_u32 s48, s48, %d" % F_XT)
    for c in range(4):
        for t in range(8):
            A("buffer_load_short_d16_hi %s, v8, s[36:39], s48 offen offset:%d sc1" % (v(X + 4 * t + c), 512 * t))
        A("s_add_u32 s48, s48, 4096")
    first_then_poll(A, "row", row_loads, list(range(RG + 1, RG + 16, 2)), int(os.environ.get("ROWSLEEP", 8)), "-1", first_cnt=32)
    if FAST:
        for t in range(8):
            st = 176 + 4 * t
            A("v_and_b32 %s, s40, %s" % (v(st), v(RG + 2 * t)))
            A("v_lshlrev_b32 %s, 16, %s" % (v(st + 2), v(RG + 2 * t)))
        for t in range(8):
            st = 176 + 4 * t
            A("v_rcp_f32 %s, %s" % (v(st), v(st)))
        for t in range(8):
            st = 176 + 4 * t
            A("v_mul_f32_e64 %s, -%s, %s" % (v(st + 2), v(st + 2), v(st)))
            A("v_mov_b32 %s, %s" % (v(st + 1), v(st)))
        for t in range(8):
            st = 176 + 4 * t
            A("v_mov_b32 %s, %s" % (v(st + 3), v(st + 2)))
        A("s_waitcnt vmcnt(0)")
        st_(A, 3)
        for t in range(8):
            st = 176 + 4 * t
            for p in range(2):
                x, xn = X + 4 * t + 2 * p, XN + 4 * t + 2 * p
                A("v_pk_fma_f32 %s, %s, %s, %s" % (v(xn, 2), v(x, 2), v(st, 2), v(st + 2, 2)))
    else:
        for t in range(8):
            stats_from_msd(A, RG + 2 * t, 176 + 6 * t, 40)
        A("s_waitcnt vmcnt(0)")
        st_(A, 3)
        for t in range(8):
            st = 176 + 6 * t
            streams = []
            for p in range(2):
                x, xn = X + 4 * t + 2 * p, XN + 4 * t + 2 * p
                tm = 56 + 4 * p
                P = Asm()
                P("v_pk_add_f32 %s, %s, %s" % (v(tm, 2), v(x, 2), v(st, 2)))
                round_pair(P, tm, tm + 1, tm + 2, 40)
                P("v_pk_mul_f32 %s, %s, %s" % (v(xn, 2), v(tm, 2), v(st + 2, 2)))
                P("v_pk_fma_f32 %s, %s, %s, %s" % (v(tm, 2), v(xn, 2), v(st + 4, 2), v(tm, 2)))
                P("v_pk_fma_f32 %s, %s, %s, %s" % (v(xn, 2), v(tm, 2), v(st + 2, 2), v(xn, 2)))
                round_pair(P, xn, xn + 1, tm + 2, 40)
                streams.append([l.strip() for l in P.lines])
            interleave(A, streams)
    st_(A, 4)
    dbg_time(A, 11)
    A("v_lshlrev_b32 v9, 1, v5")
    A("v_add_u32 v9, %d, v9" % YOFF)
    A("v_add_u32 v10, %d, v9" % (2 * CH_LDS))
    A("v_mov_b32 v11, %d" % FLAGS)
    for i in range(4):
        A("v_mov_b32 %s, 0" % v(40 + i))
    A("v_and_b32 v8, 7, v1")
    A("v_lshlrev_b32 v8, 3, v8")
    def sel_loads():
        A("s_movk_i32 s51, %d" % F_SELG)
        A("buffer_load_dwordx2 v[180:181], v8, s[36:39], s51 offen sc1")
    sel_loads_m = sel_loads
    A("s_mov_b32 s59, 0")
    A("s_setprio %d" % int(os.environ.get("HPRIO2", 1)))
    for t in range(8):
        Lw = A.newlabel("yw"); Lg = A.newlabel("yg")
        A("s_cmp_gt_u32 s59, %d" % t)
        A("s_cbranch_scc1 %s" % Lg)
        A("s_mov_b32 s52, 0")
        A.label(Lw)
        A("ds_read_b128 v[16:19], v11")
        A("s_add_u32 s52, s52, 1")
        A("s_waitcnt lgkmcnt(0)")
        A("v_min_u32 v16, v16, v17")
        A("v_min3_u32 v16, v16, v18, v19")
        A("s_cmp_gt_u32 s52, %d" % POLL_MAX)
        A("v_readfirstlane_b32 s59, v16")
        A("s_cbranch_scc1 %s" % Lg)
        A("s_nop 1")
        A("s_cmp_gt_u32 s59, %d" % t)
        A("s_cbranch_scc1 %s" % Lg)
        A("s_sleep 1")
        A("s_branch %s" % Lw)
        A.label(Lg)
        if os.environ.get("HST") and t in (0, 2, 4, 7):
            st_(A, {0: 11, 2: 12, 4: 13, 7: 14}[t])
        A("ds_read_u16_d16_hi v40, v9 offset:%d" % (512 * t))
        A("ds_read_u16_d16_hi v41, v9 offset:%d" % (512 * t + CH_LDS))
        A("ds_read_u16_d16_hi v42, v10 offset:%d" % (512 * t))
        A("ds_read_u16_d16_hi v43, v10 offset:%d" % (512 * t + CH_LDS))
        A("s_waitcnt lgkmcnt(0)")
        if FAST:
            for p in range(2):
                x, xn, t1 = X + 4 * t + 2 * p, XN + 4 * t + 2 * p, T1 + 4 * t + 2 * p
                A("v_pk_fma_f32 %s, %s, %s, %s" % (v(t1, 2), v(xn, 2), v(40 + 2 * p, 2), v(xn, 2)))
            for p in range(2):
                x, xn, t1 = X + 4 * t + 2 * p, XN + 4 * t + 2 * p, T1 + 4 * t + 2 * p
                A("v_pk_add_f32 %s, %s, %s" % (v(t1, 2), v(t1, 2), v(x, 2)))
            for p in range(2):
                t1 = T1 + 4 * t + 2 * p
                A("v_cvt_pk_bf16_f32 %s, %s, %s" % (v(44 + 2 * (t % 2) + p), v(t1), v(t1 + 1)))
        else:
            streams = []
            for p in range(2):
                x, xn, t1 = X + 4 * t + 2 * p, XN + 4 * t + 2 * p, T1 + 4 * t + 2 * p
                tm = 56 + 4 * p
                P = Asm()
                P("v_pk_mul_f32 %s, %s, %s" % (v(tm, 2), v(xn, 2), v(40 + 2 * p, 2)))
                round_pair(P, tm, tm + 1, tm + 2, 40)
                P("v_pk_add_f32 %s, %s, %s" % (v(t1, 2), v(x, 2), v(tm, 2)))
                round_pair(P, t1, t1 + 1, tm + 2, 40)
                P("v_pk_add_f32 %s, %s, %s" % (v(tm, 2), v(t1, 2), v(xn, 2)))
                P("v_cvt_pk_bf16_f32 %s, %s, %s" % (v(44 + 2 * (t % 2) + p), v(tm), v(tm + 1)))
                streams.append([l.strip() for l in P.lines])
            interleave(A, streams)
        A("s_mov_b32 s51, %d" % (t * 256 * 1152))
        A("buffer_store_dwordx2 %s, v6, s[20:23], s51 offen" % v(44 + 2 * (t % 2), 2) + os.environ.get("OUTPOL", ""))
        if t == 5:
            sel_loads()
    st_(A, 5)
    dbg_time(A, 9)
    first_then_poll(A, "sel", sel_loads_m, [181], 4, "-1", first_cnt=2)
    A("v_lshrrev_b32 v45, 16, v180")
    A("v_and_b32 v46, 0x8000, v45")
    A("v_mov_b32 v47, 0xffff")
    A("v_mov_b32 v48, 0x8000")
    A("v_cmp_ne_u32 vcc, 0, v46")
    A("v_and_b32 v44, 0xffff, v180")
    A("v_sub_u32 v44, 2047, v44")
    A("v_cndmask_b32 v47, v47, v48, vcc")
    A("v_xor_b32 v45, v45, v47")
    A("v_lshlrev_b32 v45, 16, v45")
    A("v_mul_f32 v45, 0xbfb8aa3b, v45")
    A("v_exp_f32 v45, v45")
    A.nop(1)
    A("v_add_f32 v45, 1.0, v45")
    A("v_rcp_f32 v45, v45")
    A.nop(1)
    A("v_cvt_pk_bf16_f32 v45, v45, v45")
    A("v_lshlrev_b32 v45, 16, v45")
    for i in range(8):
        Ls = A.newlabel("ns")
        A("v_readlane_b32 s51, v44, %d" % i)
        A("v_mov_b32 v52, %d" % (SIDE + 32 * i))
        A("s_nop 2")
        A("s_bfe_u32 s58, s51, 0x20006")
        A("s_cmp_lg_u32 s58, s43")
        A("s_cbranch_scc1 %s" % Ls)
        A("s_lshr_b32 s58, s51, 8")
        A("s_lshl_b32 s58, s58, 2")
        A("s_and_b32 s51, s51, 255")
        A("v_cmp_eq_u32 vcc, s51, v5")
        A("s_set_gpr_idx_on s58, gpr_idx(SRC0)")
        for k in range(4):
            A("v_mov_b32 %s, %s" % (v(36 + k), v(T1 + k)))
        for k in range(4):
            A("v_mov_b32 %s, %s" % (v(40 + k), v(XN + k)))
        A("s_set_gpr_idx_off")
        A("s_mov_b64 exec, vcc")
        A("ds_write_b128 v52, v[36:39]")
        A("ds_write_b128 v52, v[40:43] offset:16")
        A("s_mov_b64 exec, -1")
        A.label(Ls)
    A("s_waitcnt vmcnt(0) lgkmcnt(0)")
    A("v_mov_b32 v11, %d" % FLAGS)
    A("v_mov_b32 v12, 1")
    lds_signal(A, 6, "v11", "v12")
    st_(A, 6)
    Lend = A.newlabel("hend")
    A("s_cmp_lg_u32 s42, 4")
    A("s_cbranch_scc1 %s" % Lend)
    A("v_lshlrev_b32 v18, 4, v1")
    A("v_add_u32 v19, %d, v18" % RED)
    A("v_lshlrev_b32 v20, 5, v1")
    A("v_add_u32 v53, %d, v20" % SIDE)
    A("s_movk_i32 s51, 1152")
    A("v_mul_lo_u32 v44, v44, s51")
    A("s_lshl_b32 s51, s41, 3")
    A("v_add_u32 v44, s51, v44")
    lds_wait(A, 6, 4, "v11", "v12", sleep=0)
    A("s_mov_b64 exec, 0xff")
    A("ds_read_b128 v[36:39], v53")
    A("ds_read_b128 v[40:43], v53 offset:16")
    A("s_mov_b64 exec, -1")
    lds_wait(A, 5, 4, "v11", "v12", sleep=0)
    st_(A, 7)
    A("s_mov_b64 exec, 0xff")
    for w in range(4):
        A("ds_read_b128 %s, v19 offset:%d" % (v(20 + 4 * w, 4), 128 * w))
    A("s_waitcnt lgkmcnt(0)")
    for k in range(4):
        A("v_add_f32 %s, %s, %s" % (v(20 + k), v(20 + k), v(24 + k)))
        A("v_add_f32 %s, %s, %s" % (v(28 + k), v(28 + k), v(32 + k)))
    for k in range(4):
        A("v_add_f32 %s, %s, %s" % (v(20 + k), v(20 + k), v(28 + k)))
    if FAST:
        for k in range(4):
            A("v_fma_f32 %s, %s, v45, %s" % (v(20 + k), v(20 + k), v(36 + k)))
        A.nop(1)
    else:
        A.nop(1)
        round_pair(A, 20, 21, 24, 40); round_pair(A, 22, 23, 25, 40)
        for k in range(4):
            A("v_mul_f32 %s, %s, v45" % (v(20 + k), v(20 + k)))
        A.nop(1)
        round_pair(A, 20, 21, 24, 40); round_pair(A, 22, 23, 25, 40)
        for k in range(4):
            A("v_add_f32 %s, %s, %s" % (v(20 + k), v(20 + k), v(40 + k)))
        A.nop(1)
        round_pair(A, 20, 21, 24, 40); round_pair(A, 22, 23, 25, 40)
        for k in range(4):
            A("v_add_f32 %s, %s, %s" % (v(20 + k), v(20 + k), v(36 + k)))
        A.nop(1)
    A("v_cvt_pk_bf16_f32 v24, v20, v21")
    A("v_cvt_pk_bf16_f32 v25, v22, v23")
    A("buffer_store_dwordx2 v[24:25], v44, s[20:23], 0 offen")
    A("s_mov_b64 exec, -1")
    A.label(Lend)
    st_(A, 8, end=True)
    dbg_time(A, 2)
    if os.environ.get("CALD"):
        L = A.newlabel("cal")
        A.label(L)
        A("s_memrealtime s[96:97]")
        A("s_waitcnt lgkmcnt(0)")
        A("s_sub_u32 s96, s96, s100")
        A("s_cmp_lt_u32 s96, %d" % int(os.environ["CALD"]))
        A("s_cbranch_scc1 %s" % L)
    A("s_endpgm")

def gen_conv_wg(A):
    A("s_and_b32 s43, s42, 3")
    A("s_lshl_b32 s44, s41, 2")
    A("s_add_u32 s44, s44, s43")
    A("s_mul_i32 s45, s43, %d" % CH_LDS)
    Lm = A.newlabel("cm"); Lh = A.newlabel("ch"); Lj = A.newlabel("cj")
    dbg_time(A, 0)
    A("s_lshr_b32 s60, s41, 4")
    A("s_and_b32 s61, s41, 15")
    A("v_mov_b32 v200, 0"); A("v_mov_b32 v201, 0")
    A("s_cmp_ge_u32 s42, 4")
    A("s_cbranch_scc1 %s" % Lh)
    A("s_setprio 2")
    gen_kv_issue(A)
    gen_kv_addr(A)
    gen_kv_addr2(A)
    finish_tag(A)
    flags_barrier(A)
    A("s_branch %s" % Lj)
    A.label(Lh)
    gen_kv_addr(A)
    gen_kv_addr2(A)
    finish_tag(A)
    A.label(Lj)
    gen_kv_compute(A)
    publish_alive(A)
    A("s_barrier")
    A("s_cmp_lt_u32 s42, 4")
    A("s_cbranch_scc1 %s" % Lm)
    h_early_loads(A)
    gen_H(A)
    A.label(Lm)
    gen_M(A)

def finish_tag(A):
    A("s_waitcnt lgkmcnt(0)")
    A("s_mul_i32 s%d, s%d, 0x9E3779B1" % (TAG, TAG))
    A("s_add_u32 s%d, s%d, 0x7F4A7C15" % (TAG, TAG))

def flags_barrier(A, alive=False):
    A("v_mov_b32 v36, 0")
    A("v_mov_b32 v37, %d" % FLAGS)
    A("v_mov_b32 v38, 0"); A("v_mov_b32 v39, 0"); A("v_mov_b32 v40, 0"); A("v_mov_b32 v41, 0")
    A("ds_write_b128 v37, v[38:41]")
    A("ds_write_b128 v37, v[38:41] offset:16")
    A("s_waitcnt lgkmcnt(0)")

def publish_alive(A):
    Ln = A.newlabel("noalive")
    A("s_cmp_lg_u32 s42, 0")
    A("s_cbranch_scc1 %s" % Ln)
    A("s_lshl_b32 s63, s41, 2")
    A("s_add_u32 s63, s63, %d" % F_ALIVE)
    A("v_mov_b32 v37, s%d" % TAG)
    A("v_mov_b32 v36, 0")
    A("s_mov_b64 exec, 1")
    A("buffer_store_dword v37, v36, s[36:39], s63 offen sc1")
    A("s_mov_b64 exec, -1")
    A.label(Ln)


BITONIC8 = [(0,4),(1,5),(2,6),(3,7),(0,2),(1,3),(4,6),(5,7),(0,1),(2,3),(4,5),(6,7)]
def merge8(A, a, b, out, spare, dpp=None):
    for i in range(7, -1, -1):
        if dpp:
            A("v_max_u32_dpp %s, %s, %s %s bank_mask:0xf" % (v(out[i]), v(b[7 - i]), v(a[i]), dpp))
        else:
            A("v_max_u32 %s, %s, %s" % (v(out[i]), v(a[i]), v(b[7 - i])))
    return sort_desc(A, out, spare, BITONIC8)

def top8_wave(A, regs, spare, other):
    cur, oth = list(regs), list(other)
    for ctl in ("quad_perm:[1,0,3,2] row_mask:0xf", "quad_perm:[2,3,0,1] row_mask:0xf", "row_half_mirror row_mask:0xf",
                "row_mirror row_mask:0xf", "row_bcast:15 row_mask:0xa", "row_bcast:31 row_mask:0xc"):
        A.nop(1)
        free = list(cur)
        new, spare2 = merge8(A, cur, cur, oth, spare, dpp=ctl)
        pool = [r for r in (free + oth + [spare]) if r not in new]
        spare = pool[0]
        oth = pool[1:9]
        cur = new
    return cur, spare, oth

L_CNT = 162368

def lds_signal(A, k, vaddr, vone):
    A("s_mov_b64 exec, 1")
    A("ds_add_u32 %s, %s offset:%d" % (vaddr, vone, 4 * k))
    A("s_mov_b64 exec, -1")

def lds_wait(A, k, n, vaddr, vtmp, sleep=0):
    L = A.newlabel("lw"); Ld = A.newlabel("lwd")
    A("s_mov_b32 s52, 0")
    A.label(L)
    A("ds_read_b32 %s, %s offset:%d" % (vtmp, vaddr, 4 * k))
    A("s_add_u32 s52, s52, 1")
    A("s_waitcnt lgkmcnt(0)")
    A("s_cmp_gt_u32 s52, %d" % (POLL_MAX * 8))
    A("v_readfirstlane_b32 s51, %s" % vtmp)
    A("s_cbranch_scc1 %s" % Ld)
    A("s_nop 1")
    A("s_cmp_ge_u32 s51, %d" % n)
    A("s_cbranch_scc1 %s" % Ld)
    if sleep:
        A("s_sleep %d" % sleep)
    A("s_branch %s" % L)
    A.label(Ld)

def gen_moe_wg(A):
    T = "s%d" % TAG
    A("v_and_b32 v1, 63, v0")
    A("v_and_b32 v4, 255, v0")
    A("v_mov_b32 v8, %d" % L_CNT)
    A("v_mov_b32 v9, 1")
    Lt = A.newlabel("twave")
    A("s_cmp_ge_u32 s42, 4")
    A("s_cbranch_scc1 %s" % Lt)
    G, U, WD = 16, 88, 160
    A("v_mov_b32 v232, 0"); A("v_mov_b32 v233, 0"); A("v_mov_b32 v234, 0"); A("v_mov_b32 v235, 0")
    A("ds_write_b128 v8, v[232:235]"); A("ds_write_b128 v8, v[232:235] offset:16")
    srd(A, 48, PWG, D * F * 2)
    srd(A, 52, PWU, D * F * 2)
    srd(A, 56, PWD, D * F * 2)
    A("v_lshrrev_b32 v5, 3, v1")
    A("v_mul_u32_u24 v5, 9216, v5")
    A("v_bfe_u32 v6, v1, 4, 1")
    A("s_and_b32 s43, s42, 1")
    A("s_lshl_b32 s43, s43, 1")
    A("v_or_b32 v6, s43, v6")
    A("v_lshlrev_b32 v6, 1, v6")
    A("v_and_b32 v7, 7, v1")
    A("v_xor_b32 v6, v6, v7")
    A("v_lshl_add_u32 v5, v6, 4, v5")
    A("s_lshl_b32 s43, s41, 7")
    A("s_mul_i32 s44, s42, 73728")
    A("s_add_u32 s43, s43, s44")
    A("s_lshl_b32 s44, s42, 10")
    A("s_waitcnt lgkmcnt(0)")
    B0AT = int(os.environ.get("B0AT", 0))
    for j in range(18):
        if j == B0AT:
            A("s_barrier")
        A("s_mov_b32 m0, s44")
        A("s_add_u32 s45, s44, %d" % L_WU)
        A("buffer_load_dwordx4 v5, s[48:51], s43 offen lds" + NTS)
        A("s_mov_b32 m0, s45")
        A("s_add_u32 s44, s44, 4096")
        A("buffer_load_dwordx4 v5, s[52:55], s43 offen lds" + NTS)
        A("s_add_u32 s43, s43, %d" % (4 * 73728))
    A("v_lshrrev_b32 v6, 3, v4")
    A("v_mul_u32_u24 v7, 1152, v6")
    A("v_and_b32 v12, 7, v4")
    A("v_lshl_add_u32 v236, v12, 4, v7")
    A("v_bfe_u32 v14, v6, 1, 1")
    A("v_bfe_u32 v11, v6, 3, 1")
    A("v_lshl_add_u32 v14, v11, 1, v14")
    A("v_lshlrev_b32 v14, 1, v14")
    A("v_xor_b32 v14, v14, v12")
    A("v_lshl_add_u32 v14, v14, 4, v7")
    A("v_add_u32 v15, 36864, v14")
    A("v_and_b32 v2, 15, v0")
    A("v_bfe_u32 v3, v0, 4, 2")
    A("v_lshrrev_b32 v10, 2, v2")
    A("v_lshl_add_u32 v11, v3, 3, v10")
    A("v_bfe_u32 v12, v2, 3, 1")
    A("v_and_b32 v13, 1, v3")
    A("v_lshl_add_u32 v12, v13, 1, v12")
    A("v_xor_b32 v12, s42, v12")
    A("v_and_b32 v13, 3, v2")
    A("v_lshlrev_b32 v13, 3, v13")
    A("v_lshl_add_u32 v12, v12, 5, v13")
    A("v_lshl_add_u32 v5, v11, 7, v12")
    A("v_add_u32 v6, 36864, v5")
    A("v_mul_u32_u24 v7, 1152, v11")
    A("v_add_u32 v7, v7, v12")
    A("v_add_u32 v10, 36864, v7")
    st_(A, 1)
    A("v_add_u32 v12, %d, v5" % L_WU)
    A("v_add_u32 v13, %d, v6" % L_WU)
    nst = 1 if (common.STAMPS and not LIGHT) else 0
    A("v_lshrrev_b32 v232, 3, v1")
    A("v_mul_u32_u24 v232, 1152, v232")
    A("v_bfe_u32 v233, v1, 4, 1")
    A("s_and_b32 s43, s42, 1")
    A("s_lshl_b32 s43, s43, 1")
    A("v_or_b32 v233, s43, v233")
    A("v_lshlrev_b32 v233, 1, v233")
    A("v_and_b32 v234, 7, v1")
    A("v_xor_b32 v233, v233, v234")
    A("v_lshl_add_u32 v236, v233, 4, v232")
    def rd6(ph):
        for kk in range(6 * ph, 6 * ph + 6):
            bg, bu, ko = ("v5", "v12", kk) if kk < 9 else ("v6", "v13", kk - 9)
            A("ds_read_b64_tr_b16 %s, %s offset:%d" % (v(G + 4 * kk, 2), bg, 4096 * ko))
            A("ds_read_b64_tr_b16 %s, %s offset:%d" % (v(G + 4 * kk + 2, 2), bg, 4096 * ko + 512))
            A("ds_read_b64_tr_b16 %s, %s offset:%d" % (v(U + 4 * kk, 2), bu, 4096 * ko))
            A("ds_read_b64_tr_b16 %s, %s offset:%d" % (v(U + 4 * kk + 2, 2), bu, 4096 * ko + 512))
    A("s_waitcnt vmcnt(%d)" % (24 + nst))
    lds_signal(A, 0, "v8", "v9")
    lds_wait(A, 0, 4, "v8", "v11")
    rd6(0)
    A("s_waitcnt vmcnt(%d)" % (12 + nst))
    lds_signal(A, 7, "v8", "v9")
    lds_wait(A, 7, 4, "v8", "v11")
    rd6(1)
    A("s_waitcnt lgkmcnt(0)")
    lds_signal(A, 1, "v8", "v9")
    lds_wait(A, 1, 4, "v8", "v11")
    for half in range(2):
        A("s_mul_i32 s43, s41, 73728")
        A("s_mul_i32 s44, s42, 9216")
        A("s_add_u32 s43, s43, s44")
        if half:
            A("s_add_u32 s43, s43, 36864")
            A("s_add_u32 s44, s44, %d" % L_WU)
        for sg in range(9):
            A("s_mov_b32 m0, s44")
            A("s_add_u32 s44, s44, 1024")
            A("buffer_load_dwordx4 v236, s[56:59], s43 offen offset:%d lds" % 0 + NTS)
            A("s_add_u32 s43, s43, 128")
    A("s_waitcnt vmcnt(18)")
    lds_signal(A, 6, "v8", "v9")
    lds_wait(A, 6, 4, "v8", "v11")
    st_(A, 2)
    dbg_time(A, 7)
    rd6(2)
    st_(A, 7)
    A("v_lshrrev_b32 v232, 2, v2")
    A("v_mul_u32_u24 v14, 9216, v3")
    A("v_lshl_add_u32 v14, v232, 7, v14")
    A("v_bfe_u32 v233, v2, 3, 1")
    A("v_and_b32 v234, 1, v3")
    A("v_lshl_add_u32 v233, v234, 1, v233")
    A("v_xor_b32 v233, s42, v233")
    A("v_lshl_add_u32 v14, v233, 5, v14")
    A("v_and_b32 v234, 3, v2")
    A("v_lshl_add_u32 v14, v234, 3, v14")
    A("v_add_u32 v15, %d, v14" % L_WU)
    A("v_and_b32 v12, 7, v2")
    A("v_mul_u32_u24 v5, %d, v12" % XSTR)
    A("v_lshl_add_u32 v5, v3, 4, v5")
    A("v_add_u32 v5, %d, v5" % L_X)
    A("v_mul_u32_u24 v6, %d, v2" % HSTR)
    A("v_lshl_add_u32 v6, v3, 3, v6")
    A("s_lshl_b32 s43, s42, 5")
    A("s_add_u32 s43, s43, %d" % L_HS)
    A("v_add_u32 v6, s43, v6")
    A("v_mul_u32_u24 v7, %d, v12" % HSTR)
    A("v_lshl_add_u32 v7, v3, 4, v7")
    A("v_add_u32 v7, %d, v7" % L_HS)
    A("v_mul_u32_u24 v10, 2304, v12")
    A("v_lshl_add_u32 v10, v3, 4, v10")
    A("v_bfe_u32 v13, v2, 3, 1")
    A("v_lshl_add_u32 v10, v13, 8, v10")
    A("v_cmp_eq_u32 s[56:57], 1, v13")
    A("s_mul_i32 s43, s41, 18432")
    A("s_lshl_b32 s44, s42, 6")
    A("s_add_u32 s43, s43, s44")
    A("s_add_u32 s43, s43, %d" % F_PARTG)
    A("v_mov_b32 v13, %d" % L_TAG)
    for i in range(8):
        A("v_mov_b32 %s, 0" % v(232 + i))
    A("s_waitcnt lgkmcnt(0)")
    LW = A.newlabel("Wb"); LG = A.newlabel("Gb"); LD = A.newlabel("Db")
    A("s_mov_b32 s14, 0"); A("s_mov_b32 s15, 0")
    A("ds_read_b32 v11, v8 offset:16")
    A("s_waitcnt lgkmcnt(0)")
    A("v_readfirstlane_b32 s51, v11")
    A("s_nop 3")
    A("s_cmp_ge_u32 s51, 4")
    A("s_cbranch_scc1 %s" % LG)
    A.label(LW)
    A("s_waitcnt vmcnt(0)")
    lds_signal(A, 2, "v8", "v9")
    lds_wait(A, 2, 4, "v8", "v11")
    for k in range(9):
        r = WD + 8 * k
        A("ds_read_b64_tr_b16 %s, v14 offset:%d" % (v(r, 2), 1024 * k))
        A("ds_read_b64_tr_b16 %s, v14 offset:%d" % (v(r + 2, 2), 1024 * k + 512))
        A("ds_read_b64_tr_b16 %s, v15 offset:%d" % (v(r + 4, 2), 1024 * k))
        A("ds_read_b64_tr_b16 %s, v15 offset:%d" % (v(r + 6, 2), 1024 * k + 512))
    A("s_waitcnt lgkmcnt(0)")
    A("s_mov_b32 s14, 1")
    st_(A, 3)
    dbg_time(A, 12)
    A("s_cmp_eq_u32 s15, 1")
    A("s_cbranch_scc1 %s" % LD)
    A.label(LG)
    lds_wait(A, 4, 4, "v8", "v11")
    st_(A, 4)
    A("ds_read_b32 v12, v13")
    XR = 240
    for kk in range(3):
        A("ds_read_b128 %s, v5 offset:%d" % (v(XR + 4 * kk, 4), 64 * kk))
    for kk in range(18):
        if kk + 3 < 18:
            A("ds_read_b128 %s, v5 offset:%d" % (v(XR + 4 * ((kk + 3) % 4), 4), 64 * (kk + 3)))
        A("s_waitcnt lgkmcnt(%d)" % min(3, 17 - kk))
        x = v(XR + 4 * (kk % 4), 4)
        A("v_mfma_f32_16x16x32_bf16 v[232:235], %s, %s, v[232:235]" % (v(G + 4 * kk, 4), x))
        A("v_mfma_f32_16x16x32_bf16 v[236:239], %s, %s, v[236:239]" % (v(U + 4 * kk, 4), x))
    A("v_readfirstlane_b32 %s, v12" % T)
    A.nop(6)
    if FAST:
        for i in range(4):
            A("v_mul_f32 %s, 0xbfb8aa3b, %s" % (v(20 + i), v(232 + i)))
        for i in range(4):
            A("v_exp_f32 %s, %s" % (v(20 + i), v(20 + i)))
        for i in range(4):
            A("v_mul_f32 %s, %s, %s" % (v(232 + i), v(232 + i), v(236 + i)))
        for i in range(4):
            A("v_add_f32 %s, 1.0, %s" % (v(20 + i), v(20 + i)))
        for i in range(4):
            A("v_rcp_f32 %s, %s" % (v(20 + i), v(20 + i)))
        A.nop(1)
        for i in range(4):
            A("v_mul_f32 %s, %s, %s" % (v(232 + i), v(232 + i), v(20 + i)))
        A.nop(1)
    else:
        round_pair(A, 232, 233, 16, 40); round_pair(A, 234, 235, 17, 40)
        for i in range(4):
            A("v_mul_f32 %s, 0xbfb8aa3b, %s" % (v(20 + i), v(232 + i)))
        for i in range(4):
            A("v_exp_f32 %s, %s" % (v(20 + i), v(20 + i)))
        round_pair(A, 236, 237, 16, 40); round_pair(A, 238, 239, 17, 40)
        for i in range(4):
            A("v_add_f32 %s, 1.0, %s" % (v(20 + i), v(20 + i)))
        for i in range(4):
            A("v_rcp_f32 %s, %s" % (v(20 + i), v(20 + i)))
        A.nop(1)
        for i in range(4):
            A("v_mul_f32 %s, %s, %s" % (v(232 + i), v(232 + i), v(20 + i)))
        A.nop(1)
        round_pair(A, 232, 233, 16, 40); round_pair(A, 234, 235, 17, 40)
        for i in range(4):
            A("v_mul_f32 %s, %s, %s" % (v(232 + i), v(232 + i), v(236 + i)))
        A.nop(1)
    A("v_cvt_pk_bf16_f32 v16, v232, v233")
    A("v_cvt_pk_bf16_f32 v17, v234, v235")
    A("v_cmp_gt_u32 vcc, 8, v2")
    A("s_and_saveexec_b64 s[44:45], vcc")
    A("ds_write_b64 v6, v[16:17]")
    A("s_mov_b64 exec, s[44:45]")
    A("s_mov_b32 s58, 0xffffff00")
    A("s_movk_i32 s59, 0x80")
    A("s_waitcnt lgkmcnt(0)")
    lds_signal(A, 5, "v8", "v9")
    A("s_mov_b32 s15, 1")
    A("s_cmp_eq_u32 s14, 0")
    A("s_cbranch_scc1 %s" % LW)
    A.label(LD)
    lds_wait(A, 5, 4, "v8", "v11")
    st_(A, 5)
    A("ds_read_b128 v[16:19], v7")
    A("ds_read_b128 v[20:23], v7 offset:64")
    A("s_waitcnt lgkmcnt(0)")
    AC = 88
    for k in range(9):
        r = WD + 8 * k
        A("v_mfma_f32_16x16x32_bf16 %s, %s, v[16:19], 0" % (v(AC + 4 * k, 4), v(r, 4)))
    for k in range(9):
        r = WD + 8 * k
        A("v_mfma_f32_16x16x32_bf16 %s, %s, v[20:23], %s" % (v(AC + 4 * k, 4), v(r + 4, 4), v(AC + 4 * k, 4)))
    A.nop(4)
    for kp in range(5):
        k = 2 * kp
        ac, ac2 = AC + 4 * k, AC + 4 * min(k + 1, 8)
        o = 24 + 8 * kp
        for i in range(4):
            A("v_cndmask_b32 %s, %s, %s, s[56:57]" % (v(o + i), v(ac + i), v(ac2 + i)))
        for i in range(4):
            A("v_add_u32 %s, s59, %s" % (v(o + i), v(o + i)))
        A("v_lshrrev_b32 %s, 24, %s" % (v(o + 4), v(o + 3)))
        A("v_lshrrev_b32 %s, 16, %s" % (v(o + 5), v(o + 3)))
        A("v_lshrrev_b32 %s, 8, %s" % (v(o + 6), v(o + 3)))
        for i in range(3):
            A("v_bfi_b32 %s, s58, %s, %s" % (v(o + 4 + i), v(o + i), v(o + 4 + i)))
        A("v_xor_b32 %s, %s, %s" % (v(o + 7), v(o + 4), v(o + 5)))
        A("v_xor_b32 %s, %s, %s" % (v(o + 7), v(o + 7), v(o + 6)))
        A("v_xor_b32 %s, %s, %s" % (v(o + 7), T, v(o + 7)))
        if kp == 4:
            A("s_andn2_b64 exec, exec, s[56:57]")
        A("buffer_store_dwordx4 %s, v10, s[36:39], s43 offen offset:%d sc1" % (v(o + 4, 4), 512 * kp))
    A("s_mov_b64 exec, -1")
    st_(A, 6, end=True)
    dbg_time(A, 3)
    A("s_endpgm")
    A.label(Lt)
    A("s_setprio 3")
    A("s_lshl_b32 s60, s41, 2")
    A("s_add_u32 s60, s60, s42")
    A("s_sub_u32 s60, s60, 4")
    Q, WR, X = gen_ln(A)
    A("s_barrier")
    finish_tag(A)
    gen_ln_compute(A, Q, WR, X)
    A("s_setprio %d" % int(os.environ.get("TPRIO", 1)))
    srd(A, 16, PQ, S * ROWB)
    A("v_and_b32 v1, 63, v0")
    A("v_and_b32 v4, 255, v0")
    A("v_mov_b32 v8, %d" % L_CNT)
    A("v_mov_b32 v9, 1")
    A("v_lshlrev_b32 v15, 2, v1")
    A("v_lshlrev_b32 v16, 4, v1")
    A("s_and_b32 s43, s42, 3")
    A("s_lshl_b32 s43, s43, 12")
    A("v_add_u32 v16, s43, v16")
    def key_loads():
        A("s_movk_i32 s43, %d" % F_KEYG)
        for i in range(4):
            A("buffer_load_dwordx4 %s, v16, s[36:39], s43 offen offset:%d sc1" % (v(40 + 4 * i, 4), 1024 * i))
    masked_poll(A, "key", key_loads, list(range(41, 56, 2)), int(os.environ.get("KEYSLEEP", 8)), int(os.environ.get("KEYPRE", 70)))
    A("s_setprio 3")
    st_(A, 3)
    dbg_time(A, 6)
    regs, sp = sort_desc(A, range(40, 56, 2), 41, SORT8)
    SK = 60
    free = [r for r in range(40, 57) if r not in regs and r != sp]
    cur, sp, oth = top8_wave(A, regs, sp, free[:8])
    for i in range(8):
        A("v_mov_b32 %s, %s" % (v(64 + i), v(cur[i])))
    A("s_and_b32 s43, s42, 3")
    A("s_lshl_b32 s43, s43, 5")
    A("s_add_u32 s43, s43, %d" % L_CAND)
    A("v_mov_b32 v16, s43")
    A("v_mov_b32 v31, %s" % T)
    A("v_mov_b32 v17, %d" % L_TAG)
    A("s_mov_b32 exec_lo, 0")
    A("s_mov_b32 exec_hi, 0x80000000")
    A("ds_write_b128 v16, v[64:67]")
    A("ds_write_b128 v16, v[68:71] offset:16")
    A("ds_write_b32 v17, v31")
    A("s_mov_b64 exec, -1")
    A("s_waitcnt lgkmcnt(0)")
    lds_signal(A, 3, "v8", "v9")
    lds_wait(A, 3, 4, "v8", "v11")
    A("v_mov_b32 v16, %d" % L_CAND)
    for i in range(8):
        A("ds_read_b128 %s, v16 offset:%d" % (v(64 + 4 * i, 4), 16 * i))
    A("s_waitcnt lgkmcnt(4)")
    c01, sp1 = merge8(A, list(range(64, 72)), list(range(72, 80)), list(range(40, 48)), 56)
    A("s_waitcnt lgkmcnt(0)")
    c23, sp2 = merge8(A, list(range(80, 88)), list(range(88, 96)), list(range(48, 56)), 57)
    for i in range(8):
        A("v_max_u32 %s, %s, %s" % (v(64 + i), v(c01[i]), v(c23[7 - i])))
    for i in range(8):
        A("v_readfirstlane_b32 %s, %s" % (s(SK + i), v(64 + i)))
    A.nop(3)
    st_(A, 5)
    A("s_and_b32 s45, s42, 3")
    A("s_mov_b32 s43, s60"); A("s_mov_b32 s44, s61")
    for w in range(1, 4):
        A("s_cmp_eq_u32 s45, %d" % w)
        A("s_cselect_b32 s43, %s, s43" % s(SK + 2 * w))
        A("s_cselect_b32 s44, %s, s44" % s(SK + 2 * w + 1))
    A("v_mov_b32 v16, s43"); A("v_mov_b32 v17, s44")
    A("v_cmp_lt_u32 vcc, 31, v1")
    A.nop(2)
    A("v_cndmask_b32 v16, v16, v17, vcc")
    A("v_and_b32 v16, 0xffff, v16")
    A("v_sub_u32 v16, 2047, v16")
    A("v_and_b32 v17, 31, v1")
    A("s_movk_i32 s43, 1152")
    A("v_mul_lo_u32 v18, v16, s43")
    A("v_lshl_add_u32 v18, v17, 2, v18")
    A("v_lshlrev_b32 v19, 3, v16")
    for i in range(9):
        A("buffer_load_dword %s, v18, s[16:19], 0 offen offset:%d" % (v(20 + i), 128 * i))
    def rg_loads():
        A("s_mov_b32 s43, %d" % F_ROWG)
        A("buffer_load_dwordx2 v[32:33], v19, s[36:39], s43 offen sc1")
    Lns = A.newlabel("nosel")
    A("s_cmp_lg_u32 s41, 0")
    A("s_cbranch_scc1 %s" % Lns)
    A("s_cmp_lg_u32 s42, 4")
    A("s_cbranch_scc1 %s" % Lns)
    for i in range(8):
        A("v_writelane_b32 v30, %s, %d" % (s(SK + i), i))
    A("v_lshlrev_b32 v36, 3, v1")
    A("s_movk_i32 s43, %d" % F_SELG)
    A("s_mov_b64 exec, 0xff")
    A("buffer_store_dwordx2 v[30:31], v36, s[36:39], s43 offen sc1")
    A("s_mov_b64 exec, -1")
    A.label(Lns)
    masked_poll(A, "rg", rg_loads, [33], 2, 0)
    if FAST:
        A("v_and_b32 v64, s40, v32"); A("v_lshlrev_b32 v66, 16, v32")
        A("v_rcp_f32 v64, v64")
        A("v_lshrrev_b32 v38, 5, v4")
        A("v_mul_u32_u24 v38, %d, v38" % XSTR)
        A("v_mul_f32_e64 v66, -v66, v64")
        A("v_mov_b32 v65, v64")
        A("v_lshl_add_u32 v38, v17, 2, v38")
        A("v_mov_b32 v67, v66")
        A("v_add_u32 v38, %d, v38" % L_X)
        st_(A, 4)
        for i in range(9):
            unpack_pair(A, 40 + 2 * i, 41 + 2 * i, 20 + i, 40)
        for i in range(9):
            A("v_pk_fma_f32 %s, %s, v[64:65], v[66:67]" % (v(40 + 2 * i, 2), v(40 + 2 * i, 2)))
        for i in range(9):
            A("v_cvt_pk_bf16_f32 %s, %s, %s" % (v(70 + i), v(40 + 2 * i), v(41 + 2 * i)))
        for i in range(9):
            A("ds_write_b32 v38, %s offset:%d" % (v(70 + i), 128 * i))
    else:
        stats_from_msd(A, 32, 64, 70)
        A("v_lshrrev_b32 v38, 5, v4")
        A("v_mul_u32_u24 v38, %d, v38" % XSTR)
        A("v_lshl_add_u32 v38, v17, 2, v38")
        A("v_add_u32 v38, %d, v38" % L_X)
        st_(A, 4)
        for i0 in range(0, 9, 3):
            streams = []
            for i in range(i0, i0 + 3):
                bs = 40 + 8 * (i % 3)
                ops = norm_ops(bs, bs + 2, bs + 4, 20 + i, 64)
                ops.append("v_cvt_pk_bf16_f32 %s, %s, %s" % (v(bs + 6), v(bs + 2), v(bs + 3)))
                ops.append("ds_write_b32 v38, %s offset:%d" % (v(bs + 6), 128 * i))
                streams.append(ops)
            interleave(A, streams)
    A("s_waitcnt lgkmcnt(0)")
    lds_signal(A, 4, "v8", "v9")
    st_(A, 6)
    dbg_time(A, 4)
    Le = A.newlabel("noep")
    A("s_cmp_lg_u32 s41, 0")
    A("s_cbranch_scc1 %s" % Le)
    A("s_cmp_lg_u32 s42, 4")
    A("s_cbranch_scc1 %s" % Le)
    A("s_setprio 0")
    A("v_lshlrev_b32 v16, 2, v1")
    A("v_min_u32 v17, 15, v1")
    A("v_lshlrev_b32 v17, 2, v17")
    def al_loads():
        A("s_movk_i32 s43, %d" % F_ALIVE)
        A("buffer_load_dword v20, v16, s[36:39], s43 offen sc1")
        A("buffer_load_dword v21, v16, s[36:39], s43 offen offset:256 sc1")
        A("buffer_load_dword v22, v17, s[36:39], s43 offen offset:512 sc1")
    masked_poll(A, "al", al_loads, [20, 21, 22], 16, 0)
    A("v_mov_b32 v20, %s" % T)
    A("v_mov_b32 v21, %d" % F_EPOCH)
    A("s_mov_b64 exec, 1")
    A("buffer_store_dword v20, v21, s[36:39], 0 offen sc1")
    A("s_mov_b64 exec, -1")
    A.label(Le)
    A("s_endpgm")

def gen_spare_wg(A):
    A("s_lshl_b32 s60, s41, 3")
    A("s_add_u32 s60, s60, s42")
    A("s_add_u32 s60, s60, 288")
    Lx = A.newlabel("spx")
    A("s_cmp_ge_u32 s60, 512")
    A("s_cbranch_scc1 %s" % Lx)
    Q, WR, X = gen_ln(A)
    finish_tag(A)
    gen_ln_compute(A, Q, WR, X)
    A.label(Lx)
    A("s_endpgm")

def gen_kernel(A, name):
    kernel_header(A, name)
    Ldone = A.newlabel("done"); Lmoe = A.newlabel("moe"); Lsp = A.newlabel("spare")
    A("s_getpc_b64 s[96:97]")
    if os.environ.get("CALD"):
        A("s_memrealtime s[100:101]")
    A("s_cmp_ge_u32 s2, 256")
    A("s_cbranch_scc1 %s" % Ldone)
    A("s_load_dwordx4 s[68:71], s[0:1], %d" % KA_DBG)
    A("s_load_dwordx16 s[72:87], s[0:1], 0")
    A("s_load_dwordx8 s[88:95], s[0:1], %d" % KA_WG)
    A("v_lshrrev_b32 v1, 6, v0")
    A("s_and_b32 s30, s2, 7")
    A("s_lshr_b32 s31, s2, 3")
    A("v_readfirstlane_b32 s42, v1")
    A("s_mov_b32 s40, 0xffff0000")
    if not os.environ.get("NOICPF"):
        Lc = A.newlabel("noic")
        A("s_and_b32 s96, s96, 0xffffff00")
        A("s_and_b32 s97, s97, 0xffff")
        A("s_mov_b32 s98, L_code_end-%s" % name)
        A("s_mov_b32 s99, 0x00020000")
        A("v_and_b32 v243, 63, v0")
        A("v_lshlrev_b32 v243, 4, v243")
        A("s_lshl_b32 s95, s31, 10") if False else None
        A("s_lshl_b32 s3, s31, 10")
        A("v_cmp_lt_u32 vcc, 447, v0")
        A("s_cbranch_vccz %s" % Lc)
        A("buffer_load_dwordx4 v[244:247], v243, s[96:99], s3 offen")
        A.label(Lc)
    A("s_waitcnt lgkmcnt(0)")
    A("s_load_dword s%d, s[%d:%d], %d" % (TAG, PWS, PWS + 1, F_EPOCH))
    srd(A, 36, PWS, WS_SIZE)
    A("s_lshl_b32 s3, s2, 3")
    A("s_add_u32 s3, s3, s42")
    st_(A, 0)
    ORD = os.environ.get("ORD", "B")
    if ORD == "A":
        c0, m0, p0 = 0, 18, 27
    else:
        c0, m0, p0 = 14, 5, 0
    A("s_sub_u32 s41, s31, %d" % m0)
    A("s_cmp_lt_u32 s41, 9")
    A("s_cbranch_scc1 %s" % Lmoe)
    A("s_sub_u32 s41, s31, %d" % p0)
    A("s_cmp_lt_u32 s41, 5")
    A("s_cbranch_scc1 %s" % Lsp)
    A("s_sub_u32 s31, s31, %d" % c0)
    A("s_mul_i32 s41, s30, 18")
    A("s_add_u32 s41, s41, s31")
    gen_conv_wg(A)
    A.label(Lmoe)
    A("s_mul_i32 s31, s30, 9")
    A("s_add_u32 s41, s41, s31")
    gen_moe_wg(A)
    A.label(Lsp)
    A("s_mul_i32 s31, s30, 5")
    A("s_add_u32 s41, s41, s31")
    gen_spare_wg(A)
    A.label(Ldone)
    A("s_endpgm")
    A.label("L_code_end")
    return kernel_desc(name, 256, 102, 256)
```

```python
from common import *
import common, os
from collections import deque
from conv2 import CS, CH_LDS, H_OFF, POLL_MAX, conv_schedule
from moe2 import wave_max_u32, L_WG, L_WU, L_X, L_HS, L_U, L_CAND, XSTR, HSTR
from moe3 import SORT8, sort_desc, rounds

F_EPOCH = 0x0
F_SELG = 0x100
F_ALIVE = 0x1000
F_KEYG = 0x2000
F_ROWG = 0x8000
F_LNF = 0x6000
F_URC = 0x100000 + 0x300000
F_UR = 0x20000
F_PARTG = 0x500000
F_XT = 0x800000
F_XC = 0x480000
L_TAG = 162304

PQ, PK, PV, PSHK, PSSMK, PSSMD, PWR, PWG, PWU, PWD, POUT, PWS = 72, 74, 76, 78, 80, 82, 86, 88, 90, 92, 94, 70
TAG = 46
FAST = os.environ.get('FAST', '1') != '0'
QNT = '' if os.environ.get('QDEF') else ' nt'
NTS = '' if os.environ.get('NONT') else ' nt'
LIGHT = os.environ.get("STAMPS") == "2"
def st_(A, n, end=False):
    if LIGHT:
        if n != 0 and not end:
            return
        n = 15 if end else 0
    stamp(A, n, 36, 3, vt=254, st=96)

MISC = 4 * CH_LDS
FLAGS = MISC
SIDE = MISC + 64
RED = SIDE + 256
YOFF = H_OFF
W1, W0 = 20, 28
E_, G_, F_ = 36, 44, 50
UREG = 56
RING, NR, ACC, BS = 64, 6, 88, 120

DBGT = bool(os.environ.get("DBGT"))
def dbg_time(A, slot, invert=False):
    if not DBGT:
        return
    L = A.newlabel("dbgs")
    A("s_and_b32 s100, s42, 3")
    A("s_cmp_lg_u32 s100, 0")
    A("s_cbranch_scc1 %s" % L)
    A("s_cmp_eq_u32 s2, %d" % (8 if os.environ.get("ORD", "B") == "A" else 120))
    A("s_cselect_b32 s100, 1, 0")
    A("s_cmp_eq_u32 s2, %d" % (152 if os.environ.get("ORD", "B") == "A" else 48))
    A("s_cselect_b32 s100, 1, s100")
    A("s_cmp_eq_u32 s100, 0")
    A("s_cbranch_scc1 %s" % L)
    A("s_memrealtime s[96:97]")
    A("s_waitcnt lgkmcnt(0)")
    A("v_mov_b32 v252, s96")
    A("v_mov_b32 v253, %d" % (4 * slot))
    A("s_mov_b64 s[98:99], exec")
    A("s_mov_b64 exec, 1")
    A("global_store_dword v253, v252, s[68:69]")
    A("s_mov_b64 exec, s[98:99]")
    A.label(L)

DRY = os.environ.get("DRY", "0") != "0"
class TwoPass:
    def __init__(self, A, name):
        self.A = A
        self.L = A.newlabel(name + "b"); self.Lo = A.newlabel(name + "o"); self.Lt = A.newlabel(name + "t")
    def begin(self, transition):
        A = self.A
        self.transition = transition
        if DRY:
            A("s_mov_b32 s12, 0")
            A("s_mov_b64 exec, 0")
        else:
            transition()
        A.label(self.L)
    def guard_begin(self):
        if not DRY: return None
        l = self.A.newlabel("gd")
        self.A("s_cmp_eq_u32 s12, 0")
        self.A("s_cbranch_scc1 %s" % l)
        return l
    def guard_end(self, l):
        if l: self.A.label(l)
    def end(self):
        A = self.A
        if DRY:
            A("s_cmp_eq_u32 s12, 1")
            A("s_cbranch_scc1 %s" % self.Lo)
            A("s_mov_b32 s12, 1")
            A("s_mov_b64 exec, -1")
            self.transition()
            A("s_branch %s" % self.L)
            A.label(self.Lo)

def poll_head(A, cnt="s52"):
    A("s_mov_b32 %s, 0" % cnt)

def poll_tail(A, Lloop, Ldone, cnt="s52", sleep=1):
    A("s_add_u32 %s, %s, 1" % (cnt, cnt))
    A("s_cmp_gt_u32 %s, %d" % (cnt, POLL_MAX))
    A("s_cbranch_scc1 %s" % Ldone)
    A("s_sleep %d" % sleep)
    A("s_branch %s" % Lloop)

def masked_poll(A, name, emit_loads, tagregs, sleep, pre_sleep=0, full_exec="-1"):
    T = "s%d" % TAG
    Lp = A.newlabel(name + "p"); Ld = A.newlabel(name + "ok")
    if pre_sleep:
        A("s_sleep %d" % pre_sleep)
    A("s_mov_b32 s52, 0")
    A.label(Lp)
    emit_loads()
    A("s_waitcnt vmcnt(0)")
    A("v_cmp_eq_u32 vcc, %s, %s" % (T, v(tagregs[0])))
    for r in tagregs[1:]:
        A("v_cmp_eq_u32 s[54:55], %s, %s" % (T, v(r)))
        A("s_and_b64 vcc, vcc, s[54:55]")
    A("s_andn2_b64 exec, exec, vcc")
    A("s_cbranch_scc0 %s" % Ld)
    A("s_add_u32 s52, s52, 1")
    A("s_cmp_gt_u32 s52, %d" % POLL_MAX)
    A("s_cbranch_scc1 %s" % Ld)
    A("s_sleep %d" % sleep)
    A("s_branch %s" % Lp)
    A.label(Ld)
    A("s_mov_b64 exec, %s" % full_exec)

def first_then_poll(A, name, emit_loads, tagregs, sleep, ex, first_cnt=0):
    T = "s%d" % TAG
    Lp = A.newlabel(name + "p"); Ld = A.newlabel(name + "ok")
    A("s_mov_b32 s52, 0")
    A("s_waitcnt vmcnt(%d)" % first_cnt)
    A.label(Lp)
    A("v_cmp_eq_u32 vcc, %s, %s" % (T, v(tagregs[0])))
    for r in tagregs[1:]:
        A("v_cmp_eq_u32 s[54:55], %s, %s" % (T, v(r)))
        A("s_and_b64 vcc, vcc, s[54:55]")
    A("s_andn2_b64 exec, exec, vcc")
    A("s_cbranch_scc0 %s" % Ld)
    A("s_add_u32 s52, s52, 1")
    A("s_cmp_gt_u32 s52, %d" % POLL_MAX)
    A("s_cbranch_scc1 %s" % Ld)
    A("s_sleep %d" % sleep)
    emit_loads()
    A("s_waitcnt vmcnt(0)")
    A("s_branch %s" % Lp)
    A.label(Ld)
    A("s_mov_b64 exec, -1")

def ln_hint_poll(A, vaddr, r0, sleep, pre):
    def loads():
        A("s_movk_i32 s51, %d" % F_LNF)
        A("buffer_load_dwordx4 %s, %s, s[36:39], s51 offen sc1" % (v(r0, 4), vaddr))
        A("buffer_load_dwordx4 %s, %s, s[36:39], s51 offen offset:1024 sc1" % (v(r0 + 4, 4), vaddr))
    masked_poll(A, "lnh", loads, list(range(r0, r0 + 8)), sleep, pre)

def stats_from_msd(A, g, st, t):
    A("v_and_b32 %s, s40, %s" % (v(st + 4), v(g)))
    A("v_lshlrev_b32 %s, 16, %s" % (v(st), v(g)))
    A("v_rcp_f32 %s, %s" % (v(st + 2), v(st + 4)))
    A("v_xor_b32 %s, 0x80000000, %s" % (v(st), v(st)))
    A("v_xor_b32 %s, 0x80000000, %s" % (v(st + 4), v(st + 4)))
    A("v_fma_f32 %s, %s, %s, 1.0" % (v(t), v(st + 4), v(st + 2)))
    A("v_mov_b32 %s, %s" % (v(st + 1), v(st)))
    A("v_fma_f32 %s, %s, %s, %s" % (v(st + 2), v(t), v(st + 2), v(st + 2)))
    A("v_mov_b32 %s, %s" % (v(st + 5), v(st + 4)))
    A("v_mov_b32 %s, %s" % (v(st + 3), v(st + 2)))

LK, LV, LQ, SG, SX, SGS = 0, 17408, 33792, 50176, 67584, 272

def row_xor_reduce(A, regs):
    for ctl in ("quad_perm:[1,0,3,2]", "quad_perm:[2,3,0,1]", "row_half_mirror", "row_mirror"):
        if len(regs) < 3:
            A.nop(3 - len(regs))
        for r in regs:
            A("v_xor_b32_dpp %s, %s, %s %s row_mask:0xf bank_mask:0xf" % (v(r), v(r), v(r), ctl))

def post_kernarg(A):
    A("s_waitcnt lgkmcnt(0)")

def post_issue(A, name):
    A("s_load_dword s%d, s[%d:%d], %d" % (TAG, PWS, PWS + 1, F_EPOCH))
    srd(A, 36, PWS, WS_SIZE)
    A("s_lshl_b32 s3, s2, 3")
    A("s_add_u32 s3, s3, s42")
    st_(A, 0)

def gen_kv_issue(A):
    A("v_and_b32 v1, 63, v0")
    A("v_lshrrev_b32 v4, 3, v1")
    A("v_mul_u32_u24 v4, 1152, v4")
    A("v_and_b32 v5, 7, v1")
    A("v_lshl_add_u32 v4, v5, 4, v4")
    A("s_mul_i32 s62, s61, %d" % (128 * 1152))
    A("s_lshl_b32 s63, s60, 7")
    A("s_add_u32 s62, s62, s63")
    A("s_mul_i32 s63, s42, 9216")
    A("s_add_u32 s62, s62, s63")
    A("s_sub_u32 s63, s62, 9216")
    A("s_lshl_b32 s64, s42, 10")
    A("s_mov_b32 s66, 0")
    post_kernarg(A)
    srd(A, 48, PK, S * ROWB)
    srd(A, 52, PV, S * ROWB)
    srd(A, 16, PQ, S * ROWB)
    L = A.newlabel("kvl")
    A.label(L)
    A("s_mov_b32 m0, s64")
    A("s_add_u32 s65, s64, %d" % LV)
    A("buffer_load_dwordx4 v4, s[48:51], s63 offen lds" + NTS)
    A("s_mov_b32 m0, s65")
    A("s_add_u32 s65, s64, %d" % LQ)
    A("buffer_load_dwordx4 v4, s[52:55], s62 offen lds" + NTS)
    A("s_mov_b32 m0, s65")
    A("s_add_u32 s64, s64, 4096")
    A("buffer_load_dwordx4 v4, s[16:19], s62 offen lds" + NTS)
    A("s_add_u32 s63, s63, %d" % (32 * 1152))
    A("s_add_u32 s62, s62, %d" % (32 * 1152))
    A("s_add_u32 s66, s66, 1")
    A("s_cmp_lt_u32 s66, 4")
    A("s_cbranch_scc1 %s" % L)
    Ln = A.newlabel("nok17")
    A("s_cmp_lg_u32 s42, 0")
    A("s_cbranch_scc1 %s" % Ln)
    A("s_mov_b32 m0, s64")
    A("s_nop 0")
    A("buffer_load_dwordx4 v4, s[48:51], s63 offen lds" + NTS)
    A.label(Ln)

def gen_kv_addr(A):
    srd(A, 56, PSHK, D * 8)
    A("v_and_b32 v2, 31, v0")
    A("s_lshl_b32 s63, s60, 9")
    A("v_lshl_add_u32 v29, v2, 4, s63")
    A("buffer_load_dwordx4 v[32:35], v29, s[56:59], 0 offen")

def gen_kv_addr2(A):
    A("v_lshrrev_b32 v3, 5, v0")
    A("v_lshlrev_b32 v6, 10, v3")
    A("v_lshl_add_u32 v6, v2, 2, v6")
    A("v_mul_u32_u24 v7, %d, v2" % (2 * SGS))
    A("v_sub_u32 v8, 15, v3")
    A("v_lshl_add_u32 v7, v8, 4, v7")
    A("v_add_u32 v7, %d, v7" % SG)
    A("v_bfe_u32 v10, v0, 4, 2")
    A("v_and_b32 v11, 15, v0")
    A("v_mul_u32_u24 v8, %d, v10" % SGS)
    A("v_lshl_add_u32 v8, v11, 4, v8")
    A("s_mul_i32 s63, s42, %d" % (8 * SGS))
    A("s_add_u32 s63, s63, %d" % SG)
    A("v_add_u32 v8, s63, v8")
    A("v_lshlrev_b32 v9, 12, v10")
    A("v_lshl_add_u32 v9, v11, 4, v9")
    A("s_lshl_b32 s63, s60, 6")
    A("s_lshl_b32 s64, s42, 3")
    A("s_add_u32 s63, s63, s64")
    A("s_lshl_b32 s65, s63, 12")
    A("s_lshl_b32 s64, s61, 8")
    A("s_sub_u32 s65, s65, s64")
    A("s_add_u32 s65, s65, %d" % (F_UR + 240 * 16))
    A("v_add_u32 v9, s65, v9")
    A("v_lshlrev_b32 v12, 7, v10")
    A("s_lshl_b32 s65, s63, 7")
    A("s_lshl_b32 s64, s61, 3")
    A("s_sub_u32 s65, s65, s64")
    A("s_add_u32 s65, s65, %d" % (F_URC + 120))
    A("v_add_u32 v12, s65, v12")
    A("v_cmp_eq_u32 s[66:67], 0, v11")
    A("v_mul_u32_u24 v13, %d, v2" % (2 * SGS))
    A("v_lshl_add_u32 v13, v3, 4, v13")
    A("v_add_u32 v13, %d, v13" % SX)
    A("v_lshlrev_b32 v48, 12, v10")
    A("v_lshl_add_u32 v48, v11, 4, v48")
    A("s_lshl_b32 s65, s63, 12")
    A("s_lshl_b32 s64, s61, 8")
    A("s_add_u32 s65, s65, s64")
    A("s_add_u32 s65, s65, %d" % F_XT)
    A("v_add_u32 v48, s65, v48")
    A("v_lshlrev_b32 v49, 7, v10")
    A("s_lshl_b32 s65, s63, 7")
    A("s_lshl_b32 s64, s61, 3")
    A("s_add_u32 s65, s65, s64")
    A("s_add_u32 s65, s65, %d" % F_XC)
    A("v_add_u32 v49, s65, v49")

def gen_kv_compute(A):
    def trans():
        A("s_waitcnt vmcnt(0)")
        A("s_barrier")
        st_(A, 1)
        dbg_time(A, 8)
    tp = TwoPass(A, "kv")
    tp.begin(trans)
    for i in range(11):
        A("ds_read_b32 %s, v6 offset:%d" % (v(14 + i), LK + (5 + i) * 128))
    for i in range(8):
        A("ds_read_b32 %s, v6 offset:%d" % (v(40 + i), LV + i * 128))
    for i in range(8):
        A("ds_read_b32 %s, v6 offset:%d" % (v(144 + i), LQ + i * 128))
    A("v_lshlrev_b32 v54, 16, v32"); A("v_lshlrev_b32 v55, 16, v34")
    A("v_and_b32 v56, s40, v32");    A("v_and_b32 v57, s40, v34")
    A("v_lshlrev_b32 v58, 16, v33"); A("v_lshlrev_b32 v59, 16, v35")
    A("v_and_b32 v60, s40, v33");    A("v_and_b32 v61, s40, v35")
    DOT = bool(os.environ.get("DOT2", "1") != "0")
    W, K, KV = 54, 62, 100
    A("s_mov_b32 s64, 0x05040100"); A("s_mov_b32 s65, 0x07060302")
    if DOT:
        A("v_and_b32 v62, 0xffff, v32"); A("v_lshlrev_b32 v63, 16, v34")
        A("v_lshrrev_b32 v64, 16, v32"); A("v_and_b32 v65, s40, v34")
        A("v_and_b32 v66, 0xffff, v33"); A("v_lshlrev_b32 v67, 16, v35")
        A("v_lshrrev_b32 v68, 16, v33"); A("v_and_b32 v69, s40, v35")
        A("v_mov_b32 v70, 0x3f803f80")
        A("v_mov_b32 v71, 0")
        A("s_waitcnt lgkmcnt(0)")
        for j in range(4):
            A("v_perm_b32 %s, %s, %s, s64" % (v(152 + j), v(144 + 2 * j + 1), v(144 + 2 * j)))
            A("v_perm_b32 %s, %s, %s, s65" % (v(156 + j), v(144 + 2 * j + 1), v(144 + 2 * j)))
        A("ds_write_b128 v13, v[152:155]")
        A("ds_write_b128 v13, v[156:159] offset:%d" % SGS)
        def ch_ops(i, c, t0):
            a_, b_, p_, q_ = t0, t0 + 1, t0 + 2, t0 + 3
            o = []
            d2 = lambda d, x, y, z: "v_dot2_f32_bf16 %s, %s, %s, %s" % (v(d), v(x), v(y), z)
            o.append(d2(a_, 14 + i + 0, 62 + 2 * 3 + c, "0"))
            o.append(d2(b_, 14 + i + 1, 62 + 2 * 2 + c, "0"))
            o.append(d2(q_, 14 + i + 2, 62 + 2 * 1 + c, "0"))
            o.append("v_cvt_pk_bf16_f32 %s, %s, %s" % (v(p_), v(a_), v(b_)))
            o.append(d2(b_, 14 + i + 3, 62 + 2 * 0 + c, "0"))
            o.append(d2(a_, p_, 70, "0"))
            o.append("s_nop 0")
            o.append("v_cvt_pk_bf16_f32 %s, %s, %s" % (v(p_), v(a_), v(q_)))
            o.append("s_nop 0")
            o.append(d2(a_, p_, 70, "0"))
            o.append("s_nop 0")
            o.append("v_cvt_pk_bf16_f32 %s, %s, %s" % (v(p_), v(a_), v(b_)))
            o.append("s_nop 0")
            o.append(d2(a_, p_, 70, "0"))
            o.append("s_nop 0")
            if c == 0:
                o.append("v_cvt_pk_bf16_f32 %s, %s, %s" % (v(p_), v(a_), v(71)))
            else:
                o.append("v_cvt_pk_bf16_f32 %s, %s, %s" % (v(p_), v(71), v(a_)))
            o.append("s_nop 0")
            o.append(d2(KV + 2 * i + c, p_, 40 + i, "0"))
            if FAST and os.environ.get('KVEXACT', '1') == '0':
                o = []
                o.append(d2(a_, 14 + i + 0, 62 + 2 * 3 + c, "0"))
                if c == 0:
                    o.append("v_lshlrev_b32 %s, 16, %s" % (v(b_), v(40 + i)))
                else:
                    o.append("v_and_b32 %s, s40, %s" % (v(b_), v(40 + i)))
                o.append(d2(a_, 14 + i + 1, 62 + 2 * 2 + c, v(a_)))
                o.append(d2(a_, 14 + i + 2, 62 + 2 * 1 + c, v(a_)))
                o.append(d2(a_, 14 + i + 3, 62 + 2 * 0 + c, v(a_)))
                o.append("v_mul_f32 %s, %s, %s" % (v(KV + 2 * i + c), v(a_), v(b_)))
            return [x for x in o if x != "s_nop 0"]
        for i in range(0, 8, 4):
            streams = []
            for ii in range(4):
                for c in range(2):
                    streams.append(ch_ops(i + ii, c, 72 + 4 * (2 * ii + c) if (2 * ii + c) < 7 else 132))
            interleave(A, streams)
        A.nop(3)
        for c in range(2):
            for j in range(4):
                A("v_cvt_pk_bf16_f32 %s, %s, %s" % (v(116 + 4 * c + j), v(KV + 2 * (7 - 2 * j) + c), v(KV + 2 * (6 - 2 * j) + c)))
    else:
        A("s_waitcnt lgkmcnt(15)")
        for i in range(11):
            unpack_pair(A, K + 2 * i, K + 2 * i + 1, 14 + i, 40)
        A("s_waitcnt lgkmcnt(0)")
        for j in range(4):
            A("v_perm_b32 %s, %s, %s, s64" % (v(152 + j), v(144 + 2 * j + 1), v(144 + 2 * j)))
            A("v_perm_b32 %s, %s, %s, s65" % (v(156 + j), v(144 + 2 * j + 1), v(144 + 2 * j)))
        A("ds_write_b128 v13, v[152:155]")
        A("ds_write_b128 v13, v[156:159] offset:%d" % SGS)
        def pr_(r):
            return "v[%d:%d]" % (r, r + 1)
        def row_ops(i, acc, tmp, t3):
            P = Asm()
            P("v_pk_mul_f32 %s, %s, %s" % (pr_(acc), pr_(K + 2 * (i + 0)), pr_(W + 6)))
            round_pair(P, acc, acc + 1, t3, 40)
            for t in range(1, 4):
                P("v_pk_mul_f32 %s, %s, %s" % (pr_(tmp), pr_(K + 2 * (i + t)), pr_(W + 2 * (3 - t))))
                round_pair(P, tmp, tmp + 1, t3, 40)
                P("v_pk_add_f32 %s, %s, %s" % (pr_(acc), pr_(acc), pr_(tmp)))
                round_pair(P, acc, acc + 1, t3, 40)
            unpack_pair(P, tmp, tmp + 1, 40 + i, 40)
            P("v_pk_mul_f32 %s, %s, %s" % (pr_(KV + 2 * i), pr_(acc), pr_(tmp)))
            return [l.strip() for l in P.lines]
        for i in range(0, 8, 4):
            interleave(A, [row_ops(i, 84, 86, 88), row_ops(i + 1, 90, 92, 94), row_ops(i + 2, 132, 134, 136), row_ops(i + 3, 138, 140, 142)])
        for c in range(2):
            for j in range(4):
                A("v_cvt_pk_bf16_f32 %s, %s, %s" % (v(116 + 4 * c + j), v(KV + 2 * (7 - 2 * j) + c), v(KV + 2 * (6 - 2 * j) + c)))
    A("ds_write_b128 v7, v[116:119]")
    A("ds_write_b128 v7, v[120:123] offset:%d" % SGS)
    A("s_waitcnt lgkmcnt(0)")
    tp.end()
    A("s_barrier")
    A("ds_read_b128 v[116:119], v8")
    A("ds_read_b128 v[120:123], v8 offset:%d" % (4 * SGS))
    A("s_movk_i32 s63, 16384")
    A("s_waitcnt lgkmcnt(1)")
    A("buffer_store_dwordx4 v[116:119], v9, s[36:39], 0 offen sc1")
    A("v_xor_b32 v124, v116, v117"); A("v_xor_b32 v126, v118, v119")
    A("s_waitcnt lgkmcnt(0)")
    A("buffer_store_dwordx4 v[120:123], v9, s[36:39], s63 offen sc1")
    A("v_xor_b32 v125, v120, v121"); A("v_xor_b32 v127, v122, v123")
    A("v_xor_b32 v124, v124, v126"); A("v_xor_b32 v125, v125, v127")
    row_xor_reduce(A, [124, 125])
    A("v_xor_b32 v128, s%d, v124" % TAG); A("v_xor_b32 v130, s%d, v125" % TAG)
    A("v_mov_b32 v129, s%d" % TAG); A("v_mov_b32 v131, s%d" % TAG)
    A("s_mov_b64 exec, s[66:67]")
    A("buffer_store_dwordx2 v[128:129], v12, s[36:39], 0 offen sc1")
    A("buffer_store_dwordx2 v[130:131], v12, s[36:39], 0 offen offset:512 sc1")
    A("s_mov_b64 exec, -1")
    A("ds_read_b128 v[116:119], v8 offset:%d" % (SX - SG))
    A("ds_read_b128 v[120:123], v8 offset:%d" % (SX - SG + 4 * SGS))
    A("s_waitcnt lgkmcnt(1)")
    A("buffer_store_dwordx4 v[116:119], v48, s[36:39], 0 offen sc1")
    A("v_xor_b32 v124, v116, v117"); A("v_xor_b32 v126, v118, v119")
    A("s_waitcnt lgkmcnt(0)")
    A("buffer_store_dwordx4 v[120:123], v48, s[36:39], s63 offen sc1")
    A("v_xor_b32 v125, v120, v121"); A("v_xor_b32 v127, v122, v123")
    A("v_xor_b32 v124, v124, v126"); A("v_xor_b32 v125, v125, v127")
    row_xor_reduce(A, [124, 125])
    A("v_xor_b32 v128, s%d, v124" % TAG); A("v_xor_b32 v130, s%d, v125" % TAG)
    A("s_mov_b64 exec, s[66:67]")
    A("buffer_store_dwordx2 v[128:129], v49, s[36:39], 0 offen sc1")
    A("buffer_store_dwordx2 v[130:131], v49, s[36:39], 0 offen offset:512 sc1")
    A("s_mov_b64 exec, -1")
    st_(A, 2)

def gen_ln(A, two=False):
    A("v_and_b32 v1, 63, v0")
    A("v_and_b32 v2, 15, v0")
    A("v_lshrrev_b32 v3, 4, v1")
    A("s_lshl_b32 s61, s60, 2")
    A("v_add_u32 v30, s61, v3")
    A("s_movk_i32 s62, 1152")
    A("v_mul_lo_u32 v6, v30, s62")
    A("v_lshl_add_u32 v6, v2, 3, v6")
    A("v_lshlrev_b32 v7, 3, v2")
    post_kernarg(A)
    srd(A, 48, PQ, S * ROWB)
    srd(A, 56, PWR, D * 2)
    Q, WR, X = 64, 84, 104
    for i in range(9):
        A("buffer_load_dwordx2 %s, v6, s[48:51], 0 offen offset:%d" % (v(Q + 2 * i, 2), 128 * i) + QNT)
    for i in range(9):
        A("buffer_load_dwordx2 %s, v7, s[56:59], 0 offen offset:%d" % (v(WR + 2 * i, 2), 128 * i))
    if two:
        A("s_mov_b32 s62, %d" % (1024 * 1152))
        for i in range(9):
            A("buffer_load_dwordx2 %s, v6, s[48:51], s62 offen offset:%d" % (v(144 + 2 * i, 2), 128 * i))
    return Q, WR, X

def gen_ln_compute(A, Q, WR, X, extra=0, first_wait=None):
    def trans():
        A("s_waitcnt vmcnt(%d)" % extra)
        st_(A, 1)
    tp = TwoPass(A, "ln")
    tp.begin(trans)
    for i in range(18):
        unpack_pair(A, X + 2 * i, X + 2 * i + 1, Q + i, 40)
    A("v_pk_add_f32 v[8:9], %s, %s" % (v(X, 2), v(X + 2, 2)))
    A("v_pk_add_f32 v[10:11], %s, %s" % (v(X + 4, 2), v(X + 6, 2)))
    for i in range(4, 18, 2):
        A("v_pk_add_f32 v[8:9], v[8:9], %s" % v(X + 2 * i, 2))
        A("v_pk_add_f32 v[10:11], v[10:11], %s" % v(X + 2 * i + 2, 2))
    A("v_pk_add_f32 v[8:9], v[8:9], v[10:11]")
    A.nop(1)
    A("v_add_f32 v8, v8, v9")
    allreduce16_add(A, 8)
    A("v_mul_f32 v8, 0x3ae38e39, v8")
    A("v_sub_f32 v12, 0, v8")
    A("v_sub_f32 v13, 0, v8")
    for r in (14, 15, 16, 17):
        A("v_mov_b32 %s, 0" % v(r))
    for i in range(0, 18, 2):
        A("v_pk_add_f32 v[18:19], %s, v[12:13]" % v(X + 2 * i, 2))
        A("v_pk_add_f32 v[20:21], %s, v[12:13]" % v(X + 2 * i + 2, 2))
        A("v_pk_fma_f32 v[14:15], v[18:19], v[18:19], v[14:15]")
        A("v_pk_fma_f32 v[16:17], v[20:21], v[20:21], v[16:17]")
    A("v_pk_add_f32 v[14:15], v[14:15], v[16:17]")
    A.nop(1)
    A("v_add_f32 v14, v14, v15")
    allreduce16_add(A, 14)
    A("v_mul_f32 v14, 0x3ae38e39, v14")
    A.nop(1)
    round_pair(A, 8, 14, 9, 40)
    A("v_add_f32 v14, 0x3727c5ac, v14")
    A.nop(1)
    A("v_cvt_pk_bf16_f32 v9, v14, v14")
    A("v_lshlrev_b32 v14, 16, v9")
    A("v_sqrt_f32 v14, v14")
    A.nop(1)
    A("v_cvt_pk_bf16_f32 v9, v14, v14")
    A("v_lshlrev_b32 v14, 16, v9")
    A("v_rcp_f32 v15, v14")
    A.nop(1)
    A("v_fma_f32 v16, -v14, v15, 1.0")
    A("v_fma_f32 v15, v16, v15, v15")
    A("v_sub_f32 v12, 0, v8"); A("v_sub_f32 v13, 0, v8")
    A("v_mov_b32 v16, v15"); A("v_mov_b32 v17, v15")
    for r in (22, 23, 24, 25):
        A("v_mov_b32 %s, 0" % v(r))
    def ops(i, tm, acc):
        x0 = X + 2 * i
        P = Asm()
        P("v_pk_add_f32 %s, %s, v[12:13]" % (v(x0, 2), v(x0, 2)))
        round_pair(P, x0, x0 + 1, tm, 40)
        P("v_pk_mul_f32 %s, %s, v[16:17]" % (v(x0, 2), v(x0, 2)))
        round_pair(P, x0, x0 + 1, tm, 40)
        unpack_pair(P, tm + 2, tm + 3, WR + i, 40)
        P("v_pk_fma_f32 %s, %s, %s, %s" % (v(acc, 2), v(x0, 2), v(tm + 2, 2), v(acc, 2)))
        return [l.strip() for l in P.lines]
    for i in range(0, 18, 2):
        interleave(A, [ops(i, 26, 22), ops(i + 1, 32, 24)])
    A("v_pk_add_f32 v[22:23], v[22:23], v[24:25]")
    A.nop(1)
    A("v_add_f32 v22, v22, v23")
    allreduce16_add(A, 22)
    A.nop(1)
    A("v_cvt_pk_bf16_f32 v23, v22, v22")
    A("v_lshlrev_b32 v23, 16, v23")
    A("v_ashrrev_i32 v24, 31, v23")
    A("v_or_b32 v24, 0x80000000, v24")
    A("v_xor_b32 v23, v23, v24")
    A("v_and_b32 v23, s40, v23")
    A("v_sub_u32 v24, 2047, v30")
    A("v_or_b32 v26, v23, v24")
    A("v_mov_b32 v27, s%d" % TAG)
    A("v_cvt_pk_bf16_f32 v32, v8, v14")
    A("v_mov_b32 v33, s%d" % TAG)
    A("v_lshlrev_b32 v28, 3, v30")
    A("s_movk_i32 s61, %d" % F_KEYG)
    A("s_mov_b32 s62, %d" % F_ROWG)
    tp.end()
    A("v_cmp_eq_u32 vcc, 0, v2")
    A("s_and_saveexec_b64 s[64:65], vcc")
    A("buffer_store_dwordx2 v[26:27], v28, s[36:39], s61 offen sc1")
    A("buffer_store_dwordx2 v[32:33], v28, s[36:39], s62 offen sc1")
    A("s_mov_b64 exec, s[64:65]")
    st_(A, 2)

def load_verified_runs(A, pay_soff, chk_soff, vlane16, vchk8, vhint8, P, pre, sleep):
    C, Tm = P + 16, P + 20
    def hint_loads():
        A("buffer_load_dwordx2 %s, %s, s[36:39], %s offen sc1" % (v(C, 2), vhint8, chk_soff))
    masked_poll(A, "vh", hint_loads, [C + 1], sleep, pre)
    Lp = A.newlabel("vp"); Ld = A.newlabel("vok")
    A("s_mov_b32 s52, 0")
    A.label(Lp)
    for i in range(4):
        A("buffer_load_dwordx4 %s, %s, s[36:39], %s offen offset:%d sc1" % (v(P + 4 * i, 4), vlane16, pay_soff, 1024 * i))
    for i in range(4):
        A("buffer_load_dword %s, %s, s[36:39], %s offen offset:%d sc1" % (v(C + i), vchk8, chk_soff, 32 * i))
    A("s_waitcnt vmcnt(0)")
    for i in range(4):
        A("v_xor_b32 %s, %s, %s" % (v(Tm + i), v(P + 4 * i), v(P + 1 + 4 * i)))
    for i in range(4):
        A("v_xor_b32 %s, %s, %s" % (v(Tm + 4 + i), v(P + 2 + 4 * i), v(P + 3 + 4 * i)))
    for i in range(4):
        A("v_xor_b32 %s, %s, %s" % (v(Tm + i), v(Tm + i), v(Tm + 4 + i)))
    row_xor_reduce(A, [Tm, Tm + 1, Tm + 2, Tm + 3])
    for i in range(4):
        A("v_xor_b32 %s, %s, %s" % (v(Tm + i), v(Tm + i), v(C + i)))
    A("v_cmp_eq_u32 vcc, s%d, %s" % (TAG, v(Tm)))
    for i in range(1, 4):
        A("v_cmp_eq_u32 s[54:55], s%d, %s" % (TAG, v(Tm + i)))
        A("s_and_b64 vcc, vcc, s[54:55]")
    A("s_cmp_eq_u64 vcc, -1")
    A("s_cbranch_scc1 %s" % Ld)
    A("s_add_u32 s52, s52, 1")
    A("s_cmp_gt_u32 s52, %d" % POLL_MAX)
    A("s_cbranch_scc1 %s" % Ld)
    A("s_sleep 2")
    A("s_branch %s" % Lp)
    A.label(Ld)

def build_ops(W, N, off):
    ops = []
    for k in range(7):
        ops.append("v_alignbit_b32 %s, %s, %s, 16" % (v(E_ + k), v(W + k + 1), v(W + k)))
    ops.append("ds_write_b128 v11, %s offset:%d" % (v(W + 2, 4), 4 * CS + off))
    for k in range(3):
        ops.append("v_pk_mov_b32 %s, %s, %s op_sel:[1,0]" % (v(G_ + 2 * k, 2), v(W + 2 * k, 2), v(W + 2 * k + 2, 2)))
    ops.append("ds_write_b128 v11, %s offset:%d" % (v(E_, 4), 1 * CS + off))
    ops.append("ds_write_b128 v11, %s offset:%d" % (v(E_ + 2, 4), 5 * CS + off))
    for k in range(3):
        ops.append("v_pk_mov_b32 %s, %s, %s op_sel:[1,0]" % (v(F_ + 2 * k, 2), v(E_ + 2 * k, 2), v(E_ + 2 * k + 2, 2)))
    ops.append("ds_write_b128 v11, %s offset:%d" % (v(G_, 4), 2 * CS + off))
    ops.append("ds_write_b128 v11, %s offset:%d" % (v(G_ + 2, 4), 6 * CS + off))
    ops.append("s_nop 0")
    ops.append("ds_write_b128 v11, %s offset:%d" % (v(F_, 4), 3 * CS + off))
    ops.append("ds_write_b128 v11, %s offset:%d" % (v(F_ + 2, 4), 7 * CS + off))
    return ops

def gen_partial_gather(A):
    T = "s%d" % TAG
    A("v_and_b32 v5, 255, v0")
    A("v_and_b32 v1, 63, v0")
    A("v_and_b32 v12, 7, v5")
    A("v_mul_u32_u24 v12, 2304, v12")
    A("v_lshrrev_b32 v13, 3, v5")
    A("v_mul_u32_u24 v14, 18432, v13")
    A("v_add_u32 v12, v12, v14")
    A("s_lshl_b32 s51, s41, 4")
    A("s_add_u32 s51, s51, %d" % F_PARTG)
    A("v_add_u32 v12, s51, v12")
    A("v_add_u32 v14, %d, v12" % (64 * 18432))
    A("v_cmp_gt_u32 vcc, 8, v13")
    A.nop(2)
    A("v_cndmask_b32 v14, v12, v14, vcc")
    A("s_mov_b64 s[56:57], vcc")
    def part_loads():
        A("s_mov_b32 s51, %d" % (32 * 18432))
        A("buffer_load_dwordx4 v[160:163], v12, s[36:39], 0 offen sc1")
        A("buffer_load_dwordx4 v[164:167], v12, s[36:39], s51 offen sc1")
        A("buffer_load_dwordx4 v[168:171], v14, s[36:39], 0 offen sc1")
    Lp = A.newlabel("ppp"); Ld = A.newlabel("ppok")
    if int(os.environ.get("PPPRE", 0)):
        A("s_sleep %d" % int(os.environ.get("PPPRE", 0)))
    A("s_mov_b32 s52, 0")
    A.label(Lp)
    part_loads()
    A("s_waitcnt vmcnt(0)")
    for i in range(3):
        b = 160 + 4 * i
        A("v_xor_b32 %s, %s, %s" % (v(172 + i), v(b), v(b + 1)))
        A("v_xor_b32 %s, %s, %s" % (v(176 + i), v(b + 2), v(b + 3)))
    for i in range(3):
        A("v_xor_b32 %s, %s, %s" % (v(172 + i), v(172 + i), v(176 + i)))
    A("v_cmp_eq_u32 vcc, %s, v172" % T)
    for r in (173, 174):
        A("v_cmp_eq_u32 s[54:55], %s, %s" % (T, v(r)))
        A("s_and_b64 vcc, vcc, s[54:55]")
    A("s_andn2_b64 exec, exec, vcc")
    A("s_cbranch_scc0 %s" % Ld)
    A("s_add_u32 s52, s52, 1")
    A("s_cmp_gt_u32 s52, %d" % POLL_MAX)
    A("s_cbranch_scc1 %s" % Ld)
    A("s_sleep %d" % int(os.environ.get("PPSLEEP", 6)))
    A("s_branch %s" % Lp)
    A.label(Ld)
    A("s_mov_b64 exec, -1")
    st_(A, 8)
    dbg_time(A, 10)
    A("s_mov_b32 s58, 0xffffff00")
    A("s_mov_b32 s59, 0x0c0c0004")
    for i in range(3):
        b = 160 + 4 * i
        o = 20 + 4 * i
        A("v_lshlrev_b32 %s, 24, %s" % (v(o + 3), v(b)))
        A("v_and_b32 %s, 0xff, %s" % (v(176), v(b + 1)))
        A("v_and_b32 %s, 0xff, %s" % (v(177), v(b + 2)))
        A("v_lshl_or_b32 %s, %s, 16, %s" % (v(o + 3), v(176), v(o + 3)))
        A("v_lshl_or_b32 %s, %s, 8, %s" % (v(o + 3), v(177), v(o + 3)))
        for k in range(3):
            A("v_and_b32 %s, s58, %s" % (v(o + k), v(b + k)))
    for k in range(4):
        A("v_cndmask_b32 %s, 0, %s, s[56:57]" % (v(28 + k), v(28 + k)))
    for k in range(4):
        A("v_add_f32 %s, %s, %s" % (v(20 + k), v(20 + k), v(24 + k)))
    for k in range(4):
        A("v_add_f32 %s, %s, %s" % (v(20 + k), v(20 + k), v(28 + k)))
    A.nop(1)
    for k in range(4):
        A("v_add_f32_dpp %s, %s, %s row_ror:8 row_mask:0xf bank_mask:0xf" % (v(24 + k), v(20 + k), v(20 + k)))
    for k in range(4):
        A("v_mov_b32 %s, %s" % (v(28 + k), v(24 + k)))
    A.nop(1)
    for k in range(4):
        A("v_permlane16_swap_b32 %s, %s" % (v(24 + k), v(28 + k)))
    A.nop(1)
    for k in range(4):
        A("v_add_f32 %s, %s, %s" % (v(24 + k), v(24 + k), v(28 + k)))
    for k in range(4):
        A("v_mov_b32 %s, %s" % (v(28 + k), v(24 + k)))
    A.nop(1)
    for k in range(4):
        A("v_permlane32_swap_b32 %s, %s" % (v(24 + k), v(28 + k)))
    A.nop(1)
    for k in range(4):
        A("v_add_f32 %s, %s, %s" % (v(24 + k), v(24 + k), v(28 + k)))
    A("v_lshlrev_b32 v18, 4, v1")
    A("s_lshl_b32 s51, s43, 7")
    A("s_add_u32 s51, s51, %d" % RED)
    A("v_add_u32 v18, s51, v18")
    A("s_mov_b64 exec, 0xff")
    A("ds_write_b128 v18, v[24:27]")
    A("s_mov_b64 exec, -1")
    A("s_waitcnt lgkmcnt(0)")
    A("v_mov_b32 v11, %d" % FLAGS)
    A("v_mov_b32 v12, 1")
    lds_signal(A, 5, "v11", "v12")

def gen_M(A):
    A("s_setprio %d" % int(os.environ.get("MPRIO", 2)))
    srd(A, 32, PSSMK, D * S * 2)
    A("v_and_b32 v1, 63, v0")
    A("v_lshlrev_b32 v4, 4, v1")
    A("s_add_u32 s56, s45, %d" % (H_OFF + 512))
    A("s_lshl_b32 s57, s44, 12")
    A("s_mov_b32 m0, s56")
    A("s_lshl_b32 s51, s44, 1")
    for i in range(4):
        A("buffer_load_dwordx4 v4, s[32:35], s57 offen offset:%d lds" % (1024 * i) + NTS)
    A("s_add_u32 s56, s56, 4096")
    A("s_add_u32 s57, s57, 4096")
    A("s_mov_b32 m0, s56")
    A("s_mov_b64 exec, 0x3")
    A("buffer_load_dwordx4 v4, s[32:35], s57 offen lds" + NTS)
    A("s_mov_b64 exec, -1")
    A("s_and_b32 s52, s51, 0xfffffffc")
    A("s_add_u32 s54, s%d, s52" % PSSMD)
    A("s_addc_u32 s55, s%d, 0" % (PSSMD + 1))
    A("s_load_dword s53, s[54:55], 0")
    A("v_and_b32 v2, 15, v0")
    A("v_bfe_u32 v3, v0, 4, 2")
    A("v_mov_b32 v12, 0"); A("v_mov_b32 v13, 0"); A("v_mov_b32 v14, 0"); A("v_mov_b32 v15, 0")
    A("v_add_u32 v11, s45, v4")
    A("s_mov_b32 exec_hi, 0")
    A("ds_write_b128 v11, v[12:15] offset:%d" % H_OFF)
    A("s_mov_b64 exec, 0x3")
    for c in range(8):
        pass
    A("ds_write_b128 v11, v[12:15]")
    A("s_mov_b64 exec, 0xf")
    A("ds_write_b128 v11, v[12:15] offset:%d" % (258 * 16))
    A("s_mov_b64 exec, -1")
    A("v_lshlrev_b32 v5, 5, v2")
    A("v_lshl_add_u32 v5, v3, 4, v5")
    A("v_add_u32 v5, s45, v5")
    A("v_add_u32 v5, %d, v5" % H_OFF)
    A("v_and_b32 v8, 7, v2")
    A("v_sub_u32 v8, 7, v8")
    A("v_mul_u32_u24 v8, %d, v8" % CS)
    A("v_lshrrev_b32 v6, 3, v2")
    A("v_sub_u32 v6, v3, v6")
    A("v_lshlrev_b32 v6, 4, v6")
    A("v_add_u32 v8, v8, v6")
    A("v_add_u32 v8, 16, v8")
    A("v_add_u32 v9, s45, v8")
    A("v_lshlrev_b32 v6, 5, v2")
    A("v_lshl_add_u32 v6, v3, 3, v6")
    A("v_sub_u32 v7, %d, v6" % (4120 - 3584))
    A("v_add_u32 v7, s45, v7")
    A("v_add_u32 v6, s45, v6")
    A("v_add_u32 v6, %d, v6" % YOFF)
    A("s_lshl_b32 s49, s43, 2")
    A("s_add_u32 s49, s49, %d" % FLAGS)
    A("v_mov_b32 v10, s49")
    for i in range(32):
        A("v_mov_b32 %s, 0" % v(ACC + i))
    A("s_lshl_b32 s48, s44, 12")
    A("s_add_u32 s48, s48, %d" % F_UR)
    A("v_lshlrev_b32 v16, 3, v3")
    A("s_lshl_b32 s50, s44, 7")
    A("s_add_u32 s50, s50, %d" % F_URC)
    A("v_and_b32 v17, 15, v1")
    A("v_lshlrev_b32 v17, 3, v17")
    def hint_loads():
        A("buffer_load_dwordx2 v[136:137], v17, s[36:39], s50 offen sc1")
    if os.environ.get("URHINT"):
        masked_poll(A, "urh", hint_loads, [137], int(os.environ.get("URSLEEP", 4)), int(os.environ.get("URPRE", 8)))
    else:
        A("s_sleep %d" % int(os.environ.get("URPRE", 24)))
    Lp = A.newlabel("urp"); Ld = A.newlabel("urok")
    A("s_mov_b32 s52, 0")
    A.label(Lp)
    for i in range(4):
        A("buffer_load_dwordx4 %s, v4, s[36:39], s48 offen offset:%d sc1" % (v(120 + 4 * i, 4), 1024 * i))
    for i in range(4):
        A("buffer_load_dword %s, v16, s[36:39], s50 offen offset:%d sc1" % (v(136 + i), 32 * i))
    A("s_waitcnt vmcnt(0)")
    for i in range(4):
        A("v_xor_b32 %s, %s, %s" % (v(140 + i), v(120 + 4 * i), v(121 + 4 * i)))
    for i in range(4):
        A("v_xor_b32 %s, %s, %s" % (v(144 + i), v(122 + 4 * i), v(123 + 4 * i)))
    for i in range(4):
        A("v_xor_b32 %s, %s, %s" % (v(140 + i), v(140 + i), v(144 + i)))
    row_xor_reduce(A, [140, 141, 142, 143])
    for i in range(4):
        A("v_xor_b32 %s, %s, %s" % (v(140 + i), v(140 + i), v(136 + i)))
    A("v_cmp_eq_u32 vcc, s%d, v140" % TAG)
    for i in range(1, 4):
        A("v_cmp_eq_u32 s[54:55], s%d, %s" % (TAG, v(140 + i)))
        A("s_and_b64 vcc, vcc, s[54:55]")
    A("s_andn2_b64 exec, exec, vcc")
    A("s_cbranch_scc0 %s" % Ld)
    A("s_add_u32 s52, s52, 1")
    A("s_cmp_gt_u32 s52, %d" % POLL_MAX)
    A("s_cbranch_scc1 %s" % Ld)
    A("s_sleep %d" % int(os.environ.get("URSLEEP", 6)))
    A("s_branch %s" % Lp)
    A.label(Ld)
    A("s_mov_b64 exec, -1")
    st_(A, 3)
    dbg_time(A, 5)
    A("s_setprio %d" % int(os.environ.get("MPRIO2", 0)))
    for i in range(4):
        A("ds_write_b128 v11, %s offset:%d" % (v(120 + 4 * i, 4), 32 + 1024 * i))
    A("s_waitcnt lgkmcnt(0)")
    for (W, off) in ((152, 4096), (160, 3072), (168, 2048), (W1, 1024), (W0, 0)):
        A("ds_read_b128 %s, v11 offset:%d" % (v(W, 4), off))
        A("ds_read_b128 %s, v11 offset:%d" % (v(W + 4, 4), off + 16))
    A("s_waitcnt lgkmcnt(8)")
    A("s_mov_b64 exec, 0x1f")
    for o in build_ops(152, 0, 4096): A(o)
    A("s_mov_b64 exec, -1")
    A("s_waitcnt lgkmcnt(11)")
    for o in build_ops(160, 0, 3072): A(o)
    A("s_waitcnt lgkmcnt(14)")
    for o in build_ops(168, 0, 2048): A(o)
    A("s_waitcnt lgkmcnt(0)")
    st_(A, 4)
    hi_steps, lo_frags, lo_slot, lo_steps = conv_schedule()
    def bslot(sl):
        return v(BS + 4 * sl, 4)
    order, seen = [], set()
    for q, lst in hi_steps:
        for t, sl in lst:
            if sl not in seen:
                seen.add(sl); order.append(sl)
    aseq = [q for q in range(33)] + [q for q in range(65)]
    issued = []
    def issue(tag, txt):
        A(txt); issued.append(tag)
    def wait_for(tags):
        idx = max(len(issued) - 1 - issued[::-1].index(t) for t in tags)
        n = len(issued) - 1 - idx
        A("s_waitcnt lgkmcnt(%d)" % min(n, 15))
    def a_issue(k):
        issue(("A", k), "ds_read_b128 %s, v9 offset:%d" % (v(RING + 4 * (k % NR), 4), 64 * (64 - aseq[k])))
    def b_issue(sl):
        issue(("B", sl), "ds_read_b128 %s, v5 offset:%d" % (bslot(sl), 64 * (56 - sl + 8)))
    fill = deque()
    cnt = [0]
    def emit_fill(k):
        while k > 0 and fill:
            f = fill.popleft(); f(); cnt[0] += 1; k -= 1
    def add_plain(txt):
        if txt.startswith("ds_"):
            fill.append(lambda txt=txt: issue(("W",), txt))
        else:
            fill.append(lambda txt=txt: A(txt))
    a_issue(0)
    for sl in order[:5]:
        b_issue(sl)
    nextA = 1
    for k in range(1, NR):
        a_issue(nextA); nextA += 1
        b_issue(order[5 + k - 1])
    nextB = 5 + (NR - 1)
    A("s_and_b32 s52, s51, 2")
    A("s_lshl_b32 s52, s52, 3")
    A("s_lshr_b32 s53, s53, s52")
    A("s_lshl_b32 s53, s53, 16")
    A("v_mov_b32 v18, s53"); A("v_mov_b32 v19, s53")
    n = 0
    fu = {}
    for q, lst in hi_steps:
        for t, sl in lst:
            fu.setdefault(sl, q)
    for q, lst in hi_steps:
        while nextB < len(order) and fu[order[nextB]] <= q + 3:
            b_issue(order[nextB]); nextB += 1
        wait_for([("A", n)] + [("B", sl) for _, sl in lst])
        for t, sl in lst:
            A("v_mfma_f32_16x16x32_bf16 %s, %s, %s, %s" % (v(ACC + 4 * t, 4), v(RING + 4 * (n % NR), 4), bslot(sl), v(ACC + 4 * t, 4)))
        if nextA < len(aseq):
            a_issue(nextA); nextA += 1
        if q < 32:
            issue(("L", q), "ds_read_b128 %s, v5 offset:%d" % (bslot(q), 64 * (lo_frags[q] + 8)))
        n += 1
    st_(A, 5)
    def tile_epilogue(t):
        u0 = UREG + 2 * (t % 2)
        ac = ACC + 4 * t
        fill.append(lambda: wait_for([("U", t)] + ([("L", 31)] if t == 0 else [])))
        P = Asm()
        P("v_and_b32 v12, s40, %s" % v(u0 + 1))
        P("v_lshlrev_b32 v13, 16, %s" % v(u0 + 1))
        P("v_and_b32 v14, s40, %s" % v(u0))
        P("v_lshlrev_b32 v15, 16, %s" % v(u0))
        if FAST:
            P("s_nop 0"); P("s_nop 0")
            P("v_pk_fma_f32 v[12:13], v[12:13], v[18:19], %s" % v(ac, 2))
            P("v_pk_fma_f32 v[14:15], v[14:15], v[18:19], %s" % v(ac + 2, 2))
            P("s_nop 0")
        else:
            P("v_pk_mul_f32 v[12:13], v[12:13], v[18:19]")
            P("v_pk_mul_f32 v[14:15], v[14:15], v[18:19]")
            round_pair(P, 12, 13, 16, 40)
            round_pair(P, 14, 15, 17, 40)
            round_pair(P, ac, ac + 1, 16, 40)
            round_pair(P, ac + 2, ac + 3, 17, 40)
            P("v_pk_add_f32 v[12:13], v[12:13], %s" % v(ac, 2))
            P("v_pk_add_f32 v[14:15], v[14:15], %s" % v(ac + 2, 2))
        P("v_cvt_pk_bf16_f32 v16, v12, v13")
        P("v_cvt_pk_bf16_f32 v17, v14, v15")
        for l in P.lines:
            add_plain(l.strip())
        fill.append(lambda: issue(("Y", t), "ds_write_b64 v6, v[16:17] offset:%d" % (512 * t)))
        fill.append(lambda: A("v_mov_b32 v8, %d" % (t + 1)))
        for _ in range(3):
            fill.append(lambda: None)
        fill.append(lambda: wait_for([("Y", t)]))
        fill.append(lambda: issue(("F", t), "ds_write_b32 v10, v8"))
    for o in build_ops(W1, 0, 1024): add_plain(o)
    n1 = len(fill)
    for o in build_ops(W0, 0, 0): add_plain(o)
    n0 = len(fill)
    for q, lst in lo_steps:
        wait_for([("A", n)] + [("L", sl) for _, sl in lst])
        k = len(lst)
        per = int(os.environ.get('FPER', 2)) if k >= 2 else 1
        for i, (t, sl) in enumerate(lst):
            A("v_mfma_f32_16x16x32_bf16 %s, %s, %s, %s" % (v(ACC + 4 * t, 4), v(RING + 4 * (n % NR), 4), bslot(sl), v(ACC + 4 * t, 4)))
            if i < k - 1 or k == 1:
                emit_fill(per)
        if nextA < len(aseq):
            qq = aseq[nextA]
            if nextA >= 33 and qq >= 33:
                assert cnt[0] >= n1
            if nextA >= 33 and qq >= 49:
                assert cnt[0] >= n0
            a_issue(nextA); nextA += 1
        n += 1
        if q % 8 == 4:
            t = q // 8
            issue(("U", t), "ds_read_b64 %s, v7 offset:%d" % (v(UREG + 2 * (t % 2), 2), 512 * (7 - t)))
        if q >= 9 and (q - 9) % 8 == 0 and (q - 9) // 8 < 7:
            tile_epilogue((q - 9) // 8)
    A.nop(4)
    st_(A, 6)
    tile_epilogue(7)
    emit_fill(1000)
    st_(A, 7)
    dbg_time(A, 1)
    gen_partial_gather(A)
    st_(A, 9, end=True)
    A("s_endpgm")

XQ = 208
def h_early_loads(A):
    srd(A, 16, PQ, S * ROWB)
    A("v_and_b32 v201, 255, v0")
    A("s_movk_i32 s63, 1152")
    A("v_mul_lo_u32 v200, v201, s63")
    A("s_lshl_b32 s63, s41, 3")
    A("v_add_u32 v200, s63, v200")
    return 8

def strip_loads(A):
    h_early_loads(A)
    if os.environ.get("NOSTRIP"):
        for t in range(8):
            A("s_nop 0")
            A("buffer_load_dwordx2 %s, v1, s[16:19], 0 offen" % v(XQ + 2 * t, 2))
        return
    A("s_mov_b32 s63, 0")
    for t in range(8):
        A("buffer_load_dwordx2 %s, v200, s[16:19], s63 offen" % v(XQ + 2 * t, 2))
        A("s_add_u32 s63, s63, %d" % (256 * 1152))

def q_prefetch(A):
    srd(A, 16, PQ, S * ROWB)
    Ln = A.newlabel("noqpf")
    A("v_and_b32 v202, 15, v0")
    A("v_bfe_u32 v203, v0, 4, 2")
    A("v_mul_u32_u24 v203, 1152, v203")
    A("v_lshl_add_u32 v202, v202, 4, v203")
    A("s_mul_i32 s63, s30, 144")
    A("s_and_b32 s63, s63, 0xffffff80")
    A("s_min_u32 s64, s31, 15")
    A("s_lshl_b32 s64, s64, 7")
    A("s_sub_u32 s65, s42, 4")
    A("s_lshl_b32 s65, s65, 5")
    A("s_add_u32 s64, s64, s65")
    A("s_mul_i32 s64, s64, 1152")
    A("s_add_u32 s63, s63, s64")
    for i in range(8):
        A("buffer_load_dwordx4 v[204:207], v202, s[16:19], s63 offen")
        A("s_add_u32 s63, s63, %d" % (4 * 1152))

def gen_H(A):
    srd(A, 20, POUT, S * ROWB)
    T = "s%d" % TAG
    A("v_and_b32 v1, 63, v0")
    A("v_mov_b32 v5, v201")
    A("v_mov_b32 v6, v200")
    A("v_lshlrev_b32 v7, 3, v5")
    RG = 160
    X, XN, T1 = 64, 96, 128
    A("s_setprio %d" % int(os.environ.get("HPRIO", 1)))
    for r in range(32):
        A("v_mov_b32 %s, 0" % v(X + r))
    A("v_lshlrev_b32 v8, 4, v1")
    A("v_lshrrev_b32 v9, 4, v1")
    A("v_lshlrev_b32 v9, 3, v9")
    A("s_lshl_b32 s48, s44, 12")
    A("s_add_u32 s48, s48, %d" % F_XT)
    A("s_lshl_b32 s50, s44, 7")
    A("s_add_u32 s50, s50, %d" % F_XC)
    P, C, Tm = 224, 240, 244
    A("s_sleep %d" % int(os.environ.get("ROWPRE", 32)))
    def row_loads():
        for t in range(8):
            A("s_mov_b32 s51, %d" % (F_ROWG + 2048 * t))
            A("buffer_load_dwordx2 %s, v7, s[36:39], s51 offen sc1" % v(RG + 2 * t, 2))
    row_loads()
    Lp = A.newlabel("hp"); Ld = A.newlabel("hok")
    A("s_mov_b32 s52, 0")
    A.label(Lp)
    for i in range(4):
        A("buffer_load_dwordx4 %s, v8, s[36:39], s48 offen offset:%d sc1" % (v(P + 4 * i, 4), 1024 * i))
    for i in range(4):
        A("buffer_load_dword %s, v9, s[36:39], s50 offen offset:%d sc1" % (v(C + i), 32 * i))
    A("s_waitcnt vmcnt(0)")
    for i in range(4):
        A("v_xor_b32 %s, %s, %s" % (v(Tm + i), v(P + 4 * i), v(P + 1 + 4 * i)))
    for i in range(4):
        A("v_xor_b32 %s, %s, %s" % (v(Tm + 4 + i), v(P + 2 + 4 * i), v(P + 3 + 4 * i)))
    for i in range(4):
        A("v_xor_b32 %s, %s, %s" % (v(Tm + i), v(Tm + i), v(Tm + 4 + i)))
    row_xor_reduce(A, [Tm, Tm + 1, Tm + 2, Tm + 3])
    for i in range(4):
        A("v_xor_b32 %s, %s, %s" % (v(Tm + i), v(Tm + i), v(C + i)))
    A("v_cmp_eq_u32 vcc, s%d, %s" % (TAG, v(Tm)))
    for i in range(1, 4):
        A("v_cmp_eq_u32 s[54:55], s%d, %s" % (TAG, v(Tm + i)))
        A("s_and_b64 vcc, vcc, s[54:55]")
    A("s_andn2_b64 exec, exec, vcc")
    A("s_cbranch_scc0 %s" % Ld)
    A("s_add_u32 s52, s52, 1")
    A("s_cmp_gt_u32 s52, %d" % POLL_MAX)
    A("s_cbranch_scc1 %s" % Ld)
    A("s_sleep %d" % int(os.environ.get("ROWSLEEP", 8)))
    A("s_branch %s" % Lp)
    A.label(Ld)
    A("s_mov_b64 exec, -1")
    ROWPOLL = True
    st_(A, 10)
    A("v_mov_b32 v11, %d" % FLAGS)
    A("v_mov_b32 v12, 1")
    lds_signal(A, 4, "v11", "v12")
    lds_wait(A, 4, 4, "v11", "v13", sleep=1)
    st_(A, 2 + 7)
    A("v_lshlrev_b32 v8, 1, v5")
    A("s_lshl_b32 s48, s41, 14")
    A("s_add_u32 s48, s48, %d" % F_XT)
    for c in range(4):
        for t in range(8):
            A("buffer_load_short_d16_hi %s, v8, s[36:39], s48 offen offset:%d sc1" % (v(X + 4 * t + c), 512 * t))
        A("s_add_u32 s48, s48, 4096")
    first_then_poll(A, "row", row_loads, list(range(RG + 1, RG + 16, 2)), int(os.environ.get("ROWSLEEP", 8)), "-1", first_cnt=32)
    if FAST:
        for t in range(8):
            st = 176 + 4 * t
            A("v_and_b32 %s, s40, %s" % (v(st), v(RG + 2 * t)))
            A("v_lshlrev_b32 %s, 16, %s" % (v(st + 2), v(RG + 2 * t)))
        for t in range(8):
            st = 176 + 4 * t
            A("v_rcp_f32 %s, %s" % (v(st), v(st)))
        for t in range(8):
            st = 176 + 4 * t
            A("v_mul_f32_e64 %s, -%s, %s" % (v(st + 2), v(st + 2), v(st)))
            A("v_mov_b32 %s, %s" % (v(st + 1), v(st)))
        for t in range(8):
            st = 176 + 4 * t
            A("v_mov_b32 %s, %s" % (v(st + 3), v(st + 2)))
        A("s_waitcnt vmcnt(0)")
        st_(A, 3)
        for t in range(8):
            st = 176 + 4 * t
            for p in range(2):
                x, xn = X + 4 * t + 2 * p, XN + 4 * t + 2 * p
                A("v_pk_fma_f32 %s, %s, %s, %s" % (v(xn, 2), v(x, 2), v(st, 2), v(st + 2, 2)))
    else:
        for t in range(8):
            stats_from_msd(A, RG + 2 * t, 176 + 6 * t, 40)
        A("s_waitcnt vmcnt(0)")
        st_(A, 3)
        for t in range(8):
            st = 176 + 6 * t
            streams = []
            for p in range(2):
                x, xn = X + 4 * t + 2 * p, XN + 4 * t + 2 * p
                tm = 56 + 4 * p
                P = Asm()
                P("v_pk_add_f32 %s, %s, %s" % (v(tm, 2), v(x, 2), v(st, 2)))
                round_pair(P, tm, tm + 1, tm + 2, 40)
                P("v_pk_mul_f32 %s, %s, %s" % (v(xn, 2), v(tm, 2), v(st + 2, 2)))
                P("v_pk_fma_f32 %s, %s, %s, %s" % (v(tm, 2), v(xn, 2), v(st + 4, 2), v(tm, 2)))
                P("v_pk_fma_f32 %s, %s, %s, %s" % (v(xn, 2), v(tm, 2), v(st + 2, 2), v(xn, 2)))
                round_pair(P, xn, xn + 1, tm + 2, 40)
                streams.append([l.strip() for l in P.lines])
            interleave(A, streams)
    st_(A, 4)
    dbg_time(A, 11)
    A("v_lshlrev_b32 v9, 1, v5")
    A("v_add_u32 v9, %d, v9" % YOFF)
    A("v_add_u32 v10, %d, v9" % (2 * CH_LDS))
    A("v_mov_b32 v11, %d" % FLAGS)
    for i in range(4):
        A("v_mov_b32 %s, 0" % v(40 + i))
    A("v_and_b32 v8, 7, v1")
    A("v_lshlrev_b32 v8, 3, v8")
    def sel_loads():
        A("s_movk_i32 s51, %d" % F_SELG)
        A("buffer_load_dwordx2 v[180:181], v8, s[36:39], s51 offen sc1")
    sel_loads_m = sel_loads
    A("s_mov_b32 s59, 0")
    A("s_setprio %d" % int(os.environ.get("HPRIO2", 1)))
    for t in range(8):
        Lw = A.newlabel("yw"); Lg = A.newlabel("yg")
        A("s_cmp_gt_u32 s59, %d" % t)
        A("s_cbranch_scc1 %s" % Lg)
        A("s_mov_b32 s52, 0")
        A.label(Lw)
        A("ds_read_b128 v[16:19], v11")
        A("s_add_u32 s52, s52, 1")
        A("s_waitcnt lgkmcnt(0)")
        A("v_min_u32 v16, v16, v17")
        A("v_min3_u32 v16, v16, v18, v19")
        A("s_cmp_gt_u32 s52, %d" % POLL_MAX)
        A("v_readfirstlane_b32 s59, v16")
        A("s_cbranch_scc1 %s" % Lg)
        A("s_nop 1")
        A("s_cmp_gt_u32 s59, %d" % t)
        A("s_cbranch_scc1 %s" % Lg)
        A("s_sleep 1")
        A("s_branch %s" % Lw)
        A.label(Lg)
        if os.environ.get("HST") and t in (0, 2, 4, 7):
            st_(A, {0: 11, 2: 12, 4: 13, 7: 14}[t])
        A("ds_read_u16_d16_hi v40, v9 offset:%d" % (512 * t))
        A("ds_read_u16_d16_hi v41, v9 offset:%d" % (512 * t + CH_LDS))
        A("ds_read_u16_d16_hi v42, v10 offset:%d" % (512 * t))
        A("ds_read_u16_d16_hi v43, v10 offset:%d" % (512 * t + CH_LDS))
        A("s_waitcnt lgkmcnt(0)")
        if FAST:
            for p in range(2):
                x, xn, t1 = X + 4 * t + 2 * p, XN + 4 * t + 2 * p, T1 + 4 * t + 2 * p
                A("v_pk_fma_f32 %s, %s, %s, %s" % (v(t1, 2), v(xn, 2), v(40 + 2 * p, 2), v(xn, 2)))
            for p in range(2):
                x, xn, t1 = X + 4 * t + 2 * p, XN + 4 * t + 2 * p, T1 + 4 * t + 2 * p
                A("v_pk_add_f32 %s, %s, %s" % (v(t1, 2), v(t1, 2), v(x, 2)))
            for p in range(2):
                t1 = T1 + 4 * t + 2 * p
                A("v_cvt_pk_bf16_f32 %s, %s, %s" % (v(44 + 2 * (t % 2) + p), v(t1), v(t1 + 1)))
        else:
            streams = []
            for p in range(2):
                x, xn, t1 = X + 4 * t + 2 * p, XN + 4 * t + 2 * p, T1 + 4 * t + 2 * p
                tm = 56 + 4 * p
                P = Asm()
                P("v_pk_mul_f32 %s, %s, %s" % (v(tm, 2), v(xn, 2), v(40 + 2 * p, 2)))
                round_pair(P, tm, tm + 1, tm + 2, 40)
                P("v_pk_add_f32 %s, %s, %s" % (v(t1, 2), v(x, 2), v(tm, 2)))
                round_pair(P, t1, t1 + 1, tm + 2, 40)
                P("v_pk_add_f32 %s, %s, %s" % (v(tm, 2), v(t1, 2), v(xn, 2)))
                P("v_cvt_pk_bf16_f32 %s, %s, %s" % (v(44 + 2 * (t % 2) + p), v(tm), v(tm + 1)))
                streams.append([l.strip() for l in P.lines])
            interleave(A, streams)
        A("s_mov_b32 s51, %d" % (t * 256 * 1152))
        A("buffer_store_dwordx2 %s, v6, s[20:23], s51 offen" % v(44 + 2 * (t % 2), 2) + os.environ.get("OUTPOL", ""))
        if t == 5:
            sel_loads()
    st_(A, 5)
    dbg_time(A, 9)
    first_then_poll(A, "sel", sel_loads_m, [181], 4, "-1", first_cnt=2)
    A("v_lshrrev_b32 v45, 16, v180")
    A("v_and_b32 v46, 0x8000, v45")
    A("v_mov_b32 v47, 0xffff")
    A("v_mov_b32 v48, 0x8000")
    A("v_cmp_ne_u32 vcc, 0, v46")
    A("v_and_b32 v44, 0xffff, v180")
    A("v_sub_u32 v44, 2047, v44")
    A("v_cndmask_b32 v47, v47, v48, vcc")
    A("v_xor_b32 v45, v45, v47")
    A("v_lshlrev_b32 v45, 16, v45")
    A("v_mul_f32 v45, 0xbfb8aa3b, v45")
    A("v_exp_f32 v45, v45")
    A.nop(1)
    A("v_add_f32 v45, 1.0, v45")
    A("v_rcp_f32 v45, v45")
    A.nop(1)
    A("v_cvt_pk_bf16_f32 v45, v45, v45")
    A("v_lshlrev_b32 v45, 16, v45")
    for i in range(8):
        Ls = A.newlabel("ns")
        A("v_readlane_b32 s51, v44, %d" % i)
        A("v_mov_b32 v52, %d" % (SIDE + 32 * i))
        A("s_nop 2")
        A("s_bfe_u32 s58, s51, 0x20006")
        A("s_cmp_lg_u32 s58, s43")
        A("s_cbranch_scc1 %s" % Ls)
        A("s_lshr_b32 s58, s51, 8")
        A("s_lshl_b32 s58, s58, 2")
        A("s_and_b32 s51, s51, 255")
        A("v_cmp_eq_u32 vcc, s51, v5")
        A("s_set_gpr_idx_on s58, gpr_idx(SRC0)")
        for k in range(4):
            A("v_mov_b32 %s, %s" % (v(36 + k), v(T1 + k)))
        for k in range(4):
            A("v_mov_b32 %s, %s" % (v(40 + k), v(XN + k)))
        A("s_set_gpr_idx_off")
        A("s_mov_b64 exec, vcc")
        A("ds_write_b128 v52, v[36:39]")
        A("ds_write_b128 v52, v[40:43] offset:16")
        A("s_mov_b64 exec, -1")
        A.label(Ls)
    A("s_waitcnt vmcnt(0) lgkmcnt(0)")
    A("v_mov_b32 v11, %d" % FLAGS)
    A("v_mov_b32 v12, 1")
    lds_signal(A, 6, "v11", "v12")
    st_(A, 6)
    WB = os.environ.get("WBL2")
    if WB:
        Lw = A.newlabel("nowb")
        A("s_cmp_lg_u32 s42, 5")
        A("s_cbranch_scc1 %s" % Lw)
        if WB == "one":
            A("s_lshr_b32 s51, s2, 3")
            A("s_cmp_lg_u32 s51, 31")
            A("s_cbranch_scc1 %s" % Lw)
        A("buffer_wbl2 sc1")
        A.label(Lw)
    Lend = A.newlabel("hend")
    A("s_cmp_lg_u32 s42, 4")
    A("s_cbranch_scc1 %s" % Lend)
    A("v_lshlrev_b32 v18, 4, v1")
    A("v_add_u32 v19, %d, v18" % RED)
    A("v_lshlrev_b32 v20, 5, v1")
    A("v_add_u32 v53, %d, v20" % SIDE)
    A("s_movk_i32 s51, 1152")
    A("v_mul_lo_u32 v44, v44, s51")
    A("s_lshl_b32 s51, s41, 3")
    A("v_add_u32 v44, s51, v44")
    lds_wait(A, 6, 4, "v11", "v12", sleep=0)
    A("s_mov_b64 exec, 0xff")
    A("ds_read_b128 v[36:39], v53")
    A("ds_read_b128 v[40:43], v53 offset:16")
    A("s_mov_b64 exec, -1")
    lds_wait(A, 5, 4, "v11", "v12", sleep=0)
    st_(A, 7)
    A("s_mov_b64 exec, 0xff")
    for w in range(4):
        A("ds_read_b128 %s, v19 offset:%d" % (v(20 + 4 * w, 4), 128 * w))
    A("s_waitcnt lgkmcnt(0)")
    for k in range(4):
        A("v_add_f32 %s, %s, %s" % (v(20 + k), v(20 + k), v(24 + k)))
        A("v_add_f32 %s, %s, %s" % (v(28 + k), v(28 + k), v(32 + k)))
    for k in range(4):
        A("v_add_f32 %s, %s, %s" % (v(20 + k), v(20 + k), v(28 + k)))
    if FAST:
        for k in range(4):
            A("v_fma_f32 %s, %s, v45, %s" % (v(20 + k), v(20 + k), v(36 + k)))
        A.nop(1)
    else:
        A.nop(1)
        round_pair(A, 20, 21, 24, 40); round_pair(A, 22, 23, 25, 40)
        for k in range(4):
            A("v_mul_f32 %s, %s, v45" % (v(20 + k), v(20 + k)))
        A.nop(1)
        round_pair(A, 20, 21, 24, 40); round_pair(A, 22, 23, 25, 40)
        for k in range(4):
            A("v_add_f32 %s, %s, %s" % (v(20 + k), v(20 + k), v(40 + k)))
        A.nop(1)
        round_pair(A, 20, 21, 24, 40); round_pair(A, 22, 23, 25, 40)
        for k in range(4):
            A("v_add_f32 %s, %s, %s" % (v(20 + k), v(20 + k), v(36 + k)))
        A.nop(1)
    A("v_cvt_pk_bf16_f32 v24, v20, v21")
    A("v_cvt_pk_bf16_f32 v25, v22, v23")
    A("buffer_store_dwordx2 v[24:25], v44, s[20:23], 0 offen")
    A("s_mov_b64 exec, -1")
    A.label(Lend)
    st_(A, 8, end=True)
    dbg_time(A, 2)
    if os.environ.get("CALD"):
        L = A.newlabel("cal")
        A.label(L)
        A("s_memrealtime s[96:97]")
        A("s_waitcnt lgkmcnt(0)")
        A("s_sub_u32 s96, s96, s100")
        A("s_cmp_lt_u32 s96, %d" % int(os.environ["CALD"]))
        A("s_cbranch_scc1 %s" % L)
    A("s_endpgm")

def gen_conv_early(A, B, name):
    A("s_and_b32 s43, s42, 3")
    A("s_lshl_b32 s44, s41, 2")
    A("s_add_u32 s44, s44, s43")
    A("s_mul_i32 s45, s43, %d" % CH_LDS)
    Lm = B.newlabel("cm"); Lh = B.newlabel("ch"); Lj = B.newlabel("cj"); LrM = B.newlabel("crM")
    A("s_lshr_b32 s60, s41, 4")
    A("s_and_b32 s61, s41, 15")
    A("s_cmp_ge_u32 s42, 4")
    A("s_cbranch_scc1 %s" % Lh)
    A("s_setprio 2")
    gen_kv_issue(A)
    A("s_branch %s" % LrM)
    B.label(LrM)
    post_issue(B, name)
    dbg_time(B, 0)
    st_(B, 11)
    B("v_mov_b32 v200, 0"); B("v_mov_b32 v201, 0")
    gen_kv_addr(B)
    gen_kv_addr2(B)
    finish_tag(B)
    flags_barrier(B)
    B("s_branch %s" % Lj)
    B.label(Lh)
    post_kernarg(B)
    post_issue(B, name)
    icache_prefetch(B, name)
    B("v_mov_b32 v200, 0"); B("v_mov_b32 v201, 0")
    gen_kv_addr(B)
    gen_kv_addr2(B)
    finish_tag(B)
    B.label(Lj)
    gen_kv_compute(B)
    publish_alive(B)
    B("s_barrier")
    B("s_cmp_lt_u32 s42, 4")
    B("s_cbranch_scc1 %s" % Lm)
    h_early_loads(B)
    gen_H(B)
    B.label(Lm)
    gen_M(B)

def icache_prefetch(A, name):
    if os.environ.get("NOICPF"):
        return
    Lc = A.newlabel("noic")
    A("s_cmp_lg_u32 s42, 7")
    A("s_cbranch_scc1 %s" % Lc)
    A("s_getpc_b64 s[96:97]")
    A("s_and_b32 s96, s96, 0xffff0000")
    A.lines.pop()
    A("s_sub_u32 s96, s96, L_pc_%s-%s" % (Lc, name))
    A.lines.insert(len(A.lines) - 1, "L_pc_%s:" % Lc)
    A("s_subb_u32 s97, s97, 0")
    A("s_and_b32 s97, s97, 0xffff")
    A("s_mov_b32 s98, L_code_end-%s" % name)
    A("s_mov_b32 s99, 0x00020000")
    A("v_and_b32 v243, 63, v0")
    A("v_lshlrev_b32 v243, 4, v243")
    A("s_lshr_b32 s95, s2, 3") if False else None
    A("s_lshr_b32 s13, s2, 3")
    A("s_sub_u32 s13, s13, 14")
    A("s_lshl_b32 s13, s13, 10")
    A("buffer_load_dwordx4 v[244:247], v243, s[96:99], s13 offen")
    A("s_add_u32 s13, s13, 18432")
    A("buffer_load_dwordx4 v[244:247], v243, s[96:99], s13 offen")
    A.label(Lc)

def finish_tag(A):
    A("s_waitcnt lgkmcnt(0)")
    A("s_mul_i32 s%d, s%d, 0x9E3779B1" % (TAG, TAG))
    A("s_add_u32 s%d, s%d, 0x7F4A7C15" % (TAG, TAG))

def flags_barrier(A, alive=False):
    A("v_mov_b32 v36, 0")
    A("v_mov_b32 v37, %d" % FLAGS)
    A("v_mov_b32 v38, 0"); A("v_mov_b32 v39, 0"); A("v_mov_b32 v40, 0"); A("v_mov_b32 v41, 0")
    A("ds_write_b128 v37, v[38:41]")
    A("ds_write_b128 v37, v[38:41] offset:16")
    A("s_waitcnt lgkmcnt(0)")

def publish_alive(A):
    Ln = A.newlabel("noalive")
    A("s_cmp_lg_u32 s42, 0")
    A("s_cbranch_scc1 %s" % Ln)
    A("s_lshl_b32 s63, s41, 2")
    A("s_add_u32 s63, s63, %d" % F_ALIVE)
    A("v_mov_b32 v37, s%d" % TAG)
    A("v_mov_b32 v36, 0")
    A("s_mov_b64 exec, 1")
    A("buffer_store_dword v37, v36, s[36:39], s63 offen sc1")
    A("s_mov_b64 exec, -1")
    A.label(Ln)


BITONIC8 = [(0,4),(1,5),(2,6),(3,7),(0,2),(1,3),(4,6),(5,7),(0,1),(2,3),(4,5),(6,7)]
def merge8(A, a, b, out, spare, dpp=None):
    for i in range(7, -1, -1):
        if dpp:
            A("v_max_u32_dpp %s, %s, %s %s bank_mask:0xf" % (v(out[i]), v(b[7 - i]), v(a[i]), dpp))
        else:
            A("v_max_u32 %s, %s, %s" % (v(out[i]), v(a[i]), v(b[7 - i])))
    return sort_desc(A, out, spare, BITONIC8)

def top8_wave(A, regs, spare, other):
    cur, oth = list(regs), list(other)
    for ctl in ("quad_perm:[1,0,3,2] row_mask:0xf", "quad_perm:[2,3,0,1] row_mask:0xf", "row_half_mirror row_mask:0xf",
                "row_mirror row_mask:0xf", "row_bcast:15 row_mask:0xa", "row_bcast:31 row_mask:0xc"):
        A.nop(1)
        free = list(cur)
        new, spare2 = merge8(A, cur, cur, oth, spare, dpp=ctl)
        pool = [r for r in (free + oth + [spare]) if r not in new]
        spare = pool[0]
        oth = pool[1:9]
        cur = new
    return cur, spare, oth

L_CNT = 162368

def lds_signal(A, k, vaddr, vone):
    A("s_mov_b64 exec, 1")
    A("ds_add_u32 %s, %s offset:%d" % (vaddr, vone, 4 * k))
    A("s_mov_b64 exec, -1")

def lds_wait(A, k, n, vaddr, vtmp, sleep=0):
    L = A.newlabel("lw"); Ld = A.newlabel("lwd")
    A("s_mov_b32 s52, 0")
    A.label(L)
    A("ds_read_b32 %s, %s offset:%d" % (vtmp, vaddr, 4 * k))
    A("s_add_u32 s52, s52, 1")
    A("s_waitcnt lgkmcnt(0)")
    A("s_cmp_gt_u32 s52, %d" % (POLL_MAX * 8))
    A("v_readfirstlane_b32 s51, %s" % vtmp)
    A("s_cbranch_scc1 %s" % Ld)
    A("s_nop 1")
    A("s_cmp_ge_u32 s51, %d" % n)
    A("s_cbranch_scc1 %s" % Ld)
    if sleep:
        A("s_sleep %d" % sleep)
    A("s_branch %s" % L)
    A.label(Ld)

def gen_moe_wg(E, A, name, Lln):
    T = "s%d" % TAG
    Lt = A.newlabel("twave"); LrL = A.newlabel("mrL")
    E("s_cmp_ge_u32 s42, 4")
    E("s_cbranch_scc1 %s" % (Lln + "_T"))
    G, U, WD = 16, 88, 160
    E("v_and_b32 v1, 63, v0")
    E("v_lshrrev_b32 v5, 3, v1")
    E("v_mul_u32_u24 v5, 9216, v5")
    E("v_bfe_u32 v6, v1, 4, 1")
    E("s_and_b32 s43, s42, 1")
    E("s_lshl_b32 s43, s43, 1")
    E("v_or_b32 v6, s43, v6")
    E("v_lshlrev_b32 v6, 1, v6")
    E("v_and_b32 v7, 7, v1")
    E("v_xor_b32 v6, v6, v7")
    E("v_lshl_add_u32 v5, v6, 4, v5")
    E("s_lshl_b32 s43, s41, 7")
    E("s_mul_i32 s44, s42, 73728")
    E("s_add_u32 s43, s43, s44")
    E("s_lshl_b32 s44, s42, 10")
    E("v_mov_b32 v8, %d" % L_CNT)
    E("v_mov_b32 v9, 1")
    E("v_mov_b32 v232, 0"); E("v_mov_b32 v233, 0"); E("v_mov_b32 v234, 0"); E("v_mov_b32 v235, 0")
    E("ds_write_b128 v8, v[232:235]"); E("ds_write_b128 v8, v[232:235] offset:16")
    E("s_mov_b32 s66, 0")
    post_kernarg(E)
    srd(E, 48, PWG, D * F * 2)
    srd(E, 52, PWU, D * F * 2)
    B0AT = int(os.environ.get("B0AT", 2))
    L = E.newlabel("gul"); Lnb = E.newlabel("gunb")
    E.label(L)
    E("s_cmp_lg_u32 s66, %d" % B0AT)
    E("s_cbranch_scc1 %s" % Lnb)
    E("s_barrier")
    E.label(Lnb)
    E("s_mov_b32 m0, s44")
    E("s_add_u32 s45, s44, %d" % L_WU)
    E("buffer_load_dwordx4 v5, s[48:51], s43 offen lds" + NTS)
    E("s_mov_b32 m0, s45")
    E("s_add_u32 s44, s44, 4096")
    E("buffer_load_dwordx4 v5, s[52:55], s43 offen lds" + NTS)
    E("s_add_u32 s43, s43, %d" % (4 * 73728))
    E("s_add_u32 s66, s66, 1")
    E("s_cmp_lt_u32 s66, 18")
    E("s_cbranch_scc1 %s" % L)
    E("s_branch %s" % LrL)
    A.label(LrL)
    post_issue(A, name)
    srd(A, 56, PWD, D * F * 2)
    A("v_and_b32 v4, 255, v0")
    A("v_lshrrev_b32 v6, 3, v4")
    A("v_mul_u32_u24 v7, 1152, v6")
    A("v_and_b32 v12, 7, v4")
    A("v_lshl_add_u32 v236, v12, 4, v7")
    A("v_bfe_u32 v14, v6, 1, 1")
    A("v_bfe_u32 v11, v6, 3, 1")
    A("v_lshl_add_u32 v14, v11, 1, v14")
    A("v_lshlrev_b32 v14, 1, v14")
    A("v_xor_b32 v14, v14, v12")
    A("v_lshl_add_u32 v14, v14, 4, v7")
    A("v_add_u32 v15, 36864, v14")
    A("v_and_b32 v2, 15, v0")
    A("v_bfe_u32 v3, v0, 4, 2")
    A("v_lshrrev_b32 v10, 2, v2")
    A("v_lshl_add_u32 v11, v3, 3, v10")
    A("v_bfe_u32 v12, v2, 3, 1")
    A("v_and_b32 v13, 1, v3")
    A("v_lshl_add_u32 v12, v13, 1, v12")
    A("v_xor_b32 v12, s42, v12")
    A("v_and_b32 v13, 3, v2")
    A("v_lshlrev_b32 v13, 3, v13")
    A("v_lshl_add_u32 v12, v12, 5, v13")
    A("v_lshl_add_u32 v5, v11, 7, v12")
    A("v_add_u32 v6, 36864, v5")
    A("v_mul_u32_u24 v7, 1152, v11")
    A("v_add_u32 v7, v7, v12")
    A("v_add_u32 v10, 36864, v7")
    st_(A, 1)
    A("v_add_u32 v12, %d, v5" % L_WU)
    A("v_add_u32 v13, %d, v6" % L_WU)
    nst = 1 if (common.STAMPS and not LIGHT) else 0
    A("v_lshrrev_b32 v232, 3, v1")
    A("v_mul_u32_u24 v232, 1152, v232")
    A("v_bfe_u32 v233, v1, 4, 1")
    A("s_and_b32 s43, s42, 1")
    A("s_lshl_b32 s43, s43, 1")
    A("v_or_b32 v233, s43, v233")
    A("v_lshlrev_b32 v233, 1, v233")
    A("v_and_b32 v234, 7, v1")
    A("v_xor_b32 v233, v233, v234")
    A("v_lshl_add_u32 v236, v233, 4, v232")
    def rd6(ph):
        for kk in range(6 * ph, 6 * ph + 6):
            bg, bu, ko = ("v5", "v12", kk) if kk < 9 else ("v6", "v13", kk - 9)
            A("ds_read_b64_tr_b16 %s, %s offset:%d" % (v(G + 4 * kk, 2), bg, 4096 * ko))
            A("ds_read_b64_tr_b16 %s, %s offset:%d" % (v(G + 4 * kk + 2, 2), bg, 4096 * ko + 512))
            A("ds_read_b64_tr_b16 %s, %s offset:%d" % (v(U + 4 * kk, 2), bu, 4096 * ko))
            A("ds_read_b64_tr_b16 %s, %s offset:%d" % (v(U + 4 * kk + 2, 2), bu, 4096 * ko + 512))
    A("s_waitcnt vmcnt(%d)" % (24 + nst))
    lds_signal(A, 0, "v8", "v9")
    lds_wait(A, 0, 4, "v8", "v11")
    rd6(0)
    A("s_waitcnt vmcnt(%d)" % (12 + nst))
    lds_signal(A, 7, "v8", "v9")
    lds_wait(A, 7, 4, "v8", "v11")
    rd6(1)
    A("s_waitcnt lgkmcnt(0)")
    lds_signal(A, 1, "v8", "v9")
    lds_wait(A, 1, 4, "v8", "v11")
    for half in range(2):
        A("s_mul_i32 s43, s41, 73728")
        A("s_mul_i32 s44, s42, 9216")
        A("s_add_u32 s43, s43, s44")
        if half:
            A("s_add_u32 s43, s43, 36864")
            A("s_add_u32 s44, s44, %d" % L_WU)
        for sg in range(9):
            A("s_mov_b32 m0, s44")
            A("s_add_u32 s44, s44, 1024")
            A("buffer_load_dwordx4 v236, s[56:59], s43 offen offset:%d lds" % 0 + NTS)
            A("s_add_u32 s43, s43, 128")
    A("s_waitcnt vmcnt(18)")
    lds_signal(A, 6, "v8", "v9")
    lds_wait(A, 6, 4, "v8", "v11")
    st_(A, 2)
    dbg_time(A, 7)
    rd6(2)
    st_(A, 7)
    A("v_lshrrev_b32 v232, 2, v2")
    A("v_mul_u32_u24 v14, 9216, v3")
    A("v_lshl_add_u32 v14, v232, 7, v14")
    A("v_bfe_u32 v233, v2, 3, 1")
    A("v_and_b32 v234, 1, v3")
    A("v_lshl_add_u32 v233, v234, 1, v233")
    A("v_xor_b32 v233, s42, v233")
    A("v_lshl_add_u32 v14, v233, 5, v14")
    A("v_and_b32 v234, 3, v2")
    A("v_lshl_add_u32 v14, v234, 3, v14")
    A("v_add_u32 v15, %d, v14" % L_WU)
    A("v_and_b32 v12, 7, v2")
    A("v_mul_u32_u24 v5, %d, v12" % XSTR)
    A("v_lshl_add_u32 v5, v3, 4, v5")
    A("v_add_u32 v5, %d, v5" % L_X)
    A("v_mul_u32_u24 v6, %d, v2" % HSTR)
    A("v_lshl_add_u32 v6, v3, 3, v6")
    A("s_lshl_b32 s43, s42, 5")
    A("s_add_u32 s43, s43, %d" % L_HS)
    A("v_add_u32 v6, s43, v6")
    A("v_mul_u32_u24 v7, %d, v12" % HSTR)
    A("v_lshl_add_u32 v7, v3, 4, v7")
    A("v_add_u32 v7, %d, v7" % L_HS)
    A("v_mul_u32_u24 v10, 2304, v12")
    A("v_lshl_add_u32 v10, v3, 4, v10")
    A("v_bfe_u32 v13, v2, 3, 1")
    A("v_lshl_add_u32 v10, v13, 8, v10")
    A("v_cmp_eq_u32 s[56:57], 1, v13")
    A("s_mul_i32 s43, s41, 18432")
    A("s_lshl_b32 s44, s42, 6")
    A("s_add_u32 s43, s43, s44")
    A("s_add_u32 s43, s43, %d" % F_PARTG)
    A("v_mov_b32 v13, %d" % L_TAG)
    for i in range(8):
        A("v_mov_b32 %s, 0" % v(232 + i))
    A("s_waitcnt lgkmcnt(0)")
    LW = A.newlabel("Wb"); LG = A.newlabel("Gb"); LD = A.newlabel("Db")
    A("s_mov_b32 s14, 0"); A("s_mov_b32 s15, 0")
    A("ds_read_b32 v11, v8 offset:16")
    A("s_waitcnt lgkmcnt(0)")
    A("v_readfirstlane_b32 s51, v11")
    A("s_nop 3")
    A("s_cmp_ge_u32 s51, 4")
    A("s_cbranch_scc1 %s" % LG)
    A.label(LW)
    A("s_waitcnt vmcnt(0)")
    lds_signal(A, 2, "v8", "v9")
    lds_wait(A, 2, 4, "v8", "v11")
    for k in range(9):
        r = WD + 8 * k
        A("ds_read_b64_tr_b16 %s, v14 offset:%d" % (v(r, 2), 1024 * k))
        A("ds_read_b64_tr_b16 %s, v14 offset:%d" % (v(r + 2, 2), 1024 * k + 512))
        A("ds_read_b64_tr_b16 %s, v15 offset:%d" % (v(r + 4, 2), 1024 * k))
        A("ds_read_b64_tr_b16 %s, v15 offset:%d" % (v(r + 6, 2), 1024 * k + 512))
    A("s_waitcnt lgkmcnt(0)")
    A("s_mov_b32 s14, 1")
    st_(A, 3)
    dbg_time(A, 12)
    A("s_cmp_eq_u32 s15, 1")
    A("s_cbranch_scc1 %s" % LD)
    A.label(LG)
    lds_wait(A, 4, 4, "v8", "v11")
    st_(A, 4)
    A("ds_read_b32 v12, v13")
    XR = 240
    for kk in range(3):
        A("ds_read_b128 %s, v5 offset:%d" % (v(XR + 4 * kk, 4), 64 * kk))
    for kk in range(18):
        if kk + 3 < 18:
            A("ds_read_b128 %s, v5 offset:%d" % (v(XR + 4 * ((kk + 3) % 4), 4), 64 * (kk + 3)))
        A("s_waitcnt lgkmcnt(%d)" % min(3, 17 - kk))
        x = v(XR + 4 * (kk % 4), 4)
        A("v_mfma_f32_16x16x32_bf16 v[232:235], %s, %s, v[232:235]" % (v(G + 4 * kk, 4), x))
        A("v_mfma_f32_16x16x32_bf16 v[236:239], %s, %s, v[236:239]" % (v(U + 4 * kk, 4), x))
    A("v_readfirstlane_b32 %s, v12" % T)
    A.nop(6)
    if FAST:
        for i in range(4):
            A("v_mul_f32 %s, 0xbfb8aa3b, %s" % (v(20 + i), v(232 + i)))
        for i in range(4):
            A("v_exp_f32 %s, %s" % (v(20 + i), v(20 + i)))
        for i in range(4):
            A("v_mul_f32 %s, %s, %s" % (v(232 + i), v(232 + i), v(236 + i)))
        for i in range(4):
            A("v_add_f32 %s, 1.0, %s" % (v(20 + i), v(20 + i)))
        for i in range(4):
            A("v_rcp_f32 %s, %s" % (v(20 + i), v(20 + i)))
        A.nop(1)
        for i in range(4):
            A("v_mul_f32 %s, %s, %s" % (v(232 + i), v(232 + i), v(20 + i)))
        A.nop(1)
    else:
        round_pair(A, 232, 233, 16, 40); round_pair(A, 234, 235, 17, 40)
        for i in range(4):
            A("v_mul_f32 %s, 0xbfb8aa3b, %s" % (v(20 + i), v(232 + i)))
        for i in range(4):
            A("v_exp_f32 %s, %s" % (v(20 + i), v(20 + i)))
        round_pair(A, 236, 237, 16, 40); round_pair(A, 238, 239, 17, 40)
        for i in range(4):
            A("v_add_f32 %s, 1.0, %s" % (v(20 + i), v(20 + i)))
        for i in range(4):
            A("v_rcp_f32 %s, %s" % (v(20 + i), v(20 + i)))
        A.nop(1)
        for i in range(4):
            A("v_mul_f32 %s, %s, %s" % (v(232 + i), v(232 + i), v(20 + i)))
        A.nop(1)
        round_pair(A, 232, 233, 16, 40); round_pair(A, 234, 235, 17, 40)
        for i in range(4):
            A("v_mul_f32 %s, %s, %s" % (v(232 + i), v(232 + i), v(236 + i)))
        A.nop(1)
    A("v_cvt_pk_bf16_f32 v16, v232, v233")
    A("v_cvt_pk_bf16_f32 v17, v234, v235")
    A("v_cmp_gt_u32 vcc, 8, v2")
    A("s_and_saveexec_b64 s[44:45], vcc")
    A("ds_write_b64 v6, v[16:17]")
    A("s_mov_b64 exec, s[44:45]")
    A("s_mov_b32 s58, 0xffffff00")
    A("s_movk_i32 s59, 0x80")
    A("s_waitcnt lgkmcnt(0)")
    lds_signal(A, 5, "v8", "v9")
    A("s_mov_b32 s15, 1")
    A("s_cmp_eq_u32 s14, 0")
    A("s_cbranch_scc1 %s" % LW)
    A.label(LD)
    lds_wait(A, 5, 4, "v8", "v11")
    st_(A, 5)
    A("ds_read_b128 v[16:19], v7")
    A("ds_read_b128 v[20:23], v7 offset:64")
    A("s_waitcnt lgkmcnt(0)")
    AC = 88
    for k in range(9):
        r = WD + 8 * k
        A("v_mfma_f32_16x16x32_bf16 %s, %s, v[16:19], 0" % (v(AC + 4 * k, 4), v(r, 4)))
    for k in range(9):
        r = WD + 8 * k
        A("v_mfma_f32_16x16x32_bf16 %s, %s, v[20:23], %s" % (v(AC + 4 * k, 4), v(r + 4, 4), v(AC + 4 * k, 4)))
    A.nop(4)
    for kp in range(5):
        k = 2 * kp
        ac, ac2 = AC + 4 * k, AC + 4 * min(k + 1, 8)
        o = 24 + 8 * kp
        for i in range(4):
            A("v_cndmask_b32 %s, %s, %s, s[56:57]" % (v(o + i), v(ac + i), v(ac2 + i)))
        for i in range(4):
            A("v_add_u32 %s, s59, %s" % (v(o + i), v(o + i)))
        A("v_lshrrev_b32 %s, 24, %s" % (v(o + 4), v(o + 3)))
        A("v_lshrrev_b32 %s, 16, %s" % (v(o + 5), v(o + 3)))
        A("v_lshrrev_b32 %s, 8, %s" % (v(o + 6), v(o + 3)))
        for i in range(3):
            A("v_bfi_b32 %s, s58, %s, %s" % (v(o + 4 + i), v(o + i), v(o + 4 + i)))
        A("v_xor_b32 %s, %s, %s" % (v(o + 7), v(o + 4), v(o + 5)))
        A("v_xor_b32 %s, %s, %s" % (v(o + 7), v(o + 7), v(o + 6)))
        A("v_xor_b32 %s, %s, %s" % (v(o + 7), T, v(o + 7)))
        if kp == 4:
            A("s_andn2_b64 exec, exec, s[56:57]")
        A("buffer_store_dwordx4 %s, v10, s[36:39], s43 offen offset:%d sc1" % (v(o + 4, 4), 512 * kp))
    A("s_mov_b64 exec, -1")
    st_(A, 6, end=True)
    dbg_time(A, 3)
    A("s_endpgm")
    A.label(Lln + "_Trest")
    post_issue(A, name)
    st_(A, 11)
    A("s_barrier")
    Q, WR, X = 64, 84, 104
    finish_tag(A)
    gen_ln_compute(A, Q, WR, X)
    A("s_setprio %d" % int(os.environ.get("TPRIO", 1)))
    srd(A, 16, PQ, S * ROWB)
    A("v_and_b32 v1, 63, v0")
    A("v_and_b32 v4, 255, v0")
    A("v_mov_b32 v8, %d" % L_CNT)
    A("v_mov_b32 v9, 1")
    A("v_lshlrev_b32 v15, 2, v1")
    A("v_lshlrev_b32 v16, 4, v1")
    A("s_and_b32 s43, s42, 3")
    A("s_lshl_b32 s43, s43, 12")
    A("v_add_u32 v16, s43, v16")
    def key_loads():
        A("s_movk_i32 s43, %d" % F_KEYG)
        for i in range(4):
            A("buffer_load_dwordx4 %s, v16, s[36:39], s43 offen offset:%d sc1" % (v(40 + 4 * i, 4), 1024 * i))
    masked_poll(A, "key", key_loads, list(range(41, 56, 2)), int(os.environ.get("KEYSLEEP", 8)), int(os.environ.get("KEYPRE", 70)))
    A("s_setprio 3")
    st_(A, 3)
    dbg_time(A, 6)
    regs, sp = sort_desc(A, range(40, 56, 2), 41, SORT8)
    SK = 60
    free = [r for r in range(40, 57) if r not in regs and r != sp]
    cur, sp, oth = top8_wave(A, regs, sp, free[:8])
    for i in range(8):
        A("v_mov_b32 %s, %s" % (v(64 + i), v(cur[i])))
    A("s_and_b32 s43, s42, 3")
    A("s_lshl_b32 s43, s43, 5")
    A("s_add_u32 s43, s43, %d" % L_CAND)
    A("v_mov_b32 v16, s43")
    A("v_mov_b32 v31, %s" % T)
    A("v_mov_b32 v17, %d" % L_TAG)
    A("s_mov_b32 exec_lo, 0")
    A("s_mov_b32 exec_hi, 0x80000000")
    A("ds_write_b128 v16, v[64:67]")
    A("ds_write_b128 v16, v[68:71] offset:16")
    A("ds_write_b32 v17, v31")
    A("s_mov_b64 exec, -1")
    A("s_waitcnt lgkmcnt(0)")
    lds_signal(A, 3, "v8", "v9")
    lds_wait(A, 3, 4, "v8", "v11")
    A("v_mov_b32 v16, %d" % L_CAND)
    for i in range(8):
        A("ds_read_b128 %s, v16 offset:%d" % (v(64 + 4 * i, 4), 16 * i))
    A("s_waitcnt lgkmcnt(4)")
    c01, sp1 = merge8(A, list(range(64, 72)), list(range(72, 80)), list(range(40, 48)), 56)
    A("s_waitcnt lgkmcnt(0)")
    c23, sp2 = merge8(A, list(range(80, 88)), list(range(88, 96)), list(range(48, 56)), 57)
    for i in range(8):
        A("v_max_u32 %s, %s, %s" % (v(64 + i), v(c01[i]), v(c23[7 - i])))
    for i in range(8):
        A("v_readfirstlane_b32 %s, %s" % (s(SK + i), v(64 + i)))
    A.nop(3)
    st_(A, 5)
    A("s_and_b32 s45, s42, 3")
    A("s_mov_b32 s43, s60"); A("s_mov_b32 s44, s61")
    for w in range(1, 4):
        A("s_cmp_eq_u32 s45, %d" % w)
        A("s_cselect_b32 s43, %s, s43" % s(SK + 2 * w))
        A("s_cselect_b32 s44, %s, s44" % s(SK + 2 * w + 1))
    A("v_mov_b32 v16, s43"); A("v_mov_b32 v17, s44")
    A("v_cmp_lt_u32 vcc, 31, v1")
    A.nop(2)
    A("v_cndmask_b32 v16, v16, v17, vcc")
    A("v_and_b32 v16, 0xffff, v16")
    A("v_sub_u32 v16, 2047, v16")
    A("v_and_b32 v17, 31, v1")
    A("s_movk_i32 s43, 1152")
    A("v_mul_lo_u32 v18, v16, s43")
    A("v_lshl_add_u32 v18, v17, 2, v18")
    A("v_lshlrev_b32 v19, 3, v16")
    for i in range(9):
        A("buffer_load_dword %s, v18, s[16:19], 0 offen offset:%d" % (v(20 + i), 128 * i))
    def rg_loads():
        A("s_mov_b32 s43, %d" % F_ROWG)
        A("buffer_load_dwordx2 v[32:33], v19, s[36:39], s43 offen sc1")
    Lns = A.newlabel("nosel")
    A("s_cmp_lg_u32 s41, 0")
    A("s_cbranch_scc1 %s" % Lns)
    A("s_cmp_lg_u32 s42, 4")
    A("s_cbranch_scc1 %s" % Lns)
    for i in range(8):
        A("v_writelane_b32 v30, %s, %d" % (s(SK + i), i))
    A("v_lshlrev_b32 v36, 3, v1")
    A("s_movk_i32 s43, %d" % F_SELG)
    A("s_mov_b64 exec, 0xff")
    A("buffer_store_dwordx2 v[30:31], v36, s[36:39], s43 offen sc1")
    A("s_mov_b64 exec, -1")
    A.label(Lns)
    masked_poll(A, "rg", rg_loads, [33], 2, 0)
    if FAST:
        A("v_and_b32 v64, s40, v32"); A("v_lshlrev_b32 v66, 16, v32")
        A("v_rcp_f32 v64, v64")
        A("v_lshrrev_b32 v38, 5, v4")
        A("v_mul_u32_u24 v38, %d, v38" % XSTR)
        A("v_mul_f32_e64 v66, -v66, v64")
        A("v_mov_b32 v65, v64")
        A("v_lshl_add_u32 v38, v17, 2, v38")
        A("v_mov_b32 v67, v66")
        A("v_add_u32 v38, %d, v38" % L_X)
        st_(A, 4)
        for i in range(9):
            unpack_pair(A, 40 + 2 * i, 41 + 2 * i, 20 + i, 40)
        for i in range(9):
            A("v_pk_fma_f32 %s, %s, v[64:65], v[66:67]" % (v(40 + 2 * i, 2), v(40 + 2 * i, 2)))
        for i in range(9):
            A("v_cvt_pk_bf16_f32 %s, %s, %s" % (v(70 + i), v(40 + 2 * i), v(41 + 2 * i)))
        for i in range(9):
            A("ds_write_b32 v38, %s offset:%d" % (v(70 + i), 128 * i))
    else:
        stats_from_msd(A, 32, 64, 70)
        A("v_lshrrev_b32 v38, 5, v4")
        A("v_mul_u32_u24 v38, %d, v38" % XSTR)
        A("v_lshl_add_u32 v38, v17, 2, v38")
        A("v_add_u32 v38, %d, v38" % L_X)
        st_(A, 4)
        for i0 in range(0, 9, 3):
            streams = []
            for i in range(i0, i0 + 3):
                bs = 40 + 8 * (i % 3)
                ops = norm_ops(bs, bs + 2, bs + 4, 20 + i, 64)
                ops.append("v_cvt_pk_bf16_f32 %s, %s, %s" % (v(bs + 6), v(bs + 2), v(bs + 3)))
                ops.append("ds_write_b32 v38, %s offset:%d" % (v(bs + 6), 128 * i))
                streams.append(ops)
            interleave(A, streams)
    A("s_waitcnt lgkmcnt(0)")
    lds_signal(A, 4, "v8", "v9")
    st_(A, 6)
    dbg_time(A, 4)
    Le = A.newlabel("noep")
    A("s_cmp_lg_u32 s41, 0")
    A("s_cbranch_scc1 %s" % Le)
    A("s_cmp_lg_u32 s42, 4")
    A("s_cbranch_scc1 %s" % Le)
    A("s_setprio 0")
    A("v_lshlrev_b32 v16, 2, v1")
    A("v_min_u32 v17, 15, v1")
    A("v_lshlrev_b32 v17, 2, v17")
    def al_loads():
        A("s_movk_i32 s43, %d" % F_ALIVE)
        A("buffer_load_dword v20, v16, s[36:39], s43 offen sc1")
        A("buffer_load_dword v21, v16, s[36:39], s43 offen offset:256 sc1")
        A("buffer_load_dword v22, v17, s[36:39], s43 offen offset:512 sc1")
    masked_poll(A, "al", al_loads, [20, 21, 22], 16, 0)
    A("v_mov_b32 v20, %s" % T)
    A("v_mov_b32 v21, %d" % F_EPOCH)
    A("s_mov_b64 exec, 1")
    A("buffer_store_dword v20, v21, s[36:39], 0 offen sc1")
    A("s_mov_b64 exec, -1")
    A.label(Le)
    A("s_endpgm")

def gen_spare_rest(A, name, Lln):
    A.label(Lln + "_Srest")
    post_issue(A, name)
    st_(A, 11)
    finish_tag(A)
    gen_ln_compute(A, 64, 84, 104)
    A("s_endpgm")

def gen_kernel(A, name):
    B = Asm(); B.uid = 100000
    kernel_header(A, name)
    Ldone = A.newlabel("done"); Lmoe = A.newlabel("moe"); Lsp = A.newlabel("spare"); Lln = A.newlabel("ln")
    if os.environ.get("CALD"):
        A("s_memrealtime s[100:101]")
    A("s_cmp_ge_u32 s2, 256")
    A("s_cbranch_scc1 %s" % Ldone)
    A("s_load_dwordx16 s[72:87], s[0:1], 0")
    A("s_load_dwordx8 s[88:95], s[0:1], %d" % KA_WG)
    A("s_load_dwordx4 s[68:71], s[0:1], %d" % KA_DBG)
    A("v_lshrrev_b32 v1, 6, v0")
    A("s_and_b32 s30, s2, 7")
    A("s_lshr_b32 s31, s2, 3")
    A("v_readfirstlane_b32 s42, v1")
    A("s_mov_b32 s40, 0xffff0000")
    c0, m0, p0 = 14, 5, 0
    A("s_sub_u32 s41, s31, %d" % m0)
    A("s_cmp_lt_u32 s41, 9")
    A("s_cbranch_scc1 %s" % Lmoe)
    A("s_cmp_lt_u32 s31, 5")
    A("s_cbranch_scc1 %s" % Lsp)
    A("s_sub_u32 s31, s31, %d" % c0)
    A("s_mul_i32 s41, s30, 18")
    A("s_add_u32 s41, s41, s31")
    gen_conv_early(A, B, name)
    A.label(Lmoe)
    A("s_mul_i32 s31, s30, 9")
    A("s_add_u32 s41, s41, s31")
    gen_moe_wg(A, B, name, Lln)
    A.label(Lln + "_T")
    A("s_setprio 3")
    A("s_lshl_b32 s60, s41, 2")
    A("s_add_u32 s60, s60, s42")
    A("s_sub_u32 s60, s60, 4")
    A("s_mov_b32 s13, 0")
    A("s_branch %s" % Lln)
    A.label(Lsp)
    A("s_mul_i32 s41, s30, 5")
    A("s_add_u32 s41, s41, s31")
    A("s_lshl_b32 s60, s41, 3")
    A("s_add_u32 s60, s60, s42")
    A("s_add_u32 s60, s60, 288")
    A("s_mov_b32 s13, 1")
    A("s_cmp_ge_u32 s60, 512")
    A("s_cbranch_scc1 %s" % Ldone)
    A.label(Lln)
    gen_ln(A)
    A("s_cmp_eq_u32 s13, 0")
    A("s_cbranch_scc1 %s" % (Lln + "_Trest"))
    A("s_branch %s" % (Lln + "_Srest"))
    A.label(Ldone)
    A("s_endpgm")
    gen_spare_rest(B, name, Lln)
    A.lines += B.lines
    A.label("L_code_end")
    return kernel_desc(name, 256, 102, 256)
```

```python
from common import *
import common, os
from collections import deque
from conv2 import CS, CH_LDS, H_OFF, POLL_MAX, conv_schedule
from moe2 import wave_max_u32, L_WG, L_WU, L_X, L_HS, L_U, L_CAND, XSTR, HSTR
from moe3 import SORT8, sort_desc, rounds

F_EPOCH = 0x0
F_SELG = 0x100
F_ALIVE = 0x1000
F_KEYG = 0x2000
F_ROWG = 0x8000
F_LNF = 0x6000
F_URC = 0x100000 + 0x300000
F_UR = 0x20000
F_PARTG = 0x500000
F_XT = 0x800000
F_XC = 0x480000
L_TAG = 162304

PQ, PK, PV, PSHK, PSSMK, PSSMD, PWR, PWG, PWU, PWD, POUT, PWS = 72, 74, 76, 78, 80, 82, 86, 88, 90, 92, 94, 70
TAG = 46
FAST = os.environ.get('FAST', '1') != '0'
QNT = '' if os.environ.get('QDEF') else ' nt'
NTS = '' if os.environ.get('NONT') else ' nt'
LIGHT = os.environ.get("STAMPS") == "2"
def st_(A, n, end=False):
    if LIGHT:
        if n != 0 and not end:
            return
        n = 15 if end else 0
    stamp(A, n, 36, 3, vt=254, st=96)

MISC = 4 * CH_LDS
FLAGS = MISC
SIDE = MISC + 64
RED = SIDE + 256
YOFF = H_OFF
W1, W0 = 20, 28
E_, G_, F_ = 36, 44, 50
UREG = 56
RING, NR, ACC, BS = 64, 6, 88, 120

DBGT = bool(os.environ.get("DBGT"))
def dbg_time(A, slot, invert=False):
    if not DBGT:
        return
    L = A.newlabel("dbgs")
    A("s_and_b32 s100, s42, 3")
    A("s_cmp_lg_u32 s100, 0")
    A("s_cbranch_scc1 %s" % L)
    A("s_cmp_eq_u32 s2, %d" % (8 if os.environ.get("ORD", "B") == "A" else 120))
    A("s_cselect_b32 s100, 1, 0")
    A("s_cmp_eq_u32 s2, %d" % (152 if os.environ.get("ORD", "B") == "A" else int(os.environ.get("DBGMOE", 48))))
    A("s_cselect_b32 s100, 1, s100")
    A("s_cmp_eq_u32 s100, 0")
    A("s_cbranch_scc1 %s" % L)
    A("s_memrealtime s[96:97]")
    A("s_waitcnt lgkmcnt(0)")
    A("v_mov_b32 v252, s96")
    A("v_mov_b32 v253, %d" % (4 * slot))
    A("s_mov_b64 s[98:99], exec")
    A("s_mov_b64 exec, 1")
    A("global_store_dword v253, v252, s[68:69]")
    A("s_mov_b64 exec, s[98:99]")
    A.label(L)

DRY = os.environ.get("DRY", "0") != "0"
class TwoPass:
    def __init__(self, A, name):
        self.A = A
        self.L = A.newlabel(name + "b"); self.Lo = A.newlabel(name + "o"); self.Lt = A.newlabel(name + "t")
    def begin(self, transition):
        A = self.A
        self.transition = transition
        if DRY:
            A("s_mov_b32 s12, 0")
            A("s_mov_b64 exec, 0")
        else:
            transition()
        A.label(self.L)
    def guard_begin(self):
        if not DRY: return None
        l = self.A.newlabel("gd")
        self.A("s_cmp_eq_u32 s12, 0")
        self.A("s_cbranch_scc1 %s" % l)
        return l
    def guard_end(self, l):
        if l: self.A.label(l)
    def end(self):
        A = self.A
        if DRY:
            A("s_cmp_eq_u32 s12, 1")
            A("s_cbranch_scc1 %s" % self.Lo)
            A("s_mov_b32 s12, 1")
            A("s_mov_b64 exec, -1")
            self.transition()
            A("s_branch %s" % self.L)
            A.label(self.Lo)

def poll_head(A, cnt="s52"):
    A("s_mov_b32 %s, 0" % cnt)

def poll_tail(A, Lloop, Ldone, cnt="s52", sleep=1):
    A("s_add_u32 %s, %s, 1" % (cnt, cnt))
    A("s_cmp_gt_u32 %s, %d" % (cnt, POLL_MAX))
    A("s_cbranch_scc1 %s" % Ldone)
    A("s_sleep %d" % sleep)
    A("s_branch %s" % Lloop)

def masked_poll(A, name, emit_loads, tagregs, sleep, pre_sleep=0, full_exec="-1"):
    T = "s%d" % TAG
    Lp = A.newlabel(name + "p"); Ld = A.newlabel(name + "ok")
    if pre_sleep:
        A("s_sleep %d" % pre_sleep)
    A("s_mov_b32 s52, 0")
    A.label(Lp)
    emit_loads()
    A("s_waitcnt vmcnt(0)")
    A("v_cmp_eq_u32 vcc, %s, %s" % (T, v(tagregs[0])))
    for r in tagregs[1:]:
        A("v_cmp_eq_u32 s[54:55], %s, %s" % (T, v(r)))
        A("s_and_b64 vcc, vcc, s[54:55]")
    A("s_andn2_b64 exec, exec, vcc")
    A("s_cbranch_scc0 %s" % Ld)
    A("s_add_u32 s52, s52, 1")
    A("s_cmp_gt_u32 s52, %d" % POLL_MAX)
    A("s_cbranch_scc1 %s" % Ld)
    A("s_sleep %d" % sleep)
    A("s_branch %s" % Lp)
    A.label(Ld)
    A("s_mov_b64 exec, %s" % full_exec)

def first_then_poll(A, name, emit_loads, tagregs, sleep, ex, first_cnt=0):
    T = "s%d" % TAG
    Lp = A.newlabel(name + "p"); Ld = A.newlabel(name + "ok")
    A("s_mov_b32 s52, 0")
    A("s_waitcnt vmcnt(%d)" % first_cnt)
    A.label(Lp)
    A("v_cmp_eq_u32 vcc, %s, %s" % (T, v(tagregs[0])))
    for r in tagregs[1:]:
        A("v_cmp_eq_u32 s[54:55], %s, %s" % (T, v(r)))
        A("s_and_b64 vcc, vcc, s[54:55]")
    A("s_andn2_b64 exec, exec, vcc")
    A("s_cbranch_scc0 %s" % Ld)
    A("s_add_u32 s52, s52, 1")
    A("s_cmp_gt_u32 s52, %d" % POLL_MAX)
    A("s_cbranch_scc1 %s" % Ld)
    A("s_sleep %d" % sleep)
    emit_loads()
    A("s_waitcnt vmcnt(0)")
    A("s_branch %s" % Lp)
    A.label(Ld)
    A("s_mov_b64 exec, -1")

def ln_hint_poll(A, vaddr, r0, sleep, pre):
    def loads():
        A("s_movk_i32 s51, %d" % F_LNF)
        A("buffer_load_dwordx4 %s, %s, s[36:39], s51 offen sc1" % (v(r0, 4), vaddr))
        A("buffer_load_dwordx4 %s, %s, s[36:39], s51 offen offset:1024 sc1" % (v(r0 + 4, 4), vaddr))
    masked_poll(A, "lnh", loads, list(range(r0, r0 + 8)), sleep, pre)

def stats_from_msd(A, g, st, t):
    A("v_and_b32 %s, s40, %s" % (v(st + 4), v(g)))
    A("v_lshlrev_b32 %s, 16, %s" % (v(st), v(g)))
    A("v_rcp_f32 %s, %s" % (v(st + 2), v(st + 4)))
    A("v_xor_b32 %s, 0x80000000, %s" % (v(st), v(st)))
    A("v_xor_b32 %s, 0x80000000, %s" % (v(st + 4), v(st + 4)))
    A("v_fma_f32 %s, %s, %s, 1.0" % (v(t), v(st + 4), v(st + 2)))
    A("v_mov_b32 %s, %s" % (v(st + 1), v(st)))
    A("v_fma_f32 %s, %s, %s, %s" % (v(st + 2), v(t), v(st + 2), v(st + 2)))
    A("v_mov_b32 %s, %s" % (v(st + 5), v(st + 4)))
    A("v_mov_b32 %s, %s" % (v(st + 3), v(st + 2)))

LK, LV, LQ, SG, SX, SGS = 0, 17408, 33792, 50176, 67584, 272

def row_xor_reduce(A, regs):
    for ctl in ("quad_perm:[1,0,3,2]", "quad_perm:[2,3,0,1]", "row_half_mirror", "row_mirror"):
        if len(regs) < 3:
            A.nop(3 - len(regs))
        for r in regs:
            A("v_xor_b32_dpp %s, %s, %s %s row_mask:0xf bank_mask:0xf" % (v(r), v(r), v(r), ctl))

def gen_kv_issue(A):
    srd(A, 48, PK, S * ROWB)
    srd(A, 52, PV, S * ROWB)
    A("v_and_b32 v1, 63, v0")
    A("v_lshrrev_b32 v4, 3, v1")
    A("v_mul_u32_u24 v4, 1152, v4")
    A("v_and_b32 v5, 7, v1")
    A("v_lshl_add_u32 v4, v5, 4, v4")
    A("s_mul_i32 s62, s61, %d" % (128 * 1152))
    A("s_lshl_b32 s63, s60, 7")
    A("s_add_u32 s62, s62, s63")
    A("s_mul_i32 s63, s42, 9216")
    A("s_add_u32 s62, s62, s63")
    A("s_sub_u32 s63, s62, 9216")
    A("s_lshl_b32 s64, s42, 10")
    srd(A, 16, PQ, S * ROWB)
    for i in range(4):
        A("s_mov_b32 m0, s64")
        A("s_add_u32 s65, s64, %d" % LV)
        A("buffer_load_dwordx4 v4, s[48:51], s63 offen lds" + NTS)
        A("s_mov_b32 m0, s65")
        A("s_add_u32 s65, s64, %d" % LQ)
        A("buffer_load_dwordx4 v4, s[52:55], s62 offen lds" + NTS)
        A("s_mov_b32 m0, s65")
        A("s_add_u32 s64, s64, 4096")
        A("buffer_load_dwordx4 v4, s[16:19], s62 offen lds" + NTS)
        A("s_add_u32 s63, s63, %d" % (32 * 1152))
        A("s_add_u32 s62, s62, %d" % (32 * 1152))
    Ln = A.newlabel("nok17")
    A("s_cmp_lg_u32 s42, 0")
    A("s_cbranch_scc1 %s" % Ln)
    A("s_mov_b32 m0, s64")
    A("s_nop 0")
    A("buffer_load_dwordx4 v4, s[48:51], s63 offen lds" + NTS)
    A.label(Ln)

def gen_kv_addr(A):
    srd(A, 56, PSHK, D * 8)
    A("v_and_b32 v2, 31, v0")
    A("s_lshl_b32 s63, s60, 9")
    A("v_lshl_add_u32 v29, v2, 4, s63")
    A("buffer_load_dwordx4 v[32:35], v29, s[56:59], 0 offen")

def gen_kv_addr2(A):
    A("v_lshrrev_b32 v3, 5, v0")
    A("v_lshlrev_b32 v6, 10, v3")
    A("v_lshl_add_u32 v6, v2, 2, v6")
    A("v_mul_u32_u24 v7, %d, v2" % (2 * SGS))
    A("v_sub_u32 v8, 15, v3")
    A("v_lshl_add_u32 v7, v8, 4, v7")
    A("v_add_u32 v7, %d, v7" % SG)
    A("v_bfe_u32 v10, v0, 4, 2")
    A("v_and_b32 v11, 15, v0")
    A("v_mul_u32_u24 v8, %d, v10" % SGS)
    A("v_lshl_add_u32 v8, v11, 4, v8")
    A("s_mul_i32 s63, s42, %d" % (8 * SGS))
    A("s_add_u32 s63, s63, %d" % SG)
    A("v_add_u32 v8, s63, v8")
    A("v_lshlrev_b32 v9, 12, v10")
    A("v_lshl_add_u32 v9, v11, 4, v9")
    A("s_lshl_b32 s63, s60, 6")
    A("s_lshl_b32 s64, s42, 3")
    A("s_add_u32 s63, s63, s64")
    A("s_lshl_b32 s65, s63, 12")
    A("s_lshl_b32 s64, s61, 8")
    A("s_sub_u32 s65, s65, s64")
    A("s_add_u32 s65, s65, %d" % (F_UR + 240 * 16))
    A("v_add_u32 v9, s65, v9")
    A("v_lshlrev_b32 v12, 7, v10")
    A("s_lshl_b32 s65, s63, 7")
    A("s_lshl_b32 s64, s61, 3")
    A("s_sub_u32 s65, s65, s64")
    A("s_add_u32 s65, s65, %d" % (F_URC + 120))
    A("v_add_u32 v12, s65, v12")
    A("v_cmp_eq_u32 s[66:67], 0, v11")
    A("v_mul_u32_u24 v13, %d, v2" % (2 * SGS))
    A("v_lshl_add_u32 v13, v3, 4, v13")
    A("v_add_u32 v13, %d, v13" % SX)
    A("v_lshlrev_b32 v48, 12, v10")
    A("v_lshl_add_u32 v48, v11, 4, v48")
    A("s_lshl_b32 s65, s63, 12")
    A("s_lshl_b32 s64, s61, 8")
    A("s_add_u32 s65, s65, s64")
    A("s_add_u32 s65, s65, %d" % F_XT)
    A("v_add_u32 v48, s65, v48")
    A("v_lshlrev_b32 v49, 7, v10")
    A("s_lshl_b32 s65, s63, 7")
    A("s_lshl_b32 s64, s61, 3")
    A("s_add_u32 s65, s65, s64")
    A("s_add_u32 s65, s65, %d" % F_XC)
    A("v_add_u32 v49, s65, v49")

def gen_kv_compute(A):
    def trans():
        A("s_waitcnt vmcnt(0)")
        A("s_barrier")
        st_(A, 1)
        dbg_time(A, 8)
    tp = TwoPass(A, "kv")
    tp.begin(trans)
    for i in range(11):
        A("ds_read_b32 %s, v6 offset:%d" % (v(14 + i), LK + (5 + i) * 128))
    for i in range(8):
        A("ds_read_b32 %s, v6 offset:%d" % (v(40 + i), LV + i * 128))
    for i in range(8):
        A("ds_read_b32 %s, v6 offset:%d" % (v(144 + i), LQ + i * 128))
    A("v_lshlrev_b32 v54, 16, v32"); A("v_lshlrev_b32 v55, 16, v34")
    A("v_and_b32 v56, s40, v32");    A("v_and_b32 v57, s40, v34")
    A("v_lshlrev_b32 v58, 16, v33"); A("v_lshlrev_b32 v59, 16, v35")
    A("v_and_b32 v60, s40, v33");    A("v_and_b32 v61, s40, v35")
    DOT = bool(os.environ.get("DOT2", "1") != "0")
    W, K, KV = 54, 62, 100
    A("s_mov_b32 s64, 0x05040100"); A("s_mov_b32 s65, 0x07060302")
    if DOT:
        A("v_and_b32 v62, 0xffff, v32"); A("v_lshlrev_b32 v63, 16, v34")
        A("v_lshrrev_b32 v64, 16, v32"); A("v_and_b32 v65, s40, v34")
        A("v_and_b32 v66, 0xffff, v33"); A("v_lshlrev_b32 v67, 16, v35")
        A("v_lshrrev_b32 v68, 16, v33"); A("v_and_b32 v69, s40, v35")
        A("v_mov_b32 v70, 0x3f803f80")
        A("v_mov_b32 v71, 0")
        A("s_waitcnt lgkmcnt(0)")
        for j in range(4):
            A("v_perm_b32 %s, %s, %s, s64" % (v(152 + j), v(144 + 2 * j + 1), v(144 + 2 * j)))
            A("v_perm_b32 %s, %s, %s, s65" % (v(156 + j), v(144 + 2 * j + 1), v(144 + 2 * j)))
        A("ds_write_b128 v13, v[152:155]")
        A("ds_write_b128 v13, v[156:159] offset:%d" % SGS)
        def ch_ops(i, c, t0):
            a_, b_, p_, q_ = t0, t0 + 1, t0 + 2, t0 + 3
            o = []
            d2 = lambda d, x, y, z: "v_dot2_f32_bf16 %s, %s, %s, %s" % (v(d), v(x), v(y), z)
            o.append(d2(a_, 14 + i + 0, 62 + 2 * 3 + c, "0"))
            o.append(d2(b_, 14 + i + 1, 62 + 2 * 2 + c, "0"))
            o.append(d2(q_, 14 + i + 2, 62 + 2 * 1 + c, "0"))
            o.append("v_cvt_pk_bf16_f32 %s, %s, %s" % (v(p_), v(a_), v(b_)))
            o.append(d2(b_, 14 + i + 3, 62 + 2 * 0 + c, "0"))
            o.append(d2(a_, p_, 70, "0"))
            o.append("s_nop 0")
            o.append("v_cvt_pk_bf16_f32 %s, %s, %s" % (v(p_), v(a_), v(q_)))
            o.append("s_nop 0")
            o.append(d2(a_, p_, 70, "0"))
            o.append("s_nop 0")
            o.append("v_cvt_pk_bf16_f32 %s, %s, %s" % (v(p_), v(a_), v(b_)))
            o.append("s_nop 0")
            o.append(d2(a_, p_, 70, "0"))
            o.append("s_nop 0")
            if c == 0:
                o.append("v_cvt_pk_bf16_f32 %s, %s, %s" % (v(p_), v(a_), v(71)))
            else:
                o.append("v_cvt_pk_bf16_f32 %s, %s, %s" % (v(p_), v(71), v(a_)))
            o.append("s_nop 0")
            o.append(d2(KV + 2 * i + c, p_, 40 + i, "0"))
            if FAST and os.environ.get('KVEXACT', '1') == '0':
                o = []
                o.append(d2(a_, 14 + i + 0, 62 + 2 * 3 + c, "0"))
                if c == 0:
                    o.append("v_lshlrev_b32 %s, 16, %s" % (v(b_), v(40 + i)))
                else:
                    o.append("v_and_b32 %s, s40, %s" % (v(b_), v(40 + i)))
                o.append(d2(a_, 14 + i + 1, 62 + 2 * 2 + c, v(a_)))
                o.append(d2(a_, 14 + i + 2, 62 + 2 * 1 + c, v(a_)))
                o.append(d2(a_, 14 + i + 3, 62 + 2 * 0 + c, v(a_)))
                o.append("v_mul_f32 %s, %s, %s" % (v(KV + 2 * i + c), v(a_), v(b_)))
            return [x for x in o if x != "s_nop 0"]
        for i in range(0, 8, 4):
            streams = []
            for ii in range(4):
                for c in range(2):
                    streams.append(ch_ops(i + ii, c, 72 + 4 * (2 * ii + c) if (2 * ii + c) < 7 else 132))
            interleave(A, streams)
        A.nop(3)
        for c in range(2):
            for j in range(4):
                A("v_cvt_pk_bf16_f32 %s, %s, %s" % (v(116 + 4 * c + j), v(KV + 2 * (7 - 2 * j) + c), v(KV + 2 * (6 - 2 * j) + c)))
    else:
        A("s_waitcnt lgkmcnt(15)")
        for i in range(11):
            unpack_pair(A, K + 2 * i, K + 2 * i + 1, 14 + i, 40)
        A("s_waitcnt lgkmcnt(0)")
        for j in range(4):
            A("v_perm_b32 %s, %s, %s, s64" % (v(152 + j), v(144 + 2 * j + 1), v(144 + 2 * j)))
            A("v_perm_b32 %s, %s, %s, s65" % (v(156 + j), v(144 + 2 * j + 1), v(144 + 2 * j)))
        A("ds_write_b128 v13, v[152:155]")
        A("ds_write_b128 v13, v[156:159] offset:%d" % SGS)
        def pr_(r):
            return "v[%d:%d]" % (r, r + 1)
        def row_ops(i, acc, tmp, t3):
            P = Asm()
            P("v_pk_mul_f32 %s, %s, %s" % (pr_(acc), pr_(K + 2 * (i + 0)), pr_(W + 6)))
            round_pair(P, acc, acc + 1, t3, 40)
            for t in range(1, 4):
                P("v_pk_mul_f32 %s, %s, %s" % (pr_(tmp), pr_(K + 2 * (i + t)), pr_(W + 2 * (3 - t))))
                round_pair(P, tmp, tmp + 1, t3, 40)
                P("v_pk_add_f32 %s, %s, %s" % (pr_(acc), pr_(acc), pr_(tmp)))
                round_pair(P, acc, acc + 1, t3, 40)
            unpack_pair(P, tmp, tmp + 1, 40 + i, 40)
            P("v_pk_mul_f32 %s, %s, %s" % (pr_(KV + 2 * i), pr_(acc), pr_(tmp)))
            return [l.strip() for l in P.lines]
        for i in range(0, 8, 4):
            interleave(A, [row_ops(i, 84, 86, 88), row_ops(i + 1, 90, 92, 94), row_ops(i + 2, 132, 134, 136), row_ops(i + 3, 138, 140, 142)])
        for c in range(2):
            for j in range(4):
                A("v_cvt_pk_bf16_f32 %s, %s, %s" % (v(116 + 4 * c + j), v(KV + 2 * (7 - 2 * j) + c), v(KV + 2 * (6 - 2 * j) + c)))
    A("ds_write_b128 v7, v[116:119]")
    A("ds_write_b128 v7, v[120:123] offset:%d" % SGS)
    A("s_waitcnt lgkmcnt(0)")
    tp.end()
    A("s_barrier")
    A("ds_read_b128 v[116:119], v8")
    A("ds_read_b128 v[120:123], v8 offset:%d" % (4 * SGS))
    A("s_movk_i32 s63, 16384")
    A("s_waitcnt lgkmcnt(1)")
    A("buffer_store_dwordx4 v[116:119], v9, s[36:39], 0 offen sc1")
    A("v_xor_b32 v124, v116, v117"); A("v_xor_b32 v126, v118, v119")
    A("s_waitcnt lgkmcnt(0)")
    A("buffer_store_dwordx4 v[120:123], v9, s[36:39], s63 offen sc1")
    A("v_xor_b32 v125, v120, v121"); A("v_xor_b32 v127, v122, v123")
    A("v_xor_b32 v124, v124, v126"); A("v_xor_b32 v125, v125, v127")
    row_xor_reduce(A, [124, 125])
    A("v_xor_b32 v128, s%d, v124" % TAG); A("v_xor_b32 v130, s%d, v125" % TAG)
    A("v_mov_b32 v129, s%d" % TAG); A("v_mov_b32 v131, s%d" % TAG)
    A("s_mov_b64 exec, s[66:67]")
    A("buffer_store_dwordx2 v[128:129], v12, s[36:39], 0 offen sc1")
    A("buffer_store_dwordx2 v[130:131], v12, s[36:39], 0 offen offset:512 sc1")
    A("s_mov_b64 exec, -1")
    A("ds_read_b128 v[116:119], v8 offset:%d" % (SX - SG))
    A("ds_read_b128 v[120:123], v8 offset:%d" % (SX - SG + 4 * SGS))
    A("s_waitcnt lgkmcnt(1)")
    A("buffer_store_dwordx4 v[116:119], v48, s[36:39], 0 offen sc1")
    A("v_xor_b32 v124, v116, v117"); A("v_xor_b32 v126, v118, v119")
    A("s_waitcnt lgkmcnt(0)")
    A("buffer_store_dwordx4 v[120:123], v48, s[36:39], s63 offen sc1")
    A("v_xor_b32 v125, v120, v121"); A("v_xor_b32 v127, v122, v123")
    A("v_xor_b32 v124, v124, v126"); A("v_xor_b32 v125, v125, v127")
    row_xor_reduce(A, [124, 125])
    A("v_xor_b32 v128, s%d, v124" % TAG); A("v_xor_b32 v130, s%d, v125" % TAG)
    A("s_mov_b64 exec, s[66:67]")
    A("buffer_store_dwordx2 v[128:129], v49, s[36:39], 0 offen sc1")
    A("buffer_store_dwordx2 v[130:131], v49, s[36:39], 0 offen offset:512 sc1")
    A("s_mov_b64 exec, -1")
    st_(A, 2)

def gen_ln(A, two=False):
    srd(A, 48, PQ, S * ROWB)
    srd(A, 56, PWR, D * 2)
    A("v_and_b32 v1, 63, v0")
    A("v_and_b32 v2, 15, v0")
    A("v_lshrrev_b32 v3, 4, v1")
    A("s_lshl_b32 s61, s60, 2")
    A("v_add_u32 v30, s61, v3")
    A("s_movk_i32 s62, 1152")
    A("v_mul_lo_u32 v6, v30, s62")
    A("v_lshl_add_u32 v6, v2, 3, v6")
    A("v_lshlrev_b32 v7, 3, v2")
    Q, WR, X = 64, 84, 104
    for i in range(9):
        A("buffer_load_dwordx2 %s, v6, s[48:51], 0 offen offset:%d" % (v(Q + 2 * i, 2), 128 * i) + QNT)
    for i in range(9):
        A("buffer_load_dwordx2 %s, v7, s[56:59], 0 offen offset:%d" % (v(WR + 2 * i, 2), 128 * i))
    if two:
        A("s_mov_b32 s62, %d" % (1024 * 1152))
        for i in range(9):
            A("buffer_load_dwordx2 %s, v6, s[48:51], s62 offen offset:%d" % (v(144 + 2 * i, 2), 128 * i))
    return Q, WR, X

def gen_ln_compute(A, Q, WR, X, extra=0, first_wait=None):
    def trans():
        A("s_waitcnt vmcnt(%d)" % extra)
        st_(A, 1)
    tp = TwoPass(A, "ln")
    tp.begin(trans)
    for i in range(18):
        unpack_pair(A, X + 2 * i, X + 2 * i + 1, Q + i, 40)
    A("v_pk_add_f32 v[8:9], %s, %s" % (v(X, 2), v(X + 2, 2)))
    A("v_pk_add_f32 v[10:11], %s, %s" % (v(X + 4, 2), v(X + 6, 2)))
    for i in range(4, 18, 2):
        A("v_pk_add_f32 v[8:9], v[8:9], %s" % v(X + 2 * i, 2))
        A("v_pk_add_f32 v[10:11], v[10:11], %s" % v(X + 2 * i + 2, 2))
    A("v_pk_add_f32 v[8:9], v[8:9], v[10:11]")
    A.nop(1)
    A("v_add_f32 v8, v8, v9")
    allreduce16_add(A, 8)
    A("v_mul_f32 v8, 0x3ae38e39, v8")
    A("v_sub_f32 v12, 0, v8")
    A("v_sub_f32 v13, 0, v8")
    for r in (14, 15, 16, 17):
        A("v_mov_b32 %s, 0" % v(r))
    for i in range(0, 18, 2):
        A("v_pk_add_f32 v[18:19], %s, v[12:13]" % v(X + 2 * i, 2))
        A("v_pk_add_f32 v[20:21], %s, v[12:13]" % v(X + 2 * i + 2, 2))
        A("v_pk_fma_f32 v[14:15], v[18:19], v[18:19], v[14:15]")
        A("v_pk_fma_f32 v[16:17], v[20:21], v[20:21], v[16:17]")
    A("v_pk_add_f32 v[14:15], v[14:15], v[16:17]")
    A.nop(1)
    A("v_add_f32 v14, v14, v15")
    allreduce16_add(A, 14)
    A("v_mul_f32 v14, 0x3ae38e39, v14")
    A.nop(1)
    round_pair(A, 8, 14, 9, 40)
    A("v_add_f32 v14, 0x3727c5ac, v14")
    A.nop(1)
    A("v_cvt_pk_bf16_f32 v9, v14, v14")
    A("v_lshlrev_b32 v14, 16, v9")
    A("v_sqrt_f32 v14, v14")
    A.nop(1)
    A("v_cvt_pk_bf16_f32 v9, v14, v14")
    A("v_lshlrev_b32 v14, 16, v9")
    A("v_rcp_f32 v15, v14")
    A.nop(1)
    A("v_fma_f32 v16, -v14, v15, 1.0")
    A("v_fma_f32 v15, v16, v15, v15")
    A("v_sub_f32 v12, 0, v8"); A("v_sub_f32 v13, 0, v8")
    A("v_mov_b32 v16, v15"); A("v_mov_b32 v17, v15")
    for r in (22, 23, 24, 25):
        A("v_mov_b32 %s, 0" % v(r))
    def ops(i, tm, acc):
        x0 = X + 2 * i
        P = Asm()
        P("v_pk_add_f32 %s, %s, v[12:13]" % (v(x0, 2), v(x0, 2)))
        round_pair(P, x0, x0 + 1, tm, 40)
        P("v_pk_mul_f32 %s, %s, v[16:17]" % (v(x0, 2), v(x0, 2)))
        round_pair(P, x0, x0 + 1, tm, 40)
        unpack_pair(P, tm + 2, tm + 3, WR + i, 40)
        P("v_pk_fma_f32 %s, %s, %s, %s" % (v(acc, 2), v(x0, 2), v(tm + 2, 2), v(acc, 2)))
        return [l.strip() for l in P.lines]
    for i in range(0, 18, 2):
        interleave(A, [ops(i, 26, 22), ops(i + 1, 32, 24)])
    A("v_pk_add_f32 v[22:23], v[22:23], v[24:25]")
    A.nop(1)
    A("v_add_f32 v22, v22, v23")
    allreduce16_add(A, 22)
    A.nop(1)
    A("v_cvt_pk_bf16_f32 v23, v22, v22")
    A("v_lshlrev_b32 v23, 16, v23")
    A("v_ashrrev_i32 v24, 31, v23")
    A("v_or_b32 v24, 0x80000000, v24")
    A("v_xor_b32 v23, v23, v24")
    A("v_and_b32 v23, s40, v23")
    A("v_sub_u32 v24, 2047, v30")
    A("v_or_b32 v26, v23, v24")
    A("v_mov_b32 v27, s%d" % TAG)
    A("v_cvt_pk_bf16_f32 v32, v8, v14")
    A("v_mov_b32 v33, s%d" % TAG)
    A("v_lshlrev_b32 v28, 3, v30")
    A("s_movk_i32 s61, %d" % F_KEYG)
    A("s_mov_b32 s62, %d" % F_ROWG)
    tp.end()
    A("v_cmp_eq_u32 vcc, 0, v2")
    A("s_and_saveexec_b64 s[64:65], vcc")
    A("buffer_store_dwordx2 v[26:27], v28, s[36:39], s61 offen sc1")
    A("buffer_store_dwordx2 v[32:33], v28, s[36:39], s62 offen sc1")
    A("s_mov_b64 exec, s[64:65]")
    st_(A, 2)

def load_verified_runs(A, pay_soff, chk_soff, vlane16, vchk8, vhint8, P, pre, sleep):
    C, Tm = P + 16, P + 20
    def hint_loads():
        A("buffer_load_dwordx2 %s, %s, s[36:39], %s offen sc1" % (v(C, 2), vhint8, chk_soff))
    masked_poll(A, "vh", hint_loads, [C + 1], sleep, pre)
    Lp = A.newlabel("vp"); Ld = A.newlabel("vok")
    A("s_mov_b32 s52, 0")
    A.label(Lp)
    for i in range(4):
        A("buffer_load_dwordx4 %s, %s, s[36:39], %s offen offset:%d sc1" % (v(P + 4 * i, 4), vlane16, pay_soff, 1024 * i))
    for i in range(4):
        A("buffer_load_dword %s, %s, s[36:39], %s offen offset:%d sc1" % (v(C + i), vchk8, chk_soff, 32 * i))
    A("s_waitcnt vmcnt(0)")
    for i in range(4):
        A("v_xor_b32 %s, %s, %s" % (v(Tm + i), v(P + 4 * i), v(P + 1 + 4 * i)))
    for i in range(4):
        A("v_xor_b32 %s, %s, %s" % (v(Tm + 4 + i), v(P + 2 + 4 * i), v(P + 3 + 4 * i)))
    for i in range(4):
        A("v_xor_b32 %s, %s, %s" % (v(Tm + i), v(Tm + i), v(Tm + 4 + i)))
    row_xor_reduce(A, [Tm, Tm + 1, Tm + 2, Tm + 3])
    for i in range(4):
        A("v_xor_b32 %s, %s, %s" % (v(Tm + i), v(Tm + i), v(C + i)))
    A("v_cmp_eq_u32 vcc, s%d, %s" % (TAG, v(Tm)))
    for i in range(1, 4):
        A("v_cmp_eq_u32 s[54:55], s%d, %s" % (TAG, v(Tm + i)))
        A("s_and_b64 vcc, vcc, s[54:55]")
    A("s_cmp_eq_u64 vcc, -1")
    A("s_cbranch_scc1 %s" % Ld)
    A("s_add_u32 s52, s52, 1")
    A("s_cmp_gt_u32 s52, %d" % POLL_MAX)
    A("s_cbranch_scc1 %s" % Ld)
    A("s_sleep 2")
    A("s_branch %s" % Lp)
    A.label(Ld)

def build_ops(W, N, off):
    ops = []
    for k in range(7):
        ops.append("v_alignbit_b32 %s, %s, %s, 16" % (v(E_ + k), v(W + k + 1), v(W + k)))
    ops.append("ds_write_b128 v11, %s offset:%d" % (v(W + 2, 4), 4 * CS + off))
    for k in range(3):
        ops.append("v_pk_mov_b32 %s, %s, %s op_sel:[1,0]" % (v(G_ + 2 * k, 2), v(W + 2 * k, 2), v(W + 2 * k + 2, 2)))
    ops.append("ds_write_b128 v11, %s offset:%d" % (v(E_, 4), 1 * CS + off))
    ops.append("ds_write_b128 v11, %s offset:%d" % (v(E_ + 2, 4), 5 * CS + off))
    for k in range(3):
        ops.append("v_pk_mov_b32 %s, %s, %s op_sel:[1,0]" % (v(F_ + 2 * k, 2), v(E_ + 2 * k, 2), v(E_ + 2 * k + 2, 2)))
    ops.append("ds_write_b128 v11, %s offset:%d" % (v(G_, 4), 2 * CS + off))
    ops.append("ds_write_b128 v11, %s offset:%d" % (v(G_ + 2, 4), 6 * CS + off))
    ops.append("s_nop 0")
    ops.append("ds_write_b128 v11, %s offset:%d" % (v(F_, 4), 3 * CS + off))
    ops.append("ds_write_b128 v11, %s offset:%d" % (v(F_ + 2, 4), 7 * CS + off))
    return ops

def gen_partial_gather(A):
    T = "s%d" % TAG
    A("v_and_b32 v5, 255, v0")
    A("v_and_b32 v1, 63, v0")
    A("v_and_b32 v12, 7, v5")
    A("v_mul_u32_u24 v12, 2304, v12")
    A("v_lshrrev_b32 v13, 3, v5")
    A("v_mul_u32_u24 v14, 18432, v13")
    A("v_add_u32 v12, v12, v14")
    A("s_lshl_b32 s51, s41, 4")
    A("s_add_u32 s51, s51, %d" % F_PARTG)
    A("v_add_u32 v12, s51, v12")
    A("v_add_u32 v14, %d, v12" % (64 * 18432))
    A("v_cmp_gt_u32 vcc, 8, v13")
    A.nop(2)
    A("v_cndmask_b32 v14, v12, v14, vcc")
    A("s_mov_b64 s[56:57], vcc")
    def part_loads():
        A("s_mov_b32 s51, %d" % (32 * 18432))
        A("buffer_load_dwordx4 v[160:163], v12, s[36:39], 0 offen sc1")
        A("buffer_load_dwordx4 v[164:167], v12, s[36:39], s51 offen sc1")
        A("buffer_load_dwordx4 v[168:171], v14, s[36:39], 0 offen sc1")
    Lp = A.newlabel("ppp"); Ld = A.newlabel("ppok")
    if int(os.environ.get("PPPRE", 0)):
        A("s_sleep %d" % int(os.environ.get("PPPRE", 0)))
    A("s_mov_b32 s52, 0")
    A.label(Lp)
    part_loads()
    A("s_waitcnt vmcnt(0)")
    for i in range(3):
        b = 160 + 4 * i
        A("v_xor_b32 %s, %s, %s" % (v(172 + i), v(b), v(b + 1)))
        A("v_xor_b32 %s, %s, %s" % (v(176 + i), v(b + 2), v(b + 3)))
    for i in range(3):
        A("v_xor_b32 %s, %s, %s" % (v(172 + i), v(172 + i), v(176 + i)))
    A("v_cmp_eq_u32 vcc, %s, v172" % T)
    for r in (173, 174):
        A("v_cmp_eq_u32 s[54:55], %s, %s" % (T, v(r)))
        A("s_and_b64 vcc, vcc, s[54:55]")
    A("s_andn2_b64 exec, exec, vcc")
    A("s_cbranch_scc0 %s" % Ld)
    A("s_add_u32 s52, s52, 1")
    A("s_cmp_gt_u32 s52, %d" % POLL_MAX)
    A("s_cbranch_scc1 %s" % Ld)
    A("s_sleep %d" % int(os.environ.get("PPSLEEP", 6)))
    A("s_branch %s" % Lp)
    A.label(Ld)
    A("s_mov_b64 exec, -1")
    st_(A, 8)
    dbg_time(A, 10)
    A("s_mov_b32 s58, 0xffffff00")
    A("s_mov_b32 s59, 0x0c0c0004")
    for i in range(3):
        b = 160 + 4 * i
        o = 20 + 4 * i
        A("v_lshlrev_b32 %s, 24, %s" % (v(o + 3), v(b)))
        A("v_and_b32 %s, 0xff, %s" % (v(176), v(b + 1)))
        A("v_and_b32 %s, 0xff, %s" % (v(177), v(b + 2)))
        A("v_lshl_or_b32 %s, %s, 16, %s" % (v(o + 3), v(176), v(o + 3)))
        A("v_lshl_or_b32 %s, %s, 8, %s" % (v(o + 3), v(177), v(o + 3)))
        for k in range(3):
            A("v_and_b32 %s, s58, %s" % (v(o + k), v(b + k)))
    for k in range(4):
        A("v_cndmask_b32 %s, 0, %s, s[56:57]" % (v(28 + k), v(28 + k)))
    for k in range(4):
        A("v_add_f32 %s, %s, %s" % (v(20 + k), v(20 + k), v(24 + k)))
    for k in range(4):
        A("v_add_f32 %s, %s, %s" % (v(20 + k), v(20 + k), v(28 + k)))
    A.nop(1)
    for k in range(4):
        A("v_add_f32_dpp %s, %s, %s row_ror:8 row_mask:0xf bank_mask:0xf" % (v(24 + k), v(20 + k), v(20 + k)))
    for k in range(4):
        A("v_mov_b32 %s, %s" % (v(28 + k), v(24 + k)))
    A.nop(1)
    for k in range(4):
        A("v_permlane16_swap_b32 %s, %s" % (v(24 + k), v(28 + k)))
    A.nop(1)
    for k in range(4):
        A("v_add_f32 %s, %s, %s" % (v(24 + k), v(24 + k), v(28 + k)))
    for k in range(4):
        A("v_mov_b32 %s, %s" % (v(28 + k), v(24 + k)))
    A.nop(1)
    for k in range(4):
        A("v_permlane32_swap_b32 %s, %s" % (v(24 + k), v(28 + k)))
    A.nop(1)
    for k in range(4):
        A("v_add_f32 %s, %s, %s" % (v(24 + k), v(24 + k), v(28 + k)))
    A("v_lshlrev_b32 v18, 4, v1")
    A("s_lshl_b32 s51, s43, 7")
    A("s_add_u32 s51, s51, %d" % RED)
    A("v_add_u32 v18, s51, v18")
    A("s_mov_b64 exec, 0xff")
    A("ds_write_b128 v18, v[24:27]")
    A("s_mov_b64 exec, -1")
    A("s_waitcnt lgkmcnt(0)")
    A("v_mov_b32 v11, %d" % FLAGS)
    A("v_mov_b32 v12, 1")
    lds_signal(A, 5, "v11", "v12")

def gen_M(A):
    A("s_setprio %d" % int(os.environ.get("MPRIO", 2)))
    srd(A, 32, PSSMK, D * S * 2)
    A("v_and_b32 v1, 63, v0")
    A("v_lshlrev_b32 v4, 4, v1")
    A("s_add_u32 s56, s45, %d" % (H_OFF + 512))
    A("s_lshl_b32 s57, s44, 12")
    A("s_mov_b32 m0, s56")
    A("s_lshl_b32 s51, s44, 1")
    for i in range(4):
        A("buffer_load_dwordx4 v4, s[32:35], s57 offen offset:%d lds" % (1024 * i) + NTS)
    A("s_add_u32 s56, s56, 4096")
    A("s_add_u32 s57, s57, 4096")
    A("s_mov_b32 m0, s56")
    A("s_mov_b64 exec, 0x3")
    A("buffer_load_dwordx4 v4, s[32:35], s57 offen lds" + NTS)
    A("s_mov_b64 exec, -1")
    A("s_and_b32 s52, s51, 0xfffffffc")
    A("s_add_u32 s54, s%d, s52" % PSSMD)
    A("s_addc_u32 s55, s%d, 0" % (PSSMD + 1))
    A("s_load_dword s53, s[54:55], 0")
    A("v_and_b32 v2, 15, v0")
    A("v_bfe_u32 v3, v0, 4, 2")
    A("v_mov_b32 v12, 0"); A("v_mov_b32 v13, 0"); A("v_mov_b32 v14, 0"); A("v_mov_b32 v15, 0")
    A("v_add_u32 v11, s45, v4")
    A("s_mov_b32 exec_hi, 0")
    A("ds_write_b128 v11, v[12:15] offset:%d" % H_OFF)
    A("s_mov_b64 exec, 0x3")
    for c in range(8):
        pass
    A("ds_write_b128 v11, v[12:15]")
    A("s_mov_b64 exec, 0xf")
    A("ds_write_b128 v11, v[12:15] offset:%d" % (258 * 16))
    A("s_mov_b64 exec, -1")
    A("v_lshlrev_b32 v5, 5, v2")
    A("v_lshl_add_u32 v5, v3, 4, v5")
    A("v_add_u32 v5, s45, v5")
    A("v_add_u32 v5, %d, v5" % H_OFF)
    A("v_and_b32 v8, 7, v2")
    A("v_sub_u32 v8, 7, v8")
    A("v_mul_u32_u24 v8, %d, v8" % CS)
    A("v_lshrrev_b32 v6, 3, v2")
    A("v_sub_u32 v6, v3, v6")
    A("v_lshlrev_b32 v6, 4, v6")
    A("v_add_u32 v8, v8, v6")
    A("v_add_u32 v8, 16, v8")
    A("v_add_u32 v9, s45, v8")
    A("v_lshlrev_b32 v6, 5, v2")
    A("v_lshl_add_u32 v6, v3, 3, v6")
    A("v_sub_u32 v7, %d, v6" % (4120 - 3584))
    A("v_add_u32 v7, s45, v7")
    A("v_add_u32 v6, s45, v6")
    A("v_add_u32 v6, %d, v6" % YOFF)
    A("s_lshl_b32 s49, s43, 2")
    A("s_add_u32 s49, s49, %d" % FLAGS)
    A("v_mov_b32 v10, s49")
    for i in range(32):
        A("v_mov_b32 %s, 0" % v(ACC + i))
    A("s_lshl_b32 s48, s44, 12")
    A("s_add_u32 s48, s48, %d" % F_UR)
    A("v_lshlrev_b32 v16, 3, v3")
    A("s_lshl_b32 s50, s44, 7")
    A("s_add_u32 s50, s50, %d" % F_URC)
    A("v_and_b32 v17, 15, v1")
    A("v_lshlrev_b32 v17, 3, v17")
    def hint_loads():
        A("buffer_load_dwordx2 v[136:137], v17, s[36:39], s50 offen sc1")
    if os.environ.get("URHINT"):
        masked_poll(A, "urh", hint_loads, [137], int(os.environ.get("URSLEEP", 4)), int(os.environ.get("URPRE", 8)))
    else:
        A("s_sleep %d" % int(os.environ.get("URPRE", 24)))
    Lp = A.newlabel("urp"); Ld = A.newlabel("urok")
    A("s_mov_b32 s52, 0")
    A.label(Lp)
    for i in range(4):
        A("buffer_load_dwordx4 %s, v4, s[36:39], s48 offen offset:%d sc1" % (v(120 + 4 * i, 4), 1024 * i))
    for i in range(4):
        A("buffer_load_dword %s, v16, s[36:39], s50 offen offset:%d sc1" % (v(136 + i), 32 * i))
    A("s_waitcnt vmcnt(0)")
    for i in range(4):
        A("v_xor_b32 %s, %s, %s" % (v(140 + i), v(120 + 4 * i), v(121 + 4 * i)))
    for i in range(4):
        A("v_xor_b32 %s, %s, %s" % (v(144 + i), v(122 + 4 * i), v(123 + 4 * i)))
    for i in range(4):
        A("v_xor_b32 %s, %s, %s" % (v(140 + i), v(140 + i), v(144 + i)))
    row_xor_reduce(A, [140, 141, 142, 143])
    for i in range(4):
        A("v_xor_b32 %s, %s, %s" % (v(140 + i), v(140 + i), v(136 + i)))
    A("v_cmp_eq_u32 vcc, s%d, v140" % TAG)
    for i in range(1, 4):
        A("v_cmp_eq_u32 s[54:55], s%d, %s" % (TAG, v(140 + i)))
        A("s_and_b64 vcc, vcc, s[54:55]")
    A("s_andn2_b64 exec, exec, vcc")
    A("s_cbranch_scc0 %s" % Ld)
    A("s_add_u32 s52, s52, 1")
    A("s_cmp_gt_u32 s52, %d" % POLL_MAX)
    A("s_cbranch_scc1 %s" % Ld)
    A("s_sleep %d" % int(os.environ.get("URSLEEP", 6)))
    A("s_branch %s" % Lp)
    A.label(Ld)
    A("s_mov_b64 exec, -1")
    st_(A, 3)
    dbg_time(A, 5)
    A("s_setprio %d" % int(os.environ.get("MPRIO2", 0)))
    for i in range(4):
        A("ds_write_b128 v11, %s offset:%d" % (v(120 + 4 * i, 4), 32 + 1024 * i))
    A("s_waitcnt lgkmcnt(0)")
    for (W, off) in ((152, 4096), (160, 3072), (168, 2048), (W1, 1024), (W0, 0)):
        A("ds_read_b128 %s, v11 offset:%d" % (v(W, 4), off))
        A("ds_read_b128 %s, v11 offset:%d" % (v(W + 4, 4), off + 16))
    A("s_waitcnt lgkmcnt(8)")
    A("s_mov_b64 exec, 0x1f")
    for o in build_ops(152, 0, 4096): A(o)
    A("s_mov_b64 exec, -1")
    A("s_waitcnt lgkmcnt(11)")
    for o in build_ops(160, 0, 3072): A(o)
    A("s_waitcnt lgkmcnt(14)")
    for o in build_ops(168, 0, 2048): A(o)
    A("s_waitcnt lgkmcnt(0)")
    st_(A, 4)
    hi_steps, lo_frags, lo_slot, lo_steps = conv_schedule()
    def bslot(sl):
        return v(BS + 4 * sl, 4)
    order, seen = [], set()
    for q, lst in hi_steps:
        for t, sl in lst:
            if sl not in seen:
                seen.add(sl); order.append(sl)
    aseq = [q for q in range(33)] + [q for q in range(65)]
    issued = []
    def issue(tag, txt):
        A(txt); issued.append(tag)
    def wait_for(tags):
        idx = max(len(issued) - 1 - issued[::-1].index(t) for t in tags)
        n = len(issued) - 1 - idx
        A("s_waitcnt lgkmcnt(%d)" % min(n, 15))
    def a_issue(k):
        issue(("A", k), "ds_read_b128 %s, v9 offset:%d" % (v(RING + 4 * (k % NR), 4), 64 * (64 - aseq[k])))
    def b_issue(sl):
        issue(("B", sl), "ds_read_b128 %s, v5 offset:%d" % (bslot(sl), 64 * (56 - sl + 8)))
    fill = deque()
    cnt = [0]
    def emit_fill(k):
        while k > 0 and fill:
            f = fill.popleft(); f(); cnt[0] += 1; k -= 1
    def add_plain(txt):
        if txt.startswith("ds_"):
            fill.append(lambda txt=txt: issue(("W",), txt))
        else:
            fill.append(lambda txt=txt: A(txt))
    a_issue(0)
    for sl in order[:5]:
        b_issue(sl)
    nextA = 1
    for k in range(1, NR):
        a_issue(nextA); nextA += 1
        b_issue(order[5 + k - 1])
    nextB = 5 + (NR - 1)
    A("s_and_b32 s52, s51, 2")
    A("s_lshl_b32 s52, s52, 3")
    A("s_lshr_b32 s53, s53, s52")
    A("s_lshl_b32 s53, s53, 16")
    A("v_mov_b32 v18, s53"); A("v_mov_b32 v19, s53")
    n = 0
    fu = {}
    for q, lst in hi_steps:
        for t, sl in lst:
            fu.setdefault(sl, q)
    for q, lst in hi_steps:
        while nextB < len(order) and fu[order[nextB]] <= q + 3:
            b_issue(order[nextB]); nextB += 1
        wait_for([("A", n)] + [("B", sl) for _, sl in lst])
        for t, sl in lst:
            A("v_mfma_f32_16x16x32_bf16 %s, %s, %s, %s" % (v(ACC + 4 * t, 4), v(RING + 4 * (n % NR), 4), bslot(sl), v(ACC + 4 * t, 4)))
        if nextA < len(aseq):
            a_issue(nextA); nextA += 1
        if q < 32:
            issue(("L", q), "ds_read_b128 %s, v5 offset:%d" % (bslot(q), 64 * (lo_frags[q] + 8)))
        n += 1
    st_(A, 5)
    def tile_epilogue(t):
        u0 = UREG + 2 * (t % 2)
        ac = ACC + 4 * t
        fill.append(lambda: wait_for([("U", t)] + ([("L", 31)] if t == 0 else [])))
        P = Asm()
        P("v_and_b32 v12, s40, %s" % v(u0 + 1))
        P("v_lshlrev_b32 v13, 16, %s" % v(u0 + 1))
        P("v_and_b32 v14, s40, %s" % v(u0))
        P("v_lshlrev_b32 v15, 16, %s" % v(u0))
        if FAST:
            P("s_nop 0"); P("s_nop 0")
            P("v_pk_fma_f32 v[12:13], v[12:13], v[18:19], %s" % v(ac, 2))
            P("v_pk_fma_f32 v[14:15], v[14:15], v[18:19], %s" % v(ac + 2, 2))
            P("s_nop 0")
        else:
            P("v_pk_mul_f32 v[12:13], v[12:13], v[18:19]")
            P("v_pk_mul_f32 v[14:15], v[14:15], v[18:19]")
            round_pair(P, 12, 13, 16, 40)
            round_pair(P, 14, 15, 17, 40)
            round_pair(P, ac, ac + 1, 16, 40)
            round_pair(P, ac + 2, ac + 3, 17, 40)
            P("v_pk_add_f32 v[12:13], v[12:13], %s" % v(ac, 2))
            P("v_pk_add_f32 v[14:15], v[14:15], %s" % v(ac + 2, 2))
        P("v_cvt_pk_bf16_f32 v16, v12, v13")
        P("v_cvt_pk_bf16_f32 v17, v14, v15")
        for l in P.lines:
            add_plain(l.strip())
        fill.append(lambda: issue(("Y", t), "ds_write_b64 v6, v[16:17] offset:%d" % (512 * t)))
        fill.append(lambda: A("v_mov_b32 v8, %d" % (t + 1)))
        for _ in range(3):
            fill.append(lambda: None)
        fill.append(lambda: wait_for([("Y", t)]))
        fill.append(lambda: issue(("F", t), "ds_write_b32 v10, v8"))
    for o in build_ops(W1, 0, 1024): add_plain(o)
    n1 = len(fill)
    for o in build_ops(W0, 0, 0): add_plain(o)
    n0 = len(fill)
    for q, lst in lo_steps:
        wait_for([("A", n)] + [("L", sl) for _, sl in lst])
        k = len(lst)
        per = int(os.environ.get('FPER', 2)) if k >= 2 else 1
        for i, (t, sl) in enumerate(lst):
            A("v_mfma_f32_16x16x32_bf16 %s, %s, %s, %s" % (v(ACC + 4 * t, 4), v(RING + 4 * (n % NR), 4), bslot(sl), v(ACC + 4 * t, 4)))
            if i < k - 1 or k == 1:
                emit_fill(per)
        if nextA < len(aseq):
            qq = aseq[nextA]
            if nextA >= 33 and qq >= 33:
                assert cnt[0] >= n1
            if nextA >= 33 and qq >= 49:
                assert cnt[0] >= n0
            a_issue(nextA); nextA += 1
        n += 1
        if q % 8 == 4:
            t = q // 8
            issue(("U", t), "ds_read_b64 %s, v7 offset:%d" % (v(UREG + 2 * (t % 2), 2), 512 * (7 - t)))
        if q >= 9 and (q - 9) % 8 == 0 and (q - 9) // 8 < 7:
            tile_epilogue((q - 9) // 8)
    A.nop(4)
    st_(A, 6)
    tile_epilogue(7)
    emit_fill(1000)
    st_(A, 7)
    dbg_time(A, 1)
    gen_partial_gather(A)
    st_(A, 9, end=True)
    A("s_endpgm")

XQ = 208
def h_early_loads(A):
    srd(A, 16, PQ, S * ROWB)
    A("v_and_b32 v201, 255, v0")
    A("s_movk_i32 s63, 1152")
    A("v_mul_lo_u32 v200, v201, s63")
    A("s_lshl_b32 s63, s41, 3")
    A("v_add_u32 v200, s63, v200")
    return 8

def strip_loads(A):
    h_early_loads(A)
    if os.environ.get("NOSTRIP"):
        for t in range(8):
            A("s_nop 0")
            A("buffer_load_dwordx2 %s, v1, s[16:19], 0 offen" % v(XQ + 2 * t, 2))
        return
    A("s_mov_b32 s63, 0")
    for t in range(8):
        A("buffer_load_dwordx2 %s, v200, s[16:19], s63 offen" % v(XQ + 2 * t, 2))
        A("s_add_u32 s63, s63, %d" % (256 * 1152))

def q_prefetch(A):
    srd(A, 16, PQ, S * ROWB)
    Ln = A.newlabel("noqpf")
    A("v_and_b32 v202, 15, v0")
    A("v_bfe_u32 v203, v0, 4, 2")
    A("v_mul_u32_u24 v203, 1152, v203")
    A("v_lshl_add_u32 v202, v202, 4, v203")
    A("s_mul_i32 s63, s30, 144")
    A("s_and_b32 s63, s63, 0xffffff80")
    A("s_min_u32 s64, s31, 15")
    A("s_lshl_b32 s64, s64, 7")
    A("s_sub_u32 s65, s42, 4")
    A("s_lshl_b32 s65, s65, 5")
    A("s_add_u32 s64, s64, s65")
    A("s_mul_i32 s64, s64, 1152")
    A("s_add_u32 s63, s63, s64")
    for i in range(8):
        A("buffer_load_dwordx4 v[204:207], v202, s[16:19], s63 offen")
        A("s_add_u32 s63, s63, %d" % (4 * 1152))

def gen_H(A):
    srd(A, 20, POUT, S * ROWB)
    T = "s%d" % TAG
    A("v_and_b32 v1, 63, v0")
    A("v_mov_b32 v5, v201")
    A("v_mov_b32 v6, v200")
    A("v_lshlrev_b32 v7, 3, v5")
    RG = 160
    X, XN, T1 = 64, 96, 128
    A("s_setprio %d" % int(os.environ.get("HPRIO", 1)))
    for r in range(32):
        A("v_mov_b32 %s, 0" % v(X + r))
    A("v_lshlrev_b32 v8, 4, v1")
    A("v_lshrrev_b32 v9, 4, v1")
    A("v_lshlrev_b32 v9, 3, v9")
    A("s_lshl_b32 s48, s44, 12")
    A("s_add_u32 s48, s48, %d" % F_XT)
    A("s_lshl_b32 s50, s44, 7")
    A("s_add_u32 s50, s50, %d" % F_XC)
    P, C, Tm = 224, 240, 244
    A("s_sleep %d" % int(os.environ.get("ROWPRE", 32)))
    def row_loads():
        for t in range(8):
            A("s_mov_b32 s51, %d" % (F_ROWG + 2048 * t))
            A("buffer_load_dwordx2 %s, v7, s[36:39], s51 offen sc1" % v(RG + 2 * t, 2))
    row_loads()
    Lp = A.newlabel("hp"); Ld = A.newlabel("hok")
    A("s_mov_b32 s52, 0")
    A.label(Lp)
    for i in range(4):
        A("buffer_load_dwordx4 %s, v8, s[36:39], s48 offen offset:%d sc1" % (v(P + 4 * i, 4), 1024 * i))
    for i in range(4):
        A("buffer_load_dword %s, v9, s[36:39], s50 offen offset:%d sc1" % (v(C + i), 32 * i))
    A("s_waitcnt vmcnt(0)")
    for i in range(4):
        A("v_xor_b32 %s, %s, %s" % (v(Tm + i), v(P + 4 * i), v(P + 1 + 4 * i)))
    for i in range(4):
        A("v_xor_b32 %s, %s, %s" % (v(Tm + 4 + i), v(P + 2 + 4 * i), v(P + 3 + 4 * i)))
    for i in range(4):
        A("v_xor_b32 %s, %s, %s" % (v(Tm + i), v(Tm + i), v(Tm + 4 + i)))
    row_xor_reduce(A, [Tm, Tm + 1, Tm + 2, Tm + 3])
    for i in range(4):
        A("v_xor_b32 %s, %s, %s" % (v(Tm + i), v(Tm + i), v(C + i)))
    A("v_cmp_eq_u32 vcc, s%d, %s" % (TAG, v(Tm)))
    for i in range(1, 4):
        A("v_cmp_eq_u32 s[54:55], s%d, %s" % (TAG, v(Tm + i)))
        A("s_and_b64 vcc, vcc, s[54:55]")
    A("s_andn2_b64 exec, exec, vcc")
    A("s_cbranch_scc0 %s" % Ld)
    A("s_add_u32 s52, s52, 1")
    A("s_cmp_gt_u32 s52, %d" % POLL_MAX)
    A("s_cbranch_scc1 %s" % Ld)
    A("s_sleep %d" % int(os.environ.get("ROWSLEEP", 8)))
    A("s_branch %s" % Lp)
    A.label(Ld)
    A("s_mov_b64 exec, -1")
    ROWPOLL = True
    st_(A, 10)
    A("v_mov_b32 v11, %d" % FLAGS)
    A("v_mov_b32 v12, 1")
    lds_signal(A, 4, "v11", "v12")
    lds_wait(A, 4, 4, "v11", "v13", sleep=1)
    st_(A, 2 + 7)
    A("v_lshlrev_b32 v8, 1, v5")
    A("s_lshl_b32 s48, s41, 14")
    A("s_add_u32 s48, s48, %d" % F_XT)
    for c in range(4):
        for t in range(8):
            A("buffer_load_short_d16_hi %s, v8, s[36:39], s48 offen offset:%d sc1" % (v(X + 4 * t + c), 512 * t))
        A("s_add_u32 s48, s48, 4096")
    first_then_poll(A, "row", row_loads, list(range(RG + 1, RG + 16, 2)), int(os.environ.get("ROWSLEEP", 8)), "-1", first_cnt=32)
    if FAST:
        for t in range(8):
            st = 176 + 4 * t
            A("v_and_b32 %s, s40, %s" % (v(st), v(RG + 2 * t)))
            A("v_lshlrev_b32 %s, 16, %s" % (v(st + 2), v(RG + 2 * t)))
        for t in range(8):
            st = 176 + 4 * t
            A("v_rcp_f32 %s, %s" % (v(st), v(st)))
        for t in range(8):
            st = 176 + 4 * t
            A("v_mul_f32_e64 %s, -%s, %s" % (v(st + 2), v(st + 2), v(st)))
            A("v_mov_b32 %s, %s" % (v(st + 1), v(st)))
        for t in range(8):
            st = 176 + 4 * t
            A("v_mov_b32 %s, %s" % (v(st + 3), v(st + 2)))
        A("s_waitcnt vmcnt(0)")
        st_(A, 3)
        for t in range(8):
            st = 176 + 4 * t
            for p in range(2):
                x, xn = X + 4 * t + 2 * p, XN + 4 * t + 2 * p
                A("v_pk_fma_f32 %s, %s, %s, %s" % (v(xn, 2), v(x, 2), v(st, 2), v(st + 2, 2)))
    else:
        for t in range(8):
            stats_from_msd(A, RG + 2 * t, 176 + 6 * t, 40)
        A("s_waitcnt vmcnt(0)")
        st_(A, 3)
        for t in range(8):
            st = 176 + 6 * t
            streams = []
            for p in range(2):
                x, xn = X + 4 * t + 2 * p, XN + 4 * t + 2 * p
                tm = 56 + 4 * p
                P = Asm()
                P("v_pk_add_f32 %s, %s, %s" % (v(tm, 2), v(x, 2), v(st, 2)))
                round_pair(P, tm, tm + 1, tm + 2, 40)
                P("v_pk_mul_f32 %s, %s, %s" % (v(xn, 2), v(tm, 2), v(st + 2, 2)))
                P("v_pk_fma_f32 %s, %s, %s, %s" % (v(tm, 2), v(xn, 2), v(st + 4, 2), v(tm, 2)))
                P("v_pk_fma_f32 %s, %s, %s, %s" % (v(xn, 2), v(tm, 2), v(st + 2, 2), v(xn, 2)))
                round_pair(P, xn, xn + 1, tm + 2, 40)
                streams.append([l.strip() for l in P.lines])
            interleave(A, streams)
    st_(A, 4)
    dbg_time(A, 11)
    A("v_lshlrev_b32 v9, 1, v5")
    A("v_add_u32 v9, %d, v9" % YOFF)
    A("v_add_u32 v10, %d, v9" % (2 * CH_LDS))
    A("v_mov_b32 v11, %d" % FLAGS)
    for i in range(4):
        A("v_mov_b32 %s, 0" % v(40 + i))
    A("v_and_b32 v8, 7, v1")
    A("v_lshlrev_b32 v8, 3, v8")
    def sel_loads():
        A("s_movk_i32 s51, %d" % F_SELG)
        A("buffer_load_dwordx2 v[180:181], v8, s[36:39], s51 offen sc1")
    sel_loads_m = sel_loads
    A("s_mov_b32 s59, 0")
    A("s_setprio %d" % int(os.environ.get("HPRIO2", 1)))
    for t in range(8):
        Lw = A.newlabel("yw"); Lg = A.newlabel("yg")
        A("s_cmp_gt_u32 s59, %d" % t)
        A("s_cbranch_scc1 %s" % Lg)
        A("s_mov_b32 s52, 0")
        A.label(Lw)
        A("ds_read_b128 v[16:19], v11")
        A("s_add_u32 s52, s52, 1")
        A("s_waitcnt lgkmcnt(0)")
        A("v_min_u32 v16, v16, v17")
        A("v_min3_u32 v16, v16, v18, v19")
        A("s_cmp_gt_u32 s52, %d" % POLL_MAX)
        A("v_readfirstlane_b32 s59, v16")
        A("s_cbranch_scc1 %s" % Lg)
        A("s_nop 1")
        A("s_cmp_gt_u32 s59, %d" % t)
        A("s_cbranch_scc1 %s" % Lg)
        A("s_sleep 1")
        A("s_branch %s" % Lw)
        A.label(Lg)
        if os.environ.get("HST") and t in (0, 2, 4, 7):
            st_(A, {0: 11, 2: 12, 4: 13, 7: 14}[t])
        A("ds_read_u16_d16_hi v40, v9 offset:%d" % (512 * t))
        A("ds_read_u16_d16_hi v41, v9 offset:%d" % (512 * t + CH_LDS))
        A("ds_read_u16_d16_hi v42, v10 offset:%d" % (512 * t))
        A("ds_read_u16_d16_hi v43, v10 offset:%d" % (512 * t + CH_LDS))
        A("s_waitcnt lgkmcnt(0)")
        if FAST:
            for p in range(2):
                x, xn, t1 = X + 4 * t + 2 * p, XN + 4 * t + 2 * p, T1 + 4 * t + 2 * p
                A("v_pk_fma_f32 %s, %s, %s, %s" % (v(t1, 2), v(xn, 2), v(40 + 2 * p, 2), v(xn, 2)))
            for p in range(2):
                x, xn, t1 = X + 4 * t + 2 * p, XN + 4 * t + 2 * p, T1 + 4 * t + 2 * p
                A("v_pk_add_f32 %s, %s, %s" % (v(t1, 2), v(t1, 2), v(x, 2)))
            for p in range(2):
                t1 = T1 + 4 * t + 2 * p
                A("v_cvt_pk_bf16_f32 %s, %s, %s" % (v(44 + 2 * (t % 2) + p), v(t1), v(t1 + 1)))
        else:
            streams = []
            for p in range(2):
                x, xn, t1 = X + 4 * t + 2 * p, XN + 4 * t + 2 * p, T1 + 4 * t + 2 * p
                tm = 56 + 4 * p
                P = Asm()
                P("v_pk_mul_f32 %s, %s, %s" % (v(tm, 2), v(xn, 2), v(40 + 2 * p, 2)))
                round_pair(P, tm, tm + 1, tm + 2, 40)
                P("v_pk_add_f32 %s, %s, %s" % (v(t1, 2), v(x, 2), v(tm, 2)))
                round_pair(P, t1, t1 + 1, tm + 2, 40)
                P("v_pk_add_f32 %s, %s, %s" % (v(tm, 2), v(t1, 2), v(xn, 2)))
                P("v_cvt_pk_bf16_f32 %s, %s, %s" % (v(44 + 2 * (t % 2) + p), v(tm), v(tm + 1)))
                streams.append([l.strip() for l in P.lines])
            interleave(A, streams)
        A("s_mov_b32 s51, %d" % (t * 256 * 1152))
        A("buffer_store_dwordx2 %s, v6, s[20:23], s51 offen" % v(44 + 2 * (t % 2), 2) + os.environ.get("OUTPOL", ""))
        if t == 5:
            sel_loads()
    st_(A, 5)
    dbg_time(A, 9)
    first_then_poll(A, "sel", sel_loads_m, [181], 4, "-1", first_cnt=2)
    A("v_lshrrev_b32 v45, 16, v180")
    A("v_and_b32 v46, 0x8000, v45")
    A("v_mov_b32 v47, 0xffff")
    A("v_mov_b32 v48, 0x8000")
    A("v_cmp_ne_u32 vcc, 0, v46")
    A("v_and_b32 v44, 0xffff, v180")
    A("v_sub_u32 v44, 2047, v44")
    A("v_cndmask_b32 v47, v47, v48, vcc")
    A("v_xor_b32 v45, v45, v47")
    A("v_lshlrev_b32 v45, 16, v45")
    A("v_mul_f32 v45, 0xbfb8aa3b, v45")
    A("v_exp_f32 v45, v45")
    A.nop(1)
    A("v_add_f32 v45, 1.0, v45")
    A("v_rcp_f32 v45, v45")
    A.nop(1)
    A("v_cvt_pk_bf16_f32 v45, v45, v45")
    A("v_lshlrev_b32 v45, 16, v45")
    for i in range(8):
        Ls = A.newlabel("ns")
        A("v_readlane_b32 s51, v44, %d" % i)
        A("v_mov_b32 v52, %d" % (SIDE + 32 * i))
        A("s_nop 2")
        A("s_bfe_u32 s58, s51, 0x20006")
        A("s_cmp_lg_u32 s58, s43")
        A("s_cbranch_scc1 %s" % Ls)
        A("s_lshr_b32 s58, s51, 8")
        A("s_lshl_b32 s58, s58, 2")
        A("s_and_b32 s51, s51, 255")
        A("v_cmp_eq_u32 vcc, s51, v5")
        A("s_set_gpr_idx_on s58, gpr_idx(SRC0)")
        for k in range(4):
            A("v_mov_b32 %s, %s" % (v(36 + k), v(T1 + k)))
        for k in range(4):
            A("v_mov_b32 %s, %s" % (v(40 + k), v(XN + k)))
        A("s_set_gpr_idx_off")
        A("s_mov_b64 exec, vcc")
        A("ds_write_b128 v52, v[36:39]")
        A("ds_write_b128 v52, v[40:43] offset:16")
        A("s_mov_b64 exec, -1")
        A.label(Ls)
    A("s_waitcnt vmcnt(0) lgkmcnt(0)")
    A("v_mov_b32 v11, %d" % FLAGS)
    A("v_mov_b32 v12, 1")
    lds_signal(A, 6, "v11", "v12")
    st_(A, 6)
    Lend = A.newlabel("hend")
    A("s_cmp_lg_u32 s42, 4")
    A("s_cbranch_scc1 %s" % Lend)
    A("v_lshlrev_b32 v18, 4, v1")
    A("v_add_u32 v19, %d, v18" % RED)
    A("v_lshlrev_b32 v20, 5, v1")
    A("v_add_u32 v53, %d, v20" % SIDE)
    A("s_movk_i32 s51, 1152")
    A("v_mul_lo_u32 v44, v44, s51")
    A("s_lshl_b32 s51, s41, 3")
    A("v_add_u32 v44, s51, v44")
    lds_wait(A, 6, 4, "v11", "v12", sleep=0)
    A("s_mov_b64 exec, 0xff")
    A("ds_read_b128 v[36:39], v53")
    A("ds_read_b128 v[40:43], v53 offset:16")
    A("s_mov_b64 exec, -1")
    lds_wait(A, 5, 4, "v11", "v12", sleep=0)
    st_(A, 7)
    A("s_mov_b64 exec, 0xff")
    for w in range(4):
        A("ds_read_b128 %s, v19 offset:%d" % (v(20 + 4 * w, 4), 128 * w))
    A("s_waitcnt lgkmcnt(0)")
    for k in range(4):
        A("v_add_f32 %s, %s, %s" % (v(20 + k), v(20 + k), v(24 + k)))
        A("v_add_f32 %s, %s, %s" % (v(28 + k), v(28 + k), v(32 + k)))
    for k in range(4):
        A("v_add_f32 %s, %s, %s" % (v(20 + k), v(20 + k), v(28 + k)))
    if FAST:
        for k in range(4):
            A("v_fma_f32 %s, %s, v45, %s" % (v(20 + k), v(20 + k), v(36 + k)))
        A.nop(1)
    else:
        A.nop(1)
        round_pair(A, 20, 21, 24, 40); round_pair(A, 22, 23, 25, 40)
        for k in range(4):
            A("v_mul_f32 %s, %s, v45" % (v(20 + k), v(20 + k)))
        A.nop(1)
        round_pair(A, 20, 21, 24, 40); round_pair(A, 22, 23, 25, 40)
        for k in range(4):
            A("v_add_f32 %s, %s, %s" % (v(20 + k), v(20 + k), v(40 + k)))
        A.nop(1)
        round_pair(A, 20, 21, 24, 40); round_pair(A, 22, 23, 25, 40)
        for k in range(4):
            A("v_add_f32 %s, %s, %s" % (v(20 + k), v(20 + k), v(36 + k)))
        A.nop(1)
    A("v_cvt_pk_bf16_f32 v24, v20, v21")
    A("v_cvt_pk_bf16_f32 v25, v22, v23")
    A("buffer_store_dwordx2 v[24:25], v44, s[20:23], 0 offen")
    A("s_mov_b64 exec, -1")
    A.label(Lend)
    st_(A, 8, end=True)
    dbg_time(A, 2)
    if os.environ.get("CALD"):
        L = A.newlabel("cal")
        A.label(L)
        A("s_memrealtime s[96:97]")
        A("s_waitcnt lgkmcnt(0)")
        A("s_sub_u32 s96, s96, s100")
        A("s_cmp_lt_u32 s96, %d" % int(os.environ["CALD"]))
        A("s_cbranch_scc1 %s" % L)
    A("s_endpgm")

def gen_conv_wg(A):
    A("s_and_b32 s43, s42, 3")
    A("s_lshl_b32 s44, s41, 2")
    A("s_add_u32 s44, s44, s43")
    A("s_mul_i32 s45, s43, %d" % CH_LDS)
    Lm = A.newlabel("cm"); Lh = A.newlabel("ch"); Lj = A.newlabel("cj")
    dbg_time(A, 0)
    A("s_lshr_b32 s60, s41, 4")
    A("s_and_b32 s61, s41, 15")
    A("v_mov_b32 v200, 0"); A("v_mov_b32 v201, 0")
    A("s_cmp_ge_u32 s42, 4")
    A("s_cbranch_scc1 %s" % Lh)
    A("s_setprio 2")
    gen_kv_issue(A)
    gen_kv_addr(A)
    gen_kv_addr2(A)
    finish_tag(A)
    flags_barrier(A)
    A("s_branch %s" % Lj)
    A.label(Lh)
    gen_kv_addr(A)
    gen_kv_addr2(A)
    finish_tag(A)
    A.label(Lj)
    gen_kv_compute(A)
    publish_alive(A)
    A("s_barrier")
    A("s_cmp_lt_u32 s42, 4")
    A("s_cbranch_scc1 %s" % Lm)
    h_early_loads(A)
    gen_H(A)
    A.label(Lm)
    gen_M(A)

def finish_tag(A):
    A("s_waitcnt lgkmcnt(0)")
    A("s_mul_i32 s%d, s%d, 0x9E3779B1" % (TAG, TAG))
    A("s_add_u32 s%d, s%d, 0x7F4A7C15" % (TAG, TAG))

def flags_barrier(A, alive=False):
    A("v_mov_b32 v36, 0")
    A("v_mov_b32 v37, %d" % FLAGS)
    A("v_mov_b32 v38, 0"); A("v_mov_b32 v39, 0"); A("v_mov_b32 v40, 0"); A("v_mov_b32 v41, 0")
    A("ds_write_b128 v37, v[38:41]")
    A("ds_write_b128 v37, v[38:41] offset:16")
    A("s_waitcnt lgkmcnt(0)")

def publish_alive(A):
    Ln = A.newlabel("noalive")
    A("s_cmp_lg_u32 s42, 0")
    A("s_cbranch_scc1 %s" % Ln)
    A("s_lshl_b32 s63, s41, 2")
    A("s_add_u32 s63, s63, %d" % F_ALIVE)
    A("v_mov_b32 v37, s%d" % TAG)
    A("v_mov_b32 v36, 0")
    A("s_mov_b64 exec, 1")
    A("buffer_store_dword v37, v36, s[36:39], s63 offen sc1")
    A("s_mov_b64 exec, -1")
    A.label(Ln)


BITONIC8 = [(0,4),(1,5),(2,6),(3,7),(0,2),(1,3),(4,6),(5,7),(0,1),(2,3),(4,5),(6,7)]
def merge8(A, a, b, out, spare, dpp=None):
    for i in range(7, -1, -1):
        if dpp:
            A("v_max_u32_dpp %s, %s, %s %s bank_mask:0xf" % (v(out[i]), v(b[7 - i]), v(a[i]), dpp))
        else:
            A("v_max_u32 %s, %s, %s" % (v(out[i]), v(a[i]), v(b[7 - i])))
    return sort_desc(A, out, spare, BITONIC8)

def top8_wave(A, regs, spare, other):
    cur, oth = list(regs), list(other)
    for ctl in ("quad_perm:[1,0,3,2] row_mask:0xf", "quad_perm:[2,3,0,1] row_mask:0xf", "row_half_mirror row_mask:0xf",
                "row_mirror row_mask:0xf", "row_bcast:15 row_mask:0xa", "row_bcast:31 row_mask:0xc"):
        A.nop(1)
        free = list(cur)
        new, spare2 = merge8(A, cur, cur, oth, spare, dpp=ctl)
        pool = [r for r in (free + oth + [spare]) if r not in new]
        spare = pool[0]
        oth = pool[1:9]
        cur = new
    return cur, spare, oth

L_CNT = 162368

def lds_signal(A, k, vaddr, vone):
    A("s_mov_b64 exec, 1")
    A("ds_add_u32 %s, %s offset:%d" % (vaddr, vone, 4 * k))
    A("s_mov_b64 exec, -1")

def lds_wait(A, k, n, vaddr, vtmp, sleep=0):
    L = A.newlabel("lw"); Ld = A.newlabel("lwd")
    A("s_mov_b32 s52, 0")
    A.label(L)
    A("ds_read_b32 %s, %s offset:%d" % (vtmp, vaddr, 4 * k))
    A("s_add_u32 s52, s52, 1")
    A("s_waitcnt lgkmcnt(0)")
    A("s_cmp_gt_u32 s52, %d" % (POLL_MAX * 8))
    A("v_readfirstlane_b32 s51, %s" % vtmp)
    A("s_cbranch_scc1 %s" % Ld)
    A("s_nop 1")
    A("s_cmp_ge_u32 s51, %d" % n)
    A("s_cbranch_scc1 %s" % Ld)
    if sleep:
        A("s_sleep %d" % sleep)
    A("s_branch %s" % L)
    A.label(Ld)

def gen_moe_wg(A):
    T = "s%d" % TAG
    A("v_and_b32 v1, 63, v0")
    A("v_and_b32 v4, 255, v0")
    A("v_mov_b32 v8, %d" % L_CNT)
    A("v_mov_b32 v9, 1")
    Lt = A.newlabel("twave")
    A("s_cmp_ge_u32 s42, 4")
    A("s_cbranch_scc1 %s" % Lt)
    G, U, WD = 16, 88, 160
    A("v_mov_b32 v232, 0"); A("v_mov_b32 v233, 0"); A("v_mov_b32 v234, 0"); A("v_mov_b32 v235, 0")
    A("ds_write_b128 v8, v[232:235]"); A("ds_write_b128 v8, v[232:235] offset:16")
    srd(A, 48, PWG, D * F * 2)
    srd(A, 52, PWU, D * F * 2)
    srd(A, 56, PWD, D * F * 2)
    A("v_lshrrev_b32 v5, 3, v1")
    A("v_mul_u32_u24 v5, 9216, v5")
    A("v_bfe_u32 v6, v1, 4, 1")
    A("s_and_b32 s43, s42, 1")
    A("s_lshl_b32 s43, s43, 1")
    A("v_or_b32 v6, s43, v6")
    A("v_lshlrev_b32 v6, 1, v6")
    A("v_and_b32 v7, 7, v1")
    A("v_xor_b32 v6, v6, v7")
    A("v_lshl_add_u32 v5, v6, 4, v5")
    A("s_lshl_b32 s43, s41, 7")
    A("s_mul_i32 s44, s42, 73728")
    A("s_add_u32 s43, s43, s44")
    A("s_lshl_b32 s44, s42, 10")
    A("s_waitcnt lgkmcnt(0)")
    B0AT = int(os.environ.get("B0AT", 0))
    for j in range(18):
        if j == B0AT:
            A("s_barrier")
        A("s_mov_b32 m0, s44")
        A("s_add_u32 s45, s44, %d" % L_WU)
        A("buffer_load_dwordx4 v5, s[48:51], s43 offen lds" + NTS)
        A("s_mov_b32 m0, s45")
        A("s_add_u32 s44, s44, 4096")
        A("buffer_load_dwordx4 v5, s[52:55], s43 offen lds" + NTS)
        A("s_add_u32 s43, s43, %d" % (4 * 73728))
    A("v_lshrrev_b32 v6, 3, v4")
    A("v_mul_u32_u24 v7, 1152, v6")
    A("v_and_b32 v12, 7, v4")
    A("v_lshl_add_u32 v236, v12, 4, v7")
    A("v_bfe_u32 v14, v6, 1, 1")
    A("v_bfe_u32 v11, v6, 3, 1")
    A("v_lshl_add_u32 v14, v11, 1, v14")
    A("v_lshlrev_b32 v14, 1, v14")
    A("v_xor_b32 v14, v14, v12")
    A("v_lshl_add_u32 v14, v14, 4, v7")
    A("v_add_u32 v15, 36864, v14")
    A("v_and_b32 v2, 15, v0")
    A("v_bfe_u32 v3, v0, 4, 2")
    A("v_lshrrev_b32 v10, 2, v2")
    A("v_lshl_add_u32 v11, v3, 3, v10")
    A("v_bfe_u32 v12, v2, 3, 1")
    A("v_and_b32 v13, 1, v3")
    A("v_lshl_add_u32 v12, v13, 1, v12")
    A("v_xor_b32 v12, s42, v12")
    A("v_and_b32 v13, 3, v2")
    A("v_lshlrev_b32 v13, 3, v13")
    A("v_lshl_add_u32 v12, v12, 5, v13")
    A("v_lshl_add_u32 v5, v11, 7, v12")
    A("v_add_u32 v6, 36864, v5")
    A("v_mul_u32_u24 v7, 1152, v11")
    A("v_add_u32 v7, v7, v12")
    A("v_add_u32 v10, 36864, v7")
    st_(A, 1)
    A("v_add_u32 v12, %d, v5" % L_WU)
    A("v_add_u32 v13, %d, v6" % L_WU)
    nst = 1 if (common.STAMPS and not LIGHT) else 0
    A("v_lshrrev_b32 v232, 3, v1")
    A("v_mul_u32_u24 v232, 1152, v232")
    A("v_bfe_u32 v233, v1, 4, 1")
    A("s_and_b32 s43, s42, 1")
    A("s_lshl_b32 s43, s43, 1")
    A("v_or_b32 v233, s43, v233")
    A("v_lshlrev_b32 v233, 1, v233")
    A("v_and_b32 v234, 7, v1")
    A("v_xor_b32 v233, v233, v234")
    A("v_lshl_add_u32 v236, v233, 4, v232")
    def rd6(ph):
        for kk in range(6 * ph, 6 * ph + 6):
            bg, bu, ko = ("v5", "v12", kk) if kk < 9 else ("v6", "v13", kk - 9)
            A("ds_read_b64_tr_b16 %s, %s offset:%d" % (v(G + 4 * kk, 2), bg, 4096 * ko))
            A("ds_read_b64_tr_b16 %s, %s offset:%d" % (v(G + 4 * kk + 2, 2), bg, 4096 * ko + 512))
            A("ds_read_b64_tr_b16 %s, %s offset:%d" % (v(U + 4 * kk, 2), bu, 4096 * ko))
            A("ds_read_b64_tr_b16 %s, %s offset:%d" % (v(U + 4 * kk + 2, 2), bu, 4096 * ko + 512))
    A("s_waitcnt vmcnt(%d)" % (24 + nst))
    lds_signal(A, 0, "v8", "v9")
    lds_wait(A, 0, 4, "v8", "v11")
    rd6(0)
    A("s_waitcnt vmcnt(%d)" % (12 + nst))
    lds_signal(A, 7, "v8", "v9")
    lds_wait(A, 7, 4, "v8", "v11")
    rd6(1)
    A("s_waitcnt lgkmcnt(0)")
    lds_signal(A, 1, "v8", "v9")
    lds_wait(A, 1, 4, "v8", "v11")
    for half in range(2):
        A("s_mul_i32 s43, s41, 73728")
        A("s_mul_i32 s44, s42, 9216")
        A("s_add_u32 s43, s43, s44")
        if half:
            A("s_add_u32 s43, s43, 36864")
            A("s_add_u32 s44, s44, %d" % L_WU)
        for sg in range(9):
            A("s_mov_b32 m0, s44")
            A("s_add_u32 s44, s44, 1024")
            A("buffer_load_dwordx4 v236, s[56:59], s43 offen offset:%d lds" % 0 + NTS)
            A("s_add_u32 s43, s43, 128")
    A("s_waitcnt vmcnt(18)")
    lds_signal(A, 6, "v8", "v9")
    lds_wait(A, 6, 4, "v8", "v11")
    st_(A, 2)
    dbg_time(A, 7)
    rd6(2)
    st_(A, 7)
    A("v_lshrrev_b32 v232, 2, v2")
    A("v_mul_u32_u24 v14, 9216, v3")
    A("v_lshl_add_u32 v14, v232, 7, v14")
    A("v_bfe_u32 v233, v2, 3, 1")
    A("v_and_b32 v234, 1, v3")
    A("v_lshl_add_u32 v233, v234, 1, v233")
    A("v_xor_b32 v233, s42, v233")
    A("v_lshl_add_u32 v14, v233, 5, v14")
    A("v_and_b32 v234, 3, v2")
    A("v_lshl_add_u32 v14, v234, 3, v14")
    A("v_add_u32 v15, %d, v14" % L_WU)
    A("v_and_b32 v12, 7, v2")
    A("v_mul_u32_u24 v5, %d, v12" % XSTR)
    A("v_lshl_add_u32 v5, v3, 4, v5")
    A("v_add_u32 v5, %d, v5" % L_X)
    A("v_mul_u32_u24 v6, %d, v2" % HSTR)
    A("v_lshl_add_u32 v6, v3, 3, v6")
    A("s_lshl_b32 s43, s42, 5")
    A("s_add_u32 s43, s43, %d" % L_HS)
    A("v_add_u32 v6, s43, v6")
    A("v_mul_u32_u24 v7, %d, v12" % HSTR)
    A("v_lshl_add_u32 v7, v3, 4, v7")
    A("v_add_u32 v7, %d, v7" % L_HS)
    A("v_mul_u32_u24 v10, 2304, v12")
    A("v_lshl_add_u32 v10, v3, 4, v10")
    A("v_bfe_u32 v13, v2, 3, 1")
    A("v_lshl_add_u32 v10, v13, 8, v10")
    A("v_cmp_eq_u32 s[56:57], 1, v13")
    A("s_mul_i32 s43, s41, 18432")
    A("s_lshl_b32 s44, s42, 6")
    A("s_add_u32 s43, s43, s44")
    A("s_add_u32 s43, s43, %d" % F_PARTG)
    A("v_mov_b32 v13, %d" % L_TAG)
    for i in range(8):
        A("v_mov_b32 %s, 0" % v(232 + i))
    A("s_waitcnt lgkmcnt(0)")
    LW = A.newlabel("Wb"); LG = A.newlabel("Gb"); LD = A.newlabel("Db")
    A("s_mov_b32 s14, 0"); A("s_mov_b32 s15, 0")
    A("ds_read_b32 v11, v8 offset:16")
    A("s_waitcnt lgkmcnt(0)")
    A("v_readfirstlane_b32 s51, v11")
    A("s_nop 3")
    A("s_cmp_ge_u32 s51, 4")
    A("s_cbranch_scc1 %s" % LG)
    A.label(LW)
    A("s_waitcnt vmcnt(0)")
    lds_signal(A, 2, "v8", "v9")
    lds_wait(A, 2, 4, "v8", "v11")
    for k in range(9):
        r = WD + 8 * k
        A("ds_read_b64_tr_b16 %s, v14 offset:%d" % (v(r, 2), 1024 * k))
        A("ds_read_b64_tr_b16 %s, v14 offset:%d" % (v(r + 2, 2), 1024 * k + 512))
        A("ds_read_b64_tr_b16 %s, v15 offset:%d" % (v(r + 4, 2), 1024 * k))
        A("ds_read_b64_tr_b16 %s, v15 offset:%d" % (v(r + 6, 2), 1024 * k + 512))
    A("s_waitcnt lgkmcnt(0)")
    A("s_mov_b32 s14, 1")
    st_(A, 3)
    dbg_time(A, 12)
    A("s_cmp_eq_u32 s15, 1")
    A("s_cbranch_scc1 %s" % LD)
    A.label(LG)
    lds_wait(A, 4, 4, "v8", "v11")
    st_(A, 4)
    A("ds_read_b32 v12, v13")
    XR = 240
    for kk in range(3):
        A("ds_read_b128 %s, v5 offset:%d" % (v(XR + 4 * kk, 4), 64 * kk))
    for kk in range(18):
        if kk + 3 < 18:
            A("ds_read_b128 %s, v5 offset:%d" % (v(XR + 4 * ((kk + 3) % 4), 4), 64 * (kk + 3)))
        A("s_waitcnt lgkmcnt(%d)" % min(3, 17 - kk))
        x = v(XR + 4 * (kk % 4), 4)
        A("v_mfma_f32_16x16x32_bf16 v[232:235], %s, %s, v[232:235]" % (v(G + 4 * kk, 4), x))
        A("v_mfma_f32_16x16x32_bf16 v[236:239], %s, %s, v[236:239]" % (v(U + 4 * kk, 4), x))
    A("v_readfirstlane_b32 %s, v12" % T)
    A.nop(6)
    if FAST:
        for i in range(4):
            A("v_mul_f32 %s, 0xbfb8aa3b, %s" % (v(20 + i), v(232 + i)))
        for i in range(4):
            A("v_exp_f32 %s, %s" % (v(20 + i), v(20 + i)))
        for i in range(4):
            A("v_mul_f32 %s, %s, %s" % (v(232 + i), v(232 + i), v(236 + i)))
        for i in range(4):
            A("v_add_f32 %s, 1.0, %s" % (v(20 + i), v(20 + i)))
        for i in range(4):
            A("v_rcp_f32 %s, %s" % (v(20 + i), v(20 + i)))
        A.nop(1)
        for i in range(4):
            A("v_mul_f32 %s, %s, %s" % (v(232 + i), v(232 + i), v(20 + i)))
        A.nop(1)
    else:
        round_pair(A, 232, 233, 16, 40); round_pair(A, 234, 235, 17, 40)
        for i in range(4):
            A("v_mul_f32 %s, 0xbfb8aa3b, %s" % (v(20 + i), v(232 + i)))
        for i in range(4):
            A("v_exp_f32 %s, %s" % (v(20 + i), v(20 + i)))
        round_pair(A, 236, 237, 16, 40); round_pair(A, 238, 239, 17, 40)
        for i in range(4):
            A("v_add_f32 %s, 1.0, %s" % (v(20 + i), v(20 + i)))
        for i in range(4):
            A("v_rcp_f32 %s, %s" % (v(20 + i), v(20 + i)))
        A.nop(1)
        for i in range(4):
            A("v_mul_f32 %s, %s, %s" % (v(232 + i), v(232 + i), v(20 + i)))
        A.nop(1)
        round_pair(A, 232, 233, 16, 40); round_pair(A, 234, 235, 17, 40)
        for i in range(4):
            A("v_mul_f32 %s, %s, %s" % (v(232 + i), v(232 + i), v(236 + i)))
        A.nop(1)
    A("v_cvt_pk_bf16_f32 v16, v232, v233")
    A("v_cvt_pk_bf16_f32 v17, v234, v235")
    A("v_cmp_gt_u32 vcc, 8, v2")
    A("s_and_saveexec_b64 s[44:45], vcc")
    A("ds_write_b64 v6, v[16:17]")
    A("s_mov_b64 exec, s[44:45]")
    A("s_mov_b32 s58, 0xffffff00")
    A("s_movk_i32 s59, 0x80")
    A("s_waitcnt lgkmcnt(0)")
    lds_signal(A, 5, "v8", "v9")
    A("s_mov_b32 s15, 1")
    A("s_cmp_eq_u32 s14, 0")
    A("s_cbranch_scc1 %s" % LW)
    A.label(LD)
    lds_wait(A, 5, 4, "v8", "v11")
    st_(A, 5)
    A("ds_read_b128 v[16:19], v7")
    A("ds_read_b128 v[20:23], v7 offset:64")
    A("s_waitcnt lgkmcnt(0)")
    AC = 88
    for k in range(9):
        r = WD + 8 * k
        A("v_mfma_f32_16x16x32_bf16 %s, %s, v[16:19], 0" % (v(AC + 4 * k, 4), v(r, 4)))
    for k in range(9):
        r = WD + 8 * k
        A("v_mfma_f32_16x16x32_bf16 %s, %s, v[20:23], %s" % (v(AC + 4 * k, 4), v(r + 4, 4), v(AC + 4 * k, 4)))
    A.nop(4)
    for kp in range(5):
        k = 2 * kp
        ac, ac2 = AC + 4 * k, AC + 4 * min(k + 1, 8)
        o = 24 + 8 * kp
        for i in range(4):
            A("v_cndmask_b32 %s, %s, %s, s[56:57]" % (v(o + i), v(ac + i), v(ac2 + i)))
        for i in range(4):
            A("v_add_u32 %s, s59, %s" % (v(o + i), v(o + i)))
        A("v_lshrrev_b32 %s, 24, %s" % (v(o + 4), v(o + 3)))
        A("v_lshrrev_b32 %s, 16, %s" % (v(o + 5), v(o + 3)))
        A("v_lshrrev_b32 %s, 8, %s" % (v(o + 6), v(o + 3)))
        for i in range(3):
            A("v_bfi_b32 %s, s58, %s, %s" % (v(o + 4 + i), v(o + i), v(o + 4 + i)))
        A("v_xor_b32 %s, %s, %s" % (v(o + 7), v(o + 4), v(o + 5)))
        A("v_xor_b32 %s, %s, %s" % (v(o + 7), v(o + 7), v(o + 6)))
        A("v_xor_b32 %s, %s, %s" % (v(o + 7), T, v(o + 7)))
        if kp == 4:
            A("s_andn2_b64 exec, exec, s[56:57]")
        A("buffer_store_dwordx4 %s, v10, s[36:39], s43 offen offset:%d sc1" % (v(o + 4, 4), 512 * kp))
    A("s_mov_b64 exec, -1")
    st_(A, 6, end=True)
    dbg_time(A, 3)
    A("s_endpgm")
    A.label(Lt)
    A("s_setprio 3")
    A("s_lshl_b32 s60, s41, 2")
    A("s_add_u32 s60, s60, s42")
    A("s_sub_u32 s60, s60, 4")
    Q, WR, X = gen_ln(A)
    A("s_barrier")
    finish_tag(A)
    gen_ln_compute(A, Q, WR, X)
    A("s_setprio %d" % int(os.environ.get("TPRIO", 1)))
    srd(A, 16, PQ, S * ROWB)
    A("v_and_b32 v1, 63, v0")
    A("v_and_b32 v4, 255, v0")
    A("v_mov_b32 v8, %d" % L_CNT)
    A("v_mov_b32 v9, 1")
    A("v_lshlrev_b32 v15, 2, v1")
    A("v_lshlrev_b32 v16, 4, v1")
    A("s_and_b32 s43, s42, 3")
    A("s_lshl_b32 s43, s43, 12")
    A("v_add_u32 v16, s43, v16")
    def key_loads():
        A("s_movk_i32 s43, %d" % F_KEYG)
        for i in range(4):
            A("buffer_load_dwordx4 %s, v16, s[36:39], s43 offen offset:%d sc1" % (v(40 + 4 * i, 4), 1024 * i))
    masked_poll(A, "key", key_loads, list(range(41, 56, 2)), int(os.environ.get("KEYSLEEP", 8)), int(os.environ.get("KEYPRE", 70)))
    A("s_setprio 3")
    st_(A, 3)
    dbg_time(A, 6)
    regs, sp = sort_desc(A, range(40, 56, 2), 41, SORT8)
    SK = 60
    free = [r for r in range(40, 57) if r not in regs and r != sp]
    cur, sp, oth = top8_wave(A, regs, sp, free[:8])
    for i in range(8):
        A("v_mov_b32 %s, %s" % (v(64 + i), v(cur[i])))
    A("s_and_b32 s43, s42, 3")
    A("s_lshl_b32 s43, s43, 5")
    A("s_add_u32 s43, s43, %d" % L_CAND)
    A("v_mov_b32 v16, s43")
    A("v_mov_b32 v31, %s" % T)
    A("v_mov_b32 v17, %d" % L_TAG)
    A("s_mov_b32 exec_lo, 0")
    A("s_mov_b32 exec_hi, 0x80000000")
    A("ds_write_b128 v16, v[64:67]")
    A("ds_write_b128 v16, v[68:71] offset:16")
    A("ds_write_b32 v17, v31")
    A("s_mov_b64 exec, -1")
    A("s_waitcnt lgkmcnt(0)")
    lds_signal(A, 3, "v8", "v9")
    lds_wait(A, 3, 4, "v8", "v11")
    A("v_mov_b32 v16, %d" % L_CAND)
    for i in range(8):
        A("ds_read_b128 %s, v16 offset:%d" % (v(64 + 4 * i, 4), 16 * i))
    A("s_waitcnt lgkmcnt(4)")
    c01, sp1 = merge8(A, list(range(64, 72)), list(range(72, 80)), list(range(40, 48)), 56)
    A("s_waitcnt lgkmcnt(0)")
    c23, sp2 = merge8(A, list(range(80, 88)), list(range(88, 96)), list(range(48, 56)), 57)
    for i in range(8):
        A("v_max_u32 %s, %s, %s" % (v(64 + i), v(c01[i]), v(c23[7 - i])))
    for i in range(8):
        A("v_readfirstlane_b32 %s, %s" % (s(SK + i), v(64 + i)))
    A.nop(3)
    st_(A, 5)
    A("s_and_b32 s45, s42, 3")
    A("s_mov_b32 s43, s60"); A("s_mov_b32 s44, s61")
    for w in range(1, 4):
        A("s_cmp_eq_u32 s45, %d" % w)
        A("s_cselect_b32 s43, %s, s43" % s(SK + 2 * w))
        A("s_cselect_b32 s44, %s, s44" % s(SK + 2 * w + 1))
    A("v_mov_b32 v16, s43"); A("v_mov_b32 v17, s44")
    A("v_cmp_lt_u32 vcc, 31, v1")
    A.nop(2)
    A("v_cndmask_b32 v16, v16, v17, vcc")
    A("v_and_b32 v16, 0xffff, v16")
    A("v_sub_u32 v16, 2047, v16")
    A("v_and_b32 v17, 31, v1")
    A("s_movk_i32 s43, 1152")
    A("v_mul_lo_u32 v18, v16, s43")
    A("v_lshl_add_u32 v18, v17, 2, v18")
    A("v_lshlrev_b32 v19, 3, v16")
    for i in range(9):
        A("buffer_load_dword %s, v18, s[16:19], 0 offen offset:%d" % (v(20 + i), 128 * i))
    def rg_loads():
        A("s_mov_b32 s43, %d" % F_ROWG)
        A("buffer_load_dwordx2 v[32:33], v19, s[36:39], s43 offen sc1")
    Lns = A.newlabel("nosel")
    A("s_cmp_lg_u32 s41, 0")
    A("s_cbranch_scc1 %s" % Lns)
    A("s_cmp_lg_u32 s42, 4")
    A("s_cbranch_scc1 %s" % Lns)
    for i in range(8):
        A("v_writelane_b32 v30, %s, %d" % (s(SK + i), i))
    A("v_lshlrev_b32 v36, 3, v1")
    A("s_movk_i32 s43, %d" % F_SELG)
    A("s_mov_b64 exec, 0xff")
    A("buffer_store_dwordx2 v[30:31], v36, s[36:39], s43 offen sc1")
    A("s_mov_b64 exec, -1")
    A.label(Lns)
    masked_poll(A, "rg", rg_loads, [33], 2, 0)
    if FAST:
        A("v_and_b32 v64, s40, v32"); A("v_lshlrev_b32 v66, 16, v32")
        A("v_rcp_f32 v64, v64")
        A("v_lshrrev_b32 v38, 5, v4")
        A("v_mul_u32_u24 v38, %d, v38" % XSTR)
        A("v_mul_f32_e64 v66, -v66, v64")
        A("v_mov_b32 v65, v64")
        A("v_lshl_add_u32 v38, v17, 2, v38")
        A("v_mov_b32 v67, v66")
        A("v_add_u32 v38, %d, v38" % L_X)
        st_(A, 4)
        for i in range(9):
            unpack_pair(A, 40 + 2 * i, 41 + 2 * i, 20 + i, 40)
        for i in range(9):
            A("v_pk_fma_f32 %s, %s, v[64:65], v[66:67]" % (v(40 + 2 * i, 2), v(40 + 2 * i, 2)))
        for i in range(9):
            A("v_cvt_pk_bf16_f32 %s, %s, %s" % (v(70 + i), v(40 + 2 * i), v(41 + 2 * i)))
        for i in range(9):
            A("ds_write_b32 v38, %s offset:%d" % (v(70 + i), 128 * i))
    else:
        stats_from_msd(A, 32, 64, 70)
        A("v_lshrrev_b32 v38, 5, v4")
        A("v_mul_u32_u24 v38, %d, v38" % XSTR)
        A("v_lshl_add_u32 v38, v17, 2, v38")
        A("v_add_u32 v38, %d, v38" % L_X)
        st_(A, 4)
        for i0 in range(0, 9, 3):
            streams = []
            for i in range(i0, i0 + 3):
                bs = 40 + 8 * (i % 3)
                ops = norm_ops(bs, bs + 2, bs + 4, 20 + i, 64)
                ops.append("v_cvt_pk_bf16_f32 %s, %s, %s" % (v(bs + 6), v(bs + 2), v(bs + 3)))
                ops.append("ds_write_b32 v38, %s offset:%d" % (v(bs + 6), 128 * i))
                streams.append(ops)
            interleave(A, streams)
    A("s_waitcnt lgkmcnt(0)")
    lds_signal(A, 4, "v8", "v9")
    st_(A, 6)
    dbg_time(A, 4)
    Le = A.newlabel("noep")
    A("s_cmp_lg_u32 s41, 0")
    A("s_cbranch_scc1 %s" % Le)
    A("s_cmp_lg_u32 s42, 4")
    A("s_cbranch_scc1 %s" % Le)
    A("s_setprio 0")
    A("v_lshlrev_b32 v16, 2, v1")
    A("v_min_u32 v17, 15, v1")
    A("v_lshlrev_b32 v17, 2, v17")
    def al_loads():
        A("s_movk_i32 s43, %d" % F_ALIVE)
        A("buffer_load_dword v20, v16, s[36:39], s43 offen sc1")
        A("buffer_load_dword v21, v16, s[36:39], s43 offen offset:256 sc1")
        A("buffer_load_dword v22, v17, s[36:39], s43 offen offset:512 sc1")
    masked_poll(A, "al", al_loads, [20, 21, 22], 16, 0)
    A("v_mov_b32 v20, %s" % T)
    A("v_mov_b32 v21, %d" % F_EPOCH)
    A("s_mov_b64 exec, 1")
    A("buffer_store_dword v20, v21, s[36:39], 0 offen sc1")
    A("s_mov_b64 exec, -1")
    A.label(Le)
    A("s_endpgm")

def gen_spare_wg(A):
    A("s_lshl_b32 s60, s41, 3")
    A("s_add_u32 s60, s60, s42")
    A("s_add_u32 s60, s60, 288")
    Lx = A.newlabel("spx")
    A("s_cmp_ge_u32 s60, 512")
    A("s_cbranch_scc1 %s" % Lx)
    Q, WR, X = gen_ln(A)
    finish_tag(A)
    gen_ln_compute(A, Q, WR, X)
    A.label(Lx)
    A("s_endpgm")

def gen_kernel(A, name):
    kernel_header(A, name)
    Ldone = A.newlabel("done"); Lmoe = A.newlabel("moe"); Lsp = A.newlabel("spare")
    A("s_getpc_b64 s[96:97]")
    if os.environ.get("CALD"):
        A("s_memrealtime s[100:101]")
    A("s_cmp_ge_u32 s2, 256")
    A("s_cbranch_scc1 %s" % Ldone)
    A("s_load_dwordx4 s[68:71], s[0:1], %d" % KA_DBG)
    A("s_load_dwordx16 s[72:87], s[0:1], 0")
    A("s_load_dwordx8 s[88:95], s[0:1], %d" % KA_WG)
    A("v_lshrrev_b32 v1, 6, v0")
    A("s_and_b32 s30, s2, 7")
    A("s_lshr_b32 s31, s2, 3")
    A("v_readfirstlane_b32 s42, v1")
    A("s_mov_b32 s40, 0xffff0000")
    if not os.environ.get("NOICPF"):
        Lc = A.newlabel("noic")
        A("s_and_b32 s96, s96, 0xffffff00")
        A("s_and_b32 s97, s97, 0xffff")
        A("s_mov_b32 s98, L_code_end-%s" % name)
        A("s_mov_b32 s99, 0x00020000")
        A("v_and_b32 v243, 63, v0")
        A("v_lshlrev_b32 v243, 4, v243")
        A("s_lshl_b32 s95, s31, 10") if False else None
        A("s_lshl_b32 s3, s31, 10")
        A("v_cmp_lt_u32 vcc, 447, v0")
        A("s_cbranch_vccz %s" % Lc)
        A("buffer_load_dwordx4 v[244:247], v243, s[96:99], s3 offen")
        A.label(Lc)
    A("s_waitcnt lgkmcnt(0)")
    A("s_load_dword s%d, s[%d:%d], %d" % (TAG, PWS, PWS + 1, F_EPOCH))
    srd(A, 36, PWS, WS_SIZE)
    A("s_lshl_b32 s3, s2, 3")
    A("s_add_u32 s3, s3, s42")
    st_(A, 0)
    ORD = os.environ.get("ORD", "B")
    if ORD == "A":
        c0, m0, p0 = 0, 18, 27
    else:
        c0, m0, p0 = 14, 5, 0
    A("s_sub_u32 s41, s31, %d" % m0)
    A("s_cmp_lt_u32 s41, 9")
    A("s_cbranch_scc1 %s" % Lmoe)
    A("s_sub_u32 s41, s31, %d" % p0)
    A("s_cmp_lt_u32 s41, 5")
    A("s_cbranch_scc1 %s" % Lsp)
    A("s_sub_u32 s31, s31, %d" % c0)
    A("s_mul_i32 s41, s30, 18")
    A("s_add_u32 s41, s41, s31")
    gen_conv_wg(A)
    A.label(Lmoe)
    A("s_mul_i32 s31, s30, 9")
    A("s_add_u32 s41, s41, s31")
    gen_moe_wg(A)
    A.label(Lsp)
    A("s_mul_i32 s31, s30, 5")
    A("s_add_u32 s41, s41, s31")
    gen_spare_wg(A)
    A.label(Ldone)
    A("s_endpgm")
    A.label("L_code_end")
    return kernel_desc(name, 256, 102, 256)
```

```python
from common import *
import common, os
from collections import deque
from conv2 import CS, CH_LDS, H_OFF, POLL_MAX, conv_schedule
from moe2 import wave_max_u32, L_WG, L_WU, L_X, L_HS, L_U, L_CAND, XSTR, HSTR
from moe3 import SORT8, sort_desc, rounds

F_EPOCH = 0x0
F_SELG = 0x100
F_ALIVE = 0x1000
F_KEYG = 0x2000
F_ROWG = 0x8000
F_LNF = 0x6000
F_URC = 0x100000 + 0x300000
F_UR = 0x20000
F_PARTG = 0x500000
F_XT = 0x800000
F_XC = 0x480000
L_TAG = 162304

PQ, PK, PV, PSHK, PSSMK, PSSMD, PWR, PWG, PWU, PWD, POUT, PWS = 72, 74, 76, 78, 80, 82, 86, 88, 90, 92, 94, 70
TAG = 46
FAST = os.environ.get('FAST', '1') != '0'
QNT = '' if os.environ.get('QDEF') else ' nt'
NTS = '' if os.environ.get('NONT') else ' nt'
LIGHT = os.environ.get("STAMPS") == "2"
def st_(A, n, end=False):
    if LIGHT:
        if n != 0 and not end:
            return
        n = 15 if end else 0
    stamp(A, n, 36, 3, vt=254, st=96)

MISC = 4 * CH_LDS
FLAGS = MISC
SIDE = MISC + 64
RED = SIDE + 256
YOFF = H_OFF
W1, W0 = 20, 28
E_, G_, F_ = 36, 44, 50
UREG = 56
RING, NR, ACC, BS = 64, 6, 88, 120

DBGT = bool(os.environ.get("DBGT"))
def dbg_time(A, slot, invert=False):
    if not DBGT:
        return
    L = A.newlabel("dbgs")
    A("s_and_b32 s100, s42, 3")
    A("s_cmp_lg_u32 s100, 0")
    A("s_cbranch_scc1 %s" % L)
    A("s_cmp_eq_u32 s2, %d" % (8 if os.environ.get("ORD", "B") == "A" else 120))
    A("s_cselect_b32 s100, 1, 0")
    A("s_cmp_eq_u32 s2, %d" % (152 if os.environ.get("ORD", "B") == "A" else int(os.environ.get("DBGMOE", 48))))
    A("s_cselect_b32 s100, 1, s100")
    A("s_cmp_eq_u32 s100, 0")
    A("s_cbranch_scc1 %s" % L)
    A("s_memrealtime s[96:97]")
    A("s_waitcnt lgkmcnt(0)")
    A("v_mov_b32 v252, s96")
    A("v_mov_b32 v253, %d" % (4 * slot))
    A("s_mov_b64 s[98:99], exec")
    A("s_mov_b64 exec, 1")
    A("global_store_dword v253, v252, s[68:69]")
    A("s_mov_b64 exec, s[98:99]")
    A.label(L)

DRY = os.environ.get("DRY", "0") != "0"
class TwoPass:
    def __init__(self, A, name):
        self.A = A
        self.L = A.newlabel(name + "b"); self.Lo = A.newlabel(name + "o"); self.Lt = A.newlabel(name + "t")
    def begin(self, transition):
        A = self.A
        self.transition = transition
        if DRY:
            A("s_mov_b32 s12, 0")
            A("s_mov_b64 exec, 0")
        else:
            transition()
        A.label(self.L)
    def guard_begin(self):
        if not DRY: return None
        l = self.A.newlabel("gd")
        self.A("s_cmp_eq_u32 s12, 0")
        self.A("s_cbranch_scc1 %s" % l)
        return l
    def guard_end(self, l):
        if l: self.A.label(l)
    def end(self):
        A = self.A
        if DRY:
            A("s_cmp_eq_u32 s12, 1")
            A("s_cbranch_scc1 %s" % self.Lo)
            A("s_mov_b32 s12, 1")
            A("s_mov_b64 exec, -1")
            self.transition()
            A("s_branch %s" % self.L)
            A.label(self.Lo)

def poll_head(A, cnt="s52"):
    A("s_mov_b32 %s, 0" % cnt)

def poll_tail(A, Lloop, Ldone, cnt="s52", sleep=1):
    A("s_add_u32 %s, %s, 1" % (cnt, cnt))
    A("s_cmp_gt_u32 %s, %d" % (cnt, POLL_MAX))
    A("s_cbranch_scc1 %s" % Ldone)
    A("s_sleep %d" % sleep)
    A("s_branch %s" % Lloop)

def masked_poll(A, name, emit_loads, tagregs, sleep, pre_sleep=0, full_exec="-1"):
    T = "s%d" % TAG
    Lp = A.newlabel(name + "p"); Ld = A.newlabel(name + "ok")
    if pre_sleep:
        A("s_sleep %d" % pre_sleep)
    A("s_mov_b32 s52, 0")
    A.label(Lp)
    emit_loads()
    A("s_waitcnt vmcnt(0)")
    A("v_cmp_eq_u32 vcc, %s, %s" % (T, v(tagregs[0])))
    for r in tagregs[1:]:
        A("v_cmp_eq_u32 s[54:55], %s, %s" % (T, v(r)))
        A("s_and_b64 vcc, vcc, s[54:55]")
    A("s_andn2_b64 exec, exec, vcc")
    A("s_cbranch_scc0 %s" % Ld)
    A("s_add_u32 s52, s52, 1")
    A("s_cmp_gt_u32 s52, %d" % POLL_MAX)
    A("s_cbranch_scc1 %s" % Ld)
    A("s_sleep %d" % sleep)
    A("s_branch %s" % Lp)
    A.label(Ld)
    A("s_mov_b64 exec, %s" % full_exec)

def first_then_poll(A, name, emit_loads, tagregs, sleep, ex, first_cnt=0):
    T = "s%d" % TAG
    Lp = A.newlabel(name + "p"); Ld = A.newlabel(name + "ok")
    A("s_mov_b32 s52, 0")
    A("s_waitcnt vmcnt(%d)" % first_cnt)
    A.label(Lp)
    A("v_cmp_eq_u32 vcc, %s, %s" % (T, v(tagregs[0])))
    for r in tagregs[1:]:
        A("v_cmp_eq_u32 s[54:55], %s, %s" % (T, v(r)))
        A("s_and_b64 vcc, vcc, s[54:55]")
    A("s_andn2_b64 exec, exec, vcc")
    A("s_cbranch_scc0 %s" % Ld)
    A("s_add_u32 s52, s52, 1")
    A("s_cmp_gt_u32 s52, %d" % POLL_MAX)
    A("s_cbranch_scc1 %s" % Ld)
    A("s_sleep %d" % sleep)
    emit_loads()
    A("s_waitcnt vmcnt(0)")
    A("s_branch %s" % Lp)
    A.label(Ld)
    A("s_mov_b64 exec, -1")

def ln_hint_poll(A, vaddr, r0, sleep, pre):
    def loads():
        A("s_movk_i32 s51, %d" % F_LNF)
        A("buffer_load_dwordx4 %s, %s, s[36:39], s51 offen sc1" % (v(r0, 4), vaddr))
        A("buffer_load_dwordx4 %s, %s, s[36:39], s51 offen offset:1024 sc1" % (v(r0 + 4, 4), vaddr))
    masked_poll(A, "lnh", loads, list(range(r0, r0 + 8)), sleep, pre)

def stats_from_msd(A, g, st, t):
    A("v_and_b32 %s, s40, %s" % (v(st + 4), v(g)))
    A("v_lshlrev_b32 %s, 16, %s" % (v(st), v(g)))
    A("v_rcp_f32 %s, %s" % (v(st + 2), v(st + 4)))
    A("v_xor_b32 %s, 0x80000000, %s" % (v(st), v(st)))
    A("v_xor_b32 %s, 0x80000000, %s" % (v(st + 4), v(st + 4)))
    A("v_fma_f32 %s, %s, %s, 1.0" % (v(t), v(st + 4), v(st + 2)))
    A("v_mov_b32 %s, %s" % (v(st + 1), v(st)))
    A("v_fma_f32 %s, %s, %s, %s" % (v(st + 2), v(t), v(st + 2), v(st + 2)))
    A("v_mov_b32 %s, %s" % (v(st + 5), v(st + 4)))
    A("v_mov_b32 %s, %s" % (v(st + 3), v(st + 2)))

LK, LV, LQ, SG, SX, SGS = 0, 17408, 33792, 50176, 67584, 272

def row_xor_reduce(A, regs):
    for ctl in ("quad_perm:[1,0,3,2]", "quad_perm:[2,3,0,1]", "row_half_mirror", "row_mirror"):
        if len(regs) < 3:
            A.nop(3 - len(regs))
        for r in regs:
            A("v_xor_b32_dpp %s, %s, %s %s row_mask:0xf bank_mask:0xf" % (v(r), v(r), v(r), ctl))

def gen_kv_issue(A):
    srd(A, 48, PK, S * ROWB)
    srd(A, 52, PV, S * ROWB)
    A("v_and_b32 v1, 63, v0")
    A("v_lshrrev_b32 v4, 3, v1")
    A("v_mul_u32_u24 v4, 1152, v4")
    A("v_and_b32 v5, 7, v1")
    A("v_lshl_add_u32 v4, v5, 4, v4")
    A("s_mul_i32 s62, s61, %d" % (128 * 1152))
    A("s_lshl_b32 s63, s60, 7")
    A("s_add_u32 s62, s62, s63")
    A("s_mul_i32 s63, s42, 9216")
    A("s_add_u32 s62, s62, s63")
    A("s_sub_u32 s63, s62, 9216")
    A("s_lshl_b32 s64, s42, 10")
    srd(A, 16, PQ, S * ROWB)
    for i in range(4):
        A("s_mov_b32 m0, s64")
        A("s_add_u32 s65, s64, %d" % LV)
        A("buffer_load_dwordx4 v4, s[48:51], s63 offen lds" + NTS)
        A("s_mov_b32 m0, s65")
        A("s_add_u32 s65, s64, %d" % LQ)
        A("buffer_load_dwordx4 v4, s[52:55], s62 offen lds" + NTS)
        A("s_mov_b32 m0, s65")
        A("s_add_u32 s64, s64, 4096")
        A("buffer_load_dwordx4 v4, s[16:19], s62 offen lds" + NTS)
        A("s_add_u32 s63, s63, %d" % (32 * 1152))
        A("s_add_u32 s62, s62, %d" % (32 * 1152))
    Ln = A.newlabel("nok17")
    A("s_cmp_lg_u32 s42, 0")
    A("s_cbranch_scc1 %s" % Ln)
    A("s_mov_b32 m0, s64")
    A("s_nop 0")
    A("buffer_load_dwordx4 v4, s[48:51], s63 offen lds" + NTS)
    A.label(Ln)

def gen_kv_addr(A):
    srd(A, 56, PSHK, D * 8)
    A("v_and_b32 v2, 31, v0")
    A("s_lshl_b32 s63, s60, 9")
    A("v_lshl_add_u32 v29, v2, 4, s63")
    A("buffer_load_dwordx4 v[32:35], v29, s[56:59], 0 offen")

def gen_kv_addr2(A):
    A("v_lshrrev_b32 v3, 5, v0")
    A("v_lshlrev_b32 v6, 10, v3")
    A("v_lshl_add_u32 v6, v2, 2, v6")
    A("v_mul_u32_u24 v7, %d, v2" % (2 * SGS))
    A("v_sub_u32 v8, 15, v3")
    A("v_lshl_add_u32 v7, v8, 4, v7")
    A("v_add_u32 v7, %d, v7" % SG)
    A("v_bfe_u32 v10, v0, 4, 2")
    A("v_and_b32 v11, 15, v0")
    A("v_mul_u32_u24 v8, %d, v10" % SGS)
    A("v_lshl_add_u32 v8, v11, 4, v8")
    A("s_mul_i32 s63, s42, %d" % (8 * SGS))
    A("s_add_u32 s63, s63, %d" % SG)
    A("v_add_u32 v8, s63, v8")
    A("v_lshlrev_b32 v9, 12, v10")
    A("v_lshl_add_u32 v9, v11, 4, v9")
    A("s_lshl_b32 s63, s60, 6")
    A("s_lshl_b32 s64, s42, 3")
    A("s_add_u32 s63, s63, s64")
    A("s_lshl_b32 s65, s63, 12")
    A("s_lshl_b32 s64, s61, 8")
    A("s_sub_u32 s65, s65, s64")
    A("s_add_u32 s65, s65, %d" % (F_UR + 240 * 16))
    A("v_add_u32 v9, s65, v9")
    A("v_lshlrev_b32 v12, 7, v10")
    A("s_lshl_b32 s65, s63, 7")
    A("s_lshl_b32 s64, s61, 3")
    A("s_sub_u32 s65, s65, s64")
    A("s_add_u32 s65, s65, %d" % (F_URC + 120))
    A("v_add_u32 v12, s65, v12")
    A("v_cmp_eq_u32 s[66:67], 0, v11")
    A("v_mul_u32_u24 v13, %d, v2" % (2 * SGS))
    A("v_lshl_add_u32 v13, v3, 4, v13")
    A("v_add_u32 v13, %d, v13" % SX)
    A("v_lshlrev_b32 v48, 12, v10")
    A("v_lshl_add_u32 v48, v11, 4, v48")
    A("s_lshl_b32 s65, s63, 12")
    A("s_lshl_b32 s64, s61, 8")
    A("s_add_u32 s65, s65, s64")
    A("s_add_u32 s65, s65, %d" % F_XT)
    A("v_add_u32 v48, s65, v48")
    A("v_lshlrev_b32 v49, 7, v10")
    A("s_lshl_b32 s65, s63, 7")
    A("s_lshl_b32 s64, s61, 3")
    A("s_add_u32 s65, s65, s64")
    A("s_add_u32 s65, s65, %d" % F_XC)
    A("v_add_u32 v49, s65, v49")

def gen_kv_compute(A):
    def trans():
        A("s_waitcnt vmcnt(0)")
        A("s_barrier")
        st_(A, 1)
        dbg_time(A, 8)
    tp = TwoPass(A, "kv")
    tp.begin(trans)
    for i in range(11):
        A("ds_read_b32 %s, v6 offset:%d" % (v(14 + i), LK + (5 + i) * 128))
    for i in range(8):
        A("ds_read_b32 %s, v6 offset:%d" % (v(40 + i), LV + i * 128))
    for i in range(8):
        A("ds_read_b32 %s, v6 offset:%d" % (v(144 + i), LQ + i * 128))
    A("v_lshlrev_b32 v54, 16, v32"); A("v_lshlrev_b32 v55, 16, v34")
    A("v_and_b32 v56, s40, v32");    A("v_and_b32 v57, s40, v34")
    A("v_lshlrev_b32 v58, 16, v33"); A("v_lshlrev_b32 v59, 16, v35")
    A("v_and_b32 v60, s40, v33");    A("v_and_b32 v61, s40, v35")
    DOT = bool(os.environ.get("DOT2", "1") != "0")
    W, K, KV = 54, 62, 100
    A("s_mov_b32 s64, 0x05040100"); A("s_mov_b32 s65, 0x07060302")
    if DOT:
        A("v_and_b32 v62, 0xffff, v32"); A("v_lshlrev_b32 v63, 16, v34")
        A("v_lshrrev_b32 v64, 16, v32"); A("v_and_b32 v65, s40, v34")
        A("v_and_b32 v66, 0xffff, v33"); A("v_lshlrev_b32 v67, 16, v35")
        A("v_lshrrev_b32 v68, 16, v33"); A("v_and_b32 v69, s40, v35")
        A("v_mov_b32 v70, 0x3f803f80")
        A("v_mov_b32 v71, 0")
        A("s_waitcnt lgkmcnt(0)")
        for j in range(4):
            A("v_perm_b32 %s, %s, %s, s64" % (v(152 + j), v(144 + 2 * j + 1), v(144 + 2 * j)))
            A("v_perm_b32 %s, %s, %s, s65" % (v(156 + j), v(144 + 2 * j + 1), v(144 + 2 * j)))
        A("ds_write_b128 v13, v[152:155]")
        A("ds_write_b128 v13, v[156:159] offset:%d" % SGS)
        def ch_ops(i, c, t0):
            a_, b_, p_, q_ = t0, t0 + 1, t0 + 2, t0 + 3
            o = []
            d2 = lambda d, x, y, z: "v_dot2_f32_bf16 %s, %s, %s, %s" % (v(d), v(x), v(y), z)
            o.append(d2(a_, 14 + i + 0, 62 + 2 * 3 + c, "0"))
            o.append(d2(b_, 14 + i + 1, 62 + 2 * 2 + c, "0"))
            o.append(d2(q_, 14 + i + 2, 62 + 2 * 1 + c, "0"))
            o.append("v_cvt_pk_bf16_f32 %s, %s, %s" % (v(p_), v(a_), v(b_)))
            o.append(d2(b_, 14 + i + 3, 62 + 2 * 0 + c, "0"))
            o.append(d2(a_, p_, 70, "0"))
            o.append("s_nop 0")
            o.append("v_cvt_pk_bf16_f32 %s, %s, %s" % (v(p_), v(a_), v(q_)))
            o.append("s_nop 0")
            o.append(d2(a_, p_, 70, "0"))
            o.append("s_nop 0")
            o.append("v_cvt_pk_bf16_f32 %s, %s, %s" % (v(p_), v(a_), v(b_)))
            o.append("s_nop 0")
            o.append(d2(a_, p_, 70, "0"))
            o.append("s_nop 0")
            if c == 0:
                o.append("v_cvt_pk_bf16_f32 %s, %s, %s" % (v(p_), v(a_), v(71)))
            else:
                o.append("v_cvt_pk_bf16_f32 %s, %s, %s" % (v(p_), v(71), v(a_)))
            o.append("s_nop 0")
            o.append(d2(KV + 2 * i + c, p_, 40 + i, "0"))
            if FAST and os.environ.get('KVEXACT', '1') == '0':
                o = []
                o.append(d2(a_, 14 + i + 0, 62 + 2 * 3 + c, "0"))
                if c == 0:
                    o.append("v_lshlrev_b32 %s, 16, %s" % (v(b_), v(40 + i)))
                else:
                    o.append("v_and_b32 %s, s40, %s" % (v(b_), v(40 + i)))
                o.append(d2(a_, 14 + i + 1, 62 + 2 * 2 + c, v(a_)))
                o.append(d2(a_, 14 + i + 2, 62 + 2 * 1 + c, v(a_)))
                o.append(d2(a_, 14 + i + 3, 62 + 2 * 0 + c, v(a_)))
                o.append("v_mul_f32 %s, %s, %s" % (v(KV + 2 * i + c), v(a_), v(b_)))
            return [x for x in o if x != "s_nop 0"]
        for i in range(0, 8, 4):
            streams = []
            for ii in range(4):
                for c in range(2):
                    streams.append(ch_ops(i + ii, c, 72 + 4 * (2 * ii + c) if (2 * ii + c) < 7 else 132))
            interleave(A, streams)
        A.nop(3)
        for c in range(2):
            for j in range(4):
                A("v_cvt_pk_bf16_f32 %s, %s, %s" % (v(116 + 4 * c + j), v(KV + 2 * (7 - 2 * j) + c), v(KV + 2 * (6 - 2 * j) + c)))
    else:
        A("s_waitcnt lgkmcnt(15)")
        for i in range(11):
            unpack_pair(A, K + 2 * i, K + 2 * i + 1, 14 + i, 40)
        A("s_waitcnt lgkmcnt(0)")
        for j in range(4):
            A("v_perm_b32 %s, %s, %s, s64" % (v(152 + j), v(144 + 2 * j + 1), v(144 + 2 * j)))
            A("v_perm_b32 %s, %s, %s, s65" % (v(156 + j), v(144 + 2 * j + 1), v(144 + 2 * j)))
        A("ds_write_b128 v13, v[152:155]")
        A("ds_write_b128 v13, v[156:159] offset:%d" % SGS)
        def pr_(r):
            return "v[%d:%d]" % (r, r + 1)
        def row_ops(i, acc, tmp, t3):
            P = Asm()
            P("v_pk_mul_f32 %s, %s, %s" % (pr_(acc), pr_(K + 2 * (i + 0)), pr_(W + 6)))
            round_pair(P, acc, acc + 1, t3, 40)
            for t in range(1, 4):
                P("v_pk_mul_f32 %s, %s, %s" % (pr_(tmp), pr_(K + 2 * (i + t)), pr_(W + 2 * (3 - t))))
                round_pair(P, tmp, tmp + 1, t3, 40)
                P("v_pk_add_f32 %s, %s, %s" % (pr_(acc), pr_(acc), pr_(tmp)))
                round_pair(P, acc, acc + 1, t3, 40)
            unpack_pair(P, tmp, tmp + 1, 40 + i, 40)
            P("v_pk_mul_f32 %s, %s, %s" % (pr_(KV + 2 * i), pr_(acc), pr_(tmp)))
            return [l.strip() for l in P.lines]
        for i in range(0, 8, 4):
            interleave(A, [row_ops(i, 84, 86, 88), row_ops(i + 1, 90, 92, 94), row_ops(i + 2, 132, 134, 136), row_ops(i + 3, 138, 140, 142)])
        for c in range(2):
            for j in range(4):
                A("v_cvt_pk_bf16_f32 %s, %s, %s" % (v(116 + 4 * c + j), v(KV + 2 * (7 - 2 * j) + c), v(KV + 2 * (6 - 2 * j) + c)))
    A("ds_write_b128 v7, v[116:119]")
    A("ds_write_b128 v7, v[120:123] offset:%d" % SGS)
    A("s_waitcnt lgkmcnt(0)")
    tp.end()
    A("s_barrier")
    A("ds_read_b128 v[116:119], v8")
    A("ds_read_b128 v[120:123], v8 offset:%d" % (4 * SGS))
    A("s_movk_i32 s63, 16384")
    A("s_waitcnt lgkmcnt(1)")
    A("buffer_store_dwordx4 v[116:119], v9, s[36:39], 0 offen sc1")
    A("v_xor_b32 v124, v116, v117"); A("v_xor_b32 v126, v118, v119")
    A("s_waitcnt lgkmcnt(0)")
    A("buffer_store_dwordx4 v[120:123], v9, s[36:39], s63 offen sc1")
    A("v_xor_b32 v125, v120, v121"); A("v_xor_b32 v127, v122, v123")
    A("v_xor_b32 v124, v124, v126"); A("v_xor_b32 v125, v125, v127")
    row_xor_reduce(A, [124, 125])
    A("v_xor_b32 v128, s%d, v124" % TAG); A("v_xor_b32 v130, s%d, v125" % TAG)
    A("v_mov_b32 v129, s%d" % TAG); A("v_mov_b32 v131, s%d" % TAG)
    A("s_mov_b64 exec, s[66:67]")
    A("buffer_store_dwordx2 v[128:129], v12, s[36:39], 0 offen sc1")
    A("buffer_store_dwordx2 v[130:131], v12, s[36:39], 0 offen offset:512 sc1")
    A("s_mov_b64 exec, -1")
    A("ds_read_b128 v[116:119], v8 offset:%d" % (SX - SG))
    A("ds_read_b128 v[120:123], v8 offset:%d" % (SX - SG + 4 * SGS))
    A("s_waitcnt lgkmcnt(1)")
    A("buffer_store_dwordx4 v[116:119], v48, s[36:39], 0 offen sc1")
    A("v_xor_b32 v124, v116, v117"); A("v_xor_b32 v126, v118, v119")
    A("s_waitcnt lgkmcnt(0)")
    A("buffer_store_dwordx4 v[120:123], v48, s[36:39], s63 offen sc1")
    A("v_xor_b32 v125, v120, v121"); A("v_xor_b32 v127, v122, v123")
    A("v_xor_b32 v124, v124, v126"); A("v_xor_b32 v125, v125, v127")
    row_xor_reduce(A, [124, 125])
    A("v_xor_b32 v128, s%d, v124" % TAG); A("v_xor_b32 v130, s%d, v125" % TAG)
    A("s_mov_b64 exec, s[66:67]")
    A("buffer_store_dwordx2 v[128:129], v49, s[36:39], 0 offen sc1")
    A("buffer_store_dwordx2 v[130:131], v49, s[36:39], 0 offen offset:512 sc1")
    A("s_mov_b64 exec, -1")
    st_(A, 2)

def gen_ln(A, two=False):
    srd(A, 48, PQ, S * ROWB)
    srd(A, 56, PWR, D * 2)
    A("v_and_b32 v1, 63, v0")
    A("v_and_b32 v2, 15, v0")
    A("v_lshrrev_b32 v3, 4, v1")
    A("s_lshl_b32 s61, s60, 2")
    A("v_add_u32 v30, s61, v3")
    A("s_movk_i32 s62, 1152")
    A("v_mul_lo_u32 v6, v30, s62")
    A("v_lshl_add_u32 v6, v2, 3, v6")
    A("v_lshlrev_b32 v7, 3, v2")
    Q, WR, X = 64, 84, 104
    for i in range(9):
        A("buffer_load_dwordx2 %s, v6, s[48:51], 0 offen offset:%d" % (v(Q + 2 * i, 2), 128 * i) + QNT)
    for i in range(9):
        A("buffer_load_dwordx2 %s, v7, s[56:59], 0 offen offset:%d" % (v(WR + 2 * i, 2), 128 * i))
    if two:
        A("s_mov_b32 s62, %d" % (1024 * 1152))
        for i in range(9):
            A("buffer_load_dwordx2 %s, v6, s[48:51], s62 offen offset:%d" % (v(144 + 2 * i, 2), 128 * i))
    return Q, WR, X

def gen_ln_compute(A, Q, WR, X, extra=0, first_wait=None):
    def trans():
        A("s_waitcnt vmcnt(%d)" % extra)
        st_(A, 1)
    tp = TwoPass(A, "ln")
    tp.begin(trans)
    for i in range(18):
        unpack_pair(A, X + 2 * i, X + 2 * i + 1, Q + i, 40)
    A("v_pk_add_f32 v[8:9], %s, %s" % (v(X, 2), v(X + 2, 2)))
    A("v_pk_add_f32 v[10:11], %s, %s" % (v(X + 4, 2), v(X + 6, 2)))
    for i in range(4, 18, 2):
        A("v_pk_add_f32 v[8:9], v[8:9], %s" % v(X + 2 * i, 2))
        A("v_pk_add_f32 v[10:11], v[10:11], %s" % v(X + 2 * i + 2, 2))
    A("v_pk_add_f32 v[8:9], v[8:9], v[10:11]")
    A.nop(1)
    A("v_add_f32 v8, v8, v9")
    allreduce16_add(A, 8)
    A("v_mul_f32 v8, 0x3ae38e39, v8")
    A("v_sub_f32 v12, 0, v8")
    A("v_sub_f32 v13, 0, v8")
    for r in (14, 15, 16, 17):
        A("v_mov_b32 %s, 0" % v(r))
    for i in range(0, 18, 2):
        A("v_pk_add_f32 v[18:19], %s, v[12:13]" % v(X + 2 * i, 2))
        A("v_pk_add_f32 v[20:21], %s, v[12:13]" % v(X + 2 * i + 2, 2))
        A("v_pk_fma_f32 v[14:15], v[18:19], v[18:19], v[14:15]")
        A("v_pk_fma_f32 v[16:17], v[20:21], v[20:21], v[16:17]")
    A("v_pk_add_f32 v[14:15], v[14:15], v[16:17]")
    A.nop(1)
    A("v_add_f32 v14, v14, v15")
    allreduce16_add(A, 14)
    A("v_mul_f32 v14, 0x3ae38e39, v14")
    A.nop(1)
    round_pair(A, 8, 14, 9, 40)
    A("v_add_f32 v14, 0x3727c5ac, v14")
    A.nop(1)
    A("v_cvt_pk_bf16_f32 v9, v14, v14")
    A("v_lshlrev_b32 v14, 16, v9")
    A("v_sqrt_f32 v14, v14")
    A.nop(1)
    A("v_cvt_pk_bf16_f32 v9, v14, v14")
    A("v_lshlrev_b32 v14, 16, v9")
    A("v_rcp_f32 v15, v14")
    A.nop(1)
    A("v_fma_f32 v16, -v14, v15, 1.0")
    A("v_fma_f32 v15, v16, v15, v15")
    A("v_sub_f32 v12, 0, v8"); A("v_sub_f32 v13, 0, v8")
    A("v_mov_b32 v16, v15"); A("v_mov_b32 v17, v15")
    for r in (22, 23, 24, 25):
        A("v_mov_b32 %s, 0" % v(r))
    def ops(i, tm, acc):
        x0 = X + 2 * i
        P = Asm()
        P("v_pk_add_f32 %s, %s, v[12:13]" % (v(x0, 2), v(x0, 2)))
        round_pair(P, x0, x0 + 1, tm, 40)
        P("v_pk_mul_f32 %s, %s, v[16:17]" % (v(x0, 2), v(x0, 2)))
        round_pair(P, x0, x0 + 1, tm, 40)
        unpack_pair(P, tm + 2, tm + 3, WR + i, 40)
        P("v_pk_fma_f32 %s, %s, %s, %s" % (v(acc, 2), v(x0, 2), v(tm + 2, 2), v(acc, 2)))
        return [l.strip() for l in P.lines]
    for i in range(0, 18, 2):
        interleave(A, [ops(i, 26, 22), ops(i + 1, 32, 24)])
    A("v_pk_add_f32 v[22:23], v[22:23], v[24:25]")
    A.nop(1)
    A("v_add_f32 v22, v22, v23")
    allreduce16_add(A, 22)
    A.nop(1)
    A("v_cvt_pk_bf16_f32 v23, v22, v22")
    A("v_lshlrev_b32 v23, 16, v23")
    A("v_ashrrev_i32 v24, 31, v23")
    A("v_or_b32 v24, 0x80000000, v24")
    A("v_xor_b32 v23, v23, v24")
    A("v_and_b32 v23, s40, v23")
    A("v_sub_u32 v24, 2047, v30")
    A("v_or_b32 v26, v23, v24")
    A("v_mov_b32 v27, s%d" % TAG)
    A("v_cvt_pk_bf16_f32 v32, v8, v14")
    A("v_mov_b32 v33, s%d" % TAG)
    A("v_lshlrev_b32 v28, 3, v30")
    A("s_movk_i32 s61, %d" % F_KEYG)
    A("s_mov_b32 s62, %d" % F_ROWG)
    tp.end()
    A("v_cmp_eq_u32 vcc, 0, v2")
    A("s_and_saveexec_b64 s[64:65], vcc")
    A("buffer_store_dwordx2 v[26:27], v28, s[36:39], s61 offen sc1")
    A("buffer_store_dwordx2 v[32:33], v28, s[36:39], s62 offen sc1")
    A("s_mov_b64 exec, s[64:65]")
    st_(A, 2)

def load_verified_runs(A, pay_soff, chk_soff, vlane16, vchk8, vhint8, P, pre, sleep):
    C, Tm = P + 16, P + 20
    def hint_loads():
        A("buffer_load_dwordx2 %s, %s, s[36:39], %s offen sc1" % (v(C, 2), vhint8, chk_soff))
    masked_poll(A, "vh", hint_loads, [C + 1], sleep, pre)
    Lp = A.newlabel("vp"); Ld = A.newlabel("vok")
    A("s_mov_b32 s52, 0")
    A.label(Lp)
    for i in range(4):
        A("buffer_load_dwordx4 %s, %s, s[36:39], %s offen offset:%d sc1" % (v(P + 4 * i, 4), vlane16, pay_soff, 1024 * i))
    for i in range(4):
        A("buffer_load_dword %s, %s, s[36:39], %s offen offset:%d sc1" % (v(C + i), vchk8, chk_soff, 32 * i))
    A("s_waitcnt vmcnt(0)")
    for i in range(4):
        A("v_xor_b32 %s, %s, %s" % (v(Tm + i), v(P + 4 * i), v(P + 1 + 4 * i)))
    for i in range(4):
        A("v_xor_b32 %s, %s, %s" % (v(Tm + 4 + i), v(P + 2 + 4 * i), v(P + 3 + 4 * i)))
    for i in range(4):
        A("v_xor_b32 %s, %s, %s" % (v(Tm + i), v(Tm + i), v(Tm + 4 + i)))
    row_xor_reduce(A, [Tm, Tm + 1, Tm + 2, Tm + 3])
    for i in range(4):
        A("v_xor_b32 %s, %s, %s" % (v(Tm + i), v(Tm + i), v(C + i)))
    A("v_cmp_eq_u32 vcc, s%d, %s" % (TAG, v(Tm)))
    for i in range(1, 4):
        A("v_cmp_eq_u32 s[54:55], s%d, %s" % (TAG, v(Tm + i)))
        A("s_and_b64 vcc, vcc, s[54:55]")
    A("s_cmp_eq_u64 vcc, -1")
    A("s_cbranch_scc1 %s" % Ld)
    A("s_add_u32 s52, s52, 1")
    A("s_cmp_gt_u32 s52, %d" % POLL_MAX)
    A("s_cbranch_scc1 %s" % Ld)
    A("s_sleep 2")
    A("s_branch %s" % Lp)
    A.label(Ld)

def build_ops(W, N, off):
    ops = []
    for k in range(7):
        ops.append("v_alignbit_b32 %s, %s, %s, 16" % (v(E_ + k), v(W + k + 1), v(W + k)))
    ops.append("ds_write_b128 v11, %s offset:%d" % (v(W + 2, 4), 4 * CS + off))
    for k in range(3):
        ops.append("v_pk_mov_b32 %s, %s, %s op_sel:[1,0]" % (v(G_ + 2 * k, 2), v(W + 2 * k, 2), v(W + 2 * k + 2, 2)))
    ops.append("ds_write_b128 v11, %s offset:%d" % (v(E_, 4), 1 * CS + off))
    ops.append("ds_write_b128 v11, %s offset:%d" % (v(E_ + 2, 4), 5 * CS + off))
    for k in range(3):
        ops.append("v_pk_mov_b32 %s, %s, %s op_sel:[1,0]" % (v(F_ + 2 * k, 2), v(E_ + 2 * k, 2), v(E_ + 2 * k + 2, 2)))
    ops.append("ds_write_b128 v11, %s offset:%d" % (v(G_, 4), 2 * CS + off))
    ops.append("ds_write_b128 v11, %s offset:%d" % (v(G_ + 2, 4), 6 * CS + off))
    ops.append("s_nop 0")
    ops.append("ds_write_b128 v11, %s offset:%d" % (v(F_, 4), 3 * CS + off))
    ops.append("ds_write_b128 v11, %s offset:%d" % (v(F_ + 2, 4), 7 * CS + off))
    return ops

def gen_partial_gather(A):
    T = "s%d" % TAG
    A("v_and_b32 v5, 255, v0")
    A("v_and_b32 v1, 63, v0")
    A("v_and_b32 v12, 7, v5")
    A("v_mul_u32_u24 v12, 2304, v12")
    A("v_lshrrev_b32 v13, 3, v5")
    A("v_mul_u32_u24 v14, 18432, v13")
    A("v_add_u32 v12, v12, v14")
    A("s_lshl_b32 s51, s41, 4")
    A("s_add_u32 s51, s51, %d" % F_PARTG)
    A("v_add_u32 v12, s51, v12")
    A("v_add_u32 v14, %d, v12" % (64 * 18432))
    A("v_cmp_gt_u32 vcc, 8, v13")
    A.nop(2)
    A("v_cndmask_b32 v14, v12, v14, vcc")
    A("s_mov_b64 s[56:57], vcc")
    def part_loads():
        A("s_mov_b32 s51, %d" % (32 * 18432))
        A("buffer_load_dwordx4 v[160:163], v12, s[36:39], 0 offen sc1")
        A("buffer_load_dwordx4 v[164:167], v12, s[36:39], s51 offen sc1")
        A("buffer_load_dwordx4 v[168:171], v14, s[36:39], 0 offen sc1")
    Lp = A.newlabel("ppp"); Ld = A.newlabel("ppok")
    if int(os.environ.get("PPPRE", 0)):
        A("s_sleep %d" % int(os.environ.get("PPPRE", 0)))
    A("s_mov_b32 s52, 0")
    A.label(Lp)
    part_loads()
    A("s_waitcnt vmcnt(0)")
    for i in range(3):
        b = 160 + 4 * i
        A("v_xor_b32 %s, %s, %s" % (v(172 + i), v(b), v(b + 1)))
        A("v_xor_b32 %s, %s, %s" % (v(176 + i), v(b + 2), v(b + 3)))
    for i in range(3):
        A("v_xor_b32 %s, %s, %s" % (v(172 + i), v(172 + i), v(176 + i)))
    A("v_cmp_eq_u32 vcc, %s, v172" % T)
    for r in (173, 174):
        A("v_cmp_eq_u32 s[54:55], %s, %s" % (T, v(r)))
        A("s_and_b64 vcc, vcc, s[54:55]")
    A("s_andn2_b64 exec, exec, vcc")
    A("s_cbranch_scc0 %s" % Ld)
    A("s_add_u32 s52, s52, 1")
    A("s_cmp_gt_u32 s52, %d" % POLL_MAX)
    A("s_cbranch_scc1 %s" % Ld)
    A("s_sleep %d" % int(os.environ.get("PPSLEEP", 6)))
    A("s_branch %s" % Lp)
    A.label(Ld)
    A("s_mov_b64 exec, -1")
    st_(A, 8)
    dbg_time(A, 10)
    A("s_mov_b32 s58, 0xffffff00")
    A("s_mov_b32 s59, 0x0c0c0004")
    for i in range(3):
        b = 160 + 4 * i
        o = 20 + 4 * i
        A("v_lshlrev_b32 %s, 24, %s" % (v(o + 3), v(b)))
        A("v_and_b32 %s, 0xff, %s" % (v(176), v(b + 1)))
        A("v_and_b32 %s, 0xff, %s" % (v(177), v(b + 2)))
        A("v_lshl_or_b32 %s, %s, 16, %s" % (v(o + 3), v(176), v(o + 3)))
        A("v_lshl_or_b32 %s, %s, 8, %s" % (v(o + 3), v(177), v(o + 3)))
        for k in range(3):
            A("v_and_b32 %s, s58, %s" % (v(o + k), v(b + k)))
    for k in range(4):
        A("v_cndmask_b32 %s, 0, %s, s[56:57]" % (v(28 + k), v(28 + k)))
    for k in range(4):
        A("v_add_f32 %s, %s, %s" % (v(20 + k), v(20 + k), v(24 + k)))
    for k in range(4):
        A("v_add_f32 %s, %s, %s" % (v(20 + k), v(20 + k), v(28 + k)))
    A.nop(1)
    for k in range(4):
        A("v_add_f32_dpp %s, %s, %s row_ror:8 row_mask:0xf bank_mask:0xf" % (v(24 + k), v(20 + k), v(20 + k)))
    for k in range(4):
        A("v_mov_b32 %s, %s" % (v(28 + k), v(24 + k)))
    A.nop(1)
    for k in range(4):
        A("v_permlane16_swap_b32 %s, %s" % (v(24 + k), v(28 + k)))
    A.nop(1)
    for k in range(4):
        A("v_add_f32 %s, %s, %s" % (v(24 + k), v(24 + k), v(28 + k)))
    for k in range(4):
        A("v_mov_b32 %s, %s" % (v(28 + k), v(24 + k)))
    A.nop(1)
    for k in range(4):
        A("v_permlane32_swap_b32 %s, %s" % (v(24 + k), v(28 + k)))
    A.nop(1)
    for k in range(4):
        A("v_add_f32 %s, %s, %s" % (v(24 + k), v(24 + k), v(28 + k)))
    A("v_lshlrev_b32 v18, 4, v1")
    A("s_lshl_b32 s51, s43, 7")
    A("s_add_u32 s51, s51, %d" % RED)
    A("v_add_u32 v18, s51, v18")
    A("s_mov_b64 exec, 0xff")
    A("ds_write_b128 v18, v[24:27]")
    A("s_mov_b64 exec, -1")
    A("s_waitcnt lgkmcnt(0)")
    A("v_mov_b32 v11, %d" % FLAGS)
    A("v_mov_b32 v12, 1")
    lds_signal(A, 5, "v11", "v12")

def gen_M(A):
    A("s_setprio %d" % int(os.environ.get("MPRIO", 2)))
    srd(A, 32, PSSMK, D * S * 2)
    A("v_and_b32 v1, 63, v0")
    A("v_lshlrev_b32 v4, 4, v1")
    A("s_add_u32 s56, s45, %d" % (H_OFF + 512))
    A("s_lshl_b32 s57, s44, 12")
    A("s_mov_b32 m0, s56")
    A("s_lshl_b32 s51, s44, 1")
    for i in range(4):
        A("buffer_load_dwordx4 v4, s[32:35], s57 offen offset:%d lds" % (1024 * i) + NTS)
    A("s_add_u32 s56, s56, 4096")
    A("s_add_u32 s57, s57, 4096")
    A("s_mov_b32 m0, s56")
    A("s_mov_b64 exec, 0x3")
    A("buffer_load_dwordx4 v4, s[32:35], s57 offen lds" + NTS)
    A("s_mov_b64 exec, -1")
    A("s_and_b32 s52, s51, 0xfffffffc")
    A("s_add_u32 s54, s%d, s52" % PSSMD)
    A("s_addc_u32 s55, s%d, 0" % (PSSMD + 1))
    A("s_load_dword s53, s[54:55], 0")
    A("v_and_b32 v2, 15, v0")
    A("v_bfe_u32 v3, v0, 4, 2")
    A("v_mov_b32 v12, 0"); A("v_mov_b32 v13, 0"); A("v_mov_b32 v14, 0"); A("v_mov_b32 v15, 0")
    A("v_add_u32 v11, s45, v4")
    A("s_mov_b32 exec_hi, 0")
    A("ds_write_b128 v11, v[12:15] offset:%d" % H_OFF)
    A("s_mov_b64 exec, 0x3")
    for c in range(8):
        pass
    A("ds_write_b128 v11, v[12:15]")
    A("s_mov_b64 exec, 0xf")
    A("ds_write_b128 v11, v[12:15] offset:%d" % (258 * 16))
    A("s_mov_b64 exec, -1")
    A("v_lshlrev_b32 v5, 5, v2")
    A("v_lshl_add_u32 v5, v3, 4, v5")
    A("v_add_u32 v5, s45, v5")
    A("v_add_u32 v5, %d, v5" % H_OFF)
    A("v_and_b32 v8, 7, v2")
    A("v_sub_u32 v8, 7, v8")
    A("v_mul_u32_u24 v8, %d, v8" % CS)
    A("v_lshrrev_b32 v6, 3, v2")
    A("v_sub_u32 v6, v3, v6")
    A("v_lshlrev_b32 v6, 4, v6")
    A("v_add_u32 v8, v8, v6")
    A("v_add_u32 v8, 16, v8")
    A("v_add_u32 v9, s45, v8")
    A("v_lshlrev_b32 v6, 5, v2")
    A("v_lshl_add_u32 v6, v3, 3, v6")
    A("v_sub_u32 v7, %d, v6" % (4120 - 3584))
    A("v_add_u32 v7, s45, v7")
    A("v_add_u32 v6, s45, v6")
    A("v_add_u32 v6, %d, v6" % YOFF)
    A("s_lshl_b32 s49, s43, 2")
    A("s_add_u32 s49, s49, %d" % FLAGS)
    A("v_mov_b32 v10, s49")
    for i in range(32):
        A("v_mov_b32 %s, 0" % v(ACC + i))
    A("s_lshl_b32 s48, s44, 12")
    A("s_add_u32 s48, s48, %d" % F_UR)
    A("v_lshlrev_b32 v16, 3, v3")
    A("s_lshl_b32 s50, s44, 7")
    A("s_add_u32 s50, s50, %d" % F_URC)
    A("v_and_b32 v17, 15, v1")
    A("v_lshlrev_b32 v17, 3, v17")
    def hint_loads():
        A("buffer_load_dwordx2 v[136:137], v17, s[36:39], s50 offen sc1")
    if os.environ.get("URHINT"):
        masked_poll(A, "urh", hint_loads, [137], int(os.environ.get("URSLEEP", 4)), int(os.environ.get("URPRE", 8)))
    else:
        A("s_sleep %d" % int(os.environ.get("URPRE", 24)))
    Lp = A.newlabel("urp"); Ld = A.newlabel("urok")
    A("s_mov_b32 s52, 0")
    A.label(Lp)
    for i in range(4):
        A("buffer_load_dwordx4 %s, v4, s[36:39], s48 offen offset:%d sc1" % (v(120 + 4 * i, 4), 1024 * i))
    for i in range(4):
        A("buffer_load_dword %s, v16, s[36:39], s50 offen offset:%d sc1" % (v(136 + i), 32 * i))
    A("s_waitcnt vmcnt(0)")
    for i in range(4):
        A("v_xor_b32 %s, %s, %s" % (v(140 + i), v(120 + 4 * i), v(121 + 4 * i)))
    for i in range(4):
        A("v_xor_b32 %s, %s, %s" % (v(144 + i), v(122 + 4 * i), v(123 + 4 * i)))
    for i in range(4):
        A("v_xor_b32 %s, %s, %s" % (v(140 + i), v(140 + i), v(144 + i)))
    row_xor_reduce(A, [140, 141, 142, 143])
    for i in range(4):
        A("v_xor_b32 %s, %s, %s" % (v(140 + i), v(140 + i), v(136 + i)))
    A("v_cmp_eq_u32 vcc, s%d, v140" % TAG)
    for i in range(1, 4):
        A("v_cmp_eq_u32 s[54:55], s%d, %s" % (TAG, v(140 + i)))
        A("s_and_b64 vcc, vcc, s[54:55]")
    A("s_andn2_b64 exec, exec, vcc")
    A("s_cbranch_scc0 %s" % Ld)
    A("s_add_u32 s52, s52, 1")
    A("s_cmp_gt_u32 s52, %d" % POLL_MAX)
    A("s_cbranch_scc1 %s" % Ld)
    A("s_sleep %d" % int(os.environ.get("URSLEEP", 6)))
    A("s_branch %s" % Lp)
    A.label(Ld)
    A("s_mov_b64 exec, -1")
    st_(A, 3)
    dbg_time(A, 5)
    A("s_setprio %d" % int(os.environ.get("MPRIO2", 0)))
    for i in range(4):
        A("ds_write_b128 v11, %s offset:%d" % (v(120 + 4 * i, 4), 32 + 1024 * i))
    A("s_waitcnt lgkmcnt(0)")
    for (W, off) in ((152, 4096), (160, 3072), (168, 2048), (W1, 1024), (W0, 0)):
        A("ds_read_b128 %s, v11 offset:%d" % (v(W, 4), off))
        A("ds_read_b128 %s, v11 offset:%d" % (v(W + 4, 4), off + 16))
    A("s_waitcnt lgkmcnt(8)")
    A("s_mov_b64 exec, 0x1f")
    for o in build_ops(152, 0, 4096): A(o)
    A("s_mov_b64 exec, -1")
    A("s_waitcnt lgkmcnt(11)")
    for o in build_ops(160, 0, 3072): A(o)
    A("s_waitcnt lgkmcnt(14)")
    for o in build_ops(168, 0, 2048): A(o)
    A("s_waitcnt lgkmcnt(0)")
    st_(A, 4)
    hi_steps, lo_frags, lo_slot, lo_steps = conv_schedule()
    def bslot(sl):
        return v(BS + 4 * sl, 4)
    order, seen = [], set()
    for q, lst in hi_steps:
        for t, sl in lst:
            if sl not in seen:
                seen.add(sl); order.append(sl)
    aseq = [q for q in range(33)] + [q for q in range(65)]
    issued = []
    def issue(tag, txt):
        A(txt); issued.append(tag)
    def wait_for(tags):
        idx = max(len(issued) - 1 - issued[::-1].index(t) for t in tags)
        n = len(issued) - 1 - idx
        A("s_waitcnt lgkmcnt(%d)" % min(n, 15))
    def a_issue(k):
        issue(("A", k), "ds_read_b128 %s, v9 offset:%d" % (v(RING + 4 * (k % NR), 4), 64 * (64 - aseq[k])))
    def b_issue(sl):
        issue(("B", sl), "ds_read_b128 %s, v5 offset:%d" % (bslot(sl), 64 * (56 - sl + 8)))
    fill = deque()
    cnt = [0]
    def emit_fill(k):
        while k > 0 and fill:
            f = fill.popleft(); f(); cnt[0] += 1; k -= 1
    def add_plain(txt):
        if txt.startswith("ds_"):
            fill.append(lambda txt=txt: issue(("W",), txt))
        else:
            fill.append(lambda txt=txt: A(txt))
    a_issue(0)
    for sl in order[:5]:
        b_issue(sl)
    nextA = 1
    for k in range(1, NR):
        a_issue(nextA); nextA += 1
        b_issue(order[5 + k - 1])
    nextB = 5 + (NR - 1)
    A("s_and_b32 s52, s51, 2")
    A("s_lshl_b32 s52, s52, 3")
    A("s_lshr_b32 s53, s53, s52")
    A("s_lshl_b32 s53, s53, 16")
    A("v_mov_b32 v18, s53"); A("v_mov_b32 v19, s53")
    n = 0
    fu = {}
    for q, lst in hi_steps:
        for t, sl in lst:
            fu.setdefault(sl, q)
    for q, lst in hi_steps:
        while nextB < len(order) and fu[order[nextB]] <= q + 3:
            b_issue(order[nextB]); nextB += 1
        wait_for([("A", n)] + [("B", sl) for _, sl in lst])
        for t, sl in lst:
            A("v_mfma_f32_16x16x32_bf16 %s, %s, %s, %s" % (v(ACC + 4 * t, 4), v(RING + 4 * (n % NR), 4), bslot(sl), v(ACC + 4 * t, 4)))
        if nextA < len(aseq):
            a_issue(nextA); nextA += 1
        if q < 32:
            issue(("L", q), "ds_read_b128 %s, v5 offset:%d" % (bslot(q), 64 * (lo_frags[q] + 8)))
        n += 1
    st_(A, 5)
    def tile_epilogue(t):
        u0 = UREG + 2 * (t % 2)
        ac = ACC + 4 * t
        fill.append(lambda: wait_for([("U", t)] + ([("L", 31)] if t == 0 else [])))
        P = Asm()
        P("v_and_b32 v12, s40, %s" % v(u0 + 1))
        P("v_lshlrev_b32 v13, 16, %s" % v(u0 + 1))
        P("v_and_b32 v14, s40, %s" % v(u0))
        P("v_lshlrev_b32 v15, 16, %s" % v(u0))
        if FAST:
            P("s_nop 0"); P("s_nop 0")
            P("v_pk_fma_f32 v[12:13], v[12:13], v[18:19], %s" % v(ac, 2))
            P("v_pk_fma_f32 v[14:15], v[14:15], v[18:19], %s" % v(ac + 2, 2))
            P("s_nop 0")
        else:
            P("v_pk_mul_f32 v[12:13], v[12:13], v[18:19]")
            P("v_pk_mul_f32 v[14:15], v[14:15], v[18:19]")
            round_pair(P, 12, 13, 16, 40)
            round_pair(P, 14, 15, 17, 40)
            round_pair(P, ac, ac + 1, 16, 40)
            round_pair(P, ac + 2, ac + 3, 17, 40)
            P("v_pk_add_f32 v[12:13], v[12:13], %s" % v(ac, 2))
            P("v_pk_add_f32 v[14:15], v[14:15], %s" % v(ac + 2, 2))
        P("v_cvt_pk_bf16_f32 v16, v12, v13")
        P("v_cvt_pk_bf16_f32 v17, v14, v15")
        for l in P.lines:
            add_plain(l.strip())
        fill.append(lambda: issue(("Y", t), "ds_write_b64 v6, v[16:17] offset:%d" % (512 * t)))
        fill.append(lambda: A("v_mov_b32 v8, %d" % (t + 1)))
        for _ in range(3):
            fill.append(lambda: None)
        fill.append(lambda: wait_for([("Y", t)]))
        fill.append(lambda: issue(("F", t), "ds_write_b32 v10, v8"))
    for o in build_ops(W1, 0, 1024): add_plain(o)
    n1 = len(fill)
    for o in build_ops(W0, 0, 0): add_plain(o)
    n0 = len(fill)
    for q, lst in lo_steps:
        wait_for([("A", n)] + [("L", sl) for _, sl in lst])
        k = len(lst)
        per = int(os.environ.get('FPER', 2)) if k >= 2 else 1
        for i, (t, sl) in enumerate(lst):
            A("v_mfma_f32_16x16x32_bf16 %s, %s, %s, %s" % (v(ACC + 4 * t, 4), v(RING + 4 * (n % NR), 4), bslot(sl), v(ACC + 4 * t, 4)))
            if i < k - 1 or k == 1:
                emit_fill(per)
        if nextA < len(aseq):
            qq = aseq[nextA]
            if nextA >= 33 and qq >= 33:
                assert cnt[0] >= n1
            if nextA >= 33 and qq >= 49:
                assert cnt[0] >= n0
            a_issue(nextA); nextA += 1
        n += 1
        if q % 8 == 4:
            t = q // 8
            issue(("U", t), "ds_read_b64 %s, v7 offset:%d" % (v(UREG + 2 * (t % 2), 2), 512 * (7 - t)))
        if q >= 9 and (q - 9) % 8 == 0 and (q - 9) // 8 < 7:
            tile_epilogue((q - 9) // 8)
    A.nop(4)
    st_(A, 6)
    tile_epilogue(7)
    emit_fill(1000)
    st_(A, 7)
    dbg_time(A, 1)
    gen_partial_gather(A)
    st_(A, 9, end=True)
    A("s_endpgm")

XQ = 208
def h_early_loads(A):
    srd(A, 16, PQ, S * ROWB)
    A("v_and_b32 v201, 255, v0")
    A("s_movk_i32 s63, 1152")
    A("v_mul_lo_u32 v200, v201, s63")
    A("s_lshl_b32 s63, s41, 3")
    A("v_add_u32 v200, s63, v200")
    return 8

def strip_loads(A):
    h_early_loads(A)
    if os.environ.get("NOSTRIP"):
        for t in range(8):
            A("s_nop 0")
            A("buffer_load_dwordx2 %s, v1, s[16:19], 0 offen" % v(XQ + 2 * t, 2))
        return
    A("s_mov_b32 s63, 0")
    for t in range(8):
        A("buffer_load_dwordx2 %s, v200, s[16:19], s63 offen" % v(XQ + 2 * t, 2))
        A("s_add_u32 s63, s63, %d" % (256 * 1152))

def q_prefetch(A):
    srd(A, 16, PQ, S * ROWB)
    Ln = A.newlabel("noqpf")
    A("v_and_b32 v202, 15, v0")
    A("v_bfe_u32 v203, v0, 4, 2")
    A("v_mul_u32_u24 v203, 1152, v203")
    A("v_lshl_add_u32 v202, v202, 4, v203")
    A("s_mul_i32 s63, s30, 144")
    A("s_and_b32 s63, s63, 0xffffff80")
    A("s_min_u32 s64, s31, 15")
    A("s_lshl_b32 s64, s64, 7")
    A("s_sub_u32 s65, s42, 4")
    A("s_lshl_b32 s65, s65, 5")
    A("s_add_u32 s64, s64, s65")
    A("s_mul_i32 s64, s64, 1152")
    A("s_add_u32 s63, s63, s64")
    for i in range(8):
        A("buffer_load_dwordx4 v[204:207], v202, s[16:19], s63 offen")
        A("s_add_u32 s63, s63, %d" % (4 * 1152))

def gen_H(A):
    srd(A, 20, POUT, S * ROWB)
    T = "s%d" % TAG
    A("v_and_b32 v1, 63, v0")
    A("v_mov_b32 v5, v201")
    A("v_mov_b32 v6, v200")
    A("v_lshlrev_b32 v7, 3, v5")
    RG = 160
    X, XN, T1 = 64, 96, 128
    A("s_setprio %d" % int(os.environ.get("HPRIO", 1)))
    for r in range(32):
        A("v_mov_b32 %s, 0" % v(X + r))
    A("v_lshlrev_b32 v8, 4, v1")
    A("v_lshrrev_b32 v9, 4, v1")
    A("v_lshlrev_b32 v9, 3, v9")
    A("s_lshl_b32 s48, s44, 12")
    A("s_add_u32 s48, s48, %d" % F_XT)
    A("s_lshl_b32 s50, s44, 7")
    A("s_add_u32 s50, s50, %d" % F_XC)
    P, C, Tm = 224, 240, 244
    A("s_sleep %d" % int(os.environ.get("ROWPRE", 32)))
    def row_loads():
        for t in range(8):
            A("s_mov_b32 s51, %d" % (F_ROWG + 2048 * t))
            A("buffer_load_dwordx2 %s, v7, s[36:39], s51 offen sc1" % v(RG + 2 * t, 2))
    row_loads()
    Lp = A.newlabel("hp"); Ld = A.newlabel("hok")
    A("s_mov_b32 s52, 0")
    A.label(Lp)
    for i in range(4):
        A("buffer_load_dwordx4 %s, v8, s[36:39], s48 offen offset:%d sc1" % (v(P + 4 * i, 4), 1024 * i))
    for i in range(4):
        A("buffer_load_dword %s, v9, s[36:39], s50 offen offset:%d sc1" % (v(C + i), 32 * i))
    A("s_waitcnt vmcnt(0)")
    for i in range(4):
        A("v_xor_b32 %s, %s, %s" % (v(Tm + i), v(P + 4 * i), v(P + 1 + 4 * i)))
    for i in range(4):
        A("v_xor_b32 %s, %s, %s" % (v(Tm + 4 + i), v(P + 2 + 4 * i), v(P + 3 + 4 * i)))
    for i in range(4):
        A("v_xor_b32 %s, %s, %s" % (v(Tm + i), v(Tm + i), v(Tm + 4 + i)))
    row_xor_reduce(A, [Tm, Tm + 1, Tm + 2, Tm + 3])
    for i in range(4):
        A("v_xor_b32 %s, %s, %s" % (v(Tm + i), v(Tm + i), v(C + i)))
    A("v_cmp_eq_u32 vcc, s%d, %s" % (TAG, v(Tm)))
    for i in range(1, 4):
        A("v_cmp_eq_u32 s[54:55], s%d, %s" % (TAG, v(Tm + i)))
        A("s_and_b64 vcc, vcc, s[54:55]")
    A("s_andn2_b64 exec, exec, vcc")
    A("s_cbranch_scc0 %s" % Ld)
    A("s_add_u32 s52, s52, 1")
    A("s_cmp_gt_u32 s52, %d" % POLL_MAX)
    A("s_cbranch_scc1 %s" % Ld)
    A("s_sleep %d" % int(os.environ.get("ROWSLEEP", 8)))
    A("s_branch %s" % Lp)
    A.label(Ld)
    A("s_mov_b64 exec, -1")
    ROWPOLL = True
    st_(A, 10)
    A("v_mov_b32 v11, %d" % FLAGS)
    A("v_mov_b32 v12, 1")
    lds_signal(A, 4, "v11", "v12")
    lds_wait(A, 4, 4, "v11", "v13", sleep=1)
    st_(A, 2 + 7)
    A("v_lshlrev_b32 v8, 1, v5")
    A("s_lshl_b32 s48, s41, 14")
    A("s_add_u32 s48, s48, %d" % F_XT)
    for c in range(4):
        for t in range(8):
            A("buffer_load_short_d16_hi %s, v8, s[36:39], s48 offen offset:%d sc1" % (v(X + 4 * t + c), 512 * t))
        A("s_add_u32 s48, s48, 4096")
    first_then_poll(A, "row", row_loads, list(range(RG + 1, RG + 16, 2)), int(os.environ.get("ROWSLEEP", 8)), "-1", first_cnt=32)
    if FAST:
        for t in range(8):
            st = 176 + 4 * t
            A("v_and_b32 %s, s40, %s" % (v(st), v(RG + 2 * t)))
            A("v_lshlrev_b32 %s, 16, %s" % (v(st + 2), v(RG + 2 * t)))
        for t in range(8):
            st = 176 + 4 * t
            A("v_rcp_f32 %s, %s" % (v(st), v(st)))
        for t in range(8):
            st = 176 + 4 * t
            A("v_mul_f32_e64 %s, -%s, %s" % (v(st + 2), v(st + 2), v(st)))
            A("v_mov_b32 %s, %s" % (v(st + 1), v(st)))
        for t in range(8):
            st = 176 + 4 * t
            A("v_mov_b32 %s, %s" % (v(st + 3), v(st + 2)))
        A("s_waitcnt vmcnt(0)")
        st_(A, 3)
        for t in range(8):
            st = 176 + 4 * t
            for p in range(2):
                x, xn = X + 4 * t + 2 * p, XN + 4 * t + 2 * p
                A("v_pk_fma_f32 %s, %s, %s, %s" % (v(xn, 2), v(x, 2), v(st, 2), v(st + 2, 2)))
    else:
        for t in range(8):
            stats_from_msd(A, RG + 2 * t, 176 + 6 * t, 40)
        A("s_waitcnt vmcnt(0)")
        st_(A, 3)
        for t in range(8):
            st = 176 + 6 * t
            streams = []
            for p in range(2):
                x, xn = X + 4 * t + 2 * p, XN + 4 * t + 2 * p
                tm = 56 + 4 * p
                P = Asm()
                P("v_pk_add_f32 %s, %s, %s" % (v(tm, 2), v(x, 2), v(st, 2)))
                round_pair(P, tm, tm + 1, tm + 2, 40)
                P("v_pk_mul_f32 %s, %s, %s" % (v(xn, 2), v(tm, 2), v(st + 2, 2)))
                P("v_pk_fma_f32 %s, %s, %s, %s" % (v(tm, 2), v(xn, 2), v(st + 4, 2), v(tm, 2)))
                P("v_pk_fma_f32 %s, %s, %s, %s" % (v(xn, 2), v(tm, 2), v(st + 2, 2), v(xn, 2)))
                round_pair(P, xn, xn + 1, tm + 2, 40)
                streams.append([l.strip() for l in P.lines])
            interleave(A, streams)
    st_(A, 4)
    dbg_time(A, 11)
    A("v_lshlrev_b32 v9, 1, v5")
    A("v_add_u32 v9, %d, v9" % YOFF)
    A("v_add_u32 v10, %d, v9" % (2 * CH_LDS))
    A("v_mov_b32 v11, %d" % FLAGS)
    for i in range(4):
        A("v_mov_b32 %s, 0" % v(40 + i))
    A("v_and_b32 v8, 7, v1")
    A("v_lshlrev_b32 v8, 3, v8")
    def sel_loads():
        A("s_movk_i32 s51, %d" % F_SELG)
        A("buffer_load_dwordx2 v[180:181], v8, s[36:39], s51 offen sc1")
    sel_loads_m = sel_loads
    masked_poll(A, "sel", sel_loads_m, [181], 4, 0)
    A("v_lshrrev_b32 v183, 16, v180")
    A("v_and_b32 v46, 0x8000, v183")
    A("v_mov_b32 v47, 0xffff")
    A("v_mov_b32 v48, 0x8000")
    A("v_cmp_ne_u32 vcc, 0, v46")
    A("v_and_b32 v182, 0xffff, v180")
    A("v_sub_u32 v182, 2047, v182")
    A("v_cndmask_b32 v47, v47, v48, vcc")
    A("v_xor_b32 v183, v183, v47")
    A("v_lshlrev_b32 v183, 16, v183")
    A("v_mul_f32 v183, 0xbfb8aa3b, v183")
    A("v_exp_f32 v183, v183")
    A.nop(1)
    A("v_add_f32 v183, 1.0, v183")
    A("v_rcp_f32 v183, v183")
    A.nop(1)
    A("v_cvt_pk_bf16_f32 v183, v183, v183")
    A("v_lshlrev_b32 v183, 16, v183")
    A("v_mov_b32 v184, 0")
    for i in range(8):
        A("v_readlane_b32 s51, v182, %d" % i)
        A("s_nop 3")
        A("s_lshr_b32 s58, s51, 8")
        A("s_lshl_b32 s58, 1, s58")
        A("s_and_b32 s51, s51, 255")
        A("v_mov_b32 v185, s58")
        A("v_cmp_eq_u32 vcc, s51, v5")
        A("s_nop 1")
        A("v_cndmask_b32 v185, 0, v185, vcc")
        A("v_or_b32 v184, v184, v185")
    A("s_mov_b32 s59, 0")
    A("s_setprio %d" % int(os.environ.get("HPRIO2", 1)))
    for t in range(8):
        Lw = A.newlabel("yw"); Lg = A.newlabel("yg")
        A("s_cmp_gt_u32 s59, %d" % t)
        A("s_cbranch_scc1 %s" % Lg)
        A("s_mov_b32 s52, 0")
        A.label(Lw)
        A("ds_read_b128 v[16:19], v11")
        A("s_add_u32 s52, s52, 1")
        A("s_waitcnt lgkmcnt(0)")
        A("v_min_u32 v16, v16, v17")
        A("v_min3_u32 v16, v16, v18, v19")
        A("s_cmp_gt_u32 s52, %d" % POLL_MAX)
        A("v_readfirstlane_b32 s59, v16")
        A("s_cbranch_scc1 %s" % Lg)
        A("s_nop 1")
        A("s_cmp_gt_u32 s59, %d" % t)
        A("s_cbranch_scc1 %s" % Lg)
        A("s_sleep 1")
        A("s_branch %s" % Lw)
        A.label(Lg)
        if os.environ.get("HST") and t in (0, 2, 4, 7):
            st_(A, {0: 11, 2: 12, 4: 13, 7: 14}[t])
        A("ds_read_u16_d16_hi v40, v9 offset:%d" % (512 * t))
        A("ds_read_u16_d16_hi v41, v9 offset:%d" % (512 * t + CH_LDS))
        A("ds_read_u16_d16_hi v42, v10 offset:%d" % (512 * t))
        A("ds_read_u16_d16_hi v43, v10 offset:%d" % (512 * t + CH_LDS))
        A("s_waitcnt lgkmcnt(0)")
        if FAST:
            for p in range(2):
                x, xn, t1 = X + 4 * t + 2 * p, XN + 4 * t + 2 * p, T1 + 4 * t + 2 * p
                A("v_pk_fma_f32 %s, %s, %s, %s" % (v(t1, 2), v(xn, 2), v(40 + 2 * p, 2), v(xn, 2)))
            for p in range(2):
                x, xn, t1 = X + 4 * t + 2 * p, XN + 4 * t + 2 * p, T1 + 4 * t + 2 * p
                A("v_pk_add_f32 %s, %s, %s" % (v(t1, 2), v(t1, 2), v(x, 2)))
            for p in range(2):
                t1 = T1 + 4 * t + 2 * p
                A("v_cvt_pk_bf16_f32 %s, %s, %s" % (v(44 + 2 * (t % 2) + p), v(t1), v(t1 + 1)))
        else:
            streams = []
            for p in range(2):
                x, xn, t1 = X + 4 * t + 2 * p, XN + 4 * t + 2 * p, T1 + 4 * t + 2 * p
                tm = 56 + 4 * p
                P = Asm()
                P("v_pk_mul_f32 %s, %s, %s" % (v(tm, 2), v(xn, 2), v(40 + 2 * p, 2)))
                round_pair(P, tm, tm + 1, tm + 2, 40)
                P("v_pk_add_f32 %s, %s, %s" % (v(t1, 2), v(x, 2), v(tm, 2)))
                round_pair(P, t1, t1 + 1, tm + 2, 40)
                P("v_pk_add_f32 %s, %s, %s" % (v(tm, 2), v(t1, 2), v(xn, 2)))
                P("v_cvt_pk_bf16_f32 %s, %s, %s" % (v(44 + 2 * (t % 2) + p), v(tm), v(tm + 1)))
                streams.append([l.strip() for l in P.lines])
            interleave(A, streams)
        A("v_and_b32 v48, %d, v184" % (1 << t))
        A("s_mov_b32 s51, %d" % (t * 256 * 1152))
        A("v_cmp_eq_u32 vcc, 0, v48")
        A("s_mov_b64 exec, vcc")
        A("buffer_store_dwordx2 %s, v6, s[20:23], s51 offen" % v(44 + 2 * (t % 2), 2) + os.environ.get("OUTPOL", ""))
        A("s_mov_b64 exec, -1")
    st_(A, 5)
    dbg_time(A, 9)
    for i in range(8):
        Ls = A.newlabel("ns")
        A("v_readlane_b32 s51, v182, %d" % i)
        A("v_mov_b32 v52, %d" % (SIDE + 32 * i))
        A("s_nop 2")
        A("s_bfe_u32 s58, s51, 0x20006")
        A("s_cmp_lg_u32 s58, s43")
        A("s_cbranch_scc1 %s" % Ls)
        A("s_lshr_b32 s58, s51, 8")
        A("s_lshl_b32 s58, s58, 2")
        A("s_and_b32 s51, s51, 255")
        A("v_cmp_eq_u32 vcc, s51, v5")
        A("s_set_gpr_idx_on s58, gpr_idx(SRC0)")
        for k in range(4):
            A("v_mov_b32 %s, %s" % (v(36 + k), v(T1 + k)))
        for k in range(4):
            A("v_mov_b32 %s, %s" % (v(40 + k), v(XN + k)))
        A("s_set_gpr_idx_off")
        A("s_mov_b64 exec, vcc")
        A("ds_write_b128 v52, v[36:39]")
        A("ds_write_b128 v52, v[40:43] offset:16")
        A("s_mov_b64 exec, -1")
        A.label(Ls)
    A("s_waitcnt lgkmcnt(0)")
    A("v_mov_b32 v11, %d" % FLAGS)
    A("v_mov_b32 v12, 1")
    lds_signal(A, 6, "v11", "v12")
    st_(A, 6)
    Lend = A.newlabel("hend")
    A("s_cmp_lg_u32 s42, 4")
    A("s_cbranch_scc1 %s" % Lend)
    A("v_lshlrev_b32 v18, 4, v1")
    A("v_add_u32 v19, %d, v18" % RED)
    A("v_lshlrev_b32 v20, 5, v1")
    A("v_add_u32 v53, %d, v20" % SIDE)
    A("s_movk_i32 s51, 1152")
    A("v_mul_lo_u32 v44, v182, s51")
    A("s_lshl_b32 s51, s41, 3")
    A("v_add_u32 v44, s51, v44")
    lds_wait(A, 6, 4, "v11", "v12", sleep=0)
    A("s_mov_b64 exec, 0xff")
    A("ds_read_b128 v[36:39], v53")
    A("ds_read_b128 v[40:43], v53 offset:16")
    A("s_mov_b64 exec, -1")
    lds_wait(A, 5, 4, "v11", "v12", sleep=0)
    st_(A, 7)
    A("s_mov_b64 exec, 0xff")
    for w in range(4):
        A("ds_read_b128 %s, v19 offset:%d" % (v(20 + 4 * w, 4), 128 * w))
    A("s_waitcnt lgkmcnt(0)")
    for k in range(4):
        A("v_add_f32 %s, %s, %s" % (v(20 + k), v(20 + k), v(24 + k)))
        A("v_add_f32 %s, %s, %s" % (v(28 + k), v(28 + k), v(32 + k)))
    for k in range(4):
        A("v_add_f32 %s, %s, %s" % (v(20 + k), v(20 + k), v(28 + k)))
    if FAST:
        for k in range(4):
            A("v_fma_f32 %s, %s, v183, %s" % (v(20 + k), v(20 + k), v(36 + k)))
        A.nop(1)
    else:
        A.nop(1)
        round_pair(A, 20, 21, 24, 40); round_pair(A, 22, 23, 25, 40)
        for k in range(4):
            A("v_mul_f32 %s, %s, v183" % (v(20 + k), v(20 + k)))
        A.nop(1)
        round_pair(A, 20, 21, 24, 40); round_pair(A, 22, 23, 25, 40)
        for k in range(4):
            A("v_add_f32 %s, %s, %s" % (v(20 + k), v(20 + k), v(40 + k)))
        A.nop(1)
        round_pair(A, 20, 21, 24, 40); round_pair(A, 22, 23, 25, 40)
        for k in range(4):
            A("v_add_f32 %s, %s, %s" % (v(20 + k), v(20 + k), v(36 + k)))
        A.nop(1)
    A("v_cvt_pk_bf16_f32 v24, v20, v21")
    A("v_cvt_pk_bf16_f32 v25, v22, v23")
    A("buffer_store_dwordx2 v[24:25], v44, s[20:23], 0 offen")
    A("s_mov_b64 exec, -1")
    A.label(Lend)
    st_(A, 8, end=True)
    dbg_time(A, 2)
    if os.environ.get("CALD"):
        L = A.newlabel("cal")
        A.label(L)
        A("s_memrealtime s[96:97]")
        A("s_waitcnt lgkmcnt(0)")
        A("s_sub_u32 s96, s96, s100")
        A("s_cmp_lt_u32 s96, %d" % int(os.environ["CALD"]))
        A("s_cbranch_scc1 %s" % L)
    A("s_endpgm")

def gen_conv_wg(A):
    A("s_and_b32 s43, s42, 3")
    A("s_lshl_b32 s44, s41, 2")
    A("s_add_u32 s44, s44, s43")
    A("s_mul_i32 s45, s43, %d" % CH_LDS)
    Lm = A.newlabel("cm"); Lh = A.newlabel("ch"); Lj = A.newlabel("cj")
    dbg_time(A, 0)
    A("s_lshr_b32 s60, s41, 4")
    A("s_and_b32 s61, s41, 15")
    A("v_mov_b32 v200, 0"); A("v_mov_b32 v201, 0")
    A("s_cmp_ge_u32 s42, 4")
    A("s_cbranch_scc1 %s" % Lh)
    A("s_setprio 2")
    gen_kv_issue(A)
    gen_kv_addr(A)
    gen_kv_addr2(A)
    finish_tag(A)
    flags_barrier(A)
    A("s_branch %s" % Lj)
    A.label(Lh)
    gen_kv_addr(A)
    gen_kv_addr2(A)
    finish_tag(A)
    A.label(Lj)
    gen_kv_compute(A)
    publish_alive(A)
    A("s_barrier")
    A("s_cmp_lt_u32 s42, 4")
    A("s_cbranch_scc1 %s" % Lm)
    h_early_loads(A)
    gen_H(A)
    A.label(Lm)
    gen_M(A)

def finish_tag(A):
    A("s_waitcnt lgkmcnt(0)")
    A("s_mul_i32 s%d, s%d, 0x9E3779B1" % (TAG, TAG))
    A("s_add_u32 s%d, s%d, 0x7F4A7C15" % (TAG, TAG))

def flags_barrier(A, alive=False):
    A("v_mov_b32 v36, 0")
    A("v_mov_b32 v37, %d" % FLAGS)
    A("v_mov_b32 v38, 0"); A("v_mov_b32 v39, 0"); A("v_mov_b32 v40, 0"); A("v_mov_b32 v41, 0")
    A("ds_write_b128 v37, v[38:41]")
    A("ds_write_b128 v37, v[38:41] offset:16")
    A("s_waitcnt lgkmcnt(0)")

def publish_alive(A):
    Ln = A.newlabel("noalive")
    A("s_cmp_lg_u32 s42, 0")
    A("s_cbranch_scc1 %s" % Ln)
    A("s_lshl_b32 s63, s41, 2")
    A("s_add_u32 s63, s63, %d" % F_ALIVE)
    A("v_mov_b32 v37, s%d" % TAG)
    A("v_mov_b32 v36, 0")
    A("s_mov_b64 exec, 1")
    A("buffer_store_dword v37, v36, s[36:39], s63 offen sc1")
    A("s_mov_b64 exec, -1")
    A.label(Ln)


BITONIC8 = [(0,4),(1,5),(2,6),(3,7),(0,2),(1,3),(4,6),(5,7),(0,1),(2,3),(4,5),(6,7)]
def merge8(A, a, b, out, spare, dpp=None):
    for i in range(7, -1, -1):
        if dpp:
            A("v_max_u32_dpp %s, %s, %s %s bank_mask:0xf" % (v(out[i]), v(b[7 - i]), v(a[i]), dpp))
        else:
            A("v_max_u32 %s, %s, %s" % (v(out[i]), v(a[i]), v(b[7 - i])))
    return sort_desc(A, out, spare, BITONIC8)

def top8_wave(A, regs, spare, other):
    cur, oth = list(regs), list(other)
    for ctl in ("quad_perm:[1,0,3,2] row_mask:0xf", "quad_perm:[2,3,0,1] row_mask:0xf", "row_half_mirror row_mask:0xf",
                "row_mirror row_mask:0xf", "row_bcast:15 row_mask:0xa", "row_bcast:31 row_mask:0xc"):
        A.nop(1)
        free = list(cur)
        new, spare2 = merge8(A, cur, cur, oth, spare, dpp=ctl)
        pool = [r for r in (free + oth + [spare]) if r not in new]
        spare = pool[0]
        oth = pool[1:9]
        cur = new
    return cur, spare, oth

L_CNT = 162368

def lds_signal(A, k, vaddr, vone):
    A("s_mov_b64 exec, 1")
    A("ds_add_u32 %s, %s offset:%d" % (vaddr, vone, 4 * k))
    A("s_mov_b64 exec, -1")

def lds_wait(A, k, n, vaddr, vtmp, sleep=0):
    L = A.newlabel("lw"); Ld = A.newlabel("lwd")
    A("s_mov_b32 s52, 0")
    A.label(L)
    A("ds_read_b32 %s, %s offset:%d" % (vtmp, vaddr, 4 * k))
    A("s_add_u32 s52, s52, 1")
    A("s_waitcnt lgkmcnt(0)")
    A("s_cmp_gt_u32 s52, %d" % (POLL_MAX * 8))
    A("v_readfirstlane_b32 s51, %s" % vtmp)
    A("s_cbranch_scc1 %s" % Ld)
    A("s_nop 1")
    A("s_cmp_ge_u32 s51, %d" % n)
    A("s_cbranch_scc1 %s" % Ld)
    if sleep:
        A("s_sleep %d" % sleep)
    A("s_branch %s" % L)
    A.label(Ld)

def gen_moe_wg(A):
    T = "s%d" % TAG
    A("v_and_b32 v1, 63, v0")
    A("v_and_b32 v4, 255, v0")
    A("v_mov_b32 v8, %d" % L_CNT)
    A("v_mov_b32 v9, 1")
    Lt = A.newlabel("twave")
    A("s_cmp_ge_u32 s42, 4")
    A("s_cbranch_scc1 %s" % Lt)
    G, U, WD = 16, 88, 160
    A("v_mov_b32 v232, 0"); A("v_mov_b32 v233, 0"); A("v_mov_b32 v234, 0"); A("v_mov_b32 v235, 0")
    A("ds_write_b128 v8, v[232:235]"); A("ds_write_b128 v8, v[232:235] offset:16")
    srd(A, 48, PWG, D * F * 2)
    srd(A, 52, PWU, D * F * 2)
    srd(A, 56, PWD, D * F * 2)
    A("v_lshrrev_b32 v5, 3, v1")
    A("v_mul_u32_u24 v5, 9216, v5")
    A("v_bfe_u32 v6, v1, 4, 1")
    A("s_and_b32 s43, s42, 1")
    A("s_lshl_b32 s43, s43, 1")
    A("v_or_b32 v6, s43, v6")
    A("v_lshlrev_b32 v6, 1, v6")
    A("v_and_b32 v7, 7, v1")
    A("v_xor_b32 v6, v6, v7")
    A("v_lshl_add_u32 v5, v6, 4, v5")
    A("s_lshl_b32 s43, s41, 7")
    A("s_mul_i32 s44, s42, 73728")
    A("s_add_u32 s43, s43, s44")
    A("s_lshl_b32 s44, s42, 10")
    A("s_waitcnt lgkmcnt(0)")
    B0AT = int(os.environ.get("B0AT", 0))
    for j in range(18):
        if j == B0AT:
            A("s_barrier")
        A("s_mov_b32 m0, s44")
        A("s_add_u32 s45, s44, %d" % L_WU)
        A("buffer_load_dwordx4 v5, s[48:51], s43 offen lds" + NTS)
        A("s_mov_b32 m0, s45")
        A("s_add_u32 s44, s44, 4096")
        A("buffer_load_dwordx4 v5, s[52:55], s43 offen lds" + NTS)
        A("s_add_u32 s43, s43, %d" % (4 * 73728))
    A("v_lshrrev_b32 v6, 3, v4")
    A("v_mul_u32_u24 v7, 1152, v6")
    A("v_and_b32 v12, 7, v4")
    A("v_lshl_add_u32 v236, v12, 4, v7")
    A("v_bfe_u32 v14, v6, 1, 1")
    A("v_bfe_u32 v11, v6, 3, 1")
    A("v_lshl_add_u32 v14, v11, 1, v14")
    A("v_lshlrev_b32 v14, 1, v14")
    A("v_xor_b32 v14, v14, v12")
    A("v_lshl_add_u32 v14, v14, 4, v7")
    A("v_add_u32 v15, 36864, v14")
    A("v_and_b32 v2, 15, v0")
    A("v_bfe_u32 v3, v0, 4, 2")
    A("v_lshrrev_b32 v10, 2, v2")
    A("v_lshl_add_u32 v11, v3, 3, v10")
    A("v_bfe_u32 v12, v2, 3, 1")
    A("v_and_b32 v13, 1, v3")
    A("v_lshl_add_u32 v12, v13, 1, v12")
    A("v_xor_b32 v12, s42, v12")
    A("v_and_b32 v13, 3, v2")
    A("v_lshlrev_b32 v13, 3, v13")
    A("v_lshl_add_u32 v12, v12, 5, v13")
    A("v_lshl_add_u32 v5, v11, 7, v12")
    A("v_add_u32 v6, 36864, v5")
    A("v_mul_u32_u24 v7, 1152, v11")
    A("v_add_u32 v7, v7, v12")
    A("v_add_u32 v10, 36864, v7")
    st_(A, 1)
    A("v_add_u32 v12, %d, v5" % L_WU)
    A("v_add_u32 v13, %d, v6" % L_WU)
    nst = 1 if (common.STAMPS and not LIGHT) else 0
    A("v_lshrrev_b32 v232, 3, v1")
    A("v_mul_u32_u24 v232, 1152, v232")
    A("v_bfe_u32 v233, v1, 4, 1")
    A("s_and_b32 s43, s42, 1")
    A("s_lshl_b32 s43, s43, 1")
    A("v_or_b32 v233, s43, v233")
    A("v_lshlrev_b32 v233, 1, v233")
    A("v_and_b32 v234, 7, v1")
    A("v_xor_b32 v233, v233, v234")
    A("v_lshl_add_u32 v236, v233, 4, v232")
    def rd6(ph):
        for kk in range(6 * ph, 6 * ph + 6):
            bg, bu, ko = ("v5", "v12", kk) if kk < 9 else ("v6", "v13", kk - 9)
            A("ds_read_b64_tr_b16 %s, %s offset:%d" % (v(G + 4 * kk, 2), bg, 4096 * ko))
            A("ds_read_b64_tr_b16 %s, %s offset:%d" % (v(G + 4 * kk + 2, 2), bg, 4096 * ko + 512))
            A("ds_read_b64_tr_b16 %s, %s offset:%d" % (v(U + 4 * kk, 2), bu, 4096 * ko))
            A("ds_read_b64_tr_b16 %s, %s offset:%d" % (v(U + 4 * kk + 2, 2), bu, 4096 * ko + 512))
    A("s_waitcnt vmcnt(%d)" % (24 + nst))
    lds_signal(A, 0, "v8", "v9")
    lds_wait(A, 0, 4, "v8", "v11")
    rd6(0)
    A("s_waitcnt vmcnt(%d)" % (12 + nst))
    lds_signal(A, 7, "v8", "v9")
    lds_wait(A, 7, 4, "v8", "v11")
    rd6(1)
    A("s_waitcnt lgkmcnt(0)")
    lds_signal(A, 1, "v8", "v9")
    lds_wait(A, 1, 4, "v8", "v11")
    for half in range(2):
        A("s_mul_i32 s43, s41, 73728")
        A("s_mul_i32 s44, s42, 9216")
        A("s_add_u32 s43, s43, s44")
        if half:
            A("s_add_u32 s43, s43, 36864")
            A("s_add_u32 s44, s44, %d" % L_WU)
        for sg in range(9):
            A("s_mov_b32 m0, s44")
            A("s_add_u32 s44, s44, 1024")
            A("buffer_load_dwordx4 v236, s[56:59], s43 offen offset:%d lds" % 0 + NTS)
            A("s_add_u32 s43, s43, 128")
    A("s_waitcnt vmcnt(18)")
    lds_signal(A, 6, "v8", "v9")
    lds_wait(A, 6, 4, "v8", "v11")
    st_(A, 2)
    dbg_time(A, 7)
    rd6(2)
    st_(A, 7)
    A("v_lshrrev_b32 v232, 2, v2")
    A("v_mul_u32_u24 v14, 9216, v3")
    A("v_lshl_add_u32 v14, v232, 7, v14")
    A("v_bfe_u32 v233, v2, 3, 1")
    A("v_and_b32 v234, 1, v3")
    A("v_lshl_add_u32 v233, v234, 1, v233")
    A("v_xor_b32 v233, s42, v233")
    A("v_lshl_add_u32 v14, v233, 5, v14")
    A("v_and_b32 v234, 3, v2")
    A("v_lshl_add_u32 v14, v234, 3, v14")
    A("v_add_u32 v15, %d, v14" % L_WU)
    A("v_and_b32 v12, 7, v2")
    A("v_mul_u32_u24 v5, %d, v12" % XSTR)
    A("v_lshl_add_u32 v5, v3, 4, v5")
    A("v_add_u32 v5, %d, v5" % L_X)
    A("v_mul_u32_u24 v6, %d, v2" % HSTR)
    A("v_lshl_add_u32 v6, v3, 3, v6")
    A("s_lshl_b32 s43, s42, 5")
    A("s_add_u32 s43, s43, %d" % L_HS)
    A("v_add_u32 v6, s43, v6")
    A("v_mul_u32_u24 v7, %d, v12" % HSTR)
    A("v_lshl_add_u32 v7, v3, 4, v7")
    A("v_add_u32 v7, %d, v7" % L_HS)
    A("v_mul_u32_u24 v10, 2304, v12")
    A("v_lshl_add_u32 v10, v3, 4, v10")
    A("v_bfe_u32 v13, v2, 3, 1")
    A("v_lshl_add_u32 v10, v13, 8, v10")
    A("v_cmp_eq_u32 s[56:57], 1, v13")
    A("s_mul_i32 s43, s41, 18432")
    A("s_lshl_b32 s44, s42, 6")
    A("s_add_u32 s43, s43, s44")
    A("s_add_u32 s43, s43, %d" % F_PARTG)
    A("v_mov_b32 v13, %d" % L_TAG)
    for i in range(8):
        A("v_mov_b32 %s, 0" % v(232 + i))
    A("s_waitcnt lgkmcnt(0)")
    LW = A.newlabel("Wb"); LG = A.newlabel("Gb"); LD = A.newlabel("Db")
    A("s_mov_b32 s14, 0"); A("s_mov_b32 s15, 0")
    A("ds_read_b32 v11, v8 offset:16")
    A("s_waitcnt lgkmcnt(0)")
    A("v_readfirstlane_b32 s51, v11")
    A("s_nop 3")
    A("s_cmp_ge_u32 s51, 4")
    A("s_cbranch_scc1 %s" % LG)
    A.label(LW)
    A("s_waitcnt vmcnt(0)")
    lds_signal(A, 2, "v8", "v9")
    lds_wait(A, 2, 4, "v8", "v11")
    for k in range(9):
        r = WD + 8 * k
        A("ds_read_b64_tr_b16 %s, v14 offset:%d" % (v(r, 2), 1024 * k))
        A("ds_read_b64_tr_b16 %s, v14 offset:%d" % (v(r + 2, 2), 1024 * k + 512))
        A("ds_read_b64_tr_b16 %s, v15 offset:%d" % (v(r + 4, 2), 1024 * k))
        A("ds_read_b64_tr_b16 %s, v15 offset:%d" % (v(r + 6, 2), 1024 * k + 512))
    A("s_waitcnt lgkmcnt(0)")
    A("s_mov_b32 s14, 1")
    st_(A, 3)
    dbg_time(A, 12)
    A("s_cmp_eq_u32 s15, 1")
    A("s_cbranch_scc1 %s" % LD)
    A.label(LG)
    lds_wait(A, 4, 4, "v8", "v11")
    st_(A, 4)
    A("ds_read_b32 v12, v13")
    XR = 240
    for kk in range(3):
        A("ds_read_b128 %s, v5 offset:%d" % (v(XR + 4 * kk, 4), 64 * kk))
    for kk in range(18):
        if kk + 3 < 18:
            A("ds_read_b128 %s, v5 offset:%d" % (v(XR + 4 * ((kk + 3) % 4), 4), 64 * (kk + 3)))
        A("s_waitcnt lgkmcnt(%d)" % min(3, 17 - kk))
        x = v(XR + 4 * (kk % 4), 4)
        A("v_mfma_f32_16x16x32_bf16 v[232:235], %s, %s, v[232:235]" % (v(G + 4 * kk, 4), x))
        A("v_mfma_f32_16x16x32_bf16 v[236:239], %s, %s, v[236:239]" % (v(U + 4 * kk, 4), x))
    A("v_readfirstlane_b32 %s, v12" % T)
    A.nop(6)
    if FAST:
        for i in range(4):
            A("v_mul_f32 %s, 0xbfb8aa3b, %s" % (v(20 + i), v(232 + i)))
        for i in range(4):
            A("v_exp_f32 %s, %s" % (v(20 + i), v(20 + i)))
        for i in range(4):
            A("v_mul_f32 %s, %s, %s" % (v(232 + i), v(232 + i), v(236 + i)))
        for i in range(4):
            A("v_add_f32 %s, 1.0, %s" % (v(20 + i), v(20 + i)))
        for i in range(4):
            A("v_rcp_f32 %s, %s" % (v(20 + i), v(20 + i)))
        A.nop(1)
        for i in range(4):
            A("v_mul_f32 %s, %s, %s" % (v(232 + i), v(232 + i), v(20 + i)))
        A.nop(1)
    else:
        round_pair(A, 232, 233, 16, 40); round_pair(A, 234, 235, 17, 40)
        for i in range(4):
            A("v_mul_f32 %s, 0xbfb8aa3b, %s" % (v(20 + i), v(232 + i)))
        for i in range(4):
            A("v_exp_f32 %s, %s" % (v(20 + i), v(20 + i)))
        round_pair(A, 236, 237, 16, 40); round_pair(A, 238, 239, 17, 40)
        for i in range(4):
            A("v_add_f32 %s, 1.0, %s" % (v(20 + i), v(20 + i)))
        for i in range(4):
            A("v_rcp_f32 %s, %s" % (v(20 + i), v(20 + i)))
        A.nop(1)
        for i in range(4):
            A("v_mul_f32 %s, %s, %s" % (v(232 + i), v(232 + i), v(20 + i)))
        A.nop(1)
        round_pair(A, 232, 233, 16, 40); round_pair(A, 234, 235, 17, 40)
        for i in range(4):
            A("v_mul_f32 %s, %s, %s" % (v(232 + i), v(232 + i), v(236 + i)))
        A.nop(1)
    A("v_cvt_pk_bf16_f32 v16, v232, v233")
    A("v_cvt_pk_bf16_f32 v17, v234, v235")
    A("v_cmp_gt_u32 vcc, 8, v2")
    A("s_and_saveexec_b64 s[44:45], vcc")
    A("ds_write_b64 v6, v[16:17]")
    A("s_mov_b64 exec, s[44:45]")
    A("s_mov_b32 s58, 0xffffff00")
    A("s_movk_i32 s59, 0x80")
    A("s_waitcnt lgkmcnt(0)")
    lds_signal(A, 5, "v8", "v9")
    A("s_mov_b32 s15, 1")
    A("s_cmp_eq_u32 s14, 0")
    A("s_cbranch_scc1 %s" % LW)
    A.label(LD)
    lds_wait(A, 5, 4, "v8", "v11")
    st_(A, 5)
    A("ds_read_b128 v[16:19], v7")
    A("ds_read_b128 v[20:23], v7 offset:64")
    A("s_waitcnt lgkmcnt(0)")
    AC = 88
    for k in range(9):
        r = WD + 8 * k
        A("v_mfma_f32_16x16x32_bf16 %s, %s, v[16:19], 0" % (v(AC + 4 * k, 4), v(r, 4)))
    for k in range(9):
        r = WD + 8 * k
        A("v_mfma_f32_16x16x32_bf16 %s, %s, v[20:23], %s" % (v(AC + 4 * k, 4), v(r + 4, 4), v(AC + 4 * k, 4)))
    A.nop(4)
    for kp in range(5):
        k = 2 * kp
        ac, ac2 = AC + 4 * k, AC + 4 * min(k + 1, 8)
        o = 24 + 8 * kp
        for i in range(4):
            A("v_cndmask_b32 %s, %s, %s, s[56:57]" % (v(o + i), v(ac + i), v(ac2 + i)))
        for i in range(4):
            A("v_add_u32 %s, s59, %s" % (v(o + i), v(o + i)))
        A("v_lshrrev_b32 %s, 24, %s" % (v(o + 4), v(o + 3)))
        A("v_lshrrev_b32 %s, 16, %s" % (v(o + 5), v(o + 3)))
        A("v_lshrrev_b32 %s, 8, %s" % (v(o + 6), v(o + 3)))
        for i in range(3):
            A("v_bfi_b32 %s, s58, %s, %s" % (v(o + 4 + i), v(o + i), v(o + 4 + i)))
        A("v_xor_b32 %s, %s, %s" % (v(o + 7), v(o + 4), v(o + 5)))
        A("v_xor_b32 %s, %s, %s" % (v(o + 7), v(o + 7), v(o + 6)))
        A("v_xor_b32 %s, %s, %s" % (v(o + 7), T, v(o + 7)))
        if kp == 4:
            A("s_andn2_b64 exec, exec, s[56:57]")
        A("buffer_store_dwordx4 %s, v10, s[36:39], s43 offen offset:%d sc1" % (v(o + 4, 4), 512 * kp))
    A("s_mov_b64 exec, -1")
    st_(A, 6, end=True)
    dbg_time(A, 3)
    A("s_endpgm")
    A.label(Lt)
    A("s_setprio 3")
    A("s_lshl_b32 s60, s41, 2")
    A("s_add_u32 s60, s60, s42")
    A("s_sub_u32 s60, s60, 4")
    Q, WR, X = gen_ln(A)
    A("s_barrier")
    finish_tag(A)
    gen_ln_compute(A, Q, WR, X)
    A("s_setprio %d" % int(os.environ.get("TPRIO", 1)))
    srd(A, 16, PQ, S * ROWB)
    A("v_and_b32 v1, 63, v0")
    A("v_and_b32 v4, 255, v0")
    A("v_mov_b32 v8, %d" % L_CNT)
    A("v_mov_b32 v9, 1")
    A("v_lshlrev_b32 v15, 2, v1")
    A("v_lshlrev_b32 v16, 4, v1")
    A("s_and_b32 s43, s42, 3")
    A("s_lshl_b32 s43, s43, 12")
    A("v_add_u32 v16, s43, v16")
    def key_loads():
        A("s_movk_i32 s43, %d" % F_KEYG)
        for i in range(4):
            A("buffer_load_dwordx4 %s, v16, s[36:39], s43 offen offset:%d sc1" % (v(40 + 4 * i, 4), 1024 * i))
    masked_poll(A, "key", key_loads, list(range(41, 56, 2)), int(os.environ.get("KEYSLEEP", 8)), int(os.environ.get("KEYPRE", 70)))
    A("s_setprio 3")
    st_(A, 3)
    dbg_time(A, 6)
    regs, sp = sort_desc(A, range(40, 56, 2), 41, SORT8)
    SK = 60
    free = [r for r in range(40, 57) if r not in regs and r != sp]
    cur, sp, oth = top8_wave(A, regs, sp, free[:8])
    for i in range(8):
        A("v_mov_b32 %s, %s" % (v(64 + i), v(cur[i])))
    A("s_and_b32 s43, s42, 3")
    A("s_lshl_b32 s43, s43, 5")
    A("s_add_u32 s43, s43, %d" % L_CAND)
    A("v_mov_b32 v16, s43")
    A("v_mov_b32 v31, %s" % T)
    A("v_mov_b32 v17, %d" % L_TAG)
    A("s_mov_b32 exec_lo, 0")
    A("s_mov_b32 exec_hi, 0x80000000")
    A("ds_write_b128 v16, v[64:67]")
    A("ds_write_b128 v16, v[68:71] offset:16")
    A("ds_write_b32 v17, v31")
    A("s_mov_b64 exec, -1")
    A("s_waitcnt lgkmcnt(0)")
    lds_signal(A, 3, "v8", "v9")
    lds_wait(A, 3, 4, "v8", "v11")
    A("v_mov_b32 v16, %d" % L_CAND)
    for i in range(8):
        A("ds_read_b128 %s, v16 offset:%d" % (v(64 + 4 * i, 4), 16 * i))
    A("s_waitcnt lgkmcnt(4)")
    c01, sp1 = merge8(A, list(range(64, 72)), list(range(72, 80)), list(range(40, 48)), 56)
    A("s_waitcnt lgkmcnt(0)")
    c23, sp2 = merge8(A, list(range(80, 88)), list(range(88, 96)), list(range(48, 56)), 57)
    for i in range(8):
        A("v_max_u32 %s, %s, %s" % (v(64 + i), v(c01[i]), v(c23[7 - i])))
    for i in range(8):
        A("v_readfirstlane_b32 %s, %s" % (s(SK + i), v(64 + i)))
    A.nop(3)
    st_(A, 5)
    A("s_and_b32 s45, s42, 3")
    A("s_mov_b32 s43, s60"); A("s_mov_b32 s44, s61")
    for w in range(1, 4):
        A("s_cmp_eq_u32 s45, %d" % w)
        A("s_cselect_b32 s43, %s, s43" % s(SK + 2 * w))
        A("s_cselect_b32 s44, %s, s44" % s(SK + 2 * w + 1))
    A("v_mov_b32 v16, s43"); A("v_mov_b32 v17, s44")
    A("v_cmp_lt_u32 vcc, 31, v1")
    A.nop(2)
    A("v_cndmask_b32 v16, v16, v17, vcc")
    A("v_and_b32 v16, 0xffff, v16")
    A("v_sub_u32 v16, 2047, v16")
    A("v_and_b32 v17, 31, v1")
    A("s_movk_i32 s43, 1152")
    A("v_mul_lo_u32 v18, v16, s43")
    A("v_lshl_add_u32 v18, v17, 2, v18")
    A("v_lshlrev_b32 v19, 3, v16")
    for i in range(9):
        A("buffer_load_dword %s, v18, s[16:19], 0 offen offset:%d" % (v(20 + i), 128 * i))
    def rg_loads():
        A("s_mov_b32 s43, %d" % F_ROWG)
        A("buffer_load_dwordx2 v[32:33], v19, s[36:39], s43 offen sc1")
    Lns = A.newlabel("nosel")
    A("s_cmp_lg_u32 s41, 0")
    A("s_cbranch_scc1 %s" % Lns)
    A("s_cmp_lg_u32 s42, 4")
    A("s_cbranch_scc1 %s" % Lns)
    for i in range(8):
        A("v_writelane_b32 v30, %s, %d" % (s(SK + i), i))
    A("v_lshlrev_b32 v36, 3, v1")
    A("s_movk_i32 s43, %d" % F_SELG)
    A("s_mov_b64 exec, 0xff")
    A("buffer_store_dwordx2 v[30:31], v36, s[36:39], s43 offen sc1")
    A("s_mov_b64 exec, -1")
    A.label(Lns)
    masked_poll(A, "rg", rg_loads, [33], 2, 0)
    if FAST:
        A("v_and_b32 v64, s40, v32"); A("v_lshlrev_b32 v66, 16, v32")
        A("v_rcp_f32 v64, v64")
        A("v_lshrrev_b32 v38, 5, v4")
        A("v_mul_u32_u24 v38, %d, v38" % XSTR)
        A("v_mul_f32_e64 v66, -v66, v64")
        A("v_mov_b32 v65, v64")
        A("v_lshl_add_u32 v38, v17, 2, v38")
        A("v_mov_b32 v67, v66")
        A("v_add_u32 v38, %d, v38" % L_X)
        st_(A, 4)
        for i in range(9):
            unpack_pair(A, 40 + 2 * i, 41 + 2 * i, 20 + i, 40)
        for i in range(9):
            A("v_pk_fma_f32 %s, %s, v[64:65], v[66:67]" % (v(40 + 2 * i, 2), v(40 + 2 * i, 2)))
        for i in range(9):
            A("v_cvt_pk_bf16_f32 %s, %s, %s" % (v(70 + i), v(40 + 2 * i), v(41 + 2 * i)))
        for i in range(9):
            A("ds_write_b32 v38, %s offset:%d" % (v(70 + i), 128 * i))
    else:
        stats_from_msd(A, 32, 64, 70)
        A("v_lshrrev_b32 v38, 5, v4")
        A("v_mul_u32_u24 v38, %d, v38" % XSTR)
        A("v_lshl_add_u32 v38, v17, 2, v38")
        A("v_add_u32 v38, %d, v38" % L_X)
        st_(A, 4)
        for i0 in range(0, 9, 3):
            streams = []
            for i in range(i0, i0 + 3):
                bs = 40 + 8 * (i % 3)
                ops = norm_ops(bs, bs + 2, bs + 4, 20 + i, 64)
                ops.append("v_cvt_pk_bf16_f32 %s, %s, %s" % (v(bs + 6), v(bs + 2), v(bs + 3)))
                ops.append("ds_write_b32 v38, %s offset:%d" % (v(bs + 6), 128 * i))
                streams.append(ops)
            interleave(A, streams)
    A("s_waitcnt lgkmcnt(0)")
    lds_signal(A, 4, "v8", "v9")
    st_(A, 6)
    dbg_time(A, 4)
    Le = A.newlabel("noep")
    A("s_cmp_lg_u32 s41, 0")
    A("s_cbranch_scc1 %s" % Le)
    A("s_cmp_lg_u32 s42, 4")
    A("s_cbranch_scc1 %s" % Le)
    A("s_setprio 0")
    A("v_lshlrev_b32 v16, 2, v1")
    A("v_min_u32 v17, 15, v1")
    A("v_lshlrev_b32 v17, 2, v17")
    def al_loads():
        A("s_movk_i32 s43, %d" % F_ALIVE)
        A("buffer_load_dword v20, v16, s[36:39], s43 offen sc1")
        A("buffer_load_dword v21, v16, s[36:39], s43 offen offset:256 sc1")
        A("buffer_load_dword v22, v17, s[36:39], s43 offen offset:512 sc1")
    masked_poll(A, "al", al_loads, [20, 21, 22], 16, 0)
    A("v_mov_b32 v20, %s" % T)
    A("v_mov_b32 v21, %d" % F_EPOCH)
    A("s_mov_b64 exec, 1")
    A("buffer_store_dword v20, v21, s[36:39], 0 offen sc1")
    A("s_mov_b64 exec, -1")
    A.label(Le)
    A("s_endpgm")

def gen_spare_wg(A):
    if os.environ.get("SPBAL", "0") != "0":
        A("s_mul_i32 s60, s42, 40")
        A("s_add_u32 s60, s60, s41")
    else:
        A("s_lshl_b32 s60, s41, 3")
        A("s_add_u32 s60, s60, s42")
    A("s_add_u32 s60, s60, 288")
    Lx = A.newlabel("spx")
    A("s_cmp_ge_u32 s60, 512")
    A("s_cbranch_scc1 %s" % Lx)
    Q, WR, X = gen_ln(A)
    finish_tag(A)
    gen_ln_compute(A, Q, WR, X)
    A.label(Lx)
    A("s_endpgm")

def gen_kernel(A, name):
    kernel_header(A, name)
    Ldone = A.newlabel("done"); Lmoe = A.newlabel("moe"); Lsp = A.newlabel("spare")
    if os.environ.get("ICPF", "1") != "0":
        A("s_getpc_b64 s[96:97]")
    if os.environ.get("CALD"):
        A("s_memrealtime s[100:101]")
    A("s_cmp_ge_u32 s2, 256")
    A("s_cbranch_scc1 %s" % Ldone)
    A("s_load_dwordx4 s[68:71], s[0:1], %d" % KA_DBG)
    A("s_load_dwordx16 s[72:87], s[0:1], 0")
    A("s_load_dwordx8 s[88:95], s[0:1], %d" % KA_WG)
    A("v_lshrrev_b32 v1, 6, v0")
    A("s_and_b32 s30, s2, 7")
    A("s_lshr_b32 s31, s2, 3")
    A("v_readfirstlane_b32 s42, v1")
    A("s_mov_b32 s40, 0xffff0000")
    if os.environ.get("ICPF", "1") != "0":
        Lc = A.newlabel("noic")
        A("s_and_b32 s96, s96, 0xffffff00")
        A("s_and_b32 s97, s97, 0xffff")
        A("s_mov_b32 s98, L_code_end-%s" % name)
        A("s_mov_b32 s99, 0x00020000")
        A("v_and_b32 v243, 63, v0")
        A("v_lshlrev_b32 v243, 4, v243")
        A("s_lshl_b32 s95, s31, 10") if False else None
        A("s_lshl_b32 s3, s31, 10")
        A("v_cmp_lt_u32 vcc, 447, v0")
        A("s_cbranch_vccz %s" % Lc)
        A("buffer_load_dwordx4 v[244:247], v243, s[96:99], s3 offen")
        A.label(Lc)
    A("s_waitcnt lgkmcnt(0)")
    A("s_load_dword s%d, s[%d:%d], %d" % (TAG, PWS, PWS + 1, F_EPOCH))
    srd(A, 36, PWS, WS_SIZE)
    A("s_lshl_b32 s3, s2, 3")
    A("s_add_u32 s3, s3, s42")
    st_(A, 0)
    ORD = os.environ.get("ORD", "B")
    if ORD == "A":
        c0, m0, p0 = 0, 18, 27
    else:
        c0, m0, p0 = 14, 5, 0
    A("s_sub_u32 s41, s31, %d" % m0)
    A("s_cmp_lt_u32 s41, 9")
    A("s_cbranch_scc1 %s" % Lmoe)
    A("s_sub_u32 s41, s31, %d" % p0)
    A("s_cmp_lt_u32 s41, 5")
    A("s_cbranch_scc1 %s" % Lsp)
    A("s_sub_u32 s31, s31, %d" % c0)
    A("s_mul_i32 s41, s30, 18")
    A("s_add_u32 s41, s41, s31")
    gen_conv_wg(A)
    A.label(Lmoe)
    A("s_mul_i32 s31, s30, 9")
    A("s_add_u32 s41, s41, s31")
    gen_moe_wg(A)
    A.label(Lsp)
    A("s_mul_i32 s31, s30, 5")
    A("s_add_u32 s41, s41, s31")
    gen_spare_wg(A)
    A.label(Ldone)
    A("s_endpgm")
    A.label("L_code_end")
    return kernel_desc(name, 256, 102, 256)
```

```python
from common import *
import common, os
from collections import deque
from conv2 import CS, CH_LDS, H_OFF, POLL_MAX, conv_schedule
from moe2 import wave_max_u32, L_WG, L_WU, L_X, L_HS, L_U, L_CAND, XSTR, HSTR
from moe3 import SORT8, sort_desc, rounds

F_EPOCH = 0x0
F_SELG = 0x100
F_ALIVE = 0x1000
F_KEYG = 0x2000
F_ROWG = 0x8000
F_LNF = 0x6000
F_URC = 0x100000 + 0x300000
F_UR = 0x20000
F_PARTG = 0x500000
F_XT = 0x800000
F_XC = 0x480000
L_TAG = 162304

PQ, PK, PV, PSHK, PSSMK, PSSMD, PWR, PWG, PWU, PWD, POUT, PWS = 72, 74, 76, 78, 80, 82, 86, 88, 90, 92, 94, 70
TAG = 46
FAST = os.environ.get('FAST', '1') != '0'
QNT = '' if os.environ.get('QDEF') else ' nt'
NTS = '' if os.environ.get('NONT') else ' nt'
LIGHT = os.environ.get("STAMPS") == "2"
def st_(A, n, end=False):
    if LIGHT:
        if n != 0 and not end:
            return
        n = 15 if end else 0
    stamp(A, n, 36, 3, vt=254, st=96)

MISC = 4 * CH_LDS
FLAGS = MISC
SIDE = MISC + 64
RED = SIDE + 256
YOFF = H_OFF
W1, W0 = 20, 28
E_, G_, F_ = 36, 44, 50
UREG = 56
RING, NR, ACC, BS = 64, 6, 88, 120

DBGT = bool(os.environ.get("DBGT"))
def dbg_time(A, slot, invert=False):
    if not DBGT:
        return
    L = A.newlabel("dbgs")
    A("s_and_b32 s100, s42, 3")
    A("s_cmp_lg_u32 s100, 0")
    A("s_cbranch_scc1 %s" % L)
    A("s_cmp_eq_u32 s2, %d" % (8 if os.environ.get("ORD", "B") == "A" else 120))
    A("s_cselect_b32 s100, 1, 0")
    A("s_cmp_eq_u32 s2, %d" % (152 if os.environ.get("ORD", "B") == "A" else int(os.environ.get("DBGMOE", 48))))
    A("s_cselect_b32 s100, 1, s100")
    A("s_cmp_eq_u32 s100, 0")
    A("s_cbranch_scc1 %s" % L)
    A("s_memrealtime s[96:97]")
    A("s_waitcnt lgkmcnt(0)")
    A("v_mov_b32 v252, s96")
    A("v_mov_b32 v253, %d" % (4 * slot))
    A("s_mov_b64 s[98:99], exec")
    A("s_mov_b64 exec, 1")
    A("global_store_dword v253, v252, s[68:69]")
    A("s_mov_b64 exec, s[98:99]")
    A.label(L)

DRY = os.environ.get("DRY", "0") != "0"
class TwoPass:
    def __init__(self, A, name):
        self.A = A
        self.L = A.newlabel(name + "b"); self.Lo = A.newlabel(name + "o"); self.Lt = A.newlabel(name + "t")
    def begin(self, transition):
        A = self.A
        self.transition = transition
        if DRY:
            A("s_mov_b32 s12, 0")
            A("s_mov_b64 exec, 0")
        else:
            transition()
        A.label(self.L)
    def guard_begin(self):
        if not DRY: return None
        l = self.A.newlabel("gd")
        self.A("s_cmp_eq_u32 s12, 0")
        self.A("s_cbranch_scc1 %s" % l)
        return l
    def guard_end(self, l):
        if l: self.A.label(l)
    def end(self):
        A = self.A
        if DRY:
            A("s_cmp_eq_u32 s12, 1")
            A("s_cbranch_scc1 %s" % self.Lo)
            A("s_mov_b32 s12, 1")
            A("s_mov_b64 exec, -1")
            self.transition()
            A("s_branch %s" % self.L)
            A.label(self.Lo)

def poll_head(A, cnt="s52"):
    A("s_mov_b32 %s, 0" % cnt)

def poll_tail(A, Lloop, Ldone, cnt="s52", sleep=1):
    A("s_add_u32 %s, %s, 1" % (cnt, cnt))
    A("s_cmp_gt_u32 %s, %d" % (cnt, POLL_MAX))
    A("s_cbranch_scc1 %s" % Ldone)
    A("s_sleep %d" % sleep)
    A("s_branch %s" % Lloop)

def masked_poll(A, name, emit_loads, tagregs, sleep, pre_sleep=0, full_exec="-1"):
    T = "s%d" % TAG
    Lp = A.newlabel(name + "p"); Ld = A.newlabel(name + "ok")
    if pre_sleep:
        A("s_sleep %d" % pre_sleep)
    A("s_mov_b32 s52, 0")
    A.label(Lp)
    emit_loads()
    A("s_waitcnt vmcnt(0)")
    A("v_cmp_eq_u32 vcc, %s, %s" % (T, v(tagregs[0])))
    for r in tagregs[1:]:
        A("v_cmp_eq_u32 s[54:55], %s, %s" % (T, v(r)))
        A("s_and_b64 vcc, vcc, s[54:55]")
    A("s_andn2_b64 exec, exec, vcc")
    A("s_cbranch_scc0 %s" % Ld)
    A("s_add_u32 s52, s52, 1")
    A("s_cmp_gt_u32 s52, %d" % POLL_MAX)
    A("s_cbranch_scc1 %s" % Ld)
    A("s_sleep %d" % sleep)
    A("s_branch %s" % Lp)
    A.label(Ld)
    A("s_mov_b64 exec, %s" % full_exec)

def first_then_poll(A, name, emit_loads, tagregs, sleep, ex, first_cnt=0):
    T = "s%d" % TAG
    Lp = A.newlabel(name + "p"); Ld = A.newlabel(name + "ok")
    A("s_mov_b32 s52, 0")
    A("s_waitcnt vmcnt(%d)" % first_cnt)
    A.label(Lp)
    A("v_cmp_eq_u32 vcc, %s, %s" % (T, v(tagregs[0])))
    for r in tagregs[1:]:
        A("v_cmp_eq_u32 s[54:55], %s, %s" % (T, v(r)))
        A("s_and_b64 vcc, vcc, s[54:55]")
    A("s_andn2_b64 exec, exec, vcc")
    A("s_cbranch_scc0 %s" % Ld)
    A("s_add_u32 s52, s52, 1")
    A("s_cmp_gt_u32 s52, %d" % POLL_MAX)
    A("s_cbranch_scc1 %s" % Ld)
    A("s_sleep %d" % sleep)
    emit_loads()
    A("s_waitcnt vmcnt(0)")
    A("s_branch %s" % Lp)
    A.label(Ld)
    A("s_mov_b64 exec, -1")

def ln_hint_poll(A, vaddr, r0, sleep, pre):
    def loads():
        A("s_movk_i32 s51, %d" % F_LNF)
        A("buffer_load_dwordx4 %s, %s, s[36:39], s51 offen sc1" % (v(r0, 4), vaddr))
        A("buffer_load_dwordx4 %s, %s, s[36:39], s51 offen offset:1024 sc1" % (v(r0 + 4, 4), vaddr))
    masked_poll(A, "lnh", loads, list(range(r0, r0 + 8)), sleep, pre)

def stats_from_msd(A, g, st, t):
    A("v_and_b32 %s, s40, %s" % (v(st + 4), v(g)))
    A("v_lshlrev_b32 %s, 16, %s" % (v(st), v(g)))
    A("v_rcp_f32 %s, %s" % (v(st + 2), v(st + 4)))
    A("v_xor_b32 %s, 0x80000000, %s" % (v(st), v(st)))
    A("v_xor_b32 %s, 0x80000000, %s" % (v(st + 4), v(st + 4)))
    A("v_fma_f32 %s, %s, %s, 1.0" % (v(t), v(st + 4), v(st + 2)))
    A("v_mov_b32 %s, %s" % (v(st + 1), v(st)))
    A("v_fma_f32 %s, %s, %s, %s" % (v(st + 2), v(t), v(st + 2), v(st + 2)))
    A("v_mov_b32 %s, %s" % (v(st + 5), v(st + 4)))
    A("v_mov_b32 %s, %s" % (v(st + 3), v(st + 2)))

LK, LV, LQ, SG, SX, SGS = 0, 17408, 33792, 50176, 67584, 272

def row_xor_reduce(A, regs):
    for ctl in ("quad_perm:[1,0,3,2]", "quad_perm:[2,3,0,1]", "row_half_mirror", "row_mirror"):
        if len(regs) < 3:
            A.nop(3 - len(regs))
        for r in regs:
            A("v_xor_b32_dpp %s, %s, %s %s row_mask:0xf bank_mask:0xf" % (v(r), v(r), v(r), ctl))

def gen_kv_issue(A):
    srd(A, 48, PK, S * ROWB)
    srd(A, 52, PV, S * ROWB)
    A("v_and_b32 v1, 63, v0")
    A("v_lshrrev_b32 v4, 3, v1")
    A("v_mul_u32_u24 v4, 1152, v4")
    A("v_and_b32 v5, 7, v1")
    A("v_lshl_add_u32 v4, v5, 4, v4")
    A("s_mul_i32 s62, s61, %d" % (128 * 1152))
    A("s_lshl_b32 s63, s60, 7")
    A("s_add_u32 s62, s62, s63")
    A("s_mul_i32 s63, s42, 9216")
    A("s_add_u32 s62, s62, s63")
    A("s_sub_u32 s63, s62, 9216")
    A("s_lshl_b32 s64, s42, 10")
    srd(A, 16, PQ, S * ROWB)
    for i in range(4):
        A("s_mov_b32 m0, s64")
        A("s_add_u32 s65, s64, %d" % LV)
        A("buffer_load_dwordx4 v4, s[48:51], s63 offen lds" + NTS)
        A("s_mov_b32 m0, s65")
        A("s_add_u32 s65, s64, %d" % LQ)
        A("buffer_load_dwordx4 v4, s[52:55], s62 offen lds" + NTS)
        A("s_mov_b32 m0, s65")
        A("s_add_u32 s64, s64, 4096")
        A("buffer_load_dwordx4 v4, s[16:19], s62 offen lds" + NTS)
        A("s_add_u32 s63, s63, %d" % (32 * 1152))
        A("s_add_u32 s62, s62, %d" % (32 * 1152))
    Ln = A.newlabel("nok17")
    A("s_cmp_lg_u32 s42, 0")
    A("s_cbranch_scc1 %s" % Ln)
    A("s_mov_b32 m0, s64")
    A("s_nop 0")
    A("buffer_load_dwordx4 v4, s[48:51], s63 offen lds" + NTS)
    A.label(Ln)

def gen_kv_addr(A):
    srd(A, 56, PSHK, D * 8)
    A("v_and_b32 v2, 31, v0")
    A("s_lshl_b32 s63, s60, 9")
    A("v_lshl_add_u32 v29, v2, 4, s63")
    A("buffer_load_dwordx4 v[32:35], v29, s[56:59], 0 offen")

def gen_kv_addr2(A):
    A("v_lshrrev_b32 v3, 5, v0")
    A("v_lshlrev_b32 v6, 10, v3")
    A("v_lshl_add_u32 v6, v2, 2, v6")
    A("v_mul_u32_u24 v7, %d, v2" % (2 * SGS))
    A("v_sub_u32 v8, 15, v3")
    A("v_lshl_add_u32 v7, v8, 4, v7")
    A("v_add_u32 v7, %d, v7" % SG)
    A("v_bfe_u32 v10, v0, 4, 2")
    A("v_and_b32 v11, 15, v0")
    A("v_mul_u32_u24 v8, %d, v10" % SGS)
    A("v_lshl_add_u32 v8, v11, 4, v8")
    A("s_mul_i32 s63, s42, %d" % (8 * SGS))
    A("s_add_u32 s63, s63, %d" % SG)
    A("v_add_u32 v8, s63, v8")
    A("v_lshlrev_b32 v9, 12, v10")
    A("v_lshl_add_u32 v9, v11, 4, v9")
    A("s_lshl_b32 s63, s60, 6")
    A("s_lshl_b32 s64, s42, 3")
    A("s_add_u32 s63, s63, s64")
    A("s_lshl_b32 s65, s63, 12")
    A("s_lshl_b32 s64, s61, 8")
    A("s_sub_u32 s65, s65, s64")
    A("s_add_u32 s65, s65, %d" % (F_UR + 240 * 16))
    A("v_add_u32 v9, s65, v9")
    A("v_lshlrev_b32 v12, 7, v10")
    A("s_lshl_b32 s65, s63, 7")
    A("s_lshl_b32 s64, s61, 3")
    A("s_sub_u32 s65, s65, s64")
    A("s_add_u32 s65, s65, %d" % (F_URC + 120))
    A("v_add_u32 v12, s65, v12")
    A("v_cmp_eq_u32 s[66:67], 0, v11")
    A("v_mul_u32_u24 v13, %d, v2" % (2 * SGS))
    A("v_lshl_add_u32 v13, v3, 4, v13")
    A("v_add_u32 v13, %d, v13" % SX)
    A("v_lshlrev_b32 v48, 12, v10")
    A("v_lshl_add_u32 v48, v11, 4, v48")
    A("s_lshl_b32 s65, s63, 12")
    A("s_lshl_b32 s64, s61, 8")
    A("s_add_u32 s65, s65, s64")
    A("s_add_u32 s65, s65, %d" % F_XT)
    A("v_add_u32 v48, s65, v48")
    A("v_lshlrev_b32 v49, 7, v10")
    A("s_lshl_b32 s65, s63, 7")
    A("s_lshl_b32 s64, s61, 3")
    A("s_add_u32 s65, s65, s64")
    A("s_add_u32 s65, s65, %d" % F_XC)
    A("v_add_u32 v49, s65, v49")

def gen_kv_compute(A):
    def trans():
        A("s_waitcnt vmcnt(0)")
        A("s_barrier")
        st_(A, 1)
        dbg_time(A, 8)
    tp = TwoPass(A, "kv")
    tp.begin(trans)
    for i in range(11):
        A("ds_read_b32 %s, v6 offset:%d" % (v(14 + i), LK + (5 + i) * 128))
    for i in range(8):
        A("ds_read_b32 %s, v6 offset:%d" % (v(40 + i), LV + i * 128))
    for i in range(8):
        A("ds_read_b32 %s, v6 offset:%d" % (v(144 + i), LQ + i * 128))
    A("v_lshlrev_b32 v54, 16, v32"); A("v_lshlrev_b32 v55, 16, v34")
    A("v_and_b32 v56, s40, v32");    A("v_and_b32 v57, s40, v34")
    A("v_lshlrev_b32 v58, 16, v33"); A("v_lshlrev_b32 v59, 16, v35")
    A("v_and_b32 v60, s40, v33");    A("v_and_b32 v61, s40, v35")
    DOT = bool(os.environ.get("DOT2", "1") != "0")
    W, K, KV = 54, 62, 100
    A("s_mov_b32 s64, 0x05040100"); A("s_mov_b32 s65, 0x07060302")
    if DOT:
        A("v_and_b32 v62, 0xffff, v32"); A("v_lshlrev_b32 v63, 16, v34")
        A("v_lshrrev_b32 v64, 16, v32"); A("v_and_b32 v65, s40, v34")
        A("v_and_b32 v66, 0xffff, v33"); A("v_lshlrev_b32 v67, 16, v35")
        A("v_lshrrev_b32 v68, 16, v33"); A("v_and_b32 v69, s40, v35")
        A("v_mov_b32 v70, 0x3f803f80")
        A("v_mov_b32 v71, 0")
        A("s_waitcnt lgkmcnt(0)")
        for j in range(4):
            A("v_perm_b32 %s, %s, %s, s64" % (v(152 + j), v(144 + 2 * j + 1), v(144 + 2 * j)))
            A("v_perm_b32 %s, %s, %s, s65" % (v(156 + j), v(144 + 2 * j + 1), v(144 + 2 * j)))
        A("ds_write_b128 v13, v[152:155]")
        A("ds_write_b128 v13, v[156:159] offset:%d" % SGS)
        def ch_ops(i, c, t0):
            a_, b_, p_, q_ = t0, t0 + 1, t0 + 2, t0 + 3
            o = []
            d2 = lambda d, x, y, z: "v_dot2_f32_bf16 %s, %s, %s, %s" % (v(d), v(x), v(y), z)
            o.append(d2(a_, 14 + i + 0, 62 + 2 * 3 + c, "0"))
            o.append(d2(b_, 14 + i + 1, 62 + 2 * 2 + c, "0"))
            o.append(d2(q_, 14 + i + 2, 62 + 2 * 1 + c, "0"))
            o.append("v_cvt_pk_bf16_f32 %s, %s, %s" % (v(p_), v(a_), v(b_)))
            o.append(d2(b_, 14 + i + 3, 62 + 2 * 0 + c, "0"))
            o.append(d2(a_, p_, 70, "0"))
            o.append("s_nop 0")
            o.append("v_cvt_pk_bf16_f32 %s, %s, %s" % (v(p_), v(a_), v(q_)))
            o.append("s_nop 0")
            o.append(d2(a_, p_, 70, "0"))
            o.append("s_nop 0")
            o.append("v_cvt_pk_bf16_f32 %s, %s, %s" % (v(p_), v(a_), v(b_)))
            o.append("s_nop 0")
            o.append(d2(a_, p_, 70, "0"))
            o.append("s_nop 0")
            if c == 0:
                o.append("v_cvt_pk_bf16_f32 %s, %s, %s" % (v(p_), v(a_), v(71)))
            else:
                o.append("v_cvt_pk_bf16_f32 %s, %s, %s" % (v(p_), v(71), v(a_)))
            o.append("s_nop 0")
            o.append(d2(KV + 2 * i + c, p_, 40 + i, "0"))
            if FAST and os.environ.get('KVEXACT', '1') == '0':
                o = []
                o.append(d2(a_, 14 + i + 0, 62 + 2 * 3 + c, "0"))
                if c == 0:
                    o.append("v_lshlrev_b32 %s, 16, %s" % (v(b_), v(40 + i)))
                else:
                    o.append("v_and_b32 %s, s40, %s" % (v(b_), v(40 + i)))
                o.append(d2(a_, 14 + i + 1, 62 + 2 * 2 + c, v(a_)))
                o.append(d2(a_, 14 + i + 2, 62 + 2 * 1 + c, v(a_)))
                o.append(d2(a_, 14 + i + 3, 62 + 2 * 0 + c, v(a_)))
                o.append("v_mul_f32 %s, %s, %s" % (v(KV + 2 * i + c), v(a_), v(b_)))
            return [x for x in o if x != "s_nop 0"]
        for i in range(0, 8, 4):
            streams = []
            for ii in range(4):
                for c in range(2):
                    streams.append(ch_ops(i + ii, c, 72 + 4 * (2 * ii + c) if (2 * ii + c) < 7 else 132))
            interleave(A, streams)
        A.nop(3)
        for c in range(2):
            for j in range(4):
                A("v_cvt_pk_bf16_f32 %s, %s, %s" % (v(116 + 4 * c + j), v(KV + 2 * (7 - 2 * j) + c), v(KV + 2 * (6 - 2 * j) + c)))
    else:
        A("s_waitcnt lgkmcnt(15)")
        for i in range(11):
            unpack_pair(A, K + 2 * i, K + 2 * i + 1, 14 + i, 40)
        A("s_waitcnt lgkmcnt(0)")
        for j in range(4):
            A("v_perm_b32 %s, %s, %s, s64" % (v(152 + j), v(144 + 2 * j + 1), v(144 + 2 * j)))
            A("v_perm_b32 %s, %s, %s, s65" % (v(156 + j), v(144 + 2 * j + 1), v(144 + 2 * j)))
        A("ds_write_b128 v13, v[152:155]")
        A("ds_write_b128 v13, v[156:159] offset:%d" % SGS)
        def pr_(r):
            return "v[%d:%d]" % (r, r + 1)
        def row_ops(i, acc, tmp, t3):
            P = Asm()
            P("v_pk_mul_f32 %s, %s, %s" % (pr_(acc), pr_(K + 2 * (i + 0)), pr_(W + 6)))
            round_pair(P, acc, acc + 1, t3, 40)
            for t in range(1, 4):
                P("v_pk_mul_f32 %s, %s, %s" % (pr_(tmp), pr_(K + 2 * (i + t)), pr_(W + 2 * (3 - t))))
                round_pair(P, tmp, tmp + 1, t3, 40)
                P("v_pk_add_f32 %s, %s, %s" % (pr_(acc), pr_(acc), pr_(tmp)))
                round_pair(P, acc, acc + 1, t3, 40)
            unpack_pair(P, tmp, tmp + 1, 40 + i, 40)
            P("v_pk_mul_f32 %s, %s, %s" % (pr_(KV + 2 * i), pr_(acc), pr_(tmp)))
            return [l.strip() for l in P.lines]
        for i in range(0, 8, 4):
            interleave(A, [row_ops(i, 84, 86, 88), row_ops(i + 1, 90, 92, 94), row_ops(i + 2, 132, 134, 136), row_ops(i + 3, 138, 140, 142)])
        for c in range(2):
            for j in range(4):
                A("v_cvt_pk_bf16_f32 %s, %s, %s" % (v(116 + 4 * c + j), v(KV + 2 * (7 - 2 * j) + c), v(KV + 2 * (6 - 2 * j) + c)))
    A("ds_write_b128 v7, v[116:119]")
    A("ds_write_b128 v7, v[120:123] offset:%d" % SGS)
    A("s_waitcnt lgkmcnt(0)")
    tp.end()
    A("s_barrier")
    A("ds_read_b128 v[116:119], v8")
    A("ds_read_b128 v[120:123], v8 offset:%d" % (4 * SGS))
    A("s_movk_i32 s63, 16384")
    A("s_waitcnt lgkmcnt(1)")
    A("buffer_store_dwordx4 v[116:119], v9, s[36:39], 0 offen sc1")
    A("v_xor_b32 v124, v116, v117"); A("v_xor_b32 v126, v118, v119")
    A("s_waitcnt lgkmcnt(0)")
    A("buffer_store_dwordx4 v[120:123], v9, s[36:39], s63 offen sc1")
    A("v_xor_b32 v125, v120, v121"); A("v_xor_b32 v127, v122, v123")
    A("v_xor_b32 v124, v124, v126"); A("v_xor_b32 v125, v125, v127")
    row_xor_reduce(A, [124, 125])
    A("v_xor_b32 v128, s%d, v124" % TAG); A("v_xor_b32 v130, s%d, v125" % TAG)
    A("v_mov_b32 v129, s%d" % TAG); A("v_mov_b32 v131, s%d" % TAG)
    A("s_mov_b64 exec, s[66:67]")
    A("buffer_store_dwordx2 v[128:129], v12, s[36:39], 0 offen sc1")
    A("buffer_store_dwordx2 v[130:131], v12, s[36:39], 0 offen offset:512 sc1")
    A("s_mov_b64 exec, -1")
    A("ds_read_b128 v[116:119], v8 offset:%d" % (SX - SG))
    A("ds_read_b128 v[120:123], v8 offset:%d" % (SX - SG + 4 * SGS))
    A("s_waitcnt lgkmcnt(1)")
    A("buffer_store_dwordx4 v[116:119], v48, s[36:39], 0 offen sc1")
    A("v_xor_b32 v124, v116, v117"); A("v_xor_b32 v126, v118, v119")
    A("s_waitcnt lgkmcnt(0)")
    A("buffer_store_dwordx4 v[120:123], v48, s[36:39], s63 offen sc1")
    A("v_xor_b32 v125, v120, v121"); A("v_xor_b32 v127, v122, v123")
    A("v_xor_b32 v124, v124, v126"); A("v_xor_b32 v125, v125, v127")
    row_xor_reduce(A, [124, 125])
    A("v_xor_b32 v128, s%d, v124" % TAG); A("v_xor_b32 v130, s%d, v125" % TAG)
    A("s_mov_b64 exec, s[66:67]")
    A("buffer_store_dwordx2 v[128:129], v49, s[36:39], 0 offen sc1")
    A("buffer_store_dwordx2 v[130:131], v49, s[36:39], 0 offen offset:512 sc1")
    A("s_mov_b64 exec, -1")
    st_(A, 2)

def gen_ln(A, two=False):
    srd(A, 48, PQ, S * ROWB)
    srd(A, 56, PWR, D * 2)
    A("v_and_b32 v1, 63, v0")
    A("v_and_b32 v2, 15, v0")
    A("v_lshrrev_b32 v3, 4, v1")
    A("s_lshl_b32 s61, s60, 2")
    A("v_add_u32 v30, s61, v3")
    A("s_movk_i32 s62, 1152")
    A("v_mul_lo_u32 v6, v30, s62")
    A("v_lshl_add_u32 v6, v2, 3, v6")
    A("v_lshlrev_b32 v7, 3, v2")
    Q, WR, X = 64, 84, 104
    for i in range(9):
        A("buffer_load_dwordx2 %s, v6, s[48:51], 0 offen offset:%d" % (v(Q + 2 * i, 2), 128 * i) + QNT)
    for i in range(9):
        A("buffer_load_dwordx2 %s, v7, s[56:59], 0 offen offset:%d" % (v(WR + 2 * i, 2), 128 * i))
    if two:
        A("s_mov_b32 s62, %d" % (1024 * 1152))
        for i in range(9):
            A("buffer_load_dwordx2 %s, v6, s[48:51], s62 offen offset:%d" % (v(144 + 2 * i, 2), 128 * i))
    return Q, WR, X

def gen_ln_compute(A, Q, WR, X, extra=0, first_wait=None):
    def trans():
        A("s_waitcnt vmcnt(%d)" % extra)
        st_(A, 1)
    tp = TwoPass(A, "ln")
    tp.begin(trans)
    for i in range(18):
        unpack_pair(A, X + 2 * i, X + 2 * i + 1, Q + i, 40)
    A("v_pk_add_f32 v[8:9], %s, %s" % (v(X, 2), v(X + 2, 2)))
    A("v_pk_add_f32 v[10:11], %s, %s" % (v(X + 4, 2), v(X + 6, 2)))
    for i in range(4, 18, 2):
        A("v_pk_add_f32 v[8:9], v[8:9], %s" % v(X + 2 * i, 2))
        A("v_pk_add_f32 v[10:11], v[10:11], %s" % v(X + 2 * i + 2, 2))
    A("v_pk_add_f32 v[8:9], v[8:9], v[10:11]")
    A.nop(1)
    A("v_add_f32 v8, v8, v9")
    allreduce16_add(A, 8)
    A("v_mul_f32 v8, 0x3ae38e39, v8")
    A("v_sub_f32 v12, 0, v8")
    A("v_sub_f32 v13, 0, v8")
    for r in (14, 15, 16, 17):
        A("v_mov_b32 %s, 0" % v(r))
    for i in range(0, 18, 2):
        A("v_pk_add_f32 v[18:19], %s, v[12:13]" % v(X + 2 * i, 2))
        A("v_pk_add_f32 v[20:21], %s, v[12:13]" % v(X + 2 * i + 2, 2))
        A("v_pk_fma_f32 v[14:15], v[18:19], v[18:19], v[14:15]")
        A("v_pk_fma_f32 v[16:17], v[20:21], v[20:21], v[16:17]")
    A("v_pk_add_f32 v[14:15], v[14:15], v[16:17]")
    A.nop(1)
    A("v_add_f32 v14, v14, v15")
    allreduce16_add(A, 14)
    A("v_mul_f32 v14, 0x3ae38e39, v14")
    A.nop(1)
    round_pair(A, 8, 14, 9, 40)
    A("v_add_f32 v14, 0x3727c5ac, v14")
    A.nop(1)
    A("v_cvt_pk_bf16_f32 v9, v14, v14")
    A("v_lshlrev_b32 v14, 16, v9")
    A("v_sqrt_f32 v14, v14")
    A.nop(1)
    A("v_cvt_pk_bf16_f32 v9, v14, v14")
    A("v_lshlrev_b32 v14, 16, v9")
    A("v_rcp_f32 v15, v14")
    A.nop(1)
    A("v_fma_f32 v16, -v14, v15, 1.0")
    A("v_fma_f32 v15, v16, v15, v15")
    A("v_sub_f32 v12, 0, v8"); A("v_sub_f32 v13, 0, v8")
    A("v_mov_b32 v16, v15"); A("v_mov_b32 v17, v15")
    for r in (22, 23, 24, 25):
        A("v_mov_b32 %s, 0" % v(r))
    def ops(i, tm, acc):
        x0 = X + 2 * i
        P = Asm()
        P("v_pk_add_f32 %s, %s, v[12:13]" % (v(x0, 2), v(x0, 2)))
        round_pair(P, x0, x0 + 1, tm, 40)
        P("v_pk_mul_f32 %s, %s, v[16:17]" % (v(x0, 2), v(x0, 2)))
        round_pair(P, x0, x0 + 1, tm, 40)
        unpack_pair(P, tm + 2, tm + 3, WR + i, 40)
        P("v_pk_fma_f32 %s, %s, %s, %s" % (v(acc, 2), v(x0, 2), v(tm + 2, 2), v(acc, 2)))
        return [l.strip() for l in P.lines]
    for i in range(0, 18, 2):
        interleave(A, [ops(i, 26, 22), ops(i + 1, 32, 24)])
    A("v_pk_add_f32 v[22:23], v[22:23], v[24:25]")
    A.nop(1)
    A("v_add_f32 v22, v22, v23")
    allreduce16_add(A, 22)
    A.nop(1)
    A("v_cvt_pk_bf16_f32 v23, v22, v22")
    A("v_lshlrev_b32 v23, 16, v23")
    A("v_ashrrev_i32 v24, 31, v23")
    A("v_or_b32 v24, 0x80000000, v24")
    A("v_xor_b32 v23, v23, v24")
    A("v_and_b32 v23, s40, v23")
    A("v_sub_u32 v24, 2047, v30")
    A("v_or_b32 v26, v23, v24")
    A("v_mov_b32 v27, s%d" % TAG)
    A("v_cvt_pk_bf16_f32 v32, v8, v14")
    A("v_mov_b32 v33, s%d" % TAG)
    A("v_lshlrev_b32 v28, 3, v30")
    A("s_movk_i32 s61, %d" % F_KEYG)
    A("s_mov_b32 s62, %d" % F_ROWG)
    tp.end()
    A("v_cmp_eq_u32 vcc, 0, v2")
    A("s_and_saveexec_b64 s[64:65], vcc")
    A("buffer_store_dwordx2 v[26:27], v28, s[36:39], s61 offen sc1")
    A("buffer_store_dwordx2 v[32:33], v28, s[36:39], s62 offen sc1")
    A("s_mov_b64 exec, s[64:65]")
    st_(A, 2)

def load_verified_runs(A, pay_soff, chk_soff, vlane16, vchk8, vhint8, P, pre, sleep):
    C, Tm = P + 16, P + 20
    def hint_loads():
        A("buffer_load_dwordx2 %s, %s, s[36:39], %s offen sc1" % (v(C, 2), vhint8, chk_soff))
    masked_poll(A, "vh", hint_loads, [C + 1], sleep, pre)
    Lp = A.newlabel("vp"); Ld = A.newlabel("vok")
    A("s_mov_b32 s52, 0")
    A.label(Lp)
    for i in range(4):
        A("buffer_load_dwordx4 %s, %s, s[36:39], %s offen offset:%d sc1" % (v(P + 4 * i, 4), vlane16, pay_soff, 1024 * i))
    for i in range(4):
        A("buffer_load_dword %s, %s, s[36:39], %s offen offset:%d sc1" % (v(C + i), vchk8, chk_soff, 32 * i))
    A("s_waitcnt vmcnt(0)")
    for i in range(4):
        A("v_xor_b32 %s, %s, %s" % (v(Tm + i), v(P + 4 * i), v(P + 1 + 4 * i)))
    for i in range(4):
        A("v_xor_b32 %s, %s, %s" % (v(Tm + 4 + i), v(P + 2 + 4 * i), v(P + 3 + 4 * i)))
    for i in range(4):
        A("v_xor_b32 %s, %s, %s" % (v(Tm + i), v(Tm + i), v(Tm + 4 + i)))
    row_xor_reduce(A, [Tm, Tm + 1, Tm + 2, Tm + 3])
    for i in range(4):
        A("v_xor_b32 %s, %s, %s" % (v(Tm + i), v(Tm + i), v(C + i)))
    A("v_cmp_eq_u32 vcc, s%d, %s" % (TAG, v(Tm)))
    for i in range(1, 4):
        A("v_cmp_eq_u32 s[54:55], s%d, %s" % (TAG, v(Tm + i)))
        A("s_and_b64 vcc, vcc, s[54:55]")
    A("s_cmp_eq_u64 vcc, -1")
    A("s_cbranch_scc1 %s" % Ld)
    A("s_add_u32 s52, s52, 1")
    A("s_cmp_gt_u32 s52, %d" % POLL_MAX)
    A("s_cbranch_scc1 %s" % Ld)
    A("s_sleep 2")
    A("s_branch %s" % Lp)
    A.label(Ld)

def build_ops(W, N, off):
    ops = []
    for k in range(7):
        ops.append("v_alignbit_b32 %s, %s, %s, 16" % (v(E_ + k), v(W + k + 1), v(W + k)))
    ops.append("ds_write_b128 v11, %s offset:%d" % (v(W + 2, 4), 4 * CS + off))
    for k in range(3):
        ops.append("v_pk_mov_b32 %s, %s, %s op_sel:[1,0]" % (v(G_ + 2 * k, 2), v(W + 2 * k, 2), v(W + 2 * k + 2, 2)))
    ops.append("ds_write_b128 v11, %s offset:%d" % (v(E_, 4), 1 * CS + off))
    ops.append("ds_write_b128 v11, %s offset:%d" % (v(E_ + 2, 4), 5 * CS + off))
    for k in range(3):
        ops.append("v_pk_mov_b32 %s, %s, %s op_sel:[1,0]" % (v(F_ + 2 * k, 2), v(E_ + 2 * k, 2), v(E_ + 2 * k + 2, 2)))
    ops.append("ds_write_b128 v11, %s offset:%d" % (v(G_, 4), 2 * CS + off))
    ops.append("ds_write_b128 v11, %s offset:%d" % (v(G_ + 2, 4), 6 * CS + off))
    ops.append("s_nop 0")
    ops.append("ds_write_b128 v11, %s offset:%d" % (v(F_, 4), 3 * CS + off))
    ops.append("ds_write_b128 v11, %s offset:%d" % (v(F_ + 2, 4), 7 * CS + off))
    return ops

def gen_partial_gather(A):
    T = "s%d" % TAG
    A("v_and_b32 v5, 255, v0")
    A("v_and_b32 v1, 63, v0")
    A("v_and_b32 v12, 7, v5")
    A("v_mul_u32_u24 v12, 2304, v12")
    A("v_lshrrev_b32 v13, 3, v5")
    A("v_mul_u32_u24 v14, 18432, v13")
    A("v_add_u32 v12, v12, v14")
    A("s_lshl_b32 s51, s41, 4")
    A("s_add_u32 s51, s51, %d" % F_PARTG)
    A("v_add_u32 v12, s51, v12")
    A("v_add_u32 v14, %d, v12" % (64 * 18432))
    A("v_cmp_gt_u32 vcc, 8, v13")
    A.nop(2)
    A("v_cndmask_b32 v14, v12, v14, vcc")
    A("s_mov_b64 s[56:57], vcc")
    def part_loads():
        A("s_mov_b32 s51, %d" % (32 * 18432))
        A("buffer_load_dwordx4 v[160:163], v12, s[36:39], 0 offen sc1")
        A("buffer_load_dwordx4 v[164:167], v12, s[36:39], s51 offen sc1")
        A("buffer_load_dwordx4 v[168:171], v14, s[36:39], 0 offen sc1")
    Lp = A.newlabel("ppp"); Ld = A.newlabel("ppok")
    if int(os.environ.get("PPPRE", 0)):
        A("s_sleep %d" % int(os.environ.get("PPPRE", 0)))
    A("s_mov_b32 s52, 0")
    A.label(Lp)
    part_loads()
    A("s_waitcnt vmcnt(0)")
    for i in range(3):
        b = 160 + 4 * i
        A("v_xor_b32 %s, %s, %s" % (v(172 + i), v(b), v(b + 1)))
        A("v_xor_b32 %s, %s, %s" % (v(176 + i), v(b + 2), v(b + 3)))
    for i in range(3):
        A("v_xor_b32 %s, %s, %s" % (v(172 + i), v(172 + i), v(176 + i)))
    A("v_cmp_eq_u32 vcc, %s, v172" % T)
    for r in (173, 174):
        A("v_cmp_eq_u32 s[54:55], %s, %s" % (T, v(r)))
        A("s_and_b64 vcc, vcc, s[54:55]")
    A("s_andn2_b64 exec, exec, vcc")
    A("s_cbranch_scc0 %s" % Ld)
    A("s_add_u32 s52, s52, 1")
    A("s_cmp_gt_u32 s52, %d" % POLL_MAX)
    A("s_cbranch_scc1 %s" % Ld)
    A("s_sleep %d" % int(os.environ.get("PPSLEEP", 6)))
    A("s_branch %s" % Lp)
    A.label(Ld)
    A("s_mov_b64 exec, -1")
    st_(A, 8)
    dbg_time(A, 10)
    A("s_mov_b32 s58, 0xffffff00")
    A("s_mov_b32 s59, 0x0c0c0004")
    for i in range(3):
        b = 160 + 4 * i
        o = 20 + 4 * i
        A("v_lshlrev_b32 %s, 24, %s" % (v(o + 3), v(b)))
        A("v_and_b32 %s, 0xff, %s" % (v(176), v(b + 1)))
        A("v_and_b32 %s, 0xff, %s" % (v(177), v(b + 2)))
        A("v_lshl_or_b32 %s, %s, 16, %s" % (v(o + 3), v(176), v(o + 3)))
        A("v_lshl_or_b32 %s, %s, 8, %s" % (v(o + 3), v(177), v(o + 3)))
        for k in range(3):
            A("v_and_b32 %s, s58, %s" % (v(o + k), v(b + k)))
    for k in range(4):
        A("v_cndmask_b32 %s, 0, %s, s[56:57]" % (v(28 + k), v(28 + k)))
    for k in range(4):
        A("v_add_f32 %s, %s, %s" % (v(20 + k), v(20 + k), v(24 + k)))
    for k in range(4):
        A("v_add_f32 %s, %s, %s" % (v(20 + k), v(20 + k), v(28 + k)))
    A.nop(1)
    for k in range(4):
        A("v_add_f32_dpp %s, %s, %s row_ror:8 row_mask:0xf bank_mask:0xf" % (v(24 + k), v(20 + k), v(20 + k)))
    for k in range(4):
        A("v_mov_b32 %s, %s" % (v(28 + k), v(24 + k)))
    A.nop(1)
    for k in range(4):
        A("v_permlane16_swap_b32 %s, %s" % (v(24 + k), v(28 + k)))
    A.nop(1)
    for k in range(4):
        A("v_add_f32 %s, %s, %s" % (v(24 + k), v(24 + k), v(28 + k)))
    for k in range(4):
        A("v_mov_b32 %s, %s" % (v(28 + k), v(24 + k)))
    A.nop(1)
    for k in range(4):
        A("v_permlane32_swap_b32 %s, %s" % (v(24 + k), v(28 + k)))
    A.nop(1)
    for k in range(4):
        A("v_add_f32 %s, %s, %s" % (v(24 + k), v(24 + k), v(28 + k)))
    A("v_lshlrev_b32 v18, 4, v1")
    A("s_lshl_b32 s51, s43, 7")
    A("s_add_u32 s51, s51, %d" % RED)
    A("v_add_u32 v18, s51, v18")
    A("s_mov_b64 exec, 0xff")
    A("ds_write_b128 v18, v[24:27]")
    A("s_mov_b64 exec, -1")
    A("s_waitcnt lgkmcnt(0)")
    A("v_mov_b32 v11, %d" % FLAGS)
    A("v_mov_b32 v12, 1")
    lds_signal(A, 5, "v11", "v12")

def gen_M(A):
    A("s_setprio %d" % int(os.environ.get("MPRIO", 2)))
    srd(A, 32, PSSMK, D * S * 2)
    A("v_and_b32 v1, 63, v0")
    A("v_lshlrev_b32 v4, 4, v1")
    A("s_add_u32 s56, s45, %d" % (H_OFF + 512))
    A("s_lshl_b32 s57, s44, 12")
    A("s_mov_b32 m0, s56")
    A("s_lshl_b32 s51, s44, 1")
    for i in range(4):
        A("buffer_load_dwordx4 v4, s[32:35], s57 offen offset:%d lds" % (1024 * i) + NTS)
    A("s_add_u32 s56, s56, 4096")
    A("s_add_u32 s57, s57, 4096")
    A("s_mov_b32 m0, s56")
    A("s_mov_b64 exec, 0x3")
    A("buffer_load_dwordx4 v4, s[32:35], s57 offen lds" + NTS)
    A("s_mov_b64 exec, -1")
    A("s_and_b32 s52, s51, 0xfffffffc")
    A("s_add_u32 s54, s%d, s52" % PSSMD)
    A("s_addc_u32 s55, s%d, 0" % (PSSMD + 1))
    A("s_load_dword s53, s[54:55], 0")
    A("v_and_b32 v2, 15, v0")
    A("v_bfe_u32 v3, v0, 4, 2")
    A("v_mov_b32 v12, 0"); A("v_mov_b32 v13, 0"); A("v_mov_b32 v14, 0"); A("v_mov_b32 v15, 0")
    A("v_add_u32 v11, s45, v4")
    A("s_mov_b32 exec_hi, 0")
    A("ds_write_b128 v11, v[12:15] offset:%d" % H_OFF)
    A("s_mov_b64 exec, 0x3")
    for c in range(8):
        pass
    A("ds_write_b128 v11, v[12:15]")
    A("s_mov_b64 exec, 0xf")
    A("ds_write_b128 v11, v[12:15] offset:%d" % (258 * 16))
    A("s_mov_b64 exec, -1")
    A("v_lshlrev_b32 v5, 5, v2")
    A("v_lshl_add_u32 v5, v3, 4, v5")
    A("v_add_u32 v5, s45, v5")
    A("v_add_u32 v5, %d, v5" % H_OFF)
    A("v_and_b32 v8, 7, v2")
    A("v_sub_u32 v8, 7, v8")
    A("v_mul_u32_u24 v8, %d, v8" % CS)
    A("v_lshrrev_b32 v6, 3, v2")
    A("v_sub_u32 v6, v3, v6")
    A("v_lshlrev_b32 v6, 4, v6")
    A("v_add_u32 v8, v8, v6")
    A("v_add_u32 v8, 16, v8")
    A("v_add_u32 v9, s45, v8")
    A("v_lshlrev_b32 v6, 5, v2")
    A("v_lshl_add_u32 v6, v3, 3, v6")
    A("v_sub_u32 v7, %d, v6" % (4120 - 3584))
    A("v_add_u32 v7, s45, v7")
    A("v_add_u32 v6, s45, v6")
    A("v_add_u32 v6, %d, v6" % YOFF)
    A("s_lshl_b32 s49, s43, 2")
    A("s_add_u32 s49, s49, %d" % FLAGS)
    A("v_mov_b32 v10, s49")
    for i in range(32):
        A("v_mov_b32 %s, 0" % v(ACC + i))
    A("s_lshl_b32 s48, s44, 12")
    A("s_add_u32 s48, s48, %d" % F_UR)
    A("v_lshlrev_b32 v16, 3, v3")
    A("s_lshl_b32 s50, s44, 7")
    A("s_add_u32 s50, s50, %d" % F_URC)
    A("v_and_b32 v17, 15, v1")
    A("v_lshlrev_b32 v17, 3, v17")
    def hint_loads():
        A("buffer_load_dwordx2 v[136:137], v17, s[36:39], s50 offen sc1")
    if os.environ.get("URHINT"):
        masked_poll(A, "urh", hint_loads, [137], int(os.environ.get("URSLEEP", 4)), int(os.environ.get("URPRE", 8)))
    else:
        A("s_sleep %d" % int(os.environ.get("URPRE", 24)))
    Lp = A.newlabel("urp"); Ld = A.newlabel("urok")
    A("s_mov_b32 s52, 0")
    A.label(Lp)
    for i in range(4):
        A("buffer_load_dwordx4 %s, v4, s[36:39], s48 offen offset:%d sc1" % (v(120 + 4 * i, 4), 1024 * i))
    for i in range(4):
        A("buffer_load_dword %s, v16, s[36:39], s50 offen offset:%d sc1" % (v(136 + i), 32 * i))
    A("s_waitcnt vmcnt(0)")
    for i in range(4):
        A("v_xor_b32 %s, %s, %s" % (v(140 + i), v(120 + 4 * i), v(121 + 4 * i)))
    for i in range(4):
        A("v_xor_b32 %s, %s, %s" % (v(144 + i), v(122 + 4 * i), v(123 + 4 * i)))
    for i in range(4):
        A("v_xor_b32 %s, %s, %s" % (v(140 + i), v(140 + i), v(144 + i)))
    row_xor_reduce(A, [140, 141, 142, 143])
    for i in range(4):
        A("v_xor_b32 %s, %s, %s" % (v(140 + i), v(140 + i), v(136 + i)))
    A("v_cmp_eq_u32 vcc, s%d, v140" % TAG)
    for i in range(1, 4):
        A("v_cmp_eq_u32 s[54:55], s%d, %s" % (TAG, v(140 + i)))
        A("s_and_b64 vcc, vcc, s[54:55]")
    A("s_andn2_b64 exec, exec, vcc")
    A("s_cbranch_scc0 %s" % Ld)
    A("s_add_u32 s52, s52, 1")
    A("s_cmp_gt_u32 s52, %d" % POLL_MAX)
    A("s_cbranch_scc1 %s" % Ld)
    A("s_sleep %d" % int(os.environ.get("URSLEEP", 6)))
    A("s_branch %s" % Lp)
    A.label(Ld)
    A("s_mov_b64 exec, -1")
    st_(A, 3)
    dbg_time(A, 5)
    A("s_setprio %d" % int(os.environ.get("MPRIO2", 0)))
    for i in range(4):
        A("ds_write_b128 v11, %s offset:%d" % (v(120 + 4 * i, 4), 32 + 1024 * i))
    A("s_waitcnt lgkmcnt(0)")
    for (W, off) in ((152, 4096), (160, 3072), (168, 2048), (W1, 1024), (W0, 0)):
        A("ds_read_b128 %s, v11 offset:%d" % (v(W, 4), off))
        A("ds_read_b128 %s, v11 offset:%d" % (v(W + 4, 4), off + 16))
    A("s_waitcnt lgkmcnt(8)")
    A("s_mov_b64 exec, 0x1f")
    for o in build_ops(152, 0, 4096): A(o)
    A("s_mov_b64 exec, -1")
    A("s_waitcnt lgkmcnt(11)")
    for o in build_ops(160, 0, 3072): A(o)
    A("s_waitcnt lgkmcnt(14)")
    for o in build_ops(168, 0, 2048): A(o)
    A("s_waitcnt lgkmcnt(0)")
    st_(A, 4)
    hi_steps, lo_frags, lo_slot, lo_steps = conv_schedule()
    def bslot(sl):
        return v(BS + 4 * sl, 4)
    order, seen = [], set()
    for q, lst in hi_steps:
        for t, sl in lst:
            if sl not in seen:
                seen.add(sl); order.append(sl)
    aseq = [q for q in range(33)] + [q for q in range(65)]
    issued = []
    def issue(tag, txt):
        A(txt); issued.append(tag)
    def wait_for(tags):
        idx = max(len(issued) - 1 - issued[::-1].index(t) for t in tags)
        n = len(issued) - 1 - idx
        A("s_waitcnt lgkmcnt(%d)" % min(n, 15))
    def a_issue(k):
        issue(("A", k), "ds_read_b128 %s, v9 offset:%d" % (v(RING + 4 * (k % NR), 4), 64 * (64 - aseq[k])))
    def b_issue(sl):
        issue(("B", sl), "ds_read_b128 %s, v5 offset:%d" % (bslot(sl), 64 * (56 - sl + 8)))
    fill = deque()
    cnt = [0]
    def emit_fill(k):
        while k > 0 and fill:
            f = fill.popleft(); f(); cnt[0] += 1; k -= 1
    def add_plain(txt):
        if txt.startswith("ds_"):
            fill.append(lambda txt=txt: issue(("W",), txt))
        else:
            fill.append(lambda txt=txt: A(txt))
    a_issue(0)
    for sl in order[:5]:
        b_issue(sl)
    nextA = 1
    for k in range(1, NR):
        a_issue(nextA); nextA += 1
        b_issue(order[5 + k - 1])
    nextB = 5 + (NR - 1)
    A("s_and_b32 s52, s51, 2")
    A("s_lshl_b32 s52, s52, 3")
    A("s_lshr_b32 s53, s53, s52")
    A("s_lshl_b32 s53, s53, 16")
    A("v_mov_b32 v18, s53"); A("v_mov_b32 v19, s53")
    n = 0
    fu = {}
    for q, lst in hi_steps:
        for t, sl in lst:
            fu.setdefault(sl, q)
    for q, lst in hi_steps:
        while nextB < len(order) and fu[order[nextB]] <= q + 3:
            b_issue(order[nextB]); nextB += 1
        wait_for([("A", n)] + [("B", sl) for _, sl in lst])
        for t, sl in lst:
            A("v_mfma_f32_16x16x32_bf16 %s, %s, %s, %s" % (v(ACC + 4 * t, 4), v(RING + 4 * (n % NR), 4), bslot(sl), v(ACC + 4 * t, 4)))
        if nextA < len(aseq):
            a_issue(nextA); nextA += 1
        if q < 32:
            issue(("L", q), "ds_read_b128 %s, v5 offset:%d" % (bslot(q), 64 * (lo_frags[q] + 8)))
        n += 1
    st_(A, 5)
    def tile_epilogue(t):
        u0 = UREG + 2 * (t % 2)
        ac = ACC + 4 * t
        fill.append(lambda: wait_for([("U", t)] + ([("L", 31)] if t == 0 else [])))
        P = Asm()
        P("v_and_b32 v12, s40, %s" % v(u0 + 1))
        P("v_lshlrev_b32 v13, 16, %s" % v(u0 + 1))
        P("v_and_b32 v14, s40, %s" % v(u0))
        P("v_lshlrev_b32 v15, 16, %s" % v(u0))
        if FAST:
            P("s_nop 0"); P("s_nop 0")
            P("v_pk_fma_f32 v[12:13], v[12:13], v[18:19], %s" % v(ac, 2))
            P("v_pk_fma_f32 v[14:15], v[14:15], v[18:19], %s" % v(ac + 2, 2))
            P("s_nop 0")
        else:
            P("v_pk_mul_f32 v[12:13], v[12:13], v[18:19]")
            P("v_pk_mul_f32 v[14:15], v[14:15], v[18:19]")
            round_pair(P, 12, 13, 16, 40)
            round_pair(P, 14, 15, 17, 40)
            round_pair(P, ac, ac + 1, 16, 40)
            round_pair(P, ac + 2, ac + 3, 17, 40)
            P("v_pk_add_f32 v[12:13], v[12:13], %s" % v(ac, 2))
            P("v_pk_add_f32 v[14:15], v[14:15], %s" % v(ac + 2, 2))
        P("v_cvt_pk_bf16_f32 v16, v12, v13")
        P("v_cvt_pk_bf16_f32 v17, v14, v15")
        for l in P.lines:
            add_plain(l.strip())
        fill.append(lambda: issue(("Y", t), "ds_write_b64 v6, v[16:17] offset:%d" % (512 * t)))
        fill.append(lambda: A("v_mov_b32 v8, %d" % (t + 1)))
        for _ in range(3):
            fill.append(lambda: None)
        fill.append(lambda: wait_for([("Y", t)]))
        fill.append(lambda: issue(("F", t), "ds_write_b32 v10, v8"))
    for o in build_ops(W1, 0, 1024): add_plain(o)
    n1 = len(fill)
    for o in build_ops(W0, 0, 0): add_plain(o)
    n0 = len(fill)
    for q, lst in lo_steps:
        wait_for([("A", n)] + [("L", sl) for _, sl in lst])
        k = len(lst)
        per = int(os.environ.get('FPER', 2)) if k >= 2 else 1
        for i, (t, sl) in enumerate(lst):
            A("v_mfma_f32_16x16x32_bf16 %s, %s, %s, %s" % (v(ACC + 4 * t, 4), v(RING + 4 * (n % NR), 4), bslot(sl), v(ACC + 4 * t, 4)))
            if i < k - 1 or k == 1:
                emit_fill(per)
        if nextA < len(aseq):
            qq = aseq[nextA]
            if nextA >= 33 and qq >= 33:
                assert cnt[0] >= n1
            if nextA >= 33 and qq >= 49:
                assert cnt[0] >= n0
            a_issue(nextA); nextA += 1
        n += 1
        if q % 8 == 4:
            t = q // 8
            issue(("U", t), "ds_read_b64 %s, v7 offset:%d" % (v(UREG + 2 * (t % 2), 2), 512 * (7 - t)))
        if q >= 9 and (q - 9) % 8 == 0 and (q - 9) // 8 < 7:
            tile_epilogue((q - 9) // 8)
    A.nop(4)
    st_(A, 6)
    tile_epilogue(7)
    emit_fill(1000)
    st_(A, 7)
    dbg_time(A, 1)
    gen_partial_gather(A)
    st_(A, 9, end=True)
    A("s_endpgm")

XQ = 208
def h_early_loads(A):
    srd(A, 16, PQ, S * ROWB)
    A("v_and_b32 v201, 255, v0")
    A("s_movk_i32 s63, 1152")
    A("v_mul_lo_u32 v200, v201, s63")
    A("s_lshl_b32 s63, s41, 3")
    A("v_add_u32 v200, s63, v200")
    return 8

def strip_loads(A):
    h_early_loads(A)
    if os.environ.get("NOSTRIP"):
        for t in range(8):
            A("s_nop 0")
            A("buffer_load_dwordx2 %s, v1, s[16:19], 0 offen" % v(XQ + 2 * t, 2))
        return
    A("s_mov_b32 s63, 0")
    for t in range(8):
        A("buffer_load_dwordx2 %s, v200, s[16:19], s63 offen" % v(XQ + 2 * t, 2))
        A("s_add_u32 s63, s63, %d" % (256 * 1152))

def q_prefetch(A):
    srd(A, 16, PQ, S * ROWB)
    Ln = A.newlabel("noqpf")
    A("v_and_b32 v202, 15, v0")
    A("v_bfe_u32 v203, v0, 4, 2")
    A("v_mul_u32_u24 v203, 1152, v203")
    A("v_lshl_add_u32 v202, v202, 4, v203")
    A("s_mul_i32 s63, s30, 144")
    A("s_and_b32 s63, s63, 0xffffff80")
    A("s_min_u32 s64, s31, 15")
    A("s_lshl_b32 s64, s64, 7")
    A("s_sub_u32 s65, s42, 4")
    A("s_lshl_b32 s65, s65, 5")
    A("s_add_u32 s64, s64, s65")
    A("s_mul_i32 s64, s64, 1152")
    A("s_add_u32 s63, s63, s64")
    for i in range(8):
        A("buffer_load_dwordx4 v[204:207], v202, s[16:19], s63 offen")
        A("s_add_u32 s63, s63, %d" % (4 * 1152))

def gen_H(A):
    srd(A, 20, POUT, S * ROWB)
    T = "s%d" % TAG
    A("v_and_b32 v1, 63, v0")
    A("v_mov_b32 v5, v201")
    A("v_mov_b32 v6, v200")
    A("v_lshlrev_b32 v7, 3, v5")
    RG = 160
    X, XN, T1 = 64, 96, 128
    A("s_setprio %d" % int(os.environ.get("HPRIO", 1)))
    for r in range(32):
        A("v_mov_b32 %s, 0" % v(X + r))
    A("v_lshlrev_b32 v8, 4, v1")
    A("v_lshrrev_b32 v9, 4, v1")
    A("v_lshlrev_b32 v9, 3, v9")
    A("s_lshl_b32 s48, s44, 12")
    A("s_add_u32 s48, s48, %d" % F_XT)
    A("s_lshl_b32 s50, s44, 7")
    A("s_add_u32 s50, s50, %d" % F_XC)
    P, C, Tm = 224, 240, 244
    A("s_sleep %d" % int(os.environ.get("ROWPRE", 32)))
    def row_loads():
        for t in range(8):
            A("s_mov_b32 s51, %d" % (F_ROWG + 2048 * t))
            A("buffer_load_dwordx2 %s, v7, s[36:39], s51 offen sc1" % v(RG + 2 * t, 2))
    row_loads()
    Lp = A.newlabel("hp"); Ld = A.newlabel("hok")
    A("s_mov_b32 s52, 0")
    A.label(Lp)
    for i in range(4):
        A("buffer_load_dwordx4 %s, v8, s[36:39], s48 offen offset:%d sc1" % (v(P + 4 * i, 4), 1024 * i))
    for i in range(4):
        A("buffer_load_dword %s, v9, s[36:39], s50 offen offset:%d sc1" % (v(C + i), 32 * i))
    A("s_waitcnt vmcnt(0)")
    for i in range(4):
        A("v_xor_b32 %s, %s, %s" % (v(Tm + i), v(P + 4 * i), v(P + 1 + 4 * i)))
    for i in range(4):
        A("v_xor_b32 %s, %s, %s" % (v(Tm + 4 + i), v(P + 2 + 4 * i), v(P + 3 + 4 * i)))
    for i in range(4):
        A("v_xor_b32 %s, %s, %s" % (v(Tm + i), v(Tm + i), v(Tm + 4 + i)))
    row_xor_reduce(A, [Tm, Tm + 1, Tm + 2, Tm + 3])
    for i in range(4):
        A("v_xor_b32 %s, %s, %s" % (v(Tm + i), v(Tm + i), v(C + i)))
    A("v_cmp_eq_u32 vcc, s%d, %s" % (TAG, v(Tm)))
    for i in range(1, 4):
        A("v_cmp_eq_u32 s[54:55], s%d, %s" % (TAG, v(Tm + i)))
        A("s_and_b64 vcc, vcc, s[54:55]")
    A("s_andn2_b64 exec, exec, vcc")
    A("s_cbranch_scc0 %s" % Ld)
    A("s_add_u32 s52, s52, 1")
    A("s_cmp_gt_u32 s52, %d" % POLL_MAX)
    A("s_cbranch_scc1 %s" % Ld)
    A("s_sleep %d" % int(os.environ.get("ROWSLEEP", 8)))
    A("s_branch %s" % Lp)
    A.label(Ld)
    A("s_mov_b64 exec, -1")
    ROWPOLL = True
    st_(A, 10)
    A("v_mov_b32 v11, %d" % FLAGS)
    A("v_mov_b32 v12, 1")
    lds_signal(A, 4, "v11", "v12")
    lds_wait(A, 4, 4, "v11", "v13", sleep=1)
    st_(A, 2 + 7)
    A("v_lshlrev_b32 v8, 1, v5")
    A("s_lshl_b32 s48, s41, 14")
    A("s_add_u32 s48, s48, %d" % F_XT)
    for c in range(4):
        for t in range(8):
            A("buffer_load_short_d16_hi %s, v8, s[36:39], s48 offen offset:%d sc1" % (v(X + 4 * t + c), 512 * t))
        A("s_add_u32 s48, s48, 4096")
    first_then_poll(A, "row", row_loads, list(range(RG + 1, RG + 16, 2)), int(os.environ.get("ROWSLEEP", 8)), "-1", first_cnt=32)
    if FAST:
        for t in range(8):
            st = 176 + 4 * t
            A("v_and_b32 %s, s40, %s" % (v(st), v(RG + 2 * t)))
            A("v_lshlrev_b32 %s, 16, %s" % (v(st + 2), v(RG + 2 * t)))
        for t in range(8):
            st = 176 + 4 * t
            A("v_rcp_f32 %s, %s" % (v(st), v(st)))
        for t in range(8):
            st = 176 + 4 * t
            A("v_mul_f32_e64 %s, -%s, %s" % (v(st + 2), v(st + 2), v(st)))
            A("v_mov_b32 %s, %s" % (v(st + 1), v(st)))
        for t in range(8):
            st = 176 + 4 * t
            A("v_mov_b32 %s, %s" % (v(st + 3), v(st + 2)))
        A("s_waitcnt vmcnt(0)")
        st_(A, 3)
        for t in range(8):
            st = 176 + 4 * t
            for p in range(2):
                x, xn = X + 4 * t + 2 * p, XN + 4 * t + 2 * p
                A("v_pk_fma_f32 %s, %s, %s, %s" % (v(xn, 2), v(x, 2), v(st, 2), v(st + 2, 2)))
    else:
        for t in range(8):
            stats_from_msd(A, RG + 2 * t, 176 + 6 * t, 40)
        A("s_waitcnt vmcnt(0)")
        st_(A, 3)
        for t in range(8):
            st = 176 + 6 * t
            streams = []
            for p in range(2):
                x, xn = X + 4 * t + 2 * p, XN + 4 * t + 2 * p
                tm = 56 + 4 * p
                P = Asm()
                P("v_pk_add_f32 %s, %s, %s" % (v(tm, 2), v(x, 2), v(st, 2)))
                round_pair(P, tm, tm + 1, tm + 2, 40)
                P("v_pk_mul_f32 %s, %s, %s" % (v(xn, 2), v(tm, 2), v(st + 2, 2)))
                P("v_pk_fma_f32 %s, %s, %s, %s" % (v(tm, 2), v(xn, 2), v(st + 4, 2), v(tm, 2)))
                P("v_pk_fma_f32 %s, %s, %s, %s" % (v(xn, 2), v(tm, 2), v(st + 2, 2), v(xn, 2)))
                round_pair(P, xn, xn + 1, tm + 2, 40)
                streams.append([l.strip() for l in P.lines])
            interleave(A, streams)
    st_(A, 4)
    dbg_time(A, 11)
    A("v_lshlrev_b32 v9, 1, v5")
    A("v_add_u32 v9, %d, v9" % YOFF)
    A("v_add_u32 v10, %d, v9" % (2 * CH_LDS))
    A("v_mov_b32 v11, %d" % FLAGS)
    for i in range(4):
        A("v_mov_b32 %s, 0" % v(40 + i))
    A("v_and_b32 v8, 7, v1")
    A("v_lshlrev_b32 v8, 3, v8")
    def sel_loads():
        A("s_movk_i32 s51, %d" % F_SELG)
        A("buffer_load_dwordx2 v[180:181], v8, s[36:39], s51 offen sc1")
    sel_loads_m = sel_loads
    masked_poll(A, "sel", sel_loads_m, [181], 4, 0)
    A("v_lshrrev_b32 v183, 16, v180")
    A("v_and_b32 v46, 0x8000, v183")
    A("v_mov_b32 v47, 0xffff")
    A("v_mov_b32 v48, 0x8000")
    A("v_cmp_ne_u32 vcc, 0, v46")
    A("v_and_b32 v182, 0xffff, v180")
    A("v_sub_u32 v182, 2047, v182")
    A("v_cndmask_b32 v47, v47, v48, vcc")
    A("v_xor_b32 v183, v183, v47")
    A("v_lshlrev_b32 v183, 16, v183")
    A("v_mul_f32 v183, 0xbfb8aa3b, v183")
    A("v_exp_f32 v183, v183")
    A.nop(1)
    A("v_add_f32 v183, 1.0, v183")
    A("v_rcp_f32 v183, v183")
    A.nop(1)
    A("v_cvt_pk_bf16_f32 v183, v183, v183")
    A("v_lshlrev_b32 v183, 16, v183")
    A("v_mov_b32 v184, 0")
    for i in range(8):
        A("v_readlane_b32 s51, v182, %d" % i)
        A("s_nop 3")
        A("s_lshr_b32 s58, s51, 8")
        A("s_lshl_b32 s58, 1, s58")
        A("s_and_b32 s51, s51, 255")
        A("v_mov_b32 v185, s58")
        A("v_cmp_eq_u32 vcc, s51, v5")
        A("s_nop 1")
        A("v_cndmask_b32 v185, 0, v185, vcc")
        A("v_or_b32 v184, v184, v185")
    A("s_mov_b32 s59, 0")
    A("s_setprio %d" % int(os.environ.get("HPRIO2", 1)))
    for t in range(8):
        Lw = A.newlabel("yw"); Lg = A.newlabel("yg")
        A("s_cmp_gt_u32 s59, %d" % t)
        A("s_cbranch_scc1 %s" % Lg)
        A("s_mov_b32 s52, 0")
        A.label(Lw)
        A("ds_read_b128 v[16:19], v11")
        A("s_add_u32 s52, s52, 1")
        A("s_waitcnt lgkmcnt(0)")
        A("v_min_u32 v16, v16, v17")
        A("v_min3_u32 v16, v16, v18, v19")
        A("s_cmp_gt_u32 s52, %d" % POLL_MAX)
        A("v_readfirstlane_b32 s59, v16")
        A("s_cbranch_scc1 %s" % Lg)
        A("s_nop 1")
        A("s_cmp_gt_u32 s59, %d" % t)
        A("s_cbranch_scc1 %s" % Lg)
        A("s_sleep 1")
        A("s_branch %s" % Lw)
        A.label(Lg)
        if os.environ.get("HST") and t in (0, 2, 4, 7):
            st_(A, {0: 11, 2: 12, 4: 13, 7: 14}[t])
        A("ds_read_u16_d16_hi v40, v9 offset:%d" % (512 * t))
        A("ds_read_u16_d16_hi v41, v9 offset:%d" % (512 * t + CH_LDS))
        A("ds_read_u16_d16_hi v42, v10 offset:%d" % (512 * t))
        A("ds_read_u16_d16_hi v43, v10 offset:%d" % (512 * t + CH_LDS))
        A("s_waitcnt lgkmcnt(0)")
        if FAST:
            for p in range(2):
                x, xn, t1 = X + 4 * t + 2 * p, XN + 4 * t + 2 * p, T1 + 4 * t + 2 * p
                A("v_pk_fma_f32 %s, %s, %s, %s" % (v(t1, 2), v(xn, 2), v(40 + 2 * p, 2), v(xn, 2)))
            for p in range(2):
                x, xn, t1 = X + 4 * t + 2 * p, XN + 4 * t + 2 * p, T1 + 4 * t + 2 * p
                A("v_pk_add_f32 %s, %s, %s" % (v(t1, 2), v(t1, 2), v(x, 2)))
            for p in range(2):
                t1 = T1 + 4 * t + 2 * p
                A("v_cvt_pk_bf16_f32 %s, %s, %s" % (v(44 + 2 * (t % 2) + p), v(t1), v(t1 + 1)))
        else:
            streams = []
            for p in range(2):
                x, xn, t1 = X + 4 * t + 2 * p, XN + 4 * t + 2 * p, T1 + 4 * t + 2 * p
                tm = 56 + 4 * p
                P = Asm()
                P("v_pk_mul_f32 %s, %s, %s" % (v(tm, 2), v(xn, 2), v(40 + 2 * p, 2)))
                round_pair(P, tm, tm + 1, tm + 2, 40)
                P("v_pk_add_f32 %s, %s, %s" % (v(t1, 2), v(x, 2), v(tm, 2)))
                round_pair(P, t1, t1 + 1, tm + 2, 40)
                P("v_pk_add_f32 %s, %s, %s" % (v(tm, 2), v(t1, 2), v(xn, 2)))
                P("v_cvt_pk_bf16_f32 %s, %s, %s" % (v(44 + 2 * (t % 2) + p), v(tm), v(tm + 1)))
                streams.append([l.strip() for l in P.lines])
            interleave(A, streams)
        A("v_and_b32 v48, %d, v184" % (1 << t))
        A("s_mov_b32 s51, %d" % (t * 256 * 1152))
        A("v_cmp_eq_u32 vcc, 0, v48")
        A("s_mov_b64 exec, vcc")
        A("buffer_store_dwordx2 %s, v6, s[20:23], s51 offen" % v(44 + 2 * (t % 2), 2) + os.environ.get("OUTPOL", ""))
        A("s_mov_b64 exec, -1")
    st_(A, 5)
    dbg_time(A, 9)
    for i in range(8):
        Ls = A.newlabel("ns")
        A("v_readlane_b32 s51, v182, %d" % i)
        A("v_mov_b32 v52, %d" % (SIDE + 32 * i))
        A("s_nop 2")
        A("s_bfe_u32 s58, s51, 0x20006")
        A("s_cmp_lg_u32 s58, s43")
        A("s_cbranch_scc1 %s" % Ls)
        A("s_lshr_b32 s58, s51, 8")
        A("s_lshl_b32 s58, s58, 2")
        A("s_and_b32 s51, s51, 255")
        A("v_cmp_eq_u32 vcc, s51, v5")
        A("s_set_gpr_idx_on s58, gpr_idx(SRC0)")
        for k in range(4):
            A("v_mov_b32 %s, %s" % (v(36 + k), v(T1 + k)))
        for k in range(4):
            A("v_mov_b32 %s, %s" % (v(40 + k), v(XN + k)))
        A("s_set_gpr_idx_off")
        A("s_mov_b64 exec, vcc")
        A("ds_write_b128 v52, v[36:39]")
        A("ds_write_b128 v52, v[40:43] offset:16")
        A("s_mov_b64 exec, -1")
        A.label(Ls)
    A("s_waitcnt lgkmcnt(0)")
    A("v_mov_b32 v11, %d" % FLAGS)
    A("v_mov_b32 v12, 1")
    lds_signal(A, 6, "v11", "v12")
    st_(A, 6)
    Lend = A.newlabel("hend")
    A("s_cmp_lg_u32 s42, 4")
    A("s_cbranch_scc1 %s" % Lend)
    A("v_lshlrev_b32 v18, 4, v1")
    A("v_add_u32 v19, %d, v18" % RED)
    A("v_lshlrev_b32 v20, 5, v1")
    A("v_add_u32 v53, %d, v20" % SIDE)
    A("s_movk_i32 s51, 1152")
    A("v_mul_lo_u32 v44, v182, s51")
    A("s_lshl_b32 s51, s41, 3")
    A("v_add_u32 v44, s51, v44")
    lds_wait(A, 6, 4, "v11", "v12", sleep=0)
    A("s_mov_b64 exec, 0xff")
    A("ds_read_b128 v[36:39], v53")
    A("ds_read_b128 v[40:43], v53 offset:16")
    A("s_mov_b64 exec, -1")
    lds_wait(A, 5, 4, "v11", "v12", sleep=0)
    st_(A, 7)
    A("s_mov_b64 exec, 0xff")
    for w in range(4):
        A("ds_read_b128 %s, v19 offset:%d" % (v(20 + 4 * w, 4), 128 * w))
    A("s_waitcnt lgkmcnt(0)")
    for k in range(4):
        A("v_add_f32 %s, %s, %s" % (v(20 + k), v(20 + k), v(24 + k)))
        A("v_add_f32 %s, %s, %s" % (v(28 + k), v(28 + k), v(32 + k)))
    for k in range(4):
        A("v_add_f32 %s, %s, %s" % (v(20 + k), v(20 + k), v(28 + k)))
    if FAST:
        for k in range(4):
            A("v_fma_f32 %s, %s, v183, %s" % (v(20 + k), v(20 + k), v(36 + k)))
        A.nop(1)
    else:
        A.nop(1)
        round_pair(A, 20, 21, 24, 40); round_pair(A, 22, 23, 25, 40)
        for k in range(4):
            A("v_mul_f32 %s, %s, v183" % (v(20 + k), v(20 + k)))
        A.nop(1)
        round_pair(A, 20, 21, 24, 40); round_pair(A, 22, 23, 25, 40)
        for k in range(4):
            A("v_add_f32 %s, %s, %s" % (v(20 + k), v(20 + k), v(40 + k)))
        A.nop(1)
        round_pair(A, 20, 21, 24, 40); round_pair(A, 22, 23, 25, 40)
        for k in range(4):
            A("v_add_f32 %s, %s, %s" % (v(20 + k), v(20 + k), v(36 + k)))
        A.nop(1)
    A("v_cvt_pk_bf16_f32 v24, v20, v21")
    A("v_cvt_pk_bf16_f32 v25, v22, v23")
    A("buffer_store_dwordx2 v[24:25], v44, s[20:23], 0 offen")
    A("s_mov_b64 exec, -1")
    A.label(Lend)
    st_(A, 8, end=True)
    dbg_time(A, 2)
    if os.environ.get("CALD"):
        L = A.newlabel("cal")
        A.label(L)
        A("s_memrealtime s[96:97]")
        A("s_waitcnt lgkmcnt(0)")
        A("s_sub_u32 s96, s96, s100")
        A("s_cmp_lt_u32 s96, %d" % int(os.environ["CALD"]))
        A("s_cbranch_scc1 %s" % L)
    A("s_endpgm")

def gen_conv_wg(A):
    A("s_and_b32 s43, s42, 3")
    A("s_lshl_b32 s44, s41, 2")
    A("s_add_u32 s44, s44, s43")
    A("s_mul_i32 s45, s43, %d" % CH_LDS)
    Lm = A.newlabel("cm"); Lh = A.newlabel("ch"); Lj = A.newlabel("cj")
    dbg_time(A, 0)
    A("s_lshr_b32 s60, s41, 4")
    A("s_and_b32 s61, s41, 15")
    A("v_mov_b32 v200, 0"); A("v_mov_b32 v201, 0")
    A("s_cmp_ge_u32 s42, 4")
    A("s_cbranch_scc1 %s" % Lh)
    A("s_setprio 2")
    gen_kv_issue(A)
    gen_kv_addr(A)
    gen_kv_addr2(A)
    finish_tag(A)
    flags_barrier(A)
    A("s_branch %s" % Lj)
    A.label(Lh)
    gen_kv_addr(A)
    gen_kv_addr2(A)
    finish_tag(A)
    A.label(Lj)
    gen_kv_compute(A)
    publish_alive(A)
    A("s_barrier")
    A("s_cmp_lt_u32 s42, 4")
    A("s_cbranch_scc1 %s" % Lm)
    h_early_loads(A)
    gen_H(A)
    A.label(Lm)
    gen_M(A)

def finish_tag(A):
    A("s_waitcnt lgkmcnt(0)")
    A("s_mul_i32 s%d, s%d, 0x9E3779B1" % (TAG, TAG))
    A("s_add_u32 s%d, s%d, 0x7F4A7C15" % (TAG, TAG))

def flags_barrier(A, alive=False):
    A("v_mov_b32 v36, 0")
    A("v_mov_b32 v37, %d" % FLAGS)
    A("v_mov_b32 v38, 0"); A("v_mov_b32 v39, 0"); A("v_mov_b32 v40, 0"); A("v_mov_b32 v41, 0")
    A("ds_write_b128 v37, v[38:41]")
    A("ds_write_b128 v37, v[38:41] offset:16")
    A("s_waitcnt lgkmcnt(0)")

def publish_alive(A):
    Ln = A.newlabel("noalive")
    A("s_cmp_lg_u32 s42, 0")
    A("s_cbranch_scc1 %s" % Ln)
    A("s_lshl_b32 s63, s41, 2")
    A("s_add_u32 s63, s63, %d" % F_ALIVE)
    A("v_mov_b32 v37, s%d" % TAG)
    A("v_mov_b32 v36, 0")
    A("s_mov_b64 exec, 1")
    A("buffer_store_dword v37, v36, s[36:39], s63 offen sc1")
    A("s_mov_b64 exec, -1")
    A.label(Ln)


BITONIC8 = [(0,4),(1,5),(2,6),(3,7),(0,2),(1,3),(4,6),(5,7),(0,1),(2,3),(4,5),(6,7)]
def merge8(A, a, b, out, spare, dpp=None):
    for i in range(7, -1, -1):
        if dpp:
            A("v_max_u32_dpp %s, %s, %s %s bank_mask:0xf" % (v(out[i]), v(b[7 - i]), v(a[i]), dpp))
        else:
            A("v_max_u32 %s, %s, %s" % (v(out[i]), v(a[i]), v(b[7 - i])))
    return sort_desc(A, out, spare, BITONIC8)

def top8_wave(A, regs, spare, other):
    cur, oth = list(regs), list(other)
    for ctl in ("quad_perm:[1,0,3,2] row_mask:0xf", "quad_perm:[2,3,0,1] row_mask:0xf", "row_half_mirror row_mask:0xf",
                "row_mirror row_mask:0xf", "row_bcast:15 row_mask:0xa", "row_bcast:31 row_mask:0xc"):
        A.nop(1)
        free = list(cur)
        new, spare2 = merge8(A, cur, cur, oth, spare, dpp=ctl)
        pool = [r for r in (free + oth + [spare]) if r not in new]
        spare = pool[0]
        oth = pool[1:9]
        cur = new
    return cur, spare, oth

L_CNT = 162368

def lds_signal(A, k, vaddr, vone):
    A("s_mov_b64 exec, 1")
    A("ds_add_u32 %s, %s offset:%d" % (vaddr, vone, 4 * k))
    A("s_mov_b64 exec, -1")

def lds_wait(A, k, n, vaddr, vtmp, sleep=0):
    L = A.newlabel("lw"); Ld = A.newlabel("lwd")
    A("s_mov_b32 s52, 0")
    A.label(L)
    A("ds_read_b32 %s, %s offset:%d" % (vtmp, vaddr, 4 * k))
    A("s_add_u32 s52, s52, 1")
    A("s_waitcnt lgkmcnt(0)")
    A("s_cmp_gt_u32 s52, %d" % (POLL_MAX * 8))
    A("v_readfirstlane_b32 s51, %s" % vtmp)
    A("s_cbranch_scc1 %s" % Ld)
    A("s_nop 1")
    A("s_cmp_ge_u32 s51, %d" % n)
    A("s_cbranch_scc1 %s" % Ld)
    if sleep:
        A("s_sleep %d" % sleep)
    A("s_branch %s" % L)
    A.label(Ld)

def gen_moe_wg(A):
    T = "s%d" % TAG
    A("v_and_b32 v1, 63, v0")
    A("v_and_b32 v4, 255, v0")
    A("v_mov_b32 v8, %d" % L_CNT)
    A("v_mov_b32 v9, 1")
    Lt = A.newlabel("twave")
    A("s_cmp_ge_u32 s42, 4")
    A("s_cbranch_scc1 %s" % Lt)
    G, U, WD = 16, 88, 160
    A("v_mov_b32 v232, 0"); A("v_mov_b32 v233, 0"); A("v_mov_b32 v234, 0"); A("v_mov_b32 v235, 0")
    A("ds_write_b128 v8, v[232:235]"); A("ds_write_b128 v8, v[232:235] offset:16")
    srd(A, 48, PWG, D * F * 2)
    srd(A, 52, PWU, D * F * 2)
    srd(A, 56, PWD, D * F * 2)
    A("v_lshrrev_b32 v5, 3, v1")
    A("v_mul_u32_u24 v5, 9216, v5")
    A("v_bfe_u32 v6, v1, 4, 1")
    A("s_and_b32 s43, s42, 1")
    A("s_lshl_b32 s43, s43, 1")
    A("v_or_b32 v6, s43, v6")
    A("v_lshlrev_b32 v6, 1, v6")
    A("v_and_b32 v7, 7, v1")
    A("v_xor_b32 v6, v6, v7")
    A("v_lshl_add_u32 v5, v6, 4, v5")
    A("s_lshl_b32 s43, s41, 7")
    A("s_mul_i32 s44, s42, 73728")
    A("s_add_u32 s43, s43, s44")
    A("s_lshl_b32 s44, s42, 10")
    A("s_waitcnt lgkmcnt(0)")
    B0AT = int(os.environ.get("B0AT", 0))
    for j in range(18):
        if j == B0AT:
            A("s_barrier")
        A("s_mov_b32 m0, s44")
        A("s_add_u32 s45, s44, %d" % L_WU)
        A("buffer_load_dwordx4 v5, s[48:51], s43 offen lds" + NTS)
        A("s_mov_b32 m0, s45")
        A("s_add_u32 s44, s44, 4096")
        A("buffer_load_dwordx4 v5, s[52:55], s43 offen lds" + NTS)
        A("s_add_u32 s43, s43, %d" % (4 * 73728))
    A("v_lshrrev_b32 v6, 3, v4")
    A("v_mul_u32_u24 v7, 1152, v6")
    A("v_and_b32 v12, 7, v4")
    A("v_lshl_add_u32 v236, v12, 4, v7")
    A("v_bfe_u32 v14, v6, 1, 1")
    A("v_bfe_u32 v11, v6, 3, 1")
    A("v_lshl_add_u32 v14, v11, 1, v14")
    A("v_lshlrev_b32 v14, 1, v14")
    A("v_xor_b32 v14, v14, v12")
    A("v_lshl_add_u32 v14, v14, 4, v7")
    A("v_add_u32 v15, 36864, v14")
    A("v_and_b32 v2, 15, v0")
    A("v_bfe_u32 v3, v0, 4, 2")
    A("v_lshrrev_b32 v10, 2, v2")
    A("v_lshl_add_u32 v11, v3, 3, v10")
    A("v_bfe_u32 v12, v2, 3, 1")
    A("v_and_b32 v13, 1, v3")
    A("v_lshl_add_u32 v12, v13, 1, v12")
    A("v_xor_b32 v12, s42, v12")
    A("v_and_b32 v13, 3, v2")
    A("v_lshlrev_b32 v13, 3, v13")
    A("v_lshl_add_u32 v12, v12, 5, v13")
    A("v_lshl_add_u32 v5, v11, 7, v12")
    A("v_add_u32 v6, 36864, v5")
    A("v_mul_u32_u24 v7, 1152, v11")
    A("v_add_u32 v7, v7, v12")
    A("v_add_u32 v10, 36864, v7")
    st_(A, 1)
    A("v_add_u32 v12, %d, v5" % L_WU)
    A("v_add_u32 v13, %d, v6" % L_WU)
    nst = 1 if (common.STAMPS and not LIGHT) else 0
    A("v_lshrrev_b32 v232, 3, v1")
    A("v_mul_u32_u24 v232, 1152, v232")
    A("v_bfe_u32 v233, v1, 4, 1")
    A("s_and_b32 s43, s42, 1")
    A("s_lshl_b32 s43, s43, 1")
    A("v_or_b32 v233, s43, v233")
    A("v_lshlrev_b32 v233, 1, v233")
    A("v_and_b32 v234, 7, v1")
    A("v_xor_b32 v233, v233, v234")
    A("v_lshl_add_u32 v236, v233, 4, v232")
    def rd6(ph):
        for kk in range(6 * ph, 6 * ph + 6):
            bg, bu, ko = ("v5", "v12", kk) if kk < 9 else ("v6", "v13", kk - 9)
            A("ds_read_b64_tr_b16 %s, %s offset:%d" % (v(G + 4 * kk, 2), bg, 4096 * ko))
            A("ds_read_b64_tr_b16 %s, %s offset:%d" % (v(G + 4 * kk + 2, 2), bg, 4096 * ko + 512))
            A("ds_read_b64_tr_b16 %s, %s offset:%d" % (v(U + 4 * kk, 2), bu, 4096 * ko))
            A("ds_read_b64_tr_b16 %s, %s offset:%d" % (v(U + 4 * kk + 2, 2), bu, 4096 * ko + 512))
    A("s_waitcnt vmcnt(%d)" % (24 + nst))
    lds_signal(A, 0, "v8", "v9")
    lds_wait(A, 0, 4, "v8", "v11")
    rd6(0)
    A("s_waitcnt vmcnt(%d)" % (12 + nst))
    lds_signal(A, 7, "v8", "v9")
    lds_wait(A, 7, 4, "v8", "v11")
    rd6(1)
    A("s_waitcnt lgkmcnt(0)")
    lds_signal(A, 1, "v8", "v9")
    lds_wait(A, 1, 4, "v8", "v11")
    for half in range(2):
        A("s_mul_i32 s43, s41, 73728")
        A("s_mul_i32 s44, s42, 9216")
        A("s_add_u32 s43, s43, s44")
        if half:
            A("s_add_u32 s43, s43, 36864")
            A("s_add_u32 s44, s44, %d" % L_WU)
        for sg in range(9):
            A("s_mov_b32 m0, s44")
            A("s_add_u32 s44, s44, 1024")
            A("buffer_load_dwordx4 v236, s[56:59], s43 offen offset:%d lds" % 0 + NTS)
            A("s_add_u32 s43, s43, 128")
    A("s_waitcnt vmcnt(18)")
    lds_signal(A, 6, "v8", "v9")
    lds_wait(A, 6, 4, "v8", "v11")
    st_(A, 2)
    dbg_time(A, 7)
    rd6(2)
    st_(A, 7)
    A("v_lshrrev_b32 v232, 2, v2")
    A("v_mul_u32_u24 v14, 9216, v3")
    A("v_lshl_add_u32 v14, v232, 7, v14")
    A("v_bfe_u32 v233, v2, 3, 1")
    A("v_and_b32 v234, 1, v3")
    A("v_lshl_add_u32 v233, v234, 1, v233")
    A("v_xor_b32 v233, s42, v233")
    A("v_lshl_add_u32 v14, v233, 5, v14")
    A("v_and_b32 v234, 3, v2")
    A("v_lshl_add_u32 v14, v234, 3, v14")
    A("v_add_u32 v15, %d, v14" % L_WU)
    A("v_and_b32 v12, 7, v2")
    A("v_mul_u32_u24 v5, %d, v12" % XSTR)
    A("v_lshl_add_u32 v5, v3, 4, v5")
    A("v_add_u32 v5, %d, v5" % L_X)
    A("v_mul_u32_u24 v6, %d, v2" % HSTR)
    A("v_lshl_add_u32 v6, v3, 3, v6")
    A("s_lshl_b32 s43, s42, 5")
    A("s_add_u32 s43, s43, %d" % L_HS)
    A("v_add_u32 v6, s43, v6")
    A("v_mul_u32_u24 v7, %d, v12" % HSTR)
    A("v_lshl_add_u32 v7, v3, 4, v7")
    A("v_add_u32 v7, %d, v7" % L_HS)
    A("v_mul_u32_u24 v10, 2304, v12")
    A("v_lshl_add_u32 v10, v3, 4, v10")
    A("v_bfe_u32 v13, v2, 3, 1")
    A("v_lshl_add_u32 v10, v13, 8, v10")
    A("v_cmp_eq_u32 s[56:57], 1, v13")
    A("s_mul_i32 s43, s41, 18432")
    A("s_lshl_b32 s44, s42, 6")
    A("s_add_u32 s43, s43, s44")
    A("s_add_u32 s43, s43, %d" % F_PARTG)
    A("v_mov_b32 v13, %d" % L_TAG)
    for i in range(8):
        A("v_mov_b32 %s, 0" % v(232 + i))
    A("s_waitcnt lgkmcnt(0)")
    LW = A.newlabel("Wb"); LG = A.newlabel("Gb"); LD = A.newlabel("Db")
    A("s_mov_b32 s14, 0"); A("s_mov_b32 s15, 0")
    A("ds_read_b32 v11, v8 offset:16")
    A("s_waitcnt lgkmcnt(0)")
    A("v_readfirstlane_b32 s51, v11")
    A("s_nop 3")
    A("s_cmp_ge_u32 s51, 4")
    A("s_cbranch_scc1 %s" % LG)
    A.label(LW)
    A("s_waitcnt vmcnt(0)")
    lds_signal(A, 2, "v8", "v9")
    lds_wait(A, 2, 4, "v8", "v11")
    for k in range(9):
        r = WD + 8 * k
        A("ds_read_b64_tr_b16 %s, v14 offset:%d" % (v(r, 2), 1024 * k))
        A("ds_read_b64_tr_b16 %s, v14 offset:%d" % (v(r + 2, 2), 1024 * k + 512))
        A("ds_read_b64_tr_b16 %s, v15 offset:%d" % (v(r + 4, 2), 1024 * k))
        A("ds_read_b64_tr_b16 %s, v15 offset:%d" % (v(r + 6, 2), 1024 * k + 512))
    A("s_waitcnt lgkmcnt(0)")
    A("s_mov_b32 s14, 1")
    st_(A, 3)
    dbg_time(A, 12)
    A("s_cmp_eq_u32 s15, 1")
    A("s_cbranch_scc1 %s" % LD)
    A.label(LG)
    lds_wait(A, 4, 4, "v8", "v11")
    st_(A, 4)
    A("ds_read_b32 v12, v13")
    XR = 240
    for kk in range(3):
        A("ds_read_b128 %s, v5 offset:%d" % (v(XR + 4 * kk, 4), 64 * kk))
    for kk in range(18):
        if kk + 3 < 18:
            A("ds_read_b128 %s, v5 offset:%d" % (v(XR + 4 * ((kk + 3) % 4), 4), 64 * (kk + 3)))
        A("s_waitcnt lgkmcnt(%d)" % min(3, 17 - kk))
        x = v(XR + 4 * (kk % 4), 4)
        A("v_mfma_f32_16x16x32_bf16 v[232:235], %s, %s, v[232:235]" % (v(G + 4 * kk, 4), x))
        A("v_mfma_f32_16x16x32_bf16 v[236:239], %s, %s, v[236:239]" % (v(U + 4 * kk, 4), x))
    A("v_readfirstlane_b32 %s, v12" % T)
    A.nop(6)
    if FAST:
        for i in range(4):
            A("v_mul_f32 %s, 0xbfb8aa3b, %s" % (v(20 + i), v(232 + i)))
        for i in range(4):
            A("v_exp_f32 %s, %s" % (v(20 + i), v(20 + i)))
        for i in range(4):
            A("v_mul_f32 %s, %s, %s" % (v(232 + i), v(232 + i), v(236 + i)))
        for i in range(4):
            A("v_add_f32 %s, 1.0, %s" % (v(20 + i), v(20 + i)))
        for i in range(4):
            A("v_rcp_f32 %s, %s" % (v(20 + i), v(20 + i)))
        A.nop(1)
        for i in range(4):
            A("v_mul_f32 %s, %s, %s" % (v(232 + i), v(232 + i), v(20 + i)))
        A.nop(1)
    else:
        round_pair(A, 232, 233, 16, 40); round_pair(A, 234, 235, 17, 40)
        for i in range(4):
            A("v_mul_f32 %s, 0xbfb8aa3b, %s" % (v(20 + i), v(232 + i)))
        for i in range(4):
            A("v_exp_f32 %s, %s" % (v(20 + i), v(20 + i)))
        round_pair(A, 236, 237, 16, 40); round_pair(A, 238, 239, 17, 40)
        for i in range(4):
            A("v_add_f32 %s, 1.0, %s" % (v(20 + i), v(20 + i)))
        for i in range(4):
            A("v_rcp_f32 %s, %s" % (v(20 + i), v(20 + i)))
        A.nop(1)
        for i in range(4):
            A("v_mul_f32 %s, %s, %s" % (v(232 + i), v(232 + i), v(20 + i)))
        A.nop(1)
        round_pair(A, 232, 233, 16, 40); round_pair(A, 234, 235, 17, 40)
        for i in range(4):
            A("v_mul_f32 %s, %s, %s" % (v(232 + i), v(232 + i), v(236 + i)))
        A.nop(1)
    A("v_cvt_pk_bf16_f32 v16, v232, v233")
    A("v_cvt_pk_bf16_f32 v17, v234, v235")
    A("v_cmp_gt_u32 vcc, 8, v2")
    A("s_and_saveexec_b64 s[44:45], vcc")
    A("ds_write_b64 v6, v[16:17]")
    A("s_mov_b64 exec, s[44:45]")
    A("s_mov_b32 s58, 0xffffff00")
    A("s_movk_i32 s59, 0x80")
    A("s_waitcnt lgkmcnt(0)")
    lds_signal(A, 5, "v8", "v9")
    A("s_mov_b32 s15, 1")
    A("s_cmp_eq_u32 s14, 0")
    A("s_cbranch_scc1 %s" % LW)
    A.label(LD)
    lds_wait(A, 5, 4, "v8", "v11")
    st_(A, 5)
    A("ds_read_b128 v[16:19], v7")
    A("ds_read_b128 v[20:23], v7 offset:64")
    A("s_waitcnt lgkmcnt(0)")
    AC = 88
    for k in range(9):
        r = WD + 8 * k
        A("v_mfma_f32_16x16x32_bf16 %s, %s, v[16:19], 0" % (v(AC + 4 * k, 4), v(r, 4)))
    for k in range(9):
        r = WD + 8 * k
        A("v_mfma_f32_16x16x32_bf16 %s, %s, v[20:23], %s" % (v(AC + 4 * k, 4), v(r + 4, 4), v(AC + 4 * k, 4)))
    A.nop(4)
    for kp in range(5):
        k = 2 * kp
        ac, ac2 = AC + 4 * k, AC + 4 * min(k + 1, 8)
        o = 24 + 8 * kp
        for i in range(4):
            A("v_cndmask_b32 %s, %s, %s, s[56:57]" % (v(o + i), v(ac + i), v(ac2 + i)))
        for i in range(4):
            A("v_add_u32 %s, s59, %s" % (v(o + i), v(o + i)))
        A("v_lshrrev_b32 %s, 24, %s" % (v(o + 4), v(o + 3)))
        A("v_lshrrev_b32 %s, 16, %s" % (v(o + 5), v(o + 3)))
        A("v_lshrrev_b32 %s, 8, %s" % (v(o + 6), v(o + 3)))
        for i in range(3):
            A("v_bfi_b32 %s, s58, %s, %s" % (v(o + 4 + i), v(o + i), v(o + 4 + i)))
        A("v_xor_b32 %s, %s, %s" % (v(o + 7), v(o + 4), v(o + 5)))
        A("v_xor_b32 %s, %s, %s" % (v(o + 7), v(o + 7), v(o + 6)))
        A("v_xor_b32 %s, %s, %s" % (v(o + 7), T, v(o + 7)))
        if kp == 4:
            A("s_andn2_b64 exec, exec, s[56:57]")
        A("buffer_store_dwordx4 %s, v10, s[36:39], s43 offen offset:%d sc1" % (v(o + 4, 4), 512 * kp))
    A("s_mov_b64 exec, -1")
    st_(A, 6, end=True)
    dbg_time(A, 3)
    A("s_endpgm")
    A.label(Lt)
    A("s_setprio 3")
    A("s_lshl_b32 s60, s41, 2")
    A("s_add_u32 s60, s60, s42")
    A("s_sub_u32 s60, s60, 4")
    Q, WR, X = gen_ln(A)
    A("s_barrier")
    finish_tag(A)
    gen_ln_compute(A, Q, WR, X)
    A("s_setprio %d" % int(os.environ.get("TPRIO", 1)))
    srd(A, 16, PQ, S * ROWB)
    A("v_and_b32 v1, 63, v0")
    A("v_and_b32 v4, 255, v0")
    A("v_mov_b32 v8, %d" % L_CNT)
    A("v_mov_b32 v9, 1")
    A("v_lshlrev_b32 v15, 2, v1")
    A("v_lshlrev_b32 v16, 4, v1")
    A("s_and_b32 s43, s42, 3")
    A("s_lshl_b32 s43, s43, 12")
    A("v_add_u32 v16, s43, v16")
    def key_loads():
        A("s_movk_i32 s43, %d" % F_KEYG)
        for i in range(4):
            A("buffer_load_dwordx4 %s, v16, s[36:39], s43 offen offset:%d sc1" % (v(40 + 4 * i, 4), 1024 * i))
    masked_poll(A, "key", key_loads, list(range(41, 56, 2)), int(os.environ.get("KEYSLEEP", 8)), int(os.environ.get("KEYPRE", 70)))
    A("s_setprio 3")
    st_(A, 3)
    dbg_time(A, 6)
    regs, sp = sort_desc(A, range(40, 56, 2), 41, SORT8)
    SK = 60
    free = [r for r in range(40, 57) if r not in regs and r != sp]
    cur, sp, oth = top8_wave(A, regs, sp, free[:8])
    for i in range(8):
        A("v_mov_b32 %s, %s" % (v(64 + i), v(cur[i])))
    A("s_and_b32 s43, s42, 3")
    A("s_lshl_b32 s43, s43, 5")
    A("s_add_u32 s43, s43, %d" % L_CAND)
    A("v_mov_b32 v16, s43")
    A("v_mov_b32 v31, %s" % T)
    A("v_mov_b32 v17, %d" % L_TAG)
    A("s_mov_b32 exec_lo, 0")
    A("s_mov_b32 exec_hi, 0x80000000")
    A("ds_write_b128 v16, v[64:67]")
    A("ds_write_b128 v16, v[68:71] offset:16")
    A("ds_write_b32 v17, v31")
    A("s_mov_b64 exec, -1")
    A("s_waitcnt lgkmcnt(0)")
    lds_signal(A, 3, "v8", "v9")
    lds_wait(A, 3, 4, "v8", "v11")
    A("v_mov_b32 v16, %d" % L_CAND)
    for i in range(8):
        A("ds_read_b128 %s, v16 offset:%d" % (v(64 + 4 * i, 4), 16 * i))
    A("s_waitcnt lgkmcnt(4)")
    c01, sp1 = merge8(A, list(range(64, 72)), list(range(72, 80)), list(range(40, 48)), 56)
    A("s_waitcnt lgkmcnt(0)")
    c23, sp2 = merge8(A, list(range(80, 88)), list(range(88, 96)), list(range(48, 56)), 57)
    for i in range(8):
        A("v_max_u32 %s, %s, %s" % (v(64 + i), v(c01[i]), v(c23[7 - i])))
    for i in range(8):
        A("v_readfirstlane_b32 %s, %s" % (s(SK + i), v(64 + i)))
    A.nop(3)
    st_(A, 5)
    A("s_and_b32 s45, s42, 3")
    A("s_mov_b32 s43, s60"); A("s_mov_b32 s44, s61")
    for w in range(1, 4):
        A("s_cmp_eq_u32 s45, %d" % w)
        A("s_cselect_b32 s43, %s, s43" % s(SK + 2 * w))
        A("s_cselect_b32 s44, %s, s44" % s(SK + 2 * w + 1))
    A("v_mov_b32 v16, s43"); A("v_mov_b32 v17, s44")
    A("v_cmp_lt_u32 vcc, 31, v1")
    A.nop(2)
    A("v_cndmask_b32 v16, v16, v17, vcc")
    A("v_and_b32 v16, 0xffff, v16")
    A("v_sub_u32 v16, 2047, v16")
    A("v_and_b32 v17, 31, v1")
    A("s_movk_i32 s43, 1152")
    A("v_mul_lo_u32 v18, v16, s43")
    A("v_lshl_add_u32 v18, v17, 2, v18")
    A("v_lshlrev_b32 v19, 3, v16")
    for i in range(9):
        A("buffer_load_dword %s, v18, s[16:19], 0 offen offset:%d" % (v(20 + i), 128 * i))
    def rg_loads():
        A("s_mov_b32 s43, %d" % F_ROWG)
        A("buffer_load_dwordx2 v[32:33], v19, s[36:39], s43 offen sc1")
    Lns = A.newlabel("nosel")
    A("s_cmp_lg_u32 s41, 0")
    A("s_cbranch_scc1 %s" % Lns)
    A("s_cmp_lg_u32 s42, 4")
    A("s_cbranch_scc1 %s" % Lns)
    for i in range(8):
        A("v_writelane_b32 v30, %s, %d" % (s(SK + i), i))
    A("v_lshlrev_b32 v36, 3, v1")
    A("s_movk_i32 s43, %d" % F_SELG)
    A("s_mov_b64 exec, 0xff")
    A("buffer_store_dwordx2 v[30:31], v36, s[36:39], s43 offen sc1")
    A("s_mov_b64 exec, -1")
    A.label(Lns)
    masked_poll(A, "rg", rg_loads, [33], 2, 0)
    if FAST:
        A("v_and_b32 v64, s40, v32"); A("v_lshlrev_b32 v66, 16, v32")
        A("v_rcp_f32 v64, v64")
        A("v_lshrrev_b32 v38, 5, v4")
        A("v_mul_u32_u24 v38, %d, v38" % XSTR)
        A("v_mul_f32_e64 v66, -v66, v64")
        A("v_mov_b32 v65, v64")
        A("v_lshl_add_u32 v38, v17, 2, v38")
        A("v_mov_b32 v67, v66")
        A("v_add_u32 v38, %d, v38" % L_X)
        st_(A, 4)
        for i in range(9):
            unpack_pair(A, 40 + 2 * i, 41 + 2 * i, 20 + i, 40)
        for i in range(9):
            A("v_pk_fma_f32 %s, %s, v[64:65], v[66:67]" % (v(40 + 2 * i, 2), v(40 + 2 * i, 2)))
        for i in range(9):
            A("v_cvt_pk_bf16_f32 %s, %s, %s" % (v(70 + i), v(40 + 2 * i), v(41 + 2 * i)))
        for i in range(9):
            A("ds_write_b32 v38, %s offset:%d" % (v(70 + i), 128 * i))
    else:
        stats_from_msd(A, 32, 64, 70)
        A("v_lshrrev_b32 v38, 5, v4")
        A("v_mul_u32_u24 v38, %d, v38" % XSTR)
        A("v_lshl_add_u32 v38, v17, 2, v38")
        A("v_add_u32 v38, %d, v38" % L_X)
        st_(A, 4)
        for i0 in range(0, 9, 3):
            streams = []
            for i in range(i0, i0 + 3):
                bs = 40 + 8 * (i % 3)
                ops = norm_ops(bs, bs + 2, bs + 4, 20 + i, 64)
                ops.append("v_cvt_pk_bf16_f32 %s, %s, %s" % (v(bs + 6), v(bs + 2), v(bs + 3)))
                ops.append("ds_write_b32 v38, %s offset:%d" % (v(bs + 6), 128 * i))
                streams.append(ops)
            interleave(A, streams)
    A("s_waitcnt lgkmcnt(0)")
    lds_signal(A, 4, "v8", "v9")
    st_(A, 6)
    dbg_time(A, 4)
    Le = A.newlabel("noep")
    A("s_cmp_lg_u32 s41, 0")
    A("s_cbranch_scc1 %s" % Le)
    A("s_cmp_lg_u32 s42, 4")
    A("s_cbranch_scc1 %s" % Le)
    A("s_setprio 0")
    A("v_lshlrev_b32 v16, 2, v1")
    A("v_min_u32 v17, 15, v1")
    A("v_lshlrev_b32 v17, 2, v17")
    def al_loads():
        A("s_movk_i32 s43, %d" % F_ALIVE)
        A("buffer_load_dword v20, v16, s[36:39], s43 offen sc1")
        A("buffer_load_dword v21, v16, s[36:39], s43 offen offset:256 sc1")
        A("buffer_load_dword v22, v17, s[36:39], s43 offen offset:512 sc1")
    masked_poll(A, "al", al_loads, [20, 21, 22], 16, 0)
    A("v_mov_b32 v20, %s" % T)
    A("v_mov_b32 v21, %d" % F_EPOCH)
    A("s_mov_b64 exec, 1")
    A("buffer_store_dword v20, v21, s[36:39], 0 offen sc1")
    A("s_mov_b64 exec, -1")
    A.label(Le)
    A("s_endpgm")

def gen_spare_wg(A):
    A("s_lshl_b32 s60, s41, 3")
    A("s_add_u32 s60, s60, s42")
    A("s_add_u32 s60, s60, 288")
    Lx = A.newlabel("spx")
    A("s_cmp_ge_u32 s60, 512")
    A("s_cbranch_scc1 %s" % Lx)
    Q, WR, X = gen_ln(A)
    finish_tag(A)
    gen_ln_compute(A, Q, WR, X)
    A.label(Lx)
    A("s_endpgm")

def gen_kernel(A, name):
    kernel_header(A, name)
    Ldone = A.newlabel("done"); Lmoe = A.newlabel("moe"); Lsp = A.newlabel("spare")
    if os.environ.get("ICPF", "1") != "0":
        A("s_getpc_b64 s[96:97]")
    if os.environ.get("CALD"):
        A("s_memrealtime s[100:101]")
    A("s_cmp_ge_u32 s2, 256")
    A("s_cbranch_scc1 %s" % Ldone)
    A("s_load_dwordx4 s[68:71], s[0:1], %d" % KA_DBG)
    A("s_load_dwordx16 s[72:87], s[0:1], 0")
    A("s_load_dwordx8 s[88:95], s[0:1], %d" % KA_WG)
    A("v_lshrrev_b32 v1, 6, v0")
    A("s_and_b32 s30, s2, 7")
    A("s_lshr_b32 s31, s2, 3")
    A("v_readfirstlane_b32 s42, v1")
    A("s_mov_b32 s40, 0xffff0000")
    if os.environ.get("ICPF", "1") != "0":
        Lc = A.newlabel("noic")
        A("s_and_b32 s96, s96, 0xffffff00")
        A("s_and_b32 s97, s97, 0xffff")
        A("s_mov_b32 s98, L_code_end-%s" % name)
        A("s_mov_b32 s99, 0x00020000")
        A("v_and_b32 v243, 63, v0")
        A("v_lshlrev_b32 v243, 4, v243")
        A("s_lshl_b32 s95, s31, 10") if False else None
        A("s_lshl_b32 s3, s31, 10")
        A("v_cmp_lt_u32 vcc, 447, v0")
        A("s_cbranch_vccz %s" % Lc)
        A("buffer_load_dwordx4 v[244:247], v243, s[96:99], s3 offen")
        A.label(Lc)
    A("s_waitcnt lgkmcnt(0)")
    A("s_load_dword s%d, s[%d:%d], %d" % (TAG, PWS, PWS + 1, F_EPOCH))
    srd(A, 36, PWS, WS_SIZE)
    A("s_lshl_b32 s3, s2, 3")
    A("s_add_u32 s3, s3, s42")
    st_(A, 0)
    ORD = os.environ.get("ORD", "B")
    if ORD == "A":
        c0, m0, p0 = 0, 18, 27
    else:
        c0, m0, p0 = 14, 5, 0
    A("s_sub_u32 s41, s31, %d" % m0)
    A("s_cmp_lt_u32 s41, 9")
    A("s_cbranch_scc1 %s" % Lmoe)
    A("s_sub_u32 s41, s31, %d" % p0)
    A("s_cmp_lt_u32 s41, 5")
    A("s_cbranch_scc1 %s" % Lsp)
    A("s_sub_u32 s31, s31, %d" % c0)
    A("s_mul_i32 s41, s30, 18")
    A("s_add_u32 s41, s41, s31")
    gen_conv_wg(A)
    A.label(Lmoe)
    A("s_mul_i32 s31, s30, 9")
    A("s_add_u32 s41, s41, s31")
    gen_moe_wg(A)
    A.label(Lsp)
    A("s_mul_i32 s31, s30, 5")
    A("s_add_u32 s41, s41, s31")
    gen_spare_wg(A)
    A.label(Ldone)
    A("s_endpgm")
    A.label("L_code_end")
    return kernel_desc(name, 256, 102, 256)
```
